```python
import torch

def _softmax(x, axis=-1):
    return torch.softmax(x, dim=axis)
def _gelu(x):
    return torch.nn.functional.gelu(x, approximate="tanh")
def _silu(x):
    return torch.nn.functional.silu(x)
def _sigmoid(x):
    return torch.sigmoid(x)
def _layernorm(x, axis=-1, eps=1e-5):
    m = x.mean(dim=axis, keepdim=True)
    v = x.var(dim=axis, keepdim=True, unbiased=False)
    return (x - m) / torch.sqrt(v + eps)
def _scatter_add(tgt, idx, src, axis=0):
    return tgt.clone().index_add_(axis, idx, src)
def _segment_sum(src, seg, n):
    out = torch.zeros((n,) + src.shape[1:], dtype=src.dtype)
    return out.index_add_(0, seg, src)
def _pad(x, pw):
    flat = tuple(v for pair in reversed(pw) for v in pair)
    return torch.nn.functional.pad(x, flat)

kernel_name = 'interleave_layers__ssm_conv_s4d__linear_attn_block__prompt'

def setup_inputs():

    _w = (lambda a: (lambda t: t.to(torch.bfloat16) if t.is_floating_point() else t)(torch.as_tensor(a)))
    def _A_setup():
        Bsz, L, D, N = 1, 2048, 512, 128
        return {
            "u": _w((lambda *s: torch.randn(*s, dtype=torch.bfloat16) * 0.05)(Bsz, L, D)),
            "log_A_real": _w((lambda *s: torch.randn(*s, dtype=torch.bfloat16) * 1.6)(D, N) * 0.5),
            "A_imag": _w((lambda *s: torch.randn(*s, dtype=torch.bfloat16) * 0.05)(D, N) * 3.14),
            "C_real": _w((lambda *s: torch.randn(*s, dtype=torch.bfloat16) * 0.05)(D, N) / N ** 0.5),
            "C_imag": _w((lambda *s: torch.randn(*s, dtype=torch.bfloat16) * 0.05)(D, N) / N ** 0.5),
            "log_dt": _w((lambda *s: torch.randn(*s, dtype=torch.bfloat16) * 0.05)(D) * 0.5 - 4.0),
            "D_skip": _w((lambda *s: torch.randn(*s, dtype=torch.bfloat16) * 0.05)(D)),
        }
    _A_in = _A_setup()

    def _B_setup():
        B, S, D = 1, 2048, 512
        return {
            "x": _w((lambda *s: torch.randn(*s, dtype=torch.bfloat16) * 0.05)(B, S, D)),
            "wqkv": _w((lambda *s: torch.randn(*s, dtype=torch.bfloat16) * 0.05)(D, 3 * D)),
            "wo": _w((lambda *s: torch.randn(*s, dtype=torch.bfloat16) * 0.05)(D, D)),
        }
    _B_in = _B_setup()

    return {
        "A_u": _A_in["u"],
        "A_log_A_real": _A_in["log_A_real"],
        "A_A_imag": _A_in["A_imag"],
        "A_C_real": _A_in["C_real"],
        "A_C_imag": _A_in["C_imag"],
        "A_log_dt": _A_in["log_dt"],
        "A_D_skip": _A_in["D_skip"],
        "B_x": _B_in["x"],
        "B_wqkv": _B_in["wqkv"],
        "B_wo": _B_in["wo"],
    }

def reference(A_u, A_log_A_real, A_A_imag, A_C_real, A_C_imag, A_log_dt, A_D_skip, B_x, B_wqkv, B_wo):
    def _A_ref(u, log_A_real, A_imag, C_real, C_imag, log_dt, D_skip):
        L = u.shape[1]
        dt = torch.exp(log_dt)
        A = -torch.exp(log_A_real) + 1j * A_imag
        C = (C_real + 1j * C_imag) * dt[:, None]
        pos = (lambda x, dt: x.to(dt))(torch.arange(L), log_dt.dtype)
        P = torch.exp((A * dt[:, None])[:, :, None] * pos[None, None, :])
        K = 2.0 * torch.einsum("dn,dnl->dl", C, P).real
        L2 = 2 * L
        u_t = (lambda x, *d: x.permute(*d))(u, 0, 2, 1)
        Kf = (lambda x, *a, **k: torch.fft.rfft(x.float(), *a, **k))(K, L2)
        Uf = (lambda x, *a, **k: torch.fft.rfft(x.float(), *a, **k))(u_t, L2)
        y = (lambda x, *a, **k: torch.fft.irfft(x, *a, **k).to(torch.bfloat16))(Uf * Kf[None, :, :], L2)[:, :, :L]
        y = (lambda x, *d: x.permute(*d))(y, 0, 2, 1)
        return y + u * D_skip[None, None, :]

    def _B_ref(x, wqkv, wo):
        B, S, D = x.shape
        H = 32; Dh = D // H
        qkv = (lambda x, *d: x.permute(*d))((x @ wqkv).reshape(B, S, 3, H, Dh), 2, 0, 3, 1, 4)
        q, k, v = qkv[0], qkv[1], qkv[2]
        phi = lambda t: torch.where(t > 0, t + 1, torch.exp(t)) + 1e-6
        pq, pk = phi(q), phi(k)
        kv = torch.einsum("bhsd,bhse->bhde", pk, v)
        z = torch.einsum("bhsd->bhd", pk)
        num = torch.einsum("bhqd,bhde->bhqe", pq, kv)
        den = torch.einsum("bhqd,bhd->bhq", pq, z)[..., None] + 1e-6
        o = num / den
        return (lambda x, *d: x.permute(*d))(o, 0, 2, 1, 3).reshape(B, S, D) @ wo

    x = A_u
    x = x + _A_ref(_layernorm(x, axis=-1), A_log_A_real, A_A_imag, A_C_real, A_C_imag, A_log_dt, A_D_skip)
    x = x + _B_ref(_layernorm(x, axis=-1), B_wqkv, B_wo)
    x = x + _A_ref(_layernorm(x, axis=-1), A_log_A_real, A_A_imag, A_C_real, A_C_imag, A_log_dt, A_D_skip)
    x = x + _B_ref(_layernorm(x, axis=-1), B_wqkv, B_wo)
    return x
```

```python
import re

def v(i, n=1): return f"v{i}" if n == 1 else f"v[{i}:{i+n-1}]"
def a(i, n=1): return f"a{i}" if n == 1 else f"a[{i}:{i+n-1}]"
def s(i, n=1): return f"s{i}" if n == 1 else f"s[{i}:{i+n-1}]"

REG_RE = re.compile(r"(?<![\w.])([vas])(\d+)(?![\w\[])|(?<![\w.])([vas])\[(\d+):(\d+)\]|(?<![\w.])(vcc|exec|m0)(?:_lo|_hi)?(?![\w])")

def regs_of(op):
    out = []
    for m in REG_RE.finditer(op):
        if m.group(1): out.append((m.group(1), int(m.group(2))))
        elif m.group(3): out += [(m.group(3), i) for i in range(int(m.group(4)), int(m.group(5)) + 1)]
        else: out.append((m.group(6), 0))
    return out

TRANS = ("v_exp_f32", "v_log_f32", "v_rcp_f32", "v_rsq_f32", "v_sqrt_f32", "v_sin_f32", "v_cos_f32")

class Ins:
    __slots__ = ("text", "mn", "ops", "kind", "w", "r", "passes", "srcc", "srcab", "nop", "is_trans", "dpp", "widest", "lds_dma")
    def __init__(self, text):
        self.text = text
        t = text.split(";")[0].strip()
        self.mn = t.split()[0] if t else ""
        rest = t[len(self.mn):].strip()
        ops = [o.strip() for o in split_ops(rest)]
        self.ops = ops
        mn = self.mn
        self.w = set(); self.r = set(); self.passes = 0; self.srcc = []; self.srcab = []
        self.nop = 0; self.is_trans = False; self.dpp = False; self.widest = False; self.lds_dma = False
        if mn == "" or mn.endswith(":") or mn.startswith("."):
            self.kind = "label" if mn.endswith(":") else "dir"; return
        if mn == "s_nop":
            self.kind = "nop"; self.nop = int(ops[0], 0) + 1; return
        if mn.startswith("v_mfma"):
            self.kind = "mfma"
            self.passes = 8 if "32x32" in mn else 4
            if "16x16x4_f32" in mn or "32x32x2_f32" in mn: raise Exception("sgemm mfma not modeled")
            self.w = set(regs_of(ops[0])); self.srcab = regs_of(ops[1]) + regs_of(ops[2]); self.srcc = regs_of(ops[3])
            self.r = set(self.srcab) | set(self.srcc); return
        if mn.startswith("v_"):
            self.kind = "valu"
            base = mn.replace("_e32", "").replace("_e64", "").replace("_dpp", "").replace("_sdwa", "")
            self.is_trans = base in TRANS
            self.dpp = ("_dpp" in mn) or any(k in t for k in ("quad_perm", "row_shr", "row_shl", "row_ror", "row_bcast", "row_mirror", "row_half_mirror", "wave_sh", "wave_ro"))
            if base.startswith("v_cmp"):
                self.w = set(regs_of(ops[0]))
                for o in ops[1:]: self.r |= set(regs_of(o))
                if base.startswith("v_cmpx"): raise Exception("avoid v_cmpx")
            elif base.startswith("v_permlane") and "swap" in base:
                self.w = set(regs_of(ops[0])) | set(regs_of(ops[1])); self.r = set(self.w)
            elif base in ("v_add_co_u32", "v_sub_co_u32", "v_addc_co_u32", "v_subb_co_u32"):
                self.w = set(regs_of(ops[0])) | set(regs_of(ops[1]))
                for o in ops[2:]: self.r |= set(regs_of(o))
            else:
                self.w = set(regs_of(ops[0]))
                for o in ops[1:]: self.r |= set(regs_of(o))
                if base in ("v_fmac_f32", "v_pk_fmac_f16", "v_dot2c_f32_bf16", "v_writelane_b32") or "dpp" in mn or self.dpp or "dst_unused:UNUSED_PRESERVE" in t:
                    self.r |= self.w
                if base == "v_cndmask_b32" and len(ops) == 3: self.r.add(("vcc", 0))
            return
        if mn.startswith("ds_"):
            self.kind = "ds"
            if mn.startswith("ds_read") or mn.startswith("ds_bpermute") or mn.startswith("ds_swizzle") or mn.startswith("ds_permute"):
                self.w = set(regs_of(ops[0]))
                for o in ops[1:]: self.r |= set(regs_of(o))
                if "d16" in mn: self.r |= self.w
            else:
                for o in ops: self.r |= set(regs_of(o))
            return
        if mn.startswith("buffer_") or mn.startswith("global_") or mn.startswith("flat_"):
            self.kind = "vmem"
            toks = t.split()
            is_lds = (" lds" in t) or ("_lds_" in mn)
            self.lds_dma = is_lds
            if "_load" in mn and not is_lds:
                self.w = set(regs_of(ops[0]))
                for o in ops[1:]: self.r |= set(regs_of(o))
            elif "atomic" in mn and " sc0" in t:
                self.w = set(regs_of(ops[0]))
                for o in ops: self.r |= set(regs_of(o))
            else:
                for o in ops: self.r |= set(regs_of(o))
                if "store" in mn and ("x3" in mn or "x4" in mn): self.widest = True
            if is_lds: self.r.add(("m0", 0))
            return
        if mn.startswith("s_"):
            self.kind = "salu"
            if mn.startswith("s_cmp") or mn.startswith("s_cbranch") or mn in ("s_branch", "s_barrier", "s_waitcnt", "s_endpgm", "s_sleep", "s_setprio"):
                for o in ops: self.r |= set(regs_of(o))
            else:
                self.w = set(regs_of(ops[0])) if ops else set()
                for o in ops[1:]: self.r |= set(regs_of(o))
                if "saveexec" in mn: self.w.add(("exec", 0))
            return
        raise Exception("unknown instruction: " + text)

def split_ops(rest):
    out = []; depth = 0; cur = ""
    for ch in rest:
        if ch == "[": depth += 1
        if ch == "]": depth -= 1
        if ch == "," and depth == 0: out.append(cur); cur = ""
        else: cur += ch
    if cur.strip(): out.append(cur)
    return out

def need(p, c):
    n = 0
    vw = lambda x: {r for r in x if r[0] in "va"}
    sw = lambda x: {r for r in x if r[0] in ("s", "vcc", "exec")}
    if p.kind == "valu":
        pw = vw(p.w); ps = {r for r in p.w if r[0] in ("s", "vcc")}
        if c.kind == "mfma" and pw & c.r: n = max(n, 2)
        if c.kind == "valu":
            if p.is_trans and not c.is_trans and (pw & c.r): n = max(n, 1)
            if c.dpp and (pw & c.r): n = max(n, 2)
            if c.mn.startswith("v_permlane") and (pw & c.r): n = max(n, 2)
            if (c.mn.startswith("v_readlane") or c.mn.startswith("v_readfirstlane")) and (pw & c.r): n = max(n, 1)
            if ps & c.r:
                n = max(n, 4 if (c.mn.startswith("v_readlane") or c.mn.startswith("v_writelane")) else 2)
        if p.is_trans and c.kind in ("ds", "vmem", "mfma") and (pw & c.r): n = max(n, 2 if c.kind == "mfma" else 1)
        if c.kind == "vmem" and (ps & c.r): n = max(n, 5)
        if c.kind == "ds" and (ps & c.r): n = max(n, 5)
    if p.kind == "mfma":
        big = 12 if p.passes == 8 else 8
        D = p.w
        if c.kind == "mfma":
            if D & set(c.srcab): n = max(n, big)
            cc = set(c.srcc)
            if D & cc:
                if cc == D and c.passes == p.passes: pass
                else: n = max(n, 10 if p.passes == 8 else 6)
            elif D & c.w:
                n = max(n, 10 if p.passes == 8 else 6)
        elif c.kind in ("valu", "ds", "vmem"):
            if D & (c.r | c.w): n = max(n, big)
        if c.kind == "valu" and (set(p.srcc) & vw(c.w)): n = max(n, 7 if p.passes == 8 else 3)
    if p.kind == "vmem" and p.widest:
        data = vw(p.r)
        if c.kind == "valu" and (data & c.w): n = max(n, 2)
        elif c.kind in ("ds", "vmem", "mfma") and (data & c.w): n = max(n, 1)
    if p.kind == "salu" and ("m0", 0) in p.w:
        if c.kind == "vmem" and c.lds_dma: n = max(n, 1)
    return n

def hazard_pass(lines, window=24):
    out = []; hist = []
    inserted = 0
    for ln in lines:
        ins = Ins(ln)
        if ins.kind in ("label", "dir"):
            out.append(ln); continue
        req = 0; dist = 0
        for p in reversed(hist):
            nd = need(p, ins)
            if nd > dist: req = max(req, nd - dist)
            dist += p.nop if p.kind == "nop" else 1
            if dist >= window: break
        while req > 0:
            k = min(req, 16)
            out.append(f"  s_nop {k-1}")
            hist.append(Ins(f"s_nop {k-1}")); req -= k; inserted += 1
        out.append(ln); hist.append(ins)
        if len(hist) > 64: hist = hist[-40:]
    return out, inserted

def check_branches(lines, window=24):
    idx = {}; ins = []
    for i, ln in enumerate(lines):
        x = Ins(ln); ins.append(x)
        if x.kind == "label": idx[x.mn[:-1]] = i
    probs = []
    for i, x in enumerate(ins):
        if x.kind == "salu" and (x.mn.startswith("s_cbranch") or x.mn == "s_branch"):
            tgt = idx.get(x.ops[0])
            if tgt is None: continue
            before = [y for y in ins[max(0, i - 60):i + 1] if y.kind not in ("label", "dir")][-window:]
            after = [y for y in ins[tgt:tgt + 60] if y.kind not in ("label", "dir")][:window]
            for ai, c in enumerate(after):
                d0 = sum((y.nop if y.kind == "nop" else 1) for y in after[:ai])
                dist = d0
                for p in reversed(before):
                    nd = need(p, c)
                    if nd > dist: probs.append((lines[i].strip(), p.text.strip(), c.text.strip(), nd, dist))
                    dist += p.nop if p.kind == "nop" else 1
                    if dist >= window: break
    return probs

class Asm:
    def __init__(self): self.lines = []
    def e(self, t):
        for ln in t.split("\n"):
            ln = ln.strip()
            if not ln or ln.startswith(";"): continue
            self.lines.append(ln if ln.endswith(":") else "  " + ln)
    def label(self, n): self.lines.append(n + ":")
```

```python
import sys, struct
from asmlib import *

NAME = "interleave_layers__ssm_conv_s4d__linear_attn_block__prompt_kernel"
STOP = None
OPTS = {}
for x in sys.argv[2:]:
    if "=" in x:
        k_, v_ = x.split("="); OPTS[k_] = v_
STOP = OPTS.get("stop")
SPINMAX = int(OPTS.get("spin", 200000))

PITCH = 4224
CNT = 0x000000
KV1 = 0x010000; KVP = 1280; KV2 = KV1 + 32 * KVP; S3 = KV2 + 32 * KVP
assert S3 + 16384 == 0x28000
S1 = 0x028000
WFG = 0x040000
WFO = 0x1C0000
XT1 = 0x240000; XT2 = 0x460000; XT3 = 0x680000
HP = 65536 + 256
PQ1 = 0x8A0000; PQ2 = 0xAB0000
WS_USED = 0xCC0000
KC = 0; KCC = 4160; KCH = 8 * KCC
AT = 2 * KCH
MISC = AT + 65536
ST = MISC
XRES = MISC + 512
WST = XRES
CT = XRES + 8192; CTP = 2080
TB = CT + 2 * CTP + 64 - ((CT + 2 * CTP) % 64)
TBP = 80
LDS_BYTES = 163840
assert TB + 4 * 32 * TBP <= LDS_BYTES
TABC = 96 * 544
U0 = AT; UP = 4608; X0 = AT + 2 * UP; RED = X0 + 8192
OT = AT

sU, sLOGA, sAIM, sCR, sCI, sLDT, sDSK = 8, 10, 12, 14, 16, 18, 20
sWQKV, sWO, sOUT, sDBG, sWS = 24, 26, 28, 30, 32
sSRD = 36
sSRD2 = 40
sWAVE, sXCD, sIDX, sCP, sRS, sJ, sRO, sJO = 44, 45, 46, 47, 48, 49, 50, 51
sEXP = 52
sDSKV = 53
sT = 54
sLOG2E = 64
sEPS6 = 66
sM = 68
sHI = 76
sPC = 78
sINV512 = 80

def f2u(f): return struct.unpack("<I", struct.pack("<f", f))[0]

A = Asm(); e = A.e
uid = [0]
def lab(p):
    uid[0] += 1; return f"L_{p}_{uid[0]}"

def lane_consts():
    pass

def stop_here(name):
    if STOP == name:
        e("s_waitcnt vmcnt(0) lgkmcnt(0)")
        e("s_branch L_end")
        return True
    return False

def arrive(k):
    e("s_waitcnt vmcnt(0) lgkmcnt(0)")
    e("s_barrier")
    l = lab("arr")
    e(f"s_cmp_lg_u32 {s(sWAVE)}, 0")
    e(f"s_cbranch_scc1 {l}")
    if k == 1:
        e(f"s_and_b32 {s(sT)}, s2, 15"); e(f"s_lshl_b32 {s(sT)}, {s(sT)}, 4")
        base = s(sDBG, 2)
    else:
        e(f"s_and_b32 {s(sT)}, s2, 15"); e(f"s_lshl_b32 {s(sT)}, {s(sT)}, 12")
        base = s(sWS, 2)
    e(f"v_mov_b32 v10, {s(sT)}")
    e("v_mov_b32 v11, 1")
    e("s_mov_b64 exec, 1")
    e(f"global_atomic_add v10, v11, {base}")
    e("s_mov_b64 exec, -1")
    A.label(l)

def wait(k):
    l = lab("wt"); lp = lab("poll")
    e(f"s_cmp_lg_u32 {s(sWAVE)}, 0")
    e(f"s_cbranch_scc1 {l}")
    if k == 1:
        base = s(sDBG, 2); sh = 4; exp = 16
    else:
        base = s(sWS, 2); sh = 12; exp = 16 * (k - 1)
    e("v_and_b32 v10, 15, v0")
    e(f"v_lshlrev_b32 v10, {sh}, v10")
    e(f"s_mov_b32 {s(sT)}, 0")
    e(f"s_movk_i32 {s(sT+1)}, {exp}")
    A.label(lp)
    e(f"global_load_dword v11, v10, {base} sc1")
    e("s_waitcnt vmcnt(0)")
    e(f"v_cmp_gt_u32 vcc, {s(sT+1)}, v11")
    e(f"s_add_u32 {s(sT)}, {s(sT)}, 1")
    e(f"s_cmp_gt_u32 {s(sT)}, {SPINMAX}")
    e(f"s_cbranch_scc1 {l}")
    e(f"s_cbranch_vccnz {lp}")
    A.label(l)
    e("s_barrier")

def cmul_inplace(x, w, t):
    e(f"v_pk_mul_f32 {v(t,2)}, {v(x,2)}, {v(w,2)} op_sel_hi:[1,0]")
    e(f"v_pk_fma_f32 {v(x,2)}, {v(x,2)}, {v(w,2)}, {v(t,2)} op_sel:[1,1,0] op_sel_hi:[0,1,1] neg_lo:[0,1,0]")

def bf16r(dst, src):
    e(f"v_cvt_pk_bf16_f32 {v(dst)}, {v(src)}, {v(src)}")
    e(f"v_lshlrev_b32 {v(dst)}, 16, {v(dst)}")

def stats_final(vsum, vsq, vm, vr, t):
    e(f"v_mul_f32 {v(t)}, {s(sINV512)}, {v(vsum)}")
    e(f"v_mul_f32 {v(t+1)}, {s(sINV512)}, {v(vsq)}")
    e(f"v_fma_f32 {v(t+1)}, -{v(t)}, {v(t)}, {v(t+1)}")
    e(f"v_max_f32 {v(t+1)}, 0, {v(t+1)}")
    bf16r(vm, t)
    bf16r(t + 1, t + 1)
    e(f"v_add_f32 {v(t+1)}, 0x3727c5ac, {v(t+1)}")
    bf16r(t + 1, t + 1)
    e(f"v_sqrt_f32 {v(t+1)}, {v(t+1)}")
    bf16r(t + 1, t + 1)
    e(f"v_rcp_f32 {v(vr)}, {v(t+1)}")

def prologue():
    e(f"s_cmp_ge_u32 s2, 256")
    e(f"s_cbranch_scc1 L_end")
    e(f"s_load_dwordx16 s[8:23], s[0:1], 0")
    e(f"s_load_dwordx8 s[24:31], s[0:1], 64")
    e(f"s_load_dwordx2 s[32:33], s[0:1], 96")
    e("v_lshrrev_b32 v1, 6, v0")
    e(f"s_and_b32 {s(sXCD)}, s2, 7")
    e(f"s_lshr_b32 {s(sIDX)}, s2, 3")
    e(f"v_readfirstlane_b32 {s(sWAVE)}, v1")
    e(f"s_lshl_b32 {s(sCP)}, {s(sXCD)}, 5"); e(f"s_add_u32 {s(sCP)}, {s(sCP)}, {s(sIDX)}")
    e(f"s_and_b32 {s(sT)}, {s(sIDX)}, 3"); e(f"s_lshl_b32 {s(sRS)}, {s(sXCD)}, 2"); e(f"s_add_u32 {s(sRS)}, {s(sRS)}, {s(sT)}")
    e(f"s_lshr_b32 {s(sJ)}, {s(sIDX)}, 2")
    e(f"s_and_b32 {s(sT)}, {s(sIDX)}, 7"); e(f"s_lshl_b32 {s(sRO)}, {s(sXCD)}, 3"); e(f"s_add_u32 {s(sRO)}, {s(sRO)}, {s(sT)}")
    e(f"s_lshr_b32 {s(sJO)}, {s(sIDX)}, 3")
    e(f"s_mov_b32 {s(sLOG2E)}, {f2u(1.4426950408889634):#x}"); e(f"s_mov_b32 {s(sLOG2E+1)}, {s(sLOG2E)}")
    e(f"s_mov_b32 {s(sEPS6)}, {f2u(1e-6):#x}"); e(f"s_mov_b32 {s(sEPS6+1)}, {s(sEPS6)}")
    e(f"s_mov_b32 {s(sINV512)}, {f2u(1.0/512):#x}"); e(f"s_mov_b32 {s(sINV512+1)}, {s(sINV512)}")
    e(f"s_mov_b32 {s(sHI)}, 0xffff0000")
    e(f"s_getpc_b64 {s(sPC,2)}")
    A.label("L_pc")
    e("v_and_b32 v1, 63, v0")
    e("s_waitcnt lgkmcnt(0)")
    e(f"s_mov_b32 {s(sSRD)}, {s(sWS)}"); e(f"s_and_b32 {s(sSRD+1)}, {s(sWS+1)}, 0xffff")
    e(f"s_mov_b32 {s(sSRD+2)}, {WS_USED:#x}"); e(f"s_mov_b32 {s(sSRD+3)}, 0x20000")

XR = 24
PRM = 32
IDX = 40
XC = 176

def p0():
    e(f"s_lshl_b32 {s(sT)}, s2, 13")
    e(f"v_lshl_add_u32 v10, v0, 5, {s(sT)}")
    e(f"global_load_dwordx4 {v(XR,4)}, v10, {s(sU,2)}")
    e(f"global_load_dwordx4 {v(XR+4,4)}, v10, {s(sU,2)} offset:16")
    lo = lab("wo"); lj = lab("wj")
    e(f"s_cmp_ge_u32 s2, 192")
    e(f"s_cbranch_scc1 {lo}")
    e(f"s_mul_i32 {s(sT)}, s2, 5462"); e(f"s_lshr_b32 {s(sT)}, {s(sT)}, 16")
    e(f"s_mul_i32 {s(sT+1)}, {s(sT)}, 12"); e(f"s_sub_u32 {s(sT+1)}, s2, {s(sT+1)}")
    e(f"s_mov_b32 {s(sSRD2)}, {s(sWQKV)}"); e(f"s_and_b32 {s(sSRD2+1)}, {s(sWQKV+1)}, 0xffff")
    e(f"s_mov_b32 {s(sSRD2+2)}, {512*1536*2}"); e(f"s_mov_b32 {s(sSRD2+3)}, 0x20000")
    e("v_lshrrev_b32 v11, 4, v1"); e("v_mul_u32_u24 v11, 3072, v11"); e("v_and_b32 v12, 15, v1"); e("v_lshl_add_u32 v11, v12, 4, v11")
    e(f"s_lshl_b32 {s(sT+2)}, {s(sT)}, 5"); e(f"s_lshl_b32 {s(sT+3)}, {s(sWAVE)}, 3"); e(f"s_add_u32 {s(sT+2)}, {s(sT+2)}, {s(sT+3)}")
    e(f"s_mul_i32 {s(sT+2)}, {s(sT+2)}, 3072"); e(f"s_lshl_b32 {s(sT+3)}, {s(sT+1)}, 8"); e(f"s_add_u32 {s(sT+2)}, {s(sT+2)}, {s(sT+3)}")
    e(f"s_lshl_b32 {s(sT+3)}, {s(sWAVE)}, 11"); e(f"s_add_u32 {s(sT+3)}, {s(sT+3)}, {WST}")
    e(f"s_mov_b32 m0, {s(sT+3)}")
    e(f"buffer_load_dwordx4 v11, {s(sSRD2,4)}, {s(sT+2)} offen lds")
    e(f"s_add_u32 {s(sT+3)}, {s(sT+3)}, 1024"); e(f"s_add_u32 {s(sT+2)}, {s(sT+2)}, {4*3072}")
    e(f"s_mov_b32 m0, {s(sT+3)}")
    e(f"buffer_load_dwordx4 v11, {s(sSRD2,4)}, {s(sT+2)} offen lds")
    e(f"s_branch {lj}")
    A.label(lo)
    e(f"s_sub_u32 {s(sT+1)}, s2, 192"); e(f"s_lshr_b32 {s(sT)}, {s(sT+1)}, 1"); e(f"s_and_b32 {s(sT+1)}, {s(sT+1)}, 1")
    e(f"s_mov_b32 {s(sSRD2)}, {s(sWO)}"); e(f"s_and_b32 {s(sSRD2+1)}, {s(sWO+1)}, 0xffff")
    e(f"s_mov_b32 {s(sSRD2+2)}, {512*512*2}"); e(f"s_mov_b32 {s(sSRD2+3)}, 0x20000")
    e("v_lshrrev_b32 v11, 5, v1"); e("v_lshlrev_b32 v11, 10, v11"); e("v_and_b32 v12, 31, v1"); e("v_lshl_add_u32 v11, v12, 4, v11")
    e(f"s_lshl_b32 {s(sT+2)}, {s(sT)}, 4"); e(f"s_lshl_b32 {s(sT+3)}, {s(sWAVE)}, 2"); e(f"s_add_u32 {s(sT+2)}, {s(sT+2)}, {s(sT+3)}")
    e(f"s_lshl_b32 {s(sT+2)}, {s(sT+2)}, 10"); e(f"s_lshl_b32 {s(sT+3)}, {s(sT+1)}, 9"); e(f"s_add_u32 {s(sT+2)}, {s(sT+2)}, {s(sT+3)}")
    e(f"s_lshl_b32 {s(sT+3)}, {s(sWAVE)}, 11"); e(f"s_add_u32 {s(sT+3)}, {s(sT+3)}, {WST}")
    e(f"s_mov_b32 m0, {s(sT+3)}")
    e(f"buffer_load_dwordx4 v11, {s(sSRD2,4)}, {s(sT+2)} offen lds")
    e(f"s_add_u32 {s(sT+3)}, {s(sT+3)}, 1024"); e(f"s_add_u32 {s(sT+2)}, {s(sT+2)}, 2048")
    e(f"s_mov_b32 m0, {s(sT+3)}")
    e(f"buffer_load_dwordx4 v11, {s(sSRD2,4)}, {s(sT+2)} offen lds")
    A.label(lj)
    e(f"s_mov_b32 s60, {s(sT)}"); e(f"s_mov_b32 s61, {s(sT+1)}")
    e(f"s_lshl_b32 {s(sT)}, {s(sCP)}, 9")
    e(f"v_lshl_add_u32 v10, v0, 1, {s(sT)}")
    e(f"global_load_ushort {v(PRM)}, v10, {s(sLOGA,2)}")
    e(f"global_load_ushort {v(PRM+1)}, v10, {s(sAIM,2)}")
    e(f"global_load_ushort {v(PRM+2)}, v10, {s(sCR,2)}")
    e(f"global_load_ushort {v(PRM+3)}, v10, {s(sCI,2)}")
    e(f"s_lshl_b32 {s(sT)}, {s(sCP)}, 2")
    e("v_lshrrev_b32 v12, 7, v0")
    e(f"v_lshl_add_u32 v10, v12, 1, {s(sT)}")
    e(f"global_load_ushort {v(PRM+4)}, v10, {s(sLDT,2)}")
    e(f"global_load_ushort {v(PRM+5)}, v10, {s(sDSK,2)}")
    e("v_lshlrev_b32 v10, 7, v0")
    e("v_min_u32 v11, L_tab_end - L_pc - 4, v10")
    e(f"global_load_dword v38, v11, {s(sPC,2)}")
    e("v_add_u32 v10, 0x8000, v10")
    e("v_min_u32 v10, L_tab_end - L_pc - 4, v10")
    e(f"global_load_dword v39, v10, {s(sPC,2)}")
    e(f"s_add_u32 {s(sT)}, {s(sPC)}, L_idx - L_pc"); e(f"s_addc_u32 {s(sT+1)}, {s(sPC+1)}, 0")
    e("v_and_b32 v10, 127, v0"); e("v_lshlrev_b32 v10, 4, v10")
    e(f"global_load_dwordx4 {v(IDX,4)}, v10, {s(sT,2)}")
    e(f"global_load_dwordx4 {v(IDX+4,4)}, v10, {s(sT,2)} offset:16")
    e(f"global_load_dwordx4 {v(IDX+8,4)}, v10, {s(sT,2)} offset:2048")
    e(f"global_load_dwordx4 {v(IDX+12,4)}, v10, {s(sT,2)} offset:2064")
    e(f"s_lshl_b32 {s(sT)}, {s(sCP)}, 2")
    e(f"v_lshl_add_u32 v10, v0, 13, {s(sT)}")
    for i in range(4):
        e(f"global_load_dword {v(XC+i)}, v10, {s(sU,2)} offset:{1024*i}")
    e("v_add_u32 v10, 4096, v10")
    for i in range(4):
        e(f"global_load_dword {v(XC+4+i)}, v10, {s(sU,2)} offset:{1024*i}")
    e("v_mov_b32 v12, 0"); e("v_mov_b32 v13, 0"); e("v_mov_b32 v14, 0"); e("v_mov_b32 v15, 0")
    l0 = lab("z")
    e(f"s_cmp_lg_u32 {s(sWAVE)}, 0"); e(f"s_cbranch_scc1 {l0}")
    e(f"s_mul_i32 {s(sT)}, s2, 384"); e(f"s_add_u32 {s(sT)}, {s(sT)}, {KV1}")
    e(f"v_lshl_add_u32 v10, v1, 4, {s(sT)}")
    e("s_mov_b64 exec, 0xffffff")
    e(f"buffer_store_dwordx4 v[12:15], v10, {s(sSRD,4)}, 0 offen sc1")
    e(f"s_and_b32 {s(sT)}, s2, 15"); e(f"s_lshl_b32 {s(sT)}, {s(sT)}, 12")
    e(f"v_mov_b32 v10, {s(sT)}")
    e("s_mov_b64 exec, 1")
    lz = lab("zc")
    e("s_cmp_ge_u32 s2, 16"); e(f"s_cbranch_scc1 {lz}")
    e(f"buffer_store_dword v12, v10, {s(sSRD,4)}, 0 offen sc1")
    A.label(lz)
    e("s_mov_b64 exec, -1")
    A.label(l0)
    e("s_waitcnt vmcnt(22)")
    F = 64
    for i in range(8):
        e(f"v_lshlrev_b32 {v(F+2*i)}, 16, {v(XR+i)}")
        e(f"v_and_b32 {v(F+2*i+1)}, {s(sHI)}, {v(XR+i)}")
    for i in range(4): e(f"v_pk_add_f32 {v(80+2*i,2)}, {v(F+4*i,2)}, {v(F+4*i+2,2)}")
    e(f"v_pk_add_f32 v[80:81], v[80:81], v[82:83]"); e(f"v_pk_add_f32 v[84:85], v[84:85], v[86:87]")
    e(f"v_pk_add_f32 v[80:81], v[80:81], v[84:85]")
    e(f"v_pk_mul_f32 v[82:83], {v(F,2)}, {v(F,2)}")
    for i in range(1, 8): e(f"v_pk_fma_f32 v[82:83], {v(F+2*i,2)}, {v(F+2*i,2)}, v[82:83]")
    e("v_add_f32 v80, v80, v81"); e("v_add_f32 v82, v82, v83")
    for r_ in (8, 4, 2, 1):
        e(f"v_add_f32_dpp v80, v80, v80 row_ror:{r_} row_mask:0xf bank_mask:0xf")
        e(f"v_add_f32_dpp v82, v82, v82 row_ror:{r_} row_mask:0xf bank_mask:0xf")
    e("v_add_f32_dpp v80, v80, v80 row_bcast:15 row_mask:0xa bank_mask:0xf")
    e("v_add_f32_dpp v82, v82, v82 row_bcast:15 row_mask:0xa bank_mask:0xf")
    stats_final(80, 82, 84, 85, 86)
    e(f"s_lshl_b32 {s(sT)}, s2, 3"); e(f"s_lshl_b32 {s(sT+1)}, {s(sWAVE)}, 1"); e(f"s_add_u32 {s(sT)}, {s(sT)}, {s(sT+1)}")
    e(f"s_lshl_b32 {s(sT)}, {s(sT)}, 3"); e(f"s_add_u32 {s(sT)}, {s(sT)}, {S1}")
    e("v_lshrrev_b32 v10, 5, v1"); e(f"v_lshl_add_u32 v10, v10, 3, {s(sT)}")
    e(f"s_mov_b32 {s(sT+2)}, 0x00010000"); e(f"s_mov_b32 {s(sT+3)}, 0x00010000")
    e(f"s_mov_b64 exec, {s(sT+2,2)}")
    e(f"buffer_store_dwordx2 v[84:85], v10, {s(sSRD,4)}, 0 offen sc1")
    e("s_mov_b64 exec, -1")
    e("s_waitcnt vmcnt(20)")
    e("s_barrier")
    lo = lab("wo2"); lj = lab("wj2")
    e("s_cmp_ge_u32 s2, 192"); e(f"s_cbranch_scc1 {lo}")
    e("v_lshrrev_b32 v10, 2, v1")
    e("v_lshlrev_b32 v10, 8, v10")
    e("v_and_b32 v11, 3, v1"); e("v_lshl_add_u32 v10, v11, 3, v10")
    e(f"s_lshl_b32 {s(sT)}, {s(sWAVE)}, 6"); e(f"s_add_u32 {s(sT)}, {s(sT)}, {WST}")
    e(f"v_add_u32 v10, {s(sT)}, v10")
    e("ds_read_b64_tr_b16 v[88:89], v10"); e("ds_read_b64_tr_b16 v[90:91], v10 offset:4096")
    e("ds_read_b64_tr_b16 v[92:93], v10 offset:32"); e("ds_read_b64_tr_b16 v[94:95], v10 offset:4128")
    e(f"s_lshr_b32 {s(sT)}, s61, 2")
    e(f"s_add_u32 {s(sT)}, {s(sT)}, 2"); e(f"s_cmp_ge_u32 {s(sT)}, 3")
    e(f"s_cselect_b32 {s(sT+1)}, 3, 0"); e(f"s_sub_u32 {s(sT)}, {s(sT)}, {s(sT+1)}")
    e(f"s_and_b32 {s(sT+1)}, s61, 3"); e(f"s_lshl_b32 {s(sT+1)}, {s(sT+1)}, 3")
    e(f"s_lshl_b32 {s(sT+2)}, {s(sWAVE)}, 1"); e(f"s_add_u32 {s(sT+1)}, {s(sT+1)}, {s(sT+2)}")
    e(f"s_mul_i32 {s(sT+1)}, {s(sT+1)}, 3"); e(f"s_add_u32 {s(sT+1)}, {s(sT+1)}, {s(sT)}")
    e(f"s_lshl_b32 {s(sT+1)}, {s(sT+1)}, 4"); e(f"s_add_u32 {s(sT+1)}, {s(sT+1)}, s60")
    e(f"s_lshl_b32 {s(sT+1)}, {s(sT+1)}, 10"); e(f"s_add_u32 {s(sT+1)}, {s(sT+1)}, {WFG}")
    e(f"s_add_u32 {s(sT+2)}, {s(sT+1)}, 49152")
    e(f"s_branch {lj}")
    A.label(lo)
    e("v_lshrrev_b32 v10, 5, v1"); e("v_lshlrev_b32 v10, 2, v10")
    e("v_bfe_u32 v11, v1, 2, 2"); e("v_add_u32 v10, v10, v11"); e("v_lshlrev_b32 v10, 9, v10")
    e("v_and_b32 v11, 1, v1"); e("v_lshl_add_u32 v10, v11, 5, v10")
    e("v_bfe_u32 v11, v1, 4, 1"); e("v_lshl_add_u32 v10, v11, 4, v10")
    e("v_bfe_u32 v11, v1, 1, 1"); e("v_lshl_add_u32 v10, v11, 3, v10")
    e(f"s_lshl_b32 {s(sT)}, {s(sWAVE)}, 7"); e(f"s_add_u32 {s(sT)}, {s(sT)}, {WST}")
    e(f"v_add_u32 v10, {s(sT)}, v10")
    e("ds_read_b64_tr_b16 v[88:89], v10"); e("ds_read_b64_tr_b16 v[90:91], v10 offset:4096")
    e("ds_read_b64_tr_b16 v[92:93], v10 offset:64"); e("ds_read_b64_tr_b16 v[94:95], v10 offset:4160")
    e(f"s_lshl_b32 {s(sT+1)}, s61, 3"); e(f"s_lshl_b32 {s(sT+2)}, {s(sWAVE)}, 1"); e(f"s_add_u32 {s(sT+1)}, {s(sT+1)}, {s(sT+2)}")
    e(f"s_lshl_b32 {s(sT+1)}, {s(sT+1)}, 5"); e(f"s_add_u32 {s(sT+1)}, {s(sT+1)}, s60")
    e(f"s_lshl_b32 {s(sT+1)}, {s(sT+1)}, 10"); e(f"s_add_u32 {s(sT+1)}, {s(sT+1)}, {WFO}")
    e(f"s_add_u32 {s(sT+2)}, {s(sT+1)}, 32768")
    A.label(lj)
    e("v_lshlrev_b32 v10, 4, v1")
    e("s_waitcnt lgkmcnt(0)")
    e(f"buffer_store_dwordx4 v[88:91], v10, {s(sSRD,4)}, {s(sT+1)} offen sc1")
    e(f"buffer_store_dwordx4 v[92:95], v10, {s(sSRD,4)}, {s(sT+2)} offen sc1")
    arrive(1)

def pw(dst, t, a2, b2, tmp):
    if t == 1:
        e(f"v_exp_f32 {v(tmp)}, {v(a2)}"); e(f"v_fract_f32 {v(tmp+1)}, {v(b2)}")
    else:
        e(f"v_mul_f32 {v(tmp)}, {float(t)}, {v(a2)}" if t in (2, 4) else f"v_mul_f32 {v(tmp)}, {f2u(float(t)):#x}, {v(a2)}")
        e(f"v_mul_f32 {v(tmp+1)}, {float(t)}, {v(b2)}" if t in (2, 4) else f"v_mul_f32 {v(tmp+1)}, {f2u(float(t)):#x}, {v(b2)}")
        e(f"v_exp_f32 {v(tmp)}, {v(tmp)}"); e(f"v_fract_f32 {v(tmp+1)}, {v(tmp+1)}")
    e(f"v_cos_f32 {v(dst)}, {v(tmp+1)}"); e(f"v_sin_f32 {v(dst+1)}, {v(tmp+1)}")
    e(f"v_mul_f32 {v(dst)}, {v(dst)}, {v(tmp)}"); e(f"v_mul_f32 {v(dst+1)}, {v(dst+1)}, {v(tmp)}")

def kgen():
    for i in range(6): e(f"v_lshlrev_b32 {v(PRM+i)}, 16, {v(PRM+i)}")
    e(f"v_readfirstlane_b32 {s(sDSKV)}, {v(PRM+5)}")
    dt, are = 60, 61
    e(f"v_mul_f32 {v(dt)}, {s(sLOG2E)}, {v(PRM+4)}"); e(f"v_exp_f32 {v(dt)}, {v(dt)}"); bf16r(dt, dt)
    e(f"v_mul_f32 {v(are)}, {s(sLOG2E)}, {v(PRM)}"); e(f"v_exp_f32 {v(are)}, {v(are)}"); bf16r(are, are)
    a2, b2 = 62, 63
    e(f"v_mul_f32 {v(a2)}, -{v(are)}, {v(dt)}")
    e(f"v_mul_f32 {v(b2)}, {v(PRM+1)}, {v(dt)}")
    e(f"v_mul_f32 {v(a2)}, {s(sLOG2E)}, {v(a2)}")
    e(f"v_mul_f32 {v(b2)}, 0.15915494, {v(b2)}")
    W1, W4, W16, W64, W512 = 64, 66, 68, 70, 72
    X1, X2, Y1, Y2, T = 74, 76, 78, 80, 82
    pw(W1, 1, a2, b2, T); pw(W4, 4, a2, b2, T); pw(W16, 16, a2, b2, T); pw(W64, 64, a2, b2, T); pw(W512, 512, a2, b2, T)
    e(f"v_add_f32 {v(dt)}, {v(dt)}, {v(dt)}")
    e(f"v_mul_f32 {v(X1)}, {v(PRM+2)}, {v(dt)}"); e(f"v_mul_f32 {v(X1+1)}, {v(PRM+3)}, {v(dt)}")
    e(f"v_mov_b32 {v(X2)}, {v(X1)}"); e(f"v_mov_b32 {v(X2+1)}, {v(X1+1)}")
    cmul_inplace(X2, W512, T)
    e(f"v_mov_b32 {v(Y1)}, 1.0"); e(f"v_mov_b32 {v(Y1+1)}, 0"); e(f"v_mov_b32 {v(Y2)}, 1.0"); e(f"v_mov_b32 {v(Y2+1)}, 0")
    ad = 84
    e(f"v_lshrrev_b32 {v(ad)}, 7, v0"); e(f"v_mul_u32_u24 {v(ad)}, {TABC}, {v(ad)}")
    e(f"v_and_b32 v85, 127, v0"); e(f"v_lshl_add_u32 {v(ad)}, v85, 2, {v(ad)}")
    P = [86, 87, 88, 89]
    T2 = [90, 92, 94, 96]
    def put(x, row, neg, pk):
        e(f"v_cvt_pk_bf16_f32 {v(pk)}, {v(x)}, {'-' if neg else ''}{v(x+1)}")
        e(f"ds_write_b32 {v(ad)}, {v(pk)} offset:{row*544}")
    for it in range(32):
        put(X1, it, True, P[0])
        if it < 31: cmul_inplace(X1, W16, T2[0])
        if it <= 24:
            put(X2, 32 + it, True, P[1])
            if it < 24: cmul_inplace(X2, W64, T2[1])
        if it < 16:
            put(Y1, 64 + it, False, P[2]); put(Y2, 80 + it, False, P[3])
            if it < 15: cmul_inplace(Y1, W1, T2[2]); cmul_inplace(Y2, W4, T2[3])
    e("s_waitcnt lgkmcnt(0)"); e("s_barrier")
    e(f"s_lshr_b32 {s(sT)}, {s(sWAVE)}, 1"); e(f"s_and_b32 {s(sT+1)}, {s(sWAVE)}, 1")
    e(f"s_mul_i32 {s(sT+2)}, {s(sT)}, {TABC}")
    e(f"s_mul_i32 {s(sT+3)}, {s(sT+1)}, {16*544}"); e(f"s_add_u32 {s(sT+3)}, {s(sT+3)}, {64*544}"); e(f"s_add_u32 {s(sT+3)}, {s(sT+3)}, {s(sT+2)}")
    e(f"s_mul_i32 {s(sT+4)}, {s(sT+1)}, {32*544}"); e(f"s_add_u32 {s(sT+4)}, {s(sT+4)}, {s(sT+2)}")
    e("v_and_b32 v10, 15, v1"); e("v_mul_u32_u24 v10, 544, v10"); e("v_lshrrev_b32 v11, 4, v1"); e("v_lshl_add_u32 v10, v11, 4, v10")
    e(f"v_add_u32 v11, {s(sT+3)}, v10"); e(f"v_add_u32 v12, {s(sT+4)}, v10")
    YF, XF = 64, 96
    for ks in range(8): e(f"ds_read_b128 {v(YF+4*ks,4)}, v11 offset:{64*ks}")
    for tl in range(2):
        for ks in range(8): e(f"ds_read_b128 {v(XF+32*tl+4*ks,4)}, v12 offset:{8704*tl+64*ks}")
    e("s_waitcnt lgkmcnt(0)")
    for ks in range(8):
        for tl in range(2):
            c_ = "0" if ks == 0 else v(160 + 4*tl, 4)
            e(f"v_mfma_f32_16x16x32_bf16 {v(160+4*tl,4)}, {v(YF+4*ks,4)}, {v(XF+32*tl+4*ks,4)}, {c_}")
    e(f"s_mul_i32 {s(sT+2)}, {s(sT)}, {CTP}"); e(f"s_lshl_b32 {s(sT+3)}, {s(sT+1)}, 10"); e(f"s_add_u32 {s(sT+2)}, {s(sT+2)}, {s(sT+3)}")
    e(f"s_add_u32 {s(sT+2)}, {s(sT+2)}, {CT}")
    e("v_and_b32 v10, 15, v1"); e("v_lshlrev_b32 v10, 5, v10"); e("v_lshrrev_b32 v11, 4, v1"); e("v_lshl_add_u32 v10, v11, 3, v10")
    e(f"v_add_u32 v10, {s(sT+2)}, v10")
    for tl in range(2):
        e(f"v_cvt_pk_bf16_f32 {v(168+2*tl)}, {v(160+4*tl)}, {v(161+4*tl)}")
        e(f"v_cvt_pk_bf16_f32 {v(169+2*tl)}, {v(162+4*tl)}, {v(163+4*tl)}")
        e(f"ds_write_b64 v10, {v(168+2*tl,2)} offset:{512*tl}")
    e(f"s_mul_i32 {s(sT+2)}, {s(sT)}, {CTP}"); e(f"s_add_u32 {s(sT+2)}, {s(sT+2)}, {CT + 2048}")
    e(f"v_mov_b32 v11, {s(sT+2)}"); e("v_mov_b32 v12, 0")
    e("ds_write_b32 v11, v12")
    e("s_waitcnt lgkmcnt(0)"); e("s_barrier")
    e("v_lshrrev_b32 v10, 7, v0")
    e(f"v_mul_u32_u24 v11, {CTP}, v10"); e(f"v_add_u32 v11, {CT}, v11")
    e(f"v_mul_u32_u24 v12, {KCH}, v10"); e("v_and_b32 v13, 127, v0"); e("v_lshl_add_u32 v12, v13, 4, v12")
    for task in range(2):
        Dd, Dp, Sd, Sp, G = 64, 72, 80, 88, 96
        I = IDX + 8 * task
        for k in range(8):
            e(f"v_add_u32_sdwa {v(G+2*k)}, v11, {v(I+k)} dst_sel:DWORD dst_unused:UNUSED_PAD src0_sel:DWORD src1_sel:WORD_0")
            e(f"v_add_u32_sdwa {v(G+2*k+1)}, v11, {v(I+k)} dst_sel:DWORD dst_unused:UNUSED_PAD src0_sel:DWORD src1_sel:WORD_1")
        for k in range(16): e(f"ds_read_u16 {v(G+k)}, {v(G+k)}")
        e("s_waitcnt lgkmcnt(0)")
        for k in range(8): e(f"v_lshl_or_b32 {v(Dd+k)}, {v(G+2*k+1)}, 16, {v(G+2*k)}")
        for k in range(1, 7): e(f"v_mov_b32 {v(Dp+k-1)}, {v(Dd+k)}")
        for k in range(7): e(f"v_alignbit_b32 {v(Sd+k)}, {v(Dd+k+1)}, {v(Dd+k)}, 16")
        for k in range(1, 7): e(f"v_alignbit_b32 {v(Sp+k-1)}, {v(Dd+k+1)}, {v(Dd+k)}, 16")
        for cp_ in range(8):
            ee = cp_ >> 1
            if cp_ % 2 == 0: src = Dd + ee if ee % 2 == 0 else Dp + ee - 1
            else: src = Sd + ee if ee % 2 == 0 else Sp + ee - 1
            e(f"ds_write_b128 v12, {v(src,4)} offset:{cp_*KCC + task*2048}")
    l0 = lab("zk")
    e(f"s_cmp_lg_u32 {s(sWAVE)}, 0"); e(f"s_cbranch_scc1 {l0}")
    e("v_lshrrev_b32 v10, 2, v1"); e(f"v_mul_u32_u24 v10, {KCC}, v10")
    e("v_and_b32 v11, 3, v1"); e("v_lshl_add_u32 v10, v11, 4, v10"); e("v_add_u32 v10, 4096, v10")
    e("v_mov_b32 v64, 0"); e("v_mov_b32 v65, 0"); e("v_mov_b32 v66, 0"); e("v_mov_b32 v67, 0")
    e("ds_write_b128 v10, v[64:67]")
    A.label(l0)
    e("s_waitcnt lgkmcnt(0)")

def load_weights():
    e("v_lshlrev_b32 v10, 4, v1")
    e(f"s_lshl_b32 {s(sT)}, {s(sJ)}, 2"); e(f"s_add_u32 {s(sT)}, {s(sT)}, {s(sWAVE)}")
    e(f"s_mul_i32 {s(sT)}, {s(sT)}, 49152"); e(f"s_add_u32 {s(sT)}, {s(sT)}, {WFG}")
    for f in range(48):
        e(f"buffer_load_dwordx4 {a(4*f,4)}, v10, {s(sSRD,4)}, {s(sT)} offen offset:{(f%4)*1024} sc1")
        if f % 4 == 3: e(f"s_add_u32 {s(sT)}, {s(sT)}, 4096")

def load_weights_o():
    e("v_lshlrev_b32 v10, 4, v1")
    e(f"s_lshl_b32 {s(sT)}, {s(sJO)}, 2"); e(f"s_add_u32 {s(sT)}, {s(sT)}, {s(sWAVE)}")
    e(f"s_lshl_b32 {s(sT)}, {s(sT)}, 15"); e(f"s_add_u32 {s(sT)}, {s(sT)}, {WFO}")
    for f in range(32):
        dst = a(192 + 4*f, 4) if f < 16 else v(192 + 4*(f-16), 4)
        e(f"buffer_load_dwordx4 {dst}, v10, {s(sSRD,4)}, {s(sT)} offen offset:{(f%4)*1024} sc1")
        if f % 4 == 3: e(f"s_add_u32 {s(sT)}, {s(sT)}, 4096")

def conv(layer):
    SB = 24
    XX = 40
    e(f"v_lshlrev_b32 v10, 6, v0")
    so = S1 if layer == 1 else S3
    e(f"s_mov_b32 {s(sT)}, {so}")
    for i in range(4): e(f"buffer_load_dwordx4 {v(SB+4*i,4)}, v10, {s(sSRD,4)}, {s(sT)} offen offset:{16*i} sc1")
    if layer == 2:
        e(f"s_mul_i32 {s(sT)}, {s(sCP)}, {2*PITCH}"); e(f"s_add_u32 {s(sT)}, {s(sT)}, {XT2}")
        e(f"v_lshlrev_b32 v10, 4, v0")
        e(f"buffer_load_dwordx4 {v(XX,4)}, v10, {s(sSRD,4)}, {s(sT)} offen sc1")
        e(f"s_add_u32 {s(sT)}, {s(sT)}, {PITCH}")
        e(f"buffer_load_dwordx4 {v(XX+4,4)}, v10, {s(sSRD,4)}, {s(sT)} offen sc1")
        nload = 6
    else:
        nload = 4
        load_weights()
        e(f"s_mov_b32 {s(sT)}, 0x05040100"); e(f"s_mov_b32 {s(sT+1)}, 0x07060302")
        for j in range(4):
            e(f"v_perm_b32 {v(XX+j)}, {v(XC+2*j+1)}, {v(XC+2*j)}, {s(sT)}")
            e(f"v_perm_b32 {v(XX+4+j)}, {v(XC+2*j+1)}, {v(XC+2*j)}, {s(sT+1)}")
    l0 = lab("zp")
    e(f"s_cmp_lg_u32 {s(sWAVE)}, 1"); e(f"s_cbranch_scc1 {l0}")
    e("v_lshrrev_b32 v11, 5, v1"); e(f"v_mul_u32_u24 v11, {UP}, v11"); e("v_and_b32 v12, 31, v1"); e("v_lshl_add_u32 v11, v12, 4, v11")
    e(f"v_add_u32 v11, {U0}, v11")
    e("v_mov_b32 v12, 0"); e("v_mov_b32 v13, 0"); e("v_mov_b32 v14, 0"); e("v_mov_b32 v15, 0")
    e("ds_write_b128 v11, v[12:15]")
    A.label(l0)
    e(f"s_waitcnt vmcnt({48 if layer == 1 else 0})")
    if layer == 2:
        for i in range(8): stats_final(SB+2*i, SB+2*i+1, SB+2*i, SB+2*i+1, 48 + 2*(i % 4))
    F = 64
    for i in range(8):
        j, hi = i >> 1, i & 1
        for c in range(2):
            if hi: e(f"v_and_b32 {v(F+2*i+c)}, {s(sHI)}, {v(XX+4*c+j)}")
            else: e(f"v_lshlrev_b32 {v(F+2*i+c)}, 16, {v(XX+4*c+j)}")
    for i in range(8):
        e(f"v_pk_add_f32 {v(F+2*i,2)}, {v(F+2*i,2)}, {v(SB+2*i,2)} op_sel_hi:[1,0] neg_lo:[0,1] neg_hi:[0,1]")
    for i in range(8):
        e(f"v_cvt_pk_bf16_f32 {v(80+i)}, {v(F+2*i)}, {v(F+2*i+1)}")
    for i in range(8):
        e(f"v_lshlrev_b32 {v(F+2*i)}, 16, {v(80+i)}"); e(f"v_and_b32 {v(F+2*i+1)}, {s(sHI)}, {v(80+i)}")
    for i in range(8):
        e(f"v_pk_mul_f32 {v(F+2*i,2)}, {v(F+2*i,2)}, {v(SB+2*i,2)} op_sel:[0,1] op_sel_hi:[1,1]")
    UU = 88
    for c in range(2):
        for j in range(4):
            e(f"v_cvt_pk_bf16_f32 {v(UU+4*c+j)}, {v(F+4*j+c)}, {v(F+4*j+2+c)}")
    e(f"v_lshlrev_b32 v10, 4, v0")
    e(f"v_add_u32 v11, {U0 + 512}, v10"); e(f"v_add_u32 v12, {X0}, v10")
    e(f"ds_write_b128 v11, {v(UU,4)}"); e(f"ds_write_b128 v11, {v(UU+4,4)} offset:{UP}")
    e(f"ds_write_b128 v12, {v(XX,4)}"); e(f"ds_write_b128 v12, {v(XX+4,4)} offset:4096")
    e(f"s_lshr_b32 {s(sT)}, {s(sWAVE)}, 1"); e(f"s_and_b32 {s(sT+1)}, {s(sWAVE)}, 1")
    vA, vB = 20, 21
    e("v_and_b32 v10, 7, v1"); e("v_sub_u32 v10, 7, v10"); e(f"v_mul_u32_u24 {v(vA)}, {KCC}, v10")
    e("v_bfe_u32 v10, v1, 5, 1"); e(f"v_lshlrev_b32 v10, 5, v10"); e(f"v_sub_u32 {v(vA)}, {v(vA)}, v10")
    e("v_bfe_u32 v10, v1, 4, 1"); e(f"v_lshl_add_u32 {v(vA)}, v10, 4, {v(vA)}")
    e("v_bfe_u32 v10, v1, 3, 1"); e(f"v_lshlrev_b32 v10, 4, v10"); e(f"v_sub_u32 {v(vA)}, {v(vA)}, v10")
    e(f"s_mul_i32 {s(sT+2)}, {s(sT)}, {KCH}"); e(f"s_lshl_b32 {s(sT+3)}, {s(sT+1)}, 8"); e(f"s_sub_u32 {s(sT+2)}, {s(sT+2)}, {s(sT+3)}")
    e(f"s_add_u32 {s(sT+2)}, {s(sT+2)}, {KC + 4080 - 3776}")
    e(f"v_add_u32 {v(vA)}, {s(sT+2)}, {v(vA)}")
    e(f"v_and_b32 v10, 15, v1"); e(f"v_lshlrev_b32 {v(vB)}, 5, v10")
    e("v_bfe_u32 v10, v1, 5, 1"); e(f"v_lshlrev_b32 v10, 5, v10"); e(f"v_sub_u32 {v(vB)}, {v(vB)}, v10")
    e("v_bfe_u32 v10, v1, 4, 1"); e(f"v_lshl_add_u32 {v(vB)}, v10, 4, {v(vB)}")
    e(f"s_mul_i32 {s(sT+2)}, {s(sT)}, {UP}"); e(f"s_sub_u32 {s(sT+2)}, {s(sT+2)}, {s(sT+3)}")
    e(f"s_add_u32 {s(sT+2)}, {s(sT+2)}, {U0 + 512 - 192}")
    e(f"v_add_u32 {v(vB)}, {s(sT+2)}, {v(vB)}")
    e("s_waitcnt lgkmcnt(0)"); e("s_barrier")
    ACC = 24
    SET = [64, 128]
    def loads(tp, st):
        out = []
        for q in range(8): out.append(f"ds_read_b128 {v(SET[st]+4*q,4)}, {v(vA)} offset:{64*(3 - tp) + 512*(7 - q)}")
        for tau in range(8): out.append(f"ds_read_b128 {v(SET[st]+32+4*tau,4)}, {v(vB)} offset:{512*tau + 64*(3 - tp)}")
        order = [8, 0, 9, 1, 10, 2, 11, 3, 12, 4, 13, 5, 14, 6, 15, 7]
        return [out[i] for i in order]
    for l in loads(0, 0): e(l)
    for tp in range(4):
        st = tp & 1
        e("s_waitcnt lgkmcnt(0)")
        nxt = loads(tp + 1, st ^ 1) if tp < 3 else []
        n = 0
        for T in range(8):
            for q in range(T + 1):
                c_ = "0" if (tp == 0 and q == 0) else v(ACC+4*T, 4)
                e(f"v_mfma_f32_16x16x32_bf16 {v(ACC+4*T,4)}, {v(SET[st]+4*q,4)}, {v(SET[st]+32+4*(T-q),4)}, {c_}")
                if n < len(nxt): e(nxt[n])
                n += 1
    lp1 = lab("p1"); lj = lab("pj")
    e(f"s_lshl_b32 {s(sT+2)}, {s(sWAVE)}, 12"); e(f"s_add_u32 {s(sT+2)}, {s(sT+2)}, {RED}")
    e(f"v_lshl_add_u32 v10, v1, 4, {s(sT+2)}")
    e(f"s_xor_b32 {s(sT+2)}, {s(sWAVE)}, 1"); e(f"s_lshl_b32 {s(sT+2)}, {s(sT+2)}, 12"); e(f"s_add_u32 {s(sT+2)}, {s(sT+2)}, {RED}")
    e(f"v_lshl_add_u32 v11, v1, 4, {s(sT+2)}")
    e(f"s_cmp_eq_u32 {s(sT+1)}, 1"); e(f"s_cbranch_scc1 {lp1}")
    for k in range(4): e(f"ds_write_b128 v10, {v(ACC+16+4*k,4)} offset:{1024*k}")
    e(f"s_branch {lj}")
    A.label(lp1)
    for k in range(4): e(f"ds_write_b128 v10, {v(ACC+4*k,4)} offset:{1024*k}")
    e("s_nop 7")
    for k in range(16): e(f"v_mov_b32 {v(ACC+k)}, {v(ACC+16+k)}")
    A.label(lj)
    e(f"v_and_b32 v12, 15, v1"); e("v_lshlrev_b32 v12, 5, v12"); e("v_lshrrev_b32 v13, 4, v1"); e("v_lshl_add_u32 v12, v13, 3, v12")
    e(f"s_lshl_b32 {s(sT+2)}, {s(sT+1)}, 11")
    e(f"v_add_u32 v12, {s(sT+2)}, v12")
    e(f"s_mul_i32 {s(sT+3)}, {s(sT)}, {UP}"); e(f"s_add_u32 {s(sT+3)}, {s(sT+3)}, {U0+512}")
    e(f"v_add_u32 v13, {s(sT+3)}, v12")
    e(f"s_lshl_b32 {s(sT+3)}, {s(sT)}, 12"); e(f"s_add_u32 {s(sT+3)}, {s(sT+3)}, {X0}")
    e(f"v_add_u32 v14, {s(sT+3)}, v12")
    for k in range(4):
        e(f"ds_read_b64 {v(64+2*k,2)}, v13 offset:{512*k}")
        e(f"ds_read_b64 {v(72+2*k,2)}, v14 offset:{512*k}")
    e("s_waitcnt lgkmcnt(0)"); e("s_barrier")
    for k in range(4): e(f"ds_read_b128 {v(80+4*k,4)}, v11 offset:{1024*k}")
    for k in range(4):
        for j in range(2):
            e(f"v_lshlrev_b32 {v(96+4*k+2*j)}, 16, {v(64+2*k+j)}"); e(f"v_and_b32 {v(97+4*k+2*j)}, {s(sHI)}, {v(64+2*k+j)}")
            e(f"v_lshlrev_b32 {v(112+4*k+2*j)}, 16, {v(72+2*k+j)}"); e(f"v_and_b32 {v(113+4*k+2*j)}, {s(sHI)}, {v(72+2*k+j)}")
    e(f"s_mov_b32 {s(sT+4)}, {s(sDSKV)}"); e(f"s_mov_b32 {s(sT+5)}, {s(sDSKV)}")
    assert (sT + 4) % 2 == 0
    e("s_waitcnt lgkmcnt(0)")
    for k in range(8):
        e(f"v_pk_add_f32 {v(ACC+2*k,2)}, {v(ACC+2*k,2)}, {v(80+2*k,2)}")
        e(f"v_pk_fma_f32 {v(96+2*k,2)}, {v(96+2*k,2)}, {s(sT+4,2)}, {v(ACC+2*k,2)}")
        e(f"v_pk_add_f32 {v(96+2*k,2)}, {v(96+2*k,2)}, {v(112+2*k,2)}")
    for k in range(8): e(f"v_cvt_pk_bf16_f32 {v(64+k)}, {v(96+2*k)}, {v(97+2*k)}")
    xo = XT1 if layer == 1 else XT3
    e(f"s_lshl_b32 {s(sT+2)}, {s(sCP)}, 1"); e(f"s_add_u32 {s(sT+2)}, {s(sT+2)}, {s(sT)}")
    e(f"s_mul_i32 {s(sT+2)}, {s(sT+2)}, {PITCH}"); e(f"s_add_u32 {s(sT+2)}, {s(sT+2)}, {xo}")
    for k in range(4):
        e(f"buffer_store_dwordx2 {v(64+2*k,2)}, v12, {s(sSRD,4)}, {s(sT+2)} offen offset:{512*k} sc1")

NCSK, NCSV, NCSQ = 2, 4, 6
def ones_regs(r):
    for i in range(4): e(f"v_mov_b32 {v(r+i)}, 0x3f803f80")

def colsums():
    ON = 24
    ones_regs(ON)
    for ks in range(16):
        c0 = lambda r: "0" if ks == 0 else v(r, 4)
        e(f"v_mfma_f32_16x16x32_bf16 v[28:31], {v(ON,4)}, {a((0*16+ks)*4,4)}, {c0(28)}")
        e(f"v_mfma_f32_16x16x32_bf16 v[32:35], {v(ON,4)}, {a((1*16+ks)*4,4)}, {c0(32)}")
        e(f"v_mfma_f32_16x16x32_bf16 v[36:39], {a((2*16+ks)*4,4)}, {v(ON,4)}, {c0(36)}")
    e(f"v_sub_f32 {v(NCSK)}, 0, v28"); e(f"v_sub_f32 {v(NCSK+1)}, 0, v28")
    e(f"v_sub_f32 {v(NCSV)}, 0, v32"); e(f"v_sub_f32 {v(NCSV+1)}, 0, v32")
    for i in range(4): e(f"v_sub_f32 {v(NCSQ+i)}, 0, {v(36+i)}")

def gphase(layer):
    xt = XT1 if layer == 1 else XT3
    pq = PQ1 if layer == 1 else PQ2
    kv = KV1 if layer == 1 else KV2
    e("v_lshrrev_b32 v10, 3, v1"); e(f"v_mul_u32_u24 v10, {PITCH}, v10")
    e("v_bfe_u32 v11, v1, 4, 2"); e("v_lshlrev_b32 v11, 1, v11"); e("v_and_b32 v12, 7, v1"); e("v_xor_b32 v11, v11, v12")
    e("v_lshl_add_u32 v10, v11, 4, v10")
    e(f"s_lshl_b32 {s(sT)}, {s(sRS)}, 7"); e(f"v_add_u32 v10, {s(sT)}, v10")
    e(f"s_mul_i32 {s(sT)}, {s(sWAVE)}, {32*PITCH}"); e(f"s_add_u32 {s(sT)}, {s(sT)}, {xt}")
    e(f"s_lshl_b32 {s(sT+1)}, {s(sWAVE)}, 12"); e(f"s_add_u32 {s(sT+1)}, {s(sT+1)}, {AT}")
    for n in range(16):
        e(f"s_mov_b32 m0, {s(sT+1)}")
        e(f"buffer_load_dwordx4 v10, {s(sSRD,4)}, {s(sT)} offen sc1 lds")
        if n < 15:
            dch = 8 if (n & 3) != 3 else 128 - 24
            e(f"s_add_u32 {s(sT)}, {s(sT)}, {dch*PITCH}"); e(f"s_add_u32 {s(sT+1)}, {s(sT+1)}, {dch*128}")
    e("v_lshrrev_b32 v11, 2, v1"); e(f"v_mul_u32_u24 v11, {PITCH}, v11"); e("v_and_b32 v12, 3, v1"); e("v_lshl_add_u32 v11, v12, 4, v11")
    e(f"s_lshl_b32 {s(sT)}, {s(sRO)}, 6"); e(f"v_add_u32 v11, {s(sT)}, v11")
    e(f"s_lshl_b32 {s(sT)}, {s(sJO)}, 7"); e(f"s_lshl_b32 {s(sT+1)}, {s(sWAVE)}, 5"); e(f"s_add_u32 {s(sT)}, {s(sT)}, {s(sT+1)}")
    e(f"s_mul_i32 {s(sT)}, {s(sT)}, {PITCH}"); e(f"s_add_u32 {s(sT)}, {s(sT)}, {xt}")
    e(f"s_lshl_b32 {s(sT+1)}, {s(sWAVE)}, 11"); e(f"s_add_u32 {s(sT+1)}, {s(sT+1)}, {XRES}")
    for n in range(2):
        e(f"s_mov_b32 m0, {s(sT+1)}")
        e(f"buffer_load_dwordx4 v11, {s(sSRD,4)}, {s(sT)} offen sc1 lds")
        if n == 0:
            e(f"s_add_u32 {s(sT)}, {s(sT)}, {16*PITCH}"); e(f"s_add_u32 {s(sT+1)}, {s(sT+1)}, 1024")
    if layer == 1:
        load_weights_o()
        extra = 32
        colsums()
    else:
        extra = 0
    TA = 16
    e("v_lshrrev_b32 v10, 2, v1"); e("v_lshlrev_b32 v10, 7, v10"); e("v_and_b32 v11, 3, v1"); e("v_lshl_add_u32 v10, v11, 3, v10")
    e(f"v_add_u32 v10, {AT}, v10")
    e("v_bfe_u32 v11, v1, 3, 2")
    for j in range(4):
        e(f"s_add_u32 {s(sT)}, {s(sWAVE)}, {j}"); e(f"s_and_b32 {s(sT)}, {s(sT)}, 3")
        e(f"v_xor_b32 v12, {s(sT)}, v11"); e(f"v_lshl_add_u32 {v(TA+j)}, v12, 5, v10")
    XF = [64, 80]
    AK, AV, AQ, GR, RS_, ON = 96, 112, 128, 144, 148, 152
    ones_regs(ON)
    def reads(ks):
        out = []
        for j in range(4):
            out.append(f"ds_read_b64_tr_b16 {v(XF[ks&1]+4*j,2)}, {v(TA+j)} offset:{ks*4096}")
            out.append(f"ds_read_b64_tr_b16 {v(XF[ks&1]+4*j+2,2)}, {v(TA+j)} offset:{ks*4096+2048}")
        return out
    tot = 18 + extra
    e(f"s_waitcnt vmcnt({min(63, tot - 4)})"); e("s_barrier")
    for l in reads(0): e(l)
    for ks in range(16):
        nxt = []
        if ks < 15:
            if (ks + 1) % 4 == 0:
                c = (ks + 1) // 4
                e(f"s_waitcnt vmcnt({min(63, tot - 4*(c+1))})"); e("s_barrier")
            nxt = reads(ks + 1)
        x = XF[ks & 1]
        for l in nxt: e(l)
        e(f"s_waitcnt lgkmcnt({8 if nxt else 0})")
        z = lambda r: "0" if ks == 0 else v(r, 4)
        for j in range(4):
            e(f"v_mfma_f32_16x16x32_bf16 {v(AK+4*j,4)}, {v(x+4*j,4)}, {a((0*16+ks)*4,4)}, {z(AK+4*j)}")
            e(f"v_mfma_f32_16x16x32_bf16 {v(AV+4*j,4)}, {v(x+4*j,4)}, {a((1*16+ks)*4,4)}, {z(AV+4*j)}")
            e(f"v_mfma_f32_16x16x32_bf16 {v(AQ+4*j,4)}, {a((2*16+ks)*4,4)}, {v(x+4*j,4)}, {z(AQ+4*j)}")
        e(f"v_mfma_f32_16x16x32_bf16 {v(GR,4)}, {v(x,4)}, {v(x,4)}, {z(GR)}")
        e(f"v_mfma_f32_16x16x32_bf16 {v(RS_,4)}, {v(ON,4)}, {v(x,4)}, {z(RS_)}")
    e("v_and_b32 v10, 3, v1")
    e(f"v_cmp_eq_u32 {s(sM,2)}, 1, v10"); e(f"v_cmp_eq_u32 {s(sM+2,2)}, 2, v10"); e(f"v_cmp_eq_u32 {s(sM+4,2)}, 3, v10")
    e(f"v_cndmask_b32 v11, {v(GR)}, {v(GR+1)}, {s(sM,2)}")
    e(f"v_cndmask_b32 v11, v11, {v(GR+2)}, {s(sM+2,2)}")
    e(f"v_cndmask_b32 v11, v11, {v(GR+3)}, {s(sM+4,2)}")
    e(f"v_mov_b32 v12, {v(RS_)}")
    stats_final(12, 11, 13, 14, 20)
    e("v_mul_f32 v13, v13, v14")
    e("v_and_b32 v10, 15, v1"); e("v_lshlrev_b32 v10, 2, v10")
    e(f"s_lshl_b32 {s(sT)}, {s(sWAVE)}, 6"); e(f"s_add_u32 {s(sT)}, {s(sT)}, {ST}")
    e(f"v_add_u32 v10, {s(sT)}, v10")
    e(f"s_mov_b32 {s(sT+2)}, 0x00f0000f"); e(f"s_mov_b32 {s(sT+3)}, 0xf0000f00")
    e(f"s_mov_b64 exec, {s(sT+2,2)}")
    e("ds_write_b32 v10, v14"); e("ds_write_b32 v10, v13 offset:256")
    e("s_mov_b64 exec, -1")
    e("s_waitcnt lgkmcnt(0)"); e("s_barrier")
    R4, M4, RQ, MQ = 24, 40, 56, 60
    e("v_lshrrev_b32 v10, 4, v1"); e("v_lshlrev_b32 v10, 4, v10"); e(f"v_add_u32 v10, {ST}, v10")
    e("v_and_b32 v11, 15, v1"); e("v_lshlrev_b32 v11, 2, v11"); e(f"v_add_u32 v11, {ST}, v11")
    for j in range(4):
        e(f"s_add_u32 {s(sT)}, {s(sWAVE)}, {j}"); e(f"s_and_b32 {s(sT)}, {s(sT)}, 3"); e(f"s_lshl_b32 {s(sM+j)}, {s(sT)}, 6")
        e(f"v_add_u32 v12, {s(sM+j)}, v10"); e(f"v_add_u32 v13, {s(sM+j)}, v11")
        e(f"ds_read_b128 {v(R4+4*j,4)}, v12"); e(f"ds_read_b128 {v(M4+4*j,4)}, v12 offset:256")
        e(f"ds_read_b32 {v(RQ+j)}, v13"); e(f"ds_read_b32 {v(MQ+j)}, v13 offset:256")
    e("s_waitcnt lgkmcnt(0)")
    PK, VV = 64, 72
    def phi(acc, c1src, T):
        pass
    for j in range(4):
        for hp in range(2):
            acc = AV + 4*j + 2*hp; T = 80
            e(f"v_pk_mul_f32 {v(T,2)}, {v(M4+4*j+2*hp,2)}, {v(NCSV,2)}")
            e(f"v_pk_fma_f32 {v(T,2)}, {v(R4+4*j+2*hp,2)}, {v(acc,2)}, {v(T,2)}")
            e(f"v_cvt_pk_bf16_f32 {v(VV+2*j+hp)}, {v(T)}, {v(T+1)}")
    def phi_pair(rp, acc, mp, ncs, dst, T, bro=False):
        if not bro:
            e(f"v_pk_fma_f32 {v(T,2)}, {v(mp,2)}, {v(ncs,2)}, {s(sEPS6,2)}")
            e(f"v_pk_fma_f32 {v(T,2)}, {v(rp,2)}, {v(acc,2)}, {v(T,2)}")
        else:
            e(f"v_fma_f32 {v(T)}, {v(mp)}, {v(ncs)}, {s(sEPS6)}"); e(f"v_fma_f32 {v(T+1)}, {v(mp)}, {v(ncs+1)}, {s(sEPS6)}")
            e(f"v_fma_f32 {v(T)}, {v(rp)}, {v(acc)}, {v(T)}"); e(f"v_fma_f32 {v(T+1)}, {v(rp)}, {v(acc+1)}, {v(T+1)}")
        e(f"v_pk_mul_f32 {v(T+2,2)}, {v(T,2)}, {s(sLOG2E,2)}")
        e(f"v_exp_f32 {v(T+2)}, {v(T+2)} clamp"); e(f"v_exp_f32 {v(T+3)}, {v(T+3)} clamp")
        e(f"v_max_f32 {v(T)}, {s(sEPS6)}, {v(T)}"); e(f"v_max_f32 {v(T+1)}, {s(sEPS6)}, {v(T+1)}")
        e(f"v_pk_add_f32 {v(T,2)}, {v(T,2)}, {v(T+2,2)}")
        e(f"v_cvt_pk_bf16_f32 {v(dst)}, {v(T)}, {v(T+1)}")
    for j in range(4):
        for hp in range(2):
            phi_pair(R4+4*j+2*hp, AK+4*j+2*hp, M4+4*j+2*hp, NCSK, PK+2*j+hp, 84 + 4*((2*j+hp) % 2))
    e(f"v_mfma_f32_16x16x32_bf16 {v(GR,4)}, {v(VV,4)}, {v(PK,4)}, 0")
    e(f"v_mfma_f32_16x16x32_bf16 {v(RS_,4)}, {v(ON,4)}, {v(PK,4)}, 0")
    e(f"v_mfma_f32_16x16x32_bf16 {v(GR,4)}, {v(VV+4,4)}, {v(PK+4,4)}, {v(GR,4)}")
    e(f"v_mfma_f32_16x16x32_bf16 {v(RS_,4)}, {v(ON,4)}, {v(PK+4,4)}, {v(RS_,4)}")
    PQR = 92
    for j in range(4):
        for hp in range(2):
            phi_pair(RQ+j, AQ+4*j+2*hp, MQ+j, NCSQ+2*hp, PQR+2*j+hp, 84 + 4*((2*j+hp) % 2), bro=True)
    e(f"s_lshl_b32 {s(sT)}, {s(sJ)}, 2"); e(f"s_add_u32 {s(sT)}, {s(sT)}, {s(sWAVE)}")
    e(f"s_mul_i32 {s(sT+1)}, {s(sT)}, {KVP}"); e(f"s_add_u32 {s(sT+1)}, {s(sT+1)}, {kv}")
    e("v_lshlrev_b32 v10, 2, v1")
    for i in range(4):
        e(f"buffer_atomic_add_f32 {v(GR+i)}, v10, {s(sSRD,4)}, {s(sT+1)} offen offset:{256*i}")
    e("s_mov_b64 exec, 0xffff")
    e(f"buffer_atomic_add_f32 {v(RS_)}, v10, {s(sSRD,4)}, {s(sT+1)} offen offset:1024")
    e("s_mov_b64 exec, -1")
    e(f"s_mul_i32 {s(sT+1)}, {s(sT)}, {HP}"); e(f"s_add_u32 {s(sT+1)}, {s(sT+1)}, {pq}")
    e(f"s_lshl_b32 {s(sT+2)}, {s(sRS)}, 11"); e(f"s_add_u32 {s(sT+1)}, {s(sT+1)}, {s(sT+2)}")
    e("v_and_b32 v10, 15, v1"); e("v_lshlrev_b32 v10, 5, v10"); e("v_lshrrev_b32 v11, 4, v1"); e("v_lshl_add_u32 v10, v11, 3, v10")
    for j in range(4):
        e(f"s_lshl_b32 {s(sT+2)}, {s(sM+j)}, 3")
        e(f"s_add_u32 {s(sT+2)}, {s(sT+2)}, {s(sT+1)}")
        e(f"buffer_store_dwordx2 {v(PQR+2*j,2)}, v10, {s(sSRD,4)}, {s(sT+2)} offen sc1")

def ophase(layer):
    pq = PQ1 if layer == 1 else PQ2
    kv = KV1 if layer == 1 else KV2
    KVF, PQF = 64, 128
    e("v_and_b32 v10, 3, v1"); e("v_lshlrev_b32 v10, 2, v10"); e("v_bfe_u32 v11, v1, 2, 2"); e("v_add_u32 v10, v10, v11")
    e("v_and_b32 v11, 16, v1"); e("v_cmp_ne_u32 vcc, 0, v11")
    e("v_cndmask_b32 v10, v10, v11, vcc")
    e("v_lshlrev_b32 v10, 6, v10"); e("v_lshrrev_b32 v11, 5, v1"); e("v_lshl_add_u32 v10, v11, 5, v10")
    e(f"s_lshl_b32 {s(sT)}, {s(sWAVE)}, 3"); e(f"s_mul_i32 {s(sT+1)}, {s(sT)}, {KVP}"); e(f"s_add_u32 {s(sT+1)}, {s(sT+1)}, {kv}")
    e("v_and_b32 v11, 31, v1"); e("v_lshlrev_b32 v11, 5, v11"); e("v_lshrrev_b32 v12, 5, v1"); e("v_lshl_add_u32 v11, v12, 4, v11")
    e(f"s_mul_i32 {s(sT+2)}, {s(sT)}, {HP}"); e(f"s_add_u32 {s(sT+2)}, {s(sT+2)}, {pq}")
    e(f"s_lshl_b32 {s(sT+3)}, {s(sRO)}, 10"); e(f"s_add_u32 {s(sT+2)}, {s(sT+2)}, {s(sT+3)}")
    for h in range(8):
        e(f"buffer_load_dwordx4 {v(KVF+8*h,4)}, v10, {s(sSRD,4)}, {s(sT+1)} offen sc1")
        e(f"buffer_load_dwordx4 {v(KVF+8*h+4,4)}, v10, {s(sSRD,4)}, {s(sT+1)} offen offset:16 sc1")
        e(f"buffer_load_dwordx4 {v(PQF+4*h,4)}, v11, {s(sSRD,4)}, {s(sT+2)} offen sc1")
        if h < 7:
            e(f"s_add_u32 {s(sT+1)}, {s(sT+1)}, {KVP}"); e(f"s_add_u32 {s(sT+2)}, {s(sT+2)}, {HP}")
    e(f"s_lshl_b32 {s(sT)}, {s(sWAVE)}, 13"); e(f"s_add_u32 {s(sT)}, {s(sT)}, {OT}")
    e(f"v_lshl_add_u32 v12, v1, 4, {s(sT)}")
    D1 = [24, 40]
    for h in range(8):
        e(f"s_waitcnt vmcnt({3*(7-h)})")
        k = KVF + 8*h
        for i in range(4): e(f"v_cvt_pk_bf16_f32 {v(k+i)}, {v(k+2*i)}, {v(k+2*i+1)}")
        d = D1[h & 1]
        e(f"v_mfma_f32_32x32x16_bf16 {v(d,16)}, {v(k,4)}, {v(PQF+4*h,4)}, 0")
        e(f"v_add_f32 {v(d+8)}, {s(sEPS6)}, {v(d+8)}")
        e(f"v_rcp_f32 {v(d+8)}, {v(d+8)}")
        for i in range(4):
            e(f"v_pk_mul_f32 {v(d+2*i,2)}, {v(d+2*i,2)}, {v(d+8,2)} op_sel_hi:[1,0]")
        for i in range(4): e(f"v_cvt_pk_bf16_f32 {v(d+10+i)}, {v(d+2*i)}, {v(d+2*i+1)}")
        e(f"ds_write_b128 v12, {v(d+10,4)} offset:{1024*h}") if (d + 10) % 2 == 0 else None
    e("s_waitcnt lgkmcnt(0)"); e("s_barrier")
    ACC = 24; OF = [64, 68, 72, 76, 80, 84, 88, 92]
    e(f"v_lshlrev_b32 v13, 4, v1"); e(f"v_add_u32 v13, {OT}, v13")
    NB = 8
    for h in range(NB): e(f"ds_read_b128 {v(OF[h],4)}, v13 offset:{1024*h}")
    e("v_lshrrev_b32 v10, 5, v1"); e("v_lshlrev_b32 v10, 4, v10"); e("v_bfe_u32 v11, v1, 2, 2"); e("v_add_u32 v10, v10, v11")
    e("v_lshlrev_b32 v10, 6, v10"); e("v_bfe_u32 v11, v1, 4, 1"); e("v_lshl_add_u32 v10, v11, 5, v10")
    e("v_and_b32 v11, 3, v1"); e("v_lshl_add_u32 v10, v11, 3, v10")
    e(f"s_lshl_b32 {s(sT)}, {s(sWAVE)}, 11"); e(f"s_add_u32 {s(sT)}, {s(sT)}, {XRES}"); e(f"v_add_u32 v10, {s(sT)}, v10")
    for h in range(32):
        e(f"s_waitcnt lgkmcnt({min(NB-1, 31-h)})")
        w_ = a(192 + 4*h, 4) if h < 16 else v(192 + 4*(h-16), 4)
        c_ = "0" if h == 0 else v(ACC, 16)
        e(f"v_mfma_f32_32x32x16_bf16 {v(ACC,16)}, {w_}, {v(OF[h % NB],4)}, {c_}")
        if h + NB < 32: e(f"ds_read_b128 {v(OF[h % NB],4)}, v13 offset:{1024*(h+NB)}")
    XRr = 96
    for j in range(4): e(f"ds_read_b64_tr_b16 {v(XRr+2*j,2)}, v10 offset:{256*j}")
    e("s_waitcnt lgkmcnt(0)")
    XF = 104
    for k in range(8):
        e(f"v_lshlrev_b32 {v(XF+2*k)}, 16, {v(XRr+k)}"); e(f"v_and_b32 {v(XF+2*k+1)}, {s(sHI)}, {v(XRr+k)}")
    for k in range(8): e(f"v_pk_add_f32 {v(XF+2*k,2)}, {v(XF+2*k,2)}, {v(ACC+2*k,2)}")
    PKD = 120
    for k in range(8): e(f"v_cvt_pk_bf16_f32 {v(PKD+k)}, {v(XF+2*k)}, {v(XF+2*k+1)}")
    if layer == 2:
        e("v_and_b32 v10, 31, v1"); e("v_lshlrev_b32 v10, 10, v10"); e("v_lshrrev_b32 v11, 5, v1"); e("v_lshl_add_u32 v10, v11, 5, v10")
        e(f"s_lshl_b32 {s(sT)}, {s(sRO)}, 15"); e(f"s_lshl_b32 {s(sT+1)}, {s(sJO)}, 8"); e(f"s_add_u32 {s(sT)}, {s(sT)}, {s(sT+1)}")
        e(f"s_lshl_b32 {s(sT+1)}, {s(sWAVE)}, 6"); e(f"s_add_u32 {s(sT)}, {s(sT)}, {s(sT+1)}")
        e(f"v_add_u32 v10, {s(sT)}, v10")
        e(f"global_store_dwordx4 v10, {v(PKD,4)}, {s(sOUT,2)}")
        e(f"global_store_dwordx4 v10, {v(PKD+4,4)}, {s(sOUT,2)} offset:16")
        return
    e(f"v_pk_add_f32 v[64:65], {v(XF,2)}, {v(XF+2,2)}"); e(f"v_pk_mul_f32 v[66:67], {v(XF,2)}, {v(XF,2)}")
    e(f"v_pk_fma_f32 v[66:67], {v(XF+2,2)}, {v(XF+2,2)}, v[66:67]")
    for k in range(2, 8):
        e(f"v_pk_add_f32 v[64:65], v[64:65], {v(XF+2*k,2)}"); e(f"v_pk_fma_f32 v[66:67], {v(XF+2*k,2)}, {v(XF+2*k,2)}, v[66:67]")
    e("v_add_f32 v64, v64, v65"); e("v_add_f32 v65, v66, v67")
    e("v_permlane32_swap_b32 v64, v65")
    e("v_add_f32 v64, v64, v65")
    e("v_and_b32 v10, 31, v1"); e("v_lshlrev_b32 v10, 3, v10"); e("v_lshrrev_b32 v11, 5, v1"); e("v_lshl_add_u32 v10, v11, 2, v10")
    e(f"s_lshl_b32 {s(sT)}, {s(sRO)}, 8"); e(f"s_add_u32 {s(sT)}, {s(sT)}, {S3}")
    e(f"buffer_atomic_add_f32 v64, v10, {s(sSRD,4)}, {s(sT)} offen")
    e("v_and_b32 v10, 31, v1"); e(f"v_mul_u32_u24 v10, {TBP}, v10"); e("v_lshrrev_b32 v11, 5, v1"); e("v_lshl_add_u32 v10, v11, 5, v10")
    e(f"s_mul_i32 {s(sT)}, {s(sWAVE)}, {32*TBP}"); e(f"s_add_u32 {s(sT)}, {s(sT)}, {TB}"); e(f"v_add_u32 v10, {s(sT)}, v10")
    e(f"ds_write_b128 v10, {v(PKD,4)}"); e(f"ds_write_b128 v10, {v(PKD+4,4)} offset:16")
    e("v_lshrrev_b32 v11, 5, v1"); e("v_lshlrev_b32 v11, 3, v11"); e("v_bfe_u32 v12, v1, 2, 2"); e("v_add_u32 v11, v11, v12")
    e(f"v_mul_u32_u24 v11, {TBP}, v11"); e("v_bfe_u32 v12, v1, 4, 1"); e("v_lshl_add_u32 v11, v12, 5, v11")
    e("v_and_b32 v12, 3, v1"); e("v_lshl_add_u32 v11, v12, 3, v11"); e(f"v_add_u32 v11, {s(sT)}, v11")
    e("s_waitcnt lgkmcnt(0)")
    for k in range(2):
        e(f"ds_read_b64_tr_b16 {v(68+4*k,2)}, v11 offset:{16*k*TBP}")
        e(f"ds_read_b64_tr_b16 {v(70+4*k,2)}, v11 offset:{16*k*TBP + 4*TBP}")
    e("v_and_b32 v10, 31, v1"); e(f"v_mul_u32_u24 v10, {PITCH}, v10"); e("v_lshrrev_b32 v12, 5, v1"); e("v_lshl_add_u32 v10, v12, 4, v10")
    e(f"s_lshl_b32 {s(sT)}, {s(sJO)}, 7"); e(f"s_lshl_b32 {s(sT+1)}, {s(sWAVE)}, 5"); e(f"s_add_u32 {s(sT)}, {s(sT)}, {s(sT+1)}")
    e(f"s_mul_i32 {s(sT)}, {s(sT)}, {PITCH}"); e(f"s_lshl_b32 {s(sT+1)}, {s(sRO)}, 6"); e(f"s_add_u32 {s(sT)}, {s(sT)}, {s(sT+1)}")
    e(f"s_add_u32 {s(sT)}, {s(sT)}, {XT2}")
    e("s_waitcnt lgkmcnt(0)")
    e(f"buffer_store_dwordx4 v[68:71], v10, {s(sSRD,4)}, {s(sT)} offen sc1")
    e(f"buffer_store_dwordx4 v[72:75], v10, {s(sSRD,4)}, {s(sT)} offen offset:32 sc1")

def build():
    prologue()
    p0()
    kgen()
    if stop_here("K"): return
    wait(1)
    conv(1)
    if stop_here("C1"): return
    arrive(2); wait(2)
    gphase(1)
    if stop_here("G1"): return
    arrive(3); wait(3)
    ophase(1)
    if stop_here("O1"): return
    arrive(4); wait(4)
    conv(2)
    if stop_here("C2"): return
    arrive(5); wait(5)
    gphase(2)
    if stop_here("G2"): return
    arrive(6); wait(6)
    ophase(2)

build()
A.label("L_end")
e("s_endpgm")

def rb_int(j):
    u = struct.unpack("<I", struct.pack("<f", float(j)))[0]
    u = (u + 0x7fff + ((u >> 16) & 1)) & 0xffff0000
    return int(struct.unpack("<f", struct.pack("<I", u))[0])
idx = []
for x in range(2064):
    j = 2047 - x
    if j < 0: ent = 1024
    else:
        t = rb_int(j); ent = t if t < 512 else 512 + (t - 512) // 4
    idx.append(2 * ent)

lines, nn = hazard_pass(A.lines)
probs = check_branches(lines)
for p in probs: print("BRANCH HAZARD:", p, file=sys.stderr)
hdr = open("interleave_layers__ssm_conv_s4d__linear_attn_block__prompt.s.ref").read().split("; Override launch")[0]
out = hdr + "; Override launch geometry by editing the next line.\n"
out += f"; @launch grid=(256,1,1) block=(256,1,1) lds={LDS_BYTES}\n"
out += '.amdgcn_target "amdgcn-amd-amdhsa--gfx950"\n.text\n'
out += f".globl {NAME}\n.p2align 8\n.type {NAME},@function\n{NAME}:\n"
out += "\n".join(lines) + "\n"
out += ".p2align 6\n.type L_idx,@object\nL_idx:\n"
for i in range(0, len(idx), 16): out += "  .short " + ", ".join(str(x) for x in idx[i:i+16]) + "\n"
out += "L_tab_end:\n"
out += f""".section .rodata,"a"
.p2align 6
.amdhsa_kernel {NAME}
  .amdhsa_next_free_vgpr 512
  .amdhsa_next_free_sgpr 96
  .amdhsa_accum_offset 256
  .amdhsa_group_segment_fixed_size 0
  .amdhsa_kernarg_size 104
  .amdhsa_user_sgpr_count 2
  .amdhsa_user_sgpr_kernarg_segment_ptr 1
  .amdhsa_system_sgpr_workgroup_id_x 1
  .amdhsa_float_denorm_mode_32 3
.end_amdhsa_kernel
"""
open(sys.argv[1], "w").write(out)
print(f"wrote {sys.argv[1]}: {len(lines)} lines, {nn} nops inserted", file=sys.stderr)
```

```python
import sys, struct
from asmlib import *

NAME = "interleave_layers__ssm_conv_s4d__linear_attn_block__prompt_kernel"
OPTS = {}
for x in sys.argv[2:]:
    if "=" in x:
        k_, v_ = x.split("="); OPTS[k_] = v_
STOP = OPTS.get("stop")
SPINMAX = int(OPTS.get("spin", 400000))

PITCH = 4224
S1 = 0x000000
SP = 0x004000
F1 = 0x014000; FP = 640; F2 = F1 + 0x6000
STAMP_OFF = 0x020000
KVP1 = 0x040000; KVH = 1152; KVW = 4 * KVH; KVP2 = KVP1 + 0x128000
WFG = 0x2A0000; WFO = WFG + 0x180000
XSZ = 0x220000
XT1 = 0x4A0000; XT3 = XT1 + XSZ; U2T = XT3 + XSZ; X2T = U2T + XSZ
HP = 65536 + 256
PQ1 = X2T + XSZ; PQ2 = PQ1 + 0x210000
WS_USED = PQ2 + 0x210000
assert KVP2 + 256 * KVW <= WFG and KVP1 + 256 * KVW <= KVP2
KC = 0; KCC = 4160; KCH = 8 * KCC
AT = 2 * KCH
MISC = AT + 65536
ST = MISC
SPL = MISC + 512
WST = MISC + 2048
CT = WST + 8192; CTP = 2080
TB = WST; TBP = 80
FLAG = MISC + 1792
LDS_BYTES = 163840
assert TB + 2 * 4 * 32 * TBP <= LDS_BYTES, TB
TABC = 96 * 544
U0 = AT; UP = 4608; X0 = AT + 2 * UP; RED = X0 + 8192
OT = AT

sU, sLOGA, sAIM, sCR, sCI, sLDT, sDSK = 8, 10, 12, 14, 16, 18, 20
sWQKV, sWO, sOUT, sDBG, sWS = 24, 26, 28, 30, 32
sSRD = 36; sSRD2 = 40
sWAVE, sXCD, sIDX, sCP, sRS, sJ, sRO, sJO = 44, 45, 46, 47, 48, 49, 50, 51
sSPIN = 52; sDSKV = 53
sT = 54
sLOG2E = 64; sEPS6 = 66; sM = 68; sHI = 76; sPC = 78; sINV512 = 80
sW = 34

def f2u(f): return struct.unpack("<I", struct.pack("<f", f))[0]
A = Asm(); e = A.e
uid = [0]
def lab(p):
    uid[0] += 1; return f"L_{p}_{uid[0]}"

STAMPS = OPTS.get("stamps") == "1"
DEFSET = "start,arr1,kgen,B1,c1_pro,C1,g1_ld0,g1_kv,G1,o1_ld,o1_sp,O1,c2_pro,C2,g2_ld0,G2,o2_ld,O2"
STSET = OPTS.get("st", DEFSET).split(",")
stnames = []
def stamp(name):
    if not STAMPS or name not in STSET: return
    i = len(stnames); stnames.append(name); assert i < 18
    e(f"{'s_memtime' if OPTS.get('clk') == '1' else 's_memrealtime'} s[82:83]"); e("s_waitcnt lgkmcnt(0)"); e(f"s_mov_b32 s{84+i}, s82")
def stamps_out():
    if not STAMPS: return
    l = lab("so")
    e(f"s_cmp_lg_u32 {s(sWAVE)}, 0"); e(f"s_cbranch_scc1 {l}")
    e(f"s_lshl_b32 {s(sT)}, s2, 7"); e(f"s_add_u32 {s(sT)}, {s(sT)}, {STAMP_OFF}")
    e("s_mov_b64 exec, 1")
    for i in range(len(stnames)):
        e(f"v_mov_b32 v10, s{84+i}"); e(f"v_mov_b32 v11, {4*i}")
        e(f"buffer_store_dword v10, v11, {s(sSRD,4)}, {s(sT)} offen")
    e("s_mov_b64 exec, -1")
    A.label(l)
def stop_here(name):
    if STOP == name:
        e("s_waitcnt vmcnt(0) lgkmcnt(0)"); e("s_branch L_end"); return True
    return False

SENT = 20
def sent_regs(r):
    for i in range(4): e(f"v_mov_b32 {v(r+i)}, -1")

def spin_check(retry, giveup):
    e(f"s_cbranch_vccz {giveup}")
    e(f"s_sub_u32 {s(sSPIN)}, {s(sSPIN)}, 1")
    e(f"s_cbranch_scc0 {retry}")
    e(f"s_mov_b32 {s(sSPIN)}, 0")
    A.label(giveup)

def maxtree(regs, dst):
    regs = list(regs)
    cur = regs.pop(0)
    first = True
    while regs:
        if len(regs) >= 2:
            e(f"v_max3_u32 {v(dst)}, {v(cur)}, {v(regs[0])}, {v(regs[1])}"); regs = regs[2:]
        else:
            e(f"v_max_u32 {v(dst)}, {v(cur)}, {v(regs[0])}"); regs = []
        cur = dst
    if cur != dst: e(f"v_mov_b32 {v(dst)}, {v(cur)}")

def arrive1():
    e("s_waitcnt vmcnt(0) lgkmcnt(0)"); e("s_barrier")
    l = lab("arr")
    e(f"s_cmp_lg_u32 {s(sWAVE)}, 0"); e(f"s_cbranch_scc1 {l}")
    e(f"s_and_b32 {s(sT)}, s2, 15"); e(f"s_lshl_b32 {s(sT)}, {s(sT)}, 4")
    e(f"v_mov_b32 v10, {s(sT)}"); e("v_mov_b32 v11, 1")
    e("s_mov_b64 exec, 1")
    e(f"global_atomic_add v10, v11, {s(sDBG,2)}")
    e("s_mov_b64 exec, -1")
    A.label(l)
def wait1():
    l = lab("wt"); lp = lab("poll"); g = lab("gu")
    e(f"s_cmp_lg_u32 {s(sWAVE)}, 0"); e(f"s_cbranch_scc1 {l}")
    e("v_and_b32 v10, 15, v0"); e("v_lshlrev_b32 v10, 4, v10")
    A.label(lp)
    e(f"global_load_dword v11, v10, {s(sDBG,2)} sc1")
    e("s_waitcnt vmcnt(0)")
    e("v_cmp_gt_u32 vcc, 16, v11")
    spin_check(lp, l)
    e("s_barrier")

def cmul_inplace(x, w, t):
    e(f"v_pk_mul_f32 {v(t,2)}, {v(x,2)}, {v(w,2)} op_sel_hi:[1,0]")
    e(f"v_pk_fma_f32 {v(x,2)}, {v(x,2)}, {v(w,2)}, {v(t,2)} op_sel:[1,1,0] op_sel_hi:[0,1,1] neg_lo:[0,1,0]")
def bf16r(dst, src):
    e(f"v_cvt_pk_bf16_f32 {v(dst)}, {v(src)}, {v(src)}"); e(f"v_lshlrev_b32 {v(dst)}, 16, {v(dst)}")
def stats_final(vsum, vsq, vm, vr, t):
    e(f"v_mul_f32 {v(t)}, {s(sINV512)}, {v(vsum)}")
    e(f"v_mul_f32 {v(t+1)}, {s(sINV512)}, {v(vsq)}")
    e(f"v_fma_f32 {v(t+1)}, -{v(t)}, {v(t)}, {v(t+1)}")
    e(f"v_max_f32 {v(t+1)}, 0, {v(t+1)}")
    bf16r(vm, t); bf16r(t + 1, t + 1)
    e(f"v_add_f32 {v(t+1)}, 0x3727c5ac, {v(t+1)}")
    bf16r(t + 1, t + 1)
    e(f"v_sqrt_f32 {v(t+1)}, {v(t+1)}")
    bf16r(t + 1, t + 1)
    e(f"v_rcp_f32 {v(vr)}, {v(t+1)}")

def fill_xt(buf, S):
    e("v_lshrrev_b32 v10, 7, v0"); e(f"v_mul_u32_u24 v10, {PITCH}, v10"); e("v_and_b32 v11, 127, v0"); e("v_lshl_add_u32 v10, v11, 5, v10")
    e(f"s_mul_i32 {s(sT)}, {s(sCP)}, {2*PITCH}"); e(f"s_add_u32 {s(sT)}, {s(sT)}, {buf}")
    e(f"buffer_store_dwordx4 {v(S,4)}, v10, {s(sSRD,4)}, {s(sT)} offen sc1")
    e(f"buffer_store_dwordx4 {v(S,4)}, v10, {s(sSRD,4)}, {s(sT)} offen offset:16 sc1")
    return 2
def fill_g(pq, kvp, f, S):
    e(f"s_lshl_b32 {s(sT)}, {s(sJ)}, 2"); e(f"s_add_u32 {s(sT)}, {s(sT)}, {s(sWAVE)}")
    e(f"s_mul_i32 {s(sT+1)}, {s(sT)}, {HP}"); e(f"s_lshl_b32 {s(sT+2)}, {s(sRS)}, 11"); e(f"s_add_u32 {s(sT+1)}, {s(sT+1)}, {s(sT+2)}")
    e(f"s_add_u32 {s(sT+1)}, {s(sT+1)}, {pq}")
    e("v_lshlrev_b32 v10, 5, v1")
    e(f"buffer_store_dwordx4 {v(S,4)}, v10, {s(sSRD,4)}, {s(sT+1)} offen sc1")
    e(f"buffer_store_dwordx4 {v(S,4)}, v10, {s(sSRD,4)}, {s(sT+1)} offen offset:16 sc1")
    kvp_addr(kvp, sT + 1)
    e("v_lshlrev_b32 v10, 4, v1")
    e(f"buffer_store_dwordx4 {v(S,4)}, v10, {s(sSRD,4)}, {s(sT+1)} offen sc1")
    e("v_lshlrev_b32 v10, 2, v1")
    e(f"s_mov_b32 {s(sT+2)}, -1"); e(f"s_mov_b32 {s(sT+3)}, 0"); e(f"s_mov_b64 exec, {s(sT+2,2)}")
    e(f"buffer_store_dword {v(S)}, v10, {s(sSRD,4)}, {s(sT+1)} offen offset:1024 sc1")
    e("s_mov_b64 exec, -1")
    f_addr(f, sT + 1)
    e(f"s_and_b32 {s(sT+2)}, {s(sRS)}, 7"); e(f"s_lshl_b32 {s(sT+3)}, {s(sT+2)}, 6")
    e(f"v_lshl_add_u32 v10, v1, 2, {s(sT+3)}")
    e("v_lshlrev_b32 v11, 2, v1"); e("v_add_u32 v11, 448, v11")
    e("v_cmp_gt_u32 vcc, 16, v1"); e("v_cndmask_b32 v10, v11, v10, vcc")
    e(f"s_mov_b32 {s(sT+3)}, 0xffffff"); e(f"s_cmp_eq_u32 {s(sT+2)}, 0"); e(f"s_cselect_b32 {s(sT+2)}, {s(sT+3)}, 0xffff"); e(f"s_mov_b32 {s(sT+3)}, 0")
    e(f"s_mov_b64 exec, {s(sT+2,2)}")
    e(f"buffer_store_dword {v(S)}, v10, {s(sSRD,4)}, {s(sT+1)} offen sc1")
    e("s_mov_b64 exec, -1")
    return 5
def kvp_addr(kvp, dst):
    e(f"s_lshl_b32 {s(dst)}, {s(sJ)}, 5"); e(f"s_add_u32 {s(dst)}, {s(dst)}, {s(sRS)}"); e(f"s_lshl_b32 {s(dst)}, {s(dst)}, 2")
    e(f"s_add_u32 {s(dst)}, {s(dst)}, {s(sWAVE)}"); e(f"s_mul_i32 {s(dst)}, {s(dst)}, {KVH}"); e(f"s_add_u32 {s(dst)}, {s(dst)}, {kvp}")
def f_addr(f, dst):
    e(f"s_lshr_b32 {s(dst)}, {s(sRS)}, 3"); e(f"s_lshl_b32 {s(sT+9)}, {s(sJ)}, 2"); e(f"s_add_u32 {s(dst)}, {s(dst)}, {s(sT+9)}")
    e(f"s_mul_i32 {s(dst)}, {s(dst)}, {FP}"); e(f"s_add_u32 {s(dst)}, {s(dst)}, {f}")
def otile_addr(vdst, sdst, buf):
    e(f"v_and_b32 {v(vdst)}, 31, v1"); e(f"v_mul_u32_u24 {v(vdst)}, {PITCH}, {v(vdst)}"); e("v_lshrrev_b32 v12, 5, v1"); e(f"v_lshl_add_u32 {v(vdst)}, v12, 4, {v(vdst)}")
    e(f"s_lshl_b32 {s(sdst)}, {s(sJO)}, 7"); e(f"s_lshl_b32 {s(sT+9)}, {s(sWAVE)}, 5"); e(f"s_add_u32 {s(sdst)}, {s(sdst)}, {s(sT+9)}")
    e(f"s_mul_i32 {s(sdst)}, {s(sdst)}, {PITCH}"); e(f"s_lshl_b32 {s(sT+9)}, {s(sRO)}, 6"); e(f"s_add_u32 {s(sdst)}, {s(sdst)}, {s(sT+9)}")
    e(f"s_add_u32 {s(sdst)}, {s(sdst)}, {buf}")
def fill_o(buf, S):
    otile_addr(10, sT, buf)
    e(f"buffer_store_dwordx4 {v(S,4)}, v10, {s(sSRD,4)}, {s(sT)} offen sc1")
    e(f"buffer_store_dwordx4 {v(S,4)}, v10, {s(sSRD,4)}, {s(sT)} offen offset:32 sc1")
    return 2
def sp_addr(dst):
    e(f"s_lshl_b32 {s(dst)}, {s(sRO)}, 2"); e(f"s_add_u32 {s(dst)}, {s(dst)}, {s(sJO)}"); e(f"s_lshl_b32 {s(dst)}, {s(dst)}, 8"); e(f"s_add_u32 {s(dst)}, {s(dst)}, {SP}")
def fill_sp(S):
    sp_addr(sT)
    e("v_lshlrev_b32 v10, 2, v1")
    e(f"buffer_store_dword {v(S)}, v10, {s(sSRD,4)}, {s(sT)} offen sc1")
    return 1

XR = 24; PRM = 32; IDX = 40; XC = 176
def prologue():
    e(f"s_getpc_b64 {s(sPC,2)}")
    A.label("L_pc")
    e("s_cmp_ge_u32 s2, 256")
    e("s_cbranch_scc1 L_end")
    e("s_load_dwordx16 s[8:23], s[0:1], 0")
    e("s_load_dwordx8 s[24:31], s[0:1], 64")
    e("s_load_dwordx2 s[32:33], s[0:1], 96")
    e("v_lshlrev_b32 v10, 7, v0")
    e("v_min_u32 v11, L_tab_end - L_pc - 4, v10")
    e(f"global_load_dword v38, v11, {s(sPC,2)}")
    e("v_add_u32 v10, 0x8000, v10")
    e("v_min_u32 v10, L_tab_end - L_pc - 4, v10")
    e(f"global_load_dword v39, v10, {s(sPC,2)}")
    e("v_lshrrev_b32 v1, 6, v0")
    e(f"s_and_b32 {s(sXCD)}, s2, 7")
    e(f"s_lshr_b32 {s(sIDX)}, s2, 3")
    e(f"v_readfirstlane_b32 {s(sWAVE)}, v1")
    e(f"s_lshl_b32 {s(sCP)}, {s(sXCD)}, 5"); e(f"s_add_u32 {s(sCP)}, {s(sCP)}, {s(sIDX)}")
    e(f"s_and_b32 {s(sT)}, {s(sIDX)}, 3"); e(f"s_lshl_b32 {s(sRS)}, {s(sXCD)}, 2"); e(f"s_add_u32 {s(sRS)}, {s(sRS)}, {s(sT)}")
    e(f"s_lshr_b32 {s(sJ)}, {s(sIDX)}, 2")
    e(f"s_and_b32 {s(sT)}, {s(sJ)}, 1"); e(f"s_lshl_b32 {s(sRO)}, {s(sRS)}, 1"); e(f"s_add_u32 {s(sRO)}, {s(sRO)}, {s(sT)}")
    e(f"s_lshr_b32 {s(sJO)}, {s(sJ)}, 1")
    e(f"s_mov_b32 {s(sLOG2E)}, {f2u(1.4426950408889634):#x}"); e(f"s_mov_b32 {s(sLOG2E+1)}, {s(sLOG2E)}")
    e(f"s_mov_b32 {s(sEPS6)}, {f2u(1e-6):#x}"); e(f"s_mov_b32 {s(sEPS6+1)}, {s(sEPS6)}")
    e(f"s_mov_b32 {s(sINV512)}, {f2u(1.0/512):#x}"); e(f"s_mov_b32 {s(sINV512+1)}, {s(sINV512)}")
    e(f"s_mov_b32 {s(sHI)}, 0xffff0000")
    e(f"s_mov_b32 {s(sSPIN)}, {SPINMAX}")
    e("v_and_b32 v1, 63, v0")
    e("s_waitcnt lgkmcnt(0)")
    e(f"s_mov_b32 {s(sSRD)}, {s(sWS)}"); e(f"s_and_b32 {s(sSRD+1)}, {s(sWS+1)}, 0xffff")
    e(f"s_mov_b32 {s(sSRD+2)}, {WS_USED:#x}"); e(f"s_mov_b32 {s(sSRD+3)}, 0x20000")

def p0():
    e(f"s_lshl_b32 {s(sT)}, s2, 13")
    e(f"v_lshl_add_u32 v10, v0, 5, {s(sT)}")
    e(f"global_load_dwordx4 {v(XR,4)}, v10, {s(sU,2)}")
    e(f"global_load_dwordx4 {v(XR+4,4)}, v10, {s(sU,2)} offset:16")
    e(f"s_lshl_b32 {s(sT)}, {s(sCP)}, 9")
    e(f"v_lshl_add_u32 v10, v0, 1, {s(sT)}")
    e(f"global_load_ushort {v(PRM)}, v10, {s(sLOGA,2)}")
    e(f"global_load_ushort {v(PRM+1)}, v10, {s(sAIM,2)}")
    e(f"global_load_ushort {v(PRM+2)}, v10, {s(sCR,2)}")
    e(f"global_load_ushort {v(PRM+3)}, v10, {s(sCI,2)}")
    e(f"s_lshl_b32 {s(sT)}, {s(sCP)}, 2")
    e("v_lshrrev_b32 v12, 7, v0")
    e(f"v_lshl_add_u32 v10, v12, 1, {s(sT)}")
    e(f"global_load_ushort {v(PRM+4)}, v10, {s(sLDT,2)}")
    e(f"global_load_ushort {v(PRM+5)}, v10, {s(sDSK,2)}")
    lo = lab("wo"); lj = lab("wj")
    e("s_cmp_ge_u32 s2, 192"); e(f"s_cbranch_scc1 {lo}")
    e(f"s_mul_i32 {s(sT)}, s2, 5462"); e(f"s_lshr_b32 {s(sT)}, {s(sT)}, 16")
    e(f"s_mul_i32 {s(sT+1)}, {s(sT)}, 12"); e(f"s_sub_u32 {s(sT+1)}, s2, {s(sT+1)}")
    e(f"s_mov_b32 {s(sSRD2)}, {s(sWQKV)}"); e(f"s_and_b32 {s(sSRD2+1)}, {s(sWQKV+1)}, 0xffff")
    e(f"s_mov_b32 {s(sSRD2+2)}, {512*1536*2}"); e(f"s_mov_b32 {s(sSRD2+3)}, 0x20000")
    e("v_lshrrev_b32 v11, 4, v1"); e("v_mul_u32_u24 v11, 3072, v11"); e("v_and_b32 v12, 15, v1"); e("v_lshl_add_u32 v11, v12, 4, v11")
    e(f"s_lshl_b32 {s(sT+2)}, {s(sT)}, 5"); e(f"s_lshl_b32 {s(sT+3)}, {s(sWAVE)}, 3"); e(f"s_add_u32 {s(sT+2)}, {s(sT+2)}, {s(sT+3)}")
    e(f"s_mul_i32 {s(sT+2)}, {s(sT+2)}, 3072"); e(f"s_lshl_b32 {s(sT+3)}, {s(sT+1)}, 8"); e(f"s_add_u32 {s(sT+2)}, {s(sT+2)}, {s(sT+3)}")
    e(f"s_lshl_b32 {s(sT+3)}, {s(sWAVE)}, 11"); e(f"s_add_u32 {s(sT+3)}, {s(sT+3)}, {WST}")
    e(f"s_mov_b32 m0, {s(sT+3)}")
    e(f"buffer_load_dwordx4 v11, {s(sSRD2,4)}, {s(sT+2)} offen lds")
    e(f"s_add_u32 {s(sT+3)}, {s(sT+3)}, 1024"); e(f"s_add_u32 {s(sT+2)}, {s(sT+2)}, {4*3072}")
    e(f"s_mov_b32 m0, {s(sT+3)}")
    e(f"buffer_load_dwordx4 v11, {s(sSRD2,4)}, {s(sT+2)} offen lds")
    e(f"s_branch {lj}")
    A.label(lo)
    e(f"s_sub_u32 {s(sT+1)}, s2, 192"); e(f"s_lshr_b32 {s(sT)}, {s(sT+1)}, 1"); e(f"s_and_b32 {s(sT+1)}, {s(sT+1)}, 1")
    e(f"s_mov_b32 {s(sSRD2)}, {s(sWO)}"); e(f"s_and_b32 {s(sSRD2+1)}, {s(sWO+1)}, 0xffff")
    e(f"s_mov_b32 {s(sSRD2+2)}, {512*512*2}"); e(f"s_mov_b32 {s(sSRD2+3)}, 0x20000")
    e("v_lshrrev_b32 v11, 5, v1"); e("v_lshlrev_b32 v11, 10, v11"); e("v_and_b32 v12, 31, v1"); e("v_lshl_add_u32 v11, v12, 4, v11")
    e(f"s_lshl_b32 {s(sT+2)}, {s(sT)}, 4"); e(f"s_lshl_b32 {s(sT+3)}, {s(sWAVE)}, 2"); e(f"s_add_u32 {s(sT+2)}, {s(sT+2)}, {s(sT+3)}")
    e(f"s_lshl_b32 {s(sT+2)}, {s(sT+2)}, 10"); e(f"s_lshl_b32 {s(sT+3)}, {s(sT+1)}, 9"); e(f"s_add_u32 {s(sT+2)}, {s(sT+2)}, {s(sT+3)}")
    e(f"s_lshl_b32 {s(sT+3)}, {s(sWAVE)}, 11"); e(f"s_add_u32 {s(sT+3)}, {s(sT+3)}, {WST}")
    e(f"s_mov_b32 m0, {s(sT+3)}")
    e(f"buffer_load_dwordx4 v11, {s(sSRD2,4)}, {s(sT+2)} offen lds")
    e(f"s_add_u32 {s(sT+3)}, {s(sT+3)}, 1024"); e(f"s_add_u32 {s(sT+2)}, {s(sT+2)}, 2048")
    e(f"s_mov_b32 m0, {s(sT+3)}")
    e(f"buffer_load_dwordx4 v11, {s(sSRD2,4)}, {s(sT+2)} offen lds")
    A.label(lj)
    e(f"s_mov_b32 s60, {s(sT)}"); e(f"s_mov_b32 s61, {s(sT+1)}")
    sent_regs(SENT)
    fill_xt(XT1, SENT)
    e(f"s_add_u32 {s(sT)}, {s(sPC)}, L_idx - L_pc"); e(f"s_addc_u32 {s(sT+1)}, {s(sPC+1)}, 0")
    e("v_and_b32 v10, 127, v0"); e("v_lshlrev_b32 v10, 4, v10")
    e(f"global_load_dwordx4 {v(IDX,4)}, v10, {s(sT,2)}")
    e(f"global_load_dwordx4 {v(IDX+4,4)}, v10, {s(sT,2)} offset:16")
    e(f"global_load_dwordx4 {v(IDX+8,4)}, v10, {s(sT,2)} offset:2048")
    e(f"global_load_dwordx4 {v(IDX+12,4)}, v10, {s(sT,2)} offset:2064")
    e(f"s_lshl_b32 {s(sT)}, {s(sCP)}, 2")
    e(f"v_lshl_add_u32 v10, v0, 13, {s(sT)}")
    for i in range(4): e(f"global_load_dword {v(XC+i)}, v10, {s(sU,2)} offset:{1024*i}")
    e("v_add_u32 v10, 4096, v10")
    for i in range(4): e(f"global_load_dword {v(XC+4+i)}, v10, {s(sU,2)} offset:{1024*i}")
    stamp("p_iss")
    e("s_waitcnt vmcnt(22)")
    stamp("p_ld")
    F = 64
    for i in range(8):
        e(f"v_lshlrev_b32 {v(F+2*i)}, 16, {v(XR+i)}"); e(f"v_and_b32 {v(F+2*i+1)}, {s(sHI)}, {v(XR+i)}")
    for i in range(4): e(f"v_pk_add_f32 {v(80+2*i,2)}, {v(F+4*i,2)}, {v(F+4*i+2,2)}")
    e(f"v_pk_mul_f32 v[88:89], {v(F,2)}, {v(F,2)}")
    e(f"v_pk_add_f32 v[80:81], v[80:81], v[82:83]"); e(f"v_pk_add_f32 v[84:85], v[84:85], v[86:87]")
    for i in range(1, 8): e(f"v_pk_fma_f32 v[88:89], {v(F+2*i,2)}, {v(F+2*i,2)}, v[88:89]")
    e(f"v_pk_add_f32 v[80:81], v[80:81], v[84:85]")
    e("v_add_f32 v82, v88, v89"); e("v_add_f32 v80, v80, v81")
    for r_ in (8, 4, 2, 1):
        e(f"v_add_f32_dpp v82, v82, v82 row_ror:{r_} row_mask:0xf bank_mask:0xf")
        e(f"v_add_f32_dpp v80, v80, v80 row_ror:{r_} row_mask:0xf bank_mask:0xf")
    e("v_add_f32_dpp v82, v82, v82 row_bcast:15 row_mask:0xa bank_mask:0xf")
    e("v_add_f32_dpp v80, v80, v80 row_bcast:15 row_mask:0xa bank_mask:0xf")
    stats_final(80, 82, 84, 85, 86)
    e(f"s_lshl_b32 {s(sT)}, s2, 3"); e(f"s_lshl_b32 {s(sT+1)}, {s(sWAVE)}, 1"); e(f"s_add_u32 {s(sT)}, {s(sT)}, {s(sT+1)}")
    e(f"s_lshl_b32 {s(sT)}, {s(sT)}, 3"); e(f"s_add_u32 {s(sT)}, {s(sT)}, {S1}")
    e("v_lshrrev_b32 v10, 5, v1"); e(f"v_lshl_add_u32 v10, v10, 3, {s(sT)}")
    e(f"s_mov_b32 {s(sT+2)}, 0x00010000"); e(f"s_mov_b32 {s(sT+3)}, 0x00010000")
    e(f"s_mov_b64 exec, {s(sT+2,2)}")
    e(f"buffer_store_dwordx2 v[84:85], v10, {s(sSRD,4)}, 0 offen sc1")
    e("s_mov_b64 exec, -1")
    e("s_waitcnt vmcnt(15)")
    e("s_barrier")
    lo = lab("wo2"); lj = lab("wj2")
    e("s_cmp_ge_u32 s2, 192"); e(f"s_cbranch_scc1 {lo}")
    e("v_lshrrev_b32 v10, 2, v1"); e("v_lshlrev_b32 v10, 8, v10")
    e("v_and_b32 v11, 3, v1"); e("v_lshl_add_u32 v10, v11, 3, v10")
    e(f"s_lshl_b32 {s(sT)}, {s(sWAVE)}, 6"); e(f"s_add_u32 {s(sT)}, {s(sT)}, {WST}")
    e(f"v_add_u32 v10, {s(sT)}, v10")
    e("ds_read_b64_tr_b16 v[88:89], v10"); e("ds_read_b64_tr_b16 v[90:91], v10 offset:4096")
    e("ds_read_b64_tr_b16 v[92:93], v10 offset:32"); e("ds_read_b64_tr_b16 v[94:95], v10 offset:4128")
    e(f"s_lshr_b32 {s(sT)}, s61, 2")
    e(f"s_add_u32 {s(sT)}, {s(sT)}, 2"); e(f"s_cmp_ge_u32 {s(sT)}, 3")
    e(f"s_cselect_b32 {s(sT+1)}, 3, 0"); e(f"s_sub_u32 {s(sT)}, {s(sT)}, {s(sT+1)}")
    e(f"s_and_b32 {s(sT+1)}, s61, 3"); e(f"s_lshl_b32 {s(sT+1)}, {s(sT+1)}, 3")
    e(f"s_lshl_b32 {s(sT+2)}, {s(sWAVE)}, 1"); e(f"s_add_u32 {s(sT+1)}, {s(sT+1)}, {s(sT+2)}")
    e(f"s_mul_i32 {s(sT+1)}, {s(sT+1)}, 3"); e(f"s_add_u32 {s(sT+1)}, {s(sT+1)}, {s(sT)}")
    e(f"s_lshl_b32 {s(sT+1)}, {s(sT+1)}, 4"); e(f"s_add_u32 {s(sT+1)}, {s(sT+1)}, s60")
    e(f"s_lshl_b32 {s(sT+1)}, {s(sT+1)}, 10"); e(f"s_add_u32 {s(sT+1)}, {s(sT+1)}, {WFG}")
    e(f"s_add_u32 {s(sT+2)}, {s(sT+1)}, 49152")
    e(f"s_branch {lj}")
    A.label(lo)
    e("v_lshrrev_b32 v10, 5, v1"); e("v_lshlrev_b32 v10, 2, v10")
    e("v_bfe_u32 v11, v1, 2, 2"); e("v_add_u32 v10, v10, v11"); e("v_lshlrev_b32 v10, 9, v10")
    e("v_and_b32 v11, 1, v1"); e("v_lshl_add_u32 v10, v11, 5, v10")
    e("v_bfe_u32 v11, v1, 4, 1"); e("v_lshl_add_u32 v10, v11, 4, v10")
    e("v_bfe_u32 v11, v1, 1, 1"); e("v_lshl_add_u32 v10, v11, 3, v10")
    e(f"s_lshl_b32 {s(sT)}, {s(sWAVE)}, 7"); e(f"s_add_u32 {s(sT)}, {s(sT)}, {WST}")
    e(f"v_add_u32 v10, {s(sT)}, v10")
    e("ds_read_b64_tr_b16 v[88:89], v10"); e("ds_read_b64_tr_b16 v[90:91], v10 offset:4096")
    e("ds_read_b64_tr_b16 v[92:93], v10 offset:64"); e("ds_read_b64_tr_b16 v[94:95], v10 offset:4160")
    e(f"s_lshl_b32 {s(sT+1)}, s61, 3"); e(f"s_lshl_b32 {s(sT+2)}, {s(sWAVE)}, 1"); e(f"s_add_u32 {s(sT+1)}, {s(sT+1)}, {s(sT+2)}")
    e(f"s_lshl_b32 {s(sT+1)}, {s(sT+1)}, 5"); e(f"s_add_u32 {s(sT+1)}, {s(sT+1)}, s60")
    e(f"s_lshl_b32 {s(sT+1)}, {s(sT+1)}, 10"); e(f"s_add_u32 {s(sT+1)}, {s(sT+1)}, {WFO}")
    e(f"s_add_u32 {s(sT+2)}, {s(sT+1)}, 32768")
    A.label(lj)
    e("v_lshlrev_b32 v10, 4, v1")
    e("s_waitcnt lgkmcnt(0)")
    e(f"buffer_store_dwordx4 v[88:91], v10, {s(sSRD,4)}, {s(sT+1)} offen sc1")
    e(f"buffer_store_dwordx4 v[92:95], v10, {s(sSRD,4)}, {s(sT+2)} offen sc1")
    stamp("p_st")

def pw(dst, t, a2, b2, tmp):
    if t == 1:
        e(f"v_exp_f32 {v(tmp)}, {v(a2)}"); e(f"v_fract_f32 {v(tmp+1)}, {v(b2)}")
    else:
        c = f"{float(t)}" if t in (2, 4) else f"{f2u(float(t)):#x}"
        e(f"v_mul_f32 {v(tmp)}, {c}, {v(a2)}"); e(f"v_mul_f32 {v(tmp+1)}, {c}, {v(b2)}")
        e(f"v_exp_f32 {v(tmp)}, {v(tmp)}"); e(f"v_fract_f32 {v(tmp+1)}, {v(tmp+1)}")
    e(f"v_cos_f32 {v(dst)}, {v(tmp+1)}"); e(f"v_sin_f32 {v(dst+1)}, {v(tmp+1)}")
    e(f"v_mul_f32 {v(dst)}, {v(dst)}, {v(tmp)}"); e(f"v_mul_f32 {v(dst+1)}, {v(dst+1)}, {v(tmp)}")

W1, W4, W16, W64, W512 = 64, 66, 68, 70, 72
X1r, X2r, Y1r, Y2r, Tr = 74, 76, 78, 80, 82
def kgen_setup():
    for i in range(6): e(f"v_lshlrev_b32 {v(PRM+i)}, 16, {v(PRM+i)}")
    e(f"v_readfirstlane_b32 {s(sDSKV)}, {v(PRM+5)}")
    dt, are = 60, 61
    e(f"v_mul_f32 {v(dt)}, {s(sLOG2E)}, {v(PRM+4)}"); e(f"v_mul_f32 {v(are)}, {s(sLOG2E)}, {v(PRM)}")
    e(f"v_exp_f32 {v(dt)}, {v(dt)}"); e(f"v_exp_f32 {v(are)}, {v(are)}")
    bf16r(dt, dt); bf16r(are, are)
    a2, b2 = 62, 63
    e(f"v_mul_f32 {v(a2)}, -{v(are)}, {v(dt)}"); e(f"v_mul_f32 {v(b2)}, {v(PRM+1)}, {v(dt)}")
    e(f"v_mul_f32 {v(a2)}, {s(sLOG2E)}, {v(a2)}"); e(f"v_mul_f32 {v(b2)}, 0.15915494, {v(b2)}")
    pw(W1, 1, a2, b2, Tr); pw(W4, 4, a2, b2, Tr + 2); pw(W16, 16, a2, b2, Tr); pw(W64, 64, a2, b2, Tr + 2); pw(W512, 512, a2, b2, Tr)
    e(f"v_add_f32 {v(dt)}, {v(dt)}, {v(dt)}")
    e(f"v_mul_f32 {v(X1r)}, {v(PRM+2)}, {v(dt)}"); e(f"v_mul_f32 {v(X1r+1)}, {v(PRM+3)}, {v(dt)}")
    e(f"v_mov_b32 {v(X2r)}, {v(X1r)}"); e(f"v_mov_b32 {v(X2r+1)}, {v(X1r+1)}")
    cmul_inplace(X2r, W512, Tr)
    e(f"v_mov_b32 {v(Y1r)}, 1.0"); e(f"v_mov_b32 {v(Y1r+1)}, 0"); e(f"v_mov_b32 {v(Y2r)}, 1.0"); e(f"v_mov_b32 {v(Y2r+1)}, 0")

def kgen_rest():
    ad = 96
    e(f"v_lshrrev_b32 {v(ad)}, 7, v0"); e(f"v_mul_u32_u24 {v(ad)}, {TABC}, {v(ad)}")
    e(f"v_and_b32 v97, 127, v0"); e(f"v_lshl_add_u32 {v(ad)}, v97, 2, {v(ad)}")
    P = [98, 99, 100, 101]; T2 = [102, 104, 106, 108]
    def put(x, row, neg, pk):
        e(f"v_cvt_pk_bf16_f32 {v(pk)}, {v(x)}, {'-' if neg else ''}{v(x+1)}")
        e(f"ds_write_b32 {v(ad)}, {v(pk)} offset:{row*544}")
    for it in range(32):
        put(X1r, it, True, P[0])
        if it < 31: cmul_inplace(X1r, W16, T2[0])
        if it <= 24:
            put(X2r, 32 + it, True, P[1])
            if it < 24: cmul_inplace(X2r, W64, T2[1])
        if it < 16:
            put(Y1r, 64 + it, False, P[2]); put(Y2r, 80 + it, False, P[3])
            if it < 15: cmul_inplace(Y1r, W1, T2[2]); cmul_inplace(Y2r, W4, T2[3])
    stamp("k_tab")
    e("s_waitcnt lgkmcnt(0)"); e("s_barrier")
    e(f"s_lshr_b32 {s(sT)}, {s(sWAVE)}, 1"); e(f"s_and_b32 {s(sT+1)}, {s(sWAVE)}, 1")
    e(f"s_mul_i32 {s(sT+2)}, {s(sT)}, {TABC}")
    e(f"s_mul_i32 {s(sT+3)}, {s(sT+1)}, {16*544}"); e(f"s_add_u32 {s(sT+3)}, {s(sT+3)}, {64*544}"); e(f"s_add_u32 {s(sT+3)}, {s(sT+3)}, {s(sT+2)}")
    e(f"s_mul_i32 {s(sT+4)}, {s(sT+1)}, {32*544}"); e(f"s_add_u32 {s(sT+4)}, {s(sT+4)}, {s(sT+2)}")
    e("v_and_b32 v10, 15, v1"); e("v_mul_u32_u24 v10, 544, v10"); e("v_lshrrev_b32 v11, 4, v1"); e("v_lshl_add_u32 v10, v11, 4, v10")
    e(f"v_add_u32 v11, {s(sT+3)}, v10"); e(f"v_add_u32 v12, {s(sT+4)}, v10")
    YF, XF = 64, 96
    for ks in range(8):
        e(f"ds_read_b128 {v(YF+4*ks,4)}, v11 offset:{64*ks}")
        for tl in range(2): e(f"ds_read_b128 {v(XF+32*tl+4*ks,4)}, v12 offset:{8704*tl+64*ks}")
    for ks in range(8):
        e(f"s_waitcnt lgkmcnt({min(15, 3*(7-ks))})")
        for tl in range(2):
            c_ = "0" if ks == 0 else v(160 + 4*tl, 4)
            e(f"v_mfma_f32_16x16x32_bf16 {v(160+4*tl,4)}, {v(YF+4*ks,4)}, {v(XF+32*tl+4*ks,4)}, {c_}")
    e(f"s_mul_i32 {s(sT+2)}, {s(sT)}, {CTP}"); e(f"s_lshl_b32 {s(sT+3)}, {s(sT+1)}, 10"); e(f"s_add_u32 {s(sT+2)}, {s(sT+2)}, {s(sT+3)}")
    e(f"s_add_u32 {s(sT+2)}, {s(sT+2)}, {CT}")
    e("v_and_b32 v10, 15, v1"); e("v_lshlrev_b32 v10, 5, v10"); e("v_lshrrev_b32 v11, 4, v1"); e("v_lshl_add_u32 v10, v11, 3, v10")
    e(f"v_add_u32 v10, {s(sT+2)}, v10")
    e(f"s_mul_i32 {s(sT+2)}, {s(sT)}, {CTP}"); e(f"s_add_u32 {s(sT+2)}, {s(sT+2)}, {CT + 2048}")
    e(f"v_mov_b32 v11, {s(sT+2)}"); e("v_mov_b32 v12, 0")
    e("ds_write_b32 v11, v12")
    for tl in range(2):
        e(f"v_cvt_pk_bf16_f32 {v(168+2*tl)}, {v(160+4*tl)}, {v(161+4*tl)}")
        e(f"v_cvt_pk_bf16_f32 {v(169+2*tl)}, {v(162+4*tl)}, {v(163+4*tl)}")
        e(f"ds_write_b64 v10, {v(168+2*tl,2)} offset:{512*tl}")
    e("v_lshrrev_b32 v10, 7, v0")
    e(f"v_mul_u32_u24 v11, {CTP}, v10"); e(f"v_add_u32 v11, {CT}, v11")
    e(f"v_mul_u32_u24 v12, {KCH}, v10"); e("v_and_b32 v13, 127, v0"); e("v_lshl_add_u32 v12, v13, 4, v12")
    G = [96, 112]
    for task in range(2):
        I = IDX + 8 * task
        for k in range(8):
            e(f"v_add_u32_sdwa {v(G[task]+2*k)}, v11, {v(I+k)} dst_sel:DWORD dst_unused:UNUSED_PAD src0_sel:DWORD src1_sel:WORD_0")
            e(f"v_add_u32_sdwa {v(G[task]+2*k+1)}, v11, {v(I+k)} dst_sel:DWORD dst_unused:UNUSED_PAD src0_sel:DWORD src1_sel:WORD_1")
    e("s_waitcnt lgkmcnt(0)"); e("s_barrier")
    stamp("k_mm")
    for task in range(2):
        for k in range(16): e(f"ds_read_u16 {v(G[task]+k)}, {v(G[task]+k)}")
    for task in range(2):
        Dd, Dp, Sd, Sp = [(64, 72, 80, 88), (128, 136, 144, 152)][task]
        e(f"s_waitcnt lgkmcnt({15 if task == 0 else 8})")
        for k in range(8): e(f"v_lshl_or_b32 {v(Dd+k)}, {v(G[task]+2*k+1)}, 16, {v(G[task]+2*k)}")
        for k in range(1, 7): e(f"v_mov_b32 {v(Dp+k-1)}, {v(Dd+k)}")
        for k in range(7): e(f"v_alignbit_b32 {v(Sd+k)}, {v(Dd+k+1)}, {v(Dd+k)}, 16")
        for k in range(1, 7): e(f"v_alignbit_b32 {v(Sp+k-1)}, {v(Dd+k+1)}, {v(Dd+k)}, 16")
        for cp_ in range(8):
            ee = cp_ >> 1
            if cp_ % 2 == 0: src = Dd + ee if ee % 2 == 0 else Dp + ee - 1
            else: src = Sd + ee if ee % 2 == 0 else Sp + ee - 1
            e(f"ds_write_b128 v12, {v(src,4)} offset:{cp_*KCC + task*2048}")
    l0 = lab("zk")
    e(f"s_cmp_lg_u32 {s(sWAVE)}, 0"); e(f"s_cbranch_scc1 {l0}")
    e("v_lshrrev_b32 v10, 2, v1"); e(f"v_mul_u32_u24 v10, {KCC}, v10")
    e("v_and_b32 v11, 3, v1"); e("v_lshl_add_u32 v10, v11, 4, v10"); e("v_add_u32 v10, 4096, v10")
    e("v_mov_b32 v160, 0"); e("v_mov_b32 v161, 0"); e("v_mov_b32 v162, 0"); e("v_mov_b32 v163, 0")
    e("ds_write_b128 v10, v[160:163]")
    A.label(l0)

def gw_loads():
    out = []
    for f in range(48):
        out.append(f"buffer_load_dwordx4 {a(4*f,4)}, v18, {s(sSRD,4)}, {s(sW)} offen offset:{(f%4)*1024} sc1")
        if f % 4 == 3 and f < 47: out.append(f"s_add_u32 {s(sW)}, {s(sW)}, 4096")
    return out
def ow_loads():
    out = []
    for f in range(32):
        dst = a(192 + 4*f, 4) if f < 16 else v(192 + 4*(f-16), 4)
        out.append(f"buffer_load_dwordx4 {dst}, v18, {s(sSRD,4)}, {s(sW)} offen offset:{(f%4)*1024} sc1")
        if f % 4 == 3 and f < 31: out.append(f"s_add_u32 {s(sW)}, {s(sW)}, 4096")
    return out

def conv(layer):
    XX = 40; UU = 48
    sent_regs(SENT)
    if layer == 1:
        SB = 24
        e("v_lshlrev_b32 v10, 6, v0")
        for i in range(4): e(f"buffer_load_dwordx4 {v(SB+4*i,4)}, v10, {s(sSRD,4)}, 0 offen offset:{S1 + 16*i} sc1")
        nf = fill_g(PQ1, KVP1, F1, SENT) + fill_sp(SENT)
        e(f"s_mov_b32 {s(sT)}, 0x05040100"); e(f"s_mov_b32 {s(sT+1)}, 0x07060302")
        for j in range(4):
            e(f"v_perm_b32 {v(XX+j)}, {v(XC+2*j+1)}, {v(XC+2*j)}, {s(sT)}")
            e(f"v_perm_b32 {v(XX+4+j)}, {v(XC+2*j+1)}, {v(XC+2*j)}, {s(sT+1)}")
        F = 64
        for i in range(8):
            e(f"v_lshlrev_b32 {v(F+2*i)}, 16, {v(XC+i)}"); e(f"v_and_b32 {v(F+2*i+1)}, {s(sHI)}, {v(XC+i)}")
    else:
        e(f"s_mul_i32 {s(sT)}, {s(sCP)}, {2*PITCH}")
        e(f"s_add_u32 {s(sT+1)}, {s(sT)}, {U2T}"); e(f"s_add_u32 {s(sT+2)}, {s(sT+1)}, {PITCH}")
        e(f"s_add_u32 {s(sT+3)}, {s(sT)}, {X2T}"); e(f"s_add_u32 {s(sT+4)}, {s(sT+3)}, {PITCH}")
        e("v_lshlrev_b32 v10, 4, v0")
        lr = lab("cp"); lg = lab("cg")
        A.label(lr)
        e(f"buffer_load_dwordx4 {v(UU,4)}, v10, {s(sSRD,4)}, {s(sT+1)} offen sc1")
        e(f"buffer_load_dwordx4 {v(UU+4,4)}, v10, {s(sSRD,4)}, {s(sT+2)} offen sc1")
        e(f"buffer_load_dwordx4 {v(XX,4)}, v10, {s(sSRD,4)}, {s(sT+3)} offen sc1")
        e(f"buffer_load_dwordx4 {v(XX+4,4)}, v10, {s(sSRD,4)}, {s(sT+4)} offen sc1")
        e("s_waitcnt vmcnt(0)")
        maxtree([UU, UU+4, XX, XX+4], 11)
        e("v_cmp_eq_u32 vcc, -1, v11")
        spin_check(lr, lg)
        nf = fill_g(PQ2, KVP2, F2, SENT)
    l0 = lab("zp")
    e(f"s_cmp_lg_u32 {s(sWAVE)}, 1"); e(f"s_cbranch_scc1 {l0}")
    e("v_lshrrev_b32 v11, 5, v1"); e(f"v_mul_u32_u24 v11, {UP}, v11"); e("v_and_b32 v12, 31, v1"); e("v_lshl_add_u32 v11, v12, 4, v11")
    e(f"v_add_u32 v11, {U0}, v11")
    e("v_mov_b32 v12, 0"); e("v_mov_b32 v13, 0"); e("v_mov_b32 v14, 0"); e("v_mov_b32 v15, 0")
    e("ds_write_b128 v11, v[12:15]")
    A.label(l0)
    e("v_lshlrev_b32 v10, 4, v0")
    e(f"v_add_u32 v16, {U0 + 512}, v10"); e(f"v_add_u32 v17, {X0}, v10")
    e(f"ds_write_b128 v17, {v(XX,4)}"); e(f"ds_write_b128 v17, {v(XX+4,4)} offset:4096")
    if layer == 1:
        e(f"s_waitcnt vmcnt({nf})")
        stamp("c1_ld")
        for i in range(8):
            e(f"v_pk_add_f32 {v(F+2*i,2)}, {v(F+2*i,2)}, {v(SB+2*i,2)} op_sel_hi:[1,0] neg_lo:[0,1] neg_hi:[0,1]")
        for i in range(8): e(f"v_cvt_pk_bf16_f32 {v(80+i)}, {v(F+2*i)}, {v(F+2*i+1)}")
        for i in range(8):
            e(f"v_lshlrev_b32 {v(F+2*i)}, 16, {v(80+i)}"); e(f"v_and_b32 {v(F+2*i+1)}, {s(sHI)}, {v(80+i)}")
        for i in range(8):
            e(f"v_pk_mul_f32 {v(F+2*i,2)}, {v(F+2*i,2)}, {v(SB+2*i,2)} op_sel:[0,1] op_sel_hi:[1,1]")
        for c in range(2):
            for j in range(4): e(f"v_cvt_pk_bf16_f32 {v(UU+4*c+j)}, {v(F+4*j+c)}, {v(F+4*j+2+c)}")
    e(f"ds_write_b128 v16, {v(UU,4)}"); e(f"ds_write_b128 v16, {v(UU+4,4)} offset:{UP}")
    e(f"s_lshr_b32 {s(sT)}, {s(sWAVE)}, 1"); e(f"s_and_b32 {s(sT+1)}, {s(sWAVE)}, 1")
    vA, vB = 16, 17
    e("v_and_b32 v10, 7, v1"); e("v_sub_u32 v10, 7, v10"); e(f"v_mul_u32_u24 v12, {KCC}, v10")
    e("v_bfe_u32 v10, v1, 5, 1"); e("v_lshlrev_b32 v13, 5, v10"); e("v_sub_u32 v12, v12, v13")
    e("v_bfe_u32 v11, v1, 4, 1"); e("v_lshl_add_u32 v12, v11, 4, v12")
    e("v_bfe_u32 v10, v1, 3, 1"); e("v_lshlrev_b32 v10, 4, v10"); e("v_sub_u32 v12, v12, v10")
    e(f"s_mul_i32 {s(sT+2)}, {s(sT)}, {KCH}"); e(f"s_lshl_b32 {s(sT+3)}, {s(sT+1)}, 8"); e(f"s_sub_u32 {s(sT+2)}, {s(sT+2)}, {s(sT+3)}")
    e(f"s_add_u32 {s(sT+2)}, {s(sT+2)}, {KC + 4080 - 3776}")
    e("v_and_b32 v10, 15, v1"); e("v_lshlrev_b32 v14, 5, v10"); e("v_sub_u32 v14, v14, v13"); e("v_lshl_add_u32 v14, v11, 4, v14")
    e(f"s_mul_i32 {s(sT+4)}, {s(sT)}, {UP}"); e(f"s_sub_u32 {s(sT+4)}, {s(sT+4)}, {s(sT+3)}")
    e(f"s_add_u32 {s(sT+4)}, {s(sT+4)}, {U0 + 512 - 192}")
    e(f"v_add_u32 v12, {s(sT+2)}, v12"); e(f"v_add_u32 v14, {s(sT+4)}, v14")
    trick = []
    if layer == 1:
        e("v_lshlrev_b32 v18, 4, v1")
        e(f"s_lshl_b32 {s(sW)}, {s(sJ)}, 2"); e(f"s_add_u32 {s(sW)}, {s(sW)}, {s(sWAVE)}")
        e(f"s_mul_i32 {s(sW)}, {s(sW)}, 49152"); e(f"s_add_u32 {s(sW)}, {s(sW)}, {WFG}")
        trick = gw_loads()
    e("s_waitcnt lgkmcnt(0)"); e("s_barrier")
    e(f"v_mov_b32 {v(vA)}, v12"); e(f"v_mov_b32 {v(vB)}, v14")
    stamp(f"c{layer}_pro")
    ACC = 24; SET = [64, 128]
    def loads(tp, st):
        out = []
        for q in range(8): out.append(f"ds_read_b128 {v(SET[st]+4*q,4)}, {v(vA)} offset:{64*(3 - tp) + 512*(7 - q)}")
        for tau in range(8): out.append(f"ds_read_b128 {v(SET[st]+32+4*tau,4)}, {v(vB)} offset:{512*tau + 64*(3 - tp)}")
        order = [8, 0, 9, 1, 10, 2, 11, 3, 12, 4, 13, 5, 14, 6, 15, 7]
        return [out[i] for i in order]
    first = loads(0, 0)
    for l in first: e(l)
    ti = 0
    for tp in range(4):
        st = tp & 1
        nxt = loads(tp + 1, st ^ 1) if tp < 3 else []
        n = 0
        for T in range(8):
            if tp == 0:
                e(f"s_waitcnt lgkmcnt({min(15, 16 - (2*T+2) + min(n, len(nxt)))})")
            elif T == 0:
                e("s_waitcnt lgkmcnt(0)")
            for q in range(T + 1):
                c_ = "0" if (tp == 0 and q == 0) else v(ACC+4*T, 4)
                e(f"v_mfma_f32_16x16x32_bf16 {v(ACC+4*T,4)}, {v(SET[st]+4*q,4)}, {v(SET[st]+32+4*(T-q),4)}, {c_}")
                if tp == 0 and T < 3:
                    pass
                elif n < len(nxt):
                    e(nxt[n]); n += 1
                if not (tp == 0 and T < 3) and ti < len(trick) and ((T + q) % 2 == 1 or tp == 3):
                    e(trick[ti]); ti += 1
                    if ti < len(trick) and trick[ti].startswith("s_add"): e(trick[ti]); ti += 1
        while n < len(nxt): e(nxt[n]); n += 1
    while ti < len(trick): e(trick[ti]); ti += 1
    stamp(f"c{layer}_mm")
    lp1 = lab("p1"); lj = lab("pj")
    e(f"s_lshl_b32 {s(sT+2)}, {s(sWAVE)}, 12"); e(f"s_add_u32 {s(sT+2)}, {s(sT+2)}, {RED}")
    e(f"v_lshl_add_u32 v10, v1, 4, {s(sT+2)}")
    e(f"s_xor_b32 {s(sT+2)}, {s(sWAVE)}, 1"); e(f"s_lshl_b32 {s(sT+2)}, {s(sT+2)}, 12"); e(f"s_add_u32 {s(sT+2)}, {s(sT+2)}, {RED}")
    e(f"v_lshl_add_u32 v11, v1, 4, {s(sT+2)}")
    e("v_and_b32 v12, 15, v1"); e("v_lshlrev_b32 v12, 5, v12"); e("v_lshrrev_b32 v13, 4, v1"); e("v_lshl_add_u32 v12, v13, 3, v12")
    e(f"s_lshl_b32 {s(sT+2)}, {s(sT+1)}, 11"); e(f"v_add_u32 v12, {s(sT+2)}, v12")
    e(f"s_mul_i32 {s(sT+3)}, {s(sT)}, {UP}"); e(f"s_add_u32 {s(sT+3)}, {s(sT+3)}, {U0+512}"); e(f"v_add_u32 v13, {s(sT+3)}, v12")
    e(f"s_lshl_b32 {s(sT+3)}, {s(sT)}, 12"); e(f"s_add_u32 {s(sT+3)}, {s(sT+3)}, {X0}"); e(f"v_add_u32 v14, {s(sT+3)}, v12")
    for k in range(4):
        e(f"ds_read_b64 {v(64+2*k,2)}, v13 offset:{512*k}"); e(f"ds_read_b64 {v(72+2*k,2)}, v14 offset:{512*k}")
    e(f"s_cmp_eq_u32 {s(sT+1)}, 1"); e(f"s_cbranch_scc1 {lp1}")
    for k in range(4): e(f"ds_write_b128 v10, {v(ACC+16+4*k,4)} offset:{1024*k}")
    e(f"s_branch {lj}")
    A.label(lp1)
    e("s_nop 7")
    for k in range(4): e(f"ds_write_b128 v10, {v(ACC+4*k,4)} offset:{1024*k}")
    for k in range(8): e(f"v_mov_b64 {v(ACC+2*k,2)}, {v(ACC+16+2*k,2)}")
    A.label(lj)
    e(f"s_mov_b32 {s(sT+4)}, {s(sDSKV)}"); e(f"s_mov_b32 {s(sT+5)}, {s(sDSKV)}")
    e("s_waitcnt lgkmcnt(4)")
    for k in range(4):
        for j in range(2):
            e(f"v_lshlrev_b32 {v(96+4*k+2*j)}, 16, {v(64+2*k+j)}"); e(f"v_and_b32 {v(97+4*k+2*j)}, {s(sHI)}, {v(64+2*k+j)}")
            e(f"v_lshlrev_b32 {v(112+4*k+2*j)}, 16, {v(72+2*k+j)}"); e(f"v_and_b32 {v(113+4*k+2*j)}, {s(sHI)}, {v(72+2*k+j)}")
    e("s_waitcnt lgkmcnt(0)"); e("s_barrier")
    for k in range(4): e(f"ds_read_b128 {v(80+4*k,4)}, v11 offset:{1024*k}")
    for k in range(8):
        e(f"v_pk_fma_f32 {v(96+2*k,2)}, {v(96+2*k,2)}, {s(sT+4,2)}, {v(112+2*k,2)}")
        e(f"v_pk_add_f32 {v(96+2*k,2)}, {v(96+2*k,2)}, {v(ACC+2*k,2)}")
    xo = XT1 if layer == 1 else XT3
    e(f"s_lshl_b32 {s(sT+2)}, {s(sCP)}, 1"); e(f"s_add_u32 {s(sT+2)}, {s(sT+2)}, {s(sT)}")
    e(f"s_mul_i32 {s(sT+2)}, {s(sT+2)}, {PITCH}"); e(f"s_add_u32 {s(sT+2)}, {s(sT+2)}, {xo}")
    e(f"s_waitcnt vmcnt({48 if layer == 1 else 0})")
    for k in range(4):
        e(f"s_waitcnt lgkmcnt({3-k})")
        e(f"v_pk_add_f32 {v(96+4*k,2)}, {v(96+4*k,2)}, {v(80+4*k,2)}"); e(f"v_pk_add_f32 {v(98+4*k,2)}, {v(98+4*k,2)}, {v(82+4*k,2)}")
        e(f"v_cvt_pk_bf16_f32 {v(64+2*k)}, {v(96+4*k)}, {v(97+4*k)}"); e(f"v_cvt_pk_bf16_f32 {v(65+2*k)}, {v(98+4*k)}, {v(99+4*k)}")
        e(f"buffer_store_dwordx2 {v(64+2*k,2)}, v12, {s(sSRD,4)}, {s(sT+2)} offen offset:{512*k} sc1")

NCSK, NCSV, NCSQ = 2, 4, 6
XRES = 184
def ones_regs(r):
    for i in range(4): e(f"v_mov_b32 {v(r+i)}, 0x3f803f80")
def colsums():
    ON = 24
    ones_regs(ON)
    for ks in range(16):
        c0 = lambda r: "0" if ks == 0 else v(r, 4)
        e(f"v_mfma_f32_16x16x32_bf16 v[28:31], {v(ON,4)}, {a((0*16+ks)*4,4)}, {c0(28)}")
        e(f"v_mfma_f32_16x16x32_bf16 v[32:35], {v(ON,4)}, {a((1*16+ks)*4,4)}, {c0(32)}")
        e(f"v_mfma_f32_16x16x32_bf16 v[36:39], {a((2*16+ks)*4,4)}, {v(ON,4)}, {c0(36)}")
    e(f"v_sub_f32 {v(NCSK)}, 0, v28"); e(f"v_sub_f32 {v(NCSK+1)}, 0, v28")
    e(f"v_sub_f32 {v(NCSV)}, 0, v32"); e(f"v_sub_f32 {v(NCSV+1)}, 0, v32")
    for i in range(4): e(f"v_sub_f32 {v(NCSQ+i)}, 0, {v(36+i)}")

def gphase(layer):
    xt = XT1 if layer == 1 else XT3
    pq = PQ1 if layer == 1 else PQ2
    kvp = KVP1 if layer == 1 else KVP2
    ff = F1 if layer == 1 else F2
    lstart = lab("gs")
    A.label(lstart)
    e(f"v_mov_b32 v10, {FLAG}"); e("v_mov_b32 v11, 0"); e("ds_write_b32 v10, v11")
    e("v_lshrrev_b32 v10, 3, v1"); e(f"v_mul_u32_u24 v10, {PITCH}, v10")
    e("v_bfe_u32 v11, v1, 4, 2"); e("v_lshlrev_b32 v11, 1, v11"); e("v_and_b32 v12, 7, v1"); e("v_xor_b32 v11, v11, v12")
    e("v_lshl_add_u32 v10, v11, 4, v10")
    e(f"s_lshl_b32 {s(sT)}, {s(sRS)}, 7"); e(f"v_add_u32 v19, {s(sT)}, v10")
    e(f"s_mul_i32 s4, {s(sWAVE)}, {32*PITCH}"); e(f"s_add_u32 s4, s4, {xt}")
    e(f"s_lshl_b32 s5, {s(sWAVE)}, 12"); e(f"s_add_u32 s5, s5, {AT}")
    e(f"v_lshl_add_u32 v21, v1, 4, s5")
    e("v_lshrrev_b32 v10, 5, v1"); e("v_lshlrev_b32 v10, 7, v10"); e("v_and_b32 v11, 31, v1"); e("v_add_u32 v10, v10, v11")
    e(f"v_mul_u32_u24 v10, {PITCH}, v10"); e(f"v_add_u32 v22, {s(sT)}, v10")
    e(f"s_add_u32 s6, s4, {256*PITCH}")
    e("s_waitcnt lgkmcnt(0)"); e("s_barrier")
    def dma(c, i):
        return [f"s_add_u32 {s(sT)}, s4, {(128*c + 8*i)*PITCH}", f"s_add_u32 m0, s5, {c*16384 + i*1024}",
                f"buffer_load_dwordx4 v19, {s(sSRD,4)}, {s(sT)} offen sc1 lds"]
    def poll_issue():
        e(f"buffer_load_dword v56, v22, {s(sSRD,4)}, s4 offen sc1")
        e(f"buffer_load_dword v57, v22, {s(sSRD,4)}, s6 offen sc1")
        for i in range(4):
            for l in dma(0, i): e(l)
    lr = lab("g0"); lg = lab("g0k")
    if layer == 1:
        poll_issue()
        e("s_waitcnt vmcnt(6)")
        colsums()
        e(f"s_branch {lr}_w")
    A.label(lr)
    poll_issue()
    A.label(lr + "_w")
    e("s_waitcnt vmcnt(4)")
    e("v_max_u32 v56, v56, v57")
    e("v_cmp_eq_u32 vcc, -1, v56")
    spin_check(lr, lg)
    stamp(f"g{layer}_ld0")
    nfill = 0
    if layer == 1:
        sent_regs(SENT + 4)
        nfill += fill_o(U2T, SENT + 4); nfill += fill_o(X2T, SENT + 4); nfill += fill_xt(XT3, SENT + 4)
    TA = 12
    e("v_lshrrev_b32 v10, 2, v1"); e("v_lshlrev_b32 v10, 7, v10"); e("v_and_b32 v11, 3, v1"); e("v_lshl_add_u32 v10, v11, 3, v10")
    e(f"v_add_u32 v10, {AT}, v10"); e("v_bfe_u32 v11, v1, 3, 2")
    for j in range(4):
        e(f"s_add_u32 {s(sT)}, {s(sWAVE)}, {j}"); e(f"s_and_b32 {s(sT)}, {s(sT)}, 3")
        e(f"v_xor_b32 v16, {s(sT)}, v11"); e(f"v_lshl_add_u32 {v(TA+j)}, v16, 5, v10")
    XF = [64, 80]
    AK, AV, AQ, GR, RS_, ON = 96, 112, 128, 144, 148, 152
    ones_regs(ON)
    trick = []
    if layer == 1:
        e("v_lshlrev_b32 v18, 4, v1")
        e(f"s_lshl_b32 {s(sW)}, {s(sJO)}, 2"); e(f"s_add_u32 {s(sW)}, {s(sW)}, {s(sWAVE)}")
        e(f"s_lshl_b32 {s(sW)}, {s(sW)}, 15"); e(f"s_add_u32 {s(sW)}, {s(sW)}, {WFO}")
        trick = ow_loads()
    def reads(ks):
        out = []
        for j in range(4):
            out.append(f"ds_read_b64_tr_b16 {v(XF[ks&1]+4*j,2)}, {v(TA+j)} offset:{ks*4096}")
            out.append(f"ds_read_b64_tr_b16 {v(XF[ks&1]+4*j+2,2)}, {v(TA+j)} offset:{ks*4096+2048}")
        return out
    e(f"s_waitcnt vmcnt({nfill})")
    e("s_barrier")
    for l in reads(0): e(l)
    ti = 0
    issued_after = []
    seq = ["f"] * nfill
    for ks in range(16):
        side = []
        if ks < 3:
            for i in range(4): side.append(("d", ks + 1, dma(ks + 1, i)))
        nxt = []
        if ks < 15:
            if (ks + 1) % 4 == 0:
                c = (ks + 1) // 4
                pos = max(i for i, t in enumerate(seq) if t == ("d", c))
                n_after = len(seq) - 1 - pos
                e(f"s_waitcnt vmcnt({min(63, n_after)})")
                e("s_barrier")
            nxt = reads(ks + 1)
        x = XF[ks & 1]
        for l in nxt: e(l)
        e(f"s_waitcnt lgkmcnt({8 if nxt else 0})")
        z = lambda r: "0" if ks == 0 else v(r, 4)
        mf = []
        for j in range(4):
            mf.append(f"v_mfma_f32_16x16x32_bf16 {v(AK+4*j,4)}, {v(x+4*j,4)}, {a((0*16+ks)*4,4)}, {z(AK+4*j)}")
            mf.append(f"v_mfma_f32_16x16x32_bf16 {v(AV+4*j,4)}, {v(x+4*j,4)}, {a((1*16+ks)*4,4)}, {z(AV+4*j)}")
            mf.append(f"v_mfma_f32_16x16x32_bf16 {v(AQ+4*j,4)}, {a((2*16+ks)*4,4)}, {v(x+4*j,4)}, {z(AQ+4*j)}")
        mf.append(f"v_mfma_f32_16x16x32_bf16 {v(GR,4)}, {v(x,4)}, {v(x,4)}, {z(GR)}")
        mf.append(f"v_mfma_f32_16x16x32_bf16 {v(RS_,4)}, {v(ON,4)}, {v(x,4)}, {z(RS_)}")
        for m_i, m_ in enumerate(mf):
            e(m_)
            if side and m_i % 3 == 0:
                tag, c, ins = side.pop(0)
                for l in ins: e(l)
                seq.append(("d", c))
            elif ks >= 3 and ti < len(trick) and m_i % 4 == 1:
                e(trick[ti]); seq.append("w"); ti += 1
                if ti < len(trick) and trick[ti].startswith("s_add"): e(trick[ti]); ti += 1
        assert not side
    while ti < len(trick):
        e(trick[ti])
        if not trick[ti].startswith("s_add"): seq.append("w")
        ti += 1
    nw = sum(1 for t in seq if t == "w")
    stamp(f"g{layer}_mm")
    for b in range(16): e(f"ds_read_b32 {v(24+b)}, v21 offset:{(b>>2)*16384 + (b&3)*1024}")
    e("v_and_b32 v10, 3, v1")
    e(f"v_cmp_eq_u32 {s(sM,2)}, 1, v10"); e(f"v_cmp_eq_u32 {s(sM+2,2)}, 2, v10"); e(f"v_cmp_eq_u32 {s(sM+4,2)}, 3, v10")
    e("v_lshrrev_b32 v11, 5, v1"); e("v_lshlrev_b32 v11, 4, v11"); e("v_bfe_u32 v12, v1, 2, 2"); e("v_add_u32 v11, v11, v12")
    e(f"s_lshl_b32 {s(sT)}, {s(sJO)}, 7"); e(f"s_lshl_b32 {s(sT+1)}, {s(sWAVE)}, 5"); e(f"s_add_u32 {s(sT)}, {s(sT)}, {s(sT+1)}")
    e(f"v_add_u32 v11, {s(sT)}, v11"); e("v_lshlrev_b32 v11, 7, v11")
    e("v_and_b32 v12, 3, v1"); e("v_lshl_add_u32 v11, v12, 3, v11"); e(f"v_add_u32 v11, {AT}, v11")
    e(f"s_and_b32 {s(sT)}, {s(sJ)}, 1"); e(f"s_lshl_b32 {s(sT)}, {s(sT)}, 1")
    e("v_bfe_u32 v12, v1, 4, 1"); e(f"v_add_u32 v12, {s(sT)}, v12")
    e("v_bfe_u32 v13, v1, 3, 1")
    e("v_xor_b32 v12, v12, v13")
    e("v_lshl_add_u32 v13, v12, 5, v11")
    e("v_xor_b32 v12, 2, v12"); e("v_lshl_add_u32 v14, v12, 5, v11")
    for jj in range(4):
        e(f"ds_read_b64_tr_b16 {v(XRES+2*jj,2)}, {v(13 + (jj & 1))} offset:{512*jj}")
    e("s_waitcnt lgkmcnt(4)")
    maxtree(range(24, 40), 40)
    e("v_cmp_eq_u32 vcc, -1, v40")
    lv = lab("gv")
    e(f"s_cbranch_vccz {lv}")
    e(f"v_mov_b32 v40, {FLAG}"); e("v_mov_b32 v41, 1"); e("ds_write_b32 v40, v41")
    A.label(lv)
    e(f"v_cndmask_b32 v11, {v(GR)}, {v(GR+1)}, {s(sM,2)}")
    e(f"v_cndmask_b32 v11, v11, {v(GR+2)}, {s(sM+2,2)}")
    e(f"v_cndmask_b32 v11, v11, {v(GR+3)}, {s(sM+4,2)}")
    stats_final(RS_, 11, 13, 14, 16)
    e("v_mul_f32 v13, v13, v14")
    e("v_and_b32 v10, 15, v1"); e("v_lshlrev_b32 v10, 2, v10")
    e(f"s_lshl_b32 {s(sT)}, {s(sWAVE)}, 6"); e(f"s_add_u32 {s(sT)}, {s(sT)}, {ST}")
    e(f"v_add_u32 v10, {s(sT)}, v10")
    e(f"s_mov_b32 {s(sT+2)}, 0x00f0000f"); e(f"s_mov_b32 {s(sT+3)}, 0xf0000f00")
    e(f"s_mov_b64 exec, {s(sT+2,2)}")
    e("ds_write_b32 v10, v14"); e("ds_write_b32 v10, v13 offset:256")
    e("s_mov_b64 exec, -1")
    R4, M4, RQ, MQ = 24, 40, 56, 64
    e("v_lshrrev_b32 v10, 4, v1"); e("v_lshlrev_b32 v10, 4, v10"); e(f"v_add_u32 v10, {ST}, v10")
    e("v_and_b32 v11, 15, v1"); e("v_lshlrev_b32 v11, 2, v11"); e(f"v_add_u32 v11, {ST}, v11")
    for j in range(4):
        e(f"s_add_u32 {s(sT)}, {s(sWAVE)}, {j}"); e(f"s_and_b32 {s(sT)}, {s(sT)}, 3"); e(f"s_lshl_b32 {s(sM+j)}, {s(sT)}, 6")
        e(f"v_add_u32 {v(12+j)}, {s(sM+j)}, v10"); e(f"v_add_u32 {v(16+j)}, {s(sM+j)}, v11") if j < 2 else e(f"v_add_u32 {v(20+j)}, {s(sM+j)}, v11")
    e("s_waitcnt lgkmcnt(0)"); e("s_barrier")
    qa = [16, 17, 22, 23]
    e(f"v_mov_b32 v10, {FLAG}"); e("ds_read_b32 v11, v10")
    for j in range(4):
        e(f"ds_read_b128 {v(R4+4*j,4)}, {v(12+j)}"); e(f"ds_read_b128 {v(M4+4*j,4)}, {v(12+j)} offset:256")
    for j in range(4):
        e(f"ds_read_b32 {v(RQ+2*j)}, {v(qa[j])}"); e(f"ds_read_b32 {v(MQ+2*j)}, {v(qa[j])} offset:256")
    stamp(f"g{layer}_st")
    PK, VV = 72, 80
    e("s_waitcnt lgkmcnt(8)")
    lok = lab("gok")
    e("v_readfirstlane_b32 s7, v11")
    e("s_cmp_eq_u32 s7, 0"); e(f"s_cbranch_scc1 {lok}")
    e(f"s_sub_u32 {s(sSPIN)}, {s(sSPIN)}, 1"); e(f"s_cbranch_scc1 {lok}_x")
    e("s_waitcnt vmcnt(0) lgkmcnt(0)"); e("s_barrier")
    e(f"s_branch {lstart}")
    A.label(lok + "_x"); e(f"s_mov_b32 {s(sSPIN)}, 0")
    A.label(lok)
    for j in range(4):
        for hp in range(2):
            acc = AV + 4*j + 2*hp; T = 88 + 2*hp
            e(f"v_pk_mul_f32 {v(T,2)}, {v(M4+4*j+2*hp,2)}, {v(NCSV,2)}")
            e(f"v_pk_fma_f32 {v(T,2)}, {v(R4+4*j+2*hp,2)}, {v(acc,2)}, {v(T,2)}")
            e(f"v_cvt_pk_bf16_f32 {v(VV+2*j+hp)}, {v(T)}, {v(T+1)}")
    def phi2(items):
        for (rp, acc, mp, ncs, dst, T, bro) in items:
            if not bro: e(f"v_pk_fma_f32 {v(T,2)}, {v(mp,2)}, {v(ncs,2)}, {s(sEPS6,2)}")
            else: e(f"v_pk_fma_f32 {v(T,2)}, {v(mp,2)}, {v(ncs,2)}, {s(sEPS6,2)} op_sel_hi:[0,1,1]")
        for (rp, acc, mp, ncs, dst, T, bro) in items:
            if not bro: e(f"v_pk_fma_f32 {v(T,2)}, {v(rp,2)}, {v(acc,2)}, {v(T,2)}")
            else: e(f"v_pk_fma_f32 {v(T,2)}, {v(rp,2)}, {v(acc,2)}, {v(T,2)} op_sel_hi:[0,1,1]")
        for (rp, acc, mp, ncs, dst, T, bro) in items: e(f"v_pk_mul_f32 {v(T+2,2)}, {v(T,2)}, {s(sLOG2E,2)}")
        for (rp, acc, mp, ncs, dst, T, bro) in items:
            e(f"v_exp_f32 {v(T+2)}, {v(T+2)} clamp"); e(f"v_exp_f32 {v(T+3)}, {v(T+3)} clamp")
        for (rp, acc, mp, ncs, dst, T, bro) in items:
            e(f"v_max_f32 {v(T)}, {s(sEPS6)}, {v(T)}"); e(f"v_max_f32 {v(T+1)}, {s(sEPS6)}, {v(T+1)}")
        for (rp, acc, mp, ncs, dst, T, bro) in items: e(f"v_pk_add_f32 {v(T,2)}, {v(T,2)}, {v(T+2,2)}")
        for (rp, acc, mp, ncs, dst, T, bro) in items: e(f"v_cvt_pk_bf16_f32 {v(dst)}, {v(T)}, {v(T+1)}")
    for j in range(4):
        phi2([(R4+4*j+2*hp, AK+4*j+2*hp, M4+4*j+2*hp, NCSK, PK+2*j+hp, 88 + 4*hp, False) for hp in range(2)])
    e(f"v_mfma_f32_16x16x32_bf16 {v(GR,4)}, {v(VV,4)}, {v(PK,4)}, 0")
    e(f"v_mfma_f32_16x16x32_bf16 {v(RS_,4)}, {v(ON,4)}, {v(PK,4)}, 0")
    e(f"v_mfma_f32_16x16x32_bf16 {v(GR,4)}, {v(VV+4,4)}, {v(PK+4,4)}, {v(GR,4)}")
    e(f"v_mfma_f32_16x16x32_bf16 {v(RS_,4)}, {v(ON,4)}, {v(PK+4,4)}, {v(RS_,4)}")
    kvp_addr(kvp, sT + 1)
    e("v_lshlrev_b32 v10, 2, v1")
    e(f"s_waitcnt vmcnt({min(63, nw)}) lgkmcnt(0)")
    for i in range(4):
        e(f"buffer_store_dword {v(GR+i)}, v10, {s(sSRD,4)}, {s(sT+1)} offen offset:{256*i} sc1")
    e("s_mov_b64 exec, 0xffff")
    e(f"buffer_store_dword {v(RS_)}, v10, {s(sSRD,4)}, {s(sT+1)} offen offset:1024 sc1")
    e("s_mov_b64 exec, -1")
    stamp(f"g{layer}_kv")
    PQR = 96
    for j in range(4):
        phi2([(RQ+2*j, AQ+4*j+2*hp, MQ+2*j, NCSQ+2*hp, PQR+2*j+hp, 88 + 4*hp, True) for hp in range(2)])
    e(f"s_lshl_b32 {s(sT)}, {s(sJ)}, 2"); e(f"s_add_u32 {s(sT)}, {s(sT)}, {s(sWAVE)}")
    e(f"s_mul_i32 {s(sT+1)}, {s(sT)}, {HP}"); e(f"s_add_u32 {s(sT+1)}, {s(sT+1)}, {pq}")
    e(f"s_lshl_b32 {s(sT+2)}, {s(sRS)}, 11"); e(f"s_add_u32 {s(sT+1)}, {s(sT+1)}, {s(sT+2)}")
    e("v_and_b32 v10, 15, v1"); e("v_lshlrev_b32 v10, 5, v10"); e("v_lshrrev_b32 v11, 4, v1"); e("v_lshl_add_u32 v10, v11, 3, v10")
    for j in range(4):
        e(f"s_lshl_b32 {s(sT+2)}, {s(sM+j)}, 3"); e(f"s_add_u32 {s(sT+2)}, {s(sT+2)}, {s(sT+1)}")
        e(f"buffer_store_dwordx2 {v(PQR+2*j,2)}, v10, {s(sSRD,4)}, {s(sT+2)} offen sc1")
    lred = lab("red")
    e(f"s_cmp_lg_u32 {s(sWAVE)}, 3"); e(f"s_cbranch_scc1 {lred}")
    e(f"s_lshl_b32 {s(sT)}, {s(sJ)}, 5"); e(f"s_mul_i32 {s(sT)}, {s(sT)}, {KVW}")
    e(f"s_lshr_b32 {s(sT+1)}, {s(sRS)}, 3"); e(f"s_mul_i32 {s(sT+1)}, {s(sT+1)}, {KVH}"); e(f"s_add_u32 {s(sT)}, {s(sT)}, {s(sT+1)}")
    e(f"s_add_u32 {s(sT)}, {s(sT)}, {kvp}")
    e(f"s_and_b32 {s(sT+2)}, {s(sRS)}, 7"); e(f"s_lshl_b32 {s(sT+3)}, {s(sT+2)}, 7")
    e("v_lshrrev_b32 v10, 3, v1"); e(f"v_mul_u32_u24 v10, {KVW}, v10"); e("v_and_b32 v11, 7, v1"); e("v_lshl_add_u32 v11, v11, 4, v10")
    e(f"v_add_u32 v11, {s(sT+3)}, v11")
    e("v_and_b32 v12, 3, v1"); e("v_lshl_add_u32 v12, v12, 4, v10"); e("v_add_u32 v12, 1024, v12")
    lr = lab("rp"); lg = lab("rg")
    A.label(lr)
    for i in range(4):
        e(f"s_add_u32 {s(sT+4)}, {s(sT)}, {8*i*KVW}")
        e(f"buffer_load_dwordx4 {v(24+4*i,4)}, v11, {s(sSRD,4)}, {s(sT+4)} offen sc1")
        e(f"buffer_load_dwordx4 {v(40+4*i,4)}, v12, {s(sSRD,4)}, {s(sT+4)} offen sc1")
    e("s_waitcnt vmcnt(0)")
    maxtree([24, 28, 32, 36, 40, 44, 48, 52], 56)
    e("v_cmp_eq_u32 vcc, -1, v56")
    spin_check(lr, lg)
    for b in (24, 40):
        for h2 in range(2):
            e(f"v_pk_add_f32 {v(b+2*h2,2)}, {v(b+2*h2,2)}, {v(b+4+2*h2,2)}"); e(f"v_pk_add_f32 {v(b+8+2*h2,2)}, {v(b+8+2*h2,2)}, {v(b+12+2*h2,2)}")
        for h2 in range(2):
            e(f"v_pk_add_f32 {v(b+2*h2,2)}, {v(b+2*h2,2)}, {v(b+8+2*h2,2)}")
    regs = [24, 25, 26, 27, 40, 41, 42, 43]
    for r in regs: e(f"v_add_f32_dpp {v(r)}, {v(r)}, {v(r)} row_ror:8 row_mask:0xf bank_mask:0xf")
    for r in regs: e(f"v_mov_b32 {v(r+4)}, {v(r)}")
    for r in regs: e(f"v_permlane16_swap_b32 {v(r)}, {v(r+4)}")
    for r in regs: e(f"v_add_f32 {v(r)}, {v(r)}, {v(r+4)}")
    for r in regs: e(f"v_mov_b32 {v(r+4)}, {v(r)}")
    for r in regs: e(f"v_permlane32_swap_b32 {v(r)}, {v(r+4)}")
    for r in regs: e(f"v_add_f32 {v(r)}, {v(r)}, {v(r+4)}")
    e("v_cvt_pk_bf16_f32 v28, v24, v25"); e("v_cvt_pk_bf16_f32 v29, v26, v27")
    e("v_cvt_pk_bf16_f32 v30, v40, v41"); e("v_cvt_pk_bf16_f32 v31, v42, v43")
    f_addr(ff, sT + 1)
    e(f"s_lshl_b32 {s(sT+3)}, {s(sT+2)}, 6"); e(f"v_lshl_add_u32 v10, v1, 3, {s(sT+3)}")
    e("s_mov_b64 exec, 0xff")
    e(f"buffer_store_dwordx2 v[28:29], v10, {s(sSRD,4)}, {s(sT+1)} offen sc1")
    e(f"s_cmp_lg_u32 {s(sT+2)}, 0"); e(f"s_cbranch_scc1 {lred}_z")
    e("s_mov_b64 exec, 0xf")
    e(f"buffer_store_dwordx2 v[30:31], v10, {s(sSRD,4)}, {s(sT+1)} offen offset:512 sc1")
    A.label(lred + "_z")
    e("s_mov_b64 exec, -1")
    A.label(lred)

def ophase(layer):
    pq = PQ1 if layer == 1 else PQ2
    ff = F1 if layer == 1 else F2
    KF, PQF = 24, 56
    e("v_and_b32 v10, 3, v1"); e("v_lshlrev_b32 v10, 2, v10"); e("v_bfe_u32 v11, v1, 2, 2"); e("v_add_u32 v10, v10, v11")
    e("v_and_b32 v11, 16, v1"); e("v_cmp_ne_u32 vcc, 0, v11"); e("v_cndmask_b32 v10, v10, v11, vcc")
    e("v_lshlrev_b32 v10, 5, v10"); e("v_lshrrev_b32 v11, 5, v1"); e("v_lshl_add_u32 v10, v11, 4, v10")
    e(f"s_lshl_b32 {s(sT)}, {s(sWAVE)}, 3"); e(f"s_mul_i32 {s(sT+1)}, {s(sT)}, {FP}"); e(f"s_add_u32 {s(sT+1)}, {s(sT+1)}, {ff}")
    e("v_and_b32 v11, 31, v1"); e("v_lshlrev_b32 v11, 5, v11"); e("v_lshrrev_b32 v12, 5, v1"); e("v_lshl_add_u32 v11, v12, 4, v11")
    e(f"s_mul_i32 {s(sT+2)}, {s(sT)}, {HP}"); e(f"s_add_u32 {s(sT+2)}, {s(sT+2)}, {pq}")
    e(f"s_lshl_b32 {s(sT+3)}, {s(sRO)}, 10"); e(f"s_add_u32 {s(sT+2)}, {s(sT+2)}, {s(sT+3)}")
    lr = lab("oq"); lg = lab("oqk")
    A.label(lr)
    for h in range(8):
        e(f"s_add_u32 {s(sT+3)}, {s(sT+2)}, {h*HP}")
        e(f"buffer_load_dwordx4 {v(PQF+4*h,4)}, v11, {s(sSRD,4)}, {s(sT+3)} offen sc1")
    e("s_waitcnt vmcnt(0)")
    maxtree([PQF+4*h for h in range(8)], 12)
    e("v_cmp_eq_u32 vcc, -1, v12")
    spin_check(lr, lg)
    lr = lab("of"); lg = lab("ofk")
    A.label(lr)
    for h in range(8):
        e(f"buffer_load_dwordx4 {v(KF+4*h,4)}, v10, {s(sSRD,4)}, {s(sT+1)} offen offset:{h*FP - (4096 if h*FP >= 4096 else 0)} sc1") if h*FP < 4096 else None
        if h*FP >= 4096:
            e(f"s_add_u32 {s(sT+3)}, {s(sT+1)}, {h*FP}")
            e(f"buffer_load_dwordx4 {v(KF+4*h,4)}, v10, {s(sSRD,4)}, {s(sT+3)} offen sc1")
    e("s_waitcnt vmcnt(0)")
    maxtree([KF+4*h for h in range(8)], 12)
    e("v_cmp_eq_u32 vcc, -1, v12")
    spin_check(lr, lg)
    stamp(f"o{layer}_ld")
    e(f"s_lshl_b32 {s(sT)}, {s(sWAVE)}, 13"); e(f"s_add_u32 {s(sT)}, {s(sT)}, {OT}")
    e(f"v_lshl_add_u32 v12, v1, 4, {s(sT)}")
    DB = [88, 104, 120, 136]
    for half in range(2):
        for i in range(4):
            h = 4*half + i
            e(f"v_mfma_f32_32x32x16_bf16 {v(DB[i],16)}, {v(KF+4*h,4)}, {v(PQF+4*h,4)}, 0")
        for i in range(4):
            d = DB[i]
            e(f"v_add_f32 {v(d+8)}, {s(sEPS6)}, {v(d+8)}")
            e(f"v_rcp_f32 {v(d+8)}, {v(d+8)}")
        for i in range(4):
            d = DB[i]; h = 4*half + i
            for k in range(4): e(f"v_pk_mul_f32 {v(d+2*k,2)}, {v(d+2*k,2)}, {v(d+8,2)} op_sel_hi:[1,0]")
            for k in range(4): e(f"v_cvt_pk_bf16_f32 {v(d+10+k)}, {v(d+2*k)}, {v(d+2*k+1)}")
            e(f"ds_write_b128 v12, {v(d+10,4)} offset:{1024*h}")
    stamp(f"o{layer}_m1")
    e(f"v_lshlrev_b32 v13, 4, v1"); e(f"v_add_u32 v13, {OT}, v13")
    e("s_waitcnt lgkmcnt(0)"); e("s_barrier")
    ACC = 24; NB = 8; OF = [56 + 4*i for i in range(NB)]
    for h in range(NB): e(f"ds_read_b128 {v(OF[h],4)}, v13 offset:{1024*h}")
    XF = 104
    for k in range(8):
        e(f"v_lshlrev_b32 {v(XF+2*k)}, 16, {v(XRES+k)}"); e(f"v_and_b32 {v(XF+2*k+1)}, {s(sHI)}, {v(XRES+k)}")
    for h in range(32):
        e(f"s_waitcnt lgkmcnt({min(NB-1, 31-h)})")
        w_ = a(192 + 4*h, 4) if h < 16 else v(192 + 4*(h-16), 4)
        c_ = "0" if h == 0 else v(ACC, 16)
        e(f"v_mfma_f32_32x32x16_bf16 {v(ACC,16)}, {w_}, {v(OF[h % NB],4)}, {c_}")
        if h + NB < 32: e(f"ds_read_b128 {v(OF[h % NB],4)}, v13 offset:{1024*(h+NB)}")
    stamp(f"o{layer}_g2")
    for k in range(8): e(f"v_pk_add_f32 {v(XF+2*k,2)}, {v(XF+2*k,2)}, {v(ACC+2*k,2)}")
    PKD = 120
    if layer == 2:
        for k in range(8): e(f"v_cvt_pk_bf16_f32 {v(PKD+k)}, {v(XF+2*k)}, {v(XF+2*k+1)}")
        e("v_and_b32 v10, 31, v1"); e("v_lshlrev_b32 v10, 10, v10"); e("v_lshrrev_b32 v11, 5, v1"); e("v_lshl_add_u32 v10, v11, 5, v10")
        e(f"s_lshl_b32 {s(sT)}, {s(sRO)}, 15"); e(f"s_lshl_b32 {s(sT+1)}, {s(sJO)}, 8"); e(f"s_add_u32 {s(sT)}, {s(sT)}, {s(sT+1)}")
        e(f"s_lshl_b32 {s(sT+1)}, {s(sWAVE)}, 6"); e(f"s_add_u32 {s(sT)}, {s(sT)}, {s(sT+1)}")
        e(f"v_add_u32 v10, {s(sT)}, v10")
        e(f"global_store_dwordx4 v10, {v(PKD,4)}, {s(sOUT,2)}")
        e(f"global_store_dwordx4 v10, {v(PKD+4,4)}, {s(sOUT,2)} offset:16")
        return
    for k in range(8): e(f"v_cvt_pk_bf16_f32 {v(PKD+k)}, {v(XF+2*k)}, {v(XF+2*k+1)}")
    e(f"v_pk_add_f32 v[64:65], {v(XF,2)}, {v(XF+2,2)}"); e(f"v_pk_mul_f32 v[66:67], {v(XF,2)}, {v(XF,2)}")
    e(f"v_pk_fma_f32 v[66:67], {v(XF+2,2)}, {v(XF+2,2)}, v[66:67]")
    for k in range(2, 8):
        e(f"v_pk_add_f32 v[64:65], v[64:65], {v(XF+2*k,2)}"); e(f"v_pk_fma_f32 v[66:67], {v(XF+2*k,2)}, {v(XF+2*k,2)}, v[66:67]")
    e("v_add_f32 v64, v64, v65"); e("v_add_f32 v65, v66, v67")
    e("v_permlane32_swap_b32 v64, v65")
    e("v_add_f32 v64, v64, v65")
    e("v_and_b32 v10, 31, v1"); e("v_lshlrev_b32 v10, 3, v10"); e("v_lshrrev_b32 v11, 5, v1"); e("v_lshl_add_u32 v10, v11, 2, v10")
    e(f"s_lshl_b32 {s(sT)}, {s(sWAVE)}, 8"); e(f"s_add_u32 {s(sT)}, {s(sT)}, {SPL}"); e(f"v_add_u32 v11, {s(sT)}, v10")
    e("ds_write_b32 v11, v64")
    e("v_and_b32 v14, 31, v1"); e(f"v_mul_u32_u24 v14, {TBP}, v14"); e("v_lshrrev_b32 v15, 5, v1"); e("v_lshl_add_u32 v14, v15, 5, v14")
    e(f"s_mul_i32 {s(sT+4)}, {s(sWAVE)}, {32*TBP}"); e(f"s_add_u32 {s(sT+4)}, {s(sT+4)}, {TB}"); e(f"v_add_u32 v14, {s(sT+4)}, v14")
    e(f"ds_write_b128 v14, {v(PKD,4)}"); e(f"ds_write_b128 v14, {v(PKD+4,4)} offset:16")
    e("v_lshrrev_b32 v15, 5, v1"); e("v_lshlrev_b32 v15, 3, v15"); e("v_bfe_u32 v16, v1, 2, 2"); e("v_add_u32 v15, v15, v16")
    e(f"v_mul_u32_u24 v15, {TBP}, v15"); e("v_bfe_u32 v16, v1, 4, 1"); e("v_lshl_add_u32 v15, v16, 5, v15")
    e("v_and_b32 v16, 3, v1"); e("v_lshl_add_u32 v15, v16, 3, v15"); e(f"v_add_u32 v15, {s(sT+4)}, v15")
    e("s_waitcnt lgkmcnt(0)"); e("s_barrier")
    lw = lab("sp")
    e(f"s_cmp_lg_u32 {s(sWAVE)}, 0"); e(f"s_cbranch_scc1 {lw}")
    e(f"v_add_u32 v11, {SPL}, v10")
    for k in range(4): e(f"ds_read_b32 {v(68+k)}, v11 offset:{256*k}")
    e("s_waitcnt lgkmcnt(0)")
    e("v_add_f32 v68, v68, v69"); e("v_add_f32 v70, v70, v71"); e("v_add_f32 v68, v68, v70")
    sp_addr(sT)
    e(f"buffer_store_dword v68, v10, {s(sSRD,4)}, {s(sT)} offen sc1")
    e(f"s_lshl_b32 {s(sT)}, {s(sRO)}, 10"); e(f"s_add_u32 {s(sT)}, {s(sT)}, {SP}")
    lr = lab("spp"); lg = lab("spk")
    A.label(lr)
    for k in range(4): e(f"buffer_load_dword {v(72+k)}, v10, {s(sSRD,4)}, {s(sT)} offen offset:{256*k} sc1")
    e("s_waitcnt vmcnt(0)")
    maxtree([72, 73, 74, 75], 76)
    e("v_cmp_eq_u32 vcc, -1, v76")
    spin_check(lr, lg)
    e("v_add_f32 v72, v72, v73"); e("v_add_f32 v74, v74, v75"); e("v_add_f32 v72, v72, v74")
    e("v_mov_b32 v73, v72")
    e("v_permlane32_swap_b32 v72, v73")
    stats_final(72, 73, 74, 75, 76)
    e("v_and_b32 v11, 31, v1"); e("v_lshlrev_b32 v11, 3, v11"); e(f"v_add_u32 v11, {SPL + 1024}, v11")
    e("ds_write_b64 v11, v[74:75]")
    A.label(lw)
    for k in range(2):
        e(f"ds_read_b64_tr_b16 {v(80+4*k,2)}, v15 offset:{16*k*TBP}")
        e(f"ds_read_b64_tr_b16 {v(82+4*k,2)}, v15 offset:{16*k*TBP + 4*TBP}")
    e("s_waitcnt lgkmcnt(0)"); e("s_barrier")
    stamp("o1_sp")
    e("v_and_b32 v11, 31, v1"); e("v_lshlrev_b32 v11, 3, v11"); e(f"v_add_u32 v11, {SPL + 1024}, v11")
    e("ds_read_b64 v[74:75], v11")
    for k in range(8):
        e(f"v_lshlrev_b32 {v(XF+2*k)}, 16, {v(PKD+k)}"); e(f"v_and_b32 {v(XF+2*k+1)}, {s(sHI)}, {v(PKD+k)}")
    e("s_waitcnt lgkmcnt(0)")
    for k in range(8): e(f"v_pk_add_f32 {v(XF+2*k,2)}, {v(XF+2*k,2)}, v[74:75] op_sel_hi:[1,0] neg_lo:[0,1] neg_hi:[0,1]")
    for k in range(8): e(f"v_cvt_pk_bf16_f32 {v(PKD+k)}, {v(XF+2*k)}, {v(XF+2*k+1)}")
    for k in range(8):
        e(f"v_lshlrev_b32 {v(XF+2*k)}, 16, {v(PKD+k)}"); e(f"v_and_b32 {v(XF+2*k+1)}, {s(sHI)}, {v(PKD+k)}")
    for k in range(8): e(f"v_pk_mul_f32 {v(XF+2*k,2)}, {v(XF+2*k,2)}, v[74:75] op_sel:[0,1] op_sel_hi:[1,1]")
    for k in range(8): e(f"v_cvt_pk_bf16_f32 {v(PKD+k)}, {v(XF+2*k)}, {v(XF+2*k+1)}")
    e(f"ds_write_b128 v14, {v(PKD,4)} offset:{4*32*TBP}"); e(f"ds_write_b128 v14, {v(PKD+4,4)} offset:{4*32*TBP + 16}")
    otile_addr(10, sT, U2T)
    e(f"s_add_u32 {s(sT+1)}, {s(sT)}, {X2T - U2T}")
    e("s_waitcnt lgkmcnt(0)")
    for k in range(2):
        e(f"ds_read_b64_tr_b16 {v(88+4*k,2)}, v15 offset:{4*32*TBP + 16*k*TBP}")
        e(f"ds_read_b64_tr_b16 {v(90+4*k,2)}, v15 offset:{4*32*TBP + 16*k*TBP + 4*TBP}")
    e("s_waitcnt lgkmcnt(0)")
    e(f"buffer_store_dwordx4 v[88:91], v10, {s(sSRD,4)}, {s(sT)} offen sc1")
    e(f"buffer_store_dwordx4 v[92:95], v10, {s(sSRD,4)}, {s(sT)} offen offset:32 sc1")
    e(f"buffer_store_dwordx4 v[80:83], v10, {s(sSRD,4)}, {s(sT+1)} offen sc1")
    e(f"buffer_store_dwordx4 v[84:87], v10, {s(sSRD,4)}, {s(sT+1)} offen offset:32 sc1")

def build():
    prologue()
    stamp("start")
    p0()
    kgen_setup()
    arrive1()
    stamp("arr1")
    kgen_rest()
    stamp("kgen")
    if stop_here("K"): return
    wait1()
    stamp("B1")
    conv(1)
    stamp("C1")
    if stop_here("C1"): return
    gphase(1)
    stamp("G1")
    if stop_here("G1"): return
    ophase(1)
    stamp("O1")
    if stop_here("O1"): return
    conv(2)
    stamp("C2")
    if stop_here("C2"): return
    gphase(2)
    stamp("G2")
    if stop_here("G2"): return
    ophase(2)
    if STAMPS:
        e("s_waitcnt vmcnt(0)")
        stamp("O2")
        stamps_out()

build()
A.label("L_end")
e("s_endpgm")

def rb_int(j):
    u = struct.unpack("<I", struct.pack("<f", float(j)))[0]
    u = (u + 0x7fff + ((u >> 16) & 1)) & 0xffff0000
    return int(struct.unpack("<f", struct.pack("<I", u))[0])
idx = []
for x in range(2064):
    j = 2047 - x
    if j < 0: ent = 1024
    else:
        t = rb_int(j); ent = t if t < 512 else 512 + (t - 512) // 4
    idx.append(2 * ent)

lines, nn = hazard_pass(A.lines)
probs = check_branches(lines)
for p in probs: print("BRANCH HAZARD:", p, file=sys.stderr)
hdr = open("interleave_layers__ssm_conv_s4d__linear_attn_block__prompt.s.ref").read().split("; Override launch")[0]
out = hdr + "; Override launch geometry by editing the next line.\n"
out += f"; @launch grid=(256,1,1) block=(256,1,1) lds={LDS_BYTES}\n"
out += '.amdgcn_target "amdgcn-amd-amdhsa--gfx950"\n.text\n'
out += f".globl {NAME}\n.p2align 8\n.type {NAME},@function\n{NAME}:\n"
out += "\n".join(lines) + "\n"
out += ".p2align 6\n.type L_idx,@object\nL_idx:\n"
for i in range(0, len(idx), 16): out += "  .short " + ", ".join(str(x) for x in idx[i:i+16]) + "\n"
out += "L_tab_end:\n"
out += f""".section .rodata,"a"
.p2align 6
.amdhsa_kernel {NAME}
  .amdhsa_next_free_vgpr 512
  .amdhsa_next_free_sgpr 102
  .amdhsa_accum_offset 256
  .amdhsa_group_segment_fixed_size 0
  .amdhsa_kernarg_size 104
  .amdhsa_user_sgpr_count 2
  .amdhsa_user_sgpr_kernarg_segment_ptr 1
  .amdhsa_system_sgpr_workgroup_id_x 1
  .amdhsa_float_denorm_mode_32 3
.end_amdhsa_kernel
"""
open(sys.argv[1], "w").write(out)
if STAMPS: open(sys.argv[1] + ".names", "w").write(",".join(stnames))
print(f"wrote {sys.argv[1]}: {len(lines)} lines, {nn} nops inserted; WS_USED={WS_USED:#x}", file=sys.stderr)
```

```python
import sys, struct
from asmlib import *

NAME = "interleave_layers__ssm_conv_s4d__linear_attn_block__prompt_kernel"
OPTS = {}
for x in sys.argv[2:]:
    if "=" in x:
        k_, v_ = x.split("="); OPTS[k_] = v_
STOP = OPTS.get("stop")
SPINMAX = int(OPTS.get("spin", 400000))
BK = int(OPTS.get("bk", 2))

PITCH = 4224
S1 = 0x000000
S3 = 0x004000
F1 = 0x014000; FP = 640; F2 = F1 + 0x6000
STAMP_OFF = 0x020000
CNT = 0x030000
KVP1 = 0x040000; KVH = 1152; KVW = 4 * KVH; KVP2 = KVP1 + 0x128000
WFG = 0x2A0000; WFO = WFG + 0x180000
XSZ = 0x220000
XT1 = 0x4A0000; XT3 = XT1 + XSZ; X2T = XT3 + XSZ
HP = 65536 + 256
PQ1 = X2T + XSZ; PQ2 = PQ1 + 0x210000
WS_USED = PQ2 + 0x210000
KC = 0; KCC = 4160; KCH = 8 * KCC
AT = 2 * KCH
MISC = AT + 65536
ST = MISC
WST = MISC + 2048
CT = WST + 8192; CTP = 2080
TB = WST; TBP = 80
LDS_BYTES = 163840
TKP = 208; TABC = 256 * TKP
U0 = AT; UP = 4608; X0 = AT + 2 * UP; RED = X0 + 8192
OT = AT

sU, sLOGA, sAIM, sCR, sCI, sLDT, sDSK = 8, 10, 12, 14, 16, 18, 20
sWQKV, sWO, sOUT, sDBG, sWS = 24, 26, 28, 30, 32
sSRD = 36; sSRD2 = 40
sWAVE, sXCD, sIDX, sCP, sRS, sJ, sRO, sJO = 44, 45, 46, 47, 48, 49, 50, 51
sSPIN = 52; sDSKV = 53
sT = 54
sLOG2E = 64; sEPS6 = 66; sM = 68; sHI = 76; sPC = 78; sINV512 = 80
sW = 34

def f2u(f): return struct.unpack("<I", struct.pack("<f", f))[0]
A = Asm(); e = A.e
uid = [0]
def lab(p):
    uid[0] += 1; return f"L_{p}_{uid[0]}"

STAMPS = OPTS.get("stamps") == "1"
DEFSET = "start,arr1,kgen,B1,c1_pro,C1,B2,g1_kv,G1,o1_ld,O1,B4,c2_pro,C2,B5,G2,o2_ld,O2"
STSET = OPTS.get("st", DEFSET).split(",")
stnames = []
def stamp(name):
    if not STAMPS or name not in STSET: return
    i = len(stnames); stnames.append(name); assert i < 18
    e(f"{'s_memtime' if OPTS.get('clk') == '1' else 's_memrealtime'} s[82:83]"); e("s_waitcnt lgkmcnt(0)"); e(f"s_mov_b32 s{84+i}, s82")
def stamps_out():
    if not STAMPS: return
    l = lab("so")
    e(f"s_cmp_lg_u32 {s(sWAVE)}, {OPTS.get('stw', '0')}"); e(f"s_cbranch_scc1 {l}")
    e(f"s_lshl_b32 {s(sT)}, s2, 7"); e(f"s_add_u32 {s(sT)}, {s(sT)}, {STAMP_OFF}")
    e("s_mov_b64 exec, 1")
    for i in range(len(stnames)):
        e(f"v_mov_b32 v10, s{84+i}"); e(f"v_mov_b32 v11, {4*i}")
        e(f"buffer_store_dword v10, v11, {s(sSRD,4)}, {s(sT)} offen")
    e("s_mov_b64 exec, -1")
    A.label(l)
def stop_here(name):
    if STOP == name:
        e("s_waitcnt vmcnt(0) lgkmcnt(0)"); e("s_branch L_end"); return True
    return False

def sent_regs(r):
    for i in range(4): e(f"v_mov_b32 {v(r+i)}, -1")
def spin_check(retry, giveup, bk=None):
    e(f"s_cbranch_vccz {giveup}")
    bk = BK if bk is None else bk
    if bk: e(f"s_sleep {bk}")
    e(f"s_sub_u32 {s(sSPIN)}, {s(sSPIN)}, 1")
    e(f"s_cbranch_scc0 {retry}")
    e(f"s_mov_b32 {s(sSPIN)}, 0")
    A.label(giveup)
def maxtree(regs, dst):
    regs = list(regs); cur = regs.pop(0)
    while regs:
        if len(regs) >= 2:
            e(f"v_max3_u32 {v(dst)}, {v(cur)}, {v(regs[0])}, {v(regs[1])}"); regs = regs[2:]
        else:
            e(f"v_max_u32 {v(dst)}, {v(cur)}, {v(regs[0])}"); regs = []
        cur = dst

def arrive(k):
    e("s_waitcnt vmcnt(0) lgkmcnt(0)"); e("s_barrier")
    l = lab("arr")
    e(f"s_cmp_lg_u32 {s(sWAVE)}, 0"); e(f"s_cbranch_scc1 {l}")
    e(f"s_and_b32 {s(sT)}, s2, 15"); e(f"s_lshl_b32 {s(sT)}, {s(sT)}, {4 if k == 0 else 12}")
    if k: e(f"s_add_u32 {s(sT)}, {s(sT)}, {CNT}")
    e(f"v_mov_b32 v10, {s(sT)}"); e("v_mov_b32 v11, 1")
    e("s_mov_b64 exec, 1")
    e(f"global_atomic_add v10, v11, {s(sDBG if k == 0 else sWS,2)}")
    e("s_mov_b64 exec, -1")
    A.label(l)
def wait(k):
    l = lab("wt"); lp = lab("poll")
    e(f"s_cmp_lg_u32 {s(sWAVE)}, 0"); e(f"s_cbranch_scc1 {l}")
    e("v_and_b32 v10, 15, v0"); e(f"v_lshlrev_b32 v10, {4 if k == 0 else 12}, v10")
    if k: e(f"v_add_u32 v10, {CNT}, v10")
    e(f"s_movk_i32 {s(sT+1)}, {16 * max(k, 1)}")
    A.label(lp)
    e(f"global_load_dword v11, v10, {s(sDBG if k == 0 else sWS,2)} sc1")
    e("s_waitcnt vmcnt(0)")
    e(f"v_cmp_gt_u32 vcc, {s(sT+1)}, v11")
    spin_check(lp, l, bk=0)
    e("s_barrier")

def cmul(d, x, w, t):
    return [f"v_pk_mul_f32 {v(t,2)}, {v(x,2)}, {v(w,2)} op_sel_hi:[1,0]",
            f"v_pk_fma_f32 {v(d,2)}, {v(x,2)}, {v(w,2)}, {v(t,2)} op_sel:[1,1,0] op_sel_hi:[0,1,1] neg_lo:[0,1,0]"]
def bf16r(dst, src):
    e(f"v_cvt_pk_bf16_f32 {v(dst)}, {v(src)}, {v(src)}"); e(f"v_lshlrev_b32 {v(dst)}, 16, {v(dst)}")
def stats_final(vsum, vsq, vm, vr, t):
    e(f"v_mul_f32 {v(t)}, {s(sINV512)}, {v(vsum)}")
    e(f"v_mul_f32 {v(t+1)}, {s(sINV512)}, {v(vsq)}")
    e(f"v_fma_f32 {v(t+1)}, -{v(t)}, {v(t)}, {v(t+1)}")
    e(f"v_max_f32 {v(t+1)}, 0, {v(t+1)}")
    e(f"v_cvt_pk_bf16_f32 {v(t)}, {v(t)}, {v(t+1)}")
    e(f"v_and_b32 {v(t+1)}, {s(sHI)}, {v(t)}"); e(f"v_lshlrev_b32 {v(vm)}, 16, {v(t)}")
    e(f"v_add_f32 {v(t+1)}, 0x3727c5ac, {v(t+1)}")
    bf16r(t + 1, t + 1)
    e(f"v_sqrt_f32 {v(t+1)}, {v(t+1)}")
    bf16r(t + 1, t + 1)
    e(f"v_rcp_f32 {v(vr)}, {v(t+1)}")

def kvp_addr(kvp, dst):
    e(f"s_lshl_b32 {s(dst)}, {s(sJ)}, 5"); e(f"s_add_u32 {s(dst)}, {s(dst)}, {s(sRS)}"); e(f"s_lshl_b32 {s(dst)}, {s(dst)}, 2")
    e(f"s_add_u32 {s(dst)}, {s(dst)}, {s(sWAVE)}"); e(f"s_mul_i32 {s(dst)}, {s(dst)}, {KVH}"); e(f"s_add_u32 {s(dst)}, {s(dst)}, {kvp}")
def f_addr(f, dst):
    e(f"s_lshr_b32 {s(dst)}, {s(sRS)}, 3"); e(f"s_lshl_b32 {s(sT+9)}, {s(sJ)}, 2"); e(f"s_add_u32 {s(dst)}, {s(dst)}, {s(sT+9)}")
    e(f"s_mul_i32 {s(dst)}, {s(dst)}, {FP}"); e(f"s_add_u32 {s(dst)}, {s(dst)}, {f}")
def pq_addr(pq, dst):
    e(f"s_lshl_b32 {s(dst)}, {s(sJ)}, 2"); e(f"s_add_u32 {s(dst)}, {s(dst)}, {s(sWAVE)}")
    e(f"s_mul_i32 {s(dst)}, {s(dst)}, {HP}"); e(f"s_lshl_b32 {s(sT+9)}, {s(sRS)}, 11"); e(f"s_add_u32 {s(dst)}, {s(dst)}, {s(sT+9)}")
    e(f"s_add_u32 {s(dst)}, {s(dst)}, {pq}")
def fill_g(pq, kvp, f, S):
    pq_addr(pq, sT + 1)
    e("v_lshlrev_b32 v10, 4, v1")
    e(f"buffer_store_dwordx4 {v(S,4)}, v10, {s(sSRD,4)}, {s(sT+1)} offen sc1")
    e(f"buffer_store_dwordx4 {v(S,4)}, v10, {s(sSRD,4)}, {s(sT+1)} offen offset:1024 sc1")
    kvp_addr(kvp, sT + 1)
    e(f"buffer_store_dwordx4 {v(S,4)}, v10, {s(sSRD,4)}, {s(sT+1)} offen sc1")
    e("v_lshlrev_b32 v10, 2, v1")
    e(f"s_mov_b32 {s(sT+2)}, -1"); e(f"s_mov_b32 {s(sT+3)}, 0"); e(f"s_mov_b64 exec, {s(sT+2,2)}")
    e(f"buffer_store_dword {v(S)}, v10, {s(sSRD,4)}, {s(sT+1)} offen offset:1024 sc1")
    e("s_mov_b64 exec, -1")
    f_addr(f, sT + 1)
    e(f"s_and_b32 {s(sT+2)}, {s(sRS)}, 7"); e(f"s_lshl_b32 {s(sT+3)}, {s(sT+2)}, 6")
    e(f"v_lshl_add_u32 v10, v1, 2, {s(sT+3)}")
    e("v_lshlrev_b32 v11, 2, v1"); e("v_add_u32 v11, 448, v11")
    e("v_cmp_gt_u32 vcc, 16, v1"); e("v_cndmask_b32 v10, v11, v10, vcc")
    e(f"s_mov_b32 {s(sT+3)}, 0xffffff"); e(f"s_cmp_eq_u32 {s(sT+2)}, 0"); e(f"s_cselect_b32 {s(sT+2)}, {s(sT+3)}, 0xffff"); e(f"s_mov_b32 {s(sT+3)}, 0")
    e(f"s_mov_b64 exec, {s(sT+2,2)}")
    e(f"buffer_store_dword {v(S)}, v10, {s(sSRD,4)}, {s(sT+1)} offen sc1")
    e("s_mov_b64 exec, -1")
    return 5

XR = 24; PRM = 32; IDX = 40; XC = 176
def prologue():
    e(f"s_getpc_b64 {s(sPC,2)}")
    A.label("L_pc")
    e("s_cmp_ge_u32 s2, 256")
    e("s_cbranch_scc1 L_end")
    e("s_load_dwordx16 s[8:23], s[0:1], 0")
    e("s_load_dwordx8 s[24:31], s[0:1], 64")
    e("s_load_dwordx2 s[32:33], s[0:1], 96")
    e("v_lshlrev_b32 v10, 7, v0")
    e("v_min_u32 v11, L_tab_end - L_pc - 4, v10")
    e(f"global_load_dword v38, v11, {s(sPC,2)}")
    e("v_add_u32 v10, 0x8000, v10")
    e("v_min_u32 v10, L_tab_end - L_pc - 4, v10")
    e(f"global_load_dword v39, v10, {s(sPC,2)}")
    e("v_lshrrev_b32 v1, 6, v0")
    e(f"s_and_b32 {s(sXCD)}, s2, 7")
    e(f"s_lshr_b32 {s(sIDX)}, s2, 3")
    e(f"v_readfirstlane_b32 {s(sWAVE)}, v1")
    e(f"s_lshl_b32 {s(sCP)}, {s(sXCD)}, 5"); e(f"s_add_u32 {s(sCP)}, {s(sCP)}, {s(sIDX)}")
    e("v_and_b32 v1, 63, v0")
    e(f"s_lshl_b32 {s(sT)}, {s(sCP)}, 9"); e(f"v_lshl_add_u32 v10, v0, 1, {s(sT)}")
    e(f"s_lshl_b32 {s(sT)}, {s(sCP)}, 2"); e("v_lshrrev_b32 v12, 7, v0"); e(f"v_lshl_add_u32 v11, v12, 1, {s(sT)}")
    e(f"s_lshl_b32 {s(sT)}, s2, 13"); e(f"v_lshl_add_u32 v13, v0, 5, {s(sT)}")
    e("s_waitcnt lgkmcnt(0)")
    e(f"global_load_ushort {v(PRM)}, v10, {s(sLOGA,2)}")
    e(f"global_load_ushort {v(PRM+1)}, v10, {s(sAIM,2)}")
    e(f"global_load_ushort {v(PRM+4)}, v11, {s(sLDT,2)}")
    e(f"global_load_dwordx4 {v(XR,4)}, v13, {s(sU,2)}")
    e(f"global_load_dwordx4 {v(XR+4,4)}, v13, {s(sU,2)} offset:16")
    e(f"global_load_ushort {v(PRM+2)}, v10, {s(sCR,2)}")
    e(f"global_load_ushort {v(PRM+3)}, v10, {s(sCI,2)}")
    e(f"global_load_ushort {v(PRM+5)}, v11, {s(sDSK,2)}")
    e(f"s_and_b32 {s(sT)}, {s(sIDX)}, 3"); e(f"s_lshl_b32 {s(sRS)}, {s(sXCD)}, 2"); e(f"s_add_u32 {s(sRS)}, {s(sRS)}, {s(sT)}")
    e(f"s_lshr_b32 {s(sJ)}, {s(sIDX)}, 2")
    e(f"s_and_b32 {s(sT)}, {s(sJ)}, 1"); e(f"s_lshl_b32 {s(sRO)}, {s(sRS)}, 1"); e(f"s_add_u32 {s(sRO)}, {s(sRO)}, {s(sT)}")
    e(f"s_lshr_b32 {s(sJO)}, {s(sJ)}, 1")
    e(f"s_mov_b32 {s(sLOG2E)}, {f2u(1.4426950408889634):#x}"); e(f"s_mov_b32 {s(sLOG2E+1)}, {s(sLOG2E)}")
    e(f"s_mov_b32 {s(sEPS6)}, {f2u(1e-6):#x}"); e(f"s_mov_b32 {s(sEPS6+1)}, {s(sEPS6)}")
    e(f"s_mov_b32 {s(sINV512)}, {f2u(1.0/512):#x}"); e(f"s_mov_b32 {s(sINV512+1)}, {s(sINV512)}")
    e(f"s_mov_b32 {s(sHI)}, 0xffff0000")
    e(f"s_mov_b32 {s(sSPIN)}, {SPINMAX}")
    e(f"s_mov_b32 {s(sSRD)}, {s(sWS)}"); e(f"s_and_b32 {s(sSRD+1)}, {s(sWS+1)}, 0xffff")
    e(f"s_mov_b32 {s(sSRD+2)}, {WS_USED:#x}"); e(f"s_mov_b32 {s(sSRD+3)}, 0x20000")

def p0_issue():
    lo = lab("wo"); lj = lab("wj")
    e("s_cmp_ge_u32 s2, 192"); e(f"s_cbranch_scc1 {lo}")
    e(f"s_mul_i32 {s(sT)}, s2, 5462"); e(f"s_lshr_b32 {s(sT)}, {s(sT)}, 16")
    e(f"s_mul_i32 {s(sT+1)}, {s(sT)}, 12"); e(f"s_sub_u32 {s(sT+1)}, s2, {s(sT+1)}")
    e(f"s_mov_b32 {s(sSRD2)}, {s(sWQKV)}"); e(f"s_and_b32 {s(sSRD2+1)}, {s(sWQKV+1)}, 0xffff")
    e(f"s_mov_b32 {s(sSRD2+2)}, {512*1536*2}"); e(f"s_mov_b32 {s(sSRD2+3)}, 0x20000")
    e("v_lshrrev_b32 v11, 4, v1"); e("v_mul_u32_u24 v11, 3072, v11"); e("v_and_b32 v12, 15, v1"); e("v_lshl_add_u32 v11, v12, 4, v11")
    e(f"s_lshl_b32 {s(sT+2)}, {s(sT)}, 5"); e(f"s_lshl_b32 {s(sT+3)}, {s(sWAVE)}, 3"); e(f"s_add_u32 {s(sT+2)}, {s(sT+2)}, {s(sT+3)}")
    e(f"s_mul_i32 {s(sT+2)}, {s(sT+2)}, 3072"); e(f"s_lshl_b32 {s(sT+3)}, {s(sT+1)}, 8"); e(f"s_add_u32 {s(sT+2)}, {s(sT+2)}, {s(sT+3)}")
    e(f"s_lshl_b32 {s(sT+3)}, {s(sWAVE)}, 11"); e(f"s_add_u32 {s(sT+3)}, {s(sT+3)}, {WST}")
    e(f"s_mov_b32 m0, {s(sT+3)}")
    e(f"buffer_load_dwordx4 v11, {s(sSRD2,4)}, {s(sT+2)} offen lds")
    e(f"s_add_u32 {s(sT+3)}, {s(sT+3)}, 1024"); e(f"s_add_u32 {s(sT+2)}, {s(sT+2)}, {4*3072}")
    e(f"s_mov_b32 m0, {s(sT+3)}")
    e(f"buffer_load_dwordx4 v11, {s(sSRD2,4)}, {s(sT+2)} offen lds")
    e(f"s_branch {lj}")
    A.label(lo)
    e(f"s_sub_u32 {s(sT+1)}, s2, 192"); e(f"s_lshr_b32 {s(sT)}, {s(sT+1)}, 1"); e(f"s_and_b32 {s(sT+1)}, {s(sT+1)}, 1")
    e(f"s_mov_b32 {s(sSRD2)}, {s(sWO)}"); e(f"s_and_b32 {s(sSRD2+1)}, {s(sWO+1)}, 0xffff")
    e(f"s_mov_b32 {s(sSRD2+2)}, {512*512*2}"); e(f"s_mov_b32 {s(sSRD2+3)}, 0x20000")
    e("v_lshrrev_b32 v11, 5, v1"); e("v_lshlrev_b32 v11, 10, v11"); e("v_and_b32 v12, 31, v1"); e("v_lshl_add_u32 v11, v12, 4, v11")
    e(f"s_lshl_b32 {s(sT+2)}, {s(sT)}, 4"); e(f"s_lshl_b32 {s(sT+3)}, {s(sWAVE)}, 2"); e(f"s_add_u32 {s(sT+2)}, {s(sT+2)}, {s(sT+3)}")
    e(f"s_lshl_b32 {s(sT+2)}, {s(sT+2)}, 10"); e(f"s_lshl_b32 {s(sT+3)}, {s(sT+1)}, 9"); e(f"s_add_u32 {s(sT+2)}, {s(sT+2)}, {s(sT+3)}")
    e(f"s_lshl_b32 {s(sT+3)}, {s(sWAVE)}, 11"); e(f"s_add_u32 {s(sT+3)}, {s(sT+3)}, {WST}")
    e(f"s_mov_b32 m0, {s(sT+3)}")
    e(f"buffer_load_dwordx4 v11, {s(sSRD2,4)}, {s(sT+2)} offen lds")
    e(f"s_add_u32 {s(sT+3)}, {s(sT+3)}, 1024"); e(f"s_add_u32 {s(sT+2)}, {s(sT+2)}, 2048")
    e(f"s_mov_b32 m0, {s(sT+3)}")
    e(f"buffer_load_dwordx4 v11, {s(sSRD2,4)}, {s(sT+2)} offen lds")
    A.label(lj)
    e(f"s_mov_b32 s6, {s(sT)}"); e(f"s_mov_b32 s7, {s(sT+1)}")
    e(f"s_add_u32 {s(sT)}, {s(sPC)}, L_idx - L_pc"); e(f"s_addc_u32 {s(sT+1)}, {s(sPC+1)}, 0")
    e("v_and_b32 v10, 127, v0"); e("v_lshlrev_b32 v10, 4, v10")
    e(f"global_load_dwordx4 {v(IDX,4)}, v10, {s(sT,2)}")
    e(f"global_load_dwordx4 {v(IDX+4,4)}, v10, {s(sT,2)} offset:16")
    e(f"global_load_dwordx4 {v(IDX+8,4)}, v10, {s(sT,2)} offset:2048")
    e(f"global_load_dwordx4 {v(IDX+12,4)}, v10, {s(sT,2)} offset:2064")
    sent_regs(20)
    fill_g(PQ1, KVP1, F1, 20); fill_g(PQ2, KVP2, F2, 20)
    e("v_mov_b32 v12, 0")
    e(f"s_lshl_b32 {s(sT)}, s2, 6"); e(f"s_add_u32 {s(sT)}, {s(sT)}, {S3}")
    e("v_lshlrev_b32 v10, 2, v1")
    e("s_mov_b64 exec, 0xffff")
    e(f"buffer_store_dword v12, v10, {s(sSRD,4)}, {s(sT)} offen sc1")
    e(f"s_lshl_b32 {s(sT+1)}, s2, 12"); e(f"s_add_u32 {s(sT+1)}, {s(sT+1)}, {CNT}")
    e("s_cmp_lt_u32 s2, 16"); e(f"s_cselect_b32 {s(sT)}, {s(sT+1)}, {s(sT)}")
    e("s_mov_b64 exec, 1")
    e(f"buffer_store_dword v12, v10, {s(sSRD,4)}, {s(sT)} offen sc1")
    e("s_mov_b64 exec, -1")
    e(f"s_lshl_b32 {s(sT)}, {s(sCP)}, 2")
    e(f"v_lshl_add_u32 v10, v0, 13, {s(sT)}")
    for i in range(4): e(f"global_load_dword {v(XC+i)}, v10, {s(sU,2)} offset:{1024*i}")
    e("v_add_u32 v10, 4096, v10")
    for i in range(4): e(f"global_load_dword {v(XC+4+i)}, v10, {s(sU,2)} offset:{1024*i}")

def p0_stats():
    F = 64
    for i in range(8):
        e(f"v_lshlrev_b32 {v(F+2*i)}, 16, {v(XR+i)}"); e(f"v_and_b32 {v(F+2*i+1)}, {s(sHI)}, {v(XR+i)}")
    for i in range(4): e(f"v_pk_add_f32 {v(80+2*i,2)}, {v(F+4*i,2)}, {v(F+4*i+2,2)}")
    e(f"v_pk_mul_f32 v[88:89], {v(F,2)}, {v(F,2)}"); e(f"v_pk_mul_f32 v[90:91], {v(F+2,2)}, {v(F+2,2)}")
    e(f"v_pk_add_f32 v[80:81], v[80:81], v[82:83]"); e(f"v_pk_add_f32 v[84:85], v[84:85], v[86:87]")
    for i in range(2, 8): e(f"v_pk_fma_f32 {v(88+2*(i&1),2)}, {v(F+2*i,2)}, {v(F+2*i,2)}, {v(88+2*(i&1),2)}")
    e(f"v_pk_add_f32 v[80:81], v[80:81], v[84:85]"); e("v_pk_add_f32 v[88:89], v[88:89], v[90:91]")
    e("v_add_f32 v80, v80, v81"); e("v_add_f32 v82, v88, v89")
    for r_ in (8, 4, 2, 1):
        e(f"v_add_f32_dpp v80, v80, v80 row_ror:{r_} row_mask:0xf bank_mask:0xf")
        e(f"v_add_f32_dpp v82, v82, v82 row_ror:{r_} row_mask:0xf bank_mask:0xf")
    e("v_add_f32_dpp v80, v80, v80 row_bcast:15 row_mask:0xa bank_mask:0xf")
    e("v_add_f32_dpp v82, v82, v82 row_bcast:15 row_mask:0xa bank_mask:0xf")
    stats_final(80, 82, 84, 85, 86)
    e(f"s_lshl_b32 {s(sT)}, s2, 3"); e(f"s_lshl_b32 {s(sT+1)}, {s(sWAVE)}, 1"); e(f"s_add_u32 {s(sT)}, {s(sT)}, {s(sT+1)}")
    e(f"s_lshl_b32 {s(sT)}, {s(sT)}, 3"); e(f"s_add_u32 {s(sT)}, {s(sT)}, {S1}")
    e("v_lshrrev_b32 v10, 5, v1"); e(f"v_lshl_add_u32 v10, v10, 3, {s(sT)}")
    e(f"s_mov_b32 {s(sT+2)}, 0x00010000"); e(f"s_mov_b32 {s(sT+3)}, 0x00010000")
    e(f"s_mov_b64 exec, {s(sT+2,2)}")
    e(f"buffer_store_dwordx2 v[84:85], v10, {s(sSRD,4)}, 0 offen sc1")
    e("s_mov_b64 exec, -1")

def p0_wfrag():
    lo = lab("wo2"); lj = lab("wj2")
    e("s_cmp_ge_u32 s2, 192"); e(f"s_cbranch_scc1 {lo}")
    e("v_lshrrev_b32 v10, 2, v1"); e("v_lshlrev_b32 v10, 8, v10")
    e("v_and_b32 v11, 3, v1"); e("v_lshl_add_u32 v10, v11, 3, v10")
    e(f"s_lshl_b32 {s(sT)}, {s(sWAVE)}, 6"); e(f"s_add_u32 {s(sT)}, {s(sT)}, {WST}")
    e(f"v_add_u32 v10, {s(sT)}, v10")
    e("ds_read_b64_tr_b16 v[88:89], v10"); e("ds_read_b64_tr_b16 v[90:91], v10 offset:4096")
    e("ds_read_b64_tr_b16 v[92:93], v10 offset:32"); e("ds_read_b64_tr_b16 v[94:95], v10 offset:4128")
    e(f"s_lshr_b32 {s(sT)}, s7, 2")
    e(f"s_add_u32 {s(sT)}, {s(sT)}, 2"); e(f"s_cmp_ge_u32 {s(sT)}, 3")
    e(f"s_cselect_b32 {s(sT+1)}, 3, 0"); e(f"s_sub_u32 {s(sT)}, {s(sT)}, {s(sT+1)}")
    e(f"s_and_b32 {s(sT+1)}, s7, 3"); e(f"s_lshl_b32 {s(sT+1)}, {s(sT+1)}, 3")
    e(f"s_lshl_b32 {s(sT+2)}, {s(sWAVE)}, 1"); e(f"s_add_u32 {s(sT+1)}, {s(sT+1)}, {s(sT+2)}")
    e(f"s_mul_i32 {s(sT+1)}, {s(sT+1)}, 3"); e(f"s_add_u32 {s(sT+1)}, {s(sT+1)}, {s(sT)}")
    e(f"s_lshl_b32 {s(sT+1)}, {s(sT+1)}, 4"); e(f"s_add_u32 {s(sT+1)}, {s(sT+1)}, s6")
    e(f"s_lshl_b32 {s(sT+1)}, {s(sT+1)}, 10"); e(f"s_add_u32 {s(sT+1)}, {s(sT+1)}, {WFG}")
    e(f"s_add_u32 {s(sT+2)}, {s(sT+1)}, 49152")
    e(f"s_branch {lj}")
    A.label(lo)
    e("v_lshrrev_b32 v10, 5, v1"); e("v_lshlrev_b32 v10, 2, v10")
    e("v_bfe_u32 v11, v1, 2, 2"); e("v_add_u32 v10, v10, v11"); e("v_lshlrev_b32 v10, 9, v10")
    e("v_and_b32 v11, 1, v1"); e("v_lshl_add_u32 v10, v11, 5, v10")
    e("v_bfe_u32 v11, v1, 4, 1"); e("v_lshl_add_u32 v10, v11, 4, v10")
    e("v_bfe_u32 v11, v1, 1, 1"); e("v_lshl_add_u32 v10, v11, 3, v10")
    e(f"s_lshl_b32 {s(sT)}, {s(sWAVE)}, 7"); e(f"s_add_u32 {s(sT)}, {s(sT)}, {WST}")
    e(f"v_add_u32 v10, {s(sT)}, v10")
    e("ds_read_b64_tr_b16 v[88:89], v10"); e("ds_read_b64_tr_b16 v[90:91], v10 offset:4096")
    e("ds_read_b64_tr_b16 v[92:93], v10 offset:64"); e("ds_read_b64_tr_b16 v[94:95], v10 offset:4160")
    e(f"s_lshl_b32 {s(sT+1)}, s7, 3"); e(f"s_lshl_b32 {s(sT+2)}, {s(sWAVE)}, 1"); e(f"s_add_u32 {s(sT+1)}, {s(sT+1)}, {s(sT+2)}")
    e(f"s_lshl_b32 {s(sT+1)}, {s(sT+1)}, 5"); e(f"s_add_u32 {s(sT+1)}, {s(sT+1)}, s6")
    e(f"s_lshl_b32 {s(sT+1)}, {s(sT+1)}, 10"); e(f"s_add_u32 {s(sT+1)}, {s(sT+1)}, {WFO}")
    e(f"s_add_u32 {s(sT+2)}, {s(sT+1)}, 32768")
    A.label(lj)
    e("v_lshlrev_b32 v10, 4, v1")
    e("s_waitcnt lgkmcnt(0)")
    e(f"buffer_store_dwordx4 v[88:91], v10, {s(sSRD,4)}, {s(sT+1)} offen sc1")
    e(f"buffer_store_dwordx4 v[92:95], v10, {s(sSRD,4)}, {s(sT+2)} offen sc1")

def pw_multi(items, a2, b2):
    for (d, t, tm) in items:
        if t == 1:
            e(f"v_mov_b32 {v(tm)}, {v(a2)}"); e(f"v_fract_f32 {v(tm+1)}, {v(b2)}")
        else:
            c = f"{float(t)}" if t in (2, 4) else f"{f2u(float(t)):#x}"
            e(f"v_mul_f32 {v(tm)}, {c}, {v(a2)}"); e(f"v_mul_f32 {v(tm+1)}, {c}, {v(b2)}")
    for (d, t, tm) in items:
        e(f"v_exp_f32 {v(tm)}, {v(tm)}")
        if t != 1: e(f"v_fract_f32 {v(tm+1)}, {v(tm+1)}")
    for (d, t, tm) in items:
        e(f"v_cos_f32 {v(d)}, {v(tm+1)}"); e(f"v_sin_f32 {v(d+1)}, {v(tm+1)}")
    for (d, t, tm) in items:
        e(f"v_pk_mul_f32 {v(d,2)}, {v(d,2)}, {v(tm,2)} op_sel_hi:[1,0]")

W1, W4, W16, W64, W512 = 100, 102, 104, 106, 108
CH = {"X1": 112, "X2": 128, "Y1": 144, "Y2": 160}
def kgen_setup():
    for i in range(6): e(f"v_lshlrev_b32 {v(PRM+i)}, 16, {v(PRM+i)}")
    e(f"v_readfirstlane_b32 {s(sDSKV)}, {v(PRM+5)}")
    dt, are = 60, 61
    e(f"v_mul_f32 {v(dt)}, {s(sLOG2E)}, {v(PRM+4)}"); e(f"v_mul_f32 {v(are)}, {s(sLOG2E)}, {v(PRM)}")
    e(f"v_exp_f32 {v(dt)}, {v(dt)}"); e(f"v_exp_f32 {v(are)}, {v(are)}")
    e(f"v_cvt_pk_bf16_f32 {v(dt)}, {v(dt)}, {v(are)}")
    e(f"v_and_b32 {v(are)}, {s(sHI)}, {v(dt)}"); e(f"v_lshlrev_b32 {v(dt)}, 16, {v(dt)}")
    a2, b2 = 62, 63
    e(f"v_mul_f32 {v(a2)}, -{v(are)}, {v(dt)}"); e(f"v_mul_f32 {v(b2)}, {v(PRM+1)}, {v(dt)}")
    e(f"v_mul_f32 {v(a2)}, {s(sLOG2E)}, {v(a2)}"); e(f"v_mul_f32 {v(b2)}, 0.15915494, {v(b2)}")
    pw_multi([(W1, 1, 64), (W4, 4, 66), (W16, 16, 68), (W64, 64, 70), (W512, 512, 72)], a2, b2)
    e(f"v_add_f32 {v(dt)}, {v(dt)}, {v(dt)}")
    e(f"v_mul_f32 {v(CH['X1'])}, {v(PRM+2)}, {v(dt)}"); e(f"v_mul_f32 {v(CH['X1']+1)}, {v(PRM+3)}, {v(dt)}")
    for l in cmul(CH['X2'], CH['X1'], W512, 64): e(l)
    e(f"v_mov_b32 {v(CH['Y1'])}, 1.0"); e(f"v_mov_b32 {v(CH['Y1']+1)}, 0"); e(f"v_mov_b32 {v(CH['Y2'])}, 1.0"); e(f"v_mov_b32 {v(CH['Y2']+1)}, 0")
    e(f"v_lshrrev_b32 v96, 7, v0"); e(f"v_mul_u32_u24 v96, {TABC}, v96")
    e(f"v_and_b32 v97, 127, v0"); e(f"v_mul_u32_u24 v97, {TKP}, v97"); e("v_add_u32 v96, v96, v97")

def kgen_round(chains, rnd):
    Wof = {"X1": W16, "X2": W64, "Y1": W1, "Y2": W4}
    mbase = {"X1": 0, "X2": 32, "Y1": 64, "Y2": 80}
    tmp = {"X1": 64, "X2": 66, "Y1": 68, "Y2": 70}
    nval = {c: 8 for c in chains}
    if rnd == 3 and "X2" in chains: nval["X2"] = 1
    for i in range(1, 8):
        ls = [cmul(CH[c] + 2*i, CH[c] + 2*(i-1), Wof[c], tmp[c]) for c in chains if i < nval[c]]
        for k in range(2):
            for l in ls: e(l[k])
    P = {c: 72 + 8*k for k, c in enumerate(chains)}
    for c in chains:
        neg = "-" if c[0] == "X" else ""
        for k in range(4):
            i0, i1 = (2*k, 2*k+1) if nval[c] == 8 else (0, 0)
            e(f"v_cvt_pk_bf16_f32 {v(P[c]+k)}, {v(CH[c]+2*i0)}, {v(CH[c]+2*i1)}")
            e(f"v_cvt_pk_bf16_f32 {v(P[c]+4+k)}, {neg}{v(CH[c]+2*i0+1)}, {neg}{v(CH[c]+2*i1+1)}")
        off = (mbase[c] + 8*rnd) * 2
        e(f"ds_write_b128 v96, {v(P[c],4)} offset:{off}")
        e(f"ds_write_b128 v96, {v(P[c]+4,4)} offset:{off + 128*TKP}")
    ls = [cmul(CH[c], CH[c] + 14, Wof[c], tmp[c]) for c in chains if nval[c] == 8 and not ((c[0] == "Y" and rnd == 1) or rnd == 3)]
    for k in range(2):
        for l in ls: e(l[k])

def kgen_mm():
    e("s_waitcnt lgkmcnt(0)"); e("s_barrier")
    e(f"s_lshr_b32 {s(sT)}, {s(sWAVE)}, 1"); e(f"s_and_b32 {s(sT+1)}, {s(sWAVE)}, 1")
    e(f"s_mul_i32 {s(sT+2)}, {s(sT)}, {TABC}")
    e(f"s_lshl_b32 {s(sT+3)}, {s(sT+1)}, 5"); e(f"s_add_u32 {s(sT+3)}, {s(sT+3)}, 128"); e(f"s_add_u32 {s(sT+3)}, {s(sT+3)}, {s(sT+2)}")
    e(f"s_lshl_b32 {s(sT+4)}, {s(sT+1)}, 6"); e(f"s_add_u32 {s(sT+4)}, {s(sT+4)}, {s(sT+2)}")
    e("v_lshrrev_b32 v10, 2, v1"); e(f"v_mul_u32_u24 v10, {TKP}, v10"); e("v_and_b32 v11, 3, v1"); e("v_lshl_add_u32 v10, v11, 3, v10")
    e(f"v_add_u32 v11, {s(sT+3)}, v10"); e(f"v_add_u32 v12, {s(sT+4)}, v10")
    YF, XF = 64, 96
    for ks in range(8):
        o = ks * 32 * TKP
        e(f"ds_read_b64_tr_b16 {v(YF+4*ks,2)}, v11 offset:{o}"); e(f"ds_read_b64_tr_b16 {v(YF+4*ks+2,2)}, v11 offset:{o + 16*TKP}")
        for tl in range(2):
            e(f"ds_read_b64_tr_b16 {v(XF+32*tl+4*ks,2)}, v12 offset:{o + 32*tl}"); e(f"ds_read_b64_tr_b16 {v(XF+32*tl+4*ks+2,2)}, v12 offset:{o + 16*TKP + 32*tl}")
    e("v_lshrrev_b32 v13, 7, v0")
    e(f"v_mul_u32_u24 v14, {CTP}, v13"); e(f"v_add_u32 v14, {CT}, v14")
    e(f"v_mul_u32_u24 v15, {KCH}, v13"); e("v_and_b32 v13, 127, v0"); e("v_lshl_add_u32 v15, v13, 4, v15")
    for ks in range(8):
        e(f"s_waitcnt lgkmcnt({min(15, 6*(7-ks))})")
        for tl in range(2):
            c_ = "0" if ks == 0 else v(160 + 4*tl, 4)
            e(f"v_mfma_f32_16x16x32_bf16 {v(160+4*tl,4)}, {v(YF+4*ks,4)}, {v(XF+32*tl+4*ks,4)}, {c_}")
    e(f"s_mul_i32 {s(sT+2)}, {s(sT)}, {CTP}"); e(f"s_lshl_b32 {s(sT+3)}, {s(sT+1)}, 10"); e(f"s_add_u32 {s(sT+2)}, {s(sT+2)}, {s(sT+3)}")
    e(f"s_add_u32 {s(sT+2)}, {s(sT+2)}, {CT}")
    e("v_and_b32 v10, 15, v1"); e("v_lshlrev_b32 v10, 5, v10"); e("v_lshrrev_b32 v11, 4, v1"); e("v_lshl_add_u32 v10, v11, 3, v10")
    e(f"v_add_u32 v10, {s(sT+2)}, v10")
    e(f"s_mul_i32 {s(sT+2)}, {s(sT)}, {CTP}"); e(f"s_add_u32 {s(sT+2)}, {s(sT+2)}, {CT + 2048}")
    e(f"v_mov_b32 v11, {s(sT+2)}"); e("v_mov_b32 v12, 0")
    e("ds_write_b32 v11, v12")
    G = [96, 112]
    for task in range(2):
        I = IDX + 8 * task
        for k in range(8):
            e(f"v_add_u32_sdwa {v(G[task]+2*k)}, v14, {v(I+k)} dst_sel:DWORD dst_unused:UNUSED_PAD src0_sel:DWORD src1_sel:WORD_0")
            e(f"v_add_u32_sdwa {v(G[task]+2*k+1)}, v14, {v(I+k)} dst_sel:DWORD dst_unused:UNUSED_PAD src0_sel:DWORD src1_sel:WORD_1")
    for tl in range(2):
        e(f"v_cvt_pk_bf16_f32 {v(168+2*tl)}, {v(160+4*tl)}, {v(161+4*tl)}")
        e(f"v_cvt_pk_bf16_f32 {v(169+2*tl)}, {v(162+4*tl)}, {v(163+4*tl)}")
        e(f"ds_write_b64 v10, {v(168+2*tl,2)} offset:{512*tl}")
    e("s_waitcnt lgkmcnt(0)"); e("s_barrier")
    stamp("k_mm")
    for task in range(2):
        for k in range(16): e(f"ds_read_u16 {v(G[task]+k)}, {v(G[task]+k)}")
    for task in range(2):
        Dd, Dp, Sd, Sp = [(64, 72, 80, 88), (128, 136, 144, 152)][task]
        e(f"s_waitcnt lgkmcnt({15 if task == 0 else 8})")
        for k in range(8): e(f"v_lshl_or_b32 {v(Dd+k)}, {v(G[task]+2*k+1)}, 16, {v(G[task]+2*k)}")
        for k in range(1, 7): e(f"v_mov_b32 {v(Dp+k-1)}, {v(Dd+k)}")
        for k in range(7): e(f"v_alignbit_b32 {v(Sd+k)}, {v(Dd+k+1)}, {v(Dd+k)}, 16")
        for k in range(1, 7): e(f"v_alignbit_b32 {v(Sp+k-1)}, {v(Dd+k+1)}, {v(Dd+k)}, 16")
        for cp_ in range(8):
            ee = cp_ >> 1
            if cp_ % 2 == 0: src = Dd + ee if ee % 2 == 0 else Dp + ee - 1
            else: src = Sd + ee if ee % 2 == 0 else Sp + ee - 1
            e(f"ds_write_b128 v15, {v(src,4)} offset:{cp_*KCC + task*2048}")
    l0 = lab("zk")
    e(f"s_cmp_lg_u32 {s(sWAVE)}, 0"); e(f"s_cbranch_scc1 {l0}")
    e("v_lshrrev_b32 v10, 2, v1"); e(f"v_mul_u32_u24 v10, {KCC}, v10")
    e("v_and_b32 v11, 3, v1"); e("v_lshl_add_u32 v10, v11, 4, v10"); e("v_add_u32 v10, 4096, v10")
    e("v_mov_b32 v160, 0"); e("v_mov_b32 v161, 0"); e("v_mov_b32 v162, 0"); e("v_mov_b32 v163, 0")
    e("ds_write_b128 v10, v[160:163]")
    A.label(l0)

def gw_loads():
    out = []
    for f in range(48):
        out.append([f"buffer_load_dwordx4 {a(4*f,4)}, v18, {s(sSRD,4)}, {s(sW)} offen offset:{(f%4)*1024} sc1"] + ([f"s_add_u32 {s(sW)}, {s(sW)}, 4096"] if f % 4 == 3 else []))
    return out
def ow_loads():
    out = []
    for f in range(32):
        dst = a(192 + 4*f, 4) if f < 16 else v(192 + 4*(f-16), 4)
        out.append([f"buffer_load_dwordx4 {dst}, v18, {s(sSRD,4)}, {s(sW)} offen offset:{(f%4)*1024} sc1"] + ([f"s_add_u32 {s(sW)}, {s(sW)}, 4096"] if f % 4 == 3 else []))
    return out

vA, vB, vEP, vEU, vEX, vRW, vRR = 164, 165, 166, 167, 168, 169, 170
def conv_setup(layer):
    e(f"s_lshr_b32 s4, {s(sWAVE)}, 1"); e(f"s_and_b32 s5, {s(sWAVE)}, 1")
    e("v_and_b32 v10, 7, v1"); e("v_sub_u32 v10, 7, v10"); e(f"v_mul_u32_u24 v12, {KCC}, v10")
    e("v_bfe_u32 v10, v1, 5, 1"); e("v_lshlrev_b32 v13, 5, v10"); e("v_sub_u32 v12, v12, v13")
    e("v_bfe_u32 v11, v1, 4, 1"); e("v_lshl_add_u32 v12, v11, 4, v12")
    e("v_bfe_u32 v10, v1, 3, 1"); e("v_lshlrev_b32 v10, 4, v10"); e("v_sub_u32 v12, v12, v10")
    e(f"s_mul_i32 {s(sT+2)}, s4, {KCH}"); e(f"s_lshl_b32 {s(sT+3)}, s5, 8"); e(f"s_sub_u32 {s(sT+2)}, {s(sT+2)}, {s(sT+3)}")
    e(f"s_add_u32 {s(sT+2)}, {s(sT+2)}, {KC + 4080 - 3776}")
    e("v_and_b32 v10, 15, v1"); e("v_lshlrev_b32 v14, 5, v10"); e("v_sub_u32 v14, v14, v13"); e("v_lshl_add_u32 v14, v11, 4, v14")
    e(f"s_mul_i32 {s(sT+4)}, s4, {UP}"); e(f"s_sub_u32 {s(sT+4)}, {s(sT+4)}, {s(sT+3)}")
    e(f"s_add_u32 {s(sT+4)}, {s(sT+4)}, {U0 + 512 - 192}")
    e(f"v_add_u32 v16, {s(sT+2)}, v12"); e(f"v_add_u32 v17, {s(sT+4)}, v14")
    e("v_and_b32 v56, 15, v1"); e("v_lshlrev_b32 v56, 5, v56"); e("v_lshrrev_b32 v13, 4, v1"); e("v_lshl_add_u32 v56, v13, 3, v56")
    e(f"s_lshl_b32 {s(sT+2)}, s5, 11"); e(f"v_add_u32 v56, {s(sT+2)}, v56")
    e(f"s_mul_i32 {s(sT+3)}, s4, {UP}"); e(f"s_add_u32 {s(sT+3)}, {s(sT+3)}, {U0+512}"); e(f"v_add_u32 v57, {s(sT+3)}, v56")
    e(f"s_lshl_b32 {s(sT+3)}, s4, 12"); e(f"s_add_u32 {s(sT+3)}, {s(sT+3)}, {X0}"); e(f"v_add_u32 v58, {s(sT+3)}, v56")
    e(f"s_lshl_b32 {s(sT+2)}, {s(sWAVE)}, 12"); e(f"s_add_u32 {s(sT+2)}, {s(sT+2)}, {RED}"); e(f"v_lshl_add_u32 v59, v1, 4, {s(sT+2)}")
    e(f"s_xor_b32 {s(sT+2)}, {s(sWAVE)}, 1"); e(f"s_lshl_b32 {s(sT+2)}, {s(sT+2)}, 12"); e(f"s_add_u32 {s(sT+2)}, {s(sT+2)}, {RED}")
    e(f"v_lshl_add_u32 v60, v1, 4, {s(sT+2)}")
    xo = XT1 if layer == 1 else XT3
    e(f"s_lshl_b32 s6, {s(sCP)}, 1"); e("s_add_u32 s6, s6, s4"); e(f"s_mul_i32 s6, s6, {PITCH}"); e(f"s_add_u32 s6, s6, {xo}")
    e("v_lshlrev_b32 v10, 4, v0"); e(f"v_add_u32 v61, {U0 + 512}, v10"); e(f"v_add_u32 v62, {X0}, v10")
    e("v_lshlrev_b32 v63, 6, v0")
    l0 = lab("zp")
    e(f"s_cmp_lg_u32 {s(sWAVE)}, 1"); e(f"s_cbranch_scc1 {l0}")
    e("v_lshrrev_b32 v11, 5, v1"); e(f"v_mul_u32_u24 v11, {UP}, v11"); e("v_and_b32 v12, 31, v1"); e("v_lshl_add_u32 v11, v12, 4, v11")
    e(f"v_add_u32 v11, {U0}, v11")
    e("v_mov_b32 v12, 0"); e("v_mov_b32 v13, 0"); e("v_mov_b32 v14, 0"); e("v_mov_b32 v15, 0")
    e("ds_write_b128 v11, v[12:15]")
    A.label(l0)
    XX = 40; F = 64
    if layer == 1:
        e(f"s_mov_b32 {s(sT)}, 0x05040100"); e(f"s_mov_b32 {s(sT+1)}, 0x07060302")
        for j in range(4):
            e(f"v_perm_b32 {v(XX+j)}, {v(XC+2*j+1)}, {v(XC+2*j)}, {s(sT)}")
            e(f"v_perm_b32 {v(XX+4+j)}, {v(XC+2*j+1)}, {v(XC+2*j)}, {s(sT+1)}")
        for i in range(8):
            e(f"v_lshlrev_b32 {v(F+2*i)}, 16, {v(XC+i)}"); e(f"v_and_b32 {v(F+2*i+1)}, {s(sHI)}, {v(XC+i)}")
        e(f"ds_write_b128 v62, {v(XX,4)}"); e(f"ds_write_b128 v62, {v(XX+4,4)} offset:4096")
        e("v_lshlrev_b32 v18, 4, v1")
        e(f"s_lshl_b32 {s(sW)}, {s(sJ)}, 2"); e(f"s_add_u32 {s(sW)}, {s(sW)}, {s(sWAVE)}")
        e(f"s_mul_i32 {s(sW)}, {s(sW)}, 49152"); e(f"s_add_u32 {s(sW)}, {s(sW)}, {WFG}")
    else:
        e(f"s_mul_i32 s7, {s(sCP)}, {2*PITCH}"); e(f"s_add_u32 s7, s7, {X2T}")

def conv(layer):
    XX = 40; SB = 24; F = 64; UU = 48
    so = S1 if layer == 1 else S3
    e(f"s_mov_b32 {s(sT)}, {so}")
    if layer == 2:
        e("v_lshlrev_b32 v10, 4, v0")
        e(f"buffer_load_dwordx4 {v(XX,4)}, v10, {s(sSRD,4)}, s7 offen sc1")
        e(f"buffer_load_dwordx4 {v(XX+4,4)}, v10, {s(sSRD,4)}, s7 offen offset:{PITCH - 4096 + 4095 - 4095} sc1") if False else None
        e(f"s_add_u32 {s(sT+1)}, s7, {PITCH}")
        e(f"buffer_load_dwordx4 {v(XX+4,4)}, v10, {s(sSRD,4)}, {s(sT+1)} offen sc1")
    for i in range(4): e(f"buffer_load_dwordx4 {v(SB+4*i,4)}, v63, {s(sSRD,4)}, {s(sT)} offen offset:{16*i} sc1")
    if layer == 2:
        e("s_waitcnt vmcnt(4)")
        for i in range(8):
            j, hi = i >> 1, i & 1
            for c in range(2):
                if hi: e(f"v_and_b32 {v(F+2*i+c)}, {s(sHI)}, {v(XX+4*c+j)}")
                else: e(f"v_lshlrev_b32 {v(F+2*i+c)}, 16, {v(XX+4*c+j)}")
        e(f"ds_write_b128 v62, {v(XX,4)}"); e(f"ds_write_b128 v62, {v(XX+4,4)} offset:4096")
    e("s_waitcnt vmcnt(0)")
    stamp(f"c{layer}_ld")
    if layer == 2:
        T = 80
        for k in range(4):
            b = SB + 4*k; t = T + 4*k
            e(f"v_pk_mul_f32 {v(b,2)}, {v(b,2)}, {s(sINV512,2)}"); e(f"v_pk_mul_f32 {v(b+2,2)}, {v(b+2,2)}, {s(sINV512,2)}")
        for k in range(4):
            b = SB + 4*k
            e(f"v_fma_f32 {v(b+1)}, -{v(b)}, {v(b)}, {v(b+1)}"); e(f"v_fma_f32 {v(b+3)}, -{v(b+2)}, {v(b+2)}, {v(b+3)}")
        for k in range(4):
            b = SB + 4*k
            e(f"v_max_f32 {v(b+1)}, 0, {v(b+1)}"); e(f"v_max_f32 {v(b+3)}, 0, {v(b+3)}")
        for i in range(8):
            b = SB + 2*i
            e(f"v_cvt_pk_bf16_f32 {v(T+i)}, {v(b)}, {v(b+1)}")
        for i in range(8):
            b = SB + 2*i
            e(f"v_lshlrev_b32 {v(b)}, 16, {v(T+i)}"); e(f"v_and_b32 {v(b+1)}, {s(sHI)}, {v(T+i)}")
        for i in range(8): e(f"v_add_f32 {v(SB+2*i+1)}, 0x3727c5ac, {v(SB+2*i+1)}")
        for k in range(4): e(f"v_cvt_pk_bf16_f32 {v(T+k)}, {v(SB+4*k+1)}, {v(SB+4*k+3)}")
        for k in range(4):
            e(f"v_lshlrev_b32 {v(SB+4*k+1)}, 16, {v(T+k)}"); e(f"v_and_b32 {v(SB+4*k+3)}, {s(sHI)}, {v(T+k)}")
        for i in range(8): e(f"v_sqrt_f32 {v(SB+2*i+1)}, {v(SB+2*i+1)}")
        for k in range(4): e(f"v_cvt_pk_bf16_f32 {v(T+k)}, {v(SB+4*k+1)}, {v(SB+4*k+3)}")
        for k in range(4):
            e(f"v_lshlrev_b32 {v(SB+4*k+1)}, 16, {v(T+k)}"); e(f"v_and_b32 {v(SB+4*k+3)}, {s(sHI)}, {v(T+k)}")
        for i in range(8): e(f"v_rcp_f32 {v(SB+2*i+1)}, {v(SB+2*i+1)}")
    for i in range(8):
        e(f"v_pk_add_f32 {v(F+2*i,2)}, {v(F+2*i,2)}, {v(SB+2*i,2)} op_sel_hi:[1,0] neg_lo:[0,1] neg_hi:[0,1]")
    for i in range(8): e(f"v_cvt_pk_bf16_f32 {v(80+i)}, {v(F+2*i)}, {v(F+2*i+1)}")
    for i in range(8):
        e(f"v_lshlrev_b32 {v(F+2*i)}, 16, {v(80+i)}"); e(f"v_and_b32 {v(F+2*i+1)}, {s(sHI)}, {v(80+i)}")
    for i in range(8):
        e(f"v_pk_mul_f32 {v(F+2*i,2)}, {v(F+2*i,2)}, {v(SB+2*i,2)} op_sel:[0,1] op_sel_hi:[1,1]")
    for c in range(2):
        for j in range(4): e(f"v_cvt_pk_bf16_f32 {v(UU+4*c+j)}, {v(F+4*j+c)}, {v(F+4*j+2+c)}")
        e(f"ds_write_b128 v61, {v(UU+4*c,4)} offset:{UP*c}")
    trick = gw_loads() if layer == 1 else []
    e("s_waitcnt lgkmcnt(0)"); e("s_barrier")
    stamp(f"c{layer}_pro")
    vA, vB = 16, 17
    ACC = 24; SET = [64, 128]
    def loads(tp, st):
        out = []
        for q in range(8): out.append(f"ds_read_b128 {v(SET[st]+4*q,4)}, {v(vA)} offset:{64*(3 - tp) + 512*(7 - q)}")
        for tau in range(8): out.append(f"ds_read_b128 {v(SET[st]+32+4*tau,4)}, {v(vB)} offset:{512*tau + 64*(3 - tp)}")
        order = [8, 0, 9, 1, 10, 2, 11, 3, 12, 4, 13, 5, 14, 6, 15, 7]
        return [out[i] for i in order]
    for l in loads(0, 0): e(l)
    ti = 0; nm = 0
    TRK = int(OPTS.get("trk", 4))
    for tp in range(4):
        st = tp & 1
        nxt = loads(tp + 1, st ^ 1) if tp < 3 else []
        n = 0
        for T in range(8):
            if tp == 0: e(f"s_waitcnt lgkmcnt({min(15, 16 - (2*T+2) + min(n, len(nxt)))})")
            elif T == 0: e("s_waitcnt lgkmcnt(0)")
            for q in range(T + 1):
                c_ = "0" if (tp == 0 and q == 0) else v(ACC+4*T, 4)
                e(f"v_mfma_f32_16x16x32_bf16 {v(ACC+4*T,4)}, {v(SET[st]+4*q,4)}, {v(SET[st]+32+4*(T-q),4)}, {c_}")
                nm += 1
                if not (tp == 0 and T < 3) and n < len(nxt):
                    e(nxt[n]); n += 1
                if ti < len(trick) and nm % TRK == 0:
                    for l in trick[ti]: e(l)
                    ti += 1
        while n < len(nxt): e(nxt[n]); n += 1
    stamp(f"c{layer}_mm")
    lp1 = lab("p1"); lj = lab("pj")
    for k in range(4):
        e(f"ds_read_b64 {v(64+2*k,2)}, v57 offset:{512*k}"); e(f"ds_read_b64 {v(72+2*k,2)}, v58 offset:{512*k}")
    e("s_cmp_eq_u32 s5, 1"); e(f"s_cbranch_scc1 {lp1}")
    for k in range(4): e(f"ds_write_b128 v59, {v(ACC+16+4*k,4)} offset:{1024*k}")
    e(f"s_branch {lj}")
    A.label(lp1)
    e("s_nop 7")
    for k in range(4): e(f"ds_write_b128 v59, {v(ACC+4*k,4)} offset:{1024*k}")
    for k in range(8): e(f"v_mov_b64 {v(ACC+2*k,2)}, {v(ACC+16+2*k,2)}")
    A.label(lj)
    e(f"s_mov_b32 {s(sT+4)}, {s(sDSKV)}"); e(f"s_mov_b32 {s(sT+5)}, {s(sDSKV)}")
    e("s_waitcnt lgkmcnt(4)")
    for k in range(4):
        for j in range(2):
            e(f"v_lshlrev_b32 {v(96+4*k+2*j)}, 16, {v(64+2*k+j)}"); e(f"v_and_b32 {v(97+4*k+2*j)}, {s(sHI)}, {v(64+2*k+j)}")
            e(f"v_lshlrev_b32 {v(112+4*k+2*j)}, 16, {v(72+2*k+j)}"); e(f"v_and_b32 {v(113+4*k+2*j)}, {s(sHI)}, {v(72+2*k+j)}")
    e("s_waitcnt lgkmcnt(0)"); e("s_barrier")
    for k in range(4): e(f"ds_read_b128 {v(80+4*k,4)}, v60 offset:{1024*k}")
    for k in range(8):
        e(f"v_pk_fma_f32 {v(96+2*k,2)}, {v(96+2*k,2)}, {s(sT+4,2)}, {v(112+2*k,2)}")
    for k in range(8):
        e(f"v_pk_add_f32 {v(96+2*k,2)}, {v(96+2*k,2)}, {v(ACC+2*k,2)}")
    for k in range(4):
        e(f"s_waitcnt lgkmcnt({3-k})")
        e(f"v_pk_add_f32 {v(96+4*k,2)}, {v(96+4*k,2)}, {v(80+4*k,2)}"); e(f"v_pk_add_f32 {v(98+4*k,2)}, {v(98+4*k,2)}, {v(82+4*k,2)}")
        e(f"v_cvt_pk_bf16_f32 {v(64+2*k)}, {v(96+4*k)}, {v(97+4*k)}"); e(f"v_cvt_pk_bf16_f32 {v(65+2*k)}, {v(98+4*k)}, {v(99+4*k)}")
        e(f"buffer_store_dwordx2 {v(64+2*k,2)}, v56, {s(sSRD,4)}, s6 offen offset:{512*k} sc1")
    return trick[ti:]

NCSK, NCSV, NCSQ = 2, 4, 6
XRES = 184
def ones_regs(r):
    for i in range(4): e(f"v_mov_b32 {v(r+i)}, 0x3f803f80")
def colsums():
    ON = 152
    for ks in range(16):
        c0 = lambda r: "0" if ks == 0 else v(r, 4)
        e(f"v_mfma_f32_16x16x32_bf16 v[28:31], {v(ON,4)}, {a((0*16+ks)*4,4)}, {c0(28)}")
        e(f"v_mfma_f32_16x16x32_bf16 v[32:35], {v(ON,4)}, {a((1*16+ks)*4,4)}, {c0(32)}")
        e(f"v_mfma_f32_16x16x32_bf16 v[36:39], {a((2*16+ks)*4,4)}, {v(ON,4)}, {c0(36)}")
    e(f"v_sub_f32 {v(NCSK)}, 0, v28"); e(f"v_sub_f32 {v(NCSK+1)}, 0, v28")
    e(f"v_sub_f32 {v(NCSV)}, 0, v32"); e(f"v_sub_f32 {v(NCSV+1)}, 0, v32")
    for i in range(4): e(f"v_sub_f32 {v(NCSQ+i)}, 0, {v(36+i)}")

TA = 12
gXE, gXO, gSW, gS4, gQA, gPQ, gKV = 156, 157, 158, 160, 164, 168, 169
def g_setup(layer):
    xt = XT1 if layer == 1 else XT3
    e("v_lshrrev_b32 v10, 3, v1"); e(f"v_mul_u32_u24 v10, {PITCH}, v10")
    e("v_bfe_u32 v11, v1, 4, 2"); e("v_lshlrev_b32 v11, 1, v11"); e("v_and_b32 v16, 7, v1"); e("v_xor_b32 v11, v11, v16")
    e("v_lshl_add_u32 v10, v11, 4, v10")
    e(f"s_lshl_b32 {s(sT)}, {s(sRS)}, 7"); e(f"v_add_u32 v19, {s(sT)}, v10")
    e(f"s_mul_i32 s4, {s(sWAVE)}, {32*PITCH}"); e(f"s_add_u32 s4, s4, {xt}")
    e(f"s_lshl_b32 s5, {s(sWAVE)}, 12"); e(f"s_add_u32 s5, s5, {AT}")
    e("v_lshrrev_b32 v10, 2, v1"); e("v_lshlrev_b32 v10, 7, v10"); e("v_and_b32 v11, 3, v1"); e("v_lshl_add_u32 v10, v11, 3, v10")
    e(f"v_add_u32 v10, {AT}, v10"); e("v_bfe_u32 v11, v1, 3, 2")
    for j in range(4):
        e(f"s_add_u32 {s(sT)}, {s(sWAVE)}, {j}"); e(f"s_and_b32 {s(sT)}, {s(sT)}, 3"); e(f"s_lshl_b32 {s(sM+j)}, {s(sT)}, 6")
        e(f"v_xor_b32 v16, {s(sT)}, v11"); e(f"v_lshl_add_u32 {v(TA+j)}, v16, 5, v10")
    ones_regs(152)
    e("v_lshrrev_b32 v11, 5, v1"); e("v_lshlrev_b32 v11, 4, v11"); e("v_bfe_u32 v16, v1, 2, 2"); e("v_add_u32 v11, v11, v16")
    e(f"s_lshl_b32 {s(sT)}, {s(sJO)}, 7"); e(f"s_lshl_b32 {s(sT+1)}, {s(sWAVE)}, 5"); e(f"s_add_u32 {s(sT)}, {s(sT)}, {s(sT+1)}")
    e(f"v_add_u32 v11, {s(sT)}, v11"); e("v_lshlrev_b32 v11, 7, v11")
    e("v_and_b32 v16, 3, v1"); e("v_lshl_add_u32 v11, v16, 3, v11"); e(f"v_add_u32 v11, {AT}, v11")
    e(f"s_and_b32 {s(sT)}, {s(sJ)}, 1"); e(f"s_lshl_b32 {s(sT)}, {s(sT)}, 1")
    e("v_bfe_u32 v16, v1, 4, 1"); e(f"v_add_u32 v16, {s(sT)}, v16"); e("v_bfe_u32 v17, v1, 3, 1"); e("v_xor_b32 v16, v16, v17")
    e(f"v_lshl_add_u32 {v(gXE)}, v16, 5, v11"); e("v_xor_b32 v16, 2, v16"); e(f"v_lshl_add_u32 {v(gXO)}, v16, 5, v11")
    e("v_and_b32 v10, 15, v1"); e("v_lshlrev_b32 v10, 2, v10"); e(f"v_add_u32 v11, {ST}, v10")
    e(f"s_lshl_b32 {s(sT)}, {s(sWAVE)}, 6"); e(f"v_add_u32 {v(gSW)}, {s(sT)}, v11")
    e("v_lshrrev_b32 v10, 4, v1"); e("v_lshlrev_b32 v10, 4, v10"); e(f"v_add_u32 v10, {ST}, v10")
    for j in range(4):
        e(f"v_add_u32 {v(gS4+j)}, {s(sM+j)}, v10"); e(f"v_add_u32 {v(gQA+j)}, {s(sM+j)}, v11")
    e("v_and_b32 v10, 15, v1"); e("v_lshlrev_b32 v10, 5, v10"); e("v_lshrrev_b32 v11, 4, v1"); e(f"v_lshl_add_u32 {v(gPQ)}, v11, 3, v10")
    e(f"v_lshlrev_b32 {v(gKV)}, 2, v1")
    kvp_addr(KVP1 if layer == 1 else KVP2, 6)
    pq_addr(PQ1 if layer == 1 else PQ2, 7)
    e("v_and_b32 v10, 3, v1")
    e(f"v_cmp_eq_u32 {s(sM+4,2)}, 1, v10"); e(f"v_cmp_eq_u32 {s(sM+6,2)}, 2, v10"); e(f"v_cmp_eq_u32 s[2:3], 3, v10") if False else None
    if layer == 1:
        e("v_lshlrev_b32 v18, 4, v1")
        e(f"s_lshl_b32 {s(sW)}, {s(sJO)}, 2"); e(f"s_add_u32 {s(sW)}, {s(sW)}, {s(sWAVE)}")
        e(f"s_lshl_b32 {s(sW)}, {s(sW)}, 15"); e(f"s_add_u32 {s(sW)}, {s(sW)}, {WFO}")

def gphase(layer):
    kvp = KVP1 if layer == 1 else KVP2
    ff = F1 if layer == 1 else F2
    def dma(c, i):
        return [f"s_add_u32 {s(sT)}, s4, {(128*c + 8*i)*PITCH}", f"s_add_u32 m0, s5, {c*16384 + i*1024}",
                f"buffer_load_dwordx4 v19, {s(sSRD,4)}, {s(sT)} offen sc1 lds"]
    for c in range(4):
        for i in range(4):
            for l in dma(c, i): e(l)
    XF = [64, 80]
    AK, AV, AQ, GR, RS_, ON = 96, 112, 128, 144, 148, 152
    trick = ow_loads() if layer == 1 else []
    def reads(ks):
        out = []
        for j in range(4):
            out.append(f"ds_read_b64_tr_b16 {v(XF[ks&1]+4*j,2)}, {v(TA+j)} offset:{ks*4096}")
            out.append(f"ds_read_b64_tr_b16 {v(XF[ks&1]+4*j+2,2)}, {v(TA+j)} offset:{ks*4096+2048}")
        return out
    stamp(f"g{layer}_iss")
    e("s_waitcnt vmcnt(12)"); e("s_barrier")
    stamp(f"g{layer}_ld0")
    for l in reads(0): e(l)
    ti = 0; nw = 0; nm = 0
    TRG = int(OPTS.get("trg", 6))
    for ks in range(16):
        nxt = []
        if ks < 15:
            if (ks + 1) % 4 == 0:
                c = (ks + 1) // 4
                e(f"s_waitcnt vmcnt({min(63, 4*(3-c) + nw)})"); e("s_barrier")
            nxt = reads(ks + 1)
        x = XF[ks & 1]
        e("s_waitcnt lgkmcnt(0)")
        z = lambda r: "0" if ks == 0 else v(r, 4)
        mf = []
        for j in range(4):
            mf.append(f"v_mfma_f32_16x16x32_bf16 {v(AK+4*j,4)}, {v(x+4*j,4)}, {a((0*16+ks)*4,4)}, {z(AK+4*j)}")
            mf.append(f"v_mfma_f32_16x16x32_bf16 {v(AV+4*j,4)}, {v(x+4*j,4)}, {a((1*16+ks)*4,4)}, {z(AV+4*j)}")
            mf.append(f"v_mfma_f32_16x16x32_bf16 {v(AQ+4*j,4)}, {a((2*16+ks)*4,4)}, {v(x+4*j,4)}, {z(AQ+4*j)}")
        mf.insert(1, f"v_mfma_f32_16x16x32_bf16 {v(GR,4)}, {v(x,4)}, {v(x,4)}, {z(GR)}")
        mf.insert(3, f"v_mfma_f32_16x16x32_bf16 {v(RS_,4)}, {v(ON,4)}, {v(x,4)}, {z(RS_)}")
        for m_i, m_ in enumerate(mf):
            e(m_); nm += 1
            if m_i < len(nxt): e(nxt[m_i])
            if ks >= 4 and ti < len(trick) and nm % TRG == 0:
                for l in trick[ti]: e(l)
                ti += 1; nw += 1
    rest = trick[ti:]
    stamp(f"g{layer}_mm")
    for jj in range(4):
        e(f"ds_read_b64_tr_b16 {v(XRES+2*jj,2)}, {v(gXE + (jj & 1))} offset:{512*jj}")
    e("v_and_b32 v10, 3, v1")
    e(f"v_cmp_eq_u32 {s(sM+4,2)}, 1, v10"); e(f"v_cmp_eq_u32 {s(sM+6,2)}, 2, v10"); e("v_cmp_eq_u32 vcc, 3, v10")
    e(f"v_cndmask_b32 v11, {v(GR)}, {v(GR+1)}, {s(sM+4,2)}")
    e(f"v_cndmask_b32 v11, v11, {v(GR+2)}, {s(sM+6,2)}")
    e(f"v_cndmask_b32 v11, v11, {v(GR+3)}, vcc")
    stats_final(RS_, 11, 16, 17, 20)
    e("v_mul_f32 v16, v16, v17")
    e(f"s_mov_b32 {s(sT+2)}, 0x00f0000f"); e(f"s_mov_b32 {s(sT+3)}, 0xf0000f00")
    e(f"s_mov_b64 exec, {s(sT+2,2)}")
    e(f"ds_write_b32 {v(gSW)}, v17"); e(f"ds_write_b32 {v(gSW)}, v16 offset:256")
    e("s_mov_b64 exec, -1")
    R4, M4, RQ, MQ = 24, 40, 56, 64
    e("s_waitcnt lgkmcnt(0)"); e("s_barrier")
    for j in range(4):
        e(f"ds_read_b128 {v(R4+4*j,4)}, {v(gS4+j)}"); e(f"ds_read_b128 {v(M4+4*j,4)}, {v(gS4+j)} offset:256")
    for j in range(4):
        e(f"ds_read_b32 {v(RQ+2*j)}, {v(gQA+j)}"); e(f"ds_read_b32 {v(MQ+2*j)}, {v(gQA+j)} offset:256")
    stamp(f"g{layer}_st")
    PK, VV = 72, 80
    def phi2(items):
        for (rp, acc, mp, ncs, dst, T, bro) in items:
            e(f"v_pk_fma_f32 {v(T,2)}, {v(mp,2)}, {v(ncs,2)}, {s(sEPS6,2)}" + (" op_sel_hi:[0,1,1]" if bro else ""))
        for (rp, acc, mp, ncs, dst, T, bro) in items:
            e(f"v_pk_fma_f32 {v(T,2)}, {v(rp,2)}, {v(acc,2)}, {v(T,2)}" + (" op_sel_hi:[0,1,1]" if bro else ""))
        for (rp, acc, mp, ncs, dst, T, bro) in items: e(f"v_pk_mul_f32 {v(T+2,2)}, {v(T,2)}, {s(sLOG2E,2)}")
        for (rp, acc, mp, ncs, dst, T, bro) in items:
            e(f"v_exp_f32 {v(T+2)}, {v(T+2)} clamp"); e(f"v_exp_f32 {v(T+3)}, {v(T+3)} clamp")
        for (rp, acc, mp, ncs, dst, T, bro) in items:
            e(f"v_max_f32 {v(T)}, {s(sEPS6)}, {v(T)}"); e(f"v_max_f32 {v(T+1)}, {s(sEPS6)}, {v(T+1)}")
        for (rp, acc, mp, ncs, dst, T, bro) in items: e(f"v_pk_add_f32 {v(T,2)}, {v(T,2)}, {v(T+2,2)}")
        for (rp, acc, mp, ncs, dst, T, bro) in items: e(f"v_cvt_pk_bf16_f32 {v(dst)}, {v(T)}, {v(T+1)}")
    for j in range(4):
        e(f"s_waitcnt lgkmcnt({min(15, 8 + 2*(3-j))})")
        items = [(R4+4*j+2*hp, AK+4*j+2*hp, M4+4*j+2*hp, NCSK, PK+2*j+hp, 88 + 4*hp, False) for hp in range(2)]
        for hp in range(2):
            T = 104 + 2*hp if False else 172 + 2*hp
            e(f"v_pk_mul_f32 {v(T,2)}, {v(M4+4*j+2*hp,2)}, {v(NCSV,2)}")
        for hp in range(2):
            T = 172 + 2*hp
            e(f"v_pk_fma_f32 {v(T,2)}, {v(R4+4*j+2*hp,2)}, {v(AV+4*j+2*hp,2)}, {v(T,2)}")
        phi2(items)
        for hp in range(2):
            T = 172 + 2*hp
            e(f"v_cvt_pk_bf16_f32 {v(VV+2*j+hp)}, {v(T)}, {v(T+1)}")
        if j == 1:
            e(f"v_mfma_f32_16x16x32_bf16 {v(GR,4)}, {v(VV,4)}, {v(PK,4)}, 0")
            e(f"v_mfma_f32_16x16x32_bf16 {v(RS_,4)}, {v(ON,4)}, {v(PK,4)}, 0")
    e(f"v_mfma_f32_16x16x32_bf16 {v(GR,4)}, {v(VV+4,4)}, {v(PK+4,4)}, {v(GR,4)}")
    e(f"v_mfma_f32_16x16x32_bf16 {v(RS_,4)}, {v(ON,4)}, {v(PK+4,4)}, {v(RS_,4)}")
    PQR = 96
    e("s_waitcnt lgkmcnt(0)")
    phi2([(RQ, AQ+2*hp, MQ, NCSQ+2*hp, PQR+hp, 88 + 4*hp, True) for hp in range(2)])
    for i in range(4):
        e(f"buffer_store_dword {v(GR+i)}, {v(gKV)}, {s(sSRD,4)}, s6 offen offset:{256*i} sc1")
    e("s_mov_b64 exec, 0xffff")
    e(f"buffer_store_dword {v(RS_)}, {v(gKV)}, {s(sSRD,4)}, s6 offen offset:1024 sc1")
    e("s_mov_b64 exec, -1")
    stamp(f"g{layer}_kv")
    for j in range(1, 4):
        phi2([(RQ+2*j, AQ+4*j+2*hp, MQ+2*j, NCSQ+2*hp, PQR+2*j+hp, 88 + 4*hp, True) for hp in range(2)])
    for j in range(4):
        e(f"s_lshl_b32 {s(sT+2)}, {s(sM+j)}, 3"); e(f"s_add_u32 {s(sT+2)}, {s(sT+2)}, s7")
        e(f"buffer_store_dwordx2 {v(PQR+2*j,2)}, {v(gPQ)}, {s(sSRD,4)}, {s(sT+2)} offen sc1")
    for ins in rest:
        for l in ins: e(l)
    lred = lab("red")
    e(f"s_cmp_lg_u32 {s(sWAVE)}, 3"); e(f"s_cbranch_scc1 {lred}")
    e(f"s_lshl_b32 {s(sT)}, {s(sJ)}, 5"); e(f"s_mul_i32 {s(sT)}, {s(sT)}, {KVW}")
    e(f"s_lshr_b32 {s(sT+1)}, {s(sRS)}, 3"); e(f"s_mul_i32 {s(sT+1)}, {s(sT+1)}, {KVH}"); e(f"s_add_u32 {s(sT)}, {s(sT)}, {s(sT+1)}")
    e(f"s_add_u32 {s(sT)}, {s(sT)}, {kvp}")
    e(f"s_and_b32 {s(sT+2)}, {s(sRS)}, 7"); e(f"s_lshl_b32 {s(sT+3)}, {s(sT+2)}, 7")
    e("v_lshrrev_b32 v10, 3, v1"); e(f"v_mul_u32_u24 v10, {KVW}, v10"); e("v_and_b32 v11, 7, v1"); e("v_lshl_add_u32 v11, v11, 4, v10")
    e(f"v_add_u32 v11, {s(sT+3)}, v11")
    e("v_and_b32 v12, 3, v1"); e("v_lshl_add_u32 v12, v12, 4, v10"); e("v_add_u32 v12, 1024, v12")
    lr = lab("rp"); lg = lab("rg")
    A.label(lr)
    for i in range(4):
        e(f"s_add_u32 {s(sT+4)}, {s(sT)}, {8*i*KVW}")
        e(f"buffer_load_dwordx4 {v(24+4*i,4)}, v11, {s(sSRD,4)}, {s(sT+4)} offen sc1")
        e(f"buffer_load_dwordx4 {v(40+4*i,4)}, v12, {s(sSRD,4)}, {s(sT+4)} offen sc1")
    e("s_waitcnt vmcnt(0)")
    maxtree([24, 28, 32, 36, 40, 44, 48, 52], 56)
    e("v_cmp_eq_u32 vcc, -1, v56")
    spin_check(lr, lg)
    stamp(f"r{layer}_ok")
    for b in (24, 40):
        for h2 in range(2):
            e(f"v_pk_add_f32 {v(b+2*h2,2)}, {v(b+2*h2,2)}, {v(b+4+2*h2,2)}"); e(f"v_pk_add_f32 {v(b+8+2*h2,2)}, {v(b+8+2*h2,2)}, {v(b+12+2*h2,2)}")
    for b in (24, 40):
        for h2 in range(2):
            e(f"v_pk_add_f32 {v(b+2*h2,2)}, {v(b+2*h2,2)}, {v(b+8+2*h2,2)}")
    regs = [24, 25, 26, 27, 40, 41, 42, 43]
    for r in regs: e(f"v_add_f32_dpp {v(r)}, {v(r)}, {v(r)} row_ror:8 row_mask:0xf bank_mask:0xf")
    for r in regs: e(f"v_mov_b32 {v(r+4)}, {v(r)}")
    for r in regs: e(f"v_permlane16_swap_b32 {v(r)}, {v(r+4)}")
    for r in regs: e(f"v_add_f32 {v(r)}, {v(r)}, {v(r+4)}")
    for r in regs: e(f"v_mov_b32 {v(r+4)}, {v(r)}")
    for r in regs: e(f"v_permlane32_swap_b32 {v(r)}, {v(r+4)}")
    for r in regs: e(f"v_add_f32 {v(r)}, {v(r)}, {v(r+4)}")
    e("v_cvt_pk_bf16_f32 v28, v24, v25"); e("v_cvt_pk_bf16_f32 v29, v26, v27")
    e("v_cvt_pk_bf16_f32 v30, v40, v41"); e("v_cvt_pk_bf16_f32 v31, v42, v43")
    f_addr(ff, sT + 1)
    e(f"s_lshl_b32 {s(sT+3)}, {s(sT+2)}, 6"); e(f"v_lshl_add_u32 v10, v1, 3, {s(sT+3)}")
    e("s_mov_b64 exec, 0xff")
    e(f"buffer_store_dwordx2 v[28:29], v10, {s(sSRD,4)}, {s(sT+1)} offen sc1")
    e(f"s_cmp_lg_u32 {s(sT+2)}, 0"); e(f"s_cbranch_scc1 {lred}_z")
    e("s_mov_b64 exec, 0xf")
    e(f"buffer_store_dwordx2 v[30:31], v10, {s(sSRD,4)}, {s(sT+1)} offen offset:512 sc1")
    A.label(lred + "_z")
    e("s_mov_b64 exec, -1")
    A.label(lred)

def ophase(layer):
    pq = PQ1 if layer == 1 else PQ2
    ff = F1 if layer == 1 else F2
    KF, PQF = 24, 56
    e("v_and_b32 v10, 3, v1"); e("v_lshlrev_b32 v10, 2, v10"); e("v_bfe_u32 v11, v1, 2, 2"); e("v_add_u32 v10, v10, v11")
    e("v_and_b32 v11, 16, v1"); e("v_cmp_ne_u32 vcc, 0, v11"); e("v_cndmask_b32 v10, v10, v11, vcc")
    e("v_lshlrev_b32 v10, 5, v10"); e("v_lshrrev_b32 v11, 5, v1"); e("v_lshl_add_u32 v10, v11, 4, v10")
    e(f"s_lshl_b32 {s(sT)}, {s(sWAVE)}, 3"); e(f"s_mul_i32 s4, {s(sT)}, {FP}"); e(f"s_add_u32 s4, s4, {ff}")
    e("v_and_b32 v11, 31, v1"); e("v_lshlrev_b32 v11, 5, v11"); e("v_lshrrev_b32 v12, 5, v1"); e("v_lshl_add_u32 v11, v12, 4, v11")
    e(f"s_mul_i32 s5, {s(sT)}, {HP}"); e(f"s_add_u32 s5, s5, {pq}")
    e(f"s_lshl_b32 {s(sT+3)}, {s(sRO)}, 10"); e(f"s_add_u32 s5, s5, {s(sT+3)}")
    e(f"s_lshl_b32 {s(sT)}, {s(sWAVE)}, 13"); e(f"s_add_u32 {s(sT)}, {s(sT)}, {OT}")
    e(f"v_lshl_add_u32 v12, v1, 4, {s(sT)}")
    e(f"v_lshlrev_b32 v13, 4, v1"); e(f"v_add_u32 v13, {OT}, v13")
    if layer == 1:
        e("v_and_b32 v14, 31, v1"); e(f"v_mul_u32_u24 v14, {TBP}, v14"); e("v_lshrrev_b32 v15, 5, v1"); e("v_lshl_add_u32 v14, v15, 5, v14")
        e(f"s_mul_i32 {s(sT+4)}, {s(sWAVE)}, {32*TBP}"); e(f"s_add_u32 {s(sT+4)}, {s(sT+4)}, {TB}"); e(f"v_add_u32 v14, {s(sT+4)}, v14")
        e("v_lshrrev_b32 v15, 4, v1"); e("v_lshlrev_b32 v15, 3, v15"); e("v_bfe_u32 v16, v1, 2, 2"); e("v_add_u32 v15, v15, v16")
        e(f"v_mul_u32_u24 v15, {TBP}, v15"); e("v_and_b32 v16, 3, v1"); e("v_lshl_add_u32 v15, v16, 3, v15"); e(f"v_add_u32 v15, {s(sT+4)}, v15")
        e("v_and_b32 v16, 15, v1"); e(f"v_mul_u32_u24 v16, {PITCH}, v16"); e("v_lshrrev_b32 v17, 4, v1"); e("v_lshl_add_u32 v16, v17, 4, v16")
        e(f"s_lshl_b32 s6, {s(sJO)}, 7"); e(f"s_lshl_b32 {s(sT+1)}, {s(sWAVE)}, 5"); e(f"s_add_u32 s6, s6, {s(sT+1)}")
        e(f"s_mul_i32 s6, s6, {PITCH}"); e(f"s_lshl_b32 {s(sT+1)}, {s(sRO)}, 6"); e(f"s_add_u32 s6, s6, {s(sT+1)}")
        e(f"s_add_u32 s6, s6, {X2T}")
        e("v_and_b32 v17, 31, v1"); e("v_lshlrev_b32 v17, 3, v17"); e("v_lshrrev_b32 v18, 5, v1"); e("v_lshl_add_u32 v17, v18, 2, v17")
        e(f"s_lshl_b32 s7, {s(sRO)}, 8"); e(f"s_add_u32 s7, s7, {S3}")
    else:
        e("v_and_b32 v14, 31, v1"); e("v_lshlrev_b32 v14, 10, v14"); e("v_lshrrev_b32 v15, 5, v1"); e("v_lshl_add_u32 v14, v15, 5, v14")
        e(f"s_lshl_b32 {s(sT)}, {s(sRO)}, 15"); e(f"s_lshl_b32 {s(sT+1)}, {s(sJO)}, 8"); e(f"s_add_u32 {s(sT)}, {s(sT)}, {s(sT+1)}")
        e(f"s_lshl_b32 {s(sT+1)}, {s(sWAVE)}, 6"); e(f"s_add_u32 {s(sT)}, {s(sT)}, {s(sT+1)}")
        e(f"v_add_u32 v14, {s(sT)}, v14")
    XF = 104
    def pq_loads():
        for h in range(8):
            e(f"s_add_u32 {s(sT+3)}, s5, {h*HP}")
            e(f"buffer_load_dwordx4 {v(PQF+4*h,4)}, v11, {s(sSRD,4)}, {s(sT+3)} offen sc1")
    e("s_barrier")
    stamp(f"o{layer}_gate")
    pq_loads()
    lr = lab("of"); lg = lab("ofk")
    A.label(lr)
    for h in range(8):
        if h*FP < 4096: e(f"buffer_load_dwordx4 {v(KF+4*h,4)}, v10, {s(sSRD,4)}, s4 offen offset:{h*FP} sc1")
        else:
            e(f"s_add_u32 {s(sT+3)}, s4, {h*FP}")
            e(f"buffer_load_dwordx4 {v(KF+4*h,4)}, v10, {s(sSRD,4)}, {s(sT+3)} offen sc1")
    e("s_waitcnt vmcnt(0)")
    maxtree([KF+4*h for h in range(8)], 18)
    e("v_cmp_eq_u32 vcc, -1, v18")
    spin_check(lr, lg)
    lr = lab("oq"); lg = lab("oqk")
    A.label(lr)
    maxtree([PQF+4*h for h in range(8)], 18)
    e("v_cmp_eq_u32 vcc, -1, v18")
    e(f"s_cbranch_vccz {lg}")
    e(f"s_sub_u32 {s(sSPIN)}, {s(sSPIN)}, 1"); e(f"s_cbranch_scc1 {lg}_x")
    pq_loads()
    e("s_waitcnt vmcnt(0)")
    e(f"s_branch {lr}")
    A.label(lg + "_x"); e(f"s_mov_b32 {s(sSPIN)}, 0")
    A.label(lg)
    stamp(f"o{layer}_ld")
    DB = [88, 104, 120, 136, 152, 168]
    def m1(h): e(f"v_mfma_f32_32x32x16_bf16 {v(DB[h % 6],16)}, {v(KF+4*h,4)}, {v(PQF+4*h,4)}, 0")
    def proc(h):
        d = DB[h % 6]
        e(f"v_add_f32 {v(d+8)}, {s(sEPS6)}, {v(d+8)}")
        e(f"v_rcp_f32 {v(d+8)}, {v(d+8)}")
        for k in range(4): e(f"v_pk_mul_f32 {v(d+2*k,2)}, {v(d+2*k,2)}, {v(d+8,2)} op_sel_hi:[1,0]")
        for k in range(4): e(f"v_cvt_pk_bf16_f32 {v(d+10+k)}, {v(d+2*k)}, {v(d+2*k+1)}")
        e(f"ds_write_b128 v12, {v(d+10,4)} offset:{1024*h}")
    for h in range(6): m1(h)
    proc(0); m1(6); proc(1); m1(7)
    for h in range(2, 8): proc(h)
    stamp(f"o{layer}_m1")
    e("s_waitcnt lgkmcnt(0)"); e("s_barrier")
    ACC = 24; NB = 8; OF = [56 + 4*i for i in range(NB)]
    for h in range(NB): e(f"ds_read_b128 {v(OF[h],4)}, v13 offset:{1024*h}")
    for k in range(8):
        e(f"v_lshlrev_b32 {v(XF+2*k)}, 16, {v(XRES+k)}"); e(f"v_and_b32 {v(XF+2*k+1)}, {s(sHI)}, {v(XRES+k)}")
    for h in range(32):
        e(f"s_waitcnt lgkmcnt({min(NB-1, 31-h)})")
        w_ = a(192 + 4*h, 4) if h < 16 else v(192 + 4*(h-16), 4)
        c_ = "0" if h == 0 else v(ACC, 16)
        e(f"v_mfma_f32_32x32x16_bf16 {v(ACC,16)}, {w_}, {v(OF[h % NB],4)}, {c_}")
        if h + NB < 32: e(f"ds_read_b128 {v(OF[h % NB],4)}, v13 offset:{1024*(h+NB)}")
    stamp(f"o{layer}_g2")
    for k in range(8): e(f"v_pk_add_f32 {v(XF+2*k,2)}, {v(XF+2*k,2)}, {v(ACC+2*k,2)}")
    PKD = 120
    for k in range(8): e(f"v_cvt_pk_bf16_f32 {v(PKD+k)}, {v(XF+2*k)}, {v(XF+2*k+1)}")
    if layer == 2:
        e(f"global_store_dwordx4 v14, {v(PKD,4)}, {s(sOUT,2)}")
        e(f"global_store_dwordx4 v14, {v(PKD+4,4)}, {s(sOUT,2)} offset:16")
        return
    e(f"ds_write_b128 v14, {v(PKD,4)}"); e(f"ds_write_b128 v14, {v(PKD+4,4)} offset:16")
    e(f"v_pk_add_f32 v[64:65], {v(XF,2)}, {v(XF+2,2)}"); e(f"v_pk_mul_f32 v[66:67], {v(XF,2)}, {v(XF,2)}")
    e(f"v_pk_add_f32 v[68:69], {v(XF+4,2)}, {v(XF+6,2)}"); e(f"v_pk_mul_f32 v[70:71], {v(XF+2,2)}, {v(XF+2,2)}")
    for k in range(2, 8):
        e(f"v_pk_fma_f32 {v(66+4*(k&1),2)}, {v(XF+2*k,2)}, {v(XF+2*k,2)}, {v(66+4*(k&1),2)}")
        if k >= 4: e(f"v_pk_add_f32 {v(64+4*(k&1),2)}, {v(64+4*(k&1),2)}, {v(XF+2*k,2)}")
    e("s_waitcnt lgkmcnt(0)")
    for k in range(2):
        e(f"ds_read_b64_tr_b16 {v(80+4*k,2)}, v15 offset:{32*k}")
        e(f"ds_read_b64_tr_b16 {v(82+4*k,2)}, v15 offset:{32*k + 4*TBP}")
    e("v_pk_add_f32 v[64:65], v[64:65], v[68:69]"); e("v_pk_add_f32 v[66:67], v[66:67], v[70:71]")
    e("v_add_f32 v64, v64, v65"); e("v_add_f32 v65, v66, v67")
    e("v_permlane32_swap_b32 v64, v65")
    e("v_add_f32 v64, v64, v65")
    e(f"buffer_atomic_add_f32 v64, v17, {s(sSRD,4)}, s7 offen")
    e("s_waitcnt lgkmcnt(0)")
    e(f"buffer_store_dwordx4 v[80:83], v16, {s(sSRD,4)}, s6 offen sc1")
    e(f"s_add_u32 s6, s6, {16*PITCH}")
    e(f"buffer_store_dwordx4 v[84:87], v16, {s(sSRD,4)}, s6 offen sc1")

def build():
    prologue()
    stamp("start")
    p0_issue()
    stamp("p_iss")
    e("s_waitcnt vmcnt(28)")
    e("s_waitcnt vmcnt(26)")
    stamp("p_ld")
    p0_stats()
    kgen_setup()
    e("s_waitcnt vmcnt(25)"); e("s_barrier")
    p0_wfrag()
    stamp("p_st")
    kgen_round(["X1", "X2", "Y1"], 0); kgen_round(["Y2"], 0)
    arrive(0)
    stamp("arr1")
    kgen_round(["X1", "X2", "Y1"], 1); kgen_round(["Y2"], 1)
    kgen_round(["X1", "X2"], 2); kgen_round(["X1", "X2"], 3)
    stamp("k_tab")
    kgen_mm()
    e("s_waitcnt lgkmcnt(0)"); e("s_barrier")
    stamp("kgen")
    if stop_here("K"): return
    conv_setup(1)
    wait(0)
    stamp("B1")
    rest = conv(1)
    arrive(1)
    stamp("C1")
    if stop_here("C1"): return
    for ins in rest:
        for l in ins: e(l)
    g_setup(1)
    e("s_waitcnt vmcnt(0)")
    colsums()
    wait(1)
    stamp("B2")
    gphase(1)
    stamp("G1")
    if stop_here("G1"): return
    ophase(1)
    arrive(2)
    stamp("O1")
    if stop_here("O1"): return
    conv_setup(2)
    wait(2)
    stamp("B4")
    conv(2)
    arrive(3)
    stamp("C2")
    if stop_here("C2"): return
    g_setup(2)
    wait(3)
    stamp("B5")
    gphase(2)
    stamp("G2")
    if stop_here("G2"): return
    ophase(2)
    if STAMPS:
        e("s_waitcnt vmcnt(0)")
        stamp("O2")
        stamps_out()

build()
A.label("L_end")
e("s_endpgm")

def rb_int(j):
    u = struct.unpack("<I", struct.pack("<f", float(j)))[0]
    u = (u + 0x7fff + ((u >> 16) & 1)) & 0xffff0000
    return int(struct.unpack("<f", struct.pack("<I", u))[0])
idx = []
for x in range(2064):
    j = 2047 - x
    if j < 0: ent = 1024
    else:
        t = rb_int(j); ent = t if t < 512 else 512 + (t - 512) // 4
    idx.append(2 * ent)

lines, nn = hazard_pass(A.lines)
probs = check_branches(lines)
for p in probs: print("BRANCH HAZARD:", p, file=sys.stderr)
hdr = open("interleave_layers__ssm_conv_s4d__linear_attn_block__prompt.s.ref").read().split("; Override launch")[0]
out = hdr + "; Override launch geometry by editing the next line.\n"
out += f"; @launch grid=(256,1,1) block=(256,1,1) lds={LDS_BYTES}\n"
out += '.amdgcn_target "amdgcn-amd-amdhsa--gfx950"\n.text\n'
out += f".globl {NAME}\n.p2align 8\n.type {NAME},@function\n{NAME}:\n"
out += "\n".join(lines) + "\n"
out += ".p2align 6\n.type L_idx,@object\nL_idx:\n"
for i in range(0, len(idx), 16): out += "  .short " + ", ".join(str(x) for x in idx[i:i+16]) + "\n"
out += "L_tab_end:\n"
out += f""".section .rodata,"a"
.p2align 6
.amdhsa_kernel {NAME}
  .amdhsa_next_free_vgpr 512
  .amdhsa_next_free_sgpr 102
  .amdhsa_accum_offset 256
  .amdhsa_group_segment_fixed_size 0
  .amdhsa_kernarg_size 104
  .amdhsa_user_sgpr_count 2
  .amdhsa_user_sgpr_kernarg_segment_ptr 1
  .amdhsa_system_sgpr_workgroup_id_x 1
  .amdhsa_float_denorm_mode_32 3
.end_amdhsa_kernel
"""
open(sys.argv[1], "w").write(out)
if STAMPS: open(sys.argv[1] + ".names", "w").write(",".join(stnames))
print(f"wrote {sys.argv[1]}: {len(lines)} lines, {nn} nops inserted; WS_USED={WS_USED:#x}", file=sys.stderr)
```

```python
import sys, struct
from asmlib import *

NAME = "interleave_layers__ssm_conv_s4d__linear_attn_block__prompt_kernel"
OPTS = {}
for x in sys.argv[2:]:
    if "=" in x:
        k_, v_ = x.split("="); OPTS[k_] = v_
STOP = OPTS.get("stop")
SPINMAX = int(OPTS.get("spin", 400000))
BK = int(OPTS.get("bk", 2))

PITCH = 4224
S1 = 0x000000
S3 = 0x004000
F1 = 0x014000; FP = 640; F2 = F1 + 0x6000
STAMP_OFF = 0x020000
CNT = 0x030000
KVP1 = 0x040000; KVH = 1152; KVW = 4 * KVH; KVP2 = KVP1 + 0x128000
WFG = 0x2A0000; WFO = WFG + 0x180000
XSZ = 0x220000
XT1 = 0x4A0000; XT3 = XT1 + XSZ; X2T = XT3 + XSZ
HP = 65536 + 256
PQ1 = X2T + XSZ; PQ2 = PQ1 + 0x210000
WS_USED = PQ2 + 0x210000
KC = 0; KCC = 4160; KCH = 8 * KCC
AT = 2 * KCH
MISC = AT + 65536
ST = MISC
WST = MISC + 2048
CT = WST + 8192; CTP = 2080
TB = WST; TBP = 80
LDS_BYTES = 163840
TKP = 208; TABC = 256 * TKP
U0 = AT; UP = 4608; X0 = AT + 2 * UP; RED = X0 + 8192
OT = AT

sU, sLOGA, sAIM, sCR, sCI, sLDT, sDSK = 8, 10, 12, 14, 16, 18, 20
sWQKV, sWO, sOUT, sDBG, sWS = 24, 26, 28, 30, 32
sSRD = 36; sSRD2 = 40
sWAVE, sXCD, sIDX, sCP, sRS, sJ, sRO, sJO = 44, 45, 46, 47, 48, 49, 50, 51
sSPIN = 52; sDSKV = 53
sT = 54
sLOG2E = 64; sEPS6 = 66; sM = 68; sHI = 76; sPC = 78; sINV512 = 80
sW = 34

def f2u(f): return struct.unpack("<I", struct.pack("<f", f))[0]
A = Asm(); e = A.e
uid = [0]
def lab(p):
    uid[0] += 1; return f"L_{p}_{uid[0]}"

STAMPS = OPTS.get("stamps") == "1"
DEFSET = "start,arr1,kgen,B1,c1_pro,C1,B2,g1_kv,G1,o1_ld,O1,B4,c2_pro,C2,B5,G2,o2_ld,O2"
STSET = OPTS.get("st", DEFSET).split(",")
stnames = []
def stamp(name):
    if not STAMPS or name not in STSET: return
    i = len(stnames); stnames.append(name); assert i < 18
    e(f"{'s_memtime' if OPTS.get('clk') == '1' else 's_memrealtime'} s[82:83]"); e("s_waitcnt lgkmcnt(0)"); e(f"s_mov_b32 s{84+i}, s82")
def stamps_out():
    if not STAMPS: return
    if OPTS.get("dbgout"):
        l = lab("so")
        e(f"s_cmp_lg_u32 {s(sWAVE)}, 0"); e(f"s_cbranch_scc1 {l}")
        e(f"s_cmp_lg_u32 s2, {OPTS.get('dbgout')}"); e(f"s_cbranch_scc1 {l}")
        e("s_mov_b64 exec, 1")
        words = [1, 2, 3, 5, 6, 7, 9, 10, 11, 13, 14, 15]
        for i in range(1, min(len(stnames), 13)):
            e(f"s_sub_u32 {s(sT)}, s{84+i}, s84")
            e(f"v_mov_b32 v10, {s(sT)}"); e(f"v_mov_b32 v11, {4*words[i-1]}")
            e(f"global_store_dword v11, v10, {s(sDBG,2)}")
        e("s_mov_b64 exec, -1")
        A.label(l)
        return
    l = lab("so")
    e(f"s_cmp_lg_u32 {s(sWAVE)}, {OPTS.get('stw', '0')}"); e(f"s_cbranch_scc1 {l}")
    e(f"s_lshl_b32 {s(sT)}, s2, 7"); e(f"s_add_u32 {s(sT)}, {s(sT)}, {STAMP_OFF}")
    e("s_mov_b64 exec, 1")
    for i in range(len(stnames)):
        e(f"v_mov_b32 v10, s{84+i}"); e(f"v_mov_b32 v11, {4*i}")
        e(f"buffer_store_dword v10, v11, {s(sSRD,4)}, {s(sT)} offen")
    e("s_mov_b64 exec, -1")
    A.label(l)
def stop_here(name):
    if STOP == name:
        e("s_waitcnt vmcnt(0) lgkmcnt(0)"); e("s_branch L_end"); return True
    return False

def sent_regs(r):
    for i in range(4): e(f"v_mov_b32 {v(r+i)}, -1")
def spin_check(retry, giveup, bk=None):
    e(f"s_cbranch_vccz {giveup}")
    bk = BK if bk is None else bk
    if bk: e(f"s_sleep {bk}")
    e(f"s_sub_u32 {s(sSPIN)}, {s(sSPIN)}, 1")
    e(f"s_cbranch_scc0 {retry}")
    e(f"s_mov_b32 {s(sSPIN)}, 0")
    A.label(giveup)
def maxtree(regs, dst):
    regs = list(regs); cur = regs.pop(0)
    while regs:
        if len(regs) >= 2:
            e(f"v_max3_u32 {v(dst)}, {v(cur)}, {v(regs[0])}, {v(regs[1])}"); regs = regs[2:]
        else:
            e(f"v_max_u32 {v(dst)}, {v(cur)}, {v(regs[0])}"); regs = []
        cur = dst

def arrive(k):
    e("s_waitcnt vmcnt(0) lgkmcnt(0)"); e("s_barrier")
    l = lab("arr")
    e(f"s_cmp_lg_u32 {s(sWAVE)}, 0"); e(f"s_cbranch_scc1 {l}")
    e(f"s_and_b32 {s(sT)}, s2, 15"); e(f"s_lshl_b32 {s(sT)}, {s(sT)}, {4 if k == 0 else 12}")
    if k: e(f"s_add_u32 {s(sT)}, {s(sT)}, {CNT}")
    e(f"v_mov_b32 v10, {s(sT)}"); e("v_mov_b32 v11, 1")
    e("s_mov_b64 exec, 1")
    e(f"global_atomic_add v10, v11, {s(sDBG if k == 0 else sWS,2)}")
    e("s_mov_b64 exec, -1")
    A.label(l)
def wait(k):
    l = lab("wt"); lp = lab("poll")
    e(f"s_cmp_lg_u32 {s(sWAVE)}, 0"); e(f"s_cbranch_scc1 {l}")
    e("v_and_b32 v10, 15, v0"); e(f"v_lshlrev_b32 v10, {4 if k == 0 else 12}, v10")
    if k: e(f"v_add_u32 v10, {CNT}, v10")
    e(f"s_movk_i32 {s(sT+1)}, {16 * max(k, 1)}")
    A.label(lp)
    e(f"global_load_dword v11, v10, {s(sDBG if k == 0 else sWS,2)} sc1")
    e("s_waitcnt vmcnt(0)")
    e(f"v_cmp_gt_u32 vcc, {s(sT+1)}, v11")
    spin_check(lp, l, bk=0)
    e("s_barrier")

def cmul(d, x, w, t):
    return [f"v_pk_mul_f32 {v(t,2)}, {v(x,2)}, {v(w,2)} op_sel_hi:[1,0]",
            f"v_pk_fma_f32 {v(d,2)}, {v(x,2)}, {v(w,2)}, {v(t,2)} op_sel:[1,1,0] op_sel_hi:[0,1,1] neg_lo:[0,1,0]"]
def bf16r(dst, src):
    e(f"v_cvt_pk_bf16_f32 {v(dst)}, {v(src)}, {v(src)}"); e(f"v_lshlrev_b32 {v(dst)}, 16, {v(dst)}")
def stats_final(vsum, vsq, vm, vr, t):
    e(f"v_mul_f32 {v(t)}, {s(sINV512)}, {v(vsum)}")
    e(f"v_mul_f32 {v(t+1)}, {s(sINV512)}, {v(vsq)}")
    e(f"v_fma_f32 {v(t+1)}, -{v(t)}, {v(t)}, {v(t+1)}")
    e(f"v_max_f32 {v(t+1)}, 0, {v(t+1)}")
    e(f"v_cvt_pk_bf16_f32 {v(t)}, {v(t)}, {v(t+1)}")
    e(f"v_and_b32 {v(t+1)}, {s(sHI)}, {v(t)}"); e(f"v_lshlrev_b32 {v(vm)}, 16, {v(t)}")
    e(f"v_add_f32 {v(t+1)}, 0x3727c5ac, {v(t+1)}")
    bf16r(t + 1, t + 1)
    e(f"v_sqrt_f32 {v(t+1)}, {v(t+1)}")
    bf16r(t + 1, t + 1)
    e(f"v_rcp_f32 {v(vr)}, {v(t+1)}")

def kvp_addr(kvp, dst):
    e(f"s_lshl_b32 {s(dst)}, {s(sJ)}, 5"); e(f"s_add_u32 {s(dst)}, {s(dst)}, {s(sRS)}"); e(f"s_lshl_b32 {s(dst)}, {s(dst)}, 2")
    e(f"s_add_u32 {s(dst)}, {s(dst)}, {s(sWAVE)}"); e(f"s_mul_i32 {s(dst)}, {s(dst)}, {KVH}"); e(f"s_add_u32 {s(dst)}, {s(dst)}, {kvp}")
def f_addr(f, dst):
    e(f"s_lshr_b32 {s(dst)}, {s(sRS)}, 3"); e(f"s_lshl_b32 {s(sT+9)}, {s(sJ)}, 2"); e(f"s_add_u32 {s(dst)}, {s(dst)}, {s(sT+9)}")
    e(f"s_mul_i32 {s(dst)}, {s(dst)}, {FP}"); e(f"s_add_u32 {s(dst)}, {s(dst)}, {f}")
def pq_addr(pq, dst):
    e(f"s_lshl_b32 {s(dst)}, {s(sJ)}, 2"); e(f"s_add_u32 {s(dst)}, {s(dst)}, {s(sWAVE)}")
    e(f"s_mul_i32 {s(dst)}, {s(dst)}, {HP}"); e(f"s_lshl_b32 {s(sT+9)}, {s(sRS)}, 11"); e(f"s_add_u32 {s(dst)}, {s(dst)}, {s(sT+9)}")
    e(f"s_add_u32 {s(dst)}, {s(dst)}, {pq}")
def fill_g(pq, kvp, f, S):
    pq_addr(pq, sT + 1)
    e("v_lshlrev_b32 v10, 4, v1")
    e(f"buffer_store_dwordx4 {v(S,4)}, v10, {s(sSRD,4)}, {s(sT+1)} offen sc1")
    e(f"buffer_store_dwordx4 {v(S,4)}, v10, {s(sSRD,4)}, {s(sT+1)} offen offset:1024 sc1")
    kvp_addr(kvp, sT + 1)
    e(f"buffer_store_dwordx4 {v(S,4)}, v10, {s(sSRD,4)}, {s(sT+1)} offen sc1")
    e("v_lshlrev_b32 v10, 2, v1")
    e(f"s_mov_b32 {s(sT+2)}, -1"); e(f"s_mov_b32 {s(sT+3)}, 0"); e(f"s_mov_b64 exec, {s(sT+2,2)}")
    e(f"buffer_store_dword {v(S)}, v10, {s(sSRD,4)}, {s(sT+1)} offen offset:1024 sc1")
    e("s_mov_b64 exec, -1")
    f_addr(f, sT + 1)
    e(f"s_and_b32 {s(sT+2)}, {s(sRS)}, 7"); e(f"s_lshl_b32 {s(sT+3)}, {s(sT+2)}, 6")
    e(f"v_lshl_add_u32 v10, v1, 2, {s(sT+3)}")
    e("v_lshlrev_b32 v11, 2, v1"); e("v_add_u32 v11, 448, v11")
    e("v_cmp_gt_u32 vcc, 16, v1"); e("v_cndmask_b32 v10, v11, v10, vcc")
    e(f"s_mov_b32 {s(sT+3)}, 0xffffff"); e(f"s_cmp_eq_u32 {s(sT+2)}, 0"); e(f"s_cselect_b32 {s(sT+2)}, {s(sT+3)}, 0xffff"); e(f"s_mov_b32 {s(sT+3)}, 0")
    e(f"s_mov_b64 exec, {s(sT+2,2)}")
    e(f"buffer_store_dword {v(S)}, v10, {s(sSRD,4)}, {s(sT+1)} offen sc1")
    e("s_mov_b64 exec, -1")
    return 5

XR = 24; PRM = 32; IDX = 40; XC = 176
def prologue():
    stamp("t0")
    e(f"s_getpc_b64 {s(sPC,2)}")
    A.label("L_pc")
    e("s_cmp_ge_u32 s2, 256")
    e("s_cbranch_scc1 L_end")
    e("s_load_dwordx16 s[8:23], s[0:1], 0")
    e("s_load_dwordx8 s[24:31], s[0:1], 64")
    e("s_load_dwordx2 s[32:33], s[0:1], 96")
    e("v_lshlrev_b32 v10, 7, v0")
    e("v_min_u32 v11, L_tab_end - L_pc - 4, v10")
    e(f"global_load_dword v38, v11, {s(sPC,2)}")
    e("v_add_u32 v10, 0x8000, v10")
    e("v_min_u32 v10, L_tab_end - L_pc - 4, v10")
    e(f"global_load_dword v39, v10, {s(sPC,2)}")
    e("v_lshrrev_b32 v1, 6, v0")
    e(f"s_and_b32 {s(sXCD)}, s2, 7")
    e(f"s_lshr_b32 {s(sIDX)}, s2, 3")
    e(f"v_readfirstlane_b32 {s(sWAVE)}, v1")
    e(f"s_lshl_b32 {s(sCP)}, {s(sXCD)}, 5"); e(f"s_add_u32 {s(sCP)}, {s(sCP)}, {s(sIDX)}")
    e("v_and_b32 v1, 63, v0")
    e(f"s_lshl_b32 {s(sT)}, {s(sCP)}, 9"); e(f"v_lshl_add_u32 v10, v0, 1, {s(sT)}")
    e(f"s_lshl_b32 {s(sT)}, {s(sCP)}, 2"); e("v_lshrrev_b32 v12, 7, v0"); e(f"v_lshl_add_u32 v11, v12, 1, {s(sT)}")
    e(f"s_lshl_b32 {s(sT)}, s2, 13"); e(f"v_lshl_add_u32 v13, v0, 5, {s(sT)}")
    e("s_waitcnt lgkmcnt(0)")
    stamp("karg")
    e(f"global_load_ushort {v(PRM)}, v10, {s(sLOGA,2)}")
    e(f"global_load_ushort {v(PRM+1)}, v10, {s(sAIM,2)}")
    e(f"global_load_ushort {v(PRM+4)}, v11, {s(sLDT,2)}")
    e(f"global_load_dwordx4 {v(XR,4)}, v13, {s(sU,2)}")
    e(f"global_load_dwordx4 {v(XR+4,4)}, v13, {s(sU,2)} offset:16")
    e(f"global_load_ushort {v(PRM+2)}, v10, {s(sCR,2)}")
    e(f"global_load_ushort {v(PRM+3)}, v10, {s(sCI,2)}")
    e(f"global_load_ushort {v(PRM+5)}, v11, {s(sDSK,2)}")
    e(f"s_and_b32 {s(sT)}, {s(sIDX)}, 3"); e(f"s_lshl_b32 {s(sRS)}, {s(sXCD)}, 2"); e(f"s_add_u32 {s(sRS)}, {s(sRS)}, {s(sT)}")
    e(f"s_lshr_b32 {s(sJ)}, {s(sIDX)}, 2")
    e(f"s_and_b32 {s(sT)}, {s(sJ)}, 1"); e(f"s_lshl_b32 {s(sRO)}, {s(sRS)}, 1"); e(f"s_add_u32 {s(sRO)}, {s(sRO)}, {s(sT)}")
    e(f"s_lshr_b32 {s(sJO)}, {s(sJ)}, 1")
    e(f"s_mov_b32 {s(sLOG2E)}, {f2u(1.4426950408889634):#x}"); e(f"s_mov_b32 {s(sLOG2E+1)}, {s(sLOG2E)}")
    e(f"s_mov_b32 {s(sEPS6)}, {f2u(1e-6):#x}"); e(f"s_mov_b32 {s(sEPS6+1)}, {s(sEPS6)}")
    e(f"s_mov_b32 {s(sINV512)}, {f2u(1.0/512):#x}"); e(f"s_mov_b32 {s(sINV512+1)}, {s(sINV512)}")
    e(f"s_mov_b32 {s(sHI)}, 0xffff0000")
    e(f"s_mov_b32 {s(sSPIN)}, {SPINMAX}")
    e(f"s_mov_b32 {s(sSRD)}, {s(sWS)}"); e(f"s_and_b32 {s(sSRD+1)}, {s(sWS+1)}, 0xffff")
    e(f"s_mov_b32 {s(sSRD+2)}, {WS_USED:#x}"); e(f"s_mov_b32 {s(sSRD+3)}, 0x20000")

def p0_issue():
    lo = lab("wo"); lj = lab("wj")
    e("s_cmp_ge_u32 s2, 192"); e(f"s_cbranch_scc1 {lo}")
    e(f"s_mul_i32 {s(sT)}, s2, 5462"); e(f"s_lshr_b32 {s(sT)}, {s(sT)}, 16")
    e(f"s_mul_i32 {s(sT+1)}, {s(sT)}, 12"); e(f"s_sub_u32 {s(sT+1)}, s2, {s(sT+1)}")
    e(f"s_mov_b32 {s(sSRD2)}, {s(sWQKV)}"); e(f"s_and_b32 {s(sSRD2+1)}, {s(sWQKV+1)}, 0xffff")
    e(f"s_mov_b32 {s(sSRD2+2)}, {512*1536*2}"); e(f"s_mov_b32 {s(sSRD2+3)}, 0x20000")
    e("v_lshrrev_b32 v11, 4, v1"); e("v_mul_u32_u24 v11, 3072, v11"); e("v_and_b32 v12, 15, v1"); e("v_lshl_add_u32 v11, v12, 4, v11")
    e(f"s_lshl_b32 {s(sT+2)}, {s(sT)}, 5"); e(f"s_lshl_b32 {s(sT+3)}, {s(sWAVE)}, 3"); e(f"s_add_u32 {s(sT+2)}, {s(sT+2)}, {s(sT+3)}")
    e(f"s_mul_i32 {s(sT+2)}, {s(sT+2)}, 3072"); e(f"s_lshl_b32 {s(sT+3)}, {s(sT+1)}, 8"); e(f"s_add_u32 {s(sT+2)}, {s(sT+2)}, {s(sT+3)}")
    e(f"s_lshl_b32 {s(sT+3)}, {s(sWAVE)}, 11"); e(f"s_add_u32 {s(sT+3)}, {s(sT+3)}, {WST}")
    e(f"s_mov_b32 m0, {s(sT+3)}")
    e(f"buffer_load_dwordx4 v11, {s(sSRD2,4)}, {s(sT+2)} offen lds")
    e(f"s_add_u32 {s(sT+3)}, {s(sT+3)}, 1024"); e(f"s_add_u32 {s(sT+2)}, {s(sT+2)}, {4*3072}")
    e(f"s_mov_b32 m0, {s(sT+3)}")
    e(f"buffer_load_dwordx4 v11, {s(sSRD2,4)}, {s(sT+2)} offen lds")
    e(f"s_branch {lj}")
    A.label(lo)
    e(f"s_sub_u32 {s(sT+1)}, s2, 192"); e(f"s_lshr_b32 {s(sT)}, {s(sT+1)}, 1"); e(f"s_and_b32 {s(sT+1)}, {s(sT+1)}, 1")
    e(f"s_mov_b32 {s(sSRD2)}, {s(sWO)}"); e(f"s_and_b32 {s(sSRD2+1)}, {s(sWO+1)}, 0xffff")
    e(f"s_mov_b32 {s(sSRD2+2)}, {512*512*2}"); e(f"s_mov_b32 {s(sSRD2+3)}, 0x20000")
    e("v_lshrrev_b32 v11, 5, v1"); e("v_lshlrev_b32 v11, 10, v11"); e("v_and_b32 v12, 31, v1"); e("v_lshl_add_u32 v11, v12, 4, v11")
    e(f"s_lshl_b32 {s(sT+2)}, {s(sT)}, 4"); e(f"s_lshl_b32 {s(sT+3)}, {s(sWAVE)}, 2"); e(f"s_add_u32 {s(sT+2)}, {s(sT+2)}, {s(sT+3)}")
    e(f"s_lshl_b32 {s(sT+2)}, {s(sT+2)}, 10"); e(f"s_lshl_b32 {s(sT+3)}, {s(sT+1)}, 9"); e(f"s_add_u32 {s(sT+2)}, {s(sT+2)}, {s(sT+3)}")
    e(f"s_lshl_b32 {s(sT+3)}, {s(sWAVE)}, 11"); e(f"s_add_u32 {s(sT+3)}, {s(sT+3)}, {WST}")
    e(f"s_mov_b32 m0, {s(sT+3)}")
    e(f"buffer_load_dwordx4 v11, {s(sSRD2,4)}, {s(sT+2)} offen lds")
    e(f"s_add_u32 {s(sT+3)}, {s(sT+3)}, 1024"); e(f"s_add_u32 {s(sT+2)}, {s(sT+2)}, 2048")
    e(f"s_mov_b32 m0, {s(sT+3)}")
    e(f"buffer_load_dwordx4 v11, {s(sSRD2,4)}, {s(sT+2)} offen lds")
    A.label(lj)
    e(f"s_mov_b32 s6, {s(sT)}"); e(f"s_mov_b32 s7, {s(sT+1)}")
    e(f"s_add_u32 {s(sT)}, {s(sPC)}, L_idx - L_pc"); e(f"s_addc_u32 {s(sT+1)}, {s(sPC+1)}, 0")
    e("v_and_b32 v10, 127, v0"); e("v_lshlrev_b32 v10, 4, v10")
    e(f"global_load_dwordx4 {v(IDX,4)}, v10, {s(sT,2)}")
    e(f"global_load_dwordx4 {v(IDX+4,4)}, v10, {s(sT,2)} offset:16")
    e(f"global_load_dwordx4 {v(IDX+8,4)}, v10, {s(sT,2)} offset:2048")
    e(f"global_load_dwordx4 {v(IDX+12,4)}, v10, {s(sT,2)} offset:2064")
    sent_regs(20)
    fill_g(PQ1, KVP1, F1, 20); fill_g(PQ2, KVP2, F2, 20)
    e("v_mov_b32 v12, 0")
    e(f"s_lshl_b32 {s(sT)}, s2, 6"); e(f"s_add_u32 {s(sT)}, {s(sT)}, {S3}")
    e("v_lshlrev_b32 v10, 2, v1")
    e("s_mov_b64 exec, 0xffff")
    e(f"buffer_store_dword v12, v10, {s(sSRD,4)}, {s(sT)} offen sc1")
    e(f"s_lshl_b32 {s(sT+1)}, s2, 12"); e(f"s_add_u32 {s(sT+1)}, {s(sT+1)}, {CNT}")
    e("s_cmp_lt_u32 s2, 16"); e(f"s_cselect_b32 {s(sT)}, {s(sT+1)}, {s(sT)}")
    e("s_mov_b64 exec, 1")
    e(f"buffer_store_dword v12, v10, {s(sSRD,4)}, {s(sT)} offen sc1")
    e("s_mov_b64 exec, -1")
    e(f"s_lshl_b32 {s(sT)}, {s(sCP)}, 2")
    e(f"v_lshl_add_u32 v10, v0, 13, {s(sT)}")
    for i in range(4): e(f"global_load_dword {v(XC+i)}, v10, {s(sU,2)} offset:{1024*i}")
    e("v_add_u32 v10, 4096, v10")
    for i in range(4): e(f"global_load_dword {v(XC+4+i)}, v10, {s(sU,2)} offset:{1024*i}")

def p0_stats():
    F = 64
    for i in range(8):
        e(f"v_lshlrev_b32 {v(F+2*i)}, 16, {v(XR+i)}"); e(f"v_and_b32 {v(F+2*i+1)}, {s(sHI)}, {v(XR+i)}")
    for i in range(4): e(f"v_pk_add_f32 {v(80+2*i,2)}, {v(F+4*i,2)}, {v(F+4*i+2,2)}")
    e(f"v_pk_mul_f32 v[88:89], {v(F,2)}, {v(F,2)}"); e(f"v_pk_mul_f32 v[90:91], {v(F+2,2)}, {v(F+2,2)}")
    e(f"v_pk_add_f32 v[80:81], v[80:81], v[82:83]"); e(f"v_pk_add_f32 v[84:85], v[84:85], v[86:87]")
    for i in range(2, 8): e(f"v_pk_fma_f32 {v(88+2*(i&1),2)}, {v(F+2*i,2)}, {v(F+2*i,2)}, {v(88+2*(i&1),2)}")
    e(f"v_pk_add_f32 v[80:81], v[80:81], v[84:85]"); e("v_pk_add_f32 v[88:89], v[88:89], v[90:91]")
    e("v_add_f32 v80, v80, v81"); e("v_add_f32 v82, v88, v89")
    for r_ in (8, 4, 2, 1):
        e(f"v_add_f32_dpp v80, v80, v80 row_ror:{r_} row_mask:0xf bank_mask:0xf")
        e(f"v_add_f32_dpp v82, v82, v82 row_ror:{r_} row_mask:0xf bank_mask:0xf")
    e("v_add_f32_dpp v80, v80, v80 row_bcast:15 row_mask:0xa bank_mask:0xf")
    e("v_add_f32_dpp v82, v82, v82 row_bcast:15 row_mask:0xa bank_mask:0xf")
    stats_final(80, 82, 84, 85, 86)
    e(f"s_lshl_b32 {s(sT)}, s2, 3"); e(f"s_lshl_b32 {s(sT+1)}, {s(sWAVE)}, 1"); e(f"s_add_u32 {s(sT)}, {s(sT)}, {s(sT+1)}")
    e(f"s_lshl_b32 {s(sT)}, {s(sT)}, 3"); e(f"s_add_u32 {s(sT)}, {s(sT)}, {S1}")
    e("v_lshrrev_b32 v10, 5, v1"); e(f"v_lshl_add_u32 v10, v10, 3, {s(sT)}")
    e(f"s_mov_b32 {s(sT+2)}, 0x00010000"); e(f"s_mov_b32 {s(sT+3)}, 0x00010000")
    e(f"s_mov_b64 exec, {s(sT+2,2)}")
    e(f"buffer_store_dwordx2 v[84:85], v10, {s(sSRD,4)}, 0 offen sc1")
    e("s_mov_b64 exec, -1")

def p0_wfrag():
    lo = lab("wo2"); lj = lab("wj2")
    e("s_cmp_ge_u32 s2, 192"); e(f"s_cbranch_scc1 {lo}")
    e("v_lshrrev_b32 v10, 2, v1"); e("v_lshlrev_b32 v10, 8, v10")
    e("v_and_b32 v11, 3, v1"); e("v_lshl_add_u32 v10, v11, 3, v10")
    e(f"s_lshl_b32 {s(sT)}, {s(sWAVE)}, 6"); e(f"s_add_u32 {s(sT)}, {s(sT)}, {WST}")
    e(f"v_add_u32 v10, {s(sT)}, v10")
    e("ds_read_b64_tr_b16 v[88:89], v10"); e("ds_read_b64_tr_b16 v[90:91], v10 offset:4096")
    e("ds_read_b64_tr_b16 v[92:93], v10 offset:32"); e("ds_read_b64_tr_b16 v[94:95], v10 offset:4128")
    e(f"s_lshr_b32 {s(sT)}, s7, 2")
    e(f"s_add_u32 {s(sT)}, {s(sT)}, 2"); e(f"s_cmp_ge_u32 {s(sT)}, 3")
    e(f"s_cselect_b32 {s(sT+1)}, 3, 0"); e(f"s_sub_u32 {s(sT)}, {s(sT)}, {s(sT+1)}")
    e(f"s_and_b32 {s(sT+1)}, s7, 3"); e(f"s_lshl_b32 {s(sT+1)}, {s(sT+1)}, 3")
    e(f"s_lshl_b32 {s(sT+2)}, {s(sWAVE)}, 1"); e(f"s_add_u32 {s(sT+1)}, {s(sT+1)}, {s(sT+2)}")
    e(f"s_mul_i32 {s(sT+1)}, {s(sT+1)}, 3"); e(f"s_add_u32 {s(sT+1)}, {s(sT+1)}, {s(sT)}")
    e(f"s_lshl_b32 {s(sT+1)}, {s(sT+1)}, 4"); e(f"s_add_u32 {s(sT+1)}, {s(sT+1)}, s6")
    e(f"s_lshl_b32 {s(sT+1)}, {s(sT+1)}, 10"); e(f"s_add_u32 {s(sT+1)}, {s(sT+1)}, {WFG}")
    e(f"s_add_u32 {s(sT+2)}, {s(sT+1)}, 49152")
    e(f"s_branch {lj}")
    A.label(lo)
    e("v_lshrrev_b32 v10, 5, v1"); e("v_lshlrev_b32 v10, 2, v10")
    e("v_bfe_u32 v11, v1, 2, 2"); e("v_add_u32 v10, v10, v11"); e("v_lshlrev_b32 v10, 9, v10")
    e("v_and_b32 v11, 1, v1"); e("v_lshl_add_u32 v10, v11, 5, v10")
    e("v_bfe_u32 v11, v1, 4, 1"); e("v_lshl_add_u32 v10, v11, 4, v10")
    e("v_bfe_u32 v11, v1, 1, 1"); e("v_lshl_add_u32 v10, v11, 3, v10")
    e(f"s_lshl_b32 {s(sT)}, {s(sWAVE)}, 7"); e(f"s_add_u32 {s(sT)}, {s(sT)}, {WST}")
    e(f"v_add_u32 v10, {s(sT)}, v10")
    e("ds_read_b64_tr_b16 v[88:89], v10"); e("ds_read_b64_tr_b16 v[90:91], v10 offset:4096")
    e("ds_read_b64_tr_b16 v[92:93], v10 offset:64"); e("ds_read_b64_tr_b16 v[94:95], v10 offset:4160")
    e(f"s_lshl_b32 {s(sT+1)}, s7, 3"); e(f"s_lshl_b32 {s(sT+2)}, {s(sWAVE)}, 1"); e(f"s_add_u32 {s(sT+1)}, {s(sT+1)}, {s(sT+2)}")
    e(f"s_lshl_b32 {s(sT+1)}, {s(sT+1)}, 5"); e(f"s_add_u32 {s(sT+1)}, {s(sT+1)}, s6")
    e(f"s_lshl_b32 {s(sT+1)}, {s(sT+1)}, 10"); e(f"s_add_u32 {s(sT+1)}, {s(sT+1)}, {WFO}")
    e(f"s_add_u32 {s(sT+2)}, {s(sT+1)}, 32768")
    A.label(lj)
    e("v_lshlrev_b32 v10, 4, v1")
    e("s_waitcnt lgkmcnt(0)")
    e(f"buffer_store_dwordx4 v[88:91], v10, {s(sSRD,4)}, {s(sT+1)} offen sc1")
    e(f"buffer_store_dwordx4 v[92:95], v10, {s(sSRD,4)}, {s(sT+2)} offen sc1")

def pw_multi(items, a2, b2):
    for (d, t, tm) in items:
        if t == 1:
            e(f"v_mov_b32 {v(tm)}, {v(a2)}"); e(f"v_fract_f32 {v(tm+1)}, {v(b2)}")
        else:
            c = f"{float(t)}" if t in (2, 4) else f"{f2u(float(t)):#x}"
            e(f"v_mul_f32 {v(tm)}, {c}, {v(a2)}"); e(f"v_mul_f32 {v(tm+1)}, {c}, {v(b2)}")
    for (d, t, tm) in items:
        e(f"v_exp_f32 {v(tm)}, {v(tm)}")
        if t != 1: e(f"v_fract_f32 {v(tm+1)}, {v(tm+1)}")
    for (d, t, tm) in items:
        e(f"v_cos_f32 {v(d)}, {v(tm+1)}"); e(f"v_sin_f32 {v(d+1)}, {v(tm+1)}")
    for (d, t, tm) in items:
        e(f"v_pk_mul_f32 {v(d,2)}, {v(d,2)}, {v(tm,2)} op_sel_hi:[1,0]")

W1, W4, W16, W64, W512 = 100, 102, 104, 106, 108
CH = {"X1": 112, "X2": 128, "Y1": 144, "Y2": 160}
def kgen_setup():
    for i in range(6): e(f"v_lshlrev_b32 {v(PRM+i)}, 16, {v(PRM+i)}")
    e(f"v_readfirstlane_b32 {s(sDSKV)}, {v(PRM+5)}")
    dt, are = 60, 61
    e(f"v_mul_f32 {v(dt)}, {s(sLOG2E)}, {v(PRM+4)}"); e(f"v_mul_f32 {v(are)}, {s(sLOG2E)}, {v(PRM)}")
    e(f"v_exp_f32 {v(dt)}, {v(dt)}"); e(f"v_exp_f32 {v(are)}, {v(are)}")
    e(f"v_cvt_pk_bf16_f32 {v(dt)}, {v(dt)}, {v(are)}")
    e(f"v_and_b32 {v(are)}, {s(sHI)}, {v(dt)}"); e(f"v_lshlrev_b32 {v(dt)}, 16, {v(dt)}")
    a2, b2 = 62, 63
    e(f"v_mul_f32 {v(a2)}, -{v(are)}, {v(dt)}"); e(f"v_mul_f32 {v(b2)}, {v(PRM+1)}, {v(dt)}")
    e(f"v_mul_f32 {v(a2)}, {s(sLOG2E)}, {v(a2)}"); e(f"v_mul_f32 {v(b2)}, 0.15915494, {v(b2)}")
    pw_multi([(W1, 1, 64), (W4, 4, 66), (W16, 16, 68), (W64, 64, 70), (W512, 512, 72)], a2, b2)
    e(f"v_add_f32 {v(dt)}, {v(dt)}, {v(dt)}")
    e(f"v_mul_f32 {v(CH['X1'])}, {v(PRM+2)}, {v(dt)}"); e(f"v_mul_f32 {v(CH['X1']+1)}, {v(PRM+3)}, {v(dt)}")
    for l in cmul(CH['X2'], CH['X1'], W512, 64): e(l)
    e(f"v_mov_b32 {v(CH['Y1'])}, 1.0"); e(f"v_mov_b32 {v(CH['Y1']+1)}, 0"); e(f"v_mov_b32 {v(CH['Y2'])}, 1.0"); e(f"v_mov_b32 {v(CH['Y2']+1)}, 0")
    e(f"v_lshrrev_b32 v96, 7, v0"); e(f"v_mul_u32_u24 v96, {TABC}, v96")
    e(f"v_and_b32 v97, 127, v0"); e(f"v_mul_u32_u24 v97, {TKP}, v97"); e("v_add_u32 v96, v96, v97")

def kgen_round(chains, rnd):
    Wof = {"X1": W16, "X2": W64, "Y1": W1, "Y2": W4}
    mbase = {"X1": 0, "X2": 32, "Y1": 64, "Y2": 80}
    tmp = {"X1": 64, "X2": 66, "Y1": 68, "Y2": 70}
    nval = {c: 8 for c in chains}
    if rnd == 3 and "X2" in chains: nval["X2"] = 1
    for i in range(1, 8):
        ls = [cmul(CH[c] + 2*i, CH[c] + 2*(i-1), Wof[c], tmp[c]) for c in chains if i < nval[c]]
        for k in range(2):
            for l in ls: e(l[k])
    P = {c: 72 + 8*k for k, c in enumerate(chains)}
    for c in chains:
        neg = "-" if c[0] == "X" else ""
        for k in range(4):
            i0, i1 = (2*k, 2*k+1) if nval[c] == 8 else (0, 0)
            e(f"v_cvt_pk_bf16_f32 {v(P[c]+k)}, {v(CH[c]+2*i0)}, {v(CH[c]+2*i1)}")
            e(f"v_cvt_pk_bf16_f32 {v(P[c]+4+k)}, {neg}{v(CH[c]+2*i0+1)}, {neg}{v(CH[c]+2*i1+1)}")
        off = (mbase[c] + 8*rnd) * 2
        e(f"ds_write_b128 v96, {v(P[c],4)} offset:{off}")
        e(f"ds_write_b128 v96, {v(P[c]+4,4)} offset:{off + 128*TKP}")
    ls = [cmul(CH[c], CH[c] + 14, Wof[c], tmp[c]) for c in chains if nval[c] == 8 and not ((c[0] == "Y" and rnd == 1) or rnd == 3)]
    for k in range(2):
        for l in ls: e(l[k])

def kgen_mm():
    e("s_waitcnt lgkmcnt(0)"); e("s_barrier")
    e(f"s_lshr_b32 {s(sT)}, {s(sWAVE)}, 1"); e(f"s_and_b32 {s(sT+1)}, {s(sWAVE)}, 1")
    e(f"s_mul_i32 {s(sT+2)}, {s(sT)}, {TABC}")
    e(f"s_lshl_b32 {s(sT+3)}, {s(sT+1)}, 5"); e(f"s_add_u32 {s(sT+3)}, {s(sT+3)}, 128"); e(f"s_add_u32 {s(sT+3)}, {s(sT+3)}, {s(sT+2)}")
    e(f"s_lshl_b32 {s(sT+4)}, {s(sT+1)}, 6"); e(f"s_add_u32 {s(sT+4)}, {s(sT+4)}, {s(sT+2)}")
    e("v_lshrrev_b32 v10, 2, v1"); e(f"v_mul_u32_u24 v10, {TKP}, v10"); e("v_and_b32 v11, 3, v1"); e("v_lshl_add_u32 v10, v11, 3, v10")
    e(f"v_add_u32 v11, {s(sT+3)}, v10"); e(f"v_add_u32 v12, {s(sT+4)}, v10")
    YF, XF = 64, 96
    for ks in range(8):
        o = ks * 32 * TKP
        e(f"ds_read_b64_tr_b16 {v(YF+4*ks,2)}, v11 offset:{o}"); e(f"ds_read_b64_tr_b16 {v(YF+4*ks+2,2)}, v11 offset:{o + 16*TKP}")
        for tl in range(2):
            e(f"ds_read_b64_tr_b16 {v(XF+32*tl+4*ks,2)}, v12 offset:{o + 32*tl}"); e(f"ds_read_b64_tr_b16 {v(XF+32*tl+4*ks+2,2)}, v12 offset:{o + 16*TKP + 32*tl}")
    e("v_lshrrev_b32 v13, 7, v0")
    e(f"v_mul_u32_u24 v14, {CTP}, v13"); e(f"v_add_u32 v14, {CT}, v14")
    e(f"v_mul_u32_u24 v15, {KCH}, v13"); e("v_and_b32 v13, 127, v0"); e("v_lshl_add_u32 v15, v13, 4, v15")
    for ks in range(8):
        e(f"s_waitcnt lgkmcnt({min(15, 6*(7-ks))})")
        for tl in range(2):
            c_ = "0" if ks == 0 else v(160 + 4*tl, 4)
            e(f"v_mfma_f32_16x16x32_bf16 {v(160+4*tl,4)}, {v(YF+4*ks,4)}, {v(XF+32*tl+4*ks,4)}, {c_}")
    e(f"s_mul_i32 {s(sT+2)}, {s(sT)}, {CTP}"); e(f"s_lshl_b32 {s(sT+3)}, {s(sT+1)}, 10"); e(f"s_add_u32 {s(sT+2)}, {s(sT+2)}, {s(sT+3)}")
    e(f"s_add_u32 {s(sT+2)}, {s(sT+2)}, {CT}")
    e("v_and_b32 v10, 15, v1"); e("v_lshlrev_b32 v10, 5, v10"); e("v_lshrrev_b32 v11, 4, v1"); e("v_lshl_add_u32 v10, v11, 3, v10")
    e(f"v_add_u32 v10, {s(sT+2)}, v10")
    e(f"s_mul_i32 {s(sT+2)}, {s(sT)}, {CTP}"); e(f"s_add_u32 {s(sT+2)}, {s(sT+2)}, {CT + 2048}")
    e(f"v_mov_b32 v11, {s(sT+2)}"); e("v_mov_b32 v12, 0")
    e("ds_write_b32 v11, v12")
    G = [96, 112]
    for task in range(2):
        I = IDX + 8 * task
        for k in range(8):
            e(f"v_add_u32_sdwa {v(G[task]+2*k)}, v14, {v(I+k)} dst_sel:DWORD dst_unused:UNUSED_PAD src0_sel:DWORD src1_sel:WORD_0")
            e(f"v_add_u32_sdwa {v(G[task]+2*k+1)}, v14, {v(I+k)} dst_sel:DWORD dst_unused:UNUSED_PAD src0_sel:DWORD src1_sel:WORD_1")
    for tl in range(2):
        e(f"v_cvt_pk_bf16_f32 {v(168+2*tl)}, {v(160+4*tl)}, {v(161+4*tl)}")
        e(f"v_cvt_pk_bf16_f32 {v(169+2*tl)}, {v(162+4*tl)}, {v(163+4*tl)}")
        e(f"ds_write_b64 v10, {v(168+2*tl,2)} offset:{512*tl}")
    e("s_waitcnt lgkmcnt(0)"); e("s_barrier")
    stamp("k_mm")
    for task in range(2):
        for k in range(16): e(f"ds_read_u16 {v(G[task]+k)}, {v(G[task]+k)}")
    for task in range(2):
        Dd, Dp, Sd, Sp = [(64, 72, 80, 88), (128, 136, 144, 152)][task]
        e(f"s_waitcnt lgkmcnt({15 if task == 0 else 8})")
        for k in range(8): e(f"v_lshl_or_b32 {v(Dd+k)}, {v(G[task]+2*k+1)}, 16, {v(G[task]+2*k)}")
        for k in range(1, 7): e(f"v_mov_b32 {v(Dp+k-1)}, {v(Dd+k)}")
        for k in range(7): e(f"v_alignbit_b32 {v(Sd+k)}, {v(Dd+k+1)}, {v(Dd+k)}, 16")
        for k in range(1, 7): e(f"v_alignbit_b32 {v(Sp+k-1)}, {v(Dd+k+1)}, {v(Dd+k)}, 16")
        for cp_ in range(8):
            ee = cp_ >> 1
            if cp_ % 2 == 0: src = Dd + ee if ee % 2 == 0 else Dp + ee - 1
            else: src = Sd + ee if ee % 2 == 0 else Sp + ee - 1
            e(f"ds_write_b128 v15, {v(src,4)} offset:{cp_*KCC + task*2048}")
    l0 = lab("zk")
    e(f"s_cmp_lg_u32 {s(sWAVE)}, 0"); e(f"s_cbranch_scc1 {l0}")
    e("v_lshrrev_b32 v10, 2, v1"); e(f"v_mul_u32_u24 v10, {KCC}, v10")
    e("v_and_b32 v11, 3, v1"); e("v_lshl_add_u32 v10, v11, 4, v10"); e("v_add_u32 v10, 4096, v10")
    e("v_mov_b32 v160, 0"); e("v_mov_b32 v161, 0"); e("v_mov_b32 v162, 0"); e("v_mov_b32 v163, 0")
    e("ds_write_b128 v10, v[160:163]")
    A.label(l0)

def gw_loads():
    out = []
    for f in range(48):
        out.append([f"buffer_load_dwordx4 {a(4*f,4)}, v18, {s(sSRD,4)}, {s(sW)} offen offset:{(f%4)*1024} sc1"] + ([f"s_add_u32 {s(sW)}, {s(sW)}, 4096"] if f % 4 == 3 else []))
    return out
def ow_loads():
    out = []
    for f in range(32):
        dst = a(192 + 4*f, 4) if f < 16 else v(192 + 4*(f-16), 4)
        out.append([f"buffer_load_dwordx4 {dst}, v18, {s(sSRD,4)}, {s(sW)} offen offset:{(f%4)*1024} sc1"] + ([f"s_add_u32 {s(sW)}, {s(sW)}, 4096"] if f % 4 == 3 else []))
    return out

vA, vB, vEP, vEU, vEX, vRW, vRR = 164, 165, 166, 167, 168, 169, 170
def conv_setup(layer):
    e(f"s_lshr_b32 s4, {s(sWAVE)}, 1"); e(f"s_and_b32 s5, {s(sWAVE)}, 1")
    e("v_and_b32 v10, 7, v1"); e("v_sub_u32 v10, 7, v10"); e(f"v_mul_u32_u24 v12, {KCC}, v10")
    e("v_bfe_u32 v10, v1, 5, 1"); e("v_lshlrev_b32 v13, 5, v10"); e("v_sub_u32 v12, v12, v13")
    e("v_bfe_u32 v11, v1, 4, 1"); e("v_lshl_add_u32 v12, v11, 4, v12")
    e("v_bfe_u32 v10, v1, 3, 1"); e("v_lshlrev_b32 v10, 4, v10"); e("v_sub_u32 v12, v12, v10")
    e(f"s_mul_i32 {s(sT+2)}, s4, {KCH}"); e(f"s_lshl_b32 {s(sT+3)}, s5, 8"); e(f"s_sub_u32 {s(sT+2)}, {s(sT+2)}, {s(sT+3)}")
    e(f"s_add_u32 {s(sT+2)}, {s(sT+2)}, {KC + 4080 - 3776}")
    e("v_and_b32 v10, 15, v1"); e("v_lshlrev_b32 v14, 5, v10"); e("v_sub_u32 v14, v14, v13"); e("v_lshl_add_u32 v14, v11, 4, v14")
    e(f"s_mul_i32 {s(sT+4)}, s4, {UP}"); e(f"s_sub_u32 {s(sT+4)}, {s(sT+4)}, {s(sT+3)}")
    e(f"s_add_u32 {s(sT+4)}, {s(sT+4)}, {U0 + 512 - 192}")
    e(f"v_add_u32 v16, {s(sT+2)}, v12"); e(f"v_add_u32 v17, {s(sT+4)}, v14")
    e("v_and_b32 v56, 15, v1"); e("v_lshlrev_b32 v56, 5, v56"); e("v_lshrrev_b32 v13, 4, v1"); e("v_lshl_add_u32 v56, v13, 3, v56")
    e(f"s_lshl_b32 {s(sT+2)}, s5, 11"); e(f"v_add_u32 v56, {s(sT+2)}, v56")
    e(f"s_mul_i32 {s(sT+3)}, s4, {UP}"); e(f"s_add_u32 {s(sT+3)}, {s(sT+3)}, {U0+512}"); e(f"v_add_u32 v57, {s(sT+3)}, v56")
    e(f"s_lshl_b32 {s(sT+3)}, s4, 12"); e(f"s_add_u32 {s(sT+3)}, {s(sT+3)}, {X0}"); e(f"v_add_u32 v58, {s(sT+3)}, v56")
    e(f"s_lshl_b32 {s(sT+2)}, {s(sWAVE)}, 12"); e(f"s_add_u32 {s(sT+2)}, {s(sT+2)}, {RED}"); e(f"v_lshl_add_u32 v59, v1, 4, {s(sT+2)}")
    e(f"s_xor_b32 {s(sT+2)}, {s(sWAVE)}, 1"); e(f"s_lshl_b32 {s(sT+2)}, {s(sT+2)}, 12"); e(f"s_add_u32 {s(sT+2)}, {s(sT+2)}, {RED}")
    e(f"v_lshl_add_u32 v60, v1, 4, {s(sT+2)}")
    xo = XT1 if layer == 1 else XT3
    e(f"s_lshl_b32 s6, {s(sCP)}, 1"); e("s_add_u32 s6, s6, s4"); e(f"s_mul_i32 s6, s6, {PITCH}"); e(f"s_add_u32 s6, s6, {xo}")
    e("v_lshlrev_b32 v10, 4, v0"); e(f"v_add_u32 v61, {U0 + 512}, v10"); e(f"v_add_u32 v62, {X0}, v10")
    e("v_lshlrev_b32 v63, 6, v0")
    l0 = lab("zp")
    e(f"s_cmp_lg_u32 {s(sWAVE)}, 1"); e(f"s_cbranch_scc1 {l0}")
    e("v_lshrrev_b32 v11, 5, v1"); e(f"v_mul_u32_u24 v11, {UP}, v11"); e("v_and_b32 v12, 31, v1"); e("v_lshl_add_u32 v11, v12, 4, v11")
    e(f"v_add_u32 v11, {U0}, v11")
    e("v_mov_b32 v12, 0"); e("v_mov_b32 v13, 0"); e("v_mov_b32 v14, 0"); e("v_mov_b32 v15, 0")
    e("ds_write_b128 v11, v[12:15]")
    A.label(l0)
    XX = 40; F = 64
    if layer == 1:
        e(f"s_mov_b32 {s(sT)}, 0x05040100"); e(f"s_mov_b32 {s(sT+1)}, 0x07060302")
        for j in range(4):
            e(f"v_perm_b32 {v(XX+j)}, {v(XC+2*j+1)}, {v(XC+2*j)}, {s(sT)}")
            e(f"v_perm_b32 {v(XX+4+j)}, {v(XC+2*j+1)}, {v(XC+2*j)}, {s(sT+1)}")
        for i in range(8):
            e(f"v_lshlrev_b32 {v(F+2*i)}, 16, {v(XC+i)}"); e(f"v_and_b32 {v(F+2*i+1)}, {s(sHI)}, {v(XC+i)}")
        e(f"ds_write_b128 v62, {v(XX,4)}"); e(f"ds_write_b128 v62, {v(XX+4,4)} offset:4096")
        e("v_lshlrev_b32 v18, 4, v1")
        e(f"s_lshl_b32 {s(sW)}, {s(sJ)}, 2"); e(f"s_add_u32 {s(sW)}, {s(sW)}, {s(sWAVE)}")
        e(f"s_mul_i32 {s(sW)}, {s(sW)}, 49152"); e(f"s_add_u32 {s(sW)}, {s(sW)}, {WFG}")
    else:
        e(f"s_mul_i32 s7, {s(sCP)}, {2*PITCH}"); e(f"s_add_u32 s7, s7, {X2T}")

def conv(layer):
    XX = 40; SB = 24; F = 64; UU = 48
    so = S1 if layer == 1 else S3
    e(f"s_mov_b32 {s(sT)}, {so}")
    if layer == 2:
        e("v_lshlrev_b32 v10, 4, v0")
        e(f"buffer_load_dwordx4 {v(XX,4)}, v10, {s(sSRD,4)}, s7 offen sc1")
        e(f"buffer_load_dwordx4 {v(XX+4,4)}, v10, {s(sSRD,4)}, s7 offen offset:{PITCH - 4096 + 4095 - 4095} sc1") if False else None
        e(f"s_add_u32 {s(sT+1)}, s7, {PITCH}")
        e(f"buffer_load_dwordx4 {v(XX+4,4)}, v10, {s(sSRD,4)}, {s(sT+1)} offen sc1")
    for i in range(4): e(f"buffer_load_dwordx4 {v(SB+4*i,4)}, v63, {s(sSRD,4)}, {s(sT)} offen offset:{16*i} sc1")
    if layer == 2:
        e("s_waitcnt vmcnt(4)")
        for i in range(8):
            j, hi = i >> 1, i & 1
            for c in range(2):
                if hi: e(f"v_and_b32 {v(F+2*i+c)}, {s(sHI)}, {v(XX+4*c+j)}")
                else: e(f"v_lshlrev_b32 {v(F+2*i+c)}, 16, {v(XX+4*c+j)}")
        e(f"ds_write_b128 v62, {v(XX,4)}"); e(f"ds_write_b128 v62, {v(XX+4,4)} offset:4096")
    e("s_waitcnt vmcnt(0)")
    stamp(f"c{layer}_ld")
    if layer == 2:
        T = 80
        for k in range(4):
            b = SB + 4*k; t = T + 4*k
            e(f"v_pk_mul_f32 {v(b,2)}, {v(b,2)}, {s(sINV512,2)}"); e(f"v_pk_mul_f32 {v(b+2,2)}, {v(b+2,2)}, {s(sINV512,2)}")
        for k in range(4):
            b = SB + 4*k
            e(f"v_fma_f32 {v(b+1)}, -{v(b)}, {v(b)}, {v(b+1)}"); e(f"v_fma_f32 {v(b+3)}, -{v(b+2)}, {v(b+2)}, {v(b+3)}")
        for k in range(4):
            b = SB + 4*k
            e(f"v_max_f32 {v(b+1)}, 0, {v(b+1)}"); e(f"v_max_f32 {v(b+3)}, 0, {v(b+3)}")
        for i in range(8):
            b = SB + 2*i
            e(f"v_cvt_pk_bf16_f32 {v(T+i)}, {v(b)}, {v(b+1)}")
        for i in range(8):
            b = SB + 2*i
            e(f"v_lshlrev_b32 {v(b)}, 16, {v(T+i)}"); e(f"v_and_b32 {v(b+1)}, {s(sHI)}, {v(T+i)}")
        for i in range(8): e(f"v_add_f32 {v(SB+2*i+1)}, 0x3727c5ac, {v(SB+2*i+1)}")
        for k in range(4): e(f"v_cvt_pk_bf16_f32 {v(T+k)}, {v(SB+4*k+1)}, {v(SB+4*k+3)}")
        for k in range(4):
            e(f"v_lshlrev_b32 {v(SB+4*k+1)}, 16, {v(T+k)}"); e(f"v_and_b32 {v(SB+4*k+3)}, {s(sHI)}, {v(T+k)}")
        for i in range(8): e(f"v_sqrt_f32 {v(SB+2*i+1)}, {v(SB+2*i+1)}")
        for k in range(4): e(f"v_cvt_pk_bf16_f32 {v(T+k)}, {v(SB+4*k+1)}, {v(SB+4*k+3)}")
        for k in range(4):
            e(f"v_lshlrev_b32 {v(SB+4*k+1)}, 16, {v(T+k)}"); e(f"v_and_b32 {v(SB+4*k+3)}, {s(sHI)}, {v(T+k)}")
        for i in range(8): e(f"v_rcp_f32 {v(SB+2*i+1)}, {v(SB+2*i+1)}")
    for i in range(8):
        e(f"v_pk_add_f32 {v(F+2*i,2)}, {v(F+2*i,2)}, {v(SB+2*i,2)} op_sel_hi:[1,0] neg_lo:[0,1] neg_hi:[0,1]")
    for i in range(8): e(f"v_cvt_pk_bf16_f32 {v(80+i)}, {v(F+2*i)}, {v(F+2*i+1)}")
    for i in range(8):
        e(f"v_lshlrev_b32 {v(F+2*i)}, 16, {v(80+i)}"); e(f"v_and_b32 {v(F+2*i+1)}, {s(sHI)}, {v(80+i)}")
    for i in range(8):
        e(f"v_pk_mul_f32 {v(F+2*i,2)}, {v(F+2*i,2)}, {v(SB+2*i,2)} op_sel:[0,1] op_sel_hi:[1,1]")
    for c in range(2):
        for j in range(4): e(f"v_cvt_pk_bf16_f32 {v(UU+4*c+j)}, {v(F+4*j+c)}, {v(F+4*j+2+c)}")
        e(f"ds_write_b128 v61, {v(UU+4*c,4)} offset:{UP*c}")
    trick = gw_loads() if layer == 1 else []
    e("s_waitcnt lgkmcnt(0)"); e("s_barrier")
    stamp(f"c{layer}_pro")
    vA, vB = 16, 17
    ACC = 24; SET = [64, 128]
    def loads(tp, st):
        out = []
        for q in range(8): out.append(f"ds_read_b128 {v(SET[st]+4*q,4)}, {v(vA)} offset:{64*(3 - tp) + 512*(7 - q)}")
        for tau in range(8): out.append(f"ds_read_b128 {v(SET[st]+32+4*tau,4)}, {v(vB)} offset:{512*tau + 64*(3 - tp)}")
        order = [8, 0, 9, 1, 10, 2, 11, 3, 12, 4, 13, 5, 14, 6, 15, 7]
        return [out[i] for i in order]
    for l in loads(0, 0): e(l)
    ti = 0; nm = 0
    TRK = int(OPTS.get("trk", 4))
    for tp in range(4):
        st = tp & 1
        nxt = loads(tp + 1, st ^ 1) if tp < 3 else []
        n = 0
        for T in range(8):
            if tp == 0: e(f"s_waitcnt lgkmcnt({min(15, 16 - (2*T+2) + min(n, len(nxt)))})")
            elif T == 0: e("s_waitcnt lgkmcnt(0)")
            for q in range(T + 1):
                c_ = "0" if (tp == 0 and q == 0) else v(ACC+4*T, 4)
                e(f"v_mfma_f32_16x16x32_bf16 {v(ACC+4*T,4)}, {v(SET[st]+4*q,4)}, {v(SET[st]+32+4*(T-q),4)}, {c_}")
                nm += 1
                if not (tp == 0 and T < 3) and n < len(nxt):
                    e(nxt[n]); n += 1
                if ti < len(trick) and nm % TRK == 0:
                    for l in trick[ti]: e(l)
                    ti += 1
        while n < len(nxt): e(nxt[n]); n += 1
    stamp(f"c{layer}_mm")
    lp1 = lab("p1"); lj = lab("pj")
    for k in range(4):
        e(f"ds_read_b64 {v(64+2*k,2)}, v57 offset:{512*k}"); e(f"ds_read_b64 {v(72+2*k,2)}, v58 offset:{512*k}")
    e("s_cmp_eq_u32 s5, 1"); e(f"s_cbranch_scc1 {lp1}")
    for k in range(4): e(f"ds_write_b128 v59, {v(ACC+16+4*k,4)} offset:{1024*k}")
    e(f"s_branch {lj}")
    A.label(lp1)
    e("s_nop 7")
    for k in range(4): e(f"ds_write_b128 v59, {v(ACC+4*k,4)} offset:{1024*k}")
    for k in range(8): e(f"v_mov_b64 {v(ACC+2*k,2)}, {v(ACC+16+2*k,2)}")
    A.label(lj)
    e(f"s_mov_b32 {s(sT+4)}, {s(sDSKV)}"); e(f"s_mov_b32 {s(sT+5)}, {s(sDSKV)}")
    e("s_waitcnt lgkmcnt(4)")
    for k in range(4):
        for j in range(2):
            e(f"v_lshlrev_b32 {v(96+4*k+2*j)}, 16, {v(64+2*k+j)}"); e(f"v_and_b32 {v(97+4*k+2*j)}, {s(sHI)}, {v(64+2*k+j)}")
            e(f"v_lshlrev_b32 {v(112+4*k+2*j)}, 16, {v(72+2*k+j)}"); e(f"v_and_b32 {v(113+4*k+2*j)}, {s(sHI)}, {v(72+2*k+j)}")
    e("s_waitcnt lgkmcnt(0)"); e("s_barrier")
    for k in range(4): e(f"ds_read_b128 {v(80+4*k,4)}, v60 offset:{1024*k}")
    for k in range(8):
        e(f"v_pk_fma_f32 {v(96+2*k,2)}, {v(96+2*k,2)}, {s(sT+4,2)}, {v(112+2*k,2)}")
    for k in range(8):
        e(f"v_pk_add_f32 {v(96+2*k,2)}, {v(96+2*k,2)}, {v(ACC+2*k,2)}")
    for k in range(4):
        e(f"s_waitcnt lgkmcnt({3-k})")
        e(f"v_pk_add_f32 {v(96+4*k,2)}, {v(96+4*k,2)}, {v(80+4*k,2)}"); e(f"v_pk_add_f32 {v(98+4*k,2)}, {v(98+4*k,2)}, {v(82+4*k,2)}")
        e(f"v_cvt_pk_bf16_f32 {v(64+2*k)}, {v(96+4*k)}, {v(97+4*k)}"); e(f"v_cvt_pk_bf16_f32 {v(65+2*k)}, {v(98+4*k)}, {v(99+4*k)}")
        e(f"buffer_store_dwordx2 {v(64+2*k,2)}, v56, {s(sSRD,4)}, s6 offen offset:{512*k} sc1")
    return trick[ti:]

NCSK, NCSV, NCSQ = 2, 4, 6
XRES = 184
def ones_regs(r):
    for i in range(4): e(f"v_mov_b32 {v(r+i)}, 0x3f803f80")
def colsums():
    ON = 152
    for ks in range(16):
        c0 = lambda r: "0" if ks == 0 else v(r, 4)
        e(f"v_mfma_f32_16x16x32_bf16 v[28:31], {v(ON,4)}, {a((0*16+ks)*4,4)}, {c0(28)}")
        e(f"v_mfma_f32_16x16x32_bf16 v[32:35], {v(ON,4)}, {a((1*16+ks)*4,4)}, {c0(32)}")
        e(f"v_mfma_f32_16x16x32_bf16 v[36:39], {a((2*16+ks)*4,4)}, {v(ON,4)}, {c0(36)}")
    e(f"v_sub_f32 {v(NCSK)}, 0, v28"); e(f"v_sub_f32 {v(NCSK+1)}, 0, v28")
    e(f"v_sub_f32 {v(NCSV)}, 0, v32"); e(f"v_sub_f32 {v(NCSV+1)}, 0, v32")
    for i in range(4): e(f"v_sub_f32 {v(NCSQ+i)}, 0, {v(36+i)}")

TA = 12
gXE, gXO, gSW, gS4, gQA, gPQ, gKV = 156, 157, 158, 160, 164, 168, 169
def g_setup(layer):
    xt = XT1 if layer == 1 else XT3
    e("v_lshrrev_b32 v10, 3, v1"); e(f"v_mul_u32_u24 v10, {PITCH}, v10")
    e("v_bfe_u32 v11, v1, 4, 2"); e("v_lshlrev_b32 v11, 1, v11"); e("v_and_b32 v16, 7, v1"); e("v_xor_b32 v11, v11, v16")
    e("v_lshl_add_u32 v10, v11, 4, v10")
    e(f"s_lshl_b32 {s(sT)}, {s(sRS)}, 7"); e(f"v_add_u32 v19, {s(sT)}, v10")
    e(f"s_mul_i32 s4, {s(sWAVE)}, {32*PITCH}"); e(f"s_add_u32 s4, s4, {xt}")
    e(f"s_lshl_b32 s5, {s(sWAVE)}, 12"); e(f"s_add_u32 s5, s5, {AT}")
    e("v_lshrrev_b32 v10, 2, v1"); e("v_lshlrev_b32 v10, 7, v10"); e("v_and_b32 v11, 3, v1"); e("v_lshl_add_u32 v10, v11, 3, v10")
    e(f"v_add_u32 v10, {AT}, v10"); e("v_bfe_u32 v11, v1, 3, 2")
    for j in range(4):
        e(f"s_add_u32 {s(sT)}, {s(sWAVE)}, {j}"); e(f"s_and_b32 {s(sT)}, {s(sT)}, 3"); e(f"s_lshl_b32 {s(sM+j)}, {s(sT)}, 6")
        e(f"v_xor_b32 v16, {s(sT)}, v11"); e(f"v_lshl_add_u32 {v(TA+j)}, v16, 5, v10")
    ones_regs(152)
    e("v_lshrrev_b32 v11, 5, v1"); e("v_lshlrev_b32 v11, 4, v11"); e("v_bfe_u32 v16, v1, 2, 2"); e("v_add_u32 v11, v11, v16")
    e(f"s_lshl_b32 {s(sT)}, {s(sJO)}, 7"); e(f"s_lshl_b32 {s(sT+1)}, {s(sWAVE)}, 5"); e(f"s_add_u32 {s(sT)}, {s(sT)}, {s(sT+1)}")
    e(f"v_add_u32 v11, {s(sT)}, v11"); e("v_lshlrev_b32 v11, 7, v11")
    e("v_and_b32 v16, 3, v1"); e("v_lshl_add_u32 v11, v16, 3, v11"); e(f"v_add_u32 v11, {AT}, v11")
    e(f"s_and_b32 {s(sT)}, {s(sJ)}, 1"); e(f"s_lshl_b32 {s(sT)}, {s(sT)}, 1")
    e("v_bfe_u32 v16, v1, 4, 1"); e(f"v_add_u32 v16, {s(sT)}, v16"); e("v_bfe_u32 v17, v1, 3, 1"); e("v_xor_b32 v16, v16, v17")
    e(f"v_lshl_add_u32 {v(gXE)}, v16, 5, v11"); e("v_xor_b32 v16, 2, v16"); e(f"v_lshl_add_u32 {v(gXO)}, v16, 5, v11")
    e("v_and_b32 v10, 15, v1"); e("v_lshlrev_b32 v10, 2, v10"); e(f"v_add_u32 v11, {ST}, v10")
    e(f"s_lshl_b32 {s(sT)}, {s(sWAVE)}, 6"); e(f"v_add_u32 {v(gSW)}, {s(sT)}, v11")
    e("v_lshrrev_b32 v10, 4, v1"); e("v_lshlrev_b32 v10, 4, v10"); e(f"v_add_u32 v10, {ST}, v10")
    for j in range(4):
        e(f"v_add_u32 {v(gS4+j)}, {s(sM+j)}, v10"); e(f"v_add_u32 {v(gQA+j)}, {s(sM+j)}, v11")
    e("v_and_b32 v10, 15, v1"); e("v_lshlrev_b32 v10, 5, v10"); e("v_lshrrev_b32 v11, 4, v1"); e(f"v_lshl_add_u32 {v(gPQ)}, v11, 3, v10")
    e(f"v_lshlrev_b32 {v(gKV)}, 2, v1")
    kvp_addr(KVP1 if layer == 1 else KVP2, 6)
    pq_addr(PQ1 if layer == 1 else PQ2, 7)
    e("v_and_b32 v10, 3, v1")
    e(f"v_cmp_eq_u32 {s(sM+4,2)}, 1, v10"); e(f"v_cmp_eq_u32 {s(sM+6,2)}, 2, v10"); e(f"v_cmp_eq_u32 s[2:3], 3, v10") if False else None
    if layer == 1:
        e("v_lshlrev_b32 v18, 4, v1")
        e(f"s_lshl_b32 {s(sW)}, {s(sJO)}, 2"); e(f"s_add_u32 {s(sW)}, {s(sW)}, {s(sWAVE)}")
        e(f"s_lshl_b32 {s(sW)}, {s(sW)}, 15"); e(f"s_add_u32 {s(sW)}, {s(sW)}, {WFO}")

def gphase(layer):
    kvp = KVP1 if layer == 1 else KVP2
    ff = F1 if layer == 1 else F2
    def dma(c, i):
        return [f"s_add_u32 {s(sT)}, s4, {(128*c + 8*i)*PITCH}", f"s_add_u32 m0, s5, {c*16384 + i*1024}",
                f"buffer_load_dwordx4 v19, {s(sSRD,4)}, {s(sT)} offen sc1 lds"]
    for c in range(4):
        for i in range(4):
            for l in dma(c, i): e(l)
    XF = [64, 80]
    AK, AV, AQ, GR, RS_, ON = 96, 112, 128, 144, 148, 152
    trick = ow_loads() if layer == 1 else []
    def reads(ks):
        out = []
        for j in range(4):
            out.append(f"ds_read_b64_tr_b16 {v(XF[ks&1]+4*j,2)}, {v(TA+j)} offset:{ks*4096}")
            out.append(f"ds_read_b64_tr_b16 {v(XF[ks&1]+4*j+2,2)}, {v(TA+j)} offset:{ks*4096+2048}")
        return out
    stamp(f"g{layer}_iss")
    e("s_waitcnt vmcnt(12)"); e("s_barrier")
    stamp(f"g{layer}_ld0")
    for l in reads(0): e(l)
    ti = 0; nw = 0; nm = 0
    TRG = int(OPTS.get("trg", 6))
    for ks in range(16):
        nxt = []
        if ks < 15:
            if (ks + 1) % 4 == 0:
                c = (ks + 1) // 4
                e(f"s_waitcnt vmcnt({min(63, 4*(3-c) + nw)})"); e("s_barrier")
            nxt = reads(ks + 1)
        x = XF[ks & 1]
        e("s_waitcnt lgkmcnt(0)")
        z = lambda r: "0" if ks == 0 else v(r, 4)
        mf = []
        for j in range(4):
            mf.append(f"v_mfma_f32_16x16x32_bf16 {v(AK+4*j,4)}, {v(x+4*j,4)}, {a((0*16+ks)*4,4)}, {z(AK+4*j)}")
            mf.append(f"v_mfma_f32_16x16x32_bf16 {v(AV+4*j,4)}, {v(x+4*j,4)}, {a((1*16+ks)*4,4)}, {z(AV+4*j)}")
            mf.append(f"v_mfma_f32_16x16x32_bf16 {v(AQ+4*j,4)}, {a((2*16+ks)*4,4)}, {v(x+4*j,4)}, {z(AQ+4*j)}")
        mf.insert(1, f"v_mfma_f32_16x16x32_bf16 {v(GR,4)}, {v(x,4)}, {v(x,4)}, {z(GR)}")
        mf.insert(3, f"v_mfma_f32_16x16x32_bf16 {v(RS_,4)}, {v(ON,4)}, {v(x,4)}, {z(RS_)}")
        for m_i, m_ in enumerate(mf):
            e(m_); nm += 1
            if m_i < len(nxt): e(nxt[m_i])
            if ks >= 4 and ti < len(trick) and nm % TRG == 0:
                for l in trick[ti]: e(l)
                ti += 1; nw += 1
    rest = trick[ti:]
    stamp(f"g{layer}_mm")
    for jj in range(4):
        e(f"ds_read_b64_tr_b16 {v(XRES+2*jj,2)}, {v(gXE + (jj & 1))} offset:{512*jj}")
    e("v_and_b32 v10, 3, v1")
    e(f"v_cmp_eq_u32 {s(sM+4,2)}, 1, v10"); e(f"v_cmp_eq_u32 {s(sM+6,2)}, 2, v10"); e("v_cmp_eq_u32 vcc, 3, v10")
    e(f"v_cndmask_b32 v11, {v(GR)}, {v(GR+1)}, {s(sM+4,2)}")
    e(f"v_cndmask_b32 v11, v11, {v(GR+2)}, {s(sM+6,2)}")
    e(f"v_cndmask_b32 v11, v11, {v(GR+3)}, vcc")
    stats_final(RS_, 11, 16, 17, 20)
    e("v_mul_f32 v16, v16, v17")
    e(f"s_mov_b32 {s(sT+2)}, 0x00f0000f"); e(f"s_mov_b32 {s(sT+3)}, 0xf0000f00")
    e(f"s_mov_b64 exec, {s(sT+2,2)}")
    e(f"ds_write_b32 {v(gSW)}, v17"); e(f"ds_write_b32 {v(gSW)}, v16 offset:256")
    e("s_mov_b64 exec, -1")
    R4, M4, RQ, MQ = 24, 40, 56, 64
    e("s_waitcnt lgkmcnt(0)"); e("s_barrier")
    for j in range(4):
        e(f"ds_read_b128 {v(R4+4*j,4)}, {v(gS4+j)}"); e(f"ds_read_b128 {v(M4+4*j,4)}, {v(gS4+j)} offset:256")
    for j in range(4):
        e(f"ds_read_b32 {v(RQ+2*j)}, {v(gQA+j)}"); e(f"ds_read_b32 {v(MQ+2*j)}, {v(gQA+j)} offset:256")
    stamp(f"g{layer}_st")
    PK, VV = 72, 80
    def phi2(items):
        for (rp, acc, mp, ncs, dst, T, bro) in items:
            e(f"v_pk_fma_f32 {v(T,2)}, {v(mp,2)}, {v(ncs,2)}, {s(sEPS6,2)}" + (" op_sel_hi:[0,1,1]" if bro else ""))
        for (rp, acc, mp, ncs, dst, T, bro) in items:
            e(f"v_pk_fma_f32 {v(T,2)}, {v(rp,2)}, {v(acc,2)}, {v(T,2)}" + (" op_sel_hi:[0,1,1]" if bro else ""))
        for (rp, acc, mp, ncs, dst, T, bro) in items: e(f"v_pk_mul_f32 {v(T+2,2)}, {v(T,2)}, {s(sLOG2E,2)}")
        for (rp, acc, mp, ncs, dst, T, bro) in items:
            e(f"v_exp_f32 {v(T+2)}, {v(T+2)} clamp"); e(f"v_exp_f32 {v(T+3)}, {v(T+3)} clamp")
        for (rp, acc, mp, ncs, dst, T, bro) in items:
            e(f"v_max_f32 {v(T)}, {s(sEPS6)}, {v(T)}"); e(f"v_max_f32 {v(T+1)}, {s(sEPS6)}, {v(T+1)}")
        for (rp, acc, mp, ncs, dst, T, bro) in items: e(f"v_pk_add_f32 {v(T,2)}, {v(T,2)}, {v(T+2,2)}")
        for (rp, acc, mp, ncs, dst, T, bro) in items: e(f"v_cvt_pk_bf16_f32 {v(dst)}, {v(T)}, {v(T+1)}")
    for j in range(4):
        e(f"s_waitcnt lgkmcnt({min(15, 8 + 2*(3-j))})")
        items = [(R4+4*j+2*hp, AK+4*j+2*hp, M4+4*j+2*hp, NCSK, PK+2*j+hp, 88 + 4*hp, False) for hp in range(2)]
        for hp in range(2):
            T = 104 + 2*hp if False else 172 + 2*hp
            e(f"v_pk_mul_f32 {v(T,2)}, {v(M4+4*j+2*hp,2)}, {v(NCSV,2)}")
        for hp in range(2):
            T = 172 + 2*hp
            e(f"v_pk_fma_f32 {v(T,2)}, {v(R4+4*j+2*hp,2)}, {v(AV+4*j+2*hp,2)}, {v(T,2)}")
        phi2(items)
        for hp in range(2):
            T = 172 + 2*hp
            e(f"v_cvt_pk_bf16_f32 {v(VV+2*j+hp)}, {v(T)}, {v(T+1)}")
        if j == 1:
            e(f"v_mfma_f32_16x16x32_bf16 {v(GR,4)}, {v(VV,4)}, {v(PK,4)}, 0")
            e(f"v_mfma_f32_16x16x32_bf16 {v(RS_,4)}, {v(ON,4)}, {v(PK,4)}, 0")
    e(f"v_mfma_f32_16x16x32_bf16 {v(GR,4)}, {v(VV+4,4)}, {v(PK+4,4)}, {v(GR,4)}")
    e(f"v_mfma_f32_16x16x32_bf16 {v(RS_,4)}, {v(ON,4)}, {v(PK+4,4)}, {v(RS_,4)}")
    PQR = 96
    e("s_waitcnt lgkmcnt(0)")
    phi2([(RQ, AQ+2*hp, MQ, NCSQ+2*hp, PQR+hp, 88 + 4*hp, True) for hp in range(2)])
    for i in range(4):
        e(f"buffer_store_dword {v(GR+i)}, {v(gKV)}, {s(sSRD,4)}, s6 offen offset:{256*i} sc1")
    e("s_mov_b64 exec, 0xffff")
    e(f"buffer_store_dword {v(RS_)}, {v(gKV)}, {s(sSRD,4)}, s6 offen offset:1024 sc1")
    e("s_mov_b64 exec, -1")
    stamp(f"g{layer}_kv")
    for j in range(1, 4):
        phi2([(RQ+2*j, AQ+4*j+2*hp, MQ+2*j, NCSQ+2*hp, PQR+2*j+hp, 88 + 4*hp, True) for hp in range(2)])
    for j in range(4):
        e(f"s_lshl_b32 {s(sT+2)}, {s(sM+j)}, 3"); e(f"s_add_u32 {s(sT+2)}, {s(sT+2)}, s7")
        e(f"buffer_store_dwordx2 {v(PQR+2*j,2)}, {v(gPQ)}, {s(sSRD,4)}, {s(sT+2)} offen sc1")
    for ins in rest:
        for l in ins: e(l)
    lred = lab("red")
    e(f"s_cmp_lg_u32 {s(sWAVE)}, 3"); e(f"s_cbranch_scc1 {lred}")
    e(f"s_lshl_b32 {s(sT)}, {s(sJ)}, 5"); e(f"s_mul_i32 {s(sT)}, {s(sT)}, {KVW}")
    e(f"s_lshr_b32 {s(sT+1)}, {s(sRS)}, 3"); e(f"s_mul_i32 {s(sT+1)}, {s(sT+1)}, {KVH}"); e(f"s_add_u32 {s(sT)}, {s(sT)}, {s(sT+1)}")
    e(f"s_add_u32 {s(sT)}, {s(sT)}, {kvp}")
    e(f"s_and_b32 {s(sT+2)}, {s(sRS)}, 7"); e(f"s_lshl_b32 {s(sT+3)}, {s(sT+2)}, 7")
    e("v_lshrrev_b32 v10, 3, v1"); e(f"v_mul_u32_u24 v10, {KVW}, v10"); e("v_and_b32 v11, 7, v1"); e("v_lshl_add_u32 v11, v11, 4, v10")
    e(f"v_add_u32 v11, {s(sT+3)}, v11")
    e("v_and_b32 v12, 3, v1"); e("v_lshl_add_u32 v12, v12, 4, v10"); e("v_add_u32 v12, 1024, v12")
    lr = lab("rp"); lg = lab("rg")
    A.label(lr)
    for i in range(4):
        e(f"s_add_u32 {s(sT+4)}, {s(sT)}, {8*i*KVW}")
        e(f"buffer_load_dwordx4 {v(24+4*i,4)}, v11, {s(sSRD,4)}, {s(sT+4)} offen sc1")
        e(f"buffer_load_dwordx4 {v(40+4*i,4)}, v12, {s(sSRD,4)}, {s(sT+4)} offen sc1")
    e("s_waitcnt vmcnt(0)")
    maxtree([24, 28, 32, 36, 40, 44, 48, 52], 56)
    e("v_cmp_eq_u32 vcc, -1, v56")
    spin_check(lr, lg)
    stamp(f"r{layer}_ok")
    for b in (24, 40):
        for h2 in range(2):
            e(f"v_pk_add_f32 {v(b+2*h2,2)}, {v(b+2*h2,2)}, {v(b+4+2*h2,2)}"); e(f"v_pk_add_f32 {v(b+8+2*h2,2)}, {v(b+8+2*h2,2)}, {v(b+12+2*h2,2)}")
    for b in (24, 40):
        for h2 in range(2):
            e(f"v_pk_add_f32 {v(b+2*h2,2)}, {v(b+2*h2,2)}, {v(b+8+2*h2,2)}")
    regs = [24, 25, 26, 27, 40, 41, 42, 43]
    for r in regs: e(f"v_add_f32_dpp {v(r)}, {v(r)}, {v(r)} row_ror:8 row_mask:0xf bank_mask:0xf")
    for r in regs: e(f"v_mov_b32 {v(r+4)}, {v(r)}")
    for r in regs: e(f"v_permlane16_swap_b32 {v(r)}, {v(r+4)}")
    for r in regs: e(f"v_add_f32 {v(r)}, {v(r)}, {v(r+4)}")
    for r in regs: e(f"v_mov_b32 {v(r+4)}, {v(r)}")
    for r in regs: e(f"v_permlane32_swap_b32 {v(r)}, {v(r+4)}")
    for r in regs: e(f"v_add_f32 {v(r)}, {v(r)}, {v(r+4)}")
    e("v_cvt_pk_bf16_f32 v28, v24, v25"); e("v_cvt_pk_bf16_f32 v29, v26, v27")
    e("v_cvt_pk_bf16_f32 v30, v40, v41"); e("v_cvt_pk_bf16_f32 v31, v42, v43")
    f_addr(ff, sT + 1)
    e(f"s_lshl_b32 {s(sT+3)}, {s(sT+2)}, 6"); e(f"v_lshl_add_u32 v10, v1, 3, {s(sT+3)}")
    e("s_mov_b64 exec, 0xff")
    e(f"buffer_store_dwordx2 v[28:29], v10, {s(sSRD,4)}, {s(sT+1)} offen sc1")
    e(f"s_cmp_lg_u32 {s(sT+2)}, 0"); e(f"s_cbranch_scc1 {lred}_z")
    e("s_mov_b64 exec, 0xf")
    e(f"buffer_store_dwordx2 v[30:31], v10, {s(sSRD,4)}, {s(sT+1)} offen offset:512 sc1")
    A.label(lred + "_z")
    e("s_mov_b64 exec, -1")
    A.label(lred)

def ophase(layer):
    pq = PQ1 if layer == 1 else PQ2
    ff = F1 if layer == 1 else F2
    KF, PQF = 24, 56
    e("v_and_b32 v10, 3, v1"); e("v_lshlrev_b32 v10, 2, v10"); e("v_bfe_u32 v11, v1, 2, 2"); e("v_add_u32 v10, v10, v11")
    e("v_and_b32 v11, 16, v1"); e("v_cmp_ne_u32 vcc, 0, v11"); e("v_cndmask_b32 v10, v10, v11, vcc")
    e("v_lshlrev_b32 v10, 5, v10"); e("v_lshrrev_b32 v11, 5, v1"); e("v_lshl_add_u32 v10, v11, 4, v10")
    e(f"s_lshl_b32 {s(sT)}, {s(sWAVE)}, 3"); e(f"s_mul_i32 s4, {s(sT)}, {FP}"); e(f"s_add_u32 s4, s4, {ff}")
    e("v_and_b32 v11, 31, v1"); e("v_lshlrev_b32 v11, 5, v11"); e("v_lshrrev_b32 v12, 5, v1"); e("v_lshl_add_u32 v11, v12, 4, v11")
    e(f"s_mul_i32 s5, {s(sT)}, {HP}"); e(f"s_add_u32 s5, s5, {pq}")
    e(f"s_lshl_b32 {s(sT+3)}, {s(sRO)}, 10"); e(f"s_add_u32 s5, s5, {s(sT+3)}")
    e(f"s_lshl_b32 {s(sT)}, {s(sWAVE)}, 13"); e(f"s_add_u32 {s(sT)}, {s(sT)}, {OT}")
    e(f"v_lshl_add_u32 v12, v1, 4, {s(sT)}")
    e(f"v_lshlrev_b32 v13, 4, v1"); e(f"v_add_u32 v13, {OT}, v13")
    if layer == 1:
        e("v_and_b32 v14, 31, v1"); e(f"v_mul_u32_u24 v14, {TBP}, v14"); e("v_lshrrev_b32 v15, 5, v1"); e("v_lshl_add_u32 v14, v15, 5, v14")
        e(f"s_mul_i32 {s(sT+4)}, {s(sWAVE)}, {32*TBP}"); e(f"s_add_u32 {s(sT+4)}, {s(sT+4)}, {TB}"); e(f"v_add_u32 v14, {s(sT+4)}, v14")
        e("v_lshrrev_b32 v15, 4, v1"); e("v_lshlrev_b32 v15, 3, v15"); e("v_bfe_u32 v16, v1, 2, 2"); e("v_add_u32 v15, v15, v16")
        e(f"v_mul_u32_u24 v15, {TBP}, v15"); e("v_and_b32 v16, 3, v1"); e("v_lshl_add_u32 v15, v16, 3, v15"); e(f"v_add_u32 v15, {s(sT+4)}, v15")
        e("v_and_b32 v16, 15, v1"); e(f"v_mul_u32_u24 v16, {PITCH}, v16"); e("v_lshrrev_b32 v17, 4, v1"); e("v_lshl_add_u32 v16, v17, 4, v16")
        e(f"s_lshl_b32 s6, {s(sJO)}, 7"); e(f"s_lshl_b32 {s(sT+1)}, {s(sWAVE)}, 5"); e(f"s_add_u32 s6, s6, {s(sT+1)}")
        e(f"s_mul_i32 s6, s6, {PITCH}"); e(f"s_lshl_b32 {s(sT+1)}, {s(sRO)}, 6"); e(f"s_add_u32 s6, s6, {s(sT+1)}")
        e(f"s_add_u32 s6, s6, {X2T}")
        e("v_and_b32 v17, 31, v1"); e("v_lshlrev_b32 v17, 3, v17"); e("v_lshrrev_b32 v18, 5, v1"); e("v_lshl_add_u32 v17, v18, 2, v17")
        e(f"s_lshl_b32 s7, {s(sRO)}, 8"); e(f"s_add_u32 s7, s7, {S3}")
    else:
        e("v_and_b32 v14, 31, v1"); e("v_lshlrev_b32 v14, 10, v14"); e("v_lshrrev_b32 v15, 5, v1"); e("v_lshl_add_u32 v14, v15, 5, v14")
        e(f"s_lshl_b32 {s(sT)}, {s(sRO)}, 15"); e(f"s_lshl_b32 {s(sT+1)}, {s(sJO)}, 8"); e(f"s_add_u32 {s(sT)}, {s(sT)}, {s(sT+1)}")
        e(f"s_lshl_b32 {s(sT+1)}, {s(sWAVE)}, 6"); e(f"s_add_u32 {s(sT)}, {s(sT)}, {s(sT+1)}")
        e(f"v_add_u32 v14, {s(sT)}, v14")
    XF = 104
    def pq_loads():
        for h in range(8):
            e(f"s_add_u32 {s(sT+3)}, s5, {h*HP}")
            e(f"buffer_load_dwordx4 {v(PQF+4*h,4)}, v11, {s(sSRD,4)}, {s(sT+3)} offen sc1")
    e("s_barrier")
    stamp(f"o{layer}_gate")
    pq_loads()
    lr = lab("of"); lg = lab("ofk")
    A.label(lr)
    for h in range(8):
        if h*FP < 4096: e(f"buffer_load_dwordx4 {v(KF+4*h,4)}, v10, {s(sSRD,4)}, s4 offen offset:{h*FP} sc1")
        else:
            e(f"s_add_u32 {s(sT+3)}, s4, {h*FP}")
            e(f"buffer_load_dwordx4 {v(KF+4*h,4)}, v10, {s(sSRD,4)}, {s(sT+3)} offen sc1")
    e("s_waitcnt vmcnt(0)")
    maxtree([KF+4*h for h in range(8)], 18)
    e("v_cmp_eq_u32 vcc, -1, v18")
    spin_check(lr, lg)
    lr = lab("oq"); lg = lab("oqk")
    A.label(lr)
    maxtree([PQF+4*h for h in range(8)], 18)
    e("v_cmp_eq_u32 vcc, -1, v18")
    e(f"s_cbranch_vccz {lg}")
    e(f"s_sub_u32 {s(sSPIN)}, {s(sSPIN)}, 1"); e(f"s_cbranch_scc1 {lg}_x")
    pq_loads()
    e("s_waitcnt vmcnt(0)")
    e(f"s_branch {lr}")
    A.label(lg + "_x"); e(f"s_mov_b32 {s(sSPIN)}, 0")
    A.label(lg)
    stamp(f"o{layer}_ld")
    DB = [88, 104, 120, 136, 152, 168]
    def m1(h): e(f"v_mfma_f32_32x32x16_bf16 {v(DB[h % 6],16)}, {v(KF+4*h,4)}, {v(PQF+4*h,4)}, 0")
    def proc(h):
        d = DB[h % 6]
        e(f"v_add_f32 {v(d+8)}, {s(sEPS6)}, {v(d+8)}")
        e(f"v_rcp_f32 {v(d+8)}, {v(d+8)}")
        for k in range(4): e(f"v_pk_mul_f32 {v(d+2*k,2)}, {v(d+2*k,2)}, {v(d+8,2)} op_sel_hi:[1,0]")
        for k in range(4): e(f"v_cvt_pk_bf16_f32 {v(d+10+k)}, {v(d+2*k)}, {v(d+2*k+1)}")
        e(f"ds_write_b128 v12, {v(d+10,4)} offset:{1024*h}")
    for h in range(6): m1(h)
    proc(0); m1(6); proc(1); m1(7)
    for h in range(2, 8): proc(h)
    stamp(f"o{layer}_m1")
    e("s_waitcnt lgkmcnt(0)"); e("s_barrier")
    ACC = 24; NB = 8; OF = [56 + 4*i for i in range(NB)]
    for h in range(NB): e(f"ds_read_b128 {v(OF[h],4)}, v13 offset:{1024*h}")
    for k in range(8):
        e(f"v_lshlrev_b32 {v(XF+2*k)}, 16, {v(XRES+k)}"); e(f"v_and_b32 {v(XF+2*k+1)}, {s(sHI)}, {v(XRES+k)}")
    for h in range(32):
        e(f"s_waitcnt lgkmcnt({min(NB-1, 31-h)})")
        w_ = a(192 + 4*h, 4) if h < 16 else v(192 + 4*(h-16), 4)
        c_ = "0" if h == 0 else v(ACC, 16)
        e(f"v_mfma_f32_32x32x16_bf16 {v(ACC,16)}, {w_}, {v(OF[h % NB],4)}, {c_}")
        if h + NB < 32: e(f"ds_read_b128 {v(OF[h % NB],4)}, v13 offset:{1024*(h+NB)}")
    stamp(f"o{layer}_g2")
    for k in range(8): e(f"v_pk_add_f32 {v(XF+2*k,2)}, {v(XF+2*k,2)}, {v(ACC+2*k,2)}")
    PKD = 120
    for k in range(8): e(f"v_cvt_pk_bf16_f32 {v(PKD+k)}, {v(XF+2*k)}, {v(XF+2*k+1)}")
    if layer == 2:
        e(f"global_store_dwordx4 v14, {v(PKD,4)}, {s(sOUT,2)}")
        e(f"global_store_dwordx4 v14, {v(PKD+4,4)}, {s(sOUT,2)} offset:16")
        return
    e(f"ds_write_b128 v14, {v(PKD,4)}"); e(f"ds_write_b128 v14, {v(PKD+4,4)} offset:16")
    e(f"v_pk_add_f32 v[64:65], {v(XF,2)}, {v(XF+2,2)}"); e(f"v_pk_mul_f32 v[66:67], {v(XF,2)}, {v(XF,2)}")
    e(f"v_pk_add_f32 v[68:69], {v(XF+4,2)}, {v(XF+6,2)}"); e(f"v_pk_mul_f32 v[70:71], {v(XF+2,2)}, {v(XF+2,2)}")
    for k in range(2, 8):
        e(f"v_pk_fma_f32 {v(66+4*(k&1),2)}, {v(XF+2*k,2)}, {v(XF+2*k,2)}, {v(66+4*(k&1),2)}")
        if k >= 4: e(f"v_pk_add_f32 {v(64+4*(k&1),2)}, {v(64+4*(k&1),2)}, {v(XF+2*k,2)}")
    e("s_waitcnt lgkmcnt(0)")
    for k in range(2):
        e(f"ds_read_b64_tr_b16 {v(80+4*k,2)}, v15 offset:{32*k}")
        e(f"ds_read_b64_tr_b16 {v(82+4*k,2)}, v15 offset:{32*k + 4*TBP}")
    e("v_pk_add_f32 v[64:65], v[64:65], v[68:69]"); e("v_pk_add_f32 v[66:67], v[66:67], v[70:71]")
    e("v_add_f32 v64, v64, v65"); e("v_add_f32 v65, v66, v67")
    e("v_permlane32_swap_b32 v64, v65")
    e("v_add_f32 v64, v64, v65")
    e(f"buffer_atomic_add_f32 v64, v17, {s(sSRD,4)}, s7 offen")
    e("s_waitcnt lgkmcnt(0)")
    e(f"buffer_store_dwordx4 v[80:83], v16, {s(sSRD,4)}, s6 offen sc1")
    e(f"s_add_u32 s6, s6, {16*PITCH}")
    e(f"buffer_store_dwordx4 v[84:87], v16, {s(sSRD,4)}, s6 offen sc1")

def build():
    prologue()
    stamp("start")
    p0_issue()
    stamp("p_iss")
    e("s_waitcnt vmcnt(28)")
    e("s_waitcnt vmcnt(26)")
    stamp("p_ld")
    p0_stats()
    kgen_setup()
    e("s_waitcnt vmcnt(25)"); e("s_barrier")
    p0_wfrag()
    stamp("p_st")
    kgen_round(["X1", "X2", "Y1"], 0); kgen_round(["Y2"], 0)
    arrive(0)
    stamp("arr1")
    kgen_round(["X1", "X2", "Y1"], 1); kgen_round(["Y2"], 1)
    kgen_round(["X1", "X2"], 2); kgen_round(["X1", "X2"], 3)
    stamp("k_tab")
    kgen_mm()
    e("s_waitcnt lgkmcnt(0)"); e("s_barrier")
    stamp("kgen")
    if stop_here("K"): return
    conv_setup(1)
    wait(0)
    stamp("B1")
    rest = conv(1)
    arrive(1)
    stamp("C1")
    if stop_here("C1"): return
    for ins in rest:
        for l in ins: e(l)
    g_setup(1)
    e("s_waitcnt vmcnt(0)")
    colsums()
    wait(1)
    stamp("B2")
    gphase(1)
    stamp("G1")
    if stop_here("G1"): return
    ophase(1)
    arrive(2)
    stamp("O1")
    if stop_here("O1"): return
    conv_setup(2)
    wait(2)
    stamp("B4")
    conv(2)
    arrive(3)
    stamp("C2")
    if stop_here("C2"): return
    g_setup(2)
    wait(3)
    stamp("B5")
    gphase(2)
    stamp("G2")
    if stop_here("G2"): return
    ophase(2)
    if STAMPS:
        e("s_waitcnt vmcnt(0)")
        stamp("O2")
        stamps_out()

build()
A.label("L_end")
e("s_endpgm")

def rb_int(j):
    u = struct.unpack("<I", struct.pack("<f", float(j)))[0]
    u = (u + 0x7fff + ((u >> 16) & 1)) & 0xffff0000
    return int(struct.unpack("<f", struct.pack("<I", u))[0])
idx = []
for x in range(2064):
    j = 2047 - x
    if j < 0: ent = 1024
    else:
        t = rb_int(j); ent = t if t < 512 else 512 + (t - 512) // 4
    idx.append(2 * ent)

lines, nn = hazard_pass(A.lines)
probs = check_branches(lines)
for p in probs: print("BRANCH HAZARD:", p, file=sys.stderr)
hdr = open("interleave_layers__ssm_conv_s4d__linear_attn_block__prompt.s.ref").read().split("; Override launch")[0]
out = hdr + "; Override launch geometry by editing the next line.\n"
out += f"; @launch grid=(256,1,1) block=(256,1,1) lds={LDS_BYTES}\n"
out += '.amdgcn_target "amdgcn-amd-amdhsa--gfx950"\n.text\n'
out += f".globl {NAME}\n.p2align 8\n.type {NAME},@function\n{NAME}:\n"
out += "\n".join(lines) + "\n"
out += ".p2align 6\n.type L_idx,@object\nL_idx:\n"
for i in range(0, len(idx), 16): out += "  .short " + ", ".join(str(x) for x in idx[i:i+16]) + "\n"
out += "L_tab_end:\n"
out += f""".section .rodata,"a"
.p2align 6
.amdhsa_kernel {NAME}
  .amdhsa_next_free_vgpr 512
  .amdhsa_next_free_sgpr 102
  .amdhsa_accum_offset 256
  .amdhsa_group_segment_fixed_size 0
  .amdhsa_kernarg_size 104
  .amdhsa_user_sgpr_count 2
  .amdhsa_user_sgpr_kernarg_segment_ptr 1
  .amdhsa_system_sgpr_workgroup_id_x 1
  .amdhsa_float_denorm_mode_32 3
.end_amdhsa_kernel
"""
open(sys.argv[1], "w").write(out)
if STAMPS: open(sys.argv[1] + ".names", "w").write(",".join(stnames))
print(f"wrote {sys.argv[1]}: {len(lines)} lines, {nn} nops inserted; WS_USED={WS_USED:#x}", file=sys.stderr)
```

```python
import sys, struct
from asmlib import *

NAME = "interleave_layers__ssm_conv_s4d__linear_attn_block__prompt_kernel"
OPTS = {}
for x in sys.argv[2:]:
    if "=" in x:
        k_, v_ = x.split("="); OPTS[k_] = v_
STOP = OPTS.get("stop")
SPINMAX = int(OPTS.get("spin", 100000))
BK = int(OPTS.get("bk", 2))

PITCH = 4224
S1 = 0x000000
S3 = 0x004000
FP = 640; FRP = 32 * FP + 128; F1 = 0x1200000 - 0x100000; F2 = F1 + 0x40000
STAMP_OFF = 0x020000
NW = 0x00F000
CNT = 0x030000
KVP1 = 0x040000; KVH = 1152; KVW = 4 * KVH; KVP2 = KVP1 + 0x128000
WFG = 0x2A0000; WFO = WFG + 0x180000
XSZ = 0x220000
XT1 = 0x4A0000; XT3 = XT1 + XSZ; X2T = XT3 + XSZ
ROP = 32768 + 256
HP = 65536 + 256
PQ1 = X2T + XSZ; PQ2 = PQ1 + 0x210000
WS_USED = 0x1200000
assert PQ2 + 0x210000 <= F1
KC = 0; KCC = 4160; KCH = 8 * KCC
AT = 2 * KCH
MISC = AT + 65536
ST = MISC
WST = MISC + 2048
CT = WST + 8192; CTP = 2080
TB = WST; TBP = 80
LDS_BYTES = 163840
TKP = 208; TABC = 256 * TKP
U0 = AT; UP = 4608; X0 = AT + 2 * UP; RED = X0 + 8192
OT = AT

sU, sLOGA, sAIM, sCR, sCI, sLDT, sDSK = 8, 10, 12, 14, 16, 18, 20
sWQKV, sWO, sOUT, sDBG, sWS = 24, 26, 28, 30, 32
sSRD = 36; sSRD2 = 40
sWAVE, sXCD, sIDX, sCP, sRS, sJ, sRO, sJO = 44, 45, 46, 47, 48, 49, 50, 51
sSPIN = 52; sDSKV = 53
sT = 54
sLOG2E = 64; sEPS6 = 66; sM = 68; sHI = 76; sPC = 78; sINV512 = 80
sW = 34
sNON = 35

def f2u(f): return struct.unpack("<I", struct.pack("<f", f))[0]
A = Asm(); e = A.e
uid = [0]
def lab(p):
    uid[0] += 1; return f"L_{p}_{uid[0]}"

STAMPS = OPTS.get("stamps") == "1"
DEFSET = "start,arr1,kgen,B1,c1_pro,C1,B2,g1_kv,G1,o1_ld,O1,B4,c2_pro,C2,B5,G2,o2_ld,O2"
STSET = OPTS.get("st", DEFSET).split(",")
stnames = []
def stamp(name):
    if not STAMPS or name not in STSET: return
    i = len(stnames); stnames.append(name); assert i < 18
    e(f"{'s_memtime' if OPTS.get('clk') == '1' else 's_memrealtime'} s[82:83]"); e("s_waitcnt lgkmcnt(0)"); e(f"s_mov_b32 s{84+i}, s82")
def stamps_out():
    if not STAMPS: return
    if OPTS.get("dbgout"):
        l = lab("so")
        e(f"s_cmp_lg_u32 {s(sWAVE)}, 0"); e(f"s_cbranch_scc1 {l}")
        e(f"s_cmp_lg_u32 s2, {OPTS.get('dbgout')}"); e(f"s_cbranch_scc1 {l}")
        e("s_mov_b64 exec, 1")
        words = [2, 3, 5, 6, 7, 9, 10, 11, 13, 14, 15]
        for i in range(1, min(len(stnames), 12)):
            e(f"s_sub_u32 {s(sT)}, s{84+i}, s84")
            e(f"v_mov_b32 v10, {s(sT)}"); e(f"v_mov_b32 v11, {4*words[i-1]}")
            e(f"global_store_dword v11, v10, {s(sDBG,2)}")
        e("s_mov_b64 exec, -1")
        A.label(l)
        return
    l = lab("so")
    e(f"s_cmp_lg_u32 {s(sWAVE)}, {OPTS.get('stw', '0')}"); e(f"s_cbranch_scc1 {l}")
    e(f"s_lshl_b32 {s(sT)}, s2, 7"); e(f"s_add_u32 {s(sT)}, {s(sT)}, {STAMP_OFF}")
    e("s_mov_b64 exec, 1")
    for i in range(len(stnames)):
        e(f"v_mov_b32 v10, s{84+i}"); e(f"v_mov_b32 v11, {4*i}")
        e(f"buffer_store_dword v10, v11, {s(sSRD,4)}, {s(sT)} offen")
    e("s_mov_b64 exec, -1")
    A.label(l)
def stop_here(name):
    if STOP == name:
        e("s_waitcnt vmcnt(0) lgkmcnt(0)"); e("s_branch L_end"); return True
    return False

def sent_regs(r):
    for i in range(4): e(f"v_mov_b32 {v(r+i)}, -1")
def spin_check(retry, giveup, bk=None):
    e(f"s_cbranch_vccz {giveup}")
    bk = BK if bk is None else bk
    if bk: e(f"s_sleep {bk}")
    e(f"s_sub_u32 {s(sSPIN)}, {s(sSPIN)}, 1")
    e(f"s_cbranch_scc0 {retry}")
    e(f"s_mov_b32 {s(sSPIN)}, 0")
    A.label(giveup)
def maxtree(regs, dst):
    regs = list(regs); cur = regs.pop(0)
    while regs:
        if len(regs) >= 2:
            e(f"v_max3_u32 {v(dst)}, {v(cur)}, {v(regs[0])}, {v(regs[1])}"); regs = regs[2:]
        else:
            e(f"v_max_u32 {v(dst)}, {v(cur)}, {v(regs[0])}"); regs = []
        cur = dst

def arrive(k):
    e("s_waitcnt vmcnt(0) lgkmcnt(0)"); e("s_barrier")
    l = lab("arr")
    e(f"s_cmp_lg_u32 {s(sWAVE)}, 0"); e(f"s_cbranch_scc1 {l}")
    e(f"s_and_b32 {s(sT)}, s2, 15"); e(f"s_lshl_b32 {s(sT)}, {s(sT)}, {4 if k == 0 else 12}")
    if k: e(f"s_add_u32 {s(sT)}, {s(sT)}, {CNT}")
    e(f"v_mov_b32 v10, {s(sT)}"); e("v_mov_b32 v11, 1")
    e("s_mov_b64 exec, 1")
    e(f"global_atomic_add v10, v11, {s(sDBG if k == 0 else sWS,2)}")
    e("s_mov_b64 exec, -1")
    A.label(l)
def wait(k):
    l = lab("wt"); lp = lab("poll")
    e(f"s_cmp_lg_u32 {s(sWAVE)}, 0"); e(f"s_cbranch_scc1 {l}")
    e("v_and_b32 v10, 15, v0"); e(f"v_lshlrev_b32 v10, {4 if k == 0 else 12}, v10")
    if k: e(f"v_add_u32 v10, {CNT}, v10")
    e(f"s_movk_i32 {s(sT+1)}, {16 * max(k, 1)}")
    if int(OPTS.get("wpre", 12)) and k == 2: e(f"s_sleep {OPTS.get('wpre', 12)}")
    A.label(lp)
    e(f"global_load_dword v11, v10, {s(sDBG if k == 0 else sWS,2)} sc1")
    e("s_waitcnt vmcnt(0)")
    e(f"v_cmp_gt_u32 vcc, {s(sT+1)}, v11")
    spin_check(lp, l, bk=int(OPTS.get("wbk", 0)))
    e("s_barrier")

def cmul(d, x, w, t):
    return [f"v_pk_mul_f32 {v(t,2)}, {v(x,2)}, {v(w,2)} op_sel_hi:[1,0]",
            f"v_pk_fma_f32 {v(d,2)}, {v(x,2)}, {v(w,2)}, {v(t,2)} op_sel:[1,1,0] op_sel_hi:[0,1,1] neg_lo:[0,1,0]"]
def bf16r(dst, src):
    e(f"v_cvt_pk_bf16_f32 {v(dst)}, {v(src)}, {v(src)}"); e(f"v_lshlrev_b32 {v(dst)}, 16, {v(dst)}")
def stats_final(vsum, vsq, vm, vr, t, rcp=True):
    e(f"v_mul_f32 {v(t)}, {s(sINV512)}, {v(vsum)}")
    e(f"v_mul_f32 {v(t+1)}, {s(sINV512)}, {v(vsq)}")
    e(f"v_fma_f32 {v(t+1)}, -{v(t)}, {v(t)}, {v(t+1)}")
    e(f"v_max_f32 {v(t+1)}, 0, {v(t+1)}")
    e(f"v_cvt_pk_bf16_f32 {v(t)}, {v(t)}, {v(t+1)}")
    e(f"v_and_b32 {v(t+1)}, {s(sHI)}, {v(t)}"); e(f"v_lshlrev_b32 {v(vm)}, 16, {v(t)}")
    e(f"v_add_f32 {v(t+1)}, 0x3727c5ac, {v(t+1)}")
    bf16r(t + 1, t + 1)
    e(f"v_sqrt_f32 {v(t+1)}, {v(t+1)}")
    if rcp:
        bf16r(t + 1, t + 1)
        e(f"v_rcp_f32 {v(vr)}, {v(t+1)}")
    else:
        bf16r(vr, t + 1)

def kvp_addr(kvp, dst):
    e(f"s_lshl_b32 {s(dst)}, {s(sJ)}, 5"); e(f"s_add_u32 {s(dst)}, {s(dst)}, {s(sRS)}"); e(f"s_lshl_b32 {s(dst)}, {s(dst)}, 2")
    e(f"s_add_u32 {s(dst)}, {s(dst)}, {s(sWAVE)}"); e(f"s_mul_i32 {s(dst)}, {s(dst)}, {KVH}"); e(f"s_add_u32 {s(dst)}, {s(dst)}, {kvp}")
def f_addr(f, dst):
    e(f"s_lshr_b32 {s(dst)}, {s(sRS)}, 3"); e(f"s_lshl_b32 {s(sT+9)}, {s(sJ)}, 2"); e(f"s_add_u32 {s(dst)}, {s(dst)}, {s(sT+9)}")
    e(f"s_mul_i32 {s(dst)}, {s(dst)}, {FP}"); e(f"s_add_u32 {s(dst)}, {s(dst)}, {f}")
def pq_addr(pq, dst):
    e(f"s_lshl_b32 {s(dst)}, {s(sJ)}, 2"); e(f"s_add_u32 {s(dst)}, {s(dst)}, {s(sWAVE)}")
    e(f"s_mul_i32 {s(dst)}, {s(dst)}, {HP}"); e(f"s_lshl_b32 {s(sT+9)}, {s(sRS)}, 11"); e(f"s_add_u32 {s(dst)}, {s(dst)}, {s(sT+9)}")
    e(f"s_add_u32 {s(dst)}, {s(dst)}, {pq}")
def fill_g(pq, kvp, f, S):
    pq_addr(pq, sT + 1)
    e("v_lshlrev_b32 v10, 4, v1")
    e(f"buffer_store_dwordx4 {v(S,4)}, v10, {s(sSRD,4)}, {s(sT+1)} offen sc1")
    e(f"buffer_store_dwordx4 {v(S,4)}, v10, {s(sSRD,4)}, {s(sT+1)} offen offset:1024 sc1")
    kvp_addr(kvp, sT + 1)
    e(f"buffer_store_dwordx4 {v(S,4)}, v10, {s(sSRD,4)}, {s(sT+1)} offen sc1")
    e("v_lshlrev_b32 v10, 2, v1")
    e(f"s_mov_b32 {s(sT+2)}, -1"); e(f"s_mov_b32 {s(sT+3)}, 0"); e(f"s_mov_b64 exec, {s(sT+2,2)}")
    e(f"buffer_store_dword {v(S)}, v10, {s(sSRD,4)}, {s(sT+1)} offen offset:1024 sc1")
    e("s_mov_b64 exec, -1")
    f_addr(f, sT + 1)
    e(f"s_and_b32 {s(sT+2)}, {s(sRS)}, 7"); e(f"s_lshl_b32 {s(sT+3)}, {s(sT+2)}, 6")
    e("v_lshrrev_b32 v10, 3, v1"); e(f"v_mul_u32_u24 v10, {FRP}, v10"); e("v_and_b32 v11, 7, v1"); e("v_lshl_add_u32 v10, v11, 3, v10")
    e(f"v_add_u32 v11, {s(sT+3)}, v10")
    e(f"buffer_store_dwordx2 {v(S,2)}, v11, {s(sSRD,4)}, {s(sT+1)} offen sc1")
    e(f"s_cmp_eq_u32 {s(sT+2)}, 0"); e(f"s_cselect_b32 {s(sT+3)}, 512, {s(sT+3)}")
    e(f"v_add_u32 v11, {s(sT+3)}, v10")
    e(f"s_mov_b32 {s(sT+2)}, 0x0f0f0f0f"); e(f"s_mov_b32 {s(sT+3)}, 0x0f0f0f0f"); e(f"s_mov_b64 exec, {s(sT+2,2)}")
    e(f"buffer_store_dwordx2 {v(S,2)}, v11, {s(sSRD,4)}, {s(sT+1)} offen sc1")
    e("s_mov_b64 exec, -1")
    return 6

XR = 24; PRM = 32; IDX = 40; XC = 176
def prologue():
    stamp("t0")
    e(f"s_getpc_b64 {s(sPC,2)}")
    A.label("L_pc")
    e("s_cmp_ge_u32 s2, 256")
    e("s_cbranch_scc1 L_end")
    e("s_load_dwordx16 s[8:23], s[0:1], 0")
    e("s_load_dwordx8 s[24:31], s[0:1], 64")
    e("s_load_dwordx2 s[32:33], s[0:1], 96")
    e("s_memrealtime s[82:83]")
    e("v_lshlrev_b32 v10, 7, v0")
    e("v_min_u32 v11, L_tab_end - L_pc - 4, v10")
    e(f"global_load_dword v38, v11, {s(sPC,2)}")
    e("v_add_u32 v10, 0x8000, v10")
    e("v_min_u32 v10, L_tab_end - L_pc - 4, v10")
    e(f"global_load_dword v39, v10, {s(sPC,2)}")
    e("v_lshrrev_b32 v1, 6, v0")
    e(f"s_and_b32 {s(sXCD)}, s2, 7")
    e(f"s_lshr_b32 {s(sIDX)}, s2, 3")
    e(f"v_readfirstlane_b32 {s(sWAVE)}, v1")
    e(f"s_lshl_b32 {s(sCP)}, {s(sXCD)}, 5"); e(f"s_add_u32 {s(sCP)}, {s(sCP)}, {s(sIDX)}")
    e("v_and_b32 v1, 63, v0")
    e(f"s_lshl_b32 {s(sT)}, {s(sCP)}, 9"); e(f"v_lshl_add_u32 v10, v0, 1, {s(sT)}")
    e(f"s_lshl_b32 {s(sT)}, {s(sCP)}, 2"); e("v_lshrrev_b32 v12, 7, v0"); e(f"v_lshl_add_u32 v11, v12, 1, {s(sT)}")
    e(f"s_lshl_b32 {s(sT)}, s2, 13"); e(f"v_lshl_add_u32 v13, v0, 5, {s(sT)}")
    e(f"s_mul_i32 s6, s2, 5462"); e(f"s_lshr_b32 s6, s6, 16"); e(f"s_mul_i32 s7, s6, 12"); e(f"s_sub_u32 s7, s2, s7")
    e(f"s_sub_u32 {s(sT+1)}, s2, 192"); e(f"s_lshr_b32 {s(sT)}, {s(sT+1)}, 1"); e(f"s_and_b32 {s(sT+1)}, {s(sT+1)}, 1")
    e("s_cmp_ge_u32 s2, 192")
    e(f"s_cselect_b32 s6, {s(sT)}, s6"); e(f"s_cselect_b32 s7, {s(sT+1)}, s7")
    e(f"s_cselect_b32 {s(sT+2)}, 4, 5")
    e(f"s_cselect_b32 {s(sT+3)}, 2, 3")
    e(f"s_cselect_b32 {s(sT+4)}, 10, 0")
    e(f"s_movk_i32 {s(sT+5)}, 3072"); e(f"s_cselect_b32 {s(sT+5)}, 1024, {s(sT+5)}")
    e(f"s_cselect_b32 {s(sT+6)}, 9, 8")
    e(f"s_cselect_b32 {s(sT+7)}, 5, 4")
    e(f"s_lshl_b32 {s(sT)}, s6, {s(sT+2)}"); e(f"s_lshl_b32 {s(sT+1)}, {s(sWAVE)}, {s(sT+3)}"); e(f"s_add_u32 {s(sT)}, {s(sT)}, {s(sT+1)}")
    e(f"s_mul_i32 {s(sT)}, {s(sT)}, {s(sT+5)}"); e(f"s_lshl_b32 {s(sT+1)}, s7, {s(sT+6)}"); e(f"s_add_u32 s4, {s(sT)}, {s(sT+1)}")
    e(f"v_lshrrev_b32 v14, {s(sT+7)}, v1"); e(f"v_mul_lo_u32 v14, {s(sT+5)}, v14")
    e(f"s_lshl_b32 {s(sT+1)}, 1, {s(sT+7)}"); e(f"s_sub_u32 {s(sT+1)}, {s(sT+1)}, 1"); e(f"v_and_b32 v15, {s(sT+1)}, v1"); e("v_lshl_add_u32 v14, v15, 4, v14")
    e(f"s_lshl_b32 {s(sT+1)}, 64, 0"); e(f"s_lshr_b32 {s(sT+1)}, 64, {s(sT+7)}"); e(f"s_mul_i32 s5, {s(sT+1)}, {s(sT+5)}")
    e(f"s_lshl_b32 {s(sT+3)}, {s(sWAVE)}, 11"); e(f"s_add_u32 {s(sT+3)}, {s(sT+3)}, {WST}")
    e("s_cmp_ge_u32 s2, 192")
    e("s_waitcnt lgkmcnt(0)")
    stamp("karg")
    e("s_cmp_ge_u32 s2, 192")
    e(f"global_load_ushort {v(PRM)}, v10, {s(sLOGA,2)}")
    e(f"global_load_ushort {v(PRM+1)}, v10, {s(sAIM,2)}")
    e(f"global_load_ushort {v(PRM+4)}, v11, {s(sLDT,2)}")
    e(f"global_load_dwordx4 {v(XR,4)}, v13, {s(sU,2)}")
    e(f"global_load_dwordx4 {v(XR+4,4)}, v13, {s(sU,2)} offset:16")
    e(f"global_load_ushort {v(PRM+2)}, v10, {s(sCR,2)}")
    e(f"global_load_ushort {v(PRM+3)}, v10, {s(sCI,2)}")
    e(f"global_load_ushort {v(PRM+5)}, v11, {s(sDSK,2)}")
    e(f"s_cselect_b32 {s(sSRD2)}, {s(sWO)}, {s(sWQKV)}"); e(f"s_cselect_b32 {s(sSRD2+1)}, {s(sWO+1)}, {s(sWQKV+1)}")
    e(f"s_mov_b32 {s(sT)}, {512*1536*2}"); e(f"s_cselect_b32 {s(sSRD2+2)}, {512*512*2}, {s(sT)}")
    e(f"s_and_b32 {s(sSRD2+1)}, {s(sSRD2+1)}, 0xffff"); e(f"s_mov_b32 {s(sSRD2+3)}, 0x20000")
    ln = lab("nw")
    e("v_mov_b32 v23, 4")
    e(f"s_or_b32 {s(sT)}, s2, {s(sWAVE)}"); e(f"s_cmp_lg_u32 {s(sT)}, 0"); e(f"s_cbranch_scc1 {ln}")
    e(f"s_or_b32 {s(sT)}, s82, 1"); e(f"v_mov_b32 v58, {s(sT)}")
    e("s_mov_b64 exec, 1")
    e(f"global_store_dword v23, v58, {s(sDBG,2)} sc1")
    e("s_mov_b64 exec, -1")
    e("s_waitcnt vmcnt(63)")
    A.label(ln)
    e(f"global_load_dword v58, v23, {s(sDBG,2)} sc1")
    e(f"s_mov_b32 m0, {s(sT+3)}")
    e(f"buffer_load_dwordx4 v14, {s(sSRD2,4)}, s4 offen lds")
    e(f"s_add_u32 s4, s4, s5"); e(f"s_add_u32 m0, {s(sT+3)}, 1024")
    e(f"buffer_load_dwordx4 v14, {s(sSRD2,4)}, s4 offen lds")
    e(f"s_and_b32 {s(sT)}, {s(sIDX)}, 3"); e(f"s_lshl_b32 {s(sRS)}, {s(sXCD)}, 2"); e(f"s_add_u32 {s(sRS)}, {s(sRS)}, {s(sT)}")
    e(f"s_lshr_b32 {s(sJ)}, {s(sIDX)}, 2")
    e(f"s_and_b32 {s(sT)}, {s(sJ)}, 1"); e(f"s_lshl_b32 {s(sRO)}, {s(sRS)}, 1"); e(f"s_add_u32 {s(sRO)}, {s(sRO)}, {s(sT)}")
    e(f"s_lshr_b32 {s(sJO)}, {s(sJ)}, 1")
    e(f"s_mov_b32 {s(sLOG2E)}, {f2u(1.4426950408889634):#x}"); e(f"s_mov_b32 {s(sLOG2E+1)}, {s(sLOG2E)}")
    e(f"s_mov_b32 {s(sEPS6)}, {f2u(1e-6):#x}"); e(f"s_mov_b32 {s(sEPS6+1)}, {s(sEPS6)}")
    e(f"s_mov_b32 {s(sINV512)}, {f2u(1.0/512):#x}"); e(f"s_mov_b32 {s(sINV512+1)}, {s(sINV512)}")
    e(f"s_mov_b32 {s(sHI)}, 0xffff0000")
    e(f"s_mov_b32 {s(sSPIN)}, {SPINMAX}")
    e(f"s_mov_b32 {s(sSRD)}, {s(sWS)}"); e(f"s_and_b32 {s(sSRD+1)}, {s(sWS+1)}, 0xffff")
    e(f"s_mov_b32 {s(sSRD+2)}, {WS_USED:#x}"); e(f"s_mov_b32 {s(sSRD+3)}, 0x20000")

def p0_fills():
    sent_regs(20)
    fill_g(PQ1, KVP1, F1, 20); fill_g(PQ2, KVP2, F2, 20)
    e("v_mov_b32 v12, 0")
    e(f"s_lshl_b32 {s(sT)}, s2, 6"); e(f"s_add_u32 {s(sT)}, {s(sT)}, {S3}")
    e("v_lshlrev_b32 v10, 2, v1")
    e("s_mov_b64 exec, 0xffff")
    e(f"buffer_store_dword v12, v10, {s(sSRD,4)}, {s(sT)} offen sc1")
    e(f"s_lshl_b32 {s(sT+1)}, s2, 12"); e(f"s_add_u32 {s(sT+1)}, {s(sT+1)}, {CNT}")
    e("s_cmp_lt_u32 s2, 16"); e(f"s_cselect_b32 {s(sT)}, {s(sT+1)}, {s(sT)}")
    e("s_mov_b64 exec, 1")
    e(f"buffer_store_dword v12, v10, {s(sSRD,4)}, {s(sT)} offen sc1")
    e("s_mov_b64 exec, -1")

def nonce_reissue():
    e("v_mov_b32 v17, 4")
    e(f"global_load_dword v59, v17, {s(sDBG,2)} sc1")
def nonce_get():
    lr = lab("nr"); lg = lab("ng"); l0 = lab("n0")
    e("s_waitcnt vmcnt(0)")
    e("v_or_b32 v58, v58, v59")
    e(f"s_branch {l0}")
    A.label(lr)
    e(f"global_load_dword v58, v17, {s(sDBG,2)} sc1")
    e("s_waitcnt vmcnt(0)")
    A.label(l0)
    e("v_cmp_eq_u32 vcc, 0, v58")
    spin_check(lr, lg, bk=1)
    e(f"v_readfirstlane_b32 {s(sNON)}, v58")

def idx_loads():
    e(f"s_add_u32 {s(sT)}, {s(sPC)}, L_idx - L_pc"); e(f"s_addc_u32 {s(sT+1)}, {s(sPC+1)}, 0")
    e("v_and_b32 v10, 127, v0"); e("v_lshlrev_b32 v10, 4, v10")
    e(f"global_load_dwordx4 {v(IDX,4)}, v10, {s(sT,2)}")
    e(f"global_load_dwordx4 {v(IDX+4,4)}, v10, {s(sT,2)} offset:16")
    e(f"global_load_dwordx4 {v(IDX+8,4)}, v10, {s(sT,2)} offset:2048")
    e(f"global_load_dwordx4 {v(IDX+12,4)}, v10, {s(sT,2)} offset:2064")

def gather_loads():
    out = []
    for i in range(4): out.append(f"global_load_dword {v(XC+i)}, v19, {s(sU,2)} offset:{1024*i}")
    for i in range(4): out.append(f"global_load_dword {v(XC+4+i)}, v18, {s(sU,2)} offset:{1024*i}")
    return out

def p0_stats():
    F = 64
    for i in range(8):
        e(f"v_lshlrev_b32 {v(F+2*i)}, 16, {v(XR+i)}"); e(f"v_and_b32 {v(F+2*i+1)}, {s(sHI)}, {v(XR+i)}")
    for i in range(4): e(f"v_pk_add_f32 {v(80+2*i,2)}, {v(F+4*i,2)}, {v(F+4*i+2,2)}")
    e(f"v_pk_mul_f32 v[88:89], {v(F,2)}, {v(F,2)}"); e(f"v_pk_mul_f32 v[90:91], {v(F+2,2)}, {v(F+2,2)}")
    e(f"v_pk_add_f32 v[80:81], v[80:81], v[82:83]"); e(f"v_pk_add_f32 v[84:85], v[84:85], v[86:87]")
    for i in range(2, 8): e(f"v_pk_fma_f32 {v(88+2*(i&1),2)}, {v(F+2*i,2)}, {v(F+2*i,2)}, {v(88+2*(i&1),2)}")
    e(f"v_pk_add_f32 v[80:81], v[80:81], v[84:85]"); e("v_pk_add_f32 v[88:89], v[88:89], v[90:91]")
    e("v_add_f32 v80, v80, v81"); e("v_add_f32 v82, v88, v89")
    for r_ in (8, 4, 2, 1):
        e(f"v_add_f32_dpp v80, v80, v80 row_ror:{r_} row_mask:0xf bank_mask:0xf")
        e(f"v_add_f32_dpp v82, v82, v82 row_ror:{r_} row_mask:0xf bank_mask:0xf")
    e("v_add_f32_dpp v80, v80, v80 row_bcast:15 row_mask:0xa bank_mask:0xf")
    e("v_add_f32_dpp v82, v82, v82 row_bcast:15 row_mask:0xa bank_mask:0xf")
    stats_final(80, 82, 56, 57, 86, rcp=False)
    e("v_lshrrev_b32 v56, 16, v56"); e(f"v_and_or_b32 v56, v57, {s(sHI)}, v56")

def p0_stats_store():
    e(f"v_mov_b32 v57, {s(sNON)}")
    e(f"s_lshl_b32 {s(sT)}, s2, 4"); e(f"s_lshl_b32 {s(sT+1)}, {s(sWAVE)}, 12"); e(f"s_add_u32 {s(sT)}, {s(sT)}, {s(sT+1)}")
    e(f"s_add_u32 {s(sT)}, {s(sT)}, {S1}")
    e("v_lshrrev_b32 v10, 5, v1"); e(f"v_lshl_add_u32 v10, v10, 3, {s(sT)}")
    e(f"s_mov_b32 {s(sT+2)}, 0x00010000"); e(f"s_mov_b32 {s(sT+3)}, 0x00010000")
    e(f"s_mov_b64 exec, {s(sT+2,2)}")
    e(f"buffer_store_dwordx2 v[56:57], v10, {s(sSRD,4)}, 0 offen sc1")
    e("s_mov_b64 exec, -1")

def p0_wfrag():
    lo = lab("wo2"); lj = lab("wj2")
    e("s_cmp_ge_u32 s2, 192"); e(f"s_cbranch_scc1 {lo}")
    e("v_lshrrev_b32 v10, 2, v1"); e("v_lshlrev_b32 v10, 8, v10")
    e("v_and_b32 v11, 3, v1"); e("v_lshl_add_u32 v10, v11, 3, v10")
    e(f"s_lshl_b32 {s(sT)}, {s(sWAVE)}, 6"); e(f"s_add_u32 {s(sT)}, {s(sT)}, {WST}")
    e(f"v_add_u32 v10, {s(sT)}, v10")
    e("ds_read_b64_tr_b16 v[88:89], v10"); e("ds_read_b64_tr_b16 v[90:91], v10 offset:4096")
    e("ds_read_b64_tr_b16 v[92:93], v10 offset:32"); e("ds_read_b64_tr_b16 v[94:95], v10 offset:4128")
    e(f"s_lshr_b32 {s(sT)}, s7, 2")
    e(f"s_add_u32 {s(sT)}, {s(sT)}, 2"); e(f"s_cmp_ge_u32 {s(sT)}, 3")
    e(f"s_cselect_b32 {s(sT+1)}, 3, 0"); e(f"s_sub_u32 {s(sT)}, {s(sT)}, {s(sT+1)}")
    e(f"s_and_b32 {s(sT+1)}, s7, 3"); e(f"s_lshl_b32 {s(sT+1)}, {s(sT+1)}, 3")
    e(f"s_lshl_b32 {s(sT+2)}, {s(sWAVE)}, 1"); e(f"s_add_u32 {s(sT+1)}, {s(sT+1)}, {s(sT+2)}")
    e(f"s_mul_i32 {s(sT+1)}, {s(sT+1)}, 3"); e(f"s_add_u32 {s(sT+1)}, {s(sT+1)}, {s(sT)}")
    e(f"s_lshl_b32 {s(sT+1)}, {s(sT+1)}, 4"); e(f"s_add_u32 {s(sT+1)}, {s(sT+1)}, s6")
    e(f"s_lshl_b32 {s(sT+1)}, {s(sT+1)}, 10"); e(f"s_add_u32 {s(sT+1)}, {s(sT+1)}, {WFG}")
    e(f"s_add_u32 {s(sT+2)}, {s(sT+1)}, 49152")
    e(f"s_branch {lj}")
    A.label(lo)
    e("v_lshrrev_b32 v10, 5, v1"); e("v_lshlrev_b32 v10, 2, v10")
    e("v_bfe_u32 v11, v1, 2, 2"); e("v_add_u32 v10, v10, v11"); e("v_lshlrev_b32 v10, 9, v10")
    e("v_and_b32 v11, 1, v1"); e("v_lshl_add_u32 v10, v11, 5, v10")
    e("v_bfe_u32 v11, v1, 4, 1"); e("v_lshl_add_u32 v10, v11, 4, v10")
    e("v_bfe_u32 v11, v1, 1, 1"); e("v_lshl_add_u32 v10, v11, 3, v10")
    e(f"s_lshl_b32 {s(sT)}, {s(sWAVE)}, 7"); e(f"s_add_u32 {s(sT)}, {s(sT)}, {WST}")
    e(f"v_add_u32 v10, {s(sT)}, v10")
    e("ds_read_b64_tr_b16 v[88:89], v10"); e("ds_read_b64_tr_b16 v[90:91], v10 offset:4096")
    e("ds_read_b64_tr_b16 v[92:93], v10 offset:64"); e("ds_read_b64_tr_b16 v[94:95], v10 offset:4160")
    e(f"s_lshl_b32 {s(sT+1)}, s7, 3"); e(f"s_lshl_b32 {s(sT+2)}, {s(sWAVE)}, 1"); e(f"s_add_u32 {s(sT+1)}, {s(sT+1)}, {s(sT+2)}")
    e(f"s_lshl_b32 {s(sT+1)}, {s(sT+1)}, 5"); e(f"s_add_u32 {s(sT+1)}, {s(sT+1)}, s6")
    e(f"s_lshl_b32 {s(sT+1)}, {s(sT+1)}, 10"); e(f"s_add_u32 {s(sT+1)}, {s(sT+1)}, {WFO}")
    e(f"s_add_u32 {s(sT+2)}, {s(sT+1)}, 32768")
    A.label(lj)
    e("v_lshlrev_b32 v10, 4, v1")
    e("s_waitcnt lgkmcnt(0)")
    e(f"buffer_store_dwordx4 v[88:91], v10, {s(sSRD,4)}, {s(sT+1)} offen sc1")
    e(f"buffer_store_dwordx4 v[92:95], v10, {s(sSRD,4)}, {s(sT+2)} offen sc1")

def pw_multi(items, a2, b2):
    for (d, t, tm) in items:
        if t == 1:
            e(f"v_mov_b32 {v(tm)}, {v(a2)}"); e(f"v_fract_f32 {v(tm+1)}, {v(b2)}")
        else:
            c = f"{float(t)}" if t in (2, 4) else f"{f2u(float(t)):#x}"
            e(f"v_mul_f32 {v(tm)}, {c}, {v(a2)}"); e(f"v_mul_f32 {v(tm+1)}, {c}, {v(b2)}")
    for (d, t, tm) in items:
        e(f"v_exp_f32 {v(tm)}, {v(tm)}")
        if t != 1: e(f"v_fract_f32 {v(tm+1)}, {v(tm+1)}")
    for (d, t, tm) in items:
        e(f"v_cos_f32 {v(d)}, {v(tm+1)}"); e(f"v_sin_f32 {v(d+1)}, {v(tm+1)}")
    for (d, t, tm) in items:
        e(f"v_pk_mul_f32 {v(d,2)}, {v(d,2)}, {v(tm,2)} op_sel_hi:[1,0]")

W1, W4, W16, W64, W512 = 100, 102, 104, 106, 108
CH = {"X1": 112, "X2": 128, "Y1": 144, "Y2": 160}
def kgen_setup():
    for i in range(6): e(f"v_lshlrev_b32 {v(PRM+i)}, 16, {v(PRM+i)}")
    e(f"v_readfirstlane_b32 {s(sDSKV)}, {v(PRM+5)}")
    dt, are = 60, 61
    e(f"v_mul_f32 {v(dt)}, {s(sLOG2E)}, {v(PRM+4)}"); e(f"v_mul_f32 {v(are)}, {s(sLOG2E)}, {v(PRM)}")
    e(f"v_exp_f32 {v(dt)}, {v(dt)}"); e(f"v_exp_f32 {v(are)}, {v(are)}")
    e(f"v_cvt_pk_bf16_f32 {v(dt)}, {v(dt)}, {v(are)}")
    e(f"v_and_b32 {v(are)}, {s(sHI)}, {v(dt)}"); e(f"v_lshlrev_b32 {v(dt)}, 16, {v(dt)}")
    a2, b2 = 62, 63
    e(f"v_mul_f32 {v(a2)}, -{v(are)}, {v(dt)}"); e(f"v_mul_f32 {v(b2)}, {v(PRM+1)}, {v(dt)}")
    e(f"v_mul_f32 {v(a2)}, {s(sLOG2E)}, {v(a2)}"); e(f"v_mul_f32 {v(b2)}, 0.15915494, {v(b2)}")
    pw_multi([(W1, 1, 64), (W4, 4, 66), (W16, 16, 68), (W64, 64, 70), (W512, 512, 72)], a2, b2)
    e(f"v_add_f32 {v(dt)}, {v(dt)}, {v(dt)}")
    e(f"v_mul_f32 {v(CH['X1'])}, {v(PRM+2)}, {v(dt)}"); e(f"v_mul_f32 {v(CH['X1']+1)}, {v(PRM+3)}, {v(dt)}")
    for l in cmul(CH['X2'], CH['X1'], W512, 64): e(l)
    e(f"v_mov_b32 {v(CH['Y1'])}, 1.0"); e(f"v_mov_b32 {v(CH['Y1']+1)}, 0"); e(f"v_mov_b32 {v(CH['Y2'])}, 1.0"); e(f"v_mov_b32 {v(CH['Y2']+1)}, 0")
    e(f"v_lshrrev_b32 v96, 7, v0"); e(f"v_mul_u32_u24 v96, {TABC}, v96")
    e(f"v_and_b32 v97, 127, v0"); e(f"v_mul_u32_u24 v97, {TKP}, v97"); e("v_add_u32 v96, v96, v97")

def kgen_round(chains, rnd, side=None):
    Wof = {"X1": W16, "X2": W64, "Y1": W1, "Y2": W4}
    mbase = {"X1": 0, "X2": 32, "Y1": 64, "Y2": 80}
    tmp = {"X1": 64, "X2": 66, "Y1": 68, "Y2": 70}
    nval = {c: 8 for c in chains}
    if rnd == 3 and "X2" in chains: nval["X2"] = 1
    for i in range(1, 8):
        ls = [cmul(CH[c] + 2*i, CH[c] + 2*(i-1), Wof[c], tmp[c]) for c in chains if i < nval[c]]
        for k in range(2):
            for l in ls: e(l[k])
        if side and i in (1, 3, 5, 7) and len(side): e(side.pop(0))
    P = {c: 72 + 8*k for k, c in enumerate(chains)}
    for c in chains:
        neg = "-" if c[0] == "X" else ""
        for k in range(4):
            i0, i1 = (2*k, 2*k+1) if nval[c] == 8 else (0, 0)
            e(f"v_cvt_pk_bf16_f32 {v(P[c]+k)}, {v(CH[c]+2*i0)}, {v(CH[c]+2*i1)}")
            e(f"v_cvt_pk_bf16_f32 {v(P[c]+4+k)}, {neg}{v(CH[c]+2*i0+1)}, {neg}{v(CH[c]+2*i1+1)}")
        off = (mbase[c] + 8*rnd) * 2
        e(f"ds_write_b128 v96, {v(P[c],4)} offset:{off}")
        e(f"ds_write_b128 v96, {v(P[c]+4,4)} offset:{off + 128*TKP}")
    ls = [cmul(CH[c], CH[c] + 14, Wof[c], tmp[c]) for c in chains if nval[c] == 8 and not ((c[0] == "Y" and rnd == 1) or rnd == 3)]
    for k in range(2):
        for l in ls: e(l[k])

def kgen_mm(gl):
    e("s_waitcnt lgkmcnt(0)"); e("s_barrier")
    e(f"s_lshr_b32 {s(sT)}, {s(sWAVE)}, 1"); e(f"s_and_b32 {s(sT+1)}, {s(sWAVE)}, 1")
    e(f"s_mul_i32 {s(sT+2)}, {s(sT)}, {TABC}")
    e(f"s_lshl_b32 {s(sT+3)}, {s(sT+1)}, 5"); e(f"s_add_u32 {s(sT+3)}, {s(sT+3)}, 128"); e(f"s_add_u32 {s(sT+3)}, {s(sT+3)}, {s(sT+2)}")
    e(f"s_lshl_b32 {s(sT+4)}, {s(sT+1)}, 6"); e(f"s_add_u32 {s(sT+4)}, {s(sT+4)}, {s(sT+2)}")
    e("v_lshrrev_b32 v10, 2, v1"); e(f"v_mul_u32_u24 v10, {TKP}, v10"); e("v_and_b32 v11, 3, v1"); e("v_lshl_add_u32 v10, v11, 3, v10")
    e(f"v_add_u32 v11, {s(sT+3)}, v10"); e(f"v_add_u32 v12, {s(sT+4)}, v10")
    YF, XF = 64, 96
    for ks in range(8):
        o = ks * 32 * TKP
        e(f"ds_read_b64_tr_b16 {v(YF+4*ks,2)}, v11 offset:{o}"); e(f"ds_read_b64_tr_b16 {v(YF+4*ks+2,2)}, v11 offset:{o + 16*TKP}")
        for tl in range(2):
            e(f"ds_read_b64_tr_b16 {v(XF+32*tl+4*ks,2)}, v12 offset:{o + 32*tl}"); e(f"ds_read_b64_tr_b16 {v(XF+32*tl+4*ks+2,2)}, v12 offset:{o + 16*TKP + 32*tl}")
    e("v_lshrrev_b32 v13, 7, v0")
    e(f"v_mul_u32_u24 v14, {CTP}, v13"); e(f"v_add_u32 v14, {CT}, v14")
    e(f"v_mul_u32_u24 v15, {KCH}, v13"); e("v_and_b32 v13, 127, v0"); e("v_lshl_add_u32 v15, v13, 4, v15")
    e(gl.pop(0))
    for ks in range(8):
        e(f"s_waitcnt lgkmcnt({min(15, 6*(7-ks))})")
        for tl in range(2):
            c_ = "0" if ks == 0 else v(160 + 4*tl, 4)
            e(f"v_mfma_f32_16x16x32_bf16 {v(160+4*tl,4)}, {v(YF+4*ks,4)}, {v(XF+32*tl+4*ks,4)}, {c_}")
    e(f"s_mul_i32 {s(sT+2)}, {s(sT)}, {CTP}"); e(f"s_lshl_b32 {s(sT+3)}, {s(sT+1)}, 10"); e(f"s_add_u32 {s(sT+2)}, {s(sT+2)}, {s(sT+3)}")
    e(f"s_add_u32 {s(sT+2)}, {s(sT+2)}, {CT}")
    e("v_and_b32 v10, 15, v1"); e("v_lshlrev_b32 v10, 5, v10"); e("v_lshrrev_b32 v11, 4, v1"); e("v_lshl_add_u32 v10, v11, 3, v10")
    e(f"v_add_u32 v10, {s(sT+2)}, v10")
    e(f"s_mul_i32 {s(sT+2)}, {s(sT)}, {CTP}"); e(f"s_add_u32 {s(sT+2)}, {s(sT+2)}, {CT + 2048}")
    e(f"v_mov_b32 v11, {s(sT+2)}"); e("v_mov_b32 v12, 0")
    e("ds_write_b32 v11, v12")
    e(gl.pop(0))
    G = [96, 112]
    for task in range(2):
        I = IDX + 8 * task
        for k in range(8):
            e(f"v_add_u32_sdwa {v(G[task]+2*k)}, v14, {v(I+k)} dst_sel:DWORD dst_unused:UNUSED_PAD src0_sel:DWORD src1_sel:WORD_0")
            e(f"v_add_u32_sdwa {v(G[task]+2*k+1)}, v14, {v(I+k)} dst_sel:DWORD dst_unused:UNUSED_PAD src0_sel:DWORD src1_sel:WORD_1")
    for tl in range(2):
        e(f"v_cvt_pk_bf16_f32 {v(168+2*tl)}, {v(160+4*tl)}, {v(161+4*tl)}")
        e(f"v_cvt_pk_bf16_f32 {v(169+2*tl)}, {v(162+4*tl)}, {v(163+4*tl)}")
        e(f"ds_write_b64 v10, {v(168+2*tl,2)} offset:{512*tl}")
    e("s_waitcnt lgkmcnt(0)"); e("s_barrier")
    stamp("k_mm")
    e(gl.pop(0))
    for task in range(2):
        for k in range(16): e(f"ds_read_u16 {v(G[task]+k)}, {v(G[task]+k)}")
    for task in range(2):
        Dd, Dp, Sd, Sp = [(64, 72, 80, 88), (128, 136, 144, 152)][task]
        e(f"s_waitcnt lgkmcnt({15 if task == 0 else 8})")
        e(gl.pop(0))
        if task == 1: s1_issue()
        for k in range(8): e(f"v_lshl_or_b32 {v(Dd+k)}, {v(G[task]+2*k+1)}, 16, {v(G[task]+2*k)}")
        for k in range(1, 7): e(f"v_mov_b32 {v(Dp+k-1)}, {v(Dd+k)}")
        for k in range(7): e(f"v_alignbit_b32 {v(Sd+k)}, {v(Dd+k+1)}, {v(Dd+k)}, 16")
        for k in range(1, 7): e(f"v_alignbit_b32 {v(Sp+k-1)}, {v(Dd+k+1)}, {v(Dd+k)}, 16")
        for cp_ in range(8):
            ee = cp_ >> 1
            if cp_ % 2 == 0: src = Dd + ee if ee % 2 == 0 else Dp + ee - 1
            else: src = Sd + ee if ee % 2 == 0 else Sp + ee - 1
            e(f"ds_write_b128 v15, {v(src,4)} offset:{cp_*KCC + task*2048}")
    l0 = lab("zk")
    e(f"s_cmp_lg_u32 {s(sWAVE)}, 0"); e(f"s_cbranch_scc1 {l0}")
    e("v_lshrrev_b32 v10, 2, v1"); e(f"v_mul_u32_u24 v10, {KCC}, v10")
    e("v_and_b32 v11, 3, v1"); e("v_lshl_add_u32 v10, v11, 4, v10"); e("v_add_u32 v10, 4096, v10")
    e("v_mov_b32 v160, 0"); e("v_mov_b32 v161, 0"); e("v_mov_b32 v162, 0"); e("v_mov_b32 v163, 0")
    e("ds_write_b128 v10, v[160:163]")
    A.label(l0)

def s1_issue():
    e("v_lshlrev_b32 v63, 4, v0")
    for i in range(4):
        e(f"s_movk_i32 {s(sT)}, {S1 + 4096*i}")
        e(f"buffer_load_dwordx4 {v(24+4*i,4)}, v63, {s(sSRD,4)}, {s(sT)} offen sc1")
def b1_issue():
    e("v_and_b32 v20, 15, v0"); e("v_lshlrev_b32 v20, 4, v20")
    e(f"global_load_dword v21, v20, {s(sDBG,2)} sc1")
def b1_check():
    lr = lab("b1r"); lg = lab("b1k"); l0 = lab("b1c")
    e("s_waitcnt vmcnt(0)")
    e(f"s_branch {l0}")
    A.label(lr)
    e(f"global_load_dword v21, v20, {s(sDBG,2)} sc1")
    e("s_waitcnt vmcnt(0)")
    A.label(l0)
    e("v_cmp_gt_u32 vcc, 16, v21")
    spin_check(lr, lg, bk=1)

def gw_loads():
    out = []
    for f in range(48):
        out.append([f"buffer_load_dwordx4 {a(4*f,4)}, v18, {s(sSRD,4)}, {s(sW)} offen offset:{(f%4)*1024} sc1"] + ([f"s_add_u32 {s(sW)}, {s(sW)}, 4096"] if f % 4 == 3 else []))
    return out
def ow_loads():
    out = []
    for f in range(32):
        dst = a(192 + 4*f, 4) if f < 16 else v(192 + 4*(f-16), 4)
        out.append([f"buffer_load_dwordx4 {dst}, v18, {s(sSRD,4)}, {s(sW)} offen offset:{(f%4)*1024} sc1"] + ([f"s_add_u32 {s(sW)}, {s(sW)}, 4096"] if f % 4 == 3 else []))
    return out

vA, vB, vEP, vEU, vEX, vRW, vRR = 164, 165, 166, 167, 168, 169, 170
def conv_setup(layer):
    e(f"s_lshr_b32 s4, {s(sWAVE)}, 1"); e(f"s_and_b32 s5, {s(sWAVE)}, 1")
    e("v_and_b32 v10, 7, v1"); e("v_sub_u32 v10, 7, v10"); e(f"v_mul_u32_u24 v12, {KCC}, v10")
    e("v_bfe_u32 v10, v1, 5, 1"); e("v_lshlrev_b32 v13, 5, v10"); e("v_sub_u32 v12, v12, v13")
    e("v_bfe_u32 v11, v1, 4, 1"); e("v_lshl_add_u32 v12, v11, 4, v12")
    e("v_bfe_u32 v10, v1, 3, 1"); e("v_lshlrev_b32 v10, 4, v10"); e("v_sub_u32 v12, v12, v10")
    e(f"s_mul_i32 {s(sT+2)}, s4, {KCH}"); e(f"s_lshl_b32 {s(sT+3)}, s5, 8"); e(f"s_sub_u32 {s(sT+2)}, {s(sT+2)}, {s(sT+3)}")
    e(f"s_add_u32 {s(sT+2)}, {s(sT+2)}, {KC + 4080 - 3776}")
    e("v_and_b32 v10, 15, v1"); e("v_lshlrev_b32 v14, 5, v10"); e("v_sub_u32 v14, v14, v13"); e("v_lshl_add_u32 v14, v11, 4, v14")
    e(f"s_mul_i32 {s(sT+4)}, s4, {UP}"); e(f"s_sub_u32 {s(sT+4)}, {s(sT+4)}, {s(sT+3)}")
    e(f"s_add_u32 {s(sT+4)}, {s(sT+4)}, {U0 + 512 - 192}")
    e(f"v_add_u32 v16, {s(sT+2)}, v12"); e(f"v_add_u32 v17, {s(sT+4)}, v14")
    e("v_and_b32 v56, 15, v1"); e("v_lshlrev_b32 v56, 5, v56"); e("v_lshrrev_b32 v13, 4, v1"); e("v_lshl_add_u32 v56, v13, 3, v56")
    e(f"s_lshl_b32 {s(sT+2)}, s5, 11"); e(f"v_add_u32 v56, {s(sT+2)}, v56")
    e(f"s_mul_i32 {s(sT+3)}, s4, {UP}"); e(f"s_add_u32 {s(sT+3)}, {s(sT+3)}, {U0+512}"); e(f"v_add_u32 v57, {s(sT+3)}, v56")
    e(f"s_lshl_b32 {s(sT+3)}, s4, 12"); e(f"s_add_u32 {s(sT+3)}, {s(sT+3)}, {X0}"); e(f"v_add_u32 v58, {s(sT+3)}, v56")
    e(f"s_lshl_b32 {s(sT+2)}, {s(sWAVE)}, 12"); e(f"s_add_u32 {s(sT+2)}, {s(sT+2)}, {RED}"); e(f"v_lshl_add_u32 v59, v1, 4, {s(sT+2)}")
    e(f"s_xor_b32 {s(sT+2)}, {s(sWAVE)}, 1"); e(f"s_lshl_b32 {s(sT+2)}, {s(sT+2)}, 12"); e(f"s_add_u32 {s(sT+2)}, {s(sT+2)}, {RED}")
    e(f"v_lshl_add_u32 v60, v1, 4, {s(sT+2)}")
    xo = XT1 if layer == 1 else XT3
    e(f"s_lshl_b32 s6, {s(sCP)}, 1"); e("s_add_u32 s6, s6, s4"); e(f"s_mul_i32 s6, s6, {PITCH}"); e(f"s_add_u32 s6, s6, {xo}")
    e("v_lshlrev_b32 v10, 4, v0"); e(f"v_add_u32 v61, {U0 + 512}, v10"); e(f"v_add_u32 v62, {X0}, v10")
    e("v_lshlrev_b32 v63, 4, v0")
    l0 = lab("zp")
    e(f"s_cmp_lg_u32 {s(sWAVE)}, 1"); e(f"s_cbranch_scc1 {l0}")
    e("v_lshrrev_b32 v11, 5, v1"); e(f"v_mul_u32_u24 v11, {UP}, v11"); e("v_and_b32 v12, 31, v1"); e("v_lshl_add_u32 v11, v12, 4, v11")
    e(f"v_add_u32 v11, {U0}, v11")
    e("v_mov_b32 v12, 0"); e("v_mov_b32 v13, 0"); e("v_mov_b32 v14, 0"); e("v_mov_b32 v15, 0")
    e("ds_write_b128 v11, v[12:15]")
    A.label(l0)
    XX = 40; F = 64
    if layer == 1:
        e("s_waitcnt vmcnt(4)")
        e(f"s_mov_b32 {s(sT)}, 0x05040100"); e(f"s_mov_b32 {s(sT+1)}, 0x07060302")
        for j in range(4):
            e(f"v_perm_b32 {v(XX+j)}, {v(XC+2*j+1)}, {v(XC+2*j)}, {s(sT)}")
            e(f"v_perm_b32 {v(XX+4+j)}, {v(XC+2*j+1)}, {v(XC+2*j)}, {s(sT+1)}")
        for i in range(8):
            e(f"v_lshlrev_b32 {v(F+2*i)}, 16, {v(XC+i)}"); e(f"v_and_b32 {v(F+2*i+1)}, {s(sHI)}, {v(XC+i)}")
        e(f"ds_write_b128 v62, {v(XX,4)}"); e(f"ds_write_b128 v62, {v(XX+4,4)} offset:4096")
        e("v_lshlrev_b32 v18, 4, v1")
        e(f"s_lshl_b32 {s(sW)}, {s(sJ)}, 2"); e(f"s_add_u32 {s(sW)}, {s(sW)}, {s(sWAVE)}")
        e(f"s_mul_i32 {s(sW)}, {s(sW)}, 49152"); e(f"s_add_u32 {s(sW)}, {s(sW)}, {WFG}")
    else:
        e(f"s_lshl_b32 s7, {s(sCP)}, 7"); e(f"s_add_u32 s7, s7, {X2T}")
        e("v_lshrrev_b32 v19, 2, v0"); e(f"v_mul_u32_u24 v19, {ROP}, v19"); e("v_and_b32 v10, 3, v0"); e("v_lshl_add_u32 v19, v10, 4, v19")

def conv(layer):
    XX = 40; SB = 24; F = 64; UU = 48
    if layer == 2:
        e(f"s_mov_b32 {s(sT)}, {S3}")
        e("v_lshlrev_b32 v10, 4, v0")
        e(f"buffer_load_dwordx4 {v(XX,4)}, v19, {s(sSRD,4)}, s7 offen sc1")
        e(f"buffer_load_dwordx4 {v(XX+4,4)}, v19, {s(sSRD,4)}, s7 offen offset:64 sc1")
        for i in range(4):
            e(f"s_add_u32 {s(sT+2)}, {s(sT)}, {4096*i}")
            e(f"buffer_load_dwordx4 {v(SB+4*i,4)}, v10, {s(sSRD,4)}, {s(sT+2)} offen sc1")
        e("s_waitcnt vmcnt(4)")
        for i in range(8):
            j, hi = i >> 1, i & 1
            for c in range(2):
                if hi: e(f"v_and_b32 {v(F+2*i+c)}, {s(sHI)}, {v(XX+4*c+j)}")
                else: e(f"v_lshlrev_b32 {v(F+2*i+c)}, 16, {v(XX+4*c+j)}")
        e(f"ds_write_b128 v62, {v(XX,4)}"); e(f"ds_write_b128 v62, {v(XX+4,4)} offset:4096")
        e("s_waitcnt vmcnt(0)")
    else:
        lr = lab("s1r"); lg = lab("s1k"); l0 = lab("s1c")
        e("s_waitcnt vmcnt(0)")
        e(f"s_branch {l0}")
        A.label(lr)
        s1_issue()
        e("s_waitcnt vmcnt(0)")
        A.label(l0)
        for i in range(8): e(f"v_xor_b32 {v(80+i)}, {s(sNON)}, {v(SB+2*i+1)}")
        e("v_or3_b32 v80, v80, v81, v82"); e("v_or3_b32 v83, v83, v84, v85"); e("v_or3_b32 v80, v80, v86, v87"); e("v_or_b32 v80, v80, v83")
        e("v_cmp_ne_u32 vcc, 0, v80")
        spin_check(lr, lg, bk=1)
        b1_issue()
        for i in range(8):
            e(f"v_and_b32 {v(SB+2*i+1)}, {s(sHI)}, {v(SB+2*i)}"); e(f"v_lshlrev_b32 {v(SB+2*i)}, 16, {v(SB+2*i)}")
        for i in range(8): e(f"v_rcp_f32 {v(SB+2*i+1)}, {v(SB+2*i+1)}")
    stamp(f"c{layer}_ld")
    if layer == 2:
        T = 80
        for k in range(4):
            b = SB + 4*k; t = T + 4*k
            e(f"v_pk_mul_f32 {v(b,2)}, {v(b,2)}, {s(sINV512,2)}"); e(f"v_pk_mul_f32 {v(b+2,2)}, {v(b+2,2)}, {s(sINV512,2)}")
        for k in range(4):
            b = SB + 4*k
            e(f"v_fma_f32 {v(b+1)}, -{v(b)}, {v(b)}, {v(b+1)}"); e(f"v_fma_f32 {v(b+3)}, -{v(b+2)}, {v(b+2)}, {v(b+3)}")
        for k in range(4):
            b = SB + 4*k
            e(f"v_max_f32 {v(b+1)}, 0, {v(b+1)}"); e(f"v_max_f32 {v(b+3)}, 0, {v(b+3)}")
        for i in range(8):
            b = SB + 2*i
            e(f"v_cvt_pk_bf16_f32 {v(T+i)}, {v(b)}, {v(b+1)}")
        for i in range(8):
            b = SB + 2*i
            e(f"v_lshlrev_b32 {v(b)}, 16, {v(T+i)}"); e(f"v_and_b32 {v(b+1)}, {s(sHI)}, {v(T+i)}")
        for i in range(8): e(f"v_add_f32 {v(SB+2*i+1)}, 0x3727c5ac, {v(SB+2*i+1)}")
        for k in range(4): e(f"v_cvt_pk_bf16_f32 {v(T+k)}, {v(SB+4*k+1)}, {v(SB+4*k+3)}")
        for k in range(4):
            e(f"v_lshlrev_b32 {v(SB+4*k+1)}, 16, {v(T+k)}"); e(f"v_and_b32 {v(SB+4*k+3)}, {s(sHI)}, {v(T+k)}")
        for i in range(8): e(f"v_sqrt_f32 {v(SB+2*i+1)}, {v(SB+2*i+1)}")
        for k in range(4): e(f"v_cvt_pk_bf16_f32 {v(T+k)}, {v(SB+4*k+1)}, {v(SB+4*k+3)}")
        for k in range(4):
            e(f"v_lshlrev_b32 {v(SB+4*k+1)}, 16, {v(T+k)}"); e(f"v_and_b32 {v(SB+4*k+3)}, {s(sHI)}, {v(T+k)}")
        for i in range(8): e(f"v_rcp_f32 {v(SB+2*i+1)}, {v(SB+2*i+1)}")
    for i in range(8):
        e(f"v_pk_add_f32 {v(F+2*i,2)}, {v(F+2*i,2)}, {v(SB+2*i,2)} op_sel_hi:[1,0] neg_lo:[0,1] neg_hi:[0,1]")
    for i in range(8): e(f"v_cvt_pk_bf16_f32 {v(80+i)}, {v(F+2*i)}, {v(F+2*i+1)}")
    for i in range(8):
        e(f"v_lshlrev_b32 {v(F+2*i)}, 16, {v(80+i)}"); e(f"v_and_b32 {v(F+2*i+1)}, {s(sHI)}, {v(80+i)}")
    for i in range(8):
        e(f"v_pk_mul_f32 {v(F+2*i,2)}, {v(F+2*i,2)}, {v(SB+2*i,2)} op_sel:[0,1] op_sel_hi:[1,1]")
    for c in range(2):
        for j in range(4): e(f"v_cvt_pk_bf16_f32 {v(UU+4*c+j)}, {v(F+4*j+c)}, {v(F+4*j+2+c)}")
        e(f"ds_write_b128 v61, {v(UU+4*c,4)} offset:{UP*c}")
    trick = gw_loads() if layer == 1 else []
    e("s_waitcnt lgkmcnt(0)"); e("s_barrier")
    if layer == 1: b1_check()
    stamp(f"c{layer}_pro")
    vA, vB = 16, 17
    ACC = 24; SET = [64, 128]
    def loads(tp, st):
        out = []
        for q in range(8): out.append(f"ds_read_b128 {v(SET[st]+4*q,4)}, {v(vA)} offset:{64*(3 - tp) + 512*(7 - q)}")
        for tau in range(8): out.append(f"ds_read_b128 {v(SET[st]+32+4*tau,4)}, {v(vB)} offset:{512*tau + 64*(3 - tp)}")
        order = [8, 0, 9, 1, 10, 2, 11, 3, 12, 4, 13, 5, 14, 6, 15, 7]
        return [out[i] for i in order]
    for l in loads(0, 0): e(l)
    ti = 0; nm = 0
    TRK = int(OPTS.get("trk", 4))
    e(f"s_mov_b32 {s(sT+4)}, {s(sDSKV)}"); e(f"s_mov_b32 {s(sT+5)}, {s(sDSKV)}")
    side = []
    for k in range(4):
        side.append(f"ds_read_b64 {v(64+2*k,2)}, v57 offset:{512*k}"); side.append(f"ds_read_b64 {v(72+2*k,2)}, v58 offset:{512*k}")
    side2 = ["s_waitcnt lgkmcnt(0)"]
    for k in range(4):
        for j in range(2):
            side2 += [f"v_lshlrev_b32 {v(96+4*k+2*j)}, 16, {v(64+2*k+j)}", f"v_and_b32 {v(97+4*k+2*j)}, {s(sHI)}, {v(64+2*k+j)}",
                      f"v_lshlrev_b32 {v(112+4*k+2*j)}, 16, {v(72+2*k+j)}", f"v_and_b32 {v(113+4*k+2*j)}, {s(sHI)}, {v(72+2*k+j)}"]
    for k in range(8): side2.append(f"v_pk_fma_f32 {v(96+2*k,2)}, {v(96+2*k,2)}, {s(sT+4,2)}, {v(112+2*k,2)}")
    for tp in range(4):
        st = tp & 1
        nxt = loads(tp + 1, st ^ 1) if tp < 3 else []
        n = 0; nb = 0
        for T in range(8):
            if tp == 0: e(f"s_waitcnt lgkmcnt({min(15, 16 - (2*T+2) + min(n, len(nxt)))})")
            elif T == 0: e("s_waitcnt lgkmcnt(0)")
            for q in range(T + 1):
                c_ = "0" if (tp == 0 and q == 0) else v(ACC+4*T, 4)
                e(f"v_mfma_f32_16x16x32_bf16 {v(ACC+4*T,4)}, {v(SET[st]+4*q,4)}, {v(SET[st]+32+4*(T-q),4)}, {c_}")
                nm += 1; nb += 1
                if not (tp == 0 and T < 3) and n < len(nxt):
                    e(nxt[n]); n += 1
                if tp == 3:
                    if nb <= 8: e(side.pop(0))
                    elif nb > 12:
                        for _ in range(2):
                            if side2: e(side2.pop(0))
                if ti < len(trick) and nm % TRK == 0:
                    for l in trick[ti]: e(l)
                    ti += 1
        while n < len(nxt): e(nxt[n]); n += 1
    while side2: e(side2.pop(0))
    stamp(f"c{layer}_mm")
    lp1 = lab("p1"); lj = lab("pj")
    e("s_cmp_eq_u32 s5, 1"); e(f"s_cbranch_scc1 {lp1}")
    e("s_nop 3")
    for k in range(4): e(f"ds_write_b128 v59, {v(ACC+16+4*k,4)} offset:{1024*k}")
    e(f"s_branch {lj}")
    A.label(lp1)
    for k in range(4): e(f"ds_write_b128 v59, {v(ACC+4*k,4)} offset:{1024*k}")
    e("s_nop 3")
    for k in range(8): e(f"v_mov_b64 {v(ACC+2*k,2)}, {v(ACC+16+2*k,2)}")
    A.label(lj)
    for k in range(8):
        e(f"v_pk_add_f32 {v(96+2*k,2)}, {v(96+2*k,2)}, {v(ACC+2*k,2)}")
    e("s_waitcnt lgkmcnt(0)"); e("s_barrier")
    for k in range(4): e(f"ds_read_b128 {v(80+4*k,4)}, v60 offset:{1024*k}")
    for k in range(4):
        e(f"s_waitcnt lgkmcnt({3-k})")
        e(f"v_pk_add_f32 {v(96+4*k,2)}, {v(96+4*k,2)}, {v(80+4*k,2)}"); e(f"v_pk_add_f32 {v(98+4*k,2)}, {v(98+4*k,2)}, {v(82+4*k,2)}")
        e(f"v_cvt_pk_bf16_f32 {v(64+2*k)}, {v(96+4*k)}, {v(97+4*k)}"); e(f"v_cvt_pk_bf16_f32 {v(65+2*k)}, {v(98+4*k)}, {v(99+4*k)}")
        e(f"buffer_store_dwordx2 {v(64+2*k,2)}, v56, {s(sSRD,4)}, s6 offen offset:{512*k} sc1")
    return trick[ti:]

NCSK, NCSV, NCSQ = 2, 4, 6
XRES = 184
def ones_regs(r):
    for i in range(4): e(f"v_mov_b32 {v(r+i)}, 0x3f803f80")
def colsums():
    ON = 152
    for ks in range(16):
        c0 = lambda r: "0" if ks == 0 else v(r, 4)
        e(f"v_mfma_f32_16x16x32_bf16 v[28:31], {v(ON,4)}, {a((0*16+ks)*4,4)}, {c0(28)}")
        e(f"v_mfma_f32_16x16x32_bf16 v[32:35], {v(ON,4)}, {a((1*16+ks)*4,4)}, {c0(32)}")
        e(f"v_mfma_f32_16x16x32_bf16 v[36:39], {a((2*16+ks)*4,4)}, {v(ON,4)}, {c0(36)}")
    e(f"v_sub_f32 {v(NCSK)}, 0, v28"); e(f"v_sub_f32 {v(NCSK+1)}, 0, v28")
    e(f"v_sub_f32 {v(NCSV)}, 0, v32"); e(f"v_sub_f32 {v(NCSV+1)}, 0, v32")
    for i in range(4): e(f"v_sub_f32 {v(NCSQ+i)}, 0, {v(36+i)}")

TA = 12
gXE, gXO, gSW, gS4, gQA, gPQ, gKV = 156, 157, 158, 160, 164, 168, 169
def g_setup(layer):
    xt = XT1 if layer == 1 else XT3
    e("v_lshrrev_b32 v10, 3, v1"); e(f"v_mul_u32_u24 v10, {PITCH}, v10")
    e("v_bfe_u32 v11, v1, 4, 2"); e("v_lshlrev_b32 v11, 1, v11"); e("v_and_b32 v16, 7, v1"); e("v_xor_b32 v11, v11, v16")
    e("v_lshl_add_u32 v10, v11, 4, v10")
    e(f"s_lshl_b32 {s(sT)}, {s(sRS)}, 7"); e(f"v_add_u32 v19, {s(sT)}, v10")
    e(f"s_mul_i32 s4, {s(sWAVE)}, {32*PITCH}"); e(f"s_add_u32 s4, s4, {xt}")
    e(f"s_lshl_b32 s5, {s(sWAVE)}, 12"); e(f"s_add_u32 s5, s5, {AT}")
    e("v_lshrrev_b32 v10, 2, v1"); e("v_lshlrev_b32 v10, 7, v10"); e("v_and_b32 v11, 3, v1"); e("v_lshl_add_u32 v10, v11, 3, v10")
    e(f"v_add_u32 v10, {AT}, v10"); e("v_bfe_u32 v11, v1, 3, 2")
    for j in range(4):
        e(f"s_add_u32 {s(sT)}, {s(sWAVE)}, {j}"); e(f"s_and_b32 {s(sT)}, {s(sT)}, 3"); e(f"s_lshl_b32 {s(sM+j)}, {s(sT)}, 6")
        e(f"v_xor_b32 v16, {s(sT)}, v11"); e(f"v_lshl_add_u32 {v(TA+j)}, v16, 5, v10")
    ones_regs(152)
    e("v_lshrrev_b32 v11, 5, v1"); e("v_lshlrev_b32 v11, 4, v11"); e("v_bfe_u32 v16, v1, 2, 2"); e("v_add_u32 v11, v11, v16")
    e(f"s_lshl_b32 {s(sT)}, {s(sJO)}, 7"); e(f"s_lshl_b32 {s(sT+1)}, {s(sWAVE)}, 5"); e(f"s_add_u32 {s(sT)}, {s(sT)}, {s(sT+1)}")
    e(f"v_add_u32 v11, {s(sT)}, v11"); e("v_lshlrev_b32 v11, 7, v11")
    e("v_and_b32 v16, 3, v1"); e("v_lshl_add_u32 v11, v16, 3, v11"); e(f"v_add_u32 v11, {AT}, v11")
    e(f"s_and_b32 {s(sT)}, {s(sJ)}, 1"); e(f"s_lshl_b32 {s(sT)}, {s(sT)}, 1")
    e("v_bfe_u32 v16, v1, 4, 1"); e(f"v_add_u32 v16, {s(sT)}, v16"); e("v_bfe_u32 v17, v1, 3, 1"); e("v_xor_b32 v16, v16, v17")
    e(f"v_lshl_add_u32 {v(gXE)}, v16, 5, v11"); e("v_xor_b32 v16, 2, v16"); e(f"v_lshl_add_u32 {v(gXO)}, v16, 5, v11")
    e("v_and_b32 v10, 15, v1"); e("v_lshlrev_b32 v10, 2, v10"); e(f"v_add_u32 v11, {ST}, v10")
    e(f"s_lshl_b32 {s(sT)}, {s(sWAVE)}, 6"); e(f"v_add_u32 {v(gSW)}, {s(sT)}, v11")
    e("v_lshrrev_b32 v10, 4, v1"); e("v_lshlrev_b32 v10, 4, v10"); e(f"v_add_u32 v10, {ST}, v10")
    for j in range(4):
        e(f"v_add_u32 {v(gS4+j)}, {s(sM+j)}, v10"); e(f"v_add_u32 {v(gQA+j)}, {s(sM+j)}, v11")
    e("v_and_b32 v10, 15, v1"); e("v_lshlrev_b32 v10, 5, v10"); e("v_lshrrev_b32 v11, 4, v1"); e(f"v_lshl_add_u32 {v(gPQ)}, v11, 3, v10")
    e(f"v_lshlrev_b32 {v(gKV)}, 2, v1")
    kvp_addr(KVP1 if layer == 1 else KVP2, 6)
    pq_addr(PQ1 if layer == 1 else PQ2, 7)
    e(f"s_lshl_b32 {s(sT)}, {s(sJ)}, 5"); e(f"s_mul_i32 {s(sT)}, {s(sT)}, {KVW}")
    e(f"s_lshr_b32 {s(sT+1)}, {s(sRS)}, 3"); e(f"s_mul_i32 {s(sT+1)}, {s(sT+1)}, {KVH}"); e(f"s_add_u32 {s(sT)}, {s(sT)}, {s(sT+1)}")
    e(f"s_add_u32 s3, {s(sT)}, {KVP1 if layer == 1 else KVP2}")
    e(f"s_and_b32 {s(sT+2)}, {s(sRS)}, 7"); e(f"s_lshl_b32 {s(sT+3)}, {s(sT+2)}, 7")
    e("v_lshrrev_b32 v10, 3, v1"); e(f"v_mul_u32_u24 v10, {KVW}, v10"); e("v_and_b32 v11, 7, v1"); e("v_lshl_add_u32 v11, v11, 4, v10")
    e(f"v_add_u32 v170, {s(sT+3)}, v11")
    e("v_and_b32 v11, 3, v1"); e("v_lshl_add_u32 v11, v11, 4, v10"); e("v_add_u32 v171, 1024, v11")
    e("v_and_b32 v10, 3, v1")
    e(f"v_cmp_eq_u32 {s(sM+4,2)}, 1, v10"); e(f"v_cmp_eq_u32 {s(sM+6,2)}, 2, v10"); e(f"v_cmp_eq_u32 s[2:3], 3, v10") if False else None
    if layer == 1:
        e("v_lshlrev_b32 v18, 4, v1")
        e(f"s_lshl_b32 {s(sW)}, {s(sJO)}, 2"); e(f"s_add_u32 {s(sW)}, {s(sW)}, {s(sWAVE)}")
        e(f"s_lshl_b32 {s(sW)}, {s(sW)}, 15"); e(f"s_add_u32 {s(sW)}, {s(sW)}, {WFO}")

def gphase(layer):
    kvp = KVP1 if layer == 1 else KVP2
    ff = F1 if layer == 1 else F2
    def dma(c, i):
        return [f"s_add_u32 {s(sT)}, s4, {(128*c + 8*i)*PITCH}", f"s_add_u32 m0, s5, {c*16384 + i*1024}",
                f"buffer_load_dwordx4 v19, {s(sSRD,4)}, {s(sT)} offen sc1 lds"]
    for c in range(4):
        for i in range(4):
            for l in dma(c, i): e(l)
    XF = [64, 80]
    AK, AV, AQ, GR, RS_, ON = 96, 112, 128, 144, 148, 152
    trick = ow_loads() if layer == 1 else []
    def reads(ks, base=None):
        b = XF[ks & 1] if base is None else base
        out = []
        for j in range(4):
            out.append(f"ds_read_b64_tr_b16 {v(b+4*j,2)}, {v(TA+j)} offset:{ks*4096}")
            out.append(f"ds_read_b64_tr_b16 {v(b+4*j+2,2)}, {v(TA+j)} offset:{ks*4096+2048}")
        return out
    stamp(f"g{layer}_iss")
    e("s_waitcnt vmcnt(12)"); e("s_barrier")
    stamp(f"g{layer}_ld0")
    for l in reads(0): e(l)
    st_ = {"ti": 0, "nw": 0, "nm": 0}
    TRG = int(OPTS.get("trg", 5))
    def trickle(ok):
        st_["nm"] += 1
        if ok and st_["ti"] < len(trick) and st_["nm"] % TRG == 0:
            for l in trick[st_["ti"]]: e(l)
            st_["ti"] += 1; st_["nw"] += 1
    for ks in range(16):
        nxt = []
        if ks < 15:
            if (ks + 1) % 4 == 0:
                c = (ks + 1) // 4
                e(f"s_waitcnt vmcnt({min(63, 4*(3-c) + st_['nw'])})"); e("s_barrier")
            nxt = reads(ks + 1)
        x = XF[ks & 1]
        e("s_waitcnt lgkmcnt(0)")
        z = lambda r: "0" if ks == 0 else v(r, 4)
        mf = []
        for j in range(4):
            mf.append(f"v_mfma_f32_16x16x32_bf16 {v(AK+4*j,4)}, {v(x+4*j,4)}, {a((0*16+ks)*4,4)}, {z(AK+4*j)}")
            mf.append(f"v_mfma_f32_16x16x32_bf16 {v(AV+4*j,4)}, {v(x+4*j,4)}, {a((1*16+ks)*4,4)}, {z(AV+4*j)}")
        mf.insert(1, f"v_mfma_f32_16x16x32_bf16 {v(GR,4)}, {v(x,4)}, {v(x,4)}, {z(GR)}")
        mf.insert(3, f"v_mfma_f32_16x16x32_bf16 {v(RS_,4)}, {v(ON,4)}, {v(x,4)}, {z(RS_)}")
        for m_i, m_ in enumerate(mf):
            e(m_)
            if m_i < len(nxt): e(nxt[m_i])
            trickle(ks >= 4)
    stamp(f"g{layer}_mm")
    for jj in range(4):
        e(f"ds_read_b64_tr_b16 {v(XRES+2*jj,2)}, {v(gXE + (jj & 1))} offset:{512*jj}")
    e("v_and_b32 v10, 3, v1")
    e(f"v_cmp_eq_u32 {s(sM+4,2)}, 1, v10"); e(f"v_cmp_eq_u32 {s(sM+6,2)}, 2, v10"); e("v_cmp_eq_u32 vcc, 3, v10")
    e(f"v_cndmask_b32 v11, {v(GR)}, {v(GR+1)}, {s(sM+4,2)}")
    e(f"v_cndmask_b32 v11, v11, {v(GR+2)}, {s(sM+6,2)}")
    e(f"v_cndmask_b32 v11, v11, {v(GR+3)}, vcc")
    stats_final(RS_, 11, 16, 17, 20)
    e("v_mul_f32 v16, v16, v17")
    e(f"s_mov_b32 {s(sT+2)}, 0x00f0000f"); e(f"s_mov_b32 {s(sT+3)}, 0xf0000f00")
    e(f"s_mov_b64 exec, {s(sT+2,2)}")
    e(f"ds_write_b32 {v(gSW)}, v17"); e(f"ds_write_b32 {v(gSW)}, v16 offset:256")
    e("s_mov_b64 exec, -1")
    R4, M4, RQ, MQ = 24, 40, 56, 176
    e("s_waitcnt lgkmcnt(0)"); e("s_barrier")
    for j in range(4):
        e(f"ds_read_b128 {v(R4+4*j,4)}, {v(gS4+j)}"); e(f"ds_read_b128 {v(M4+4*j,4)}, {v(gS4+j)} offset:256")
    for j in range(4):
        e(f"ds_read_b32 {v(RQ+2*j)}, {v(gQA+j)}"); e(f"ds_read_b32 {v(MQ+2*j)}, {v(gQA+j)} offset:256")
    stamp(f"g{layer}_st")
    PK, VV = 72, 80
    def phi2(items):
        for (rp, acc, mp, ncs, dst, T, bro) in items:
            e(f"v_pk_fma_f32 {v(T,2)}, {v(mp,2)}, {v(ncs,2)}, {s(sEPS6,2)}" + (" op_sel_hi:[0,1,1]" if bro else ""))
        for (rp, acc, mp, ncs, dst, T, bro) in items:
            e(f"v_pk_fma_f32 {v(T,2)}, {v(rp,2)}, {v(acc,2)}, {v(T,2)}" + (" op_sel_hi:[0,1,1]" if bro else ""))
        for (rp, acc, mp, ncs, dst, T, bro) in items: e(f"v_pk_mul_f32 {v(T+2,2)}, {v(T,2)}, {s(sLOG2E,2)}")
        for (rp, acc, mp, ncs, dst, T, bro) in items:
            e(f"v_exp_f32 {v(T+2)}, {v(T+2)} clamp"); e(f"v_exp_f32 {v(T+3)}, {v(T+3)} clamp")
        for (rp, acc, mp, ncs, dst, T, bro) in items:
            e(f"v_max_f32 {v(T)}, {s(sEPS6)}, {v(T)}"); e(f"v_max_f32 {v(T+1)}, {s(sEPS6)}, {v(T+1)}")
        for (rp, acc, mp, ncs, dst, T, bro) in items: e(f"v_pk_add_f32 {v(T,2)}, {v(T,2)}, {v(T+2,2)}")
        for (rp, acc, mp, ncs, dst, T, bro) in items: e(f"v_cvt_pk_bf16_f32 {v(dst)}, {v(T)}, {v(T+1)}")
    for j in range(4):
        e(f"s_waitcnt lgkmcnt({min(15, 8 + 2*(3-j))})")
        items = [(R4+4*j+2*hp, AK+4*j+2*hp, M4+4*j+2*hp, NCSK, PK+2*j+hp, 88 + 4*hp, False) for hp in range(2)]
        for hp in range(2):
            T = 104 + 2*hp if False else 172 + 2*hp
            e(f"v_pk_mul_f32 {v(T,2)}, {v(M4+4*j+2*hp,2)}, {v(NCSV,2)}")
        for hp in range(2):
            T = 172 + 2*hp
            e(f"v_pk_fma_f32 {v(T,2)}, {v(R4+4*j+2*hp,2)}, {v(AV+4*j+2*hp,2)}, {v(T,2)}")
        phi2(items)
        for hp in range(2):
            T = 172 + 2*hp
            e(f"v_cvt_pk_bf16_f32 {v(VV+2*j+hp)}, {v(T)}, {v(T+1)}")
        if j == 1:
            e(f"v_mfma_f32_16x16x32_bf16 {v(GR,4)}, {v(VV,4)}, {v(PK,4)}, 0")
            e(f"v_mfma_f32_16x16x32_bf16 {v(RS_,4)}, {v(ON,4)}, {v(PK,4)}, 0")
    e(f"v_mfma_f32_16x16x32_bf16 {v(GR,4)}, {v(VV+4,4)}, {v(PK+4,4)}, {v(GR,4)}")
    e(f"v_mfma_f32_16x16x32_bf16 {v(RS_,4)}, {v(ON,4)}, {v(PK+4,4)}, {v(RS_,4)}")
    PQR = 96
    e("s_waitcnt lgkmcnt(0)")
    for i in range(4):
        e(f"buffer_store_dword {v(GR+i)}, {v(gKV)}, {s(sSRD,4)}, s6 offen offset:{256*i} sc1")
    e("s_mov_b64 exec, 0xffff")
    e(f"buffer_store_dword {v(RS_)}, {v(gKV)}, {s(sSRD,4)}, s6 offen offset:1024 sc1")
    e("s_mov_b64 exec, -1")
    stamp(f"g{layer}_kv")
    def red_loads():
        for i in range(4):
            e(f"s_add_u32 {s(sT+4)}, s3, {8*i*KVW}")
            e(f"buffer_load_dwordx4 {v(24+4*i,4)}, v170, {s(sSRD,4)}, {s(sT+4)} offen sc1")
            e(f"buffer_load_dwordx4 {v(40+4*i,4)}, v171, {s(sSRD,4)}, {s(sT+4)} offen sc1")
    RLK = int(OPTS.get("rlk", 11))
    QS = [64, 80, 112]
    for l in reads(0, QS[0]): e(l)
    for l in reads(1, QS[1]): e(l)
    for ks in range(16):
        nxt = reads(ks + 2, QS[(ks + 2) % 3]) if ks < 14 else []
        x = QS[ks % 3]
        e(f"s_waitcnt lgkmcnt({8 if ks < 15 else 0})")
        z = lambda r: "0" if ks == 0 else v(r, 4)
        if ks == RLK:
            lsk = lab("rl")
            e(f"s_cmp_lg_u32 {s(sWAVE)}, 3"); e(f"s_cbranch_scc1 {lsk}")
            red_loads()
            A.label(lsk)
        for j in range(4):
            e(f"v_mfma_f32_16x16x32_bf16 {v(AQ+4*j,4)}, {a((2*16+ks)*4,4)}, {v(x+4*j,4)}, {z(AQ+4*j)}")
            for l in nxt[2*j:2*j+2]: e(l)
            if j % 2 == 0 and st_["ti"] < len(trick):
                for l in trick[st_["ti"]]: e(l)
                st_["ti"] += 1
    stamp(f"g{layer}_q")
    for j in range(0, 4, 2):
        phi2([(RQ+2*(j+jj), AQ+4*(j+jj)+2*hp, MQ+2*(j+jj), NCSQ+2*hp, PQR+2*(j+jj)+hp, 64 + 8*jj + 4*hp, True) for jj in range(2) for hp in range(2)])
    for j in range(4):
        e(f"s_lshl_b32 {s(sT+2)}, {s(sM+j)}, 3"); e(f"s_add_u32 {s(sT+2)}, {s(sT+2)}, s7")
        e(f"buffer_store_dwordx2 {v(PQR+2*j,2)}, {v(gPQ)}, {s(sSRD,4)}, {s(sT+2)} offen sc1")
    for ins in trick[st_["ti"]:]:
        for l in ins: e(l)
    lred = lab("red")
    e(f"s_cmp_lg_u32 {s(sWAVE)}, 3"); e(f"s_cbranch_scc1 {lred}")
    e(f"s_and_b32 {s(sT+2)}, {s(sRS)}, 7")
    lr = lab("rp"); lg = lab("rg"); l0 = lab("r0")
    e(f"s_waitcnt vmcnt({4 + len(trick[st_['ti']:])})")
    e(f"s_branch {l0}")
    A.label(lr)
    red_loads()
    e("s_waitcnt vmcnt(0)")
    A.label(l0)
    maxtree([24, 28, 32, 36, 40, 44, 48, 52], 56)
    e("v_cmp_eq_u32 vcc, -1, v56")
    spin_check(lr, lg)
    stamp(f"r{layer}_ok")
    for b in (24, 40):
        for h2 in range(2):
            e(f"v_pk_add_f32 {v(b+2*h2,2)}, {v(b+2*h2,2)}, {v(b+4+2*h2,2)}"); e(f"v_pk_add_f32 {v(b+8+2*h2,2)}, {v(b+8+2*h2,2)}, {v(b+12+2*h2,2)}")
    for b in (24, 40):
        for h2 in range(2):
            e(f"v_pk_add_f32 {v(b+2*h2,2)}, {v(b+2*h2,2)}, {v(b+8+2*h2,2)}")
    regs = [24, 25, 26, 27, 40, 41, 42, 43]
    for r in regs: e(f"v_add_f32_dpp {v(r)}, {v(r)}, {v(r)} row_ror:8 row_mask:0xf bank_mask:0xf")
    for r in regs: e(f"v_mov_b32 {v(r+4)}, {v(r)}")
    for r in regs: e(f"v_permlane16_swap_b32 {v(r)}, {v(r+4)}")
    for r in regs: e(f"v_add_f32 {v(r)}, {v(r)}, {v(r+4)}")
    for r in regs: e(f"v_mov_b32 {v(r+4)}, {v(r)}")
    for r in regs: e(f"v_permlane32_swap_b32 {v(r)}, {v(r+4)}")
    for r in regs: e(f"v_add_f32 {v(r)}, {v(r)}, {v(r+4)}")
    e("v_cvt_pk_bf16_f32 v28, v24, v25"); e("v_cvt_pk_bf16_f32 v29, v26, v27")
    e("v_cvt_pk_bf16_f32 v30, v40, v41"); e("v_cvt_pk_bf16_f32 v31, v42, v43")
    f_addr(ff, sT + 1)
    e(f"s_lshl_b32 {s(sT+3)}, {s(sT+2)}, 6")
    e("v_lshrrev_b32 v10, 3, v1"); e(f"v_mul_u32_u24 v10, {FRP}, v10"); e("v_and_b32 v11, 7, v1"); e("v_lshl_add_u32 v10, v11, 3, v10")
    e(f"v_add_u32 v11, {s(sT+3)}, v10")
    e(f"buffer_store_dwordx2 v[28:29], v11, {s(sSRD,4)}, {s(sT+1)} offen sc1")
    e(f"s_cmp_lg_u32 {s(sT+2)}, 0"); e(f"s_cbranch_scc1 {lred}_z")
    e(f"s_mov_b32 {s(sT+2)}, 0x0f0f0f0f"); e(f"s_mov_b32 {s(sT+3)}, 0x0f0f0f0f"); e(f"s_mov_b64 exec, {s(sT+2,2)}")
    e(f"buffer_store_dwordx2 v[30:31], v10, {s(sSRD,4)}, {s(sT+1)} offen offset:512 sc1")
    A.label(lred + "_z")
    e("s_mov_b64 exec, -1")
    A.label(lred)

def ophase(layer):
    pq = PQ1 if layer == 1 else PQ2
    ff = F1 if layer == 1 else F2
    KF, PQF = 24, 56
    e("v_and_b32 v10, 3, v1"); e("v_lshlrev_b32 v10, 2, v10"); e("v_bfe_u32 v11, v1, 2, 2"); e("v_add_u32 v10, v10, v11")
    e("v_and_b32 v11, 16, v1"); e("v_cmp_ne_u32 vcc, 0, v11"); e("v_cndmask_b32 v10, v10, v11, vcc")
    e("v_lshlrev_b32 v10, 5, v10"); e("v_lshrrev_b32 v11, 5, v1"); e("v_lshl_add_u32 v10, v11, 4, v10")
    e(f"s_lshl_b32 {s(sT)}, {s(sWAVE)}, 3"); e(f"s_mul_i32 s4, {s(sT)}, {FP}"); e(f"s_add_u32 s4, s4, {ff}")
    e(f"s_mul_i32 {s(sT+1)}, {s(sXCD)}, {FRP}"); e(f"s_add_u32 s4, s4, {s(sT+1)}")
    e("v_and_b32 v11, 31, v1"); e("v_lshlrev_b32 v11, 5, v11"); e("v_lshrrev_b32 v12, 5, v1"); e("v_lshl_add_u32 v11, v12, 4, v11")
    e(f"s_mul_i32 s5, {s(sT)}, {HP}"); e(f"s_add_u32 s5, s5, {pq}")
    e(f"s_lshl_b32 {s(sT+3)}, {s(sRO)}, 10"); e(f"s_add_u32 s5, s5, {s(sT+3)}")
    e(f"s_lshl_b32 {s(sT)}, {s(sWAVE)}, 13"); e(f"s_add_u32 {s(sT)}, {s(sT)}, {OT}")
    e(f"v_lshl_add_u32 v12, v1, 4, {s(sT)}")
    e(f"v_lshlrev_b32 v13, 4, v1"); e(f"v_add_u32 v13, {OT}, v13")
    if layer == 1:
        e("v_and_b32 v14, 31, v1"); e(f"v_mul_u32_u24 v14, {TBP}, v14"); e("v_lshrrev_b32 v15, 5, v1"); e("v_lshl_add_u32 v14, v15, 5, v14")
        e(f"s_mul_i32 {s(sT+4)}, {s(sWAVE)}, {32*TBP}"); e(f"s_add_u32 {s(sT+4)}, {s(sT+4)}, {TB}"); e(f"v_add_u32 v14, {s(sT+4)}, v14")
        e("v_lshrrev_b32 v15, 4, v1"); e("v_lshlrev_b32 v15, 3, v15"); e("v_bfe_u32 v16, v1, 2, 2"); e("v_add_u32 v15, v15, v16")
        e(f"v_mul_u32_u24 v15, {TBP}, v15"); e("v_and_b32 v16, 3, v1"); e("v_lshl_add_u32 v15, v16, 3, v15"); e(f"v_add_u32 v15, {s(sT+4)}, v15")
        e("v_and_b32 v16, 15, v1"); e(f"v_lshlrev_b32 v16, 6, v16"); e("v_lshrrev_b32 v17, 4, v1"); e("v_lshl_add_u32 v16, v17, 4, v16")
        e(f"s_lshl_b32 s6, {s(sJO)}, 7"); e(f"s_lshl_b32 {s(sT+1)}, {s(sWAVE)}, 5"); e(f"s_add_u32 s6, s6, {s(sT+1)}")
        e(f"s_lshl_b32 s6, s6, 6"); e(f"s_mul_i32 {s(sT+1)}, {s(sRO)}, {ROP}"); e(f"s_add_u32 s6, s6, {s(sT+1)}")
        e(f"s_add_u32 s6, s6, {X2T}")
        e("v_bfe_u32 v17, v1, 1, 2"); e("v_lshlrev_b32 v17, 12, v17"); e("v_bfe_u32 v18, v1, 3, 2"); e("v_lshl_add_u32 v17, v18, 4, v17")
        e("v_and_b32 v18, 1, v1"); e("v_lshl_add_u32 v17, v18, 3, v17"); e("v_lshrrev_b32 v18, 5, v1"); e("v_lshl_add_u32 v17, v18, 2, v17")
        e(f"s_lshl_b32 s7, {s(sRO)}, 6"); e(f"s_add_u32 s7, s7, {S3}")
    else:
        e("v_and_b32 v14, 31, v1"); e("v_lshlrev_b32 v14, 10, v14"); e("v_lshrrev_b32 v15, 5, v1"); e("v_lshl_add_u32 v14, v15, 5, v14")
        e(f"s_lshl_b32 {s(sT)}, {s(sRO)}, 15"); e(f"s_lshl_b32 {s(sT+1)}, {s(sJO)}, 8"); e(f"s_add_u32 {s(sT)}, {s(sT)}, {s(sT+1)}")
        e(f"s_lshl_b32 {s(sT+1)}, {s(sWAVE)}, 6"); e(f"s_add_u32 {s(sT)}, {s(sT)}, {s(sT+1)}")
        e(f"v_add_u32 v14, {s(sT)}, v14")
    XF = 104
    def pq_loads():
        for h in range(8):
            e(f"s_add_u32 {s(sT+3)}, s5, {h*HP}")
            e(f"buffer_load_dwordx4 {v(PQF+4*h,4)}, v11, {s(sSRD,4)}, {s(sT+3)} offen sc1")
    e("s_barrier")
    stamp(f"o{layer}_gate")
    pq_loads()
    if int(OPTS.get("osl", 0)): e(f"s_sleep {OPTS.get('osl')}")
    lr = lab("of"); lg = lab("ofk")
    A.label(lr)
    for h in range(8):
        if h*FP < 4096: e(f"buffer_load_dwordx4 {v(KF+4*h,4)}, v10, {s(sSRD,4)}, s4 offen offset:{h*FP} sc1")
        else:
            e(f"s_add_u32 {s(sT+3)}, s4, {h*FP}")
            e(f"buffer_load_dwordx4 {v(KF+4*h,4)}, v10, {s(sSRD,4)}, {s(sT+3)} offen sc1")
    e("s_waitcnt vmcnt(0)")
    maxtree([KF+4*h for h in range(8)], 18)
    e("v_cmp_eq_u32 vcc, -1, v18")
    spin_check(lr, lg)
    lr = lab("oq"); lg = lab("oqk")
    A.label(lr)
    maxtree([PQF+4*h for h in range(8)], 18)
    e("v_cmp_eq_u32 vcc, -1, v18")
    e(f"s_cbranch_vccz {lg}")
    e(f"s_sub_u32 {s(sSPIN)}, {s(sSPIN)}, 1"); e(f"s_cbranch_scc1 {lg}_x")
    pq_loads()
    e("s_waitcnt vmcnt(0)")
    e(f"s_branch {lr}")
    A.label(lg + "_x"); e(f"s_mov_b32 {s(sSPIN)}, 0")
    A.label(lg)
    stamp(f"o{layer}_ld")
    DB = [88, 104, 120, 136, 152, 168]
    def m1(h): e(f"v_mfma_f32_32x32x16_bf16 {v(DB[h % 6],16)}, {v(KF+4*h,4)}, {v(PQF+4*h,4)}, 0")
    def proc(h):
        d = DB[h % 6]
        e(f"v_add_f32 {v(d+8)}, {s(sEPS6)}, {v(d+8)}")
        e(f"v_rcp_f32 {v(d+8)}, {v(d+8)}")
        for k in range(4): e(f"v_pk_mul_f32 {v(d+2*k,2)}, {v(d+2*k,2)}, {v(d+8,2)} op_sel_hi:[1,0]")
        for k in range(4): e(f"v_cvt_pk_bf16_f32 {v(d+10+k)}, {v(d+2*k)}, {v(d+2*k+1)}")
        e(f"ds_write_b128 v12, {v(d+10,4)} offset:{1024*h}")
    for h in range(6): m1(h)
    proc(0); m1(6); proc(1); m1(7)
    for h in range(2, 8): proc(h)
    stamp(f"o{layer}_m1")
    e("s_waitcnt lgkmcnt(0)"); e("s_barrier")
    ACC = 24; NB = 8; OF = [56 + 4*i for i in range(NB)]
    for h in range(NB): e(f"ds_read_b128 {v(OF[h],4)}, v13 offset:{1024*h}")
    for k in range(8):
        e(f"v_lshlrev_b32 {v(XF+2*k)}, 16, {v(XRES+k)}"); e(f"v_and_b32 {v(XF+2*k+1)}, {s(sHI)}, {v(XRES+k)}")
    for h in range(32):
        e(f"s_waitcnt lgkmcnt({min(NB-1, 31-h)})")
        w_ = a(192 + 4*h, 4) if h < 16 else v(192 + 4*(h-16), 4)
        c_ = "0" if h == 0 else v(ACC, 16)
        e(f"v_mfma_f32_32x32x16_bf16 {v(ACC,16)}, {w_}, {v(OF[h % NB],4)}, {c_}")
        if h + NB < 32: e(f"ds_read_b128 {v(OF[h % NB],4)}, v13 offset:{1024*(h+NB)}")
    stamp(f"o{layer}_g2")
    for k in range(8): e(f"v_pk_add_f32 {v(XF+2*k,2)}, {v(XF+2*k,2)}, {v(ACC+2*k,2)}")
    PKD = 120
    for k in range(8): e(f"v_cvt_pk_bf16_f32 {v(PKD+k)}, {v(XF+2*k)}, {v(XF+2*k+1)}")
    if layer == 2:
        e(f"global_store_dwordx4 v14, {v(PKD,4)}, {s(sOUT,2)}")
        e(f"global_store_dwordx4 v14, {v(PKD+4,4)}, {s(sOUT,2)} offset:16")
        return
    e(f"ds_write_b128 v14, {v(PKD,4)}"); e(f"ds_write_b128 v14, {v(PKD+4,4)} offset:16")
    e(f"v_pk_add_f32 v[64:65], {v(XF,2)}, {v(XF+2,2)}"); e(f"v_pk_mul_f32 v[66:67], {v(XF,2)}, {v(XF,2)}")
    e(f"v_pk_add_f32 v[68:69], {v(XF+4,2)}, {v(XF+6,2)}"); e(f"v_pk_mul_f32 v[70:71], {v(XF+2,2)}, {v(XF+2,2)}")
    for k in range(2, 8):
        e(f"v_pk_fma_f32 {v(66+4*(k&1),2)}, {v(XF+2*k,2)}, {v(XF+2*k,2)}, {v(66+4*(k&1),2)}")
        if k >= 4: e(f"v_pk_add_f32 {v(64+4*(k&1),2)}, {v(64+4*(k&1),2)}, {v(XF+2*k,2)}")
    e("s_waitcnt lgkmcnt(0)")
    for k in range(2):
        e(f"ds_read_b64_tr_b16 {v(80+4*k,2)}, v15 offset:{32*k}")
        e(f"ds_read_b64_tr_b16 {v(82+4*k,2)}, v15 offset:{32*k + 4*TBP}")
    e("v_pk_add_f32 v[64:65], v[64:65], v[68:69]"); e("v_pk_add_f32 v[66:67], v[66:67], v[70:71]")
    e("v_add_f32 v64, v64, v65"); e("v_add_f32 v65, v66, v67")
    e("v_permlane32_swap_b32 v64, v65")
    e("v_add_f32 v64, v64, v65")
    e(f"s_lshl_b32 {s(sT)}, {s(sWAVE)}, 8"); e(f"s_add_u32 {s(sT)}, {s(sT)}, {ST}"); e(f"v_lshl_add_u32 v66, v1, 2, {s(sT)}")
    e("ds_write_b32 v66, v64")
    e("s_waitcnt lgkmcnt(1)")
    if OPTS.get("nox2") != "1":
        e(f"buffer_store_dwordx4 v[80:83], v16, {s(sSRD,4)}, s6 offen sc1")
        e(f"buffer_store_dwordx4 v[84:87], v16, {s(sSRD,4)}, s6 offen offset:1024 sc1")
    e("s_waitcnt lgkmcnt(0)"); e("s_barrier")
    l = lab("oat")
    e(f"s_cmp_lg_u32 {s(sWAVE)}, 0"); e(f"s_cbranch_scc1 {l}")
    e(f"v_lshlrev_b32 v66, 2, v1"); e(f"v_add_u32 v66, {ST}, v66")
    for k in range(4): e(f"ds_read_b32 {v(68+k)}, v66 offset:{256*k}")
    e("s_waitcnt lgkmcnt(0)")
    e("v_add_f32 v68, v68, v69"); e("v_add_f32 v70, v70, v71"); e("v_add_f32 v68, v68, v70")
    if OPTS.get("noat") != "1": e(f"buffer_atomic_add_f32 v68, v17, {s(sSRD,4)}, s7 offen")
    A.label(l)

def build():
    prologue()
    stamp("start")
    p0_fills()
    idx_loads()
    e(f"s_lshl_b32 {s(sT)}, {s(sCP)}, 2"); e(f"v_lshl_add_u32 v19, v0, 13, {s(sT)}"); e("v_add_u32 v18, 4096, v19")
    stamp("p_iss")
    e("s_waitcnt vmcnt(20)")
    stamp("p_ld")
    nonce_reissue()
    p0_stats()
    kgen_setup()
    stamp("p_ks")
    nonce_get()
    p0_stats_store()
    stamp("p_s1")
    e("s_barrier")
    p0_wfrag()
    stamp("p_st")
    kgen_round(["X1", "X2", "Y1"], 0); kgen_round(["Y2"], 0)
    kgen_round(["X1", "X2", "Y1"], 1); kgen_round(["Y2"], 1)
    arrive(0)
    stamp("arr1")
    gl = gather_loads()
    e(gl.pop(0))
    kgen_round(["X1", "X2"], 2); e(gl.pop(0)); kgen_round(["X1", "X2"], 3); e(gl.pop(0))
    stamp("k_tab")
    kgen_mm(gl)
    e("s_waitcnt lgkmcnt(0)"); e("s_barrier")
    stamp("kgen")
    if stop_here("K"): return
    conv_setup(1)
    stamp("B1")
    rest = conv(1)
    arrive(1)
    stamp("C1")
    if stop_here("C1"): return
    for ins in rest:
        for l in ins: e(l)
    g_setup(1)
    e("s_waitcnt vmcnt(0)")
    colsums()
    wait(1)
    stamp("B2")
    gphase(1)
    stamp("G1")
    if stop_here("G1"): return
    ophase(1)
    stamp("o1_end")
    arrive(2)
    stamp("O1")
    if stop_here("O1"): return
    conv_setup(2)
    stamp("c2_set")
    wait(2)
    stamp("B4")
    conv(2)
    arrive(3)
    stamp("C2")
    if stop_here("C2"): return
    g_setup(2)
    wait(3)
    stamp("B5")
    gphase(2)
    stamp("G2")
    if stop_here("G2"): return
    ophase(2)
    if STAMPS:
        e("s_waitcnt vmcnt(0)")
        stamp("O2")
        stamps_out()

build()
A.label("L_end")
e("s_endpgm")

def rb_int(j):
    u = struct.unpack("<I", struct.pack("<f", float(j)))[0]
    u = (u + 0x7fff + ((u >> 16) & 1)) & 0xffff0000
    return int(struct.unpack("<f", struct.pack("<I", u))[0])
idx = []
for x in range(2064):
    j = 2047 - x
    if j < 0: ent = 1024
    else:
        t = rb_int(j); ent = t if t < 512 else 512 + (t - 512) // 4
    idx.append(2 * ent)

lines, nn = hazard_pass(A.lines)
probs = check_branches(lines)
for p in probs: print("BRANCH HAZARD:", p, file=sys.stderr)
hdr = open("interleave_layers__ssm_conv_s4d__linear_attn_block__prompt.s.ref").read().split("; Override launch")[0]
out = hdr + "; Override launch geometry by editing the next line.\n"
out += f"; @launch grid=(256,1,1) block=(256,1,1) lds={LDS_BYTES}\n"
out += '.amdgcn_target "amdgcn-amd-amdhsa--gfx950"\n.text\n'
out += f".globl {NAME}\n.p2align 8\n.type {NAME},@function\n{NAME}:\n"
out += "\n".join(lines) + "\n"
out += ".p2align 6\n.type L_idx,@object\nL_idx:\n"
for i in range(0, len(idx), 16): out += "  .short " + ", ".join(str(x) for x in idx[i:i+16]) + "\n"
out += "L_tab_end:\n"
out += f""".section .rodata,"a"
.p2align 6
.amdhsa_kernel {NAME}
  .amdhsa_next_free_vgpr 512
  .amdhsa_next_free_sgpr 102
  .amdhsa_accum_offset 256
  .amdhsa_group_segment_fixed_size 0
  .amdhsa_kernarg_size 104
  .amdhsa_user_sgpr_count 2
  .amdhsa_user_sgpr_kernarg_segment_ptr 1
  .amdhsa_system_sgpr_workgroup_id_x 1
  .amdhsa_float_denorm_mode_32 3
.end_amdhsa_kernel
"""
open(sys.argv[1], "w").write(out)
if STAMPS: open(sys.argv[1] + ".names", "w").write(",".join(stnames))
print(f"wrote {sys.argv[1]}: {len(lines)} lines, {nn} nops inserted; WS_USED={WS_USED:#x}", file=sys.stderr)
```

```python
import sys, struct
from asmlib import *

NAME = "interleave_layers__ssm_conv_s4d__linear_attn_block__prompt_kernel"
OPTS = {}
for x in sys.argv[2:]:
    if "=" in x:
        k_, v_ = x.split("="); OPTS[k_] = v_
STOP = OPTS.get("stop")
SPINMAX = int(OPTS.get("spin", 100000))
BK = int(OPTS.get("bk", 2))

PITCH = 4224
S1 = 0x000000
S3 = 0x004000
FP = 640; FRP = 32 * FP + 128; F1 = 0x1200000 - 0x100000; F2 = F1 + 0x40000
STAMP_OFF = 0x020000
X0P = 8192 + 128
CNT = 0x030000
KVP1 = 0x040000; KVH = 1152; KVW = 4 * KVH; KVP2 = KVP1 + 0x128000
WFG = 0x2A0000; WFO = WFG + 0x180000
XSZ = 0x220000
XT1 = 0x4A0000; XT3 = XT1 + XSZ; X2T = XT3 + XSZ
ROP = 32768 + 256
HP = 65536 + 256
PQ1 = X2T + XSZ; PQ2 = PQ1 + 0x210000
X0T = 0x1200000
WS_USED = 0x1200000 + 0x210000
assert PQ2 + 0x210000 <= F1
KC = 0; KCC = 4160; KCH = 8 * KCC
AT = 2 * KCH
MISC = AT + 65536
ST = MISC
WST = MISC + 2048
CT = WST + 8192; CTP = 2080
TB = WST; TBP = 80
LDS_BYTES = 163840
X0S = 147456
TKP = 224; TABC = 256 * TKP
U0 = AT; UP = 4608; X0 = AT + 2 * UP; RED = X0 + 8192
OT = AT

sU, sLOGA, sAIM, sCR, sCI, sLDT, sDSK = 8, 10, 12, 14, 16, 18, 20
sWQKV, sWO, sOUT, sDBG, sWS = 24, 26, 28, 30, 32
sSRD = 36; sSRD2 = 40
sWAVE, sXCD, sIDX, sCP, sRS, sJ, sRO, sJO = 44, 45, 46, 47, 48, 49, 50, 51
sSPIN = 52; sDSKV = 53
sT = 54
sLOG2E = 64; sEPS6 = 66; sM = 68; sHI = 76; sPC = 78; sINV512 = 80
sW = 34
sNON = 35

def f2u(f): return struct.unpack("<I", struct.pack("<f", f))[0]
A = Asm(); e = A.e
uid = [0]
def lab(p):
    uid[0] += 1; return f"L_{p}_{uid[0]}"

STAMPS = OPTS.get("stamps") == "1"
DEFSET = "start,arr1,kgen,B1,c1_pro,C1,B2,g1_kv,G1,o1_ld,O1,B4,c2_pro,C2,B5,G2,o2_ld,O2"
STSET = OPTS.get("st", DEFSET).split(",")
stnames = []
def stamp(name):
    if not STAMPS or name not in STSET: return
    i = len(stnames); stnames.append(name); assert i < 18
    e(f"{'s_memtime' if OPTS.get('clk') == '1' else 's_memrealtime'} s[82:83]"); e("s_waitcnt lgkmcnt(0)"); e(f"s_mov_b32 s{84+i}, s82")
def stamps_out():
    if not STAMPS: return
    if OPTS.get("dbgout"):
        l = lab("so")
        e(f"s_cmp_lg_u32 {s(sWAVE)}, 0"); e(f"s_cbranch_scc1 {l}")
        e(f"s_cmp_lg_u32 s2, {OPTS.get('dbgout')}"); e(f"s_cbranch_scc1 {l}")
        e("s_mov_b64 exec, 1")
        words = [2, 3, 5, 6, 7, 9, 10, 11, 13, 14, 15]
        for i in range(1, min(len(stnames), 12)):
            e(f"s_sub_u32 {s(sT)}, s{84+i}, s84")
            e(f"v_mov_b32 v10, {s(sT)}"); e(f"v_mov_b32 v11, {4*words[i-1]}")
            e(f"global_store_dword v11, v10, {s(sDBG,2)}")
        e("s_mov_b64 exec, -1")
        A.label(l)
        return
    l = lab("so")
    e(f"s_cmp_lg_u32 {s(sWAVE)}, {OPTS.get('stw', '0')}"); e(f"s_cbranch_scc1 {l}")
    e(f"s_lshl_b32 {s(sT)}, s2, 7"); e(f"s_add_u32 {s(sT)}, {s(sT)}, {STAMP_OFF}")
    e("s_mov_b64 exec, 1")
    for i in range(len(stnames)):
        e(f"v_mov_b32 v10, s{84+i}"); e(f"v_mov_b32 v11, {4*i}")
        e(f"buffer_store_dword v10, v11, {s(sSRD,4)}, {s(sT)} offen")
    e("s_mov_b64 exec, -1")
    A.label(l)
def stop_here(name):
    if STOP == name:
        e("s_waitcnt vmcnt(0) lgkmcnt(0)"); e("s_branch L_end"); return True
    return False

def sent_regs(r):
    for i in range(4): e(f"v_mov_b32 {v(r+i)}, -1")
def spin_check(retry, giveup, bk=None):
    e(f"s_cbranch_vccz {giveup}")
    bk = BK if bk is None else bk
    if bk: e(f"s_sleep {bk}")
    e(f"s_sub_u32 {s(sSPIN)}, {s(sSPIN)}, 1")
    e(f"s_cbranch_scc0 {retry}")
    e(f"s_mov_b32 {s(sSPIN)}, 0")
    A.label(giveup)
def maxtree(regs, dst):
    regs = list(regs); cur = regs.pop(0)
    while regs:
        if len(regs) >= 2:
            e(f"v_max3_u32 {v(dst)}, {v(cur)}, {v(regs[0])}, {v(regs[1])}"); regs = regs[2:]
        else:
            e(f"v_max_u32 {v(dst)}, {v(cur)}, {v(regs[0])}"); regs = []
        cur = dst

def arrive(k):
    e("s_waitcnt vmcnt(0) lgkmcnt(0)"); e("s_barrier")
    l = lab("arr")
    e(f"s_cmp_lg_u32 {s(sWAVE)}, 0"); e(f"s_cbranch_scc1 {l}")
    e(f"s_and_b32 {s(sT)}, s2, 15"); e(f"s_lshl_b32 {s(sT)}, {s(sT)}, {4 if k == 0 else 12}")
    if k: e(f"s_add_u32 {s(sT)}, {s(sT)}, {CNT}")
    e(f"v_mov_b32 v10, {s(sT)}"); e("v_mov_b32 v11, 1")
    e("s_mov_b64 exec, 1")
    e(f"global_atomic_add v10, v11, {s(sDBG if k == 0 else sWS,2)}")
    e("s_mov_b64 exec, -1")
    A.label(l)
def wait(k):
    l = lab("wt"); lp = lab("poll")
    e(f"s_cmp_lg_u32 {s(sWAVE)}, 0"); e(f"s_cbranch_scc1 {l}")
    e("v_and_b32 v10, 15, v0"); e(f"v_lshlrev_b32 v10, {4 if k == 0 else 12}, v10")
    if k: e(f"v_add_u32 v10, {CNT}, v10")
    e(f"s_movk_i32 {s(sT+1)}, {16 * max(k, 1)}")
    pre = int(OPTS.get(f"wpre{k}", {1: 0, 2: 12, 3: 0}.get(k, 0)))
    if pre: e(f"s_sleep {pre}")
    A.label(lp)
    e(f"global_load_dword v11, v10, {s(sDBG if k == 0 else sWS,2)} sc1")
    e("s_waitcnt vmcnt(0)")
    e(f"v_cmp_gt_u32 vcc, {s(sT+1)}, v11")
    spin_check(lp, l, bk=int(OPTS.get("wbk", 0)))
    e("s_barrier")

def cmul(d, x, w, t):
    return [f"v_pk_mul_f32 {v(t,2)}, {v(x,2)}, {v(w,2)} op_sel_hi:[1,0]",
            f"v_pk_fma_f32 {v(d,2)}, {v(x,2)}, {v(w,2)}, {v(t,2)} op_sel:[1,1,0] op_sel_hi:[0,1,1] neg_lo:[0,1,0]"]
def bf16r(dst, src):
    e(f"v_cvt_pk_bf16_f32 {v(dst)}, {v(src)}, {v(src)}"); e(f"v_lshlrev_b32 {v(dst)}, 16, {v(dst)}")
def stats_final(vsum, vsq, vm, vr, t, rcp=True):
    e(f"v_mul_f32 {v(t)}, {s(sINV512)}, {v(vsum)}")
    e(f"v_mul_f32 {v(t+1)}, {s(sINV512)}, {v(vsq)}")
    e(f"v_fma_f32 {v(t+1)}, -{v(t)}, {v(t)}, {v(t+1)}")
    e(f"v_max_f32 {v(t+1)}, 0, {v(t+1)}")
    e(f"v_cvt_pk_bf16_f32 {v(t)}, {v(t)}, {v(t+1)}")
    e(f"v_and_b32 {v(t+1)}, {s(sHI)}, {v(t)}"); e(f"v_lshlrev_b32 {v(vm)}, 16, {v(t)}")
    e(f"v_add_f32 {v(t+1)}, 0x3727c5ac, {v(t+1)}")
    bf16r(t + 1, t + 1)
    e(f"v_sqrt_f32 {v(t+1)}, {v(t+1)}")
    if rcp:
        bf16r(t + 1, t + 1)
        e(f"v_rcp_f32 {v(vr)}, {v(t+1)}")
    else:
        bf16r(vr, t + 1)

def kvp_addr(kvp, dst):
    e(f"s_lshl_b32 {s(dst)}, {s(sJ)}, 5"); e(f"s_add_u32 {s(dst)}, {s(dst)}, {s(sRS)}"); e(f"s_lshl_b32 {s(dst)}, {s(dst)}, 2")
    e(f"s_add_u32 {s(dst)}, {s(dst)}, {s(sWAVE)}"); e(f"s_mul_i32 {s(dst)}, {s(dst)}, {KVH}"); e(f"s_add_u32 {s(dst)}, {s(dst)}, {kvp}")
def f_addr(f, dst):
    e(f"s_lshr_b32 {s(dst)}, {s(sRS)}, 3"); e(f"s_lshl_b32 {s(sT+9)}, {s(sJ)}, 2"); e(f"s_add_u32 {s(dst)}, {s(dst)}, {s(sT+9)}")
    e(f"s_mul_i32 {s(dst)}, {s(dst)}, {FP}"); e(f"s_add_u32 {s(dst)}, {s(dst)}, {f}")
def pq_addr(pq, dst):
    e(f"s_lshl_b32 {s(dst)}, {s(sJ)}, 2"); e(f"s_add_u32 {s(dst)}, {s(dst)}, {s(sWAVE)}")
    e(f"s_mul_i32 {s(dst)}, {s(dst)}, {HP}"); e(f"s_lshl_b32 {s(sT+9)}, {s(sRS)}, 11"); e(f"s_add_u32 {s(dst)}, {s(dst)}, {s(sT+9)}")
    e(f"s_add_u32 {s(dst)}, {s(dst)}, {pq}")
def capture(fn):
    n = len(A.lines); fn(); out = [l.strip() for l in A.lines[n:]]; del A.lines[n:]
    return out
def fill_groups(layer, va, vb):
    S = 20; P1, K1, FF = 40, 41, 42
    pq = PQ1 if layer == 1 else PQ2; kvp = KVP1 if layer == 1 else KVP2; ff = F1 if layer == 1 else F2
    G = []
    def grp(fn): G.append(capture(fn))
    def single(fn):
        for l in capture(fn): G.append([l])
    single(lambda: sent_regs(S))
    def addr():
        e(f"s_lshl_b32 s{P1}, {s(sJ)}, 2"); e(f"s_add_u32 s{P1}, s{P1}, {s(sWAVE)}"); e(f"s_mul_i32 s{P1}, s{P1}, {HP}")
        e(f"s_lshl_b32 s61, {s(sRS)}, 11"); e(f"s_add_u32 s{P1}, s{P1}, s61"); e(f"s_add_u32 s{P1}, s{P1}, {pq}")
        e(f"s_lshl_b32 s{K1}, {s(sJ)}, 5"); e(f"s_add_u32 s{K1}, s{K1}, {s(sRS)}"); e(f"s_lshl_b32 s{K1}, s{K1}, 2")
        e(f"s_add_u32 s{K1}, s{K1}, {s(sWAVE)}"); e(f"s_mul_i32 s{K1}, s{K1}, {KVH}"); e(f"s_add_u32 s{K1}, s{K1}, {kvp}")
        e(f"s_lshr_b32 s{FF}, {s(sRS)}, 3"); e(f"s_lshl_b32 s61, {s(sJ)}, 2"); e(f"s_add_u32 s{FF}, s{FF}, s61")
        e(f"s_mul_i32 s{FF}, s{FF}, {FP}"); e(f"s_add_u32 s{FF}, s{FF}, {ff}")
        e(f"v_lshlrev_b32 {v(va)}, 4, v1"); e(f"v_lshlrev_b32 {v(vb)}, 2, v1")
    single(addr)
    G.append([f"buffer_store_dwordx4 {v(S,4)}, {v(va)}, {s(sSRD,4)}, s{K1} offen sc1", "MARK"])
    def st2():
        e("s_mov_b32 s62, -1"); e("s_mov_b32 s63, 0"); e("s_mov_b64 exec, s[62:63]")
        e(f"buffer_store_dword {v(S)}, {v(vb)}, {s(sSRD,4)}, s{K1} offen offset:1024 sc1")
        e("s_mov_b64 exec, -1")
    grp(st2)
    G.append([f"buffer_store_dwordx4 {v(S,4)}, {v(va)}, {s(sSRD,4)}, s{P1} offen sc1", "MARK"])
    G.append([f"buffer_store_dwordx4 {v(S,4)}, {v(va)}, {s(sSRD,4)}, s{P1} offen offset:1024 sc1", "MARK"])
    def fslice():
        l = lab("ff")
        e(f"s_cmp_lg_u32 {s(sWAVE)}, 2"); e(f"s_cbranch_scc1 {l}")
        e(f"s_and_b32 s61, {s(sRS)}, 7"); e("s_lshl_b32 s62, s61, 6")
        e(f"v_lshrrev_b32 {v(va)}, 3, v1"); e(f"v_mul_u32_u24 {v(va)}, {FRP}, {v(va)}"); e(f"v_and_b32 {v(vb)}, 7, v1"); e(f"v_lshl_add_u32 {v(va)}, {v(vb)}, 3, {v(va)}")
        e(f"v_add_u32 {v(vb)}, s62, {v(va)}")
        e(f"buffer_store_dwordx2 {v(S,2)}, {v(vb)}, {s(sSRD,4)}, s{FF} offen sc1")
        e("s_cmp_lg_u32 s61, 0"); e(f"s_cbranch_scc1 {l}")
        e("s_mov_b32 s62, 0x0f0f0f0f"); e("s_mov_b32 s63, 0x0f0f0f0f"); e("s_mov_b64 exec, s[62:63]")
        e(f"buffer_store_dwordx2 {v(S,2)}, {v(va)}, {s(sSRD,4)}, s{FF} offen offset:512 sc1")
        e("s_mov_b64 exec, -1")
        A.label(l)
    grp(fslice)
    return G
def emit_group(g):
    for l in g:
        if l == "MARK": continue
        if l.endswith(":"): A.label(l[:-1])
        else: e(l)

XR = 24; PRM = 32; IDX = 40; XC = 176
def prologue():
    stamp("t0")
    e(f"s_getpc_b64 {s(sPC,2)}")
    A.label("L_pc")
    e("s_cmp_ge_u32 s2, 256")
    e("s_cbranch_scc1 L_end")
    e("s_load_dwordx16 s[8:23], s[0:1], 0")
    e("s_load_dwordx8 s[24:31], s[0:1], 64")
    e("s_load_dwordx2 s[32:33], s[0:1], 96")
    e("s_memrealtime s[82:83]")
    e("v_lshlrev_b32 v10, 7, v0")
    e("v_min_u32 v11, L_tab_end - L_pc - 4, v10")
    e(f"global_load_dword v38, v11, {s(sPC,2)}")
    e("v_add_u32 v10, 0x8000, v10")
    e("v_min_u32 v10, L_tab_end - L_pc - 4, v10")
    e(f"global_load_dword v39, v10, {s(sPC,2)}")
    e("v_lshrrev_b32 v1, 6, v0")
    e(f"s_and_b32 {s(sXCD)}, s2, 7")
    e(f"s_lshr_b32 {s(sIDX)}, s2, 3")
    e(f"v_readfirstlane_b32 {s(sWAVE)}, v1")
    e(f"s_lshl_b32 {s(sCP)}, {s(sXCD)}, 5"); e(f"s_add_u32 {s(sCP)}, {s(sCP)}, {s(sIDX)}")
    e("v_and_b32 v1, 63, v0")
    e(f"s_lshl_b32 {s(sT)}, {s(sCP)}, 9"); e(f"v_lshl_add_u32 v10, v0, 1, {s(sT)}")
    e(f"s_lshl_b32 {s(sT)}, {s(sCP)}, 2"); e("v_lshrrev_b32 v12, 7, v0"); e(f"v_lshl_add_u32 v11, v12, 1, {s(sT)}")
    e(f"s_lshl_b32 {s(sT)}, s2, 13"); e(f"v_lshl_add_u32 v13, v0, 5, {s(sT)}")
    e(f"s_mul_i32 s6, s2, 5462"); e(f"s_lshr_b32 s6, s6, 16"); e(f"s_mul_i32 s7, s6, 12"); e(f"s_sub_u32 s7, s2, s7")
    e(f"s_sub_u32 {s(sT+1)}, s2, 192"); e(f"s_lshr_b32 {s(sT)}, {s(sT+1)}, 1"); e(f"s_and_b32 {s(sT+1)}, {s(sT+1)}, 1")
    e("s_cmp_ge_u32 s2, 192")
    e(f"s_cselect_b32 s6, {s(sT)}, s6"); e(f"s_cselect_b32 s7, {s(sT+1)}, s7")
    e(f"s_cselect_b32 {s(sT+2)}, 4, 5")
    e(f"s_cselect_b32 {s(sT+3)}, 2, 3")
    e(f"s_cselect_b32 {s(sT+4)}, 10, 0")
    e(f"s_movk_i32 {s(sT+5)}, 3072"); e(f"s_cselect_b32 {s(sT+5)}, 1024, {s(sT+5)}")
    e(f"s_cselect_b32 {s(sT+6)}, 9, 8")
    e(f"s_cselect_b32 {s(sT+7)}, 5, 4")
    e(f"s_lshl_b32 {s(sT)}, s6, {s(sT+2)}"); e(f"s_lshl_b32 {s(sT+1)}, {s(sWAVE)}, {s(sT+3)}"); e(f"s_add_u32 {s(sT)}, {s(sT)}, {s(sT+1)}")
    e(f"s_mul_i32 {s(sT)}, {s(sT)}, {s(sT+5)}"); e(f"s_lshl_b32 {s(sT+1)}, s7, {s(sT+6)}"); e(f"s_add_u32 s4, {s(sT)}, {s(sT+1)}")
    e(f"v_lshrrev_b32 v14, {s(sT+7)}, v1"); e(f"v_mul_lo_u32 v14, {s(sT+5)}, v14")
    e(f"s_lshl_b32 {s(sT+1)}, 1, {s(sT+7)}"); e(f"s_sub_u32 {s(sT+1)}, {s(sT+1)}, 1"); e(f"v_and_b32 v15, {s(sT+1)}, v1"); e("v_lshl_add_u32 v14, v15, 4, v14")
    e(f"s_lshl_b32 {s(sT+1)}, 64, 0"); e(f"s_lshr_b32 {s(sT+1)}, 64, {s(sT+7)}"); e(f"s_mul_i32 s5, {s(sT+1)}, {s(sT+5)}")
    e(f"s_lshl_b32 {s(sT+3)}, {s(sWAVE)}, 11"); e(f"s_add_u32 {s(sT+3)}, {s(sT+3)}, {WST}")
    e("s_cmp_ge_u32 s2, 192")
    e("s_waitcnt lgkmcnt(0)")
    stamp("karg")
    if True:
        e(f"v_min_u32 v16, {(WS_USED - 1) // 0x200000}, v1"); e("v_lshlrev_b32 v16, 21, v16")
        e(f"global_load_dword v19, v16, {s(sWS,2)}")
    e("s_cmp_ge_u32 s2, 192")
    e(f"global_load_ushort {v(PRM)}, v10, {s(sLOGA,2)}")
    e(f"global_load_ushort {v(PRM+1)}, v10, {s(sAIM,2)}")
    e(f"global_load_ushort {v(PRM+4)}, v11, {s(sLDT,2)}")
    e(f"global_load_dwordx4 {v(XR,4)}, v13, {s(sU,2)}")
    e(f"global_load_dwordx4 {v(XR+4,4)}, v13, {s(sU,2)} offset:16")
    e(f"global_load_ushort {v(PRM+2)}, v10, {s(sCR,2)}")
    e(f"global_load_ushort {v(PRM+3)}, v10, {s(sCI,2)}")
    e(f"global_load_ushort {v(PRM+5)}, v11, {s(sDSK,2)}")
    e(f"s_cselect_b32 {s(sSRD2)}, {s(sWO)}, {s(sWQKV)}"); e(f"s_cselect_b32 {s(sSRD2+1)}, {s(sWO+1)}, {s(sWQKV+1)}")
    e(f"s_mov_b32 {s(sT)}, {512*1536*2}"); e(f"s_cselect_b32 {s(sSRD2+2)}, {512*512*2}, {s(sT)}")
    e(f"s_and_b32 {s(sSRD2+1)}, {s(sSRD2+1)}, 0xffff"); e(f"s_mov_b32 {s(sSRD2+3)}, 0x20000")
    ln = lab("nw")
    e("v_mov_b32 v23, 4")
    e(f"s_or_b32 {s(sT)}, s2, {s(sWAVE)}"); e(f"s_cmp_lg_u32 {s(sT)}, 0"); e(f"s_cbranch_scc1 {ln}")
    e(f"s_or_b32 {s(sT)}, s82, 1"); e(f"v_mov_b32 v58, {s(sT)}")
    e("s_mov_b64 exec, 1")
    e(f"global_store_dword v23, v58, {s(sDBG,2)} sc1")
    e("s_mov_b64 exec, -1")
    e("s_waitcnt vmcnt(63)")
    A.label(ln)
    e(f"s_mov_b32 m0, {s(sT+3)}")
    e(f"buffer_load_dwordx4 v14, {s(sSRD2,4)}, s4 offen lds")
    e(f"s_add_u32 s4, s4, s5"); e(f"s_add_u32 m0, {s(sT+3)}, 1024")
    e(f"buffer_load_dwordx4 v14, {s(sSRD2,4)}, s4 offen lds")
    e(f"s_and_b32 {s(sT)}, {s(sIDX)}, 3"); e(f"s_lshl_b32 {s(sRS)}, {s(sXCD)}, 2"); e(f"s_add_u32 {s(sRS)}, {s(sRS)}, {s(sT)}")
    e(f"s_lshr_b32 {s(sJ)}, {s(sIDX)}, 2")
    e(f"s_and_b32 {s(sT)}, {s(sJ)}, 1"); e(f"s_lshl_b32 {s(sRO)}, {s(sRS)}, 1"); e(f"s_add_u32 {s(sRO)}, {s(sRO)}, {s(sT)}")
    e(f"s_lshr_b32 {s(sJO)}, {s(sJ)}, 1")
    e(f"s_mov_b32 {s(sLOG2E)}, {f2u(1.4426950408889634):#x}"); e(f"s_mov_b32 {s(sLOG2E+1)}, {s(sLOG2E)}")
    e(f"s_mov_b32 {s(sEPS6)}, {f2u(1e-6):#x}"); e(f"s_mov_b32 {s(sEPS6+1)}, {s(sEPS6)}")
    e(f"s_mov_b32 {s(sINV512)}, {f2u(1.0/512):#x}"); e(f"s_mov_b32 {s(sINV512+1)}, {s(sINV512)}")
    e(f"s_mov_b32 {s(sHI)}, 0xffff0000")
    e(f"s_mov_b32 {s(sSPIN)}, {SPINMAX}")
    e(f"s_mov_b32 {s(sSRD)}, {s(sWS)}"); e(f"s_and_b32 {s(sSRD+1)}, {s(sWS+1)}, 0xffff")
    e(f"s_mov_b32 {s(sSRD+2)}, {WS_USED:#x}"); e(f"s_mov_b32 {s(sSRD+3)}, 0x20000")

def p0_fills():
    e("v_mov_b32 v12, 0")
    e(f"s_lshl_b32 {s(sT)}, s2, 6"); e(f"s_add_u32 {s(sT)}, {s(sT)}, {S3}")
    e("v_lshlrev_b32 v10, 2, v1")
    e("s_mov_b64 exec, 0xffff")
    e(f"buffer_store_dword v12, v10, {s(sSRD,4)}, {s(sT)} offen sc1")
    e(f"s_lshl_b32 {s(sT+1)}, s2, 12"); e(f"s_add_u32 {s(sT+1)}, {s(sT+1)}, {CNT}")
    e("s_cmp_lt_u32 s2, 16"); e(f"s_cselect_b32 {s(sT)}, {s(sT+1)}, {s(sT)}")
    e("s_mov_b64 exec, 1")
    e(f"buffer_store_dword v12, v10, {s(sSRD,4)}, {s(sT)} offen sc1")
    e("s_mov_b64 exec, -1")

def nonce_issue():
    e("v_mov_b32 v17, 4")
    e(f"global_load_dword v58, v17, {s(sDBG,2)} sc1")
def nonce_get():
    lr = lab("nr"); lg = lab("ng"); l0 = lab("n0")
    e("s_waitcnt vmcnt(0)")
    e(f"s_branch {l0}")
    A.label(lr)
    e(f"global_load_dword v58, v17, {s(sDBG,2)} sc1")
    e("s_waitcnt vmcnt(0)")
    A.label(l0)
    e("v_cmp_eq_u32 vcc, 0, v58")
    spin_check(lr, lg, bk=1)
    e(f"v_readfirstlane_b32 {s(sNON)}, v58")

def idx_loads():
    e(f"s_add_u32 {s(sT)}, {s(sPC)}, L_idx - L_pc"); e(f"s_addc_u32 {s(sT+1)}, {s(sPC+1)}, 0")
    e("v_and_b32 v10, 127, v0"); e("v_lshlrev_b32 v10, 4, v10")
    e(f"global_load_dwordx4 {v(IDX,4)}, v10, {s(sT,2)}")
    e(f"global_load_dwordx4 {v(IDX+4,4)}, v10, {s(sT,2)} offset:16")
    e(f"global_load_dwordx4 {v(IDX+8,4)}, v10, {s(sT,2)} offset:2048")
    e(f"global_load_dwordx4 {v(IDX+12,4)}, v10, {s(sT,2)} offset:2064")

def gather_loads():
    out = []
    for i in range(4): out.append(f"global_load_dword {v(XC+i)}, v19, {s(sU,2)} offset:{1024*i}")
    for i in range(4): out.append(f"global_load_dword {v(XC+4+i)}, v18, {s(sU,2)} offset:{1024*i}")
    return out

def p0_x0_write():
    e(f"v_lshlrev_b32 v10, 5, v0"); e(f"v_add_u32 v10, {X0S}, v10")
    e(f"ds_write_b128 v10, {v(XR,4)}"); e(f"ds_write_b128 v10, {v(XR+4,4)} offset:16")
def p0_x0_store():
    e("v_bfe_u32 v10, v1, 2, 2"); e("v_lshlrev_b32 v10, 10, v10")
    e("v_lshrrev_b32 v11, 4, v1"); e("v_lshl_add_u32 v10, v11, 5, v10")
    e("v_and_b32 v11, 3, v1"); e("v_lshl_add_u32 v10, v11, 3, v10")
    e(f"s_lshl_b32 {s(sT)}, {s(sWAVE)}, 8"); e(f"s_add_u32 {s(sT)}, {s(sT)}, {X0S}"); e(f"v_add_u32 v10, {s(sT)}, v10")
    for k in range(2):
        e(f"ds_read_b64_tr_b16 {v(100+4*k,2)}, v10 offset:{128*k}"); e(f"ds_read_b64_tr_b16 {v(102+4*k,2)}, v10 offset:{128*k + 4096}")
    e(f"s_mul_i32 {s(sT)}, s2, {X0P}"); e(f"s_lshl_b32 {s(sT+1)}, {s(sWAVE)}, 11"); e(f"s_add_u32 {s(sT)}, {s(sT)}, {s(sT+1)}")
    e(f"s_add_u32 {s(sT)}, {s(sT)}, {X0T}")
    e("v_lshlrev_b32 v11, 4, v1")
    e("s_waitcnt lgkmcnt(0)")
    e(f"buffer_store_dwordx4 v[100:103], v11, {s(sSRD,4)}, {s(sT)} offen sc1")
    e(f"buffer_store_dwordx4 v[104:107], v11, {s(sSRD,4)}, {s(sT)} offen offset:1024 sc1")

def p0_stats():
    F = 64
    for i in range(8):
        e(f"v_lshlrev_b32 {v(F+2*i)}, 16, {v(XR+i)}"); e(f"v_and_b32 {v(F+2*i+1)}, {s(sHI)}, {v(XR+i)}")
    for i in range(4): e(f"v_pk_add_f32 {v(80+2*i,2)}, {v(F+4*i,2)}, {v(F+4*i+2,2)}")
    e(f"v_pk_mul_f32 v[88:89], {v(F,2)}, {v(F,2)}"); e(f"v_pk_mul_f32 v[90:91], {v(F+2,2)}, {v(F+2,2)}")
    e(f"v_pk_add_f32 v[80:81], v[80:81], v[82:83]"); e(f"v_pk_add_f32 v[84:85], v[84:85], v[86:87]")
    for i in range(2, 8): e(f"v_pk_fma_f32 {v(88+2*(i&1),2)}, {v(F+2*i,2)}, {v(F+2*i,2)}, {v(88+2*(i&1),2)}")
    e(f"v_pk_add_f32 v[80:81], v[80:81], v[84:85]"); e("v_pk_add_f32 v[88:89], v[88:89], v[90:91]")
    e("v_add_f32 v80, v80, v81"); e("v_add_f32 v82, v88, v89")
    for r_ in (8, 4, 2, 1):
        e(f"v_add_f32_dpp v80, v80, v80 row_ror:{r_} row_mask:0xf bank_mask:0xf")
        e(f"v_add_f32_dpp v82, v82, v82 row_ror:{r_} row_mask:0xf bank_mask:0xf")
    e("v_add_f32_dpp v80, v80, v80 row_bcast:15 row_mask:0xa bank_mask:0xf")
    e("v_add_f32_dpp v82, v82, v82 row_bcast:15 row_mask:0xa bank_mask:0xf")
    stats_final(80, 82, 56, 57, 86, rcp=False)
    e("v_lshrrev_b32 v56, 16, v56"); e(f"v_and_or_b32 v56, v57, {s(sHI)}, v56")

def p0_stats_store():
    e(f"v_mov_b32 v57, {s(sNON)}")
    e(f"s_lshl_b32 {s(sT)}, s2, 4"); e(f"s_lshl_b32 {s(sT+1)}, {s(sWAVE)}, 12"); e(f"s_add_u32 {s(sT)}, {s(sT)}, {s(sT+1)}")
    e(f"s_add_u32 {s(sT)}, {s(sT)}, {S1}")
    e("v_lshrrev_b32 v10, 5, v1"); e(f"v_lshl_add_u32 v10, v10, 3, {s(sT)}")
    e(f"s_mov_b32 {s(sT+2)}, 0x00010000"); e(f"s_mov_b32 {s(sT+3)}, 0x00010000")
    e(f"s_mov_b64 exec, {s(sT+2,2)}")
    e(f"buffer_store_dwordx2 v[56:57], v10, {s(sSRD,4)}, 0 offen sc1")
    e("s_mov_b64 exec, -1")

def p0_wfrag():
    lo = lab("wo2"); lj = lab("wj2")
    e("s_cmp_ge_u32 s2, 192"); e(f"s_cbranch_scc1 {lo}")
    e("v_lshrrev_b32 v10, 2, v1"); e("v_lshlrev_b32 v10, 8, v10")
    e("v_and_b32 v11, 3, v1"); e("v_lshl_add_u32 v10, v11, 3, v10")
    e(f"s_lshl_b32 {s(sT)}, {s(sWAVE)}, 6"); e(f"s_add_u32 {s(sT)}, {s(sT)}, {WST}")
    e(f"v_add_u32 v10, {s(sT)}, v10")
    e("ds_read_b64_tr_b16 v[88:89], v10"); e("ds_read_b64_tr_b16 v[90:91], v10 offset:4096")
    e("ds_read_b64_tr_b16 v[92:93], v10 offset:32"); e("ds_read_b64_tr_b16 v[94:95], v10 offset:4128")
    e(f"s_lshr_b32 {s(sT)}, s7, 2")
    e(f"s_add_u32 {s(sT)}, {s(sT)}, 2"); e(f"s_cmp_ge_u32 {s(sT)}, 3")
    e(f"s_cselect_b32 {s(sT+1)}, 3, 0"); e(f"s_sub_u32 {s(sT)}, {s(sT)}, {s(sT+1)}")
    e(f"s_and_b32 {s(sT+1)}, s7, 3"); e(f"s_lshl_b32 {s(sT+1)}, {s(sT+1)}, 3")
    e(f"s_lshl_b32 {s(sT+2)}, {s(sWAVE)}, 1"); e(f"s_add_u32 {s(sT+1)}, {s(sT+1)}, {s(sT+2)}")
    e(f"s_mul_i32 {s(sT+1)}, {s(sT+1)}, 3"); e(f"s_add_u32 {s(sT+1)}, {s(sT+1)}, {s(sT)}")
    e(f"s_lshl_b32 {s(sT+1)}, {s(sT+1)}, 4"); e(f"s_add_u32 {s(sT+1)}, {s(sT+1)}, s6")
    e(f"s_lshl_b32 {s(sT+1)}, {s(sT+1)}, 10"); e(f"s_add_u32 {s(sT+1)}, {s(sT+1)}, {WFG}")
    e(f"s_add_u32 {s(sT+2)}, {s(sT+1)}, 49152")
    e(f"s_branch {lj}")
    A.label(lo)
    e("v_lshrrev_b32 v10, 5, v1"); e("v_lshlrev_b32 v10, 2, v10")
    e("v_bfe_u32 v11, v1, 2, 2"); e("v_add_u32 v10, v10, v11"); e("v_lshlrev_b32 v10, 9, v10")
    e("v_and_b32 v11, 1, v1"); e("v_lshl_add_u32 v10, v11, 5, v10")
    e("v_bfe_u32 v11, v1, 4, 1"); e("v_lshl_add_u32 v10, v11, 4, v10")
    e("v_bfe_u32 v11, v1, 1, 1"); e("v_lshl_add_u32 v10, v11, 3, v10")
    e(f"s_lshl_b32 {s(sT)}, {s(sWAVE)}, 7"); e(f"s_add_u32 {s(sT)}, {s(sT)}, {WST}")
    e(f"v_add_u32 v10, {s(sT)}, v10")
    e("ds_read_b64_tr_b16 v[88:89], v10"); e("ds_read_b64_tr_b16 v[90:91], v10 offset:4096")
    e("ds_read_b64_tr_b16 v[92:93], v10 offset:64"); e("ds_read_b64_tr_b16 v[94:95], v10 offset:4160")
    e(f"s_lshl_b32 {s(sT+1)}, s7, 3"); e(f"s_lshl_b32 {s(sT+2)}, {s(sWAVE)}, 1"); e(f"s_add_u32 {s(sT+1)}, {s(sT+1)}, {s(sT+2)}")
    e(f"s_lshl_b32 {s(sT+1)}, {s(sT+1)}, 5"); e(f"s_add_u32 {s(sT+1)}, {s(sT+1)}, s6")
    e(f"s_lshl_b32 {s(sT+1)}, {s(sT+1)}, 10"); e(f"s_add_u32 {s(sT+1)}, {s(sT+1)}, {WFO}")
    e(f"s_add_u32 {s(sT+2)}, {s(sT+1)}, 32768")
    A.label(lj)
    e("v_lshlrev_b32 v10, 4, v1")
    e("s_waitcnt lgkmcnt(0)")
    e(f"buffer_store_dwordx4 v[88:91], v10, {s(sSRD,4)}, {s(sT+1)} offen sc1")
    e(f"buffer_store_dwordx4 v[92:95], v10, {s(sSRD,4)}, {s(sT+2)} offen sc1")

def pw_multi(items, a2, b2):
    for (d, t, tm) in items:
        if t == 1:
            e(f"v_mov_b32 {v(tm)}, {v(a2)}"); e(f"v_fract_f32 {v(tm+1)}, {v(b2)}")
        else:
            c = f"{float(t)}" if t in (2, 4) else f"{f2u(float(t)):#x}"
            e(f"v_mul_f32 {v(tm)}, {c}, {v(a2)}"); e(f"v_mul_f32 {v(tm+1)}, {c}, {v(b2)}")
    for (d, t, tm) in items:
        e(f"v_exp_f32 {v(tm)}, {v(tm)}")
        if t != 1: e(f"v_fract_f32 {v(tm+1)}, {v(tm+1)}")
    for (d, t, tm) in items:
        e(f"v_cos_f32 {v(d)}, {v(tm+1)}"); e(f"v_sin_f32 {v(d+1)}, {v(tm+1)}")
    for (d, t, tm) in items:
        e(f"v_pk_mul_f32 {v(d,2)}, {v(d,2)}, {v(tm,2)} op_sel_hi:[1,0]")

W1, W4, W16, W64, W512 = 100, 102, 104, 106, 108
CH = {"X1": 112, "X2": 128, "Y1": 144, "Y2": 160}
def kgen_setup():
    for i in range(6): e(f"v_lshlrev_b32 {v(PRM+i)}, 16, {v(PRM+i)}")
    e(f"v_readfirstlane_b32 {s(sDSKV)}, {v(PRM+5)}")
    dt, are = 60, 61
    e(f"v_mul_f32 {v(dt)}, {s(sLOG2E)}, {v(PRM+4)}"); e(f"v_mul_f32 {v(are)}, {s(sLOG2E)}, {v(PRM)}")
    e(f"v_exp_f32 {v(dt)}, {v(dt)}"); e(f"v_exp_f32 {v(are)}, {v(are)}")
    e(f"v_cvt_pk_bf16_f32 {v(dt)}, {v(dt)}, {v(are)}")
    e(f"v_and_b32 {v(are)}, {s(sHI)}, {v(dt)}"); e(f"v_lshlrev_b32 {v(dt)}, 16, {v(dt)}")
    a2, b2 = 62, 63
    e(f"v_mul_f32 {v(a2)}, -{v(are)}, {v(dt)}"); e(f"v_mul_f32 {v(b2)}, {v(PRM+1)}, {v(dt)}")
    e(f"v_mul_f32 {v(a2)}, {s(sLOG2E)}, {v(a2)}"); e(f"v_mul_f32 {v(b2)}, 0.15915494, {v(b2)}")
    pw_multi([(W1, 1, 64), (W4, 4, 66), (W16, 16, 68), (W64, 64, 70), (W512, 512, 72)], a2, b2)
    e(f"v_add_f32 {v(dt)}, {v(dt)}, {v(dt)}")
    e(f"v_mul_f32 {v(CH['X1'])}, {v(PRM+2)}, {v(dt)}"); e(f"v_mul_f32 {v(CH['X1']+1)}, {v(PRM+3)}, {v(dt)}")
    for l in cmul(CH['X2'], CH['X1'], W512, 64): e(l)
    e(f"v_mov_b32 {v(CH['Y1'])}, 1.0"); e(f"v_mov_b32 {v(CH['Y1']+1)}, 0"); e(f"v_mov_b32 {v(CH['Y2'])}, 1.0"); e(f"v_mov_b32 {v(CH['Y2']+1)}, 0")
    e(f"v_lshrrev_b32 v96, 7, v0"); e(f"v_mul_u32_u24 v96, {TABC}, v96")
    e(f"v_and_b32 v97, 127, v0"); e(f"v_mul_u32_u24 v97, {TKP}, v97"); e("v_add_u32 v96, v96, v97")

def kgen_round(chains, rnd, side=None):
    Wof = {"X1": W16, "X2": W64, "Y1": W1, "Y2": W4}
    mbase = {"X1": 0, "X2": 32, "Y1": 64, "Y2": 80}
    tmp = {"X1": 64, "X2": 66, "Y1": 68, "Y2": 70}
    nval = {c: 8 for c in chains}
    if rnd == 3 and "X2" in chains: nval["X2"] = 1
    for i in range(1, 8):
        ls = [cmul(CH[c] + 2*i, CH[c] + 2*(i-1), Wof[c], tmp[c]) for c in chains if i < nval[c]]
        for k in range(2):
            for l in ls: e(l[k])
        if side and i in (1, 3, 5, 7) and len(side): e(side.pop(0))
    P = {c: 72 + 8*k for k, c in enumerate(chains)}
    for c in chains:
        neg = "-" if c[0] == "X" else ""
        for k in range(4):
            i0, i1 = (2*k, 2*k+1) if nval[c] == 8 else (0, 0)
            e(f"v_cvt_pk_bf16_f32 {v(P[c]+k)}, {v(CH[c]+2*i0)}, {v(CH[c]+2*i1)}")
            e(f"v_cvt_pk_bf16_f32 {v(P[c]+4+k)}, {neg}{v(CH[c]+2*i0+1)}, {neg}{v(CH[c]+2*i1+1)}")
        off = (mbase[c] + 8*rnd) * 2
        e(f"ds_write_b128 v96, {v(P[c],4)} offset:{off}")
        e(f"ds_write_b128 v96, {v(P[c]+4,4)} offset:{off + 128*TKP}")
    ls = [cmul(CH[c], CH[c] + 14, Wof[c], tmp[c]) for c in chains if nval[c] == 8 and not ((c[0] == "Y" and rnd == 1) or rnd == 3)]
    for k in range(2):
        for l in ls: e(l[k])

def kgen_mm(gl, fs):
    e("s_waitcnt lgkmcnt(0)"); e("s_barrier")
    e(f"s_lshr_b32 {s(sT)}, {s(sWAVE)}, 1"); e(f"s_and_b32 {s(sT+1)}, {s(sWAVE)}, 1")
    e(f"s_mul_i32 {s(sT+2)}, {s(sT)}, {TABC}")
    e(f"s_lshl_b32 {s(sT+3)}, {s(sT+1)}, 5"); e(f"s_add_u32 {s(sT+3)}, {s(sT+3)}, 128"); e(f"s_add_u32 {s(sT+3)}, {s(sT+3)}, {s(sT+2)}")
    e(f"s_lshl_b32 {s(sT+4)}, {s(sT+1)}, 6"); e(f"s_add_u32 {s(sT+4)}, {s(sT+4)}, {s(sT+2)}")
    e("v_lshrrev_b32 v10, 2, v1"); e(f"v_mul_u32_u24 v10, {TKP}, v10"); e("v_and_b32 v11, 3, v1"); e("v_lshl_add_u32 v10, v11, 3, v10")
    e(f"v_add_u32 v11, {s(sT+3)}, v10"); e(f"v_add_u32 v12, {s(sT+4)}, v10")
    YF, XF = 64, 96
    for ks in range(8):
        o = ks * 32 * TKP
        e(f"ds_read_b64_tr_b16 {v(YF+4*ks,2)}, v11 offset:{o}"); e(f"ds_read_b64_tr_b16 {v(YF+4*ks+2,2)}, v11 offset:{o + 16*TKP}")
        for tl in range(2):
            e(f"ds_read_b64_tr_b16 {v(XF+32*tl+4*ks,2)}, v12 offset:{o + 32*tl}"); e(f"ds_read_b64_tr_b16 {v(XF+32*tl+4*ks+2,2)}, v12 offset:{o + 16*TKP + 32*tl}")
    e("v_lshrrev_b32 v13, 7, v0")
    e(f"v_mul_u32_u24 v14, {CTP}, v13"); e(f"v_add_u32 v14, {CT}, v14")
    e(f"v_mul_u32_u24 v15, {KCH}, v13"); e("v_and_b32 v13, 127, v0"); e("v_lshl_add_u32 v15, v13, 4, v15")
    fs()
    for ks in range(8):
        e(f"s_waitcnt lgkmcnt({min(15, 6*(7-ks))})")
        for tl in range(2):
            c_ = "0" if ks == 0 else v(160 + 4*tl, 4)
            e(f"v_mfma_f32_16x16x32_bf16 {v(160+4*tl,4)}, {v(YF+4*ks,4)}, {v(XF+32*tl+4*ks,4)}, {c_}")
    e(f"s_mul_i32 {s(sT+2)}, {s(sT)}, {CTP}"); e(f"s_lshl_b32 {s(sT+3)}, {s(sT+1)}, 10"); e(f"s_add_u32 {s(sT+2)}, {s(sT+2)}, {s(sT+3)}")
    e(f"s_add_u32 {s(sT+2)}, {s(sT+2)}, {CT}")
    e("v_and_b32 v10, 15, v1"); e("v_lshlrev_b32 v10, 5, v10"); e("v_lshrrev_b32 v11, 4, v1"); e("v_lshl_add_u32 v10, v11, 3, v10")
    e(f"v_add_u32 v10, {s(sT+2)}, v10")
    e(f"s_mul_i32 {s(sT+2)}, {s(sT)}, {CTP}"); e(f"s_add_u32 {s(sT+2)}, {s(sT+2)}, {CT + 2048}")
    e(f"v_mov_b32 v11, {s(sT+2)}"); e("v_mov_b32 v12, 0")
    e("ds_write_b32 v11, v12")
    fs()
    G = [96, 112]
    for task in range(2):
        I = IDX + 8 * task
        for k in range(8):
            e(f"v_add_u32_sdwa {v(G[task]+2*k)}, v14, {v(I+k)} dst_sel:DWORD dst_unused:UNUSED_PAD src0_sel:DWORD src1_sel:WORD_0")
            e(f"v_add_u32_sdwa {v(G[task]+2*k+1)}, v14, {v(I+k)} dst_sel:DWORD dst_unused:UNUSED_PAD src0_sel:DWORD src1_sel:WORD_1")
    for tl in range(2):
        e(f"v_cvt_pk_bf16_f32 {v(168+2*tl)}, {v(160+4*tl)}, {v(161+4*tl)}")
        e(f"v_cvt_pk_bf16_f32 {v(169+2*tl)}, {v(162+4*tl)}, {v(163+4*tl)}")
        e(f"ds_write_b64 v10, {v(168+2*tl,2)} offset:{512*tl}")
    e("s_waitcnt lgkmcnt(0)"); e("s_barrier")
    stamp("k_mm")
    s1_issue()
    for task in range(2):
        for k in range(16): e(f"ds_read_u16 {v(G[task]+k)}, {v(G[task]+k)}")
    for task in range(2):
        if task == 1:
            s1_validate()
            x0t_issue()
        Dd, Dp, Sd, Sp = [(64, 72, 80, 88), (128, 136, 144, 152)][task]
        e(f"s_waitcnt lgkmcnt({15 if task == 0 else 8})")
        (e(gl.pop(0)) if gl else None)
        for k in range(8): e(f"v_lshl_or_b32 {v(Dd+k)}, {v(G[task]+2*k+1)}, 16, {v(G[task]+2*k)}")
        for k in range(1, 7): e(f"v_mov_b32 {v(Dp+k-1)}, {v(Dd+k)}")
        for k in range(7): e(f"v_alignbit_b32 {v(Sd+k)}, {v(Dd+k+1)}, {v(Dd+k)}, 16")
        for k in range(1, 7): e(f"v_alignbit_b32 {v(Sp+k-1)}, {v(Dd+k+1)}, {v(Dd+k)}, 16")
        for cp_ in range(8):
            ee = cp_ >> 1
            if cp_ % 2 == 0: src = Dd + ee if ee % 2 == 0 else Dp + ee - 1
            else: src = Sd + ee if ee % 2 == 0 else Sp + ee - 1
            e(f"ds_write_b128 v15, {v(src,4)} offset:{cp_*KCC + task*2048}")
    l0 = lab("zk")
    e(f"s_cmp_lg_u32 {s(sWAVE)}, 0"); e(f"s_cbranch_scc1 {l0}")
    e("v_lshrrev_b32 v10, 2, v1"); e(f"v_mul_u32_u24 v10, {KCC}, v10")
    e("v_and_b32 v11, 3, v1"); e("v_lshl_add_u32 v10, v11, 4, v10"); e("v_add_u32 v10, 4096, v10")
    e("v_mov_b32 v160, 0"); e("v_mov_b32 v161, 0"); e("v_mov_b32 v162, 0"); e("v_mov_b32 v163, 0")
    e("ds_write_b128 v10, v[160:163]")
    A.label(l0)

def s1_issue():
    e("v_lshlrev_b32 v63, 4, v0")
    for i in range(4):
        e(f"s_movk_i32 {s(sT)}, {S1 + 4096*i}")
        e(f"buffer_load_dwordx4 {v(24+4*i,4)}, v63, {s(sSRD,4)}, {s(sT)} offen sc1")
def s1_validate():
    lr = lab("s1r"); lg = lab("s1k"); l0 = lab("s1c")
    e("s_waitcnt vmcnt(0)")
    e(f"s_branch {l0}")
    A.label(lr)
    s1_issue()
    e("s_waitcnt vmcnt(0)")
    A.label(l0)
    for i in range(8): e(f"v_xor_b32 {v(160+i)}, {s(sNON)}, {v(24+2*i+1)}")
    e("v_or3_b32 v160, v160, v161, v162"); e("v_or3_b32 v163, v163, v164, v165"); e("v_or3_b32 v160, v160, v166, v167"); e("v_or_b32 v160, v160, v163")
    e("v_cmp_ne_u32 vcc, 0, v160")
    spin_check(lr, lg, bk=1)
def x0t_issue():
    e(f"v_mul_u32_u24 v10, {X0P}, v0"); e(f"s_lshl_b32 {s(sT)}, {s(sCP)}, 5"); e(f"s_add_u32 {s(sT)}, {s(sT)}, {X0T}")
    e(f"buffer_load_dwordx4 v[40:43], v10, {s(sSRD,4)}, {s(sT)} offen sc1")
    e(f"buffer_load_dwordx4 v[44:47], v10, {s(sSRD,4)}, {s(sT)} offen offset:16 sc1")
def b1_issue():
    e("v_and_b32 v20, 15, v0"); e("v_lshlrev_b32 v20, 4, v20")
    e(f"global_load_dword v21, v20, {s(sDBG,2)} sc1")
def b1_check():
    lr = lab("b1r"); lg = lab("b1k"); l0 = lab("b1c")
    e("s_waitcnt vmcnt(0)")
    e(f"s_branch {l0}")
    A.label(lr)
    e(f"global_load_dword v21, v20, {s(sDBG,2)} sc1")
    e("s_waitcnt vmcnt(0)")
    A.label(l0)
    e("v_cmp_gt_u32 vcc, 16, v21")
    spin_check(lr, lg, bk=1)

def gw_loads():
    out = []
    for f in range(48):
        out.append([f"buffer_load_dwordx4 {a(4*f,4)}, v18, {s(sSRD,4)}, {s(sW)} offen offset:{(f%4)*1024} sc1"] + ([f"s_add_u32 {s(sW)}, {s(sW)}, 4096"] if f % 4 == 3 else []))
    return out
def ow_loads():
    out = []
    for f in range(32):
        dst = a(192 + 4*f, 4) if f < 16 else v(192 + 4*(f-16), 4)
        out.append([f"buffer_load_dwordx4 {dst}, v18, {s(sSRD,4)}, {s(sW)} offen offset:{(f%4)*1024} sc1"] + ([f"s_add_u32 {s(sW)}, {s(sW)}, 4096"] if f % 4 == 3 else []))
    return out

vA, vB, vEP, vEU, vEX, vRW, vRR = 164, 165, 166, 167, 168, 169, 170
def conv_setup(layer):
    e(f"s_lshr_b32 s4, {s(sWAVE)}, 1"); e(f"s_and_b32 s5, {s(sWAVE)}, 1")
    e("v_and_b32 v10, 7, v1"); e("v_sub_u32 v10, 7, v10"); e(f"v_mul_u32_u24 v12, {KCC}, v10")
    e("v_bfe_u32 v10, v1, 5, 1"); e("v_lshlrev_b32 v13, 5, v10"); e("v_sub_u32 v12, v12, v13")
    e("v_bfe_u32 v11, v1, 4, 1"); e("v_lshl_add_u32 v12, v11, 4, v12")
    e("v_bfe_u32 v10, v1, 3, 1"); e("v_lshlrev_b32 v10, 4, v10"); e("v_sub_u32 v12, v12, v10")
    e(f"s_mul_i32 {s(sT+2)}, s4, {KCH}"); e(f"s_lshl_b32 {s(sT+3)}, s5, 8"); e(f"s_sub_u32 {s(sT+2)}, {s(sT+2)}, {s(sT+3)}")
    e(f"s_add_u32 {s(sT+2)}, {s(sT+2)}, {KC + 4080 - 3776}")
    e("v_and_b32 v10, 15, v1"); e("v_lshlrev_b32 v14, 5, v10"); e("v_sub_u32 v14, v14, v13"); e("v_lshl_add_u32 v14, v11, 4, v14")
    e(f"s_mul_i32 {s(sT+4)}, s4, {UP}"); e(f"s_sub_u32 {s(sT+4)}, {s(sT+4)}, {s(sT+3)}")
    e(f"s_add_u32 {s(sT+4)}, {s(sT+4)}, {U0 + 512 - 192}")
    e(f"v_add_u32 v16, {s(sT+2)}, v12"); e(f"v_add_u32 v17, {s(sT+4)}, v14")
    e("v_and_b32 v56, 15, v1"); e("v_lshlrev_b32 v56, 5, v56"); e("v_lshrrev_b32 v13, 4, v1"); e("v_lshl_add_u32 v56, v13, 3, v56")
    e(f"s_lshl_b32 {s(sT+2)}, s5, 11"); e(f"v_add_u32 v56, {s(sT+2)}, v56")
    e(f"s_mul_i32 {s(sT+3)}, s4, {UP}"); e(f"s_add_u32 {s(sT+3)}, {s(sT+3)}, {U0+512}"); e(f"v_add_u32 v57, {s(sT+3)}, v56")
    e(f"s_lshl_b32 {s(sT+3)}, s4, 12"); e(f"s_add_u32 {s(sT+3)}, {s(sT+3)}, {X0}"); e(f"v_add_u32 v58, {s(sT+3)}, v56")
    e(f"s_lshl_b32 {s(sT+2)}, {s(sWAVE)}, 12"); e(f"s_add_u32 {s(sT+2)}, {s(sT+2)}, {RED}"); e(f"v_lshl_add_u32 v59, v1, 4, {s(sT+2)}")
    e(f"s_xor_b32 {s(sT+2)}, {s(sWAVE)}, 1"); e(f"s_lshl_b32 {s(sT+2)}, {s(sT+2)}, 12"); e(f"s_add_u32 {s(sT+2)}, {s(sT+2)}, {RED}")
    e(f"v_lshl_add_u32 v60, v1, 4, {s(sT+2)}")
    xo = XT1 if layer == 1 else XT3
    e(f"s_lshl_b32 s6, {s(sCP)}, 1"); e("s_add_u32 s6, s6, s4"); e(f"s_mul_i32 s6, s6, {PITCH}"); e(f"s_add_u32 s6, s6, {xo}")
    e("v_lshlrev_b32 v10, 4, v0"); e(f"v_add_u32 v61, {U0 + 512}, v10"); e(f"v_add_u32 v62, {X0}, v10")
    e("v_lshlrev_b32 v63, 4, v0")
    l0 = lab("zp")
    e(f"s_cmp_lg_u32 {s(sWAVE)}, 1"); e(f"s_cbranch_scc1 {l0}")
    e("v_lshrrev_b32 v11, 5, v1"); e(f"v_mul_u32_u24 v11, {UP}, v11"); e("v_and_b32 v12, 31, v1"); e("v_lshl_add_u32 v11, v12, 4, v11")
    e(f"v_add_u32 v11, {U0}, v11")
    e("v_mov_b32 v12, 0"); e("v_mov_b32 v13, 0"); e("v_mov_b32 v14, 0"); e("v_mov_b32 v15, 0")
    e("ds_write_b128 v11, v[12:15]")
    A.label(l0)
    XX = 40; F = 64
    if layer == 1:
        e("v_lshlrev_b32 v18, 4, v1")
        e(f"s_lshl_b32 {s(sW)}, {s(sJ)}, 2"); e(f"s_add_u32 {s(sW)}, {s(sW)}, {s(sWAVE)}")
        e(f"s_mul_i32 {s(sW)}, {s(sW)}, 49152"); e(f"s_add_u32 {s(sW)}, {s(sW)}, {WFG}")
    else:
        e(f"s_lshl_b32 s7, {s(sCP)}, 7"); e(f"s_add_u32 s7, s7, {X2T}")
        e("v_lshrrev_b32 v19, 2, v0"); e(f"v_mul_u32_u24 v19, {ROP}, v19"); e("v_and_b32 v10, 3, v0"); e("v_lshl_add_u32 v19, v10, 4, v19")

def conv(layer):
    XX = 40; SB = 24; F = 64; UU = 48
    if layer == 2:
        e(f"s_mov_b32 {s(sT)}, {S3}")
        e("v_lshlrev_b32 v10, 4, v0")
        e(f"buffer_load_dwordx4 {v(XX,4)}, v19, {s(sSRD,4)}, s7 offen sc1")
        e(f"buffer_load_dwordx4 {v(XX+4,4)}, v19, {s(sSRD,4)}, s7 offen offset:64 sc1")
        for i in range(4):
            e(f"s_add_u32 {s(sT+2)}, {s(sT)}, {4096*i}")
            e(f"buffer_load_dwordx4 {v(SB+4*i,4)}, v10, {s(sSRD,4)}, {s(sT+2)} offen sc1")
        e("s_waitcnt vmcnt(4)")
        for i in range(8):
            j, hi = i >> 1, i & 1
            for c in range(2):
                if hi: e(f"v_and_b32 {v(F+2*i+c)}, {s(sHI)}, {v(XX+4*c+j)}")
                else: e(f"v_lshlrev_b32 {v(F+2*i+c)}, 16, {v(XX+4*c+j)}")
        e(f"ds_write_b128 v62, {v(XX,4)}"); e(f"ds_write_b128 v62, {v(XX+4,4)} offset:4096")
        e("s_waitcnt vmcnt(0)")
    else:
        b1_issue()
        for i in range(8):
            e(f"v_and_b32 {v(SB+2*i+1)}, {s(sHI)}, {v(SB+2*i)}"); e(f"v_lshlrev_b32 {v(SB+2*i)}, 16, {v(SB+2*i)}")
        for i in range(8): e(f"v_rcp_f32 {v(SB+2*i+1)}, {v(SB+2*i+1)}")
        e("s_waitcnt vmcnt(1)")
        for i in range(8):
            j, hi = i >> 1, i & 1
            for c in range(2):
                if hi: e(f"v_and_b32 {v(F+2*i+c)}, {s(sHI)}, {v(XX+4*c+j)}")
                else: e(f"v_lshlrev_b32 {v(F+2*i+c)}, 16, {v(XX+4*c+j)}")
        e(f"ds_write_b128 v62, {v(XX,4)}"); e(f"ds_write_b128 v62, {v(XX+4,4)} offset:4096")
    stamp(f"c{layer}_ld")
    if layer == 2:
        T = 80
        for k in range(4):
            b = SB + 4*k; t = T + 4*k
            e(f"v_pk_mul_f32 {v(b,2)}, {v(b,2)}, {s(sINV512,2)}"); e(f"v_pk_mul_f32 {v(b+2,2)}, {v(b+2,2)}, {s(sINV512,2)}")
        for k in range(4):
            b = SB + 4*k
            e(f"v_fma_f32 {v(b+1)}, -{v(b)}, {v(b)}, {v(b+1)}"); e(f"v_fma_f32 {v(b+3)}, -{v(b+2)}, {v(b+2)}, {v(b+3)}")
        for k in range(4):
            b = SB + 4*k
            e(f"v_max_f32 {v(b+1)}, 0, {v(b+1)}"); e(f"v_max_f32 {v(b+3)}, 0, {v(b+3)}")
        for i in range(8):
            b = SB + 2*i
            e(f"v_cvt_pk_bf16_f32 {v(T+i)}, {v(b)}, {v(b+1)}")
        for i in range(8):
            b = SB + 2*i
            e(f"v_lshlrev_b32 {v(b)}, 16, {v(T+i)}"); e(f"v_and_b32 {v(b+1)}, {s(sHI)}, {v(T+i)}")
        for i in range(8): e(f"v_add_f32 {v(SB+2*i+1)}, 0x3727c5ac, {v(SB+2*i+1)}")
        for k in range(4): e(f"v_cvt_pk_bf16_f32 {v(T+k)}, {v(SB+4*k+1)}, {v(SB+4*k+3)}")
        for k in range(4):
            e(f"v_lshlrev_b32 {v(SB+4*k+1)}, 16, {v(T+k)}"); e(f"v_and_b32 {v(SB+4*k+3)}, {s(sHI)}, {v(T+k)}")
        for i in range(8): e(f"v_sqrt_f32 {v(SB+2*i+1)}, {v(SB+2*i+1)}")
        for k in range(4): e(f"v_cvt_pk_bf16_f32 {v(T+k)}, {v(SB+4*k+1)}, {v(SB+4*k+3)}")
        for k in range(4):
            e(f"v_lshlrev_b32 {v(SB+4*k+1)}, 16, {v(T+k)}"); e(f"v_and_b32 {v(SB+4*k+3)}, {s(sHI)}, {v(T+k)}")
        for i in range(8): e(f"v_rcp_f32 {v(SB+2*i+1)}, {v(SB+2*i+1)}")
    for i in range(8):
        e(f"v_pk_add_f32 {v(F+2*i,2)}, {v(F+2*i,2)}, {v(SB+2*i,2)} op_sel_hi:[1,0] neg_lo:[0,1] neg_hi:[0,1]")
    for i in range(8): e(f"v_cvt_pk_bf16_f32 {v(80+i)}, {v(F+2*i)}, {v(F+2*i+1)}")
    for i in range(8):
        e(f"v_lshlrev_b32 {v(F+2*i)}, 16, {v(80+i)}"); e(f"v_and_b32 {v(F+2*i+1)}, {s(sHI)}, {v(80+i)}")
    for i in range(8):
        e(f"v_pk_mul_f32 {v(F+2*i,2)}, {v(F+2*i,2)}, {v(SB+2*i,2)} op_sel:[0,1] op_sel_hi:[1,1]")
    for c in range(2):
        for j in range(4): e(f"v_cvt_pk_bf16_f32 {v(UU+4*c+j)}, {v(F+4*j+c)}, {v(F+4*j+2+c)}")
        e(f"ds_write_b128 v61, {v(UU+4*c,4)} offset:{UP*c}")
    trick = gw_loads() if layer == 1 else []
    e("s_waitcnt lgkmcnt(0)"); e("s_barrier")
    if layer == 1: b1_check()
    stamp(f"c{layer}_pro")
    vA, vB = 16, 17
    ACC = 24; SET = [64, 128]
    def loads(tp, st):
        out = []
        for q in range(8): out.append(f"ds_read_b128 {v(SET[st]+4*q,4)}, {v(vA)} offset:{64*(3 - tp) + 512*(7 - q)}")
        for tau in range(8): out.append(f"ds_read_b128 {v(SET[st]+32+4*tau,4)}, {v(vB)} offset:{512*tau + 64*(3 - tp)}")
        order = [8, 0, 9, 1, 10, 2, 11, 3, 12, 4, 13, 5, 14, 6, 15, 7]
        return [out[i] for i in order]
    for l in loads(0, 0): e(l)
    ti = 0; nm = 0
    TRK = int(OPTS.get("trk", 4))
    e(f"s_mov_b32 {s(sT+4)}, {s(sDSKV)}"); e(f"s_mov_b32 {s(sT+5)}, {s(sDSKV)}")
    side = []
    for k in range(4):
        side.append(f"ds_read_b64 {v(64+2*k,2)}, v57 offset:{512*k}"); side.append(f"ds_read_b64 {v(72+2*k,2)}, v58 offset:{512*k}")
    side2 = ["s_waitcnt lgkmcnt(0)"]
    for k in range(4):
        for j in range(2):
            side2 += [f"v_lshlrev_b32 {v(96+4*k+2*j)}, 16, {v(64+2*k+j)}", f"v_and_b32 {v(97+4*k+2*j)}, {s(sHI)}, {v(64+2*k+j)}",
                      f"v_lshlrev_b32 {v(112+4*k+2*j)}, 16, {v(72+2*k+j)}", f"v_and_b32 {v(113+4*k+2*j)}, {s(sHI)}, {v(72+2*k+j)}"]
    for k in range(8): side2.append(f"v_pk_fma_f32 {v(96+2*k,2)}, {v(96+2*k,2)}, {s(sT+4,2)}, {v(112+2*k,2)}")
    fills = fill_groups(2, 61, 62) if layer == 2 else []
    hold = [0]
    for tp in range(4):
        st = tp & 1
        nxt = loads(tp + 1, st ^ 1) if tp < 3 else []
        n = 0; nb = 0
        for T in range(8):
            if tp == 0: e(f"s_waitcnt lgkmcnt({min(15, 16 - (2*T+2) + min(n, len(nxt)))})")
            elif T == 0: e("s_waitcnt lgkmcnt(0)")
            for q in range(T + 1):
                c_ = "0" if (tp == 0 and q == 0) else v(ACC+4*T, 4)
                e(f"v_mfma_f32_16x16x32_bf16 {v(ACC+4*T,4)}, {v(SET[st]+4*q,4)}, {v(SET[st]+32+4*(T-q),4)}, {c_}")
                nm += 1; nb += 1
                if not (tp == 0 and T < 3) and n < len(nxt):
                    e(nxt[n]); n += 1
                if tp == 3:
                    if nb <= 8: e(side.pop(0))
                    elif nb > 12:
                        for _ in range(2):
                            if side2: e(side2.pop(0))
                if ti < len(trick) and nm % TRK == 0:
                    for l in trick[ti]: e(l)
                    ti += 1
                elif fills and tp < 3 and nb > 4:
                    if hold[0] > 0: hold[0] -= 1
                    else:
                        g = fills.pop(0); emit_group(g)
                        if any("buffer_store" in l for l in g): hold[0] = 12
        while n < len(nxt): e(nxt[n]); n += 1
    assert not fills
    while side2: e(side2.pop(0))
    stamp(f"c{layer}_mm")
    lp1 = lab("p1"); lj = lab("pj")
    e("s_cmp_eq_u32 s5, 1"); e(f"s_cbranch_scc1 {lp1}")
    e("s_nop 3")
    for k in range(4): e(f"ds_write_b128 v59, {v(ACC+16+4*k,4)} offset:{1024*k}")
    e(f"s_branch {lj}")
    A.label(lp1)
    for k in range(4): e(f"ds_write_b128 v59, {v(ACC+4*k,4)} offset:{1024*k}")
    e("s_nop 3")
    for k in range(8): e(f"v_mov_b64 {v(ACC+2*k,2)}, {v(ACC+16+2*k,2)}")
    A.label(lj)
    for k in range(8):
        e(f"v_pk_add_f32 {v(96+2*k,2)}, {v(96+2*k,2)}, {v(ACC+2*k,2)}")
    e("s_waitcnt lgkmcnt(0)"); e("s_barrier")
    for k in range(4): e(f"ds_read_b128 {v(80+4*k,4)}, v60 offset:{1024*k}")
    for k in range(4):
        e(f"s_waitcnt lgkmcnt({3-k})")
        e(f"v_pk_add_f32 {v(96+4*k,2)}, {v(96+4*k,2)}, {v(80+4*k,2)}"); e(f"v_pk_add_f32 {v(98+4*k,2)}, {v(98+4*k,2)}, {v(82+4*k,2)}")
        e(f"v_cvt_pk_bf16_f32 {v(64+2*k)}, {v(96+4*k)}, {v(97+4*k)}"); e(f"v_cvt_pk_bf16_f32 {v(65+2*k)}, {v(98+4*k)}, {v(99+4*k)}")
        e(f"buffer_store_dwordx2 {v(64+2*k,2)}, v56, {s(sSRD,4)}, s6 offen offset:{512*k} sc1")
    return trick[ti:]

NCSK, NCSV, NCSQ = 2, 4, 6
XRES = 184
def ones_regs(r):
    for i in range(4): e(f"v_mov_b32 {v(r+i)}, 0x3f803f80")
def colsums():
    ON = 152
    for ks in range(16):
        c0 = lambda r: "0" if ks == 0 else v(r, 4)
        e(f"v_mfma_f32_16x16x32_bf16 v[28:31], {v(ON,4)}, {a((0*16+ks)*4,4)}, {c0(28)}")
        e(f"v_mfma_f32_16x16x32_bf16 v[32:35], {v(ON,4)}, {a((1*16+ks)*4,4)}, {c0(32)}")
        e(f"v_mfma_f32_16x16x32_bf16 v[36:39], {a((2*16+ks)*4,4)}, {v(ON,4)}, {c0(36)}")
    e(f"v_sub_f32 {v(NCSK)}, 0, v28"); e(f"v_sub_f32 {v(NCSK+1)}, 0, v28")
    e(f"v_sub_f32 {v(NCSV)}, 0, v32"); e(f"v_sub_f32 {v(NCSV+1)}, 0, v32")
    for i in range(4): e(f"v_sub_f32 {v(NCSQ+i)}, 0, {v(36+i)}")

TA = 12
gXE, gXO, gSW, gS4, gQA, gPQ, gKV = 156, 157, 158, 160, 164, 168, 169
def g_setup(layer):
    xt = XT1 if layer == 1 else XT3
    e("v_lshrrev_b32 v10, 3, v1"); e(f"v_mul_u32_u24 v10, {PITCH}, v10")
    e("v_bfe_u32 v11, v1, 4, 2"); e("v_lshlrev_b32 v11, 1, v11"); e("v_and_b32 v16, 7, v1"); e("v_xor_b32 v11, v11, v16")
    e("v_lshl_add_u32 v10, v11, 4, v10")
    e(f"s_lshl_b32 {s(sT)}, {s(sRS)}, 7"); e(f"v_add_u32 v19, {s(sT)}, v10")
    e(f"s_mul_i32 s4, {s(sWAVE)}, {32*PITCH}"); e(f"s_add_u32 s4, s4, {xt}")
    e(f"s_lshl_b32 s5, {s(sWAVE)}, 12"); e(f"s_add_u32 s5, s5, {AT}")
    e("v_lshrrev_b32 v10, 2, v1"); e("v_lshlrev_b32 v10, 7, v10"); e("v_and_b32 v11, 3, v1"); e("v_lshl_add_u32 v10, v11, 3, v10")
    e(f"v_add_u32 v10, {AT}, v10"); e("v_bfe_u32 v11, v1, 3, 2")
    for j in range(4):
        e(f"s_add_u32 {s(sT)}, {s(sWAVE)}, {j}"); e(f"s_and_b32 {s(sT)}, {s(sT)}, 3"); e(f"s_lshl_b32 {s(sM+j)}, {s(sT)}, 6")
        e(f"v_xor_b32 v16, {s(sT)}, v11"); e(f"v_lshl_add_u32 {v(TA+j)}, v16, 5, v10")
    ones_regs(152)
    e("v_lshrrev_b32 v11, 5, v1"); e("v_lshlrev_b32 v11, 4, v11"); e("v_bfe_u32 v16, v1, 2, 2"); e("v_add_u32 v11, v11, v16")
    e(f"s_lshl_b32 {s(sT)}, {s(sJO)}, 7"); e(f"s_lshl_b32 {s(sT+1)}, {s(sWAVE)}, 5"); e(f"s_add_u32 {s(sT)}, {s(sT)}, {s(sT+1)}")
    e(f"v_add_u32 v11, {s(sT)}, v11"); e("v_lshlrev_b32 v11, 7, v11")
    e("v_and_b32 v16, 3, v1"); e("v_lshl_add_u32 v11, v16, 3, v11"); e(f"v_add_u32 v11, {AT}, v11")
    e(f"s_and_b32 {s(sT)}, {s(sJ)}, 1"); e(f"s_lshl_b32 {s(sT)}, {s(sT)}, 1")
    e("v_bfe_u32 v16, v1, 4, 1"); e(f"v_add_u32 v16, {s(sT)}, v16"); e("v_bfe_u32 v17, v1, 3, 1"); e("v_xor_b32 v16, v16, v17")
    e(f"v_lshl_add_u32 {v(gXE)}, v16, 5, v11"); e("v_xor_b32 v16, 2, v16"); e(f"v_lshl_add_u32 {v(gXO)}, v16, 5, v11")
    e("v_and_b32 v10, 15, v1"); e("v_lshlrev_b32 v10, 2, v10"); e(f"v_add_u32 v11, {ST}, v10")
    e(f"s_lshl_b32 {s(sT)}, {s(sWAVE)}, 6"); e(f"v_add_u32 {v(gSW)}, {s(sT)}, v11")
    e("v_lshrrev_b32 v10, 4, v1"); e("v_lshlrev_b32 v10, 4, v10"); e(f"v_add_u32 v10, {ST}, v10")
    for j in range(4):
        e(f"v_add_u32 {v(gS4+j)}, {s(sM+j)}, v10"); e(f"v_add_u32 {v(gQA+j)}, {s(sM+j)}, v11")
    e("v_and_b32 v10, 15, v1"); e("v_lshlrev_b32 v10, 5, v10"); e("v_lshrrev_b32 v11, 4, v1"); e(f"v_lshl_add_u32 {v(gPQ)}, v11, 3, v10")
    e(f"v_lshlrev_b32 {v(gKV)}, 2, v1")
    kvp_addr(KVP1 if layer == 1 else KVP2, 6)
    pq_addr(PQ1 if layer == 1 else PQ2, 7)
    e(f"s_lshl_b32 {s(sT)}, {s(sJ)}, 5"); e(f"s_mul_i32 {s(sT)}, {s(sT)}, {KVW}")
    e(f"s_lshr_b32 {s(sT+1)}, {s(sRS)}, 3"); e(f"s_mul_i32 {s(sT+1)}, {s(sT+1)}, {KVH}"); e(f"s_add_u32 {s(sT)}, {s(sT)}, {s(sT+1)}")
    e(f"s_add_u32 s3, {s(sT)}, {KVP1 if layer == 1 else KVP2}")
    e(f"s_and_b32 {s(sT+2)}, {s(sRS)}, 7"); e(f"s_lshl_b32 {s(sT+3)}, {s(sT+2)}, 7")
    e("v_lshrrev_b32 v10, 3, v1"); e(f"v_mul_u32_u24 v10, {KVW}, v10"); e("v_and_b32 v11, 7, v1"); e("v_lshl_add_u32 v11, v11, 4, v10")
    e(f"v_add_u32 v170, {s(sT+3)}, v11")
    e("v_and_b32 v11, 3, v1"); e("v_lshl_add_u32 v11, v11, 4, v10"); e("v_add_u32 v171, 1024, v11")
    e("v_and_b32 v10, 3, v1")
    e(f"v_cmp_eq_u32 {s(sM+4,2)}, 1, v10"); e(f"v_cmp_eq_u32 {s(sM+6,2)}, 2, v10"); e(f"v_cmp_eq_u32 s[2:3], 3, v10") if False else None
    if layer == 1:
        e("v_lshlrev_b32 v18, 4, v1")
        e(f"s_lshl_b32 {s(sW)}, {s(sJO)}, 2"); e(f"s_add_u32 {s(sW)}, {s(sW)}, {s(sWAVE)}")
        e(f"s_lshl_b32 {s(sW)}, {s(sW)}, 15"); e(f"s_add_u32 {s(sW)}, {s(sW)}, {WFO}")

def gphase(layer):
    kvp = KVP1 if layer == 1 else KVP2
    ff = F1 if layer == 1 else F2
    def dma(c, i):
        return [f"s_add_u32 {s(sT)}, s4, {(128*c + 8*i)*PITCH}", f"s_add_u32 m0, s5, {c*16384 + i*1024}",
                f"buffer_load_dwordx4 v19, {s(sSRD,4)}, {s(sT)} offen sc1 lds"]
    for c in range(4):
        for i in range(4):
            for l in dma(c, i): e(l)
    XF = [64, 80]
    AK, AV, AQ, GR, RS_, ON = 96, 112, 128, 144, 148, 152
    trick = ow_loads() if layer == 1 else []
    def reads(ks, base=None):
        b = XF[ks & 1] if base is None else base
        out = []
        for j in range(4):
            out.append(f"ds_read_b64_tr_b16 {v(b+4*j,2)}, {v(TA+j)} offset:{ks*4096}")
            out.append(f"ds_read_b64_tr_b16 {v(b+4*j+2,2)}, {v(TA+j)} offset:{ks*4096+2048}")
        return out
    stamp(f"g{layer}_iss")
    e("s_waitcnt vmcnt(12)"); e("s_barrier")
    stamp(f"g{layer}_ld0")
    for l in reads(0): e(l)
    st_ = {"ti": 0, "nw": 0, "nm": 0}
    TRG = int(OPTS.get("trg", 5))
    def trickle(ok):
        st_["nm"] += 1
        if ok and st_["ti"] < len(trick) and st_["nm"] % TRG == 0:
            for l in trick[st_["ti"]]: e(l)
            st_["ti"] += 1; st_["nw"] += 1
    for ks in range(16):
        nxt = []
        if ks < 15:
            if (ks + 1) % 4 == 0:
                c = (ks + 1) // 4
                e(f"s_waitcnt vmcnt({min(63, 4*(3-c) + st_['nw'])})"); e("s_barrier")
            nxt = reads(ks + 1)
        x = XF[ks & 1]
        e("s_waitcnt lgkmcnt(0)")
        z = lambda r: "0" if ks == 0 else v(r, 4)
        mf = []
        for j in range(4):
            mf.append(f"v_mfma_f32_16x16x32_bf16 {v(AK+4*j,4)}, {v(x+4*j,4)}, {a((0*16+ks)*4,4)}, {z(AK+4*j)}")
            mf.append(f"v_mfma_f32_16x16x32_bf16 {v(AV+4*j,4)}, {v(x+4*j,4)}, {a((1*16+ks)*4,4)}, {z(AV+4*j)}")
        mf.insert(1, f"v_mfma_f32_16x16x32_bf16 {v(GR,4)}, {v(x,4)}, {v(x,4)}, {z(GR)}")
        mf.insert(3, f"v_mfma_f32_16x16x32_bf16 {v(RS_,4)}, {v(ON,4)}, {v(x,4)}, {z(RS_)}")
        for m_i, m_ in enumerate(mf):
            e(m_)
            if m_i < len(nxt): e(nxt[m_i])
            trickle(ks >= 4)
    stamp(f"g{layer}_mm")
    for jj in range(4):
        e(f"ds_read_b64_tr_b16 {v(XRES+2*jj,2)}, {v(gXE + (jj & 1))} offset:{512*jj}")
    e("v_and_b32 v10, 3, v1")
    e(f"v_cmp_eq_u32 {s(sM+4,2)}, 1, v10"); e(f"v_cmp_eq_u32 {s(sM+6,2)}, 2, v10"); e("v_cmp_eq_u32 vcc, 3, v10")
    e(f"v_cndmask_b32 v11, {v(GR)}, {v(GR+1)}, {s(sM+4,2)}")
    e(f"v_cndmask_b32 v11, v11, {v(GR+2)}, {s(sM+6,2)}")
    e(f"v_cndmask_b32 v11, v11, {v(GR+3)}, vcc")
    stats_final(RS_, 11, 16, 17, 20)
    e("v_mul_f32 v16, v16, v17")
    e(f"s_mov_b32 {s(sT+2)}, 0x00f0000f"); e(f"s_mov_b32 {s(sT+3)}, 0xf0000f00")
    e(f"s_mov_b64 exec, {s(sT+2,2)}")
    e(f"ds_write_b32 {v(gSW)}, v17"); e(f"ds_write_b32 {v(gSW)}, v16 offset:256")
    e("s_mov_b64 exec, -1")
    R4, M4, RQ, MQ = 24, 40, 56, 176
    e("s_waitcnt lgkmcnt(0)"); e("s_barrier")
    for j in range(4):
        e(f"ds_read_b128 {v(R4+4*j,4)}, {v(gS4+j)}"); e(f"ds_read_b128 {v(M4+4*j,4)}, {v(gS4+j)} offset:256")
    for j in range(4):
        e(f"ds_read_b32 {v(RQ+2*j)}, {v(gQA+j)}"); e(f"ds_read_b32 {v(MQ+2*j)}, {v(gQA+j)} offset:256")
    stamp(f"g{layer}_st")
    PK, VV = 72, 80
    def phi2(items):
        for (rp, acc, mp, ncs, dst, T, bro) in items:
            e(f"v_pk_fma_f32 {v(T,2)}, {v(mp,2)}, {v(ncs,2)}, {s(sEPS6,2)}" + (" op_sel_hi:[0,1,1]" if bro else ""))
        for (rp, acc, mp, ncs, dst, T, bro) in items:
            e(f"v_pk_fma_f32 {v(T,2)}, {v(rp,2)}, {v(acc,2)}, {v(T,2)}" + (" op_sel_hi:[0,1,1]" if bro else ""))
        for (rp, acc, mp, ncs, dst, T, bro) in items: e(f"v_pk_mul_f32 {v(T+2,2)}, {v(T,2)}, {s(sLOG2E,2)}")
        for (rp, acc, mp, ncs, dst, T, bro) in items:
            e(f"v_exp_f32 {v(T+2)}, {v(T+2)} clamp"); e(f"v_exp_f32 {v(T+3)}, {v(T+3)} clamp")
        for (rp, acc, mp, ncs, dst, T, bro) in items:
            e(f"v_max_f32 {v(T)}, {s(sEPS6)}, {v(T)}"); e(f"v_max_f32 {v(T+1)}, {s(sEPS6)}, {v(T+1)}")
        for (rp, acc, mp, ncs, dst, T, bro) in items: e(f"v_pk_add_f32 {v(T,2)}, {v(T,2)}, {v(T+2,2)}")
        for (rp, acc, mp, ncs, dst, T, bro) in items: e(f"v_cvt_pk_bf16_f32 {v(dst)}, {v(T)}, {v(T+1)}")
    for j in range(4):
        e(f"s_waitcnt lgkmcnt({min(15, 8 + 2*(3-j))})")
        items = [(R4+4*j+2*hp, AK+4*j+2*hp, M4+4*j+2*hp, NCSK, PK+2*j+hp, 88 + 4*hp, False) for hp in range(2)]
        for hp in range(2):
            T = 104 + 2*hp if False else 172 + 2*hp
            e(f"v_pk_mul_f32 {v(T,2)}, {v(M4+4*j+2*hp,2)}, {v(NCSV,2)}")
        for hp in range(2):
            T = 172 + 2*hp
            e(f"v_pk_fma_f32 {v(T,2)}, {v(R4+4*j+2*hp,2)}, {v(AV+4*j+2*hp,2)}, {v(T,2)}")
        phi2(items)
        for hp in range(2):
            T = 172 + 2*hp
            e(f"v_cvt_pk_bf16_f32 {v(VV+2*j+hp)}, {v(T)}, {v(T+1)}")
        if j == 1:
            e(f"v_mfma_f32_16x16x32_bf16 {v(GR,4)}, {v(VV,4)}, {v(PK,4)}, 0")
            e(f"v_mfma_f32_16x16x32_bf16 {v(RS_,4)}, {v(ON,4)}, {v(PK,4)}, 0")
    e(f"v_mfma_f32_16x16x32_bf16 {v(GR,4)}, {v(VV+4,4)}, {v(PK+4,4)}, {v(GR,4)}")
    e(f"v_mfma_f32_16x16x32_bf16 {v(RS_,4)}, {v(ON,4)}, {v(PK+4,4)}, {v(RS_,4)}")
    PQR = 96
    e("s_waitcnt lgkmcnt(0)")
    for i in range(4):
        e(f"buffer_store_dword {v(GR+i)}, {v(gKV)}, {s(sSRD,4)}, s6 offen offset:{256*i} sc1")
    e("s_mov_b64 exec, 0xffff")
    e(f"buffer_store_dword {v(RS_)}, {v(gKV)}, {s(sSRD,4)}, s6 offen offset:1024 sc1")
    e("s_mov_b64 exec, -1")
    stamp(f"g{layer}_kv")
    def red_loads():
        for i in range(4):
            e(f"s_add_u32 {s(sT+4)}, s3, {8*i*KVW}")
            e(f"buffer_load_dwordx4 {v(24+4*i,4)}, v170, {s(sSRD,4)}, {s(sT+4)} offen sc1")
            e(f"buffer_load_dwordx4 {v(40+4*i,4)}, v171, {s(sSRD,4)}, {s(sT+4)} offen sc1")
    RLK = int(OPTS.get("rlk", 11))
    QS = [64, 80, 112]
    for l in reads(0, QS[0]): e(l)
    for l in reads(1, QS[1]): e(l)
    for ks in range(16):
        nxt = reads(ks + 2, QS[(ks + 2) % 3]) if ks < 14 else []
        x = QS[ks % 3]
        e(f"s_waitcnt lgkmcnt({8 if ks < 15 else 0})")
        z = lambda r: "0" if ks == 0 else v(r, 4)
        if ks == RLK:
            lsk = lab("rl")
            e(f"s_cmp_lg_u32 {s(sWAVE)}, 3"); e(f"s_cbranch_scc1 {lsk}")
            red_loads()
            A.label(lsk)
        for j in range(4):
            e(f"v_mfma_f32_16x16x32_bf16 {v(AQ+4*j,4)}, {a((2*16+ks)*4,4)}, {v(x+4*j,4)}, {z(AQ+4*j)}")
            for l in nxt[2*j:2*j+2]: e(l)
            if j % 2 == 0 and st_["ti"] < len(trick):
                for l in trick[st_["ti"]]: e(l)
                st_["ti"] += 1
    stamp(f"g{layer}_q")
    for j in range(0, 4, 2):
        phi2([(RQ+2*(j+jj), AQ+4*(j+jj)+2*hp, MQ+2*(j+jj), NCSQ+2*hp, PQR+2*(j+jj)+hp, 64 + 8*jj + 4*hp, True) for jj in range(2) for hp in range(2)])
    for j in range(4):
        e(f"s_lshl_b32 {s(sT+2)}, {s(sM+j)}, 3"); e(f"s_add_u32 {s(sT+2)}, {s(sT+2)}, s7")
        e(f"buffer_store_dwordx2 {v(PQR+2*j,2)}, {v(gPQ)}, {s(sSRD,4)}, {s(sT+2)} offen sc1")
    for ins in trick[st_["ti"]:]:
        for l in ins: e(l)
    lred = lab("red")
    e(f"s_cmp_lg_u32 {s(sWAVE)}, 3"); e(f"s_cbranch_scc1 {lred}")
    e(f"s_and_b32 {s(sT+2)}, {s(sRS)}, 7")
    lr = lab("rp"); lg = lab("rg"); l0 = lab("r0")
    e(f"s_waitcnt vmcnt({4 + len(trick[st_['ti']:])})")
    e(f"s_branch {l0}")
    A.label(lr)
    red_loads()
    e("s_waitcnt vmcnt(0)")
    A.label(l0)
    maxtree([24, 28, 32, 36, 40, 44, 48, 52], 56)
    e("v_cmp_eq_u32 vcc, -1, v56")
    spin_check(lr, lg)
    stamp(f"r{layer}_ok")
    for b in (24, 40):
        for h2 in range(2):
            e(f"v_pk_add_f32 {v(b+2*h2,2)}, {v(b+2*h2,2)}, {v(b+4+2*h2,2)}"); e(f"v_pk_add_f32 {v(b+8+2*h2,2)}, {v(b+8+2*h2,2)}, {v(b+12+2*h2,2)}")
    for b in (24, 40):
        for h2 in range(2):
            e(f"v_pk_add_f32 {v(b+2*h2,2)}, {v(b+2*h2,2)}, {v(b+8+2*h2,2)}")
    regs = [24, 25, 26, 27, 40, 41, 42, 43]
    for r in regs: e(f"v_add_f32_dpp {v(r)}, {v(r)}, {v(r)} row_ror:8 row_mask:0xf bank_mask:0xf")
    for r in regs: e(f"v_mov_b32 {v(r+4)}, {v(r)}")
    for r in regs: e(f"v_permlane16_swap_b32 {v(r)}, {v(r+4)}")
    for r in regs: e(f"v_add_f32 {v(r)}, {v(r)}, {v(r+4)}")
    for r in regs: e(f"v_mov_b32 {v(r+4)}, {v(r)}")
    for r in regs: e(f"v_permlane32_swap_b32 {v(r)}, {v(r+4)}")
    for r in regs: e(f"v_add_f32 {v(r)}, {v(r)}, {v(r+4)}")
    e("v_cvt_pk_bf16_f32 v28, v24, v25"); e("v_cvt_pk_bf16_f32 v29, v26, v27")
    e("v_cvt_pk_bf16_f32 v30, v40, v41"); e("v_cvt_pk_bf16_f32 v31, v42, v43")
    f_addr(ff, sT + 1)
    e(f"s_lshl_b32 {s(sT+3)}, {s(sT+2)}, 6")
    e("v_lshrrev_b32 v10, 3, v1"); e(f"v_mul_u32_u24 v10, {FRP}, v10"); e("v_and_b32 v11, 7, v1"); e("v_lshl_add_u32 v10, v11, 3, v10")
    e(f"v_add_u32 v11, {s(sT+3)}, v10")
    e(f"buffer_store_dwordx2 v[28:29], v11, {s(sSRD,4)}, {s(sT+1)} offen sc1")
    e(f"s_cmp_lg_u32 {s(sT+2)}, 0"); e(f"s_cbranch_scc1 {lred}_z")
    e(f"s_mov_b32 {s(sT+2)}, 0x0f0f0f0f"); e(f"s_mov_b32 {s(sT+3)}, 0x0f0f0f0f"); e(f"s_mov_b64 exec, {s(sT+2,2)}")
    e(f"buffer_store_dwordx2 v[30:31], v10, {s(sSRD,4)}, {s(sT+1)} offen offset:512 sc1")
    A.label(lred + "_z")
    e("s_mov_b64 exec, -1")
    A.label(lred)

def ophase(layer):
    pq = PQ1 if layer == 1 else PQ2
    ff = F1 if layer == 1 else F2
    KF, PQF = 24, 56
    e("v_and_b32 v10, 3, v1"); e("v_lshlrev_b32 v10, 2, v10"); e("v_bfe_u32 v11, v1, 2, 2"); e("v_add_u32 v10, v10, v11")
    e("v_and_b32 v11, 16, v1"); e("v_cmp_ne_u32 vcc, 0, v11"); e("v_cndmask_b32 v10, v10, v11, vcc")
    e("v_lshlrev_b32 v10, 5, v10"); e("v_lshrrev_b32 v11, 5, v1"); e("v_lshl_add_u32 v10, v11, 4, v10")
    e(f"s_lshl_b32 {s(sT)}, {s(sWAVE)}, 3"); e(f"s_mul_i32 s4, {s(sT)}, {FP}"); e(f"s_add_u32 s4, s4, {ff}")
    e(f"s_mul_i32 {s(sT+1)}, {s(sXCD)}, {FRP}"); e(f"s_add_u32 s4, s4, {s(sT+1)}")
    e("v_and_b32 v11, 31, v1"); e("v_lshlrev_b32 v11, 5, v11"); e("v_lshrrev_b32 v12, 5, v1"); e("v_lshl_add_u32 v11, v12, 4, v11")
    e(f"s_mul_i32 s5, {s(sT)}, {HP}"); e(f"s_add_u32 s5, s5, {pq}")
    e(f"s_lshl_b32 {s(sT+3)}, {s(sRO)}, 10"); e(f"s_add_u32 s5, s5, {s(sT+3)}")
    e(f"s_lshl_b32 {s(sT)}, {s(sWAVE)}, 13"); e(f"s_add_u32 {s(sT)}, {s(sT)}, {OT}")
    e(f"v_lshl_add_u32 v12, v1, 4, {s(sT)}")
    e(f"v_lshlrev_b32 v13, 4, v1"); e(f"v_add_u32 v13, {OT}, v13")
    if layer == 1:
        e("v_and_b32 v14, 31, v1"); e(f"v_mul_u32_u24 v14, {TBP}, v14"); e("v_lshrrev_b32 v15, 5, v1"); e("v_lshl_add_u32 v14, v15, 5, v14")
        e(f"s_mul_i32 {s(sT+4)}, {s(sWAVE)}, {32*TBP}"); e(f"s_add_u32 {s(sT+4)}, {s(sT+4)}, {TB}"); e(f"v_add_u32 v14, {s(sT+4)}, v14")
        e("v_lshrrev_b32 v15, 4, v1"); e("v_lshlrev_b32 v15, 3, v15"); e("v_bfe_u32 v16, v1, 2, 2"); e("v_add_u32 v15, v15, v16")
        e(f"v_mul_u32_u24 v15, {TBP}, v15"); e("v_and_b32 v16, 3, v1"); e("v_lshl_add_u32 v15, v16, 3, v15"); e(f"v_add_u32 v15, {s(sT+4)}, v15")
        e("v_and_b32 v16, 15, v1"); e(f"v_lshlrev_b32 v16, 6, v16"); e("v_lshrrev_b32 v17, 4, v1"); e("v_lshl_add_u32 v16, v17, 4, v16")
        e(f"s_lshl_b32 s6, {s(sJO)}, 7"); e(f"s_lshl_b32 {s(sT+1)}, {s(sWAVE)}, 5"); e(f"s_add_u32 s6, s6, {s(sT+1)}")
        e(f"s_lshl_b32 s6, s6, 6"); e(f"s_mul_i32 {s(sT+1)}, {s(sRO)}, {ROP}"); e(f"s_add_u32 s6, s6, {s(sT+1)}")
        e(f"s_add_u32 s6, s6, {X2T}")
        e("v_bfe_u32 v17, v1, 1, 2"); e("v_lshlrev_b32 v17, 12, v17"); e("v_bfe_u32 v18, v1, 3, 2"); e("v_lshl_add_u32 v17, v18, 4, v17")
        e("v_and_b32 v18, 1, v1"); e("v_lshl_add_u32 v17, v18, 3, v17"); e("v_lshrrev_b32 v18, 5, v1"); e("v_lshl_add_u32 v17, v18, 2, v17")
        e(f"s_lshl_b32 s7, {s(sRO)}, 6"); e(f"s_add_u32 s7, s7, {S3}")
    else:
        e("v_and_b32 v14, 31, v1"); e("v_lshlrev_b32 v14, 10, v14"); e("v_lshrrev_b32 v15, 5, v1"); e("v_lshl_add_u32 v14, v15, 5, v14")
        e(f"s_lshl_b32 {s(sT)}, {s(sRO)}, 15"); e(f"s_lshl_b32 {s(sT+1)}, {s(sJO)}, 8"); e(f"s_add_u32 {s(sT)}, {s(sT)}, {s(sT+1)}")
        e(f"s_lshl_b32 {s(sT+1)}, {s(sWAVE)}, 6"); e(f"s_add_u32 {s(sT)}, {s(sT)}, {s(sT+1)}")
        e(f"v_add_u32 v14, {s(sT)}, v14")
    XF = 104
    def pq_loads():
        for h in range(8):
            e(f"s_add_u32 {s(sT+3)}, s5, {h*HP}")
            e(f"buffer_load_dwordx4 {v(PQF+4*h,4)}, v11, {s(sSRD,4)}, {s(sT+3)} offen sc1")
    e("s_barrier")
    stamp(f"o{layer}_gate")
    pq_loads()
    if int(OPTS.get("osl", 0)): e(f"s_sleep {OPTS.get('osl')}")
    lr = lab("of"); lg = lab("ofk")
    A.label(lr)
    for h in range(8):
        if h*FP < 4096: e(f"buffer_load_dwordx4 {v(KF+4*h,4)}, v10, {s(sSRD,4)}, s4 offen offset:{h*FP} sc1")
        else:
            e(f"s_add_u32 {s(sT+3)}, s4, {h*FP}")
            e(f"buffer_load_dwordx4 {v(KF+4*h,4)}, v10, {s(sSRD,4)}, {s(sT+3)} offen sc1")
    e("s_waitcnt vmcnt(0)")
    maxtree([KF+4*h for h in range(8)], 18)
    e("v_cmp_eq_u32 vcc, -1, v18")
    spin_check(lr, lg)
    lr = lab("oq"); lg = lab("oqk")
    A.label(lr)
    maxtree([PQF+4*h for h in range(8)], 18)
    e("v_cmp_eq_u32 vcc, -1, v18")
    e(f"s_cbranch_vccz {lg}")
    e(f"s_sub_u32 {s(sSPIN)}, {s(sSPIN)}, 1"); e(f"s_cbranch_scc1 {lg}_x")
    pq_loads()
    e("s_waitcnt vmcnt(0)")
    e(f"s_branch {lr}")
    A.label(lg + "_x"); e(f"s_mov_b32 {s(sSPIN)}, 0")
    A.label(lg)
    stamp(f"o{layer}_ld")
    DB = [88, 104, 120, 136, 152, 168]
    def m1(h): e(f"v_mfma_f32_32x32x16_bf16 {v(DB[h % 6],16)}, {v(KF+4*h,4)}, {v(PQF+4*h,4)}, 0")
    def proc(h):
        d = DB[h % 6]
        e(f"v_add_f32 {v(d+8)}, {s(sEPS6)}, {v(d+8)}")
        e(f"v_rcp_f32 {v(d+8)}, {v(d+8)}")
        for k in range(4): e(f"v_pk_mul_f32 {v(d+2*k,2)}, {v(d+2*k,2)}, {v(d+8,2)} op_sel_hi:[1,0]")
        for k in range(4): e(f"v_cvt_pk_bf16_f32 {v(d+10+k)}, {v(d+2*k)}, {v(d+2*k+1)}")
        e(f"ds_write_b128 v12, {v(d+10,4)} offset:{1024*h}")
    for h in range(6): m1(h)
    proc(0); m1(6); proc(1); m1(7)
    for h in range(2, 8): proc(h)
    stamp(f"o{layer}_m1")
    e("s_waitcnt lgkmcnt(0)"); e("s_barrier")
    ACC = 24; NB = 8; OF = [56 + 4*i for i in range(NB)]
    for h in range(NB): e(f"ds_read_b128 {v(OF[h],4)}, v13 offset:{1024*h}")
    for k in range(8):
        e(f"v_lshlrev_b32 {v(XF+2*k)}, 16, {v(XRES+k)}"); e(f"v_and_b32 {v(XF+2*k+1)}, {s(sHI)}, {v(XRES+k)}")
    for h in range(32):
        e(f"s_waitcnt lgkmcnt({min(NB-1, 31-h)})")
        w_ = a(192 + 4*h, 4) if h < 16 else v(192 + 4*(h-16), 4)
        c_ = "0" if h == 0 else v(ACC, 16)
        e(f"v_mfma_f32_32x32x16_bf16 {v(ACC,16)}, {w_}, {v(OF[h % NB],4)}, {c_}")
        if h + NB < 32: e(f"ds_read_b128 {v(OF[h % NB],4)}, v13 offset:{1024*(h+NB)}")
    stamp(f"o{layer}_g2")
    for k in range(8): e(f"v_pk_add_f32 {v(XF+2*k,2)}, {v(XF+2*k,2)}, {v(ACC+2*k,2)}")
    PKD = 120
    for k in range(8): e(f"v_cvt_pk_bf16_f32 {v(PKD+k)}, {v(XF+2*k)}, {v(XF+2*k+1)}")
    if layer == 2:
        e(f"global_store_dwordx4 v14, {v(PKD,4)}, {s(sOUT,2)}")
        e(f"global_store_dwordx4 v14, {v(PKD+4,4)}, {s(sOUT,2)} offset:16")
        return
    e(f"ds_write_b128 v14, {v(PKD,4)}"); e(f"ds_write_b128 v14, {v(PKD+4,4)} offset:16")
    e(f"v_pk_add_f32 v[64:65], {v(XF,2)}, {v(XF+2,2)}"); e(f"v_pk_mul_f32 v[66:67], {v(XF,2)}, {v(XF,2)}")
    e(f"v_pk_add_f32 v[68:69], {v(XF+4,2)}, {v(XF+6,2)}"); e(f"v_pk_mul_f32 v[70:71], {v(XF+2,2)}, {v(XF+2,2)}")
    for k in range(2, 8):
        e(f"v_pk_fma_f32 {v(66+4*(k&1),2)}, {v(XF+2*k,2)}, {v(XF+2*k,2)}, {v(66+4*(k&1),2)}")
        if k >= 4: e(f"v_pk_add_f32 {v(64+4*(k&1),2)}, {v(64+4*(k&1),2)}, {v(XF+2*k,2)}")
    e("s_waitcnt lgkmcnt(0)")
    for k in range(2):
        e(f"ds_read_b64_tr_b16 {v(80+4*k,2)}, v15 offset:{32*k}")
        e(f"ds_read_b64_tr_b16 {v(82+4*k,2)}, v15 offset:{32*k + 4*TBP}")
    e("v_pk_add_f32 v[64:65], v[64:65], v[68:69]"); e("v_pk_add_f32 v[66:67], v[66:67], v[70:71]")
    e("v_add_f32 v64, v64, v65"); e("v_add_f32 v65, v66, v67")
    e("v_permlane32_swap_b32 v64, v65")
    e("v_add_f32 v64, v64, v65")
    e(f"s_lshl_b32 {s(sT)}, {s(sWAVE)}, 8"); e(f"s_add_u32 {s(sT)}, {s(sT)}, {ST}"); e(f"v_lshl_add_u32 v66, v1, 2, {s(sT)}")
    e("ds_write_b32 v66, v64")
    e("s_waitcnt lgkmcnt(1)")
    if OPTS.get("nox2") != "1":
        e(f"buffer_store_dwordx4 v[80:83], v16, {s(sSRD,4)}, s6 offen sc1")
        e(f"buffer_store_dwordx4 v[84:87], v16, {s(sSRD,4)}, s6 offen offset:1024 sc1")
    e("s_waitcnt lgkmcnt(0)"); e("s_barrier")
    l = lab("oat")
    e(f"s_cmp_lg_u32 {s(sWAVE)}, 0"); e(f"s_cbranch_scc1 {l}")
    e(f"v_lshlrev_b32 v66, 2, v1"); e(f"v_add_u32 v66, {ST}, v66")
    for k in range(4): e(f"ds_read_b32 {v(68+k)}, v66 offset:{256*k}")
    e("s_waitcnt lgkmcnt(0)")
    e("v_add_f32 v68, v68, v69"); e("v_add_f32 v70, v70, v71"); e("v_add_f32 v68, v68, v70")
    if OPTS.get("noat") != "1": e(f"buffer_atomic_add_f32 v68, v17, {s(sSRD,4)}, s7 offen")
    A.label(l)

def build():
    prologue()
    stamp("start")
    idx_loads()
    p0_fills()
    stamp("p_iss")
    e("s_waitcnt vmcnt(8)")
    stamp("p_ld")
    p0_x0_write()
    p0_stats()
    e("s_waitcnt vmcnt(6) lgkmcnt(0)"); e("s_barrier")
    p0_x0_store()
    nonce_issue()
    p0_wfrag()
    kgen_setup()
    stamp("p_st")
    kgen_round(["X1", "X2", "Y1"], 0); kgen_round(["Y2"], 0)
    kgen_round(["X1", "X2", "Y1"], 1); kgen_round(["Y2"], 1)
    nonce_get()
    arrive(0)
    p0_stats_store()
    stamp("arr1")
    fg = fill_groups(1, 58, 59)
    def upto_store():
        while fg:
            g = fg.pop(0); emit_group(g)
            if any("buffer_store" in l for l in g): return
    upto_store()
    kgen_round(["X1", "X2"], 2); upto_store(); kgen_round(["X1", "X2"], 3); upto_store()
    stamp("k_tab")
    kgen_mm([], upto_store)
    while fg: upto_store()
    e("s_waitcnt lgkmcnt(0)"); e("s_barrier")
    stamp("kgen")
    if stop_here("K"): return
    conv_setup(1)
    stamp("B1")
    rest = conv(1)
    arrive(1)
    stamp("C1")
    if stop_here("C1"): return
    for ins in rest:
        for l in ins: e(l)
    g_setup(1)
    e("s_waitcnt vmcnt(0)")
    colsums()
    wait(1)
    stamp("B2")
    gphase(1)
    stamp("G1")
    if stop_here("G1"): return
    ophase(1)
    stamp("o1_end")
    arrive(2)
    stamp("O1")
    if stop_here("O1"): return
    conv_setup(2)
    stamp("c2_set")
    wait(2)
    stamp("B4")
    conv(2)
    arrive(3)
    stamp("C2")
    if stop_here("C2"): return
    g_setup(2)
    wait(3)
    stamp("B5")
    gphase(2)
    stamp("G2")
    if stop_here("G2"): return
    ophase(2)
    if STAMPS:
        e("s_waitcnt vmcnt(0)")
        stamp("O2")
        stamps_out()

build()
A.label("L_end")
e("s_endpgm")

def rb_int(j):
    u = struct.unpack("<I", struct.pack("<f", float(j)))[0]
    u = (u + 0x7fff + ((u >> 16) & 1)) & 0xffff0000
    return int(struct.unpack("<f", struct.pack("<I", u))[0])
idx = []
for x in range(2064):
    j = 2047 - x
    if j < 0: ent = 1024
    else:
        t = rb_int(j); ent = t if t < 512 else 512 + (t - 512) // 4
    idx.append(2 * ent)

lines, nn = hazard_pass(A.lines)
probs = check_branches(lines)
for p in probs: print("BRANCH HAZARD:", p, file=sys.stderr)
hdr = open("interleave_layers__ssm_conv_s4d__linear_attn_block__prompt.s.ref").read().split("; Override launch")[0]
out = hdr + "; Override launch geometry by editing the next line.\n"
out += f"; @launch grid=(256,1,1) block=(256,1,1) lds={LDS_BYTES}\n"
out += '.amdgcn_target "amdgcn-amd-amdhsa--gfx950"\n.text\n'
out += f".globl {NAME}\n.p2align 8\n.type {NAME},@function\n{NAME}:\n"
out += "\n".join(lines) + "\n"
out += ".p2align 6\n.type L_idx,@object\nL_idx:\n"
for i in range(0, len(idx), 16): out += "  .short " + ", ".join(str(x) for x in idx[i:i+16]) + "\n"
out += "L_tab_end:\n"
out += f""".section .rodata,"a"
.p2align 6
.amdhsa_kernel {NAME}
  .amdhsa_next_free_vgpr 512
  .amdhsa_next_free_sgpr 102
  .amdhsa_accum_offset 256
  .amdhsa_group_segment_fixed_size 0
  .amdhsa_kernarg_size 104
  .amdhsa_user_sgpr_count 2
  .amdhsa_user_sgpr_kernarg_segment_ptr 1
  .amdhsa_system_sgpr_workgroup_id_x 1
  .amdhsa_float_denorm_mode_32 3
.end_amdhsa_kernel
"""
open(sys.argv[1], "w").write(out)
if STAMPS: open(sys.argv[1] + ".names", "w").write(",".join(stnames))
print(f"wrote {sys.argv[1]}: {len(lines)} lines, {nn} nops inserted; WS_USED={WS_USED:#x}", file=sys.stderr)
```

```python
import sys, struct
from asmlib import *

NAME = "interleave_layers__ssm_conv_s4d__linear_attn_block__prompt_kernel"
OPTS = {}
for x in sys.argv[2:]:
    if "=" in x:
        k_, v_ = x.split("="); OPTS[k_] = v_
STOP = OPTS.get("stop")
SPINMAX = int(OPTS.get("spin", 100000))
BK = int(OPTS.get("bk", 2))

PITCH = 4224
S1 = 0x000000
S3 = 0x004000
FP = 640; FRP = 32 * FP + 128; F1 = 0x1200000 - 0x100000; F2 = F1 + 0x40000
STAMP_OFF = 0x020000
X0P = 8192 + 128
CNT = 0x030000
KVP1 = 0x040000; KVH = 1152; KVW = 4 * KVH; KVP2 = KVP1 + 0x128000
WFG = 0x2A0000; WFO = WFG + 0x180000
XSZ = 0x220000
XT1 = 0x4A0000; XT3 = XT1 + XSZ; X2T = XT3 + XSZ
ROP = 32768 + 256
HP = 65536 + 256
PQ1 = X2T + XSZ; PQ2 = PQ1 + 0x210000
X0T = 0x1200000
WS_USED = 0x1200000 + 0x210000
assert PQ2 + 0x210000 <= F1
KC = 0; KCC = 4160; KCH = 8 * KCC
AT = 2 * KCH
MISC = AT + 65536
ST = MISC
WST = MISC + 2048
CT = WST + 8192; CTP = 2080
TB = WST; TBP = 80
LDS_BYTES = 163840
X0S = 147456
TKP = 224; TABC = 256 * TKP
U0 = AT; UP = 4608; X0 = AT + 2 * UP; RED = X0 + 8192
OT = AT

sU, sLOGA, sAIM, sCR, sCI, sLDT, sDSK = 8, 10, 12, 14, 16, 18, 20
sWQKV, sWO, sOUT, sDBG, sWS = 24, 26, 28, 30, 32
sSRD = 36; sSRD2 = 40
sWAVE, sXCD, sIDX, sCP, sRS, sJ, sRO, sJO = 44, 45, 46, 47, 48, 49, 50, 51
sSPIN = 52; sDSKV = 53
sT = 54
sLOG2E = 64; sEPS6 = 66; sM = 68; sHI = 76; sPC = 78; sINV512 = 80
sW = 34
sNON = 35

def f2u(f): return struct.unpack("<I", struct.pack("<f", f))[0]
A = Asm(); e = A.e
uid = [0]
def lab(p):
    uid[0] += 1; return f"L_{p}_{uid[0]}"

STAMPS = OPTS.get("stamps") == "1"
DEFSET = "start,arr1,kgen,B1,c1_pro,C1,B2,g1_kv,G1,o1_ld,O1,B4,c2_pro,C2,B5,G2,o2_ld,O2"
STSET = OPTS.get("st", DEFSET).split(",")
stnames = []
def stamp(name):
    if not STAMPS or name not in STSET: return
    i = len(stnames); stnames.append(name); assert i < 18
    e(f"{'s_memtime' if OPTS.get('clk') == '1' else 's_memrealtime'} s[82:83]"); e("s_waitcnt lgkmcnt(0)"); e(f"s_mov_b32 s{84+i}, s82")
def stamps_out():
    if not STAMPS: return
    if OPTS.get("dbgout"):
        l = lab("so")
        e(f"s_cmp_lg_u32 {s(sWAVE)}, 0"); e(f"s_cbranch_scc1 {l}")
        e(f"s_cmp_lg_u32 s2, {OPTS.get('dbgout')}"); e(f"s_cbranch_scc1 {l}")
        e("s_mov_b64 exec, 1")
        words = [2, 3, 5, 6, 7, 9, 10, 11, 13, 14, 15]
        for i in range(1, min(len(stnames), 12)):
            e(f"s_sub_u32 {s(sT)}, s{84+i}, s84")
            e(f"v_mov_b32 v10, {s(sT)}"); e(f"v_mov_b32 v11, {4*words[i-1]}")
            e(f"global_store_dword v11, v10, {s(sDBG,2)}")
        e("s_mov_b64 exec, -1")
        A.label(l)
        return
    l = lab("so")
    e(f"s_cmp_lg_u32 {s(sWAVE)}, {OPTS.get('stw', '0')}"); e(f"s_cbranch_scc1 {l}")
    e(f"s_lshl_b32 {s(sT)}, s2, 7"); e(f"s_add_u32 {s(sT)}, {s(sT)}, {STAMP_OFF}")
    e("s_mov_b64 exec, 1")
    for i in range(len(stnames)):
        e(f"v_mov_b32 v10, s{84+i}"); e(f"v_mov_b32 v11, {4*i}")
        e(f"buffer_store_dword v10, v11, {s(sSRD,4)}, {s(sT)} offen")
    e("s_mov_b64 exec, -1")
    A.label(l)
def stop_here(name):
    if STOP == name:
        e("s_waitcnt vmcnt(0) lgkmcnt(0)"); e("s_branch L_end"); return True
    return False

def sent_regs(r):
    for i in range(4): e(f"v_mov_b32 {v(r+i)}, -1")
def spin_check(retry, giveup, bk=None):
    e(f"s_cbranch_vccz {giveup}")
    bk = BK if bk is None else bk
    if bk: e(f"s_sleep {bk}")
    e(f"s_sub_u32 {s(sSPIN)}, {s(sSPIN)}, 1")
    e(f"s_cbranch_scc0 {retry}")
    e(f"s_mov_b32 {s(sSPIN)}, 0")
    A.label(giveup)
def maxtree(regs, dst):
    regs = list(regs); cur = regs.pop(0)
    while regs:
        if len(regs) >= 2:
            e(f"v_max3_u32 {v(dst)}, {v(cur)}, {v(regs[0])}, {v(regs[1])}"); regs = regs[2:]
        else:
            e(f"v_max_u32 {v(dst)}, {v(cur)}, {v(regs[0])}"); regs = []
        cur = dst

def arrive(k):
    e("s_waitcnt vmcnt(0) lgkmcnt(0)"); e("s_barrier")
    l = lab("arr")
    e(f"s_cmp_lg_u32 {s(sWAVE)}, 0"); e(f"s_cbranch_scc1 {l}")
    e(f"s_and_b32 {s(sT)}, s2, 15"); e(f"s_lshl_b32 {s(sT)}, {s(sT)}, {4 if k == 0 else 12}")
    if k: e(f"s_add_u32 {s(sT)}, {s(sT)}, {CNT}")
    e(f"v_mov_b32 v10, {s(sT)}"); e("v_mov_b32 v11, 1")
    e("s_mov_b64 exec, 1")
    e(f"global_atomic_add v10, v11, {s(sDBG if k == 0 else sWS,2)}")
    e("s_mov_b64 exec, -1")
    A.label(l)
def wait(k):
    l = lab("wt"); lp = lab("poll")
    e(f"s_cmp_lg_u32 {s(sWAVE)}, 0"); e(f"s_cbranch_scc1 {l}")
    e("v_and_b32 v10, 15, v0"); e(f"v_lshlrev_b32 v10, {4 if k == 0 else 12}, v10")
    if k: e(f"v_add_u32 v10, {CNT}, v10")
    e(f"s_movk_i32 {s(sT+1)}, {16 * max(k, 1)}")
    pre = int(OPTS.get(f"wpre{k}", {1: 0, 2: 12, 3: 0}.get(k, 0)))
    if pre: e(f"s_sleep {pre}")
    A.label(lp)
    e(f"global_load_dword v11, v10, {s(sDBG if k == 0 else sWS,2)} sc1")
    e("s_waitcnt vmcnt(0)")
    e(f"v_cmp_gt_u32 vcc, {s(sT+1)}, v11")
    spin_check(lp, l, bk=int(OPTS.get("wbk", 0)))
    e("s_barrier")

def cmul(d, x, w, t):
    return [f"v_pk_mul_f32 {v(t,2)}, {v(x,2)}, {v(w,2)} op_sel_hi:[1,0]",
            f"v_pk_fma_f32 {v(d,2)}, {v(x,2)}, {v(w,2)}, {v(t,2)} op_sel:[1,1,0] op_sel_hi:[0,1,1] neg_lo:[0,1,0]"]
def bf16r(dst, src):
    e(f"v_cvt_pk_bf16_f32 {v(dst)}, {v(src)}, {v(src)}"); e(f"v_lshlrev_b32 {v(dst)}, 16, {v(dst)}")
def stats_final(vsum, vsq, vm, vr, t, rcp=True):
    e(f"v_mul_f32 {v(t)}, {s(sINV512)}, {v(vsum)}")
    e(f"v_mul_f32 {v(t+1)}, {s(sINV512)}, {v(vsq)}")
    e(f"v_fma_f32 {v(t+1)}, -{v(t)}, {v(t)}, {v(t+1)}")
    e(f"v_max_f32 {v(t+1)}, 0, {v(t+1)}")
    e(f"v_cvt_pk_bf16_f32 {v(t)}, {v(t)}, {v(t+1)}")
    e(f"v_and_b32 {v(t+1)}, {s(sHI)}, {v(t)}"); e(f"v_lshlrev_b32 {v(vm)}, 16, {v(t)}")
    e(f"v_add_f32 {v(t+1)}, 0x3727c5ac, {v(t+1)}")
    bf16r(t + 1, t + 1)
    e(f"v_sqrt_f32 {v(t+1)}, {v(t+1)}")
    if rcp:
        bf16r(t + 1, t + 1)
        e(f"v_rcp_f32 {v(vr)}, {v(t+1)}")
    else:
        bf16r(vr, t + 1)

def kvp_addr(kvp, dst):
    e(f"s_lshl_b32 {s(dst)}, {s(sJ)}, 5"); e(f"s_add_u32 {s(dst)}, {s(dst)}, {s(sRS)}"); e(f"s_lshl_b32 {s(dst)}, {s(dst)}, 2")
    e(f"s_add_u32 {s(dst)}, {s(dst)}, {s(sWAVE)}"); e(f"s_mul_i32 {s(dst)}, {s(dst)}, {KVH}"); e(f"s_add_u32 {s(dst)}, {s(dst)}, {kvp}")
def f_addr(f, dst):
    e(f"s_lshr_b32 {s(dst)}, {s(sRS)}, 3"); e(f"s_lshl_b32 {s(sT+9)}, {s(sJ)}, 2"); e(f"s_add_u32 {s(dst)}, {s(dst)}, {s(sT+9)}")
    e(f"s_mul_i32 {s(dst)}, {s(dst)}, {FP}"); e(f"s_add_u32 {s(dst)}, {s(dst)}, {f}")
def pq_addr(pq, dst):
    e(f"s_lshl_b32 {s(dst)}, {s(sJ)}, 2"); e(f"s_add_u32 {s(dst)}, {s(dst)}, {s(sWAVE)}")
    e(f"s_mul_i32 {s(dst)}, {s(dst)}, {HP}"); e(f"s_lshl_b32 {s(sT+9)}, {s(sRS)}, 11"); e(f"s_add_u32 {s(dst)}, {s(dst)}, {s(sT+9)}")
    e(f"s_add_u32 {s(dst)}, {s(dst)}, {pq}")
def capture(fn):
    n = len(A.lines); fn(); out = [l.strip() for l in A.lines[n:]]; del A.lines[n:]
    return out
def fill_groups(layer, va, vb):
    S = 20; P1, K1, FF = 40, 41, 42
    pq = PQ1 if layer == 1 else PQ2; kvp = KVP1 if layer == 1 else KVP2; ff = F1 if layer == 1 else F2
    G = []
    def grp(fn): G.append(capture(fn))
    def single(fn):
        for l in capture(fn): G.append([l])
    single(lambda: sent_regs(S))
    def addr():
        e(f"s_lshl_b32 s{P1}, {s(sJ)}, 2"); e(f"s_add_u32 s{P1}, s{P1}, {s(sWAVE)}"); e(f"s_mul_i32 s{P1}, s{P1}, {HP}")
        e(f"s_lshl_b32 s61, {s(sRS)}, 11"); e(f"s_add_u32 s{P1}, s{P1}, s61"); e(f"s_add_u32 s{P1}, s{P1}, {pq}")
        e(f"s_lshl_b32 s{K1}, {s(sJ)}, 5"); e(f"s_add_u32 s{K1}, s{K1}, {s(sRS)}"); e(f"s_lshl_b32 s{K1}, s{K1}, 2")
        e(f"s_add_u32 s{K1}, s{K1}, {s(sWAVE)}"); e(f"s_mul_i32 s{K1}, s{K1}, {KVH}"); e(f"s_add_u32 s{K1}, s{K1}, {kvp}")
        e(f"s_lshr_b32 s{FF}, {s(sRS)}, 3"); e(f"s_lshl_b32 s61, {s(sJ)}, 2"); e(f"s_add_u32 s{FF}, s{FF}, s61")
        e(f"s_mul_i32 s{FF}, s{FF}, {FP}"); e(f"s_add_u32 s{FF}, s{FF}, {ff}")
        e(f"v_lshlrev_b32 {v(va)}, 4, v1"); e(f"v_lshlrev_b32 {v(vb)}, 2, v1")
    single(addr)
    G.append([f"buffer_store_dwordx4 {v(S,4)}, {v(va)}, {s(sSRD,4)}, s{K1} offen sc1", "MARK"])
    def st2():
        e("s_mov_b32 s62, -1"); e("s_mov_b32 s63, 0"); e("s_mov_b64 exec, s[62:63]")
        e(f"buffer_store_dword {v(S)}, {v(vb)}, {s(sSRD,4)}, s{K1} offen offset:1024 sc1")
        e("s_mov_b64 exec, -1")
    grp(st2)
    G.append([f"buffer_store_dwordx4 {v(S,4)}, {v(va)}, {s(sSRD,4)}, s{P1} offen sc1", "MARK"])
    G.append([f"buffer_store_dwordx4 {v(S,4)}, {v(va)}, {s(sSRD,4)}, s{P1} offen offset:1024 sc1", "MARK"])
    def fslice():
        l = lab("ff")
        e(f"s_cmp_lg_u32 {s(sWAVE)}, 2"); e(f"s_cbranch_scc1 {l}")
        e(f"s_and_b32 s61, {s(sRS)}, 7"); e("s_lshl_b32 s62, s61, 6")
        e(f"v_lshrrev_b32 {v(va)}, 3, v1"); e(f"v_mul_u32_u24 {v(va)}, {FRP}, {v(va)}"); e(f"v_and_b32 {v(vb)}, 7, v1"); e(f"v_lshl_add_u32 {v(va)}, {v(vb)}, 3, {v(va)}")
        e(f"v_add_u32 {v(vb)}, s62, {v(va)}")
        e(f"buffer_store_dwordx2 {v(S,2)}, {v(vb)}, {s(sSRD,4)}, s{FF} offen sc1")
        e("s_cmp_lg_u32 s61, 0"); e(f"s_cbranch_scc1 {l}")
        e("s_mov_b32 s62, 0x0f0f0f0f"); e("s_mov_b32 s63, 0x0f0f0f0f"); e("s_mov_b64 exec, s[62:63]")
        e(f"buffer_store_dwordx2 {v(S,2)}, {v(va)}, {s(sSRD,4)}, s{FF} offen offset:512 sc1")
        e("s_mov_b64 exec, -1")
        A.label(l)
    grp(fslice)
    return G
def emit_group(g):
    for l in g:
        if l == "MARK": continue
        if l.endswith(":"): A.label(l[:-1])
        else: e(l)

XR = 24; PRM = 32; IDX = 40; XC = 176
def prologue():
    stamp("t0")
    e(f"s_getpc_b64 {s(sPC,2)}")
    A.label("L_pc")
    e("s_cmp_ge_u32 s2, 256")
    e("s_cbranch_scc1 L_end")
    e("s_load_dwordx16 s[8:23], s[0:1], 0")
    e("s_load_dwordx8 s[24:31], s[0:1], 64")
    e("s_load_dwordx2 s[32:33], s[0:1], 96")
    e("s_memrealtime s[82:83]")
    e("v_lshlrev_b32 v10, 7, v0")
    e("v_min_u32 v11, L_tab_end - L_pc - 4, v10")
    e(f"global_load_dword v38, v11, {s(sPC,2)}")
    e("v_add_u32 v10, 0x8000, v10")
    e("v_min_u32 v10, L_tab_end - L_pc - 4, v10")
    e(f"global_load_dword v39, v10, {s(sPC,2)}")
    e("v_lshrrev_b32 v1, 6, v0")
    e(f"s_and_b32 {s(sXCD)}, s2, 7")
    e(f"s_lshr_b32 {s(sIDX)}, s2, 3")
    e(f"v_readfirstlane_b32 {s(sWAVE)}, v1")
    e(f"s_lshl_b32 {s(sCP)}, {s(sXCD)}, 5"); e(f"s_add_u32 {s(sCP)}, {s(sCP)}, {s(sIDX)}")
    e("v_and_b32 v1, 63, v0")
    e(f"s_lshl_b32 {s(sT)}, {s(sCP)}, 9"); e(f"v_lshl_add_u32 v10, v0, 1, {s(sT)}")
    e(f"s_lshl_b32 {s(sT)}, {s(sCP)}, 2"); e("v_lshrrev_b32 v12, 7, v0"); e(f"v_lshl_add_u32 v11, v12, 1, {s(sT)}")
    e(f"s_lshl_b32 {s(sT)}, s2, 13"); e(f"v_lshl_add_u32 v13, v0, 5, {s(sT)}")
    e(f"s_mul_i32 s6, s2, 5462"); e(f"s_lshr_b32 s6, s6, 16"); e(f"s_mul_i32 s7, s6, 12"); e(f"s_sub_u32 s7, s2, s7")
    e(f"s_sub_u32 {s(sT+1)}, s2, 192"); e(f"s_lshr_b32 {s(sT)}, {s(sT+1)}, 1"); e(f"s_and_b32 {s(sT+1)}, {s(sT+1)}, 1")
    e("s_cmp_ge_u32 s2, 192")
    e(f"s_cselect_b32 s6, {s(sT)}, s6"); e(f"s_cselect_b32 s7, {s(sT+1)}, s7")
    e(f"s_cselect_b32 {s(sT+2)}, 4, 5")
    e(f"s_cselect_b32 {s(sT+3)}, 2, 3")
    e(f"s_cselect_b32 {s(sT+4)}, 10, 0")
    e(f"s_movk_i32 {s(sT+5)}, 3072"); e(f"s_cselect_b32 {s(sT+5)}, 1024, {s(sT+5)}")
    e(f"s_cselect_b32 {s(sT+6)}, 9, 8")
    e(f"s_cselect_b32 {s(sT+7)}, 5, 4")
    e(f"s_lshl_b32 {s(sT)}, s6, {s(sT+2)}"); e(f"s_lshl_b32 {s(sT+1)}, {s(sWAVE)}, {s(sT+3)}"); e(f"s_add_u32 {s(sT)}, {s(sT)}, {s(sT+1)}")
    e(f"s_mul_i32 {s(sT)}, {s(sT)}, {s(sT+5)}"); e(f"s_lshl_b32 {s(sT+1)}, s7, {s(sT+6)}"); e(f"s_add_u32 s4, {s(sT)}, {s(sT+1)}")
    e(f"v_lshrrev_b32 v14, {s(sT+7)}, v1"); e(f"v_mul_lo_u32 v14, {s(sT+5)}, v14")
    e(f"s_lshl_b32 {s(sT+1)}, 1, {s(sT+7)}"); e(f"s_sub_u32 {s(sT+1)}, {s(sT+1)}, 1"); e(f"v_and_b32 v15, {s(sT+1)}, v1"); e("v_lshl_add_u32 v14, v15, 4, v14")
    e(f"s_lshl_b32 {s(sT+1)}, 64, 0"); e(f"s_lshr_b32 {s(sT+1)}, 64, {s(sT+7)}"); e(f"s_mul_i32 s5, {s(sT+1)}, {s(sT+5)}")
    e(f"s_lshl_b32 {s(sT+3)}, {s(sWAVE)}, 11"); e(f"s_add_u32 {s(sT+3)}, {s(sT+3)}, {WST}")
    e("s_cmp_ge_u32 s2, 192")
    e("s_waitcnt lgkmcnt(0)")
    stamp("karg")
    if True:
        e(f"v_min_u32 v16, {(WS_USED - 1) // 0x200000}, v1"); e("v_lshlrev_b32 v16, 21, v16")
        e(f"global_load_dword v19, v16, {s(sWS,2)}")
    e("s_cmp_ge_u32 s2, 192")
    e(f"global_load_ushort {v(PRM)}, v10, {s(sLOGA,2)}")
    e(f"global_load_ushort {v(PRM+1)}, v10, {s(sAIM,2)}")
    e(f"global_load_ushort {v(PRM+4)}, v11, {s(sLDT,2)}")
    e(f"global_load_dwordx4 {v(XR,4)}, v13, {s(sU,2)}")
    e(f"global_load_dwordx4 {v(XR+4,4)}, v13, {s(sU,2)} offset:16")
    e(f"global_load_ushort {v(PRM+2)}, v10, {s(sCR,2)}")
    e(f"global_load_ushort {v(PRM+3)}, v10, {s(sCI,2)}")
    e(f"global_load_ushort {v(PRM+5)}, v11, {s(sDSK,2)}")
    e(f"s_cselect_b32 {s(sSRD2)}, {s(sWO)}, {s(sWQKV)}"); e(f"s_cselect_b32 {s(sSRD2+1)}, {s(sWO+1)}, {s(sWQKV+1)}")
    e(f"s_mov_b32 {s(sT)}, {512*1536*2}"); e(f"s_cselect_b32 {s(sSRD2+2)}, {512*512*2}, {s(sT)}")
    e(f"s_and_b32 {s(sSRD2+1)}, {s(sSRD2+1)}, 0xffff"); e(f"s_mov_b32 {s(sSRD2+3)}, 0x20000")
    ln = lab("nw")
    e("v_mov_b32 v23, 4")
    e(f"s_or_b32 {s(sT)}, s2, {s(sWAVE)}"); e(f"s_cmp_lg_u32 {s(sT)}, 0"); e(f"s_cbranch_scc1 {ln}")
    e(f"s_or_b32 {s(sT)}, s82, 1"); e(f"v_mov_b32 v58, {s(sT)}")
    e("s_mov_b64 exec, 1")
    e(f"global_store_dword v23, v58, {s(sDBG,2)} sc1")
    e("s_mov_b64 exec, -1")
    e("s_waitcnt vmcnt(63)")
    A.label(ln)
    e(f"s_mov_b32 m0, {s(sT+3)}")
    e(f"buffer_load_dwordx4 v14, {s(sSRD2,4)}, s4 offen lds")
    e(f"s_add_u32 s4, s4, s5"); e(f"s_add_u32 m0, {s(sT+3)}, 1024")
    e(f"buffer_load_dwordx4 v14, {s(sSRD2,4)}, s4 offen lds")
    e(f"s_and_b32 {s(sT)}, {s(sIDX)}, 3"); e(f"s_lshl_b32 {s(sRS)}, {s(sXCD)}, 2"); e(f"s_add_u32 {s(sRS)}, {s(sRS)}, {s(sT)}")
    e(f"s_lshr_b32 {s(sJ)}, {s(sIDX)}, 2")
    e(f"s_and_b32 {s(sT)}, {s(sJ)}, 1"); e(f"s_lshl_b32 {s(sRO)}, {s(sRS)}, 1"); e(f"s_add_u32 {s(sRO)}, {s(sRO)}, {s(sT)}")
    e(f"s_lshr_b32 {s(sJO)}, {s(sJ)}, 1")
    e(f"s_mov_b32 {s(sLOG2E)}, {f2u(1.4426950408889634):#x}"); e(f"s_mov_b32 {s(sLOG2E+1)}, {s(sLOG2E)}")
    e(f"s_mov_b32 {s(sEPS6)}, {f2u(1e-6):#x}"); e(f"s_mov_b32 {s(sEPS6+1)}, {s(sEPS6)}")
    e(f"s_mov_b32 {s(sINV512)}, {f2u(1.0/512):#x}"); e(f"s_mov_b32 {s(sINV512+1)}, {s(sINV512)}")
    e(f"s_mov_b32 {s(sHI)}, 0xffff0000")
    e(f"s_mov_b32 {s(sSPIN)}, {SPINMAX}")
    e(f"s_mov_b32 {s(sSRD)}, {s(sWS)}"); e(f"s_and_b32 {s(sSRD+1)}, {s(sWS+1)}, 0xffff")
    e(f"s_mov_b32 {s(sSRD+2)}, {WS_USED:#x}"); e(f"s_mov_b32 {s(sSRD+3)}, 0x20000")

def p0_fills():
    e("v_mov_b32 v12, 0")
    e(f"s_lshl_b32 {s(sT)}, s2, 6"); e(f"s_add_u32 {s(sT)}, {s(sT)}, {S3}")
    e("v_lshlrev_b32 v10, 2, v1")
    e("s_mov_b64 exec, 0xffff")
    e(f"buffer_store_dword v12, v10, {s(sSRD,4)}, {s(sT)} offen sc1")
    e(f"s_lshl_b32 {s(sT+1)}, s2, 12"); e(f"s_add_u32 {s(sT+1)}, {s(sT+1)}, {CNT}")
    e("s_cmp_lt_u32 s2, 16"); e(f"s_cselect_b32 {s(sT)}, {s(sT+1)}, {s(sT)}")
    e("s_mov_b64 exec, 1")
    e(f"buffer_store_dword v12, v10, {s(sSRD,4)}, {s(sT)} offen sc1")
    e("s_mov_b64 exec, -1")

def nonce_issue():
    e("v_mov_b32 v17, 4")
    e(f"global_load_dword v58, v17, {s(sDBG,2)} sc1")
def nonce_get():
    lr = lab("nr"); lg = lab("ng"); l0 = lab("n0")
    e("s_waitcnt vmcnt(0)")
    e(f"s_branch {l0}")
    A.label(lr)
    e(f"global_load_dword v58, v17, {s(sDBG,2)} sc1")
    e("s_waitcnt vmcnt(0)")
    A.label(l0)
    e("v_cmp_eq_u32 vcc, 0, v58")
    spin_check(lr, lg, bk=1)
    e(f"v_readfirstlane_b32 {s(sNON)}, v58")

def idx_loads():
    e(f"s_add_u32 {s(sT)}, {s(sPC)}, L_idx - L_pc"); e(f"s_addc_u32 {s(sT+1)}, {s(sPC+1)}, 0")
    e("v_and_b32 v10, 127, v0"); e("v_lshlrev_b32 v10, 4, v10")
    e(f"global_load_dwordx4 {v(IDX,4)}, v10, {s(sT,2)}")
    e(f"global_load_dwordx4 {v(IDX+4,4)}, v10, {s(sT,2)} offset:16")
    e(f"global_load_dwordx4 {v(IDX+8,4)}, v10, {s(sT,2)} offset:2048")
    e(f"global_load_dwordx4 {v(IDX+12,4)}, v10, {s(sT,2)} offset:2064")

def gather_loads():
    out = []
    for i in range(4): out.append(f"global_load_dword {v(XC+i)}, v19, {s(sU,2)} offset:{1024*i}")
    for i in range(4): out.append(f"global_load_dword {v(XC+4+i)}, v18, {s(sU,2)} offset:{1024*i}")
    return out

def p0_x0_write():
    e(f"v_lshlrev_b32 v10, 5, v0"); e(f"v_add_u32 v10, {X0S}, v10")
    e(f"ds_write_b128 v10, {v(XR,4)}"); e(f"ds_write_b128 v10, {v(XR+4,4)} offset:16")
def p0_x0_store():
    e("v_bfe_u32 v10, v1, 2, 2"); e("v_lshlrev_b32 v10, 10, v10")
    e("v_lshrrev_b32 v11, 4, v1"); e("v_lshl_add_u32 v10, v11, 5, v10")
    e("v_and_b32 v11, 3, v1"); e("v_lshl_add_u32 v10, v11, 3, v10")
    e(f"s_lshl_b32 {s(sT)}, {s(sWAVE)}, 8"); e(f"s_add_u32 {s(sT)}, {s(sT)}, {X0S}"); e(f"v_add_u32 v10, {s(sT)}, v10")
    for k in range(2):
        e(f"ds_read_b64_tr_b16 {v(100+4*k,2)}, v10 offset:{128*k}"); e(f"ds_read_b64_tr_b16 {v(102+4*k,2)}, v10 offset:{128*k + 4096}")
    e(f"s_mul_i32 {s(sT)}, s2, {X0P}"); e(f"s_lshl_b32 {s(sT+1)}, {s(sWAVE)}, 11"); e(f"s_add_u32 {s(sT)}, {s(sT)}, {s(sT+1)}")
    e(f"s_add_u32 {s(sT)}, {s(sT)}, {X0T}")
    e("v_lshlrev_b32 v11, 4, v1")
    e("s_waitcnt lgkmcnt(0)")
    e(f"buffer_store_dwordx4 v[100:103], v11, {s(sSRD,4)}, {s(sT)} offen sc1")
    e(f"buffer_store_dwordx4 v[104:107], v11, {s(sSRD,4)}, {s(sT)} offen offset:1024 sc1")

def p0_stats():
    F = 64
    for i in range(8):
        e(f"v_lshlrev_b32 {v(F+2*i)}, 16, {v(XR+i)}"); e(f"v_and_b32 {v(F+2*i+1)}, {s(sHI)}, {v(XR+i)}")
    for i in range(4): e(f"v_pk_add_f32 {v(80+2*i,2)}, {v(F+4*i,2)}, {v(F+4*i+2,2)}")
    e(f"v_pk_mul_f32 v[88:89], {v(F,2)}, {v(F,2)}"); e(f"v_pk_mul_f32 v[90:91], {v(F+2,2)}, {v(F+2,2)}")
    e(f"v_pk_add_f32 v[80:81], v[80:81], v[82:83]"); e(f"v_pk_add_f32 v[84:85], v[84:85], v[86:87]")
    for i in range(2, 8): e(f"v_pk_fma_f32 {v(88+2*(i&1),2)}, {v(F+2*i,2)}, {v(F+2*i,2)}, {v(88+2*(i&1),2)}")
    e(f"v_pk_add_f32 v[80:81], v[80:81], v[84:85]"); e("v_pk_add_f32 v[88:89], v[88:89], v[90:91]")
    e("v_add_f32 v80, v80, v81"); e("v_add_f32 v82, v88, v89")
    for r_ in (8, 4, 2, 1):
        e(f"v_add_f32_dpp v80, v80, v80 row_ror:{r_} row_mask:0xf bank_mask:0xf")
        e(f"v_add_f32_dpp v82, v82, v82 row_ror:{r_} row_mask:0xf bank_mask:0xf")
    e("v_add_f32_dpp v80, v80, v80 row_bcast:15 row_mask:0xa bank_mask:0xf")
    e("v_add_f32_dpp v82, v82, v82 row_bcast:15 row_mask:0xa bank_mask:0xf")
    stats_final(80, 82, 56, 57, 86, rcp=False)
    e("v_lshrrev_b32 v56, 16, v56"); e(f"v_and_or_b32 v56, v57, {s(sHI)}, v56")

def p0_stats_store():
    e(f"v_mov_b32 v57, {s(sNON)}")
    e(f"s_lshl_b32 {s(sT)}, s2, 4"); e(f"s_lshl_b32 {s(sT+1)}, {s(sWAVE)}, 12"); e(f"s_add_u32 {s(sT)}, {s(sT)}, {s(sT+1)}")
    e(f"s_add_u32 {s(sT)}, {s(sT)}, {S1}")
    e("v_lshrrev_b32 v10, 5, v1"); e(f"v_lshl_add_u32 v10, v10, 3, {s(sT)}")
    e(f"s_mov_b32 {s(sT+2)}, 0x00010000"); e(f"s_mov_b32 {s(sT+3)}, 0x00010000")
    e(f"s_mov_b64 exec, {s(sT+2,2)}")
    e(f"buffer_store_dwordx2 v[56:57], v10, {s(sSRD,4)}, 0 offen sc1")
    e("s_mov_b64 exec, -1")

def p0_wfrag():
    lo = lab("wo2"); lj = lab("wj2")
    e("s_cmp_ge_u32 s2, 192"); e(f"s_cbranch_scc1 {lo}")
    e("v_lshrrev_b32 v10, 2, v1"); e("v_lshlrev_b32 v10, 8, v10")
    e("v_and_b32 v11, 3, v1"); e("v_lshl_add_u32 v10, v11, 3, v10")
    e(f"s_lshl_b32 {s(sT)}, {s(sWAVE)}, 6"); e(f"s_add_u32 {s(sT)}, {s(sT)}, {WST}")
    e(f"v_add_u32 v10, {s(sT)}, v10")
    e("ds_read_b64_tr_b16 v[88:89], v10"); e("ds_read_b64_tr_b16 v[90:91], v10 offset:4096")
    e("ds_read_b64_tr_b16 v[92:93], v10 offset:32"); e("ds_read_b64_tr_b16 v[94:95], v10 offset:4128")
    e(f"s_lshr_b32 {s(sT)}, s7, 2")
    e(f"s_add_u32 {s(sT)}, {s(sT)}, 2"); e(f"s_cmp_ge_u32 {s(sT)}, 3")
    e(f"s_cselect_b32 {s(sT+1)}, 3, 0"); e(f"s_sub_u32 {s(sT)}, {s(sT)}, {s(sT+1)}")
    e(f"s_and_b32 {s(sT+1)}, s7, 3"); e(f"s_lshl_b32 {s(sT+1)}, {s(sT+1)}, 3")
    e(f"s_lshl_b32 {s(sT+2)}, {s(sWAVE)}, 1"); e(f"s_add_u32 {s(sT+1)}, {s(sT+1)}, {s(sT+2)}")
    e(f"s_mul_i32 {s(sT+1)}, {s(sT+1)}, 3"); e(f"s_add_u32 {s(sT+1)}, {s(sT+1)}, {s(sT)}")
    e(f"s_lshl_b32 {s(sT+1)}, {s(sT+1)}, 4"); e(f"s_add_u32 {s(sT+1)}, {s(sT+1)}, s6")
    e(f"s_lshl_b32 {s(sT+1)}, {s(sT+1)}, 10"); e(f"s_add_u32 {s(sT+1)}, {s(sT+1)}, {WFG}")
    e(f"s_add_u32 {s(sT+2)}, {s(sT+1)}, 49152")
    e(f"s_branch {lj}")
    A.label(lo)
    e("v_lshrrev_b32 v10, 5, v1"); e("v_lshlrev_b32 v10, 2, v10")
    e("v_bfe_u32 v11, v1, 2, 2"); e("v_add_u32 v10, v10, v11"); e("v_lshlrev_b32 v10, 9, v10")
    e("v_and_b32 v11, 1, v1"); e("v_lshl_add_u32 v10, v11, 5, v10")
    e("v_bfe_u32 v11, v1, 4, 1"); e("v_lshl_add_u32 v10, v11, 4, v10")
    e("v_bfe_u32 v11, v1, 1, 1"); e("v_lshl_add_u32 v10, v11, 3, v10")
    e(f"s_lshl_b32 {s(sT)}, {s(sWAVE)}, 7"); e(f"s_add_u32 {s(sT)}, {s(sT)}, {WST}")
    e(f"v_add_u32 v10, {s(sT)}, v10")
    e("ds_read_b64_tr_b16 v[88:89], v10"); e("ds_read_b64_tr_b16 v[90:91], v10 offset:4096")
    e("ds_read_b64_tr_b16 v[92:93], v10 offset:64"); e("ds_read_b64_tr_b16 v[94:95], v10 offset:4160")
    e(f"s_lshl_b32 {s(sT+1)}, s7, 3"); e(f"s_lshl_b32 {s(sT+2)}, {s(sWAVE)}, 1"); e(f"s_add_u32 {s(sT+1)}, {s(sT+1)}, {s(sT+2)}")
    e(f"s_lshl_b32 {s(sT+1)}, {s(sT+1)}, 5"); e(f"s_add_u32 {s(sT+1)}, {s(sT+1)}, s6")
    e(f"s_lshl_b32 {s(sT+1)}, {s(sT+1)}, 10"); e(f"s_add_u32 {s(sT+1)}, {s(sT+1)}, {WFO}")
    e(f"s_add_u32 {s(sT+2)}, {s(sT+1)}, 32768")
    A.label(lj)
    e("v_lshlrev_b32 v10, 4, v1")
    e("s_waitcnt lgkmcnt(0)")
    e(f"buffer_store_dwordx4 v[88:91], v10, {s(sSRD,4)}, {s(sT+1)} offen sc1")
    e(f"buffer_store_dwordx4 v[92:95], v10, {s(sSRD,4)}, {s(sT+2)} offen sc1")

def pw_multi(items, a2, b2):
    for (d, t, tm) in items:
        if t == 1:
            e(f"v_mov_b32 {v(tm)}, {v(a2)}"); e(f"v_fract_f32 {v(tm+1)}, {v(b2)}")
        else:
            c = f"{float(t)}" if t in (2, 4) else f"{f2u(float(t)):#x}"
            e(f"v_mul_f32 {v(tm)}, {c}, {v(a2)}"); e(f"v_mul_f32 {v(tm+1)}, {c}, {v(b2)}")
    for (d, t, tm) in items:
        e(f"v_exp_f32 {v(tm)}, {v(tm)}")
        if t != 1: e(f"v_fract_f32 {v(tm+1)}, {v(tm+1)}")
    for (d, t, tm) in items:
        e(f"v_cos_f32 {v(d)}, {v(tm+1)}"); e(f"v_sin_f32 {v(d+1)}, {v(tm+1)}")
    for (d, t, tm) in items:
        e(f"v_pk_mul_f32 {v(d,2)}, {v(d,2)}, {v(tm,2)} op_sel_hi:[1,0]")

W1, W4, W16, W64, W512 = 100, 102, 104, 106, 108
CH = {"X1": 112, "X2": 128, "Y1": 144, "Y2": 160}
def kgen_setup():
    for i in range(6): e(f"v_lshlrev_b32 {v(PRM+i)}, 16, {v(PRM+i)}")
    e(f"v_readfirstlane_b32 {s(sDSKV)}, {v(PRM+5)}")
    dt, are = 60, 61
    e(f"v_mul_f32 {v(dt)}, {s(sLOG2E)}, {v(PRM+4)}"); e(f"v_mul_f32 {v(are)}, {s(sLOG2E)}, {v(PRM)}")
    e(f"v_exp_f32 {v(dt)}, {v(dt)}"); e(f"v_exp_f32 {v(are)}, {v(are)}")
    e(f"v_cvt_pk_bf16_f32 {v(dt)}, {v(dt)}, {v(are)}")
    e(f"v_and_b32 {v(are)}, {s(sHI)}, {v(dt)}"); e(f"v_lshlrev_b32 {v(dt)}, 16, {v(dt)}")
    a2, b2 = 62, 63
    e(f"v_mul_f32 {v(a2)}, -{v(are)}, {v(dt)}"); e(f"v_mul_f32 {v(b2)}, {v(PRM+1)}, {v(dt)}")
    e(f"v_mul_f32 {v(a2)}, {s(sLOG2E)}, {v(a2)}"); e(f"v_mul_f32 {v(b2)}, 0.15915494, {v(b2)}")
    pw_multi([(W1, 1, 64), (W4, 4, 66), (W16, 16, 68), (W64, 64, 70), (W512, 512, 72)], a2, b2)
    e(f"v_add_f32 {v(dt)}, {v(dt)}, {v(dt)}")
    e(f"v_mul_f32 {v(CH['X1'])}, {v(PRM+2)}, {v(dt)}"); e(f"v_mul_f32 {v(CH['X1']+1)}, {v(PRM+3)}, {v(dt)}")
    for l in cmul(CH['X2'], CH['X1'], W512, 64): e(l)
    e(f"v_mov_b32 {v(CH['Y1'])}, 1.0"); e(f"v_mov_b32 {v(CH['Y1']+1)}, 0"); e(f"v_mov_b32 {v(CH['Y2'])}, 1.0"); e(f"v_mov_b32 {v(CH['Y2']+1)}, 0")
    e(f"v_lshrrev_b32 v96, 7, v0"); e(f"v_mul_u32_u24 v96, {TABC}, v96")
    e(f"v_and_b32 v97, 127, v0"); e(f"v_mul_u32_u24 v97, {TKP}, v97"); e("v_add_u32 v96, v96, v97")

def kgen_round(chains, rnd, side=None):
    Wof = {"X1": W16, "X2": W64, "Y1": W1, "Y2": W4}
    mbase = {"X1": 0, "X2": 32, "Y1": 64, "Y2": 80}
    tmp = {"X1": 64, "X2": 66, "Y1": 68, "Y2": 70}
    nval = {c: 8 for c in chains}
    if rnd == 3 and "X2" in chains: nval["X2"] = 1
    for i in range(1, 8):
        ls = [cmul(CH[c] + 2*i, CH[c] + 2*(i-1), Wof[c], tmp[c]) for c in chains if i < nval[c]]
        for k in range(2):
            for l in ls: e(l[k])
        if side and i in (1, 3, 5, 7) and len(side): e(side.pop(0))
    P = {c: 72 + 8*k for k, c in enumerate(chains)}
    for c in chains:
        neg = "-" if c[0] == "X" else ""
        for k in range(4):
            i0, i1 = (2*k, 2*k+1) if nval[c] == 8 else (0, 0)
            e(f"v_cvt_pk_bf16_f32 {v(P[c]+k)}, {v(CH[c]+2*i0)}, {v(CH[c]+2*i1)}")
            e(f"v_cvt_pk_bf16_f32 {v(P[c]+4+k)}, {neg}{v(CH[c]+2*i0+1)}, {neg}{v(CH[c]+2*i1+1)}")
        off = (mbase[c] + 8*rnd) * 2
        e(f"ds_write_b128 v96, {v(P[c],4)} offset:{off}")
        e(f"ds_write_b128 v96, {v(P[c]+4,4)} offset:{off + 128*TKP}")
    ls = [cmul(CH[c], CH[c] + 14, Wof[c], tmp[c]) for c in chains if nval[c] == 8 and not ((c[0] == "Y" and rnd == 1) or rnd == 3)]
    for k in range(2):
        for l in ls: e(l[k])

def kgen_mm(gl, fs):
    e("s_waitcnt lgkmcnt(0)"); e("s_barrier")
    e(f"s_lshr_b32 {s(sT)}, {s(sWAVE)}, 1"); e(f"s_and_b32 {s(sT+1)}, {s(sWAVE)}, 1")
    e(f"s_mul_i32 {s(sT+2)}, {s(sT)}, {TABC}")
    e(f"s_lshl_b32 {s(sT+3)}, {s(sT+1)}, 5"); e(f"s_add_u32 {s(sT+3)}, {s(sT+3)}, 128"); e(f"s_add_u32 {s(sT+3)}, {s(sT+3)}, {s(sT+2)}")
    e(f"s_lshl_b32 {s(sT+4)}, {s(sT+1)}, 6"); e(f"s_add_u32 {s(sT+4)}, {s(sT+4)}, {s(sT+2)}")
    e("v_lshrrev_b32 v10, 2, v1"); e(f"v_mul_u32_u24 v10, {TKP}, v10"); e("v_and_b32 v11, 3, v1"); e("v_lshl_add_u32 v10, v11, 3, v10")
    e(f"v_add_u32 v11, {s(sT+3)}, v10"); e(f"v_add_u32 v12, {s(sT+4)}, v10")
    YF, XF = 64, 96
    for ks in range(8):
        o = ks * 32 * TKP
        e(f"ds_read_b64_tr_b16 {v(YF+4*ks,2)}, v11 offset:{o}"); e(f"ds_read_b64_tr_b16 {v(YF+4*ks+2,2)}, v11 offset:{o + 16*TKP}")
        for tl in range(2):
            e(f"ds_read_b64_tr_b16 {v(XF+32*tl+4*ks,2)}, v12 offset:{o + 32*tl}"); e(f"ds_read_b64_tr_b16 {v(XF+32*tl+4*ks+2,2)}, v12 offset:{o + 16*TKP + 32*tl}")
    e("v_lshrrev_b32 v13, 7, v0")
    e(f"v_mul_u32_u24 v14, {CTP}, v13"); e(f"v_add_u32 v14, {CT}, v14")
    e(f"v_mul_u32_u24 v15, {KCH}, v13"); e("v_and_b32 v13, 127, v0"); e("v_lshl_add_u32 v15, v13, 4, v15")
    fs()
    for ks in range(8):
        e(f"s_waitcnt lgkmcnt({min(15, 6*(7-ks))})")
        for tl in range(2):
            c_ = "0" if ks == 0 else v(160 + 4*tl, 4)
            e(f"v_mfma_f32_16x16x32_bf16 {v(160+4*tl,4)}, {v(YF+4*ks,4)}, {v(XF+32*tl+4*ks,4)}, {c_}")
    e(f"s_mul_i32 {s(sT+2)}, {s(sT)}, {CTP}"); e(f"s_lshl_b32 {s(sT+3)}, {s(sT+1)}, 10"); e(f"s_add_u32 {s(sT+2)}, {s(sT+2)}, {s(sT+3)}")
    e(f"s_add_u32 {s(sT+2)}, {s(sT+2)}, {CT}")
    e("v_and_b32 v10, 15, v1"); e("v_lshlrev_b32 v10, 5, v10"); e("v_lshrrev_b32 v11, 4, v1"); e("v_lshl_add_u32 v10, v11, 3, v10")
    e(f"v_add_u32 v10, {s(sT+2)}, v10")
    e(f"s_mul_i32 {s(sT+2)}, {s(sT)}, {CTP}"); e(f"s_add_u32 {s(sT+2)}, {s(sT+2)}, {CT + 2048}")
    e(f"v_mov_b32 v11, {s(sT+2)}"); e("v_mov_b32 v12, 0")
    e("ds_write_b32 v11, v12")
    fs()
    G = [96, 112]
    for task in range(2):
        I = IDX + 8 * task
        for k in range(8):
            e(f"v_add_u32_sdwa {v(G[task]+2*k)}, v14, {v(I+k)} dst_sel:DWORD dst_unused:UNUSED_PAD src0_sel:DWORD src1_sel:WORD_0")
            e(f"v_add_u32_sdwa {v(G[task]+2*k+1)}, v14, {v(I+k)} dst_sel:DWORD dst_unused:UNUSED_PAD src0_sel:DWORD src1_sel:WORD_1")
    for tl in range(2):
        e(f"v_cvt_pk_bf16_f32 {v(168+2*tl)}, {v(160+4*tl)}, {v(161+4*tl)}")
        e(f"v_cvt_pk_bf16_f32 {v(169+2*tl)}, {v(162+4*tl)}, {v(163+4*tl)}")
        e(f"ds_write_b64 v10, {v(168+2*tl,2)} offset:{512*tl}")
    e("s_waitcnt lgkmcnt(0)"); e("s_barrier")
    stamp("k_mm")
    s1_issue()
    for task in range(2):
        for k in range(16): e(f"ds_read_u16 {v(G[task]+k)}, {v(G[task]+k)}")
    for task in range(2):
        if task == 1:
            s1_validate()
            x0t_issue()
        Dd, Dp, Sd, Sp = [(64, 72, 80, 88), (128, 136, 144, 152)][task]
        e(f"s_waitcnt lgkmcnt({15 if task == 0 else 8})")
        (e(gl.pop(0)) if gl else None)
        for k in range(8): e(f"v_lshl_or_b32 {v(Dd+k)}, {v(G[task]+2*k+1)}, 16, {v(G[task]+2*k)}")
        for k in range(1, 7): e(f"v_mov_b32 {v(Dp+k-1)}, {v(Dd+k)}")
        for k in range(7): e(f"v_alignbit_b32 {v(Sd+k)}, {v(Dd+k+1)}, {v(Dd+k)}, 16")
        for k in range(1, 7): e(f"v_alignbit_b32 {v(Sp+k-1)}, {v(Dd+k+1)}, {v(Dd+k)}, 16")
        for cp_ in range(8):
            ee = cp_ >> 1
            if cp_ % 2 == 0: src = Dd + ee if ee % 2 == 0 else Dp + ee - 1
            else: src = Sd + ee if ee % 2 == 0 else Sp + ee - 1
            e(f"ds_write_b128 v15, {v(src,4)} offset:{cp_*KCC + task*2048}")
    l0 = lab("zk")
    e(f"s_cmp_lg_u32 {s(sWAVE)}, 0"); e(f"s_cbranch_scc1 {l0}")
    e("v_lshrrev_b32 v10, 2, v1"); e(f"v_mul_u32_u24 v10, {KCC}, v10")
    e("v_and_b32 v11, 3, v1"); e("v_lshl_add_u32 v10, v11, 4, v10"); e("v_add_u32 v10, 4096, v10")
    e("v_mov_b32 v160, 0"); e("v_mov_b32 v161, 0"); e("v_mov_b32 v162, 0"); e("v_mov_b32 v163, 0")
    e("ds_write_b128 v10, v[160:163]")
    A.label(l0)

def s1_issue():
    e("v_lshlrev_b32 v63, 4, v0")
    for i in range(4):
        e(f"s_movk_i32 {s(sT)}, {S1 + 4096*i}")
        e(f"buffer_load_dwordx4 {v(24+4*i,4)}, v63, {s(sSRD,4)}, {s(sT)} offen sc1")
def s1_validate():
    lr = lab("s1r"); lg = lab("s1k"); l0 = lab("s1c")
    e("s_waitcnt vmcnt(0)")
    e(f"s_branch {l0}")
    A.label(lr)
    s1_issue()
    e("s_waitcnt vmcnt(0)")
    A.label(l0)
    for i in range(8): e(f"v_xor_b32 {v(160+i)}, {s(sNON)}, {v(24+2*i+1)}")
    e("v_or3_b32 v160, v160, v161, v162"); e("v_or3_b32 v163, v163, v164, v165"); e("v_or3_b32 v160, v160, v166, v167"); e("v_or_b32 v160, v160, v163")
    e("v_cmp_ne_u32 vcc, 0, v160")
    spin_check(lr, lg, bk=1)
def x0t_issue():
    e(f"v_mul_u32_u24 v10, {X0P}, v0"); e(f"s_lshl_b32 {s(sT)}, {s(sCP)}, 5"); e(f"s_add_u32 {s(sT)}, {s(sT)}, {X0T}")
    e(f"buffer_load_dwordx4 v[40:43], v10, {s(sSRD,4)}, {s(sT)} offen sc1")
    e(f"buffer_load_dwordx4 v[44:47], v10, {s(sSRD,4)}, {s(sT)} offen offset:16 sc1")
def b1_issue():
    e("v_and_b32 v20, 15, v0"); e("v_lshlrev_b32 v20, 4, v20")
    e(f"global_load_dword v21, v20, {s(sDBG,2)} sc1")
def b1_check():
    lr = lab("b1r"); lg = lab("b1k"); l0 = lab("b1c")
    e("s_waitcnt vmcnt(0)")
    e(f"s_branch {l0}")
    A.label(lr)
    e(f"global_load_dword v21, v20, {s(sDBG,2)} sc1")
    e("s_waitcnt vmcnt(0)")
    A.label(l0)
    e("v_cmp_gt_u32 vcc, 16, v21")
    spin_check(lr, lg, bk=1)

def gw_loads():
    out = []
    for f in range(48):
        out.append([f"buffer_load_dwordx4 {a(4*f,4)}, v18, {s(sSRD,4)}, {s(sW)} offen offset:{(f%4)*1024} sc1"] + ([f"s_add_u32 {s(sW)}, {s(sW)}, 4096"] if f % 4 == 3 else []))
    return out
def ow_loads():
    out = []
    for f in range(32):
        dst = a(192 + 4*f, 4) if f < 16 else v(192 + 4*(f-16), 4)
        out.append([f"buffer_load_dwordx4 {dst}, v18, {s(sSRD,4)}, {s(sW)} offen offset:{(f%4)*1024} sc1"] + ([f"s_add_u32 {s(sW)}, {s(sW)}, 4096"] if f % 4 == 3 else []))
    return out

vA, vB, vEP, vEU, vEX, vRW, vRR = 164, 165, 166, 167, 168, 169, 170
def conv_setup(layer):
    e(f"s_lshr_b32 s4, {s(sWAVE)}, 1"); e(f"s_and_b32 s5, {s(sWAVE)}, 1")
    e("v_and_b32 v10, 7, v1"); e("v_sub_u32 v10, 7, v10"); e(f"v_mul_u32_u24 v12, {KCC}, v10")
    e("v_bfe_u32 v10, v1, 5, 1"); e("v_lshlrev_b32 v13, 5, v10"); e("v_sub_u32 v12, v12, v13")
    e("v_bfe_u32 v11, v1, 4, 1"); e("v_lshl_add_u32 v12, v11, 4, v12")
    e("v_bfe_u32 v10, v1, 3, 1"); e("v_lshlrev_b32 v10, 4, v10"); e("v_sub_u32 v12, v12, v10")
    e(f"s_mul_i32 {s(sT+2)}, s4, {KCH}"); e(f"s_lshl_b32 {s(sT+3)}, s5, 8"); e(f"s_sub_u32 {s(sT+2)}, {s(sT+2)}, {s(sT+3)}")
    e(f"s_add_u32 {s(sT+2)}, {s(sT+2)}, {KC + 4080 - 3776}")
    e("v_and_b32 v10, 15, v1"); e("v_lshlrev_b32 v14, 5, v10"); e("v_sub_u32 v14, v14, v13"); e("v_lshl_add_u32 v14, v11, 4, v14")
    e(f"s_mul_i32 {s(sT+4)}, s4, {UP}"); e(f"s_sub_u32 {s(sT+4)}, {s(sT+4)}, {s(sT+3)}")
    e(f"s_add_u32 {s(sT+4)}, {s(sT+4)}, {U0 + 512 - 192}")
    e(f"v_add_u32 v16, {s(sT+2)}, v12"); e(f"v_add_u32 v17, {s(sT+4)}, v14")
    e("v_and_b32 v56, 15, v1"); e("v_lshlrev_b32 v56, 5, v56"); e("v_lshrrev_b32 v13, 4, v1"); e("v_lshl_add_u32 v56, v13, 3, v56")
    e(f"s_lshl_b32 {s(sT+2)}, s5, 11"); e(f"v_add_u32 v56, {s(sT+2)}, v56")
    e(f"s_mul_i32 {s(sT+3)}, s4, {UP}"); e(f"s_add_u32 {s(sT+3)}, {s(sT+3)}, {U0+512}"); e(f"v_add_u32 v57, {s(sT+3)}, v56")
    e(f"s_lshl_b32 {s(sT+3)}, s4, 12"); e(f"s_add_u32 {s(sT+3)}, {s(sT+3)}, {X0}"); e(f"v_add_u32 v58, {s(sT+3)}, v56")
    e(f"s_lshl_b32 {s(sT+2)}, {s(sWAVE)}, 12"); e(f"s_add_u32 {s(sT+2)}, {s(sT+2)}, {RED}"); e(f"v_lshl_add_u32 v59, v1, 4, {s(sT+2)}")
    e(f"s_xor_b32 {s(sT+2)}, {s(sWAVE)}, 1"); e(f"s_lshl_b32 {s(sT+2)}, {s(sT+2)}, 12"); e(f"s_add_u32 {s(sT+2)}, {s(sT+2)}, {RED}")
    e(f"v_lshl_add_u32 v60, v1, 4, {s(sT+2)}")
    xo = XT1 if layer == 1 else XT3
    e(f"s_lshl_b32 s6, {s(sCP)}, 1"); e("s_add_u32 s6, s6, s4"); e(f"s_mul_i32 s6, s6, {PITCH}"); e(f"s_add_u32 s6, s6, {xo}")
    e("v_lshlrev_b32 v10, 4, v0"); e(f"v_add_u32 v61, {U0 + 512}, v10"); e(f"v_add_u32 v62, {X0}, v10")
    e("v_lshlrev_b32 v63, 4, v0")
    l0 = lab("zp")
    e(f"s_cmp_lg_u32 {s(sWAVE)}, 1"); e(f"s_cbranch_scc1 {l0}")
    e("v_lshrrev_b32 v11, 5, v1"); e(f"v_mul_u32_u24 v11, {UP}, v11"); e("v_and_b32 v12, 31, v1"); e("v_lshl_add_u32 v11, v12, 4, v11")
    e(f"v_add_u32 v11, {U0}, v11")
    e("v_mov_b32 v12, 0"); e("v_mov_b32 v13, 0"); e("v_mov_b32 v14, 0"); e("v_mov_b32 v15, 0")
    e("ds_write_b128 v11, v[12:15]")
    A.label(l0)
    XX = 40; F = 64
    if layer == 1:
        e("v_lshlrev_b32 v18, 4, v1")
        e(f"s_lshl_b32 {s(sW)}, {s(sJ)}, 2"); e(f"s_add_u32 {s(sW)}, {s(sW)}, {s(sWAVE)}")
        e(f"s_mul_i32 {s(sW)}, {s(sW)}, 49152"); e(f"s_add_u32 {s(sW)}, {s(sW)}, {WFG}")
    else:
        e(f"s_lshl_b32 s7, {s(sCP)}, 7"); e(f"s_add_u32 s7, s7, {X2T}")
        e("v_lshrrev_b32 v19, 2, v0"); e(f"v_mul_u32_u24 v19, {ROP}, v19"); e("v_and_b32 v10, 3, v0"); e("v_lshl_add_u32 v19, v10, 4, v19")

def conv(layer):
    XX = 40; SB = 24; F = 64; UU = 48
    if layer == 2:
        e(f"s_mov_b32 {s(sT)}, {S3}")
        e("v_lshlrev_b32 v10, 4, v0")
        e(f"buffer_load_dwordx4 {v(XX,4)}, v19, {s(sSRD,4)}, s7 offen sc1")
        e(f"buffer_load_dwordx4 {v(XX+4,4)}, v19, {s(sSRD,4)}, s7 offen offset:64 sc1")
        for i in range(4):
            e(f"s_add_u32 {s(sT+2)}, {s(sT)}, {4096*i}")
            e(f"buffer_load_dwordx4 {v(SB+4*i,4)}, v10, {s(sSRD,4)}, {s(sT+2)} offen sc1")
        e("s_waitcnt vmcnt(4)")
        for i in range(8):
            j, hi = i >> 1, i & 1
            for c in range(2):
                if hi: e(f"v_and_b32 {v(F+2*i+c)}, {s(sHI)}, {v(XX+4*c+j)}")
                else: e(f"v_lshlrev_b32 {v(F+2*i+c)}, 16, {v(XX+4*c+j)}")
        e(f"ds_write_b128 v62, {v(XX,4)}"); e(f"ds_write_b128 v62, {v(XX+4,4)} offset:4096")
        e("s_waitcnt vmcnt(0)")
    else:
        b1_issue()
        for i in range(8):
            e(f"v_and_b32 {v(SB+2*i+1)}, {s(sHI)}, {v(SB+2*i)}"); e(f"v_lshlrev_b32 {v(SB+2*i)}, 16, {v(SB+2*i)}")
        for i in range(8): e(f"v_rcp_f32 {v(SB+2*i+1)}, {v(SB+2*i+1)}")
        e("s_waitcnt vmcnt(1)")
        for i in range(8):
            j, hi = i >> 1, i & 1
            for c in range(2):
                if hi: e(f"v_and_b32 {v(F+2*i+c)}, {s(sHI)}, {v(XX+4*c+j)}")
                else: e(f"v_lshlrev_b32 {v(F+2*i+c)}, 16, {v(XX+4*c+j)}")
        e(f"ds_write_b128 v62, {v(XX,4)}"); e(f"ds_write_b128 v62, {v(XX+4,4)} offset:4096")
    stamp(f"c{layer}_ld")
    if layer == 2:
        T = 80
        for k in range(4):
            b = SB + 4*k; t = T + 4*k
            e(f"v_pk_mul_f32 {v(b,2)}, {v(b,2)}, {s(sINV512,2)}"); e(f"v_pk_mul_f32 {v(b+2,2)}, {v(b+2,2)}, {s(sINV512,2)}")
        for k in range(4):
            b = SB + 4*k
            e(f"v_fma_f32 {v(b+1)}, -{v(b)}, {v(b)}, {v(b+1)}"); e(f"v_fma_f32 {v(b+3)}, -{v(b+2)}, {v(b+2)}, {v(b+3)}")
        for k in range(4):
            b = SB + 4*k
            e(f"v_max_f32 {v(b+1)}, 0, {v(b+1)}"); e(f"v_max_f32 {v(b+3)}, 0, {v(b+3)}")
        for i in range(8):
            b = SB + 2*i
            e(f"v_cvt_pk_bf16_f32 {v(T+i)}, {v(b)}, {v(b+1)}")
        for i in range(8):
            b = SB + 2*i
            e(f"v_lshlrev_b32 {v(b)}, 16, {v(T+i)}"); e(f"v_and_b32 {v(b+1)}, {s(sHI)}, {v(T+i)}")
        for i in range(8): e(f"v_add_f32 {v(SB+2*i+1)}, 0x3727c5ac, {v(SB+2*i+1)}")
        for k in range(4): e(f"v_cvt_pk_bf16_f32 {v(T+k)}, {v(SB+4*k+1)}, {v(SB+4*k+3)}")
        for k in range(4):
            e(f"v_lshlrev_b32 {v(SB+4*k+1)}, 16, {v(T+k)}"); e(f"v_and_b32 {v(SB+4*k+3)}, {s(sHI)}, {v(T+k)}")
        for i in range(8): e(f"v_sqrt_f32 {v(SB+2*i+1)}, {v(SB+2*i+1)}")
        for k in range(4): e(f"v_cvt_pk_bf16_f32 {v(T+k)}, {v(SB+4*k+1)}, {v(SB+4*k+3)}")
        for k in range(4):
            e(f"v_lshlrev_b32 {v(SB+4*k+1)}, 16, {v(T+k)}"); e(f"v_and_b32 {v(SB+4*k+3)}, {s(sHI)}, {v(T+k)}")
        for i in range(8): e(f"v_rcp_f32 {v(SB+2*i+1)}, {v(SB+2*i+1)}")
    for i in range(8):
        e(f"v_pk_add_f32 {v(F+2*i,2)}, {v(F+2*i,2)}, {v(SB+2*i,2)} op_sel_hi:[1,0] neg_lo:[0,1] neg_hi:[0,1]")
    for i in range(8): e(f"v_cvt_pk_bf16_f32 {v(80+i)}, {v(F+2*i)}, {v(F+2*i+1)}")
    for i in range(8):
        e(f"v_lshlrev_b32 {v(F+2*i)}, 16, {v(80+i)}"); e(f"v_and_b32 {v(F+2*i+1)}, {s(sHI)}, {v(80+i)}")
    for i in range(8):
        e(f"v_pk_mul_f32 {v(F+2*i,2)}, {v(F+2*i,2)}, {v(SB+2*i,2)} op_sel:[0,1] op_sel_hi:[1,1]")
    for c in range(2):
        for j in range(4): e(f"v_cvt_pk_bf16_f32 {v(UU+4*c+j)}, {v(F+4*j+c)}, {v(F+4*j+2+c)}")
        e(f"ds_write_b128 v61, {v(UU+4*c,4)} offset:{UP*c}")
    trick = gw_loads() if layer == 1 else []
    e("s_waitcnt lgkmcnt(0)"); e("s_barrier")
    if layer == 1: b1_check()
    stamp(f"c{layer}_pro")
    vA, vB = 16, 17
    ACC = 24; SET = [64, 128]
    def loads(tp, st):
        out = []
        for q in range(8): out.append(f"ds_read_b128 {v(SET[st]+4*q,4)}, {v(vA)} offset:{64*(3 - tp) + 512*(7 - q)}")
        for tau in range(8): out.append(f"ds_read_b128 {v(SET[st]+32+4*tau,4)}, {v(vB)} offset:{512*tau + 64*(3 - tp)}")
        order = [8, 0, 9, 1, 10, 2, 11, 3, 12, 4, 13, 5, 14, 6, 15, 7]
        return [out[i] for i in order]
    for l in loads(0, 0): e(l)
    ti = 0; nm = 0
    TRK = int(OPTS.get("trk", 4))
    e(f"s_mov_b32 {s(sT+4)}, {s(sDSKV)}"); e(f"s_mov_b32 {s(sT+5)}, {s(sDSKV)}")
    side = []
    for k in range(4):
        side.append(f"ds_read_b64 {v(64+2*k,2)}, v57 offset:{512*k}"); side.append(f"ds_read_b64 {v(72+2*k,2)}, v58 offset:{512*k}")
    side2 = ["s_waitcnt lgkmcnt(0)"]
    for k in range(4):
        for j in range(2):
            side2 += [f"v_lshlrev_b32 {v(96+4*k+2*j)}, 16, {v(64+2*k+j)}", f"v_and_b32 {v(97+4*k+2*j)}, {s(sHI)}, {v(64+2*k+j)}",
                      f"v_lshlrev_b32 {v(112+4*k+2*j)}, 16, {v(72+2*k+j)}", f"v_and_b32 {v(113+4*k+2*j)}, {s(sHI)}, {v(72+2*k+j)}"]
    for k in range(8): side2.append(f"v_pk_fma_f32 {v(96+2*k,2)}, {v(96+2*k,2)}, {s(sT+4,2)}, {v(112+2*k,2)}")
    fills = fill_groups(2, 61, 62) if layer == 2 else []
    hold = [0]
    for tp in range(4):
        st = tp & 1
        nxt = loads(tp + 1, st ^ 1) if tp < 3 else []
        n = 0; nb = 0
        for T in range(8):
            if tp == 0: e(f"s_waitcnt lgkmcnt({min(15, 16 - (2*T+2) + min(n, len(nxt)))})")
            elif T == 0: e("s_waitcnt lgkmcnt(0)")
            for q in range(T + 1):
                c_ = "0" if (tp == 0 and q == 0) else v(ACC+4*T, 4)
                e(f"v_mfma_f32_16x16x32_bf16 {v(ACC+4*T,4)}, {v(SET[st]+4*q,4)}, {v(SET[st]+32+4*(T-q),4)}, {c_}")
                nm += 1; nb += 1
                if not (tp == 0 and T < 3) and n < len(nxt):
                    e(nxt[n]); n += 1
                if tp == 3:
                    if nb <= 8: e(side.pop(0))
                    elif nb > 12:
                        for _ in range(2):
                            if side2: e(side2.pop(0))
                if ti < len(trick) and nm % TRK == 0:
                    for l in trick[ti]: e(l)
                    ti += 1
                elif fills and tp < 3 and nb > 4:
                    if hold[0] > 0: hold[0] -= 1
                    else:
                        g = fills.pop(0); emit_group(g)
                        if any("buffer_store" in l for l in g): hold[0] = 12
        while n < len(nxt): e(nxt[n]); n += 1
    assert not fills
    while side2: e(side2.pop(0))
    stamp(f"c{layer}_mm")
    lp1 = lab("p1"); lj = lab("pj")
    e("s_cmp_eq_u32 s5, 1"); e(f"s_cbranch_scc1 {lp1}")
    e("s_nop 3")
    for k in range(4): e(f"ds_write_b128 v59, {v(ACC+16+4*k,4)} offset:{1024*k}")
    e(f"s_branch {lj}")
    A.label(lp1)
    for k in range(4): e(f"ds_write_b128 v59, {v(ACC+4*k,4)} offset:{1024*k}")
    e("s_nop 3")
    for k in range(8): e(f"v_mov_b64 {v(ACC+2*k,2)}, {v(ACC+16+2*k,2)}")
    A.label(lj)
    for k in range(8):
        e(f"v_pk_add_f32 {v(96+2*k,2)}, {v(96+2*k,2)}, {v(ACC+2*k,2)}")
    e("s_waitcnt lgkmcnt(0)"); e("s_barrier")
    for k in range(4): e(f"ds_read_b128 {v(80+4*k,4)}, v60 offset:{1024*k}")
    for k in range(4):
        e(f"s_waitcnt lgkmcnt({3-k})")
        e(f"v_pk_add_f32 {v(96+4*k,2)}, {v(96+4*k,2)}, {v(80+4*k,2)}"); e(f"v_pk_add_f32 {v(98+4*k,2)}, {v(98+4*k,2)}, {v(82+4*k,2)}")
        e(f"v_cvt_pk_bf16_f32 {v(64+2*k)}, {v(96+4*k)}, {v(97+4*k)}"); e(f"v_cvt_pk_bf16_f32 {v(65+2*k)}, {v(98+4*k)}, {v(99+4*k)}")
        e(f"buffer_store_dwordx2 {v(64+2*k,2)}, v56, {s(sSRD,4)}, s6 offen offset:{512*k} sc1")
    return trick[ti:]

NCSK, NCSV, NCSQ = 2, 4, 6
XRES = 184
def ones_regs(r):
    for i in range(4): e(f"v_mov_b32 {v(r+i)}, 0x3f803f80")
def colsums():
    ON = 152
    for ks in range(16):
        c0 = lambda r: "0" if ks == 0 else v(r, 4)
        e(f"v_mfma_f32_16x16x32_bf16 v[28:31], {v(ON,4)}, {a((0*16+ks)*4,4)}, {c0(28)}")
        e(f"v_mfma_f32_16x16x32_bf16 v[32:35], {v(ON,4)}, {a((1*16+ks)*4,4)}, {c0(32)}")
        e(f"v_mfma_f32_16x16x32_bf16 v[36:39], {a((2*16+ks)*4,4)}, {v(ON,4)}, {c0(36)}")
    e(f"v_sub_f32 {v(NCSK)}, 0, v28"); e(f"v_sub_f32 {v(NCSK+1)}, 0, v28")
    e(f"v_sub_f32 {v(NCSV)}, 0, v32"); e(f"v_sub_f32 {v(NCSV+1)}, 0, v32")
    for i in range(4): e(f"v_sub_f32 {v(NCSQ+i)}, 0, {v(36+i)}")

TA = 12
gXE, gXO, gSW, gS4, gQA, gPQ, gKV = 156, 157, 158, 160, 164, 168, 169
def g_setup(layer):
    xt = XT1 if layer == 1 else XT3
    e("v_lshrrev_b32 v10, 3, v1"); e(f"v_mul_u32_u24 v10, {PITCH}, v10")
    e("v_bfe_u32 v11, v1, 4, 2"); e("v_lshlrev_b32 v11, 1, v11"); e("v_and_b32 v16, 7, v1"); e("v_xor_b32 v11, v11, v16")
    e("v_lshl_add_u32 v10, v11, 4, v10")
    e(f"s_lshl_b32 {s(sT)}, {s(sRS)}, 7"); e(f"v_add_u32 v19, {s(sT)}, v10")
    e(f"s_mul_i32 s4, {s(sWAVE)}, {32*PITCH}"); e(f"s_add_u32 s4, s4, {xt}")
    e(f"s_lshl_b32 s5, {s(sWAVE)}, 12"); e(f"s_add_u32 s5, s5, {AT}")
    e("v_lshrrev_b32 v10, 2, v1"); e("v_lshlrev_b32 v10, 7, v10"); e("v_and_b32 v11, 3, v1"); e("v_lshl_add_u32 v10, v11, 3, v10")
    e(f"v_add_u32 v10, {AT}, v10"); e("v_bfe_u32 v11, v1, 3, 2")
    for j in range(4):
        e(f"s_add_u32 {s(sT)}, {s(sWAVE)}, {j}"); e(f"s_and_b32 {s(sT)}, {s(sT)}, 3"); e(f"s_lshl_b32 {s(sM+j)}, {s(sT)}, 6")
        e(f"v_xor_b32 v16, {s(sT)}, v11"); e(f"v_lshl_add_u32 {v(TA+j)}, v16, 5, v10")
    ones_regs(152)
    e("v_lshrrev_b32 v11, 5, v1"); e("v_lshlrev_b32 v11, 4, v11"); e("v_bfe_u32 v16, v1, 2, 2"); e("v_add_u32 v11, v11, v16")
    e(f"s_lshl_b32 {s(sT)}, {s(sJO)}, 7"); e(f"s_lshl_b32 {s(sT+1)}, {s(sWAVE)}, 5"); e(f"s_add_u32 {s(sT)}, {s(sT)}, {s(sT+1)}")
    e(f"v_add_u32 v11, {s(sT)}, v11"); e("v_lshlrev_b32 v11, 7, v11")
    e("v_and_b32 v16, 3, v1"); e("v_lshl_add_u32 v11, v16, 3, v11"); e(f"v_add_u32 v11, {AT}, v11")
    e(f"s_and_b32 {s(sT)}, {s(sJ)}, 1"); e(f"s_lshl_b32 {s(sT)}, {s(sT)}, 1")
    e("v_bfe_u32 v16, v1, 4, 1"); e(f"v_add_u32 v16, {s(sT)}, v16"); e("v_bfe_u32 v17, v1, 3, 1"); e("v_xor_b32 v16, v16, v17")
    e(f"v_lshl_add_u32 {v(gXE)}, v16, 5, v11"); e("v_xor_b32 v16, 2, v16"); e(f"v_lshl_add_u32 {v(gXO)}, v16, 5, v11")
    e("v_and_b32 v10, 15, v1"); e("v_lshlrev_b32 v10, 2, v10"); e(f"v_add_u32 v11, {ST}, v10")
    e(f"s_lshl_b32 {s(sT)}, {s(sWAVE)}, 6"); e(f"v_add_u32 {v(gSW)}, {s(sT)}, v11")
    e("v_lshrrev_b32 v10, 4, v1"); e("v_lshlrev_b32 v10, 4, v10"); e(f"v_add_u32 v10, {ST}, v10")
    for j in range(4):
        e(f"v_add_u32 {v(gS4+j)}, {s(sM+j)}, v10"); e(f"v_add_u32 {v(gQA+j)}, {s(sM+j)}, v11")
    e("v_and_b32 v10, 15, v1"); e("v_lshlrev_b32 v10, 4, v10"); e("v_bfe_u32 v11, v1, 4, 1"); e("v_lshl_add_u32 v10, v11, 3, v10")
    e("v_lshrrev_b32 v11, 5, v1"); e(f"v_lshl_add_u32 {v(gPQ)}, v11, 10, v10")
    e("v_lshrrev_b32 v10, 4, v1"); e("v_lshlrev_b32 v10, 8, v10"); e("v_and_b32 v11, 15, v1"); e(f"v_lshl_add_u32 {v(gKV)}, v11, 2, v10")
    e(f"v_lshlrev_b32 v183, 2, v1")
    kvp_addr(KVP1 if layer == 1 else KVP2, 6)
    pq_addr(PQ1 if layer == 1 else PQ2, 7)
    e(f"s_lshl_b32 {s(sT)}, {s(sJ)}, 5"); e(f"s_mul_i32 {s(sT)}, {s(sT)}, {KVW}")
    e(f"s_lshr_b32 {s(sT+1)}, {s(sRS)}, 3"); e(f"s_mul_i32 {s(sT+1)}, {s(sT+1)}, {KVH}"); e(f"s_add_u32 {s(sT)}, {s(sT)}, {s(sT+1)}")
    e(f"s_add_u32 s3, {s(sT)}, {KVP1 if layer == 1 else KVP2}")
    e(f"s_and_b32 {s(sT+2)}, {s(sRS)}, 7")
    e(f"s_cmp_eq_u32 {s(sWAVE)}, 2")
    e(f"s_cselect_b32 {s(sT+3)}, 3, 7"); e(f"s_cselect_b32 {s(sT+4)}, 1, 0")
    e(f"s_mov_b32 s42, 0x0f0f0f0f"); e("s_cselect_b32 s42, s42, -1"); e("s_mov_b32 s43, s42")
    e(f"s_lshl_b32 {s(sT+5)}, {s(sT+2)}, 7"); e(f"s_cmp_eq_u32 {s(sWAVE)}, 2"); e(f"s_cselect_b32 {s(sT+5)}, 1024, {s(sT+5)}")
    e(f"s_lshl_b32 {s(sT+6)}, {s(sT+2)}, 6"); e(f"s_cselect_b32 {s(sT+6)}, 512, {s(sT+6)}") if False else None
    e("v_lshrrev_b32 v10, 3, v1"); e(f"v_mul_u32_u24 v10, {KVW}, v10"); e(f"v_and_b32 v11, {s(sT+3)}, v1"); e("v_lshl_add_u32 v11, v11, 4, v10")
    e(f"v_add_u32 v170, {s(sT+5)}, v11")
    e(f"s_lshl_b32 {s(sT+6)}, {s(sT+2)}, 6"); e(f"s_cmp_eq_u32 {s(sWAVE)}, 2"); e(f"s_cselect_b32 {s(sT+6)}, 512, {s(sT+6)}")
    e("v_lshrrev_b32 v10, 3, v1"); e(f"v_mul_u32_u24 v10, {FRP}, v10"); e("v_and_b32 v11, 7, v1"); e("v_lshl_add_u32 v10, v11, 3, v10")
    e(f"v_add_u32 v171, {s(sT+6)}, v10")
    f_addr(F1 if layer == 1 else F2, 40)
    e(f"s_cmp_eq_u32 {s(sT+2)}, 0"); e(f"s_cselect_b32 {s(sT+3)}, 2, 3"); e(f"s_cmp_ge_u32 {s(sWAVE)}, {s(sT+3)}"); e("s_cselect_b32 s41, 1, 0")
    e("v_and_b32 v10, 3, v1")
    e(f"v_cmp_eq_u32 {s(sM+4,2)}, 1, v10"); e(f"v_cmp_eq_u32 {s(sM+6,2)}, 2, v10"); e(f"v_cmp_eq_u32 s[2:3], 3, v10") if False else None
    if layer == 1:
        e("v_lshlrev_b32 v18, 4, v1")
        e(f"s_lshl_b32 {s(sW)}, {s(sJO)}, 2"); e(f"s_add_u32 {s(sW)}, {s(sW)}, {s(sWAVE)}")
        e(f"s_lshl_b32 {s(sW)}, {s(sW)}, 15"); e(f"s_add_u32 {s(sW)}, {s(sW)}, {WFO}")

def gphase(layer):
    kvp = KVP1 if layer == 1 else KVP2
    ff = F1 if layer == 1 else F2
    def dma(c, i):
        return [f"s_add_u32 {s(sT)}, s4, {(128*c + 8*i)*PITCH}", f"s_add_u32 m0, s5, {c*16384 + i*1024}",
                f"buffer_load_dwordx4 v19, {s(sSRD,4)}, {s(sT)} offen sc1 lds"]
    for c in range(4):
        for i in range(4):
            for l in dma(c, i): e(l)
    XF = [64, 80]
    AK, AV, AQ, GR, RS_, ON = 96, 112, 128, 144, 148, 152
    trick = ow_loads() if layer == 1 else []
    def reads(ks, base=None):
        b = XF[ks & 1] if base is None else base
        out = []
        for j in range(4):
            out.append(f"ds_read_b64_tr_b16 {v(b+4*j,2)}, {v(TA+j)} offset:{ks*4096}")
            out.append(f"ds_read_b64_tr_b16 {v(b+4*j+2,2)}, {v(TA+j)} offset:{ks*4096+2048}")
        return out
    stamp(f"g{layer}_iss")
    e("s_waitcnt vmcnt(12)"); e("s_barrier")
    stamp(f"g{layer}_ld0")
    for l in reads(0): e(l)
    st_ = {"ti": 0, "nw": 0, "nm": 0}
    TRG = int(OPTS.get("trg", 5))
    def trickle(ok):
        st_["nm"] += 1
        if ok and st_["ti"] < len(trick) and st_["nm"] % TRG == 0:
            for l in trick[st_["ti"]]: e(l)
            st_["ti"] += 1; st_["nw"] += 1
    for ks in range(16):
        nxt = []
        if ks < 15:
            if (ks + 1) % 4 == 0:
                c = (ks + 1) // 4
                e(f"s_waitcnt vmcnt({min(63, 4*(3-c) + st_['nw'])})"); e("s_barrier")
            nxt = reads(ks + 1)
        x = XF[ks & 1]
        e("s_waitcnt lgkmcnt(0)")
        z = lambda r: "0" if ks == 0 else v(r, 4)
        mf = []
        for j in range(4):
            mf.append(f"v_mfma_f32_16x16x32_bf16 {v(AK+4*j,4)}, {v(x+4*j,4)}, {a((0*16+ks)*4,4)}, {z(AK+4*j)}")
            mf.append(f"v_mfma_f32_16x16x32_bf16 {v(AV+4*j,4)}, {v(x+4*j,4)}, {a((1*16+ks)*4,4)}, {z(AV+4*j)}")
        mf.insert(1, f"v_mfma_f32_16x16x32_bf16 {v(GR,4)}, {v(x,4)}, {v(x,4)}, {z(GR)}")
        mf.insert(3, f"v_mfma_f32_16x16x32_bf16 {v(RS_,4)}, {v(ON,4)}, {v(x,4)}, {z(RS_)}")
        for m_i, m_ in enumerate(mf):
            e(m_)
            if m_i < len(nxt): e(nxt[m_i])
            trickle(ks >= 4)
    stamp(f"g{layer}_mm")
    for jj in range(4):
        e(f"ds_read_b64_tr_b16 {v(XRES+2*jj,2)}, {v(gXE + (jj & 1))} offset:{512*jj}")
    e("v_and_b32 v10, 3, v1")
    e(f"v_cmp_eq_u32 {s(sM+4,2)}, 1, v10"); e(f"v_cmp_eq_u32 {s(sM+6,2)}, 2, v10"); e("v_cmp_eq_u32 vcc, 3, v10")
    e(f"v_cndmask_b32 v11, {v(GR)}, {v(GR+1)}, {s(sM+4,2)}")
    e(f"v_cndmask_b32 v11, v11, {v(GR+2)}, {s(sM+6,2)}")
    e(f"v_cndmask_b32 v11, v11, {v(GR+3)}, vcc")
    stats_final(RS_, 11, 16, 17, 20)
    e("v_mul_f32 v16, v16, v17")
    e(f"s_mov_b32 {s(sT+2)}, 0x00f0000f"); e(f"s_mov_b32 {s(sT+3)}, 0xf0000f00")
    e(f"s_mov_b64 exec, {s(sT+2,2)}")
    e(f"ds_write_b32 {v(gSW)}, v17"); e(f"ds_write_b32 {v(gSW)}, v16 offset:256")
    e("s_mov_b64 exec, -1")
    R4, M4, RQ, MQ = 24, 40, 56, 176
    e("s_waitcnt lgkmcnt(0)"); e("s_barrier")
    for j in range(4):
        e(f"ds_read_b128 {v(R4+4*j,4)}, {v(gS4+j)}"); e(f"ds_read_b128 {v(M4+4*j,4)}, {v(gS4+j)} offset:256")
    for j in range(4):
        e(f"ds_read_b32 {v(RQ+2*j)}, {v(gQA+j)}"); e(f"ds_read_b32 {v(MQ+2*j)}, {v(gQA+j)} offset:256")
    stamp(f"g{layer}_st")
    PK, VV = 72, 80
    def phi2(items):
        for (rp, acc, mp, ncs, dst, T, bro) in items:
            e(f"v_pk_fma_f32 {v(T,2)}, {v(mp,2)}, {v(ncs,2)}, {s(sEPS6,2)}" + (" op_sel_hi:[0,1,1]" if bro else ""))
        for (rp, acc, mp, ncs, dst, T, bro) in items:
            e(f"v_pk_fma_f32 {v(T,2)}, {v(rp,2)}, {v(acc,2)}, {v(T,2)}" + (" op_sel_hi:[0,1,1]" if bro else ""))
        for (rp, acc, mp, ncs, dst, T, bro) in items: e(f"v_pk_mul_f32 {v(T+2,2)}, {v(T,2)}, {s(sLOG2E,2)}")
        for (rp, acc, mp, ncs, dst, T, bro) in items:
            e(f"v_exp_f32 {v(T+2)}, {v(T+2)} clamp"); e(f"v_exp_f32 {v(T+3)}, {v(T+3)} clamp")
        for (rp, acc, mp, ncs, dst, T, bro) in items:
            e(f"v_max_f32 {v(T)}, {s(sEPS6)}, {v(T)}"); e(f"v_max_f32 {v(T+1)}, {s(sEPS6)}, {v(T+1)}")
        for (rp, acc, mp, ncs, dst, T, bro) in items: e(f"v_pk_add_f32 {v(T,2)}, {v(T,2)}, {v(T+2,2)}")
        for (rp, acc, mp, ncs, dst, T, bro) in items: e(f"v_cvt_pk_bf16_f32 {v(dst)}, {v(T)}, {v(T+1)}")
    for j in range(4):
        e(f"s_waitcnt lgkmcnt({min(15, 8 + 2*(3-j))})")
        items = [(R4+4*j+2*hp, AK+4*j+2*hp, M4+4*j+2*hp, NCSK, PK+2*j+hp, 88 + 4*hp, False) for hp in range(2)]
        for hp in range(2):
            T = 104 + 2*hp if False else 172 + 2*hp
            e(f"v_pk_mul_f32 {v(T,2)}, {v(M4+4*j+2*hp,2)}, {v(NCSV,2)}")
        for hp in range(2):
            T = 172 + 2*hp
            e(f"v_pk_fma_f32 {v(T,2)}, {v(R4+4*j+2*hp,2)}, {v(AV+4*j+2*hp,2)}, {v(T,2)}")
        phi2(items)
        for hp in range(2):
            T = 172 + 2*hp
            e(f"v_cvt_pk_bf16_f32 {v(VV+2*j+hp)}, {v(T)}, {v(T+1)}")
        if j == 1:
            e(f"v_mfma_f32_16x16x32_bf16 {v(GR,4)}, {v(VV,4)}, {v(PK,4)}, 0")
            e(f"v_mfma_f32_16x16x32_bf16 {v(RS_,4)}, {v(ON,4)}, {v(PK,4)}, 0")
    e(f"v_mfma_f32_16x16x32_bf16 {v(GR,4)}, {v(VV+4,4)}, {v(PK+4,4)}, {v(GR,4)}")
    e(f"v_mfma_f32_16x16x32_bf16 {v(RS_,4)}, {v(ON,4)}, {v(PK+4,4)}, {v(RS_,4)}")
    PQR = 96
    e("s_waitcnt lgkmcnt(0)")
    for i in range(4):
        e(f"buffer_store_dword {v(GR+i)}, {v(gKV)}, {s(sSRD,4)}, s6 offen offset:{64*i} sc1")
    e("s_mov_b64 exec, 0xffff")
    e(f"buffer_store_dword {v(RS_)}, v183, {s(sSRD,4)}, s6 offen offset:1024 sc1")
    e("s_mov_b64 exec, -1")
    stamp(f"g{layer}_kv")
    def red_loads():
        for i in range(4):
            e(f"s_add_u32 {s(sT+4)}, s3, {8*i*KVW}")
            e(f"buffer_load_dwordx4 {v(24+4*i,4)}, v170, {s(sSRD,4)}, {s(sT+4)} offen sc1")
    RLK = int(OPTS.get("rlk", 11))
    QS = [64, 80, 112]
    for l in reads(0, QS[0]): e(l)
    for l in reads(1, QS[1]): e(l)
    for ks in range(16):
        nxt = reads(ks + 2, QS[(ks + 2) % 3]) if ks < 14 else []
        x = QS[ks % 3]
        e(f"s_waitcnt lgkmcnt({8 if ks < 15 else 0})")
        z = lambda r: "0" if ks == 0 else v(r, 4)
        if ks == RLK:
            lsk = lab("rl")
            e("s_cmp_eq_u32 s41, 0"); e(f"s_cbranch_scc1 {lsk}")
            red_loads()
            A.label(lsk)
        for j in range(4):
            e(f"v_mfma_f32_16x16x32_bf16 {v(AQ+4*j,4)}, {a((2*16+ks)*4,4)}, {v(x+4*j,4)}, {z(AQ+4*j)}")
            for l in nxt[2*j:2*j+2]: e(l)
            if j % 2 == 0 and st_["ti"] < len(trick):
                for l in trick[st_["ti"]]: e(l)
                st_["ti"] += 1
    stamp(f"g{layer}_q")
    for j in range(0, 4, 2):
        phi2([(RQ+2*(j+jj), AQ+4*(j+jj)+2*hp, MQ+2*(j+jj), NCSQ+2*hp, PQR+2*(j+jj)+hp, 64 + 8*jj + 4*hp, True) for jj in range(2) for hp in range(2)])
    for j in range(4):
        e(f"s_lshl_b32 {s(sT+2)}, {s(sM+j)}, 2"); e(f"s_add_u32 {s(sT+2)}, {s(sT+2)}, s7")
        e(f"buffer_store_dwordx2 {v(PQR+2*j,2)}, {v(gPQ)}, {s(sSRD,4)}, {s(sT+2)} offen sc1")
    for ins in trick[st_["ti"]:]:
        for l in ins: e(l)
    lred = lab("red")
    e("s_cmp_eq_u32 s41, 0"); e(f"s_cbranch_scc1 {lred}")
    lr = lab("rp"); lg = lab("rg"); l0 = lab("r0")
    e(f"s_waitcnt vmcnt({4 + len(trick[st_['ti']:])})")
    e(f"s_branch {l0}")
    A.label(lr)
    red_loads()
    e("s_waitcnt vmcnt(0)")
    A.label(l0)
    maxtree([24, 28, 32, 36], 56)
    e("v_cmp_eq_u32 vcc, -1, v56")
    spin_check(lr, lg)
    stamp(f"r{layer}_ok")
    e("v_pk_add_f32 v[24:25], v[24:25], v[28:29]"); e("v_pk_add_f32 v[26:27], v[26:27], v[30:31]")
    e("v_pk_add_f32 v[32:33], v[32:33], v[36:37]"); e("v_pk_add_f32 v[34:35], v[34:35], v[38:39]")
    e("v_pk_add_f32 v[24:25], v[24:25], v[32:33]"); e("v_pk_add_f32 v[26:27], v[26:27], v[34:35]")
    regs = [24, 25, 26, 27]
    for r in regs: e(f"v_add_f32_dpp {v(r)}, {v(r)}, {v(r)} row_ror:8 row_mask:0xf bank_mask:0xf")
    for r in regs: e(f"v_mov_b32 {v(r+4)}, {v(r)}")
    for r in regs: e(f"v_permlane16_swap_b32 {v(r)}, {v(r+4)}")
    for r in regs: e(f"v_add_f32 {v(r)}, {v(r)}, {v(r+4)}")
    for r in regs: e(f"v_mov_b32 {v(r+4)}, {v(r)}")
    for r in regs: e(f"v_permlane32_swap_b32 {v(r)}, {v(r+4)}")
    for r in regs: e(f"v_add_f32 {v(r)}, {v(r)}, {v(r+4)}")
    e("v_cvt_pk_bf16_f32 v28, v24, v25"); e("v_cvt_pk_bf16_f32 v29, v26, v27")
    e("s_mov_b64 exec, s[42:43]")
    e(f"buffer_store_dwordx2 v[28:29], v171, {s(sSRD,4)}, s40 offen sc1")
    e("s_mov_b64 exec, -1")
    A.label(lred)

def ophase(layer):
    pq = PQ1 if layer == 1 else PQ2
    ff = F1 if layer == 1 else F2
    KF, PQF = 24, 56
    e("v_and_b32 v10, 31, v1"); e("v_min_u32 v10, 16, v10")
    e("v_lshlrev_b32 v10, 5, v10"); e("v_lshrrev_b32 v11, 5, v1"); e("v_lshl_add_u32 v10, v11, 4, v10")
    e(f"s_lshl_b32 {s(sT)}, {s(sWAVE)}, 3"); e(f"s_mul_i32 s4, {s(sT)}, {FP}"); e(f"s_add_u32 s4, s4, {ff}")
    e(f"s_mul_i32 {s(sT+1)}, {s(sXCD)}, {FRP}"); e(f"s_add_u32 s4, s4, {s(sT+1)}")
    e("v_and_b32 v11, 31, v1"); e("v_lshlrev_b32 v11, 4, v11"); e("v_lshrrev_b32 v12, 5, v1"); e("v_lshl_add_u32 v11, v12, 10, v11")
    e(f"s_mul_i32 s5, {s(sT)}, {HP}"); e(f"s_add_u32 s5, s5, {pq}")
    e(f"s_lshl_b32 {s(sT+3)}, {s(sRS)}, 11"); e(f"s_add_u32 s5, s5, {s(sT+3)}")
    e(f"s_and_b32 {s(sT+3)}, {s(sRO)}, 1"); e(f"s_lshl_b32 {s(sT+3)}, {s(sT+3)}, 9"); e(f"s_add_u32 s5, s5, {s(sT+3)}")
    e(f"s_mul_i32 s3, {s(sWAVE)}, 5120"); e(f"s_add_u32 s3, s3, {AT + 32768}")
    e("v_add_u32 v10, s3, v10"); e("v_lshlrev_b32 v19, 4, v1")
    e(f"s_lshl_b32 {s(sT)}, {s(sWAVE)}, 13"); e(f"s_add_u32 {s(sT)}, {s(sT)}, {OT}")
    e(f"v_lshl_add_u32 v12, v1, 4, {s(sT)}")
    e(f"v_lshlrev_b32 v13, 4, v1"); e(f"v_add_u32 v13, {OT}, v13")
    if layer == 1:
        e("v_and_b32 v14, 31, v1"); e(f"v_mul_u32_u24 v14, {TBP}, v14"); e("v_lshrrev_b32 v15, 5, v1"); e("v_lshl_add_u32 v14, v15, 5, v14")
        e(f"s_mul_i32 {s(sT+4)}, {s(sWAVE)}, {32*TBP}"); e(f"s_add_u32 {s(sT+4)}, {s(sT+4)}, {TB}"); e(f"v_add_u32 v14, {s(sT+4)}, v14")
        e("v_lshrrev_b32 v15, 4, v1"); e("v_lshlrev_b32 v15, 3, v15"); e("v_bfe_u32 v16, v1, 2, 2"); e("v_add_u32 v15, v15, v16")
        e(f"v_mul_u32_u24 v15, {TBP}, v15"); e("v_and_b32 v16, 3, v1"); e("v_lshl_add_u32 v15, v16, 3, v15"); e(f"v_add_u32 v15, {s(sT+4)}, v15")
        e("v_and_b32 v16, 15, v1"); e(f"v_lshlrev_b32 v16, 6, v16"); e("v_lshrrev_b32 v17, 4, v1"); e("v_lshl_add_u32 v16, v17, 4, v16")
        e(f"s_lshl_b32 s6, {s(sJO)}, 7"); e(f"s_lshl_b32 {s(sT+1)}, {s(sWAVE)}, 5"); e(f"s_add_u32 s6, s6, {s(sT+1)}")
        e(f"s_lshl_b32 s6, s6, 6"); e(f"s_mul_i32 {s(sT+1)}, {s(sRO)}, {ROP}"); e(f"s_add_u32 s6, s6, {s(sT+1)}")
        e(f"s_add_u32 s6, s6, {X2T}")
        e("v_bfe_u32 v17, v1, 1, 2"); e("v_lshlrev_b32 v17, 12, v17"); e("v_bfe_u32 v18, v1, 3, 2"); e("v_lshl_add_u32 v17, v18, 4, v17")
        e("v_and_b32 v18, 1, v1"); e("v_lshl_add_u32 v17, v18, 3, v17"); e("v_lshrrev_b32 v18, 5, v1"); e("v_lshl_add_u32 v17, v18, 2, v17")
        e(f"s_lshl_b32 s7, {s(sRO)}, 6"); e(f"s_add_u32 s7, s7, {S3}")
    else:
        e("v_and_b32 v14, 31, v1"); e("v_lshlrev_b32 v14, 10, v14"); e("v_lshrrev_b32 v15, 5, v1"); e("v_lshl_add_u32 v14, v15, 5, v14")
        e(f"s_lshl_b32 {s(sT)}, {s(sRO)}, 15"); e(f"s_lshl_b32 {s(sT+1)}, {s(sJO)}, 8"); e(f"s_add_u32 {s(sT)}, {s(sT)}, {s(sT+1)}")
        e(f"s_lshl_b32 {s(sT+1)}, {s(sWAVE)}, 6"); e(f"s_add_u32 {s(sT)}, {s(sT)}, {s(sT+1)}")
        e(f"v_add_u32 v14, {s(sT)}, v14")
    XF = 104
    def pq_loads():
        for h in range(8):
            e(f"s_add_u32 {s(sT+3)}, s5, {h*HP}")
            e(f"buffer_load_dwordx4 {v(PQF+4*h,4)}, v11, {s(sSRD,4)}, {s(sT+3)} offen sc1")
    e("s_barrier")
    stamp(f"o{layer}_gate")
    if STAMPS and f"o{layer}_cnt" in STSET: e("s_mov_b32 s101, 0")
    if STAMPS and f"o{layer}_st0" in STSET:
        e("s_waitcnt vmcnt(0)"); stamp(f"o{layer}_st0")
    pq_loads()
    if STAMPS and f"o{layer}_pq" in STSET:
        stamp(f"o{layer}_pqi"); e("s_waitcnt vmcnt(0)"); stamp(f"o{layer}_pq")
    if int(OPTS.get("osl", 0)): e(f"s_sleep {OPTS.get('osl')}")
    lr = lab("of"); lg = lab("ofk")
    A.label(lr)
    for i in range(5):
        e(f"s_add_u32 {s(sT+3)}, s4, {1024*i}"); e(f"s_add_u32 m0, s3, {1024*i}")
        e(f"buffer_load_dwordx4 v19, {s(sSRD,4)}, {s(sT+3)} offen sc1 lds")
    e("s_waitcnt vmcnt(0)")
    for h in range(8): e(f"ds_read_b128 {v(KF+4*h,4)}, v10 offset:{h*FP}")
    e("s_waitcnt lgkmcnt(0)")
    if STAMPS and f"o{layer}_cnt" in STSET: e("s_add_u32 s101, s101, 1")
    maxtree([KF+4*h for h in range(8)], 18)
    e("v_cmp_eq_u32 vcc, -1, v18")
    spin_check(lr, lg)
    stamp(f"o{layer}_fok")
    if STAMPS and f"o{layer}_cnt" in STSET:
        i = len(stnames); stnames.append(f"o{layer}_cnt"); e(f"s_mov_b32 s{84+i}, s101")
    lr = lab("oq"); lg = lab("oqk")
    A.label(lr)
    maxtree([PQF+4*h for h in range(8)], 18)
    e("v_cmp_eq_u32 vcc, -1, v18")
    e(f"s_cbranch_vccz {lg}")
    e(f"s_sub_u32 {s(sSPIN)}, {s(sSPIN)}, 1"); e(f"s_cbranch_scc1 {lg}_x")
    pq_loads()
    e("s_waitcnt vmcnt(0)")
    e(f"s_branch {lr}")
    A.label(lg + "_x"); e(f"s_mov_b32 {s(sSPIN)}, 0")
    A.label(lg)
    stamp(f"o{layer}_ld")
    DB = [88, 104, 120, 136, 152, 168, 24, 56]
    def m1(h): e(f"v_mfma_f32_32x32x16_bf16 {v(DB[h],16)}, {v(KF+4*h,4)}, {v(PQF+4*h,4)}, 0")
    def proc2(h0):
        hs = (h0, h0 + 1)
        for h in hs: e(f"v_add_f32 {v(DB[h]+8)}, {s(sEPS6)}, {v(DB[h]+8)}")
        for h in hs: e(f"v_rcp_f32 {v(DB[h]+8)}, {v(DB[h]+8)}")
        for k in range(4):
            for h in hs: e(f"v_pk_mul_f32 {v(DB[h]+2*k,2)}, {v(DB[h]+2*k,2)}, {v(DB[h]+8,2)} op_sel_hi:[1,0]")
        for h in hs:
            for k in range(4): e(f"v_cvt_pk_bf16_f32 {v(DB[h]+10+k)}, {v(DB[h]+2*k)}, {v(DB[h]+2*k+1)}")
            e(f"ds_write_b128 v12, {v(DB[h]+10,4)} offset:{1024*h}")
    for h in range(6): m1(h)
    proc2(0)
    m1(6); m1(7)
    proc2(2); proc2(4); proc2(6)
    stamp(f"o{layer}_m1")
    e("s_waitcnt lgkmcnt(0)"); e("s_barrier")
    ACC = 24; NB = 8; OF = [56 + 4*i for i in range(NB)]
    for h in range(NB): e(f"ds_read_b128 {v(OF[h],4)}, v13 offset:{1024*h}")
    for k in range(8):
        e(f"v_lshlrev_b32 {v(XF+2*k)}, 16, {v(XRES+k)}"); e(f"v_and_b32 {v(XF+2*k+1)}, {s(sHI)}, {v(XRES+k)}")
    for h in range(32):
        e(f"s_waitcnt lgkmcnt({min(NB-1, 31-h)})")
        w_ = a(192 + 4*h, 4) if h < 16 else v(192 + 4*(h-16), 4)
        c_ = "0" if h == 0 else v(ACC, 16)
        e(f"v_mfma_f32_32x32x16_bf16 {v(ACC,16)}, {w_}, {v(OF[h % NB],4)}, {c_}")
        if h + NB < 32: e(f"ds_read_b128 {v(OF[h % NB],4)}, v13 offset:{1024*(h+NB)}")
    stamp(f"o{layer}_g2")
    for k in range(8): e(f"v_pk_add_f32 {v(XF+2*k,2)}, {v(XF+2*k,2)}, {v(ACC+2*k,2)}")
    PKD = 120
    for k in range(8): e(f"v_cvt_pk_bf16_f32 {v(PKD+k)}, {v(XF+2*k)}, {v(XF+2*k+1)}")
    if layer == 2:
        fl = OPTS.get("outfl", "").replace("_", " ")
        e(f"global_store_dwordx4 v14, {v(PKD,4)}, {s(sOUT,2)} {fl}")
        e(f"global_store_dwordx4 v14, {v(PKD+4,4)}, {s(sOUT,2)} offset:16 {fl}")
        return
    e(f"ds_write_b128 v14, {v(PKD,4)}"); e(f"ds_write_b128 v14, {v(PKD+4,4)} offset:16")
    e(f"v_pk_add_f32 v[64:65], {v(XF,2)}, {v(XF+2,2)}"); e(f"v_pk_mul_f32 v[66:67], {v(XF,2)}, {v(XF,2)}")
    e(f"v_pk_add_f32 v[68:69], {v(XF+4,2)}, {v(XF+6,2)}"); e(f"v_pk_mul_f32 v[70:71], {v(XF+2,2)}, {v(XF+2,2)}")
    for k in range(2, 8):
        e(f"v_pk_fma_f32 {v(66+4*(k&1),2)}, {v(XF+2*k,2)}, {v(XF+2*k,2)}, {v(66+4*(k&1),2)}")
        if k >= 4: e(f"v_pk_add_f32 {v(64+4*(k&1),2)}, {v(64+4*(k&1),2)}, {v(XF+2*k,2)}")
    e("s_waitcnt lgkmcnt(0)")
    for k in range(2):
        e(f"ds_read_b64_tr_b16 {v(80+4*k,2)}, v15 offset:{32*k}")
        e(f"ds_read_b64_tr_b16 {v(82+4*k,2)}, v15 offset:{32*k + 4*TBP}")
    e("v_pk_add_f32 v[64:65], v[64:65], v[68:69]"); e("v_pk_add_f32 v[66:67], v[66:67], v[70:71]")
    e("v_add_f32 v64, v64, v65"); e("v_add_f32 v65, v66, v67")
    e("v_permlane32_swap_b32 v64, v65")
    e("v_add_f32 v64, v64, v65")
    e(f"s_lshl_b32 {s(sT)}, {s(sWAVE)}, 8"); e(f"s_add_u32 {s(sT)}, {s(sT)}, {ST}"); e(f"v_lshl_add_u32 v66, v1, 2, {s(sT)}")
    e("ds_write_b32 v66, v64")
    e("s_waitcnt lgkmcnt(1)")
    if OPTS.get("nox2") != "1":
        e(f"buffer_store_dwordx4 v[80:83], v16, {s(sSRD,4)}, s6 offen sc1")
        e(f"buffer_store_dwordx4 v[84:87], v16, {s(sSRD,4)}, s6 offen offset:1024 sc1")
    e("s_waitcnt lgkmcnt(0)"); e("s_barrier")
    l = lab("oat")
    e(f"s_cmp_lg_u32 {s(sWAVE)}, 0"); e(f"s_cbranch_scc1 {l}")
    e(f"v_lshlrev_b32 v66, 2, v1"); e(f"v_add_u32 v66, {ST}, v66")
    for k in range(4): e(f"ds_read_b32 {v(68+k)}, v66 offset:{256*k}")
    e("s_waitcnt lgkmcnt(0)")
    e("v_add_f32 v68, v68, v69"); e("v_add_f32 v70, v70, v71"); e("v_add_f32 v68, v68, v70")
    if OPTS.get("noat") != "1": e(f"buffer_atomic_add_f32 v68, v17, {s(sSRD,4)}, s7 offen")
    A.label(l)

def build():
    prologue()
    stamp("start")
    idx_loads()
    p0_fills()
    stamp("p_iss")
    e("s_waitcnt vmcnt(8)")
    stamp("p_ld")
    p0_x0_write()
    p0_stats()
    e("s_waitcnt vmcnt(6) lgkmcnt(0)"); e("s_barrier")
    p0_x0_store()
    nonce_issue()
    p0_wfrag()
    kgen_setup()
    stamp("p_st")
    kgen_round(["X1", "X2", "Y1"], 0); kgen_round(["Y2"], 0)
    kgen_round(["X1", "X2", "Y1"], 1); kgen_round(["Y2"], 1)
    nonce_get()
    arrive(0)
    p0_stats_store()
    stamp("arr1")
    fg = fill_groups(1, 58, 59)
    def upto_store():
        while fg:
            g = fg.pop(0); emit_group(g)
            if any("buffer_store" in l for l in g): return
    upto_store()
    kgen_round(["X1", "X2"], 2); upto_store(); kgen_round(["X1", "X2"], 3); upto_store()
    stamp("k_tab")
    kgen_mm([], upto_store)
    while fg: upto_store()
    e("s_waitcnt lgkmcnt(0)"); e("s_barrier")
    stamp("kgen")
    if stop_here("K"): return
    conv_setup(1)
    stamp("B1")
    rest = conv(1)
    arrive(1)
    stamp("C1")
    if stop_here("C1"): return
    for ins in rest:
        for l in ins: e(l)
    g_setup(1)
    e("s_waitcnt vmcnt(0)")
    colsums()
    wait(1)
    stamp("B2")
    gphase(1)
    stamp("G1")
    if stop_here("G1"): return
    ophase(1)
    stamp("o1_end")
    arrive(2)
    stamp("O1")
    if stop_here("O1"): return
    conv_setup(2)
    stamp("c2_set")
    wait(2)
    stamp("B4")
    conv(2)
    arrive(3)
    stamp("C2")
    if stop_here("C2"): return
    g_setup(2)
    wait(3)
    stamp("B5")
    gphase(2)
    stamp("G2")
    if stop_here("G2"): return
    ophase(2)
    if STAMPS:
        e("s_waitcnt vmcnt(0)")
        stamp("O2")
        stamps_out()

build()
A.label("L_end")
e("s_endpgm")

def rb_int(j):
    u = struct.unpack("<I", struct.pack("<f", float(j)))[0]
    u = (u + 0x7fff + ((u >> 16) & 1)) & 0xffff0000
    return int(struct.unpack("<f", struct.pack("<I", u))[0])
idx = []
for x in range(2064):
    j = 2047 - x
    if j < 0: ent = 1024
    else:
        t = rb_int(j); ent = t if t < 512 else 512 + (t - 512) // 4
    idx.append(2 * ent)

lines, nn = hazard_pass(A.lines)
probs = check_branches(lines)
for p in probs: print("BRANCH HAZARD:", p, file=sys.stderr)
hdr = open("interleave_layers__ssm_conv_s4d__linear_attn_block__prompt.s.ref").read().split("; Override launch")[0]
out = hdr + "; Override launch geometry by editing the next line.\n"
out += f"; @launch grid=(256,1,1) block=(256,1,1) lds={LDS_BYTES}\n"
out += '.amdgcn_target "amdgcn-amd-amdhsa--gfx950"\n.text\n'
out += f".globl {NAME}\n.p2align 8\n.type {NAME},@function\n{NAME}:\n"
out += "\n".join(lines) + "\n"
out += ".p2align 6\n.type L_idx,@object\nL_idx:\n"
for i in range(0, len(idx), 16): out += "  .short " + ", ".join(str(x) for x in idx[i:i+16]) + "\n"
out += "L_tab_end:\n"
out += f""".section .rodata,"a"
.p2align 6
.amdhsa_kernel {NAME}
  .amdhsa_next_free_vgpr 512
  .amdhsa_next_free_sgpr 102
  .amdhsa_accum_offset 256
  .amdhsa_group_segment_fixed_size 0
  .amdhsa_kernarg_size 104
  .amdhsa_user_sgpr_count 2
  .amdhsa_user_sgpr_kernarg_segment_ptr 1
  .amdhsa_system_sgpr_workgroup_id_x 1
  .amdhsa_float_denorm_mode_32 3
.end_amdhsa_kernel
"""
open(sys.argv[1], "w").write(out)
if STAMPS: open(sys.argv[1] + ".names", "w").write(",".join(stnames))
print(f"wrote {sys.argv[1]}: {len(lines)} lines, {nn} nops inserted; WS_USED={WS_USED:#x}", file=sys.stderr)
```

```python
import sys, struct
from asmlib import *

NAME = "interleave_layers__ssm_conv_s4d__linear_attn_block__prompt_kernel"
OPTS = {}
for x in sys.argv[2:]:
    if "=" in x:
        k_, v_ = x.split("="); OPTS[k_] = v_
STOP = OPTS.get("stop")
SPINMAX = int(OPTS.get("spin", 100000))
BK = int(OPTS.get("bk", 2))

PITCH = 4224
S1 = 0x000000
S3 = 0x004000
FP = 640; FRP = 32 * FP + 128; F1 = 0x1200000 - 0x100000; F2 = F1 + 0x40000
STAMP_OFF = 0x020000
X0P = 8192 + 128
CNT = 0x030000
KVP1 = 0x040000; KVH = 1152; KVW = 4 * KVH; KVP2 = KVP1 + 0x128000
WFG = 0x2A0000; WFO = WFG + 0x180000
XSZ = 0x220000
XT1 = 0x4A0000; XT3 = XT1 + XSZ; X2T = XT3 + XSZ
ROP = 32768 + 256
HP = 65536 + 256
PQ1 = X2T + XSZ; PQ2 = PQ1 + 0x210000
X0T = 0x1200000
WS_USED = 0x1200000 + 0x210000
assert PQ2 + 0x210000 <= F1
KC = 0; KCC = 4160; KCH = 4 * KCC
AT = 66560
MISC = AT + 65536
ST = MISC
WST = MISC + 2048
CT = WST + 8192; CTP = 2080
TB = WST; TBP = 80
LDS_BYTES = 163840
X0S = 147456
TKP = 224; TABC = 256 * TKP
U0 = AT; UP = 4608; X0 = AT + 2 * UP; RED = X0 + 8192
OT = AT

sU, sLOGA, sAIM, sCR, sCI, sLDT, sDSK = 8, 10, 12, 14, 16, 18, 20
sWQKV, sWO, sOUT, sDBG, sWS = 24, 26, 28, 30, 32
sSRD = 36; sSRD2 = 40
sWAVE, sXCD, sIDX, sCP, sRS, sJ, sRO, sJO = 44, 45, 46, 47, 48, 49, 50, 51
sSPIN = 52; sDSKV = 53
sT = 54
sLOG2E = 64; sEPS6 = 66; sM = 68; sHI = 76; sPC = 78; sINV512 = 80
sW = 34
sNON = 35

def f2u(f): return struct.unpack("<I", struct.pack("<f", f))[0]
A = Asm(); e = A.e
uid = [0]
def lab(p):
    uid[0] += 1; return f"L_{p}_{uid[0]}"

STAMPS = OPTS.get("stamps") == "1"
DEFSET = "start,arr1,kgen,B1,c1_pro,C1,B2,g1_kv,G1,o1_ld,O1,B4,c2_pro,C2,B5,G2,o2_ld,O2"
STSET = OPTS.get("st", DEFSET).split(",")
stnames = []
def stamp(name):
    if not STAMPS or name not in STSET: return
    i = len(stnames); stnames.append(name); assert i < 18
    e(f"{'s_memtime' if OPTS.get('clk') == '1' else 's_memrealtime'} s[82:83]"); e("s_waitcnt lgkmcnt(0)"); e(f"s_mov_b32 s{84+i}, s82")
def stamps_out():
    if not STAMPS: return
    if OPTS.get("dbgout"):
        l = lab("so")
        e(f"s_cmp_lg_u32 {s(sWAVE)}, 0"); e(f"s_cbranch_scc1 {l}")
        e(f"s_cmp_lg_u32 s2, {OPTS.get('dbgout')}"); e(f"s_cbranch_scc1 {l}")
        e("s_mov_b64 exec, 1")
        words = [2, 3, 5, 6, 7, 9, 10, 11, 13, 14, 15]
        for i in range(1, min(len(stnames), 12)):
            e(f"s_sub_u32 {s(sT)}, s{84+i}, s84")
            e(f"v_mov_b32 v10, {s(sT)}"); e(f"v_mov_b32 v11, {4*words[i-1]}")
            e(f"global_store_dword v11, v10, {s(sDBG,2)}")
        e("s_mov_b64 exec, -1")
        A.label(l)
        return
    l = lab("so")
    e(f"s_cmp_lg_u32 {s(sWAVE)}, {OPTS.get('stw', '0')}"); e(f"s_cbranch_scc1 {l}")
    e(f"s_lshl_b32 {s(sT)}, s2, 7"); e(f"s_add_u32 {s(sT)}, {s(sT)}, {STAMP_OFF}")
    e("s_mov_b64 exec, 1")
    for i in range(len(stnames)):
        e(f"v_mov_b32 v10, s{84+i}"); e(f"v_mov_b32 v11, {4*i}")
        e(f"buffer_store_dword v10, v11, {s(sSRD,4)}, {s(sT)} offen")
    e("s_mov_b64 exec, -1")
    A.label(l)
def stop_here(name):
    if STOP == name:
        e("s_waitcnt vmcnt(0) lgkmcnt(0)"); e("s_branch L_end"); return True
    return False

def sent_regs(r):
    for i in range(4): e(f"v_mov_b32 {v(r+i)}, -1")
def spin_check(retry, giveup, bk=None):
    e(f"s_cbranch_vccz {giveup}")
    bk = BK if bk is None else bk
    if bk: e(f"s_sleep {bk}")
    e(f"s_sub_u32 {s(sSPIN)}, {s(sSPIN)}, 1")
    e(f"s_cbranch_scc0 {retry}")
    e(f"s_mov_b32 {s(sSPIN)}, 0")
    A.label(giveup)
def maxtree(regs, dst):
    regs = list(regs); cur = regs.pop(0)
    while regs:
        if len(regs) >= 2:
            e(f"v_max3_u32 {v(dst)}, {v(cur)}, {v(regs[0])}, {v(regs[1])}"); regs = regs[2:]
        else:
            e(f"v_max_u32 {v(dst)}, {v(cur)}, {v(regs[0])}"); regs = []
        cur = dst

def arrive(k, vm=0):
    e(f"s_waitcnt vmcnt({vm}) lgkmcnt(0)"); e("s_barrier")
    l = lab("arr")
    e(f"s_cmp_lg_u32 {s(sWAVE)}, 0"); e(f"s_cbranch_scc1 {l}")
    e(f"s_and_b32 {s(sT)}, s2, 15"); e(f"s_lshl_b32 {s(sT)}, {s(sT)}, {4 if k == 0 else 12}")
    if k: e(f"s_add_u32 {s(sT)}, {s(sT)}, {CNT}")
    e(f"v_mov_b32 v10, {s(sT)}"); e("v_mov_b32 v11, 1")
    e("s_mov_b64 exec, 1")
    e(f"global_atomic_add v10, v11, {s(sDBG if k == 0 else sWS,2)}")
    e("s_mov_b64 exec, -1")
    A.label(l)
def wait(k):
    l = lab("wt"); lp = lab("poll")
    e(f"s_cmp_lg_u32 {s(sWAVE)}, 0"); e(f"s_cbranch_scc1 {l}")
    e("v_and_b32 v10, 15, v0"); e(f"v_lshlrev_b32 v10, {4 if k == 0 else 12}, v10")
    if k: e(f"v_add_u32 v10, {CNT}, v10")
    e(f"s_movk_i32 {s(sT+1)}, {16 * max(k, 1)}")
    pre = int(OPTS.get(f"wpre{k}", {1: 0, 2: 12, 3: 0}.get(k, 0)))
    if pre: e(f"s_sleep {pre}")
    A.label(lp)
    e(f"global_load_dword v11, v10, {s(sDBG if k == 0 else sWS,2)} sc1")
    e("s_waitcnt vmcnt(0)")
    e(f"v_cmp_gt_u32 vcc, {s(sT+1)}, v11")
    spin_check(lp, l, bk=int(OPTS.get("wbk", 0)))
    e("s_barrier")

def cmul(d, x, w, t):
    return [f"v_pk_mul_f32 {v(t,2)}, {v(x,2)}, {v(w,2)} op_sel_hi:[1,0]",
            f"v_pk_fma_f32 {v(d,2)}, {v(x,2)}, {v(w,2)}, {v(t,2)} op_sel:[1,1,0] op_sel_hi:[0,1,1] neg_lo:[0,1,0]"]
def bf16r(dst, src):
    e(f"v_cvt_pk_bf16_f32 {v(dst)}, {v(src)}, {v(src)}"); e(f"v_lshlrev_b32 {v(dst)}, 16, {v(dst)}")
def stats_final(vsum, vsq, vm, vr, t, rcp=True):
    e(f"v_mul_f32 {v(t)}, {s(sINV512)}, {v(vsum)}")
    e(f"v_mul_f32 {v(t+1)}, {s(sINV512)}, {v(vsq)}")
    e(f"v_fma_f32 {v(t+1)}, -{v(t)}, {v(t)}, {v(t+1)}")
    e(f"v_max_f32 {v(t+1)}, 0, {v(t+1)}")
    e(f"v_cvt_pk_bf16_f32 {v(t)}, {v(t)}, {v(t+1)}")
    e(f"v_and_b32 {v(t+1)}, {s(sHI)}, {v(t)}"); e(f"v_lshlrev_b32 {v(vm)}, 16, {v(t)}")
    e(f"v_add_f32 {v(t+1)}, 0x3727c5ac, {v(t+1)}")
    bf16r(t + 1, t + 1)
    e(f"v_sqrt_f32 {v(t+1)}, {v(t+1)}")
    if rcp:
        bf16r(t + 1, t + 1)
        e(f"v_rcp_f32 {v(vr)}, {v(t+1)}")
    else:
        bf16r(vr, t + 1)

def kvp_addr(kvp, dst):
    e(f"s_lshl_b32 {s(dst)}, {s(sJ)}, 5"); e(f"s_add_u32 {s(dst)}, {s(dst)}, {s(sRS)}"); e(f"s_lshl_b32 {s(dst)}, {s(dst)}, 2")
    e(f"s_add_u32 {s(dst)}, {s(dst)}, {s(sWAVE)}"); e(f"s_mul_i32 {s(dst)}, {s(dst)}, {KVH}"); e(f"s_add_u32 {s(dst)}, {s(dst)}, {kvp}")
def f_addr(f, dst):
    e(f"s_lshr_b32 {s(dst)}, {s(sRS)}, 3"); e(f"s_lshl_b32 {s(sT+9)}, {s(sJ)}, 2"); e(f"s_add_u32 {s(dst)}, {s(dst)}, {s(sT+9)}")
    e(f"s_mul_i32 {s(dst)}, {s(dst)}, {FP}"); e(f"s_add_u32 {s(dst)}, {s(dst)}, {f}")
def pq_addr(pq, dst):
    e(f"s_lshl_b32 {s(dst)}, {s(sJ)}, 2"); e(f"s_add_u32 {s(dst)}, {s(dst)}, {s(sWAVE)}")
    e(f"s_mul_i32 {s(dst)}, {s(dst)}, {HP}"); e(f"s_lshl_b32 {s(sT+9)}, {s(sRS)}, 11"); e(f"s_add_u32 {s(dst)}, {s(dst)}, {s(sT+9)}")
    e(f"s_add_u32 {s(dst)}, {s(dst)}, {pq}")
def capture(fn):
    n = len(A.lines); fn(); out = [l.strip() for l in A.lines[n:]]; del A.lines[n:]
    return out
def fill_groups(layer, va, vb):
    S = 20; P1, K1, FF = 40, 41, 42
    pq = PQ1 if layer == 1 else PQ2; kvp = KVP1 if layer == 1 else KVP2; ff = F1 if layer == 1 else F2
    G = []
    def grp(fn): G.append(capture(fn))
    def single(fn):
        for l in capture(fn): G.append([l])
    single(lambda: sent_regs(S))
    def addr():
        e(f"s_lshl_b32 s{P1}, {s(sJ)}, 2"); e(f"s_add_u32 s{P1}, s{P1}, {s(sWAVE)}"); e(f"s_mul_i32 s{P1}, s{P1}, {HP}")
        e(f"s_lshl_b32 s61, {s(sRS)}, 11"); e(f"s_add_u32 s{P1}, s{P1}, s61"); e(f"s_add_u32 s{P1}, s{P1}, {pq}")
        e(f"s_lshl_b32 s{K1}, {s(sJ)}, 5"); e(f"s_add_u32 s{K1}, s{K1}, {s(sRS)}"); e(f"s_lshl_b32 s{K1}, s{K1}, 2")
        e(f"s_add_u32 s{K1}, s{K1}, {s(sWAVE)}"); e(f"s_mul_i32 s{K1}, s{K1}, {KVH}"); e(f"s_add_u32 s{K1}, s{K1}, {kvp}")
        e(f"s_lshr_b32 s{FF}, {s(sRS)}, 3"); e(f"s_lshl_b32 s61, {s(sJ)}, 2"); e(f"s_add_u32 s{FF}, s{FF}, s61")
        e(f"s_mul_i32 s{FF}, s{FF}, {FP}"); e(f"s_add_u32 s{FF}, s{FF}, {ff}")
        e(f"v_lshlrev_b32 {v(va)}, 4, v1"); e(f"v_lshlrev_b32 {v(vb)}, 2, v1")
    single(addr)
    G.append([f"buffer_store_dwordx4 {v(S,4)}, {v(va)}, {s(sSRD,4)}, s{K1} offen sc1", "MARK"])
    def st2():
        e("s_mov_b32 s62, -1"); e("s_mov_b32 s63, 0"); e("s_mov_b64 exec, s[62:63]")
        e(f"buffer_store_dword {v(S)}, {v(vb)}, {s(sSRD,4)}, s{K1} offen offset:1024 sc1")
        e("s_mov_b64 exec, -1")
    grp(st2)
    G.append([f"buffer_store_dwordx4 {v(S,4)}, {v(va)}, {s(sSRD,4)}, s{P1} offen sc1", "MARK"])
    G.append([f"buffer_store_dwordx4 {v(S,4)}, {v(va)}, {s(sSRD,4)}, s{P1} offen offset:1024 sc1", "MARK"])
    def fslice():
        l = lab("ff")
        e(f"s_cmp_lg_u32 {s(sWAVE)}, 2"); e(f"s_cbranch_scc1 {l}")
        e(f"s_and_b32 s61, {s(sRS)}, 7"); e("s_lshl_b32 s62, s61, 6")
        e(f"v_lshrrev_b32 {v(va)}, 3, v1"); e(f"v_mul_u32_u24 {v(va)}, {FRP}, {v(va)}"); e(f"v_and_b32 {v(vb)}, 7, v1"); e(f"v_lshl_add_u32 {v(va)}, {v(vb)}, 3, {v(va)}")
        e(f"v_add_u32 {v(vb)}, s62, {v(va)}")
        e(f"buffer_store_dwordx2 {v(S,2)}, {v(vb)}, {s(sSRD,4)}, s{FF} offen sc1")
        e("s_cmp_lg_u32 s61, 0"); e(f"s_cbranch_scc1 {l}")
        e("s_mov_b32 s62, 0x0f0f0f0f"); e("s_mov_b32 s63, 0x0f0f0f0f"); e("s_mov_b64 exec, s[62:63]")
        e(f"buffer_store_dwordx2 {v(S,2)}, {v(va)}, {s(sSRD,4)}, s{FF} offen offset:512 sc1")
        e("s_mov_b64 exec, -1")
        A.label(l)
    grp(fslice)
    return G
def emit_group(g):
    for l in g:
        if l == "MARK": continue
        if l.endswith(":"): A.label(l[:-1])
        else: e(l)

XR = 24; PRM = 32; IDX = 40; XC = 176
def prologue():
    stamp("t0")
    e(f"s_getpc_b64 {s(sPC,2)}")
    A.label("L_pc")
    e("s_cmp_ge_u32 s2, 256")
    e("s_cbranch_scc1 L_end")
    e("s_load_dwordx16 s[8:23], s[0:1], 0")
    e("s_load_dwordx8 s[24:31], s[0:1], 64")
    e("s_load_dwordx2 s[32:33], s[0:1], 96")
    e("s_memrealtime s[82:83]")
    e("v_lshlrev_b32 v10, 7, v0")
    e("v_min_u32 v11, L_tab_end - L_pc - 4, v10")
    e(f"global_load_dword v38, v11, {s(sPC,2)}")
    e("v_add_u32 v10, 0x8000, v10")
    e("v_min_u32 v10, L_tab_end - L_pc - 4, v10")
    e(f"global_load_dword v39, v10, {s(sPC,2)}")
    e("v_lshrrev_b32 v1, 6, v0")
    e(f"s_and_b32 {s(sXCD)}, s2, 7")
    e(f"s_lshr_b32 {s(sIDX)}, s2, 3")
    e(f"v_readfirstlane_b32 {s(sWAVE)}, v1")
    e(f"s_lshl_b32 {s(sCP)}, {s(sXCD)}, 5"); e(f"s_add_u32 {s(sCP)}, {s(sCP)}, {s(sIDX)}")
    e("v_and_b32 v1, 63, v0")
    e(f"s_lshl_b32 {s(sT)}, {s(sCP)}, 9"); e(f"v_lshl_add_u32 v10, v0, 1, {s(sT)}")
    e(f"s_lshl_b32 {s(sT)}, {s(sCP)}, 2"); e("v_lshrrev_b32 v12, 7, v0"); e(f"v_lshl_add_u32 v11, v12, 1, {s(sT)}")
    e(f"s_lshl_b32 {s(sT)}, s2, 13"); e(f"v_lshl_add_u32 v13, v0, 5, {s(sT)}")
    e(f"s_mul_i32 s6, s2, 5462"); e(f"s_lshr_b32 s6, s6, 16"); e(f"s_mul_i32 s7, s6, 12"); e(f"s_sub_u32 s7, s2, s7")
    e(f"s_sub_u32 {s(sT+1)}, s2, 192"); e(f"s_lshr_b32 {s(sT)}, {s(sT+1)}, 1"); e(f"s_and_b32 {s(sT+1)}, {s(sT+1)}, 1")
    e("s_cmp_ge_u32 s2, 192")
    e(f"s_cselect_b32 s6, {s(sT)}, s6"); e(f"s_cselect_b32 s7, {s(sT+1)}, s7")
    e(f"s_cselect_b32 {s(sT+2)}, 4, 5")
    e(f"s_cselect_b32 {s(sT+3)}, 2, 3")
    e(f"s_cselect_b32 {s(sT+4)}, 10, 0")
    e(f"s_movk_i32 {s(sT+5)}, 3072"); e(f"s_cselect_b32 {s(sT+5)}, 1024, {s(sT+5)}")
    e(f"s_cselect_b32 {s(sT+6)}, 9, 8")
    e(f"s_cselect_b32 {s(sT+7)}, 5, 4")
    e(f"s_lshl_b32 {s(sT)}, s6, {s(sT+2)}"); e(f"s_lshl_b32 {s(sT+1)}, {s(sWAVE)}, {s(sT+3)}"); e(f"s_add_u32 {s(sT)}, {s(sT)}, {s(sT+1)}")
    e(f"s_mul_i32 {s(sT)}, {s(sT)}, {s(sT+5)}"); e(f"s_lshl_b32 {s(sT+1)}, s7, {s(sT+6)}"); e(f"s_add_u32 s4, {s(sT)}, {s(sT+1)}")
    e(f"v_lshrrev_b32 v14, {s(sT+7)}, v1"); e(f"v_mul_lo_u32 v14, {s(sT+5)}, v14")
    e(f"s_lshl_b32 {s(sT+1)}, 1, {s(sT+7)}"); e(f"s_sub_u32 {s(sT+1)}, {s(sT+1)}, 1"); e(f"v_and_b32 v15, {s(sT+1)}, v1"); e("v_lshl_add_u32 v14, v15, 4, v14")
    e(f"s_lshl_b32 {s(sT+1)}, 64, 0"); e(f"s_lshr_b32 {s(sT+1)}, 64, {s(sT+7)}"); e(f"s_mul_i32 s5, {s(sT+1)}, {s(sT+5)}")
    e(f"s_lshl_b32 {s(sT+3)}, {s(sWAVE)}, 11"); e(f"s_add_u32 {s(sT+3)}, {s(sT+3)}, {WST}")
    e("s_cmp_ge_u32 s2, 192")
    e("s_waitcnt lgkmcnt(0)")
    stamp("karg")
    if True:
        e(f"v_min_u32 v16, {(WS_USED - 1) // 0x200000}, v1"); e("v_lshlrev_b32 v16, 21, v16")
        e(f"global_load_dword v19, v16, {s(sWS,2)}")
    e("s_cmp_ge_u32 s2, 192")
    e(f"global_load_ushort {v(PRM)}, v10, {s(sLOGA,2)}")
    e(f"global_load_ushort {v(PRM+1)}, v10, {s(sAIM,2)}")
    e(f"global_load_ushort {v(PRM+4)}, v11, {s(sLDT,2)}")
    e(f"global_load_dwordx4 {v(XR,4)}, v13, {s(sU,2)}")
    e(f"global_load_dwordx4 {v(XR+4,4)}, v13, {s(sU,2)} offset:16")
    e(f"global_load_ushort {v(PRM+2)}, v10, {s(sCR,2)}")
    e(f"global_load_ushort {v(PRM+3)}, v10, {s(sCI,2)}")
    e(f"global_load_ushort {v(PRM+5)}, v11, {s(sDSK,2)}")
    e(f"s_cselect_b32 {s(sSRD2)}, {s(sWO)}, {s(sWQKV)}"); e(f"s_cselect_b32 {s(sSRD2+1)}, {s(sWO+1)}, {s(sWQKV+1)}")
    e(f"s_mov_b32 {s(sT)}, {512*1536*2}"); e(f"s_cselect_b32 {s(sSRD2+2)}, {512*512*2}, {s(sT)}")
    e(f"s_and_b32 {s(sSRD2+1)}, {s(sSRD2+1)}, 0xffff"); e(f"s_mov_b32 {s(sSRD2+3)}, 0x20000")
    ln = lab("nw")
    e("v_mov_b32 v23, 4")
    e(f"s_or_b32 {s(sT)}, s2, {s(sWAVE)}"); e(f"s_cmp_lg_u32 {s(sT)}, 0"); e(f"s_cbranch_scc1 {ln}")
    e(f"s_or_b32 {s(sT)}, s82, 1"); e(f"v_mov_b32 v58, {s(sT)}")
    e("s_mov_b64 exec, 1")
    e(f"global_store_dword v23, v58, {s(sDBG,2)} sc1")
    e("s_mov_b64 exec, -1")
    e("s_waitcnt vmcnt(63)")
    A.label(ln)
    e(f"s_mov_b32 m0, {s(sT+3)}")
    e(f"buffer_load_dwordx4 v14, {s(sSRD2,4)}, s4 offen lds")
    e(f"s_add_u32 s4, s4, s5"); e(f"s_add_u32 m0, {s(sT+3)}, 1024")
    e(f"buffer_load_dwordx4 v14, {s(sSRD2,4)}, s4 offen lds")
    e(f"s_and_b32 {s(sT)}, {s(sIDX)}, 3"); e(f"s_lshl_b32 {s(sRS)}, {s(sXCD)}, 2"); e(f"s_add_u32 {s(sRS)}, {s(sRS)}, {s(sT)}")
    e(f"s_lshr_b32 {s(sJ)}, {s(sIDX)}, 2")
    e(f"s_and_b32 {s(sT)}, {s(sJ)}, 1"); e(f"s_lshl_b32 {s(sRO)}, {s(sRS)}, 1"); e(f"s_add_u32 {s(sRO)}, {s(sRO)}, {s(sT)}")
    e(f"s_lshr_b32 {s(sJO)}, {s(sJ)}, 1")
    e(f"s_mov_b32 {s(sLOG2E)}, {f2u(1.4426950408889634):#x}"); e(f"s_mov_b32 {s(sLOG2E+1)}, {s(sLOG2E)}")
    e(f"s_mov_b32 {s(sEPS6)}, {f2u(1e-6):#x}"); e(f"s_mov_b32 {s(sEPS6+1)}, {s(sEPS6)}")
    e(f"s_mov_b32 {s(sINV512)}, {f2u(1.0/512):#x}"); e(f"s_mov_b32 {s(sINV512+1)}, {s(sINV512)}")
    e(f"s_mov_b32 {s(sHI)}, 0xffff0000")
    e(f"s_mov_b32 {s(sSPIN)}, {SPINMAX}")
    e(f"s_mov_b32 {s(sSRD)}, {s(sWS)}"); e(f"s_and_b32 {s(sSRD+1)}, {s(sWS+1)}, 0xffff")
    e(f"s_mov_b32 {s(sSRD+2)}, {WS_USED:#x}"); e(f"s_mov_b32 {s(sSRD+3)}, 0x20000")

def p0_fills():
    e("v_mov_b32 v12, 0")
    e(f"s_lshl_b32 {s(sT)}, s2, 6"); e(f"s_add_u32 {s(sT)}, {s(sT)}, {S3}")
    e("v_lshlrev_b32 v10, 2, v1")
    e("s_mov_b64 exec, 0xffff")
    e(f"buffer_store_dword v12, v10, {s(sSRD,4)}, {s(sT)} offen sc1")
    e(f"s_lshl_b32 {s(sT+1)}, s2, 12"); e(f"s_add_u32 {s(sT+1)}, {s(sT+1)}, {CNT}")
    e("s_cmp_lt_u32 s2, 16"); e(f"s_cselect_b32 {s(sT)}, {s(sT+1)}, {s(sT)}")
    e("s_mov_b64 exec, 1")
    e(f"buffer_store_dword v12, v10, {s(sSRD,4)}, {s(sT)} offen sc1")
    e("s_mov_b64 exec, -1")

def nonce_issue():
    e("v_mov_b32 v17, 4")
    e(f"global_load_dword v58, v17, {s(sDBG,2)} sc1")
def nonce_get(vm=0):
    lr = lab("nr"); lg = lab("ng"); l0 = lab("n0")
    e(f"s_waitcnt vmcnt({vm})")
    e(f"s_branch {l0}")
    A.label(lr)
    e(f"global_load_dword v58, v17, {s(sDBG,2)} sc1")
    e("s_waitcnt vmcnt(0)")
    A.label(l0)
    e("v_cmp_eq_u32 vcc, 0, v58")
    spin_check(lr, lg, bk=1)
    e(f"v_readfirstlane_b32 {s(sNON)}, v58")

def idx_loads():
    e(f"s_add_u32 {s(sT)}, {s(sPC)}, L_idx - L_pc"); e(f"s_addc_u32 {s(sT+1)}, {s(sPC+1)}, 0")
    e("v_and_b32 v10, 127, v0"); e("v_lshlrev_b32 v10, 4, v10")
    e(f"global_load_dwordx4 {v(IDX,4)}, v10, {s(sT,2)}")
    e(f"global_load_dwordx4 {v(IDX+4,4)}, v10, {s(sT,2)} offset:16")
    e(f"global_load_dwordx4 {v(IDX+8,4)}, v10, {s(sT,2)} offset:2048")
    e(f"global_load_dwordx4 {v(IDX+12,4)}, v10, {s(sT,2)} offset:2064")

def gather_loads():
    out = []
    for i in range(4): out.append(f"global_load_dword {v(XC+i)}, v19, {s(sU,2)} offset:{1024*i}")
    for i in range(4): out.append(f"global_load_dword {v(XC+4+i)}, v18, {s(sU,2)} offset:{1024*i}")
    return out

def p0_x0_write():
    e(f"v_lshlrev_b32 v10, 5, v0"); e(f"v_add_u32 v10, {X0S}, v10")
    e(f"ds_write_b128 v10, {v(XR,4)}"); e(f"ds_write_b128 v10, {v(XR+4,4)} offset:16")
def p0_x0_store():
    e("v_bfe_u32 v10, v1, 2, 2"); e("v_lshlrev_b32 v10, 10, v10")
    e("v_lshrrev_b32 v11, 4, v1"); e("v_lshl_add_u32 v10, v11, 5, v10")
    e("v_and_b32 v11, 3, v1"); e("v_lshl_add_u32 v10, v11, 3, v10")
    e(f"s_lshl_b32 {s(sT)}, {s(sWAVE)}, 8"); e(f"s_add_u32 {s(sT)}, {s(sT)}, {X0S}"); e(f"v_add_u32 v10, {s(sT)}, v10")
    for k in range(2):
        e(f"ds_read_b64_tr_b16 {v(100+4*k,2)}, v10 offset:{128*k}"); e(f"ds_read_b64_tr_b16 {v(102+4*k,2)}, v10 offset:{128*k + 4096}")
    e(f"s_mul_i32 {s(sT)}, s2, {X0P}"); e(f"s_lshl_b32 {s(sT+1)}, {s(sWAVE)}, 11"); e(f"s_add_u32 {s(sT)}, {s(sT)}, {s(sT+1)}")
    e(f"s_add_u32 {s(sT)}, {s(sT)}, {X0T}")
    e("v_lshlrev_b32 v11, 4, v1")
    e("s_waitcnt lgkmcnt(0)")
    e(f"buffer_store_dwordx4 v[100:103], v11, {s(sSRD,4)}, {s(sT)} offen sc1")
    e(f"buffer_store_dwordx4 v[104:107], v11, {s(sSRD,4)}, {s(sT)} offen offset:1024 sc1")

def p0_stats():
    F = 64
    for i in range(8):
        e(f"v_lshlrev_b32 {v(F+2*i)}, 16, {v(XR+i)}"); e(f"v_and_b32 {v(F+2*i+1)}, {s(sHI)}, {v(XR+i)}")
    for i in range(4): e(f"v_pk_add_f32 {v(80+2*i,2)}, {v(F+4*i,2)}, {v(F+4*i+2,2)}")
    e(f"v_pk_mul_f32 v[88:89], {v(F,2)}, {v(F,2)}"); e(f"v_pk_mul_f32 v[90:91], {v(F+2,2)}, {v(F+2,2)}")
    e(f"v_pk_add_f32 v[80:81], v[80:81], v[82:83]"); e(f"v_pk_add_f32 v[84:85], v[84:85], v[86:87]")
    for i in range(2, 8): e(f"v_pk_fma_f32 {v(88+2*(i&1),2)}, {v(F+2*i,2)}, {v(F+2*i,2)}, {v(88+2*(i&1),2)}")
    e(f"v_pk_add_f32 v[80:81], v[80:81], v[84:85]"); e("v_pk_add_f32 v[88:89], v[88:89], v[90:91]")
    e("v_add_f32 v80, v80, v81"); e("v_add_f32 v82, v88, v89")
    for r_ in (8, 4, 2, 1):
        e(f"v_add_f32_dpp v80, v80, v80 row_ror:{r_} row_mask:0xf bank_mask:0xf")
        e(f"v_add_f32_dpp v82, v82, v82 row_ror:{r_} row_mask:0xf bank_mask:0xf")
    e("v_add_f32_dpp v80, v80, v80 row_bcast:15 row_mask:0xa bank_mask:0xf")
    e("v_add_f32_dpp v82, v82, v82 row_bcast:15 row_mask:0xa bank_mask:0xf")
    stats_final(80, 82, 56, 57, 86, rcp=False)
    e("v_lshrrev_b32 v56, 16, v56"); e(f"v_and_or_b32 v56, v57, {s(sHI)}, v56")

def p0_stats_store():
    e(f"v_mov_b32 v57, {s(sNON)}")
    e(f"s_lshl_b32 {s(sT)}, s2, 4"); e(f"s_lshl_b32 {s(sT+1)}, {s(sWAVE)}, 12"); e(f"s_add_u32 {s(sT)}, {s(sT)}, {s(sT+1)}")
    e(f"s_add_u32 {s(sT)}, {s(sT)}, {S1}")
    e("v_lshrrev_b32 v10, 5, v1"); e(f"v_lshl_add_u32 v10, v10, 3, {s(sT)}")
    e(f"s_mov_b32 {s(sT+2)}, 0x00010000"); e(f"s_mov_b32 {s(sT+3)}, 0x00010000")
    e(f"s_mov_b64 exec, {s(sT+2,2)}")
    e(f"buffer_store_dwordx2 v[56:57], v10, {s(sSRD,4)}, 0 offen sc1")
    e("s_mov_b64 exec, -1")

def p0_wfrag():
    lo = lab("wo2"); lj = lab("wj2")
    e("s_cmp_ge_u32 s2, 192"); e(f"s_cbranch_scc1 {lo}")
    e("v_lshrrev_b32 v10, 2, v1"); e("v_lshlrev_b32 v10, 8, v10")
    e("v_and_b32 v11, 3, v1"); e("v_lshl_add_u32 v10, v11, 3, v10")
    e(f"s_lshl_b32 {s(sT)}, {s(sWAVE)}, 6"); e(f"s_add_u32 {s(sT)}, {s(sT)}, {WST}")
    e(f"v_add_u32 v10, {s(sT)}, v10")
    e("ds_read_b64_tr_b16 v[88:89], v10"); e("ds_read_b64_tr_b16 v[90:91], v10 offset:4096")
    e("ds_read_b64_tr_b16 v[92:93], v10 offset:32"); e("ds_read_b64_tr_b16 v[94:95], v10 offset:4128")
    e(f"s_lshr_b32 {s(sT)}, s7, 2")
    e(f"s_add_u32 {s(sT)}, {s(sT)}, 2"); e(f"s_cmp_ge_u32 {s(sT)}, 3")
    e(f"s_cselect_b32 {s(sT+1)}, 3, 0"); e(f"s_sub_u32 {s(sT)}, {s(sT)}, {s(sT+1)}")
    e(f"s_and_b32 {s(sT+1)}, s7, 3"); e(f"s_lshl_b32 {s(sT+1)}, {s(sT+1)}, 3")
    e(f"s_lshl_b32 {s(sT+2)}, {s(sWAVE)}, 1"); e(f"s_add_u32 {s(sT+1)}, {s(sT+1)}, {s(sT+2)}")
    e(f"s_mul_i32 {s(sT+1)}, {s(sT+1)}, 3"); e(f"s_add_u32 {s(sT+1)}, {s(sT+1)}, {s(sT)}")
    e(f"s_lshl_b32 {s(sT+1)}, {s(sT+1)}, 4"); e(f"s_add_u32 {s(sT+1)}, {s(sT+1)}, s6")
    e(f"s_lshl_b32 {s(sT+1)}, {s(sT+1)}, 10"); e(f"s_add_u32 {s(sT+1)}, {s(sT+1)}, {WFG}")
    e(f"s_add_u32 {s(sT+2)}, {s(sT+1)}, 49152")
    e(f"s_branch {lj}")
    A.label(lo)
    e("v_lshrrev_b32 v10, 5, v1"); e("v_lshlrev_b32 v10, 2, v10")
    e("v_bfe_u32 v11, v1, 2, 2"); e("v_add_u32 v10, v10, v11"); e("v_lshlrev_b32 v10, 9, v10")
    e("v_and_b32 v11, 1, v1"); e("v_lshl_add_u32 v10, v11, 5, v10")
    e("v_bfe_u32 v11, v1, 4, 1"); e("v_lshl_add_u32 v10, v11, 4, v10")
    e("v_bfe_u32 v11, v1, 1, 1"); e("v_lshl_add_u32 v10, v11, 3, v10")
    e(f"s_lshl_b32 {s(sT)}, {s(sWAVE)}, 7"); e(f"s_add_u32 {s(sT)}, {s(sT)}, {WST}")
    e(f"v_add_u32 v10, {s(sT)}, v10")
    e("ds_read_b64_tr_b16 v[88:89], v10"); e("ds_read_b64_tr_b16 v[90:91], v10 offset:4096")
    e("ds_read_b64_tr_b16 v[92:93], v10 offset:64"); e("ds_read_b64_tr_b16 v[94:95], v10 offset:4160")
    e(f"s_lshl_b32 {s(sT+1)}, s7, 3"); e(f"s_lshl_b32 {s(sT+2)}, {s(sWAVE)}, 1"); e(f"s_add_u32 {s(sT+1)}, {s(sT+1)}, {s(sT+2)}")
    e(f"s_lshl_b32 {s(sT+1)}, {s(sT+1)}, 5"); e(f"s_add_u32 {s(sT+1)}, {s(sT+1)}, s6")
    e(f"s_lshl_b32 {s(sT+1)}, {s(sT+1)}, 10"); e(f"s_add_u32 {s(sT+1)}, {s(sT+1)}, {WFO}")
    e(f"s_add_u32 {s(sT+2)}, {s(sT+1)}, 32768")
    A.label(lj)
    e("v_lshlrev_b32 v10, 4, v1")
    e("s_waitcnt lgkmcnt(0)")
    e(f"buffer_store_dwordx4 v[88:91], v10, {s(sSRD,4)}, {s(sT+1)} offen sc1")
    e(f"buffer_store_dwordx4 v[92:95], v10, {s(sSRD,4)}, {s(sT+2)} offen sc1")

def pw_multi(items, a2, b2):
    for (d, t, tm) in items:
        if t == 1:
            e(f"v_mov_b32 {v(tm)}, {v(a2)}"); e(f"v_fract_f32 {v(tm+1)}, {v(b2)}")
        else:
            c = f"{float(t)}" if t in (2, 4) else f"{f2u(float(t)):#x}"
            e(f"v_mul_f32 {v(tm)}, {c}, {v(a2)}"); e(f"v_mul_f32 {v(tm+1)}, {c}, {v(b2)}")
    for (d, t, tm) in items:
        e(f"v_exp_f32 {v(tm)}, {v(tm)}")
        if t != 1: e(f"v_fract_f32 {v(tm+1)}, {v(tm+1)}")
    for (d, t, tm) in items:
        e(f"v_cos_f32 {v(d)}, {v(tm+1)}"); e(f"v_sin_f32 {v(d+1)}, {v(tm+1)}")
    for (d, t, tm) in items:
        e(f"v_pk_mul_f32 {v(d,2)}, {v(d,2)}, {v(tm,2)} op_sel_hi:[1,0]")

W1, W4, W16, W64, W512 = 100, 102, 104, 106, 108
CH = {"X1": 112, "X2": 128, "Y1": 144, "Y2": 160}
def kgen_setup():
    for i in range(6): e(f"v_lshlrev_b32 {v(PRM+i)}, 16, {v(PRM+i)}")
    e(f"v_readfirstlane_b32 {s(sDSKV)}, {v(PRM+5)}")
    dt, are = 60, 61
    e(f"v_mul_f32 {v(dt)}, {s(sLOG2E)}, {v(PRM+4)}"); e(f"v_mul_f32 {v(are)}, {s(sLOG2E)}, {v(PRM)}")
    e(f"v_exp_f32 {v(dt)}, {v(dt)}"); e(f"v_exp_f32 {v(are)}, {v(are)}")
    e(f"v_cvt_pk_bf16_f32 {v(dt)}, {v(dt)}, {v(are)}")
    e(f"v_and_b32 {v(are)}, {s(sHI)}, {v(dt)}"); e(f"v_lshlrev_b32 {v(dt)}, 16, {v(dt)}")
    a2, b2 = 62, 63
    e(f"v_mul_f32 {v(a2)}, -{v(are)}, {v(dt)}"); e(f"v_mul_f32 {v(b2)}, {v(PRM+1)}, {v(dt)}")
    e(f"v_mul_f32 {v(a2)}, {s(sLOG2E)}, {v(a2)}"); e(f"v_mul_f32 {v(b2)}, 0.15915494, {v(b2)}")
    pw_multi([(W1, 1, 64), (W4, 4, 66), (W16, 16, 68), (W64, 64, 70), (W512, 512, 72)], a2, b2)
    e(f"v_add_f32 {v(dt)}, {v(dt)}, {v(dt)}")
    e(f"v_mul_f32 {v(CH['X1'])}, {v(PRM+2)}, {v(dt)}"); e(f"v_mul_f32 {v(CH['X1']+1)}, {v(PRM+3)}, {v(dt)}")
    for l in cmul(CH['X2'], CH['X1'], W512, 64): e(l)
    e(f"v_mov_b32 {v(CH['Y1'])}, 1.0"); e(f"v_mov_b32 {v(CH['Y1']+1)}, 0"); e(f"v_mov_b32 {v(CH['Y2'])}, 1.0"); e(f"v_mov_b32 {v(CH['Y2']+1)}, 0")
    e(f"v_lshrrev_b32 v96, 7, v0"); e(f"v_mul_u32_u24 v96, {TABC}, v96")
    e(f"v_and_b32 v97, 127, v0"); e(f"v_mul_u32_u24 v97, {TKP}, v97"); e("v_add_u32 v96, v96, v97")

def kgen_round(chains, rnd, side=None):
    Wof = {"X1": W16, "X2": W64, "Y1": W1, "Y2": W4}
    mbase = {"X1": 0, "X2": 32, "Y1": 64, "Y2": 80}
    tmp = {"X1": 64, "X2": 66, "Y1": 68, "Y2": 70}
    nval = {c: 8 for c in chains}
    if rnd == 3 and "X2" in chains: nval["X2"] = 1
    for i in range(1, 8):
        ls = [cmul(CH[c] + 2*i, CH[c] + 2*(i-1), Wof[c], tmp[c]) for c in chains if i < nval[c]]
        for k in range(2):
            for l in ls: e(l[k])
        if side and i in (1, 3, 5, 7) and len(side): e(side.pop(0))
    P = {c: 72 + 8*k for k, c in enumerate(chains)}
    for c in chains:
        neg = "-" if c[0] == "X" else ""
        for k in range(4):
            i0, i1 = (2*k, 2*k+1) if nval[c] == 8 else (0, 0)
            e(f"v_cvt_pk_bf16_f32 {v(P[c]+k)}, {v(CH[c]+2*i0)}, {v(CH[c]+2*i1)}")
            e(f"v_cvt_pk_bf16_f32 {v(P[c]+4+k)}, {neg}{v(CH[c]+2*i0+1)}, {neg}{v(CH[c]+2*i1+1)}")
        off = (mbase[c] + 8*rnd) * 2
        e(f"ds_write_b128 v96, {v(P[c],4)} offset:{off}")
        e(f"ds_write_b128 v96, {v(P[c]+4,4)} offset:{off + 128*TKP}")
    ls = [cmul(CH[c], CH[c] + 14, Wof[c], tmp[c]) for c in chains if nval[c] == 8 and not ((c[0] == "Y" and rnd == 1) or rnd == 3)]
    for k in range(2):
        for l in ls: e(l[k])

def kgen_mm(gl, fs):
    s1_issue()
    e("s_waitcnt lgkmcnt(0)"); e("s_barrier")
    e(f"s_lshr_b32 {s(sT)}, {s(sWAVE)}, 1"); e(f"s_and_b32 {s(sT+1)}, {s(sWAVE)}, 1")
    e(f"s_mul_i32 {s(sT+2)}, {s(sT)}, {TABC}")
    e(f"s_lshl_b32 {s(sT+3)}, {s(sT+1)}, 5"); e(f"s_add_u32 {s(sT+3)}, {s(sT+3)}, 128"); e(f"s_add_u32 {s(sT+3)}, {s(sT+3)}, {s(sT+2)}")
    e(f"s_lshl_b32 {s(sT+4)}, {s(sT+1)}, 6"); e(f"s_add_u32 {s(sT+4)}, {s(sT+4)}, {s(sT+2)}")
    e("v_lshrrev_b32 v10, 2, v1"); e(f"v_mul_u32_u24 v10, {TKP}, v10"); e("v_and_b32 v11, 3, v1"); e("v_lshl_add_u32 v10, v11, 3, v10")
    e(f"v_add_u32 v11, {s(sT+3)}, v10"); e(f"v_add_u32 v12, {s(sT+4)}, v10")
    YF, XF = 64, 96
    for ks in range(8):
        o = ks * 32 * TKP
        e(f"ds_read_b64_tr_b16 {v(YF+4*ks,2)}, v11 offset:{o}"); e(f"ds_read_b64_tr_b16 {v(YF+4*ks+2,2)}, v11 offset:{o + 16*TKP}")
        for tl in range(2):
            e(f"ds_read_b64_tr_b16 {v(XF+32*tl+4*ks,2)}, v12 offset:{o + 32*tl}"); e(f"ds_read_b64_tr_b16 {v(XF+32*tl+4*ks+2,2)}, v12 offset:{o + 16*TKP + 32*tl}")
    e("v_lshrrev_b32 v13, 7, v0")
    e(f"v_mul_u32_u24 v14, {CTP}, v13"); e(f"v_add_u32 v14, {CT}, v14")
    e(f"v_mul_u32_u24 v15, {KCH}, v13"); e("v_and_b32 v13, 127, v0"); e("v_lshl_add_u32 v15, v13, 4, v15")
    fs()
    for ks in range(8):
        e(f"s_waitcnt lgkmcnt({min(15, 6*(7-ks))})")
        for tl in range(2):
            c_ = "0" if ks == 0 else v(160 + 4*tl, 4)
            e(f"v_mfma_f32_16x16x32_bf16 {v(160+4*tl,4)}, {v(YF+4*ks,4)}, {v(XF+32*tl+4*ks,4)}, {c_}")
    e(f"s_mul_i32 {s(sT+2)}, {s(sT)}, {CTP}"); e(f"s_lshl_b32 {s(sT+3)}, {s(sT+1)}, 10"); e(f"s_add_u32 {s(sT+2)}, {s(sT+2)}, {s(sT+3)}")
    e(f"s_add_u32 {s(sT+2)}, {s(sT+2)}, {CT}")
    e("v_and_b32 v10, 15, v1"); e("v_lshlrev_b32 v10, 5, v10"); e("v_lshrrev_b32 v11, 4, v1"); e("v_lshl_add_u32 v10, v11, 3, v10")
    e(f"v_add_u32 v10, {s(sT+2)}, v10")
    e(f"s_mul_i32 {s(sT+2)}, {s(sT)}, {CTP}"); e(f"s_add_u32 {s(sT+2)}, {s(sT+2)}, {CT + 2048}")
    e(f"v_mov_b32 v11, {s(sT+2)}"); e("v_mov_b32 v12, 0")
    e("ds_write_b32 v11, v12")
    fs()
    G = [96, 112]
    for task in range(2):
        I = IDX + 8 * task
        for k in range(6):
            e(f"v_add_u32_sdwa {v(G[task]+2*k)}, v14, {v(I+k)} dst_sel:DWORD dst_unused:UNUSED_PAD src0_sel:DWORD src1_sel:WORD_0")
            e(f"v_add_u32_sdwa {v(G[task]+2*k+1)}, v14, {v(I+k)} dst_sel:DWORD dst_unused:UNUSED_PAD src0_sel:DWORD src1_sel:WORD_1")
    for tl in range(2):
        e(f"v_cvt_pk_bf16_f32 {v(168+2*tl)}, {v(160+4*tl)}, {v(161+4*tl)}")
        e(f"v_cvt_pk_bf16_f32 {v(169+2*tl)}, {v(162+4*tl)}, {v(163+4*tl)}")
        e(f"ds_write_b64 v10, {v(168+2*tl,2)} offset:{512*tl}")
    e("s_waitcnt lgkmcnt(0)"); e("s_barrier")
    stamp("k_mm")
    s1_validate(2)
    x0t_issue()
    for task in range(2):
        for k in range(12): e(f"ds_read_u16 {v(G[task]+k)}, {v(G[task]+k)}")
    for task in range(2):
        Dd, Dp, Sd, Sp = [(64, 72, 80, 88), (128, 136, 144, 152)][task]
        e(f"s_waitcnt lgkmcnt({12 if task == 0 else 4})")
        for k in range(6): e(f"v_lshl_or_b32 {v(Dd+k)}, {v(G[task]+2*k+1)}, 16, {v(G[task]+2*k)}")
        for k in range(4): e(f"v_mov_b32 {v(Dp+k)}, {v(Dd+k+1)}")
        for k in range(4): e(f"v_alignbit_b32 {v(Sd+k)}, {v(Dd+k+1)}, {v(Dd+k)}, 16")
        for k in range(4): e(f"v_alignbit_b32 {v(Sp+k)}, {v(Dd+k+2)}, {v(Dd+k+1)}, 16")
        for cp_, src in enumerate((Dd, Sd, Dp, Sp)):
            e(f"ds_write_b128 v15, {v(src,4)} offset:{cp_*KCC + task*2048}")
    l0 = lab("zk")
    e(f"s_cmp_lg_u32 {s(sWAVE)}, 0"); e(f"s_cbranch_scc1 {l0}")
    e("v_lshrrev_b32 v10, 2, v1"); e(f"v_mul_u32_u24 v10, {KCC}, v10")
    e("v_and_b32 v11, 3, v1"); e("v_lshl_add_u32 v10, v11, 4, v10"); e("v_add_u32 v10, 4096, v10")
    e("v_mov_b32 v160, 0"); e("v_mov_b32 v161, 0"); e("v_mov_b32 v162, 0"); e("v_mov_b32 v163, 0")
    e(f"s_mov_b32 {s(sT+2)}, -1"); e(f"s_mov_b32 {s(sT+3)}, 0"); e(f"s_mov_b64 exec, {s(sT+2,2)}")
    e("ds_write_b128 v10, v[160:163]")
    e("s_mov_b64 exec, -1")
    A.label(l0)

def s1_issue():
    e("v_lshlrev_b32 v63, 4, v0")
    for i in range(4):
        e(f"s_movk_i32 {s(sT)}, {S1 + 4096*i}")
        e(f"buffer_load_dwordx4 {v(24+4*i,4)}, v63, {s(sSRD,4)}, {s(sT)} offen sc1")
def s1_validate(vm=0):
    lr = lab("s1r"); lg = lab("s1k"); l0 = lab("s1c")
    e(f"s_waitcnt vmcnt({vm})")
    e(f"s_branch {l0}")
    A.label(lr)
    s1_issue()
    e("s_waitcnt vmcnt(0)")
    A.label(l0)
    for i in range(8): e(f"v_xor_b32 {v(160+i)}, {s(sNON)}, {v(24+2*i+1)}")
    e("v_or3_b32 v160, v160, v161, v162"); e("v_or3_b32 v163, v163, v164, v165"); e("v_or3_b32 v160, v160, v166, v167"); e("v_or_b32 v160, v160, v163")
    e("v_cmp_ne_u32 vcc, 0, v160")
    spin_check(lr, lg, bk=1)
def x0t_issue():
    e(f"v_mul_u32_u24 v10, {X0P}, v0"); e(f"s_lshl_b32 {s(sT)}, {s(sCP)}, 5"); e(f"s_add_u32 {s(sT)}, {s(sT)}, {X0T}")
    e(f"buffer_load_dwordx4 v[40:43], v10, {s(sSRD,4)}, {s(sT)} offen sc1")
    e(f"buffer_load_dwordx4 v[44:47], v10, {s(sSRD,4)}, {s(sT)} offen offset:16 sc1")
def b1_issue():
    e("v_and_b32 v20, 15, v0"); e("v_lshlrev_b32 v20, 4, v20")
    e(f"global_load_dword v21, v20, {s(sDBG,2)} sc1")
def b1_check():
    lr = lab("b1r"); lg = lab("b1k"); l0 = lab("b1c")
    e("s_waitcnt vmcnt(0)")
    e(f"s_branch {l0}")
    A.label(lr)
    e(f"global_load_dword v21, v20, {s(sDBG,2)} sc1")
    e("s_waitcnt vmcnt(0)")
    A.label(l0)
    e("v_cmp_gt_u32 vcc, 16, v21")
    spin_check(lr, lg, bk=1)

def gw_loads():
    out = []
    for f in range(48):
        out.append([f"buffer_load_dwordx4 {a(4*f,4)}, v18, {s(sSRD,4)}, {s(sW)} offen offset:{(f%4)*1024} sc1"] + ([f"s_add_u32 {s(sW)}, {s(sW)}, 4096"] if f % 4 == 3 else []))
    return out
def ow_loads():
    out = []
    for f in range(32):
        dst = a(192 + 4*f, 4) if f < 16 else v(192 + 4*(f-16), 4)
        out.append([f"buffer_load_dwordx4 {dst}, v18, {s(sSRD,4)}, {s(sW)} offen offset:{(f%4)*1024} sc1"] + ([f"s_add_u32 {s(sW)}, {s(sW)}, 4096"] if f % 4 == 3 else []))
    return out

vA, vB, vEP, vEU, vEX, vRW, vRR = 164, 165, 166, 167, 168, 169, 170
def conv_setup(layer):
    e(f"s_lshr_b32 s4, {s(sWAVE)}, 1"); e(f"s_and_b32 s5, {s(sWAVE)}, 1")
    e("v_and_b32 v10, 3, v1"); e("v_sub_u32 v10, 3, v10"); e(f"v_mul_u32_u24 v12, {KCC}, v10")
    e("v_bfe_u32 v10, v1, 5, 1"); e("v_lshlrev_b32 v13, 5, v10"); e("v_sub_u32 v12, v12, v13")
    e("v_bfe_u32 v11, v1, 4, 1"); e("v_lshl_add_u32 v12, v11, 4, v12")
    e("v_bfe_u32 v10, v1, 2, 2"); e("v_lshlrev_b32 v10, 3, v10"); e("v_sub_u32 v12, v12, v10")
    e(f"s_mul_i32 {s(sT+2)}, s4, {KCH}"); e(f"s_lshl_b32 {s(sT+3)}, s5, 8"); e(f"s_sub_u32 {s(sT+2)}, {s(sT+2)}, {s(sT+3)}")
    e(f"s_add_u32 {s(sT+2)}, {s(sT+2)}, {KC + 4088 - 3776}")
    e("v_and_b32 v10, 15, v1"); e("v_lshlrev_b32 v14, 5, v10"); e("v_sub_u32 v14, v14, v13"); e("v_lshl_add_u32 v14, v11, 4, v14")
    e(f"s_mul_i32 {s(sT+4)}, s4, {UP}"); e(f"s_sub_u32 {s(sT+4)}, {s(sT+4)}, {s(sT+3)}")
    e(f"s_add_u32 {s(sT+4)}, {s(sT+4)}, {U0 + 512 - 192}")
    e(f"v_add_u32 v16, {s(sT+2)}, v12"); e(f"v_add_u32 v17, {s(sT+4)}, v14")
    e("v_and_b32 v56, 15, v1"); e("v_lshlrev_b32 v56, 5, v56"); e("v_lshrrev_b32 v13, 4, v1"); e("v_lshl_add_u32 v56, v13, 3, v56")
    e(f"s_lshl_b32 {s(sT+2)}, s5, 11"); e(f"v_add_u32 v56, {s(sT+2)}, v56")
    e(f"s_mul_i32 {s(sT+3)}, s4, {UP}"); e(f"s_add_u32 {s(sT+3)}, {s(sT+3)}, {U0+512}"); e(f"v_add_u32 v57, {s(sT+3)}, v56")
    e(f"s_lshl_b32 {s(sT+3)}, s4, 12"); e(f"s_add_u32 {s(sT+3)}, {s(sT+3)}, {X0}"); e(f"v_add_u32 v58, {s(sT+3)}, v56")
    e(f"s_lshl_b32 {s(sT+2)}, {s(sWAVE)}, 12"); e(f"s_add_u32 {s(sT+2)}, {s(sT+2)}, {RED}"); e(f"v_lshl_add_u32 v59, v1, 4, {s(sT+2)}")
    e(f"s_xor_b32 {s(sT+2)}, {s(sWAVE)}, 1"); e(f"s_lshl_b32 {s(sT+2)}, {s(sT+2)}, 12"); e(f"s_add_u32 {s(sT+2)}, {s(sT+2)}, {RED}")
    e(f"v_lshl_add_u32 v60, v1, 4, {s(sT+2)}")
    xo = XT1 if layer == 1 else XT3
    e(f"s_lshl_b32 s6, {s(sCP)}, 1"); e("s_add_u32 s6, s6, s4"); e(f"s_mul_i32 s6, s6, {PITCH}"); e(f"s_add_u32 s6, s6, {xo}")
    e("v_lshlrev_b32 v10, 4, v0"); e(f"v_add_u32 v61, {U0 + 512}, v10"); e(f"v_add_u32 v62, {X0}, v10")
    e("v_lshlrev_b32 v63, 4, v0")
    l0 = lab("zp")
    e(f"s_cmp_lg_u32 {s(sWAVE)}, 1"); e(f"s_cbranch_scc1 {l0}")
    e("v_lshrrev_b32 v11, 5, v1"); e(f"v_mul_u32_u24 v11, {UP}, v11"); e("v_and_b32 v12, 31, v1"); e("v_lshl_add_u32 v11, v12, 4, v11")
    e(f"v_add_u32 v11, {U0}, v11")
    e("v_mov_b32 v12, 0"); e("v_mov_b32 v13, 0"); e("v_mov_b32 v14, 0"); e("v_mov_b32 v15, 0")
    e("ds_write_b128 v11, v[12:15]")
    A.label(l0)
    XX = 40; F = 64
    if layer == 1:
        e("v_lshlrev_b32 v18, 4, v1")
        e(f"s_lshl_b32 {s(sW)}, {s(sJ)}, 2"); e(f"s_add_u32 {s(sW)}, {s(sW)}, {s(sWAVE)}")
        e(f"s_mul_i32 {s(sW)}, {s(sW)}, 49152"); e(f"s_add_u32 {s(sW)}, {s(sW)}, {WFG}")
    else:
        e(f"s_lshl_b32 s7, {s(sCP)}, 7"); e(f"s_add_u32 s7, s7, {X2T}")
        e("v_lshrrev_b32 v19, 2, v0"); e(f"v_mul_u32_u24 v19, {ROP}, v19"); e("v_and_b32 v10, 3, v0"); e("v_lshl_add_u32 v19, v10, 4, v19")

def conv(layer):
    XX = 40; SB = 24; F = 64; UU = 48
    if layer == 2:
        e(f"s_mov_b32 {s(sT)}, {S3}")
        e("v_lshlrev_b32 v10, 4, v0")
        e(f"buffer_load_dwordx4 {v(XX,4)}, v19, {s(sSRD,4)}, s7 offen sc1")
        e(f"buffer_load_dwordx4 {v(XX+4,4)}, v19, {s(sSRD,4)}, s7 offen offset:64 sc1")
        for i in range(4):
            e(f"s_add_u32 {s(sT+2)}, {s(sT)}, {4096*i}")
            e(f"buffer_load_dwordx4 {v(SB+4*i,4)}, v10, {s(sSRD,4)}, {s(sT+2)} offen sc1")
        e("s_waitcnt vmcnt(4)")
        for i in range(8):
            j, hi = i >> 1, i & 1
            for c in range(2):
                if hi: e(f"v_and_b32 {v(F+2*i+c)}, {s(sHI)}, {v(XX+4*c+j)}")
                else: e(f"v_lshlrev_b32 {v(F+2*i+c)}, 16, {v(XX+4*c+j)}")
        e(f"ds_write_b128 v62, {v(XX,4)}"); e(f"ds_write_b128 v62, {v(XX+4,4)} offset:4096")
        e("s_waitcnt vmcnt(0)")
    else:
        b1_issue()
        for i in range(8):
            e(f"v_and_b32 {v(SB+2*i+1)}, {s(sHI)}, {v(SB+2*i)}"); e(f"v_lshlrev_b32 {v(SB+2*i)}, 16, {v(SB+2*i)}")
        for i in range(8): e(f"v_rcp_f32 {v(SB+2*i+1)}, {v(SB+2*i+1)}")
        e("s_waitcnt vmcnt(1)")
        for i in range(8):
            j, hi = i >> 1, i & 1
            for c in range(2):
                if hi: e(f"v_and_b32 {v(F+2*i+c)}, {s(sHI)}, {v(XX+4*c+j)}")
                else: e(f"v_lshlrev_b32 {v(F+2*i+c)}, 16, {v(XX+4*c+j)}")
        e(f"ds_write_b128 v62, {v(XX,4)}"); e(f"ds_write_b128 v62, {v(XX+4,4)} offset:4096")
    stamp(f"c{layer}_ld")
    if layer == 2:
        T = 80
        for k in range(4):
            b = SB + 4*k; t = T + 4*k
            e(f"v_pk_mul_f32 {v(b,2)}, {v(b,2)}, {s(sINV512,2)}"); e(f"v_pk_mul_f32 {v(b+2,2)}, {v(b+2,2)}, {s(sINV512,2)}")
        for k in range(4):
            b = SB + 4*k
            e(f"v_fma_f32 {v(b+1)}, -{v(b)}, {v(b)}, {v(b+1)}"); e(f"v_fma_f32 {v(b+3)}, -{v(b+2)}, {v(b+2)}, {v(b+3)}")
        for k in range(4):
            b = SB + 4*k
            e(f"v_max_f32 {v(b+1)}, 0, {v(b+1)}"); e(f"v_max_f32 {v(b+3)}, 0, {v(b+3)}")
        for i in range(8):
            b = SB + 2*i
            e(f"v_cvt_pk_bf16_f32 {v(T+i)}, {v(b)}, {v(b+1)}")
        for i in range(8):
            b = SB + 2*i
            e(f"v_lshlrev_b32 {v(b)}, 16, {v(T+i)}"); e(f"v_and_b32 {v(b+1)}, {s(sHI)}, {v(T+i)}")
        for i in range(8): e(f"v_add_f32 {v(SB+2*i+1)}, 0x3727c5ac, {v(SB+2*i+1)}")
        for k in range(4): e(f"v_cvt_pk_bf16_f32 {v(T+k)}, {v(SB+4*k+1)}, {v(SB+4*k+3)}")
        for k in range(4):
            e(f"v_lshlrev_b32 {v(SB+4*k+1)}, 16, {v(T+k)}"); e(f"v_and_b32 {v(SB+4*k+3)}, {s(sHI)}, {v(T+k)}")
        for i in range(8): e(f"v_sqrt_f32 {v(SB+2*i+1)}, {v(SB+2*i+1)}")
        for k in range(4): e(f"v_cvt_pk_bf16_f32 {v(T+k)}, {v(SB+4*k+1)}, {v(SB+4*k+3)}")
        for k in range(4):
            e(f"v_lshlrev_b32 {v(SB+4*k+1)}, 16, {v(T+k)}"); e(f"v_and_b32 {v(SB+4*k+3)}, {s(sHI)}, {v(T+k)}")
        for i in range(8): e(f"v_rcp_f32 {v(SB+2*i+1)}, {v(SB+2*i+1)}")
    for i in range(8):
        e(f"v_pk_add_f32 {v(F+2*i,2)}, {v(F+2*i,2)}, {v(SB+2*i,2)} op_sel_hi:[1,0] neg_lo:[0,1] neg_hi:[0,1]")
    for i in range(8): e(f"v_cvt_pk_bf16_f32 {v(80+i)}, {v(F+2*i)}, {v(F+2*i+1)}")
    for i in range(8):
        e(f"v_lshlrev_b32 {v(F+2*i)}, 16, {v(80+i)}"); e(f"v_and_b32 {v(F+2*i+1)}, {s(sHI)}, {v(80+i)}")
    for i in range(8):
        e(f"v_pk_mul_f32 {v(F+2*i,2)}, {v(F+2*i,2)}, {v(SB+2*i,2)} op_sel:[0,1] op_sel_hi:[1,1]")
    for c in range(2):
        for j in range(4): e(f"v_cvt_pk_bf16_f32 {v(UU+4*c+j)}, {v(F+4*j+c)}, {v(F+4*j+2+c)}")
        e(f"ds_write_b128 v61, {v(UU+4*c,4)} offset:{UP*c}")
    trick = gw_loads() if layer == 1 else []
    e("s_waitcnt lgkmcnt(0)"); e("s_barrier")
    if layer == 1: b1_check()
    stamp(f"c{layer}_pro")
    vA, vB = 16, 17
    ACC = 24; SET = [64, 128]
    def loads(tp, st):
        out = []
        seq = []
        for k in range(8):
            seq.append(f"ds_read_b128 {v(SET[st]+32+4*k,4)}, {v(vB)} offset:{512*k + 64*(3 - tp)}")
            o = 64*(3 - tp) + 512*(7 - k)
            seq.append(f"ds_read_b64 {v(SET[st]+4*k,2)}, {v(vA)} offset:{o}")
            seq.append(f"ds_read_b64 {v(SET[st]+4*k+2,2)}, {v(vA)} offset:{o + 8}")
        return seq
    for l in loads(0, 0): e(l)
    ti = 0; nm = 0
    TRK = int(OPTS.get("trk", 4))
    e(f"s_mov_b32 {s(sT+4)}, {s(sDSKV)}"); e(f"s_mov_b32 {s(sT+5)}, {s(sDSKV)}")
    side = []
    for k in range(4):
        side.append(f"ds_read_b64 {v(64+2*k,2)}, v57 offset:{512*k}"); side.append(f"ds_read_b64 {v(72+2*k,2)}, v58 offset:{512*k}")
    side2 = ["s_waitcnt lgkmcnt(0)"]
    for k in range(4):
        for j in range(2):
            side2 += [f"v_lshlrev_b32 {v(96+4*k+2*j)}, 16, {v(64+2*k+j)}", f"v_and_b32 {v(97+4*k+2*j)}, {s(sHI)}, {v(64+2*k+j)}",
                      f"v_lshlrev_b32 {v(112+4*k+2*j)}, 16, {v(72+2*k+j)}", f"v_and_b32 {v(113+4*k+2*j)}, {s(sHI)}, {v(72+2*k+j)}"]
    for k in range(8): side2.append(f"v_pk_fma_f32 {v(96+2*k,2)}, {v(96+2*k,2)}, {s(sT+4,2)}, {v(112+2*k,2)}")
    fills = fill_groups(2, 61, 62) if layer == 2 else []
    hold = [0]
    for tp in range(4):
        st = tp & 1
        nxt = loads(tp + 1, st ^ 1) if tp < 3 else []
        n = 0; nb = 0
        for T in range(8):
            if tp == 0: e(f"s_waitcnt lgkmcnt({min(15, 24 - (3*T+3) + min(n, len(nxt)))})")
            elif T == 0: e("s_waitcnt lgkmcnt(0)")
            for q in range(T + 1):
                c_ = "0" if (tp == 0 and q == 0) else v(ACC+4*T, 4)
                e(f"v_mfma_f32_16x16x32_bf16 {v(ACC+4*T,4)}, {v(SET[st]+4*q,4)}, {v(SET[st]+32+4*(T-q),4)}, {c_}")
                nm += 1; nb += 1
                if not (tp == 0 and T < 3) and n < len(nxt):
                    e(nxt[n]); n += 1
                if tp == 3:
                    if nb <= 8: e(side.pop(0))
                    elif nb > 12:
                        for _ in range(2):
                            if side2: e(side2.pop(0))
                if ti < len(trick) and nm % TRK == 0:
                    for l in trick[ti]: e(l)
                    ti += 1
                elif fills and tp < 3 and nb > 4:
                    if hold[0] > 0: hold[0] -= 1
                    else:
                        g = fills.pop(0); emit_group(g)
                        if any("buffer_store" in l for l in g): hold[0] = 12
        while n < len(nxt): e(nxt[n]); n += 1
    assert not fills
    while side2: e(side2.pop(0))
    stamp(f"c{layer}_mm")
    lp1 = lab("p1"); lj = lab("pj")
    e("s_cmp_eq_u32 s5, 1"); e(f"s_cbranch_scc1 {lp1}")
    e("s_nop 3")
    for k in range(4): e(f"ds_write_b128 v59, {v(ACC+16+4*k,4)} offset:{1024*k}")
    e(f"s_branch {lj}")
    A.label(lp1)
    for k in range(4): e(f"ds_write_b128 v59, {v(ACC+4*k,4)} offset:{1024*k}")
    e("s_nop 3")
    for k in range(8): e(f"v_mov_b64 {v(ACC+2*k,2)}, {v(ACC+16+2*k,2)}")
    A.label(lj)
    for k in range(8):
        e(f"v_pk_add_f32 {v(96+2*k,2)}, {v(96+2*k,2)}, {v(ACC+2*k,2)}")
    e("s_waitcnt lgkmcnt(0)"); e("s_barrier")
    for k in range(4): e(f"ds_read_b128 {v(80+4*k,4)}, v60 offset:{1024*k}")
    for k in range(4):
        e(f"s_waitcnt lgkmcnt({3-k})")
        e(f"v_pk_add_f32 {v(96+4*k,2)}, {v(96+4*k,2)}, {v(80+4*k,2)}"); e(f"v_pk_add_f32 {v(98+4*k,2)}, {v(98+4*k,2)}, {v(82+4*k,2)}")
        e(f"v_cvt_pk_bf16_f32 {v(64+2*k)}, {v(96+4*k)}, {v(97+4*k)}"); e(f"v_cvt_pk_bf16_f32 {v(65+2*k)}, {v(98+4*k)}, {v(99+4*k)}")
        e(f"buffer_store_dwordx2 {v(64+2*k,2)}, v56, {s(sSRD,4)}, s6 offen offset:{512*k} sc1")
    return trick[ti:]

NCSK, NCSV, NCSQ = 2, 4, 6
XRES = 184
def ones_regs(r):
    for i in range(4): e(f"v_mov_b32 {v(r+i)}, 0x3f803f80")
def colsums():
    ON = 152
    for ks in range(16):
        c0 = lambda r: "0" if ks == 0 else v(r, 4)
        e(f"v_mfma_f32_16x16x32_bf16 v[28:31], {v(ON,4)}, {a((0*16+ks)*4,4)}, {c0(28)}")
        e(f"v_mfma_f32_16x16x32_bf16 v[32:35], {v(ON,4)}, {a((1*16+ks)*4,4)}, {c0(32)}")
        e(f"v_mfma_f32_16x16x32_bf16 v[36:39], {a((2*16+ks)*4,4)}, {v(ON,4)}, {c0(36)}")
    e(f"v_sub_f32 {v(NCSK)}, 0, v28"); e(f"v_sub_f32 {v(NCSK+1)}, 0, v28")
    e(f"v_sub_f32 {v(NCSV)}, 0, v32"); e(f"v_sub_f32 {v(NCSV+1)}, 0, v32")
    for i in range(4): e(f"v_sub_f32 {v(NCSQ+i)}, 0, {v(36+i)}")

TA = 12
gXE, gXO, gSW, gS4, gQA, gPQ, gKV = 156, 157, 158, 160, 164, 168, 169
def g_setup(layer):
    xt = XT1 if layer == 1 else XT3
    e("v_lshrrev_b32 v10, 3, v1"); e(f"v_mul_u32_u24 v10, {PITCH}, v10")
    e("v_bfe_u32 v11, v1, 4, 2"); e("v_lshlrev_b32 v11, 1, v11"); e("v_and_b32 v16, 7, v1"); e("v_xor_b32 v11, v11, v16")
    e("v_lshl_add_u32 v10, v11, 4, v10")
    e(f"s_lshl_b32 {s(sT)}, {s(sRS)}, 7"); e(f"v_add_u32 v19, {s(sT)}, v10")
    e(f"s_mul_i32 s4, {s(sWAVE)}, {32*PITCH}"); e(f"s_add_u32 s4, s4, {xt}")
    e(f"s_lshl_b32 s5, {s(sWAVE)}, 12"); e(f"s_add_u32 s5, s5, {AT}")
    e("v_lshrrev_b32 v10, 2, v1"); e("v_lshlrev_b32 v10, 7, v10"); e("v_and_b32 v11, 3, v1"); e("v_lshl_add_u32 v10, v11, 3, v10")
    e(f"v_add_u32 v10, {AT}, v10"); e("v_bfe_u32 v11, v1, 3, 2")
    for j in range(4):
        e(f"s_add_u32 {s(sT)}, {s(sWAVE)}, {j}"); e(f"s_and_b32 {s(sT)}, {s(sT)}, 3"); e(f"s_lshl_b32 {s(sM+j)}, {s(sT)}, 6")
        e(f"v_xor_b32 v16, {s(sT)}, v11"); e(f"v_lshl_add_u32 {v(TA+j)}, v16, 5, v10")
    ones_regs(152)
    e("v_lshrrev_b32 v11, 5, v1"); e("v_lshlrev_b32 v11, 4, v11"); e("v_bfe_u32 v16, v1, 2, 2"); e("v_add_u32 v11, v11, v16")
    e(f"s_lshl_b32 {s(sT)}, {s(sJO)}, 7"); e(f"s_lshl_b32 {s(sT+1)}, {s(sWAVE)}, 5"); e(f"s_add_u32 {s(sT)}, {s(sT)}, {s(sT+1)}")
    e(f"v_add_u32 v11, {s(sT)}, v11"); e("v_lshlrev_b32 v11, 7, v11")
    e("v_and_b32 v16, 3, v1"); e("v_lshl_add_u32 v11, v16, 3, v11"); e(f"v_add_u32 v11, {AT}, v11")
    e(f"s_and_b32 {s(sT)}, {s(sJ)}, 1"); e(f"s_lshl_b32 {s(sT)}, {s(sT)}, 1")
    e("v_bfe_u32 v16, v1, 4, 1"); e(f"v_add_u32 v16, {s(sT)}, v16"); e("v_bfe_u32 v17, v1, 3, 1"); e("v_xor_b32 v16, v16, v17")
    e(f"v_lshl_add_u32 {v(gXE)}, v16, 5, v11"); e("v_xor_b32 v16, 2, v16"); e(f"v_lshl_add_u32 {v(gXO)}, v16, 5, v11")
    e("v_and_b32 v10, 15, v1"); e("v_lshlrev_b32 v10, 2, v10"); e(f"v_add_u32 v11, {ST}, v10")
    e(f"s_lshl_b32 {s(sT)}, {s(sWAVE)}, 6"); e(f"v_add_u32 {v(gSW)}, {s(sT)}, v11")
    e("v_lshrrev_b32 v10, 4, v1"); e("v_lshlrev_b32 v10, 4, v10"); e(f"v_add_u32 v10, {ST}, v10")
    for j in range(4):
        e(f"v_add_u32 {v(gS4+j)}, {s(sM+j)}, v10"); e(f"v_add_u32 {v(gQA+j)}, {s(sM+j)}, v11")
    e("v_and_b32 v10, 15, v1"); e("v_lshlrev_b32 v10, 4, v10"); e("v_bfe_u32 v11, v1, 4, 1"); e("v_lshl_add_u32 v10, v11, 3, v10")
    e("v_lshrrev_b32 v11, 5, v1"); e(f"v_lshl_add_u32 {v(gPQ)}, v11, 10, v10")
    e("v_lshrrev_b32 v10, 4, v1"); e("v_lshlrev_b32 v10, 8, v10"); e("v_and_b32 v11, 15, v1"); e(f"v_lshl_add_u32 {v(gKV)}, v11, 2, v10")
    e(f"v_lshlrev_b32 v183, 2, v1")
    kvp_addr(KVP1 if layer == 1 else KVP2, 6)
    pq_addr(PQ1 if layer == 1 else PQ2, 7)
    e(f"s_lshl_b32 {s(sT)}, {s(sJ)}, 5"); e(f"s_mul_i32 {s(sT)}, {s(sT)}, {KVW}")
    e(f"s_lshr_b32 {s(sT+1)}, {s(sRS)}, 3"); e(f"s_mul_i32 {s(sT+1)}, {s(sT+1)}, {KVH}"); e(f"s_add_u32 {s(sT)}, {s(sT)}, {s(sT+1)}")
    e(f"s_add_u32 s3, {s(sT)}, {KVP1 if layer == 1 else KVP2}")
    e(f"s_and_b32 {s(sT+2)}, {s(sRS)}, 7")
    e(f"s_cmp_eq_u32 {s(sWAVE)}, 2")
    e(f"s_cselect_b32 {s(sT+3)}, 3, 7"); e(f"s_cselect_b32 {s(sT+4)}, 1, 0")
    e(f"s_mov_b32 s42, 0x0f0f0f0f"); e("s_cselect_b32 s42, s42, -1"); e("s_mov_b32 s43, s42")
    e(f"s_lshl_b32 {s(sT+5)}, {s(sT+2)}, 7"); e(f"s_cmp_eq_u32 {s(sWAVE)}, 2"); e(f"s_cselect_b32 {s(sT+5)}, 1024, {s(sT+5)}")
    e(f"s_lshl_b32 {s(sT+6)}, {s(sT+2)}, 6"); e(f"s_cselect_b32 {s(sT+6)}, 512, {s(sT+6)}") if False else None
    e("v_lshrrev_b32 v10, 3, v1"); e(f"v_mul_u32_u24 v10, {KVW}, v10"); e(f"v_and_b32 v11, {s(sT+3)}, v1"); e("v_lshl_add_u32 v11, v11, 4, v10")
    e(f"v_add_u32 v170, {s(sT+5)}, v11")
    e(f"s_lshl_b32 {s(sT+6)}, {s(sT+2)}, 6"); e(f"s_cmp_eq_u32 {s(sWAVE)}, 2"); e(f"s_cselect_b32 {s(sT+6)}, 512, {s(sT+6)}")
    e("v_lshrrev_b32 v10, 3, v1"); e(f"v_mul_u32_u24 v10, {FRP}, v10"); e("v_and_b32 v11, 7, v1"); e("v_lshl_add_u32 v10, v11, 3, v10")
    e(f"v_add_u32 v171, {s(sT+6)}, v10")
    f_addr(F1 if layer == 1 else F2, 40)
    e(f"s_cmp_eq_u32 {s(sT+2)}, 0"); e(f"s_cselect_b32 {s(sT+3)}, 2, 3"); e(f"s_cmp_ge_u32 {s(sWAVE)}, {s(sT+3)}"); e("s_cselect_b32 s41, 1, 0")
    e("v_and_b32 v10, 3, v1")
    e(f"v_cmp_eq_u32 {s(sM+4,2)}, 1, v10"); e(f"v_cmp_eq_u32 {s(sM+6,2)}, 2, v10"); e(f"v_cmp_eq_u32 s[2:3], 3, v10") if False else None
    if layer == 1:
        e("v_lshlrev_b32 v18, 4, v1")
        e(f"s_lshl_b32 {s(sW)}, {s(sJO)}, 2"); e(f"s_add_u32 {s(sW)}, {s(sW)}, {s(sWAVE)}")
        e(f"s_lshl_b32 {s(sW)}, {s(sW)}, 15"); e(f"s_add_u32 {s(sW)}, {s(sW)}, {WFO}")

def gphase(layer):
    kvp = KVP1 if layer == 1 else KVP2
    ff = F1 if layer == 1 else F2
    def dma(c, i):
        return [f"s_add_u32 {s(sT)}, s4, {(128*c + 8*i)*PITCH}", f"s_add_u32 m0, s5, {c*16384 + i*1024}",
                f"buffer_load_dwordx4 v19, {s(sSRD,4)}, {s(sT)} offen sc1 lds"]
    for c in range(2):
        for i in range(4):
            for l in dma(c, i): e(l)
    late = [dma(c, i) for c in (2, 3) for i in range(4)]
    XF = [64, 80]
    AK, AV, AQ, GR, RS_, ON = 96, 112, 128, 144, 148, 152
    trick = ow_loads() if layer == 1 else []
    def reads(ks, base=None):
        b = XF[ks & 1] if base is None else base
        out = []
        for j in range(4):
            out.append(f"ds_read_b64_tr_b16 {v(b+4*j,2)}, {v(TA+j)} offset:{ks*4096}")
            out.append(f"ds_read_b64_tr_b16 {v(b+4*j+2,2)}, {v(TA+j)} offset:{ks*4096+2048}")
        return out
    stamp(f"g{layer}_iss")
    e("s_waitcnt vmcnt(4)"); e("s_barrier")
    stamp(f"g{layer}_ld0")
    for l in reads(0): e(l)
    st_ = {"ti": 0, "nw": 0, "nm": 0}
    TRG = int(OPTS.get("trg", 5))
    def trickle(ok):
        st_["nm"] += 1
        if ok and st_["ti"] < len(trick) and st_["nm"] % TRG == 0:
            for l in trick[st_["ti"]]: e(l)
            st_["ti"] += 1; st_["nw"] += 1
    for ks in range(16):
        nxt = []
        if ks < 15:
            if (ks + 1) % 4 == 0:
                c = (ks + 1) // 4
                e(f"s_waitcnt vmcnt({min(63, 4*(3-c) + st_['nw'])})"); e("s_barrier")
            nxt = reads(ks + 1)
        x = XF[ks & 1]
        e("s_waitcnt lgkmcnt(0)")
        z = lambda r: "0" if ks == 0 else v(r, 4)
        mf = []
        for j in range(4):
            mf.append(f"v_mfma_f32_16x16x32_bf16 {v(AK+4*j,4)}, {v(x+4*j,4)}, {a((0*16+ks)*4,4)}, {z(AK+4*j)}")
            mf.append(f"v_mfma_f32_16x16x32_bf16 {v(AV+4*j,4)}, {v(x+4*j,4)}, {a((1*16+ks)*4,4)}, {z(AV+4*j)}")
        mf.insert(1, f"v_mfma_f32_16x16x32_bf16 {v(GR,4)}, {v(x,4)}, {v(x,4)}, {z(GR)}")
        mf.insert(3, f"v_mfma_f32_16x16x32_bf16 {v(RS_,4)}, {v(ON,4)}, {v(x,4)}, {z(RS_)}")
        for m_i, m_ in enumerate(mf):
            e(m_)
            if m_i < len(nxt): e(nxt[m_i])
            if late and m_i in (1, 4, 7):
                for l in late.pop(0): e(l)
            trickle(ks >= 4)
    stamp(f"g{layer}_mm")
    for jj in range(4):
        e(f"ds_read_b64_tr_b16 {v(XRES+2*jj,2)}, {v(gXE + (jj & 1))} offset:{512*jj}")
    e("v_and_b32 v10, 3, v1")
    e(f"v_cmp_eq_u32 {s(sM+4,2)}, 1, v10"); e(f"v_cmp_eq_u32 {s(sM+6,2)}, 2, v10"); e("v_cmp_eq_u32 vcc, 3, v10")
    e(f"v_cndmask_b32 v11, {v(GR)}, {v(GR+1)}, {s(sM+4,2)}")
    e(f"v_cndmask_b32 v11, v11, {v(GR+2)}, {s(sM+6,2)}")
    e(f"v_cndmask_b32 v11, v11, {v(GR+3)}, vcc")
    stats_final(RS_, 11, 16, 17, 20)
    e("v_mul_f32 v16, v16, v17")
    e(f"s_mov_b32 {s(sT+2)}, 0x00f0000f"); e(f"s_mov_b32 {s(sT+3)}, 0xf0000f00")
    e(f"s_mov_b64 exec, {s(sT+2,2)}")
    e(f"ds_write_b32 {v(gSW)}, v17"); e(f"ds_write_b32 {v(gSW)}, v16 offset:256")
    e("s_mov_b64 exec, -1")
    R4, M4, RQ, MQ = 24, 40, 56, 176
    e("s_waitcnt lgkmcnt(0)"); e("s_barrier")
    for j in range(4):
        e(f"ds_read_b128 {v(R4+4*j,4)}, {v(gS4+j)}"); e(f"ds_read_b128 {v(M4+4*j,4)}, {v(gS4+j)} offset:256")
    for j in range(4):
        e(f"ds_read_b32 {v(RQ+2*j)}, {v(gQA+j)}"); e(f"ds_read_b32 {v(MQ+2*j)}, {v(gQA+j)} offset:256")
    stamp(f"g{layer}_st")
    PK, VV = 72, 80
    def phi2(items):
        for (rp, acc, mp, ncs, dst, T, bro) in items:
            e(f"v_pk_fma_f32 {v(T,2)}, {v(mp,2)}, {v(ncs,2)}, {s(sEPS6,2)}" + (" op_sel_hi:[0,1,1]" if bro else ""))
        for (rp, acc, mp, ncs, dst, T, bro) in items:
            e(f"v_pk_fma_f32 {v(T,2)}, {v(rp,2)}, {v(acc,2)}, {v(T,2)}" + (" op_sel_hi:[0,1,1]" if bro else ""))
        for (rp, acc, mp, ncs, dst, T, bro) in items: e(f"v_pk_mul_f32 {v(T+2,2)}, {v(T,2)}, {s(sLOG2E,2)}")
        for (rp, acc, mp, ncs, dst, T, bro) in items:
            e(f"v_exp_f32 {v(T+2)}, {v(T+2)} clamp"); e(f"v_exp_f32 {v(T+3)}, {v(T+3)} clamp")
        for (rp, acc, mp, ncs, dst, T, bro) in items:
            e(f"v_max_f32 {v(T)}, {s(sEPS6)}, {v(T)}"); e(f"v_max_f32 {v(T+1)}, {s(sEPS6)}, {v(T+1)}")
        for (rp, acc, mp, ncs, dst, T, bro) in items: e(f"v_pk_add_f32 {v(T,2)}, {v(T,2)}, {v(T+2,2)}")
        for (rp, acc, mp, ncs, dst, T, bro) in items: e(f"v_cvt_pk_bf16_f32 {v(dst)}, {v(T)}, {v(T+1)}")
    for j in range(4):
        e(f"s_waitcnt lgkmcnt({min(15, 8 + 2*(3-j))})")
        items = [(R4+4*j+2*hp, AK+4*j+2*hp, M4+4*j+2*hp, NCSK, PK+2*j+hp, 88 + 4*hp, False) for hp in range(2)]
        for hp in range(2):
            T = 104 + 2*hp if False else 172 + 2*hp
            e(f"v_pk_mul_f32 {v(T,2)}, {v(M4+4*j+2*hp,2)}, {v(NCSV,2)}")
        for hp in range(2):
            T = 172 + 2*hp
            e(f"v_pk_fma_f32 {v(T,2)}, {v(R4+4*j+2*hp,2)}, {v(AV+4*j+2*hp,2)}, {v(T,2)}")
        phi2(items)
        for hp in range(2):
            T = 172 + 2*hp
            e(f"v_cvt_pk_bf16_f32 {v(VV+2*j+hp)}, {v(T)}, {v(T+1)}")
        if j == 1:
            e(f"v_mfma_f32_16x16x32_bf16 {v(GR,4)}, {v(VV,4)}, {v(PK,4)}, 0")
            e(f"v_mfma_f32_16x16x32_bf16 {v(RS_,4)}, {v(ON,4)}, {v(PK,4)}, 0")
    e(f"v_mfma_f32_16x16x32_bf16 {v(GR,4)}, {v(VV+4,4)}, {v(PK+4,4)}, {v(GR,4)}")
    e(f"v_mfma_f32_16x16x32_bf16 {v(RS_,4)}, {v(ON,4)}, {v(PK+4,4)}, {v(RS_,4)}")
    PQR = 96
    e("s_waitcnt lgkmcnt(0)")
    for i in range(4):
        e(f"buffer_store_dword {v(GR+i)}, {v(gKV)}, {s(sSRD,4)}, s6 offen offset:{64*i} sc1")
    e("s_mov_b64 exec, 0xffff")
    e(f"buffer_store_dword {v(RS_)}, v183, {s(sSRD,4)}, s6 offen offset:1024 sc1")
    e("s_mov_b64 exec, -1")
    stamp(f"g{layer}_kv")
    def red_loads():
        for i in range(4):
            e(f"s_add_u32 {s(sT+4)}, s3, {8*i*KVW}")
            e(f"buffer_load_dwordx4 {v(24+4*i,4)}, v170, {s(sSRD,4)}, {s(sT+4)} offen sc1")
    RLK = int(OPTS.get("rlk", 11))
    QS = [64, 80, 112]
    for l in reads(0, QS[0]): e(l)
    for l in reads(1, QS[1]): e(l)
    for ks in range(16):
        nxt = reads(ks + 2, QS[(ks + 2) % 3]) if ks < 14 else []
        x = QS[ks % 3]
        e(f"s_waitcnt lgkmcnt({8 if ks < 15 else 0})")
        z = lambda r: "0" if ks == 0 else v(r, 4)
        if ks == RLK:
            lsk = lab("rl")
            e("s_cmp_eq_u32 s41, 0"); e(f"s_cbranch_scc1 {lsk}")
            red_loads()
            A.label(lsk)
        for j in range(4):
            e(f"v_mfma_f32_16x16x32_bf16 {v(AQ+4*j,4)}, {a((2*16+ks)*4,4)}, {v(x+4*j,4)}, {z(AQ+4*j)}")
            for l in nxt[2*j:2*j+2]: e(l)
            if j % 2 == 0 and st_["ti"] < len(trick):
                for l in trick[st_["ti"]]: e(l)
                st_["ti"] += 1
    stamp(f"g{layer}_q")
    for j in range(0, 4, 2):
        phi2([(RQ+2*(j+jj), AQ+4*(j+jj)+2*hp, MQ+2*(j+jj), NCSQ+2*hp, PQR+2*(j+jj)+hp, 64 + 8*jj + 4*hp, True) for jj in range(2) for hp in range(2)])
    for j in range(4):
        e(f"s_lshl_b32 {s(sT+2)}, {s(sM+j)}, 2"); e(f"s_add_u32 {s(sT+2)}, {s(sT+2)}, s7")
        e(f"buffer_store_dwordx2 {v(PQR+2*j,2)}, {v(gPQ)}, {s(sSRD,4)}, {s(sT+2)} offen sc1")
    for ins in trick[st_["ti"]:]:
        for l in ins: e(l)
    lred = lab("red")
    e("s_cmp_eq_u32 s41, 0"); e(f"s_cbranch_scc1 {lred}")
    lr = lab("rp"); lg = lab("rg"); l0 = lab("r0")
    e(f"s_waitcnt vmcnt({4 + len(trick[st_['ti']:])})")
    e(f"s_branch {l0}")
    A.label(lr)
    red_loads()
    e("s_waitcnt vmcnt(0)")
    A.label(l0)
    maxtree([24, 28, 32, 36], 56)
    e("v_cmp_eq_u32 vcc, -1, v56")
    spin_check(lr, lg)
    stamp(f"r{layer}_ok")
    e("v_pk_add_f32 v[24:25], v[24:25], v[28:29]"); e("v_pk_add_f32 v[26:27], v[26:27], v[30:31]")
    e("v_pk_add_f32 v[32:33], v[32:33], v[36:37]"); e("v_pk_add_f32 v[34:35], v[34:35], v[38:39]")
    e("v_pk_add_f32 v[24:25], v[24:25], v[32:33]"); e("v_pk_add_f32 v[26:27], v[26:27], v[34:35]")
    regs = [24, 25, 26, 27]
    for r in regs: e(f"v_add_f32_dpp {v(r)}, {v(r)}, {v(r)} row_ror:8 row_mask:0xf bank_mask:0xf")
    for r in regs: e(f"v_mov_b32 {v(r+4)}, {v(r)}")
    for r in regs: e(f"v_permlane16_swap_b32 {v(r)}, {v(r+4)}")
    for r in regs: e(f"v_add_f32 {v(r)}, {v(r)}, {v(r+4)}")
    for r in regs: e(f"v_mov_b32 {v(r+4)}, {v(r)}")
    for r in regs: e(f"v_permlane32_swap_b32 {v(r)}, {v(r+4)}")
    for r in regs: e(f"v_add_f32 {v(r)}, {v(r)}, {v(r+4)}")
    e("v_cvt_pk_bf16_f32 v28, v24, v25"); e("v_cvt_pk_bf16_f32 v29, v26, v27")
    e("s_mov_b64 exec, s[42:43]")
    e(f"buffer_store_dwordx2 v[28:29], v171, {s(sSRD,4)}, s40 offen sc1")
    e("s_mov_b64 exec, -1")
    A.label(lred)

def ophase(layer):
    pq = PQ1 if layer == 1 else PQ2
    ff = F1 if layer == 1 else F2
    KF, PQF = 24, 56
    e("v_and_b32 v10, 31, v1"); e("v_min_u32 v10, 16, v10")
    e("v_lshlrev_b32 v10, 5, v10"); e("v_lshrrev_b32 v11, 5, v1"); e("v_lshl_add_u32 v10, v11, 4, v10")
    e(f"s_lshl_b32 {s(sT)}, {s(sWAVE)}, 3"); e(f"s_mul_i32 s4, {s(sT)}, {FP}"); e(f"s_add_u32 s4, s4, {ff}")
    e(f"s_mul_i32 {s(sT+1)}, {s(sXCD)}, {FRP}"); e(f"s_add_u32 s4, s4, {s(sT+1)}")
    e("v_and_b32 v11, 31, v1"); e("v_lshlrev_b32 v11, 4, v11"); e("v_lshrrev_b32 v12, 5, v1"); e("v_lshl_add_u32 v11, v12, 10, v11")
    e(f"s_mul_i32 s5, {s(sT)}, {HP}"); e(f"s_add_u32 s5, s5, {pq}")
    e(f"s_lshl_b32 {s(sT+3)}, {s(sRS)}, 11"); e(f"s_add_u32 s5, s5, {s(sT+3)}")
    e(f"s_and_b32 {s(sT+3)}, {s(sRO)}, 1"); e(f"s_lshl_b32 {s(sT+3)}, {s(sT+3)}, 9"); e(f"s_add_u32 s5, s5, {s(sT+3)}")
    e(f"s_mul_i32 s3, {s(sWAVE)}, 5120"); e(f"s_add_u32 s3, s3, {AT + 32768}")
    e("v_add_u32 v10, s3, v10"); e("v_lshlrev_b32 v19, 4, v1")
    e(f"s_lshl_b32 {s(sT)}, {s(sWAVE)}, 13"); e(f"s_add_u32 {s(sT)}, {s(sT)}, {OT}")
    e(f"v_lshl_add_u32 v12, v1, 4, {s(sT)}")
    e(f"v_lshlrev_b32 v13, 4, v1"); e(f"v_add_u32 v13, {OT}, v13")
    if layer == 1:
        e("v_and_b32 v14, 31, v1"); e(f"v_mul_u32_u24 v14, {TBP}, v14"); e("v_lshrrev_b32 v15, 5, v1"); e("v_lshl_add_u32 v14, v15, 5, v14")
        e(f"s_mul_i32 {s(sT+4)}, {s(sWAVE)}, {32*TBP}"); e(f"s_add_u32 {s(sT+4)}, {s(sT+4)}, {TB}"); e(f"v_add_u32 v14, {s(sT+4)}, v14")
        e("v_lshrrev_b32 v15, 4, v1"); e("v_lshlrev_b32 v15, 3, v15"); e("v_bfe_u32 v16, v1, 2, 2"); e("v_add_u32 v15, v15, v16")
        e(f"v_mul_u32_u24 v15, {TBP}, v15"); e("v_and_b32 v16, 3, v1"); e("v_lshl_add_u32 v15, v16, 3, v15"); e(f"v_add_u32 v15, {s(sT+4)}, v15")
        e("v_and_b32 v16, 15, v1"); e(f"v_lshlrev_b32 v16, 6, v16"); e("v_lshrrev_b32 v17, 4, v1"); e("v_lshl_add_u32 v16, v17, 4, v16")
        e(f"s_lshl_b32 s6, {s(sJO)}, 7"); e(f"s_lshl_b32 {s(sT+1)}, {s(sWAVE)}, 5"); e(f"s_add_u32 s6, s6, {s(sT+1)}")
        e(f"s_lshl_b32 s6, s6, 6"); e(f"s_mul_i32 {s(sT+1)}, {s(sRO)}, {ROP}"); e(f"s_add_u32 s6, s6, {s(sT+1)}")
        e(f"s_add_u32 s6, s6, {X2T}")
        e("v_bfe_u32 v17, v1, 1, 2"); e("v_lshlrev_b32 v17, 12, v17"); e("v_bfe_u32 v18, v1, 3, 2"); e("v_lshl_add_u32 v17, v18, 4, v17")
        e("v_and_b32 v18, 1, v1"); e("v_lshl_add_u32 v17, v18, 3, v17"); e("v_lshrrev_b32 v18, 5, v1"); e("v_lshl_add_u32 v17, v18, 2, v17")
        e(f"s_lshl_b32 s7, {s(sRO)}, 6"); e(f"s_add_u32 s7, s7, {S3}")
    else:
        e("v_and_b32 v14, 31, v1"); e("v_lshlrev_b32 v14, 10, v14"); e("v_lshrrev_b32 v15, 5, v1"); e("v_lshl_add_u32 v14, v15, 5, v14")
        e(f"s_lshl_b32 {s(sT)}, {s(sRO)}, 15"); e(f"s_lshl_b32 {s(sT+1)}, {s(sJO)}, 8"); e(f"s_add_u32 {s(sT)}, {s(sT)}, {s(sT+1)}")
        e(f"s_lshl_b32 {s(sT+1)}, {s(sWAVE)}, 6"); e(f"s_add_u32 {s(sT)}, {s(sT)}, {s(sT+1)}")
        e(f"v_add_u32 v14, {s(sT)}, v14")
    XF = 104
    def pq_loads():
        for h in range(8):
            e(f"s_add_u32 {s(sT+3)}, s5, {h*HP}")
            e(f"buffer_load_dwordx4 {v(PQF+4*h,4)}, v11, {s(sSRD,4)}, {s(sT+3)} offen sc1")
    e("s_barrier")
    stamp(f"o{layer}_gate")
    if STAMPS and f"o{layer}_cnt" in STSET: e("s_mov_b32 s101, 0")
    if STAMPS and f"o{layer}_st0" in STSET:
        e("s_waitcnt vmcnt(0)"); stamp(f"o{layer}_st0")
    pq_loads()
    if STAMPS and f"o{layer}_pq" in STSET:
        stamp(f"o{layer}_pqi"); e("s_waitcnt vmcnt(0)"); stamp(f"o{layer}_pq")
    if int(OPTS.get("osl", 0)): e(f"s_sleep {OPTS.get('osl')}")
    lr = lab("of"); lg = lab("ofk")
    A.label(lr)
    for i in range(5):
        e(f"s_add_u32 {s(sT+3)}, s4, {1024*i}"); e(f"s_add_u32 m0, s3, {1024*i}")
        e(f"buffer_load_dwordx4 v19, {s(sSRD,4)}, {s(sT+3)} offen sc1 lds")
    e("s_waitcnt vmcnt(0)")
    for h in range(8): e(f"ds_read_b128 {v(KF+4*h,4)}, v10 offset:{h*FP}")
    e("s_waitcnt lgkmcnt(0)")
    if STAMPS and f"o{layer}_cnt" in STSET: e("s_add_u32 s101, s101, 1")
    maxtree([KF+4*h+o for h in range(8) for o in (0, 2)], 18)
    e("v_cmp_eq_u32 vcc, -1, v18")
    spin_check(lr, lg)
    stamp(f"o{layer}_fok")
    if STAMPS and f"o{layer}_cnt" in STSET:
        i = len(stnames); stnames.append(f"o{layer}_cnt"); e(f"s_mov_b32 s{84+i}, s101")
    lr = lab("oq"); lg = lab("oqk")
    A.label(lr)
    maxtree([PQF+4*h+o for h in range(8) for o in (0, 2)], 18)
    e("v_cmp_eq_u32 vcc, -1, v18")
    e(f"s_cbranch_vccz {lg}")
    e(f"s_sub_u32 {s(sSPIN)}, {s(sSPIN)}, 1"); e(f"s_cbranch_scc1 {lg}_x")
    pq_loads()
    e("s_waitcnt vmcnt(0)")
    e(f"s_branch {lr}")
    A.label(lg + "_x"); e(f"s_mov_b32 {s(sSPIN)}, 0")
    A.label(lg)
    stamp(f"o{layer}_ld")
    DB = [88, 104, 120, 136, 152, 168, 24, 56]
    def m1(h): e(f"v_mfma_f32_32x32x16_bf16 {v(DB[h],16)}, {v(KF+4*h,4)}, {v(PQF+4*h,4)}, 0")
    def proc2(h0):
        hs = (h0, h0 + 1)
        for h in hs: e(f"v_add_f32 {v(DB[h]+8)}, {s(sEPS6)}, {v(DB[h]+8)}")
        for h in hs: e(f"v_rcp_f32 {v(DB[h]+8)}, {v(DB[h]+8)}")
        for k in range(4):
            for h in hs: e(f"v_pk_mul_f32 {v(DB[h]+2*k,2)}, {v(DB[h]+2*k,2)}, {v(DB[h]+8,2)} op_sel_hi:[1,0]")
        for h in hs:
            for k in range(4): e(f"v_cvt_pk_bf16_f32 {v(DB[h]+10+k)}, {v(DB[h]+2*k)}, {v(DB[h]+2*k+1)}")
            e(f"ds_write_b128 v12, {v(DB[h]+10,4)} offset:{1024*h}")
    for h in range(6): m1(h)
    proc2(0)
    m1(6); m1(7)
    proc2(2); proc2(4); proc2(6)
    stamp(f"o{layer}_m1")
    e("s_waitcnt lgkmcnt(0)"); e("s_barrier")
    ACC = 24; NB = 8; OF = [56 + 4*i for i in range(NB)]
    for h in range(NB): e(f"ds_read_b128 {v(OF[h],4)}, v13 offset:{1024*h}")
    for k in range(8):
        e(f"v_lshlrev_b32 {v(XF+2*k)}, 16, {v(XRES+k)}"); e(f"v_and_b32 {v(XF+2*k+1)}, {s(sHI)}, {v(XRES+k)}")
    for h in range(32):
        e(f"s_waitcnt lgkmcnt({min(NB-1, 31-h)})")
        w_ = a(192 + 4*h, 4) if h < 16 else v(192 + 4*(h-16), 4)
        c_ = "0" if h == 0 else v(ACC, 16)
        e(f"v_mfma_f32_32x32x16_bf16 {v(ACC,16)}, {w_}, {v(OF[h % NB],4)}, {c_}")
        if h + NB < 32: e(f"ds_read_b128 {v(OF[h % NB],4)}, v13 offset:{1024*(h+NB)}")
    stamp(f"o{layer}_g2")
    for k in range(8): e(f"v_pk_add_f32 {v(XF+2*k,2)}, {v(XF+2*k,2)}, {v(ACC+2*k,2)}")
    PKD = 120
    for k in range(8): e(f"v_cvt_pk_bf16_f32 {v(PKD+k)}, {v(XF+2*k)}, {v(XF+2*k+1)}")
    if layer == 2:
        fl = OPTS.get("outfl", "").replace("_", " ")
        e(f"global_store_dwordx4 v14, {v(PKD,4)}, {s(sOUT,2)} {fl}")
        e(f"global_store_dwordx4 v14, {v(PKD+4,4)}, {s(sOUT,2)} offset:16 {fl}")
        return
    e(f"ds_write_b128 v14, {v(PKD,4)}"); e(f"ds_write_b128 v14, {v(PKD+4,4)} offset:16")
    e(f"v_pk_add_f32 v[64:65], {v(XF,2)}, {v(XF+2,2)}"); e(f"v_pk_mul_f32 v[66:67], {v(XF,2)}, {v(XF,2)}")
    e(f"v_pk_add_f32 v[68:69], {v(XF+4,2)}, {v(XF+6,2)}"); e(f"v_pk_mul_f32 v[70:71], {v(XF+2,2)}, {v(XF+2,2)}")
    for k in range(2, 8):
        e(f"v_pk_fma_f32 {v(66+4*(k&1),2)}, {v(XF+2*k,2)}, {v(XF+2*k,2)}, {v(66+4*(k&1),2)}")
        if k >= 4: e(f"v_pk_add_f32 {v(64+4*(k&1),2)}, {v(64+4*(k&1),2)}, {v(XF+2*k,2)}")
    e("s_waitcnt lgkmcnt(0)")
    for k in range(2):
        e(f"ds_read_b64_tr_b16 {v(80+4*k,2)}, v15 offset:{32*k}")
        e(f"ds_read_b64_tr_b16 {v(82+4*k,2)}, v15 offset:{32*k + 4*TBP}")
    e("v_pk_add_f32 v[64:65], v[64:65], v[68:69]"); e("v_pk_add_f32 v[66:67], v[66:67], v[70:71]")
    e("v_add_f32 v64, v64, v65"); e("v_add_f32 v65, v66, v67")
    e("v_permlane32_swap_b32 v64, v65")
    e("v_add_f32 v64, v64, v65")
    e(f"s_lshl_b32 {s(sT)}, {s(sWAVE)}, 8"); e(f"s_add_u32 {s(sT)}, {s(sT)}, {ST}"); e(f"v_lshl_add_u32 v66, v1, 2, {s(sT)}")
    e("ds_write_b32 v66, v64")
    e("s_waitcnt lgkmcnt(1)")
    if OPTS.get("nox2") != "1":
        e(f"buffer_store_dwordx4 v[80:83], v16, {s(sSRD,4)}, s6 offen sc1")
        e(f"buffer_store_dwordx4 v[84:87], v16, {s(sSRD,4)}, s6 offen offset:1024 sc1")
    e("s_waitcnt lgkmcnt(0)"); e("s_barrier")
    l = lab("oat")
    e(f"s_cmp_lg_u32 {s(sWAVE)}, 0"); e(f"s_cbranch_scc1 {l}")
    e(f"v_lshlrev_b32 v66, 2, v1"); e(f"v_add_u32 v66, {ST}, v66")
    for k in range(4): e(f"ds_read_b32 {v(68+k)}, v66 offset:{256*k}")
    e("s_waitcnt lgkmcnt(0)")
    e("v_add_f32 v68, v68, v69"); e("v_add_f32 v70, v70, v71"); e("v_add_f32 v68, v68, v70")
    if OPTS.get("noat") != "1": e(f"buffer_atomic_add_f32 v68, v17, {s(sSRD,4)}, s7 offen")
    A.label(l)

def build():
    prologue()
    stamp("start")
    idx_loads()
    p0_fills()
    stamp("p_iss")
    e("s_waitcnt vmcnt(8)")
    stamp("p_ld")
    p0_x0_write()
    p0_stats()
    e("s_waitcnt vmcnt(6) lgkmcnt(0)"); e("s_barrier")
    p0_x0_store()
    nonce_issue()
    p0_wfrag()
    kgen_setup()
    stamp("p_st")
    kgen_round(["X1", "X2", "Y1"], 0); kgen_round(["Y2"], 0)
    nonce_get(2)
    p0_stats_store()
    stamp("p_s1")
    kgen_round(["X1", "X2", "Y1"], 1); kgen_round(["Y2"], 1)
    arrive(0, vm=1)
    stamp("arr1")
    fg = fill_groups(1, 58, 59)
    def upto_store():
        while fg:
            g = fg.pop(0); emit_group(g)
            if any("buffer_store" in l for l in g): return
    upto_store()
    kgen_round(["X1", "X2"], 2); upto_store(); kgen_round(["X1", "X2"], 3); upto_store()
    stamp("k_tab")
    kgen_mm([], upto_store)
    while fg: upto_store()
    e("s_waitcnt lgkmcnt(0)"); e("s_barrier")
    stamp("kgen")
    if stop_here("K"): return
    conv_setup(1)
    stamp("B1")
    rest = conv(1)
    arrive(1)
    stamp("C1")
    if stop_here("C1"): return
    for ins in rest:
        for l in ins: e(l)
    g_setup(1)
    e("s_waitcnt vmcnt(0)")
    colsums()
    wait(1)
    stamp("B2")
    gphase(1)
    stamp("G1")
    if stop_here("G1"): return
    ophase(1)
    stamp("o1_end")
    arrive(2)
    stamp("O1")
    if stop_here("O1"): return
    conv_setup(2)
    stamp("c2_set")
    wait(2)
    stamp("B4")
    conv(2)
    arrive(3)
    stamp("C2")
    if stop_here("C2"): return
    g_setup(2)
    wait(3)
    stamp("B5")
    gphase(2)
    stamp("G2")
    if stop_here("G2"): return
    ophase(2)
    if STAMPS:
        e("s_waitcnt vmcnt(0)")
        stamp("O2")
        stamps_out()

build()
A.label("L_end")
e("s_endpgm")

def rb_int(j):
    u = struct.unpack("<I", struct.pack("<f", float(j)))[0]
    u = (u + 0x7fff + ((u >> 16) & 1)) & 0xffff0000
    return int(struct.unpack("<f", struct.pack("<I", u))[0])
idx = []
for x in range(2064):
    j = 2047 - x
    if j < 0: ent = 1024
    else:
        t = rb_int(j); ent = t if t < 512 else 512 + (t - 512) // 4
    idx.append(2 * ent)

lines, nn = hazard_pass(A.lines)
probs = check_branches(lines)
for p in probs: print("BRANCH HAZARD:", p, file=sys.stderr)
hdr = open("interleave_layers__ssm_conv_s4d__linear_attn_block__prompt.s.ref").read().split("; Override launch")[0]
out = hdr + "; Override launch geometry by editing the next line.\n"
out += f"; @launch grid=(256,1,1) block=(256,1,1) lds={LDS_BYTES}\n"
out += '.amdgcn_target "amdgcn-amd-amdhsa--gfx950"\n.text\n'
out += f".globl {NAME}\n.p2align 8\n.type {NAME},@function\n{NAME}:\n"
out += "\n".join(lines) + "\n"
out += ".p2align 6\n.type L_idx,@object\nL_idx:\n"
for i in range(0, len(idx), 16): out += "  .short " + ", ".join(str(x) for x in idx[i:i+16]) + "\n"
out += "L_tab_end:\n"
out += f""".section .rodata,"a"
.p2align 6
.amdhsa_kernel {NAME}
  .amdhsa_next_free_vgpr 512
  .amdhsa_next_free_sgpr 102
  .amdhsa_accum_offset 256
  .amdhsa_group_segment_fixed_size 0
  .amdhsa_kernarg_size 104
  .amdhsa_user_sgpr_count 2
  .amdhsa_user_sgpr_kernarg_segment_ptr 1
  .amdhsa_system_sgpr_workgroup_id_x 1
  .amdhsa_float_denorm_mode_32 3
.end_amdhsa_kernel
"""
open(sys.argv[1], "w").write(out)
if STAMPS: open(sys.argv[1] + ".names", "w").write(",".join(stnames))
print(f"wrote {sys.argv[1]}: {len(lines)} lines, {nn} nops inserted; WS_USED={WS_USED:#x}", file=sys.stderr)
```

```python
import sys, struct
from asmlib import *

NAME = "interleave_layers__ssm_conv_s4d__linear_attn_block__prompt_kernel"
OPTS = {}
for x in sys.argv[2:]:
    if "=" in x:
        k_, v_ = x.split("="); OPTS[k_] = v_
STOP = OPTS.get("stop")
SPINMAX = int(OPTS.get("spin", 100000))
BK = int(OPTS.get("bk", 2))

PITCH = 4224
S1 = 0x000000
S3 = 0x004000
FP = 640; FRP = 32 * FP + 128; F1 = 0x1200000 - 0x100000; F2 = F1 + 0x40000
STAMP_OFF = 0x020000
X0P = 8192 + 128
CNT = 0x030000
KVP1 = 0x040000; KVH = 1152; KVW = 4 * KVH; KVP2 = KVP1 + 0x128000
WFG = 0x2A0000; WFO = WFG + 0x180000
XSZ = 0x220000
XT1 = 0x4A0000; XT3 = XT1 + XSZ; X2T = XT3 + XSZ
ROP = 32768 + 256
HP = 65536 + 256
PQ1 = X2T + XSZ; PQ2 = PQ1 + 0x210000
X0T = 0x1200000
WS_USED = 0x1200000 + 0x210000
assert PQ2 + 0x210000 <= F1
KC = 0; KCC = 4160; KCH = 4 * KCC
AT = 66560
MISC = AT + 65536
ST = MISC
WST = MISC + 2048
CT = WST + 8192; CTP = 2080
TB = WST; TBP = 80
LDS_BYTES = 163840
X0S = 147456
TKP = 224; TABC = 256 * TKP
U0 = AT; UP = 4608; X0 = AT + 2 * UP; RED = X0 + 8192
OT = AT

sU, sLOGA, sAIM, sCR, sCI, sLDT, sDSK = 8, 10, 12, 14, 16, 18, 20
sWQKV, sWO, sOUT, sDBG, sWS = 24, 26, 28, 30, 32
sSRD = 36; sSRD2 = 40
sWAVE, sXCD, sIDX, sCP, sRS, sJ, sRO, sJO = 44, 45, 46, 47, 48, 49, 50, 51
sSPIN = 52; sDSKV = 53
sT = 54
sLOG2E = 64; sEPS6 = 66; sM = 68; sHI = 76; sPC = 78; sINV512 = 80
sW = 34
sNON = 35

def f2u(f): return struct.unpack("<I", struct.pack("<f", f))[0]
A = Asm(); e = A.e
uid = [0]
def lab(p):
    uid[0] += 1; return f"L_{p}_{uid[0]}"

STAMPS = OPTS.get("stamps") == "1"
DEFSET = "start,arr1,kgen,B1,c1_pro,C1,B2,g1_kv,G1,o1_ld,O1,B4,c2_pro,C2,B5,G2,o2_ld,O2"
STSET = OPTS.get("st", DEFSET).split(",")
stnames = []
def stamp(name):
    if not STAMPS or name not in STSET: return
    i = len(stnames); stnames.append(name); assert i < 18
    e(f"{'s_memtime' if OPTS.get('clk') == '1' else 's_memrealtime'} s[82:83]"); e("s_waitcnt lgkmcnt(0)"); e(f"s_mov_b32 s{84+i}, s82")
def stamps_out():
    if not STAMPS: return
    if OPTS.get("dbgout"):
        l = lab("so")
        e(f"s_cmp_lg_u32 {s(sWAVE)}, 0"); e(f"s_cbranch_scc1 {l}")
        e(f"s_cmp_lg_u32 s2, {OPTS.get('dbgout')}"); e(f"s_cbranch_scc1 {l}")
        e("s_mov_b64 exec, 1")
        words = [2, 3, 5, 6, 7, 9, 10, 11, 13, 14, 15]
        for i in range(1, min(len(stnames), 12)):
            e(f"s_sub_u32 {s(sT)}, s{84+i}, s84")
            e(f"v_mov_b32 v10, {s(sT)}"); e(f"v_mov_b32 v11, {4*words[i-1]}")
            e(f"global_store_dword v11, v10, {s(sDBG,2)}")
        e("s_mov_b64 exec, -1")
        A.label(l)
        return
    l = lab("so")
    e(f"s_cmp_lg_u32 {s(sWAVE)}, {OPTS.get('stw', '0')}"); e(f"s_cbranch_scc1 {l}")
    e(f"s_lshl_b32 {s(sT)}, s2, 7"); e(f"s_add_u32 {s(sT)}, {s(sT)}, {STAMP_OFF}")
    e("s_mov_b64 exec, 1")
    for i in range(len(stnames)):
        e(f"v_mov_b32 v10, s{84+i}"); e(f"v_mov_b32 v11, {4*i}")
        e(f"buffer_store_dword v10, v11, {s(sSRD,4)}, {s(sT)} offen")
    e("s_mov_b64 exec, -1")
    A.label(l)
def stop_here(name):
    if STOP == name:
        e("s_waitcnt vmcnt(0) lgkmcnt(0)"); e("s_branch L_end"); return True
    return False

def sent_regs(r):
    for i in range(4): e(f"v_mov_b32 {v(r+i)}, -1")
def spin_check(retry, giveup, bk=None):
    e(f"s_cbranch_vccz {giveup}")
    bk = BK if bk is None else bk
    if bk: e(f"s_sleep {bk}")
    e(f"s_sub_u32 {s(sSPIN)}, {s(sSPIN)}, 1")
    e(f"s_cbranch_scc0 {retry}")
    e(f"s_mov_b32 {s(sSPIN)}, 0")
    A.label(giveup)
def maxtree(regs, dst):
    regs = list(regs); cur = regs.pop(0)
    while regs:
        if len(regs) >= 2:
            e(f"v_max3_u32 {v(dst)}, {v(cur)}, {v(regs[0])}, {v(regs[1])}"); regs = regs[2:]
        else:
            e(f"v_max_u32 {v(dst)}, {v(cur)}, {v(regs[0])}"); regs = []
        cur = dst

def arrive(k, vm=0):
    e(f"s_waitcnt vmcnt({vm}) lgkmcnt(0)"); e("s_barrier")
    l = lab("arr")
    e(f"s_cmp_lg_u32 {s(sWAVE)}, 0"); e(f"s_cbranch_scc1 {l}")
    e(f"s_and_b32 {s(sT)}, s2, 15"); e(f"s_lshl_b32 {s(sT)}, {s(sT)}, {4 if k == 0 else 12}")
    if k: e(f"s_add_u32 {s(sT)}, {s(sT)}, {CNT}")
    e(f"v_mov_b32 v10, {s(sT)}"); e("v_mov_b32 v11, 1")
    e("s_mov_b64 exec, 1")
    e(f"global_atomic_add v10, v11, {s(sDBG if k == 0 else sWS,2)}")
    e("s_mov_b64 exec, -1")
    A.label(l)
def wait(k, pre=0):
    l = lab("wt"); lp = lab("poll")
    e(f"s_cmp_lg_u32 {s(sWAVE)}, 0"); e(f"s_cbranch_scc1 {l}")
    e("v_and_b32 v10, 15, v0"); e(f"v_lshlrev_b32 v10, {4 if k == 0 else 12}, v10")
    if k: e(f"v_add_u32 v10, {CNT}, v10")
    e(f"s_movk_i32 {s(sT+1)}, {16 * max(k, 1)}")
    if pre: e(f"s_sleep {pre}")
    A.label(lp)
    e(f"global_load_dword v11, v10, {s(sDBG if k == 0 else sWS,2)} sc1")
    e("s_waitcnt vmcnt(0)")
    e(f"v_cmp_gt_u32 vcc, {s(sT+1)}, v11")
    spin_check(lp, l, bk=int(OPTS.get("wbk", 0)))
    e("s_barrier")

def cmul(d, x, w, t):
    return [f"v_pk_mul_f32 {v(t,2)}, {v(x,2)}, {v(w,2)} op_sel_hi:[1,0]",
            f"v_pk_fma_f32 {v(d,2)}, {v(x,2)}, {v(w,2)}, {v(t,2)} op_sel:[1,1,0] op_sel_hi:[0,1,1] neg_lo:[0,1,0]"]
def bf16r(dst, src):
    e(f"v_cvt_pk_bf16_f32 {v(dst)}, {v(src)}, {v(src)}"); e(f"v_lshlrev_b32 {v(dst)}, 16, {v(dst)}")
def stats_final(vsum, vsq, vm, vr, t, rcp=True):
    e(f"v_mul_f32 {v(t)}, {s(sINV512)}, {v(vsum)}")
    e(f"v_mul_f32 {v(t+1)}, {s(sINV512)}, {v(vsq)}")
    e(f"v_fma_f32 {v(t+1)}, -{v(t)}, {v(t)}, {v(t+1)}")
    e(f"v_max_f32 {v(t+1)}, 0, {v(t+1)}")
    e(f"v_cvt_pk_bf16_f32 {v(t)}, {v(t)}, {v(t+1)}")
    e(f"v_and_b32 {v(t+1)}, {s(sHI)}, {v(t)}"); e(f"v_lshlrev_b32 {v(vm)}, 16, {v(t)}")
    e(f"v_add_f32 {v(t+1)}, 0x3727c5ac, {v(t+1)}")
    bf16r(t + 1, t + 1)
    e(f"v_sqrt_f32 {v(t+1)}, {v(t+1)}")
    if rcp:
        bf16r(t + 1, t + 1)
        e(f"v_rcp_f32 {v(vr)}, {v(t+1)}")
    else:
        bf16r(vr, t + 1)

def kvp_addr(kvp, dst):
    e(f"s_lshl_b32 {s(dst)}, {s(sJ)}, 5"); e(f"s_add_u32 {s(dst)}, {s(dst)}, {s(sRS)}"); e(f"s_lshl_b32 {s(dst)}, {s(dst)}, 2")
    e(f"s_add_u32 {s(dst)}, {s(dst)}, {s(sWAVE)}"); e(f"s_mul_i32 {s(dst)}, {s(dst)}, {KVH}"); e(f"s_add_u32 {s(dst)}, {s(dst)}, {kvp}")
def f_addr(f, dst):
    e(f"s_lshr_b32 {s(dst)}, {s(sRS)}, 3"); e(f"s_lshl_b32 {s(sT+9)}, {s(sJ)}, 2"); e(f"s_add_u32 {s(dst)}, {s(dst)}, {s(sT+9)}")
    e(f"s_mul_i32 {s(dst)}, {s(dst)}, {FP}"); e(f"s_add_u32 {s(dst)}, {s(dst)}, {f}")
def pq_addr(pq, dst):
    e(f"s_lshl_b32 {s(dst)}, {s(sJ)}, 2"); e(f"s_add_u32 {s(dst)}, {s(dst)}, {s(sWAVE)}")
    e(f"s_mul_i32 {s(dst)}, {s(dst)}, {HP}"); e(f"s_lshl_b32 {s(sT+9)}, {s(sRS)}, 11"); e(f"s_add_u32 {s(dst)}, {s(dst)}, {s(sT+9)}")
    e(f"s_add_u32 {s(dst)}, {s(dst)}, {pq}")
def capture(fn):
    n = len(A.lines); fn(); out = [l.strip() for l in A.lines[n:]]; del A.lines[n:]
    return out
def fill_groups(layer, va, vb):
    S = 20; P1, K1, FF = 40, 41, 42
    pq = PQ1 if layer == 1 else PQ2; kvp = KVP1 if layer == 1 else KVP2; ff = F1 if layer == 1 else F2
    G = []
    def grp(fn): G.append(capture(fn))
    def single(fn):
        for l in capture(fn): G.append([l])
    single(lambda: sent_regs(S))
    def addr():
        e(f"s_lshl_b32 s{P1}, {s(sJ)}, 2"); e(f"s_add_u32 s{P1}, s{P1}, {s(sWAVE)}"); e(f"s_mul_i32 s{P1}, s{P1}, {HP}")
        e(f"s_lshl_b32 s61, {s(sRS)}, 11"); e(f"s_add_u32 s{P1}, s{P1}, s61"); e(f"s_add_u32 s{P1}, s{P1}, {pq}")
        e(f"s_lshl_b32 s{K1}, {s(sJ)}, 5"); e(f"s_add_u32 s{K1}, s{K1}, {s(sRS)}"); e(f"s_lshl_b32 s{K1}, s{K1}, 2")
        e(f"s_add_u32 s{K1}, s{K1}, {s(sWAVE)}"); e(f"s_mul_i32 s{K1}, s{K1}, {KVH}"); e(f"s_add_u32 s{K1}, s{K1}, {kvp}")
        e(f"s_lshr_b32 s{FF}, {s(sRS)}, 3"); e(f"s_lshl_b32 s61, {s(sJ)}, 2"); e(f"s_add_u32 s{FF}, s{FF}, s61")
        e(f"s_mul_i32 s{FF}, s{FF}, {FP}"); e(f"s_add_u32 s{FF}, s{FF}, {ff}")
        e(f"v_lshlrev_b32 {v(va)}, 4, v1"); e(f"v_lshlrev_b32 {v(vb)}, 2, v1")
    single(addr)
    G.append([f"buffer_store_dwordx4 {v(S,4)}, {v(va)}, {s(sSRD,4)}, s{K1} offen sc1", "MARK"])
    def st2():
        e("s_mov_b32 s62, -1"); e("s_mov_b32 s63, 0"); e("s_mov_b64 exec, s[62:63]")
        e(f"buffer_store_dword {v(S)}, {v(vb)}, {s(sSRD,4)}, s{K1} offen offset:1024 sc1")
        e("s_mov_b64 exec, -1")
    grp(st2)
    G.append([f"buffer_store_dwordx4 {v(S,4)}, {v(va)}, {s(sSRD,4)}, s{P1} offen sc1", "MARK"])
    G.append([f"buffer_store_dwordx4 {v(S,4)}, {v(va)}, {s(sSRD,4)}, s{P1} offen offset:1024 sc1", "MARK"])
    def fslice():
        l = lab("ff")
        e(f"s_cmp_lg_u32 {s(sWAVE)}, 2"); e(f"s_cbranch_scc1 {l}")
        e(f"s_and_b32 s61, {s(sRS)}, 7"); e("s_lshl_b32 s62, s61, 6")
        e(f"v_lshrrev_b32 {v(va)}, 3, v1"); e(f"v_mul_u32_u24 {v(va)}, {FRP}, {v(va)}"); e(f"v_and_b32 {v(vb)}, 7, v1"); e(f"v_lshl_add_u32 {v(va)}, {v(vb)}, 3, {v(va)}")
        e(f"v_add_u32 {v(vb)}, s62, {v(va)}")
        e(f"buffer_store_dwordx2 {v(S,2)}, {v(vb)}, {s(sSRD,4)}, s{FF} offen sc1")
        e("s_cmp_lg_u32 s61, 0"); e(f"s_cbranch_scc1 {l}")
        e("s_mov_b32 s62, 0x0f0f0f0f"); e("s_mov_b32 s63, 0x0f0f0f0f"); e("s_mov_b64 exec, s[62:63]")
        e(f"buffer_store_dwordx2 {v(S,2)}, {v(va)}, {s(sSRD,4)}, s{FF} offen offset:512 sc1")
        e("s_mov_b64 exec, -1")
        A.label(l)
    grp(fslice)
    return G
def xt_fill_groups(buf, sreg, va):
    G = []
    G.append([f"s_lshr_b32 s{sreg}, {s(sWAVE)}, 1"]); G.append([f"s_lshl_b32 s61, {s(sCP)}, 1"]); G.append([f"s_add_u32 s{sreg}, s{sreg}, s61"])
    G.append([f"s_mul_i32 s{sreg}, s{sreg}, {PITCH}"]); G.append([f"s_and_b32 s61, {s(sWAVE)}, 1"]); G.append(["s_lshl_b32 s61, s61, 11"])
    G.append([f"s_add_u32 s{sreg}, s{sreg}, s61"]); G.append([f"s_add_u32 s{sreg}, s{sreg}, {buf}"]); G.append([f"v_lshlrev_b32 {v(va)}, 4, v1"])
    G.append([f"buffer_store_dwordx4 v[20:23], {v(va)}, {s(sSRD,4)}, s{sreg} offen sc1"])
    G.append([f"buffer_store_dwordx4 v[20:23], {v(va)}, {s(sSRD,4)}, s{sreg} offen offset:1024 sc1"])
    return G
def emit_group(g):
    for l in g:
        if l == "MARK": continue
        if l.endswith(":"): A.label(l[:-1])
        else: e(l)

XR = 24; PRM = 32; IDX = 40; XC = 176
def prologue():
    stamp("t0")
    e(f"s_getpc_b64 {s(sPC,2)}")
    A.label("L_pc")
    e("s_cmp_ge_u32 s2, 256")
    e("s_cbranch_scc1 L_end")
    e("s_load_dwordx16 s[8:23], s[0:1], 0")
    e("s_load_dwordx8 s[24:31], s[0:1], 64")
    e("s_load_dwordx2 s[32:33], s[0:1], 96")
    e("s_memrealtime s[82:83]")
    e("v_lshlrev_b32 v10, 7, v0")
    e("v_min_u32 v11, L_tab_end - L_pc - 4, v10")
    e(f"global_load_dword v38, v11, {s(sPC,2)}")
    e("v_add_u32 v10, 0x8000, v10")
    e("v_min_u32 v10, L_tab_end - L_pc - 4, v10")
    e(f"global_load_dword v39, v10, {s(sPC,2)}")
    e("v_lshrrev_b32 v1, 6, v0")
    e(f"s_and_b32 {s(sXCD)}, s2, 7")
    e(f"s_lshr_b32 {s(sIDX)}, s2, 3")
    e(f"v_readfirstlane_b32 {s(sWAVE)}, v1")
    e(f"s_lshl_b32 {s(sCP)}, {s(sXCD)}, 5"); e(f"s_add_u32 {s(sCP)}, {s(sCP)}, {s(sIDX)}")
    e("v_and_b32 v1, 63, v0")
    e(f"s_lshl_b32 {s(sT)}, {s(sCP)}, 9"); e(f"v_lshl_add_u32 v10, v0, 1, {s(sT)}")
    e(f"s_lshl_b32 {s(sT)}, {s(sCP)}, 2"); e("v_lshrrev_b32 v12, 7, v0"); e(f"v_lshl_add_u32 v11, v12, 1, {s(sT)}")
    e(f"s_lshl_b32 {s(sT)}, s2, 13"); e(f"v_lshl_add_u32 v13, v0, 5, {s(sT)}")
    e(f"s_mul_i32 s6, s2, 5462"); e(f"s_lshr_b32 s6, s6, 16"); e(f"s_mul_i32 s7, s6, 12"); e(f"s_sub_u32 s7, s2, s7")
    e(f"s_sub_u32 {s(sT+1)}, s2, 192"); e(f"s_lshr_b32 {s(sT)}, {s(sT+1)}, 1"); e(f"s_and_b32 {s(sT+1)}, {s(sT+1)}, 1")
    e("s_cmp_ge_u32 s2, 192")
    e(f"s_cselect_b32 s6, {s(sT)}, s6"); e(f"s_cselect_b32 s7, {s(sT+1)}, s7")
    e(f"s_cselect_b32 {s(sT+2)}, 4, 5")
    e(f"s_cselect_b32 {s(sT+3)}, 2, 3")
    e(f"s_cselect_b32 {s(sT+4)}, 10, 0")
    e(f"s_movk_i32 {s(sT+5)}, 3072"); e(f"s_cselect_b32 {s(sT+5)}, 1024, {s(sT+5)}")
    e(f"s_cselect_b32 {s(sT+6)}, 9, 8")
    e(f"s_cselect_b32 {s(sT+7)}, 5, 4")
    e(f"s_lshl_b32 {s(sT)}, s6, {s(sT+2)}"); e(f"s_lshl_b32 {s(sT+1)}, {s(sWAVE)}, {s(sT+3)}"); e(f"s_add_u32 {s(sT)}, {s(sT)}, {s(sT+1)}")
    e(f"s_mul_i32 {s(sT)}, {s(sT)}, {s(sT+5)}"); e(f"s_lshl_b32 {s(sT+1)}, s7, {s(sT+6)}"); e(f"s_add_u32 s4, {s(sT)}, {s(sT+1)}")
    e(f"v_lshrrev_b32 v14, {s(sT+7)}, v1"); e(f"v_mul_lo_u32 v14, {s(sT+5)}, v14")
    e(f"s_lshl_b32 {s(sT+1)}, 1, {s(sT+7)}"); e(f"s_sub_u32 {s(sT+1)}, {s(sT+1)}, 1"); e(f"v_and_b32 v15, {s(sT+1)}, v1"); e("v_lshl_add_u32 v14, v15, 4, v14")
    e(f"s_lshl_b32 {s(sT+1)}, 64, 0"); e(f"s_lshr_b32 {s(sT+1)}, 64, {s(sT+7)}"); e(f"s_mul_i32 s5, {s(sT+1)}, {s(sT+5)}")
    e(f"s_lshl_b32 {s(sT+3)}, {s(sWAVE)}, 11"); e(f"s_add_u32 {s(sT+3)}, {s(sT+3)}, {WST}")
    e("s_cmp_ge_u32 s2, 192")
    e("s_waitcnt lgkmcnt(0)")
    stamp("karg")
    if True:
        e(f"v_min_u32 v16, {(WS_USED - 1) // 0x200000}, v1"); e("v_lshlrev_b32 v16, 21, v16")
        e(f"global_load_dword v19, v16, {s(sWS,2)}")
    e("s_cmp_ge_u32 s2, 192")
    e(f"global_load_ushort {v(PRM)}, v10, {s(sLOGA,2)}")
    e(f"global_load_ushort {v(PRM+1)}, v10, {s(sAIM,2)}")
    e(f"global_load_ushort {v(PRM+4)}, v11, {s(sLDT,2)}")
    e(f"global_load_dwordx4 {v(XR,4)}, v13, {s(sU,2)}")
    e(f"global_load_dwordx4 {v(XR+4,4)}, v13, {s(sU,2)} offset:16")
    e(f"global_load_ushort {v(PRM+2)}, v10, {s(sCR,2)}")
    e(f"global_load_ushort {v(PRM+3)}, v10, {s(sCI,2)}")
    e(f"global_load_ushort {v(PRM+5)}, v11, {s(sDSK,2)}")
    e(f"s_cselect_b32 {s(sSRD2)}, {s(sWO)}, {s(sWQKV)}"); e(f"s_cselect_b32 {s(sSRD2+1)}, {s(sWO+1)}, {s(sWQKV+1)}")
    e(f"s_mov_b32 {s(sT)}, {512*1536*2}"); e(f"s_cselect_b32 {s(sSRD2+2)}, {512*512*2}, {s(sT)}")
    e(f"s_and_b32 {s(sSRD2+1)}, {s(sSRD2+1)}, 0xffff"); e(f"s_mov_b32 {s(sSRD2+3)}, 0x20000")
    ln = lab("nw")
    e("v_mov_b32 v23, 4")
    e(f"s_or_b32 {s(sT)}, s2, {s(sWAVE)}"); e(f"s_cmp_lg_u32 {s(sT)}, 0"); e(f"s_cbranch_scc1 {ln}")
    e(f"s_or_b32 {s(sT)}, s82, 1"); e(f"v_mov_b32 v58, {s(sT)}")
    e("s_mov_b64 exec, 1")
    e(f"global_store_dword v23, v58, {s(sDBG,2)} sc1")
    e("s_mov_b64 exec, -1")
    e("s_waitcnt vmcnt(63)")
    A.label(ln)
    e(f"s_mov_b32 m0, {s(sT+3)}")
    e(f"buffer_load_dwordx4 v14, {s(sSRD2,4)}, s4 offen lds")
    e(f"s_add_u32 s4, s4, s5"); e(f"s_add_u32 m0, {s(sT+3)}, 1024")
    e(f"buffer_load_dwordx4 v14, {s(sSRD2,4)}, s4 offen lds")
    e(f"s_and_b32 {s(sT)}, {s(sIDX)}, 3"); e(f"s_lshl_b32 {s(sRS)}, {s(sXCD)}, 2"); e(f"s_add_u32 {s(sRS)}, {s(sRS)}, {s(sT)}")
    e(f"s_lshr_b32 {s(sJ)}, {s(sIDX)}, 2")
    e(f"s_and_b32 {s(sT)}, {s(sJ)}, 1"); e(f"s_lshl_b32 {s(sRO)}, {s(sRS)}, 1"); e(f"s_add_u32 {s(sRO)}, {s(sRO)}, {s(sT)}")
    e(f"s_lshr_b32 {s(sJO)}, {s(sJ)}, 1")
    e(f"s_mov_b32 {s(sLOG2E)}, {f2u(1.4426950408889634):#x}"); e(f"s_mov_b32 {s(sLOG2E+1)}, {s(sLOG2E)}")
    e(f"s_mov_b32 {s(sEPS6)}, {f2u(1e-6):#x}"); e(f"s_mov_b32 {s(sEPS6+1)}, {s(sEPS6)}")
    e(f"s_mov_b32 {s(sINV512)}, {f2u(1.0/512):#x}"); e(f"s_mov_b32 {s(sINV512+1)}, {s(sINV512)}")
    e(f"s_mov_b32 {s(sHI)}, 0xffff0000")
    e(f"s_mov_b32 {s(sSPIN)}, {SPINMAX}")
    e(f"s_mov_b32 {s(sSRD)}, {s(sWS)}"); e(f"s_and_b32 {s(sSRD+1)}, {s(sWS+1)}, 0xffff")
    e(f"s_mov_b32 {s(sSRD+2)}, {WS_USED:#x}"); e(f"s_mov_b32 {s(sSRD+3)}, 0x20000")

def p0_fills():
    e("v_mov_b32 v12, 0")
    e(f"s_lshl_b32 {s(sT)}, s2, 6"); e(f"s_add_u32 {s(sT)}, {s(sT)}, {S3}")
    e("v_lshlrev_b32 v10, 2, v1")
    e("s_mov_b64 exec, 0xffff")
    e(f"buffer_store_dword v12, v10, {s(sSRD,4)}, {s(sT)} offen sc1")
    e(f"s_lshl_b32 {s(sT+1)}, s2, 12"); e(f"s_add_u32 {s(sT+1)}, {s(sT+1)}, {CNT}")
    e("s_cmp_lt_u32 s2, 16"); e(f"s_cselect_b32 {s(sT)}, {s(sT+1)}, {s(sT)}")
    e("s_mov_b64 exec, 1")
    e(f"buffer_store_dword v12, v10, {s(sSRD,4)}, {s(sT)} offen sc1")
    e("s_mov_b64 exec, -1")

def nonce_issue():
    e("v_mov_b32 v17, 4")
    e(f"global_load_dword v58, v17, {s(sDBG,2)} sc1")
def nonce_get(vm=0):
    lr = lab("nr"); lg = lab("ng"); l0 = lab("n0")
    e(f"s_waitcnt vmcnt({vm})")
    e(f"s_branch {l0}")
    A.label(lr)
    e(f"global_load_dword v58, v17, {s(sDBG,2)} sc1")
    e("s_waitcnt vmcnt(0)")
    A.label(l0)
    e("v_cmp_eq_u32 vcc, 0, v58")
    spin_check(lr, lg, bk=1)
    e(f"v_readfirstlane_b32 {s(sNON)}, v58")

def idx_loads():
    e(f"s_add_u32 {s(sT)}, {s(sPC)}, L_idx - L_pc"); e(f"s_addc_u32 {s(sT+1)}, {s(sPC+1)}, 0")
    e("v_and_b32 v10, 127, v0"); e("v_lshlrev_b32 v10, 4, v10")
    e(f"global_load_dwordx4 {v(IDX,4)}, v10, {s(sT,2)}")
    e(f"global_load_dwordx4 {v(IDX+4,4)}, v10, {s(sT,2)} offset:16")
    e(f"global_load_dwordx4 {v(IDX+8,4)}, v10, {s(sT,2)} offset:2048")
    e(f"global_load_dwordx4 {v(IDX+12,4)}, v10, {s(sT,2)} offset:2064")

def gather_loads():
    out = []
    for i in range(4): out.append(f"global_load_dword {v(XC+i)}, v19, {s(sU,2)} offset:{1024*i}")
    for i in range(4): out.append(f"global_load_dword {v(XC+4+i)}, v18, {s(sU,2)} offset:{1024*i}")
    return out

def p0_x0_write():
    e(f"v_lshlrev_b32 v10, 5, v0"); e(f"v_add_u32 v10, {X0S}, v10")
    e(f"ds_write_b128 v10, {v(XR,4)}"); e(f"ds_write_b128 v10, {v(XR+4,4)} offset:16")
def p0_x0_store():
    e("v_bfe_u32 v10, v1, 2, 2"); e("v_lshlrev_b32 v10, 10, v10")
    e("v_lshrrev_b32 v11, 4, v1"); e("v_lshl_add_u32 v10, v11, 5, v10")
    e("v_and_b32 v11, 3, v1"); e("v_lshl_add_u32 v10, v11, 3, v10")
    e(f"s_lshl_b32 {s(sT)}, {s(sWAVE)}, 8"); e(f"s_add_u32 {s(sT)}, {s(sT)}, {X0S}"); e(f"v_add_u32 v10, {s(sT)}, v10")
    for k in range(2):
        e(f"ds_read_b64_tr_b16 {v(100+4*k,2)}, v10 offset:{128*k}"); e(f"ds_read_b64_tr_b16 {v(102+4*k,2)}, v10 offset:{128*k + 4096}")
    e(f"s_mul_i32 {s(sT)}, s2, {X0P}"); e(f"s_lshl_b32 {s(sT+1)}, {s(sWAVE)}, 11"); e(f"s_add_u32 {s(sT)}, {s(sT)}, {s(sT+1)}")
    e(f"s_add_u32 {s(sT)}, {s(sT)}, {X0T}")
    e("v_lshlrev_b32 v11, 4, v1")
    e("s_waitcnt lgkmcnt(0)")
    e(f"buffer_store_dwordx4 v[100:103], v11, {s(sSRD,4)}, {s(sT)} offen sc1")
    e(f"buffer_store_dwordx4 v[104:107], v11, {s(sSRD,4)}, {s(sT)} offen offset:1024 sc1")

def p0_stats():
    F = 64
    for i in range(8):
        e(f"v_lshlrev_b32 {v(F+2*i)}, 16, {v(XR+i)}"); e(f"v_and_b32 {v(F+2*i+1)}, {s(sHI)}, {v(XR+i)}")
    for i in range(4): e(f"v_pk_add_f32 {v(80+2*i,2)}, {v(F+4*i,2)}, {v(F+4*i+2,2)}")
    e(f"v_pk_mul_f32 v[88:89], {v(F,2)}, {v(F,2)}"); e(f"v_pk_mul_f32 v[90:91], {v(F+2,2)}, {v(F+2,2)}")
    e(f"v_pk_add_f32 v[80:81], v[80:81], v[82:83]"); e(f"v_pk_add_f32 v[84:85], v[84:85], v[86:87]")
    for i in range(2, 8): e(f"v_pk_fma_f32 {v(88+2*(i&1),2)}, {v(F+2*i,2)}, {v(F+2*i,2)}, {v(88+2*(i&1),2)}")
    e(f"v_pk_add_f32 v[80:81], v[80:81], v[84:85]"); e("v_pk_add_f32 v[88:89], v[88:89], v[90:91]")
    e("v_add_f32 v80, v80, v81"); e("v_add_f32 v82, v88, v89")
    for r_ in (8, 4, 2, 1):
        e(f"v_add_f32_dpp v80, v80, v80 row_ror:{r_} row_mask:0xf bank_mask:0xf")
        e(f"v_add_f32_dpp v82, v82, v82 row_ror:{r_} row_mask:0xf bank_mask:0xf")
    e("v_add_f32_dpp v80, v80, v80 row_bcast:15 row_mask:0xa bank_mask:0xf")
    e("v_add_f32_dpp v82, v82, v82 row_bcast:15 row_mask:0xa bank_mask:0xf")
    stats_final(80, 82, 56, 57, 86, rcp=False)
    e("v_lshrrev_b32 v56, 16, v56"); e(f"v_and_or_b32 v56, v57, {s(sHI)}, v56")

def p0_stats_store():
    e(f"v_mov_b32 v57, {s(sNON)}")
    e(f"s_lshl_b32 {s(sT)}, s2, 4"); e(f"s_lshl_b32 {s(sT+1)}, {s(sWAVE)}, 12"); e(f"s_add_u32 {s(sT)}, {s(sT)}, {s(sT+1)}")
    e(f"s_add_u32 {s(sT)}, {s(sT)}, {S1}")
    e("v_lshrrev_b32 v10, 5, v1"); e(f"v_lshl_add_u32 v10, v10, 3, {s(sT)}")
    e(f"s_mov_b32 {s(sT+2)}, 0x00010000"); e(f"s_mov_b32 {s(sT+3)}, 0x00010000")
    e(f"s_mov_b64 exec, {s(sT+2,2)}")
    e(f"buffer_store_dwordx2 v[56:57], v10, {s(sSRD,4)}, 0 offen sc1")
    e("s_mov_b64 exec, -1")

def p0_wfrag():
    lo = lab("wo2"); lj = lab("wj2")
    e("s_cmp_ge_u32 s2, 192"); e(f"s_cbranch_scc1 {lo}")
    e("v_lshrrev_b32 v10, 2, v1"); e("v_lshlrev_b32 v10, 8, v10")
    e("v_and_b32 v11, 3, v1"); e("v_lshl_add_u32 v10, v11, 3, v10")
    e(f"s_lshl_b32 {s(sT)}, {s(sWAVE)}, 6"); e(f"s_add_u32 {s(sT)}, {s(sT)}, {WST}")
    e(f"v_add_u32 v10, {s(sT)}, v10")
    e("ds_read_b64_tr_b16 v[88:89], v10"); e("ds_read_b64_tr_b16 v[90:91], v10 offset:4096")
    e("ds_read_b64_tr_b16 v[92:93], v10 offset:32"); e("ds_read_b64_tr_b16 v[94:95], v10 offset:4128")
    e(f"s_lshr_b32 {s(sT)}, s7, 2")
    e(f"s_add_u32 {s(sT)}, {s(sT)}, 2"); e(f"s_cmp_ge_u32 {s(sT)}, 3")
    e(f"s_cselect_b32 {s(sT+1)}, 3, 0"); e(f"s_sub_u32 {s(sT)}, {s(sT)}, {s(sT+1)}")
    e(f"s_and_b32 {s(sT+1)}, s7, 3"); e(f"s_lshl_b32 {s(sT+1)}, {s(sT+1)}, 3")
    e(f"s_lshl_b32 {s(sT+2)}, {s(sWAVE)}, 1"); e(f"s_add_u32 {s(sT+1)}, {s(sT+1)}, {s(sT+2)}")
    e(f"s_mul_i32 {s(sT+1)}, {s(sT+1)}, 3"); e(f"s_add_u32 {s(sT+1)}, {s(sT+1)}, {s(sT)}")
    e(f"s_lshl_b32 {s(sT+1)}, {s(sT+1)}, 4"); e(f"s_add_u32 {s(sT+1)}, {s(sT+1)}, s6")
    e(f"s_lshl_b32 {s(sT+1)}, {s(sT+1)}, 10"); e(f"s_add_u32 {s(sT+1)}, {s(sT+1)}, {WFG}")
    e(f"s_add_u32 {s(sT+2)}, {s(sT+1)}, 49152")
    e(f"s_branch {lj}")
    A.label(lo)
    e("v_lshrrev_b32 v10, 5, v1"); e("v_lshlrev_b32 v10, 2, v10")
    e("v_bfe_u32 v11, v1, 2, 2"); e("v_add_u32 v10, v10, v11"); e("v_lshlrev_b32 v10, 9, v10")
    e("v_and_b32 v11, 1, v1"); e("v_lshl_add_u32 v10, v11, 5, v10")
    e("v_bfe_u32 v11, v1, 4, 1"); e("v_lshl_add_u32 v10, v11, 4, v10")
    e("v_bfe_u32 v11, v1, 1, 1"); e("v_lshl_add_u32 v10, v11, 3, v10")
    e(f"s_lshl_b32 {s(sT)}, {s(sWAVE)}, 7"); e(f"s_add_u32 {s(sT)}, {s(sT)}, {WST}")
    e(f"v_add_u32 v10, {s(sT)}, v10")
    e("ds_read_b64_tr_b16 v[88:89], v10"); e("ds_read_b64_tr_b16 v[90:91], v10 offset:4096")
    e("ds_read_b64_tr_b16 v[92:93], v10 offset:64"); e("ds_read_b64_tr_b16 v[94:95], v10 offset:4160")
    e(f"s_lshl_b32 {s(sT+1)}, s7, 3"); e(f"s_lshl_b32 {s(sT+2)}, {s(sWAVE)}, 1"); e(f"s_add_u32 {s(sT+1)}, {s(sT+1)}, {s(sT+2)}")
    e(f"s_lshl_b32 {s(sT+1)}, {s(sT+1)}, 5"); e(f"s_add_u32 {s(sT+1)}, {s(sT+1)}, s6")
    e(f"s_lshl_b32 {s(sT+1)}, {s(sT+1)}, 10"); e(f"s_add_u32 {s(sT+1)}, {s(sT+1)}, {WFO}")
    e(f"s_add_u32 {s(sT+2)}, {s(sT+1)}, 32768")
    A.label(lj)
    e("v_lshlrev_b32 v10, 4, v1")
    e("s_waitcnt lgkmcnt(0)")
    e(f"buffer_store_dwordx4 v[88:91], v10, {s(sSRD,4)}, {s(sT+1)} offen sc1")
    e(f"buffer_store_dwordx4 v[92:95], v10, {s(sSRD,4)}, {s(sT+2)} offen sc1")

def pw_multi(items, a2, b2):
    for (d, t, tm) in items:
        if t == 1:
            e(f"v_mov_b32 {v(tm)}, {v(a2)}"); e(f"v_fract_f32 {v(tm+1)}, {v(b2)}")
        else:
            c = f"{float(t)}" if t in (2, 4) else f"{f2u(float(t)):#x}"
            e(f"v_mul_f32 {v(tm)}, {c}, {v(a2)}"); e(f"v_mul_f32 {v(tm+1)}, {c}, {v(b2)}")
    for (d, t, tm) in items:
        e(f"v_exp_f32 {v(tm)}, {v(tm)}")
        if t != 1: e(f"v_fract_f32 {v(tm+1)}, {v(tm+1)}")
    for (d, t, tm) in items:
        e(f"v_cos_f32 {v(d)}, {v(tm+1)}"); e(f"v_sin_f32 {v(d+1)}, {v(tm+1)}")
    for (d, t, tm) in items:
        e(f"v_pk_mul_f32 {v(d,2)}, {v(d,2)}, {v(tm,2)} op_sel_hi:[1,0]")

W1, W4, W16, W64, W512 = 100, 102, 104, 106, 108
CH = {"X1": 112, "X2": 128, "Y1": 144, "Y2": 160}
def kgen_setup():
    for i in range(6): e(f"v_lshlrev_b32 {v(PRM+i)}, 16, {v(PRM+i)}")
    e(f"v_readfirstlane_b32 {s(sDSKV)}, {v(PRM+5)}")
    dt, are = 60, 61
    e(f"v_mul_f32 {v(dt)}, {s(sLOG2E)}, {v(PRM+4)}"); e(f"v_mul_f32 {v(are)}, {s(sLOG2E)}, {v(PRM)}")
    e(f"v_exp_f32 {v(dt)}, {v(dt)}"); e(f"v_exp_f32 {v(are)}, {v(are)}")
    e(f"v_cvt_pk_bf16_f32 {v(dt)}, {v(dt)}, {v(are)}")
    e(f"v_and_b32 {v(are)}, {s(sHI)}, {v(dt)}"); e(f"v_lshlrev_b32 {v(dt)}, 16, {v(dt)}")
    a2, b2 = 62, 63
    e(f"v_mul_f32 {v(a2)}, -{v(are)}, {v(dt)}"); e(f"v_mul_f32 {v(b2)}, {v(PRM+1)}, {v(dt)}")
    e(f"v_mul_f32 {v(a2)}, {s(sLOG2E)}, {v(a2)}"); e(f"v_mul_f32 {v(b2)}, 0.15915494, {v(b2)}")
    pw_multi([(W1, 1, 64), (W4, 4, 66), (W16, 16, 68), (W64, 64, 70), (W512, 512, 72)], a2, b2)
    e(f"v_add_f32 {v(dt)}, {v(dt)}, {v(dt)}")
    e(f"v_mul_f32 {v(CH['X1'])}, {v(PRM+2)}, {v(dt)}"); e(f"v_mul_f32 {v(CH['X1']+1)}, {v(PRM+3)}, {v(dt)}")
    for l in cmul(CH['X2'], CH['X1'], W512, 64): e(l)
    e(f"v_mov_b32 {v(CH['Y1'])}, 1.0"); e(f"v_mov_b32 {v(CH['Y1']+1)}, 0"); e(f"v_mov_b32 {v(CH['Y2'])}, 1.0"); e(f"v_mov_b32 {v(CH['Y2']+1)}, 0")
    e(f"v_lshrrev_b32 v96, 7, v0"); e(f"v_mul_u32_u24 v96, {TABC}, v96")
    e(f"v_and_b32 v97, 127, v0"); e(f"v_mul_u32_u24 v97, {TKP}, v97"); e("v_add_u32 v96, v96, v97")

def kgen_round(chains, rnd, side=None):
    Wof = {"X1": W16, "X2": W64, "Y1": W1, "Y2": W4}
    mbase = {"X1": 0, "X2": 32, "Y1": 64, "Y2": 80}
    tmp = {"X1": 64, "X2": 66, "Y1": 68, "Y2": 70}
    nval = {c: 8 for c in chains}
    if rnd == 3 and "X2" in chains: nval["X2"] = 1
    for i in range(1, 8):
        ls = [cmul(CH[c] + 2*i, CH[c] + 2*(i-1), Wof[c], tmp[c]) for c in chains if i < nval[c]]
        for k in range(2):
            for l in ls: e(l[k])
        if side and i in (1, 3, 5, 7) and len(side): e(side.pop(0))
    P = {c: 72 + 8*k for k, c in enumerate(chains)}
    for c in chains:
        neg = "-" if c[0] == "X" else ""
        for k in range(4):
            i0, i1 = (2*k, 2*k+1) if nval[c] == 8 else (0, 0)
            e(f"v_cvt_pk_bf16_f32 {v(P[c]+k)}, {v(CH[c]+2*i0)}, {v(CH[c]+2*i1)}")
            e(f"v_cvt_pk_bf16_f32 {v(P[c]+4+k)}, {neg}{v(CH[c]+2*i0+1)}, {neg}{v(CH[c]+2*i1+1)}")
        off = (mbase[c] + 8*rnd) * 2
        e(f"ds_write_b128 v96, {v(P[c],4)} offset:{off}")
        e(f"ds_write_b128 v96, {v(P[c]+4,4)} offset:{off + 128*TKP}")
    ls = [cmul(CH[c], CH[c] + 14, Wof[c], tmp[c]) for c in chains if nval[c] == 8 and not ((c[0] == "Y" and rnd == 1) or rnd == 3)]
    for k in range(2):
        for l in ls: e(l[k])

def kgen_mm(gl, fs):
    s1_issue()
    e("s_waitcnt lgkmcnt(0)"); e("s_barrier")
    e(f"s_lshr_b32 {s(sT)}, {s(sWAVE)}, 1"); e(f"s_and_b32 {s(sT+1)}, {s(sWAVE)}, 1")
    e(f"s_mul_i32 {s(sT+2)}, {s(sT)}, {TABC}")
    e(f"s_lshl_b32 {s(sT+3)}, {s(sT+1)}, 5"); e(f"s_add_u32 {s(sT+3)}, {s(sT+3)}, 128"); e(f"s_add_u32 {s(sT+3)}, {s(sT+3)}, {s(sT+2)}")
    e(f"s_lshl_b32 {s(sT+4)}, {s(sT+1)}, 6"); e(f"s_add_u32 {s(sT+4)}, {s(sT+4)}, {s(sT+2)}")
    e("v_lshrrev_b32 v10, 2, v1"); e(f"v_mul_u32_u24 v10, {TKP}, v10"); e("v_and_b32 v11, 3, v1"); e("v_lshl_add_u32 v10, v11, 3, v10")
    e(f"v_add_u32 v11, {s(sT+3)}, v10"); e(f"v_add_u32 v12, {s(sT+4)}, v10")
    YF, XF = 64, 96
    for ks in range(8):
        o = ks * 32 * TKP
        e(f"ds_read_b64_tr_b16 {v(YF+4*ks,2)}, v11 offset:{o}"); e(f"ds_read_b64_tr_b16 {v(YF+4*ks+2,2)}, v11 offset:{o + 16*TKP}")
        for tl in range(2):
            e(f"ds_read_b64_tr_b16 {v(XF+32*tl+4*ks,2)}, v12 offset:{o + 32*tl}"); e(f"ds_read_b64_tr_b16 {v(XF+32*tl+4*ks+2,2)}, v12 offset:{o + 16*TKP + 32*tl}")
    e("v_lshrrev_b32 v13, 7, v0")
    e(f"v_mul_u32_u24 v14, {CTP}, v13"); e(f"v_add_u32 v14, {CT}, v14")
    e(f"v_mul_u32_u24 v15, {KCH}, v13"); e("v_and_b32 v13, 127, v0"); e("v_lshl_add_u32 v15, v13, 4, v15")
    fs()
    for ks in range(8):
        e(f"s_waitcnt lgkmcnt({min(15, 6*(7-ks))})")
        for tl in range(2):
            c_ = "0" if ks == 0 else v(160 + 4*tl, 4)
            e(f"v_mfma_f32_16x16x32_bf16 {v(160+4*tl,4)}, {v(YF+4*ks,4)}, {v(XF+32*tl+4*ks,4)}, {c_}")
    e(f"s_mul_i32 {s(sT+2)}, {s(sT)}, {CTP}"); e(f"s_lshl_b32 {s(sT+3)}, {s(sT+1)}, 10"); e(f"s_add_u32 {s(sT+2)}, {s(sT+2)}, {s(sT+3)}")
    e(f"s_add_u32 {s(sT+2)}, {s(sT+2)}, {CT}")
    e("v_and_b32 v10, 15, v1"); e("v_lshlrev_b32 v10, 5, v10"); e("v_lshrrev_b32 v11, 4, v1"); e("v_lshl_add_u32 v10, v11, 3, v10")
    e(f"v_add_u32 v10, {s(sT+2)}, v10")
    e(f"s_mul_i32 {s(sT+2)}, {s(sT)}, {CTP}"); e(f"s_add_u32 {s(sT+2)}, {s(sT+2)}, {CT + 2048}")
    e(f"v_mov_b32 v11, {s(sT+2)}"); e("v_mov_b32 v12, 0")
    e("ds_write_b32 v11, v12")
    fs()
    G = [96, 112]
    for task in range(2):
        I = IDX + 8 * task
        for k in range(6):
            e(f"v_add_u32_sdwa {v(G[task]+2*k)}, v14, {v(I+k)} dst_sel:DWORD dst_unused:UNUSED_PAD src0_sel:DWORD src1_sel:WORD_0")
            e(f"v_add_u32_sdwa {v(G[task]+2*k+1)}, v14, {v(I+k)} dst_sel:DWORD dst_unused:UNUSED_PAD src0_sel:DWORD src1_sel:WORD_1")
    for tl in range(2):
        e(f"v_cvt_pk_bf16_f32 {v(168+2*tl)}, {v(160+4*tl)}, {v(161+4*tl)}")
        e(f"v_cvt_pk_bf16_f32 {v(169+2*tl)}, {v(162+4*tl)}, {v(163+4*tl)}")
        e(f"ds_write_b64 v10, {v(168+2*tl,2)} offset:{512*tl}")
    e("s_waitcnt lgkmcnt(0)"); e("s_barrier")
    stamp("k_mm")
    s1_validate(1)
    x0t_issue()
    for task in range(2):
        for k in range(12): e(f"ds_read_u16 {v(G[task]+k)}, {v(G[task]+k)}")
    for task in range(2):
        Dd, Dp, Sd, Sp = [(64, 72, 80, 88), (128, 136, 144, 152)][task]
        e(f"s_waitcnt lgkmcnt({12 if task == 0 else 4})")
        for k in range(6): e(f"v_lshl_or_b32 {v(Dd+k)}, {v(G[task]+2*k+1)}, 16, {v(G[task]+2*k)}")
        for k in range(4): e(f"v_mov_b32 {v(Dp+k)}, {v(Dd+k+1)}")
        for k in range(4): e(f"v_alignbit_b32 {v(Sd+k)}, {v(Dd+k+1)}, {v(Dd+k)}, 16")
        for k in range(4): e(f"v_alignbit_b32 {v(Sp+k)}, {v(Dd+k+2)}, {v(Dd+k+1)}, 16")
        for cp_, src in enumerate((Dd, Sd, Dp, Sp)):
            e(f"ds_write_b128 v15, {v(src,4)} offset:{cp_*KCC + task*2048}")
    l0 = lab("zk")
    e(f"s_cmp_lg_u32 {s(sWAVE)}, 0"); e(f"s_cbranch_scc1 {l0}")
    e("v_lshrrev_b32 v10, 2, v1"); e(f"v_mul_u32_u24 v10, {KCC}, v10")
    e("v_and_b32 v11, 3, v1"); e("v_lshl_add_u32 v10, v11, 4, v10"); e("v_add_u32 v10, 4096, v10")
    e("v_mov_b32 v160, 0"); e("v_mov_b32 v161, 0"); e("v_mov_b32 v162, 0"); e("v_mov_b32 v163, 0")
    e(f"s_mov_b32 {s(sT+2)}, -1"); e(f"s_mov_b32 {s(sT+3)}, 0"); e(f"s_mov_b64 exec, {s(sT+2,2)}")
    e("ds_write_b128 v10, v[160:163]")
    e("s_mov_b64 exec, -1")
    A.label(l0)

def s1_issue():
    e("v_lshlrev_b32 v63, 4, v0")
    for i in range(4):
        e(f"s_movk_i32 {s(sT)}, {S1 + 4096*i}")
        e(f"buffer_load_dwordx4 {v(24+4*i,4)}, v63, {s(sSRD,4)}, {s(sT)} offen sc1")
def s1_validate(vm=0):
    lr = lab("s1r"); lg = lab("s1k"); l0 = lab("s1c")
    e(f"s_waitcnt vmcnt({vm})")
    e(f"s_branch {l0}")
    A.label(lr)
    s1_issue()
    e("s_waitcnt vmcnt(0)")
    A.label(l0)
    for i in range(8): e(f"v_xor_b32 {v(160+i)}, {s(sNON)}, {v(24+2*i+1)}")
    e("v_or3_b32 v160, v160, v161, v162"); e("v_or3_b32 v163, v163, v164, v165"); e("v_or3_b32 v160, v160, v166, v167"); e("v_or_b32 v160, v160, v163")
    e("v_cmp_ne_u32 vcc, 0, v160")
    spin_check(lr, lg, bk=1)
def x0t_issue():
    e(f"v_mul_u32_u24 v10, {X0P}, v0"); e(f"s_lshl_b32 {s(sT)}, {s(sCP)}, 5"); e(f"s_add_u32 {s(sT)}, {s(sT)}, {X0T}")
    e(f"buffer_load_dwordx4 v[40:43], v10, {s(sSRD,4)}, {s(sT)} offen sc1")
    e(f"buffer_load_dwordx4 v[44:47], v10, {s(sSRD,4)}, {s(sT)} offen offset:16 sc1")
def b1_issue():
    e("v_and_b32 v20, 15, v0"); e("v_lshlrev_b32 v20, 4, v20")
    e(f"global_load_dword v21, v20, {s(sDBG,2)} sc1")
def b1_check():
    lr = lab("b1r"); lg = lab("b1k"); l0 = lab("b1c")
    e("s_waitcnt vmcnt(0)")
    e(f"s_branch {l0}")
    A.label(lr)
    e(f"global_load_dword v21, v20, {s(sDBG,2)} sc1")
    e("s_waitcnt vmcnt(0)")
    A.label(l0)
    e("v_cmp_gt_u32 vcc, 16, v21")
    spin_check(lr, lg, bk=1)

def gw_loads():
    out = []
    for f in range(48):
        out.append([f"buffer_load_dwordx4 {a(4*f,4)}, v18, {s(sSRD,4)}, {s(sW)} offen offset:{(f%4)*1024} sc1"] + ([f"s_add_u32 {s(sW)}, {s(sW)}, 4096"] if f % 4 == 3 else []))
    return out
def ow_loads():
    out = []
    for f in range(32):
        dst = a(192 + 4*f, 4) if f < 16 else v(192 + 4*(f-16), 4)
        out.append([f"buffer_load_dwordx4 {dst}, v18, {s(sSRD,4)}, {s(sW)} offen offset:{(f%4)*1024} sc1"] + ([f"s_add_u32 {s(sW)}, {s(sW)}, 4096"] if f % 4 == 3 else []))
    return out

vA, vB, vEP, vEU, vEX, vRW, vRR = 164, 165, 166, 167, 168, 169, 170
def conv_setup(layer):
    e(f"s_lshr_b32 s4, {s(sWAVE)}, 1"); e(f"s_and_b32 s5, {s(sWAVE)}, 1")
    e("v_and_b32 v10, 3, v1"); e("v_sub_u32 v10, 3, v10"); e(f"v_mul_u32_u24 v12, {KCC}, v10")
    e("v_bfe_u32 v10, v1, 5, 1"); e("v_lshlrev_b32 v13, 5, v10"); e("v_sub_u32 v12, v12, v13")
    e("v_bfe_u32 v11, v1, 4, 1"); e("v_lshl_add_u32 v12, v11, 4, v12")
    e("v_bfe_u32 v10, v1, 2, 2"); e("v_lshlrev_b32 v10, 3, v10"); e("v_sub_u32 v12, v12, v10")
    e(f"s_mul_i32 {s(sT+2)}, s4, {KCH}"); e(f"s_lshl_b32 {s(sT+3)}, s5, 8"); e(f"s_sub_u32 {s(sT+2)}, {s(sT+2)}, {s(sT+3)}")
    e(f"s_add_u32 {s(sT+2)}, {s(sT+2)}, {KC + 4088 - 3776}")
    e("v_and_b32 v10, 15, v1"); e("v_lshlrev_b32 v14, 5, v10"); e("v_sub_u32 v14, v14, v13"); e("v_lshl_add_u32 v14, v11, 4, v14")
    e(f"s_mul_i32 {s(sT+4)}, s4, {UP}"); e(f"s_sub_u32 {s(sT+4)}, {s(sT+4)}, {s(sT+3)}")
    e(f"s_add_u32 {s(sT+4)}, {s(sT+4)}, {U0 + 512 - 192}")
    e(f"v_add_u32 v16, {s(sT+2)}, v12"); e(f"v_add_u32 v17, {s(sT+4)}, v14")
    e("v_and_b32 v56, 15, v1"); e("v_lshlrev_b32 v56, 5, v56"); e("v_lshrrev_b32 v13, 4, v1"); e("v_lshl_add_u32 v56, v13, 3, v56")
    e(f"s_lshl_b32 {s(sT+2)}, s5, 11"); e(f"v_add_u32 v56, {s(sT+2)}, v56")
    e(f"s_mul_i32 {s(sT+3)}, s4, {UP}"); e(f"s_add_u32 {s(sT+3)}, {s(sT+3)}, {U0+512}"); e(f"v_add_u32 v57, {s(sT+3)}, v56")
    e(f"s_lshl_b32 {s(sT+3)}, s4, 12"); e(f"s_add_u32 {s(sT+3)}, {s(sT+3)}, {X0}"); e(f"v_add_u32 v58, {s(sT+3)}, v56")
    e(f"s_lshl_b32 {s(sT+2)}, {s(sWAVE)}, 12"); e(f"s_add_u32 {s(sT+2)}, {s(sT+2)}, {RED}"); e(f"v_lshl_add_u32 v59, v1, 4, {s(sT+2)}")
    e(f"s_xor_b32 {s(sT+2)}, {s(sWAVE)}, 1"); e(f"s_lshl_b32 {s(sT+2)}, {s(sT+2)}, 12"); e(f"s_add_u32 {s(sT+2)}, {s(sT+2)}, {RED}")
    e(f"v_lshl_add_u32 v60, v1, 4, {s(sT+2)}")
    xo = XT1 if layer == 1 else XT3
    e(f"s_lshl_b32 s6, {s(sCP)}, 1"); e("s_add_u32 s6, s6, s4"); e(f"s_mul_i32 s6, s6, {PITCH}"); e(f"s_add_u32 s6, s6, {xo}")
    e("v_lshlrev_b32 v10, 4, v0"); e(f"v_add_u32 v61, {U0 + 512}, v10"); e(f"v_add_u32 v62, {X0}, v10")
    e("v_lshlrev_b32 v63, 4, v0")
    l0 = lab("zp")
    e(f"s_cmp_lg_u32 {s(sWAVE)}, 1"); e(f"s_cbranch_scc1 {l0}")
    e("v_lshrrev_b32 v11, 5, v1"); e(f"v_mul_u32_u24 v11, {UP}, v11"); e("v_and_b32 v12, 31, v1"); e("v_lshl_add_u32 v11, v12, 4, v11")
    e(f"v_add_u32 v11, {U0}, v11")
    e("v_mov_b32 v12, 0"); e("v_mov_b32 v13, 0"); e("v_mov_b32 v14, 0"); e("v_mov_b32 v15, 0")
    e("ds_write_b128 v11, v[12:15]")
    A.label(l0)
    XX = 40; F = 64
    if layer == 1:
        e("v_lshlrev_b32 v18, 4, v1")
        e(f"s_lshl_b32 {s(sW)}, {s(sJ)}, 2"); e(f"s_add_u32 {s(sW)}, {s(sW)}, {s(sWAVE)}")
        e(f"s_mul_i32 {s(sW)}, {s(sW)}, 49152"); e(f"s_add_u32 {s(sW)}, {s(sW)}, {WFG}")
    else:
        e(f"s_lshl_b32 s7, {s(sCP)}, 7"); e(f"s_add_u32 s7, s7, {X2T}")
        e("v_lshrrev_b32 v19, 2, v0"); e(f"v_mul_u32_u24 v19, {ROP}, v19"); e("v_and_b32 v10, 3, v0"); e("v_lshl_add_u32 v19, v10, 4, v19")

def conv(layer):
    XX = 40; SB = 24; F = 64; UU = 48
    if layer == 2:
        e(f"s_mov_b32 {s(sT)}, {S3}")
        e("v_lshlrev_b32 v10, 4, v0")
        e(f"buffer_load_dwordx4 {v(XX,4)}, v19, {s(sSRD,4)}, s7 offen sc1")
        e(f"buffer_load_dwordx4 {v(XX+4,4)}, v19, {s(sSRD,4)}, s7 offen offset:64 sc1")
        for i in range(4):
            e(f"s_add_u32 {s(sT+2)}, {s(sT)}, {4096*i}")
            e(f"buffer_load_dwordx4 {v(SB+4*i,4)}, v10, {s(sSRD,4)}, {s(sT+2)} offen sc1")
        e("s_waitcnt vmcnt(4)")
        for i in range(8):
            j, hi = i >> 1, i & 1
            for c in range(2):
                if hi: e(f"v_and_b32 {v(F+2*i+c)}, {s(sHI)}, {v(XX+4*c+j)}")
                else: e(f"v_lshlrev_b32 {v(F+2*i+c)}, 16, {v(XX+4*c+j)}")
        e(f"ds_write_b128 v62, {v(XX,4)}"); e(f"ds_write_b128 v62, {v(XX+4,4)} offset:4096")
        e("s_waitcnt vmcnt(0)")
    else:
        b1_issue()
        for i in range(8):
            e(f"v_and_b32 {v(SB+2*i+1)}, {s(sHI)}, {v(SB+2*i)}"); e(f"v_lshlrev_b32 {v(SB+2*i)}, 16, {v(SB+2*i)}")
        for i in range(8): e(f"v_rcp_f32 {v(SB+2*i+1)}, {v(SB+2*i+1)}")
        e("s_waitcnt vmcnt(1)")
        for i in range(8):
            j, hi = i >> 1, i & 1
            for c in range(2):
                if hi: e(f"v_and_b32 {v(F+2*i+c)}, {s(sHI)}, {v(XX+4*c+j)}")
                else: e(f"v_lshlrev_b32 {v(F+2*i+c)}, 16, {v(XX+4*c+j)}")
        e(f"ds_write_b128 v62, {v(XX,4)}"); e(f"ds_write_b128 v62, {v(XX+4,4)} offset:4096")
    stamp(f"c{layer}_ld")
    if layer == 2:
        T = 80
        for k in range(4):
            b = SB + 4*k; t = T + 4*k
            e(f"v_pk_mul_f32 {v(b,2)}, {v(b,2)}, {s(sINV512,2)}"); e(f"v_pk_mul_f32 {v(b+2,2)}, {v(b+2,2)}, {s(sINV512,2)}")
        for k in range(4):
            b = SB + 4*k
            e(f"v_fma_f32 {v(b+1)}, -{v(b)}, {v(b)}, {v(b+1)}"); e(f"v_fma_f32 {v(b+3)}, -{v(b+2)}, {v(b+2)}, {v(b+3)}")
        for k in range(4):
            b = SB + 4*k
            e(f"v_max_f32 {v(b+1)}, 0, {v(b+1)}"); e(f"v_max_f32 {v(b+3)}, 0, {v(b+3)}")
        for i in range(8):
            b = SB + 2*i
            e(f"v_cvt_pk_bf16_f32 {v(T+i)}, {v(b)}, {v(b+1)}")
        for i in range(8):
            b = SB + 2*i
            e(f"v_lshlrev_b32 {v(b)}, 16, {v(T+i)}"); e(f"v_and_b32 {v(b+1)}, {s(sHI)}, {v(T+i)}")
        for i in range(8): e(f"v_add_f32 {v(SB+2*i+1)}, 0x3727c5ac, {v(SB+2*i+1)}")
        for k in range(4): e(f"v_cvt_pk_bf16_f32 {v(T+k)}, {v(SB+4*k+1)}, {v(SB+4*k+3)}")
        for k in range(4):
            e(f"v_lshlrev_b32 {v(SB+4*k+1)}, 16, {v(T+k)}"); e(f"v_and_b32 {v(SB+4*k+3)}, {s(sHI)}, {v(T+k)}")
        for i in range(8): e(f"v_sqrt_f32 {v(SB+2*i+1)}, {v(SB+2*i+1)}")
        for k in range(4): e(f"v_cvt_pk_bf16_f32 {v(T+k)}, {v(SB+4*k+1)}, {v(SB+4*k+3)}")
        for k in range(4):
            e(f"v_lshlrev_b32 {v(SB+4*k+1)}, 16, {v(T+k)}"); e(f"v_and_b32 {v(SB+4*k+3)}, {s(sHI)}, {v(T+k)}")
        for i in range(8): e(f"v_rcp_f32 {v(SB+2*i+1)}, {v(SB+2*i+1)}")
    for i in range(8):
        e(f"v_pk_add_f32 {v(F+2*i,2)}, {v(F+2*i,2)}, {v(SB+2*i,2)} op_sel_hi:[1,0] neg_lo:[0,1] neg_hi:[0,1]")
    for i in range(8): e(f"v_cvt_pk_bf16_f32 {v(80+i)}, {v(F+2*i)}, {v(F+2*i+1)}")
    for i in range(8):
        e(f"v_lshlrev_b32 {v(F+2*i)}, 16, {v(80+i)}"); e(f"v_and_b32 {v(F+2*i+1)}, {s(sHI)}, {v(80+i)}")
    for i in range(8):
        e(f"v_pk_mul_f32 {v(F+2*i,2)}, {v(F+2*i,2)}, {v(SB+2*i,2)} op_sel:[0,1] op_sel_hi:[1,1]")
    for c in range(2):
        for j in range(4): e(f"v_cvt_pk_bf16_f32 {v(UU+4*c+j)}, {v(F+4*j+c)}, {v(F+4*j+2+c)}")
        e(f"ds_write_b128 v61, {v(UU+4*c,4)} offset:{UP*c}")
    trick = gw_loads() if layer == 1 else []
    e("s_waitcnt lgkmcnt(0)"); e("s_barrier")
    if layer == 1: b1_check()
    stamp(f"c{layer}_pro")
    vA, vB = 16, 17
    ACC = 24; SET = [64, 128]
    def loads(tp, st):
        out = []
        seq = []
        for k in range(8):
            seq.append(f"ds_read_b128 {v(SET[st]+32+4*k,4)}, {v(vB)} offset:{512*k + 64*(3 - tp)}")
            o = 64*(3 - tp) + 512*(7 - k)
            seq.append(f"ds_read_b64 {v(SET[st]+4*k,2)}, {v(vA)} offset:{o}")
            seq.append(f"ds_read_b64 {v(SET[st]+4*k+2,2)}, {v(vA)} offset:{o + 8}")
        return seq
    for l in loads(0, 0): e(l)
    ti = 0; nm = 0
    TRK = int(OPTS.get("trk", 4))
    e(f"s_mov_b32 {s(sT+4)}, {s(sDSKV)}"); e(f"s_mov_b32 {s(sT+5)}, {s(sDSKV)}")
    side = []
    for k in range(4):
        side.append(f"ds_read_b64 {v(64+2*k,2)}, v57 offset:{512*k}"); side.append(f"ds_read_b64 {v(72+2*k,2)}, v58 offset:{512*k}")
    side2 = ["s_waitcnt lgkmcnt(0)"]
    for k in range(4):
        for j in range(2):
            side2 += [f"v_lshlrev_b32 {v(96+4*k+2*j)}, 16, {v(64+2*k+j)}", f"v_and_b32 {v(97+4*k+2*j)}, {s(sHI)}, {v(64+2*k+j)}",
                      f"v_lshlrev_b32 {v(112+4*k+2*j)}, 16, {v(72+2*k+j)}", f"v_and_b32 {v(113+4*k+2*j)}, {s(sHI)}, {v(72+2*k+j)}"]
    for k in range(8): side2.append(f"v_pk_fma_f32 {v(96+2*k,2)}, {v(96+2*k,2)}, {s(sT+4,2)}, {v(112+2*k,2)}")
    fills = fill_groups(2, 61, 62) if layer == 2 else []
    hold = [0]
    for tp in range(4):
        st = tp & 1
        nxt = loads(tp + 1, st ^ 1) if tp < 3 else []
        n = 0; nb = 0
        for T in range(8):
            if tp == 0: e(f"s_waitcnt lgkmcnt({min(15, 24 - (3*T+3) + min(n, len(nxt)))})")
            elif T == 0: e("s_waitcnt lgkmcnt(0)")
            for q in range(T + 1):
                c_ = "0" if (tp == 0 and q == 0) else v(ACC+4*T, 4)
                e(f"v_mfma_f32_16x16x32_bf16 {v(ACC+4*T,4)}, {v(SET[st]+4*q,4)}, {v(SET[st]+32+4*(T-q),4)}, {c_}")
                nm += 1; nb += 1
                if not (tp == 0 and T < 3) and n < len(nxt):
                    e(nxt[n]); n += 1
                if tp == 3:
                    if nb <= 8: e(side.pop(0))
                    elif nb > 12:
                        for _ in range(2):
                            if side2: e(side2.pop(0))
                if ti < len(trick) and nm % TRK == 0:
                    for l in trick[ti]: e(l)
                    ti += 1
                elif fills and tp < 3 and nb > 4:
                    if hold[0] > 0: hold[0] -= 1
                    else:
                        g = fills.pop(0); emit_group(g)
                        if any("buffer_store" in l for l in g): hold[0] = 12
        while n < len(nxt): e(nxt[n]); n += 1
    assert not fills
    while side2: e(side2.pop(0))
    stamp(f"c{layer}_mm")
    lp1 = lab("p1"); lj = lab("pj")
    e("s_cmp_eq_u32 s5, 1"); e(f"s_cbranch_scc1 {lp1}")
    e("s_nop 3")
    for k in range(4): e(f"ds_write_b128 v59, {v(ACC+16+4*k,4)} offset:{1024*k}")
    e(f"s_branch {lj}")
    A.label(lp1)
    for k in range(4): e(f"ds_write_b128 v59, {v(ACC+4*k,4)} offset:{1024*k}")
    e("s_nop 3")
    for k in range(8): e(f"v_mov_b64 {v(ACC+2*k,2)}, {v(ACC+16+2*k,2)}")
    A.label(lj)
    for k in range(8):
        e(f"v_pk_add_f32 {v(96+2*k,2)}, {v(96+2*k,2)}, {v(ACC+2*k,2)}")
    e("s_waitcnt lgkmcnt(0)"); e("s_barrier")
    for k in range(4): e(f"ds_read_b128 {v(80+4*k,4)}, v60 offset:{1024*k}")
    e(f"s_waitcnt vmcnt({min(63, ti) if layer == 1 else 0})")
    for k in range(4):
        e(f"s_waitcnt lgkmcnt({3-k})")
        e(f"v_pk_add_f32 {v(96+4*k,2)}, {v(96+4*k,2)}, {v(80+4*k,2)}"); e(f"v_pk_add_f32 {v(98+4*k,2)}, {v(98+4*k,2)}, {v(82+4*k,2)}")
        e(f"v_cvt_pk_bf16_f32 {v(64+2*k)}, {v(96+4*k)}, {v(97+4*k)}"); e(f"v_cvt_pk_bf16_f32 {v(65+2*k)}, {v(98+4*k)}, {v(99+4*k)}")
        e(f"buffer_store_dwordx2 {v(64+2*k,2)}, v56, {s(sSRD,4)}, s6 offen offset:{512*k} sc1")
    return trick[ti:]

NCSK, NCSV, NCSQ = 2, 4, 6
XRES = 184
def ones_regs(r):
    for i in range(4): e(f"v_mov_b32 {v(r+i)}, 0x3f803f80")
def colsums():
    ON = 152
    for ks in range(16):
        c0 = lambda r: "0" if ks == 0 else v(r, 4)
        e(f"v_mfma_f32_16x16x32_bf16 v[28:31], {v(ON,4)}, {a((0*16+ks)*4,4)}, {c0(28)}")
        e(f"v_mfma_f32_16x16x32_bf16 v[32:35], {v(ON,4)}, {a((1*16+ks)*4,4)}, {c0(32)}")
        e(f"v_mfma_f32_16x16x32_bf16 v[36:39], {a((2*16+ks)*4,4)}, {v(ON,4)}, {c0(36)}")
    e(f"v_sub_f32 {v(NCSK)}, 0, v28"); e(f"v_sub_f32 {v(NCSK+1)}, 0, v28")
    e(f"v_sub_f32 {v(NCSV)}, 0, v32"); e(f"v_sub_f32 {v(NCSV+1)}, 0, v32")
    for i in range(4): e(f"v_sub_f32 {v(NCSQ+i)}, 0, {v(36+i)}")

TA = 12
gXE, gXO, gSW, gS4, gQA, gPQ, gKV = 156, 157, 158, 160, 164, 168, 169
def g_setup(layer):
    xt = XT1 if layer == 1 else XT3
    e("v_lshrrev_b32 v10, 3, v1"); e(f"v_mul_u32_u24 v10, {PITCH}, v10")
    e("v_bfe_u32 v11, v1, 4, 2"); e("v_lshlrev_b32 v11, 1, v11"); e("v_and_b32 v16, 7, v1"); e("v_xor_b32 v11, v11, v16")
    e("v_lshl_add_u32 v10, v11, 4, v10")
    e(f"s_lshl_b32 {s(sT)}, {s(sRS)}, 7"); e(f"v_add_u32 v19, {s(sT)}, v10")
    e(f"s_mul_i32 s4, {s(sWAVE)}, {32*PITCH}"); e(f"s_add_u32 s4, s4, {xt}")
    e(f"s_lshl_b32 s5, {s(sWAVE)}, 12"); e(f"s_add_u32 s5, s5, {AT}")
    e("v_lshrrev_b32 v10, 2, v1"); e("v_lshlrev_b32 v10, 7, v10"); e("v_and_b32 v11, 3, v1"); e("v_lshl_add_u32 v10, v11, 3, v10")
    e(f"v_add_u32 v10, {AT}, v10"); e("v_bfe_u32 v11, v1, 3, 2")
    for j in range(4):
        e(f"s_add_u32 {s(sT)}, {s(sWAVE)}, {j}"); e(f"s_and_b32 {s(sT)}, {s(sT)}, 3"); e(f"s_lshl_b32 {s(sM+j)}, {s(sT)}, 6")
        e(f"v_xor_b32 v16, {s(sT)}, v11"); e(f"v_lshl_add_u32 {v(TA+j)}, v16, 5, v10")
    ones_regs(152)
    e("v_lshrrev_b32 v11, 5, v1"); e("v_lshlrev_b32 v11, 4, v11"); e("v_bfe_u32 v16, v1, 2, 2"); e("v_add_u32 v11, v11, v16")
    e(f"s_lshl_b32 {s(sT)}, {s(sJO)}, 7"); e(f"s_lshl_b32 {s(sT+1)}, {s(sWAVE)}, 5"); e(f"s_add_u32 {s(sT)}, {s(sT)}, {s(sT+1)}")
    e(f"v_add_u32 v11, {s(sT)}, v11"); e("v_lshlrev_b32 v11, 7, v11")
    e("v_and_b32 v16, 3, v1"); e("v_lshl_add_u32 v11, v16, 3, v11"); e(f"v_add_u32 v11, {AT}, v11")
    e(f"s_and_b32 {s(sT)}, {s(sJ)}, 1"); e(f"s_lshl_b32 {s(sT)}, {s(sT)}, 1")
    e("v_bfe_u32 v16, v1, 4, 1"); e(f"v_add_u32 v16, {s(sT)}, v16"); e("v_bfe_u32 v17, v1, 3, 1"); e("v_xor_b32 v16, v16, v17")
    e(f"v_lshl_add_u32 {v(gXE)}, v16, 5, v11"); e("v_xor_b32 v16, 2, v16"); e(f"v_lshl_add_u32 {v(gXO)}, v16, 5, v11")
    e("v_and_b32 v10, 15, v1"); e("v_lshlrev_b32 v10, 2, v10"); e(f"v_add_u32 v11, {ST}, v10")
    e(f"s_lshl_b32 {s(sT)}, {s(sWAVE)}, 6"); e(f"v_add_u32 {v(gSW)}, {s(sT)}, v11")
    e("v_lshrrev_b32 v10, 4, v1"); e("v_lshlrev_b32 v10, 4, v10"); e(f"v_add_u32 v10, {ST}, v10")
    for j in range(4):
        e(f"v_add_u32 {v(gS4+j)}, {s(sM+j)}, v10"); e(f"v_add_u32 {v(gQA+j)}, {s(sM+j)}, v11")
    e("v_and_b32 v10, 15, v1"); e("v_lshlrev_b32 v10, 4, v10"); e("v_bfe_u32 v11, v1, 4, 1"); e("v_lshl_add_u32 v10, v11, 3, v10")
    e("v_lshrrev_b32 v11, 5, v1"); e(f"v_lshl_add_u32 {v(gPQ)}, v11, 10, v10")
    e("v_lshrrev_b32 v10, 4, v1"); e("v_lshlrev_b32 v10, 8, v10"); e("v_and_b32 v11, 15, v1"); e(f"v_lshl_add_u32 {v(gKV)}, v11, 2, v10")
    e(f"v_lshlrev_b32 v183, 2, v1")
    kvp_addr(KVP1 if layer == 1 else KVP2, 6)
    pq_addr(PQ1 if layer == 1 else PQ2, 7)
    e(f"s_lshl_b32 {s(sT)}, {s(sJ)}, 5"); e(f"s_mul_i32 {s(sT)}, {s(sT)}, {KVW}")
    e(f"s_lshr_b32 {s(sT+1)}, {s(sRS)}, 3"); e(f"s_mul_i32 {s(sT+1)}, {s(sT+1)}, {KVH}"); e(f"s_add_u32 {s(sT)}, {s(sT)}, {s(sT+1)}")
    e(f"s_add_u32 s3, {s(sT)}, {KVP1 if layer == 1 else KVP2}")
    e(f"s_and_b32 {s(sT+2)}, {s(sRS)}, 7")
    e(f"s_cmp_eq_u32 {s(sWAVE)}, 2")
    e(f"s_cselect_b32 {s(sT+3)}, 3, 7"); e(f"s_cselect_b32 {s(sT+4)}, 1, 0")
    e(f"s_mov_b32 s42, 0x0f0f0f0f"); e("s_cselect_b32 s42, s42, -1"); e("s_mov_b32 s43, s42")
    e(f"s_lshl_b32 {s(sT+5)}, {s(sT+2)}, 7"); e(f"s_cmp_eq_u32 {s(sWAVE)}, 2"); e(f"s_cselect_b32 {s(sT+5)}, 1024, {s(sT+5)}")
    e(f"s_lshl_b32 {s(sT+6)}, {s(sT+2)}, 6"); e(f"s_cselect_b32 {s(sT+6)}, 512, {s(sT+6)}") if False else None
    e("v_lshrrev_b32 v10, 3, v1"); e(f"v_mul_u32_u24 v10, {KVW}, v10"); e(f"v_and_b32 v11, {s(sT+3)}, v1"); e("v_lshl_add_u32 v11, v11, 4, v10")
    e(f"v_add_u32 v170, {s(sT+5)}, v11")
    e(f"s_lshl_b32 {s(sT+6)}, {s(sT+2)}, 6"); e(f"s_cmp_eq_u32 {s(sWAVE)}, 2"); e(f"s_cselect_b32 {s(sT+6)}, 512, {s(sT+6)}")
    e("v_lshrrev_b32 v10, 3, v1"); e(f"v_mul_u32_u24 v10, {FRP}, v10"); e("v_and_b32 v11, 7, v1"); e("v_lshl_add_u32 v10, v11, 3, v10")
    e(f"v_add_u32 v171, {s(sT+6)}, v10")
    f_addr(F1 if layer == 1 else F2, 40)
    e(f"s_cmp_eq_u32 {s(sT+2)}, 0"); e(f"s_cselect_b32 {s(sT+3)}, 2, 3"); e(f"s_cmp_ge_u32 {s(sWAVE)}, {s(sT+3)}"); e("s_cselect_b32 s41, 1, 0")
    e("v_and_b32 v10, 3, v1")
    e(f"v_cmp_eq_u32 {s(sM+4,2)}, 1, v10"); e(f"v_cmp_eq_u32 {s(sM+6,2)}, 2, v10"); e(f"v_cmp_eq_u32 s[2:3], 3, v10") if False else None
    if layer == 1:
        e("v_lshlrev_b32 v18, 4, v1")
        e(f"s_lshl_b32 {s(sW)}, {s(sJO)}, 2"); e(f"s_add_u32 {s(sW)}, {s(sW)}, {s(sWAVE)}")
        e(f"s_lshl_b32 {s(sW)}, {s(sW)}, 15"); e(f"s_add_u32 {s(sW)}, {s(sW)}, {WFO}")

def gphase(layer):
    kvp = KVP1 if layer == 1 else KVP2
    ff = F1 if layer == 1 else F2
    def dma(c, i):
        return [f"s_add_u32 {s(sT)}, s4, {(128*c + 8*i)*PITCH}", f"s_add_u32 m0, s5, {c*16384 + i*1024}",
                f"buffer_load_dwordx4 v19, {s(sSRD,4)}, {s(sT)} offen sc1 lds"]
    e(f"v_lshl_add_u32 v21, v1, 4, s5")
    def check_reads(c): return [f"ds_read_b32 {v(56+i)}, v21 offset:{c*16384 + i*1024}" for i in range(4)]
    def validate(c, first=False):
        lr = lab("gv"); lg = lab("gvk"); lx = lab("gvx")
        A.label(lr)
        for l in check_reads(c): e(l)
        e("s_waitcnt lgkmcnt(0)")
        maxtree([56, 57, 58, 59], 56)
        e("v_cmp_eq_u32 vcc, -1, v56")
        e(f"s_cbranch_vccz {lg}")
        e(f"s_sub_u32 {s(sSPIN)}, {s(sSPIN)}, 1"); e(f"s_cbranch_scc1 {lx}")
        for i in range(4):
            for l in dma(c, i): e(l)
        e("s_waitcnt vmcnt(0)")
        e(f"s_branch {lr}")
        A.label(lx); e(f"s_mov_b32 {s(sSPIN)}, 0")
        A.label(lg)
    e("s_barrier")
    if int(OPTS.get("gpre", 0)): e(f"s_sleep {OPTS.get('gpre')}")
    for c in range(2):
        for i in range(4):
            for l in dma(c, i): e(l)
    late = [dma(c, i) for c in (2, 3) for i in range(4)]
    XF = [64, 80]
    AK, AV, AQ, GR, RS_, ON = 96, 112, 128, 144, 148, 152
    trick = ow_loads() if layer == 1 else []
    if layer == 1:
        for i in range(4): e(f"v_mov_b32 {v(176+i)}, -1")
        e(f"s_lshr_b32 s62, {s(sWAVE)}, 1"); e(f"s_lshl_b32 s61, {s(sCP)}, 1"); e("s_add_u32 s62, s62, s61"); e(f"s_mul_i32 s62, s62, {PITCH}")
        e(f"s_and_b32 s61, {s(sWAVE)}, 1"); e("s_lshl_b32 s61, s61, 11"); e("s_add_u32 s62, s62, s61"); e(f"s_add_u32 s62, s62, {XT3}")
        trick.insert(6, [f"buffer_store_dwordx4 v[176:179], v18, {s(sSRD,4)}, s62 offen sc1"])
        trick.insert(12, [f"buffer_store_dwordx4 v[176:179], v18, {s(sSRD,4)}, s62 offen offset:1024 sc1"])
    def reads(ks, base=None):
        b = XF[ks & 1] if base is None else base
        out = []
        for j in range(4):
            out.append(f"ds_read_b64_tr_b16 {v(b+4*j,2)}, {v(TA+j)} offset:{ks*4096}")
            out.append(f"ds_read_b64_tr_b16 {v(b+4*j+2,2)}, {v(TA+j)} offset:{ks*4096+2048}")
        return out
    stamp(f"g{layer}_iss")
    e("s_waitcnt vmcnt(4)")
    validate(0)
    e("s_barrier")
    stamp(f"g{layer}_ld0")
    for l in reads(0): e(l)
    st_ = {"ti": 0, "nw": 0, "nm": 0}
    TRG = int(OPTS.get("trg", 5))
    def trickle(ok):
        st_["nm"] += 1
        if ok and st_["ti"] < len(trick) and st_["nm"] % TRG == 0:
            for l in trick[st_["ti"]]: e(l)
            st_["ti"] += 1; st_["nw"] += 1
    for ks in range(16):
        nxt = []
        if ks < 15:
            nxt = reads(ks + 1)
        x = XF[ks & 1]
        e("s_waitcnt lgkmcnt(0)")
        if ks < 15 and (ks + 1) % 4 == 0:
            c = (ks + 1) // 4
            lok = lab("gok")
            maxtree([56, 57, 58, 59], 56)
            e("v_cmp_eq_u32 vcc, -1, v56")
            e(f"s_cbranch_vccz {lok}")
            for i in range(4):
                for l in dma(c, i): e(l)
            e("s_waitcnt vmcnt(0)")
            validate(c)
            A.label(lok)
            e("s_barrier")
        if ks < 14 and (ks + 2) % 4 == 0:
            c = (ks + 2) // 4
            e(f"s_waitcnt vmcnt({min(63, 4*(3-c) + st_['nw'] + (len(late) and 0))})") if not late else e(f"s_waitcnt vmcnt({min(63, (8 - len(late)) - (4 if c >= 2 else 0) + (0))})")
            nxt = nxt + check_reads(c)
        z = lambda r: "0" if ks == 0 else v(r, 4)
        mf = []
        for j in range(4):
            mf.append(f"v_mfma_f32_16x16x32_bf16 {v(AK+4*j,4)}, {v(x+4*j,4)}, {a((0*16+ks)*4,4)}, {z(AK+4*j)}")
            mf.append(f"v_mfma_f32_16x16x32_bf16 {v(AV+4*j,4)}, {v(x+4*j,4)}, {a((1*16+ks)*4,4)}, {z(AV+4*j)}")
        mf.insert(1, f"v_mfma_f32_16x16x32_bf16 {v(GR,4)}, {v(x,4)}, {v(x,4)}, {z(GR)}")
        mf.insert(3, f"v_mfma_f32_16x16x32_bf16 {v(RS_,4)}, {v(ON,4)}, {v(x,4)}, {z(RS_)}")
        for m_i, m_ in enumerate(mf):
            e(m_)
            if m_i < len(nxt): e(nxt[m_i])
            if m_i == len(mf) - 1:
                for l in nxt[len(mf):]: e(l)
            if late and m_i in (1, 4, 7):
                for l in late.pop(0): e(l)
            trickle(ks >= 4)
    stamp(f"g{layer}_mm")
    for jj in range(4):
        e(f"ds_read_b64_tr_b16 {v(XRES+2*jj,2)}, {v(gXE + (jj & 1))} offset:{512*jj}")
    e("v_and_b32 v10, 3, v1")
    e(f"v_cmp_eq_u32 {s(sM+4,2)}, 1, v10"); e(f"v_cmp_eq_u32 {s(sM+6,2)}, 2, v10"); e("v_cmp_eq_u32 vcc, 3, v10")
    e(f"v_cndmask_b32 v11, {v(GR)}, {v(GR+1)}, {s(sM+4,2)}")
    e(f"v_cndmask_b32 v11, v11, {v(GR+2)}, {s(sM+6,2)}")
    e(f"v_cndmask_b32 v11, v11, {v(GR+3)}, vcc")
    stats_final(RS_, 11, 16, 17, 20)
    e("v_mul_f32 v16, v16, v17")
    e(f"s_mov_b32 {s(sT+2)}, 0x00f0000f"); e(f"s_mov_b32 {s(sT+3)}, 0xf0000f00")
    e(f"s_mov_b64 exec, {s(sT+2,2)}")
    e(f"ds_write_b32 {v(gSW)}, v17"); e(f"ds_write_b32 {v(gSW)}, v16 offset:256")
    e("s_mov_b64 exec, -1")
    R4, M4, RQ, MQ = 24, 40, 56, 176
    e("s_waitcnt lgkmcnt(0)"); e("s_barrier")
    for j in range(4):
        e(f"ds_read_b128 {v(R4+4*j,4)}, {v(gS4+j)}"); e(f"ds_read_b128 {v(M4+4*j,4)}, {v(gS4+j)} offset:256")
    for j in range(4):
        e(f"ds_read_b32 {v(RQ+2*j)}, {v(gQA+j)}"); e(f"ds_read_b32 {v(MQ+2*j)}, {v(gQA+j)} offset:256")
    stamp(f"g{layer}_st")
    PK, VV = 72, 80
    def phi2(items):
        for (rp, acc, mp, ncs, dst, T, bro) in items:
            e(f"v_pk_fma_f32 {v(T,2)}, {v(mp,2)}, {v(ncs,2)}, {s(sEPS6,2)}" + (" op_sel_hi:[0,1,1]" if bro else ""))
        for (rp, acc, mp, ncs, dst, T, bro) in items:
            e(f"v_pk_fma_f32 {v(T,2)}, {v(rp,2)}, {v(acc,2)}, {v(T,2)}" + (" op_sel_hi:[0,1,1]" if bro else ""))
        for (rp, acc, mp, ncs, dst, T, bro) in items: e(f"v_pk_mul_f32 {v(T+2,2)}, {v(T,2)}, {s(sLOG2E,2)}")
        for (rp, acc, mp, ncs, dst, T, bro) in items:
            e(f"v_exp_f32 {v(T+2)}, {v(T+2)} clamp"); e(f"v_exp_f32 {v(T+3)}, {v(T+3)} clamp")
        for (rp, acc, mp, ncs, dst, T, bro) in items:
            e(f"v_max_f32 {v(T)}, {s(sEPS6)}, {v(T)}"); e(f"v_max_f32 {v(T+1)}, {s(sEPS6)}, {v(T+1)}")
        for (rp, acc, mp, ncs, dst, T, bro) in items: e(f"v_pk_add_f32 {v(T,2)}, {v(T,2)}, {v(T+2,2)}")
        for (rp, acc, mp, ncs, dst, T, bro) in items: e(f"v_cvt_pk_bf16_f32 {v(dst)}, {v(T)}, {v(T+1)}")
    for j in range(4):
        e(f"s_waitcnt lgkmcnt({min(15, 8 + 2*(3-j))})")
        items = [(R4+4*j+2*hp, AK+4*j+2*hp, M4+4*j+2*hp, NCSK, PK+2*j+hp, 88 + 4*hp, False) for hp in range(2)]
        for hp in range(2):
            T = 104 + 2*hp if False else 172 + 2*hp
            e(f"v_pk_mul_f32 {v(T,2)}, {v(M4+4*j+2*hp,2)}, {v(NCSV,2)}")
        for hp in range(2):
            T = 172 + 2*hp
            e(f"v_pk_fma_f32 {v(T,2)}, {v(R4+4*j+2*hp,2)}, {v(AV+4*j+2*hp,2)}, {v(T,2)}")
        phi2(items)
        for hp in range(2):
            T = 172 + 2*hp
            e(f"v_cvt_pk_bf16_f32 {v(VV+2*j+hp)}, {v(T)}, {v(T+1)}")
        if j == 1:
            e(f"v_mfma_f32_16x16x32_bf16 {v(GR,4)}, {v(VV,4)}, {v(PK,4)}, 0")
            e(f"v_mfma_f32_16x16x32_bf16 {v(RS_,4)}, {v(ON,4)}, {v(PK,4)}, 0")
    e(f"v_mfma_f32_16x16x32_bf16 {v(GR,4)}, {v(VV+4,4)}, {v(PK+4,4)}, {v(GR,4)}")
    e(f"v_mfma_f32_16x16x32_bf16 {v(RS_,4)}, {v(ON,4)}, {v(PK+4,4)}, {v(RS_,4)}")
    PQR = 96
    e("s_waitcnt lgkmcnt(0)")
    for i in range(4):
        e(f"buffer_store_dword {v(GR+i)}, {v(gKV)}, {s(sSRD,4)}, s6 offen offset:{64*i} sc1")
    e("s_mov_b64 exec, 0xffff")
    e(f"buffer_store_dword {v(RS_)}, v183, {s(sSRD,4)}, s6 offen offset:1024 sc1")
    e("s_mov_b64 exec, -1")
    stamp(f"g{layer}_kv")
    def red_loads():
        for i in range(4):
            e(f"s_add_u32 {s(sT+4)}, s3, {8*i*KVW}")
            e(f"buffer_load_dwordx4 {v(24+4*i,4)}, v170, {s(sSRD,4)}, {s(sT+4)} offen sc1")
    RLK = int(OPTS.get("rlk", 11))
    QS = [64, 80, 112]
    for l in reads(0, QS[0]): e(l)
    for l in reads(1, QS[1]): e(l)
    for ks in range(16):
        nxt = reads(ks + 2, QS[(ks + 2) % 3]) if ks < 14 else []
        x = QS[ks % 3]
        e(f"s_waitcnt lgkmcnt({8 if ks < 15 else 0})")
        z = lambda r: "0" if ks == 0 else v(r, 4)
        if ks == RLK:
            lsk = lab("rl")
            e("s_cmp_eq_u32 s41, 0"); e(f"s_cbranch_scc1 {lsk}")
            red_loads()
            A.label(lsk)
        for j in range(4):
            e(f"v_mfma_f32_16x16x32_bf16 {v(AQ+4*j,4)}, {a((2*16+ks)*4,4)}, {v(x+4*j,4)}, {z(AQ+4*j)}")
            for l in nxt[2*j:2*j+2]: e(l)
            if j % 2 == 0 and st_["ti"] < len(trick):
                for l in trick[st_["ti"]]: e(l)
                st_["ti"] += 1
    stamp(f"g{layer}_q")
    for j in range(0, 4, 2):
        phi2([(RQ+2*(j+jj), AQ+4*(j+jj)+2*hp, MQ+2*(j+jj), NCSQ+2*hp, PQR+2*(j+jj)+hp, 64 + 8*jj + 4*hp, True) for jj in range(2) for hp in range(2)])
    for j in range(4):
        e(f"s_lshl_b32 {s(sT+2)}, {s(sM+j)}, 2"); e(f"s_add_u32 {s(sT+2)}, {s(sT+2)}, s7")
        e(f"buffer_store_dwordx2 {v(PQR+2*j,2)}, {v(gPQ)}, {s(sSRD,4)}, {s(sT+2)} offen sc1")
    for ins in trick[st_["ti"]:]:
        for l in ins: e(l)
    lred = lab("red")
    e("s_cmp_eq_u32 s41, 0"); e(f"s_cbranch_scc1 {lred}")
    lr = lab("rp"); lg = lab("rg"); l0 = lab("r0")
    e(f"s_waitcnt vmcnt({4 + len(trick[st_['ti']:])})")
    e(f"s_branch {l0}")
    A.label(lr)
    red_loads()
    e("s_waitcnt vmcnt(0)")
    A.label(l0)
    maxtree([24, 28, 32, 36], 56)
    e("v_cmp_eq_u32 vcc, -1, v56")
    spin_check(lr, lg)
    stamp(f"r{layer}_ok")
    e("v_pk_add_f32 v[24:25], v[24:25], v[28:29]"); e("v_pk_add_f32 v[26:27], v[26:27], v[30:31]")
    e("v_pk_add_f32 v[32:33], v[32:33], v[36:37]"); e("v_pk_add_f32 v[34:35], v[34:35], v[38:39]")
    e("v_pk_add_f32 v[24:25], v[24:25], v[32:33]"); e("v_pk_add_f32 v[26:27], v[26:27], v[34:35]")
    regs = [24, 25, 26, 27]
    for r in regs: e(f"v_add_f32_dpp {v(r)}, {v(r)}, {v(r)} row_ror:8 row_mask:0xf bank_mask:0xf")
    for r in regs: e(f"v_mov_b32 {v(r+4)}, {v(r)}")
    for r in regs: e(f"v_permlane16_swap_b32 {v(r)}, {v(r+4)}")
    for r in regs: e(f"v_add_f32 {v(r)}, {v(r)}, {v(r+4)}")
    for r in regs: e(f"v_mov_b32 {v(r+4)}, {v(r)}")
    for r in regs: e(f"v_permlane32_swap_b32 {v(r)}, {v(r+4)}")
    for r in regs: e(f"v_add_f32 {v(r)}, {v(r)}, {v(r+4)}")
    e("v_cvt_pk_bf16_f32 v28, v24, v25"); e("v_cvt_pk_bf16_f32 v29, v26, v27")
    e("s_mov_b64 exec, s[42:43]")
    e(f"buffer_store_dwordx2 v[28:29], v171, {s(sSRD,4)}, s40 offen sc1")
    e("s_mov_b64 exec, -1")
    A.label(lred)

def ophase(layer):
    pq = PQ1 if layer == 1 else PQ2
    ff = F1 if layer == 1 else F2
    KF, PQF = 24, 56
    e("v_and_b32 v10, 31, v1"); e("v_min_u32 v10, 16, v10")
    e("v_lshlrev_b32 v10, 5, v10"); e("v_lshrrev_b32 v11, 5, v1"); e("v_lshl_add_u32 v10, v11, 4, v10")
    e(f"s_lshl_b32 {s(sT)}, {s(sWAVE)}, 3"); e(f"s_mul_i32 s4, {s(sT)}, {FP}"); e(f"s_add_u32 s4, s4, {ff}")
    e(f"s_mul_i32 {s(sT+1)}, {s(sXCD)}, {FRP}"); e(f"s_add_u32 s4, s4, {s(sT+1)}")
    e("v_and_b32 v11, 31, v1"); e("v_lshlrev_b32 v11, 4, v11"); e("v_lshrrev_b32 v12, 5, v1"); e("v_lshl_add_u32 v11, v12, 10, v11")
    e(f"s_mul_i32 s5, {s(sT)}, {HP}"); e(f"s_add_u32 s5, s5, {pq}")
    e(f"s_lshl_b32 {s(sT+3)}, {s(sRS)}, 11"); e(f"s_add_u32 s5, s5, {s(sT+3)}")
    e(f"s_and_b32 {s(sT+3)}, {s(sRO)}, 1"); e(f"s_lshl_b32 {s(sT+3)}, {s(sT+3)}, 9"); e(f"s_add_u32 s5, s5, {s(sT+3)}")
    e(f"s_mul_i32 s3, {s(sWAVE)}, 5120"); e(f"s_add_u32 s3, s3, {AT + 32768}")
    e("v_add_u32 v10, s3, v10"); e("v_lshlrev_b32 v19, 4, v1")
    e(f"s_lshl_b32 {s(sT)}, {s(sWAVE)}, 13"); e(f"s_add_u32 {s(sT)}, {s(sT)}, {OT}")
    e(f"v_lshl_add_u32 v12, v1, 4, {s(sT)}")
    e(f"v_lshlrev_b32 v13, 4, v1"); e(f"v_add_u32 v13, {OT}, v13")
    if layer == 1:
        e("v_and_b32 v14, 31, v1"); e(f"v_mul_u32_u24 v14, {TBP}, v14"); e("v_lshrrev_b32 v15, 5, v1"); e("v_lshl_add_u32 v14, v15, 5, v14")
        e(f"s_mul_i32 {s(sT+4)}, {s(sWAVE)}, {32*TBP}"); e(f"s_add_u32 {s(sT+4)}, {s(sT+4)}, {TB}"); e(f"v_add_u32 v14, {s(sT+4)}, v14")
        e("v_lshrrev_b32 v15, 4, v1"); e("v_lshlrev_b32 v15, 3, v15"); e("v_bfe_u32 v16, v1, 2, 2"); e("v_add_u32 v15, v15, v16")
        e(f"v_mul_u32_u24 v15, {TBP}, v15"); e("v_and_b32 v16, 3, v1"); e("v_lshl_add_u32 v15, v16, 3, v15"); e(f"v_add_u32 v15, {s(sT+4)}, v15")
        e("v_and_b32 v16, 15, v1"); e(f"v_lshlrev_b32 v16, 6, v16"); e("v_lshrrev_b32 v17, 4, v1"); e("v_lshl_add_u32 v16, v17, 4, v16")
        e(f"s_lshl_b32 s6, {s(sJO)}, 7"); e(f"s_lshl_b32 {s(sT+1)}, {s(sWAVE)}, 5"); e(f"s_add_u32 s6, s6, {s(sT+1)}")
        e(f"s_lshl_b32 s6, s6, 6"); e(f"s_mul_i32 {s(sT+1)}, {s(sRO)}, {ROP}"); e(f"s_add_u32 s6, s6, {s(sT+1)}")
        e(f"s_add_u32 s6, s6, {X2T}")
        e("v_bfe_u32 v17, v1, 1, 2"); e("v_lshlrev_b32 v17, 12, v17"); e("v_bfe_u32 v18, v1, 3, 2"); e("v_lshl_add_u32 v17, v18, 4, v17")
        e("v_and_b32 v18, 1, v1"); e("v_lshl_add_u32 v17, v18, 3, v17"); e("v_lshrrev_b32 v18, 5, v1"); e("v_lshl_add_u32 v17, v18, 2, v17")
        e(f"s_lshl_b32 s7, {s(sRO)}, 6"); e(f"s_add_u32 s7, s7, {S3}")
    else:
        e("v_and_b32 v14, 31, v1"); e("v_lshlrev_b32 v14, 10, v14"); e("v_lshrrev_b32 v15, 5, v1"); e("v_lshl_add_u32 v14, v15, 5, v14")
        e(f"s_lshl_b32 {s(sT)}, {s(sRO)}, 15"); e(f"s_lshl_b32 {s(sT+1)}, {s(sJO)}, 8"); e(f"s_add_u32 {s(sT)}, {s(sT)}, {s(sT+1)}")
        e(f"s_lshl_b32 {s(sT+1)}, {s(sWAVE)}, 6"); e(f"s_add_u32 {s(sT)}, {s(sT)}, {s(sT+1)}")
        e(f"v_add_u32 v14, {s(sT)}, v14")
    XF = 104
    def pq_loads():
        for h in range(8):
            e(f"s_add_u32 {s(sT+3)}, s5, {h*HP}")
            e(f"buffer_load_dwordx4 {v(PQF+4*h,4)}, v11, {s(sSRD,4)}, {s(sT+3)} offen sc1")
    e("s_barrier")
    stamp(f"o{layer}_gate")
    if STAMPS and f"o{layer}_cnt" in STSET: e("s_mov_b32 s101, 0")
    if STAMPS and f"o{layer}_st0" in STSET:
        e("s_waitcnt vmcnt(0)"); stamp(f"o{layer}_st0")
    pq_loads()
    if STAMPS and f"o{layer}_pq" in STSET:
        stamp(f"o{layer}_pqi"); e("s_waitcnt vmcnt(0)"); stamp(f"o{layer}_pq")
    if int(OPTS.get("osl", 0)): e(f"s_sleep {OPTS.get('osl')}")
    lr = lab("of"); lg = lab("ofk")
    A.label(lr)
    for i in range(5):
        e(f"s_add_u32 {s(sT+3)}, s4, {1024*i}"); e(f"s_add_u32 m0, s3, {1024*i}")
        e(f"buffer_load_dwordx4 v19, {s(sSRD,4)}, {s(sT+3)} offen sc1 lds")
    e("s_waitcnt vmcnt(0)")
    for h in range(8): e(f"ds_read_b128 {v(KF+4*h,4)}, v10 offset:{h*FP}")
    e("s_waitcnt lgkmcnt(0)")
    if STAMPS and f"o{layer}_cnt" in STSET: e("s_add_u32 s101, s101, 1")
    maxtree([KF+4*h+o for h in range(8) for o in (0, 2)], 18)
    e("v_cmp_eq_u32 vcc, -1, v18")
    spin_check(lr, lg)
    stamp(f"o{layer}_fok")
    if STAMPS and f"o{layer}_cnt" in STSET:
        i = len(stnames); stnames.append(f"o{layer}_cnt"); e(f"s_mov_b32 s{84+i}, s101")
    lr = lab("oq"); lg = lab("oqk")
    A.label(lr)
    maxtree([PQF+4*h+o for h in range(8) for o in (0, 2)], 18)
    e("v_cmp_eq_u32 vcc, -1, v18")
    e(f"s_cbranch_vccz {lg}")
    e(f"s_sub_u32 {s(sSPIN)}, {s(sSPIN)}, 1"); e(f"s_cbranch_scc1 {lg}_x")
    pq_loads()
    e("s_waitcnt vmcnt(0)")
    e(f"s_branch {lr}")
    A.label(lg + "_x"); e(f"s_mov_b32 {s(sSPIN)}, 0")
    A.label(lg)
    stamp(f"o{layer}_ld")
    DB = [88, 104, 120, 136, 152, 168, 24, 56]
    def m1(h): e(f"v_mfma_f32_32x32x16_bf16 {v(DB[h],16)}, {v(KF+4*h,4)}, {v(PQF+4*h,4)}, 0")
    def proc2(h0):
        hs = (h0, h0 + 1)
        for h in hs: e(f"v_add_f32 {v(DB[h]+8)}, {s(sEPS6)}, {v(DB[h]+8)}")
        for h in hs: e(f"v_rcp_f32 {v(DB[h]+8)}, {v(DB[h]+8)}")
        for k in range(4):
            for h in hs: e(f"v_pk_mul_f32 {v(DB[h]+2*k,2)}, {v(DB[h]+2*k,2)}, {v(DB[h]+8,2)} op_sel_hi:[1,0]")
        for h in hs:
            for k in range(4): e(f"v_cvt_pk_bf16_f32 {v(DB[h]+10+k)}, {v(DB[h]+2*k)}, {v(DB[h]+2*k+1)}")
            e(f"ds_write_b128 v12, {v(DB[h]+10,4)} offset:{1024*h}")
    for h in range(6): m1(h)
    proc2(0)
    m1(6); m1(7)
    proc2(2); proc2(4); proc2(6)
    stamp(f"o{layer}_m1")
    e("s_waitcnt lgkmcnt(0)"); e("s_barrier")
    ACC = 24; NB = 8; OF = [56 + 4*i for i in range(NB)]
    for h in range(NB): e(f"ds_read_b128 {v(OF[h],4)}, v13 offset:{1024*h}")
    for k in range(8):
        e(f"v_lshlrev_b32 {v(XF+2*k)}, 16, {v(XRES+k)}"); e(f"v_and_b32 {v(XF+2*k+1)}, {s(sHI)}, {v(XRES+k)}")
    for h in range(32):
        e(f"s_waitcnt lgkmcnt({min(NB-1, 31-h)})")
        w_ = a(192 + 4*h, 4) if h < 16 else v(192 + 4*(h-16), 4)
        c_ = "0" if h == 0 else v(ACC, 16)
        e(f"v_mfma_f32_32x32x16_bf16 {v(ACC,16)}, {w_}, {v(OF[h % NB],4)}, {c_}")
        if h + NB < 32: e(f"ds_read_b128 {v(OF[h % NB],4)}, v13 offset:{1024*(h+NB)}")
    stamp(f"o{layer}_g2")
    for k in range(8): e(f"v_pk_add_f32 {v(XF+2*k,2)}, {v(XF+2*k,2)}, {v(ACC+2*k,2)}")
    PKD = 120
    for k in range(8): e(f"v_cvt_pk_bf16_f32 {v(PKD+k)}, {v(XF+2*k)}, {v(XF+2*k+1)}")
    if layer == 2:
        fl = OPTS.get("outfl", "").replace("_", " ")
        e(f"global_store_dwordx4 v14, {v(PKD,4)}, {s(sOUT,2)} {fl}")
        e(f"global_store_dwordx4 v14, {v(PKD+4,4)}, {s(sOUT,2)} offset:16 {fl}")
        return
    e(f"ds_write_b128 v14, {v(PKD,4)}"); e(f"ds_write_b128 v14, {v(PKD+4,4)} offset:16")
    e(f"v_pk_add_f32 v[64:65], {v(XF,2)}, {v(XF+2,2)}"); e(f"v_pk_mul_f32 v[66:67], {v(XF,2)}, {v(XF,2)}")
    e(f"v_pk_add_f32 v[68:69], {v(XF+4,2)}, {v(XF+6,2)}"); e(f"v_pk_mul_f32 v[70:71], {v(XF+2,2)}, {v(XF+2,2)}")
    for k in range(2, 8):
        e(f"v_pk_fma_f32 {v(66+4*(k&1),2)}, {v(XF+2*k,2)}, {v(XF+2*k,2)}, {v(66+4*(k&1),2)}")
        if k >= 4: e(f"v_pk_add_f32 {v(64+4*(k&1),2)}, {v(64+4*(k&1),2)}, {v(XF+2*k,2)}")
    e("s_waitcnt lgkmcnt(0)")
    for k in range(2):
        e(f"ds_read_b64_tr_b16 {v(80+4*k,2)}, v15 offset:{32*k}")
        e(f"ds_read_b64_tr_b16 {v(82+4*k,2)}, v15 offset:{32*k + 4*TBP}")
    e("v_pk_add_f32 v[64:65], v[64:65], v[68:69]"); e("v_pk_add_f32 v[66:67], v[66:67], v[70:71]")
    e("v_add_f32 v64, v64, v65"); e("v_add_f32 v65, v66, v67")
    e("v_permlane32_swap_b32 v64, v65")
    e("v_add_f32 v64, v64, v65")
    e(f"s_lshl_b32 {s(sT)}, {s(sWAVE)}, 8"); e(f"s_add_u32 {s(sT)}, {s(sT)}, {ST}"); e(f"v_lshl_add_u32 v66, v1, 2, {s(sT)}")
    e("ds_write_b32 v66, v64")
    e("s_waitcnt lgkmcnt(1)")
    if OPTS.get("nox2") != "1":
        e(f"buffer_store_dwordx4 v[80:83], v16, {s(sSRD,4)}, s6 offen sc1")
        e(f"buffer_store_dwordx4 v[84:87], v16, {s(sSRD,4)}, s6 offen offset:1024 sc1")
    e("s_waitcnt lgkmcnt(0)"); e("s_barrier")
    l = lab("oat")
    e(f"s_cmp_lg_u32 {s(sWAVE)}, 0"); e(f"s_cbranch_scc1 {l}")
    e(f"v_lshlrev_b32 v66, 2, v1"); e(f"v_add_u32 v66, {ST}, v66")
    for k in range(4): e(f"ds_read_b32 {v(68+k)}, v66 offset:{256*k}")
    e("s_waitcnt lgkmcnt(0)")
    e("v_add_f32 v68, v68, v69"); e("v_add_f32 v70, v70, v71"); e("v_add_f32 v68, v68, v70")
    if OPTS.get("noat") != "1": e(f"buffer_atomic_add_f32 v68, v17, {s(sSRD,4)}, s7 offen")
    A.label(l)

def build():
    prologue()
    stamp("start")
    idx_loads()
    p0_fills()
    stamp("p_iss")
    e("s_waitcnt vmcnt(8)")
    stamp("p_ld")
    p0_x0_write()
    p0_stats()
    e("s_waitcnt vmcnt(6) lgkmcnt(0)"); e("s_barrier")
    p0_x0_store()
    nonce_issue()
    p0_wfrag()
    kgen_setup()
    stamp("p_st")
    kgen_round(["X1", "X2", "Y1"], 0); kgen_round(["Y2"], 0)
    nonce_get(2)
    p0_stats_store()
    sent_regs(20)
    for g in xt_fill_groups(XT1, 3, 10): emit_group(g)
    stamp("p_s1")
    kgen_round(["X1", "X2", "Y1"], 1); kgen_round(["Y2"], 1)
    arrive(0, vm=0)
    stamp("arr1")
    fg = fill_groups(1, 58, 59)
    def upto_store():
        while fg:
            g = fg.pop(0); emit_group(g)
            if any("buffer_store" in l for l in g): return
    upto_store()
    kgen_round(["X1", "X2"], 2); upto_store(); kgen_round(["X1", "X2"], 3); upto_store()
    stamp("k_tab")
    kgen_mm([], upto_store)
    while fg: upto_store()
    e("s_waitcnt lgkmcnt(0)"); e("s_barrier")
    stamp("kgen")
    if stop_here("K"): return
    conv_setup(1)
    stamp("B1")
    rest = conv(1)
    stamp("C1")
    if stop_here("C1"): return
    for ins in rest:
        for l in ins: e(l)
    g_setup(1)
    e("s_waitcnt vmcnt(0)")
    colsums()
    stamp("B2")
    gphase(1)
    stamp("G1")
    if stop_here("G1"): return
    ophase(1)
    stamp("o1_end")
    arrive(1)
    stamp("O1")
    if stop_here("O1"): return
    conv_setup(2)
    stamp("c2_set")
    wait(1, pre=int(OPTS.get("wpre2", 12)))
    stamp("B4")
    conv(2)
    stamp("C2")
    if stop_here("C2"): return
    g_setup(2)
    stamp("B5")
    gphase(2)
    stamp("G2")
    if stop_here("G2"): return
    ophase(2)
    if STAMPS:
        e("s_waitcnt vmcnt(0)")
        stamp("O2")
        stamps_out()

build()
A.label("L_end")
e("s_endpgm")

def rb_int(j):
    u = struct.unpack("<I", struct.pack("<f", float(j)))[0]
    u = (u + 0x7fff + ((u >> 16) & 1)) & 0xffff0000
    return int(struct.unpack("<f", struct.pack("<I", u))[0])
idx = []
for x in range(2064):
    j = 2047 - x
    if j < 0: ent = 1024
    else:
        t = rb_int(j); ent = t if t < 512 else 512 + (t - 512) // 4
    idx.append(2 * ent)

lines, nn = hazard_pass(A.lines)
probs = check_branches(lines)
for p in probs: print("BRANCH HAZARD:", p, file=sys.stderr)
hdr = open("interleave_layers__ssm_conv_s4d__linear_attn_block__prompt.s.ref").read().split("; Override launch")[0]
out = hdr + "; Override launch geometry by editing the next line.\n"
out += f"; @launch grid=(256,1,1) block=(256,1,1) lds={LDS_BYTES}\n"
out += '.amdgcn_target "amdgcn-amd-amdhsa--gfx950"\n.text\n'
out += f".globl {NAME}\n.p2align 8\n.type {NAME},@function\n{NAME}:\n"
out += "\n".join(lines) + "\n"
out += ".p2align 6\n.type L_idx,@object\nL_idx:\n"
for i in range(0, len(idx), 16): out += "  .short " + ", ".join(str(x) for x in idx[i:i+16]) + "\n"
out += "L_tab_end:\n"
out += f""".section .rodata,"a"
.p2align 6
.amdhsa_kernel {NAME}
  .amdhsa_next_free_vgpr 512
  .amdhsa_next_free_sgpr 102
  .amdhsa_accum_offset 256
  .amdhsa_group_segment_fixed_size 0
  .amdhsa_kernarg_size 104
  .amdhsa_user_sgpr_count 2
  .amdhsa_user_sgpr_kernarg_segment_ptr 1
  .amdhsa_system_sgpr_workgroup_id_x 1
  .amdhsa_float_denorm_mode_32 3
.end_amdhsa_kernel
"""
open(sys.argv[1], "w").write(out)
if STAMPS: open(sys.argv[1] + ".names", "w").write(",".join(stnames))
print(f"wrote {sys.argv[1]}: {len(lines)} lines, {nn} nops inserted; WS_USED={WS_USED:#x}", file=sys.stderr)
```

```python
import sys, struct
from asmlib import *

NAME = "interleave_layers__ssm_conv_s4d__linear_attn_block__prompt_kernel"
OPTS = {}
for x in sys.argv[2:]:
    if "=" in x:
        k_, v_ = x.split("="); OPTS[k_] = v_
STOP = OPTS.get("stop")
SPINMAX = int(OPTS.get("spin", 100000))
BK = int(OPTS.get("bk", 2))

PITCH = 4224
S1 = 0x000000
S3 = 0x004000
FP = 640; FRP = 32 * FP + 128; F1 = 0x1200000 - 0x100000; F2 = F1 + 0x40000
STAMP_OFF = 0x020000
X0P = 8192 + 128
CNT = 0x030000
KVP1 = 0x040000; KVH = 1152; KVW = 4 * KVH; KVP2 = KVP1 + 0x128000
WFG = 0x2A0000; WFO = WFG + 0x180000
XSZ = 0x220000
XT1 = 0x4A0000; XT3 = XT1 + XSZ; X2T = XT3 + XSZ
ROP = 32768 + 256
HP = 65536 + 256
PQ1 = X2T + XSZ; PQ2 = PQ1 + 0x210000
X0T = 0x1200000
WS_USED = 0x1200000 + 0x210000
assert PQ2 + 0x210000 <= F1
KC = 0; KCC = 4160; KCH = 4 * KCC
AT = 66560
MISC = AT + 65536
ST = MISC
WST = MISC + 2048
CT = WST + 8192; CTP = 2080
TB = WST; TBP = 80
LDS_BYTES = 163840
X0S = 147456
TKP = 224; TABC = 256 * TKP
U0 = AT; UP = 4608; X0 = AT + 2 * UP; RED = X0 + 8192
OT = AT

sU, sLOGA, sAIM, sCR, sCI, sLDT, sDSK = 8, 10, 12, 14, 16, 18, 20
sWQKV, sWO, sOUT, sDBG, sWS = 24, 26, 28, 30, 32
sSRD = 36; sSRD2 = 40
sWAVE, sXCD, sIDX, sCP, sRS, sJ, sRO, sJO = 44, 45, 46, 47, 48, 49, 50, 51
sSPIN = 52; sDSKV = 53
sT = 54
sLOG2E = 64; sEPS6 = 66; sM = 68; sHI = 76; sPC = 78; sINV512 = 80
sW = 34
sNON = 35

def f2u(f): return struct.unpack("<I", struct.pack("<f", f))[0]
A = Asm(); e = A.e
uid = [0]
def lab(p):
    uid[0] += 1; return f"L_{p}_{uid[0]}"

STAMPS = OPTS.get("stamps") == "1"
DEFSET = "start,arr1,kgen,B1,c1_pro,C1,B2,g1_kv,G1,o1_ld,O1,B4,c2_pro,C2,B5,G2,o2_ld,O2"
STSET = OPTS.get("st", DEFSET).split(",")
stnames = []
def stamp(name):
    if not STAMPS or name not in STSET: return
    i = len(stnames); stnames.append(name); assert i < 18
    e(f"{'s_memtime' if OPTS.get('clk') == '1' else 's_memrealtime'} s[82:83]"); e("s_waitcnt lgkmcnt(0)"); e(f"s_mov_b32 s{84+i}, s82")
def stamps_out():
    if not STAMPS: return
    if OPTS.get("dbgout"):
        l = lab("so")
        e(f"s_cmp_lg_u32 {s(sWAVE)}, 0"); e(f"s_cbranch_scc1 {l}")
        e(f"s_cmp_lg_u32 s2, {OPTS.get('dbgout')}"); e(f"s_cbranch_scc1 {l}")
        e("s_mov_b64 exec, 1")
        words = [2, 3, 5, 6, 7, 9, 10, 11, 13, 14, 15]
        for i in range(1, min(len(stnames), 12)):
            e(f"s_sub_u32 {s(sT)}, s{84+i}, s84")
            e(f"v_mov_b32 v10, {s(sT)}"); e(f"v_mov_b32 v11, {4*words[i-1]}")
            e(f"global_store_dword v11, v10, {s(sDBG,2)}")
        e("s_mov_b64 exec, -1")
        A.label(l)
        return
    l = lab("so")
    e(f"s_cmp_lg_u32 {s(sWAVE)}, {OPTS.get('stw', '0')}"); e(f"s_cbranch_scc1 {l}")
    e(f"s_lshl_b32 {s(sT)}, s2, 7"); e(f"s_add_u32 {s(sT)}, {s(sT)}, {STAMP_OFF}")
    e("s_mov_b64 exec, 1")
    for i in range(len(stnames)):
        e(f"v_mov_b32 v10, s{84+i}"); e(f"v_mov_b32 v11, {4*i}")
        e(f"buffer_store_dword v10, v11, {s(sSRD,4)}, {s(sT)} offen")
    e("s_mov_b64 exec, -1")
    A.label(l)
def stop_here(name):
    if STOP == name:
        e("s_waitcnt vmcnt(0) lgkmcnt(0)"); e("s_branch L_end"); return True
    return False

def sent_regs(r):
    for i in range(4): e(f"v_mov_b32 {v(r+i)}, -1")
def spin_check(retry, giveup, bk=None):
    e(f"s_cbranch_vccz {giveup}")
    bk = BK if bk is None else bk
    if bk: e(f"s_sleep {bk}")
    e(f"s_sub_u32 {s(sSPIN)}, {s(sSPIN)}, 1")
    e(f"s_cbranch_scc0 {retry}")
    e(f"s_mov_b32 {s(sSPIN)}, 0")
    A.label(giveup)
def maxtree(regs, dst):
    regs = list(regs); cur = regs.pop(0)
    while regs:
        if len(regs) >= 2:
            e(f"v_max3_u32 {v(dst)}, {v(cur)}, {v(regs[0])}, {v(regs[1])}"); regs = regs[2:]
        else:
            e(f"v_max_u32 {v(dst)}, {v(cur)}, {v(regs[0])}"); regs = []
        cur = dst

def arrive(k, vm=0):
    e(f"s_waitcnt vmcnt({vm}) lgkmcnt(0)"); e("s_barrier")
    l = lab("arr")
    e(f"s_cmp_lg_u32 {s(sWAVE)}, 0"); e(f"s_cbranch_scc1 {l}")
    e(f"s_and_b32 {s(sT)}, s2, 15"); e(f"s_lshl_b32 {s(sT)}, {s(sT)}, {4 if k == 0 else 12}")
    if k: e(f"s_add_u32 {s(sT)}, {s(sT)}, {CNT}")
    e(f"v_mov_b32 v10, {s(sT)}"); e("v_mov_b32 v11, 1")
    e("s_mov_b64 exec, 1")
    e(f"global_atomic_add v10, v11, {s(sDBG if k == 0 else sWS,2)}")
    e("s_mov_b64 exec, -1")
    A.label(l)
def wait(k, pre=0):
    l = lab("wt"); lp = lab("poll")
    e(f"s_cmp_lg_u32 {s(sWAVE)}, 0"); e(f"s_cbranch_scc1 {l}")
    e("v_and_b32 v10, 15, v0"); e(f"v_lshlrev_b32 v10, {4 if k == 0 else 12}, v10")
    if k: e(f"v_add_u32 v10, {CNT}, v10")
    e(f"s_movk_i32 {s(sT+1)}, {16 * max(k, 1)}")
    if pre: e(f"s_sleep {pre}")
    A.label(lp)
    e(f"global_load_dword v11, v10, {s(sDBG if k == 0 else sWS,2)} sc1")
    e("s_waitcnt vmcnt(0)")
    e(f"v_cmp_gt_u32 vcc, {s(sT+1)}, v11")
    spin_check(lp, l, bk=int(OPTS.get("wbk", 0)))
    e("s_barrier")

def cmul(d, x, w, t):
    return [f"v_pk_mul_f32 {v(t,2)}, {v(x,2)}, {v(w,2)} op_sel_hi:[1,0]",
            f"v_pk_fma_f32 {v(d,2)}, {v(x,2)}, {v(w,2)}, {v(t,2)} op_sel:[1,1,0] op_sel_hi:[0,1,1] neg_lo:[0,1,0]"]
def bf16r(dst, src):
    e(f"v_cvt_pk_bf16_f32 {v(dst)}, {v(src)}, {v(src)}"); e(f"v_lshlrev_b32 {v(dst)}, 16, {v(dst)}")
def stats_final(vsum, vsq, vm, vr, t, rcp=True):
    e(f"v_mul_f32 {v(t)}, {s(sINV512)}, {v(vsum)}")
    e(f"v_mul_f32 {v(t+1)}, {s(sINV512)}, {v(vsq)}")
    e(f"v_fma_f32 {v(t+1)}, -{v(t)}, {v(t)}, {v(t+1)}")
    e(f"v_max_f32 {v(t+1)}, 0, {v(t+1)}")
    e(f"v_cvt_pk_bf16_f32 {v(t)}, {v(t)}, {v(t+1)}")
    e(f"v_and_b32 {v(t+1)}, {s(sHI)}, {v(t)}"); e(f"v_lshlrev_b32 {v(vm)}, 16, {v(t)}")
    e(f"v_add_f32 {v(t+1)}, 0x3727c5ac, {v(t+1)}")
    bf16r(t + 1, t + 1)
    e(f"v_sqrt_f32 {v(t+1)}, {v(t+1)}")
    if rcp:
        bf16r(t + 1, t + 1)
        e(f"v_rcp_f32 {v(vr)}, {v(t+1)}")
    else:
        bf16r(vr, t + 1)

def kvp_addr(kvp, dst):
    e(f"s_lshl_b32 {s(dst)}, {s(sJ)}, 5"); e(f"s_add_u32 {s(dst)}, {s(dst)}, {s(sRS)}"); e(f"s_lshl_b32 {s(dst)}, {s(dst)}, 2")
    e(f"s_add_u32 {s(dst)}, {s(dst)}, {s(sWAVE)}"); e(f"s_mul_i32 {s(dst)}, {s(dst)}, {KVH}"); e(f"s_add_u32 {s(dst)}, {s(dst)}, {kvp}")
def f_addr(f, dst):
    e(f"s_lshr_b32 {s(dst)}, {s(sRS)}, 3"); e(f"s_lshl_b32 {s(sT+9)}, {s(sJ)}, 2"); e(f"s_add_u32 {s(dst)}, {s(dst)}, {s(sT+9)}")
    e(f"s_mul_i32 {s(dst)}, {s(dst)}, {FP}"); e(f"s_add_u32 {s(dst)}, {s(dst)}, {f}")
def pq_addr(pq, dst):
    e(f"s_lshl_b32 {s(dst)}, {s(sJ)}, 2"); e(f"s_add_u32 {s(dst)}, {s(dst)}, {s(sWAVE)}")
    e(f"s_mul_i32 {s(dst)}, {s(dst)}, {HP}"); e(f"s_lshl_b32 {s(sT+9)}, {s(sRS)}, 11"); e(f"s_add_u32 {s(dst)}, {s(dst)}, {s(sT+9)}")
    e(f"s_add_u32 {s(dst)}, {s(dst)}, {pq}")
def capture(fn):
    n = len(A.lines); fn(); out = [l.strip() for l in A.lines[n:]]; del A.lines[n:]
    return out
def fill_groups(layer, va, vb):
    S = 20; P1, K1, FF = 40, 41, 42
    pq = PQ1 if layer == 1 else PQ2; kvp = KVP1 if layer == 1 else KVP2; ff = F1 if layer == 1 else F2
    G = []
    def grp(fn): G.append(capture(fn))
    def single(fn):
        for l in capture(fn): G.append([l])
    single(lambda: sent_regs(S))
    def addr():
        e(f"s_lshl_b32 s{P1}, {s(sJ)}, 2"); e(f"s_add_u32 s{P1}, s{P1}, {s(sWAVE)}"); e(f"s_mul_i32 s{P1}, s{P1}, {HP}")
        e(f"s_lshl_b32 s61, {s(sRS)}, 11"); e(f"s_add_u32 s{P1}, s{P1}, s61"); e(f"s_add_u32 s{P1}, s{P1}, {pq}")
        e(f"s_lshl_b32 s{K1}, {s(sJ)}, 5"); e(f"s_add_u32 s{K1}, s{K1}, {s(sRS)}"); e(f"s_lshl_b32 s{K1}, s{K1}, 2")
        e(f"s_add_u32 s{K1}, s{K1}, {s(sWAVE)}"); e(f"s_mul_i32 s{K1}, s{K1}, {KVH}"); e(f"s_add_u32 s{K1}, s{K1}, {kvp}")
        e(f"s_lshr_b32 s{FF}, {s(sRS)}, 3"); e(f"s_lshl_b32 s61, {s(sJ)}, 2"); e(f"s_add_u32 s{FF}, s{FF}, s61")
        e(f"s_mul_i32 s{FF}, s{FF}, {FP}"); e(f"s_add_u32 s{FF}, s{FF}, {ff}")
        e(f"v_lshlrev_b32 {v(va)}, 4, v1"); e(f"v_lshlrev_b32 {v(vb)}, 2, v1")
    single(addr)
    G.append([f"buffer_store_dwordx4 {v(S,4)}, {v(va)}, {s(sSRD,4)}, s{K1} offen sc1", "MARK"])
    def st2():
        e("s_mov_b32 s62, -1"); e("s_mov_b32 s63, 0"); e("s_mov_b64 exec, s[62:63]")
        e(f"buffer_store_dword {v(S)}, {v(vb)}, {s(sSRD,4)}, s{K1} offen offset:1024 sc1")
        e("s_mov_b64 exec, -1")
    grp(st2)
    G.append([f"buffer_store_dwordx4 {v(S,4)}, {v(va)}, {s(sSRD,4)}, s{P1} offen sc1", "MARK"])
    G.append([f"buffer_store_dwordx4 {v(S,4)}, {v(va)}, {s(sSRD,4)}, s{P1} offen offset:1024 sc1", "MARK"])
    def fslice():
        l = lab("ff")
        e(f"s_cmp_lg_u32 {s(sWAVE)}, 2"); e(f"s_cbranch_scc1 {l}")
        e(f"s_and_b32 s61, {s(sRS)}, 7"); e("s_lshl_b32 s62, s61, 6")
        e(f"v_lshrrev_b32 {v(va)}, 3, v1"); e(f"v_mul_u32_u24 {v(va)}, {FRP}, {v(va)}"); e(f"v_and_b32 {v(vb)}, 7, v1"); e(f"v_lshl_add_u32 {v(va)}, {v(vb)}, 3, {v(va)}")
        e(f"v_add_u32 {v(vb)}, s62, {v(va)}")
        e(f"buffer_store_dwordx2 {v(S,2)}, {v(vb)}, {s(sSRD,4)}, s{FF} offen sc1")
        e("s_cmp_lg_u32 s61, 0"); e(f"s_cbranch_scc1 {l}")
        e("s_mov_b32 s62, 0x0f0f0f0f"); e("s_mov_b32 s63, 0x0f0f0f0f"); e("s_mov_b64 exec, s[62:63]")
        e(f"buffer_store_dwordx2 {v(S,2)}, {v(va)}, {s(sSRD,4)}, s{FF} offen offset:512 sc1")
        e("s_mov_b64 exec, -1")
        A.label(l)
    grp(fslice)
    return G
def xt_fill_groups(buf, sreg, va):
    G = []
    G.append([f"s_lshr_b32 s{sreg}, {s(sWAVE)}, 1"]); G.append([f"s_lshl_b32 s61, {s(sCP)}, 1"]); G.append([f"s_add_u32 s{sreg}, s{sreg}, s61"])
    G.append([f"s_mul_i32 s{sreg}, s{sreg}, {PITCH}"]); G.append([f"s_and_b32 s61, {s(sWAVE)}, 1"]); G.append(["s_lshl_b32 s61, s61, 11"])
    G.append([f"s_add_u32 s{sreg}, s{sreg}, s61"]); G.append([f"s_add_u32 s{sreg}, s{sreg}, {buf}"]); G.append([f"v_lshlrev_b32 {v(va)}, 4, v1"])
    G.append([f"buffer_store_dwordx4 v[20:23], {v(va)}, {s(sSRD,4)}, s{sreg} offen sc1"])
    G.append([f"buffer_store_dwordx4 v[20:23], {v(va)}, {s(sSRD,4)}, s{sreg} offen offset:1024 sc1"])
    return G
def emit_group(g):
    for l in g:
        if l == "MARK": continue
        if l.endswith(":"): A.label(l[:-1])
        else: e(l)

XR = 24; PRM = 32; IDX = 40; XC = 176
def prologue():
    stamp("t0")
    if OPTS.get("cntv"):
        e("s_mov_b32 s96, 0"); e("s_mov_b32 s97, 0"); e("s_mov_b32 s98, 0")
    e(f"s_getpc_b64 {s(sPC,2)}")
    A.label("L_pc")
    e("s_cmp_ge_u32 s2, 256")
    e("s_cbranch_scc1 L_end")
    e("s_load_dwordx16 s[8:23], s[0:1], 0")
    e("s_load_dwordx8 s[24:31], s[0:1], 64")
    e("s_load_dwordx2 s[32:33], s[0:1], 96")
    e("s_memrealtime s[82:83]")
    e("v_lshlrev_b32 v10, 7, v0")
    e("v_min_u32 v11, L_tab_end - L_pc - 4, v10")
    e(f"global_load_dword v38, v11, {s(sPC,2)}")
    e("v_add_u32 v10, 0x8000, v10")
    e("v_min_u32 v10, L_tab_end - L_pc - 4, v10")
    e(f"global_load_dword v39, v10, {s(sPC,2)}")
    e("v_lshrrev_b32 v1, 6, v0")
    e(f"s_and_b32 {s(sXCD)}, s2, 7")
    e(f"s_lshr_b32 {s(sIDX)}, s2, 3")
    e(f"v_readfirstlane_b32 {s(sWAVE)}, v1")
    e(f"s_lshl_b32 {s(sCP)}, {s(sXCD)}, 5"); e(f"s_add_u32 {s(sCP)}, {s(sCP)}, {s(sIDX)}")
    e("v_and_b32 v1, 63, v0")
    e(f"s_lshl_b32 {s(sT)}, {s(sCP)}, 9"); e(f"v_lshl_add_u32 v10, v0, 1, {s(sT)}")
    e(f"s_lshl_b32 {s(sT)}, {s(sCP)}, 2"); e("v_lshrrev_b32 v12, 7, v0"); e(f"v_lshl_add_u32 v11, v12, 1, {s(sT)}")
    e(f"s_lshl_b32 {s(sT)}, s2, 13"); e(f"v_lshl_add_u32 v13, v0, 5, {s(sT)}")
    e(f"s_mul_i32 s6, s2, 5462"); e(f"s_lshr_b32 s6, s6, 16"); e(f"s_mul_i32 s7, s6, 12"); e(f"s_sub_u32 s7, s2, s7")
    e(f"s_sub_u32 {s(sT+1)}, s2, 192"); e(f"s_lshr_b32 {s(sT)}, {s(sT+1)}, 1"); e(f"s_and_b32 {s(sT+1)}, {s(sT+1)}, 1")
    e("s_cmp_ge_u32 s2, 192")
    e(f"s_cselect_b32 s6, {s(sT)}, s6"); e(f"s_cselect_b32 s7, {s(sT+1)}, s7")
    e(f"s_cselect_b32 {s(sT+2)}, 4, 5")
    e(f"s_cselect_b32 {s(sT+3)}, 2, 3")
    e(f"s_cselect_b32 {s(sT+4)}, 10, 0")
    e(f"s_movk_i32 {s(sT+5)}, 3072"); e(f"s_cselect_b32 {s(sT+5)}, 1024, {s(sT+5)}")
    e(f"s_cselect_b32 {s(sT+6)}, 9, 8")
    e(f"s_cselect_b32 {s(sT+7)}, 5, 4")
    e(f"s_lshl_b32 {s(sT)}, s6, {s(sT+2)}"); e(f"s_lshl_b32 {s(sT+1)}, {s(sWAVE)}, {s(sT+3)}"); e(f"s_add_u32 {s(sT)}, {s(sT)}, {s(sT+1)}")
    e(f"s_mul_i32 {s(sT)}, {s(sT)}, {s(sT+5)}"); e(f"s_lshl_b32 {s(sT+1)}, s7, {s(sT+6)}"); e(f"s_add_u32 s4, {s(sT)}, {s(sT+1)}")
    e(f"v_lshrrev_b32 v14, {s(sT+7)}, v1"); e(f"v_mul_lo_u32 v14, {s(sT+5)}, v14")
    e(f"s_lshl_b32 {s(sT+1)}, 1, {s(sT+7)}"); e(f"s_sub_u32 {s(sT+1)}, {s(sT+1)}, 1"); e(f"v_and_b32 v15, {s(sT+1)}, v1"); e("v_lshl_add_u32 v14, v15, 4, v14")
    e(f"s_lshl_b32 {s(sT+1)}, 64, 0"); e(f"s_lshr_b32 {s(sT+1)}, 64, {s(sT+7)}"); e(f"s_mul_i32 s5, {s(sT+1)}, {s(sT+5)}")
    e(f"s_lshl_b32 {s(sT+3)}, {s(sWAVE)}, 11"); e(f"s_add_u32 {s(sT+3)}, {s(sT+3)}, {WST}")
    e("s_cmp_ge_u32 s2, 192")
    e("s_waitcnt lgkmcnt(0)")
    stamp("karg")
    if True:
        e(f"v_min_u32 v16, {(WS_USED - 1) // 0x200000}, v1"); e("v_lshlrev_b32 v16, 21, v16")
        e(f"global_load_dword v19, v16, {s(sWS,2)}")
    e("s_cmp_ge_u32 s2, 192")
    e(f"global_load_ushort {v(PRM)}, v10, {s(sLOGA,2)}")
    e(f"global_load_ushort {v(PRM+1)}, v10, {s(sAIM,2)}")
    e(f"global_load_ushort {v(PRM+4)}, v11, {s(sLDT,2)}")
    e(f"global_load_dwordx4 {v(XR,4)}, v13, {s(sU,2)}")
    e(f"global_load_dwordx4 {v(XR+4,4)}, v13, {s(sU,2)} offset:16")
    e(f"global_load_ushort {v(PRM+2)}, v10, {s(sCR,2)}")
    e(f"global_load_ushort {v(PRM+3)}, v10, {s(sCI,2)}")
    e(f"global_load_ushort {v(PRM+5)}, v11, {s(sDSK,2)}")
    e(f"s_cselect_b32 {s(sSRD2)}, {s(sWO)}, {s(sWQKV)}"); e(f"s_cselect_b32 {s(sSRD2+1)}, {s(sWO+1)}, {s(sWQKV+1)}")
    e(f"s_mov_b32 {s(sT)}, {512*1536*2}"); e(f"s_cselect_b32 {s(sSRD2+2)}, {512*512*2}, {s(sT)}")
    e(f"s_and_b32 {s(sSRD2+1)}, {s(sSRD2+1)}, 0xffff"); e(f"s_mov_b32 {s(sSRD2+3)}, 0x20000")
    ln = lab("nw")
    e("v_mov_b32 v23, 4")
    e(f"s_or_b32 {s(sT)}, s2, {s(sWAVE)}"); e(f"s_cmp_lg_u32 {s(sT)}, 0"); e(f"s_cbranch_scc1 {ln}")
    e(f"s_or_b32 {s(sT)}, s82, 1"); e(f"v_mov_b32 v58, {s(sT)}")
    e("s_mov_b64 exec, 1")
    e(f"global_store_dword v23, v58, {s(sDBG,2)} sc1")
    e("s_mov_b64 exec, -1")
    e("s_waitcnt vmcnt(63)")
    A.label(ln)
    e(f"s_mov_b32 m0, {s(sT+3)}")
    e(f"buffer_load_dwordx4 v14, {s(sSRD2,4)}, s4 offen lds")
    e(f"s_add_u32 s4, s4, s5"); e(f"s_add_u32 m0, {s(sT+3)}, 1024")
    e(f"buffer_load_dwordx4 v14, {s(sSRD2,4)}, s4 offen lds")
    e(f"s_and_b32 {s(sT)}, {s(sIDX)}, 3"); e(f"s_lshl_b32 {s(sRS)}, {s(sXCD)}, 2"); e(f"s_add_u32 {s(sRS)}, {s(sRS)}, {s(sT)}")
    e(f"s_lshr_b32 {s(sJ)}, {s(sIDX)}, 2")
    e(f"s_and_b32 {s(sT)}, {s(sJ)}, 1"); e(f"s_lshl_b32 {s(sRO)}, {s(sRS)}, 1"); e(f"s_add_u32 {s(sRO)}, {s(sRO)}, {s(sT)}")
    e(f"s_lshr_b32 {s(sJO)}, {s(sJ)}, 1")
    e(f"s_mov_b32 {s(sLOG2E)}, {f2u(1.4426950408889634):#x}"); e(f"s_mov_b32 {s(sLOG2E+1)}, {s(sLOG2E)}")
    e(f"s_mov_b32 {s(sEPS6)}, {f2u(1e-6):#x}"); e(f"s_mov_b32 {s(sEPS6+1)}, {s(sEPS6)}")
    e(f"s_mov_b32 {s(sINV512)}, {f2u(1.0/512):#x}"); e(f"s_mov_b32 {s(sINV512+1)}, {s(sINV512)}")
    e(f"s_mov_b32 {s(sHI)}, 0xffff0000")
    e(f"s_mov_b32 {s(sSPIN)}, {SPINMAX}")
    e(f"s_mov_b32 {s(sSRD)}, {s(sWS)}"); e(f"s_and_b32 {s(sSRD+1)}, {s(sWS+1)}, 0xffff")
    e(f"s_mov_b32 {s(sSRD+2)}, {WS_USED:#x}"); e(f"s_mov_b32 {s(sSRD+3)}, 0x20000")

def p0_fills():
    e("v_mov_b32 v12, 0")
    e(f"s_lshl_b32 {s(sT)}, s2, 6"); e(f"s_add_u32 {s(sT)}, {s(sT)}, {S3}")
    e("v_lshlrev_b32 v10, 2, v1")
    e("s_mov_b64 exec, 0xffff")
    e(f"buffer_store_dword v12, v10, {s(sSRD,4)}, {s(sT)} offen sc1")
    e(f"s_lshl_b32 {s(sT+1)}, s2, 12"); e(f"s_add_u32 {s(sT+1)}, {s(sT+1)}, {CNT}")
    e("s_cmp_lt_u32 s2, 16"); e(f"s_cselect_b32 {s(sT)}, {s(sT+1)}, {s(sT)}")
    e("s_mov_b64 exec, 1")
    e(f"buffer_store_dword v12, v10, {s(sSRD,4)}, {s(sT)} offen sc1")
    e("s_mov_b64 exec, -1")

def nonce_issue():
    e("v_mov_b32 v17, 4")
    e(f"global_load_dword v58, v17, {s(sDBG,2)} sc1")
def nonce_get(vm=0):
    lr = lab("nr"); lg = lab("ng"); l0 = lab("n0")
    e(f"s_waitcnt vmcnt({vm})")
    e(f"s_branch {l0}")
    A.label(lr)
    e(f"global_load_dword v58, v17, {s(sDBG,2)} sc1")
    e("s_waitcnt vmcnt(0)")
    A.label(l0)
    e("v_cmp_eq_u32 vcc, 0, v58")
    spin_check(lr, lg, bk=1)
    e(f"v_readfirstlane_b32 {s(sNON)}, v58")

def idx_loads():
    e(f"s_add_u32 {s(sT)}, {s(sPC)}, L_idx - L_pc"); e(f"s_addc_u32 {s(sT+1)}, {s(sPC+1)}, 0")
    e("v_and_b32 v10, 127, v0"); e("v_lshlrev_b32 v10, 4, v10")
    e(f"global_load_dwordx4 {v(IDX,4)}, v10, {s(sT,2)}")
    e(f"global_load_dwordx4 {v(IDX+4,4)}, v10, {s(sT,2)} offset:16")
    e(f"global_load_dwordx4 {v(IDX+8,4)}, v10, {s(sT,2)} offset:2048")
    e(f"global_load_dwordx4 {v(IDX+12,4)}, v10, {s(sT,2)} offset:2064")

def gather_loads():
    out = []
    for i in range(4): out.append(f"global_load_dword {v(XC+i)}, v19, {s(sU,2)} offset:{1024*i}")
    for i in range(4): out.append(f"global_load_dword {v(XC+4+i)}, v18, {s(sU,2)} offset:{1024*i}")
    return out

def p0_x0_write():
    e(f"v_lshlrev_b32 v10, 5, v0"); e(f"v_add_u32 v10, {X0S}, v10")
    e(f"ds_write_b128 v10, {v(XR,4)}"); e(f"ds_write_b128 v10, {v(XR+4,4)} offset:16")
def p0_x0_store():
    e("v_bfe_u32 v10, v1, 2, 2"); e("v_lshlrev_b32 v10, 10, v10")
    e("v_lshrrev_b32 v11, 4, v1"); e("v_lshl_add_u32 v10, v11, 5, v10")
    e("v_and_b32 v11, 3, v1"); e("v_lshl_add_u32 v10, v11, 3, v10")
    e(f"s_lshl_b32 {s(sT)}, {s(sWAVE)}, 8"); e(f"s_add_u32 {s(sT)}, {s(sT)}, {X0S}"); e(f"v_add_u32 v10, {s(sT)}, v10")
    for k in range(2):
        e(f"ds_read_b64_tr_b16 {v(100+4*k,2)}, v10 offset:{128*k}"); e(f"ds_read_b64_tr_b16 {v(102+4*k,2)}, v10 offset:{128*k + 4096}")
    e(f"s_mul_i32 {s(sT)}, s2, {X0P}"); e(f"s_lshl_b32 {s(sT+1)}, {s(sWAVE)}, 11"); e(f"s_add_u32 {s(sT)}, {s(sT)}, {s(sT+1)}")
    e(f"s_add_u32 {s(sT)}, {s(sT)}, {X0T}")
    e("v_lshlrev_b32 v11, 4, v1")
    e("s_waitcnt lgkmcnt(0)")
    e(f"buffer_store_dwordx4 v[100:103], v11, {s(sSRD,4)}, {s(sT)} offen sc1")
    e(f"buffer_store_dwordx4 v[104:107], v11, {s(sSRD,4)}, {s(sT)} offen offset:1024 sc1")

def p0_stats():
    F = 64
    for i in range(8):
        e(f"v_lshlrev_b32 {v(F+2*i)}, 16, {v(XR+i)}"); e(f"v_and_b32 {v(F+2*i+1)}, {s(sHI)}, {v(XR+i)}")
    for i in range(4): e(f"v_pk_add_f32 {v(80+2*i,2)}, {v(F+4*i,2)}, {v(F+4*i+2,2)}")
    e(f"v_pk_mul_f32 v[88:89], {v(F,2)}, {v(F,2)}"); e(f"v_pk_mul_f32 v[90:91], {v(F+2,2)}, {v(F+2,2)}")
    e(f"v_pk_add_f32 v[80:81], v[80:81], v[82:83]"); e(f"v_pk_add_f32 v[84:85], v[84:85], v[86:87]")
    for i in range(2, 8): e(f"v_pk_fma_f32 {v(88+2*(i&1),2)}, {v(F+2*i,2)}, {v(F+2*i,2)}, {v(88+2*(i&1),2)}")
    e(f"v_pk_add_f32 v[80:81], v[80:81], v[84:85]"); e("v_pk_add_f32 v[88:89], v[88:89], v[90:91]")
    e("v_add_f32 v80, v80, v81"); e("v_add_f32 v82, v88, v89")
    for r_ in (8, 4, 2, 1):
        e(f"v_add_f32_dpp v80, v80, v80 row_ror:{r_} row_mask:0xf bank_mask:0xf")
        e(f"v_add_f32_dpp v82, v82, v82 row_ror:{r_} row_mask:0xf bank_mask:0xf")
    e("v_add_f32_dpp v80, v80, v80 row_bcast:15 row_mask:0xa bank_mask:0xf")
    e("v_add_f32_dpp v82, v82, v82 row_bcast:15 row_mask:0xa bank_mask:0xf")
    stats_final(80, 82, 56, 57, 86, rcp=False)
    e("v_lshrrev_b32 v56, 16, v56"); e(f"v_and_or_b32 v56, v57, {s(sHI)}, v56")

def p0_stats_store():
    e(f"v_mov_b32 v57, {s(sNON)}")
    e(f"s_lshl_b32 {s(sT)}, s2, 4"); e(f"s_lshl_b32 {s(sT+1)}, {s(sWAVE)}, 12"); e(f"s_add_u32 {s(sT)}, {s(sT)}, {s(sT+1)}")
    e(f"s_add_u32 {s(sT)}, {s(sT)}, {S1}")
    e("v_lshrrev_b32 v10, 5, v1"); e(f"v_lshl_add_u32 v10, v10, 3, {s(sT)}")
    e(f"s_mov_b32 {s(sT+2)}, 0x00010000"); e(f"s_mov_b32 {s(sT+3)}, 0x00010000")
    e(f"s_mov_b64 exec, {s(sT+2,2)}")
    e(f"buffer_store_dwordx2 v[56:57], v10, {s(sSRD,4)}, 0 offen sc1")
    e("s_mov_b64 exec, -1")

def p0_wfrag():
    lo = lab("wo2"); lj = lab("wj2")
    e("s_cmp_ge_u32 s2, 192"); e(f"s_cbranch_scc1 {lo}")
    e("v_lshrrev_b32 v10, 2, v1"); e("v_lshlrev_b32 v10, 8, v10")
    e("v_and_b32 v11, 3, v1"); e("v_lshl_add_u32 v10, v11, 3, v10")
    e(f"s_lshl_b32 {s(sT)}, {s(sWAVE)}, 6"); e(f"s_add_u32 {s(sT)}, {s(sT)}, {WST}")
    e(f"v_add_u32 v10, {s(sT)}, v10")
    e("ds_read_b64_tr_b16 v[88:89], v10"); e("ds_read_b64_tr_b16 v[90:91], v10 offset:4096")
    e("ds_read_b64_tr_b16 v[92:93], v10 offset:32"); e("ds_read_b64_tr_b16 v[94:95], v10 offset:4128")
    e(f"s_lshr_b32 {s(sT)}, s7, 2")
    e(f"s_add_u32 {s(sT)}, {s(sT)}, 2"); e(f"s_cmp_ge_u32 {s(sT)}, 3")
    e(f"s_cselect_b32 {s(sT+1)}, 3, 0"); e(f"s_sub_u32 {s(sT)}, {s(sT)}, {s(sT+1)}")
    e(f"s_and_b32 {s(sT+1)}, s7, 3"); e(f"s_lshl_b32 {s(sT+1)}, {s(sT+1)}, 3")
    e(f"s_lshl_b32 {s(sT+2)}, {s(sWAVE)}, 1"); e(f"s_add_u32 {s(sT+1)}, {s(sT+1)}, {s(sT+2)}")
    e(f"s_mul_i32 {s(sT+1)}, {s(sT+1)}, 3"); e(f"s_add_u32 {s(sT+1)}, {s(sT+1)}, {s(sT)}")
    e(f"s_lshl_b32 {s(sT+1)}, {s(sT+1)}, 4"); e(f"s_add_u32 {s(sT+1)}, {s(sT+1)}, s6")
    e(f"s_lshl_b32 {s(sT+1)}, {s(sT+1)}, 10"); e(f"s_add_u32 {s(sT+1)}, {s(sT+1)}, {WFG}")
    e(f"s_add_u32 {s(sT+2)}, {s(sT+1)}, 49152")
    e(f"s_branch {lj}")
    A.label(lo)
    e("v_lshrrev_b32 v10, 5, v1"); e("v_lshlrev_b32 v10, 2, v10")
    e("v_bfe_u32 v11, v1, 2, 2"); e("v_add_u32 v10, v10, v11"); e("v_lshlrev_b32 v10, 9, v10")
    e("v_and_b32 v11, 1, v1"); e("v_lshl_add_u32 v10, v11, 5, v10")
    e("v_bfe_u32 v11, v1, 4, 1"); e("v_lshl_add_u32 v10, v11, 4, v10")
    e("v_bfe_u32 v11, v1, 1, 1"); e("v_lshl_add_u32 v10, v11, 3, v10")
    e(f"s_lshl_b32 {s(sT)}, {s(sWAVE)}, 7"); e(f"s_add_u32 {s(sT)}, {s(sT)}, {WST}")
    e(f"v_add_u32 v10, {s(sT)}, v10")
    e("ds_read_b64_tr_b16 v[88:89], v10"); e("ds_read_b64_tr_b16 v[90:91], v10 offset:4096")
    e("ds_read_b64_tr_b16 v[92:93], v10 offset:64"); e("ds_read_b64_tr_b16 v[94:95], v10 offset:4160")
    e(f"s_lshl_b32 {s(sT+1)}, s7, 3"); e(f"s_lshl_b32 {s(sT+2)}, {s(sWAVE)}, 1"); e(f"s_add_u32 {s(sT+1)}, {s(sT+1)}, {s(sT+2)}")
    e(f"s_lshl_b32 {s(sT+1)}, {s(sT+1)}, 5"); e(f"s_add_u32 {s(sT+1)}, {s(sT+1)}, s6")
    e(f"s_lshl_b32 {s(sT+1)}, {s(sT+1)}, 10"); e(f"s_add_u32 {s(sT+1)}, {s(sT+1)}, {WFO}")
    e(f"s_add_u32 {s(sT+2)}, {s(sT+1)}, 32768")
    A.label(lj)
    e("v_lshlrev_b32 v10, 4, v1")
    e("s_waitcnt lgkmcnt(0)")
    e(f"buffer_store_dwordx4 v[88:91], v10, {s(sSRD,4)}, {s(sT+1)} offen sc1")
    e(f"buffer_store_dwordx4 v[92:95], v10, {s(sSRD,4)}, {s(sT+2)} offen sc1")

def pw_multi(items, a2, b2):
    for (d, t, tm) in items:
        if t == 1:
            e(f"v_mov_b32 {v(tm)}, {v(a2)}"); e(f"v_fract_f32 {v(tm+1)}, {v(b2)}")
        else:
            c = f"{float(t)}" if t in (2, 4) else f"{f2u(float(t)):#x}"
            e(f"v_mul_f32 {v(tm)}, {c}, {v(a2)}"); e(f"v_mul_f32 {v(tm+1)}, {c}, {v(b2)}")
    for (d, t, tm) in items:
        e(f"v_exp_f32 {v(tm)}, {v(tm)}")
        if t != 1: e(f"v_fract_f32 {v(tm+1)}, {v(tm+1)}")
    for (d, t, tm) in items:
        e(f"v_cos_f32 {v(d)}, {v(tm+1)}"); e(f"v_sin_f32 {v(d+1)}, {v(tm+1)}")
    for (d, t, tm) in items:
        e(f"v_pk_mul_f32 {v(d,2)}, {v(d,2)}, {v(tm,2)} op_sel_hi:[1,0]")

W1, W4, W16, W64, W512 = 100, 102, 104, 106, 108
CH = {"X1": 112, "X2": 128, "Y1": 144, "Y2": 160}
def kgen_setup():
    for i in range(6): e(f"v_lshlrev_b32 {v(PRM+i)}, 16, {v(PRM+i)}")
    e(f"v_readfirstlane_b32 {s(sDSKV)}, {v(PRM+5)}")
    dt, are = 60, 61
    e(f"v_mul_f32 {v(dt)}, {s(sLOG2E)}, {v(PRM+4)}"); e(f"v_mul_f32 {v(are)}, {s(sLOG2E)}, {v(PRM)}")
    e(f"v_exp_f32 {v(dt)}, {v(dt)}"); e(f"v_exp_f32 {v(are)}, {v(are)}")
    e(f"v_cvt_pk_bf16_f32 {v(dt)}, {v(dt)}, {v(are)}")
    e(f"v_and_b32 {v(are)}, {s(sHI)}, {v(dt)}"); e(f"v_lshlrev_b32 {v(dt)}, 16, {v(dt)}")
    a2, b2 = 62, 63
    e(f"v_mul_f32 {v(a2)}, -{v(are)}, {v(dt)}"); e(f"v_mul_f32 {v(b2)}, {v(PRM+1)}, {v(dt)}")
    e(f"v_mul_f32 {v(a2)}, {s(sLOG2E)}, {v(a2)}"); e(f"v_mul_f32 {v(b2)}, 0.15915494, {v(b2)}")
    pw_multi([(W1, 1, 64), (W4, 4, 66), (W16, 16, 68), (W64, 64, 70), (W512, 512, 72)], a2, b2)
    e(f"v_add_f32 {v(dt)}, {v(dt)}, {v(dt)}")
    e(f"v_mul_f32 {v(CH['X1'])}, {v(PRM+2)}, {v(dt)}"); e(f"v_mul_f32 {v(CH['X1']+1)}, {v(PRM+3)}, {v(dt)}")
    for l in cmul(CH['X2'], CH['X1'], W512, 64): e(l)
    e(f"v_mov_b32 {v(CH['Y1'])}, 1.0"); e(f"v_mov_b32 {v(CH['Y1']+1)}, 0"); e(f"v_mov_b32 {v(CH['Y2'])}, 1.0"); e(f"v_mov_b32 {v(CH['Y2']+1)}, 0")
    e(f"v_lshrrev_b32 v96, 7, v0"); e(f"v_mul_u32_u24 v96, {TABC}, v96")
    e(f"v_and_b32 v97, 127, v0"); e(f"v_mul_u32_u24 v97, {TKP}, v97"); e("v_add_u32 v96, v96, v97")

def kgen_round(chains, rnd, side=None):
    Wof = {"X1": W16, "X2": W64, "Y1": W1, "Y2": W4}
    mbase = {"X1": 0, "X2": 32, "Y1": 64, "Y2": 80}
    tmp = {"X1": 64, "X2": 66, "Y1": 68, "Y2": 70}
    nval = {c: 8 for c in chains}
    if rnd == 3 and "X2" in chains: nval["X2"] = 1
    for i in range(1, 8):
        ls = [cmul(CH[c] + 2*i, CH[c] + 2*(i-1), Wof[c], tmp[c]) for c in chains if i < nval[c]]
        for k in range(2):
            for l in ls: e(l[k])
        if side and i in (1, 3, 5, 7) and len(side): e(side.pop(0))
    P = {c: 72 + 8*k for k, c in enumerate(chains)}
    for c in chains:
        neg = "-" if c[0] == "X" else ""
        for k in range(4):
            i0, i1 = (2*k, 2*k+1) if nval[c] == 8 else (0, 0)
            e(f"v_cvt_pk_bf16_f32 {v(P[c]+k)}, {v(CH[c]+2*i0)}, {v(CH[c]+2*i1)}")
            e(f"v_cvt_pk_bf16_f32 {v(P[c]+4+k)}, {neg}{v(CH[c]+2*i0+1)}, {neg}{v(CH[c]+2*i1+1)}")
        off = (mbase[c] + 8*rnd) * 2
        e(f"ds_write_b128 v96, {v(P[c],4)} offset:{off}")
        e(f"ds_write_b128 v96, {v(P[c]+4,4)} offset:{off + 128*TKP}")
    ls = [cmul(CH[c], CH[c] + 14, Wof[c], tmp[c]) for c in chains if nval[c] == 8 and not ((c[0] == "Y" and rnd == 1) or rnd == 3)]
    for k in range(2):
        for l in ls: e(l[k])

def kgen_mm(gl, fs):
    s1_issue()
    e("s_waitcnt lgkmcnt(0)"); e("s_barrier")
    e(f"s_lshr_b32 {s(sT)}, {s(sWAVE)}, 1"); e(f"s_and_b32 {s(sT+1)}, {s(sWAVE)}, 1")
    e(f"s_mul_i32 {s(sT+2)}, {s(sT)}, {TABC}")
    e(f"s_lshl_b32 {s(sT+3)}, {s(sT+1)}, 5"); e(f"s_add_u32 {s(sT+3)}, {s(sT+3)}, 128"); e(f"s_add_u32 {s(sT+3)}, {s(sT+3)}, {s(sT+2)}")
    e(f"s_lshl_b32 {s(sT+4)}, {s(sT+1)}, 6"); e(f"s_add_u32 {s(sT+4)}, {s(sT+4)}, {s(sT+2)}")
    e("v_lshrrev_b32 v10, 2, v1"); e(f"v_mul_u32_u24 v10, {TKP}, v10"); e("v_and_b32 v11, 3, v1"); e("v_lshl_add_u32 v10, v11, 3, v10")
    e(f"v_add_u32 v11, {s(sT+3)}, v10"); e(f"v_add_u32 v12, {s(sT+4)}, v10")
    YF, XF = 64, 96
    for ks in range(8):
        o = ks * 32 * TKP
        e(f"ds_read_b64_tr_b16 {v(YF+4*ks,2)}, v11 offset:{o}"); e(f"ds_read_b64_tr_b16 {v(YF+4*ks+2,2)}, v11 offset:{o + 16*TKP}")
        for tl in range(2):
            e(f"ds_read_b64_tr_b16 {v(XF+32*tl+4*ks,2)}, v12 offset:{o + 32*tl}"); e(f"ds_read_b64_tr_b16 {v(XF+32*tl+4*ks+2,2)}, v12 offset:{o + 16*TKP + 32*tl}")
    e("v_lshrrev_b32 v13, 7, v0")
    e(f"v_mul_u32_u24 v14, {CTP}, v13"); e(f"v_add_u32 v14, {CT}, v14")
    e(f"v_mul_u32_u24 v15, {KCH}, v13"); e("v_and_b32 v13, 127, v0"); e("v_lshl_add_u32 v15, v13, 4, v15")
    fs()
    for ks in range(8):
        e(f"s_waitcnt lgkmcnt({min(15, 6*(7-ks))})")
        for tl in range(2):
            c_ = "0" if ks == 0 else v(160 + 4*tl, 4)
            e(f"v_mfma_f32_16x16x32_bf16 {v(160+4*tl,4)}, {v(YF+4*ks,4)}, {v(XF+32*tl+4*ks,4)}, {c_}")
    e(f"s_mul_i32 {s(sT+2)}, {s(sT)}, {CTP}"); e(f"s_lshl_b32 {s(sT+3)}, {s(sT+1)}, 10"); e(f"s_add_u32 {s(sT+2)}, {s(sT+2)}, {s(sT+3)}")
    e(f"s_add_u32 {s(sT+2)}, {s(sT+2)}, {CT}")
    e("v_and_b32 v10, 15, v1"); e("v_lshlrev_b32 v10, 5, v10"); e("v_lshrrev_b32 v11, 4, v1"); e("v_lshl_add_u32 v10, v11, 3, v10")
    e(f"v_add_u32 v10, {s(sT+2)}, v10")
    e(f"s_mul_i32 {s(sT+2)}, {s(sT)}, {CTP}"); e(f"s_add_u32 {s(sT+2)}, {s(sT+2)}, {CT + 2048}")
    e(f"v_mov_b32 v11, {s(sT+2)}"); e("v_mov_b32 v12, 0")
    e("ds_write_b32 v11, v12")
    fs()
    G = [96, 112]
    for task in range(2):
        I = IDX + 8 * task
        for k in range(6):
            e(f"v_add_u32_sdwa {v(G[task]+2*k)}, v14, {v(I+k)} dst_sel:DWORD dst_unused:UNUSED_PAD src0_sel:DWORD src1_sel:WORD_0")
            e(f"v_add_u32_sdwa {v(G[task]+2*k+1)}, v14, {v(I+k)} dst_sel:DWORD dst_unused:UNUSED_PAD src0_sel:DWORD src1_sel:WORD_1")
    for tl in range(2):
        e(f"v_cvt_pk_bf16_f32 {v(168+2*tl)}, {v(160+4*tl)}, {v(161+4*tl)}")
        e(f"v_cvt_pk_bf16_f32 {v(169+2*tl)}, {v(162+4*tl)}, {v(163+4*tl)}")
        e(f"ds_write_b64 v10, {v(168+2*tl,2)} offset:{512*tl}")
    e("s_waitcnt lgkmcnt(0)"); e("s_barrier")
    stamp("k_mm")
    s1_validate(1)
    x0t_issue()
    for task in range(2):
        for k in range(12): e(f"ds_read_u16 {v(G[task]+k)}, {v(G[task]+k)}")
    for task in range(2):
        Dd, Dp, Sd, Sp = [(64, 72, 80, 88), (128, 136, 144, 152)][task]
        e(f"s_waitcnt lgkmcnt({12 if task == 0 else 4})")
        for k in range(6): e(f"v_lshl_or_b32 {v(Dd+k)}, {v(G[task]+2*k+1)}, 16, {v(G[task]+2*k)}")
        for k in range(4): e(f"v_mov_b32 {v(Dp+k)}, {v(Dd+k+1)}")
        for k in range(4): e(f"v_alignbit_b32 {v(Sd+k)}, {v(Dd+k+1)}, {v(Dd+k)}, 16")
        for k in range(4): e(f"v_alignbit_b32 {v(Sp+k)}, {v(Dd+k+2)}, {v(Dd+k+1)}, 16")
        for cp_, src in enumerate((Dd, Sd, Dp, Sp)):
            e(f"ds_write_b128 v15, {v(src,4)} offset:{cp_*KCC + task*2048}")
    l0 = lab("zk")
    e(f"s_cmp_lg_u32 {s(sWAVE)}, 0"); e(f"s_cbranch_scc1 {l0}")
    e("v_lshrrev_b32 v10, 2, v1"); e(f"v_mul_u32_u24 v10, {KCC}, v10")
    e("v_and_b32 v11, 3, v1"); e("v_lshl_add_u32 v10, v11, 4, v10"); e("v_add_u32 v10, 4096, v10")
    e("v_mov_b32 v160, 0"); e("v_mov_b32 v161, 0"); e("v_mov_b32 v162, 0"); e("v_mov_b32 v163, 0")
    e(f"s_mov_b32 {s(sT+2)}, -1"); e(f"s_mov_b32 {s(sT+3)}, 0"); e(f"s_mov_b64 exec, {s(sT+2,2)}")
    e("ds_write_b128 v10, v[160:163]")
    e("s_mov_b64 exec, -1")
    A.label(l0)

def s1_issue():
    e("v_lshlrev_b32 v63, 4, v0")
    for i in range(4):
        e(f"s_movk_i32 {s(sT)}, {S1 + 4096*i}")
        e(f"buffer_load_dwordx4 {v(24+4*i,4)}, v63, {s(sSRD,4)}, {s(sT)} offen sc1")
def s1_validate(vm=0):
    lr = lab("s1r"); lg = lab("s1k"); l0 = lab("s1c")
    e(f"s_waitcnt vmcnt({vm})")
    e(f"s_branch {l0}")
    A.label(lr)
    s1_issue()
    e("s_waitcnt vmcnt(0)")
    A.label(l0)
    for i in range(8): e(f"v_xor_b32 {v(160+i)}, {s(sNON)}, {v(24+2*i+1)}")
    e("v_or3_b32 v160, v160, v161, v162"); e("v_or3_b32 v163, v163, v164, v165"); e("v_or3_b32 v160, v160, v166, v167"); e("v_or_b32 v160, v160, v163")
    e("v_cmp_ne_u32 vcc, 0, v160")
    spin_check(lr, lg, bk=1)
def x0t_issue():
    e(f"v_mul_u32_u24 v10, {X0P}, v0"); e(f"s_lshl_b32 {s(sT)}, {s(sCP)}, 5"); e(f"s_add_u32 {s(sT)}, {s(sT)}, {X0T}")
    e(f"buffer_load_dwordx4 v[40:43], v10, {s(sSRD,4)}, {s(sT)} offen sc1")
    e(f"buffer_load_dwordx4 v[44:47], v10, {s(sSRD,4)}, {s(sT)} offen offset:16 sc1")
def b1_issue():
    e("v_and_b32 v20, 15, v0"); e("v_lshlrev_b32 v20, 4, v20")
    e(f"global_load_dword v21, v20, {s(sDBG,2)} sc1")
def b1_check():
    lr = lab("b1r"); lg = lab("b1k"); l0 = lab("b1c")
    e("s_waitcnt vmcnt(0)")
    e(f"s_branch {l0}")
    A.label(lr)
    e(f"global_load_dword v21, v20, {s(sDBG,2)} sc1")
    e("s_waitcnt vmcnt(0)")
    A.label(l0)
    e("v_cmp_gt_u32 vcc, 16, v21")
    spin_check(lr, lg, bk=1)

def gw_loads():
    out = []
    for f in range(48):
        out.append([f"buffer_load_dwordx4 {a(4*f,4)}, v18, {s(sSRD,4)}, {s(sW)} offen offset:{(f%4)*1024} sc1"] + ([f"s_add_u32 {s(sW)}, {s(sW)}, 4096"] if f % 4 == 3 else []))
    return out
def ow_loads():
    out = []
    for f in range(32):
        dst = a(192 + 4*f, 4) if f < 16 else v(192 + 4*(f-16), 4)
        out.append([f"buffer_load_dwordx4 {dst}, v18, {s(sSRD,4)}, {s(sW)} offen offset:{(f%4)*1024} sc1"] + ([f"s_add_u32 {s(sW)}, {s(sW)}, 4096"] if f % 4 == 3 else []))
    return out

vA, vB, vEP, vEU, vEX, vRW, vRR = 164, 165, 166, 167, 168, 169, 170
def conv_setup(layer):
    e(f"s_lshr_b32 s4, {s(sWAVE)}, 1"); e(f"s_and_b32 s5, {s(sWAVE)}, 1")
    e("v_and_b32 v10, 3, v1"); e("v_sub_u32 v10, 3, v10"); e(f"v_mul_u32_u24 v12, {KCC}, v10")
    e("v_bfe_u32 v10, v1, 5, 1"); e("v_lshlrev_b32 v13, 5, v10"); e("v_sub_u32 v12, v12, v13")
    e("v_bfe_u32 v11, v1, 4, 1"); e("v_lshl_add_u32 v12, v11, 4, v12")
    e("v_bfe_u32 v10, v1, 2, 2"); e("v_lshlrev_b32 v10, 3, v10"); e("v_sub_u32 v12, v12, v10")
    e(f"s_mul_i32 {s(sT+2)}, s4, {KCH}"); e(f"s_lshl_b32 {s(sT+3)}, s5, 8"); e(f"s_sub_u32 {s(sT+2)}, {s(sT+2)}, {s(sT+3)}")
    e(f"s_add_u32 {s(sT+2)}, {s(sT+2)}, {KC + 4088 - 3776}")
    e("v_and_b32 v10, 15, v1"); e("v_lshlrev_b32 v14, 5, v10"); e("v_sub_u32 v14, v14, v13"); e("v_lshl_add_u32 v14, v11, 4, v14")
    e(f"s_mul_i32 {s(sT+4)}, s4, {UP}"); e(f"s_sub_u32 {s(sT+4)}, {s(sT+4)}, {s(sT+3)}")
    e(f"s_add_u32 {s(sT+4)}, {s(sT+4)}, {U0 + 512 - 192}")
    e(f"v_add_u32 v16, {s(sT+2)}, v12"); e(f"v_add_u32 v17, {s(sT+4)}, v14")
    e("v_and_b32 v56, 15, v1"); e("v_lshlrev_b32 v56, 5, v56"); e("v_lshrrev_b32 v13, 4, v1"); e("v_lshl_add_u32 v56, v13, 3, v56")
    e(f"s_lshl_b32 {s(sT+2)}, s5, 11"); e(f"v_add_u32 v56, {s(sT+2)}, v56")
    e(f"s_mul_i32 {s(sT+3)}, s4, {UP}"); e(f"s_add_u32 {s(sT+3)}, {s(sT+3)}, {U0+512}"); e(f"v_add_u32 v57, {s(sT+3)}, v56")
    e(f"s_lshl_b32 {s(sT+3)}, s4, 12"); e(f"s_add_u32 {s(sT+3)}, {s(sT+3)}, {X0}"); e(f"v_add_u32 v58, {s(sT+3)}, v56")
    e(f"s_lshl_b32 {s(sT+2)}, {s(sWAVE)}, 12"); e(f"s_add_u32 {s(sT+2)}, {s(sT+2)}, {RED}"); e(f"v_lshl_add_u32 v59, v1, 4, {s(sT+2)}")
    e(f"s_xor_b32 {s(sT+2)}, {s(sWAVE)}, 1"); e(f"s_lshl_b32 {s(sT+2)}, {s(sT+2)}, 12"); e(f"s_add_u32 {s(sT+2)}, {s(sT+2)}, {RED}")
    e(f"v_lshl_add_u32 v60, v1, 4, {s(sT+2)}")
    xo = XT1 if layer == 1 else XT3
    e(f"s_lshl_b32 s6, {s(sCP)}, 1"); e("s_add_u32 s6, s6, s4"); e(f"s_mul_i32 s6, s6, {PITCH}"); e(f"s_add_u32 s6, s6, {xo}")
    e("v_lshlrev_b32 v10, 4, v0"); e(f"v_add_u32 v61, {U0 + 512}, v10"); e(f"v_add_u32 v62, {X0}, v10")
    e("v_lshlrev_b32 v63, 4, v0")
    l0 = lab("zp")
    e(f"s_cmp_lg_u32 {s(sWAVE)}, 1"); e(f"s_cbranch_scc1 {l0}")
    e("v_lshrrev_b32 v11, 5, v1"); e(f"v_mul_u32_u24 v11, {UP}, v11"); e("v_and_b32 v12, 31, v1"); e("v_lshl_add_u32 v11, v12, 4, v11")
    e(f"v_add_u32 v11, {U0}, v11")
    e("v_mov_b32 v12, 0"); e("v_mov_b32 v13, 0"); e("v_mov_b32 v14, 0"); e("v_mov_b32 v15, 0")
    e("ds_write_b128 v11, v[12:15]")
    A.label(l0)
    XX = 40; F = 64
    if layer == 1:
        e("v_lshlrev_b32 v18, 4, v1")
        e(f"s_lshl_b32 {s(sW)}, {s(sJ)}, 2"); e(f"s_add_u32 {s(sW)}, {s(sW)}, {s(sWAVE)}")
        e(f"s_mul_i32 {s(sW)}, {s(sW)}, 49152"); e(f"s_add_u32 {s(sW)}, {s(sW)}, {WFG}")
    else:
        e(f"s_lshl_b32 s7, {s(sCP)}, 7"); e(f"s_add_u32 s7, s7, {X2T}")
        e("v_lshrrev_b32 v19, 2, v0"); e(f"v_mul_u32_u24 v19, {ROP}, v19"); e("v_and_b32 v10, 3, v0"); e("v_lshl_add_u32 v19, v10, 4, v19")

def conv(layer):
    XX = 40; SB = 24; F = 64; UU = 48
    if layer == 2:
        e(f"s_mov_b32 {s(sT)}, {S3}")
        e("v_lshlrev_b32 v10, 4, v0")
        e(f"buffer_load_dwordx4 {v(XX,4)}, v19, {s(sSRD,4)}, s7 offen sc1")
        e(f"buffer_load_dwordx4 {v(XX+4,4)}, v19, {s(sSRD,4)}, s7 offen offset:64 sc1")
        for i in range(4):
            e(f"s_add_u32 {s(sT+2)}, {s(sT)}, {4096*i}")
            e(f"buffer_load_dwordx4 {v(SB+4*i,4)}, v10, {s(sSRD,4)}, {s(sT+2)} offen sc1")
        e("s_waitcnt vmcnt(4)")
        for i in range(8):
            j, hi = i >> 1, i & 1
            for c in range(2):
                if hi: e(f"v_and_b32 {v(F+2*i+c)}, {s(sHI)}, {v(XX+4*c+j)}")
                else: e(f"v_lshlrev_b32 {v(F+2*i+c)}, 16, {v(XX+4*c+j)}")
        e(f"ds_write_b128 v62, {v(XX,4)}"); e(f"ds_write_b128 v62, {v(XX+4,4)} offset:4096")
        e("s_waitcnt vmcnt(0)")
    else:
        b1_issue()
        for i in range(8):
            e(f"v_and_b32 {v(SB+2*i+1)}, {s(sHI)}, {v(SB+2*i)}"); e(f"v_lshlrev_b32 {v(SB+2*i)}, 16, {v(SB+2*i)}")
        for i in range(8): e(f"v_rcp_f32 {v(SB+2*i+1)}, {v(SB+2*i+1)}")
        e("s_waitcnt vmcnt(1)")
        for i in range(8):
            j, hi = i >> 1, i & 1
            for c in range(2):
                if hi: e(f"v_and_b32 {v(F+2*i+c)}, {s(sHI)}, {v(XX+4*c+j)}")
                else: e(f"v_lshlrev_b32 {v(F+2*i+c)}, 16, {v(XX+4*c+j)}")
        e(f"ds_write_b128 v62, {v(XX,4)}"); e(f"ds_write_b128 v62, {v(XX+4,4)} offset:4096")
    stamp(f"c{layer}_ld")
    if layer == 2:
        T = 80
        for k in range(4):
            b = SB + 4*k; t = T + 4*k
            e(f"v_pk_mul_f32 {v(b,2)}, {v(b,2)}, {s(sINV512,2)}"); e(f"v_pk_mul_f32 {v(b+2,2)}, {v(b+2,2)}, {s(sINV512,2)}")
        for k in range(4):
            b = SB + 4*k
            e(f"v_fma_f32 {v(b+1)}, -{v(b)}, {v(b)}, {v(b+1)}"); e(f"v_fma_f32 {v(b+3)}, -{v(b+2)}, {v(b+2)}, {v(b+3)}")
        for k in range(4):
            b = SB + 4*k
            e(f"v_max_f32 {v(b+1)}, 0, {v(b+1)}"); e(f"v_max_f32 {v(b+3)}, 0, {v(b+3)}")
        for i in range(8):
            b = SB + 2*i
            e(f"v_cvt_pk_bf16_f32 {v(T+i)}, {v(b)}, {v(b+1)}")
        for i in range(8):
            b = SB + 2*i
            e(f"v_lshlrev_b32 {v(b)}, 16, {v(T+i)}"); e(f"v_and_b32 {v(b+1)}, {s(sHI)}, {v(T+i)}")
        for i in range(8): e(f"v_add_f32 {v(SB+2*i+1)}, 0x3727c5ac, {v(SB+2*i+1)}")
        for k in range(4): e(f"v_cvt_pk_bf16_f32 {v(T+k)}, {v(SB+4*k+1)}, {v(SB+4*k+3)}")
        for k in range(4):
            e(f"v_lshlrev_b32 {v(SB+4*k+1)}, 16, {v(T+k)}"); e(f"v_and_b32 {v(SB+4*k+3)}, {s(sHI)}, {v(T+k)}")
        for i in range(8): e(f"v_sqrt_f32 {v(SB+2*i+1)}, {v(SB+2*i+1)}")
        for k in range(4): e(f"v_cvt_pk_bf16_f32 {v(T+k)}, {v(SB+4*k+1)}, {v(SB+4*k+3)}")
        for k in range(4):
            e(f"v_lshlrev_b32 {v(SB+4*k+1)}, 16, {v(T+k)}"); e(f"v_and_b32 {v(SB+4*k+3)}, {s(sHI)}, {v(T+k)}")
        for i in range(8): e(f"v_rcp_f32 {v(SB+2*i+1)}, {v(SB+2*i+1)}")
    for i in range(8):
        e(f"v_pk_add_f32 {v(F+2*i,2)}, {v(F+2*i,2)}, {v(SB+2*i,2)} op_sel_hi:[1,0] neg_lo:[0,1] neg_hi:[0,1]")
    for i in range(8): e(f"v_cvt_pk_bf16_f32 {v(80+i)}, {v(F+2*i)}, {v(F+2*i+1)}")
    for i in range(8):
        e(f"v_lshlrev_b32 {v(F+2*i)}, 16, {v(80+i)}"); e(f"v_and_b32 {v(F+2*i+1)}, {s(sHI)}, {v(80+i)}")
    for i in range(8):
        e(f"v_pk_mul_f32 {v(F+2*i,2)}, {v(F+2*i,2)}, {v(SB+2*i,2)} op_sel:[0,1] op_sel_hi:[1,1]")
    for c in range(2):
        for j in range(4): e(f"v_cvt_pk_bf16_f32 {v(UU+4*c+j)}, {v(F+4*j+c)}, {v(F+4*j+2+c)}")
        e(f"ds_write_b128 v61, {v(UU+4*c,4)} offset:{UP*c}")
    trick = gw_loads() if layer == 1 else []
    e("s_waitcnt lgkmcnt(0)"); e("s_barrier")
    if layer == 1: b1_check()
    stamp(f"c{layer}_pro")
    vA, vB = 16, 17
    ACC = 24; SET = [64, 128]
    def loads(tp, st):
        out = []
        seq = []
        for k in range(8):
            seq.append(f"ds_read_b128 {v(SET[st]+32+4*k,4)}, {v(vB)} offset:{512*k + 64*(3 - tp)}")
            o = 64*(3 - tp) + 512*(7 - k)
            seq.append(f"ds_read_b64 {v(SET[st]+4*k,2)}, {v(vA)} offset:{o}")
            seq.append(f"ds_read_b64 {v(SET[st]+4*k+2,2)}, {v(vA)} offset:{o + 8}")
        return seq
    for l in loads(0, 0): e(l)
    ti = 0; nm = 0
    TRK = int(OPTS.get("trk", 4))
    e(f"s_mov_b32 {s(sT+4)}, {s(sDSKV)}"); e(f"s_mov_b32 {s(sT+5)}, {s(sDSKV)}")
    side = []
    for k in range(4):
        side.append(f"ds_read_b64 {v(64+2*k,2)}, v57 offset:{512*k}"); side.append(f"ds_read_b64 {v(72+2*k,2)}, v58 offset:{512*k}")
    side2 = ["s_waitcnt lgkmcnt(0)"]
    for k in range(4):
        for j in range(2):
            side2 += [f"v_lshlrev_b32 {v(96+4*k+2*j)}, 16, {v(64+2*k+j)}", f"v_and_b32 {v(97+4*k+2*j)}, {s(sHI)}, {v(64+2*k+j)}",
                      f"v_lshlrev_b32 {v(112+4*k+2*j)}, 16, {v(72+2*k+j)}", f"v_and_b32 {v(113+4*k+2*j)}, {s(sHI)}, {v(72+2*k+j)}"]
    for k in range(8): side2.append(f"v_pk_fma_f32 {v(96+2*k,2)}, {v(96+2*k,2)}, {s(sT+4,2)}, {v(112+2*k,2)}")
    fills = fill_groups(2, 61, 62) if layer == 2 else []
    hold = [0]
    for tp in range(4):
        st = tp & 1
        nxt = loads(tp + 1, st ^ 1) if tp < 3 else []
        n = 0; nb = 0
        for T in range(8):
            if tp == 0: e(f"s_waitcnt lgkmcnt({min(15, 24 - (3*T+3) + min(n, len(nxt)))})")
            elif T == 0: e("s_waitcnt lgkmcnt(0)")
            for q in range(T + 1):
                c_ = "0" if (tp == 0 and q == 0) else v(ACC+4*T, 4)
                e(f"v_mfma_f32_16x16x32_bf16 {v(ACC+4*T,4)}, {v(SET[st]+4*q,4)}, {v(SET[st]+32+4*(T-q),4)}, {c_}")
                nm += 1; nb += 1
                if not (tp == 0 and T < 3) and n < len(nxt):
                    e(nxt[n]); n += 1
                if tp == 3:
                    if nb <= 8: e(side.pop(0))
                    elif nb > 12:
                        for _ in range(2):
                            if side2: e(side2.pop(0))
                if ti < len(trick) and nm % TRK == 0:
                    for l in trick[ti]: e(l)
                    ti += 1
                elif fills and tp < 3 and nb > 4:
                    if hold[0] > 0: hold[0] -= 1
                    else:
                        g = fills.pop(0); emit_group(g)
                        if any("buffer_store" in l for l in g): hold[0] = 12
        while n < len(nxt): e(nxt[n]); n += 1
    assert not fills
    while side2: e(side2.pop(0))
    stamp(f"c{layer}_mm")
    lp1 = lab("p1"); lj = lab("pj")
    e("s_cmp_eq_u32 s5, 1"); e(f"s_cbranch_scc1 {lp1}")
    e("s_nop 3")
    for k in range(4): e(f"ds_write_b128 v59, {v(ACC+16+4*k,4)} offset:{1024*k}")
    e(f"s_branch {lj}")
    A.label(lp1)
    for k in range(4): e(f"ds_write_b128 v59, {v(ACC+4*k,4)} offset:{1024*k}")
    e("s_nop 3")
    for k in range(8): e(f"v_mov_b64 {v(ACC+2*k,2)}, {v(ACC+16+2*k,2)}")
    A.label(lj)
    for k in range(8):
        e(f"v_pk_add_f32 {v(96+2*k,2)}, {v(96+2*k,2)}, {v(ACC+2*k,2)}")
    e("s_waitcnt lgkmcnt(0)"); e("s_barrier")
    for k in range(4): e(f"ds_read_b128 {v(80+4*k,4)}, v60 offset:{1024*k}")
    e(f"s_waitcnt vmcnt({min(63, ti) if layer == 1 else 0})")
    for k in range(4):
        e(f"s_waitcnt lgkmcnt({3-k})")
        e(f"v_pk_add_f32 {v(96+4*k,2)}, {v(96+4*k,2)}, {v(80+4*k,2)}"); e(f"v_pk_add_f32 {v(98+4*k,2)}, {v(98+4*k,2)}, {v(82+4*k,2)}")
        e(f"v_cvt_pk_bf16_f32 {v(64+2*k)}, {v(96+4*k)}, {v(97+4*k)}"); e(f"v_cvt_pk_bf16_f32 {v(65+2*k)}, {v(98+4*k)}, {v(99+4*k)}")
        e(f"buffer_store_dwordx2 {v(64+2*k,2)}, v56, {s(sSRD,4)}, s6 offen offset:{512*k} sc1")
    return trick[ti:]

NCSK, NCSV, NCSQ = 2, 4, 6
XRES = 184
def ones_regs(r):
    for i in range(4): e(f"v_mov_b32 {v(r+i)}, 0x3f803f80")
def colsums():
    ON = 152
    for ks in range(16):
        c0 = lambda r: "0" if ks == 0 else v(r, 4)
        e(f"v_mfma_f32_16x16x32_bf16 v[28:31], {v(ON,4)}, {a((0*16+ks)*4,4)}, {c0(28)}")
        e(f"v_mfma_f32_16x16x32_bf16 v[32:35], {v(ON,4)}, {a((1*16+ks)*4,4)}, {c0(32)}")
        e(f"v_mfma_f32_16x16x32_bf16 v[36:39], {a((2*16+ks)*4,4)}, {v(ON,4)}, {c0(36)}")
    e(f"v_sub_f32 {v(NCSK)}, 0, v28"); e(f"v_sub_f32 {v(NCSK+1)}, 0, v28")
    e(f"v_sub_f32 {v(NCSV)}, 0, v32"); e(f"v_sub_f32 {v(NCSV+1)}, 0, v32")
    for i in range(4): e(f"v_sub_f32 {v(NCSQ+i)}, 0, {v(36+i)}")

TA = 12
gXE, gXO, gSW, gS4, gQA, gPQ, gKV = 156, 157, 158, 160, 164, 168, 169
def g_setup(layer):
    xt = XT1 if layer == 1 else XT3
    e("v_lshrrev_b32 v10, 3, v1"); e(f"v_mul_u32_u24 v10, {PITCH}, v10")
    e("v_bfe_u32 v11, v1, 4, 2"); e("v_lshlrev_b32 v11, 1, v11"); e("v_and_b32 v16, 7, v1"); e("v_xor_b32 v11, v11, v16")
    e("v_lshl_add_u32 v10, v11, 4, v10")
    e(f"s_lshl_b32 {s(sT)}, {s(sRS)}, 7"); e(f"v_add_u32 v19, {s(sT)}, v10")
    e(f"s_mul_i32 s4, {s(sWAVE)}, {32*PITCH}"); e(f"s_add_u32 s4, s4, {xt}")
    e(f"s_lshl_b32 s5, {s(sWAVE)}, 12"); e(f"s_add_u32 s5, s5, {AT}")
    e("v_lshrrev_b32 v10, 2, v1"); e("v_lshlrev_b32 v10, 7, v10"); e("v_and_b32 v11, 3, v1"); e("v_lshl_add_u32 v10, v11, 3, v10")
    e(f"v_add_u32 v10, {AT}, v10"); e("v_bfe_u32 v11, v1, 3, 2")
    for j in range(4):
        e(f"s_add_u32 {s(sT)}, {s(sWAVE)}, {j}"); e(f"s_and_b32 {s(sT)}, {s(sT)}, 3"); e(f"s_lshl_b32 {s(sM+j)}, {s(sT)}, 6")
        e(f"v_xor_b32 v16, {s(sT)}, v11"); e(f"v_lshl_add_u32 {v(TA+j)}, v16, 5, v10")
    ones_regs(152)
    e("v_lshrrev_b32 v11, 5, v1"); e("v_lshlrev_b32 v11, 4, v11"); e("v_bfe_u32 v16, v1, 2, 2"); e("v_add_u32 v11, v11, v16")
    e(f"s_lshl_b32 {s(sT)}, {s(sJO)}, 7"); e(f"s_lshl_b32 {s(sT+1)}, {s(sWAVE)}, 5"); e(f"s_add_u32 {s(sT)}, {s(sT)}, {s(sT+1)}")
    e(f"v_add_u32 v11, {s(sT)}, v11"); e("v_lshlrev_b32 v11, 7, v11")
    e("v_and_b32 v16, 3, v1"); e("v_lshl_add_u32 v11, v16, 3, v11"); e(f"v_add_u32 v11, {AT}, v11")
    e(f"s_and_b32 {s(sT)}, {s(sJ)}, 1"); e(f"s_lshl_b32 {s(sT)}, {s(sT)}, 1")
    e("v_bfe_u32 v16, v1, 4, 1"); e(f"v_add_u32 v16, {s(sT)}, v16"); e("v_bfe_u32 v17, v1, 3, 1"); e("v_xor_b32 v16, v16, v17")
    e(f"v_lshl_add_u32 {v(gXE)}, v16, 5, v11"); e("v_xor_b32 v16, 2, v16"); e(f"v_lshl_add_u32 {v(gXO)}, v16, 5, v11")
    e("v_and_b32 v10, 15, v1"); e("v_lshlrev_b32 v10, 2, v10"); e(f"v_add_u32 v11, {ST}, v10")
    e(f"s_lshl_b32 {s(sT)}, {s(sWAVE)}, 6"); e(f"v_add_u32 {v(gSW)}, {s(sT)}, v11")
    e("v_lshrrev_b32 v10, 4, v1"); e("v_lshlrev_b32 v10, 4, v10"); e(f"v_add_u32 v10, {ST}, v10")
    for j in range(4):
        e(f"v_add_u32 {v(gS4+j)}, {s(sM+j)}, v10"); e(f"v_add_u32 {v(gQA+j)}, {s(sM+j)}, v11")
    e("v_and_b32 v10, 15, v1"); e("v_lshlrev_b32 v10, 4, v10"); e("v_bfe_u32 v11, v1, 4, 1"); e("v_lshl_add_u32 v10, v11, 3, v10")
    e("v_lshrrev_b32 v11, 5, v1"); e(f"v_lshl_add_u32 {v(gPQ)}, v11, 10, v10")
    e("v_lshrrev_b32 v10, 4, v1"); e("v_lshlrev_b32 v10, 8, v10"); e("v_and_b32 v11, 15, v1"); e(f"v_lshl_add_u32 {v(gKV)}, v11, 2, v10")
    e(f"v_lshlrev_b32 v183, 2, v1")
    kvp_addr(KVP1 if layer == 1 else KVP2, 6)
    pq_addr(PQ1 if layer == 1 else PQ2, 7)
    e(f"s_lshl_b32 {s(sT)}, {s(sJ)}, 5"); e(f"s_mul_i32 {s(sT)}, {s(sT)}, {KVW}")
    e(f"s_lshr_b32 {s(sT+1)}, {s(sRS)}, 3"); e(f"s_mul_i32 {s(sT+1)}, {s(sT+1)}, {KVH}"); e(f"s_add_u32 {s(sT)}, {s(sT)}, {s(sT+1)}")
    e(f"s_add_u32 s3, {s(sT)}, {KVP1 if layer == 1 else KVP2}")
    e(f"s_and_b32 {s(sT+2)}, {s(sRS)}, 7")
    e(f"s_cmp_eq_u32 {s(sWAVE)}, 2")
    e(f"s_cselect_b32 {s(sT+3)}, 3, 7"); e(f"s_cselect_b32 {s(sT+4)}, 1, 0")
    e(f"s_mov_b32 s42, 0x0f0f0f0f"); e("s_cselect_b32 s42, s42, -1"); e("s_mov_b32 s43, s42")
    e(f"s_lshl_b32 {s(sT+5)}, {s(sT+2)}, 7"); e(f"s_cmp_eq_u32 {s(sWAVE)}, 2"); e(f"s_cselect_b32 {s(sT+5)}, 1024, {s(sT+5)}")
    e(f"s_lshl_b32 {s(sT+6)}, {s(sT+2)}, 6"); e(f"s_cselect_b32 {s(sT+6)}, 512, {s(sT+6)}") if False else None
    e("v_lshrrev_b32 v10, 3, v1"); e(f"v_mul_u32_u24 v10, {KVW}, v10"); e(f"v_and_b32 v11, {s(sT+3)}, v1"); e("v_lshl_add_u32 v11, v11, 4, v10")
    e(f"v_add_u32 v170, {s(sT+5)}, v11")
    e(f"s_lshl_b32 {s(sT+6)}, {s(sT+2)}, 6"); e(f"s_cmp_eq_u32 {s(sWAVE)}, 2"); e(f"s_cselect_b32 {s(sT+6)}, 512, {s(sT+6)}")
    e("v_lshrrev_b32 v10, 3, v1"); e(f"v_mul_u32_u24 v10, {FRP}, v10"); e("v_and_b32 v11, 7, v1"); e("v_lshl_add_u32 v10, v11, 3, v10")
    e(f"v_add_u32 v171, {s(sT+6)}, v10")
    f_addr(F1 if layer == 1 else F2, 40)
    e(f"s_cmp_eq_u32 {s(sT+2)}, 0"); e(f"s_cselect_b32 {s(sT+3)}, 2, 3"); e(f"s_cmp_ge_u32 {s(sWAVE)}, {s(sT+3)}"); e("s_cselect_b32 s41, 1, 0")
    e("v_and_b32 v10, 3, v1")
    e(f"v_cmp_eq_u32 {s(sM+4,2)}, 1, v10"); e(f"v_cmp_eq_u32 {s(sM+6,2)}, 2, v10"); e(f"v_cmp_eq_u32 s[2:3], 3, v10") if False else None
    if layer == 1:
        e("v_lshlrev_b32 v18, 4, v1")
        e(f"s_lshl_b32 {s(sW)}, {s(sJO)}, 2"); e(f"s_add_u32 {s(sW)}, {s(sW)}, {s(sWAVE)}")
        e(f"s_lshl_b32 {s(sW)}, {s(sW)}, 15"); e(f"s_add_u32 {s(sW)}, {s(sW)}, {WFO}")

def gphase(layer):
    kvp = KVP1 if layer == 1 else KVP2
    ff = F1 if layer == 1 else F2
    def dma(c, i):
        return [f"s_add_u32 {s(sT)}, s4, {(128*c + 8*i)*PITCH}", f"s_add_u32 m0, s5, {c*16384 + i*1024}",
                f"buffer_load_dwordx4 v19, {s(sSRD,4)}, {s(sT)} offen sc1 lds"]
    e(f"v_lshl_add_u32 v21, v1, 4, s5")
    def check_reads(c): return [f"ds_read_b32 {v(56+i)}, v21 offset:{c*16384 + i*1024}" for i in range(4)]
    def validate(c, first=False):
        lr = lab("gv"); lg = lab("gvk"); lx = lab("gvx")
        A.label(lr)
        for l in check_reads(c): e(l)
        e("s_waitcnt lgkmcnt(0)")
        maxtree([56, 57, 58, 59], 56)
        e("v_cmp_eq_u32 vcc, -1, v56")
        e(f"s_cbranch_vccz {lg}")
        e(f"s_sub_u32 {s(sSPIN)}, {s(sSPIN)}, 1"); e(f"s_cbranch_scc1 {lx}")
        if OPTS.get("cntv"): e(f"s_add_u32 s{96 if c == 0 else 98}, s{96 if c == 0 else 98}, 1")
        for i in range(4):
            for l in dma(c, i): e(l)
        e("s_waitcnt vmcnt(0)")
        e(f"s_branch {lr}")
        A.label(lx); e(f"s_mov_b32 {s(sSPIN)}, 0")
        A.label(lg)
    e("s_barrier")
    if int(OPTS.get("gpre", 0)): e(f"s_sleep {OPTS.get('gpre')}")
    for c in range(2):
        for i in range(4):
            for l in dma(c, i): e(l)
    late = [dma(c, i) for c in (2, 3) for i in range(4)]
    XF = [64, 80]
    AK, AV, AQ, GR, RS_, ON = 96, 112, 128, 144, 148, 152
    trick = ow_loads() if layer == 1 else []
    if layer == 1:
        for i in range(4): e(f"v_mov_b32 {v(176+i)}, -1")
        e(f"s_lshr_b32 s62, {s(sWAVE)}, 1"); e(f"s_lshl_b32 s61, {s(sCP)}, 1"); e("s_add_u32 s62, s62, s61"); e(f"s_mul_i32 s62, s62, {PITCH}")
        e(f"s_and_b32 s61, {s(sWAVE)}, 1"); e("s_lshl_b32 s61, s61, 11"); e("s_add_u32 s62, s62, s61"); e(f"s_add_u32 s62, s62, {XT3}")
        trick.insert(6, [f"buffer_store_dwordx4 v[176:179], v18, {s(sSRD,4)}, s62 offen sc1"])
        trick.insert(12, [f"buffer_store_dwordx4 v[176:179], v18, {s(sSRD,4)}, s62 offen offset:1024 sc1"])
    def reads(ks, base=None):
        b = XF[ks & 1] if base is None else base
        out = []
        for j in range(4):
            out.append(f"ds_read_b64_tr_b16 {v(b+4*j,2)}, {v(TA+j)} offset:{ks*4096}")
            out.append(f"ds_read_b64_tr_b16 {v(b+4*j+2,2)}, {v(TA+j)} offset:{ks*4096+2048}")
        return out
    stamp(f"g{layer}_iss")
    e("s_waitcnt vmcnt(4)")
    validate(0)
    e("s_barrier")
    stamp(f"g{layer}_ld0")
    for l in reads(0): e(l)
    st_ = {"ti": 0, "nw": 0, "nm": 0}
    TRG = int(OPTS.get("trg", 5))
    def trickle(ok):
        st_["nm"] += 1
        if ok and st_["ti"] < len(trick) and st_["nm"] % TRG == 0:
            for l in trick[st_["ti"]]: e(l)
            st_["ti"] += 1; st_["nw"] += 1
    for ks in range(16):
        nxt = []
        if ks < 15:
            nxt = reads(ks + 1)
        x = XF[ks & 1]
        if ks in (2, 3, 4, 6, 7, 8, 10, 11, 12): stamp(f"g{layer}_k{ks}")
        e("s_waitcnt lgkmcnt(0)")
        gate_c = (ks + 1) // 4 if (ks < 15 and (ks + 1) % 4 == 0) else None
        if ks < 14 and (ks + 2) % 4 == 0:
            c = (ks + 2) // 4
            e(f"s_waitcnt vmcnt({min(63, 4*(3-c) + st_['nw'] + (len(late) and 0))})") if not late else e(f"s_waitcnt vmcnt({min(63, (8 - len(late)) - (4 if c >= 2 else 0) + (0))})")
            nxt = nxt + check_reads(c)
        z = lambda r: "0" if ks == 0 else v(r, 4)
        mf = []
        for j in range(4):
            mf.append(f"v_mfma_f32_16x16x32_bf16 {v(AK+4*j,4)}, {v(x+4*j,4)}, {a((0*16+ks)*4,4)}, {z(AK+4*j)}")
            mf.append(f"v_mfma_f32_16x16x32_bf16 {v(AV+4*j,4)}, {v(x+4*j,4)}, {a((1*16+ks)*4,4)}, {z(AV+4*j)}")
        mf.insert(1, f"v_mfma_f32_16x16x32_bf16 {v(GR,4)}, {v(x,4)}, {v(x,4)}, {z(GR)}")
        mf.insert(3, f"v_mfma_f32_16x16x32_bf16 {v(RS_,4)}, {v(ON,4)}, {v(x,4)}, {z(RS_)}")
        pend = list(nxt)
        for m_i, m_ in enumerate(mf):
            e(m_)
            if gate_c is not None:
                if m_i == 0: e("v_max3_u32 v56, v56, v57, v58")
                if m_i == 1: e("v_max_u32 v56, v56, v59")
                if m_i == 2: e("v_cmp_eq_u32 vcc, -1, v56")
                if m_i == 3:
                    lok = lab("gok")
                    e(f"s_cbranch_vccz {lok}")
                    if OPTS.get("cntv"): e(f"s_add_u32 s97, s97, {1 << (8*(gate_c-1))}")
                    for i in range(4):
                        for l in dma(gate_c, i): e(l)
                    e("s_waitcnt vmcnt(0)")
                    validate(gate_c)
                    A.label(lok)
                    e("s_barrier")
                if m_i >= 4:
                    for _ in range(2 if m_i < 6 else 1):
                        if pend: e(pend.pop(0))
            elif pend: e(pend.pop(0))
            if m_i == len(mf) - 1:
                while pend: e(pend.pop(0))
            if late and m_i in (1, 4, 7):
                for l in late.pop(0): e(l)
            trickle(ks >= 4)
    stamp(f"g{layer}_mm")
    for jj in range(4):
        e(f"ds_read_b64_tr_b16 {v(XRES+2*jj,2)}, {v(gXE + (jj & 1))} offset:{512*jj}")
    e("v_and_b32 v10, 3, v1")
    e(f"v_cmp_eq_u32 {s(sM+4,2)}, 1, v10"); e(f"v_cmp_eq_u32 {s(sM+6,2)}, 2, v10"); e("v_cmp_eq_u32 vcc, 3, v10")
    e(f"v_cndmask_b32 v11, {v(GR)}, {v(GR+1)}, {s(sM+4,2)}")
    e(f"v_cndmask_b32 v11, v11, {v(GR+2)}, {s(sM+6,2)}")
    e(f"v_cndmask_b32 v11, v11, {v(GR+3)}, vcc")
    stats_final(RS_, 11, 16, 17, 20)
    e("v_mul_f32 v16, v16, v17")
    e(f"s_mov_b32 {s(sT+2)}, 0x00f0000f"); e(f"s_mov_b32 {s(sT+3)}, 0xf0000f00")
    e(f"s_mov_b64 exec, {s(sT+2,2)}")
    e(f"ds_write_b32 {v(gSW)}, v17"); e(f"ds_write_b32 {v(gSW)}, v16 offset:256")
    e("s_mov_b64 exec, -1")
    R4, M4, RQ, MQ = 24, 40, 56, 176
    e("s_waitcnt lgkmcnt(0)"); e("s_barrier")
    for j in range(4):
        e(f"ds_read_b128 {v(R4+4*j,4)}, {v(gS4+j)}"); e(f"ds_read_b128 {v(M4+4*j,4)}, {v(gS4+j)} offset:256")
    for j in range(4):
        e(f"ds_read_b32 {v(RQ+2*j)}, {v(gQA+j)}"); e(f"ds_read_b32 {v(MQ+2*j)}, {v(gQA+j)} offset:256")
    stamp(f"g{layer}_st")
    PK, VV = 72, 80
    def phi2(items):
        for (rp, acc, mp, ncs, dst, T, bro) in items:
            e(f"v_pk_fma_f32 {v(T,2)}, {v(mp,2)}, {v(ncs,2)}, {s(sEPS6,2)}" + (" op_sel_hi:[0,1,1]" if bro else ""))
        for (rp, acc, mp, ncs, dst, T, bro) in items:
            e(f"v_pk_fma_f32 {v(T,2)}, {v(rp,2)}, {v(acc,2)}, {v(T,2)}" + (" op_sel_hi:[0,1,1]" if bro else ""))
        for (rp, acc, mp, ncs, dst, T, bro) in items: e(f"v_pk_mul_f32 {v(T+2,2)}, {v(T,2)}, {s(sLOG2E,2)}")
        for (rp, acc, mp, ncs, dst, T, bro) in items:
            e(f"v_exp_f32 {v(T+2)}, {v(T+2)} clamp"); e(f"v_exp_f32 {v(T+3)}, {v(T+3)} clamp")
        for (rp, acc, mp, ncs, dst, T, bro) in items:
            e(f"v_max_f32 {v(T)}, {s(sEPS6)}, {v(T)}"); e(f"v_max_f32 {v(T+1)}, {s(sEPS6)}, {v(T+1)}")
        for (rp, acc, mp, ncs, dst, T, bro) in items: e(f"v_pk_add_f32 {v(T,2)}, {v(T,2)}, {v(T+2,2)}")
        for (rp, acc, mp, ncs, dst, T, bro) in items: e(f"v_cvt_pk_bf16_f32 {v(dst)}, {v(T)}, {v(T+1)}")
    for j in range(4):
        e(f"s_waitcnt lgkmcnt({min(15, 8 + 2*(3-j))})")
        items = [(R4+4*j+2*hp, AK+4*j+2*hp, M4+4*j+2*hp, NCSK, PK+2*j+hp, 88 + 4*hp, False) for hp in range(2)]
        for hp in range(2):
            T = 104 + 2*hp if False else 172 + 2*hp
            e(f"v_pk_mul_f32 {v(T,2)}, {v(M4+4*j+2*hp,2)}, {v(NCSV,2)}")
        for hp in range(2):
            T = 172 + 2*hp
            e(f"v_pk_fma_f32 {v(T,2)}, {v(R4+4*j+2*hp,2)}, {v(AV+4*j+2*hp,2)}, {v(T,2)}")
        phi2(items)
        for hp in range(2):
            T = 172 + 2*hp
            e(f"v_cvt_pk_bf16_f32 {v(VV+2*j+hp)}, {v(T)}, {v(T+1)}")
        if j == 1:
            e(f"v_mfma_f32_16x16x32_bf16 {v(GR,4)}, {v(VV,4)}, {v(PK,4)}, 0")
            e(f"v_mfma_f32_16x16x32_bf16 {v(RS_,4)}, {v(ON,4)}, {v(PK,4)}, 0")
    e(f"v_mfma_f32_16x16x32_bf16 {v(GR,4)}, {v(VV+4,4)}, {v(PK+4,4)}, {v(GR,4)}")
    e(f"v_mfma_f32_16x16x32_bf16 {v(RS_,4)}, {v(ON,4)}, {v(PK+4,4)}, {v(RS_,4)}")
    PQR = 96
    e("s_waitcnt lgkmcnt(0)")
    for i in range(4):
        e(f"buffer_store_dword {v(GR+i)}, {v(gKV)}, {s(sSRD,4)}, s6 offen offset:{64*i} sc1")
    e("s_mov_b64 exec, 0xffff")
    e(f"buffer_store_dword {v(RS_)}, v183, {s(sSRD,4)}, s6 offen offset:1024 sc1")
    e("s_mov_b64 exec, -1")
    stamp(f"g{layer}_kv")
    def red_loads():
        for i in range(4):
            e(f"s_add_u32 {s(sT+4)}, s3, {8*i*KVW}")
            e(f"buffer_load_dwordx4 {v(24+4*i,4)}, v170, {s(sSRD,4)}, {s(sT+4)} offen sc1")
    RLK = int(OPTS.get("rlk", 11))
    QS = [64, 80, 112]
    for l in reads(0, QS[0]): e(l)
    for l in reads(1, QS[1]): e(l)
    for ks in range(16):
        nxt = reads(ks + 2, QS[(ks + 2) % 3]) if ks < 14 else []
        x = QS[ks % 3]
        e(f"s_waitcnt lgkmcnt({8 if ks < 15 else 0})")
        z = lambda r: "0" if ks == 0 else v(r, 4)
        if ks == RLK:
            lsk = lab("rl")
            e("s_cmp_eq_u32 s41, 0"); e(f"s_cbranch_scc1 {lsk}")
            red_loads()
            A.label(lsk)
        for j in range(4):
            e(f"v_mfma_f32_16x16x32_bf16 {v(AQ+4*j,4)}, {a((2*16+ks)*4,4)}, {v(x+4*j,4)}, {z(AQ+4*j)}")
            for l in nxt[2*j:2*j+2]: e(l)
            if j % 2 == 0 and st_["ti"] < len(trick):
                for l in trick[st_["ti"]]: e(l)
                st_["ti"] += 1
    stamp(f"g{layer}_q")
    for j in range(0, 4, 2):
        phi2([(RQ+2*(j+jj), AQ+4*(j+jj)+2*hp, MQ+2*(j+jj), NCSQ+2*hp, PQR+2*(j+jj)+hp, 64 + 8*jj + 4*hp, True) for jj in range(2) for hp in range(2)])
    for j in range(4):
        e(f"s_lshl_b32 {s(sT+2)}, {s(sM+j)}, 2"); e(f"s_add_u32 {s(sT+2)}, {s(sT+2)}, s7")
        e(f"buffer_store_dwordx2 {v(PQR+2*j,2)}, {v(gPQ)}, {s(sSRD,4)}, {s(sT+2)} offen sc1")
    for ins in trick[st_["ti"]:]:
        for l in ins: e(l)
    lred = lab("red")
    e("s_cmp_eq_u32 s41, 0"); e(f"s_cbranch_scc1 {lred}")
    lr = lab("rp"); lg = lab("rg"); l0 = lab("r0")
    e(f"s_waitcnt vmcnt({4 + len(trick[st_['ti']:])})")
    e(f"s_branch {l0}")
    A.label(lr)
    red_loads()
    e("s_waitcnt vmcnt(0)")
    A.label(l0)
    maxtree([24, 28, 32, 36], 56)
    e("v_cmp_eq_u32 vcc, -1, v56")
    spin_check(lr, lg)
    stamp(f"r{layer}_ok")
    e("v_pk_add_f32 v[24:25], v[24:25], v[28:29]"); e("v_pk_add_f32 v[26:27], v[26:27], v[30:31]")
    e("v_pk_add_f32 v[32:33], v[32:33], v[36:37]"); e("v_pk_add_f32 v[34:35], v[34:35], v[38:39]")
    e("v_pk_add_f32 v[24:25], v[24:25], v[32:33]"); e("v_pk_add_f32 v[26:27], v[26:27], v[34:35]")
    regs = [24, 25, 26, 27]
    for r in regs: e(f"v_add_f32_dpp {v(r)}, {v(r)}, {v(r)} row_ror:8 row_mask:0xf bank_mask:0xf")
    for r in regs: e(f"v_mov_b32 {v(r+4)}, {v(r)}")
    for r in regs: e(f"v_permlane16_swap_b32 {v(r)}, {v(r+4)}")
    for r in regs: e(f"v_add_f32 {v(r)}, {v(r)}, {v(r+4)}")
    for r in regs: e(f"v_mov_b32 {v(r+4)}, {v(r)}")
    for r in regs: e(f"v_permlane32_swap_b32 {v(r)}, {v(r+4)}")
    for r in regs: e(f"v_add_f32 {v(r)}, {v(r)}, {v(r+4)}")
    e("v_cvt_pk_bf16_f32 v28, v24, v25"); e("v_cvt_pk_bf16_f32 v29, v26, v27")
    e("s_mov_b64 exec, s[42:43]")
    e(f"buffer_store_dwordx2 v[28:29], v171, {s(sSRD,4)}, s40 offen sc1")
    e("s_mov_b64 exec, -1")
    A.label(lred)

def ophase(layer):
    pq = PQ1 if layer == 1 else PQ2
    ff = F1 if layer == 1 else F2
    KF, PQF = 24, 56
    e("v_and_b32 v10, 31, v1"); e("v_min_u32 v10, 16, v10")
    e("v_lshlrev_b32 v10, 5, v10"); e("v_lshrrev_b32 v11, 5, v1"); e("v_lshl_add_u32 v10, v11, 4, v10")
    e(f"s_lshl_b32 {s(sT)}, {s(sWAVE)}, 3"); e(f"s_mul_i32 s4, {s(sT)}, {FP}"); e(f"s_add_u32 s4, s4, {ff}")
    e(f"s_mul_i32 {s(sT+1)}, {s(sXCD)}, {FRP}"); e(f"s_add_u32 s4, s4, {s(sT+1)}")
    e("v_and_b32 v11, 31, v1"); e("v_lshlrev_b32 v11, 4, v11"); e("v_lshrrev_b32 v12, 5, v1"); e("v_lshl_add_u32 v11, v12, 10, v11")
    e(f"s_mul_i32 s5, {s(sT)}, {HP}"); e(f"s_add_u32 s5, s5, {pq}")
    e(f"s_lshl_b32 {s(sT+3)}, {s(sRS)}, 11"); e(f"s_add_u32 s5, s5, {s(sT+3)}")
    e(f"s_and_b32 {s(sT+3)}, {s(sRO)}, 1"); e(f"s_lshl_b32 {s(sT+3)}, {s(sT+3)}, 9"); e(f"s_add_u32 s5, s5, {s(sT+3)}")
    e(f"s_mul_i32 s3, {s(sWAVE)}, 5120"); e(f"s_add_u32 s3, s3, {AT + 32768}")
    e("v_add_u32 v10, s3, v10"); e("v_lshlrev_b32 v19, 4, v1")
    e(f"s_lshl_b32 {s(sT)}, {s(sWAVE)}, 13"); e(f"s_add_u32 {s(sT)}, {s(sT)}, {OT}")
    e(f"v_lshl_add_u32 v12, v1, 4, {s(sT)}")
    e(f"v_lshlrev_b32 v13, 4, v1"); e(f"v_add_u32 v13, {OT}, v13")
    if layer == 1:
        e("v_and_b32 v14, 31, v1"); e(f"v_mul_u32_u24 v14, {TBP}, v14"); e("v_lshrrev_b32 v15, 5, v1"); e("v_lshl_add_u32 v14, v15, 5, v14")
        e(f"s_mul_i32 {s(sT+4)}, {s(sWAVE)}, {32*TBP}"); e(f"s_add_u32 {s(sT+4)}, {s(sT+4)}, {TB}"); e(f"v_add_u32 v14, {s(sT+4)}, v14")
        e("v_lshrrev_b32 v15, 4, v1"); e("v_lshlrev_b32 v15, 3, v15"); e("v_bfe_u32 v16, v1, 2, 2"); e("v_add_u32 v15, v15, v16")
        e(f"v_mul_u32_u24 v15, {TBP}, v15"); e("v_and_b32 v16, 3, v1"); e("v_lshl_add_u32 v15, v16, 3, v15"); e(f"v_add_u32 v15, {s(sT+4)}, v15")
        e("v_and_b32 v16, 15, v1"); e(f"v_lshlrev_b32 v16, 6, v16"); e("v_lshrrev_b32 v17, 4, v1"); e("v_lshl_add_u32 v16, v17, 4, v16")
        e(f"s_lshl_b32 s6, {s(sJO)}, 7"); e(f"s_lshl_b32 {s(sT+1)}, {s(sWAVE)}, 5"); e(f"s_add_u32 s6, s6, {s(sT+1)}")
        e(f"s_lshl_b32 s6, s6, 6"); e(f"s_mul_i32 {s(sT+1)}, {s(sRO)}, {ROP}"); e(f"s_add_u32 s6, s6, {s(sT+1)}")
        e(f"s_add_u32 s6, s6, {X2T}")
        e("v_bfe_u32 v17, v1, 1, 2"); e("v_lshlrev_b32 v17, 12, v17"); e("v_bfe_u32 v18, v1, 3, 2"); e("v_lshl_add_u32 v17, v18, 4, v17")
        e("v_and_b32 v18, 1, v1"); e("v_lshl_add_u32 v17, v18, 3, v17"); e("v_lshrrev_b32 v18, 5, v1"); e("v_lshl_add_u32 v17, v18, 2, v17")
        e(f"s_lshl_b32 s7, {s(sRO)}, 6"); e(f"s_add_u32 s7, s7, {S3}")
    else:
        e("v_and_b32 v14, 31, v1"); e("v_lshlrev_b32 v14, 10, v14"); e("v_lshrrev_b32 v15, 5, v1"); e("v_lshl_add_u32 v14, v15, 5, v14")
        e(f"s_lshl_b32 {s(sT)}, {s(sRO)}, 15"); e(f"s_lshl_b32 {s(sT+1)}, {s(sJO)}, 8"); e(f"s_add_u32 {s(sT)}, {s(sT)}, {s(sT+1)}")
        e(f"s_lshl_b32 {s(sT+1)}, {s(sWAVE)}, 6"); e(f"s_add_u32 {s(sT)}, {s(sT)}, {s(sT+1)}")
        e(f"v_add_u32 v14, {s(sT)}, v14")
    XF = 104
    def pq_loads():
        for h in range(8):
            e(f"s_add_u32 {s(sT+3)}, s5, {h*HP}")
            e(f"buffer_load_dwordx4 {v(PQF+4*h,4)}, v11, {s(sSRD,4)}, {s(sT+3)} offen sc1")
    e("s_barrier")
    stamp(f"o{layer}_gate")
    if STAMPS and f"o{layer}_cnt" in STSET: e("s_mov_b32 s101, 0")
    if STAMPS and f"o{layer}_st0" in STSET:
        e("s_waitcnt vmcnt(0)"); stamp(f"o{layer}_st0")
    pq_loads()
    if STAMPS and f"o{layer}_pq" in STSET:
        stamp(f"o{layer}_pqi"); e("s_waitcnt vmcnt(0)"); stamp(f"o{layer}_pq")
    if int(OPTS.get("osl", 0)): e(f"s_sleep {OPTS.get('osl')}")
    lr = lab("of"); lg = lab("ofk")
    A.label(lr)
    for i in range(5):
        e(f"s_add_u32 {s(sT+3)}, s4, {1024*i}"); e(f"s_add_u32 m0, s3, {1024*i}")
        e(f"buffer_load_dwordx4 v19, {s(sSRD,4)}, {s(sT+3)} offen sc1 lds")
    e("s_waitcnt vmcnt(0)")
    for h in range(8): e(f"ds_read_b128 {v(KF+4*h,4)}, v10 offset:{h*FP}")
    e("s_waitcnt lgkmcnt(0)")
    if STAMPS and f"o{layer}_cnt" in STSET: e("s_add_u32 s101, s101, 1")
    maxtree([KF+4*h+o for h in range(8) for o in (0, 2)], 18)
    e("v_cmp_eq_u32 vcc, -1, v18")
    spin_check(lr, lg)
    stamp(f"o{layer}_fok")
    if STAMPS and f"o{layer}_cnt" in STSET:
        i = len(stnames); stnames.append(f"o{layer}_cnt"); e(f"s_mov_b32 s{84+i}, s101")
    lr = lab("oq"); lg = lab("oqk")
    A.label(lr)
    maxtree([PQF+4*h+o for h in range(8) for o in (0, 2)], 18)
    e("v_cmp_eq_u32 vcc, -1, v18")
    e(f"s_cbranch_vccz {lg}")
    e(f"s_sub_u32 {s(sSPIN)}, {s(sSPIN)}, 1"); e(f"s_cbranch_scc1 {lg}_x")
    pq_loads()
    e("s_waitcnt vmcnt(0)")
    e(f"s_branch {lr}")
    A.label(lg + "_x"); e(f"s_mov_b32 {s(sSPIN)}, 0")
    A.label(lg)
    stamp(f"o{layer}_ld")
    DB = [88, 104, 120, 136, 152, 168, 24, 56]
    def m1(h): e(f"v_mfma_f32_32x32x16_bf16 {v(DB[h],16)}, {v(KF+4*h,4)}, {v(PQF+4*h,4)}, 0")
    def proc2(h0):
        hs = (h0, h0 + 1)
        for h in hs: e(f"v_add_f32 {v(DB[h]+8)}, {s(sEPS6)}, {v(DB[h]+8)}")
        for h in hs: e(f"v_rcp_f32 {v(DB[h]+8)}, {v(DB[h]+8)}")
        for k in range(4):
            for h in hs: e(f"v_pk_mul_f32 {v(DB[h]+2*k,2)}, {v(DB[h]+2*k,2)}, {v(DB[h]+8,2)} op_sel_hi:[1,0]")
        for h in hs:
            for k in range(4): e(f"v_cvt_pk_bf16_f32 {v(DB[h]+10+k)}, {v(DB[h]+2*k)}, {v(DB[h]+2*k+1)}")
            e(f"ds_write_b128 v12, {v(DB[h]+10,4)} offset:{1024*h}")
    for h in range(6): m1(h)
    proc2(0)
    m1(6); m1(7)
    proc2(2); proc2(4); proc2(6)
    stamp(f"o{layer}_m1")
    e("s_waitcnt lgkmcnt(0)"); e("s_barrier")
    ACC = 24; NB = 8; OF = [56 + 4*i for i in range(NB)]
    for h in range(NB): e(f"ds_read_b128 {v(OF[h],4)}, v13 offset:{1024*h}")
    for k in range(8):
        e(f"v_lshlrev_b32 {v(XF+2*k)}, 16, {v(XRES+k)}"); e(f"v_and_b32 {v(XF+2*k+1)}, {s(sHI)}, {v(XRES+k)}")
    for h in range(32):
        e(f"s_waitcnt lgkmcnt({min(NB-1, 31-h)})")
        w_ = a(192 + 4*h, 4) if h < 16 else v(192 + 4*(h-16), 4)
        c_ = "0" if h == 0 else v(ACC, 16)
        e(f"v_mfma_f32_32x32x16_bf16 {v(ACC,16)}, {w_}, {v(OF[h % NB],4)}, {c_}")
        if h + NB < 32: e(f"ds_read_b128 {v(OF[h % NB],4)}, v13 offset:{1024*(h+NB)}")
    stamp(f"o{layer}_g2")
    for k in range(8): e(f"v_pk_add_f32 {v(XF+2*k,2)}, {v(XF+2*k,2)}, {v(ACC+2*k,2)}")
    PKD = 120
    for k in range(8): e(f"v_cvt_pk_bf16_f32 {v(PKD+k)}, {v(XF+2*k)}, {v(XF+2*k+1)}")
    if layer == 2:
        fl = OPTS.get("outfl", "").replace("_", " ")
        e(f"global_store_dwordx4 v14, {v(PKD,4)}, {s(sOUT,2)} {fl}")
        e(f"global_store_dwordx4 v14, {v(PKD+4,4)}, {s(sOUT,2)} offset:16 {fl}")
        return
    e(f"ds_write_b128 v14, {v(PKD,4)}"); e(f"ds_write_b128 v14, {v(PKD+4,4)} offset:16")
    e(f"v_pk_add_f32 v[64:65], {v(XF,2)}, {v(XF+2,2)}"); e(f"v_pk_mul_f32 v[66:67], {v(XF,2)}, {v(XF,2)}")
    e(f"v_pk_add_f32 v[68:69], {v(XF+4,2)}, {v(XF+6,2)}"); e(f"v_pk_mul_f32 v[70:71], {v(XF+2,2)}, {v(XF+2,2)}")
    for k in range(2, 8):
        e(f"v_pk_fma_f32 {v(66+4*(k&1),2)}, {v(XF+2*k,2)}, {v(XF+2*k,2)}, {v(66+4*(k&1),2)}")
        if k >= 4: e(f"v_pk_add_f32 {v(64+4*(k&1),2)}, {v(64+4*(k&1),2)}, {v(XF+2*k,2)}")
    e("s_waitcnt lgkmcnt(0)")
    for k in range(2):
        e(f"ds_read_b64_tr_b16 {v(80+4*k,2)}, v15 offset:{32*k}")
        e(f"ds_read_b64_tr_b16 {v(82+4*k,2)}, v15 offset:{32*k + 4*TBP}")
    e("v_pk_add_f32 v[64:65], v[64:65], v[68:69]"); e("v_pk_add_f32 v[66:67], v[66:67], v[70:71]")
    e("v_add_f32 v64, v64, v65"); e("v_add_f32 v65, v66, v67")
    e("v_permlane32_swap_b32 v64, v65")
    e("v_add_f32 v64, v64, v65")
    e(f"s_lshl_b32 {s(sT)}, {s(sWAVE)}, 8"); e(f"s_add_u32 {s(sT)}, {s(sT)}, {ST}"); e(f"v_lshl_add_u32 v66, v1, 2, {s(sT)}")
    e("ds_write_b32 v66, v64")
    e("s_waitcnt lgkmcnt(1)")
    if OPTS.get("nox2") != "1":
        e(f"buffer_store_dwordx4 v[80:83], v16, {s(sSRD,4)}, s6 offen sc1")
        e(f"buffer_store_dwordx4 v[84:87], v16, {s(sSRD,4)}, s6 offen offset:1024 sc1")
    e("s_waitcnt lgkmcnt(0)"); e("s_barrier")
    l = lab("oat")
    e(f"s_cmp_lg_u32 {s(sWAVE)}, 0"); e(f"s_cbranch_scc1 {l}")
    e(f"v_lshlrev_b32 v66, 2, v1"); e(f"v_add_u32 v66, {ST}, v66")
    for k in range(4): e(f"ds_read_b32 {v(68+k)}, v66 offset:{256*k}")
    e("s_waitcnt lgkmcnt(0)")
    e("v_add_f32 v68, v68, v69"); e("v_add_f32 v70, v70, v71"); e("v_add_f32 v68, v68, v70")
    if OPTS.get("noat") != "1": e(f"buffer_atomic_add_f32 v68, v17, {s(sSRD,4)}, s7 offen")
    A.label(l)

def build():
    prologue()
    stamp("start")
    idx_loads()
    p0_fills()
    stamp("p_iss")
    e("s_waitcnt vmcnt(8)")
    stamp("p_ld")
    p0_x0_write()
    p0_stats()
    e("s_waitcnt vmcnt(6) lgkmcnt(0)"); e("s_barrier")
    p0_x0_store()
    nonce_issue()
    p0_wfrag()
    kgen_setup()
    stamp("p_st")
    kgen_round(["X1", "X2", "Y1"], 0); kgen_round(["Y2"], 0)
    nonce_get(2)
    p0_stats_store()
    sent_regs(20)
    for g in xt_fill_groups(XT1, 3, 10): emit_group(g)
    stamp("p_s1")
    kgen_round(["X1", "X2", "Y1"], 1); kgen_round(["Y2"], 1)
    arrive(0, vm=0)
    stamp("arr1")
    fg = fill_groups(1, 58, 59)
    def upto_store():
        while fg:
            g = fg.pop(0); emit_group(g)
            if any("buffer_store" in l for l in g): return
    upto_store()
    kgen_round(["X1", "X2"], 2); upto_store(); kgen_round(["X1", "X2"], 3); upto_store()
    stamp("k_tab")
    kgen_mm([], upto_store)
    while fg: upto_store()
    e("s_waitcnt lgkmcnt(0)"); e("s_barrier")
    stamp("kgen")
    if stop_here("K"): return
    conv_setup(1)
    stamp("B1")
    rest = conv(1)
    stamp("C1")
    if stop_here("C1"): return
    for ins in rest:
        for l in ins: e(l)
    g_setup(1)
    e("s_waitcnt vmcnt(0)")
    colsums()
    stamp("B2")
    gphase(1)
    stamp("G1")
    if stop_here("G1"): return
    ophase(1)
    stamp("o1_end")
    arrive(1)
    stamp("O1")
    if stop_here("O1"): return
    conv_setup(2)
    stamp("c2_set")
    wait(1, pre=int(OPTS.get("wpre2", 12)))
    stamp("B4")
    conv(2)
    stamp("C2")
    if stop_here("C2"): return
    g_setup(2)
    stamp("B5")
    gphase(2)
    stamp("G2")
    if stop_here("G2"): return
    ophase(2)
    if STAMPS:
        e("s_waitcnt vmcnt(0)")
        stamp("O2")
        if OPTS.get("cntv"):
            for nm, r in (("c0_cnt", 96), ("slow_cnt", 97), ("re_cnt", 98)):
                i = len(stnames); stnames.append(nm); e(f"s_mov_b32 s{84+i}, s{r}")
        stamps_out()

build()
A.label("L_end")
e("s_endpgm")

def rb_int(j):
    u = struct.unpack("<I", struct.pack("<f", float(j)))[0]
    u = (u + 0x7fff + ((u >> 16) & 1)) & 0xffff0000
    return int(struct.unpack("<f", struct.pack("<I", u))[0])
idx = []
for x in range(2064):
    j = 2047 - x
    if j < 0: ent = 1024
    else:
        t = rb_int(j); ent = t if t < 512 else 512 + (t - 512) // 4
    idx.append(2 * ent)

lines, nn = hazard_pass(A.lines)
probs = check_branches(lines)
for p in probs: print("BRANCH HAZARD:", p, file=sys.stderr)
hdr = open("interleave_layers__ssm_conv_s4d__linear_attn_block__prompt.s.ref").read().split("; Override launch")[0]
out = hdr + "; Override launch geometry by editing the next line.\n"
out += f"; @launch grid=(256,1,1) block=(256,1,1) lds={LDS_BYTES}\n"
out += '.amdgcn_target "amdgcn-amd-amdhsa--gfx950"\n.text\n'
out += f".globl {NAME}\n.p2align 8\n.type {NAME},@function\n{NAME}:\n"
out += "\n".join(lines) + "\n"
out += ".p2align 6\n.type L_idx,@object\nL_idx:\n"
for i in range(0, len(idx), 16): out += "  .short " + ", ".join(str(x) for x in idx[i:i+16]) + "\n"
out += "L_tab_end:\n"
out += f""".section .rodata,"a"
.p2align 6
.amdhsa_kernel {NAME}
  .amdhsa_next_free_vgpr 512
  .amdhsa_next_free_sgpr 102
  .amdhsa_accum_offset 256
  .amdhsa_group_segment_fixed_size 0
  .amdhsa_kernarg_size 104
  .amdhsa_user_sgpr_count 2
  .amdhsa_user_sgpr_kernarg_segment_ptr 1
  .amdhsa_system_sgpr_workgroup_id_x 1
  .amdhsa_float_denorm_mode_32 3
.end_amdhsa_kernel
"""
open(sys.argv[1], "w").write(out)
if STAMPS: open(sys.argv[1] + ".names", "w").write(",".join(stnames))
print(f"wrote {sys.argv[1]}: {len(lines)} lines, {nn} nops inserted; WS_USED={WS_USED:#x}", file=sys.stderr)
```

```python
import sys, struct
from asmlib import *

NAME = "interleave_layers__ssm_conv_s4d__linear_attn_block__prompt_kernel"
OPTS = {}
for x in sys.argv[2:]:
    if "=" in x:
        k_, v_ = x.split("="); OPTS[k_] = v_
STOP = OPTS.get("stop")
SPINMAX = int(OPTS.get("spin", 100000))
BK = int(OPTS.get("bk", 2))

PITCH = 4224
S1 = 0x000000
S3 = 0x004000
FP = 640; FRP = 32 * FP + 128; F1 = 0x1200000 - 0x100000; F2 = F1 + 0x40000
STAMP_OFF = 0x020000
X0P = 8192 + 128
CNT = 0x030000
KVP1 = 0x040000; KVH = 1152; KVW = 4 * KVH; KVP2 = KVP1 + 0x128000
WFG = 0x2A0000; WFO = WFG + 0x180000
XSZ = 0x220000
XT1 = 0x4A0000; XT3 = XT1 + XSZ; X2T = XT3 + XSZ
ROP = 32768 + 256
HP = 65536 + 256
PQ1 = X2T + XSZ; PQ2 = PQ1 + 0x210000
X0T = 0x1200000
WS_USED = 0x1200000 + 0x210000
assert PQ2 + 0x210000 <= F1
KC = 0; KCC = 4160; KCH = 4 * KCC
AT = 66560
MISC = AT + 65536
ST = MISC
WST = MISC + 2048
CT = WST + 8192; CTP = 2080
TB = WST; TBP = 80
LDS_BYTES = 163840
X0S = 147456
TKP = 224; TABC = 256 * TKP
U0 = AT; UP = 4608; X0 = AT + 2 * UP; RED = X0 + 8192
OT = AT

sU, sLOGA, sAIM, sCR, sCI, sLDT, sDSK = 8, 10, 12, 14, 16, 18, 20
sWQKV, sWO, sOUT, sDBG, sWS = 24, 26, 28, 30, 32
sSRD = 36; sSRD2 = 40
sWAVE, sXCD, sIDX, sCP, sRS, sJ, sRO, sJO = 44, 45, 46, 47, 48, 49, 50, 51
sSPIN = 52; sDSKV = 53
sT = 54
sLOG2E = 64; sEPS6 = 66; sM = 68; sHI = 76; sPC = 78; sINV512 = 80
sW = 34
sNON = 35

def f2u(f): return struct.unpack("<I", struct.pack("<f", f))[0]
A = Asm(); e = A.e
uid = [0]
def lab(p):
    uid[0] += 1; return f"L_{p}_{uid[0]}"

STAMPS = OPTS.get("stamps") == "1"
DEFSET = "start,arr1,kgen,B1,c1_pro,C1,B2,g1_kv,G1,o1_ld,O1,B4,c2_pro,C2,B5,G2,o2_ld,O2"
STSET = OPTS.get("st", DEFSET).split(",")
stnames = []
def stamp(name):
    if not STAMPS or name not in STSET: return
    i = len(stnames); stnames.append(name); assert i < 18
    e(f"{'s_memtime' if OPTS.get('clk') == '1' else 's_memrealtime'} s[82:83]"); e("s_waitcnt lgkmcnt(0)"); e(f"s_mov_b32 s{84+i}, s82")
def stamps_out():
    if not STAMPS: return
    if OPTS.get("dbgout"):
        l = lab("so")
        e(f"s_cmp_lg_u32 {s(sWAVE)}, 0"); e(f"s_cbranch_scc1 {l}")
        e(f"s_cmp_lg_u32 s2, {OPTS.get('dbgout')}"); e(f"s_cbranch_scc1 {l}")
        e("s_mov_b64 exec, 1")
        words = [2, 3, 5, 6, 7, 9, 10, 11, 13, 14, 15]
        for i in range(1, min(len(stnames), 12)):
            e(f"s_sub_u32 {s(sT)}, s{84+i}, s84")
            e(f"v_mov_b32 v10, {s(sT)}"); e(f"v_mov_b32 v11, {4*words[i-1]}")
            e(f"global_store_dword v11, v10, {s(sDBG,2)}")
        e("s_mov_b64 exec, -1")
        A.label(l)
        return
    l = lab("so")
    e(f"s_cmp_lg_u32 {s(sWAVE)}, {OPTS.get('stw', '0')}"); e(f"s_cbranch_scc1 {l}")
    e(f"s_lshl_b32 {s(sT)}, s2, 7"); e(f"s_add_u32 {s(sT)}, {s(sT)}, {STAMP_OFF}")
    e("s_mov_b64 exec, 1")
    for i in range(len(stnames)):
        e(f"v_mov_b32 v10, s{84+i}"); e(f"v_mov_b32 v11, {4*i}")
        e(f"buffer_store_dword v10, v11, {s(sSRD,4)}, {s(sT)} offen")
    e("s_mov_b64 exec, -1")
    A.label(l)
def stop_here(name):
    if STOP == name:
        e("s_waitcnt vmcnt(0) lgkmcnt(0)"); e("s_branch L_end"); return True
    return False

def sent_regs(r):
    for i in range(4): e(f"v_mov_b32 {v(r+i)}, -1")
def spin_check(retry, giveup, bk=None):
    e(f"s_cbranch_vccz {giveup}")
    bk = BK if bk is None else bk
    if bk: e(f"s_sleep {bk}")
    e(f"s_sub_u32 {s(sSPIN)}, {s(sSPIN)}, 1")
    e(f"s_cbranch_scc0 {retry}")
    e(f"s_mov_b32 {s(sSPIN)}, 0")
    A.label(giveup)
def maxtree(regs, dst):
    regs = list(regs); cur = regs.pop(0)
    while regs:
        if len(regs) >= 2:
            e(f"v_max3_u32 {v(dst)}, {v(cur)}, {v(regs[0])}, {v(regs[1])}"); regs = regs[2:]
        else:
            e(f"v_max_u32 {v(dst)}, {v(cur)}, {v(regs[0])}"); regs = []
        cur = dst

def arrive(k, vm=0):
    e(f"s_waitcnt vmcnt({vm}) lgkmcnt(0)"); e("s_barrier")
    l = lab("arr")
    e(f"s_cmp_lg_u32 {s(sWAVE)}, 0"); e(f"s_cbranch_scc1 {l}")
    e(f"s_and_b32 {s(sT)}, s2, 15"); e(f"s_lshl_b32 {s(sT)}, {s(sT)}, {4 if k == 0 else 12}")
    if k: e(f"s_add_u32 {s(sT)}, {s(sT)}, {CNT}")
    e(f"v_mov_b32 v10, {s(sT)}"); e("v_mov_b32 v11, 1")
    e("s_mov_b64 exec, 1")
    e(f"global_atomic_add v10, v11, {s(sDBG if k == 0 else sWS,2)}")
    e("s_mov_b64 exec, -1")
    A.label(l)
def wait(k, pre=0):
    l = lab("wt"); lp = lab("poll")
    e(f"s_cmp_lg_u32 {s(sWAVE)}, 0"); e(f"s_cbranch_scc1 {l}")
    e("v_and_b32 v10, 15, v0"); e(f"v_lshlrev_b32 v10, {4 if k == 0 else 12}, v10")
    if k: e(f"v_add_u32 v10, {CNT}, v10")
    e(f"s_movk_i32 {s(sT+1)}, {16 * max(k, 1)}")
    if pre: e(f"s_sleep {pre}")
    A.label(lp)
    e(f"global_load_dword v11, v10, {s(sDBG if k == 0 else sWS,2)} sc1")
    e("s_waitcnt vmcnt(0)")
    e(f"v_cmp_gt_u32 vcc, {s(sT+1)}, v11")
    spin_check(lp, l, bk=int(OPTS.get("wbk", 0)))
    e("s_barrier")

def cmul(d, x, w, t):
    return [f"v_pk_mul_f32 {v(t,2)}, {v(x,2)}, {v(w,2)} op_sel_hi:[1,0]",
            f"v_pk_fma_f32 {v(d,2)}, {v(x,2)}, {v(w,2)}, {v(t,2)} op_sel:[1,1,0] op_sel_hi:[0,1,1] neg_lo:[0,1,0]"]
def bf16r(dst, src):
    e(f"v_cvt_pk_bf16_f32 {v(dst)}, {v(src)}, {v(src)}"); e(f"v_lshlrev_b32 {v(dst)}, 16, {v(dst)}")
def stats_final(vsum, vsq, vm, vr, t, rcp=True):
    e(f"v_mul_f32 {v(t)}, {s(sINV512)}, {v(vsum)}")
    e(f"v_mul_f32 {v(t+1)}, {s(sINV512)}, {v(vsq)}")
    e(f"v_fma_f32 {v(t+1)}, -{v(t)}, {v(t)}, {v(t+1)}")
    e(f"v_max_f32 {v(t+1)}, 0, {v(t+1)}")
    e(f"v_cvt_pk_bf16_f32 {v(t)}, {v(t)}, {v(t+1)}")
    e(f"v_and_b32 {v(t+1)}, {s(sHI)}, {v(t)}"); e(f"v_lshlrev_b32 {v(vm)}, 16, {v(t)}")
    e(f"v_add_f32 {v(t+1)}, 0x3727c5ac, {v(t+1)}")
    bf16r(t + 1, t + 1)
    e(f"v_sqrt_f32 {v(t+1)}, {v(t+1)}")
    if rcp:
        bf16r(t + 1, t + 1)
        e(f"v_rcp_f32 {v(vr)}, {v(t+1)}")
    else:
        bf16r(vr, t + 1)

def kvp_addr(kvp, dst):
    e(f"s_lshl_b32 {s(dst)}, {s(sJ)}, 5"); e(f"s_add_u32 {s(dst)}, {s(dst)}, {s(sRS)}"); e(f"s_lshl_b32 {s(dst)}, {s(dst)}, 2")
    e(f"s_add_u32 {s(dst)}, {s(dst)}, {s(sWAVE)}"); e(f"s_mul_i32 {s(dst)}, {s(dst)}, {KVH}"); e(f"s_add_u32 {s(dst)}, {s(dst)}, {kvp}")
def f_addr(f, dst):
    e(f"s_lshr_b32 {s(dst)}, {s(sRS)}, 3"); e(f"s_lshl_b32 {s(sT+9)}, {s(sJ)}, 2"); e(f"s_add_u32 {s(dst)}, {s(dst)}, {s(sT+9)}")
    e(f"s_mul_i32 {s(dst)}, {s(dst)}, {FP}"); e(f"s_add_u32 {s(dst)}, {s(dst)}, {f}")
def pq_addr(pq, dst):
    e(f"s_lshl_b32 {s(dst)}, {s(sJ)}, 2"); e(f"s_add_u32 {s(dst)}, {s(dst)}, {s(sWAVE)}")
    e(f"s_mul_i32 {s(dst)}, {s(dst)}, {HP}"); e(f"s_lshl_b32 {s(sT+9)}, {s(sRS)}, 11"); e(f"s_add_u32 {s(dst)}, {s(dst)}, {s(sT+9)}")
    e(f"s_add_u32 {s(dst)}, {s(dst)}, {pq}")
def capture(fn):
    n = len(A.lines); fn(); out = [l.strip() for l in A.lines[n:]]; del A.lines[n:]
    return out
def fill_groups(layer, va, vb):
    S = 20; P1, K1, FF = 40, 41, 42
    pq = PQ1 if layer == 1 else PQ2; kvp = KVP1 if layer == 1 else KVP2; ff = F1 if layer == 1 else F2
    G = []
    def grp(fn): G.append(capture(fn))
    def single(fn):
        for l in capture(fn): G.append([l])
    single(lambda: sent_regs(S))
    def addr():
        e(f"s_lshl_b32 s{P1}, {s(sJ)}, 2"); e(f"s_add_u32 s{P1}, s{P1}, {s(sWAVE)}"); e(f"s_mul_i32 s{P1}, s{P1}, {HP}")
        e(f"s_lshl_b32 s61, {s(sRS)}, 11"); e(f"s_add_u32 s{P1}, s{P1}, s61"); e(f"s_add_u32 s{P1}, s{P1}, {pq}")
        e(f"s_lshl_b32 s{K1}, {s(sJ)}, 5"); e(f"s_add_u32 s{K1}, s{K1}, {s(sRS)}"); e(f"s_lshl_b32 s{K1}, s{K1}, 2")
        e(f"s_add_u32 s{K1}, s{K1}, {s(sWAVE)}"); e(f"s_mul_i32 s{K1}, s{K1}, {KVH}"); e(f"s_add_u32 s{K1}, s{K1}, {kvp}")
        e(f"s_lshr_b32 s{FF}, {s(sRS)}, 3"); e(f"s_lshl_b32 s61, {s(sJ)}, 2"); e(f"s_add_u32 s{FF}, s{FF}, s61")
        e(f"s_mul_i32 s{FF}, s{FF}, {FP}"); e(f"s_add_u32 s{FF}, s{FF}, {ff}")
        e(f"v_lshlrev_b32 {v(va)}, 4, v1"); e(f"v_lshlrev_b32 {v(vb)}, 2, v1")
    single(addr)
    G.append([f"buffer_store_dwordx4 {v(S,4)}, {v(va)}, {s(sSRD,4)}, s{K1} offen sc1", "MARK"])
    def st2():
        e("s_mov_b32 s62, -1"); e("s_mov_b32 s63, 0"); e("s_mov_b64 exec, s[62:63]")
        e(f"buffer_store_dword {v(S)}, {v(vb)}, {s(sSRD,4)}, s{K1} offen offset:1024 sc1")
        e("s_mov_b64 exec, -1")
    grp(st2)
    G.append([f"buffer_store_dwordx4 {v(S,4)}, {v(va)}, {s(sSRD,4)}, s{P1} offen sc1", "MARK"])
    G.append([f"buffer_store_dwordx4 {v(S,4)}, {v(va)}, {s(sSRD,4)}, s{P1} offen offset:1024 sc1", "MARK"])
    def fslice():
        l = lab("ff")
        e(f"s_cmp_lg_u32 {s(sWAVE)}, 2"); e(f"s_cbranch_scc1 {l}")
        e(f"s_and_b32 s61, {s(sRS)}, 7"); e("s_lshl_b32 s62, s61, 6")
        e(f"v_lshrrev_b32 {v(va)}, 3, v1"); e(f"v_mul_u32_u24 {v(va)}, {FRP}, {v(va)}"); e(f"v_and_b32 {v(vb)}, 7, v1"); e(f"v_lshl_add_u32 {v(va)}, {v(vb)}, 3, {v(va)}")
        e(f"v_add_u32 {v(vb)}, s62, {v(va)}")
        e(f"buffer_store_dwordx2 {v(S,2)}, {v(vb)}, {s(sSRD,4)}, s{FF} offen sc1")
        e("s_cmp_lg_u32 s61, 0"); e(f"s_cbranch_scc1 {l}")
        e("s_mov_b32 s62, 0x0f0f0f0f"); e("s_mov_b32 s63, 0x0f0f0f0f"); e("s_mov_b64 exec, s[62:63]")
        e(f"buffer_store_dwordx2 {v(S,2)}, {v(va)}, {s(sSRD,4)}, s{FF} offen offset:512 sc1")
        e("s_mov_b64 exec, -1")
        A.label(l)
    grp(fslice)
    return G
def xt_fill_groups(buf, sreg, va):
    G = []
    G.append([f"s_lshr_b32 s{sreg}, {s(sWAVE)}, 1"]); G.append([f"s_lshl_b32 s61, {s(sCP)}, 1"]); G.append([f"s_add_u32 s{sreg}, s{sreg}, s61"])
    G.append([f"s_mul_i32 s{sreg}, s{sreg}, {PITCH}"]); G.append([f"s_and_b32 s61, {s(sWAVE)}, 1"]); G.append(["s_lshl_b32 s61, s61, 11"])
    G.append([f"s_add_u32 s{sreg}, s{sreg}, s61"]); G.append([f"s_add_u32 s{sreg}, s{sreg}, {buf}"]); G.append([f"v_lshlrev_b32 {v(va)}, 4, v1"])
    G.append([f"buffer_store_dwordx4 v[20:23], {v(va)}, {s(sSRD,4)}, s{sreg} offen sc1"])
    G.append([f"buffer_store_dwordx4 v[20:23], {v(va)}, {s(sSRD,4)}, s{sreg} offen offset:1024 sc1"])
    return G
def emit_group(g):
    for l in g:
        if l == "MARK": continue
        if l.endswith(":"): A.label(l[:-1])
        else: e(l)

XR = 24; PRM = 32; IDX = 40; XC = 176
def prologue():
    stamp("t0")
    if OPTS.get("cntv"):
        e("s_mov_b32 s96, 0"); e("s_mov_b32 s97, 0"); e("s_mov_b32 s98, 0")
    e(f"s_getpc_b64 {s(sPC,2)}")
    A.label("L_pc")
    e("s_cmp_ge_u32 s2, 256")
    e("s_cbranch_scc1 L_end")
    e("s_load_dwordx16 s[8:23], s[0:1], 0")
    e("s_load_dwordx8 s[24:31], s[0:1], 64")
    e("s_load_dwordx2 s[32:33], s[0:1], 96")
    e("s_memrealtime s[82:83]")
    e("v_lshlrev_b32 v10, 7, v0")
    e("v_min_u32 v11, L_tab_end - L_pc - 4, v10")
    e(f"global_load_dword v38, v11, {s(sPC,2)}")
    e("v_add_u32 v10, 0x8000, v10")
    e("v_min_u32 v10, L_tab_end - L_pc - 4, v10")
    e(f"global_load_dword v39, v10, {s(sPC,2)}")
    e("v_lshrrev_b32 v1, 6, v0")
    e(f"s_and_b32 {s(sXCD)}, s2, 7")
    e(f"s_lshr_b32 {s(sIDX)}, s2, 3")
    e(f"v_readfirstlane_b32 {s(sWAVE)}, v1")
    e(f"s_lshl_b32 {s(sCP)}, {s(sXCD)}, 5"); e(f"s_add_u32 {s(sCP)}, {s(sCP)}, {s(sIDX)}")
    e("v_and_b32 v1, 63, v0")
    e(f"s_lshl_b32 {s(sT)}, {s(sCP)}, 9"); e(f"v_lshl_add_u32 v10, v0, 1, {s(sT)}")
    e(f"s_lshl_b32 {s(sT)}, {s(sCP)}, 2"); e("v_lshrrev_b32 v12, 7, v0"); e(f"v_lshl_add_u32 v11, v12, 1, {s(sT)}")
    e(f"s_lshl_b32 {s(sT)}, s2, 13"); e(f"v_lshl_add_u32 v13, v0, 5, {s(sT)}")
    e(f"s_mul_i32 s6, s2, 5462"); e(f"s_lshr_b32 s6, s6, 16"); e(f"s_mul_i32 s7, s6, 12"); e(f"s_sub_u32 s7, s2, s7")
    e(f"s_sub_u32 {s(sT+1)}, s2, 192"); e(f"s_lshr_b32 {s(sT)}, {s(sT+1)}, 1"); e(f"s_and_b32 {s(sT+1)}, {s(sT+1)}, 1")
    e("s_cmp_ge_u32 s2, 192")
    e(f"s_cselect_b32 s6, {s(sT)}, s6"); e(f"s_cselect_b32 s7, {s(sT+1)}, s7")
    e(f"s_cselect_b32 {s(sT+2)}, 4, 5")
    e(f"s_cselect_b32 {s(sT+3)}, 2, 3")
    e(f"s_cselect_b32 {s(sT+4)}, 10, 0")
    e(f"s_movk_i32 {s(sT+5)}, 3072"); e(f"s_cselect_b32 {s(sT+5)}, 1024, {s(sT+5)}")
    e(f"s_cselect_b32 {s(sT+6)}, 9, 8")
    e(f"s_cselect_b32 {s(sT+7)}, 5, 4")
    e(f"s_lshl_b32 {s(sT)}, s6, {s(sT+2)}"); e(f"s_lshl_b32 {s(sT+1)}, {s(sWAVE)}, {s(sT+3)}"); e(f"s_add_u32 {s(sT)}, {s(sT)}, {s(sT+1)}")
    e(f"s_mul_i32 {s(sT)}, {s(sT)}, {s(sT+5)}"); e(f"s_lshl_b32 {s(sT+1)}, s7, {s(sT+6)}"); e(f"s_add_u32 s4, {s(sT)}, {s(sT+1)}")
    e(f"v_lshrrev_b32 v14, {s(sT+7)}, v1"); e(f"v_mul_lo_u32 v14, {s(sT+5)}, v14")
    e(f"s_lshl_b32 {s(sT+1)}, 1, {s(sT+7)}"); e(f"s_sub_u32 {s(sT+1)}, {s(sT+1)}, 1"); e(f"v_and_b32 v15, {s(sT+1)}, v1"); e("v_lshl_add_u32 v14, v15, 4, v14")
    e(f"s_lshl_b32 {s(sT+1)}, 64, 0"); e(f"s_lshr_b32 {s(sT+1)}, 64, {s(sT+7)}"); e(f"s_mul_i32 s5, {s(sT+1)}, {s(sT+5)}")
    e(f"s_lshl_b32 {s(sT+3)}, {s(sWAVE)}, 11"); e(f"s_add_u32 {s(sT+3)}, {s(sT+3)}, {WST}")
    e("s_cmp_ge_u32 s2, 192")
    e("s_waitcnt lgkmcnt(0)")
    stamp("karg")
    if True:
        e(f"v_min_u32 v16, {(WS_USED - 1) // 0x200000}, v1"); e("v_lshlrev_b32 v16, 21, v16")
        e(f"global_load_dword v19, v16, {s(sWS,2)}")
    e("s_cmp_ge_u32 s2, 192")
    e(f"global_load_ushort {v(PRM)}, v10, {s(sLOGA,2)}")
    e(f"global_load_ushort {v(PRM+1)}, v10, {s(sAIM,2)}")
    e(f"global_load_ushort {v(PRM+4)}, v11, {s(sLDT,2)}")
    e(f"global_load_dwordx4 {v(XR,4)}, v13, {s(sU,2)}")
    e(f"global_load_dwordx4 {v(XR+4,4)}, v13, {s(sU,2)} offset:16")
    e(f"global_load_ushort {v(PRM+2)}, v10, {s(sCR,2)}")
    e(f"global_load_ushort {v(PRM+3)}, v10, {s(sCI,2)}")
    e(f"global_load_ushort {v(PRM+5)}, v11, {s(sDSK,2)}")
    e(f"s_cselect_b32 {s(sSRD2)}, {s(sWO)}, {s(sWQKV)}"); e(f"s_cselect_b32 {s(sSRD2+1)}, {s(sWO+1)}, {s(sWQKV+1)}")
    e(f"s_mov_b32 {s(sT)}, {512*1536*2}"); e(f"s_cselect_b32 {s(sSRD2+2)}, {512*512*2}, {s(sT)}")
    e(f"s_and_b32 {s(sSRD2+1)}, {s(sSRD2+1)}, 0xffff"); e(f"s_mov_b32 {s(sSRD2+3)}, 0x20000")
    ln = lab("nw")
    e("v_mov_b32 v23, 4")
    e(f"s_or_b32 {s(sT)}, s2, {s(sWAVE)}"); e(f"s_cmp_lg_u32 {s(sT)}, 0"); e(f"s_cbranch_scc1 {ln}")
    e(f"s_or_b32 {s(sT)}, s82, 1"); e(f"v_mov_b32 v58, {s(sT)}")
    e("s_mov_b64 exec, 1")
    e(f"global_store_dword v23, v58, {s(sDBG,2)} sc1")
    e("s_mov_b64 exec, -1")
    e("s_waitcnt vmcnt(63)")
    A.label(ln)
    e(f"s_mov_b32 m0, {s(sT+3)}")
    e(f"buffer_load_dwordx4 v14, {s(sSRD2,4)}, s4 offen lds")
    e(f"s_add_u32 s4, s4, s5"); e(f"s_add_u32 m0, {s(sT+3)}, 1024")
    e(f"buffer_load_dwordx4 v14, {s(sSRD2,4)}, s4 offen lds")
    e(f"s_and_b32 {s(sT)}, {s(sIDX)}, 3"); e(f"s_lshl_b32 {s(sRS)}, {s(sXCD)}, 2"); e(f"s_add_u32 {s(sRS)}, {s(sRS)}, {s(sT)}")
    e(f"s_lshr_b32 {s(sJ)}, {s(sIDX)}, 2")
    e(f"s_and_b32 {s(sT)}, {s(sJ)}, 1"); e(f"s_lshl_b32 {s(sRO)}, {s(sRS)}, 1"); e(f"s_add_u32 {s(sRO)}, {s(sRO)}, {s(sT)}")
    e(f"s_lshr_b32 {s(sJO)}, {s(sJ)}, 1")
    e(f"s_mov_b32 {s(sLOG2E)}, {f2u(1.4426950408889634):#x}"); e(f"s_mov_b32 {s(sLOG2E+1)}, {s(sLOG2E)}")
    e(f"s_mov_b32 {s(sEPS6)}, {f2u(1e-6):#x}"); e(f"s_mov_b32 {s(sEPS6+1)}, {s(sEPS6)}")
    e(f"s_mov_b32 {s(sINV512)}, {f2u(1.0/512):#x}"); e(f"s_mov_b32 {s(sINV512+1)}, {s(sINV512)}")
    e(f"s_mov_b32 {s(sHI)}, 0xffff0000")
    e(f"s_mov_b32 {s(sSPIN)}, {SPINMAX}")
    e(f"s_mov_b32 {s(sSRD)}, {s(sWS)}"); e(f"s_and_b32 {s(sSRD+1)}, {s(sWS+1)}, 0xffff")
    e(f"s_mov_b32 {s(sSRD+2)}, {WS_USED:#x}"); e(f"s_mov_b32 {s(sSRD+3)}, 0x20000")

def p0_fills():
    e("v_mov_b32 v12, 0")
    e(f"s_lshl_b32 {s(sT)}, s2, 6"); e(f"s_add_u32 {s(sT)}, {s(sT)}, {S3}")
    e("v_lshlrev_b32 v10, 2, v1")
    e("s_mov_b64 exec, 0xffff")
    e(f"buffer_store_dword v12, v10, {s(sSRD,4)}, {s(sT)} offen sc1")
    e(f"s_lshl_b32 {s(sT+1)}, s2, 12"); e(f"s_add_u32 {s(sT+1)}, {s(sT+1)}, {CNT}")
    e("s_cmp_lt_u32 s2, 16"); e(f"s_cselect_b32 {s(sT)}, {s(sT+1)}, {s(sT)}")
    e("s_mov_b64 exec, 1")
    e(f"buffer_store_dword v12, v10, {s(sSRD,4)}, {s(sT)} offen sc1")
    e("s_mov_b64 exec, -1")

def nonce_issue():
    e("v_mov_b32 v17, 4")
    e(f"global_load_dword v58, v17, {s(sDBG,2)} sc1")
def nonce_get(vm=0):
    lr = lab("nr"); lg = lab("ng"); l0 = lab("n0")
    e(f"s_waitcnt vmcnt({vm})")
    e(f"s_branch {l0}")
    A.label(lr)
    e(f"global_load_dword v58, v17, {s(sDBG,2)} sc1")
    e("s_waitcnt vmcnt(0)")
    A.label(l0)
    e("v_cmp_eq_u32 vcc, 0, v58")
    spin_check(lr, lg, bk=1)
    e(f"v_readfirstlane_b32 {s(sNON)}, v58")

def idx_loads():
    e(f"s_add_u32 {s(sT)}, {s(sPC)}, L_idx - L_pc"); e(f"s_addc_u32 {s(sT+1)}, {s(sPC+1)}, 0")
    e("v_and_b32 v10, 127, v0"); e("v_lshlrev_b32 v10, 4, v10")
    e(f"global_load_dwordx4 {v(IDX,4)}, v10, {s(sT,2)}")
    e(f"global_load_dwordx4 {v(IDX+4,4)}, v10, {s(sT,2)} offset:16")
    e(f"global_load_dwordx4 {v(IDX+8,4)}, v10, {s(sT,2)} offset:2048")
    e(f"global_load_dwordx4 {v(IDX+12,4)}, v10, {s(sT,2)} offset:2064")

def gather_loads():
    out = []
    for i in range(4): out.append(f"global_load_dword {v(XC+i)}, v19, {s(sU,2)} offset:{1024*i}")
    for i in range(4): out.append(f"global_load_dword {v(XC+4+i)}, v18, {s(sU,2)} offset:{1024*i}")
    return out

def p0_x0_write():
    e(f"v_lshlrev_b32 v10, 5, v0"); e(f"v_add_u32 v10, {X0S}, v10")
    e(f"ds_write_b128 v10, {v(XR,4)}"); e(f"ds_write_b128 v10, {v(XR+4,4)} offset:16")
def p0_x0_store():
    e("v_bfe_u32 v10, v1, 2, 2"); e("v_lshlrev_b32 v10, 10, v10")
    e("v_lshrrev_b32 v11, 4, v1"); e("v_lshl_add_u32 v10, v11, 5, v10")
    e("v_and_b32 v11, 3, v1"); e("v_lshl_add_u32 v10, v11, 3, v10")
    e(f"s_lshl_b32 {s(sT)}, {s(sWAVE)}, 8"); e(f"s_add_u32 {s(sT)}, {s(sT)}, {X0S}"); e(f"v_add_u32 v10, {s(sT)}, v10")
    for k in range(2):
        e(f"ds_read_b64_tr_b16 {v(100+4*k,2)}, v10 offset:{128*k}"); e(f"ds_read_b64_tr_b16 {v(102+4*k,2)}, v10 offset:{128*k + 4096}")
    e(f"s_mul_i32 {s(sT)}, s2, {X0P}"); e(f"s_lshl_b32 {s(sT+1)}, {s(sWAVE)}, 11"); e(f"s_add_u32 {s(sT)}, {s(sT)}, {s(sT+1)}")
    e(f"s_add_u32 {s(sT)}, {s(sT)}, {X0T}")
    e("v_lshlrev_b32 v11, 4, v1")
    e("s_waitcnt lgkmcnt(0)")
    e(f"buffer_store_dwordx4 v[100:103], v11, {s(sSRD,4)}, {s(sT)} offen sc1")
    e(f"buffer_store_dwordx4 v[104:107], v11, {s(sSRD,4)}, {s(sT)} offen offset:1024 sc1")

def p0_stats():
    F = 64
    for i in range(8):
        e(f"v_lshlrev_b32 {v(F+2*i)}, 16, {v(XR+i)}"); e(f"v_and_b32 {v(F+2*i+1)}, {s(sHI)}, {v(XR+i)}")
    for i in range(4): e(f"v_pk_add_f32 {v(80+2*i,2)}, {v(F+4*i,2)}, {v(F+4*i+2,2)}")
    e(f"v_pk_mul_f32 v[88:89], {v(F,2)}, {v(F,2)}"); e(f"v_pk_mul_f32 v[90:91], {v(F+2,2)}, {v(F+2,2)}")
    e(f"v_pk_add_f32 v[80:81], v[80:81], v[82:83]"); e(f"v_pk_add_f32 v[84:85], v[84:85], v[86:87]")
    for i in range(2, 8): e(f"v_pk_fma_f32 {v(88+2*(i&1),2)}, {v(F+2*i,2)}, {v(F+2*i,2)}, {v(88+2*(i&1),2)}")
    e(f"v_pk_add_f32 v[80:81], v[80:81], v[84:85]"); e("v_pk_add_f32 v[88:89], v[88:89], v[90:91]")
    e("v_add_f32 v80, v80, v81"); e("v_add_f32 v82, v88, v89")
    for r_ in (8, 4, 2, 1):
        e(f"v_add_f32_dpp v80, v80, v80 row_ror:{r_} row_mask:0xf bank_mask:0xf")
        e(f"v_add_f32_dpp v82, v82, v82 row_ror:{r_} row_mask:0xf bank_mask:0xf")
    e("v_add_f32_dpp v80, v80, v80 row_bcast:15 row_mask:0xa bank_mask:0xf")
    e("v_add_f32_dpp v82, v82, v82 row_bcast:15 row_mask:0xa bank_mask:0xf")
    stats_final(80, 82, 56, 57, 86, rcp=False)
    e("v_lshrrev_b32 v56, 16, v56"); e(f"v_and_or_b32 v56, v57, {s(sHI)}, v56")

def p0_stats_store():
    e(f"v_mov_b32 v57, {s(sNON)}")
    e(f"s_lshl_b32 {s(sT)}, s2, 4"); e(f"s_lshl_b32 {s(sT+1)}, {s(sWAVE)}, 12"); e(f"s_add_u32 {s(sT)}, {s(sT)}, {s(sT+1)}")
    e(f"s_add_u32 {s(sT)}, {s(sT)}, {S1}")
    e("v_lshrrev_b32 v10, 5, v1"); e(f"v_lshl_add_u32 v10, v10, 3, {s(sT)}")
    e(f"s_mov_b32 {s(sT+2)}, 0x00010000"); e(f"s_mov_b32 {s(sT+3)}, 0x00010000")
    e(f"s_mov_b64 exec, {s(sT+2,2)}")
    e(f"buffer_store_dwordx2 v[56:57], v10, {s(sSRD,4)}, 0 offen sc1")
    e("s_mov_b64 exec, -1")

def p0_wfrag():
    lo = lab("wo2"); lj = lab("wj2")
    e("s_cmp_ge_u32 s2, 192"); e(f"s_cbranch_scc1 {lo}")
    e("v_lshrrev_b32 v10, 2, v1"); e("v_lshlrev_b32 v10, 8, v10")
    e("v_and_b32 v11, 3, v1"); e("v_lshl_add_u32 v10, v11, 3, v10")
    e(f"s_lshl_b32 {s(sT)}, {s(sWAVE)}, 6"); e(f"s_add_u32 {s(sT)}, {s(sT)}, {WST}")
    e(f"v_add_u32 v10, {s(sT)}, v10")
    e("ds_read_b64_tr_b16 v[88:89], v10"); e("ds_read_b64_tr_b16 v[90:91], v10 offset:4096")
    e("ds_read_b64_tr_b16 v[92:93], v10 offset:32"); e("ds_read_b64_tr_b16 v[94:95], v10 offset:4128")
    e(f"s_lshr_b32 {s(sT)}, s7, 2")
    e(f"s_add_u32 {s(sT)}, {s(sT)}, 2"); e(f"s_cmp_ge_u32 {s(sT)}, 3")
    e(f"s_cselect_b32 {s(sT+1)}, 3, 0"); e(f"s_sub_u32 {s(sT)}, {s(sT)}, {s(sT+1)}")
    e(f"s_and_b32 {s(sT+1)}, s7, 3"); e(f"s_lshl_b32 {s(sT+1)}, {s(sT+1)}, 3")
    e(f"s_lshl_b32 {s(sT+2)}, {s(sWAVE)}, 1"); e(f"s_add_u32 {s(sT+1)}, {s(sT+1)}, {s(sT+2)}")
    e(f"s_mul_i32 {s(sT+1)}, {s(sT+1)}, 3"); e(f"s_add_u32 {s(sT+1)}, {s(sT+1)}, {s(sT)}")
    e(f"s_lshl_b32 {s(sT+1)}, {s(sT+1)}, 4"); e(f"s_add_u32 {s(sT+1)}, {s(sT+1)}, s6")
    e(f"s_lshl_b32 {s(sT+1)}, {s(sT+1)}, 10"); e(f"s_add_u32 {s(sT+1)}, {s(sT+1)}, {WFG}")
    e(f"s_add_u32 {s(sT+2)}, {s(sT+1)}, 49152")
    e(f"s_branch {lj}")
    A.label(lo)
    e("v_lshrrev_b32 v10, 5, v1"); e("v_lshlrev_b32 v10, 2, v10")
    e("v_bfe_u32 v11, v1, 2, 2"); e("v_add_u32 v10, v10, v11"); e("v_lshlrev_b32 v10, 9, v10")
    e("v_and_b32 v11, 1, v1"); e("v_lshl_add_u32 v10, v11, 5, v10")
    e("v_bfe_u32 v11, v1, 4, 1"); e("v_lshl_add_u32 v10, v11, 4, v10")
    e("v_bfe_u32 v11, v1, 1, 1"); e("v_lshl_add_u32 v10, v11, 3, v10")
    e(f"s_lshl_b32 {s(sT)}, {s(sWAVE)}, 7"); e(f"s_add_u32 {s(sT)}, {s(sT)}, {WST}")
    e(f"v_add_u32 v10, {s(sT)}, v10")
    e("ds_read_b64_tr_b16 v[88:89], v10"); e("ds_read_b64_tr_b16 v[90:91], v10 offset:4096")
    e("ds_read_b64_tr_b16 v[92:93], v10 offset:64"); e("ds_read_b64_tr_b16 v[94:95], v10 offset:4160")
    e(f"s_lshl_b32 {s(sT+1)}, s7, 3"); e(f"s_lshl_b32 {s(sT+2)}, {s(sWAVE)}, 1"); e(f"s_add_u32 {s(sT+1)}, {s(sT+1)}, {s(sT+2)}")
    e(f"s_lshl_b32 {s(sT+1)}, {s(sT+1)}, 5"); e(f"s_add_u32 {s(sT+1)}, {s(sT+1)}, s6")
    e(f"s_lshl_b32 {s(sT+1)}, {s(sT+1)}, 10"); e(f"s_add_u32 {s(sT+1)}, {s(sT+1)}, {WFO}")
    e(f"s_add_u32 {s(sT+2)}, {s(sT+1)}, 32768")
    A.label(lj)
    e("v_lshlrev_b32 v10, 4, v1")
    e("s_waitcnt lgkmcnt(0)")
    e(f"buffer_store_dwordx4 v[88:91], v10, {s(sSRD,4)}, {s(sT+1)} offen sc1")
    e(f"buffer_store_dwordx4 v[92:95], v10, {s(sSRD,4)}, {s(sT+2)} offen sc1")

def pw_multi(items, a2, b2):
    for (d, t, tm) in items:
        if t == 1:
            e(f"v_mov_b32 {v(tm)}, {v(a2)}"); e(f"v_fract_f32 {v(tm+1)}, {v(b2)}")
        else:
            c = f"{float(t)}" if t in (2, 4) else f"{f2u(float(t)):#x}"
            e(f"v_mul_f32 {v(tm)}, {c}, {v(a2)}"); e(f"v_mul_f32 {v(tm+1)}, {c}, {v(b2)}")
    for (d, t, tm) in items:
        e(f"v_exp_f32 {v(tm)}, {v(tm)}")
        if t != 1: e(f"v_fract_f32 {v(tm+1)}, {v(tm+1)}")
    for (d, t, tm) in items:
        e(f"v_cos_f32 {v(d)}, {v(tm+1)}"); e(f"v_sin_f32 {v(d+1)}, {v(tm+1)}")
    for (d, t, tm) in items:
        e(f"v_pk_mul_f32 {v(d,2)}, {v(d,2)}, {v(tm,2)} op_sel_hi:[1,0]")

W1, W4, W16, W64, W512 = 100, 102, 104, 106, 108
CH = {"X1": 112, "X2": 128, "Y1": 144, "Y2": 160}
def kgen_setup():
    for i in range(6): e(f"v_lshlrev_b32 {v(PRM+i)}, 16, {v(PRM+i)}")
    e(f"v_readfirstlane_b32 {s(sDSKV)}, {v(PRM+5)}")
    dt, are = 60, 61
    e(f"v_mul_f32 {v(dt)}, {s(sLOG2E)}, {v(PRM+4)}"); e(f"v_mul_f32 {v(are)}, {s(sLOG2E)}, {v(PRM)}")
    e(f"v_exp_f32 {v(dt)}, {v(dt)}"); e(f"v_exp_f32 {v(are)}, {v(are)}")
    e(f"v_cvt_pk_bf16_f32 {v(dt)}, {v(dt)}, {v(are)}")
    e(f"v_and_b32 {v(are)}, {s(sHI)}, {v(dt)}"); e(f"v_lshlrev_b32 {v(dt)}, 16, {v(dt)}")
    a2, b2 = 62, 63
    e(f"v_mul_f32 {v(a2)}, -{v(are)}, {v(dt)}"); e(f"v_mul_f32 {v(b2)}, {v(PRM+1)}, {v(dt)}")
    e(f"v_mul_f32 {v(a2)}, {s(sLOG2E)}, {v(a2)}"); e(f"v_mul_f32 {v(b2)}, 0.15915494, {v(b2)}")
    pw_multi([(W1, 1, 64), (W4, 4, 66), (W16, 16, 68), (W64, 64, 70), (W512, 512, 72)], a2, b2)
    e(f"v_add_f32 {v(dt)}, {v(dt)}, {v(dt)}")
    e(f"v_mul_f32 {v(CH['X1'])}, {v(PRM+2)}, {v(dt)}"); e(f"v_mul_f32 {v(CH['X1']+1)}, {v(PRM+3)}, {v(dt)}")
    for l in cmul(CH['X2'], CH['X1'], W512, 64): e(l)
    e(f"v_mov_b32 {v(CH['Y1'])}, 1.0"); e(f"v_mov_b32 {v(CH['Y1']+1)}, 0"); e(f"v_mov_b32 {v(CH['Y2'])}, 1.0"); e(f"v_mov_b32 {v(CH['Y2']+1)}, 0")
    e(f"v_lshrrev_b32 v96, 7, v0"); e(f"v_mul_u32_u24 v96, {TABC}, v96")
    e(f"v_and_b32 v97, 127, v0"); e(f"v_mul_u32_u24 v97, {TKP}, v97"); e("v_add_u32 v96, v96, v97")

def kgen_round(chains, rnd, side=None):
    Wof = {"X1": W16, "X2": W64, "Y1": W1, "Y2": W4}
    mbase = {"X1": 0, "X2": 32, "Y1": 64, "Y2": 80}
    tmp = {"X1": 64, "X2": 66, "Y1": 68, "Y2": 70}
    nval = {c: 8 for c in chains}
    if rnd == 3 and "X2" in chains: nval["X2"] = 1
    for i in range(1, 8):
        ls = [cmul(CH[c] + 2*i, CH[c] + 2*(i-1), Wof[c], tmp[c]) for c in chains if i < nval[c]]
        for k in range(2):
            for l in ls: e(l[k])
        if side and i in (1, 3, 5, 7) and len(side): e(side.pop(0))
    P = {c: 72 + 8*k for k, c in enumerate(chains)}
    for c in chains:
        neg = "-" if c[0] == "X" else ""
        for k in range(4):
            i0, i1 = (2*k, 2*k+1) if nval[c] == 8 else (0, 0)
            e(f"v_cvt_pk_bf16_f32 {v(P[c]+k)}, {v(CH[c]+2*i0)}, {v(CH[c]+2*i1)}")
            e(f"v_cvt_pk_bf16_f32 {v(P[c]+4+k)}, {neg}{v(CH[c]+2*i0+1)}, {neg}{v(CH[c]+2*i1+1)}")
        off = (mbase[c] + 8*rnd) * 2
        e(f"ds_write_b128 v96, {v(P[c],4)} offset:{off}")
        e(f"ds_write_b128 v96, {v(P[c]+4,4)} offset:{off + 128*TKP}")
    ls = [cmul(CH[c], CH[c] + 14, Wof[c], tmp[c]) for c in chains if nval[c] == 8 and not ((c[0] == "Y" and rnd == 1) or rnd == 3)]
    for k in range(2):
        for l in ls: e(l[k])

def kgen_mm(gl, fs):
    s1_issue()
    e("s_waitcnt lgkmcnt(0)"); e("s_barrier")
    e(f"s_lshr_b32 {s(sT)}, {s(sWAVE)}, 1"); e(f"s_and_b32 {s(sT+1)}, {s(sWAVE)}, 1")
    e(f"s_mul_i32 {s(sT+2)}, {s(sT)}, {TABC}")
    e(f"s_lshl_b32 {s(sT+3)}, {s(sT+1)}, 5"); e(f"s_add_u32 {s(sT+3)}, {s(sT+3)}, 128"); e(f"s_add_u32 {s(sT+3)}, {s(sT+3)}, {s(sT+2)}")
    e(f"s_lshl_b32 {s(sT+4)}, {s(sT+1)}, 6"); e(f"s_add_u32 {s(sT+4)}, {s(sT+4)}, {s(sT+2)}")
    e("v_lshrrev_b32 v10, 2, v1"); e(f"v_mul_u32_u24 v10, {TKP}, v10"); e("v_and_b32 v11, 3, v1"); e("v_lshl_add_u32 v10, v11, 3, v10")
    e(f"v_add_u32 v11, {s(sT+3)}, v10"); e(f"v_add_u32 v12, {s(sT+4)}, v10")
    YF, XF = 64, 96
    for ks in range(8):
        o = ks * 32 * TKP
        e(f"ds_read_b64_tr_b16 {v(YF+4*ks,2)}, v11 offset:{o}"); e(f"ds_read_b64_tr_b16 {v(YF+4*ks+2,2)}, v11 offset:{o + 16*TKP}")
        for tl in range(2):
            e(f"ds_read_b64_tr_b16 {v(XF+32*tl+4*ks,2)}, v12 offset:{o + 32*tl}"); e(f"ds_read_b64_tr_b16 {v(XF+32*tl+4*ks+2,2)}, v12 offset:{o + 16*TKP + 32*tl}")
    e("v_lshrrev_b32 v13, 7, v0")
    e(f"v_mul_u32_u24 v14, {CTP}, v13"); e(f"v_add_u32 v14, {CT}, v14")
    e(f"v_mul_u32_u24 v15, {KCH}, v13"); e("v_and_b32 v13, 127, v0"); e("v_lshl_add_u32 v15, v13, 4, v15")
    fs()
    for ks in range(8):
        e(f"s_waitcnt lgkmcnt({min(15, 6*(7-ks))})")
        for tl in range(2):
            c_ = "0" if ks == 0 else v(160 + 4*tl, 4)
            e(f"v_mfma_f32_16x16x32_bf16 {v(160+4*tl,4)}, {v(YF+4*ks,4)}, {v(XF+32*tl+4*ks,4)}, {c_}")
    e(f"s_mul_i32 {s(sT+2)}, {s(sT)}, {CTP}"); e(f"s_lshl_b32 {s(sT+3)}, {s(sT+1)}, 10"); e(f"s_add_u32 {s(sT+2)}, {s(sT+2)}, {s(sT+3)}")
    e(f"s_add_u32 {s(sT+2)}, {s(sT+2)}, {CT}")
    e("v_and_b32 v10, 15, v1"); e("v_lshlrev_b32 v10, 5, v10"); e("v_lshrrev_b32 v11, 4, v1"); e("v_lshl_add_u32 v10, v11, 3, v10")
    e(f"v_add_u32 v10, {s(sT+2)}, v10")
    e(f"s_mul_i32 {s(sT+2)}, {s(sT)}, {CTP}"); e(f"s_add_u32 {s(sT+2)}, {s(sT+2)}, {CT + 2048}")
    e(f"v_mov_b32 v11, {s(sT+2)}"); e("v_mov_b32 v12, 0")
    e("ds_write_b32 v11, v12")
    fs()
    G = [96, 112]
    for task in range(2):
        I = IDX + 8 * task
        for k in range(6):
            e(f"v_add_u32_sdwa {v(G[task]+2*k)}, v14, {v(I+k)} dst_sel:DWORD dst_unused:UNUSED_PAD src0_sel:DWORD src1_sel:WORD_0")
            e(f"v_add_u32_sdwa {v(G[task]+2*k+1)}, v14, {v(I+k)} dst_sel:DWORD dst_unused:UNUSED_PAD src0_sel:DWORD src1_sel:WORD_1")
    for tl in range(2):
        e(f"v_cvt_pk_bf16_f32 {v(168+2*tl)}, {v(160+4*tl)}, {v(161+4*tl)}")
        e(f"v_cvt_pk_bf16_f32 {v(169+2*tl)}, {v(162+4*tl)}, {v(163+4*tl)}")
        e(f"ds_write_b64 v10, {v(168+2*tl,2)} offset:{512*tl}")
    e("s_waitcnt lgkmcnt(0)"); e("s_barrier")
    stamp("k_mm")
    s1_validate(1)
    x0t_issue()
    for task in range(2):
        for k in range(12): e(f"ds_read_u16 {v(G[task]+k)}, {v(G[task]+k)}")
    for task in range(2):
        Dd, Dp, Sd, Sp = [(64, 72, 80, 88), (128, 136, 144, 152)][task]
        e(f"s_waitcnt lgkmcnt({12 if task == 0 else 4})")
        for k in range(6): e(f"v_lshl_or_b32 {v(Dd+k)}, {v(G[task]+2*k+1)}, 16, {v(G[task]+2*k)}")
        for k in range(4): e(f"v_mov_b32 {v(Dp+k)}, {v(Dd+k+1)}")
        for k in range(4): e(f"v_alignbit_b32 {v(Sd+k)}, {v(Dd+k+1)}, {v(Dd+k)}, 16")
        for k in range(4): e(f"v_alignbit_b32 {v(Sp+k)}, {v(Dd+k+2)}, {v(Dd+k+1)}, 16")
        for cp_, src in enumerate((Dd, Sd, Dp, Sp)):
            e(f"ds_write_b128 v15, {v(src,4)} offset:{cp_*KCC + task*2048}")
    l0 = lab("zk")
    e(f"s_cmp_lg_u32 {s(sWAVE)}, 0"); e(f"s_cbranch_scc1 {l0}")
    e("v_lshrrev_b32 v10, 2, v1"); e(f"v_mul_u32_u24 v10, {KCC}, v10")
    e("v_and_b32 v11, 3, v1"); e("v_lshl_add_u32 v10, v11, 4, v10"); e("v_add_u32 v10, 4096, v10")
    e("v_mov_b32 v160, 0"); e("v_mov_b32 v161, 0"); e("v_mov_b32 v162, 0"); e("v_mov_b32 v163, 0")
    e(f"s_mov_b32 {s(sT+2)}, -1"); e(f"s_mov_b32 {s(sT+3)}, 0"); e(f"s_mov_b64 exec, {s(sT+2,2)}")
    e("ds_write_b128 v10, v[160:163]")
    e("s_mov_b64 exec, -1")
    A.label(l0)

def s1_issue():
    e("v_lshlrev_b32 v63, 4, v0")
    for i in range(4):
        e(f"s_movk_i32 {s(sT)}, {S1 + 4096*i}")
        e(f"buffer_load_dwordx4 {v(24+4*i,4)}, v63, {s(sSRD,4)}, {s(sT)} offen sc1")
def s1_validate(vm=0):
    lr = lab("s1r"); lg = lab("s1k"); l0 = lab("s1c")
    e(f"s_waitcnt vmcnt({vm})")
    e(f"s_branch {l0}")
    A.label(lr)
    s1_issue()
    e("s_waitcnt vmcnt(0)")
    A.label(l0)
    for i in range(8): e(f"v_xor_b32 {v(160+i)}, {s(sNON)}, {v(24+2*i+1)}")
    e("v_or3_b32 v160, v160, v161, v162"); e("v_or3_b32 v163, v163, v164, v165"); e("v_or3_b32 v160, v160, v166, v167"); e("v_or_b32 v160, v160, v163")
    e("v_cmp_ne_u32 vcc, 0, v160")
    spin_check(lr, lg, bk=1)
def x0t_issue():
    e(f"v_mul_u32_u24 v10, {X0P}, v0"); e(f"s_lshl_b32 {s(sT)}, {s(sCP)}, 5"); e(f"s_add_u32 {s(sT)}, {s(sT)}, {X0T}")
    e(f"buffer_load_dwordx4 v[40:43], v10, {s(sSRD,4)}, {s(sT)} offen sc1")
    e(f"buffer_load_dwordx4 v[44:47], v10, {s(sSRD,4)}, {s(sT)} offen offset:16 sc1")
def b1_issue():
    e("v_and_b32 v20, 15, v0"); e("v_lshlrev_b32 v20, 4, v20")
    e(f"global_load_dword v21, v20, {s(sDBG,2)} sc1")
def b1_check():
    lr = lab("b1r"); lg = lab("b1k"); l0 = lab("b1c")
    e("s_waitcnt vmcnt(0)")
    e(f"s_branch {l0}")
    A.label(lr)
    e(f"global_load_dword v21, v20, {s(sDBG,2)} sc1")
    e("s_waitcnt vmcnt(0)")
    A.label(l0)
    e("v_cmp_gt_u32 vcc, 16, v21")
    spin_check(lr, lg, bk=1)

def gw_loads():
    out = []
    for f in range(48):
        out.append([f"buffer_load_dwordx4 {a(4*f,4)}, v18, {s(sSRD,4)}, {s(sW)} offen offset:{(f%4)*1024} sc1"] + ([f"s_add_u32 {s(sW)}, {s(sW)}, 4096"] if f % 4 == 3 else []))
    return out
def ow_loads():
    out = []
    for f in range(32):
        dst = a(192 + 4*f, 4) if f < 16 else v(192 + 4*(f-16), 4)
        out.append([f"buffer_load_dwordx4 {dst}, v18, {s(sSRD,4)}, {s(sW)} offen offset:{(f%4)*1024} sc1"] + ([f"s_add_u32 {s(sW)}, {s(sW)}, 4096"] if f % 4 == 3 else []))
    return out

vA, vB, vEP, vEU, vEX, vRW, vRR = 164, 165, 166, 167, 168, 169, 170
def conv_setup(layer):
    e(f"s_lshr_b32 s4, {s(sWAVE)}, 1"); e(f"s_and_b32 s5, {s(sWAVE)}, 1")
    e("v_and_b32 v10, 3, v1"); e("v_sub_u32 v10, 3, v10"); e(f"v_mul_u32_u24 v12, {KCC}, v10")
    e("v_bfe_u32 v10, v1, 5, 1"); e("v_lshlrev_b32 v13, 5, v10"); e("v_sub_u32 v12, v12, v13")
    e("v_bfe_u32 v11, v1, 4, 1"); e("v_lshl_add_u32 v12, v11, 4, v12")
    e("v_bfe_u32 v10, v1, 2, 2"); e("v_lshlrev_b32 v10, 3, v10"); e("v_sub_u32 v12, v12, v10")
    e(f"s_mul_i32 {s(sT+2)}, s4, {KCH}"); e(f"s_lshl_b32 {s(sT+3)}, s5, 8"); e(f"s_sub_u32 {s(sT+2)}, {s(sT+2)}, {s(sT+3)}")
    e(f"s_add_u32 {s(sT+2)}, {s(sT+2)}, {KC + 4088 - 3776}")
    e("v_and_b32 v10, 15, v1"); e("v_lshlrev_b32 v14, 5, v10"); e("v_sub_u32 v14, v14, v13"); e("v_lshl_add_u32 v14, v11, 4, v14")
    e(f"s_mul_i32 {s(sT+4)}, s4, {UP}"); e(f"s_sub_u32 {s(sT+4)}, {s(sT+4)}, {s(sT+3)}")
    e(f"s_add_u32 {s(sT+4)}, {s(sT+4)}, {U0 + 512 - 192}")
    e(f"v_add_u32 v16, {s(sT+2)}, v12"); e(f"v_add_u32 v17, {s(sT+4)}, v14")
    e("v_and_b32 v56, 15, v1"); e("v_lshlrev_b32 v56, 5, v56"); e("v_lshrrev_b32 v13, 4, v1"); e("v_lshl_add_u32 v56, v13, 3, v56")
    e(f"s_lshl_b32 {s(sT+2)}, s5, 11"); e(f"v_add_u32 v56, {s(sT+2)}, v56")
    e(f"s_mul_i32 {s(sT+3)}, s4, {UP}"); e(f"s_add_u32 {s(sT+3)}, {s(sT+3)}, {U0+512}"); e(f"v_add_u32 v57, {s(sT+3)}, v56")
    e(f"s_lshl_b32 {s(sT+3)}, s4, 12"); e(f"s_add_u32 {s(sT+3)}, {s(sT+3)}, {X0}"); e(f"v_add_u32 v58, {s(sT+3)}, v56")
    e(f"s_lshl_b32 {s(sT+2)}, {s(sWAVE)}, 12"); e(f"s_add_u32 {s(sT+2)}, {s(sT+2)}, {RED}"); e(f"v_lshl_add_u32 v59, v1, 4, {s(sT+2)}")
    e(f"s_xor_b32 {s(sT+2)}, {s(sWAVE)}, 1"); e(f"s_lshl_b32 {s(sT+2)}, {s(sT+2)}, 12"); e(f"s_add_u32 {s(sT+2)}, {s(sT+2)}, {RED}")
    e(f"v_lshl_add_u32 v60, v1, 4, {s(sT+2)}")
    xo = XT1 if layer == 1 else XT3
    e(f"s_lshl_b32 s6, {s(sCP)}, 1"); e("s_add_u32 s6, s6, s4"); e(f"s_mul_i32 s6, s6, {PITCH}"); e(f"s_add_u32 s6, s6, {xo}")
    e("v_lshlrev_b32 v10, 4, v0"); e(f"v_add_u32 v61, {U0 + 512}, v10"); e(f"v_add_u32 v62, {X0}, v10")
    e("v_lshlrev_b32 v63, 4, v0")
    l0 = lab("zp")
    e(f"s_cmp_lg_u32 {s(sWAVE)}, 1"); e(f"s_cbranch_scc1 {l0}")
    e("v_lshrrev_b32 v11, 5, v1"); e(f"v_mul_u32_u24 v11, {UP}, v11"); e("v_and_b32 v12, 31, v1"); e("v_lshl_add_u32 v11, v12, 4, v11")
    e(f"v_add_u32 v11, {U0}, v11")
    e("v_mov_b32 v12, 0"); e("v_mov_b32 v13, 0"); e("v_mov_b32 v14, 0"); e("v_mov_b32 v15, 0")
    e("ds_write_b128 v11, v[12:15]")
    A.label(l0)
    XX = 40; F = 64
    if layer == 1:
        e("v_lshlrev_b32 v18, 4, v1")
        e(f"s_lshl_b32 {s(sW)}, {s(sJ)}, 2"); e(f"s_add_u32 {s(sW)}, {s(sW)}, {s(sWAVE)}")
        e(f"s_mul_i32 {s(sW)}, {s(sW)}, 49152"); e(f"s_add_u32 {s(sW)}, {s(sW)}, {WFG}")
    else:
        e(f"s_lshl_b32 s7, {s(sCP)}, 7"); e(f"s_add_u32 s7, s7, {X2T}")
        e("v_lshrrev_b32 v19, 2, v0"); e(f"v_mul_u32_u24 v19, {ROP}, v19"); e("v_and_b32 v10, 3, v0"); e("v_lshl_add_u32 v19, v10, 4, v19")

def conv(layer):
    XX = 40; SB = 24; F = 64; UU = 48
    if layer == 2:
        e(f"s_mov_b32 {s(sT)}, {S3}")
        e("v_lshlrev_b32 v10, 4, v0")
        e(f"buffer_load_dwordx4 {v(XX,4)}, v19, {s(sSRD,4)}, s7 offen sc1")
        e(f"buffer_load_dwordx4 {v(XX+4,4)}, v19, {s(sSRD,4)}, s7 offen offset:64 sc1")
        for i in range(4):
            e(f"s_add_u32 {s(sT+2)}, {s(sT)}, {4096*i}")
            e(f"buffer_load_dwordx4 {v(SB+4*i,4)}, v10, {s(sSRD,4)}, {s(sT+2)} offen sc1")
        e("s_waitcnt vmcnt(4)")
        for i in range(8):
            j, hi = i >> 1, i & 1
            for c in range(2):
                if hi: e(f"v_and_b32 {v(F+2*i+c)}, {s(sHI)}, {v(XX+4*c+j)}")
                else: e(f"v_lshlrev_b32 {v(F+2*i+c)}, 16, {v(XX+4*c+j)}")
        e(f"ds_write_b128 v62, {v(XX,4)}"); e(f"ds_write_b128 v62, {v(XX+4,4)} offset:4096")
        e("s_waitcnt vmcnt(0)")
    else:
        b1_issue()
        for i in range(8):
            e(f"v_and_b32 {v(SB+2*i+1)}, {s(sHI)}, {v(SB+2*i)}"); e(f"v_lshlrev_b32 {v(SB+2*i)}, 16, {v(SB+2*i)}")
        for i in range(8): e(f"v_rcp_f32 {v(SB+2*i+1)}, {v(SB+2*i+1)}")
        e("s_waitcnt vmcnt(1)")
        for i in range(8):
            j, hi = i >> 1, i & 1
            for c in range(2):
                if hi: e(f"v_and_b32 {v(F+2*i+c)}, {s(sHI)}, {v(XX+4*c+j)}")
                else: e(f"v_lshlrev_b32 {v(F+2*i+c)}, 16, {v(XX+4*c+j)}")
        e(f"ds_write_b128 v62, {v(XX,4)}"); e(f"ds_write_b128 v62, {v(XX+4,4)} offset:4096")
    stamp(f"c{layer}_ld")
    if layer == 2:
        T = 80
        for k in range(4):
            b = SB + 4*k; t = T + 4*k
            e(f"v_pk_mul_f32 {v(b,2)}, {v(b,2)}, {s(sINV512,2)}"); e(f"v_pk_mul_f32 {v(b+2,2)}, {v(b+2,2)}, {s(sINV512,2)}")
        for k in range(4):
            b = SB + 4*k
            e(f"v_fma_f32 {v(b+1)}, -{v(b)}, {v(b)}, {v(b+1)}"); e(f"v_fma_f32 {v(b+3)}, -{v(b+2)}, {v(b+2)}, {v(b+3)}")
        for k in range(4):
            b = SB + 4*k
            e(f"v_max_f32 {v(b+1)}, 0, {v(b+1)}"); e(f"v_max_f32 {v(b+3)}, 0, {v(b+3)}")
        for i in range(8):
            b = SB + 2*i
            e(f"v_cvt_pk_bf16_f32 {v(T+i)}, {v(b)}, {v(b+1)}")
        for i in range(8):
            b = SB + 2*i
            e(f"v_lshlrev_b32 {v(b)}, 16, {v(T+i)}"); e(f"v_and_b32 {v(b+1)}, {s(sHI)}, {v(T+i)}")
        for i in range(8): e(f"v_add_f32 {v(SB+2*i+1)}, 0x3727c5ac, {v(SB+2*i+1)}")
        for k in range(4): e(f"v_cvt_pk_bf16_f32 {v(T+k)}, {v(SB+4*k+1)}, {v(SB+4*k+3)}")
        for k in range(4):
            e(f"v_lshlrev_b32 {v(SB+4*k+1)}, 16, {v(T+k)}"); e(f"v_and_b32 {v(SB+4*k+3)}, {s(sHI)}, {v(T+k)}")
        for i in range(8): e(f"v_sqrt_f32 {v(SB+2*i+1)}, {v(SB+2*i+1)}")
        for k in range(4): e(f"v_cvt_pk_bf16_f32 {v(T+k)}, {v(SB+4*k+1)}, {v(SB+4*k+3)}")
        for k in range(4):
            e(f"v_lshlrev_b32 {v(SB+4*k+1)}, 16, {v(T+k)}"); e(f"v_and_b32 {v(SB+4*k+3)}, {s(sHI)}, {v(T+k)}")
        for i in range(8): e(f"v_rcp_f32 {v(SB+2*i+1)}, {v(SB+2*i+1)}")
    for i in range(8):
        e(f"v_pk_add_f32 {v(F+2*i,2)}, {v(F+2*i,2)}, {v(SB+2*i,2)} op_sel_hi:[1,0] neg_lo:[0,1] neg_hi:[0,1]")
    for i in range(8): e(f"v_cvt_pk_bf16_f32 {v(80+i)}, {v(F+2*i)}, {v(F+2*i+1)}")
    for i in range(8):
        e(f"v_lshlrev_b32 {v(F+2*i)}, 16, {v(80+i)}"); e(f"v_and_b32 {v(F+2*i+1)}, {s(sHI)}, {v(80+i)}")
    for i in range(8):
        e(f"v_pk_mul_f32 {v(F+2*i,2)}, {v(F+2*i,2)}, {v(SB+2*i,2)} op_sel:[0,1] op_sel_hi:[1,1]")
    for c in range(2):
        for j in range(4): e(f"v_cvt_pk_bf16_f32 {v(UU+4*c+j)}, {v(F+4*j+c)}, {v(F+4*j+2+c)}")
        e(f"ds_write_b128 v61, {v(UU+4*c,4)} offset:{UP*c}")
    trick = gw_loads() if layer == 1 else []
    e("s_waitcnt lgkmcnt(0)"); e("s_barrier")
    if layer == 1: b1_check()
    stamp(f"c{layer}_pro")
    vA, vB = 16, 17
    ACC = 24; SET = [64, 128]
    def loads(tp, st):
        out = []
        seq = []
        for k in range(8):
            seq.append(f"ds_read_b128 {v(SET[st]+32+4*k,4)}, {v(vB)} offset:{512*k + 64*(3 - tp)}")
            o = 64*(3 - tp) + 512*(7 - k)
            seq.append(f"ds_read_b64 {v(SET[st]+4*k,2)}, {v(vA)} offset:{o}")
            seq.append(f"ds_read_b64 {v(SET[st]+4*k+2,2)}, {v(vA)} offset:{o + 8}")
        return seq
    for l in loads(0, 0): e(l)
    ti = 0; nm = 0
    TRK = int(OPTS.get("trk", 4))
    e(f"s_mov_b32 {s(sT+4)}, {s(sDSKV)}"); e(f"s_mov_b32 {s(sT+5)}, {s(sDSKV)}")
    side = []
    for k in range(4):
        side.append(f"ds_read_b64 {v(64+2*k,2)}, v57 offset:{512*k}"); side.append(f"ds_read_b64 {v(72+2*k,2)}, v58 offset:{512*k}")
    side2 = ["s_waitcnt lgkmcnt(0)"]
    for k in range(4):
        for j in range(2):
            side2 += [f"v_lshlrev_b32 {v(96+4*k+2*j)}, 16, {v(64+2*k+j)}", f"v_and_b32 {v(97+4*k+2*j)}, {s(sHI)}, {v(64+2*k+j)}",
                      f"v_lshlrev_b32 {v(112+4*k+2*j)}, 16, {v(72+2*k+j)}", f"v_and_b32 {v(113+4*k+2*j)}, {s(sHI)}, {v(72+2*k+j)}"]
    for k in range(8): side2.append(f"v_pk_fma_f32 {v(96+2*k,2)}, {v(96+2*k,2)}, {s(sT+4,2)}, {v(112+2*k,2)}")
    fills = fill_groups(2, 61, 62) if layer == 2 else []
    hold = [0]
    for tp in range(4):
        st = tp & 1
        nxt = loads(tp + 1, st ^ 1) if tp < 3 else []
        n = 0; nb = 0
        for T in range(8):
            if tp == 0: e(f"s_waitcnt lgkmcnt({min(15, 24 - (3*T+3) + min(n, len(nxt)))})")
            elif T == 0: e("s_waitcnt lgkmcnt(0)")
            for q in range(T + 1):
                c_ = "0" if (tp == 0 and q == 0) else v(ACC+4*T, 4)
                e(f"v_mfma_f32_16x16x32_bf16 {v(ACC+4*T,4)}, {v(SET[st]+4*q,4)}, {v(SET[st]+32+4*(T-q),4)}, {c_}")
                nm += 1; nb += 1
                if not (tp == 0 and T < 3) and n < len(nxt):
                    e(nxt[n]); n += 1
                if tp == 3:
                    if nb <= 8: e(side.pop(0))
                    elif nb > 12:
                        for _ in range(2):
                            if side2: e(side2.pop(0))
                if ti < len(trick) and nm % TRK == 0:
                    for l in trick[ti]: e(l)
                    ti += 1
                elif fills and tp < 3 and nb > 4:
                    if hold[0] > 0: hold[0] -= 1
                    else:
                        g = fills.pop(0); emit_group(g)
                        if any("buffer_store" in l for l in g): hold[0] = 12
        while n < len(nxt): e(nxt[n]); n += 1
    assert not fills
    while side2: e(side2.pop(0))
    stamp(f"c{layer}_mm")
    lp1 = lab("p1"); lj = lab("pj")
    e("s_cmp_eq_u32 s5, 1"); e(f"s_cbranch_scc1 {lp1}")
    e("s_nop 3")
    for k in range(4): e(f"ds_write_b128 v59, {v(ACC+16+4*k,4)} offset:{1024*k}")
    e(f"s_branch {lj}")
    A.label(lp1)
    for k in range(4): e(f"ds_write_b128 v59, {v(ACC+4*k,4)} offset:{1024*k}")
    e("s_nop 3")
    for k in range(8): e(f"v_mov_b64 {v(ACC+2*k,2)}, {v(ACC+16+2*k,2)}")
    A.label(lj)
    for k in range(8):
        e(f"v_pk_add_f32 {v(96+2*k,2)}, {v(96+2*k,2)}, {v(ACC+2*k,2)}")
    e("s_waitcnt lgkmcnt(0)"); e("s_barrier")
    for k in range(4): e(f"ds_read_b128 {v(80+4*k,4)}, v60 offset:{1024*k}")
    e(f"s_waitcnt vmcnt({min(63, ti) if layer == 1 else 0})")
    for k in range(4):
        e(f"s_waitcnt lgkmcnt({3-k})")
        e(f"v_pk_add_f32 {v(96+4*k,2)}, {v(96+4*k,2)}, {v(80+4*k,2)}"); e(f"v_pk_add_f32 {v(98+4*k,2)}, {v(98+4*k,2)}, {v(82+4*k,2)}")
        e(f"v_cvt_pk_bf16_f32 {v(64+2*k)}, {v(96+4*k)}, {v(97+4*k)}"); e(f"v_cvt_pk_bf16_f32 {v(65+2*k)}, {v(98+4*k)}, {v(99+4*k)}")
        e(f"buffer_store_dwordx2 {v(64+2*k,2)}, v56, {s(sSRD,4)}, s6 offen offset:{512*k} sc1")
    return trick[ti:]

NCSK, NCSV, NCSQ = 2, 4, 6
XRES = 184
def ones_regs(r):
    for i in range(4): e(f"v_mov_b32 {v(r+i)}, 0x3f803f80")
def colsums():
    ON = 152
    for ks in range(16):
        c0 = lambda r: "0" if ks == 0 else v(r, 4)
        e(f"v_mfma_f32_16x16x32_bf16 v[28:31], {v(ON,4)}, {a((0*16+ks)*4,4)}, {c0(28)}")
        e(f"v_mfma_f32_16x16x32_bf16 v[32:35], {v(ON,4)}, {a((1*16+ks)*4,4)}, {c0(32)}")
        e(f"v_mfma_f32_16x16x32_bf16 v[36:39], {a((2*16+ks)*4,4)}, {v(ON,4)}, {c0(36)}")
    e(f"v_sub_f32 {v(NCSK)}, 0, v28"); e(f"v_sub_f32 {v(NCSK+1)}, 0, v28")
    e(f"v_sub_f32 {v(NCSV)}, 0, v32"); e(f"v_sub_f32 {v(NCSV+1)}, 0, v32")
    for i in range(4): e(f"v_sub_f32 {v(NCSQ+i)}, 0, {v(36+i)}")

TA = 12
gXE, gXO, gSW, gS4, gQA, gPQ, gKV = 156, 157, 158, 160, 164, 168, 169
def g_setup(layer):
    xt = XT1 if layer == 1 else XT3
    e("v_lshrrev_b32 v10, 3, v1"); e(f"v_mul_u32_u24 v10, {PITCH}, v10")
    e("v_bfe_u32 v11, v1, 4, 2"); e("v_lshlrev_b32 v11, 1, v11"); e("v_and_b32 v16, 7, v1"); e("v_xor_b32 v11, v11, v16")
    e("v_lshl_add_u32 v10, v11, 4, v10")
    e(f"s_lshl_b32 {s(sT)}, {s(sRS)}, 7"); e(f"v_add_u32 v19, {s(sT)}, v10")
    e(f"s_mul_i32 s4, {s(sWAVE)}, {32*PITCH}"); e(f"s_add_u32 s4, s4, {xt}")
    e(f"s_lshl_b32 s5, {s(sWAVE)}, 12"); e(f"s_add_u32 s5, s5, {AT}")
    e("v_lshrrev_b32 v10, 2, v1"); e("v_lshlrev_b32 v10, 7, v10"); e("v_and_b32 v11, 3, v1"); e("v_lshl_add_u32 v10, v11, 3, v10")
    e(f"v_add_u32 v10, {AT}, v10"); e("v_bfe_u32 v11, v1, 3, 2")
    for j in range(4):
        e(f"s_add_u32 {s(sT)}, {s(sWAVE)}, {j}"); e(f"s_and_b32 {s(sT)}, {s(sT)}, 3"); e(f"s_lshl_b32 {s(sM+j)}, {s(sT)}, 6")
        e(f"v_xor_b32 v16, {s(sT)}, v11"); e(f"v_lshl_add_u32 {v(TA+j)}, v16, 5, v10")
    ones_regs(152)
    e("v_lshrrev_b32 v11, 5, v1"); e("v_lshlrev_b32 v11, 4, v11"); e("v_bfe_u32 v16, v1, 2, 2"); e("v_add_u32 v11, v11, v16")
    e(f"s_lshl_b32 {s(sT)}, {s(sJO)}, 7"); e(f"s_lshl_b32 {s(sT+1)}, {s(sWAVE)}, 5"); e(f"s_add_u32 {s(sT)}, {s(sT)}, {s(sT+1)}")
    e(f"v_add_u32 v11, {s(sT)}, v11"); e("v_lshlrev_b32 v11, 7, v11")
    e("v_and_b32 v16, 3, v1"); e("v_lshl_add_u32 v11, v16, 3, v11"); e(f"v_add_u32 v11, {AT}, v11")
    e(f"s_and_b32 {s(sT)}, {s(sJ)}, 1"); e(f"s_lshl_b32 {s(sT)}, {s(sT)}, 1")
    e("v_bfe_u32 v16, v1, 4, 1"); e(f"v_add_u32 v16, {s(sT)}, v16"); e("v_bfe_u32 v17, v1, 3, 1"); e("v_xor_b32 v16, v16, v17")
    e(f"v_lshl_add_u32 {v(gXE)}, v16, 5, v11"); e("v_xor_b32 v16, 2, v16"); e(f"v_lshl_add_u32 {v(gXO)}, v16, 5, v11")
    e("v_and_b32 v10, 15, v1"); e("v_lshlrev_b32 v10, 2, v10"); e(f"v_add_u32 v11, {ST}, v10")
    e(f"s_lshl_b32 {s(sT)}, {s(sWAVE)}, 6"); e(f"v_add_u32 {v(gSW)}, {s(sT)}, v11")
    e("v_lshrrev_b32 v10, 4, v1"); e("v_lshlrev_b32 v10, 4, v10"); e(f"v_add_u32 v10, {ST}, v10")
    for j in range(4):
        e(f"v_add_u32 {v(gS4+j)}, {s(sM+j)}, v10"); e(f"v_add_u32 {v(gQA+j)}, {s(sM+j)}, v11")
    e("v_and_b32 v10, 15, v1"); e("v_lshlrev_b32 v10, 4, v10"); e("v_bfe_u32 v11, v1, 4, 1"); e("v_lshl_add_u32 v10, v11, 3, v10")
    e("v_lshrrev_b32 v11, 5, v1"); e(f"v_lshl_add_u32 {v(gPQ)}, v11, 10, v10")
    e("v_lshrrev_b32 v10, 4, v1"); e("v_lshlrev_b32 v10, 8, v10"); e("v_and_b32 v11, 15, v1"); e(f"v_lshl_add_u32 {v(gKV)}, v11, 2, v10")
    e(f"v_lshlrev_b32 v183, 2, v1")
    kvp_addr(KVP1 if layer == 1 else KVP2, 6)
    pq_addr(PQ1 if layer == 1 else PQ2, 7)
    e(f"s_lshl_b32 {s(sT)}, {s(sJ)}, 5"); e(f"s_mul_i32 {s(sT)}, {s(sT)}, {KVW}")
    e(f"s_lshr_b32 {s(sT+1)}, {s(sRS)}, 3"); e(f"s_mul_i32 {s(sT+1)}, {s(sT+1)}, {KVH}"); e(f"s_add_u32 {s(sT)}, {s(sT)}, {s(sT+1)}")
    e(f"s_add_u32 s3, {s(sT)}, {KVP1 if layer == 1 else KVP2}")
    e(f"s_and_b32 {s(sT+2)}, {s(sRS)}, 7")
    e(f"s_cmp_eq_u32 {s(sWAVE)}, 2")
    e(f"s_cselect_b32 {s(sT+3)}, 3, 7"); e(f"s_cselect_b32 {s(sT+4)}, 1, 0")
    e(f"s_mov_b32 s42, 0x0f0f0f0f"); e("s_cselect_b32 s42, s42, -1"); e("s_mov_b32 s43, s42")
    e(f"s_lshl_b32 {s(sT+5)}, {s(sT+2)}, 7"); e(f"s_cmp_eq_u32 {s(sWAVE)}, 2"); e(f"s_cselect_b32 {s(sT+5)}, 1024, {s(sT+5)}")
    e(f"s_lshl_b32 {s(sT+6)}, {s(sT+2)}, 6"); e(f"s_cselect_b32 {s(sT+6)}, 512, {s(sT+6)}") if False else None
    e("v_lshrrev_b32 v10, 3, v1"); e(f"v_mul_u32_u24 v10, {KVW}, v10"); e(f"v_and_b32 v11, {s(sT+3)}, v1"); e("v_lshl_add_u32 v11, v11, 4, v10")
    e(f"v_add_u32 v170, {s(sT+5)}, v11")
    e(f"s_lshl_b32 {s(sT+6)}, {s(sT+2)}, 6"); e(f"s_cmp_eq_u32 {s(sWAVE)}, 2"); e(f"s_cselect_b32 {s(sT+6)}, 512, {s(sT+6)}")
    e("v_lshrrev_b32 v10, 3, v1"); e(f"v_mul_u32_u24 v10, {FRP}, v10"); e("v_and_b32 v11, 7, v1"); e("v_lshl_add_u32 v10, v11, 3, v10")
    e(f"v_add_u32 v171, {s(sT+6)}, v10")
    f_addr(F1 if layer == 1 else F2, 40)
    e(f"s_cmp_eq_u32 {s(sT+2)}, 0"); e(f"s_cselect_b32 {s(sT+3)}, 2, 3"); e(f"s_cmp_ge_u32 {s(sWAVE)}, {s(sT+3)}"); e("s_cselect_b32 s41, 1, 0")
    e("v_and_b32 v10, 3, v1")
    e(f"v_cmp_eq_u32 {s(sM+4,2)}, 1, v10"); e(f"v_cmp_eq_u32 {s(sM+6,2)}, 2, v10"); e(f"v_cmp_eq_u32 s[2:3], 3, v10") if False else None
    if layer == 1:
        e("v_lshlrev_b32 v18, 4, v1")
        e(f"s_lshl_b32 {s(sW)}, {s(sJO)}, 2"); e(f"s_add_u32 {s(sW)}, {s(sW)}, {s(sWAVE)}")
        e(f"s_lshl_b32 {s(sW)}, {s(sW)}, 15"); e(f"s_add_u32 {s(sW)}, {s(sW)}, {WFO}")

def gphase(layer):
    kvp = KVP1 if layer == 1 else KVP2
    ff = F1 if layer == 1 else F2
    def dma(c, i):
        return [f"s_add_u32 {s(sT)}, s4, {(128*c + 8*i)*PITCH}", f"s_add_u32 m0, s5, {c*16384 + i*1024}",
                f"buffer_load_dwordx4 v19, {s(sSRD,4)}, {s(sT)} offen sc1 lds"]
    e(f"v_lshl_add_u32 v21, v1, 4, s5")
    def check_reads(c): return [f"ds_read_b32 {v(56+i)}, v21 offset:{c*16384 + i*1024}" for i in range(4)]
    def validate(c, first=False):
        lr = lab("gv"); lg = lab("gvk"); lx = lab("gvx")
        A.label(lr)
        for l in check_reads(c): e(l)
        e("s_waitcnt lgkmcnt(0)")
        maxtree([56, 57, 58, 59], 56)
        e("v_cmp_eq_u32 vcc, -1, v56")
        e(f"s_cbranch_vccz {lg}")
        e(f"s_sub_u32 {s(sSPIN)}, {s(sSPIN)}, 1"); e(f"s_cbranch_scc1 {lx}")
        if OPTS.get("cntv"): e(f"s_add_u32 s{96 if c == 0 else 98}, s{96 if c == 0 else 98}, 1")
        for i in range(4):
            for l in dma(c, i): e(l)
        e("s_waitcnt vmcnt(0)")
        e(f"s_branch {lr}")
        A.label(lx); e(f"s_mov_b32 {s(sSPIN)}, 0")
        A.label(lg)
    e("s_barrier")
    if int(OPTS.get("gpre", 0)): e(f"s_sleep {OPTS.get('gpre')}")
    for c in range(3):
        for i in range(4):
            for l in dma(c, i): e(l)
    late = [dma(3, i) for i in range(4)]
    XF = [64, 80]
    AK, AV, AQ, GR, RS_, ON = 96, 112, 128, 144, 148, 152
    trick = ow_loads() if layer == 1 else []
    if layer == 1:
        for i in range(4): e(f"v_mov_b32 {v(176+i)}, -1")
        e(f"s_lshr_b32 s62, {s(sWAVE)}, 1"); e(f"s_lshl_b32 s61, {s(sCP)}, 1"); e("s_add_u32 s62, s62, s61"); e(f"s_mul_i32 s62, s62, {PITCH}")
        e(f"s_and_b32 s61, {s(sWAVE)}, 1"); e("s_lshl_b32 s61, s61, 11"); e("s_add_u32 s62, s62, s61"); e(f"s_add_u32 s62, s62, {XT3}")
        trick.insert(6, [f"buffer_store_dwordx4 v[176:179], v18, {s(sSRD,4)}, s62 offen sc1"])
        trick.insert(12, [f"buffer_store_dwordx4 v[176:179], v18, {s(sSRD,4)}, s62 offen offset:1024 sc1"])
    def reads(ks, base=None):
        b = XF[ks & 1] if base is None else base
        out = []
        for j in range(4):
            out.append(f"ds_read_b64_tr_b16 {v(b+4*j,2)}, {v(TA+j)} offset:{ks*4096}")
            out.append(f"ds_read_b64_tr_b16 {v(b+4*j+2,2)}, {v(TA+j)} offset:{ks*4096+2048}")
        return out
    stamp(f"g{layer}_iss")
    e("s_waitcnt vmcnt(8)")
    validate(0)
    e("s_barrier")
    stamp(f"g{layer}_ld0")
    for l in reads(0): e(l)
    st_ = {"ti": 0, "nw": 0, "nm": 0}
    TRG = int(OPTS.get("trg", 5))
    def trickle(ok):
        st_["nm"] += 1
        if ok and st_["ti"] < len(trick) and st_["nm"] % TRG == 0:
            for l in trick[st_["ti"]]: e(l)
            st_["ti"] += 1; st_["nw"] += 1
    for ks in range(16):
        nxt = []
        if ks < 15:
            if (ks + 1) % 4 == 0: e("s_barrier")
            nxt = reads(ks + 1)
        x = XF[ks & 1]
        if ks in (2, 3, 4, 6, 7, 8, 10, 11, 12): stamp(f"g{layer}_k{ks}")
        e("s_waitcnt lgkmcnt(0)")
        eval_c = (ks + 2) // 4 if (ks < 14 and (ks + 2) % 4 == 0) else None
        if ks < 13 and (ks + 3) % 4 == 0:
            c = (ks + 3) // 4
            issued3 = 4 - len(late)
            y = {1: 4 + issued3, 2: issued3, 3: 0}[c] + st_["nw"]
            e(f"s_waitcnt vmcnt({min(63, y)})")
            nxt = nxt + check_reads(c)
        z = lambda r: "0" if ks == 0 else v(r, 4)
        mf = []
        for j in range(4):
            mf.append(f"v_mfma_f32_16x16x32_bf16 {v(AK+4*j,4)}, {v(x+4*j,4)}, {a((0*16+ks)*4,4)}, {z(AK+4*j)}")
            mf.append(f"v_mfma_f32_16x16x32_bf16 {v(AV+4*j,4)}, {v(x+4*j,4)}, {a((1*16+ks)*4,4)}, {z(AV+4*j)}")
        mf.insert(1, f"v_mfma_f32_16x16x32_bf16 {v(GR,4)}, {v(x,4)}, {v(x,4)}, {z(GR)}")
        mf.insert(3, f"v_mfma_f32_16x16x32_bf16 {v(RS_,4)}, {v(ON,4)}, {v(x,4)}, {z(RS_)}")
        pend = list(nxt)
        for m_i, m_ in enumerate(mf):
            e(m_)
            if pend: e(pend.pop(0))
            if eval_c is not None:
                if m_i == 2: e("v_max3_u32 v56, v56, v57, v58")
                if m_i == 4: e("v_max_u32 v56, v56, v59")
                if m_i == 6: e("v_cmp_eq_u32 vcc, -1, v56")
            if m_i == len(mf) - 1:
                while pend: e(pend.pop(0))
                if eval_c is not None:
                    lok = lab("gok")
                    e(f"s_cbranch_vccz {lok}")
                    if OPTS.get("cntv"): e(f"s_add_u32 s97, s97, {1 << (8*(eval_c-1))}")
                    for i in range(4):
                        for l in dma(eval_c, i): e(l)
                    e("s_waitcnt vmcnt(0)")
                    validate(eval_c)
                    A.label(lok)
            if late and m_i in (1, 4, 7):
                for l in late.pop(0): e(l)
            trickle(ks >= 4)
    stamp(f"g{layer}_mm")
    for jj in range(4):
        e(f"ds_read_b64_tr_b16 {v(XRES+2*jj,2)}, {v(gXE + (jj & 1))} offset:{512*jj}")
    e("v_and_b32 v10, 3, v1")
    e(f"v_cmp_eq_u32 {s(sM+4,2)}, 1, v10"); e(f"v_cmp_eq_u32 {s(sM+6,2)}, 2, v10"); e("v_cmp_eq_u32 vcc, 3, v10")
    e(f"v_cndmask_b32 v11, {v(GR)}, {v(GR+1)}, {s(sM+4,2)}")
    e(f"v_cndmask_b32 v11, v11, {v(GR+2)}, {s(sM+6,2)}")
    e(f"v_cndmask_b32 v11, v11, {v(GR+3)}, vcc")
    stats_final(RS_, 11, 16, 17, 20)
    e("v_mul_f32 v16, v16, v17")
    e(f"s_mov_b32 {s(sT+2)}, 0x00f0000f"); e(f"s_mov_b32 {s(sT+3)}, 0xf0000f00")
    e(f"s_mov_b64 exec, {s(sT+2,2)}")
    e(f"ds_write_b32 {v(gSW)}, v17"); e(f"ds_write_b32 {v(gSW)}, v16 offset:256")
    e("s_mov_b64 exec, -1")
    R4, M4, RQ, MQ = 24, 40, 56, 176
    e("s_waitcnt lgkmcnt(0)"); e("s_barrier")
    for j in range(4):
        e(f"ds_read_b128 {v(R4+4*j,4)}, {v(gS4+j)}"); e(f"ds_read_b128 {v(M4+4*j,4)}, {v(gS4+j)} offset:256")
    for j in range(4):
        e(f"ds_read_b32 {v(RQ+2*j)}, {v(gQA+j)}"); e(f"ds_read_b32 {v(MQ+2*j)}, {v(gQA+j)} offset:256")
    stamp(f"g{layer}_st")
    PK, VV = 72, 80
    def phi2(items):
        for (rp, acc, mp, ncs, dst, T, bro) in items:
            e(f"v_pk_fma_f32 {v(T,2)}, {v(mp,2)}, {v(ncs,2)}, {s(sEPS6,2)}" + (" op_sel_hi:[0,1,1]" if bro else ""))
        for (rp, acc, mp, ncs, dst, T, bro) in items:
            e(f"v_pk_fma_f32 {v(T,2)}, {v(rp,2)}, {v(acc,2)}, {v(T,2)}" + (" op_sel_hi:[0,1,1]" if bro else ""))
        for (rp, acc, mp, ncs, dst, T, bro) in items: e(f"v_pk_mul_f32 {v(T+2,2)}, {v(T,2)}, {s(sLOG2E,2)}")
        for (rp, acc, mp, ncs, dst, T, bro) in items:
            e(f"v_exp_f32 {v(T+2)}, {v(T+2)} clamp"); e(f"v_exp_f32 {v(T+3)}, {v(T+3)} clamp")
        for (rp, acc, mp, ncs, dst, T, bro) in items:
            e(f"v_max_f32 {v(T)}, {s(sEPS6)}, {v(T)}"); e(f"v_max_f32 {v(T+1)}, {s(sEPS6)}, {v(T+1)}")
        for (rp, acc, mp, ncs, dst, T, bro) in items: e(f"v_pk_add_f32 {v(T,2)}, {v(T,2)}, {v(T+2,2)}")
        for (rp, acc, mp, ncs, dst, T, bro) in items: e(f"v_cvt_pk_bf16_f32 {v(dst)}, {v(T)}, {v(T+1)}")
    for j in range(4):
        e(f"s_waitcnt lgkmcnt({min(15, 8 + 2*(3-j))})")
        items = [(R4+4*j+2*hp, AK+4*j+2*hp, M4+4*j+2*hp, NCSK, PK+2*j+hp, 88 + 4*hp, False) for hp in range(2)]
        for hp in range(2):
            T = 104 + 2*hp if False else 172 + 2*hp
            e(f"v_pk_mul_f32 {v(T,2)}, {v(M4+4*j+2*hp,2)}, {v(NCSV,2)}")
        for hp in range(2):
            T = 172 + 2*hp
            e(f"v_pk_fma_f32 {v(T,2)}, {v(R4+4*j+2*hp,2)}, {v(AV+4*j+2*hp,2)}, {v(T,2)}")
        phi2(items)
        for hp in range(2):
            T = 172 + 2*hp
            e(f"v_cvt_pk_bf16_f32 {v(VV+2*j+hp)}, {v(T)}, {v(T+1)}")
        if j == 1:
            e(f"v_mfma_f32_16x16x32_bf16 {v(GR,4)}, {v(VV,4)}, {v(PK,4)}, 0")
            e(f"v_mfma_f32_16x16x32_bf16 {v(RS_,4)}, {v(ON,4)}, {v(PK,4)}, 0")
    e(f"v_mfma_f32_16x16x32_bf16 {v(GR,4)}, {v(VV+4,4)}, {v(PK+4,4)}, {v(GR,4)}")
    e(f"v_mfma_f32_16x16x32_bf16 {v(RS_,4)}, {v(ON,4)}, {v(PK+4,4)}, {v(RS_,4)}")
    PQR = 96
    e("s_waitcnt lgkmcnt(0)")
    for i in range(4):
        e(f"buffer_store_dword {v(GR+i)}, {v(gKV)}, {s(sSRD,4)}, s6 offen offset:{64*i} sc1")
    e("s_mov_b64 exec, 0xffff")
    e(f"buffer_store_dword {v(RS_)}, v183, {s(sSRD,4)}, s6 offen offset:1024 sc1")
    e("s_mov_b64 exec, -1")
    stamp(f"g{layer}_kv")
    def red_loads():
        for i in range(4):
            e(f"s_add_u32 {s(sT+4)}, s3, {8*i*KVW}")
            e(f"buffer_load_dwordx4 {v(24+4*i,4)}, v170, {s(sSRD,4)}, {s(sT+4)} offen sc1")
    RLK = int(OPTS.get("rlk", 11))
    QS = [64, 80, 112]
    for l in reads(0, QS[0]): e(l)
    for l in reads(1, QS[1]): e(l)
    for ks in range(16):
        nxt = reads(ks + 2, QS[(ks + 2) % 3]) if ks < 14 else []
        x = QS[ks % 3]
        e(f"s_waitcnt lgkmcnt({8 if ks < 15 else 0})")
        z = lambda r: "0" if ks == 0 else v(r, 4)
        if ks == RLK:
            lsk = lab("rl")
            e("s_cmp_eq_u32 s41, 0"); e(f"s_cbranch_scc1 {lsk}")
            red_loads()
            A.label(lsk)
        for j in range(4):
            e(f"v_mfma_f32_16x16x32_bf16 {v(AQ+4*j,4)}, {a((2*16+ks)*4,4)}, {v(x+4*j,4)}, {z(AQ+4*j)}")
            for l in nxt[2*j:2*j+2]: e(l)
            if j % 2 == 0 and st_["ti"] < len(trick):
                for l in trick[st_["ti"]]: e(l)
                st_["ti"] += 1
    stamp(f"g{layer}_q")
    for j in range(0, 4, 2):
        phi2([(RQ+2*(j+jj), AQ+4*(j+jj)+2*hp, MQ+2*(j+jj), NCSQ+2*hp, PQR+2*(j+jj)+hp, 64 + 8*jj + 4*hp, True) for jj in range(2) for hp in range(2)])
    for j in range(4):
        e(f"s_lshl_b32 {s(sT+2)}, {s(sM+j)}, 2"); e(f"s_add_u32 {s(sT+2)}, {s(sT+2)}, s7")
        e(f"buffer_store_dwordx2 {v(PQR+2*j,2)}, {v(gPQ)}, {s(sSRD,4)}, {s(sT+2)} offen sc1")
    for ins in trick[st_["ti"]:]:
        for l in ins: e(l)
    lred = lab("red")
    e("s_cmp_eq_u32 s41, 0"); e(f"s_cbranch_scc1 {lred}")
    lr = lab("rp"); lg = lab("rg"); l0 = lab("r0")
    e(f"s_waitcnt vmcnt({4 + len(trick[st_['ti']:])})")
    e(f"s_branch {l0}")
    A.label(lr)
    red_loads()
    e("s_waitcnt vmcnt(0)")
    A.label(l0)
    maxtree([24, 28, 32, 36], 56)
    e("v_cmp_eq_u32 vcc, -1, v56")
    spin_check(lr, lg)
    stamp(f"r{layer}_ok")
    e("v_pk_add_f32 v[24:25], v[24:25], v[28:29]"); e("v_pk_add_f32 v[26:27], v[26:27], v[30:31]")
    e("v_pk_add_f32 v[32:33], v[32:33], v[36:37]"); e("v_pk_add_f32 v[34:35], v[34:35], v[38:39]")
    e("v_pk_add_f32 v[24:25], v[24:25], v[32:33]"); e("v_pk_add_f32 v[26:27], v[26:27], v[34:35]")
    regs = [24, 25, 26, 27]
    for r in regs: e(f"v_add_f32_dpp {v(r)}, {v(r)}, {v(r)} row_ror:8 row_mask:0xf bank_mask:0xf")
    for r in regs: e(f"v_mov_b32 {v(r+4)}, {v(r)}")
    for r in regs: e(f"v_permlane16_swap_b32 {v(r)}, {v(r+4)}")
    for r in regs: e(f"v_add_f32 {v(r)}, {v(r)}, {v(r+4)}")
    for r in regs: e(f"v_mov_b32 {v(r+4)}, {v(r)}")
    for r in regs: e(f"v_permlane32_swap_b32 {v(r)}, {v(r+4)}")
    for r in regs: e(f"v_add_f32 {v(r)}, {v(r)}, {v(r+4)}")
    e("v_cvt_pk_bf16_f32 v28, v24, v25"); e("v_cvt_pk_bf16_f32 v29, v26, v27")
    e("s_mov_b64 exec, s[42:43]")
    e(f"buffer_store_dwordx2 v[28:29], v171, {s(sSRD,4)}, s40 offen sc1")
    e("s_mov_b64 exec, -1")
    A.label(lred)

def ophase(layer):
    pq = PQ1 if layer == 1 else PQ2
    ff = F1 if layer == 1 else F2
    KF, PQF = 24, 56
    e("v_and_b32 v10, 31, v1"); e("v_min_u32 v10, 16, v10")
    e("v_lshlrev_b32 v10, 5, v10"); e("v_lshrrev_b32 v11, 5, v1"); e("v_lshl_add_u32 v10, v11, 4, v10")
    e(f"s_lshl_b32 {s(sT)}, {s(sWAVE)}, 3"); e(f"s_mul_i32 s4, {s(sT)}, {FP}"); e(f"s_add_u32 s4, s4, {ff}")
    e(f"s_mul_i32 {s(sT+1)}, {s(sXCD)}, {FRP}"); e(f"s_add_u32 s4, s4, {s(sT+1)}")
    e("v_and_b32 v11, 31, v1"); e("v_lshlrev_b32 v11, 4, v11"); e("v_lshrrev_b32 v12, 5, v1"); e("v_lshl_add_u32 v11, v12, 10, v11")
    e(f"s_mul_i32 s5, {s(sT)}, {HP}"); e(f"s_add_u32 s5, s5, {pq}")
    e(f"s_lshl_b32 {s(sT+3)}, {s(sRS)}, 11"); e(f"s_add_u32 s5, s5, {s(sT+3)}")
    e(f"s_and_b32 {s(sT+3)}, {s(sRO)}, 1"); e(f"s_lshl_b32 {s(sT+3)}, {s(sT+3)}, 9"); e(f"s_add_u32 s5, s5, {s(sT+3)}")
    e(f"s_mul_i32 s3, {s(sWAVE)}, 5120"); e(f"s_add_u32 s3, s3, {AT + 32768}")
    e("v_add_u32 v10, s3, v10"); e("v_lshlrev_b32 v19, 4, v1")
    e(f"s_lshl_b32 {s(sT)}, {s(sWAVE)}, 13"); e(f"s_add_u32 {s(sT)}, {s(sT)}, {OT}")
    e(f"v_lshl_add_u32 v12, v1, 4, {s(sT)}")
    e(f"v_lshlrev_b32 v13, 4, v1"); e(f"v_add_u32 v13, {OT}, v13")
    if layer == 1:
        e("v_and_b32 v14, 31, v1"); e(f"v_mul_u32_u24 v14, {TBP}, v14"); e("v_lshrrev_b32 v15, 5, v1"); e("v_lshl_add_u32 v14, v15, 5, v14")
        e(f"s_mul_i32 {s(sT+4)}, {s(sWAVE)}, {32*TBP}"); e(f"s_add_u32 {s(sT+4)}, {s(sT+4)}, {TB}"); e(f"v_add_u32 v14, {s(sT+4)}, v14")
        e("v_lshrrev_b32 v15, 4, v1"); e("v_lshlrev_b32 v15, 3, v15"); e("v_bfe_u32 v16, v1, 2, 2"); e("v_add_u32 v15, v15, v16")
        e(f"v_mul_u32_u24 v15, {TBP}, v15"); e("v_and_b32 v16, 3, v1"); e("v_lshl_add_u32 v15, v16, 3, v15"); e(f"v_add_u32 v15, {s(sT+4)}, v15")
        e("v_and_b32 v16, 15, v1"); e(f"v_lshlrev_b32 v16, 6, v16"); e("v_lshrrev_b32 v17, 4, v1"); e("v_lshl_add_u32 v16, v17, 4, v16")
        e(f"s_lshl_b32 s6, {s(sJO)}, 7"); e(f"s_lshl_b32 {s(sT+1)}, {s(sWAVE)}, 5"); e(f"s_add_u32 s6, s6, {s(sT+1)}")
        e(f"s_lshl_b32 s6, s6, 6"); e(f"s_mul_i32 {s(sT+1)}, {s(sRO)}, {ROP}"); e(f"s_add_u32 s6, s6, {s(sT+1)}")
        e(f"s_add_u32 s6, s6, {X2T}")
        e("v_bfe_u32 v17, v1, 1, 2"); e("v_lshlrev_b32 v17, 12, v17"); e("v_bfe_u32 v18, v1, 3, 2"); e("v_lshl_add_u32 v17, v18, 4, v17")
        e("v_and_b32 v18, 1, v1"); e("v_lshl_add_u32 v17, v18, 3, v17"); e("v_lshrrev_b32 v18, 5, v1"); e("v_lshl_add_u32 v17, v18, 2, v17")
        e(f"s_lshl_b32 s7, {s(sRO)}, 6"); e(f"s_add_u32 s7, s7, {S3}")
    else:
        e("v_and_b32 v14, 31, v1"); e("v_lshlrev_b32 v14, 10, v14"); e("v_lshrrev_b32 v15, 5, v1"); e("v_lshl_add_u32 v14, v15, 5, v14")
        e(f"s_lshl_b32 {s(sT)}, {s(sRO)}, 15"); e(f"s_lshl_b32 {s(sT+1)}, {s(sJO)}, 8"); e(f"s_add_u32 {s(sT)}, {s(sT)}, {s(sT+1)}")
        e(f"s_lshl_b32 {s(sT+1)}, {s(sWAVE)}, 6"); e(f"s_add_u32 {s(sT)}, {s(sT)}, {s(sT+1)}")
        e(f"v_add_u32 v14, {s(sT)}, v14")
    XF = 104
    def pq_loads():
        for h in range(8):
            e(f"s_add_u32 {s(sT+3)}, s5, {h*HP}")
            e(f"buffer_load_dwordx4 {v(PQF+4*h,4)}, v11, {s(sSRD,4)}, {s(sT+3)} offen sc1")
    e("s_barrier")
    stamp(f"o{layer}_gate")
    if STAMPS and f"o{layer}_cnt" in STSET: e("s_mov_b32 s101, 0")
    if STAMPS and f"o{layer}_st0" in STSET:
        e("s_waitcnt vmcnt(0)"); stamp(f"o{layer}_st0")
    pq_loads()
    if STAMPS and f"o{layer}_pq" in STSET:
        stamp(f"o{layer}_pqi"); e("s_waitcnt vmcnt(0)"); stamp(f"o{layer}_pq")
    if int(OPTS.get("osl", 0)): e(f"s_sleep {OPTS.get('osl')}")
    lr = lab("of"); lg = lab("ofk")
    A.label(lr)
    for i in range(5):
        e(f"s_add_u32 {s(sT+3)}, s4, {1024*i}"); e(f"s_add_u32 m0, s3, {1024*i}")
        e(f"buffer_load_dwordx4 v19, {s(sSRD,4)}, {s(sT+3)} offen sc1 lds")
    e("s_waitcnt vmcnt(0)")
    for h in range(8): e(f"ds_read_b128 {v(KF+4*h,4)}, v10 offset:{h*FP}")
    e("s_waitcnt lgkmcnt(0)")
    if STAMPS and f"o{layer}_cnt" in STSET: e("s_add_u32 s101, s101, 1")
    maxtree([KF+4*h+o for h in range(8) for o in (0, 2)], 18)
    e("v_cmp_eq_u32 vcc, -1, v18")
    spin_check(lr, lg)
    stamp(f"o{layer}_fok")
    if STAMPS and f"o{layer}_cnt" in STSET:
        i = len(stnames); stnames.append(f"o{layer}_cnt"); e(f"s_mov_b32 s{84+i}, s101")
    lr = lab("oq"); lg = lab("oqk")
    A.label(lr)
    maxtree([PQF+4*h+o for h in range(8) for o in (0, 2)], 18)
    e("v_cmp_eq_u32 vcc, -1, v18")
    e(f"s_cbranch_vccz {lg}")
    e(f"s_sub_u32 {s(sSPIN)}, {s(sSPIN)}, 1"); e(f"s_cbranch_scc1 {lg}_x")
    pq_loads()
    e("s_waitcnt vmcnt(0)")
    e(f"s_branch {lr}")
    A.label(lg + "_x"); e(f"s_mov_b32 {s(sSPIN)}, 0")
    A.label(lg)
    stamp(f"o{layer}_ld")
    DB = [88, 104, 120, 136, 152, 168, 24, 56]
    def m1(h): e(f"v_mfma_f32_32x32x16_bf16 {v(DB[h],16)}, {v(KF+4*h,4)}, {v(PQF+4*h,4)}, 0")
    def proc2(h0):
        hs = (h0, h0 + 1)
        for h in hs: e(f"v_add_f32 {v(DB[h]+8)}, {s(sEPS6)}, {v(DB[h]+8)}")
        for h in hs: e(f"v_rcp_f32 {v(DB[h]+8)}, {v(DB[h]+8)}")
        for k in range(4):
            for h in hs: e(f"v_pk_mul_f32 {v(DB[h]+2*k,2)}, {v(DB[h]+2*k,2)}, {v(DB[h]+8,2)} op_sel_hi:[1,0]")
        for h in hs:
            for k in range(4): e(f"v_cvt_pk_bf16_f32 {v(DB[h]+10+k)}, {v(DB[h]+2*k)}, {v(DB[h]+2*k+1)}")
            e(f"ds_write_b128 v12, {v(DB[h]+10,4)} offset:{1024*h}")
    for h in range(6): m1(h)
    proc2(0)
    m1(6); m1(7)
    proc2(2); proc2(4); proc2(6)
    stamp(f"o{layer}_m1")
    e("s_waitcnt lgkmcnt(0)"); e("s_barrier")
    ACC = 24; NB = 8; OF = [56 + 4*i for i in range(NB)]
    for h in range(NB): e(f"ds_read_b128 {v(OF[h],4)}, v13 offset:{1024*h}")
    for k in range(8):
        e(f"v_lshlrev_b32 {v(XF+2*k)}, 16, {v(XRES+k)}"); e(f"v_and_b32 {v(XF+2*k+1)}, {s(sHI)}, {v(XRES+k)}")
    for h in range(32):
        e(f"s_waitcnt lgkmcnt({min(NB-1, 31-h)})")
        w_ = a(192 + 4*h, 4) if h < 16 else v(192 + 4*(h-16), 4)
        c_ = "0" if h == 0 else v(ACC, 16)
        e(f"v_mfma_f32_32x32x16_bf16 {v(ACC,16)}, {w_}, {v(OF[h % NB],4)}, {c_}")
        if h + NB < 32: e(f"ds_read_b128 {v(OF[h % NB],4)}, v13 offset:{1024*(h+NB)}")
    stamp(f"o{layer}_g2")
    for k in range(8): e(f"v_pk_add_f32 {v(XF+2*k,2)}, {v(XF+2*k,2)}, {v(ACC+2*k,2)}")
    PKD = 120
    for k in range(8): e(f"v_cvt_pk_bf16_f32 {v(PKD+k)}, {v(XF+2*k)}, {v(XF+2*k+1)}")
    if layer == 2:
        fl = OPTS.get("outfl", "").replace("_", " ")
        e(f"global_store_dwordx4 v14, {v(PKD,4)}, {s(sOUT,2)} {fl}")
        e(f"global_store_dwordx4 v14, {v(PKD+4,4)}, {s(sOUT,2)} offset:16 {fl}")
        return
    e(f"ds_write_b128 v14, {v(PKD,4)}"); e(f"ds_write_b128 v14, {v(PKD+4,4)} offset:16")
    e(f"v_pk_add_f32 v[64:65], {v(XF,2)}, {v(XF+2,2)}"); e(f"v_pk_mul_f32 v[66:67], {v(XF,2)}, {v(XF,2)}")
    e(f"v_pk_add_f32 v[68:69], {v(XF+4,2)}, {v(XF+6,2)}"); e(f"v_pk_mul_f32 v[70:71], {v(XF+2,2)}, {v(XF+2,2)}")
    for k in range(2, 8):
        e(f"v_pk_fma_f32 {v(66+4*(k&1),2)}, {v(XF+2*k,2)}, {v(XF+2*k,2)}, {v(66+4*(k&1),2)}")
        if k >= 4: e(f"v_pk_add_f32 {v(64+4*(k&1),2)}, {v(64+4*(k&1),2)}, {v(XF+2*k,2)}")
    e("s_waitcnt lgkmcnt(0)")
    for k in range(2):
        e(f"ds_read_b64_tr_b16 {v(80+4*k,2)}, v15 offset:{32*k}")
        e(f"ds_read_b64_tr_b16 {v(82+4*k,2)}, v15 offset:{32*k + 4*TBP}")
    e("v_pk_add_f32 v[64:65], v[64:65], v[68:69]"); e("v_pk_add_f32 v[66:67], v[66:67], v[70:71]")
    e("v_add_f32 v64, v64, v65"); e("v_add_f32 v65, v66, v67")
    e("v_permlane32_swap_b32 v64, v65")
    e("v_add_f32 v64, v64, v65")
    e(f"s_lshl_b32 {s(sT)}, {s(sWAVE)}, 8"); e(f"s_add_u32 {s(sT)}, {s(sT)}, {ST}"); e(f"v_lshl_add_u32 v66, v1, 2, {s(sT)}")
    e("ds_write_b32 v66, v64")
    e("s_waitcnt lgkmcnt(1)")
    if OPTS.get("nox2") != "1":
        e(f"buffer_store_dwordx4 v[80:83], v16, {s(sSRD,4)}, s6 offen sc1")
        e(f"buffer_store_dwordx4 v[84:87], v16, {s(sSRD,4)}, s6 offen offset:1024 sc1")
    e("s_waitcnt lgkmcnt(0)"); e("s_barrier")
    l = lab("oat")
    e(f"s_cmp_lg_u32 {s(sWAVE)}, 0"); e(f"s_cbranch_scc1 {l}")
    e(f"v_lshlrev_b32 v66, 2, v1"); e(f"v_add_u32 v66, {ST}, v66")
    for k in range(4): e(f"ds_read_b32 {v(68+k)}, v66 offset:{256*k}")
    e("s_waitcnt lgkmcnt(0)")
    e("v_add_f32 v68, v68, v69"); e("v_add_f32 v70, v70, v71"); e("v_add_f32 v68, v68, v70")
    if OPTS.get("noat") != "1": e(f"buffer_atomic_add_f32 v68, v17, {s(sSRD,4)}, s7 offen")
    A.label(l)

def build():
    prologue()
    stamp("start")
    idx_loads()
    p0_fills()
    stamp("p_iss")
    e("s_waitcnt vmcnt(8)")
    stamp("p_ld")
    p0_x0_write()
    p0_stats()
    e("s_waitcnt vmcnt(6) lgkmcnt(0)"); e("s_barrier")
    p0_x0_store()
    nonce_issue()
    p0_wfrag()
    kgen_setup()
    stamp("p_st")
    kgen_round(["X1", "X2", "Y1"], 0); kgen_round(["Y2"], 0)
    nonce_get(2)
    p0_stats_store()
    sent_regs(20)
    for g in xt_fill_groups(XT1, 3, 10): emit_group(g)
    stamp("p_s1")
    kgen_round(["X1", "X2", "Y1"], 1); kgen_round(["Y2"], 1)
    arrive(0, vm=0)
    stamp("arr1")
    fg = fill_groups(1, 58, 59)
    def upto_store():
        while fg:
            g = fg.pop(0); emit_group(g)
            if any("buffer_store" in l for l in g): return
    upto_store()
    kgen_round(["X1", "X2"], 2); upto_store(); kgen_round(["X1", "X2"], 3); upto_store()
    stamp("k_tab")
    kgen_mm([], upto_store)
    while fg: upto_store()
    e("s_waitcnt lgkmcnt(0)"); e("s_barrier")
    stamp("kgen")
    if stop_here("K"): return
    conv_setup(1)
    stamp("B1")
    rest = conv(1)
    stamp("C1")
    if stop_here("C1"): return
    for ins in rest:
        for l in ins: e(l)
    g_setup(1)
    e("s_waitcnt vmcnt(0)")
    colsums()
    stamp("B2")
    gphase(1)
    stamp("G1")
    if stop_here("G1"): return
    ophase(1)
    stamp("o1_end")
    arrive(1)
    stamp("O1")
    if stop_here("O1"): return
    conv_setup(2)
    stamp("c2_set")
    wait(1, pre=int(OPTS.get("wpre2", 12)))
    stamp("B4")
    conv(2)
    stamp("C2")
    if stop_here("C2"): return
    g_setup(2)
    stamp("B5")
    gphase(2)
    stamp("G2")
    if stop_here("G2"): return
    ophase(2)
    if STAMPS:
        e("s_waitcnt vmcnt(0)")
        stamp("O2")
        if OPTS.get("cntv"):
            for nm, r in (("c0_cnt", 96), ("slow_cnt", 97), ("re_cnt", 98)):
                i = len(stnames); stnames.append(nm); e(f"s_mov_b32 s{84+i}, s{r}")
        stamps_out()

build()
A.label("L_end")
e("s_endpgm")

def rb_int(j):
    u = struct.unpack("<I", struct.pack("<f", float(j)))[0]
    u = (u + 0x7fff + ((u >> 16) & 1)) & 0xffff0000
    return int(struct.unpack("<f", struct.pack("<I", u))[0])
idx = []
for x in range(2064):
    j = 2047 - x
    if j < 0: ent = 1024
    else:
        t = rb_int(j); ent = t if t < 512 else 512 + (t - 512) // 4
    idx.append(2 * ent)

lines, nn = hazard_pass(A.lines)
probs = check_branches(lines)
for p in probs: print("BRANCH HAZARD:", p, file=sys.stderr)
hdr = open("interleave_layers__ssm_conv_s4d__linear_attn_block__prompt.s.ref").read().split("; Override launch")[0]
out = hdr + "; Override launch geometry by editing the next line.\n"
out += f"; @launch grid=(256,1,1) block=(256,1,1) lds={LDS_BYTES}\n"
out += '.amdgcn_target "amdgcn-amd-amdhsa--gfx950"\n.text\n'
out += f".globl {NAME}\n.p2align 8\n.type {NAME},@function\n{NAME}:\n"
out += "\n".join(lines) + "\n"
out += ".p2align 6\n.type L_idx,@object\nL_idx:\n"
for i in range(0, len(idx), 16): out += "  .short " + ", ".join(str(x) for x in idx[i:i+16]) + "\n"
out += "L_tab_end:\n"
out += f""".section .rodata,"a"
.p2align 6
.amdhsa_kernel {NAME}
  .amdhsa_next_free_vgpr 512
  .amdhsa_next_free_sgpr 102
  .amdhsa_accum_offset 256
  .amdhsa_group_segment_fixed_size 0
  .amdhsa_kernarg_size 104
  .amdhsa_user_sgpr_count 2
  .amdhsa_user_sgpr_kernarg_segment_ptr 1
  .amdhsa_system_sgpr_workgroup_id_x 1
  .amdhsa_float_denorm_mode_32 3
.end_amdhsa_kernel
"""
open(sys.argv[1], "w").write(out)
if STAMPS: open(sys.argv[1] + ".names", "w").write(",".join(stnames))
print(f"wrote {sys.argv[1]}: {len(lines)} lines, {nn} nops inserted; WS_USED={WS_USED:#x}", file=sys.stderr)
```

```python
import sys, struct
from asmlib import *

NAME = "interleave_layers__ssm_conv_s4d__linear_attn_block__prompt_kernel"
OPTS = {}
for x in sys.argv[2:]:
    if "=" in x:
        k_, v_ = x.split("="); OPTS[k_] = v_
STOP = OPTS.get("stop")
SPINMAX = int(OPTS.get("spin", 100000))
BK = int(OPTS.get("bk", 2))

PITCH = 4224
S1 = 0x000000
S3 = 0x004000
FP = 640; FRP = 32 * FP + 128; F1 = 0x1200000 - 0x100000; F2 = F1 + 0x40000
STAMP_OFF = 0x020000
X0P = 8192 + 128
CNT = 0x030000
KVP1 = 0x040000; KVH = 1152; KVW = 4 * KVH; KVP2 = KVP1 + 0x128000
WFG = 0x2A0000; WFO = WFG + 0x180000
XSZ = 0x220000
XT1 = 0x4A0000; XT3 = XT1 + XSZ; X2T = XT3 + XSZ
ROP = 32768 + 256
HP = 65536 + 256
PQ1 = X2T + XSZ; PQ2 = PQ1 + 0x210000
X0T = 0x1200000
U2T = 0x1410000
SP = 0x030000
WS_USED = 0x1620000
assert PQ2 + 0x210000 <= F1
KC = 0; KCC = 4160; KCH = 4 * KCC
AT = 66560
MISC = AT + 65536
ST = MISC
WST = MISC + 2048
CT = WST + 8192; CTP = 2080
TB = WST; TBP = 80
LDS_BYTES = 163840
X0S = 147456
TKP = 224; TABC = 256 * TKP
U0 = AT; UP = 4608; X0 = AT + 2 * UP; RED = X0 + 8192
OT = AT

sU, sLOGA, sAIM, sCR, sCI, sLDT, sDSK = 8, 10, 12, 14, 16, 18, 20
sWQKV, sWO, sOUT, sDBG, sWS = 24, 26, 28, 30, 32
sSRD = 36; sSRD2 = 40
sWAVE, sXCD, sIDX, sCP, sRS, sJ, sRO, sJO = 44, 45, 46, 47, 48, 49, 50, 51
sSPIN = 52; sDSKV = 53
sT = 54
sLOG2E = 64; sEPS6 = 66; sM = 68; sHI = 76; sPC = 78; sINV512 = 80
sW = 34
sNON = 35

def f2u(f): return struct.unpack("<I", struct.pack("<f", f))[0]
A = Asm(); e = A.e
uid = [0]
def lab(p):
    uid[0] += 1; return f"L_{p}_{uid[0]}"

STAMPS = OPTS.get("stamps") == "1"
DEFSET = "start,arr1,kgen,B1,c1_pro,C1,B2,g1_kv,G1,o1_ld,O1,B4,c2_pro,C2,B5,G2,o2_ld,O2"
STSET = OPTS.get("st", DEFSET).split(",")
stnames = []
def stamp(name):
    if not STAMPS or name not in STSET: return
    i = len(stnames); stnames.append(name); assert i < 18
    e(f"{'s_memtime' if OPTS.get('clk') == '1' else 's_memrealtime'} s[82:83]"); e("s_waitcnt lgkmcnt(0)"); e(f"s_mov_b32 s{84+i}, s82")
def stamps_out():
    if not STAMPS: return
    if OPTS.get("dbgout"):
        l = lab("so")
        e(f"s_cmp_lg_u32 {s(sWAVE)}, 0"); e(f"s_cbranch_scc1 {l}")
        e(f"s_cmp_lg_u32 s2, {OPTS.get('dbgout')}"); e(f"s_cbranch_scc1 {l}")
        e("s_mov_b64 exec, 1")
        words = [2, 3, 5, 6, 7, 9, 10, 11, 13, 14, 15]
        for i in range(1, min(len(stnames), 12)):
            e(f"s_sub_u32 {s(sT)}, s{84+i}, s84")
            e(f"v_mov_b32 v10, {s(sT)}"); e(f"v_mov_b32 v11, {4*words[i-1]}")
            e(f"global_store_dword v11, v10, {s(sDBG,2)}")
        e("s_mov_b64 exec, -1")
        A.label(l)
        return
    l = lab("so")
    e(f"s_cmp_lg_u32 {s(sWAVE)}, {OPTS.get('stw', '0')}"); e(f"s_cbranch_scc1 {l}")
    e(f"s_lshl_b32 {s(sT)}, s2, 7"); e(f"s_add_u32 {s(sT)}, {s(sT)}, {STAMP_OFF}")
    e("s_mov_b64 exec, 1")
    for i in range(len(stnames)):
        e(f"v_mov_b32 v10, s{84+i}"); e(f"v_mov_b32 v11, {4*i}")
        e(f"buffer_store_dword v10, v11, {s(sSRD,4)}, {s(sT)} offen")
    e("s_mov_b64 exec, -1")
    A.label(l)
def stop_here(name):
    if STOP == name:
        e("s_waitcnt vmcnt(0) lgkmcnt(0)"); e("s_branch L_end"); return True
    return False

def sent_regs(r):
    for i in range(4): e(f"v_mov_b32 {v(r+i)}, -1")
def spin_check(retry, giveup, bk=None):
    e(f"s_cbranch_vccz {giveup}")
    bk = BK if bk is None else bk
    if bk: e(f"s_sleep {bk}")
    e(f"s_sub_u32 {s(sSPIN)}, {s(sSPIN)}, 1")
    e(f"s_cbranch_scc0 {retry}")
    e(f"s_mov_b32 {s(sSPIN)}, 0")
    A.label(giveup)
def maxtree(regs, dst):
    regs = list(regs); cur = regs.pop(0)
    while regs:
        if len(regs) >= 2:
            e(f"v_max3_u32 {v(dst)}, {v(cur)}, {v(regs[0])}, {v(regs[1])}"); regs = regs[2:]
        else:
            e(f"v_max_u32 {v(dst)}, {v(cur)}, {v(regs[0])}"); regs = []
        cur = dst

def arrive(k, vm=0):
    e(f"s_waitcnt vmcnt({vm}) lgkmcnt(0)"); e("s_barrier")
    l = lab("arr")
    e(f"s_cmp_lg_u32 {s(sWAVE)}, 0"); e(f"s_cbranch_scc1 {l}")
    e(f"s_and_b32 {s(sT)}, s2, 15"); e(f"s_lshl_b32 {s(sT)}, {s(sT)}, {4 if k == 0 else 12}")
    if k: e(f"s_add_u32 {s(sT)}, {s(sT)}, {CNT}")
    e(f"v_mov_b32 v10, {s(sT)}"); e("v_mov_b32 v11, 1")
    e("s_mov_b64 exec, 1")
    e(f"global_atomic_add v10, v11, {s(sDBG if k == 0 else sWS,2)}")
    e("s_mov_b64 exec, -1")
    A.label(l)
def wait(k, pre=0):
    l = lab("wt"); lp = lab("poll")
    e(f"s_cmp_lg_u32 {s(sWAVE)}, 0"); e(f"s_cbranch_scc1 {l}")
    e("v_and_b32 v10, 15, v0"); e(f"v_lshlrev_b32 v10, {4 if k == 0 else 12}, v10")
    if k: e(f"v_add_u32 v10, {CNT}, v10")
    e(f"s_movk_i32 {s(sT+1)}, {16 * max(k, 1)}")
    if pre: e(f"s_sleep {pre}")
    A.label(lp)
    e(f"global_load_dword v11, v10, {s(sDBG if k == 0 else sWS,2)} sc1")
    e("s_waitcnt vmcnt(0)")
    e(f"v_cmp_gt_u32 vcc, {s(sT+1)}, v11")
    spin_check(lp, l, bk=int(OPTS.get("wbk", 0)))
    e("s_barrier")

def cmul(d, x, w, t):
    return [f"v_pk_mul_f32 {v(t,2)}, {v(x,2)}, {v(w,2)} op_sel_hi:[1,0]",
            f"v_pk_fma_f32 {v(d,2)}, {v(x,2)}, {v(w,2)}, {v(t,2)} op_sel:[1,1,0] op_sel_hi:[0,1,1] neg_lo:[0,1,0]"]
def bf16r(dst, src):
    e(f"v_cvt_pk_bf16_f32 {v(dst)}, {v(src)}, {v(src)}"); e(f"v_lshlrev_b32 {v(dst)}, 16, {v(dst)}")
def stats_final(vsum, vsq, vm, vr, t, rcp=True):
    e(f"v_mul_f32 {v(t)}, {s(sINV512)}, {v(vsum)}")
    e(f"v_mul_f32 {v(t+1)}, {s(sINV512)}, {v(vsq)}")
    e(f"v_fma_f32 {v(t+1)}, -{v(t)}, {v(t)}, {v(t+1)}")
    e(f"v_max_f32 {v(t+1)}, 0, {v(t+1)}")
    e(f"v_cvt_pk_bf16_f32 {v(t)}, {v(t)}, {v(t+1)}")
    e(f"v_and_b32 {v(t+1)}, {s(sHI)}, {v(t)}"); e(f"v_lshlrev_b32 {v(vm)}, 16, {v(t)}")
    e(f"v_add_f32 {v(t+1)}, 0x3727c5ac, {v(t+1)}")
    bf16r(t + 1, t + 1)
    e(f"v_sqrt_f32 {v(t+1)}, {v(t+1)}")
    if rcp:
        bf16r(t + 1, t + 1)
        e(f"v_rcp_f32 {v(vr)}, {v(t+1)}")
    else:
        bf16r(vr, t + 1)

def kvp_addr(kvp, dst):
    e(f"s_lshl_b32 {s(dst)}, {s(sJ)}, 5"); e(f"s_add_u32 {s(dst)}, {s(dst)}, {s(sRS)}"); e(f"s_lshl_b32 {s(dst)}, {s(dst)}, 2")
    e(f"s_add_u32 {s(dst)}, {s(dst)}, {s(sWAVE)}"); e(f"s_mul_i32 {s(dst)}, {s(dst)}, {KVH}"); e(f"s_add_u32 {s(dst)}, {s(dst)}, {kvp}")
def f_addr(f, dst):
    e(f"s_lshr_b32 {s(dst)}, {s(sRS)}, 3"); e(f"s_lshl_b32 {s(sT+9)}, {s(sJ)}, 2"); e(f"s_add_u32 {s(dst)}, {s(dst)}, {s(sT+9)}")
    e(f"s_mul_i32 {s(dst)}, {s(dst)}, {FP}"); e(f"s_add_u32 {s(dst)}, {s(dst)}, {f}")
def pq_addr(pq, dst):
    e(f"s_lshl_b32 {s(dst)}, {s(sJ)}, 2"); e(f"s_add_u32 {s(dst)}, {s(dst)}, {s(sWAVE)}")
    e(f"s_mul_i32 {s(dst)}, {s(dst)}, {HP}"); e(f"s_lshl_b32 {s(sT+9)}, {s(sRS)}, 11"); e(f"s_add_u32 {s(dst)}, {s(dst)}, {s(sT+9)}")
    e(f"s_add_u32 {s(dst)}, {s(dst)}, {pq}")
def capture(fn):
    n = len(A.lines); fn(); out = [l.strip() for l in A.lines[n:]]; del A.lines[n:]
    return out
def fill_groups(layer, va, vb):
    S = 20; P1, K1, FF = 40, 41, 42
    pq = PQ1 if layer == 1 else PQ2; kvp = KVP1 if layer == 1 else KVP2; ff = F1 if layer == 1 else F2
    G = []
    def grp(fn): G.append(capture(fn))
    def single(fn):
        for l in capture(fn): G.append([l])
    single(lambda: sent_regs(S))
    def addr():
        e(f"s_lshl_b32 s{P1}, {s(sJ)}, 2"); e(f"s_add_u32 s{P1}, s{P1}, {s(sWAVE)}"); e(f"s_mul_i32 s{P1}, s{P1}, {HP}")
        e(f"s_lshl_b32 s61, {s(sRS)}, 11"); e(f"s_add_u32 s{P1}, s{P1}, s61"); e(f"s_add_u32 s{P1}, s{P1}, {pq}")
        e(f"s_lshl_b32 s{K1}, {s(sJ)}, 5"); e(f"s_add_u32 s{K1}, s{K1}, {s(sRS)}"); e(f"s_lshl_b32 s{K1}, s{K1}, 2")
        e(f"s_add_u32 s{K1}, s{K1}, {s(sWAVE)}"); e(f"s_mul_i32 s{K1}, s{K1}, {KVH}"); e(f"s_add_u32 s{K1}, s{K1}, {kvp}")
        e(f"s_lshr_b32 s{FF}, {s(sRS)}, 3"); e(f"s_lshl_b32 s61, {s(sJ)}, 2"); e(f"s_add_u32 s{FF}, s{FF}, s61")
        e(f"s_mul_i32 s{FF}, s{FF}, {FP}"); e(f"s_add_u32 s{FF}, s{FF}, {ff}")
        e(f"v_lshlrev_b32 {v(va)}, 4, v1"); e(f"v_lshlrev_b32 {v(vb)}, 2, v1")
    single(addr)
    G.append([f"buffer_store_dwordx4 {v(S,4)}, {v(va)}, {s(sSRD,4)}, s{K1} offen sc1", "MARK"])
    def st2():
        e("s_mov_b32 s62, -1"); e("s_mov_b32 s63, 0"); e("s_mov_b64 exec, s[62:63]")
        e(f"buffer_store_dword {v(S)}, {v(vb)}, {s(sSRD,4)}, s{K1} offen offset:1024 sc1")
        e("s_mov_b64 exec, -1")
    grp(st2)
    G.append([f"buffer_store_dwordx4 {v(S,4)}, {v(va)}, {s(sSRD,4)}, s{P1} offen sc1", "MARK"])
    G.append([f"buffer_store_dwordx4 {v(S,4)}, {v(va)}, {s(sSRD,4)}, s{P1} offen offset:1024 sc1", "MARK"])
    def fslice():
        l = lab("ff")
        e(f"s_cmp_lg_u32 {s(sWAVE)}, 2"); e(f"s_cbranch_scc1 {l}")
        e(f"s_and_b32 s61, {s(sRS)}, 7"); e("s_lshl_b32 s62, s61, 6")
        e(f"v_lshrrev_b32 {v(va)}, 3, v1"); e(f"v_mul_u32_u24 {v(va)}, {FRP}, {v(va)}"); e(f"v_and_b32 {v(vb)}, 7, v1"); e(f"v_lshl_add_u32 {v(va)}, {v(vb)}, 3, {v(va)}")
        e(f"v_add_u32 {v(vb)}, s62, {v(va)}")
        e(f"buffer_store_dwordx2 {v(S,2)}, {v(vb)}, {s(sSRD,4)}, s{FF} offen sc1")
        e("s_cmp_lg_u32 s61, 0"); e(f"s_cbranch_scc1 {l}")
        e("s_mov_b32 s62, 0x0f0f0f0f"); e("s_mov_b32 s63, 0x0f0f0f0f"); e("s_mov_b64 exec, s[62:63]")
        e(f"buffer_store_dwordx2 {v(S,2)}, {v(va)}, {s(sSRD,4)}, s{FF} offen offset:512 sc1")
        e("s_mov_b64 exec, -1")
        A.label(l)
    grp(fslice)
    return G
def xt_fill_groups(buf, sreg, va):
    G = []
    G.append([f"s_lshr_b32 s{sreg}, {s(sWAVE)}, 1"]); G.append([f"s_lshl_b32 s61, {s(sCP)}, 1"]); G.append([f"s_add_u32 s{sreg}, s{sreg}, s61"])
    G.append([f"s_mul_i32 s{sreg}, s{sreg}, {PITCH}"]); G.append([f"s_and_b32 s61, {s(sWAVE)}, 1"]); G.append(["s_lshl_b32 s61, s61, 11"])
    G.append([f"s_add_u32 s{sreg}, s{sreg}, s61"]); G.append([f"s_add_u32 s{sreg}, s{sreg}, {buf}"]); G.append([f"v_lshlrev_b32 {v(va)}, 4, v1"])
    G.append([f"buffer_store_dwordx4 v[20:23], {v(va)}, {s(sSRD,4)}, s{sreg} offen sc1"])
    G.append([f"buffer_store_dwordx4 v[20:23], {v(va)}, {s(sSRD,4)}, s{sreg} offen offset:1024 sc1"])
    return G
def emit_group(g):
    for l in g:
        if l == "MARK": continue
        if l.endswith(":"): A.label(l[:-1])
        else: e(l)

XR = 24; PRM = 32; IDX = 40; XC = 176
def prologue():
    stamp("t0")
    if OPTS.get("cntv"):
        e("s_mov_b32 s96, 0"); e("s_mov_b32 s97, 0"); e("s_mov_b32 s98, 0")
    e(f"s_getpc_b64 {s(sPC,2)}")
    A.label("L_pc")
    e("s_cmp_ge_u32 s2, 256")
    e("s_cbranch_scc1 L_end")
    e("s_load_dwordx16 s[8:23], s[0:1], 0")
    e("s_load_dwordx8 s[24:31], s[0:1], 64")
    e("s_load_dwordx2 s[32:33], s[0:1], 96")
    e("s_memrealtime s[82:83]")
    e("v_lshlrev_b32 v10, 7, v0")
    e("v_min_u32 v11, L_tab_end - L_pc - 4, v10")
    e(f"global_load_dword v38, v11, {s(sPC,2)}")
    e("v_add_u32 v10, 0x8000, v10")
    e("v_min_u32 v10, L_tab_end - L_pc - 4, v10")
    e(f"global_load_dword v39, v10, {s(sPC,2)}")
    e("v_lshrrev_b32 v1, 6, v0")
    e(f"s_and_b32 {s(sXCD)}, s2, 7")
    e(f"s_lshr_b32 {s(sIDX)}, s2, 3")
    e(f"v_readfirstlane_b32 {s(sWAVE)}, v1")
    e(f"s_lshl_b32 {s(sCP)}, {s(sXCD)}, 5"); e(f"s_add_u32 {s(sCP)}, {s(sCP)}, {s(sIDX)}")
    e("v_and_b32 v1, 63, v0")
    e(f"s_lshl_b32 {s(sT)}, {s(sCP)}, 9"); e(f"v_lshl_add_u32 v10, v0, 1, {s(sT)}")
    e(f"s_lshl_b32 {s(sT)}, {s(sCP)}, 2"); e("v_lshrrev_b32 v12, 7, v0"); e(f"v_lshl_add_u32 v11, v12, 1, {s(sT)}")
    e(f"s_lshl_b32 {s(sT)}, s2, 13"); e(f"v_lshl_add_u32 v13, v0, 5, {s(sT)}")
    e(f"s_mul_i32 s6, s2, 5462"); e(f"s_lshr_b32 s6, s6, 16"); e(f"s_mul_i32 s7, s6, 12"); e(f"s_sub_u32 s7, s2, s7")
    e(f"s_sub_u32 {s(sT+1)}, s2, 192"); e(f"s_lshr_b32 {s(sT)}, {s(sT+1)}, 1"); e(f"s_and_b32 {s(sT+1)}, {s(sT+1)}, 1")
    e("s_cmp_ge_u32 s2, 192")
    e(f"s_cselect_b32 s6, {s(sT)}, s6"); e(f"s_cselect_b32 s7, {s(sT+1)}, s7")
    e(f"s_cselect_b32 {s(sT+2)}, 4, 5")
    e(f"s_cselect_b32 {s(sT+3)}, 2, 3")
    e(f"s_cselect_b32 {s(sT+4)}, 10, 0")
    e(f"s_movk_i32 {s(sT+5)}, 3072"); e(f"s_cselect_b32 {s(sT+5)}, 1024, {s(sT+5)}")
    e(f"s_cselect_b32 {s(sT+6)}, 9, 8")
    e(f"s_cselect_b32 {s(sT+7)}, 5, 4")
    e(f"s_lshl_b32 {s(sT)}, s6, {s(sT+2)}"); e(f"s_lshl_b32 {s(sT+1)}, {s(sWAVE)}, {s(sT+3)}"); e(f"s_add_u32 {s(sT)}, {s(sT)}, {s(sT+1)}")
    e(f"s_mul_i32 {s(sT)}, {s(sT)}, {s(sT+5)}"); e(f"s_lshl_b32 {s(sT+1)}, s7, {s(sT+6)}"); e(f"s_add_u32 s4, {s(sT)}, {s(sT+1)}")
    e(f"v_lshrrev_b32 v14, {s(sT+7)}, v1"); e(f"v_mul_lo_u32 v14, {s(sT+5)}, v14")
    e(f"s_lshl_b32 {s(sT+1)}, 1, {s(sT+7)}"); e(f"s_sub_u32 {s(sT+1)}, {s(sT+1)}, 1"); e(f"v_and_b32 v15, {s(sT+1)}, v1"); e("v_lshl_add_u32 v14, v15, 4, v14")
    e(f"s_lshl_b32 {s(sT+1)}, 64, 0"); e(f"s_lshr_b32 {s(sT+1)}, 64, {s(sT+7)}"); e(f"s_mul_i32 s5, {s(sT+1)}, {s(sT+5)}")
    e(f"s_lshl_b32 {s(sT+3)}, {s(sWAVE)}, 11"); e(f"s_add_u32 {s(sT+3)}, {s(sT+3)}, {WST}")
    e("s_cmp_ge_u32 s2, 192")
    e("s_waitcnt lgkmcnt(0)")
    stamp("karg")
    if True:
        e(f"v_min_u32 v16, {(WS_USED - 1) // 0x200000}, v1"); e("v_lshlrev_b32 v16, 21, v16")
        e(f"global_load_dword v19, v16, {s(sWS,2)}")
    e("s_cmp_ge_u32 s2, 192")
    e(f"global_load_ushort {v(PRM)}, v10, {s(sLOGA,2)}")
    e(f"global_load_ushort {v(PRM+1)}, v10, {s(sAIM,2)}")
    e(f"global_load_ushort {v(PRM+4)}, v11, {s(sLDT,2)}")
    e(f"global_load_dwordx4 {v(XR,4)}, v13, {s(sU,2)}")
    e(f"global_load_dwordx4 {v(XR+4,4)}, v13, {s(sU,2)} offset:16")
    e(f"global_load_ushort {v(PRM+2)}, v10, {s(sCR,2)}")
    e(f"global_load_ushort {v(PRM+3)}, v10, {s(sCI,2)}")
    e(f"global_load_ushort {v(PRM+5)}, v11, {s(sDSK,2)}")
    e(f"s_cselect_b32 {s(sSRD2)}, {s(sWO)}, {s(sWQKV)}"); e(f"s_cselect_b32 {s(sSRD2+1)}, {s(sWO+1)}, {s(sWQKV+1)}")
    e(f"s_mov_b32 {s(sT)}, {512*1536*2}"); e(f"s_cselect_b32 {s(sSRD2+2)}, {512*512*2}, {s(sT)}")
    e(f"s_and_b32 {s(sSRD2+1)}, {s(sSRD2+1)}, 0xffff"); e(f"s_mov_b32 {s(sSRD2+3)}, 0x20000")
    ln = lab("nw")
    e("v_mov_b32 v23, 4")
    e(f"s_or_b32 {s(sT)}, s2, {s(sWAVE)}"); e(f"s_cmp_lg_u32 {s(sT)}, 0"); e(f"s_cbranch_scc1 {ln}")
    e(f"s_or_b32 {s(sT)}, s82, 1"); e(f"v_mov_b32 v58, {s(sT)}")
    e("s_mov_b64 exec, 1")
    e(f"global_store_dword v23, v58, {s(sDBG,2)} sc1")
    e("s_mov_b64 exec, -1")
    e("s_waitcnt vmcnt(63)")
    A.label(ln)
    e(f"s_mov_b32 m0, {s(sT+3)}")
    e(f"buffer_load_dwordx4 v14, {s(sSRD2,4)}, s4 offen lds")
    e(f"s_add_u32 s4, s4, s5"); e(f"s_add_u32 m0, {s(sT+3)}, 1024")
    e(f"buffer_load_dwordx4 v14, {s(sSRD2,4)}, s4 offen lds")
    e(f"s_and_b32 {s(sT)}, {s(sIDX)}, 3"); e(f"s_lshl_b32 {s(sRS)}, {s(sXCD)}, 2"); e(f"s_add_u32 {s(sRS)}, {s(sRS)}, {s(sT)}")
    e(f"s_lshr_b32 {s(sJ)}, {s(sIDX)}, 2")
    e(f"s_and_b32 {s(sT)}, {s(sJ)}, 1"); e(f"s_lshl_b32 {s(sRO)}, {s(sRS)}, 1"); e(f"s_add_u32 {s(sRO)}, {s(sRO)}, {s(sT)}")
    e(f"s_lshr_b32 {s(sJO)}, {s(sJ)}, 1")
    e(f"s_mov_b32 {s(sLOG2E)}, {f2u(1.4426950408889634):#x}"); e(f"s_mov_b32 {s(sLOG2E+1)}, {s(sLOG2E)}")
    e(f"s_mov_b32 {s(sEPS6)}, {f2u(1e-6):#x}"); e(f"s_mov_b32 {s(sEPS6+1)}, {s(sEPS6)}")
    e(f"s_mov_b32 {s(sINV512)}, {f2u(1.0/512):#x}"); e(f"s_mov_b32 {s(sINV512+1)}, {s(sINV512)}")
    e(f"s_mov_b32 {s(sHI)}, 0xffff0000")
    e(f"s_mov_b32 {s(sSPIN)}, {SPINMAX}")
    e(f"s_mov_b32 {s(sSRD)}, {s(sWS)}"); e(f"s_and_b32 {s(sSRD+1)}, {s(sWS+1)}, 0xffff")
    e(f"s_mov_b32 {s(sSRD+2)}, {WS_USED:#x}"); e(f"s_mov_b32 {s(sSRD+3)}, 0x20000")

def p0_fills():
    pass

def nonce_issue():
    e("v_mov_b32 v17, 4")
    e(f"global_load_dword v58, v17, {s(sDBG,2)} sc1")
def nonce_get(vm=0):
    lr = lab("nr"); lg = lab("ng"); l0 = lab("n0")
    e(f"s_waitcnt vmcnt({vm})")
    e(f"s_branch {l0}")
    A.label(lr)
    e(f"global_load_dword v58, v17, {s(sDBG,2)} sc1")
    e("s_waitcnt vmcnt(0)")
    A.label(l0)
    e("v_cmp_eq_u32 vcc, 0, v58")
    spin_check(lr, lg, bk=1)
    e(f"v_readfirstlane_b32 {s(sNON)}, v58")

def idx_loads():
    e(f"s_add_u32 {s(sT)}, {s(sPC)}, L_idx - L_pc"); e(f"s_addc_u32 {s(sT+1)}, {s(sPC+1)}, 0")
    e("v_and_b32 v10, 127, v0"); e("v_lshlrev_b32 v10, 4, v10")
    e(f"global_load_dwordx4 {v(IDX,4)}, v10, {s(sT,2)}")
    e(f"global_load_dwordx4 {v(IDX+4,4)}, v10, {s(sT,2)} offset:16")
    e(f"global_load_dwordx4 {v(IDX+8,4)}, v10, {s(sT,2)} offset:2048")
    e(f"global_load_dwordx4 {v(IDX+12,4)}, v10, {s(sT,2)} offset:2064")

def gather_loads():
    out = []
    for i in range(4): out.append(f"global_load_dword {v(XC+i)}, v19, {s(sU,2)} offset:{1024*i}")
    for i in range(4): out.append(f"global_load_dword {v(XC+4+i)}, v18, {s(sU,2)} offset:{1024*i}")
    return out

def p0_x0_write():
    e(f"v_lshlrev_b32 v10, 5, v0"); e(f"v_add_u32 v10, {X0S}, v10")
    e(f"ds_write_b128 v10, {v(XR,4)}"); e(f"ds_write_b128 v10, {v(XR+4,4)} offset:16")
def p0_x0_store():
    e("v_bfe_u32 v10, v1, 2, 2"); e("v_lshlrev_b32 v10, 10, v10")
    e("v_lshrrev_b32 v11, 4, v1"); e("v_lshl_add_u32 v10, v11, 5, v10")
    e("v_and_b32 v11, 3, v1"); e("v_lshl_add_u32 v10, v11, 3, v10")
    e(f"s_lshl_b32 {s(sT)}, {s(sWAVE)}, 8"); e(f"s_add_u32 {s(sT)}, {s(sT)}, {X0S}"); e(f"v_add_u32 v10, {s(sT)}, v10")
    for k in range(2):
        e(f"ds_read_b64_tr_b16 {v(100+4*k,2)}, v10 offset:{128*k}"); e(f"ds_read_b64_tr_b16 {v(102+4*k,2)}, v10 offset:{128*k + 4096}")
    e(f"s_mul_i32 {s(sT)}, s2, {X0P}"); e(f"s_lshl_b32 {s(sT+1)}, {s(sWAVE)}, 11"); e(f"s_add_u32 {s(sT)}, {s(sT)}, {s(sT+1)}")
    e(f"s_add_u32 {s(sT)}, {s(sT)}, {X0T}")
    e("v_lshlrev_b32 v11, 4, v1")
    e("s_waitcnt lgkmcnt(0)")
    e(f"buffer_store_dwordx4 v[100:103], v11, {s(sSRD,4)}, {s(sT)} offen sc1")
    e(f"buffer_store_dwordx4 v[104:107], v11, {s(sSRD,4)}, {s(sT)} offen offset:1024 sc1")

def p0_stats():
    F = 64
    for i in range(8):
        e(f"v_lshlrev_b32 {v(F+2*i)}, 16, {v(XR+i)}"); e(f"v_and_b32 {v(F+2*i+1)}, {s(sHI)}, {v(XR+i)}")
    for i in range(4): e(f"v_pk_add_f32 {v(80+2*i,2)}, {v(F+4*i,2)}, {v(F+4*i+2,2)}")
    e(f"v_pk_mul_f32 v[88:89], {v(F,2)}, {v(F,2)}"); e(f"v_pk_mul_f32 v[90:91], {v(F+2,2)}, {v(F+2,2)}")
    e(f"v_pk_add_f32 v[80:81], v[80:81], v[82:83]"); e(f"v_pk_add_f32 v[84:85], v[84:85], v[86:87]")
    for i in range(2, 8): e(f"v_pk_fma_f32 {v(88+2*(i&1),2)}, {v(F+2*i,2)}, {v(F+2*i,2)}, {v(88+2*(i&1),2)}")
    e(f"v_pk_add_f32 v[80:81], v[80:81], v[84:85]"); e("v_pk_add_f32 v[88:89], v[88:89], v[90:91]")
    e("v_add_f32 v80, v80, v81"); e("v_add_f32 v82, v88, v89")
    for r_ in (8, 4, 2, 1):
        e(f"v_add_f32_dpp v80, v80, v80 row_ror:{r_} row_mask:0xf bank_mask:0xf")
        e(f"v_add_f32_dpp v82, v82, v82 row_ror:{r_} row_mask:0xf bank_mask:0xf")
    e("v_add_f32_dpp v80, v80, v80 row_bcast:15 row_mask:0xa bank_mask:0xf")
    e("v_add_f32_dpp v82, v82, v82 row_bcast:15 row_mask:0xa bank_mask:0xf")
    stats_final(80, 82, 56, 57, 86, rcp=False)
    e("v_lshrrev_b32 v56, 16, v56"); e(f"v_and_or_b32 v56, v57, {s(sHI)}, v56")

def p0_stats_store():
    e(f"v_mov_b32 v57, {s(sNON)}")
    e(f"s_lshl_b32 {s(sT)}, s2, 4"); e(f"s_lshl_b32 {s(sT+1)}, {s(sWAVE)}, 12"); e(f"s_add_u32 {s(sT)}, {s(sT)}, {s(sT+1)}")
    e(f"s_add_u32 {s(sT)}, {s(sT)}, {S1}")
    e("v_lshrrev_b32 v10, 5, v1"); e(f"v_lshl_add_u32 v10, v10, 3, {s(sT)}")
    e(f"s_mov_b32 {s(sT+2)}, 0x00010000"); e(f"s_mov_b32 {s(sT+3)}, 0x00010000")
    e(f"s_mov_b64 exec, {s(sT+2,2)}")
    e(f"buffer_store_dwordx2 v[56:57], v10, {s(sSRD,4)}, 0 offen sc1")
    e("s_mov_b64 exec, -1")

def p0_wfrag():
    lo = lab("wo2"); lj = lab("wj2")
    e("s_cmp_ge_u32 s2, 192"); e(f"s_cbranch_scc1 {lo}")
    e("v_lshrrev_b32 v10, 2, v1"); e("v_lshlrev_b32 v10, 8, v10")
    e("v_and_b32 v11, 3, v1"); e("v_lshl_add_u32 v10, v11, 3, v10")
    e(f"s_lshl_b32 {s(sT)}, {s(sWAVE)}, 6"); e(f"s_add_u32 {s(sT)}, {s(sT)}, {WST}")
    e(f"v_add_u32 v10, {s(sT)}, v10")
    e("ds_read_b64_tr_b16 v[88:89], v10"); e("ds_read_b64_tr_b16 v[90:91], v10 offset:4096")
    e("ds_read_b64_tr_b16 v[92:93], v10 offset:32"); e("ds_read_b64_tr_b16 v[94:95], v10 offset:4128")
    e(f"s_lshr_b32 {s(sT)}, s7, 2")
    e(f"s_add_u32 {s(sT)}, {s(sT)}, 2"); e(f"s_cmp_ge_u32 {s(sT)}, 3")
    e(f"s_cselect_b32 {s(sT+1)}, 3, 0"); e(f"s_sub_u32 {s(sT)}, {s(sT)}, {s(sT+1)}")
    e(f"s_and_b32 {s(sT+1)}, s7, 3"); e(f"s_lshl_b32 {s(sT+1)}, {s(sT+1)}, 3")
    e(f"s_lshl_b32 {s(sT+2)}, {s(sWAVE)}, 1"); e(f"s_add_u32 {s(sT+1)}, {s(sT+1)}, {s(sT+2)}")
    e(f"s_mul_i32 {s(sT+1)}, {s(sT+1)}, 3"); e(f"s_add_u32 {s(sT+1)}, {s(sT+1)}, {s(sT)}")
    e(f"s_lshl_b32 {s(sT+1)}, {s(sT+1)}, 4"); e(f"s_add_u32 {s(sT+1)}, {s(sT+1)}, s6")
    e(f"s_lshl_b32 {s(sT+1)}, {s(sT+1)}, 10"); e(f"s_add_u32 {s(sT+1)}, {s(sT+1)}, {WFG}")
    e(f"s_add_u32 {s(sT+2)}, {s(sT+1)}, 49152")
    e(f"s_branch {lj}")
    A.label(lo)
    e("v_lshrrev_b32 v10, 5, v1"); e("v_lshlrev_b32 v10, 2, v10")
    e("v_bfe_u32 v11, v1, 2, 2"); e("v_add_u32 v10, v10, v11"); e("v_lshlrev_b32 v10, 9, v10")
    e("v_and_b32 v11, 1, v1"); e("v_lshl_add_u32 v10, v11, 5, v10")
    e("v_bfe_u32 v11, v1, 4, 1"); e("v_lshl_add_u32 v10, v11, 4, v10")
    e("v_bfe_u32 v11, v1, 1, 1"); e("v_lshl_add_u32 v10, v11, 3, v10")
    e(f"s_lshl_b32 {s(sT)}, {s(sWAVE)}, 7"); e(f"s_add_u32 {s(sT)}, {s(sT)}, {WST}")
    e(f"v_add_u32 v10, {s(sT)}, v10")
    e("ds_read_b64_tr_b16 v[88:89], v10"); e("ds_read_b64_tr_b16 v[90:91], v10 offset:4096")
    e("ds_read_b64_tr_b16 v[92:93], v10 offset:64"); e("ds_read_b64_tr_b16 v[94:95], v10 offset:4160")
    e(f"s_lshl_b32 {s(sT+1)}, s7, 3"); e(f"s_lshl_b32 {s(sT+2)}, {s(sWAVE)}, 1"); e(f"s_add_u32 {s(sT+1)}, {s(sT+1)}, {s(sT+2)}")
    e(f"s_lshl_b32 {s(sT+1)}, {s(sT+1)}, 5"); e(f"s_add_u32 {s(sT+1)}, {s(sT+1)}, s6")
    e(f"s_lshl_b32 {s(sT+1)}, {s(sT+1)}, 10"); e(f"s_add_u32 {s(sT+1)}, {s(sT+1)}, {WFO}")
    e(f"s_add_u32 {s(sT+2)}, {s(sT+1)}, 32768")
    A.label(lj)
    e("v_lshlrev_b32 v10, 4, v1")
    e("s_waitcnt lgkmcnt(0)")
    e(f"buffer_store_dwordx4 v[88:91], v10, {s(sSRD,4)}, {s(sT+1)} offen sc1")
    e(f"buffer_store_dwordx4 v[92:95], v10, {s(sSRD,4)}, {s(sT+2)} offen sc1")

def pw_multi(items, a2, b2):
    for (d, t, tm) in items:
        if t == 1:
            e(f"v_mov_b32 {v(tm)}, {v(a2)}"); e(f"v_fract_f32 {v(tm+1)}, {v(b2)}")
        else:
            c = f"{float(t)}" if t in (2, 4) else f"{f2u(float(t)):#x}"
            e(f"v_mul_f32 {v(tm)}, {c}, {v(a2)}"); e(f"v_mul_f32 {v(tm+1)}, {c}, {v(b2)}")
    for (d, t, tm) in items:
        e(f"v_exp_f32 {v(tm)}, {v(tm)}")
        if t != 1: e(f"v_fract_f32 {v(tm+1)}, {v(tm+1)}")
    for (d, t, tm) in items:
        e(f"v_cos_f32 {v(d)}, {v(tm+1)}"); e(f"v_sin_f32 {v(d+1)}, {v(tm+1)}")
    for (d, t, tm) in items:
        e(f"v_pk_mul_f32 {v(d,2)}, {v(d,2)}, {v(tm,2)} op_sel_hi:[1,0]")

W1, W4, W16, W64, W512 = 100, 102, 104, 106, 108
CH = {"X1": 112, "X2": 128, "Y1": 144, "Y2": 160}
def kgen_setup():
    for i in range(6): e(f"v_lshlrev_b32 {v(PRM+i)}, 16, {v(PRM+i)}")
    e(f"v_readfirstlane_b32 {s(sDSKV)}, {v(PRM+5)}")
    dt, are = 60, 61
    e(f"v_mul_f32 {v(dt)}, {s(sLOG2E)}, {v(PRM+4)}"); e(f"v_mul_f32 {v(are)}, {s(sLOG2E)}, {v(PRM)}")
    e(f"v_exp_f32 {v(dt)}, {v(dt)}"); e(f"v_exp_f32 {v(are)}, {v(are)}")
    e(f"v_cvt_pk_bf16_f32 {v(dt)}, {v(dt)}, {v(are)}")
    e(f"v_and_b32 {v(are)}, {s(sHI)}, {v(dt)}"); e(f"v_lshlrev_b32 {v(dt)}, 16, {v(dt)}")
    a2, b2 = 62, 63
    e(f"v_mul_f32 {v(a2)}, -{v(are)}, {v(dt)}"); e(f"v_mul_f32 {v(b2)}, {v(PRM+1)}, {v(dt)}")
    e(f"v_mul_f32 {v(a2)}, {s(sLOG2E)}, {v(a2)}"); e(f"v_mul_f32 {v(b2)}, 0.15915494, {v(b2)}")
    pw_multi([(W1, 1, 64), (W4, 4, 66), (W16, 16, 68), (W64, 64, 70), (W512, 512, 72)], a2, b2)
    e(f"v_add_f32 {v(dt)}, {v(dt)}, {v(dt)}")
    e(f"v_mul_f32 {v(CH['X1'])}, {v(PRM+2)}, {v(dt)}"); e(f"v_mul_f32 {v(CH['X1']+1)}, {v(PRM+3)}, {v(dt)}")
    for l in cmul(CH['X2'], CH['X1'], W512, 64): e(l)
    e(f"v_mov_b32 {v(CH['Y1'])}, 1.0"); e(f"v_mov_b32 {v(CH['Y1']+1)}, 0"); e(f"v_mov_b32 {v(CH['Y2'])}, 1.0"); e(f"v_mov_b32 {v(CH['Y2']+1)}, 0")
    e(f"v_lshrrev_b32 v96, 7, v0"); e(f"v_mul_u32_u24 v96, {TABC}, v96")
    e(f"v_and_b32 v97, 127, v0"); e(f"v_mul_u32_u24 v97, {TKP}, v97"); e("v_add_u32 v96, v96, v97")

def kgen_round(chains, rnd, side=None):
    Wof = {"X1": W16, "X2": W64, "Y1": W1, "Y2": W4}
    mbase = {"X1": 0, "X2": 32, "Y1": 64, "Y2": 80}
    tmp = {"X1": 64, "X2": 66, "Y1": 68, "Y2": 70}
    nval = {c: 8 for c in chains}
    if rnd == 3 and "X2" in chains: nval["X2"] = 1
    for i in range(1, 8):
        ls = [cmul(CH[c] + 2*i, CH[c] + 2*(i-1), Wof[c], tmp[c]) for c in chains if i < nval[c]]
        for k in range(2):
            for l in ls: e(l[k])
        if side and i in (1, 3, 5, 7) and len(side): e(side.pop(0))
    P = {c: 72 + 8*k for k, c in enumerate(chains)}
    for c in chains:
        neg = "-" if c[0] == "X" else ""
        for k in range(4):
            i0, i1 = (2*k, 2*k+1) if nval[c] == 8 else (0, 0)
            e(f"v_cvt_pk_bf16_f32 {v(P[c]+k)}, {v(CH[c]+2*i0)}, {v(CH[c]+2*i1)}")
            e(f"v_cvt_pk_bf16_f32 {v(P[c]+4+k)}, {neg}{v(CH[c]+2*i0+1)}, {neg}{v(CH[c]+2*i1+1)}")
        off = (mbase[c] + 8*rnd) * 2
        e(f"ds_write_b128 v96, {v(P[c],4)} offset:{off}")
        e(f"ds_write_b128 v96, {v(P[c]+4,4)} offset:{off + 128*TKP}")
    ls = [cmul(CH[c], CH[c] + 14, Wof[c], tmp[c]) for c in chains if nval[c] == 8 and not ((c[0] == "Y" and rnd == 1) or rnd == 3)]
    for k in range(2):
        for l in ls: e(l[k])

def kgen_mm(gl, fs):
    s1_issue()
    e("s_waitcnt lgkmcnt(0)"); e("s_barrier")
    e(f"s_lshr_b32 {s(sT)}, {s(sWAVE)}, 1"); e(f"s_and_b32 {s(sT+1)}, {s(sWAVE)}, 1")
    e(f"s_mul_i32 {s(sT+2)}, {s(sT)}, {TABC}")
    e(f"s_lshl_b32 {s(sT+3)}, {s(sT+1)}, 5"); e(f"s_add_u32 {s(sT+3)}, {s(sT+3)}, 128"); e(f"s_add_u32 {s(sT+3)}, {s(sT+3)}, {s(sT+2)}")
    e(f"s_lshl_b32 {s(sT+4)}, {s(sT+1)}, 6"); e(f"s_add_u32 {s(sT+4)}, {s(sT+4)}, {s(sT+2)}")
    e("v_lshrrev_b32 v10, 2, v1"); e(f"v_mul_u32_u24 v10, {TKP}, v10"); e("v_and_b32 v11, 3, v1"); e("v_lshl_add_u32 v10, v11, 3, v10")
    e(f"v_add_u32 v11, {s(sT+3)}, v10"); e(f"v_add_u32 v12, {s(sT+4)}, v10")
    YF, XF = 64, 96
    for ks in range(8):
        o = ks * 32 * TKP
        e(f"ds_read_b64_tr_b16 {v(YF+4*ks,2)}, v11 offset:{o}"); e(f"ds_read_b64_tr_b16 {v(YF+4*ks+2,2)}, v11 offset:{o + 16*TKP}")
        for tl in range(2):
            e(f"ds_read_b64_tr_b16 {v(XF+32*tl+4*ks,2)}, v12 offset:{o + 32*tl}"); e(f"ds_read_b64_tr_b16 {v(XF+32*tl+4*ks+2,2)}, v12 offset:{o + 16*TKP + 32*tl}")
    e("v_lshrrev_b32 v13, 7, v0")
    e(f"v_mul_u32_u24 v14, {CTP}, v13"); e(f"v_add_u32 v14, {CT}, v14")
    e(f"v_mul_u32_u24 v15, {KCH}, v13"); e("v_and_b32 v13, 127, v0"); e("v_lshl_add_u32 v15, v13, 4, v15")
    fs()
    for ks in range(8):
        e(f"s_waitcnt lgkmcnt({min(15, 6*(7-ks))})")
        for tl in range(2):
            c_ = "0" if ks == 0 else v(160 + 4*tl, 4)
            e(f"v_mfma_f32_16x16x32_bf16 {v(160+4*tl,4)}, {v(YF+4*ks,4)}, {v(XF+32*tl+4*ks,4)}, {c_}")
    e(f"s_mul_i32 {s(sT+2)}, {s(sT)}, {CTP}"); e(f"s_lshl_b32 {s(sT+3)}, {s(sT+1)}, 10"); e(f"s_add_u32 {s(sT+2)}, {s(sT+2)}, {s(sT+3)}")
    e(f"s_add_u32 {s(sT+2)}, {s(sT+2)}, {CT}")
    e("v_and_b32 v10, 15, v1"); e("v_lshlrev_b32 v10, 5, v10"); e("v_lshrrev_b32 v11, 4, v1"); e("v_lshl_add_u32 v10, v11, 3, v10")
    e(f"v_add_u32 v10, {s(sT+2)}, v10")
    e(f"s_mul_i32 {s(sT+2)}, {s(sT)}, {CTP}"); e(f"s_add_u32 {s(sT+2)}, {s(sT+2)}, {CT + 2048}")
    e(f"v_mov_b32 v11, {s(sT+2)}"); e("v_mov_b32 v12, 0")
    e("ds_write_b32 v11, v12")
    fs()
    G = [96, 112]
    for task in range(2):
        I = IDX + 8 * task
        for k in range(6):
            e(f"v_add_u32_sdwa {v(G[task]+2*k)}, v14, {v(I+k)} dst_sel:DWORD dst_unused:UNUSED_PAD src0_sel:DWORD src1_sel:WORD_0")
            e(f"v_add_u32_sdwa {v(G[task]+2*k+1)}, v14, {v(I+k)} dst_sel:DWORD dst_unused:UNUSED_PAD src0_sel:DWORD src1_sel:WORD_1")
    for tl in range(2):
        e(f"v_cvt_pk_bf16_f32 {v(168+2*tl)}, {v(160+4*tl)}, {v(161+4*tl)}")
        e(f"v_cvt_pk_bf16_f32 {v(169+2*tl)}, {v(162+4*tl)}, {v(163+4*tl)}")
        e(f"ds_write_b64 v10, {v(168+2*tl,2)} offset:{512*tl}")
    e("s_waitcnt lgkmcnt(0)"); e("s_barrier")
    stamp("k_mm")
    s1_validate(1)
    x0t_issue()
    for task in range(2):
        for k in range(12): e(f"ds_read_u16 {v(G[task]+k)}, {v(G[task]+k)}")
    for task in range(2):
        Dd, Dp, Sd, Sp = [(64, 72, 80, 88), (128, 136, 144, 152)][task]
        e(f"s_waitcnt lgkmcnt({12 if task == 0 else 4})")
        for k in range(6): e(f"v_lshl_or_b32 {v(Dd+k)}, {v(G[task]+2*k+1)}, 16, {v(G[task]+2*k)}")
        for k in range(4): e(f"v_mov_b32 {v(Dp+k)}, {v(Dd+k+1)}")
        for k in range(4): e(f"v_alignbit_b32 {v(Sd+k)}, {v(Dd+k+1)}, {v(Dd+k)}, 16")
        for k in range(4): e(f"v_alignbit_b32 {v(Sp+k)}, {v(Dd+k+2)}, {v(Dd+k+1)}, 16")
        for cp_, src in enumerate((Dd, Sd, Dp, Sp)):
            e(f"ds_write_b128 v15, {v(src,4)} offset:{cp_*KCC + task*2048}")
    l0 = lab("zk")
    e(f"s_cmp_lg_u32 {s(sWAVE)}, 0"); e(f"s_cbranch_scc1 {l0}")
    e("v_lshrrev_b32 v10, 2, v1"); e(f"v_mul_u32_u24 v10, {KCC}, v10")
    e("v_and_b32 v11, 3, v1"); e("v_lshl_add_u32 v10, v11, 4, v10"); e("v_add_u32 v10, 4096, v10")
    e("v_mov_b32 v160, 0"); e("v_mov_b32 v161, 0"); e("v_mov_b32 v162, 0"); e("v_mov_b32 v163, 0")
    e(f"s_mov_b32 {s(sT+2)}, -1"); e(f"s_mov_b32 {s(sT+3)}, 0"); e(f"s_mov_b64 exec, {s(sT+2,2)}")
    e("ds_write_b128 v10, v[160:163]")
    e("s_mov_b64 exec, -1")
    A.label(l0)

def s1_issue():
    e("v_lshlrev_b32 v63, 4, v0")
    for i in range(4):
        e(f"s_movk_i32 {s(sT)}, {S1 + 4096*i}")
        e(f"buffer_load_dwordx4 {v(24+4*i,4)}, v63, {s(sSRD,4)}, {s(sT)} offen sc1")
def s1_validate(vm=0):
    lr = lab("s1r"); lg = lab("s1k"); l0 = lab("s1c")
    e(f"s_waitcnt vmcnt({vm})")
    e(f"s_branch {l0}")
    A.label(lr)
    s1_issue()
    e("s_waitcnt vmcnt(0)")
    A.label(l0)
    for i in range(8): e(f"v_xor_b32 {v(160+i)}, {s(sNON)}, {v(24+2*i+1)}")
    e("v_or3_b32 v160, v160, v161, v162"); e("v_or3_b32 v163, v163, v164, v165"); e("v_or3_b32 v160, v160, v166, v167"); e("v_or_b32 v160, v160, v163")
    e("v_cmp_ne_u32 vcc, 0, v160")
    spin_check(lr, lg, bk=1)
def x0t_issue():
    e(f"v_mul_u32_u24 v10, {X0P}, v0"); e(f"s_lshl_b32 {s(sT)}, {s(sCP)}, 5"); e(f"s_add_u32 {s(sT)}, {s(sT)}, {X0T}")
    e(f"buffer_load_dwordx4 v[40:43], v10, {s(sSRD,4)}, {s(sT)} offen sc1")
    e(f"buffer_load_dwordx4 v[44:47], v10, {s(sSRD,4)}, {s(sT)} offen offset:16 sc1")
def b1_issue():
    e("v_and_b32 v20, 15, v0"); e("v_lshlrev_b32 v20, 4, v20")
    e(f"global_load_dword v21, v20, {s(sDBG,2)} sc1")
def b1_check():
    lr = lab("b1r"); lg = lab("b1k"); l0 = lab("b1c")
    e("s_waitcnt vmcnt(0)")
    e(f"s_branch {l0}")
    A.label(lr)
    e(f"global_load_dword v21, v20, {s(sDBG,2)} sc1")
    e("s_waitcnt vmcnt(0)")
    A.label(l0)
    e("v_cmp_gt_u32 vcc, 16, v21")
    spin_check(lr, lg, bk=1)

def gw_loads():
    out = []
    for f in range(48):
        out.append([f"buffer_load_dwordx4 {a(4*f,4)}, v18, {s(sSRD,4)}, {s(sW)} offen offset:{(f%4)*1024} sc1"] + ([f"s_add_u32 {s(sW)}, {s(sW)}, 4096"] if f % 4 == 3 else []))
    return out
def ow_loads():
    out = []
    for f in range(32):
        dst = a(192 + 4*f, 4) if f < 16 else v(192 + 4*(f-16), 4)
        out.append([f"buffer_load_dwordx4 {dst}, v18, {s(sSRD,4)}, {s(sW)} offen offset:{(f%4)*1024} sc1"] + ([f"s_add_u32 {s(sW)}, {s(sW)}, 4096"] if f % 4 == 3 else []))
    return out

vA, vB, vEP, vEU, vEX, vRW, vRR = 164, 165, 166, 167, 168, 169, 170
def conv_setup(layer):
    e(f"s_lshr_b32 s4, {s(sWAVE)}, 1"); e(f"s_and_b32 s5, {s(sWAVE)}, 1")
    e("v_and_b32 v10, 3, v1"); e("v_sub_u32 v10, 3, v10"); e(f"v_mul_u32_u24 v12, {KCC}, v10")
    e("v_bfe_u32 v10, v1, 5, 1"); e("v_lshlrev_b32 v13, 5, v10"); e("v_sub_u32 v12, v12, v13")
    e("v_bfe_u32 v11, v1, 4, 1"); e("v_lshl_add_u32 v12, v11, 4, v12")
    e("v_bfe_u32 v10, v1, 2, 2"); e("v_lshlrev_b32 v10, 3, v10"); e("v_sub_u32 v12, v12, v10")
    e(f"s_mul_i32 {s(sT+2)}, s4, {KCH}"); e(f"s_lshl_b32 {s(sT+3)}, s5, 8"); e(f"s_sub_u32 {s(sT+2)}, {s(sT+2)}, {s(sT+3)}")
    e(f"s_add_u32 {s(sT+2)}, {s(sT+2)}, {KC + 4088 - 3776}")
    e("v_and_b32 v10, 15, v1"); e("v_lshlrev_b32 v14, 5, v10"); e("v_sub_u32 v14, v14, v13"); e("v_lshl_add_u32 v14, v11, 4, v14")
    e(f"s_mul_i32 {s(sT+4)}, s4, {UP}"); e(f"s_sub_u32 {s(sT+4)}, {s(sT+4)}, {s(sT+3)}")
    e(f"s_add_u32 {s(sT+4)}, {s(sT+4)}, {U0 + 512 - 192}")
    e(f"v_add_u32 v16, {s(sT+2)}, v12"); e(f"v_add_u32 v17, {s(sT+4)}, v14")
    e("v_and_b32 v56, 15, v1"); e("v_lshlrev_b32 v56, 5, v56"); e("v_lshrrev_b32 v13, 4, v1"); e("v_lshl_add_u32 v56, v13, 3, v56")
    e(f"s_lshl_b32 {s(sT+2)}, s5, 11"); e(f"v_add_u32 v56, {s(sT+2)}, v56")
    e(f"s_mul_i32 {s(sT+3)}, s4, {UP}"); e(f"s_add_u32 {s(sT+3)}, {s(sT+3)}, {U0+512}"); e(f"v_add_u32 v57, {s(sT+3)}, v56")
    e(f"s_lshl_b32 {s(sT+3)}, s4, 12"); e(f"s_add_u32 {s(sT+3)}, {s(sT+3)}, {X0}"); e(f"v_add_u32 v58, {s(sT+3)}, v56")
    e(f"s_lshl_b32 {s(sT+2)}, {s(sWAVE)}, 12"); e(f"s_add_u32 {s(sT+2)}, {s(sT+2)}, {RED}"); e(f"v_lshl_add_u32 v59, v1, 4, {s(sT+2)}")
    e(f"s_xor_b32 {s(sT+2)}, {s(sWAVE)}, 1"); e(f"s_lshl_b32 {s(sT+2)}, {s(sT+2)}, 12"); e(f"s_add_u32 {s(sT+2)}, {s(sT+2)}, {RED}")
    e(f"v_lshl_add_u32 v60, v1, 4, {s(sT+2)}")
    xo = XT1 if layer == 1 else XT3
    e(f"s_lshl_b32 s6, {s(sCP)}, 1"); e("s_add_u32 s6, s6, s4"); e(f"s_mul_i32 s6, s6, {PITCH}"); e(f"s_add_u32 s6, s6, {xo}")
    e("v_lshlrev_b32 v10, 4, v0"); e(f"v_add_u32 v61, {U0 + 512}, v10"); e(f"v_add_u32 v62, {X0}, v10")
    e("v_lshlrev_b32 v63, 4, v0")
    l0 = lab("zp")
    e(f"s_cmp_lg_u32 {s(sWAVE)}, 1"); e(f"s_cbranch_scc1 {l0}")
    e("v_lshrrev_b32 v11, 5, v1"); e(f"v_mul_u32_u24 v11, {UP}, v11"); e("v_and_b32 v12, 31, v1"); e("v_lshl_add_u32 v11, v12, 4, v11")
    e(f"v_add_u32 v11, {U0}, v11")
    e("v_mov_b32 v12, 0"); e("v_mov_b32 v13, 0"); e("v_mov_b32 v14, 0"); e("v_mov_b32 v15, 0")
    e("ds_write_b128 v11, v[12:15]")
    A.label(l0)
    XX = 40; F = 64
    if layer == 1:
        e("v_lshlrev_b32 v18, 4, v1")
        e(f"s_lshl_b32 {s(sW)}, {s(sJ)}, 2"); e(f"s_add_u32 {s(sW)}, {s(sW)}, {s(sWAVE)}")
        e(f"s_mul_i32 {s(sW)}, {s(sW)}, 49152"); e(f"s_add_u32 {s(sW)}, {s(sW)}, {WFG}")
    else:
        e(f"s_lshl_b32 s7, {s(sCP)}, 7"); e(f"s_add_u32 s7, s7, {X2T}")
        e("v_lshrrev_b32 v19, 2, v0"); e(f"v_mul_u32_u24 v19, {ROP}, v19"); e("v_and_b32 v10, 3, v0"); e("v_lshl_add_u32 v19, v10, 4, v19")

def conv(layer):
    XX = 40; SB = 24; F = 64; UU = 48
    if layer == 2:
        if int(OPTS.get("cpre", 4)): e(f"s_sleep {OPTS.get('cpre', 4)}")
        e(f"s_add_u32 {s(sT)}, s7, {U2T - X2T}")
        lr = lab("cu"); lg = lab("cuk")
        A.label(lr)
        e(f"buffer_load_dwordx4 {v(UU,4)}, v19, {s(sSRD,4)}, {s(sT)} offen sc1")
        e(f"buffer_load_dwordx4 {v(UU+4,4)}, v19, {s(sSRD,4)}, {s(sT)} offen offset:64 sc1")
        e("s_waitcnt vmcnt(0)")
        e(f"v_max_u32 v10, {v(UU)}, {v(UU+4)}")
        e("v_cmp_eq_u32 vcc, -1, v10")
        spin_check(lr, lg, bk=2)
        for c in range(2): e(f"ds_write_b128 v61, {v(UU+4*c,4)} offset:{UP*c}")
        for c in range(2):
            e(f"s_lshl_b32 {s(sT+2)}, {s(sWAVE)}, 10"); e(f"s_add_u32 m0, {s(sT+2)}, {X0 + 4096*c}")
            e(f"s_add_u32 {s(sT+3)}, s7, {64*c}")
            e(f"buffer_load_dwordx4 v19, {s(sSRD,4)}, {s(sT+3)} offen sc1 lds")
    else:
        b1_issue()
        for i in range(8):
            e(f"v_and_b32 {v(SB+2*i+1)}, {s(sHI)}, {v(SB+2*i)}"); e(f"v_lshlrev_b32 {v(SB+2*i)}, 16, {v(SB+2*i)}")
        for i in range(8): e(f"v_rcp_f32 {v(SB+2*i+1)}, {v(SB+2*i+1)}")
        e("s_waitcnt vmcnt(1)")
        for i in range(8):
            j, hi = i >> 1, i & 1
            for c in range(2):
                if hi: e(f"v_and_b32 {v(F+2*i+c)}, {s(sHI)}, {v(XX+4*c+j)}")
                else: e(f"v_lshlrev_b32 {v(F+2*i+c)}, 16, {v(XX+4*c+j)}")
        e(f"ds_write_b128 v62, {v(XX,4)}"); e(f"ds_write_b128 v62, {v(XX+4,4)} offset:4096")
    stamp(f"c{layer}_ld")
    if layer == 1:
        for i in range(8):
            e(f"v_pk_add_f32 {v(F+2*i,2)}, {v(F+2*i,2)}, {v(SB+2*i,2)} op_sel_hi:[1,0] neg_lo:[0,1] neg_hi:[0,1]")
        for i in range(8): e(f"v_cvt_pk_bf16_f32 {v(80+i)}, {v(F+2*i)}, {v(F+2*i+1)}")
        for i in range(8):
            e(f"v_lshlrev_b32 {v(F+2*i)}, 16, {v(80+i)}"); e(f"v_and_b32 {v(F+2*i+1)}, {s(sHI)}, {v(80+i)}")
        for i in range(8):
            e(f"v_pk_mul_f32 {v(F+2*i,2)}, {v(F+2*i,2)}, {v(SB+2*i,2)} op_sel:[0,1] op_sel_hi:[1,1]")
        for c in range(2):
            for j in range(4): e(f"v_cvt_pk_bf16_f32 {v(UU+4*c+j)}, {v(F+4*j+c)}, {v(F+4*j+2+c)}")
            e(f"ds_write_b128 v61, {v(UU+4*c,4)} offset:{UP*c}")
    trick = gw_loads() if layer == 1 else []
    e("s_waitcnt lgkmcnt(0)"); e("s_barrier")
    if layer == 1: b1_check()
    stamp(f"c{layer}_pro")
    vA, vB = 16, 17
    ACC = 24; SET = [64, 128]
    def loads(tp, st):
        out = []
        seq = []
        for k in range(8):
            seq.append(f"ds_read_b128 {v(SET[st]+32+4*k,4)}, {v(vB)} offset:{512*k + 64*(3 - tp)}")
            o = 64*(3 - tp) + 512*(7 - k)
            seq.append(f"ds_read_b64 {v(SET[st]+4*k,2)}, {v(vA)} offset:{o}")
            seq.append(f"ds_read_b64 {v(SET[st]+4*k+2,2)}, {v(vA)} offset:{o + 8}")
        return seq
    for l in loads(0, 0): e(l)
    ti = 0; nm = 0
    TRK = int(OPTS.get("trk", 4))
    e(f"s_mov_b32 {s(sT+4)}, {s(sDSKV)}"); e(f"s_mov_b32 {s(sT+5)}, {s(sDSKV)}")
    side = []
    for k in range(4):
        side.append(f"ds_read_b64 {v(64+2*k,2)}, v57 offset:{512*k}"); side.append(f"ds_read_b64 {v(72+2*k,2)}, v58 offset:{512*k}")
    side2 = ["s_waitcnt lgkmcnt(0)"]
    for k in range(4):
        for j in range(2):
            side2 += [f"v_lshlrev_b32 {v(96+4*k+2*j)}, 16, {v(64+2*k+j)}", f"v_and_b32 {v(97+4*k+2*j)}, {s(sHI)}, {v(64+2*k+j)}",
                      f"v_lshlrev_b32 {v(112+4*k+2*j)}, 16, {v(72+2*k+j)}", f"v_and_b32 {v(113+4*k+2*j)}, {s(sHI)}, {v(72+2*k+j)}"]
    for k in range(8): side2.append(f"v_pk_fma_f32 {v(96+2*k,2)}, {v(96+2*k,2)}, {s(sT+4,2)}, {v(112+2*k,2)}")
    fills = fill_groups(2, 61, 62) if layer == 2 else []
    hold = [0]; nfs = [0]
    for tp in range(4):
        st = tp & 1
        nxt = loads(tp + 1, st ^ 1) if tp < 3 else []
        n = 0; nb = 0
        for T in range(8):
            if tp == 0: e(f"s_waitcnt lgkmcnt({min(15, 24 - (3*T+3) + min(n, len(nxt)))})")
            elif T == 0:
                e("s_waitcnt lgkmcnt(0)")
                if layer == 2 and tp == 2:
                    e(f"s_waitcnt vmcnt({min(63, nfs[0])})"); e("s_barrier")
            for q in range(T + 1):
                c_ = "0" if (tp == 0 and q == 0) else v(ACC+4*T, 4)
                e(f"v_mfma_f32_16x16x32_bf16 {v(ACC+4*T,4)}, {v(SET[st]+4*q,4)}, {v(SET[st]+32+4*(T-q),4)}, {c_}")
                nm += 1; nb += 1
                if not (tp == 0 and T < 3) and n < len(nxt):
                    e(nxt[n]); n += 1
                if tp == 3:
                    if nb <= 8: e(side.pop(0))
                    elif nb > 12:
                        for _ in range(2):
                            if side2: e(side2.pop(0))
                if ti < len(trick) and nm % TRK == 0:
                    for l in trick[ti]: e(l)
                    ti += 1
                elif fills and tp < 3 and (nb > 2 or tp > 0):
                    if hold[0] > 0: hold[0] -= 1
                    else:
                        g = fills.pop(0); emit_group(g)
                        if any("buffer_store" in l for l in g): hold[0] = 3
                        nfs[0] += 0
        while n < len(nxt): e(nxt[n]); n += 1
    assert not fills
    while side2: e(side2.pop(0))
    stamp(f"c{layer}_mm")
    lp1 = lab("p1"); lj = lab("pj")
    e("s_cmp_eq_u32 s5, 1"); e(f"s_cbranch_scc1 {lp1}")
    e("s_nop 3")
    for k in range(4): e(f"ds_write_b128 v59, {v(ACC+16+4*k,4)} offset:{1024*k}")
    e(f"s_branch {lj}")
    A.label(lp1)
    for k in range(4): e(f"ds_write_b128 v59, {v(ACC+4*k,4)} offset:{1024*k}")
    e("s_nop 3")
    for k in range(8): e(f"v_mov_b64 {v(ACC+2*k,2)}, {v(ACC+16+2*k,2)}")
    A.label(lj)
    for k in range(8):
        e(f"v_pk_add_f32 {v(96+2*k,2)}, {v(96+2*k,2)}, {v(ACC+2*k,2)}")
    e("s_waitcnt lgkmcnt(0)"); e("s_barrier")
    for k in range(4): e(f"ds_read_b128 {v(80+4*k,4)}, v60 offset:{1024*k}")
    e(f"s_waitcnt vmcnt({min(63, ti) if layer == 1 else 0})")
    for k in range(4):
        e(f"s_waitcnt lgkmcnt({3-k})")
        e(f"v_pk_add_f32 {v(96+4*k,2)}, {v(96+4*k,2)}, {v(80+4*k,2)}"); e(f"v_pk_add_f32 {v(98+4*k,2)}, {v(98+4*k,2)}, {v(82+4*k,2)}")
        e(f"v_cvt_pk_bf16_f32 {v(64+2*k)}, {v(96+4*k)}, {v(97+4*k)}"); e(f"v_cvt_pk_bf16_f32 {v(65+2*k)}, {v(98+4*k)}, {v(99+4*k)}")
        e(f"buffer_store_dwordx2 {v(64+2*k,2)}, v56, {s(sSRD,4)}, s6 offen offset:{512*k} sc1")
    return trick[ti:]

NCSK, NCSV, NCSQ = 2, 4, 6
XRES = 184
def ones_regs(r):
    for i in range(4): e(f"v_mov_b32 {v(r+i)}, 0x3f803f80")
def colsums():
    ON = 152
    for ks in range(16):
        c0 = lambda r: "0" if ks == 0 else v(r, 4)
        e(f"v_mfma_f32_16x16x32_bf16 v[28:31], {v(ON,4)}, {a((0*16+ks)*4,4)}, {c0(28)}")
        e(f"v_mfma_f32_16x16x32_bf16 v[32:35], {v(ON,4)}, {a((1*16+ks)*4,4)}, {c0(32)}")
        e(f"v_mfma_f32_16x16x32_bf16 v[36:39], {a((2*16+ks)*4,4)}, {v(ON,4)}, {c0(36)}")
    e(f"v_sub_f32 {v(NCSK)}, 0, v28"); e(f"v_sub_f32 {v(NCSK+1)}, 0, v28")
    e(f"v_sub_f32 {v(NCSV)}, 0, v32"); e(f"v_sub_f32 {v(NCSV+1)}, 0, v32")
    for i in range(4): e(f"v_sub_f32 {v(NCSQ+i)}, 0, {v(36+i)}")

TA = 12
gXE, gXO, gSW, gS4, gQA, gPQ, gKV = 156, 157, 158, 160, 164, 168, 169
def g_setup(layer):
    xt = XT1 if layer == 1 else XT3
    e("v_lshrrev_b32 v10, 3, v1"); e(f"v_mul_u32_u24 v10, {PITCH}, v10")
    e("v_bfe_u32 v11, v1, 4, 2"); e("v_lshlrev_b32 v11, 1, v11"); e("v_and_b32 v16, 7, v1"); e("v_xor_b32 v11, v11, v16")
    e("v_lshl_add_u32 v10, v11, 4, v10")
    e(f"s_lshl_b32 {s(sT)}, {s(sRS)}, 7"); e(f"v_add_u32 v19, {s(sT)}, v10")
    e(f"s_mul_i32 s4, {s(sWAVE)}, {32*PITCH}"); e(f"s_add_u32 s4, s4, {xt}")
    e(f"s_lshl_b32 s5, {s(sWAVE)}, 12"); e(f"s_add_u32 s5, s5, {AT}")
    e("v_lshrrev_b32 v10, 2, v1"); e("v_lshlrev_b32 v10, 7, v10"); e("v_and_b32 v11, 3, v1"); e("v_lshl_add_u32 v10, v11, 3, v10")
    e(f"v_add_u32 v10, {AT}, v10"); e("v_bfe_u32 v11, v1, 3, 2")
    for j in range(4):
        e(f"s_add_u32 {s(sT)}, {s(sWAVE)}, {j}"); e(f"s_and_b32 {s(sT)}, {s(sT)}, 3"); e(f"s_lshl_b32 {s(sM+j)}, {s(sT)}, 6")
        e(f"v_xor_b32 v16, {s(sT)}, v11"); e(f"v_lshl_add_u32 {v(TA+j)}, v16, 5, v10")
    ones_regs(152)
    e("v_lshrrev_b32 v11, 5, v1"); e("v_lshlrev_b32 v11, 4, v11"); e("v_bfe_u32 v16, v1, 2, 2"); e("v_add_u32 v11, v11, v16")
    e(f"s_lshl_b32 {s(sT)}, {s(sJO)}, 7"); e(f"s_lshl_b32 {s(sT+1)}, {s(sWAVE)}, 5"); e(f"s_add_u32 {s(sT)}, {s(sT)}, {s(sT+1)}")
    e(f"v_add_u32 v11, {s(sT)}, v11"); e("v_lshlrev_b32 v11, 7, v11")
    e("v_and_b32 v16, 3, v1"); e("v_lshl_add_u32 v11, v16, 3, v11"); e(f"v_add_u32 v11, {AT}, v11")
    e(f"s_and_b32 {s(sT)}, {s(sJ)}, 1"); e(f"s_lshl_b32 {s(sT)}, {s(sT)}, 1")
    e("v_bfe_u32 v16, v1, 4, 1"); e(f"v_add_u32 v16, {s(sT)}, v16"); e("v_bfe_u32 v17, v1, 3, 1"); e("v_xor_b32 v16, v16, v17")
    e(f"v_lshl_add_u32 {v(gXE)}, v16, 5, v11"); e("v_xor_b32 v16, 2, v16"); e(f"v_lshl_add_u32 {v(gXO)}, v16, 5, v11")
    e("v_and_b32 v10, 15, v1"); e("v_lshlrev_b32 v10, 2, v10"); e(f"v_add_u32 v11, {ST}, v10")
    e(f"s_lshl_b32 {s(sT)}, {s(sWAVE)}, 6"); e(f"v_add_u32 {v(gSW)}, {s(sT)}, v11")
    e("v_lshrrev_b32 v10, 4, v1"); e("v_lshlrev_b32 v10, 4, v10"); e(f"v_add_u32 v10, {ST}, v10")
    for j in range(4):
        e(f"v_add_u32 {v(gS4+j)}, {s(sM+j)}, v10"); e(f"v_add_u32 {v(gQA+j)}, {s(sM+j)}, v11")
    e("v_and_b32 v10, 15, v1"); e("v_lshlrev_b32 v10, 4, v10"); e("v_bfe_u32 v11, v1, 4, 1"); e("v_lshl_add_u32 v10, v11, 3, v10")
    e("v_lshrrev_b32 v11, 5, v1"); e(f"v_lshl_add_u32 {v(gPQ)}, v11, 10, v10")
    e("v_lshrrev_b32 v10, 4, v1"); e("v_lshlrev_b32 v10, 8, v10"); e("v_and_b32 v11, 15, v1"); e(f"v_lshl_add_u32 {v(gKV)}, v11, 2, v10")
    e(f"v_lshlrev_b32 v183, 2, v1")
    kvp_addr(KVP1 if layer == 1 else KVP2, 6)
    pq_addr(PQ1 if layer == 1 else PQ2, 7)
    e(f"s_lshl_b32 {s(sT)}, {s(sJ)}, 5"); e(f"s_mul_i32 {s(sT)}, {s(sT)}, {KVW}")
    e(f"s_lshr_b32 {s(sT+1)}, {s(sRS)}, 3"); e(f"s_mul_i32 {s(sT+1)}, {s(sT+1)}, {KVH}"); e(f"s_add_u32 {s(sT)}, {s(sT)}, {s(sT+1)}")
    e(f"s_add_u32 s3, {s(sT)}, {KVP1 if layer == 1 else KVP2}")
    e(f"s_and_b32 {s(sT+2)}, {s(sRS)}, 7")
    e(f"s_cmp_eq_u32 {s(sWAVE)}, 2")
    e(f"s_cselect_b32 {s(sT+3)}, 3, 7"); e(f"s_cselect_b32 {s(sT+4)}, 1, 0")
    e(f"s_mov_b32 s42, 0x0f0f0f0f"); e("s_cselect_b32 s42, s42, -1"); e("s_mov_b32 s43, s42")
    e(f"s_lshl_b32 {s(sT+5)}, {s(sT+2)}, 7"); e(f"s_cmp_eq_u32 {s(sWAVE)}, 2"); e(f"s_cselect_b32 {s(sT+5)}, 1024, {s(sT+5)}")
    e(f"s_lshl_b32 {s(sT+6)}, {s(sT+2)}, 6"); e(f"s_cselect_b32 {s(sT+6)}, 512, {s(sT+6)}") if False else None
    e("v_lshrrev_b32 v10, 3, v1"); e(f"v_mul_u32_u24 v10, {KVW}, v10"); e(f"v_and_b32 v11, {s(sT+3)}, v1"); e("v_lshl_add_u32 v11, v11, 4, v10")
    e(f"v_add_u32 v170, {s(sT+5)}, v11")
    e(f"s_lshl_b32 {s(sT+6)}, {s(sT+2)}, 6"); e(f"s_cmp_eq_u32 {s(sWAVE)}, 2"); e(f"s_cselect_b32 {s(sT+6)}, 512, {s(sT+6)}")
    e("v_lshrrev_b32 v10, 3, v1"); e(f"v_mul_u32_u24 v10, {FRP}, v10"); e("v_and_b32 v11, 7, v1"); e("v_lshl_add_u32 v10, v11, 3, v10")
    e(f"v_add_u32 v171, {s(sT+6)}, v10")
    f_addr(F1 if layer == 1 else F2, 40)
    e(f"s_cmp_eq_u32 {s(sT+2)}, 0"); e(f"s_cselect_b32 {s(sT+3)}, 2, 3"); e(f"s_cmp_ge_u32 {s(sWAVE)}, {s(sT+3)}"); e("s_cselect_b32 s41, 1, 0")
    e("v_and_b32 v10, 3, v1")
    e(f"v_cmp_eq_u32 {s(sM+4,2)}, 1, v10"); e(f"v_cmp_eq_u32 {s(sM+6,2)}, 2, v10"); e(f"v_cmp_eq_u32 s[2:3], 3, v10") if False else None
    if layer == 1:
        e("v_lshlrev_b32 v18, 4, v1")
        e(f"s_lshl_b32 {s(sW)}, {s(sJO)}, 2"); e(f"s_add_u32 {s(sW)}, {s(sW)}, {s(sWAVE)}")
        e(f"s_lshl_b32 {s(sW)}, {s(sW)}, 15"); e(f"s_add_u32 {s(sW)}, {s(sW)}, {WFO}")

def gphase(layer):
    kvp = KVP1 if layer == 1 else KVP2
    ff = F1 if layer == 1 else F2
    def dma(c, i):
        return [f"s_add_u32 {s(sT)}, s4, {(128*c + 8*i)*PITCH}", f"s_add_u32 m0, s5, {c*16384 + i*1024}",
                f"buffer_load_dwordx4 v19, {s(sSRD,4)}, {s(sT)} offen sc1 lds"]
    e(f"v_lshl_add_u32 v21, v1, 4, s5")
    def check_reads(c): return [f"ds_read_b32 {v(56+i)}, v21 offset:{c*16384 + i*1024}" for i in range(4)]
    def validate(c, first=False):
        lr = lab("gv"); lg = lab("gvk"); lx = lab("gvx")
        A.label(lr)
        for l in check_reads(c): e(l)
        e("s_waitcnt lgkmcnt(0)")
        maxtree([56, 57, 58, 59], 56)
        e("v_cmp_eq_u32 vcc, -1, v56")
        e(f"s_cbranch_vccz {lg}")
        e(f"s_sub_u32 {s(sSPIN)}, {s(sSPIN)}, 1"); e(f"s_cbranch_scc1 {lx}")
        if OPTS.get("cntv"): e(f"s_add_u32 s{96 if c == 0 else 98}, s{96 if c == 0 else 98}, 1")
        for i in range(4):
            for l in dma(c, i): e(l)
        e("s_waitcnt vmcnt(0)")
        e(f"s_branch {lr}")
        A.label(lx); e(f"s_mov_b32 {s(sSPIN)}, 0")
        A.label(lg)
    e("s_barrier")
    if int(OPTS.get("gpre", 0)): e(f"s_sleep {OPTS.get('gpre')}")
    for c in range(3):
        for i in range(4):
            for l in dma(c, i): e(l)
    late = [dma(3, i) for i in range(4)]
    XF = [64, 80]
    AK, AV, AQ, GR, RS_, ON = 96, 112, 128, 144, 148, 152
    trick = ow_loads() if layer == 1 else []
    if layer == 1:
        for i in range(4): e(f"v_mov_b32 {v(176+i)}, -1")
        e(f"s_lshr_b32 s62, {s(sWAVE)}, 1"); e(f"s_lshl_b32 s61, {s(sCP)}, 1"); e("s_add_u32 s62, s62, s61"); e(f"s_mul_i32 s62, s62, {PITCH}")
        e(f"s_and_b32 s61, {s(sWAVE)}, 1"); e("s_lshl_b32 s61, s61, 11"); e("s_add_u32 s62, s62, s61"); e(f"s_add_u32 s62, s62, {XT3}")
        e(f"s_lshl_b32 s63, {s(sJO)}, 7"); e(f"s_lshl_b32 s61, {s(sWAVE)}, 5"); e("s_add_u32 s63, s63, s61"); e("s_lshl_b32 s63, s63, 6")
        e(f"s_mul_i32 s61, {s(sRO)}, {ROP}"); e("s_add_u32 s63, s63, s61"); e(f"s_add_u32 s63, s63, {U2T}")
        e(f"s_lshl_b32 s60, {s(sRO)}, 2"); e(f"s_add_u32 s60, s60, {s(sJO)}"); e("s_lshl_b32 s60, s60, 8"); e(f"s_add_u32 s60, s60, {SP}")
        fl = [[f"buffer_store_dwordx4 v[176:179], v18, {s(sSRD,4)}, s62 offen sc1"], [f"buffer_store_dwordx4 v[176:179], v18, {s(sSRD,4)}, s62 offen offset:1024 sc1"],
              [f"buffer_store_dwordx4 v[176:179], v18, {s(sSRD,4)}, s63 offen sc1"], [f"buffer_store_dwordx4 v[176:179], v18, {s(sSRD,4)}, s63 offen offset:1024 sc1"],
              [f"buffer_store_dword v176, v183, {s(sSRD,4)}, s60 offen sc1"]]
        for i_, g_ in enumerate(fl): trick.insert(2 * i_ + 1, g_)
        LASTFILL = 2 * (len(fl) - 1) + 1
    def reads(ks, base=None):
        b = XF[ks & 1] if base is None else base
        out = []
        for j in range(4):
            out.append(f"ds_read_b64_tr_b16 {v(b+4*j,2)}, {v(TA+j)} offset:{ks*4096}")
            out.append(f"ds_read_b64_tr_b16 {v(b+4*j+2,2)}, {v(TA+j)} offset:{ks*4096+2048}")
        return out
    stamp(f"g{layer}_iss")
    e("s_waitcnt vmcnt(8)")
    validate(0)
    e("s_barrier")
    stamp(f"g{layer}_ld0")
    for l in reads(0): e(l)
    st_ = {"ti": 0, "nw": 0, "nm": 0}
    TRG = int(OPTS.get("trg", 5))
    def trickle(ok):
        st_["nm"] += 1
        if ok and st_["ti"] < len(trick) and st_["nm"] % TRG == 0:
            for l in trick[st_["ti"]]: e(l)
            st_["ti"] += 1; st_["nw"] += 1
    for ks in range(16):
        nxt = []
        if ks < 15:
            if (ks + 1) % 4 == 0: e("s_barrier")
            nxt = reads(ks + 1)
        x = XF[ks & 1]
        if ks in (2, 3, 4, 6, 7, 8, 10, 11, 12): stamp(f"g{layer}_k{ks}")
        e("s_waitcnt lgkmcnt(0)")
        eval_c = (ks + 2) // 4 if (ks < 14 and (ks + 2) % 4 == 0) else None
        if ks < 13 and (ks + 3) % 4 == 0:
            c = (ks + 3) // 4
            issued3 = 4 - len(late)
            y = {1: 4 + issued3, 2: issued3, 3: 0}[c] + st_["nw"]
            e(f"s_waitcnt vmcnt({min(63, y)})")
            nxt = nxt + check_reads(c)
        z = lambda r: "0" if ks == 0 else v(r, 4)
        mf = []
        for j in range(4):
            mf.append(f"v_mfma_f32_16x16x32_bf16 {v(AK+4*j,4)}, {v(x+4*j,4)}, {a((0*16+ks)*4,4)}, {z(AK+4*j)}")
            mf.append(f"v_mfma_f32_16x16x32_bf16 {v(AV+4*j,4)}, {v(x+4*j,4)}, {a((1*16+ks)*4,4)}, {z(AV+4*j)}")
        mf.insert(1, f"v_mfma_f32_16x16x32_bf16 {v(GR,4)}, {v(x,4)}, {v(x,4)}, {z(GR)}")
        mf.insert(3, f"v_mfma_f32_16x16x32_bf16 {v(RS_,4)}, {v(ON,4)}, {v(x,4)}, {z(RS_)}")
        pend = list(nxt)
        for m_i, m_ in enumerate(mf):
            e(m_)
            if pend: e(pend.pop(0))
            if eval_c is not None:
                if m_i == 2: e("v_max3_u32 v56, v56, v57, v58")
                if m_i == 4: e("v_max_u32 v56, v56, v59")
                if m_i == 6: e("v_cmp_eq_u32 vcc, -1, v56")
            if m_i == len(mf) - 1:
                while pend: e(pend.pop(0))
                if eval_c is not None:
                    lok = lab("gok")
                    e(f"s_cbranch_vccz {lok}")
                    if OPTS.get("cntv"): e(f"s_add_u32 s97, s97, {1 << (8*(eval_c-1))}")
                    for i in range(4):
                        for l in dma(eval_c, i): e(l)
                    e("s_waitcnt vmcnt(0)")
                    validate(eval_c)
                    A.label(lok)
            if late and m_i in (1, 4, 7):
                for l in late.pop(0): e(l)
            trickle(ks >= 4)
    stamp(f"g{layer}_mm")
    for jj in range(4):
        e(f"ds_read_b64_tr_b16 {v(XRES+2*jj,2)}, {v(gXE + (jj & 1))} offset:{512*jj}")
    e("v_and_b32 v10, 3, v1")
    e(f"v_cmp_eq_u32 {s(sM+4,2)}, 1, v10"); e(f"v_cmp_eq_u32 {s(sM+6,2)}, 2, v10"); e("v_cmp_eq_u32 vcc, 3, v10")
    e(f"v_cndmask_b32 v11, {v(GR)}, {v(GR+1)}, {s(sM+4,2)}")
    e(f"v_cndmask_b32 v11, v11, {v(GR+2)}, {s(sM+6,2)}")
    e(f"v_cndmask_b32 v11, v11, {v(GR+3)}, vcc")
    stats_final(RS_, 11, 16, 17, 20)
    e("v_mul_f32 v16, v16, v17")
    e(f"s_mov_b32 {s(sT+2)}, 0x00f0000f"); e(f"s_mov_b32 {s(sT+3)}, 0xf0000f00")
    e(f"s_mov_b64 exec, {s(sT+2,2)}")
    e(f"ds_write_b32 {v(gSW)}, v17"); e(f"ds_write_b32 {v(gSW)}, v16 offset:256")
    e("s_mov_b64 exec, -1")
    R4, M4, RQ, MQ = 24, 40, 56, 176
    e("s_waitcnt lgkmcnt(0)"); e("s_barrier")
    for j in range(4):
        e(f"ds_read_b128 {v(R4+4*j,4)}, {v(gS4+j)}"); e(f"ds_read_b128 {v(M4+4*j,4)}, {v(gS4+j)} offset:256")
    for j in range(4):
        e(f"ds_read_b32 {v(RQ+2*j)}, {v(gQA+j)}"); e(f"ds_read_b32 {v(MQ+2*j)}, {v(gQA+j)} offset:256")
    stamp(f"g{layer}_st")
    PK, VV = 72, 80
    def phi2(items):
        for (rp, acc, mp, ncs, dst, T, bro) in items:
            e(f"v_pk_fma_f32 {v(T,2)}, {v(mp,2)}, {v(ncs,2)}, {s(sEPS6,2)}" + (" op_sel_hi:[0,1,1]" if bro else ""))
        for (rp, acc, mp, ncs, dst, T, bro) in items:
            e(f"v_pk_fma_f32 {v(T,2)}, {v(rp,2)}, {v(acc,2)}, {v(T,2)}" + (" op_sel_hi:[0,1,1]" if bro else ""))
        for (rp, acc, mp, ncs, dst, T, bro) in items: e(f"v_pk_mul_f32 {v(T+2,2)}, {v(T,2)}, {s(sLOG2E,2)}")
        for (rp, acc, mp, ncs, dst, T, bro) in items:
            e(f"v_exp_f32 {v(T+2)}, {v(T+2)} clamp"); e(f"v_exp_f32 {v(T+3)}, {v(T+3)} clamp")
        for (rp, acc, mp, ncs, dst, T, bro) in items:
            e(f"v_max_f32 {v(T)}, {s(sEPS6)}, {v(T)}"); e(f"v_max_f32 {v(T+1)}, {s(sEPS6)}, {v(T+1)}")
        for (rp, acc, mp, ncs, dst, T, bro) in items: e(f"v_pk_add_f32 {v(T,2)}, {v(T,2)}, {v(T+2,2)}")
        for (rp, acc, mp, ncs, dst, T, bro) in items: e(f"v_cvt_pk_bf16_f32 {v(dst)}, {v(T)}, {v(T+1)}")
    for j in range(4):
        e(f"s_waitcnt lgkmcnt({min(15, 8 + 2*(3-j))})")
        items = [(R4+4*j+2*hp, AK+4*j+2*hp, M4+4*j+2*hp, NCSK, PK+2*j+hp, 88 + 4*hp, False) for hp in range(2)]
        for hp in range(2):
            T = 104 + 2*hp if False else 172 + 2*hp
            e(f"v_pk_mul_f32 {v(T,2)}, {v(M4+4*j+2*hp,2)}, {v(NCSV,2)}")
        for hp in range(2):
            T = 172 + 2*hp
            e(f"v_pk_fma_f32 {v(T,2)}, {v(R4+4*j+2*hp,2)}, {v(AV+4*j+2*hp,2)}, {v(T,2)}")
        phi2(items)
        for hp in range(2):
            T = 172 + 2*hp
            e(f"v_cvt_pk_bf16_f32 {v(VV+2*j+hp)}, {v(T)}, {v(T+1)}")
        if j == 1:
            e(f"v_mfma_f32_16x16x32_bf16 {v(GR,4)}, {v(VV,4)}, {v(PK,4)}, 0")
            e(f"v_mfma_f32_16x16x32_bf16 {v(RS_,4)}, {v(ON,4)}, {v(PK,4)}, 0")
    e(f"v_mfma_f32_16x16x32_bf16 {v(GR,4)}, {v(VV+4,4)}, {v(PK+4,4)}, {v(GR,4)}")
    e(f"v_mfma_f32_16x16x32_bf16 {v(RS_,4)}, {v(ON,4)}, {v(PK+4,4)}, {v(RS_,4)}")
    PQR = 96
    if layer == 1:
        assert st_["ti"] > LASTFILL
        e(f"s_waitcnt vmcnt({min(63, st_['ti'] - 1 - LASTFILL)}) lgkmcnt(0)")
    e("s_waitcnt lgkmcnt(0)")
    for i in range(4):
        e(f"buffer_store_dword {v(GR+i)}, {v(gKV)}, {s(sSRD,4)}, s6 offen offset:{64*i} sc1")
    e("s_mov_b64 exec, 0xffff")
    e(f"buffer_store_dword {v(RS_)}, v183, {s(sSRD,4)}, s6 offen offset:1024 sc1")
    e("s_mov_b64 exec, -1")
    stamp(f"g{layer}_kv")
    def red_loads():
        for i in range(4):
            e(f"s_add_u32 {s(sT+4)}, s3, {8*i*KVW}")
            e(f"buffer_load_dwordx4 {v(24+4*i,4)}, v170, {s(sSRD,4)}, {s(sT+4)} offen sc1")
    RLK = int(OPTS.get("rlk", 11))
    QS = [64, 80, 112]
    for l in reads(0, QS[0]): e(l)
    for l in reads(1, QS[1]): e(l)
    for ks in range(16):
        nxt = reads(ks + 2, QS[(ks + 2) % 3]) if ks < 14 else []
        x = QS[ks % 3]
        e(f"s_waitcnt lgkmcnt({8 if ks < 15 else 0})")
        z = lambda r: "0" if ks == 0 else v(r, 4)
        if ks == RLK:
            lsk = lab("rl")
            e("s_cmp_eq_u32 s41, 0"); e(f"s_cbranch_scc1 {lsk}")
            red_loads()
            A.label(lsk)
        for j in range(4):
            e(f"v_mfma_f32_16x16x32_bf16 {v(AQ+4*j,4)}, {a((2*16+ks)*4,4)}, {v(x+4*j,4)}, {z(AQ+4*j)}")
            for l in nxt[2*j:2*j+2]: e(l)
            if j % 2 == 0 and st_["ti"] < len(trick):
                for l in trick[st_["ti"]]: e(l)
                st_["ti"] += 1
    stamp(f"g{layer}_q")
    for j in range(0, 4, 2):
        phi2([(RQ+2*(j+jj), AQ+4*(j+jj)+2*hp, MQ+2*(j+jj), NCSQ+2*hp, PQR+2*(j+jj)+hp, 64 + 8*jj + 4*hp, True) for jj in range(2) for hp in range(2)])
    for j in range(4):
        e(f"s_lshl_b32 {s(sT+2)}, {s(sM+j)}, 2"); e(f"s_add_u32 {s(sT+2)}, {s(sT+2)}, s7")
        e(f"buffer_store_dwordx2 {v(PQR+2*j,2)}, {v(gPQ)}, {s(sSRD,4)}, {s(sT+2)} offen sc1")
    for ins in trick[st_["ti"]:]:
        for l in ins: e(l)
    lred = lab("red")
    e("s_cmp_eq_u32 s41, 0"); e(f"s_cbranch_scc1 {lred}")
    lr = lab("rp"); lg = lab("rg"); l0 = lab("r0")
    e(f"s_waitcnt vmcnt({4 + len(trick[st_['ti']:])})")
    e(f"s_branch {l0}")
    A.label(lr)
    red_loads()
    e("s_waitcnt vmcnt(0)")
    A.label(l0)
    maxtree([24, 28, 32, 36], 56)
    e("v_cmp_eq_u32 vcc, -1, v56")
    spin_check(lr, lg)
    stamp(f"r{layer}_ok")
    e("v_pk_add_f32 v[24:25], v[24:25], v[28:29]"); e("v_pk_add_f32 v[26:27], v[26:27], v[30:31]")
    e("v_pk_add_f32 v[32:33], v[32:33], v[36:37]"); e("v_pk_add_f32 v[34:35], v[34:35], v[38:39]")
    e("v_pk_add_f32 v[24:25], v[24:25], v[32:33]"); e("v_pk_add_f32 v[26:27], v[26:27], v[34:35]")
    regs = [24, 25, 26, 27]
    for r in regs: e(f"v_add_f32_dpp {v(r)}, {v(r)}, {v(r)} row_ror:8 row_mask:0xf bank_mask:0xf")
    for r in regs: e(f"v_mov_b32 {v(r+4)}, {v(r)}")
    for r in regs: e(f"v_permlane16_swap_b32 {v(r)}, {v(r+4)}")
    for r in regs: e(f"v_add_f32 {v(r)}, {v(r)}, {v(r+4)}")
    for r in regs: e(f"v_mov_b32 {v(r+4)}, {v(r)}")
    for r in regs: e(f"v_permlane32_swap_b32 {v(r)}, {v(r+4)}")
    for r in regs: e(f"v_add_f32 {v(r)}, {v(r)}, {v(r+4)}")
    e("v_cvt_pk_bf16_f32 v28, v24, v25"); e("v_cvt_pk_bf16_f32 v29, v26, v27")
    e("s_mov_b64 exec, s[42:43]")
    e(f"buffer_store_dwordx2 v[28:29], v171, {s(sSRD,4)}, s40 offen sc1")
    e("s_mov_b64 exec, -1")
    A.label(lred)

def ophase(layer):
    pq = PQ1 if layer == 1 else PQ2
    ff = F1 if layer == 1 else F2
    KF, PQF = 24, 56
    e("v_and_b32 v10, 31, v1"); e("v_min_u32 v10, 16, v10")
    e("v_lshlrev_b32 v10, 5, v10"); e("v_lshrrev_b32 v11, 5, v1"); e("v_lshl_add_u32 v10, v11, 4, v10")
    e(f"s_lshl_b32 {s(sT)}, {s(sWAVE)}, 3"); e(f"s_mul_i32 s4, {s(sT)}, {FP}"); e(f"s_add_u32 s4, s4, {ff}")
    e(f"s_mul_i32 {s(sT+1)}, {s(sXCD)}, {FRP}"); e(f"s_add_u32 s4, s4, {s(sT+1)}")
    e("v_and_b32 v11, 31, v1"); e("v_lshlrev_b32 v11, 4, v11"); e("v_lshrrev_b32 v12, 5, v1"); e("v_lshl_add_u32 v11, v12, 10, v11")
    e(f"s_mul_i32 s5, {s(sT)}, {HP}"); e(f"s_add_u32 s5, s5, {pq}")
    e(f"s_lshl_b32 {s(sT+3)}, {s(sRS)}, 11"); e(f"s_add_u32 s5, s5, {s(sT+3)}")
    e(f"s_and_b32 {s(sT+3)}, {s(sRO)}, 1"); e(f"s_lshl_b32 {s(sT+3)}, {s(sT+3)}, 9"); e(f"s_add_u32 s5, s5, {s(sT+3)}")
    e(f"s_mul_i32 s3, {s(sWAVE)}, 5120"); e(f"s_add_u32 s3, s3, {AT + 32768}")
    e("v_add_u32 v10, s3, v10"); e("v_lshlrev_b32 v19, 4, v1")
    e(f"s_lshl_b32 {s(sT)}, {s(sWAVE)}, 13"); e(f"s_add_u32 {s(sT)}, {s(sT)}, {OT}")
    e(f"v_lshl_add_u32 v12, v1, 4, {s(sT)}")
    e(f"v_lshlrev_b32 v13, 4, v1"); e(f"v_add_u32 v13, {OT}, v13")
    if layer == 1:
        e("v_and_b32 v14, 31, v1"); e(f"v_mul_u32_u24 v14, {TBP}, v14"); e("v_lshrrev_b32 v15, 5, v1"); e("v_lshl_add_u32 v14, v15, 5, v14")
        e(f"s_mul_i32 {s(sT+4)}, {s(sWAVE)}, {32*TBP}"); e(f"s_add_u32 {s(sT+4)}, {s(sT+4)}, {TB}"); e(f"v_add_u32 v14, {s(sT+4)}, v14")
        e("v_lshrrev_b32 v15, 4, v1"); e("v_lshlrev_b32 v15, 3, v15"); e("v_bfe_u32 v16, v1, 2, 2"); e("v_add_u32 v15, v15, v16")
        e(f"v_mul_u32_u24 v15, {TBP}, v15"); e("v_and_b32 v16, 3, v1"); e("v_lshl_add_u32 v15, v16, 3, v15"); e(f"v_add_u32 v15, {s(sT+4)}, v15")
        e("v_and_b32 v16, 15, v1"); e(f"v_lshlrev_b32 v16, 6, v16"); e("v_lshrrev_b32 v17, 4, v1"); e("v_lshl_add_u32 v16, v17, 4, v16")
        e(f"s_lshl_b32 s6, {s(sJO)}, 7"); e(f"s_lshl_b32 {s(sT+1)}, {s(sWAVE)}, 5"); e(f"s_add_u32 s6, s6, {s(sT+1)}")
        e(f"s_lshl_b32 s6, s6, 6"); e(f"s_mul_i32 {s(sT+1)}, {s(sRO)}, {ROP}"); e(f"s_add_u32 s6, s6, {s(sT+1)}")
        e(f"s_add_u32 s6, s6, {X2T}")
        e("v_bfe_u32 v17, v1, 1, 2"); e("v_lshlrev_b32 v17, 12, v17"); e("v_bfe_u32 v18, v1, 3, 2"); e("v_lshl_add_u32 v17, v18, 4, v17")
        e("v_and_b32 v18, 1, v1"); e("v_lshl_add_u32 v17, v18, 3, v17"); e("v_lshrrev_b32 v18, 5, v1"); e("v_lshl_add_u32 v17, v18, 2, v17")
        e(f"s_lshl_b32 s7, {s(sRO)}, 6"); e(f"s_add_u32 s7, s7, {S3}")
    else:
        e("v_and_b32 v14, 31, v1"); e("v_lshlrev_b32 v14, 10, v14"); e("v_lshrrev_b32 v15, 5, v1"); e("v_lshl_add_u32 v14, v15, 5, v14")
        e(f"s_lshl_b32 {s(sT)}, {s(sRO)}, 15"); e(f"s_lshl_b32 {s(sT+1)}, {s(sJO)}, 8"); e(f"s_add_u32 {s(sT)}, {s(sT)}, {s(sT+1)}")
        e(f"s_lshl_b32 {s(sT+1)}, {s(sWAVE)}, 6"); e(f"s_add_u32 {s(sT)}, {s(sT)}, {s(sT+1)}")
        e(f"v_add_u32 v14, {s(sT)}, v14")
    XF = 104
    def pq_loads():
        for h in range(8):
            e(f"s_add_u32 {s(sT+3)}, s5, {h*HP}")
            e(f"buffer_load_dwordx4 {v(PQF+4*h,4)}, v11, {s(sSRD,4)}, {s(sT+3)} offen sc1")
    e("s_barrier")
    stamp(f"o{layer}_gate")
    if STAMPS and f"o{layer}_cnt" in STSET: e("s_mov_b32 s101, 0")
    if STAMPS and f"o{layer}_st0" in STSET:
        e("s_waitcnt vmcnt(0)"); stamp(f"o{layer}_st0")
    pq_loads()
    if STAMPS and f"o{layer}_pq" in STSET:
        stamp(f"o{layer}_pqi"); e("s_waitcnt vmcnt(0)"); stamp(f"o{layer}_pq")
    if int(OPTS.get("osl", 0)): e(f"s_sleep {OPTS.get('osl')}")
    lr = lab("of"); lg = lab("ofk")
    A.label(lr)
    for i in range(5):
        e(f"s_add_u32 {s(sT+3)}, s4, {1024*i}"); e(f"s_add_u32 m0, s3, {1024*i}")
        e(f"buffer_load_dwordx4 v19, {s(sSRD,4)}, {s(sT+3)} offen sc1 lds")
    e("s_waitcnt vmcnt(0)")
    for h in range(8): e(f"ds_read_b128 {v(KF+4*h,4)}, v10 offset:{h*FP}")
    e("s_waitcnt lgkmcnt(0)")
    if STAMPS and f"o{layer}_cnt" in STSET: e("s_add_u32 s101, s101, 1")
    maxtree([KF+4*h+o for h in range(8) for o in (0, 2)], 18)
    e("v_cmp_eq_u32 vcc, -1, v18")
    spin_check(lr, lg)
    stamp(f"o{layer}_fok")
    if STAMPS and f"o{layer}_cnt" in STSET:
        i = len(stnames); stnames.append(f"o{layer}_cnt"); e(f"s_mov_b32 s{84+i}, s101")
    lr = lab("oq"); lg = lab("oqk")
    A.label(lr)
    maxtree([PQF+4*h+o for h in range(8) for o in (0, 2)], 18)
    e("v_cmp_eq_u32 vcc, -1, v18")
    e(f"s_cbranch_vccz {lg}")
    e(f"s_sub_u32 {s(sSPIN)}, {s(sSPIN)}, 1"); e(f"s_cbranch_scc1 {lg}_x")
    pq_loads()
    e("s_waitcnt vmcnt(0)")
    e(f"s_branch {lr}")
    A.label(lg + "_x"); e(f"s_mov_b32 {s(sSPIN)}, 0")
    A.label(lg)
    stamp(f"o{layer}_ld")
    DB = [88, 104, 120, 136, 152, 168, 24, 56]
    def m1(h): e(f"v_mfma_f32_32x32x16_bf16 {v(DB[h],16)}, {v(KF+4*h,4)}, {v(PQF+4*h,4)}, 0")
    def proc2(h0):
        hs = (h0, h0 + 1)
        for h in hs: e(f"v_add_f32 {v(DB[h]+8)}, {s(sEPS6)}, {v(DB[h]+8)}")
        for h in hs: e(f"v_rcp_f32 {v(DB[h]+8)}, {v(DB[h]+8)}")
        for k in range(4):
            for h in hs: e(f"v_pk_mul_f32 {v(DB[h]+2*k,2)}, {v(DB[h]+2*k,2)}, {v(DB[h]+8,2)} op_sel_hi:[1,0]")
        for h in hs:
            for k in range(4): e(f"v_cvt_pk_bf16_f32 {v(DB[h]+10+k)}, {v(DB[h]+2*k)}, {v(DB[h]+2*k+1)}")
            e(f"ds_write_b128 v12, {v(DB[h]+10,4)} offset:{1024*h}")
    for h in range(6): m1(h)
    proc2(0)
    m1(6); m1(7)
    proc2(2); proc2(4); proc2(6)
    stamp(f"o{layer}_m1")
    e("s_waitcnt lgkmcnt(0)"); e("s_barrier")
    ACC = 24; NB = 8; OF = [56 + 4*i for i in range(NB)]
    for h in range(NB): e(f"ds_read_b128 {v(OF[h],4)}, v13 offset:{1024*h}")
    for k in range(8):
        e(f"v_lshlrev_b32 {v(XF+2*k)}, 16, {v(XRES+k)}"); e(f"v_and_b32 {v(XF+2*k+1)}, {s(sHI)}, {v(XRES+k)}")
    for h in range(32):
        e(f"s_waitcnt lgkmcnt({min(NB-1, 31-h)})")
        w_ = a(192 + 4*h, 4) if h < 16 else v(192 + 4*(h-16), 4)
        c_ = "0" if h == 0 else v(ACC, 16)
        e(f"v_mfma_f32_32x32x16_bf16 {v(ACC,16)}, {w_}, {v(OF[h % NB],4)}, {c_}")
        if h + NB < 32: e(f"ds_read_b128 {v(OF[h % NB],4)}, v13 offset:{1024*(h+NB)}")
    stamp(f"o{layer}_g2")
    for k in range(8): e(f"v_pk_add_f32 {v(XF+2*k,2)}, {v(XF+2*k,2)}, {v(ACC+2*k,2)}")
    PKD = 120
    for k in range(8): e(f"v_cvt_pk_bf16_f32 {v(PKD+k)}, {v(XF+2*k)}, {v(XF+2*k+1)}")
    if layer == 2:
        fl = OPTS.get("outfl", "").replace("_", " ")
        e(f"global_store_dwordx4 v14, {v(PKD,4)}, {s(sOUT,2)} {fl}")
        e(f"global_store_dwordx4 v14, {v(PKD+4,4)}, {s(sOUT,2)} offset:16 {fl}")
        return
    e(f"ds_write_b128 v14, {v(PKD,4)}"); e(f"ds_write_b128 v14, {v(PKD+4,4)} offset:16")
    e(f"v_pk_add_f32 v[64:65], {v(XF,2)}, {v(XF+2,2)}"); e(f"v_pk_mul_f32 v[66:67], {v(XF,2)}, {v(XF,2)}")
    e(f"v_pk_add_f32 v[68:69], {v(XF+4,2)}, {v(XF+6,2)}"); e(f"v_pk_mul_f32 v[70:71], {v(XF+2,2)}, {v(XF+2,2)}")
    for k in range(2, 8):
        e(f"v_pk_fma_f32 {v(66+4*(k&1),2)}, {v(XF+2*k,2)}, {v(XF+2*k,2)}, {v(66+4*(k&1),2)}")
        if k >= 4: e(f"v_pk_add_f32 {v(64+4*(k&1),2)}, {v(64+4*(k&1),2)}, {v(XF+2*k,2)}")
    e("s_waitcnt lgkmcnt(0)")
    for k in range(2):
        e(f"ds_read_b64_tr_b16 {v(80+4*k,2)}, v15 offset:{32*k}")
        e(f"ds_read_b64_tr_b16 {v(82+4*k,2)}, v15 offset:{32*k + 4*TBP}")
    e("v_pk_add_f32 v[64:65], v[64:65], v[68:69]"); e("v_pk_add_f32 v[66:67], v[66:67], v[70:71]")
    e("v_add_f32 v64, v64, v65"); e("v_add_f32 v65, v66, v67")
    e("v_permlane32_swap_b32 v64, v65")
    e("v_add_f32 v64, v64, v65")
    e(f"s_lshl_b32 {s(sT)}, {s(sWAVE)}, 8"); e(f"s_add_u32 {s(sT)}, {s(sT)}, {ST}"); e(f"v_lshl_add_u32 v66, v1, 2, {s(sT)}")
    e("ds_write_b32 v66, v64")
    e("s_waitcnt lgkmcnt(1)")
    if OPTS.get("nox2") != "1":
        e(f"buffer_store_dwordx4 v[80:83], v16, {s(sSRD,4)}, s6 offen sc1")
        e(f"buffer_store_dwordx4 v[84:87], v16, {s(sSRD,4)}, s6 offen offset:1024 sc1")
    e("s_waitcnt lgkmcnt(0)"); e("s_barrier")
    l = lab("osp")
    e(f"s_cmp_lg_u32 {s(sWAVE)}, 0"); e(f"s_cbranch_scc1 {l}")
    e(f"v_lshlrev_b32 v66, 2, v1"); e(f"v_add_u32 v67, {ST}, v66")
    for k in range(4): e(f"ds_read_b32 {v(68+k)}, v67 offset:{256*k}")
    e(f"s_lshl_b32 {s(sT)}, {s(sRO)}, 10"); e(f"s_add_u32 {s(sT)}, {s(sT)}, {SP}")
    e(f"s_lshl_b32 {s(sT+1)}, {s(sJO)}, 8"); e(f"s_add_u32 {s(sT+1)}, {s(sT+1)}, {s(sT)}")
    e("s_waitcnt lgkmcnt(0)")
    e("v_add_f32 v68, v68, v69"); e("v_add_f32 v70, v70, v71"); e("v_add_f32 v68, v68, v70")
    e(f"buffer_store_dword v68, v66, {s(sSRD,4)}, {s(sT+1)} offen sc1")
    if int(OPTS.get("spre", 5)): e(f"s_sleep {OPTS.get('spre', 5)}")
    lr = lab("spp"); lg = lab("spk")
    A.label(lr)
    for k in range(4): e(f"buffer_load_dword {v(72+k)}, v66, {s(sSRD,4)}, {s(sT)} offen offset:{256*k} sc1")
    e("s_waitcnt vmcnt(0)")
    maxtree([72, 73, 74, 75], 76)
    e("v_cmp_eq_u32 vcc, -1, v76")
    spin_check(lr, lg, bk=1)
    e("v_add_f32 v72, v72, v73"); e("v_add_f32 v74, v74, v75"); e("v_add_f32 v72, v72, v74")
    e("v_mov_b32 v73, v72")
    e("v_permlane32_swap_b32 v72, v73")
    stats_final(72, 73, 74, 75, 76)
    e("v_and_b32 v67, 31, v1"); e("v_lshlrev_b32 v67, 3, v67"); e(f"v_add_u32 v67, {ST + 1024}, v67")
    e("ds_write_b64 v67, v[74:75]")
    A.label(l)
    for k in range(8):
        e(f"v_lshlrev_b32 {v(XF+2*k)}, 16, {v(PKD+k)}"); e(f"v_and_b32 {v(XF+2*k+1)}, {s(sHI)}, {v(PKD+k)}")
    e("v_and_b32 v67, 31, v1"); e("v_lshlrev_b32 v67, 3, v67"); e(f"v_add_u32 v67, {ST + 1024}, v67")
    e("s_waitcnt lgkmcnt(0)"); e("s_barrier")
    stamp("o1_sp")
    e("ds_read_b64 v[74:75], v67")
    e("s_waitcnt lgkmcnt(0)")
    for k in range(8): e(f"v_pk_add_f32 {v(XF+2*k,2)}, {v(XF+2*k,2)}, v[74:75] op_sel_hi:[1,0] neg_lo:[0,1] neg_hi:[0,1]")
    for k in range(8): e(f"v_cvt_pk_bf16_f32 {v(PKD+k)}, {v(XF+2*k)}, {v(XF+2*k+1)}")
    for k in range(8):
        e(f"v_lshlrev_b32 {v(XF+2*k)}, 16, {v(PKD+k)}"); e(f"v_and_b32 {v(XF+2*k+1)}, {s(sHI)}, {v(PKD+k)}")
    for k in range(8): e(f"v_pk_mul_f32 {v(XF+2*k,2)}, {v(XF+2*k,2)}, v[74:75] op_sel:[0,1] op_sel_hi:[1,1]")
    for k in range(8): e(f"v_cvt_pk_bf16_f32 {v(PKD+k)}, {v(XF+2*k)}, {v(XF+2*k+1)}")
    TB2 = 4 * 32 * TBP
    e(f"ds_write_b128 v14, {v(PKD,4)} offset:{TB2}"); e(f"ds_write_b128 v14, {v(PKD+4,4)} offset:{TB2 + 16}")
    e(f"s_add_u32 s7, s6, {U2T - X2T}")
    e("s_waitcnt lgkmcnt(0)")
    for k in range(2):
        e(f"ds_read_b64_tr_b16 {v(88+4*k,2)}, v15 offset:{TB2 + 32*k}")
        e(f"ds_read_b64_tr_b16 {v(90+4*k,2)}, v15 offset:{TB2 + 32*k + 4*TBP}")
    e("s_waitcnt vmcnt(0) lgkmcnt(0)")
    e(f"buffer_store_dwordx4 v[88:91], v16, {s(sSRD,4)}, s7 offen sc1")
    e(f"buffer_store_dwordx4 v[92:95], v16, {s(sSRD,4)}, s7 offen offset:1024 sc1")

def build():
    prologue()
    stamp("start")
    idx_loads()
    p0_fills()
    stamp("p_iss")
    e("s_waitcnt vmcnt(6)")
    stamp("p_ld")
    p0_x0_write()
    p0_stats()
    e("s_waitcnt vmcnt(4) lgkmcnt(0)"); e("s_barrier")
    p0_x0_store()
    nonce_issue()
    p0_wfrag()
    kgen_setup()
    stamp("p_st")
    kgen_round(["X1", "X2", "Y1"], 0); kgen_round(["Y2"], 0)
    nonce_get(2)
    p0_stats_store()
    sent_regs(20)
    for g in xt_fill_groups(XT1, 3, 10): emit_group(g)
    stamp("p_s1")
    kgen_round(["X1", "X2", "Y1"], 1); kgen_round(["Y2"], 1)
    arrive(0, vm=0)
    stamp("arr1")
    fg = fill_groups(1, 58, 59)
    def upto_store():
        while fg:
            g = fg.pop(0); emit_group(g)
            if any("buffer_store" in l for l in g): return
    upto_store()
    kgen_round(["X1", "X2"], 2); upto_store(); kgen_round(["X1", "X2"], 3); upto_store()
    stamp("k_tab")
    kgen_mm([], upto_store)
    while fg: upto_store()
    e("s_waitcnt lgkmcnt(0)"); e("s_barrier")
    stamp("kgen")
    if stop_here("K"): return
    conv_setup(1)
    stamp("B1")
    rest = conv(1)
    stamp("C1")
    if stop_here("C1"): return
    for ins in rest:
        for l in ins: e(l)
    g_setup(1)
    e("s_waitcnt vmcnt(0)")
    colsums()
    stamp("B2")
    gphase(1)
    stamp("G1")
    if stop_here("G1"): return
    ophase(1)
    stamp("O1")
    if stop_here("O1"): return
    e("s_barrier")
    conv_setup(2)
    stamp("B4")
    conv(2)
    stamp("C2")
    if stop_here("C2"): return
    g_setup(2)
    stamp("B5")
    gphase(2)
    stamp("G2")
    if stop_here("G2"): return
    ophase(2)
    if STAMPS:
        e("s_waitcnt vmcnt(0)")
        stamp("O2")
        if OPTS.get("cntv"):
            for nm, r in (("c0_cnt", 96), ("slow_cnt", 97), ("re_cnt", 98)):
                i = len(stnames); stnames.append(nm); e(f"s_mov_b32 s{84+i}, s{r}")
        stamps_out()

build()
A.label("L_end")
e("s_endpgm")

def rb_int(j):
    u = struct.unpack("<I", struct.pack("<f", float(j)))[0]
    u = (u + 0x7fff + ((u >> 16) & 1)) & 0xffff0000
    return int(struct.unpack("<f", struct.pack("<I", u))[0])
idx = []
for x in range(2064):
    j = 2047 - x
    if j < 0: ent = 1024
    else:
        t = rb_int(j); ent = t if t < 512 else 512 + (t - 512) // 4
    idx.append(2 * ent)

lines, nn = hazard_pass(A.lines)
probs = check_branches(lines)
for p in probs: print("BRANCH HAZARD:", p, file=sys.stderr)
hdr = open("interleave_layers__ssm_conv_s4d__linear_attn_block__prompt.s.ref").read().split("; Override launch")[0]
out = hdr + "; Override launch geometry by editing the next line.\n"
out += f"; @launch grid=(256,1,1) block=(256,1,1) lds={LDS_BYTES}\n"
out += '.amdgcn_target "amdgcn-amd-amdhsa--gfx950"\n.text\n'
out += f".globl {NAME}\n.p2align 8\n.type {NAME},@function\n{NAME}:\n"
out += "\n".join(lines) + "\n"
out += ".p2align 6\n.type L_idx,@object\nL_idx:\n"
for i in range(0, len(idx), 16): out += "  .short " + ", ".join(str(x) for x in idx[i:i+16]) + "\n"
out += "L_tab_end:\n"
out += f""".section .rodata,"a"
.p2align 6
.amdhsa_kernel {NAME}
  .amdhsa_next_free_vgpr 512
  .amdhsa_next_free_sgpr 102
  .amdhsa_accum_offset 256
  .amdhsa_group_segment_fixed_size 0
  .amdhsa_kernarg_size 104
  .amdhsa_user_sgpr_count 2
  .amdhsa_user_sgpr_kernarg_segment_ptr 1
  .amdhsa_system_sgpr_workgroup_id_x 1
  .amdhsa_float_denorm_mode_32 3
.end_amdhsa_kernel
"""
open(sys.argv[1], "w").write(out)
if STAMPS: open(sys.argv[1] + ".names", "w").write(",".join(stnames))
print(f"wrote {sys.argv[1]}: {len(lines)} lines, {nn} nops inserted; WS_USED={WS_USED:#x}", file=sys.stderr)
```

```python
import sys, struct
from asmlib import *

NAME = "interleave_layers__ssm_conv_s4d__linear_attn_block__prompt_kernel"
OPTS = {}
for x in sys.argv[2:]:
    if "=" in x:
        k_, v_ = x.split("="); OPTS[k_] = v_
STOP = OPTS.get("stop")
SPINMAX = int(OPTS.get("spin", 100000))
BK = int(OPTS.get("bk", 2))

PITCH = 4224
S1 = 0x000000
S3 = 0x004000
FP = 640; FRP = 32 * FP + 128; F1 = 0x1200000 - 0x100000; F2 = F1 + 0x40000
STAMP_OFF = 0x020000
X0P = 8192 + 128
CNT = 0x030000
KVP1 = 0x040000; KVH = 1152; KVW = 4 * KVH; KVP2 = KVP1 + 0x128000
WFG = 0x2A0000; WFO = WFG + 0x180000
XSZ = 0x220000
XT1 = 0x4A0000; XT3 = XT1 + XSZ; X2T = XT3 + XSZ
ROP = 32768 + 256
HP = 65536 + 256
PQ1 = X2T + XSZ; PQ2 = PQ1 + 0x210000
X0T = 0x1200000
U2T = 0x1410000
SP = 0x030000
WS_USED = 0x1620000
assert PQ2 + 0x210000 <= F1
KC = 0; KCC = 4160; KCH = 4 * KCC
AT = 66560
MISC = AT + 65536
ST = MISC
WST = MISC + 2048
CT = WST + 8192; CTP = 2080
TB = WST; TBP = 80
LDS_BYTES = 163840
X0S = 147456
TKP = 224; TABC = 256 * TKP
U0 = AT; UP = 4608; X0 = AT + 2 * UP; RED = X0 + 8192
OT = AT

sU, sLOGA, sAIM, sCR, sCI, sLDT, sDSK = 8, 10, 12, 14, 16, 18, 20
sWQKV, sWO, sOUT, sDBG, sWS = 24, 26, 28, 30, 32
sSRD = 36; sSRD2 = 40
sWAVE, sXCD, sIDX, sCP, sRS, sJ, sRO, sJO = 44, 45, 46, 47, 48, 49, 50, 51
sSPIN = 52; sDSKV = 53
sT = 54
sLOG2E = 64; sEPS6 = 66; sM = 68; sHI = 76; sPC = 78; sINV512 = 80
sW = 34
sNON = 35

def f2u(f): return struct.unpack("<I", struct.pack("<f", f))[0]
A = Asm(); e = A.e
uid = [0]
def lab(p):
    uid[0] += 1; return f"L_{p}_{uid[0]}"

STAMPS = OPTS.get("stamps") == "1"
DEFSET = "start,arr1,kgen,B1,c1_pro,C1,B2,g1_kv,G1,o1_ld,O1,B4,c2_pro,C2,B5,G2,o2_ld,O2"
STSET = OPTS.get("st", DEFSET).split(",")
stnames = []
def stamp(name):
    if not STAMPS or name not in STSET: return
    i = len(stnames); stnames.append(name); assert i < 18
    e(f"{'s_memtime' if OPTS.get('clk') == '1' else 's_memrealtime'} s[82:83]"); e("s_waitcnt lgkmcnt(0)"); e(f"s_mov_b32 s{84+i}, s82")
def stamps_out():
    if not STAMPS: return
    if OPTS.get("dbgout"):
        l = lab("so")
        e(f"s_cmp_lg_u32 {s(sWAVE)}, 0"); e(f"s_cbranch_scc1 {l}")
        e(f"s_cmp_lg_u32 s2, {OPTS.get('dbgout')}"); e(f"s_cbranch_scc1 {l}")
        e("s_mov_b64 exec, 1")
        words = [2, 3, 5, 6, 7, 9, 10, 11, 13, 14, 15]
        for i in range(1, min(len(stnames), 12)):
            e(f"s_sub_u32 {s(sT)}, s{84+i}, s84")
            e(f"v_mov_b32 v10, {s(sT)}"); e(f"v_mov_b32 v11, {4*words[i-1]}")
            e(f"global_store_dword v11, v10, {s(sDBG,2)}")
        e("s_mov_b64 exec, -1")
        A.label(l)
        return
    l = lab("so")
    e(f"s_cmp_lg_u32 {s(sWAVE)}, {OPTS.get('stw', '0')}"); e(f"s_cbranch_scc1 {l}")
    e(f"s_lshl_b32 {s(sT)}, s2, 7"); e(f"s_add_u32 {s(sT)}, {s(sT)}, {STAMP_OFF}")
    e("s_mov_b64 exec, 1")
    for i in range(len(stnames)):
        e(f"v_mov_b32 v10, s{84+i}"); e(f"v_mov_b32 v11, {4*i}")
        e(f"buffer_store_dword v10, v11, {s(sSRD,4)}, {s(sT)} offen")
    e("s_mov_b64 exec, -1")
    A.label(l)
def stop_here(name):
    if STOP == name:
        e("s_waitcnt vmcnt(0) lgkmcnt(0)"); e("s_branch L_end"); return True
    return False

def sent_regs(r):
    for i in range(4): e(f"v_mov_b32 {v(r+i)}, -1")
def spin_check(retry, giveup, bk=None, cid=None):
    e(f"s_cbranch_vccz {giveup}")
    if OPTS.get("cntv") and cid is not None: e(f"s_add_u32 s{90+cid}, s{90+cid}, 1")
    bk = BK if bk is None else bk
    if bk: e(f"s_sleep {bk}")
    e(f"s_sub_u32 {s(sSPIN)}, {s(sSPIN)}, 1")
    e(f"s_cbranch_scc0 {retry}")
    e(f"s_mov_b32 {s(sSPIN)}, 0")
    A.label(giveup)
def maxtree(regs, dst):
    regs = list(regs); cur = regs.pop(0)
    while regs:
        if len(regs) >= 2:
            e(f"v_max3_u32 {v(dst)}, {v(cur)}, {v(regs[0])}, {v(regs[1])}"); regs = regs[2:]
        else:
            e(f"v_max_u32 {v(dst)}, {v(cur)}, {v(regs[0])}"); regs = []
        cur = dst

def arrive(k, vm=0):
    e(f"s_waitcnt vmcnt({vm}) lgkmcnt(0)"); e("s_barrier")
    l = lab("arr")
    e(f"s_cmp_lg_u32 {s(sWAVE)}, 0"); e(f"s_cbranch_scc1 {l}")
    e(f"s_and_b32 {s(sT)}, s2, 15"); e(f"s_lshl_b32 {s(sT)}, {s(sT)}, {4 if k == 0 else 12}")
    if k: e(f"s_add_u32 {s(sT)}, {s(sT)}, {CNT}")
    e(f"v_mov_b32 v10, {s(sT)}"); e("v_mov_b32 v11, 1")
    e("s_mov_b64 exec, 1")
    e(f"global_atomic_add v10, v11, {s(sDBG if k == 0 else sWS,2)}")
    e("s_mov_b64 exec, -1")
    A.label(l)
def wait(k, pre=0):
    l = lab("wt"); lp = lab("poll")
    e(f"s_cmp_lg_u32 {s(sWAVE)}, 0"); e(f"s_cbranch_scc1 {l}")
    e("v_and_b32 v10, 15, v0"); e(f"v_lshlrev_b32 v10, {4 if k == 0 else 12}, v10")
    if k: e(f"v_add_u32 v10, {CNT}, v10")
    e(f"s_movk_i32 {s(sT+1)}, {16 * max(k, 1)}")
    if pre: e(f"s_sleep {pre}")
    A.label(lp)
    e(f"global_load_dword v11, v10, {s(sDBG if k == 0 else sWS,2)} sc1")
    e("s_waitcnt vmcnt(0)")
    e(f"v_cmp_gt_u32 vcc, {s(sT+1)}, v11")
    spin_check(lp, l, bk=int(OPTS.get("wbk", 0)))
    e("s_barrier")

def cmul(d, x, w, t):
    return [f"v_pk_mul_f32 {v(t,2)}, {v(x,2)}, {v(w,2)} op_sel_hi:[1,0]",
            f"v_pk_fma_f32 {v(d,2)}, {v(x,2)}, {v(w,2)}, {v(t,2)} op_sel:[1,1,0] op_sel_hi:[0,1,1] neg_lo:[0,1,0]"]
def bf16r(dst, src):
    e(f"v_cvt_pk_bf16_f32 {v(dst)}, {v(src)}, {v(src)}"); e(f"v_lshlrev_b32 {v(dst)}, 16, {v(dst)}")
def stats_final(vsum, vsq, vm, vr, t, rcp=True):
    e(f"v_mul_f32 {v(t)}, {s(sINV512)}, {v(vsum)}")
    e(f"v_mul_f32 {v(t+1)}, {s(sINV512)}, {v(vsq)}")
    e(f"v_fma_f32 {v(t+1)}, -{v(t)}, {v(t)}, {v(t+1)}")
    e(f"v_max_f32 {v(t+1)}, 0, {v(t+1)}")
    e(f"v_cvt_pk_bf16_f32 {v(t)}, {v(t)}, {v(t+1)}")
    e(f"v_and_b32 {v(t+1)}, {s(sHI)}, {v(t)}"); e(f"v_lshlrev_b32 {v(vm)}, 16, {v(t)}")
    e(f"v_add_f32 {v(t+1)}, 0x3727c5ac, {v(t+1)}")
    bf16r(t + 1, t + 1)
    e(f"v_sqrt_f32 {v(t+1)}, {v(t+1)}")
    if rcp:
        bf16r(t + 1, t + 1)
        e(f"v_rcp_f32 {v(vr)}, {v(t+1)}")
    else:
        bf16r(vr, t + 1)

def kvp_addr(kvp, dst):
    e(f"s_lshl_b32 {s(dst)}, {s(sJ)}, 5"); e(f"s_add_u32 {s(dst)}, {s(dst)}, {s(sRS)}"); e(f"s_lshl_b32 {s(dst)}, {s(dst)}, 2")
    e(f"s_add_u32 {s(dst)}, {s(dst)}, {s(sWAVE)}"); e(f"s_mul_i32 {s(dst)}, {s(dst)}, {KVH}"); e(f"s_add_u32 {s(dst)}, {s(dst)}, {kvp}")
def f_addr(f, dst):
    e(f"s_lshr_b32 {s(dst)}, {s(sRS)}, 3"); e(f"s_lshl_b32 {s(sT+9)}, {s(sJ)}, 2"); e(f"s_add_u32 {s(dst)}, {s(dst)}, {s(sT+9)}")
    e(f"s_mul_i32 {s(dst)}, {s(dst)}, {FP}"); e(f"s_add_u32 {s(dst)}, {s(dst)}, {f}")
def pq_addr(pq, dst):
    e(f"s_lshl_b32 {s(dst)}, {s(sJ)}, 2"); e(f"s_add_u32 {s(dst)}, {s(dst)}, {s(sWAVE)}")
    e(f"s_mul_i32 {s(dst)}, {s(dst)}, {HP}"); e(f"s_lshl_b32 {s(sT+9)}, {s(sRS)}, 11"); e(f"s_add_u32 {s(dst)}, {s(dst)}, {s(sT+9)}")
    e(f"s_add_u32 {s(dst)}, {s(dst)}, {pq}")
def capture(fn):
    n = len(A.lines); fn(); out = [l.strip() for l in A.lines[n:]]; del A.lines[n:]
    return out
def fill_groups(layer, va, vb):
    S = 20; P1, K1, FF = 40, 41, 42
    pq = PQ1 if layer == 1 else PQ2; kvp = KVP1 if layer == 1 else KVP2; ff = F1 if layer == 1 else F2
    G = []
    def grp(fn): G.append(capture(fn))
    def single(fn):
        for l in capture(fn): G.append([l])
    single(lambda: sent_regs(S))
    def addr():
        e(f"s_lshl_b32 s{P1}, {s(sJ)}, 2"); e(f"s_add_u32 s{P1}, s{P1}, {s(sWAVE)}"); e(f"s_mul_i32 s{P1}, s{P1}, {HP}")
        e(f"s_lshl_b32 s61, {s(sRS)}, 11"); e(f"s_add_u32 s{P1}, s{P1}, s61"); e(f"s_add_u32 s{P1}, s{P1}, {pq}")
        e(f"s_lshl_b32 s{K1}, {s(sJ)}, 5"); e(f"s_add_u32 s{K1}, s{K1}, {s(sRS)}"); e(f"s_lshl_b32 s{K1}, s{K1}, 2")
        e(f"s_add_u32 s{K1}, s{K1}, {s(sWAVE)}"); e(f"s_mul_i32 s{K1}, s{K1}, {KVH}"); e(f"s_add_u32 s{K1}, s{K1}, {kvp}")
        e(f"s_lshr_b32 s{FF}, {s(sRS)}, 3"); e(f"s_lshl_b32 s61, {s(sJ)}, 2"); e(f"s_add_u32 s{FF}, s{FF}, s61")
        e(f"s_mul_i32 s{FF}, s{FF}, {FP}"); e(f"s_add_u32 s{FF}, s{FF}, {ff}")
        e(f"v_lshlrev_b32 {v(va)}, 4, v1"); e(f"v_lshlrev_b32 {v(vb)}, 2, v1")
    single(addr)
    G.append([f"buffer_store_dwordx4 {v(S,4)}, {v(va)}, {s(sSRD,4)}, s{K1} offen sc1", "MARK"])
    def st2():
        e("s_mov_b32 s62, -1"); e("s_mov_b32 s63, 0"); e("s_mov_b64 exec, s[62:63]")
        e(f"buffer_store_dword {v(S)}, {v(vb)}, {s(sSRD,4)}, s{K1} offen offset:1024 sc1")
        e("s_mov_b64 exec, -1")
    grp(st2)
    G.append([f"buffer_store_dwordx4 {v(S,4)}, {v(va)}, {s(sSRD,4)}, s{P1} offen sc1", "MARK"])
    G.append([f"buffer_store_dwordx4 {v(S,4)}, {v(va)}, {s(sSRD,4)}, s{P1} offen offset:1024 sc1", "MARK"])
    def fslice():
        l = lab("ff")
        e(f"s_cmp_lg_u32 {s(sWAVE)}, 2"); e(f"s_cbranch_scc1 {l}")
        e(f"s_and_b32 s61, {s(sRS)}, 7"); e("s_lshl_b32 s62, s61, 6")
        e(f"v_lshrrev_b32 {v(va)}, 3, v1"); e(f"v_mul_u32_u24 {v(va)}, {FRP}, {v(va)}"); e(f"v_and_b32 {v(vb)}, 7, v1"); e(f"v_lshl_add_u32 {v(va)}, {v(vb)}, 3, {v(va)}")
        e(f"v_add_u32 {v(vb)}, s62, {v(va)}")
        e(f"buffer_store_dwordx2 {v(S,2)}, {v(vb)}, {s(sSRD,4)}, s{FF} offen sc1")
        e("s_cmp_lg_u32 s61, 0"); e(f"s_cbranch_scc1 {l}")
        e("s_mov_b32 s62, 0x0f0f0f0f"); e("s_mov_b32 s63, 0x0f0f0f0f"); e("s_mov_b64 exec, s[62:63]")
        e(f"buffer_store_dwordx2 {v(S,2)}, {v(va)}, {s(sSRD,4)}, s{FF} offen offset:512 sc1")
        e("s_mov_b64 exec, -1")
        A.label(l)
    grp(fslice)
    return G
def xt_fill_groups(buf, sreg, va):
    G = []
    G.append([f"s_lshr_b32 s{sreg}, {s(sWAVE)}, 1"]); G.append([f"s_lshl_b32 s61, {s(sCP)}, 1"]); G.append([f"s_add_u32 s{sreg}, s{sreg}, s61"])
    G.append([f"s_mul_i32 s{sreg}, s{sreg}, {PITCH}"]); G.append([f"s_and_b32 s61, {s(sWAVE)}, 1"]); G.append(["s_lshl_b32 s61, s61, 11"])
    G.append([f"s_add_u32 s{sreg}, s{sreg}, s61"]); G.append([f"s_add_u32 s{sreg}, s{sreg}, {buf}"]); G.append([f"v_lshlrev_b32 {v(va)}, 4, v1"])
    G.append([f"buffer_store_dwordx4 v[20:23], {v(va)}, {s(sSRD,4)}, s{sreg} offen sc1"])
    G.append([f"buffer_store_dwordx4 v[20:23], {v(va)}, {s(sSRD,4)}, s{sreg} offen offset:1024 sc1"])
    return G
def emit_group(g):
    for l in g:
        if l == "MARK": continue
        if l.endswith(":"): A.label(l[:-1])
        else: e(l)

XR = 24; PRM = 32; IDX = 40; XC = 176
def prologue():
    stamp("t0")
    if OPTS.get("cntv"):
        for r_ in range(90, 99): e(f"s_mov_b32 s{r_}, 0")
    e(f"s_getpc_b64 {s(sPC,2)}")
    A.label("L_pc")
    e("s_cmp_ge_u32 s2, 256")
    e("s_cbranch_scc1 L_end")
    e("s_load_dwordx16 s[8:23], s[0:1], 0")
    e("s_load_dwordx8 s[24:31], s[0:1], 64")
    e("s_load_dwordx2 s[32:33], s[0:1], 96")
    e("s_memrealtime s[82:83]")
    e("v_lshlrev_b32 v10, 7, v0")
    e("v_min_u32 v11, L_tab_end - L_pc - 4, v10")
    e(f"global_load_dword v38, v11, {s(sPC,2)}")
    e("v_add_u32 v10, 0x8000, v10")
    e("v_min_u32 v10, L_tab_end - L_pc - 4, v10")
    e(f"global_load_dword v39, v10, {s(sPC,2)}")
    e("v_lshrrev_b32 v1, 6, v0")
    e(f"s_and_b32 {s(sXCD)}, s2, 7")
    e(f"s_lshr_b32 {s(sIDX)}, s2, 3")
    e(f"v_readfirstlane_b32 {s(sWAVE)}, v1")
    e(f"s_lshl_b32 {s(sCP)}, {s(sXCD)}, 5"); e(f"s_add_u32 {s(sCP)}, {s(sCP)}, {s(sIDX)}")
    e("v_and_b32 v1, 63, v0")
    e(f"s_lshl_b32 {s(sT)}, {s(sCP)}, 9"); e(f"v_lshl_add_u32 v10, v0, 1, {s(sT)}")
    e(f"s_lshl_b32 {s(sT)}, {s(sCP)}, 2"); e("v_lshrrev_b32 v12, 7, v0"); e(f"v_lshl_add_u32 v11, v12, 1, {s(sT)}")
    e(f"s_lshl_b32 {s(sT)}, s2, 13"); e(f"v_lshl_add_u32 v13, v0, 5, {s(sT)}")
    e(f"s_mul_i32 s6, s2, 5462"); e(f"s_lshr_b32 s6, s6, 16"); e(f"s_mul_i32 s7, s6, 12"); e(f"s_sub_u32 s7, s2, s7")
    e(f"s_sub_u32 {s(sT+1)}, s2, 192"); e(f"s_lshr_b32 {s(sT)}, {s(sT+1)}, 1"); e(f"s_and_b32 {s(sT+1)}, {s(sT+1)}, 1")
    e("s_cmp_ge_u32 s2, 192")
    e(f"s_cselect_b32 s6, {s(sT)}, s6"); e(f"s_cselect_b32 s7, {s(sT+1)}, s7")
    e(f"s_cselect_b32 {s(sT+2)}, 4, 5")
    e(f"s_cselect_b32 {s(sT+3)}, 2, 3")
    e(f"s_cselect_b32 {s(sT+4)}, 10, 0")
    e(f"s_movk_i32 {s(sT+5)}, 3072"); e(f"s_cselect_b32 {s(sT+5)}, 1024, {s(sT+5)}")
    e(f"s_cselect_b32 {s(sT+6)}, 9, 8")
    e(f"s_cselect_b32 {s(sT+7)}, 5, 4")
    e(f"s_lshl_b32 {s(sT)}, s6, {s(sT+2)}"); e(f"s_lshl_b32 {s(sT+1)}, {s(sWAVE)}, {s(sT+3)}"); e(f"s_add_u32 {s(sT)}, {s(sT)}, {s(sT+1)}")
    e(f"s_mul_i32 {s(sT)}, {s(sT)}, {s(sT+5)}"); e(f"s_lshl_b32 {s(sT+1)}, s7, {s(sT+6)}"); e(f"s_add_u32 s4, {s(sT)}, {s(sT+1)}")
    e(f"v_lshrrev_b32 v14, {s(sT+7)}, v1"); e(f"v_mul_lo_u32 v14, {s(sT+5)}, v14")
    e(f"s_lshl_b32 {s(sT+1)}, 1, {s(sT+7)}"); e(f"s_sub_u32 {s(sT+1)}, {s(sT+1)}, 1"); e(f"v_and_b32 v15, {s(sT+1)}, v1"); e("v_lshl_add_u32 v14, v15, 4, v14")
    e(f"s_lshl_b32 {s(sT+1)}, 64, 0"); e(f"s_lshr_b32 {s(sT+1)}, 64, {s(sT+7)}"); e(f"s_mul_i32 s5, {s(sT+1)}, {s(sT+5)}")
    e(f"s_lshl_b32 {s(sT+3)}, {s(sWAVE)}, 11"); e(f"s_add_u32 {s(sT+3)}, {s(sT+3)}, {WST}")
    e("s_cmp_ge_u32 s2, 192")
    e("s_waitcnt lgkmcnt(0)")
    stamp("karg")
    if True:
        e(f"v_min_u32 v16, {(WS_USED - 1) // 0x200000}, v1"); e("v_lshlrev_b32 v16, 21, v16")
        e(f"global_load_dword v19, v16, {s(sWS,2)}")
    e("s_cmp_ge_u32 s2, 192")
    e(f"global_load_ushort {v(PRM)}, v10, {s(sLOGA,2)}")
    e(f"global_load_ushort {v(PRM+1)}, v10, {s(sAIM,2)}")
    e(f"global_load_ushort {v(PRM+4)}, v11, {s(sLDT,2)}")
    e(f"global_load_dwordx4 {v(XR,4)}, v13, {s(sU,2)}")
    e(f"global_load_dwordx4 {v(XR+4,4)}, v13, {s(sU,2)} offset:16")
    e(f"global_load_ushort {v(PRM+2)}, v10, {s(sCR,2)}")
    e(f"global_load_ushort {v(PRM+3)}, v10, {s(sCI,2)}")
    e(f"global_load_ushort {v(PRM+5)}, v11, {s(sDSK,2)}")
    e(f"s_cselect_b32 {s(sSRD2)}, {s(sWO)}, {s(sWQKV)}"); e(f"s_cselect_b32 {s(sSRD2+1)}, {s(sWO+1)}, {s(sWQKV+1)}")
    e(f"s_mov_b32 {s(sT)}, {512*1536*2}"); e(f"s_cselect_b32 {s(sSRD2+2)}, {512*512*2}, {s(sT)}")
    e(f"s_and_b32 {s(sSRD2+1)}, {s(sSRD2+1)}, 0xffff"); e(f"s_mov_b32 {s(sSRD2+3)}, 0x20000")
    ln = lab("nw")
    e("v_mov_b32 v23, 4")
    e(f"s_or_b32 {s(sT)}, s2, {s(sWAVE)}"); e(f"s_cmp_lg_u32 {s(sT)}, 0"); e(f"s_cbranch_scc1 {ln}")
    e(f"s_or_b32 {s(sT)}, s82, 1"); e(f"v_mov_b32 v58, {s(sT)}")
    e("s_mov_b64 exec, 1")
    e(f"global_store_dword v23, v58, {s(sDBG,2)} sc1")
    e("s_mov_b64 exec, -1")
    e("s_waitcnt vmcnt(63)")
    A.label(ln)
    e(f"s_mov_b32 m0, {s(sT+3)}")
    e(f"buffer_load_dwordx4 v14, {s(sSRD2,4)}, s4 offen lds")
    e(f"s_add_u32 s4, s4, s5"); e(f"s_add_u32 m0, {s(sT+3)}, 1024")
    e(f"buffer_load_dwordx4 v14, {s(sSRD2,4)}, s4 offen lds")
    e(f"s_and_b32 {s(sT)}, {s(sIDX)}, 3"); e(f"s_lshl_b32 {s(sRS)}, {s(sXCD)}, 2"); e(f"s_add_u32 {s(sRS)}, {s(sRS)}, {s(sT)}")
    e(f"s_lshr_b32 {s(sJ)}, {s(sIDX)}, 2")
    e(f"s_and_b32 {s(sT)}, {s(sJ)}, 1"); e(f"s_lshl_b32 {s(sRO)}, {s(sRS)}, 1"); e(f"s_add_u32 {s(sRO)}, {s(sRO)}, {s(sT)}")
    e(f"s_lshr_b32 {s(sJO)}, {s(sJ)}, 1")
    e(f"s_mov_b32 {s(sLOG2E)}, {f2u(1.4426950408889634):#x}"); e(f"s_mov_b32 {s(sLOG2E+1)}, {s(sLOG2E)}")
    e(f"s_mov_b32 {s(sEPS6)}, {f2u(1e-6):#x}"); e(f"s_mov_b32 {s(sEPS6+1)}, {s(sEPS6)}")
    e(f"s_mov_b32 {s(sINV512)}, {f2u(1.0/512):#x}"); e(f"s_mov_b32 {s(sINV512+1)}, {s(sINV512)}")
    e(f"s_mov_b32 {s(sHI)}, 0xffff0000")
    e(f"s_mov_b32 {s(sSPIN)}, {SPINMAX}")
    e(f"s_mov_b32 {s(sSRD)}, {s(sWS)}"); e(f"s_and_b32 {s(sSRD+1)}, {s(sWS+1)}, 0xffff")
    e(f"s_mov_b32 {s(sSRD+2)}, {WS_USED:#x}"); e(f"s_mov_b32 {s(sSRD+3)}, 0x20000")

def p0_fills():
    pass

def nonce_issue():
    e("v_mov_b32 v17, 4")
    e(f"global_load_dword v58, v17, {s(sDBG,2)} sc1")
def nonce_get(vm=0):
    lr = lab("nr"); lg = lab("ng"); l0 = lab("n0")
    e(f"s_waitcnt vmcnt({vm})")
    e(f"s_branch {l0}")
    A.label(lr)
    e(f"global_load_dword v58, v17, {s(sDBG,2)} sc1")
    e("s_waitcnt vmcnt(0)")
    A.label(l0)
    e("v_cmp_eq_u32 vcc, 0, v58")
    spin_check(lr, lg, bk=1)
    e(f"v_readfirstlane_b32 {s(sNON)}, v58")

def idx_loads():
    e(f"s_add_u32 {s(sT)}, {s(sPC)}, L_idx - L_pc"); e(f"s_addc_u32 {s(sT+1)}, {s(sPC+1)}, 0")
    e("v_and_b32 v10, 127, v0"); e("v_lshlrev_b32 v10, 4, v10")
    e(f"global_load_dwordx4 {v(IDX,4)}, v10, {s(sT,2)}")
    e(f"global_load_dwordx4 {v(IDX+4,4)}, v10, {s(sT,2)} offset:16")
    e(f"global_load_dwordx4 {v(IDX+8,4)}, v10, {s(sT,2)} offset:2048")
    e(f"global_load_dwordx4 {v(IDX+12,4)}, v10, {s(sT,2)} offset:2064")

def gather_loads():
    out = []
    for i in range(4): out.append(f"global_load_dword {v(XC+i)}, v19, {s(sU,2)} offset:{1024*i}")
    for i in range(4): out.append(f"global_load_dword {v(XC+4+i)}, v18, {s(sU,2)} offset:{1024*i}")
    return out

def p0_x0_write():
    e(f"v_lshlrev_b32 v10, 5, v0"); e(f"v_add_u32 v10, {X0S}, v10")
    e(f"ds_write_b128 v10, {v(XR,4)}"); e(f"ds_write_b128 v10, {v(XR+4,4)} offset:16")
def p0_x0_store():
    e("v_bfe_u32 v10, v1, 2, 2"); e("v_lshlrev_b32 v10, 10, v10")
    e("v_lshrrev_b32 v11, 4, v1"); e("v_lshl_add_u32 v10, v11, 5, v10")
    e("v_and_b32 v11, 3, v1"); e("v_lshl_add_u32 v10, v11, 3, v10")
    e(f"s_lshl_b32 {s(sT)}, {s(sWAVE)}, 8"); e(f"s_add_u32 {s(sT)}, {s(sT)}, {X0S}"); e(f"v_add_u32 v10, {s(sT)}, v10")
    for k in range(2):
        e(f"ds_read_b64_tr_b16 {v(100+4*k,2)}, v10 offset:{128*k}"); e(f"ds_read_b64_tr_b16 {v(102+4*k,2)}, v10 offset:{128*k + 4096}")
    e(f"s_mul_i32 {s(sT)}, s2, {X0P}"); e(f"s_lshl_b32 {s(sT+1)}, {s(sWAVE)}, 11"); e(f"s_add_u32 {s(sT)}, {s(sT)}, {s(sT+1)}")
    e(f"s_add_u32 {s(sT)}, {s(sT)}, {X0T}")
    e("v_lshlrev_b32 v11, 4, v1")
    e("s_waitcnt lgkmcnt(0)")
    e(f"buffer_store_dwordx4 v[100:103], v11, {s(sSRD,4)}, {s(sT)} offen sc1")
    e(f"buffer_store_dwordx4 v[104:107], v11, {s(sSRD,4)}, {s(sT)} offen offset:1024 sc1")

def p0_stats():
    F = 64
    for i in range(8):
        e(f"v_lshlrev_b32 {v(F+2*i)}, 16, {v(XR+i)}"); e(f"v_and_b32 {v(F+2*i+1)}, {s(sHI)}, {v(XR+i)}")
    for i in range(4): e(f"v_pk_add_f32 {v(80+2*i,2)}, {v(F+4*i,2)}, {v(F+4*i+2,2)}")
    e(f"v_pk_mul_f32 v[88:89], {v(F,2)}, {v(F,2)}"); e(f"v_pk_mul_f32 v[90:91], {v(F+2,2)}, {v(F+2,2)}")
    e(f"v_pk_add_f32 v[80:81], v[80:81], v[82:83]"); e(f"v_pk_add_f32 v[84:85], v[84:85], v[86:87]")
    for i in range(2, 8): e(f"v_pk_fma_f32 {v(88+2*(i&1),2)}, {v(F+2*i,2)}, {v(F+2*i,2)}, {v(88+2*(i&1),2)}")
    e(f"v_pk_add_f32 v[80:81], v[80:81], v[84:85]"); e("v_pk_add_f32 v[88:89], v[88:89], v[90:91]")
    e("v_add_f32 v80, v80, v81"); e("v_add_f32 v82, v88, v89")
    for r_ in (8, 4, 2, 1):
        e(f"v_add_f32_dpp v80, v80, v80 row_ror:{r_} row_mask:0xf bank_mask:0xf")
        e(f"v_add_f32_dpp v82, v82, v82 row_ror:{r_} row_mask:0xf bank_mask:0xf")
    e("v_add_f32_dpp v80, v80, v80 row_bcast:15 row_mask:0xa bank_mask:0xf")
    e("v_add_f32_dpp v82, v82, v82 row_bcast:15 row_mask:0xa bank_mask:0xf")
    stats_final(80, 82, 56, 57, 86, rcp=False)
    e("v_lshrrev_b32 v56, 16, v56"); e(f"v_and_or_b32 v56, v57, {s(sHI)}, v56")

def p0_stats_store():
    e(f"v_mov_b32 v57, {s(sNON)}")
    e(f"s_lshl_b32 {s(sT)}, s2, 4"); e(f"s_lshl_b32 {s(sT+1)}, {s(sWAVE)}, 12"); e(f"s_add_u32 {s(sT)}, {s(sT)}, {s(sT+1)}")
    e(f"s_add_u32 {s(sT)}, {s(sT)}, {S1}")
    e("v_lshrrev_b32 v10, 5, v1"); e(f"v_lshl_add_u32 v10, v10, 3, {s(sT)}")
    e(f"s_mov_b32 {s(sT+2)}, 0x00010000"); e(f"s_mov_b32 {s(sT+3)}, 0x00010000")
    e(f"s_mov_b64 exec, {s(sT+2,2)}")
    e(f"buffer_store_dwordx2 v[56:57], v10, {s(sSRD,4)}, 0 offen sc1")
    e("s_mov_b64 exec, -1")

def p0_wfrag():
    lo = lab("wo2"); lj = lab("wj2")
    e("s_cmp_ge_u32 s2, 192"); e(f"s_cbranch_scc1 {lo}")
    e("v_lshrrev_b32 v10, 2, v1"); e("v_lshlrev_b32 v10, 8, v10")
    e("v_and_b32 v11, 3, v1"); e("v_lshl_add_u32 v10, v11, 3, v10")
    e(f"s_lshl_b32 {s(sT)}, {s(sWAVE)}, 6"); e(f"s_add_u32 {s(sT)}, {s(sT)}, {WST}")
    e(f"v_add_u32 v10, {s(sT)}, v10")
    e("ds_read_b64_tr_b16 v[88:89], v10"); e("ds_read_b64_tr_b16 v[90:91], v10 offset:4096")
    e("ds_read_b64_tr_b16 v[92:93], v10 offset:32"); e("ds_read_b64_tr_b16 v[94:95], v10 offset:4128")
    e(f"s_lshr_b32 {s(sT)}, s7, 2")
    e(f"s_add_u32 {s(sT)}, {s(sT)}, 2"); e(f"s_cmp_ge_u32 {s(sT)}, 3")
    e(f"s_cselect_b32 {s(sT+1)}, 3, 0"); e(f"s_sub_u32 {s(sT)}, {s(sT)}, {s(sT+1)}")
    e(f"s_and_b32 {s(sT+1)}, s7, 3"); e(f"s_lshl_b32 {s(sT+1)}, {s(sT+1)}, 3")
    e(f"s_lshl_b32 {s(sT+2)}, {s(sWAVE)}, 1"); e(f"s_add_u32 {s(sT+1)}, {s(sT+1)}, {s(sT+2)}")
    e(f"s_mul_i32 {s(sT+1)}, {s(sT+1)}, 3"); e(f"s_add_u32 {s(sT+1)}, {s(sT+1)}, {s(sT)}")
    e(f"s_lshl_b32 {s(sT+1)}, {s(sT+1)}, 4"); e(f"s_add_u32 {s(sT+1)}, {s(sT+1)}, s6")
    e(f"s_lshl_b32 {s(sT+1)}, {s(sT+1)}, 10"); e(f"s_add_u32 {s(sT+1)}, {s(sT+1)}, {WFG}")
    e(f"s_add_u32 {s(sT+2)}, {s(sT+1)}, 49152")
    e(f"s_branch {lj}")
    A.label(lo)
    e("v_lshrrev_b32 v10, 5, v1"); e("v_lshlrev_b32 v10, 2, v10")
    e("v_bfe_u32 v11, v1, 2, 2"); e("v_add_u32 v10, v10, v11"); e("v_lshlrev_b32 v10, 9, v10")
    e("v_and_b32 v11, 1, v1"); e("v_lshl_add_u32 v10, v11, 5, v10")
    e("v_bfe_u32 v11, v1, 4, 1"); e("v_lshl_add_u32 v10, v11, 4, v10")
    e("v_bfe_u32 v11, v1, 1, 1"); e("v_lshl_add_u32 v10, v11, 3, v10")
    e(f"s_lshl_b32 {s(sT)}, {s(sWAVE)}, 7"); e(f"s_add_u32 {s(sT)}, {s(sT)}, {WST}")
    e(f"v_add_u32 v10, {s(sT)}, v10")
    e("ds_read_b64_tr_b16 v[88:89], v10"); e("ds_read_b64_tr_b16 v[90:91], v10 offset:4096")
    e("ds_read_b64_tr_b16 v[92:93], v10 offset:64"); e("ds_read_b64_tr_b16 v[94:95], v10 offset:4160")
    e(f"s_lshl_b32 {s(sT+1)}, s7, 3"); e(f"s_lshl_b32 {s(sT+2)}, {s(sWAVE)}, 1"); e(f"s_add_u32 {s(sT+1)}, {s(sT+1)}, {s(sT+2)}")
    e(f"s_lshl_b32 {s(sT+1)}, {s(sT+1)}, 5"); e(f"s_add_u32 {s(sT+1)}, {s(sT+1)}, s6")
    e(f"s_lshl_b32 {s(sT+1)}, {s(sT+1)}, 10"); e(f"s_add_u32 {s(sT+1)}, {s(sT+1)}, {WFO}")
    e(f"s_add_u32 {s(sT+2)}, {s(sT+1)}, 32768")
    A.label(lj)
    e("v_lshlrev_b32 v10, 4, v1")
    e("s_waitcnt lgkmcnt(0)")
    e(f"buffer_store_dwordx4 v[88:91], v10, {s(sSRD,4)}, {s(sT+1)} offen sc1")
    e(f"buffer_store_dwordx4 v[92:95], v10, {s(sSRD,4)}, {s(sT+2)} offen sc1")

def pw_multi(items, a2, b2):
    for (d, t, tm) in items:
        if t == 1:
            e(f"v_mov_b32 {v(tm)}, {v(a2)}"); e(f"v_fract_f32 {v(tm+1)}, {v(b2)}")
        else:
            c = f"{float(t)}" if t in (2, 4) else f"{f2u(float(t)):#x}"
            e(f"v_mul_f32 {v(tm)}, {c}, {v(a2)}"); e(f"v_mul_f32 {v(tm+1)}, {c}, {v(b2)}")
    for (d, t, tm) in items:
        e(f"v_exp_f32 {v(tm)}, {v(tm)}")
        if t != 1: e(f"v_fract_f32 {v(tm+1)}, {v(tm+1)}")
    for (d, t, tm) in items:
        e(f"v_cos_f32 {v(d)}, {v(tm+1)}"); e(f"v_sin_f32 {v(d+1)}, {v(tm+1)}")
    for (d, t, tm) in items:
        e(f"v_pk_mul_f32 {v(d,2)}, {v(d,2)}, {v(tm,2)} op_sel_hi:[1,0]")

W1, W4, W16, W64, W512 = 100, 102, 104, 106, 108
CH = {"X1": 112, "X2": 128, "Y1": 144, "Y2": 160}
def kgen_setup():
    for i in range(6): e(f"v_lshlrev_b32 {v(PRM+i)}, 16, {v(PRM+i)}")
    e(f"v_readfirstlane_b32 {s(sDSKV)}, {v(PRM+5)}")
    dt, are = 60, 61
    e(f"v_mul_f32 {v(dt)}, {s(sLOG2E)}, {v(PRM+4)}"); e(f"v_mul_f32 {v(are)}, {s(sLOG2E)}, {v(PRM)}")
    e(f"v_exp_f32 {v(dt)}, {v(dt)}"); e(f"v_exp_f32 {v(are)}, {v(are)}")
    e(f"v_cvt_pk_bf16_f32 {v(dt)}, {v(dt)}, {v(are)}")
    e(f"v_and_b32 {v(are)}, {s(sHI)}, {v(dt)}"); e(f"v_lshlrev_b32 {v(dt)}, 16, {v(dt)}")
    a2, b2 = 62, 63
    e(f"v_mul_f32 {v(a2)}, -{v(are)}, {v(dt)}"); e(f"v_mul_f32 {v(b2)}, {v(PRM+1)}, {v(dt)}")
    e(f"v_mul_f32 {v(a2)}, {s(sLOG2E)}, {v(a2)}"); e(f"v_mul_f32 {v(b2)}, 0.15915494, {v(b2)}")
    pw_multi([(W1, 1, 64), (W4, 4, 66), (W16, 16, 68), (W64, 64, 70), (W512, 512, 72)], a2, b2)
    e(f"v_add_f32 {v(dt)}, {v(dt)}, {v(dt)}")
    e(f"v_mul_f32 {v(CH['X1'])}, {v(PRM+2)}, {v(dt)}"); e(f"v_mul_f32 {v(CH['X1']+1)}, {v(PRM+3)}, {v(dt)}")
    for l in cmul(CH['X2'], CH['X1'], W512, 64): e(l)
    e(f"v_mov_b32 {v(CH['Y1'])}, 1.0"); e(f"v_mov_b32 {v(CH['Y1']+1)}, 0"); e(f"v_mov_b32 {v(CH['Y2'])}, 1.0"); e(f"v_mov_b32 {v(CH['Y2']+1)}, 0")
    e(f"v_lshrrev_b32 v96, 7, v0"); e(f"v_mul_u32_u24 v96, {TABC}, v96")
    e(f"v_and_b32 v97, 127, v0"); e(f"v_mul_u32_u24 v97, {TKP}, v97"); e("v_add_u32 v96, v96, v97")

def kgen_round(chains, rnd, side=None):
    Wof = {"X1": W16, "X2": W64, "Y1": W1, "Y2": W4}
    mbase = {"X1": 0, "X2": 32, "Y1": 64, "Y2": 80}
    tmp = {"X1": 64, "X2": 66, "Y1": 68, "Y2": 70}
    nval = {c: 8 for c in chains}
    if rnd == 3 and "X2" in chains: nval["X2"] = 1
    for i in range(1, 8):
        ls = [cmul(CH[c] + 2*i, CH[c] + 2*(i-1), Wof[c], tmp[c]) for c in chains if i < nval[c]]
        for k in range(2):
            for l in ls: e(l[k])
        if side and i in (1, 3, 5, 7) and len(side): e(side.pop(0))
    P = {c: 72 + 8*k for k, c in enumerate(chains)}
    for c in chains:
        neg = "-" if c[0] == "X" else ""
        for k in range(4):
            i0, i1 = (2*k, 2*k+1) if nval[c] == 8 else (0, 0)
            e(f"v_cvt_pk_bf16_f32 {v(P[c]+k)}, {v(CH[c]+2*i0)}, {v(CH[c]+2*i1)}")
            e(f"v_cvt_pk_bf16_f32 {v(P[c]+4+k)}, {neg}{v(CH[c]+2*i0+1)}, {neg}{v(CH[c]+2*i1+1)}")
        off = (mbase[c] + 8*rnd) * 2
        e(f"ds_write_b128 v96, {v(P[c],4)} offset:{off}")
        e(f"ds_write_b128 v96, {v(P[c]+4,4)} offset:{off + 128*TKP}")
    ls = [cmul(CH[c], CH[c] + 14, Wof[c], tmp[c]) for c in chains if nval[c] == 8 and not ((c[0] == "Y" and rnd == 1) or rnd == 3)]
    for k in range(2):
        for l in ls: e(l[k])

def kgen_mm(gl, fs):
    s1_issue()
    e("s_waitcnt lgkmcnt(0)"); e("s_barrier")
    e(f"s_lshr_b32 {s(sT)}, {s(sWAVE)}, 1"); e(f"s_and_b32 {s(sT+1)}, {s(sWAVE)}, 1")
    e(f"s_mul_i32 {s(sT+2)}, {s(sT)}, {TABC}")
    e(f"s_lshl_b32 {s(sT+3)}, {s(sT+1)}, 5"); e(f"s_add_u32 {s(sT+3)}, {s(sT+3)}, 128"); e(f"s_add_u32 {s(sT+3)}, {s(sT+3)}, {s(sT+2)}")
    e(f"s_lshl_b32 {s(sT+4)}, {s(sT+1)}, 6"); e(f"s_add_u32 {s(sT+4)}, {s(sT+4)}, {s(sT+2)}")
    e("v_lshrrev_b32 v10, 2, v1"); e(f"v_mul_u32_u24 v10, {TKP}, v10"); e("v_and_b32 v11, 3, v1"); e("v_lshl_add_u32 v10, v11, 3, v10")
    e(f"v_add_u32 v11, {s(sT+3)}, v10"); e(f"v_add_u32 v12, {s(sT+4)}, v10")
    YF, XF = 64, 96
    for ks in range(8):
        o = ks * 32 * TKP
        e(f"ds_read_b64_tr_b16 {v(YF+4*ks,2)}, v11 offset:{o}"); e(f"ds_read_b64_tr_b16 {v(YF+4*ks+2,2)}, v11 offset:{o + 16*TKP}")
        for tl in range(2):
            e(f"ds_read_b64_tr_b16 {v(XF+32*tl+4*ks,2)}, v12 offset:{o + 32*tl}"); e(f"ds_read_b64_tr_b16 {v(XF+32*tl+4*ks+2,2)}, v12 offset:{o + 16*TKP + 32*tl}")
    e("v_lshrrev_b32 v13, 7, v0")
    e(f"v_mul_u32_u24 v14, {CTP}, v13"); e(f"v_add_u32 v14, {CT}, v14")
    e(f"v_mul_u32_u24 v15, {KCH}, v13"); e("v_and_b32 v13, 127, v0"); e("v_lshl_add_u32 v15, v13, 4, v15")
    fs()
    for ks in range(8):
        e(f"s_waitcnt lgkmcnt({min(15, 6*(7-ks))})")
        for tl in range(2):
            c_ = "0" if ks == 0 else v(160 + 4*tl, 4)
            e(f"v_mfma_f32_16x16x32_bf16 {v(160+4*tl,4)}, {v(YF+4*ks,4)}, {v(XF+32*tl+4*ks,4)}, {c_}")
    e(f"s_mul_i32 {s(sT+2)}, {s(sT)}, {CTP}"); e(f"s_lshl_b32 {s(sT+3)}, {s(sT+1)}, 10"); e(f"s_add_u32 {s(sT+2)}, {s(sT+2)}, {s(sT+3)}")
    e(f"s_add_u32 {s(sT+2)}, {s(sT+2)}, {CT}")
    e("v_and_b32 v10, 15, v1"); e("v_lshlrev_b32 v10, 5, v10"); e("v_lshrrev_b32 v11, 4, v1"); e("v_lshl_add_u32 v10, v11, 3, v10")
    e(f"v_add_u32 v10, {s(sT+2)}, v10")
    e(f"s_mul_i32 {s(sT+2)}, {s(sT)}, {CTP}"); e(f"s_add_u32 {s(sT+2)}, {s(sT+2)}, {CT + 2048}")
    e(f"v_mov_b32 v11, {s(sT+2)}"); e("v_mov_b32 v12, 0")
    e("ds_write_b32 v11, v12")
    fs()
    G = [96, 112]
    for task in range(2):
        I = IDX + 8 * task
        for k in range(6):
            e(f"v_add_u32_sdwa {v(G[task]+2*k)}, v14, {v(I+k)} dst_sel:DWORD dst_unused:UNUSED_PAD src0_sel:DWORD src1_sel:WORD_0")
            e(f"v_add_u32_sdwa {v(G[task]+2*k+1)}, v14, {v(I+k)} dst_sel:DWORD dst_unused:UNUSED_PAD src0_sel:DWORD src1_sel:WORD_1")
    for tl in range(2):
        e(f"v_cvt_pk_bf16_f32 {v(168+2*tl)}, {v(160+4*tl)}, {v(161+4*tl)}")
        e(f"v_cvt_pk_bf16_f32 {v(169+2*tl)}, {v(162+4*tl)}, {v(163+4*tl)}")
        e(f"ds_write_b64 v10, {v(168+2*tl,2)} offset:{512*tl}")
    e("s_waitcnt lgkmcnt(0)"); e("s_barrier")
    stamp("k_mm")
    s1_validate(1)
    x0t_issue()
    for task in range(2):
        for k in range(12): e(f"ds_read_u16 {v(G[task]+k)}, {v(G[task]+k)}")
    for task in range(2):
        Dd, Dp, Sd, Sp = [(64, 72, 80, 88), (128, 136, 144, 152)][task]
        e(f"s_waitcnt lgkmcnt({12 if task == 0 else 4})")
        for k in range(6): e(f"v_lshl_or_b32 {v(Dd+k)}, {v(G[task]+2*k+1)}, 16, {v(G[task]+2*k)}")
        for k in range(4): e(f"v_mov_b32 {v(Dp+k)}, {v(Dd+k+1)}")
        for k in range(4): e(f"v_alignbit_b32 {v(Sd+k)}, {v(Dd+k+1)}, {v(Dd+k)}, 16")
        for k in range(4): e(f"v_alignbit_b32 {v(Sp+k)}, {v(Dd+k+2)}, {v(Dd+k+1)}, 16")
        for cp_, src in enumerate((Dd, Sd, Dp, Sp)):
            e(f"ds_write_b128 v15, {v(src,4)} offset:{cp_*KCC + task*2048}")
    l0 = lab("zk")
    e(f"s_cmp_lg_u32 {s(sWAVE)}, 0"); e(f"s_cbranch_scc1 {l0}")
    e("v_lshrrev_b32 v10, 2, v1"); e(f"v_mul_u32_u24 v10, {KCC}, v10")
    e("v_and_b32 v11, 3, v1"); e("v_lshl_add_u32 v10, v11, 4, v10"); e("v_add_u32 v10, 4096, v10")
    e("v_mov_b32 v160, 0"); e("v_mov_b32 v161, 0"); e("v_mov_b32 v162, 0"); e("v_mov_b32 v163, 0")
    e(f"s_mov_b32 {s(sT+2)}, -1"); e(f"s_mov_b32 {s(sT+3)}, 0"); e(f"s_mov_b64 exec, {s(sT+2,2)}")
    e("ds_write_b128 v10, v[160:163]")
    e("s_mov_b64 exec, -1")
    A.label(l0)

def s1_issue():
    e("v_lshlrev_b32 v63, 4, v0")
    for i in range(4):
        e(f"s_movk_i32 {s(sT)}, {S1 + 4096*i}")
        e(f"buffer_load_dwordx4 {v(24+4*i,4)}, v63, {s(sSRD,4)}, {s(sT)} offen sc1")
def s1_validate(vm=0):
    lr = lab("s1r"); lg = lab("s1k"); l0 = lab("s1c")
    e(f"s_waitcnt vmcnt({vm})")
    e(f"s_branch {l0}")
    A.label(lr)
    s1_issue()
    e("s_waitcnt vmcnt(0)")
    A.label(l0)
    for i in range(8): e(f"v_xor_b32 {v(160+i)}, {s(sNON)}, {v(24+2*i+1)}")
    e("v_or3_b32 v160, v160, v161, v162"); e("v_or3_b32 v163, v163, v164, v165"); e("v_or3_b32 v160, v160, v166, v167"); e("v_or_b32 v160, v160, v163")
    e("v_cmp_ne_u32 vcc, 0, v160")
    spin_check(lr, lg, bk=1)
def x0t_issue():
    e(f"v_mul_u32_u24 v10, {X0P}, v0"); e(f"s_lshl_b32 {s(sT)}, {s(sCP)}, 5"); e(f"s_add_u32 {s(sT)}, {s(sT)}, {X0T}")
    e(f"buffer_load_dwordx4 v[40:43], v10, {s(sSRD,4)}, {s(sT)} offen sc1")
    e(f"buffer_load_dwordx4 v[44:47], v10, {s(sSRD,4)}, {s(sT)} offen offset:16 sc1")
def b1_issue():
    e("v_and_b32 v20, 15, v0"); e("v_lshlrev_b32 v20, 4, v20")
    e(f"global_load_dword v21, v20, {s(sDBG,2)} sc1")
def b1_check():
    lr = lab("b1r"); lg = lab("b1k"); l0 = lab("b1c")
    e("s_waitcnt vmcnt(0)")
    e(f"s_branch {l0}")
    A.label(lr)
    e(f"global_load_dword v21, v20, {s(sDBG,2)} sc1")
    e("s_waitcnt vmcnt(0)")
    A.label(l0)
    e("v_cmp_gt_u32 vcc, 16, v21")
    spin_check(lr, lg, bk=1)

def gw_loads():
    out = []
    for f in range(48):
        out.append([f"buffer_load_dwordx4 {a(4*f,4)}, v18, {s(sSRD,4)}, {s(sW)} offen offset:{(f%4)*1024} sc1"] + ([f"s_add_u32 {s(sW)}, {s(sW)}, 4096"] if f % 4 == 3 else []))
    return out
def ow_loads():
    out = []
    for f in range(32):
        dst = a(192 + 4*f, 4) if f < 16 else v(192 + 4*(f-16), 4)
        out.append([f"buffer_load_dwordx4 {dst}, v18, {s(sSRD,4)}, {s(sW)} offen offset:{(f%4)*1024} sc1"] + ([f"s_add_u32 {s(sW)}, {s(sW)}, 4096"] if f % 4 == 3 else []))
    return out

vA, vB, vEP, vEU, vEX, vRW, vRR = 164, 165, 166, 167, 168, 169, 170
def conv_setup(layer):
    e(f"s_lshr_b32 s4, {s(sWAVE)}, 1"); e(f"s_and_b32 s5, {s(sWAVE)}, 1")
    e("v_and_b32 v10, 3, v1"); e("v_sub_u32 v10, 3, v10"); e(f"v_mul_u32_u24 v12, {KCC}, v10")
    e("v_bfe_u32 v10, v1, 5, 1"); e("v_lshlrev_b32 v13, 5, v10"); e("v_sub_u32 v12, v12, v13")
    e("v_bfe_u32 v11, v1, 4, 1"); e("v_lshl_add_u32 v12, v11, 4, v12")
    e("v_bfe_u32 v10, v1, 2, 2"); e("v_lshlrev_b32 v10, 3, v10"); e("v_sub_u32 v12, v12, v10")
    e(f"s_mul_i32 {s(sT+2)}, s4, {KCH}"); e(f"s_lshl_b32 {s(sT+3)}, s5, 8"); e(f"s_sub_u32 {s(sT+2)}, {s(sT+2)}, {s(sT+3)}")
    e(f"s_add_u32 {s(sT+2)}, {s(sT+2)}, {KC + 4088 - 3776}")
    e("v_and_b32 v10, 15, v1"); e("v_lshlrev_b32 v14, 5, v10"); e("v_sub_u32 v14, v14, v13"); e("v_lshl_add_u32 v14, v11, 4, v14")
    e(f"s_mul_i32 {s(sT+4)}, s4, {UP}"); e(f"s_sub_u32 {s(sT+4)}, {s(sT+4)}, {s(sT+3)}")
    e(f"s_add_u32 {s(sT+4)}, {s(sT+4)}, {U0 + 512 - 192}")
    e(f"v_add_u32 v16, {s(sT+2)}, v12"); e(f"v_add_u32 v17, {s(sT+4)}, v14")
    e("v_and_b32 v56, 15, v1"); e("v_lshlrev_b32 v56, 5, v56"); e("v_lshrrev_b32 v13, 4, v1"); e("v_lshl_add_u32 v56, v13, 3, v56")
    e(f"s_lshl_b32 {s(sT+2)}, s5, 11"); e(f"v_add_u32 v56, {s(sT+2)}, v56")
    e(f"s_mul_i32 {s(sT+3)}, s4, {UP}"); e(f"s_add_u32 {s(sT+3)}, {s(sT+3)}, {U0+512}"); e(f"v_add_u32 v57, {s(sT+3)}, v56")
    e(f"s_lshl_b32 {s(sT+3)}, s4, 12"); e(f"s_add_u32 {s(sT+3)}, {s(sT+3)}, {X0}"); e(f"v_add_u32 v58, {s(sT+3)}, v56")
    e(f"s_lshl_b32 {s(sT+2)}, {s(sWAVE)}, 12"); e(f"s_add_u32 {s(sT+2)}, {s(sT+2)}, {RED}"); e(f"v_lshl_add_u32 v59, v1, 4, {s(sT+2)}")
    e(f"s_xor_b32 {s(sT+2)}, {s(sWAVE)}, 1"); e(f"s_lshl_b32 {s(sT+2)}, {s(sT+2)}, 12"); e(f"s_add_u32 {s(sT+2)}, {s(sT+2)}, {RED}")
    e(f"v_lshl_add_u32 v60, v1, 4, {s(sT+2)}")
    xo = XT1 if layer == 1 else XT3
    e(f"s_lshl_b32 s6, {s(sCP)}, 1"); e("s_add_u32 s6, s6, s4"); e(f"s_mul_i32 s6, s6, {PITCH}"); e(f"s_add_u32 s6, s6, {xo}")
    e("v_lshlrev_b32 v10, 4, v0"); e(f"v_add_u32 v61, {U0 + 512}, v10"); e(f"v_add_u32 v62, {X0}, v10")
    e("v_lshlrev_b32 v63, 4, v0")
    l0 = lab("zp")
    e(f"s_cmp_lg_u32 {s(sWAVE)}, 1"); e(f"s_cbranch_scc1 {l0}")
    e("v_lshrrev_b32 v11, 5, v1"); e(f"v_mul_u32_u24 v11, {UP}, v11"); e("v_and_b32 v12, 31, v1"); e("v_lshl_add_u32 v11, v12, 4, v11")
    e(f"v_add_u32 v11, {U0}, v11")
    e("v_mov_b32 v12, 0"); e("v_mov_b32 v13, 0"); e("v_mov_b32 v14, 0"); e("v_mov_b32 v15, 0")
    e("ds_write_b128 v11, v[12:15]")
    A.label(l0)
    XX = 40; F = 64
    if layer == 1:
        e("v_lshlrev_b32 v18, 4, v1")
        e(f"s_lshl_b32 {s(sW)}, {s(sJ)}, 2"); e(f"s_add_u32 {s(sW)}, {s(sW)}, {s(sWAVE)}")
        e(f"s_mul_i32 {s(sW)}, {s(sW)}, 49152"); e(f"s_add_u32 {s(sW)}, {s(sW)}, {WFG}")
    else:
        e(f"s_lshl_b32 s7, {s(sCP)}, 7"); e(f"s_add_u32 s7, s7, {X2T}")
        e("v_lshrrev_b32 v19, 2, v0"); e(f"v_mul_u32_u24 v19, {ROP}, v19"); e("v_and_b32 v10, 3, v0"); e("v_lshl_add_u32 v19, v10, 4, v19")

def conv(layer):
    XX = 40; SB = 24; F = 64; UU = 48
    if layer == 2:
        if int(OPTS.get("cpre", 4)): e(f"s_sleep {OPTS.get('cpre', 4)}")
        e(f"s_add_u32 {s(sT)}, s7, {U2T - X2T}")
        lr = lab("cu"); lg = lab("cuk")
        A.label(lr)
        e(f"buffer_load_dwordx4 {v(UU,4)}, v19, {s(sSRD,4)}, {s(sT)} offen sc1")
        e(f"buffer_load_dwordx4 {v(UU+4,4)}, v19, {s(sSRD,4)}, {s(sT)} offen offset:64 sc1")
        e("s_waitcnt vmcnt(0)")
        e(f"v_max_u32 v10, {v(UU)}, {v(UU+4)}")
        e("v_cmp_eq_u32 vcc, -1, v10")
        spin_check(lr, lg, bk=2, cid=1)
        for c in range(2): e(f"ds_write_b128 v61, {v(UU+4*c,4)} offset:{UP*c}")
        for c in range(2):
            e(f"s_lshl_b32 {s(sT+2)}, {s(sWAVE)}, 10"); e(f"s_add_u32 m0, {s(sT+2)}, {X0 + 4096*c}")
            e(f"s_add_u32 {s(sT+3)}, s7, {64*c}")
            e(f"buffer_load_dwordx4 v19, {s(sSRD,4)}, {s(sT+3)} offen sc1 lds")
    else:
        b1_issue()
        for i in range(8):
            e(f"v_and_b32 {v(SB+2*i+1)}, {s(sHI)}, {v(SB+2*i)}"); e(f"v_lshlrev_b32 {v(SB+2*i)}, 16, {v(SB+2*i)}")
        for i in range(8): e(f"v_rcp_f32 {v(SB+2*i+1)}, {v(SB+2*i+1)}")
        e("s_waitcnt vmcnt(1)")
        for i in range(8):
            j, hi = i >> 1, i & 1
            for c in range(2):
                if hi: e(f"v_and_b32 {v(F+2*i+c)}, {s(sHI)}, {v(XX+4*c+j)}")
                else: e(f"v_lshlrev_b32 {v(F+2*i+c)}, 16, {v(XX+4*c+j)}")
        e(f"ds_write_b128 v62, {v(XX,4)}"); e(f"ds_write_b128 v62, {v(XX+4,4)} offset:4096")
    stamp(f"c{layer}_ld")
    if layer == 1:
        for i in range(8):
            e(f"v_pk_add_f32 {v(F+2*i,2)}, {v(F+2*i,2)}, {v(SB+2*i,2)} op_sel_hi:[1,0] neg_lo:[0,1] neg_hi:[0,1]")
        for i in range(8): e(f"v_cvt_pk_bf16_f32 {v(80+i)}, {v(F+2*i)}, {v(F+2*i+1)}")
        for i in range(8):
            e(f"v_lshlrev_b32 {v(F+2*i)}, 16, {v(80+i)}"); e(f"v_and_b32 {v(F+2*i+1)}, {s(sHI)}, {v(80+i)}")
        for i in range(8):
            e(f"v_pk_mul_f32 {v(F+2*i,2)}, {v(F+2*i,2)}, {v(SB+2*i,2)} op_sel:[0,1] op_sel_hi:[1,1]")
        for c in range(2):
            for j in range(4): e(f"v_cvt_pk_bf16_f32 {v(UU+4*c+j)}, {v(F+4*j+c)}, {v(F+4*j+2+c)}")
            e(f"ds_write_b128 v61, {v(UU+4*c,4)} offset:{UP*c}")
    trick = gw_loads() if layer == 1 else []
    e("s_waitcnt lgkmcnt(0)"); e("s_barrier")
    if layer == 1: b1_check()
    stamp(f"c{layer}_pro")
    vA, vB = 16, 17
    ACC = 24; SET = [64, 128]
    def loads(tp, st):
        out = []
        seq = []
        for k in range(8):
            seq.append(f"ds_read_b128 {v(SET[st]+32+4*k,4)}, {v(vB)} offset:{512*k + 64*(3 - tp)}")
            o = 64*(3 - tp) + 512*(7 - k)
            seq.append(f"ds_read_b64 {v(SET[st]+4*k,2)}, {v(vA)} offset:{o}")
            seq.append(f"ds_read_b64 {v(SET[st]+4*k+2,2)}, {v(vA)} offset:{o + 8}")
        return seq
    for l in loads(0, 0): e(l)
    ti = 0; nm = 0
    TRK = int(OPTS.get("trk", 4))
    e(f"s_mov_b32 {s(sT+4)}, {s(sDSKV)}"); e(f"s_mov_b32 {s(sT+5)}, {s(sDSKV)}")
    side = []
    for k in range(4):
        side.append(f"ds_read_b64 {v(64+2*k,2)}, v57 offset:{512*k}"); side.append(f"ds_read_b64 {v(72+2*k,2)}, v58 offset:{512*k}")
    side2 = ["s_waitcnt lgkmcnt(0)"]
    for k in range(4):
        for j in range(2):
            side2 += [f"v_lshlrev_b32 {v(96+4*k+2*j)}, 16, {v(64+2*k+j)}", f"v_and_b32 {v(97+4*k+2*j)}, {s(sHI)}, {v(64+2*k+j)}",
                      f"v_lshlrev_b32 {v(112+4*k+2*j)}, 16, {v(72+2*k+j)}", f"v_and_b32 {v(113+4*k+2*j)}, {s(sHI)}, {v(72+2*k+j)}"]
    for k in range(8): side2.append(f"v_pk_fma_f32 {v(96+2*k,2)}, {v(96+2*k,2)}, {s(sT+4,2)}, {v(112+2*k,2)}")
    fills = fill_groups(2, 61, 62) if layer == 2 else []
    hold = [0]; nfs = [0]
    for tp in range(4):
        st = tp & 1
        nxt = loads(tp + 1, st ^ 1) if tp < 3 else []
        n = 0; nb = 0
        for T in range(8):
            if tp == 0: e(f"s_waitcnt lgkmcnt({min(15, 24 - (3*T+3) + min(n, len(nxt)))})")
            elif T == 0:
                e("s_waitcnt lgkmcnt(0)")
                if layer == 2 and tp == 2:
                    e(f"s_waitcnt vmcnt({min(63, nfs[0])})"); e("s_barrier")
            for q in range(T + 1):
                c_ = "0" if (tp == 0 and q == 0) else v(ACC+4*T, 4)
                e(f"v_mfma_f32_16x16x32_bf16 {v(ACC+4*T,4)}, {v(SET[st]+4*q,4)}, {v(SET[st]+32+4*(T-q),4)}, {c_}")
                nm += 1; nb += 1
                if not (tp == 0 and T < 3) and n < len(nxt):
                    e(nxt[n]); n += 1
                if tp == 3:
                    if nb <= 8: e(side.pop(0))
                    elif nb > 12:
                        for _ in range(2):
                            if side2: e(side2.pop(0))
                if ti < len(trick) and nm % TRK == 0:
                    for l in trick[ti]: e(l)
                    ti += 1
                elif fills and tp < 3 and (nb > 2 or tp > 0):
                    if hold[0] > 0: hold[0] -= 1
                    else:
                        g = fills.pop(0); emit_group(g)
                        if any("buffer_store" in l for l in g): hold[0] = 3
                        nfs[0] += 0
        while n < len(nxt): e(nxt[n]); n += 1
    assert not fills
    while side2: e(side2.pop(0))
    stamp(f"c{layer}_mm")
    lp1 = lab("p1"); lj = lab("pj")
    e("s_cmp_eq_u32 s5, 1"); e(f"s_cbranch_scc1 {lp1}")
    e("s_nop 3")
    for k in range(4): e(f"ds_write_b128 v59, {v(ACC+16+4*k,4)} offset:{1024*k}")
    e(f"s_branch {lj}")
    A.label(lp1)
    for k in range(4): e(f"ds_write_b128 v59, {v(ACC+4*k,4)} offset:{1024*k}")
    e("s_nop 3")
    for k in range(8): e(f"v_mov_b64 {v(ACC+2*k,2)}, {v(ACC+16+2*k,2)}")
    A.label(lj)
    for k in range(8):
        e(f"v_pk_add_f32 {v(96+2*k,2)}, {v(96+2*k,2)}, {v(ACC+2*k,2)}")
    e("s_waitcnt lgkmcnt(0)"); e("s_barrier")
    for k in range(4): e(f"ds_read_b128 {v(80+4*k,4)}, v60 offset:{1024*k}")
    e(f"s_waitcnt vmcnt({min(63, ti) if layer == 1 else 0})")
    for k in range(4):
        e(f"s_waitcnt lgkmcnt({3-k})")
        e(f"v_pk_add_f32 {v(96+4*k,2)}, {v(96+4*k,2)}, {v(80+4*k,2)}"); e(f"v_pk_add_f32 {v(98+4*k,2)}, {v(98+4*k,2)}, {v(82+4*k,2)}")
        e(f"v_cvt_pk_bf16_f32 {v(64+2*k)}, {v(96+4*k)}, {v(97+4*k)}"); e(f"v_cvt_pk_bf16_f32 {v(65+2*k)}, {v(98+4*k)}, {v(99+4*k)}")
        e(f"buffer_store_dwordx2 {v(64+2*k,2)}, v56, {s(sSRD,4)}, s6 offen offset:{512*k} sc1")
    return trick[ti:]

NCSK, NCSV, NCSQ = 2, 4, 6
XRES = 184
def ones_regs(r):
    for i in range(4): e(f"v_mov_b32 {v(r+i)}, 0x3f803f80")
def colsums():
    ON = 152
    for ks in range(16):
        c0 = lambda r: "0" if ks == 0 else v(r, 4)
        e(f"v_mfma_f32_16x16x32_bf16 v[28:31], {v(ON,4)}, {a((0*16+ks)*4,4)}, {c0(28)}")
        e(f"v_mfma_f32_16x16x32_bf16 v[32:35], {v(ON,4)}, {a((1*16+ks)*4,4)}, {c0(32)}")
        e(f"v_mfma_f32_16x16x32_bf16 v[36:39], {a((2*16+ks)*4,4)}, {v(ON,4)}, {c0(36)}")
    e(f"v_sub_f32 {v(NCSK)}, 0, v28"); e(f"v_sub_f32 {v(NCSK+1)}, 0, v28")
    e(f"v_sub_f32 {v(NCSV)}, 0, v32"); e(f"v_sub_f32 {v(NCSV+1)}, 0, v32")
    for i in range(4): e(f"v_sub_f32 {v(NCSQ+i)}, 0, {v(36+i)}")

TA = 12
gXE, gXO, gSW, gS4, gQA, gPQ, gKV = 156, 157, 158, 160, 164, 168, 169
def g_setup(layer):
    xt = XT1 if layer == 1 else XT3
    e("v_lshrrev_b32 v10, 3, v1"); e(f"v_mul_u32_u24 v10, {PITCH}, v10")
    e("v_bfe_u32 v11, v1, 4, 2"); e("v_lshlrev_b32 v11, 1, v11"); e("v_and_b32 v16, 7, v1"); e("v_xor_b32 v11, v11, v16")
    e("v_lshl_add_u32 v10, v11, 4, v10")
    e(f"s_lshl_b32 {s(sT)}, {s(sRS)}, 7"); e(f"v_add_u32 v19, {s(sT)}, v10")
    e(f"s_mul_i32 s4, {s(sWAVE)}, {32*PITCH}"); e(f"s_add_u32 s4, s4, {xt}")
    e(f"s_lshl_b32 s5, {s(sWAVE)}, 12"); e(f"s_add_u32 s5, s5, {AT}")
    e("v_lshrrev_b32 v10, 2, v1"); e("v_lshlrev_b32 v10, 7, v10"); e("v_and_b32 v11, 3, v1"); e("v_lshl_add_u32 v10, v11, 3, v10")
    e(f"v_add_u32 v10, {AT}, v10"); e("v_bfe_u32 v11, v1, 3, 2")
    for j in range(4):
        e(f"s_add_u32 {s(sT)}, {s(sWAVE)}, {j}"); e(f"s_and_b32 {s(sT)}, {s(sT)}, 3"); e(f"s_lshl_b32 {s(sM+j)}, {s(sT)}, 6")
        e(f"v_xor_b32 v16, {s(sT)}, v11"); e(f"v_lshl_add_u32 {v(TA+j)}, v16, 5, v10")
    ones_regs(152)
    e("v_lshrrev_b32 v11, 5, v1"); e("v_lshlrev_b32 v11, 4, v11"); e("v_bfe_u32 v16, v1, 2, 2"); e("v_add_u32 v11, v11, v16")
    e(f"s_lshl_b32 {s(sT)}, {s(sJO)}, 7"); e(f"s_lshl_b32 {s(sT+1)}, {s(sWAVE)}, 5"); e(f"s_add_u32 {s(sT)}, {s(sT)}, {s(sT+1)}")
    e(f"v_add_u32 v11, {s(sT)}, v11"); e("v_lshlrev_b32 v11, 7, v11")
    e("v_and_b32 v16, 3, v1"); e("v_lshl_add_u32 v11, v16, 3, v11"); e(f"v_add_u32 v11, {AT}, v11")
    e(f"s_and_b32 {s(sT)}, {s(sJ)}, 1"); e(f"s_lshl_b32 {s(sT)}, {s(sT)}, 1")
    e("v_bfe_u32 v16, v1, 4, 1"); e(f"v_add_u32 v16, {s(sT)}, v16"); e("v_bfe_u32 v17, v1, 3, 1"); e("v_xor_b32 v16, v16, v17")
    e(f"v_lshl_add_u32 {v(gXE)}, v16, 5, v11"); e("v_xor_b32 v16, 2, v16"); e(f"v_lshl_add_u32 {v(gXO)}, v16, 5, v11")
    e("v_and_b32 v10, 15, v1"); e("v_lshlrev_b32 v10, 2, v10"); e(f"v_add_u32 v11, {ST}, v10")
    e(f"s_lshl_b32 {s(sT)}, {s(sWAVE)}, 6"); e(f"v_add_u32 {v(gSW)}, {s(sT)}, v11")
    e("v_lshrrev_b32 v10, 4, v1"); e("v_lshlrev_b32 v10, 4, v10"); e(f"v_add_u32 v10, {ST}, v10")
    for j in range(4):
        e(f"v_add_u32 {v(gS4+j)}, {s(sM+j)}, v10"); e(f"v_add_u32 {v(gQA+j)}, {s(sM+j)}, v11")
    e("v_and_b32 v10, 15, v1"); e("v_lshlrev_b32 v10, 4, v10"); e("v_bfe_u32 v11, v1, 4, 1"); e("v_lshl_add_u32 v10, v11, 3, v10")
    e("v_lshrrev_b32 v11, 5, v1"); e(f"v_lshl_add_u32 {v(gPQ)}, v11, 10, v10")
    e("v_lshrrev_b32 v10, 4, v1"); e("v_lshlrev_b32 v10, 8, v10"); e("v_and_b32 v11, 15, v1"); e(f"v_lshl_add_u32 {v(gKV)}, v11, 2, v10")
    e(f"v_lshlrev_b32 v183, 2, v1")
    kvp_addr(KVP1 if layer == 1 else KVP2, 6)
    pq_addr(PQ1 if layer == 1 else PQ2, 7)
    e(f"s_lshl_b32 {s(sT)}, {s(sJ)}, 5"); e(f"s_mul_i32 {s(sT)}, {s(sT)}, {KVW}")
    e(f"s_lshr_b32 {s(sT+1)}, {s(sRS)}, 3"); e(f"s_mul_i32 {s(sT+1)}, {s(sT+1)}, {KVH}"); e(f"s_add_u32 {s(sT)}, {s(sT)}, {s(sT+1)}")
    e(f"s_add_u32 s3, {s(sT)}, {KVP1 if layer == 1 else KVP2}")
    e(f"s_and_b32 {s(sT+2)}, {s(sRS)}, 7")
    e(f"s_cmp_eq_u32 {s(sWAVE)}, 2")
    e(f"s_cselect_b32 {s(sT+3)}, 3, 7"); e(f"s_cselect_b32 {s(sT+4)}, 1, 0")
    e(f"s_mov_b32 s42, 0x0f0f0f0f"); e("s_cselect_b32 s42, s42, -1"); e("s_mov_b32 s43, s42")
    e(f"s_lshl_b32 {s(sT+5)}, {s(sT+2)}, 7"); e(f"s_cmp_eq_u32 {s(sWAVE)}, 2"); e(f"s_cselect_b32 {s(sT+5)}, 1024, {s(sT+5)}")
    e(f"s_lshl_b32 {s(sT+6)}, {s(sT+2)}, 6"); e(f"s_cselect_b32 {s(sT+6)}, 512, {s(sT+6)}") if False else None
    e("v_lshrrev_b32 v10, 3, v1"); e(f"v_mul_u32_u24 v10, {KVW}, v10"); e(f"v_and_b32 v11, {s(sT+3)}, v1"); e("v_lshl_add_u32 v11, v11, 4, v10")
    e(f"v_add_u32 v170, {s(sT+5)}, v11")
    e(f"s_lshl_b32 {s(sT+6)}, {s(sT+2)}, 6"); e(f"s_cmp_eq_u32 {s(sWAVE)}, 2"); e(f"s_cselect_b32 {s(sT+6)}, 512, {s(sT+6)}")
    e("v_lshrrev_b32 v10, 3, v1"); e(f"v_mul_u32_u24 v10, {FRP}, v10"); e("v_and_b32 v11, 7, v1"); e("v_lshl_add_u32 v10, v11, 3, v10")
    e(f"v_add_u32 v171, {s(sT+6)}, v10")
    f_addr(F1 if layer == 1 else F2, 40)
    e(f"s_cmp_eq_u32 {s(sT+2)}, 0"); e(f"s_cselect_b32 {s(sT+3)}, 2, 3"); e(f"s_cmp_ge_u32 {s(sWAVE)}, {s(sT+3)}"); e("s_cselect_b32 s41, 1, 0")
    e("v_and_b32 v10, 3, v1")
    e(f"v_cmp_eq_u32 {s(sM+4,2)}, 1, v10"); e(f"v_cmp_eq_u32 {s(sM+6,2)}, 2, v10"); e(f"v_cmp_eq_u32 s[2:3], 3, v10") if False else None
    if layer == 1:
        e("v_lshlrev_b32 v18, 4, v1")
        e(f"s_lshl_b32 {s(sW)}, {s(sJO)}, 2"); e(f"s_add_u32 {s(sW)}, {s(sW)}, {s(sWAVE)}")
        e(f"s_lshl_b32 {s(sW)}, {s(sW)}, 15"); e(f"s_add_u32 {s(sW)}, {s(sW)}, {WFO}")

def gphase(layer):
    kvp = KVP1 if layer == 1 else KVP2
    ff = F1 if layer == 1 else F2
    def dma(c, i):
        return [f"s_add_u32 {s(sT)}, s4, {(128*c + 8*i)*PITCH}", f"s_add_u32 m0, s5, {c*16384 + i*1024}",
                f"buffer_load_dwordx4 v19, {s(sSRD,4)}, {s(sT)} offen sc1 lds"]
    e(f"v_lshl_add_u32 v21, v1, 4, s5")
    def check_reads(c): return [f"ds_read_b32 {v(56+i)}, v21 offset:{c*16384 + i*1024}" for i in range(4)]
    def validate(c, first=False):
        lr = lab("gv"); lg = lab("gvk"); lx = lab("gvx")
        A.label(lr)
        for l in check_reads(c): e(l)
        e("s_waitcnt lgkmcnt(0)")
        maxtree([56, 57, 58, 59], 56)
        e("v_cmp_eq_u32 vcc, -1, v56")
        e(f"s_cbranch_vccz {lg}")
        e(f"s_sub_u32 {s(sSPIN)}, {s(sSPIN)}, 1"); e(f"s_cbranch_scc1 {lx}")
        if OPTS.get("cntv"): e(f"s_add_u32 s{96 if c == 0 else 98}, s{96 if c == 0 else 98}, 1")
        for i in range(4):
            for l in dma(c, i): e(l)
        e("s_waitcnt vmcnt(0)")
        e(f"s_branch {lr}")
        A.label(lx); e(f"s_mov_b32 {s(sSPIN)}, 0")
        A.label(lg)
    e("s_barrier")
    if int(OPTS.get("gpre", 0)): e(f"s_sleep {OPTS.get('gpre')}")
    for c in range(3):
        for i in range(4):
            for l in dma(c, i): e(l)
    late = [dma(3, i) for i in range(4)]
    XF = [64, 80]
    AK, AV, AQ, GR, RS_, ON = 96, 112, 128, 144, 148, 152
    trick = ow_loads() if layer == 1 else []
    if layer == 1:
        for i in range(4): e(f"v_mov_b32 {v(176+i)}, -1")
        e(f"s_lshr_b32 s62, {s(sWAVE)}, 1"); e(f"s_lshl_b32 s61, {s(sCP)}, 1"); e("s_add_u32 s62, s62, s61"); e(f"s_mul_i32 s62, s62, {PITCH}")
        e(f"s_and_b32 s61, {s(sWAVE)}, 1"); e("s_lshl_b32 s61, s61, 11"); e("s_add_u32 s62, s62, s61"); e(f"s_add_u32 s62, s62, {XT3}")
        e(f"s_lshl_b32 s63, {s(sJO)}, 7"); e(f"s_lshl_b32 s61, {s(sWAVE)}, 5"); e("s_add_u32 s63, s63, s61"); e("s_lshl_b32 s63, s63, 6")
        e(f"s_mul_i32 s61, {s(sRO)}, {ROP}"); e("s_add_u32 s63, s63, s61"); e(f"s_add_u32 s63, s63, {U2T}")
        e(f"s_lshl_b32 s60, {s(sRO)}, 2"); e(f"s_add_u32 s60, s60, {s(sJO)}"); e("s_lshl_b32 s60, s60, 8"); e(f"s_add_u32 s60, s60, {SP}")
        fl = [[f"buffer_store_dwordx4 v[176:179], v18, {s(sSRD,4)}, s62 offen sc1"], [f"buffer_store_dwordx4 v[176:179], v18, {s(sSRD,4)}, s62 offen offset:1024 sc1"],
              [f"buffer_store_dwordx4 v[176:179], v18, {s(sSRD,4)}, s63 offen sc1"], [f"buffer_store_dwordx4 v[176:179], v18, {s(sSRD,4)}, s63 offen offset:1024 sc1"],
              [f"buffer_store_dword v176, v183, {s(sSRD,4)}, s60 offen sc1"]]
        for i_, g_ in enumerate(fl): trick.insert(2 * i_ + 1, g_)
        LASTFILL = 2 * (len(fl) - 1) + 1
    def reads(ks, base=None):
        b = XF[ks & 1] if base is None else base
        out = []
        for j in range(4):
            out.append(f"ds_read_b64_tr_b16 {v(b+4*j,2)}, {v(TA+j)} offset:{ks*4096}")
            out.append(f"ds_read_b64_tr_b16 {v(b+4*j+2,2)}, {v(TA+j)} offset:{ks*4096+2048}")
        return out
    stamp(f"g{layer}_iss")
    e("s_waitcnt vmcnt(8)")
    validate(0)
    e("s_barrier")
    stamp(f"g{layer}_ld0")
    for l in reads(0): e(l)
    st_ = {"ti": 0, "nw": 0, "nm": 0}
    TRG = int(OPTS.get("trg", 5))
    def trickle(ok):
        st_["nm"] += 1
        if ok and st_["ti"] < len(trick) and st_["nm"] % TRG == 0:
            for l in trick[st_["ti"]]: e(l)
            st_["ti"] += 1; st_["nw"] += 1
    for ks in range(16):
        nxt = []
        if ks < 15:
            if (ks + 1) % 4 == 0: e("s_barrier")
            nxt = reads(ks + 1)
        x = XF[ks & 1]
        if ks in (2, 3, 4, 6, 7, 8, 10, 11, 12): stamp(f"g{layer}_k{ks}")
        e("s_waitcnt lgkmcnt(0)")
        eval_c = (ks + 2) // 4 if (ks < 14 and (ks + 2) % 4 == 0) else None
        if ks < 13 and (ks + 3) % 4 == 0:
            c = (ks + 3) // 4
            issued3 = 4 - len(late)
            y = {1: 4 + issued3, 2: issued3, 3: 0}[c] + st_["nw"]
            e(f"s_waitcnt vmcnt({min(63, y)})")
            nxt = nxt + check_reads(c)
        z = lambda r: "0" if ks == 0 else v(r, 4)
        mf = []
        for j in range(4):
            mf.append(f"v_mfma_f32_16x16x32_bf16 {v(AK+4*j,4)}, {v(x+4*j,4)}, {a((0*16+ks)*4,4)}, {z(AK+4*j)}")
            mf.append(f"v_mfma_f32_16x16x32_bf16 {v(AV+4*j,4)}, {v(x+4*j,4)}, {a((1*16+ks)*4,4)}, {z(AV+4*j)}")
        mf.insert(1, f"v_mfma_f32_16x16x32_bf16 {v(GR,4)}, {v(x,4)}, {v(x,4)}, {z(GR)}")
        mf.insert(3, f"v_mfma_f32_16x16x32_bf16 {v(RS_,4)}, {v(ON,4)}, {v(x,4)}, {z(RS_)}")
        pend = list(nxt)
        for m_i, m_ in enumerate(mf):
            e(m_)
            if pend: e(pend.pop(0))
            if eval_c is not None:
                if m_i == 2: e("v_max3_u32 v56, v56, v57, v58")
                if m_i == 4: e("v_max_u32 v56, v56, v59")
                if m_i == 6: e("v_cmp_eq_u32 vcc, -1, v56")
            if m_i == len(mf) - 1:
                while pend: e(pend.pop(0))
                if eval_c is not None:
                    lok = lab("gok")
                    e(f"s_cbranch_vccz {lok}")
                    if OPTS.get("cntv"): e(f"s_add_u32 s97, s97, {1 << (8*(eval_c-1))}")
                    for i in range(4):
                        for l in dma(eval_c, i): e(l)
                    e("s_waitcnt vmcnt(0)")
                    validate(eval_c)
                    A.label(lok)
            if late and m_i in (1, 4, 7):
                for l in late.pop(0): e(l)
            trickle(ks >= 4)
    stamp(f"g{layer}_mm")
    for jj in range(4):
        e(f"ds_read_b64_tr_b16 {v(XRES+2*jj,2)}, {v(gXE + (jj & 1))} offset:{512*jj}")
    e("v_and_b32 v10, 3, v1")
    e(f"v_cmp_eq_u32 {s(sM+4,2)}, 1, v10"); e(f"v_cmp_eq_u32 {s(sM+6,2)}, 2, v10"); e("v_cmp_eq_u32 vcc, 3, v10")
    e(f"v_cndmask_b32 v11, {v(GR)}, {v(GR+1)}, {s(sM+4,2)}")
    e(f"v_cndmask_b32 v11, v11, {v(GR+2)}, {s(sM+6,2)}")
    e(f"v_cndmask_b32 v11, v11, {v(GR+3)}, vcc")
    stats_final(RS_, 11, 16, 17, 20)
    e("v_mul_f32 v16, v16, v17")
    e(f"s_mov_b32 {s(sT+2)}, 0x00f0000f"); e(f"s_mov_b32 {s(sT+3)}, 0xf0000f00")
    e(f"s_mov_b64 exec, {s(sT+2,2)}")
    e(f"ds_write_b32 {v(gSW)}, v17"); e(f"ds_write_b32 {v(gSW)}, v16 offset:256")
    e("s_mov_b64 exec, -1")
    R4, M4, RQ, MQ = 24, 40, 56, 176
    e("s_waitcnt lgkmcnt(0)"); e("s_barrier")
    for j in range(4):
        e(f"ds_read_b128 {v(R4+4*j,4)}, {v(gS4+j)}"); e(f"ds_read_b128 {v(M4+4*j,4)}, {v(gS4+j)} offset:256")
    for j in range(4):
        e(f"ds_read_b32 {v(RQ+2*j)}, {v(gQA+j)}"); e(f"ds_read_b32 {v(MQ+2*j)}, {v(gQA+j)} offset:256")
    stamp(f"g{layer}_st")
    PK, VV = 72, 80
    def phi2(items):
        for (rp, acc, mp, ncs, dst, T, bro) in items:
            e(f"v_pk_fma_f32 {v(T,2)}, {v(mp,2)}, {v(ncs,2)}, {s(sEPS6,2)}" + (" op_sel_hi:[0,1,1]" if bro else ""))
        for (rp, acc, mp, ncs, dst, T, bro) in items:
            e(f"v_pk_fma_f32 {v(T,2)}, {v(rp,2)}, {v(acc,2)}, {v(T,2)}" + (" op_sel_hi:[0,1,1]" if bro else ""))
        for (rp, acc, mp, ncs, dst, T, bro) in items: e(f"v_pk_mul_f32 {v(T+2,2)}, {v(T,2)}, {s(sLOG2E,2)}")
        for (rp, acc, mp, ncs, dst, T, bro) in items:
            e(f"v_exp_f32 {v(T+2)}, {v(T+2)} clamp"); e(f"v_exp_f32 {v(T+3)}, {v(T+3)} clamp")
        for (rp, acc, mp, ncs, dst, T, bro) in items:
            e(f"v_max_f32 {v(T)}, {s(sEPS6)}, {v(T)}"); e(f"v_max_f32 {v(T+1)}, {s(sEPS6)}, {v(T+1)}")
        for (rp, acc, mp, ncs, dst, T, bro) in items: e(f"v_pk_add_f32 {v(T,2)}, {v(T,2)}, {v(T+2,2)}")
        for (rp, acc, mp, ncs, dst, T, bro) in items: e(f"v_cvt_pk_bf16_f32 {v(dst)}, {v(T)}, {v(T+1)}")
    for j in range(4):
        e(f"s_waitcnt lgkmcnt({min(15, 8 + 2*(3-j))})")
        items = [(R4+4*j+2*hp, AK+4*j+2*hp, M4+4*j+2*hp, NCSK, PK+2*j+hp, 88 + 4*hp, False) for hp in range(2)]
        for hp in range(2):
            T = 104 + 2*hp if False else 172 + 2*hp
            e(f"v_pk_mul_f32 {v(T,2)}, {v(M4+4*j+2*hp,2)}, {v(NCSV,2)}")
        for hp in range(2):
            T = 172 + 2*hp
            e(f"v_pk_fma_f32 {v(T,2)}, {v(R4+4*j+2*hp,2)}, {v(AV+4*j+2*hp,2)}, {v(T,2)}")
        phi2(items)
        for hp in range(2):
            T = 172 + 2*hp
            e(f"v_cvt_pk_bf16_f32 {v(VV+2*j+hp)}, {v(T)}, {v(T+1)}")
        if j == 1:
            e(f"v_mfma_f32_16x16x32_bf16 {v(GR,4)}, {v(VV,4)}, {v(PK,4)}, 0")
            e(f"v_mfma_f32_16x16x32_bf16 {v(RS_,4)}, {v(ON,4)}, {v(PK,4)}, 0")
    e(f"v_mfma_f32_16x16x32_bf16 {v(GR,4)}, {v(VV+4,4)}, {v(PK+4,4)}, {v(GR,4)}")
    e(f"v_mfma_f32_16x16x32_bf16 {v(RS_,4)}, {v(ON,4)}, {v(PK+4,4)}, {v(RS_,4)}")
    PQR = 96
    if layer == 1:
        assert st_["ti"] > LASTFILL
        e(f"s_waitcnt vmcnt({min(63, st_['ti'] - 1 - LASTFILL)}) lgkmcnt(0)")
    e("s_waitcnt lgkmcnt(0)")
    for i in range(4):
        e(f"buffer_store_dword {v(GR+i)}, {v(gKV)}, {s(sSRD,4)}, s6 offen offset:{64*i} sc1")
    e("s_mov_b64 exec, 0xffff")
    e(f"buffer_store_dword {v(RS_)}, v183, {s(sSRD,4)}, s6 offen offset:1024 sc1")
    e("s_mov_b64 exec, -1")
    stamp(f"g{layer}_kv")
    def red_loads():
        for i in range(4):
            e(f"s_add_u32 {s(sT+4)}, s3, {8*i*KVW}")
            e(f"buffer_load_dwordx4 {v(24+4*i,4)}, v170, {s(sSRD,4)}, {s(sT+4)} offen sc1")
    RLK = int(OPTS.get("rlk", 11))
    QS = [64, 80, 112]
    for l in reads(0, QS[0]): e(l)
    for l in reads(1, QS[1]): e(l)
    for ks in range(16):
        nxt = reads(ks + 2, QS[(ks + 2) % 3]) if ks < 14 else []
        x = QS[ks % 3]
        e(f"s_waitcnt lgkmcnt({8 if ks < 15 else 0})")
        z = lambda r: "0" if ks == 0 else v(r, 4)
        if ks == RLK:
            lsk = lab("rl")
            e("s_cmp_eq_u32 s41, 0"); e(f"s_cbranch_scc1 {lsk}")
            red_loads()
            A.label(lsk)
        for j in range(4):
            e(f"v_mfma_f32_16x16x32_bf16 {v(AQ+4*j,4)}, {a((2*16+ks)*4,4)}, {v(x+4*j,4)}, {z(AQ+4*j)}")
            for l in nxt[2*j:2*j+2]: e(l)
            if j % 2 == 0 and st_["ti"] < len(trick):
                for l in trick[st_["ti"]]: e(l)
                st_["ti"] += 1
    stamp(f"g{layer}_q")
    for j in range(0, 4, 2):
        phi2([(RQ+2*(j+jj), AQ+4*(j+jj)+2*hp, MQ+2*(j+jj), NCSQ+2*hp, PQR+2*(j+jj)+hp, 64 + 8*jj + 4*hp, True) for jj in range(2) for hp in range(2)])
    for j in range(4):
        e(f"s_lshl_b32 {s(sT+2)}, {s(sM+j)}, 2"); e(f"s_add_u32 {s(sT+2)}, {s(sT+2)}, s7")
        e(f"buffer_store_dwordx2 {v(PQR+2*j,2)}, {v(gPQ)}, {s(sSRD,4)}, {s(sT+2)} offen sc1")
    for ins in trick[st_["ti"]:]:
        for l in ins: e(l)
    lred = lab("red")
    e("s_cmp_eq_u32 s41, 0"); e(f"s_cbranch_scc1 {lred}")
    lr = lab("rp"); lg = lab("rg"); l0 = lab("r0")
    e(f"s_waitcnt vmcnt({4 + len(trick[st_['ti']:])})")
    e(f"s_branch {l0}")
    A.label(lr)
    red_loads()
    e("s_waitcnt vmcnt(0)")
    A.label(l0)
    maxtree([24, 28, 32, 36], 56)
    e("v_cmp_eq_u32 vcc, -1, v56")
    spin_check(lr, lg, cid=3+layer)
    stamp(f"r{layer}_ok")
    e("v_pk_add_f32 v[24:25], v[24:25], v[28:29]"); e("v_pk_add_f32 v[26:27], v[26:27], v[30:31]")
    e("v_pk_add_f32 v[32:33], v[32:33], v[36:37]"); e("v_pk_add_f32 v[34:35], v[34:35], v[38:39]")
    e("v_pk_add_f32 v[24:25], v[24:25], v[32:33]"); e("v_pk_add_f32 v[26:27], v[26:27], v[34:35]")
    regs = [24, 25, 26, 27]
    for r in regs: e(f"v_add_f32_dpp {v(r)}, {v(r)}, {v(r)} row_ror:8 row_mask:0xf bank_mask:0xf")
    for r in regs: e(f"v_mov_b32 {v(r+4)}, {v(r)}")
    for r in regs: e(f"v_permlane16_swap_b32 {v(r)}, {v(r+4)}")
    for r in regs: e(f"v_add_f32 {v(r)}, {v(r)}, {v(r+4)}")
    for r in regs: e(f"v_mov_b32 {v(r+4)}, {v(r)}")
    for r in regs: e(f"v_permlane32_swap_b32 {v(r)}, {v(r+4)}")
    for r in regs: e(f"v_add_f32 {v(r)}, {v(r)}, {v(r+4)}")
    e("v_cvt_pk_bf16_f32 v28, v24, v25"); e("v_cvt_pk_bf16_f32 v29, v26, v27")
    e("s_mov_b64 exec, s[42:43]")
    e(f"buffer_store_dwordx2 v[28:29], v171, {s(sSRD,4)}, s40 offen sc1")
    e("s_mov_b64 exec, -1")
    A.label(lred)

def ophase(layer):
    pq = PQ1 if layer == 1 else PQ2
    ff = F1 if layer == 1 else F2
    KF, PQF = 24, 56
    e("v_and_b32 v10, 31, v1"); e("v_min_u32 v10, 16, v10")
    e("v_lshlrev_b32 v10, 5, v10"); e("v_lshrrev_b32 v11, 5, v1"); e("v_lshl_add_u32 v10, v11, 4, v10")
    e(f"s_lshl_b32 {s(sT)}, {s(sWAVE)}, 3"); e(f"s_mul_i32 s4, {s(sT)}, {FP}"); e(f"s_add_u32 s4, s4, {ff}")
    e(f"s_mul_i32 {s(sT+1)}, {s(sXCD)}, {FRP}"); e(f"s_add_u32 s4, s4, {s(sT+1)}")
    e("v_and_b32 v11, 31, v1"); e("v_lshlrev_b32 v11, 4, v11"); e("v_lshrrev_b32 v12, 5, v1"); e("v_lshl_add_u32 v11, v12, 10, v11")
    e(f"s_mul_i32 s5, {s(sT)}, {HP}"); e(f"s_add_u32 s5, s5, {pq}")
    e(f"s_lshl_b32 {s(sT+3)}, {s(sRS)}, 11"); e(f"s_add_u32 s5, s5, {s(sT+3)}")
    e(f"s_and_b32 {s(sT+3)}, {s(sRO)}, 1"); e(f"s_lshl_b32 {s(sT+3)}, {s(sT+3)}, 9"); e(f"s_add_u32 s5, s5, {s(sT+3)}")
    e(f"s_mul_i32 s3, {s(sWAVE)}, 5120"); e(f"s_add_u32 s3, s3, {AT + 32768}")
    e("v_add_u32 v10, s3, v10"); e("v_lshlrev_b32 v19, 4, v1")
    e(f"s_lshl_b32 {s(sT)}, {s(sWAVE)}, 13"); e(f"s_add_u32 {s(sT)}, {s(sT)}, {OT}")
    e(f"v_lshl_add_u32 v12, v1, 4, {s(sT)}")
    e(f"v_lshlrev_b32 v13, 4, v1"); e(f"v_add_u32 v13, {OT}, v13")
    if layer == 1:
        e("v_and_b32 v14, 31, v1"); e(f"v_mul_u32_u24 v14, {TBP}, v14"); e("v_lshrrev_b32 v15, 5, v1"); e("v_lshl_add_u32 v14, v15, 5, v14")
        e(f"s_mul_i32 {s(sT+4)}, {s(sWAVE)}, {32*TBP}"); e(f"s_add_u32 {s(sT+4)}, {s(sT+4)}, {TB}"); e(f"v_add_u32 v14, {s(sT+4)}, v14")
        e("v_lshrrev_b32 v15, 4, v1"); e("v_lshlrev_b32 v15, 3, v15"); e("v_bfe_u32 v16, v1, 2, 2"); e("v_add_u32 v15, v15, v16")
        e(f"v_mul_u32_u24 v15, {TBP}, v15"); e("v_and_b32 v16, 3, v1"); e("v_lshl_add_u32 v15, v16, 3, v15"); e(f"v_add_u32 v15, {s(sT+4)}, v15")
        e("v_and_b32 v16, 15, v1"); e(f"v_lshlrev_b32 v16, 6, v16"); e("v_lshrrev_b32 v17, 4, v1"); e("v_lshl_add_u32 v16, v17, 4, v16")
        e(f"s_lshl_b32 s6, {s(sJO)}, 7"); e(f"s_lshl_b32 {s(sT+1)}, {s(sWAVE)}, 5"); e(f"s_add_u32 s6, s6, {s(sT+1)}")
        e(f"s_lshl_b32 s6, s6, 6"); e(f"s_mul_i32 {s(sT+1)}, {s(sRO)}, {ROP}"); e(f"s_add_u32 s6, s6, {s(sT+1)}")
        e(f"s_add_u32 s6, s6, {X2T}")
        e("v_bfe_u32 v17, v1, 1, 2"); e("v_lshlrev_b32 v17, 12, v17"); e("v_bfe_u32 v18, v1, 3, 2"); e("v_lshl_add_u32 v17, v18, 4, v17")
        e("v_and_b32 v18, 1, v1"); e("v_lshl_add_u32 v17, v18, 3, v17"); e("v_lshrrev_b32 v18, 5, v1"); e("v_lshl_add_u32 v17, v18, 2, v17")
        e(f"s_lshl_b32 s7, {s(sRO)}, 6"); e(f"s_add_u32 s7, s7, {S3}")
    else:
        e("v_and_b32 v14, 31, v1"); e("v_lshlrev_b32 v14, 10, v14"); e("v_lshrrev_b32 v15, 5, v1"); e("v_lshl_add_u32 v14, v15, 5, v14")
        e(f"s_lshl_b32 {s(sT)}, {s(sRO)}, 15"); e(f"s_lshl_b32 {s(sT+1)}, {s(sJO)}, 8"); e(f"s_add_u32 {s(sT)}, {s(sT)}, {s(sT+1)}")
        e(f"s_lshl_b32 {s(sT+1)}, {s(sWAVE)}, 6"); e(f"s_add_u32 {s(sT)}, {s(sT)}, {s(sT+1)}")
        e(f"v_add_u32 v14, {s(sT)}, v14")
    XF = 104
    def pq_loads():
        for h in range(8):
            e(f"s_add_u32 {s(sT+3)}, s5, {h*HP}")
            e(f"buffer_load_dwordx4 {v(PQF+4*h,4)}, v11, {s(sSRD,4)}, {s(sT+3)} offen sc1")
    e("s_barrier")
    stamp(f"o{layer}_gate")
    if STAMPS and f"o{layer}_cnt" in STSET: e("s_mov_b32 s101, 0")
    if STAMPS and f"o{layer}_st0" in STSET:
        e("s_waitcnt vmcnt(0)"); stamp(f"o{layer}_st0")
    pq_loads()
    if STAMPS and f"o{layer}_pq" in STSET:
        stamp(f"o{layer}_pqi"); e("s_waitcnt vmcnt(0)"); stamp(f"o{layer}_pq")
    if int(OPTS.get("osl", 0)): e(f"s_sleep {OPTS.get('osl')}")
    lr = lab("of"); lg = lab("ofk")
    A.label(lr)
    for i in range(5):
        e(f"s_add_u32 {s(sT+3)}, s4, {1024*i}"); e(f"s_add_u32 m0, s3, {1024*i}")
        e(f"buffer_load_dwordx4 v19, {s(sSRD,4)}, {s(sT+3)} offen sc1 lds")
    e("s_waitcnt vmcnt(0)")
    for h in range(8): e(f"ds_read_b128 {v(KF+4*h,4)}, v10 offset:{h*FP}")
    e("s_waitcnt lgkmcnt(0)")
    if STAMPS and f"o{layer}_cnt" in STSET: e("s_add_u32 s101, s101, 1")
    maxtree([KF+4*h+o for h in range(8) for o in (0, 2)], 18)
    e("v_cmp_eq_u32 vcc, -1, v18")
    spin_check(lr, lg, cid=1+layer)
    stamp(f"o{layer}_fok")
    if STAMPS and f"o{layer}_cnt" in STSET:
        i = len(stnames); stnames.append(f"o{layer}_cnt"); e(f"s_mov_b32 s{84+i}, s101")
    lr = lab("oq"); lg = lab("oqk")
    A.label(lr)
    maxtree([PQF+4*h+o for h in range(8) for o in (0, 2)], 18)
    e("v_cmp_eq_u32 vcc, -1, v18")
    e(f"s_cbranch_vccz {lg}")
    e(f"s_sub_u32 {s(sSPIN)}, {s(sSPIN)}, 1"); e(f"s_cbranch_scc1 {lg}_x")
    pq_loads()
    e("s_waitcnt vmcnt(0)")
    e(f"s_branch {lr}")
    A.label(lg + "_x"); e(f"s_mov_b32 {s(sSPIN)}, 0")
    A.label(lg)
    stamp(f"o{layer}_ld")
    DB = [88, 104, 120, 136, 152, 168, 24, 56]
    def m1(h): e(f"v_mfma_f32_32x32x16_bf16 {v(DB[h],16)}, {v(KF+4*h,4)}, {v(PQF+4*h,4)}, 0")
    def proc2(h0):
        hs = (h0, h0 + 1)
        for h in hs: e(f"v_add_f32 {v(DB[h]+8)}, {s(sEPS6)}, {v(DB[h]+8)}")
        for h in hs: e(f"v_rcp_f32 {v(DB[h]+8)}, {v(DB[h]+8)}")
        for k in range(4):
            for h in hs: e(f"v_pk_mul_f32 {v(DB[h]+2*k,2)}, {v(DB[h]+2*k,2)}, {v(DB[h]+8,2)} op_sel_hi:[1,0]")
        for h in hs:
            for k in range(4): e(f"v_cvt_pk_bf16_f32 {v(DB[h]+10+k)}, {v(DB[h]+2*k)}, {v(DB[h]+2*k+1)}")
            e(f"ds_write_b128 v12, {v(DB[h]+10,4)} offset:{1024*h}")
    for h in range(6): m1(h)
    proc2(0)
    m1(6); m1(7)
    proc2(2); proc2(4); proc2(6)
    stamp(f"o{layer}_m1")
    e("s_waitcnt lgkmcnt(0)"); e("s_barrier")
    ACC = 24; NB = 8; OF = [56 + 4*i for i in range(NB)]
    for h in range(NB): e(f"ds_read_b128 {v(OF[h],4)}, v13 offset:{1024*h}")
    for k in range(8):
        e(f"v_lshlrev_b32 {v(XF+2*k)}, 16, {v(XRES+k)}"); e(f"v_and_b32 {v(XF+2*k+1)}, {s(sHI)}, {v(XRES+k)}")
    for h in range(32):
        e(f"s_waitcnt lgkmcnt({min(NB-1, 31-h)})")
        w_ = a(192 + 4*h, 4) if h < 16 else v(192 + 4*(h-16), 4)
        c_ = "0" if h == 0 else v(ACC, 16)
        e(f"v_mfma_f32_32x32x16_bf16 {v(ACC,16)}, {w_}, {v(OF[h % NB],4)}, {c_}")
        if h + NB < 32: e(f"ds_read_b128 {v(OF[h % NB],4)}, v13 offset:{1024*(h+NB)}")
    stamp(f"o{layer}_g2")
    for k in range(8): e(f"v_pk_add_f32 {v(XF+2*k,2)}, {v(XF+2*k,2)}, {v(ACC+2*k,2)}")
    PKD = 120
    for k in range(8): e(f"v_cvt_pk_bf16_f32 {v(PKD+k)}, {v(XF+2*k)}, {v(XF+2*k+1)}")
    if layer == 2:
        fl = OPTS.get("outfl", "").replace("_", " ")
        e(f"global_store_dwordx4 v14, {v(PKD,4)}, {s(sOUT,2)} {fl}")
        e(f"global_store_dwordx4 v14, {v(PKD+4,4)}, {s(sOUT,2)} offset:16 {fl}")
        return
    e(f"ds_write_b128 v14, {v(PKD,4)}"); e(f"ds_write_b128 v14, {v(PKD+4,4)} offset:16")
    e(f"v_pk_add_f32 v[64:65], {v(XF,2)}, {v(XF+2,2)}"); e(f"v_pk_mul_f32 v[66:67], {v(XF,2)}, {v(XF,2)}")
    e(f"v_pk_add_f32 v[68:69], {v(XF+4,2)}, {v(XF+6,2)}"); e(f"v_pk_mul_f32 v[70:71], {v(XF+2,2)}, {v(XF+2,2)}")
    for k in range(2, 8):
        e(f"v_pk_fma_f32 {v(66+4*(k&1),2)}, {v(XF+2*k,2)}, {v(XF+2*k,2)}, {v(66+4*(k&1),2)}")
        if k >= 4: e(f"v_pk_add_f32 {v(64+4*(k&1),2)}, {v(64+4*(k&1),2)}, {v(XF+2*k,2)}")
    e("s_waitcnt lgkmcnt(0)")
    for k in range(2):
        e(f"ds_read_b64_tr_b16 {v(80+4*k,2)}, v15 offset:{32*k}")
        e(f"ds_read_b64_tr_b16 {v(82+4*k,2)}, v15 offset:{32*k + 4*TBP}")
    e("v_pk_add_f32 v[64:65], v[64:65], v[68:69]"); e("v_pk_add_f32 v[66:67], v[66:67], v[70:71]")
    e("v_add_f32 v64, v64, v65"); e("v_add_f32 v65, v66, v67")
    e("v_permlane32_swap_b32 v64, v65")
    e("v_add_f32 v64, v64, v65")
    e(f"s_lshl_b32 {s(sT)}, {s(sWAVE)}, 8"); e(f"s_add_u32 {s(sT)}, {s(sT)}, {ST}"); e(f"v_lshl_add_u32 v66, v1, 2, {s(sT)}")
    e("ds_write_b32 v66, v64")
    e("s_waitcnt lgkmcnt(1)")
    if OPTS.get("nox2") != "1":
        e(f"buffer_store_dwordx4 v[80:83], v16, {s(sSRD,4)}, s6 offen sc1")
        e(f"buffer_store_dwordx4 v[84:87], v16, {s(sSRD,4)}, s6 offen offset:1024 sc1")
    e("s_waitcnt lgkmcnt(0)"); e("s_barrier")
    l = lab("osp")
    e(f"s_cmp_lg_u32 {s(sWAVE)}, 0"); e(f"s_cbranch_scc1 {l}")
    e(f"v_lshlrev_b32 v66, 2, v1"); e(f"v_add_u32 v67, {ST}, v66")
    for k in range(4): e(f"ds_read_b32 {v(68+k)}, v67 offset:{256*k}")
    e(f"s_lshl_b32 {s(sT)}, {s(sRO)}, 10"); e(f"s_add_u32 {s(sT)}, {s(sT)}, {SP}")
    e(f"s_lshl_b32 {s(sT+1)}, {s(sJO)}, 8"); e(f"s_add_u32 {s(sT+1)}, {s(sT+1)}, {s(sT)}")
    e("s_waitcnt lgkmcnt(0)")
    e("v_add_f32 v68, v68, v69"); e("v_add_f32 v70, v70, v71"); e("v_add_f32 v68, v68, v70")
    e(f"buffer_store_dword v68, v66, {s(sSRD,4)}, {s(sT+1)} offen sc1")
    if int(OPTS.get("spre", 5)): e(f"s_sleep {OPTS.get('spre', 5)}")
    lr = lab("spp"); lg = lab("spk")
    A.label(lr)
    for k in range(4): e(f"buffer_load_dword {v(72+k)}, v66, {s(sSRD,4)}, {s(sT)} offen offset:{256*k} sc1")
    e("s_waitcnt vmcnt(0)")
    maxtree([72, 73, 74, 75], 76)
    e("v_cmp_eq_u32 vcc, -1, v76")
    spin_check(lr, lg, bk=1, cid=0)
    e("v_add_f32 v72, v72, v73"); e("v_add_f32 v74, v74, v75"); e("v_add_f32 v72, v72, v74")
    e("v_mov_b32 v73, v72")
    e("v_permlane32_swap_b32 v72, v73")
    stats_final(72, 73, 74, 75, 76)
    e("v_and_b32 v67, 31, v1"); e("v_lshlrev_b32 v67, 3, v67"); e(f"v_add_u32 v67, {ST + 1024}, v67")
    e("ds_write_b64 v67, v[74:75]")
    A.label(l)
    for k in range(8):
        e(f"v_lshlrev_b32 {v(XF+2*k)}, 16, {v(PKD+k)}"); e(f"v_and_b32 {v(XF+2*k+1)}, {s(sHI)}, {v(PKD+k)}")
    e("v_and_b32 v67, 31, v1"); e("v_lshlrev_b32 v67, 3, v67"); e(f"v_add_u32 v67, {ST + 1024}, v67")
    e("s_waitcnt lgkmcnt(0)"); e("s_barrier")
    stamp("o1_sp")
    e("ds_read_b64 v[74:75], v67")
    e("s_waitcnt lgkmcnt(0)")
    for k in range(8): e(f"v_pk_add_f32 {v(XF+2*k,2)}, {v(XF+2*k,2)}, v[74:75] op_sel_hi:[1,0] neg_lo:[0,1] neg_hi:[0,1]")
    for k in range(8): e(f"v_cvt_pk_bf16_f32 {v(PKD+k)}, {v(XF+2*k)}, {v(XF+2*k+1)}")
    for k in range(8):
        e(f"v_lshlrev_b32 {v(XF+2*k)}, 16, {v(PKD+k)}"); e(f"v_and_b32 {v(XF+2*k+1)}, {s(sHI)}, {v(PKD+k)}")
    for k in range(8): e(f"v_pk_mul_f32 {v(XF+2*k,2)}, {v(XF+2*k,2)}, v[74:75] op_sel:[0,1] op_sel_hi:[1,1]")
    for k in range(8): e(f"v_cvt_pk_bf16_f32 {v(PKD+k)}, {v(XF+2*k)}, {v(XF+2*k+1)}")
    TB2 = 4 * 32 * TBP
    e(f"ds_write_b128 v14, {v(PKD,4)} offset:{TB2}"); e(f"ds_write_b128 v14, {v(PKD+4,4)} offset:{TB2 + 16}")
    e(f"s_add_u32 s7, s6, {U2T - X2T}")
    e("s_waitcnt lgkmcnt(0)")
    for k in range(2):
        e(f"ds_read_b64_tr_b16 {v(88+4*k,2)}, v15 offset:{TB2 + 32*k}")
        e(f"ds_read_b64_tr_b16 {v(90+4*k,2)}, v15 offset:{TB2 + 32*k + 4*TBP}")
    e("s_waitcnt vmcnt(0) lgkmcnt(0)")
    e(f"buffer_store_dwordx4 v[88:91], v16, {s(sSRD,4)}, s7 offen sc1")
    e(f"buffer_store_dwordx4 v[92:95], v16, {s(sSRD,4)}, s7 offen offset:1024 sc1")

def build():
    prologue()
    stamp("start")
    idx_loads()
    p0_fills()
    stamp("p_iss")
    e("s_waitcnt vmcnt(6)")
    stamp("p_ld")
    p0_x0_write()
    p0_stats()
    e("s_waitcnt vmcnt(4) lgkmcnt(0)"); e("s_barrier")
    p0_x0_store()
    nonce_issue()
    p0_wfrag()
    kgen_setup()
    stamp("p_st")
    kgen_round(["X1", "X2", "Y1"], 0); kgen_round(["Y2"], 0)
    nonce_get(2)
    p0_stats_store()
    sent_regs(20)
    for g in xt_fill_groups(XT1, 3, 10): emit_group(g)
    stamp("p_s1")
    kgen_round(["X1", "X2", "Y1"], 1); kgen_round(["Y2"], 1)
    arrive(0, vm=0)
    stamp("arr1")
    fg = fill_groups(1, 58, 59)
    def upto_store():
        while fg:
            g = fg.pop(0); emit_group(g)
            if any("buffer_store" in l for l in g): return
    upto_store()
    kgen_round(["X1", "X2"], 2); upto_store(); kgen_round(["X1", "X2"], 3); upto_store()
    stamp("k_tab")
    kgen_mm([], upto_store)
    while fg: upto_store()
    e("s_waitcnt lgkmcnt(0)"); e("s_barrier")
    stamp("kgen")
    if stop_here("K"): return
    conv_setup(1)
    stamp("B1")
    rest = conv(1)
    stamp("C1")
    if stop_here("C1"): return
    for ins in rest:
        for l in ins: e(l)
    g_setup(1)
    e("s_waitcnt vmcnt(0)")
    colsums()
    stamp("B2")
    gphase(1)
    stamp("G1")
    if stop_here("G1"): return
    ophase(1)
    stamp("O1")
    if stop_here("O1"): return
    e("s_barrier")
    conv_setup(2)
    stamp("B4")
    conv(2)
    stamp("C2")
    if stop_here("C2"): return
    g_setup(2)
    stamp("B5")
    gphase(2)
    stamp("G2")
    if stop_here("G2"): return
    ophase(2)
    if STAMPS:
        e("s_waitcnt vmcnt(0)")
        stamp("O2")
        if OPTS.get("cntv"):
            vals = (("sp_cnt", 90), ("u2_cnt", 91), ("f1_cnt", 92), ("f2_cnt", 93), ("r1_cnt", 94), ("r2_cnt", 95), ("c0_cnt", 96), ("slow_cnt", 97))
            for nm, r in vals: e(f"v_mov_b32 v{100+r-90}, s{r}")
            for nm, r in vals:
                i = len(stnames); stnames.append(nm); e(f"v_readfirstlane_b32 s{84+i}, v{100+r-90}")
        stamps_out()

build()
A.label("L_end")
e("s_endpgm")

def rb_int(j):
    u = struct.unpack("<I", struct.pack("<f", float(j)))[0]
    u = (u + 0x7fff + ((u >> 16) & 1)) & 0xffff0000
    return int(struct.unpack("<f", struct.pack("<I", u))[0])
idx = []
for x in range(2064):
    j = 2047 - x
    if j < 0: ent = 1024
    else:
        t = rb_int(j); ent = t if t < 512 else 512 + (t - 512) // 4
    idx.append(2 * ent)

lines, nn = hazard_pass(A.lines)
probs = check_branches(lines)
for p in probs: print("BRANCH HAZARD:", p, file=sys.stderr)
hdr = open("interleave_layers__ssm_conv_s4d__linear_attn_block__prompt.s.ref").read().split("; Override launch")[0]
out = hdr + "; Override launch geometry by editing the next line.\n"
out += f"; @launch grid=(256,1,1) block=(256,1,1) lds={LDS_BYTES}\n"
out += '.amdgcn_target "amdgcn-amd-amdhsa--gfx950"\n.text\n'
out += f".globl {NAME}\n.p2align 8\n.type {NAME},@function\n{NAME}:\n"
out += "\n".join(lines) + "\n"
out += ".p2align 6\n.type L_idx,@object\nL_idx:\n"
for i in range(0, len(idx), 16): out += "  .short " + ", ".join(str(x) for x in idx[i:i+16]) + "\n"
out += "L_tab_end:\n"
out += f""".section .rodata,"a"
.p2align 6
.amdhsa_kernel {NAME}
  .amdhsa_next_free_vgpr 512
  .amdhsa_next_free_sgpr 102
  .amdhsa_accum_offset 256
  .amdhsa_group_segment_fixed_size 0
  .amdhsa_kernarg_size 104
  .amdhsa_user_sgpr_count 2
  .amdhsa_user_sgpr_kernarg_segment_ptr 1
  .amdhsa_system_sgpr_workgroup_id_x 1
  .amdhsa_float_denorm_mode_32 3
.end_amdhsa_kernel
"""
open(sys.argv[1], "w").write(out)
if STAMPS: open(sys.argv[1] + ".names", "w").write(",".join(stnames))
print(f"wrote {sys.argv[1]}: {len(lines)} lines, {nn} nops inserted; WS_USED={WS_USED:#x}", file=sys.stderr)
```

```python
import sys, struct
from asmlib import *

NAME = "interleave_layers__ssm_conv_s4d__linear_attn_block__prompt_kernel"
OPTS = {}
for x in sys.argv[2:]:
    if "=" in x:
        k_, v_ = x.split("="); OPTS[k_] = v_
STOP = OPTS.get("stop")
SPINMAX = int(OPTS.get("spin", 100000))
BK = int(OPTS.get("bk", 2))

PITCH = 4224
S1 = 0x000000
S3 = 0x004000
FP = 640; FRP = 32 * FP + 128; F1 = 0x1200000 - 0x100000; F2 = F1 + 0x40000
STAMP_OFF = 0x020000
X0P = 8192 + 128
CNT = 0x030000
KVP1 = 0x040000; KVH = 1152; KVW = 4 * KVH; KVP2 = KVP1 + 0x128000
WFG = 0x2A0000; WFO = WFG + 0x180000
XSZ = 0x220000
XT1 = 0x4A0000; XT3 = XT1 + XSZ; X2T = XT3 + XSZ
ROP = 32768 + 256
HP = 65536 + 256
PQ1 = X2T + XSZ; PQ2 = PQ1 + 0x210000
X0T = 0x1200000
U2T = 0x1410000
SP = 0x030000
WS_USED = 0x1620000
assert PQ2 + 0x210000 <= F1
KC = 0; KCC = 4160; KCH = 4 * KCC
AT = 66560
MISC = AT + 65536
ST = MISC
WST = MISC + 2048
CT = WST + 8192; CTP = 2080
TB = WST; TBP = 80
LDS_BYTES = 163840
X0S = 147456
TKP = 224; TABC = 256 * TKP
U0 = AT; UP = 4608; X0 = AT + 2 * UP; RED = X0 + 8192
OT = AT

sU, sLOGA, sAIM, sCR, sCI, sLDT, sDSK = 8, 10, 12, 14, 16, 18, 20
sWQKV, sWO, sOUT, sDBG, sWS = 24, 26, 28, 30, 32
sSRD = 36; sSRD2 = 40
sWAVE, sXCD, sIDX, sCP, sRS, sJ, sRO, sJO = 44, 45, 46, 47, 48, 49, 50, 51
sSPIN = 52; sDSKV = 53
sT = 54
sLOG2E = 64; sEPS6 = 66; sM = 68; sHI = 76; sPC = 78; sINV512 = 80
sW = 34
sNON = 35

def f2u(f): return struct.unpack("<I", struct.pack("<f", f))[0]
A = Asm(); e = A.e
uid = [0]
def lab(p):
    uid[0] += 1; return f"L_{p}_{uid[0]}"

STAMPS = OPTS.get("stamps") == "1"
DEFSET = "start,arr1,kgen,B1,c1_pro,C1,B2,g1_kv,G1,o1_ld,O1,B4,c2_pro,C2,B5,G2,o2_ld,O2"
STSET = OPTS.get("st", DEFSET).split(",")
stnames = []
def stamp(name):
    if not STAMPS or name not in STSET: return
    i = len(stnames); stnames.append(name); assert i < 18
    e(f"{'s_memtime' if OPTS.get('clk') == '1' else 's_memrealtime'} s[82:83]"); e("s_waitcnt lgkmcnt(0)"); e(f"s_mov_b32 s{84+i}, s82")
def stamps_out():
    if not STAMPS: return
    if OPTS.get("dbgout"):
        l = lab("so")
        e(f"s_cmp_lg_u32 {s(sWAVE)}, 0"); e(f"s_cbranch_scc1 {l}")
        e(f"s_cmp_lg_u32 s2, {OPTS.get('dbgout')}"); e(f"s_cbranch_scc1 {l}")
        e("s_mov_b64 exec, 1")
        words = [2, 3, 5, 6, 7, 9, 10, 11, 13, 14, 15]
        for i in range(1, min(len(stnames), 12)):
            e(f"s_sub_u32 {s(sT)}, s{84+i}, s84")
            e(f"v_mov_b32 v10, {s(sT)}"); e(f"v_mov_b32 v11, {4*words[i-1]}")
            e(f"global_store_dword v11, v10, {s(sDBG,2)}")
        e("s_mov_b64 exec, -1")
        A.label(l)
        return
    l = lab("so")
    e(f"s_cmp_lg_u32 {s(sWAVE)}, {OPTS.get('stw', '0')}"); e(f"s_cbranch_scc1 {l}")
    e(f"s_lshl_b32 {s(sT)}, s2, 7"); e(f"s_add_u32 {s(sT)}, {s(sT)}, {STAMP_OFF}")
    e("s_mov_b64 exec, 1")
    for i in range(len(stnames)):
        e(f"v_mov_b32 v10, s{84+i}"); e(f"v_mov_b32 v11, {4*i}")
        e(f"buffer_store_dword v10, v11, {s(sSRD,4)}, {s(sT)} offen")
    e("s_mov_b64 exec, -1")
    A.label(l)
def stop_here(name):
    if STOP == name:
        e("s_waitcnt vmcnt(0) lgkmcnt(0)"); e("s_branch L_end"); return True
    return False

def sent_regs(r):
    for i in range(4): e(f"v_mov_b32 {v(r+i)}, -1")
def spin_check(retry, giveup, bk=None, cid=None):
    e(f"s_cbranch_vccz {giveup}")
    if OPTS.get("cntv") and cid is not None: e(f"s_add_u32 s{90+cid}, s{90+cid}, 1")
    bk = BK if bk is None else bk
    if bk: e(f"s_sleep {bk}")
    e(f"s_sub_u32 {s(sSPIN)}, {s(sSPIN)}, 1")
    e(f"s_cbranch_scc0 {retry}")
    e(f"s_mov_b32 {s(sSPIN)}, 0")
    A.label(giveup)
def maxtree(regs, dst):
    regs = list(regs); cur = regs.pop(0)
    while regs:
        if len(regs) >= 2:
            e(f"v_max3_u32 {v(dst)}, {v(cur)}, {v(regs[0])}, {v(regs[1])}"); regs = regs[2:]
        else:
            e(f"v_max_u32 {v(dst)}, {v(cur)}, {v(regs[0])}"); regs = []
        cur = dst

def arrive(k, vm=0):
    e(f"s_waitcnt vmcnt({vm}) lgkmcnt(0)"); e("s_barrier")
    l = lab("arr")
    e(f"s_cmp_lg_u32 {s(sWAVE)}, 0"); e(f"s_cbranch_scc1 {l}")
    e(f"s_and_b32 {s(sT)}, s2, 15"); e(f"s_lshl_b32 {s(sT)}, {s(sT)}, {4 if k == 0 else 12}")
    if k: e(f"s_add_u32 {s(sT)}, {s(sT)}, {CNT}")
    e(f"v_mov_b32 v10, {s(sT)}"); e("v_mov_b32 v11, 1")
    e("s_mov_b64 exec, 1")
    e(f"global_atomic_add v10, v11, {s(sDBG if k == 0 else sWS,2)}")
    e("s_mov_b64 exec, -1")
    A.label(l)
def wait(k, pre=0):
    l = lab("wt"); lp = lab("poll")
    e(f"s_cmp_lg_u32 {s(sWAVE)}, 0"); e(f"s_cbranch_scc1 {l}")
    e("v_and_b32 v10, 15, v0"); e(f"v_lshlrev_b32 v10, {4 if k == 0 else 12}, v10")
    if k: e(f"v_add_u32 v10, {CNT}, v10")
    e(f"s_movk_i32 {s(sT+1)}, {16 * max(k, 1)}")
    if pre: e(f"s_sleep {pre}")
    A.label(lp)
    e(f"global_load_dword v11, v10, {s(sDBG if k == 0 else sWS,2)} sc1")
    e("s_waitcnt vmcnt(0)")
    e(f"v_cmp_gt_u32 vcc, {s(sT+1)}, v11")
    spin_check(lp, l, bk=int(OPTS.get("wbk", 0)))
    e("s_barrier")

def cmul(d, x, w, t):
    return [f"v_pk_mul_f32 {v(t,2)}, {v(x,2)}, {v(w,2)} op_sel_hi:[1,0]",
            f"v_pk_fma_f32 {v(d,2)}, {v(x,2)}, {v(w,2)}, {v(t,2)} op_sel:[1,1,0] op_sel_hi:[0,1,1] neg_lo:[0,1,0]"]
def bf16r(dst, src):
    e(f"v_cvt_pk_bf16_f32 {v(dst)}, {v(src)}, {v(src)}"); e(f"v_lshlrev_b32 {v(dst)}, 16, {v(dst)}")
def stats_final(vsum, vsq, vm, vr, t, rcp=True):
    e(f"v_mul_f32 {v(t)}, {s(sINV512)}, {v(vsum)}")
    e(f"v_mul_f32 {v(t+1)}, {s(sINV512)}, {v(vsq)}")
    e(f"v_fma_f32 {v(t+1)}, -{v(t)}, {v(t)}, {v(t+1)}")
    e(f"v_max_f32 {v(t+1)}, 0, {v(t+1)}")
    e(f"v_cvt_pk_bf16_f32 {v(t)}, {v(t)}, {v(t+1)}")
    e(f"v_and_b32 {v(t+1)}, {s(sHI)}, {v(t)}"); e(f"v_lshlrev_b32 {v(vm)}, 16, {v(t)}")
    e(f"v_add_f32 {v(t+1)}, 0x3727c5ac, {v(t+1)}")
    bf16r(t + 1, t + 1)
    e(f"v_sqrt_f32 {v(t+1)}, {v(t+1)}")
    if rcp:
        bf16r(t + 1, t + 1)
        e(f"v_rcp_f32 {v(vr)}, {v(t+1)}")
    else:
        bf16r(vr, t + 1)

def kvp_addr(kvp, dst):
    e(f"s_lshl_b32 {s(dst)}, {s(sJ)}, 5"); e(f"s_add_u32 {s(dst)}, {s(dst)}, {s(sRS)}"); e(f"s_lshl_b32 {s(dst)}, {s(dst)}, 2")
    e(f"s_add_u32 {s(dst)}, {s(dst)}, {s(sWAVE)}"); e(f"s_mul_i32 {s(dst)}, {s(dst)}, {KVH}"); e(f"s_add_u32 {s(dst)}, {s(dst)}, {kvp}")
def f_addr(f, dst):
    e(f"s_lshr_b32 {s(dst)}, {s(sRS)}, 3"); e(f"s_lshl_b32 {s(sT+9)}, {s(sJ)}, 2"); e(f"s_add_u32 {s(dst)}, {s(dst)}, {s(sT+9)}")
    e(f"s_mul_i32 {s(dst)}, {s(dst)}, {FP}"); e(f"s_add_u32 {s(dst)}, {s(dst)}, {f}")
def pq_addr(pq, dst):
    e(f"s_lshl_b32 {s(dst)}, {s(sJ)}, 2"); e(f"s_add_u32 {s(dst)}, {s(dst)}, {s(sWAVE)}")
    e(f"s_mul_i32 {s(dst)}, {s(dst)}, {HP}"); e(f"s_lshl_b32 {s(sT+9)}, {s(sRS)}, 11"); e(f"s_add_u32 {s(dst)}, {s(dst)}, {s(sT+9)}")
    e(f"s_add_u32 {s(dst)}, {s(dst)}, {pq}")
def capture(fn):
    n = len(A.lines); fn(); out = [l.strip() for l in A.lines[n:]]; del A.lines[n:]
    return out
def fill_groups(layer, va, vb):
    S = 20; P1, K1, FF = 40, 41, 42
    pq = PQ1 if layer == 1 else PQ2; kvp = KVP1 if layer == 1 else KVP2; ff = F1 if layer == 1 else F2
    G = []
    def grp(fn): G.append(capture(fn))
    def single(fn):
        for l in capture(fn): G.append([l])
    single(lambda: sent_regs(S))
    def addr():
        e(f"s_lshl_b32 s{P1}, {s(sJ)}, 2"); e(f"s_add_u32 s{P1}, s{P1}, {s(sWAVE)}"); e(f"s_mul_i32 s{P1}, s{P1}, {HP}")
        e(f"s_lshl_b32 s61, {s(sRS)}, 11"); e(f"s_add_u32 s{P1}, s{P1}, s61"); e(f"s_add_u32 s{P1}, s{P1}, {pq}")
        e(f"s_lshl_b32 s{K1}, {s(sJ)}, 5"); e(f"s_add_u32 s{K1}, s{K1}, {s(sRS)}"); e(f"s_lshl_b32 s{K1}, s{K1}, 2")
        e(f"s_add_u32 s{K1}, s{K1}, {s(sWAVE)}"); e(f"s_mul_i32 s{K1}, s{K1}, {KVH}"); e(f"s_add_u32 s{K1}, s{K1}, {kvp}")
        e(f"s_lshr_b32 s{FF}, {s(sRS)}, 3"); e(f"s_lshl_b32 s61, {s(sJ)}, 2"); e(f"s_add_u32 s{FF}, s{FF}, s61")
        e(f"s_mul_i32 s{FF}, s{FF}, {FP}"); e(f"s_add_u32 s{FF}, s{FF}, {ff}")
        e(f"v_lshlrev_b32 {v(va)}, 4, v1"); e(f"v_lshlrev_b32 {v(vb)}, 2, v1")
    single(addr)
    G.append([f"buffer_store_dwordx4 {v(S,4)}, {v(va)}, {s(sSRD,4)}, s{K1} offen sc1", "MARK"])
    def st2():
        e("s_mov_b32 s62, -1"); e("s_mov_b32 s63, 0"); e("s_mov_b64 exec, s[62:63]")
        e(f"buffer_store_dword {v(S)}, {v(vb)}, {s(sSRD,4)}, s{K1} offen offset:1024 sc1")
        e("s_mov_b64 exec, -1")
    grp(st2)
    G.append([f"buffer_store_dwordx4 {v(S,4)}, {v(va)}, {s(sSRD,4)}, s{P1} offen sc1", "MARK"])
    G.append([f"buffer_store_dwordx4 {v(S,4)}, {v(va)}, {s(sSRD,4)}, s{P1} offen offset:1024 sc1", "MARK"])
    def fslice():
        l = lab("ff")
        e(f"s_cmp_lg_u32 {s(sWAVE)}, 2"); e(f"s_cbranch_scc1 {l}")
        e(f"s_and_b32 s61, {s(sRS)}, 7"); e("s_lshl_b32 s62, s61, 6")
        e(f"v_lshrrev_b32 {v(va)}, 3, v1"); e(f"v_mul_u32_u24 {v(va)}, {FRP}, {v(va)}"); e(f"v_and_b32 {v(vb)}, 7, v1"); e(f"v_lshl_add_u32 {v(va)}, {v(vb)}, 3, {v(va)}")
        e(f"v_add_u32 {v(vb)}, s62, {v(va)}")
        e(f"buffer_store_dwordx2 {v(S,2)}, {v(vb)}, {s(sSRD,4)}, s{FF} offen sc1")
        e("s_cmp_lg_u32 s61, 0"); e(f"s_cbranch_scc1 {l}")
        e("s_mov_b32 s62, 0x0f0f0f0f"); e("s_mov_b32 s63, 0x0f0f0f0f"); e("s_mov_b64 exec, s[62:63]")
        e(f"buffer_store_dwordx2 {v(S,2)}, {v(va)}, {s(sSRD,4)}, s{FF} offen offset:512 sc1")
        e("s_mov_b64 exec, -1")
        A.label(l)
    grp(fslice)
    return G
def xt_fill_groups(buf, sreg, va):
    G = []
    G.append([f"s_lshr_b32 s{sreg}, {s(sWAVE)}, 1"]); G.append([f"s_lshl_b32 s61, {s(sCP)}, 1"]); G.append([f"s_add_u32 s{sreg}, s{sreg}, s61"])
    G.append([f"s_mul_i32 s{sreg}, s{sreg}, {PITCH}"]); G.append([f"s_and_b32 s61, {s(sWAVE)}, 1"]); G.append(["s_lshl_b32 s61, s61, 11"])
    G.append([f"s_add_u32 s{sreg}, s{sreg}, s61"]); G.append([f"s_add_u32 s{sreg}, s{sreg}, {buf}"]); G.append([f"v_lshlrev_b32 {v(va)}, 4, v1"])
    G.append([f"buffer_store_dwordx4 v[20:23], {v(va)}, {s(sSRD,4)}, s{sreg} offen sc1"])
    G.append([f"buffer_store_dwordx4 v[20:23], {v(va)}, {s(sSRD,4)}, s{sreg} offen offset:1024 sc1"])
    return G
def emit_group(g):
    for l in g:
        if l == "MARK": continue
        if l.endswith(":"): A.label(l[:-1])
        else: e(l)

XR = 24; PRM = 32; IDX = 40; XC = 176
def prologue():
    stamp("t0")
    if OPTS.get("cntv"):
        for r_ in range(90, 99): e(f"s_mov_b32 s{r_}, 0")
    e(f"s_getpc_b64 {s(sPC,2)}")
    A.label("L_pc")
    e("s_cmp_ge_u32 s2, 256")
    e("s_cbranch_scc1 L_end")
    e("s_load_dwordx16 s[8:23], s[0:1], 0")
    e("s_load_dwordx8 s[24:31], s[0:1], 64")
    e("s_load_dwordx2 s[32:33], s[0:1], 96")
    e("s_memrealtime s[82:83]")
    e("v_lshlrev_b32 v10, 7, v0")
    e("v_min_u32 v11, L_tab_end - L_pc - 4, v10")
    e(f"global_load_dword v38, v11, {s(sPC,2)}")
    e("v_add_u32 v10, 0x8000, v10")
    e("v_min_u32 v10, L_tab_end - L_pc - 4, v10")
    e(f"global_load_dword v39, v10, {s(sPC,2)}")
    e("v_lshrrev_b32 v1, 6, v0")
    e(f"s_and_b32 {s(sXCD)}, s2, 7")
    e(f"s_lshr_b32 {s(sIDX)}, s2, 3")
    e(f"v_readfirstlane_b32 {s(sWAVE)}, v1")
    e(f"s_lshl_b32 {s(sCP)}, {s(sXCD)}, 5"); e(f"s_add_u32 {s(sCP)}, {s(sCP)}, {s(sIDX)}")
    e("v_and_b32 v1, 63, v0")
    e(f"s_lshl_b32 {s(sT)}, {s(sCP)}, 9"); e(f"v_lshl_add_u32 v10, v0, 1, {s(sT)}")
    e(f"s_lshl_b32 {s(sT)}, {s(sCP)}, 2"); e("v_lshrrev_b32 v12, 7, v0"); e(f"v_lshl_add_u32 v11, v12, 1, {s(sT)}")
    e(f"s_lshl_b32 {s(sT)}, s2, 13"); e(f"v_lshl_add_u32 v13, v0, 5, {s(sT)}")
    e(f"s_mul_i32 s6, s2, 5462"); e(f"s_lshr_b32 s6, s6, 16"); e(f"s_mul_i32 s7, s6, 12"); e(f"s_sub_u32 s7, s2, s7")
    e(f"s_sub_u32 {s(sT+1)}, s2, 192"); e(f"s_lshr_b32 {s(sT)}, {s(sT+1)}, 1"); e(f"s_and_b32 {s(sT+1)}, {s(sT+1)}, 1")
    e("s_cmp_ge_u32 s2, 192")
    e(f"s_cselect_b32 s6, {s(sT)}, s6"); e(f"s_cselect_b32 s7, {s(sT+1)}, s7")
    e(f"s_cselect_b32 {s(sT+2)}, 4, 5")
    e(f"s_cselect_b32 {s(sT+3)}, 2, 3")
    e(f"s_cselect_b32 {s(sT+4)}, 10, 0")
    e(f"s_movk_i32 {s(sT+5)}, 3072"); e(f"s_cselect_b32 {s(sT+5)}, 1024, {s(sT+5)}")
    e(f"s_cselect_b32 {s(sT+6)}, 9, 8")
    e(f"s_cselect_b32 {s(sT+7)}, 5, 4")
    e(f"s_lshl_b32 {s(sT)}, s6, {s(sT+2)}"); e(f"s_lshl_b32 {s(sT+1)}, {s(sWAVE)}, {s(sT+3)}"); e(f"s_add_u32 {s(sT)}, {s(sT)}, {s(sT+1)}")
    e(f"s_mul_i32 {s(sT)}, {s(sT)}, {s(sT+5)}"); e(f"s_lshl_b32 {s(sT+1)}, s7, {s(sT+6)}"); e(f"s_add_u32 s4, {s(sT)}, {s(sT+1)}")
    e(f"v_lshrrev_b32 v14, {s(sT+7)}, v1"); e(f"v_mul_lo_u32 v14, {s(sT+5)}, v14")
    e(f"s_lshl_b32 {s(sT+1)}, 1, {s(sT+7)}"); e(f"s_sub_u32 {s(sT+1)}, {s(sT+1)}, 1"); e(f"v_and_b32 v15, {s(sT+1)}, v1"); e("v_lshl_add_u32 v14, v15, 4, v14")
    e(f"s_lshl_b32 {s(sT+1)}, 64, 0"); e(f"s_lshr_b32 {s(sT+1)}, 64, {s(sT+7)}"); e(f"s_mul_i32 s5, {s(sT+1)}, {s(sT+5)}")
    e(f"s_lshl_b32 {s(sT+3)}, {s(sWAVE)}, 11"); e(f"s_add_u32 {s(sT+3)}, {s(sT+3)}, {WST}")
    e("s_cmp_ge_u32 s2, 192")
    e("s_waitcnt lgkmcnt(0)")
    stamp("karg")
    if True:
        e(f"v_min_u32 v16, {(WS_USED - 1) // 0x200000}, v1"); e("v_lshlrev_b32 v16, 21, v16")
        e(f"global_load_dword v19, v16, {s(sWS,2)}")
    e("s_cmp_ge_u32 s2, 192")
    e(f"global_load_ushort {v(PRM)}, v10, {s(sLOGA,2)}")
    e(f"global_load_ushort {v(PRM+1)}, v10, {s(sAIM,2)}")
    e(f"global_load_ushort {v(PRM+4)}, v11, {s(sLDT,2)}")
    e(f"global_load_dwordx4 {v(XR,4)}, v13, {s(sU,2)}")
    e(f"global_load_dwordx4 {v(XR+4,4)}, v13, {s(sU,2)} offset:16")
    e(f"global_load_ushort {v(PRM+2)}, v10, {s(sCR,2)}")
    e(f"global_load_ushort {v(PRM+3)}, v10, {s(sCI,2)}")
    e(f"global_load_ushort {v(PRM+5)}, v11, {s(sDSK,2)}")
    e(f"s_cselect_b32 {s(sSRD2)}, {s(sWO)}, {s(sWQKV)}"); e(f"s_cselect_b32 {s(sSRD2+1)}, {s(sWO+1)}, {s(sWQKV+1)}")
    e(f"s_mov_b32 {s(sT)}, {512*1536*2}"); e(f"s_cselect_b32 {s(sSRD2+2)}, {512*512*2}, {s(sT)}")
    e(f"s_and_b32 {s(sSRD2+1)}, {s(sSRD2+1)}, 0xffff"); e(f"s_mov_b32 {s(sSRD2+3)}, 0x20000")
    ln = lab("nw")
    e("v_mov_b32 v23, 4")
    e(f"s_or_b32 {s(sT)}, s2, {s(sWAVE)}"); e(f"s_cmp_lg_u32 {s(sT)}, 0"); e(f"s_cbranch_scc1 {ln}")
    e(f"s_or_b32 {s(sT)}, s82, 1"); e(f"v_mov_b32 v58, {s(sT)}")
    e("s_mov_b64 exec, 1")
    e(f"global_store_dword v23, v58, {s(sDBG,2)} sc1")
    e("s_mov_b64 exec, -1")
    e("s_waitcnt vmcnt(63)")
    A.label(ln)
    e(f"s_mov_b32 m0, {s(sT+3)}")
    e(f"buffer_load_dwordx4 v14, {s(sSRD2,4)}, s4 offen lds")
    e(f"s_add_u32 s4, s4, s5"); e(f"s_add_u32 m0, {s(sT+3)}, 1024")
    e(f"buffer_load_dwordx4 v14, {s(sSRD2,4)}, s4 offen lds")
    e(f"s_and_b32 {s(sT)}, {s(sIDX)}, 3"); e(f"s_lshl_b32 {s(sRS)}, {s(sXCD)}, 2"); e(f"s_add_u32 {s(sRS)}, {s(sRS)}, {s(sT)}")
    e(f"s_lshr_b32 {s(sJ)}, {s(sIDX)}, 2")
    e(f"s_and_b32 {s(sT)}, {s(sJ)}, 1"); e(f"s_lshl_b32 {s(sRO)}, {s(sRS)}, 1"); e(f"s_add_u32 {s(sRO)}, {s(sRO)}, {s(sT)}")
    e(f"s_lshr_b32 {s(sJO)}, {s(sJ)}, 1")
    e(f"s_mov_b32 {s(sLOG2E)}, {f2u(1.4426950408889634):#x}"); e(f"s_mov_b32 {s(sLOG2E+1)}, {s(sLOG2E)}")
    e(f"s_mov_b32 {s(sEPS6)}, {f2u(1e-6):#x}"); e(f"s_mov_b32 {s(sEPS6+1)}, {s(sEPS6)}")
    e(f"s_mov_b32 {s(sINV512)}, {f2u(1.0/512):#x}"); e(f"s_mov_b32 {s(sINV512+1)}, {s(sINV512)}")
    e(f"s_mov_b32 {s(sHI)}, 0xffff0000")
    e(f"s_mov_b32 {s(sSPIN)}, {SPINMAX}")
    e(f"s_mov_b32 {s(sSRD)}, {s(sWS)}"); e(f"s_and_b32 {s(sSRD+1)}, {s(sWS+1)}, 0xffff")
    e(f"s_mov_b32 {s(sSRD+2)}, {WS_USED:#x}"); e(f"s_mov_b32 {s(sSRD+3)}, 0x20000")

def p0_fills():
    pass

def nonce_issue():
    e("v_mov_b32 v17, 4")
    e(f"global_load_dword v58, v17, {s(sDBG,2)} sc1")
def nonce_get(vm=0):
    lr = lab("nr"); lg = lab("ng"); l0 = lab("n0")
    e(f"s_waitcnt vmcnt({vm})")
    e(f"s_branch {l0}")
    A.label(lr)
    e(f"global_load_dword v58, v17, {s(sDBG,2)} sc1")
    e("s_waitcnt vmcnt(0)")
    A.label(l0)
    e("v_cmp_eq_u32 vcc, 0, v58")
    spin_check(lr, lg, bk=1)
    e(f"v_readfirstlane_b32 {s(sNON)}, v58")

def idx_loads():
    e(f"s_add_u32 {s(sT)}, {s(sPC)}, L_idx - L_pc"); e(f"s_addc_u32 {s(sT+1)}, {s(sPC+1)}, 0")
    e("v_and_b32 v10, 127, v0"); e("v_lshlrev_b32 v10, 4, v10")
    e(f"global_load_dwordx4 {v(IDX,4)}, v10, {s(sT,2)}")
    e(f"global_load_dwordx4 {v(IDX+4,4)}, v10, {s(sT,2)} offset:16")
    e(f"global_load_dwordx4 {v(IDX+8,4)}, v10, {s(sT,2)} offset:2048")
    e(f"global_load_dwordx4 {v(IDX+12,4)}, v10, {s(sT,2)} offset:2064")

def gather_loads():
    out = []
    for i in range(4): out.append(f"global_load_dword {v(XC+i)}, v19, {s(sU,2)} offset:{1024*i}")
    for i in range(4): out.append(f"global_load_dword {v(XC+4+i)}, v18, {s(sU,2)} offset:{1024*i}")
    return out

def p0_x0_write():
    e(f"v_lshlrev_b32 v10, 5, v0"); e(f"v_add_u32 v10, {X0S}, v10")
    e(f"ds_write_b128 v10, {v(XR,4)}"); e(f"ds_write_b128 v10, {v(XR+4,4)} offset:16")
def p0_x0_store():
    e("v_bfe_u32 v10, v1, 2, 2"); e("v_lshlrev_b32 v10, 10, v10")
    e("v_lshrrev_b32 v11, 4, v1"); e("v_lshl_add_u32 v10, v11, 5, v10")
    e("v_and_b32 v11, 3, v1"); e("v_lshl_add_u32 v10, v11, 3, v10")
    e(f"s_lshl_b32 {s(sT)}, {s(sWAVE)}, 8"); e(f"s_add_u32 {s(sT)}, {s(sT)}, {X0S}"); e(f"v_add_u32 v10, {s(sT)}, v10")
    for k in range(2):
        e(f"ds_read_b64_tr_b16 {v(100+4*k,2)}, v10 offset:{128*k}"); e(f"ds_read_b64_tr_b16 {v(102+4*k,2)}, v10 offset:{128*k + 4096}")
    e(f"s_mul_i32 {s(sT)}, s2, {X0P}"); e(f"s_lshl_b32 {s(sT+1)}, {s(sWAVE)}, 11"); e(f"s_add_u32 {s(sT)}, {s(sT)}, {s(sT+1)}")
    e(f"s_add_u32 {s(sT)}, {s(sT)}, {X0T}")
    e("v_lshlrev_b32 v11, 4, v1")
    e("s_waitcnt lgkmcnt(0)")
    e(f"buffer_store_dwordx4 v[100:103], v11, {s(sSRD,4)}, {s(sT)} offen sc1")
    e(f"buffer_store_dwordx4 v[104:107], v11, {s(sSRD,4)}, {s(sT)} offen offset:1024 sc1")

def p0_stats():
    F = 64
    for i in range(8):
        e(f"v_lshlrev_b32 {v(F+2*i)}, 16, {v(XR+i)}"); e(f"v_and_b32 {v(F+2*i+1)}, {s(sHI)}, {v(XR+i)}")
    for i in range(4): e(f"v_pk_add_f32 {v(80+2*i,2)}, {v(F+4*i,2)}, {v(F+4*i+2,2)}")
    e(f"v_pk_mul_f32 v[88:89], {v(F,2)}, {v(F,2)}"); e(f"v_pk_mul_f32 v[90:91], {v(F+2,2)}, {v(F+2,2)}")
    e(f"v_pk_add_f32 v[80:81], v[80:81], v[82:83]"); e(f"v_pk_add_f32 v[84:85], v[84:85], v[86:87]")
    for i in range(2, 8): e(f"v_pk_fma_f32 {v(88+2*(i&1),2)}, {v(F+2*i,2)}, {v(F+2*i,2)}, {v(88+2*(i&1),2)}")
    e(f"v_pk_add_f32 v[80:81], v[80:81], v[84:85]"); e("v_pk_add_f32 v[88:89], v[88:89], v[90:91]")
    e("v_add_f32 v80, v80, v81"); e("v_add_f32 v82, v88, v89")
    for r_ in (8, 4, 2, 1):
        e(f"v_add_f32_dpp v80, v80, v80 row_ror:{r_} row_mask:0xf bank_mask:0xf")
        e(f"v_add_f32_dpp v82, v82, v82 row_ror:{r_} row_mask:0xf bank_mask:0xf")
    e("v_add_f32_dpp v80, v80, v80 row_bcast:15 row_mask:0xa bank_mask:0xf")
    e("v_add_f32_dpp v82, v82, v82 row_bcast:15 row_mask:0xa bank_mask:0xf")
    stats_final(80, 82, 56, 57, 86, rcp=False)
    e("v_lshrrev_b32 v56, 16, v56"); e(f"v_and_or_b32 v56, v57, {s(sHI)}, v56")

def p0_stats_store():
    e(f"v_mov_b32 v57, {s(sNON)}")
    e(f"s_lshl_b32 {s(sT)}, s2, 4"); e(f"s_lshl_b32 {s(sT+1)}, {s(sWAVE)}, 12"); e(f"s_add_u32 {s(sT)}, {s(sT)}, {s(sT+1)}")
    e(f"s_add_u32 {s(sT)}, {s(sT)}, {S1}")
    e("v_lshrrev_b32 v10, 5, v1"); e(f"v_lshl_add_u32 v10, v10, 3, {s(sT)}")
    e(f"s_mov_b32 {s(sT+2)}, 0x00010000"); e(f"s_mov_b32 {s(sT+3)}, 0x00010000")
    e(f"s_mov_b64 exec, {s(sT+2,2)}")
    e(f"buffer_store_dwordx2 v[56:57], v10, {s(sSRD,4)}, 0 offen sc1")
    e("s_mov_b64 exec, -1")

def p0_wfrag():
    lo = lab("wo2"); lj = lab("wj2")
    e("s_cmp_ge_u32 s2, 192"); e(f"s_cbranch_scc1 {lo}")
    e("v_lshrrev_b32 v10, 2, v1"); e("v_lshlrev_b32 v10, 8, v10")
    e("v_and_b32 v11, 3, v1"); e("v_lshl_add_u32 v10, v11, 3, v10")
    e(f"s_lshl_b32 {s(sT)}, {s(sWAVE)}, 6"); e(f"s_add_u32 {s(sT)}, {s(sT)}, {WST}")
    e(f"v_add_u32 v10, {s(sT)}, v10")
    e("ds_read_b64_tr_b16 v[88:89], v10"); e("ds_read_b64_tr_b16 v[90:91], v10 offset:4096")
    e("ds_read_b64_tr_b16 v[92:93], v10 offset:32"); e("ds_read_b64_tr_b16 v[94:95], v10 offset:4128")
    e(f"s_lshr_b32 {s(sT)}, s7, 2")
    e(f"s_add_u32 {s(sT)}, {s(sT)}, 2"); e(f"s_cmp_ge_u32 {s(sT)}, 3")
    e(f"s_cselect_b32 {s(sT+1)}, 3, 0"); e(f"s_sub_u32 {s(sT)}, {s(sT)}, {s(sT+1)}")
    e(f"s_and_b32 {s(sT+1)}, s7, 3"); e(f"s_lshl_b32 {s(sT+1)}, {s(sT+1)}, 3")
    e(f"s_lshl_b32 {s(sT+2)}, {s(sWAVE)}, 1"); e(f"s_add_u32 {s(sT+1)}, {s(sT+1)}, {s(sT+2)}")
    e(f"s_mul_i32 {s(sT+1)}, {s(sT+1)}, 3"); e(f"s_add_u32 {s(sT+1)}, {s(sT+1)}, {s(sT)}")
    e(f"s_lshl_b32 {s(sT+1)}, {s(sT+1)}, 4"); e(f"s_add_u32 {s(sT+1)}, {s(sT+1)}, s6")
    e(f"s_lshl_b32 {s(sT+1)}, {s(sT+1)}, 10"); e(f"s_add_u32 {s(sT+1)}, {s(sT+1)}, {WFG}")
    e(f"s_add_u32 {s(sT+2)}, {s(sT+1)}, 49152")
    e(f"s_branch {lj}")
    A.label(lo)
    e("v_lshrrev_b32 v10, 5, v1"); e("v_lshlrev_b32 v10, 2, v10")
    e("v_bfe_u32 v11, v1, 2, 2"); e("v_add_u32 v10, v10, v11"); e("v_lshlrev_b32 v10, 9, v10")
    e("v_and_b32 v11, 1, v1"); e("v_lshl_add_u32 v10, v11, 5, v10")
    e("v_bfe_u32 v11, v1, 4, 1"); e("v_lshl_add_u32 v10, v11, 4, v10")
    e("v_bfe_u32 v11, v1, 1, 1"); e("v_lshl_add_u32 v10, v11, 3, v10")
    e(f"s_lshl_b32 {s(sT)}, {s(sWAVE)}, 7"); e(f"s_add_u32 {s(sT)}, {s(sT)}, {WST}")
    e(f"v_add_u32 v10, {s(sT)}, v10")
    e("ds_read_b64_tr_b16 v[88:89], v10"); e("ds_read_b64_tr_b16 v[90:91], v10 offset:4096")
    e("ds_read_b64_tr_b16 v[92:93], v10 offset:64"); e("ds_read_b64_tr_b16 v[94:95], v10 offset:4160")
    e(f"s_lshl_b32 {s(sT+1)}, s7, 3"); e(f"s_lshl_b32 {s(sT+2)}, {s(sWAVE)}, 1"); e(f"s_add_u32 {s(sT+1)}, {s(sT+1)}, {s(sT+2)}")
    e(f"s_lshl_b32 {s(sT+1)}, {s(sT+1)}, 5"); e(f"s_add_u32 {s(sT+1)}, {s(sT+1)}, s6")
    e(f"s_lshl_b32 {s(sT+1)}, {s(sT+1)}, 10"); e(f"s_add_u32 {s(sT+1)}, {s(sT+1)}, {WFO}")
    e(f"s_add_u32 {s(sT+2)}, {s(sT+1)}, 32768")
    A.label(lj)
    e("v_lshlrev_b32 v10, 4, v1")
    e("s_waitcnt lgkmcnt(0)")
    e(f"buffer_store_dwordx4 v[88:91], v10, {s(sSRD,4)}, {s(sT+1)} offen sc1")
    e(f"buffer_store_dwordx4 v[92:95], v10, {s(sSRD,4)}, {s(sT+2)} offen sc1")

def pw_multi(items, a2, b2):
    for (d, t, tm) in items:
        if t == 1:
            e(f"v_mov_b32 {v(tm)}, {v(a2)}"); e(f"v_fract_f32 {v(tm+1)}, {v(b2)}")
        else:
            c = f"{float(t)}" if t in (2, 4) else f"{f2u(float(t)):#x}"
            e(f"v_mul_f32 {v(tm)}, {c}, {v(a2)}"); e(f"v_mul_f32 {v(tm+1)}, {c}, {v(b2)}")
    for (d, t, tm) in items:
        e(f"v_exp_f32 {v(tm)}, {v(tm)}")
        if t != 1: e(f"v_fract_f32 {v(tm+1)}, {v(tm+1)}")
    for (d, t, tm) in items:
        e(f"v_cos_f32 {v(d)}, {v(tm+1)}"); e(f"v_sin_f32 {v(d+1)}, {v(tm+1)}")
    for (d, t, tm) in items:
        e(f"v_pk_mul_f32 {v(d,2)}, {v(d,2)}, {v(tm,2)} op_sel_hi:[1,0]")

W1, W4, W16, W64, W512 = 100, 102, 104, 106, 108
CH = {"X1": 112, "X2": 128, "Y1": 144, "Y2": 160}
def kgen_setup():
    for i in range(6): e(f"v_lshlrev_b32 {v(PRM+i)}, 16, {v(PRM+i)}")
    e(f"v_readfirstlane_b32 {s(sDSKV)}, {v(PRM+5)}")
    dt, are = 60, 61
    e(f"v_mul_f32 {v(dt)}, {s(sLOG2E)}, {v(PRM+4)}"); e(f"v_mul_f32 {v(are)}, {s(sLOG2E)}, {v(PRM)}")
    e(f"v_exp_f32 {v(dt)}, {v(dt)}"); e(f"v_exp_f32 {v(are)}, {v(are)}")
    e(f"v_cvt_pk_bf16_f32 {v(dt)}, {v(dt)}, {v(are)}")
    e(f"v_and_b32 {v(are)}, {s(sHI)}, {v(dt)}"); e(f"v_lshlrev_b32 {v(dt)}, 16, {v(dt)}")
    a2, b2 = 62, 63
    e(f"v_mul_f32 {v(a2)}, -{v(are)}, {v(dt)}"); e(f"v_mul_f32 {v(b2)}, {v(PRM+1)}, {v(dt)}")
    e(f"v_mul_f32 {v(a2)}, {s(sLOG2E)}, {v(a2)}"); e(f"v_mul_f32 {v(b2)}, 0.15915494, {v(b2)}")
    pw_multi([(W1, 1, 64), (W4, 4, 66), (W16, 16, 68), (W64, 64, 70), (W512, 512, 72)], a2, b2)
    e(f"v_add_f32 {v(dt)}, {v(dt)}, {v(dt)}")
    e(f"v_mul_f32 {v(CH['X1'])}, {v(PRM+2)}, {v(dt)}"); e(f"v_mul_f32 {v(CH['X1']+1)}, {v(PRM+3)}, {v(dt)}")
    for l in cmul(CH['X2'], CH['X1'], W512, 64): e(l)
    e(f"v_mov_b32 {v(CH['Y1'])}, 1.0"); e(f"v_mov_b32 {v(CH['Y1']+1)}, 0"); e(f"v_mov_b32 {v(CH['Y2'])}, 1.0"); e(f"v_mov_b32 {v(CH['Y2']+1)}, 0")
    e(f"v_lshrrev_b32 v96, 7, v0"); e(f"v_mul_u32_u24 v96, {TABC}, v96")
    e(f"v_and_b32 v97, 127, v0"); e(f"v_mul_u32_u24 v97, {TKP}, v97"); e("v_add_u32 v96, v96, v97")

def kgen_round(chains, rnd, side=None):
    Wof = {"X1": W16, "X2": W64, "Y1": W1, "Y2": W4}
    mbase = {"X1": 0, "X2": 32, "Y1": 64, "Y2": 80}
    tmp = {"X1": 64, "X2": 66, "Y1": 68, "Y2": 70}
    nval = {c: 8 for c in chains}
    if rnd == 3 and "X2" in chains: nval["X2"] = 1
    for i in range(1, 8):
        ls = [cmul(CH[c] + 2*i, CH[c] + 2*(i-1), Wof[c], tmp[c]) for c in chains if i < nval[c]]
        for k in range(2):
            for l in ls: e(l[k])
        if side and i in (1, 3, 5, 7) and len(side): e(side.pop(0))
    P = {c: 72 + 8*k for k, c in enumerate(chains)}
    for c in chains:
        neg = "-" if c[0] == "X" else ""
        for k in range(4):
            i0, i1 = (2*k, 2*k+1) if nval[c] == 8 else (0, 0)
            e(f"v_cvt_pk_bf16_f32 {v(P[c]+k)}, {v(CH[c]+2*i0)}, {v(CH[c]+2*i1)}")
            e(f"v_cvt_pk_bf16_f32 {v(P[c]+4+k)}, {neg}{v(CH[c]+2*i0+1)}, {neg}{v(CH[c]+2*i1+1)}")
        off = (mbase[c] + 8*rnd) * 2
        e(f"ds_write_b128 v96, {v(P[c],4)} offset:{off}")
        e(f"ds_write_b128 v96, {v(P[c]+4,4)} offset:{off + 128*TKP}")
    ls = [cmul(CH[c], CH[c] + 14, Wof[c], tmp[c]) for c in chains if nval[c] == 8 and not ((c[0] == "Y" and rnd == 1) or rnd == 3)]
    for k in range(2):
        for l in ls: e(l[k])

def kgen_mm(gl, fs):
    s1_issue()
    e("s_waitcnt lgkmcnt(0)"); e("s_barrier")
    e(f"s_lshr_b32 {s(sT)}, {s(sWAVE)}, 1"); e(f"s_and_b32 {s(sT+1)}, {s(sWAVE)}, 1")
    e(f"s_mul_i32 {s(sT+2)}, {s(sT)}, {TABC}")
    e(f"s_lshl_b32 {s(sT+3)}, {s(sT+1)}, 5"); e(f"s_add_u32 {s(sT+3)}, {s(sT+3)}, 128"); e(f"s_add_u32 {s(sT+3)}, {s(sT+3)}, {s(sT+2)}")
    e(f"s_lshl_b32 {s(sT+4)}, {s(sT+1)}, 6"); e(f"s_add_u32 {s(sT+4)}, {s(sT+4)}, {s(sT+2)}")
    e("v_lshrrev_b32 v10, 2, v1"); e(f"v_mul_u32_u24 v10, {TKP}, v10"); e("v_and_b32 v11, 3, v1"); e("v_lshl_add_u32 v10, v11, 3, v10")
    e(f"v_add_u32 v11, {s(sT+3)}, v10"); e(f"v_add_u32 v12, {s(sT+4)}, v10")
    YF, XF = 64, 96
    for ks in range(8):
        o = ks * 32 * TKP
        e(f"ds_read_b64_tr_b16 {v(YF+4*ks,2)}, v11 offset:{o}"); e(f"ds_read_b64_tr_b16 {v(YF+4*ks+2,2)}, v11 offset:{o + 16*TKP}")
        for tl in range(2):
            e(f"ds_read_b64_tr_b16 {v(XF+32*tl+4*ks,2)}, v12 offset:{o + 32*tl}"); e(f"ds_read_b64_tr_b16 {v(XF+32*tl+4*ks+2,2)}, v12 offset:{o + 16*TKP + 32*tl}")
    e("v_lshrrev_b32 v13, 7, v0")
    e(f"v_mul_u32_u24 v14, {CTP}, v13"); e(f"v_add_u32 v14, {CT}, v14")
    e(f"v_mul_u32_u24 v15, {KCH}, v13"); e("v_and_b32 v13, 127, v0"); e("v_lshl_add_u32 v15, v13, 4, v15")
    fs()
    for ks in range(8):
        e(f"s_waitcnt lgkmcnt({min(15, 6*(7-ks))})")
        for tl in range(2):
            c_ = "0" if ks == 0 else v(160 + 4*tl, 4)
            e(f"v_mfma_f32_16x16x32_bf16 {v(160+4*tl,4)}, {v(YF+4*ks,4)}, {v(XF+32*tl+4*ks,4)}, {c_}")
    e(f"s_mul_i32 {s(sT+2)}, {s(sT)}, {CTP}"); e(f"s_lshl_b32 {s(sT+3)}, {s(sT+1)}, 10"); e(f"s_add_u32 {s(sT+2)}, {s(sT+2)}, {s(sT+3)}")
    e(f"s_add_u32 {s(sT+2)}, {s(sT+2)}, {CT}")
    e("v_and_b32 v10, 15, v1"); e("v_lshlrev_b32 v10, 5, v10"); e("v_lshrrev_b32 v11, 4, v1"); e("v_lshl_add_u32 v10, v11, 3, v10")
    e(f"v_add_u32 v10, {s(sT+2)}, v10")
    e(f"s_mul_i32 {s(sT+2)}, {s(sT)}, {CTP}"); e(f"s_add_u32 {s(sT+2)}, {s(sT+2)}, {CT + 2048}")
    e(f"v_mov_b32 v11, {s(sT+2)}"); e("v_mov_b32 v12, 0")
    e("ds_write_b32 v11, v12")
    fs()
    G = [96, 112]
    for task in range(2):
        I = IDX + 8 * task
        for k in range(6):
            e(f"v_add_u32_sdwa {v(G[task]+2*k)}, v14, {v(I+k)} dst_sel:DWORD dst_unused:UNUSED_PAD src0_sel:DWORD src1_sel:WORD_0")
            e(f"v_add_u32_sdwa {v(G[task]+2*k+1)}, v14, {v(I+k)} dst_sel:DWORD dst_unused:UNUSED_PAD src0_sel:DWORD src1_sel:WORD_1")
    for tl in range(2):
        e(f"v_cvt_pk_bf16_f32 {v(168+2*tl)}, {v(160+4*tl)}, {v(161+4*tl)}")
        e(f"v_cvt_pk_bf16_f32 {v(169+2*tl)}, {v(162+4*tl)}, {v(163+4*tl)}")
        e(f"ds_write_b64 v10, {v(168+2*tl,2)} offset:{512*tl}")
    e("s_waitcnt lgkmcnt(0)"); e("s_barrier")
    stamp("k_mm")
    s1_validate(1)
    x0t_issue()
    for task in range(2):
        for k in range(12): e(f"ds_read_u16 {v(G[task]+k)}, {v(G[task]+k)}")
    for task in range(2):
        Dd, Dp, Sd, Sp = [(64, 72, 80, 88), (128, 136, 144, 152)][task]
        e(f"s_waitcnt lgkmcnt({12 if task == 0 else 4})")
        for k in range(6): e(f"v_lshl_or_b32 {v(Dd+k)}, {v(G[task]+2*k+1)}, 16, {v(G[task]+2*k)}")
        for k in range(4): e(f"v_mov_b32 {v(Dp+k)}, {v(Dd+k+1)}")
        for k in range(4): e(f"v_alignbit_b32 {v(Sd+k)}, {v(Dd+k+1)}, {v(Dd+k)}, 16")
        for k in range(4): e(f"v_alignbit_b32 {v(Sp+k)}, {v(Dd+k+2)}, {v(Dd+k+1)}, 16")
        for cp_, src in enumerate((Dd, Sd, Dp, Sp)):
            e(f"ds_write_b128 v15, {v(src,4)} offset:{cp_*KCC + task*2048}")
    l0 = lab("zk")
    e(f"s_cmp_lg_u32 {s(sWAVE)}, 0"); e(f"s_cbranch_scc1 {l0}")
    e("v_lshrrev_b32 v10, 2, v1"); e(f"v_mul_u32_u24 v10, {KCC}, v10")
    e("v_and_b32 v11, 3, v1"); e("v_lshl_add_u32 v10, v11, 4, v10"); e("v_add_u32 v10, 4096, v10")
    e("v_mov_b32 v160, 0"); e("v_mov_b32 v161, 0"); e("v_mov_b32 v162, 0"); e("v_mov_b32 v163, 0")
    e(f"s_mov_b32 {s(sT+2)}, -1"); e(f"s_mov_b32 {s(sT+3)}, 0"); e(f"s_mov_b64 exec, {s(sT+2,2)}")
    e("ds_write_b128 v10, v[160:163]")
    e("s_mov_b64 exec, -1")
    A.label(l0)

def s1_issue():
    e("v_lshlrev_b32 v63, 4, v0")
    for i in range(4):
        e(f"s_movk_i32 {s(sT)}, {S1 + 4096*i}")
        e(f"buffer_load_dwordx4 {v(24+4*i,4)}, v63, {s(sSRD,4)}, {s(sT)} offen sc1")
def s1_validate(vm=0):
    lr = lab("s1r"); lg = lab("s1k"); l0 = lab("s1c")
    e(f"s_waitcnt vmcnt({vm})")
    e(f"s_branch {l0}")
    A.label(lr)
    s1_issue()
    e("s_waitcnt vmcnt(0)")
    A.label(l0)
    for i in range(8): e(f"v_xor_b32 {v(160+i)}, {s(sNON)}, {v(24+2*i+1)}")
    e("v_or3_b32 v160, v160, v161, v162"); e("v_or3_b32 v163, v163, v164, v165"); e("v_or3_b32 v160, v160, v166, v167"); e("v_or_b32 v160, v160, v163")
    e("v_cmp_ne_u32 vcc, 0, v160")
    spin_check(lr, lg, bk=1)
def x0t_issue():
    e(f"v_mul_u32_u24 v10, {X0P}, v0"); e(f"s_lshl_b32 {s(sT)}, {s(sCP)}, 5"); e(f"s_add_u32 {s(sT)}, {s(sT)}, {X0T}")
    e(f"buffer_load_dwordx4 v[40:43], v10, {s(sSRD,4)}, {s(sT)} offen sc1")
    e(f"buffer_load_dwordx4 v[44:47], v10, {s(sSRD,4)}, {s(sT)} offen offset:16 sc1")
def b1_issue():
    e("v_and_b32 v20, 15, v0"); e("v_lshlrev_b32 v20, 4, v20")
    e(f"global_load_dword v21, v20, {s(sDBG,2)} sc1")
def b1_check():
    lr = lab("b1r"); lg = lab("b1k"); l0 = lab("b1c")
    e("s_waitcnt vmcnt(0)")
    e(f"s_branch {l0}")
    A.label(lr)
    e(f"global_load_dword v21, v20, {s(sDBG,2)} sc1")
    e("s_waitcnt vmcnt(0)")
    A.label(l0)
    e("v_cmp_gt_u32 vcc, 16, v21")
    spin_check(lr, lg, bk=1)

def gw_loads():
    out = []
    for f in range(48):
        out.append([f"buffer_load_dwordx4 {a(4*f,4)}, v18, {s(sSRD,4)}, {s(sW)} offen offset:{(f%4)*1024} sc1"] + ([f"s_add_u32 {s(sW)}, {s(sW)}, 4096"] if f % 4 == 3 else []))
    return out
def ow_loads():
    out = []
    for f in range(32):
        dst = a(192 + 4*f, 4) if f < 16 else v(192 + 4*(f-16), 4)
        out.append([f"buffer_load_dwordx4 {dst}, v18, {s(sSRD,4)}, {s(sW)} offen offset:{(f%4)*1024} sc1"] + ([f"s_add_u32 {s(sW)}, {s(sW)}, 4096"] if f % 4 == 3 else []))
    return out

vA, vB, vEP, vEU, vEX, vRW, vRR = 164, 165, 166, 167, 168, 169, 170
def conv_setup(layer):
    e(f"s_lshr_b32 s4, {s(sWAVE)}, 1"); e(f"s_and_b32 s5, {s(sWAVE)}, 1")
    e("v_and_b32 v10, 3, v1"); e("v_sub_u32 v10, 3, v10"); e(f"v_mul_u32_u24 v12, {KCC}, v10")
    e("v_bfe_u32 v10, v1, 5, 1"); e("v_lshlrev_b32 v13, 5, v10"); e("v_sub_u32 v12, v12, v13")
    e("v_bfe_u32 v11, v1, 4, 1"); e("v_lshl_add_u32 v12, v11, 4, v12")
    e("v_bfe_u32 v10, v1, 2, 2"); e("v_lshlrev_b32 v10, 3, v10"); e("v_sub_u32 v12, v12, v10")
    e(f"s_mul_i32 {s(sT+2)}, s4, {KCH}"); e(f"s_lshl_b32 {s(sT+3)}, s5, 8"); e(f"s_sub_u32 {s(sT+2)}, {s(sT+2)}, {s(sT+3)}")
    e(f"s_add_u32 {s(sT+2)}, {s(sT+2)}, {KC + 4088 - 3776}")
    e("v_and_b32 v10, 15, v1"); e("v_lshlrev_b32 v14, 5, v10"); e("v_sub_u32 v14, v14, v13"); e("v_lshl_add_u32 v14, v11, 4, v14")
    e(f"s_mul_i32 {s(sT+4)}, s4, {UP}"); e(f"s_sub_u32 {s(sT+4)}, {s(sT+4)}, {s(sT+3)}")
    e(f"s_add_u32 {s(sT+4)}, {s(sT+4)}, {U0 + 512 - 192}")
    e(f"v_add_u32 v16, {s(sT+2)}, v12"); e(f"v_add_u32 v17, {s(sT+4)}, v14")
    e("v_and_b32 v56, 15, v1"); e("v_lshlrev_b32 v56, 5, v56"); e("v_lshrrev_b32 v13, 4, v1"); e("v_lshl_add_u32 v56, v13, 3, v56")
    e(f"s_lshl_b32 {s(sT+2)}, s5, 11"); e(f"v_add_u32 v56, {s(sT+2)}, v56")
    e(f"s_mul_i32 {s(sT+3)}, s4, {UP}"); e(f"s_add_u32 {s(sT+3)}, {s(sT+3)}, {U0+512}"); e(f"v_add_u32 v57, {s(sT+3)}, v56")
    e(f"s_lshl_b32 {s(sT+3)}, s4, 12"); e(f"s_add_u32 {s(sT+3)}, {s(sT+3)}, {X0}"); e(f"v_add_u32 v58, {s(sT+3)}, v56")
    e(f"s_lshl_b32 {s(sT+2)}, {s(sWAVE)}, 12"); e(f"s_add_u32 {s(sT+2)}, {s(sT+2)}, {RED}"); e(f"v_lshl_add_u32 v59, v1, 4, {s(sT+2)}")
    e(f"s_xor_b32 {s(sT+2)}, {s(sWAVE)}, 1"); e(f"s_lshl_b32 {s(sT+2)}, {s(sT+2)}, 12"); e(f"s_add_u32 {s(sT+2)}, {s(sT+2)}, {RED}")
    e(f"v_lshl_add_u32 v60, v1, 4, {s(sT+2)}")
    xo = XT1 if layer == 1 else XT3
    e(f"s_lshl_b32 s6, {s(sCP)}, 1"); e("s_add_u32 s6, s6, s4"); e(f"s_mul_i32 s6, s6, {PITCH}"); e(f"s_add_u32 s6, s6, {xo}")
    e("v_lshlrev_b32 v10, 4, v0"); e(f"v_add_u32 v61, {U0 + 512}, v10"); e(f"v_add_u32 v62, {X0}, v10")
    e("v_lshlrev_b32 v63, 4, v0")
    l0 = lab("zp")
    e(f"s_cmp_lg_u32 {s(sWAVE)}, 1"); e(f"s_cbranch_scc1 {l0}")
    e("v_lshrrev_b32 v11, 5, v1"); e(f"v_mul_u32_u24 v11, {UP}, v11"); e("v_and_b32 v12, 31, v1"); e("v_lshl_add_u32 v11, v12, 4, v11")
    e(f"v_add_u32 v11, {U0}, v11")
    e("v_mov_b32 v12, 0"); e("v_mov_b32 v13, 0"); e("v_mov_b32 v14, 0"); e("v_mov_b32 v15, 0")
    e("ds_write_b128 v11, v[12:15]")
    A.label(l0)
    XX = 40; F = 64
    if layer == 1:
        e("v_lshlrev_b32 v18, 4, v1")
        e(f"s_lshl_b32 {s(sW)}, {s(sJ)}, 2"); e(f"s_add_u32 {s(sW)}, {s(sW)}, {s(sWAVE)}")
        e(f"s_mul_i32 {s(sW)}, {s(sW)}, 49152"); e(f"s_add_u32 {s(sW)}, {s(sW)}, {WFG}")
    else:
        e(f"s_lshl_b32 s7, {s(sCP)}, 7"); e(f"s_add_u32 s7, s7, {X2T}")
        e("v_lshrrev_b32 v19, 2, v0"); e(f"v_mul_u32_u24 v19, {ROP}, v19"); e("v_and_b32 v10, 3, v0"); e("v_lshl_add_u32 v19, v10, 4, v19")

def conv(layer):
    XX = 40; SB = 24; F = 64; UU = 48
    if layer == 2:
        if int(OPTS.get("cpre", 4)): e(f"s_sleep {OPTS.get('cpre', 4)}")
        e(f"s_add_u32 {s(sT)}, s7, {U2T - X2T}")
        lr = lab("cu"); lg = lab("cuk")
        A.label(lr)
        e(f"buffer_load_dwordx4 {v(UU,4)}, v19, {s(sSRD,4)}, {s(sT)} offen sc1")
        e(f"buffer_load_dwordx4 {v(UU+4,4)}, v19, {s(sSRD,4)}, {s(sT)} offen offset:64 sc1")
        e("s_waitcnt vmcnt(0)")
        e(f"v_max_u32 v10, {v(UU)}, {v(UU+4)}")
        e("v_cmp_eq_u32 vcc, -1, v10")
        spin_check(lr, lg, bk=2, cid=1)
        for c in range(2): e(f"ds_write_b128 v61, {v(UU+4*c,4)} offset:{UP*c}")
        for c in range(2):
            e(f"s_lshl_b32 {s(sT+2)}, {s(sWAVE)}, 10"); e(f"s_add_u32 m0, {s(sT+2)}, {X0 + 4096*c}")
            e(f"s_add_u32 {s(sT+3)}, s7, {64*c}")
            e(f"buffer_load_dwordx4 v19, {s(sSRD,4)}, {s(sT+3)} offen sc1 lds")
    else:
        b1_issue()
        for i in range(8):
            e(f"v_and_b32 {v(SB+2*i+1)}, {s(sHI)}, {v(SB+2*i)}"); e(f"v_lshlrev_b32 {v(SB+2*i)}, 16, {v(SB+2*i)}")
        for i in range(8): e(f"v_rcp_f32 {v(SB+2*i+1)}, {v(SB+2*i+1)}")
        e("s_waitcnt vmcnt(1)")
        for i in range(8):
            j, hi = i >> 1, i & 1
            for c in range(2):
                if hi: e(f"v_and_b32 {v(F+2*i+c)}, {s(sHI)}, {v(XX+4*c+j)}")
                else: e(f"v_lshlrev_b32 {v(F+2*i+c)}, 16, {v(XX+4*c+j)}")
        e(f"ds_write_b128 v62, {v(XX,4)}"); e(f"ds_write_b128 v62, {v(XX+4,4)} offset:4096")
    stamp(f"c{layer}_ld")
    if layer == 1:
        for i in range(8):
            e(f"v_pk_add_f32 {v(F+2*i,2)}, {v(F+2*i,2)}, {v(SB+2*i,2)} op_sel_hi:[1,0] neg_lo:[0,1] neg_hi:[0,1]")
        for i in range(8): e(f"v_cvt_pk_bf16_f32 {v(80+i)}, {v(F+2*i)}, {v(F+2*i+1)}")
        for i in range(8):
            e(f"v_lshlrev_b32 {v(F+2*i)}, 16, {v(80+i)}"); e(f"v_and_b32 {v(F+2*i+1)}, {s(sHI)}, {v(80+i)}")
        for i in range(8):
            e(f"v_pk_mul_f32 {v(F+2*i,2)}, {v(F+2*i,2)}, {v(SB+2*i,2)} op_sel:[0,1] op_sel_hi:[1,1]")
        for c in range(2):
            for j in range(4): e(f"v_cvt_pk_bf16_f32 {v(UU+4*c+j)}, {v(F+4*j+c)}, {v(F+4*j+2+c)}")
            e(f"ds_write_b128 v61, {v(UU+4*c,4)} offset:{UP*c}")
    trick = gw_loads() if layer == 1 else []
    e("s_waitcnt lgkmcnt(0)"); e("s_barrier")
    if layer == 1: b1_check()
    stamp(f"c{layer}_pro")
    vA, vB = 16, 17
    ACC = 24; SET = [64, 128]
    def loads(tp, st):
        out = []
        seq = []
        for k in range(8):
            seq.append(f"ds_read_b128 {v(SET[st]+32+4*k,4)}, {v(vB)} offset:{512*k + 64*(3 - tp)}")
            o = 64*(3 - tp) + 512*(7 - k)
            seq.append(f"ds_read_b64 {v(SET[st]+4*k,2)}, {v(vA)} offset:{o}")
            seq.append(f"ds_read_b64 {v(SET[st]+4*k+2,2)}, {v(vA)} offset:{o + 8}")
        return seq
    for l in loads(0, 0): e(l)
    ti = 0; nm = 0
    TRK = int(OPTS.get("trk", 3))
    e(f"s_mov_b32 {s(sT+4)}, {s(sDSKV)}"); e(f"s_mov_b32 {s(sT+5)}, {s(sDSKV)}")
    side = []
    for k in range(4):
        side.append(f"ds_read_b64 {v(64+2*k,2)}, v57 offset:{512*k}"); side.append(f"ds_read_b64 {v(72+2*k,2)}, v58 offset:{512*k}")
    side2 = ["s_waitcnt lgkmcnt(0)"]
    for k in range(4):
        for j in range(2):
            side2 += [f"v_lshlrev_b32 {v(96+4*k+2*j)}, 16, {v(64+2*k+j)}", f"v_and_b32 {v(97+4*k+2*j)}, {s(sHI)}, {v(64+2*k+j)}",
                      f"v_lshlrev_b32 {v(112+4*k+2*j)}, 16, {v(72+2*k+j)}", f"v_and_b32 {v(113+4*k+2*j)}, {s(sHI)}, {v(72+2*k+j)}"]
    for k in range(8): side2.append(f"v_pk_fma_f32 {v(96+2*k,2)}, {v(96+2*k,2)}, {s(sT+4,2)}, {v(112+2*k,2)}")
    fills = fill_groups(2, 61, 62) if layer == 2 else []
    hold = [0]; nfs = [0]
    for tp in range(4):
        st = tp & 1
        nxt = loads(tp + 1, st ^ 1) if tp < 3 else []
        n = 0; nb = 0
        for T in range(8):
            if tp == 0: e(f"s_waitcnt lgkmcnt({min(15, 24 - (3*T+3) + min(n, len(nxt)))})")
            elif T == 0:
                e("s_waitcnt lgkmcnt(0)")
                if layer == 2 and tp == 2:
                    e(f"s_waitcnt vmcnt({min(63, nfs[0])})"); e("s_barrier")
            for q in range(T + 1):
                c_ = "0" if (tp == 0 and q == 0) else v(ACC+4*T, 4)
                e(f"v_mfma_f32_16x16x32_bf16 {v(ACC+4*T,4)}, {v(SET[st]+4*q,4)}, {v(SET[st]+32+4*(T-q),4)}, {c_}")
                nm += 1; nb += 1
                if not (tp == 0 and T < 3) and n < len(nxt):
                    e(nxt[n]); n += 1
                if tp == 3:
                    if nb <= 8: e(side.pop(0))
                    elif nb > 12:
                        for _ in range(2):
                            if side2: e(side2.pop(0))
                if ti < len(trick) and nm % TRK == 0:
                    for l in trick[ti]: e(l)
                    ti += 1
                elif fills and tp < 3 and (nb > 2 or tp > 0):
                    if hold[0] > 0: hold[0] -= 1
                    else:
                        g = fills.pop(0); emit_group(g)
                        if any("buffer_store" in l for l in g): hold[0] = int(OPTS.get('fh', 5))
                        nfs[0] += 0
        while n < len(nxt): e(nxt[n]); n += 1
    assert not fills
    while side2: e(side2.pop(0))
    stamp(f"c{layer}_mm")
    lp1 = lab("p1"); lj = lab("pj")
    e("s_cmp_eq_u32 s5, 1"); e(f"s_cbranch_scc1 {lp1}")
    e("s_nop 3")
    for k in range(4): e(f"ds_write_b128 v59, {v(ACC+16+4*k,4)} offset:{1024*k}")
    e(f"s_branch {lj}")
    A.label(lp1)
    for k in range(4): e(f"ds_write_b128 v59, {v(ACC+4*k,4)} offset:{1024*k}")
    e("s_nop 3")
    for k in range(8): e(f"v_mov_b64 {v(ACC+2*k,2)}, {v(ACC+16+2*k,2)}")
    A.label(lj)
    for k in range(8):
        e(f"v_pk_add_f32 {v(96+2*k,2)}, {v(96+2*k,2)}, {v(ACC+2*k,2)}")
    e("s_waitcnt lgkmcnt(0)"); e("s_barrier")
    for k in range(4): e(f"ds_read_b128 {v(80+4*k,4)}, v60 offset:{1024*k}")
    e(f"s_waitcnt vmcnt({min(63, ti) if layer == 1 else 0})")
    for k in range(4):
        e(f"s_waitcnt lgkmcnt({3-k})")
        e(f"v_pk_add_f32 {v(96+4*k,2)}, {v(96+4*k,2)}, {v(80+4*k,2)}"); e(f"v_pk_add_f32 {v(98+4*k,2)}, {v(98+4*k,2)}, {v(82+4*k,2)}")
        e(f"v_cvt_pk_bf16_f32 {v(64+2*k)}, {v(96+4*k)}, {v(97+4*k)}"); e(f"v_cvt_pk_bf16_f32 {v(65+2*k)}, {v(98+4*k)}, {v(99+4*k)}")
        e(f"buffer_store_dwordx2 {v(64+2*k,2)}, v56, {s(sSRD,4)}, s6 offen offset:{512*k} sc1")
    return trick[ti:]

NCSK, NCSV, NCSQ = 2, 4, 6
XRES = 184
def ones_regs(r):
    for i in range(4): e(f"v_mov_b32 {v(r+i)}, 0x3f803f80")
def colsums():
    ON = 152
    for ks in range(16):
        c0 = lambda r: "0" if ks == 0 else v(r, 4)
        e(f"v_mfma_f32_16x16x32_bf16 v[28:31], {v(ON,4)}, {a((0*16+ks)*4,4)}, {c0(28)}")
        e(f"v_mfma_f32_16x16x32_bf16 v[32:35], {v(ON,4)}, {a((1*16+ks)*4,4)}, {c0(32)}")
        e(f"v_mfma_f32_16x16x32_bf16 v[36:39], {a((2*16+ks)*4,4)}, {v(ON,4)}, {c0(36)}")
    e(f"v_sub_f32 {v(NCSK)}, 0, v28"); e(f"v_sub_f32 {v(NCSK+1)}, 0, v28")
    e(f"v_sub_f32 {v(NCSV)}, 0, v32"); e(f"v_sub_f32 {v(NCSV+1)}, 0, v32")
    for i in range(4): e(f"v_sub_f32 {v(NCSQ+i)}, 0, {v(36+i)}")

TA = 12
gXE, gXO, gSW, gS4, gQA, gPQ, gKV = 156, 157, 158, 160, 164, 168, 169
def g_setup(layer):
    xt = XT1 if layer == 1 else XT3
    e("v_lshrrev_b32 v10, 3, v1"); e(f"v_mul_u32_u24 v10, {PITCH}, v10")
    e("v_bfe_u32 v11, v1, 4, 2"); e("v_lshlrev_b32 v11, 1, v11"); e("v_and_b32 v16, 7, v1"); e("v_xor_b32 v11, v11, v16")
    e("v_lshl_add_u32 v10, v11, 4, v10")
    e(f"s_lshl_b32 {s(sT)}, {s(sRS)}, 7"); e(f"v_add_u32 v19, {s(sT)}, v10")
    e(f"s_mul_i32 s4, {s(sWAVE)}, {32*PITCH}"); e(f"s_add_u32 s4, s4, {xt}")
    e(f"s_lshl_b32 s5, {s(sWAVE)}, 12"); e(f"s_add_u32 s5, s5, {AT}")
    e("v_lshrrev_b32 v10, 2, v1"); e("v_lshlrev_b32 v10, 7, v10"); e("v_and_b32 v11, 3, v1"); e("v_lshl_add_u32 v10, v11, 3, v10")
    e(f"v_add_u32 v10, {AT}, v10"); e("v_bfe_u32 v11, v1, 3, 2")
    for j in range(4):
        e(f"s_add_u32 {s(sT)}, {s(sWAVE)}, {j}"); e(f"s_and_b32 {s(sT)}, {s(sT)}, 3"); e(f"s_lshl_b32 {s(sM+j)}, {s(sT)}, 6")
        e(f"v_xor_b32 v16, {s(sT)}, v11"); e(f"v_lshl_add_u32 {v(TA+j)}, v16, 5, v10")
    ones_regs(152)
    e("v_lshrrev_b32 v11, 5, v1"); e("v_lshlrev_b32 v11, 4, v11"); e("v_bfe_u32 v16, v1, 2, 2"); e("v_add_u32 v11, v11, v16")
    e(f"s_lshl_b32 {s(sT)}, {s(sJO)}, 7"); e(f"s_lshl_b32 {s(sT+1)}, {s(sWAVE)}, 5"); e(f"s_add_u32 {s(sT)}, {s(sT)}, {s(sT+1)}")
    e(f"v_add_u32 v11, {s(sT)}, v11"); e("v_lshlrev_b32 v11, 7, v11")
    e("v_and_b32 v16, 3, v1"); e("v_lshl_add_u32 v11, v16, 3, v11"); e(f"v_add_u32 v11, {AT}, v11")
    e(f"s_and_b32 {s(sT)}, {s(sJ)}, 1"); e(f"s_lshl_b32 {s(sT)}, {s(sT)}, 1")
    e("v_bfe_u32 v16, v1, 4, 1"); e(f"v_add_u32 v16, {s(sT)}, v16"); e("v_bfe_u32 v17, v1, 3, 1"); e("v_xor_b32 v16, v16, v17")
    e(f"v_lshl_add_u32 {v(gXE)}, v16, 5, v11"); e("v_xor_b32 v16, 2, v16"); e(f"v_lshl_add_u32 {v(gXO)}, v16, 5, v11")
    e("v_and_b32 v10, 15, v1"); e("v_lshlrev_b32 v10, 2, v10"); e(f"v_add_u32 v11, {ST}, v10")
    e(f"s_lshl_b32 {s(sT)}, {s(sWAVE)}, 6"); e(f"v_add_u32 {v(gSW)}, {s(sT)}, v11")
    e("v_lshrrev_b32 v10, 4, v1"); e("v_lshlrev_b32 v10, 4, v10"); e(f"v_add_u32 v10, {ST}, v10")
    for j in range(4):
        e(f"v_add_u32 {v(gS4+j)}, {s(sM+j)}, v10"); e(f"v_add_u32 {v(gQA+j)}, {s(sM+j)}, v11")
    e("v_and_b32 v10, 15, v1"); e("v_lshlrev_b32 v10, 4, v10"); e("v_bfe_u32 v11, v1, 4, 1"); e("v_lshl_add_u32 v10, v11, 3, v10")
    e("v_lshrrev_b32 v11, 5, v1"); e(f"v_lshl_add_u32 {v(gPQ)}, v11, 10, v10")
    e("v_lshrrev_b32 v10, 4, v1"); e("v_lshlrev_b32 v10, 8, v10"); e("v_and_b32 v11, 15, v1"); e(f"v_lshl_add_u32 {v(gKV)}, v11, 2, v10")
    e(f"v_lshlrev_b32 v183, 2, v1")
    kvp_addr(KVP1 if layer == 1 else KVP2, 6)
    pq_addr(PQ1 if layer == 1 else PQ2, 7)
    e(f"s_lshl_b32 {s(sT)}, {s(sJ)}, 5"); e(f"s_mul_i32 {s(sT)}, {s(sT)}, {KVW}")
    e(f"s_lshr_b32 {s(sT+1)}, {s(sRS)}, 3"); e(f"s_mul_i32 {s(sT+1)}, {s(sT+1)}, {KVH}"); e(f"s_add_u32 {s(sT)}, {s(sT)}, {s(sT+1)}")
    e(f"s_add_u32 s3, {s(sT)}, {KVP1 if layer == 1 else KVP2}")
    e(f"s_and_b32 {s(sT+2)}, {s(sRS)}, 7")
    e(f"s_cmp_eq_u32 {s(sWAVE)}, 2")
    e(f"s_cselect_b32 {s(sT+3)}, 3, 7"); e(f"s_cselect_b32 {s(sT+4)}, 1, 0")
    e(f"s_mov_b32 s42, 0x0f0f0f0f"); e("s_cselect_b32 s42, s42, -1"); e("s_mov_b32 s43, s42")
    e(f"s_lshl_b32 {s(sT+5)}, {s(sT+2)}, 7"); e(f"s_cmp_eq_u32 {s(sWAVE)}, 2"); e(f"s_cselect_b32 {s(sT+5)}, 1024, {s(sT+5)}")
    e(f"s_lshl_b32 {s(sT+6)}, {s(sT+2)}, 6"); e(f"s_cselect_b32 {s(sT+6)}, 512, {s(sT+6)}") if False else None
    e("v_lshrrev_b32 v10, 3, v1"); e(f"v_mul_u32_u24 v10, {KVW}, v10"); e(f"v_and_b32 v11, {s(sT+3)}, v1"); e("v_lshl_add_u32 v11, v11, 4, v10")
    e(f"v_add_u32 v170, {s(sT+5)}, v11")
    e(f"s_lshl_b32 {s(sT+6)}, {s(sT+2)}, 6"); e(f"s_cmp_eq_u32 {s(sWAVE)}, 2"); e(f"s_cselect_b32 {s(sT+6)}, 512, {s(sT+6)}")
    e("v_lshrrev_b32 v10, 3, v1"); e(f"v_mul_u32_u24 v10, {FRP}, v10"); e("v_and_b32 v11, 7, v1"); e("v_lshl_add_u32 v10, v11, 3, v10")
    e(f"v_add_u32 v171, {s(sT+6)}, v10")
    f_addr(F1 if layer == 1 else F2, 40)
    e(f"s_cmp_eq_u32 {s(sT+2)}, 0"); e(f"s_cselect_b32 {s(sT+3)}, 2, 3"); e(f"s_cmp_ge_u32 {s(sWAVE)}, {s(sT+3)}"); e("s_cselect_b32 s41, 1, 0")
    e("v_and_b32 v10, 3, v1")
    e(f"v_cmp_eq_u32 {s(sM+4,2)}, 1, v10"); e(f"v_cmp_eq_u32 {s(sM+6,2)}, 2, v10"); e(f"v_cmp_eq_u32 s[2:3], 3, v10") if False else None
    if layer == 1:
        e("v_lshlrev_b32 v18, 4, v1")
        e(f"s_lshl_b32 {s(sW)}, {s(sJO)}, 2"); e(f"s_add_u32 {s(sW)}, {s(sW)}, {s(sWAVE)}")
        e(f"s_lshl_b32 {s(sW)}, {s(sW)}, 15"); e(f"s_add_u32 {s(sW)}, {s(sW)}, {WFO}")

def gphase(layer):
    kvp = KVP1 if layer == 1 else KVP2
    ff = F1 if layer == 1 else F2
    def dma(c, i):
        return [f"s_add_u32 {s(sT)}, s4, {(128*c + 8*i)*PITCH}", f"s_add_u32 m0, s5, {c*16384 + i*1024}",
                f"buffer_load_dwordx4 v19, {s(sSRD,4)}, {s(sT)} offen sc1 lds"]
    e(f"v_lshl_add_u32 v21, v1, 4, s5")
    def check_reads(c): return [f"ds_read_b32 {v(56+i)}, v21 offset:{c*16384 + i*1024}" for i in range(4)]
    def validate(c, first=False):
        lr = lab("gv"); lg = lab("gvk"); lx = lab("gvx")
        A.label(lr)
        for l in check_reads(c): e(l)
        e("s_waitcnt lgkmcnt(0)")
        maxtree([56, 57, 58, 59], 56)
        e("v_cmp_eq_u32 vcc, -1, v56")
        e(f"s_cbranch_vccz {lg}")
        e(f"s_sub_u32 {s(sSPIN)}, {s(sSPIN)}, 1"); e(f"s_cbranch_scc1 {lx}")
        if OPTS.get("cntv"): e(f"s_add_u32 s{96 if c == 0 else 98}, s{96 if c == 0 else 98}, 1")
        if int(OPTS.get("vbk", 4)): e(f"s_sleep {OPTS.get('vbk', 4)}")
        if first:
            for cc in range(3):
                for i in range(4):
                    for l in dma(cc, i): e(l)
            e("s_waitcnt vmcnt(8)")
        else:
            for i in range(4):
                for l in dma(c, i): e(l)
            e("s_waitcnt vmcnt(0)")
        e(f"s_branch {lr}")
        A.label(lx); e(f"s_mov_b32 {s(sSPIN)}, 0")
        A.label(lg)
    e("s_barrier")
    if int(OPTS.get("gpre", 0)): e(f"s_sleep {OPTS.get('gpre')}")
    for c in range(3):
        for i in range(4):
            for l in dma(c, i): e(l)
    late = [dma(3, i) for i in range(4)]
    XF = [64, 80]
    AK, AV, AQ, GR, RS_, ON = 96, 112, 128, 144, 148, 152
    trick = ow_loads() if layer == 1 else []
    if layer == 1:
        for i in range(4): e(f"v_mov_b32 {v(176+i)}, -1")
        e(f"s_lshr_b32 s62, {s(sWAVE)}, 1"); e(f"s_lshl_b32 s61, {s(sCP)}, 1"); e("s_add_u32 s62, s62, s61"); e(f"s_mul_i32 s62, s62, {PITCH}")
        e(f"s_and_b32 s61, {s(sWAVE)}, 1"); e("s_lshl_b32 s61, s61, 11"); e("s_add_u32 s62, s62, s61"); e(f"s_add_u32 s62, s62, {XT3}")
        e(f"s_lshl_b32 s63, {s(sJO)}, 7"); e(f"s_lshl_b32 s61, {s(sWAVE)}, 5"); e("s_add_u32 s63, s63, s61"); e("s_lshl_b32 s63, s63, 6")
        e(f"s_mul_i32 s61, {s(sRO)}, {ROP}"); e("s_add_u32 s63, s63, s61"); e(f"s_add_u32 s63, s63, {U2T}")
        e(f"s_lshl_b32 s60, {s(sRO)}, 2"); e(f"s_add_u32 s60, s60, {s(sJO)}"); e("s_lshl_b32 s60, s60, 8"); e(f"s_add_u32 s60, s60, {SP}")
        fl = [[f"buffer_store_dwordx4 v[176:179], v18, {s(sSRD,4)}, s62 offen sc1"], [f"buffer_store_dwordx4 v[176:179], v18, {s(sSRD,4)}, s62 offen offset:1024 sc1"],
              [f"buffer_store_dwordx4 v[176:179], v18, {s(sSRD,4)}, s63 offen sc1"], [f"buffer_store_dwordx4 v[176:179], v18, {s(sSRD,4)}, s63 offen offset:1024 sc1"],
              [f"buffer_store_dword v176, v183, {s(sSRD,4)}, s60 offen sc1"]]
        for i_, g_ in enumerate(fl): trick.insert(2 * i_ + 1, g_)
        LASTFILL = 2 * (len(fl) - 1) + 1
    def reads(ks, base=None):
        b = XF[ks & 1] if base is None else base
        out = []
        for j in range(4):
            out.append(f"ds_read_b64_tr_b16 {v(b+4*j,2)}, {v(TA+j)} offset:{ks*4096}")
            out.append(f"ds_read_b64_tr_b16 {v(b+4*j+2,2)}, {v(TA+j)} offset:{ks*4096+2048}")
        return out
    stamp(f"g{layer}_iss")
    e("s_waitcnt vmcnt(8)")
    validate(0, first=True)
    e("s_barrier")
    stamp(f"g{layer}_ld0")
    for l in reads(0): e(l)
    st_ = {"ti": 0, "nw": 0, "nm": 0}
    TRG = int(OPTS.get("trg", 5))
    def trickle(ok):
        st_["nm"] += 1
        if ok and st_["ti"] < len(trick) and st_["nm"] % TRG == 0:
            for l in trick[st_["ti"]]: e(l)
            st_["ti"] += 1; st_["nw"] += 1
    for ks in range(16):
        nxt = []
        if ks < 15:
            if (ks + 1) % 4 == 0: e("s_barrier")
            nxt = reads(ks + 1)
        x = XF[ks & 1]
        if ks in (2, 3, 4, 6, 7, 8, 10, 11, 12): stamp(f"g{layer}_k{ks}")
        e("s_waitcnt lgkmcnt(0)")
        eval_c = (ks + 2) // 4 if (ks < 14 and (ks + 2) % 4 == 0) else None
        if ks < 13 and (ks + 3) % 4 == 0:
            c = (ks + 3) // 4
            issued3 = 4 - len(late)
            y = {1: 4 + issued3, 2: issued3, 3: 0}[c] + st_["nw"]
            e(f"s_waitcnt vmcnt({min(63, y)})")
            nxt = nxt + check_reads(c)
        z = lambda r: "0" if ks == 0 else v(r, 4)
        mf = []
        for j in range(4):
            mf.append(f"v_mfma_f32_16x16x32_bf16 {v(AK+4*j,4)}, {v(x+4*j,4)}, {a((0*16+ks)*4,4)}, {z(AK+4*j)}")
            mf.append(f"v_mfma_f32_16x16x32_bf16 {v(AV+4*j,4)}, {v(x+4*j,4)}, {a((1*16+ks)*4,4)}, {z(AV+4*j)}")
        mf.insert(1, f"v_mfma_f32_16x16x32_bf16 {v(GR,4)}, {v(x,4)}, {v(x,4)}, {z(GR)}")
        mf.insert(3, f"v_mfma_f32_16x16x32_bf16 {v(RS_,4)}, {v(ON,4)}, {v(x,4)}, {z(RS_)}")
        pend = list(nxt)
        for m_i, m_ in enumerate(mf):
            e(m_)
            if pend: e(pend.pop(0))
            if eval_c is not None:
                if m_i == 2: e("v_max3_u32 v56, v56, v57, v58")
                if m_i == 4: e("v_max_u32 v56, v56, v59")
                if m_i == 6: e("v_cmp_eq_u32 vcc, -1, v56")
            if m_i == len(mf) - 1:
                while pend: e(pend.pop(0))
                if eval_c is not None:
                    lok = lab("gok")
                    e(f"s_cbranch_vccz {lok}")
                    if OPTS.get("cntv"): e(f"s_add_u32 s97, s97, {1 << (8*(eval_c-1))}")
                    for i in range(4):
                        for l in dma(eval_c, i): e(l)
                    e("s_waitcnt vmcnt(0)")
                    validate(eval_c)
                    A.label(lok)
            if late and m_i in (1, 4, 7):
                for l in late.pop(0): e(l)
            trickle(ks >= 4)
    stamp(f"g{layer}_mm")
    for jj in range(4):
        e(f"ds_read_b64_tr_b16 {v(XRES+2*jj,2)}, {v(gXE + (jj & 1))} offset:{512*jj}")
    e("v_and_b32 v10, 3, v1")
    e(f"v_cmp_eq_u32 {s(sM+4,2)}, 1, v10"); e(f"v_cmp_eq_u32 {s(sM+6,2)}, 2, v10"); e("v_cmp_eq_u32 vcc, 3, v10")
    e(f"v_cndmask_b32 v11, {v(GR)}, {v(GR+1)}, {s(sM+4,2)}")
    e(f"v_cndmask_b32 v11, v11, {v(GR+2)}, {s(sM+6,2)}")
    e(f"v_cndmask_b32 v11, v11, {v(GR+3)}, vcc")
    stats_final(RS_, 11, 16, 17, 20)
    e("v_mul_f32 v16, v16, v17")
    e(f"s_mov_b32 {s(sT+2)}, 0x00f0000f"); e(f"s_mov_b32 {s(sT+3)}, 0xf0000f00")
    e(f"s_mov_b64 exec, {s(sT+2,2)}")
    e(f"ds_write_b32 {v(gSW)}, v17"); e(f"ds_write_b32 {v(gSW)}, v16 offset:256")
    e("s_mov_b64 exec, -1")
    R4, M4, RQ, MQ = 24, 40, 56, 176
    e("s_waitcnt lgkmcnt(0)"); e("s_barrier")
    for j in range(4):
        e(f"ds_read_b128 {v(R4+4*j,4)}, {v(gS4+j)}"); e(f"ds_read_b128 {v(M4+4*j,4)}, {v(gS4+j)} offset:256")
    for j in range(4):
        e(f"ds_read_b32 {v(RQ+2*j)}, {v(gQA+j)}"); e(f"ds_read_b32 {v(MQ+2*j)}, {v(gQA+j)} offset:256")
    stamp(f"g{layer}_st")
    PK, VV = 72, 80
    def phi2(items):
        for (rp, acc, mp, ncs, dst, T, bro) in items:
            e(f"v_pk_fma_f32 {v(T,2)}, {v(mp,2)}, {v(ncs,2)}, {s(sEPS6,2)}" + (" op_sel_hi:[0,1,1]" if bro else ""))
        for (rp, acc, mp, ncs, dst, T, bro) in items:
            e(f"v_pk_fma_f32 {v(T,2)}, {v(rp,2)}, {v(acc,2)}, {v(T,2)}" + (" op_sel_hi:[0,1,1]" if bro else ""))
        for (rp, acc, mp, ncs, dst, T, bro) in items: e(f"v_pk_mul_f32 {v(T+2,2)}, {v(T,2)}, {s(sLOG2E,2)}")
        for (rp, acc, mp, ncs, dst, T, bro) in items:
            e(f"v_exp_f32 {v(T+2)}, {v(T+2)} clamp"); e(f"v_exp_f32 {v(T+3)}, {v(T+3)} clamp")
        for (rp, acc, mp, ncs, dst, T, bro) in items:
            e(f"v_max_f32 {v(T)}, {s(sEPS6)}, {v(T)}"); e(f"v_max_f32 {v(T+1)}, {s(sEPS6)}, {v(T+1)}")
        for (rp, acc, mp, ncs, dst, T, bro) in items: e(f"v_pk_add_f32 {v(T,2)}, {v(T,2)}, {v(T+2,2)}")
        for (rp, acc, mp, ncs, dst, T, bro) in items: e(f"v_cvt_pk_bf16_f32 {v(dst)}, {v(T)}, {v(T+1)}")
    for j in range(4):
        e(f"s_waitcnt lgkmcnt({min(15, 8 + 2*(3-j))})")
        items = [(R4+4*j+2*hp, AK+4*j+2*hp, M4+4*j+2*hp, NCSK, PK+2*j+hp, 88 + 4*hp, False) for hp in range(2)]
        for hp in range(2):
            T = 104 + 2*hp if False else 172 + 2*hp
            e(f"v_pk_mul_f32 {v(T,2)}, {v(M4+4*j+2*hp,2)}, {v(NCSV,2)}")
        for hp in range(2):
            T = 172 + 2*hp
            e(f"v_pk_fma_f32 {v(T,2)}, {v(R4+4*j+2*hp,2)}, {v(AV+4*j+2*hp,2)}, {v(T,2)}")
        phi2(items)
        for hp in range(2):
            T = 172 + 2*hp
            e(f"v_cvt_pk_bf16_f32 {v(VV+2*j+hp)}, {v(T)}, {v(T+1)}")
        if j == 1:
            e(f"v_mfma_f32_16x16x32_bf16 {v(GR,4)}, {v(VV,4)}, {v(PK,4)}, 0")
            e(f"v_mfma_f32_16x16x32_bf16 {v(RS_,4)}, {v(ON,4)}, {v(PK,4)}, 0")
    e(f"v_mfma_f32_16x16x32_bf16 {v(GR,4)}, {v(VV+4,4)}, {v(PK+4,4)}, {v(GR,4)}")
    e(f"v_mfma_f32_16x16x32_bf16 {v(RS_,4)}, {v(ON,4)}, {v(PK+4,4)}, {v(RS_,4)}")
    PQR = 96
    if layer == 1:
        assert st_["ti"] > LASTFILL
        e(f"s_waitcnt vmcnt({min(63, st_['ti'] - 1 - LASTFILL)}) lgkmcnt(0)")
    e("s_waitcnt lgkmcnt(0)")
    for i in range(4):
        e(f"buffer_store_dword {v(GR+i)}, {v(gKV)}, {s(sSRD,4)}, s6 offen offset:{64*i} sc1")
    e("s_mov_b64 exec, 0xffff")
    e(f"buffer_store_dword {v(RS_)}, v183, {s(sSRD,4)}, s6 offen offset:1024 sc1")
    e("s_mov_b64 exec, -1")
    stamp(f"g{layer}_kv")
    def red_loads():
        for i in range(4):
            e(f"s_add_u32 {s(sT+4)}, s3, {8*i*KVW}")
            e(f"buffer_load_dwordx4 {v(24+4*i,4)}, v170, {s(sSRD,4)}, {s(sT+4)} offen sc1")
    RLK = int(OPTS.get("rlk", 11))
    QS = [64, 80, 112]
    for l in reads(0, QS[0]): e(l)
    for l in reads(1, QS[1]): e(l)
    for ks in range(16):
        nxt = reads(ks + 2, QS[(ks + 2) % 3]) if ks < 14 else []
        x = QS[ks % 3]
        e(f"s_waitcnt lgkmcnt({8 if ks < 15 else 0})")
        z = lambda r: "0" if ks == 0 else v(r, 4)
        if ks == RLK:
            lsk = lab("rl")
            e("s_cmp_eq_u32 s41, 0"); e(f"s_cbranch_scc1 {lsk}")
            red_loads()
            A.label(lsk)
        for j in range(4):
            e(f"v_mfma_f32_16x16x32_bf16 {v(AQ+4*j,4)}, {a((2*16+ks)*4,4)}, {v(x+4*j,4)}, {z(AQ+4*j)}")
            for l in nxt[2*j:2*j+2]: e(l)
            if j % 2 == 0 and st_["ti"] < len(trick):
                for l in trick[st_["ti"]]: e(l)
                st_["ti"] += 1
    stamp(f"g{layer}_q")
    for j in range(0, 4, 2):
        phi2([(RQ+2*(j+jj), AQ+4*(j+jj)+2*hp, MQ+2*(j+jj), NCSQ+2*hp, PQR+2*(j+jj)+hp, 64 + 8*jj + 4*hp, True) for jj in range(2) for hp in range(2)])
    for j in range(4):
        e(f"s_lshl_b32 {s(sT+2)}, {s(sM+j)}, 2"); e(f"s_add_u32 {s(sT+2)}, {s(sT+2)}, s7")
        e(f"buffer_store_dwordx2 {v(PQR+2*j,2)}, {v(gPQ)}, {s(sSRD,4)}, {s(sT+2)} offen sc1")
    for ins in trick[st_["ti"]:]:
        for l in ins: e(l)
    lred = lab("red")
    e("s_cmp_eq_u32 s41, 0"); e(f"s_cbranch_scc1 {lred}")
    lr = lab("rp"); lg = lab("rg"); l0 = lab("r0")
    e(f"s_waitcnt vmcnt({4 + len(trick[st_['ti']:])})")
    e(f"s_branch {l0}")
    A.label(lr)
    red_loads()
    e("s_waitcnt vmcnt(0)")
    A.label(l0)
    maxtree([24, 28, 32, 36], 56)
    e("v_cmp_eq_u32 vcc, -1, v56")
    spin_check(lr, lg, cid=3+layer)
    stamp(f"r{layer}_ok")
    e("v_pk_add_f32 v[24:25], v[24:25], v[28:29]"); e("v_pk_add_f32 v[26:27], v[26:27], v[30:31]")
    e("v_pk_add_f32 v[32:33], v[32:33], v[36:37]"); e("v_pk_add_f32 v[34:35], v[34:35], v[38:39]")
    e("v_pk_add_f32 v[24:25], v[24:25], v[32:33]"); e("v_pk_add_f32 v[26:27], v[26:27], v[34:35]")
    regs = [24, 25, 26, 27]
    for r in regs: e(f"v_add_f32_dpp {v(r)}, {v(r)}, {v(r)} row_ror:8 row_mask:0xf bank_mask:0xf")
    for r in regs: e(f"v_mov_b32 {v(r+4)}, {v(r)}")
    for r in regs: e(f"v_permlane16_swap_b32 {v(r)}, {v(r+4)}")
    for r in regs: e(f"v_add_f32 {v(r)}, {v(r)}, {v(r+4)}")
    for r in regs: e(f"v_mov_b32 {v(r+4)}, {v(r)}")
    for r in regs: e(f"v_permlane32_swap_b32 {v(r)}, {v(r+4)}")
    for r in regs: e(f"v_add_f32 {v(r)}, {v(r)}, {v(r+4)}")
    e("v_cvt_pk_bf16_f32 v28, v24, v25"); e("v_cvt_pk_bf16_f32 v29, v26, v27")
    e("s_mov_b64 exec, s[42:43]")
    e(f"buffer_store_dwordx2 v[28:29], v171, {s(sSRD,4)}, s40 offen sc1")
    e("s_mov_b64 exec, -1")
    A.label(lred)

def ophase(layer):
    pq = PQ1 if layer == 1 else PQ2
    ff = F1 if layer == 1 else F2
    KF, PQF = 24, 56
    e("v_and_b32 v10, 31, v1"); e("v_min_u32 v10, 16, v10")
    e("v_lshlrev_b32 v10, 5, v10"); e("v_lshrrev_b32 v11, 5, v1"); e("v_lshl_add_u32 v10, v11, 4, v10")
    e(f"s_lshl_b32 {s(sT)}, {s(sWAVE)}, 3"); e(f"s_mul_i32 s4, {s(sT)}, {FP}"); e(f"s_add_u32 s4, s4, {ff}")
    e(f"s_mul_i32 {s(sT+1)}, {s(sXCD)}, {FRP}"); e(f"s_add_u32 s4, s4, {s(sT+1)}")
    e("v_and_b32 v11, 31, v1"); e("v_lshlrev_b32 v11, 4, v11"); e("v_lshrrev_b32 v12, 5, v1"); e("v_lshl_add_u32 v11, v12, 10, v11")
    e(f"s_mul_i32 s5, {s(sT)}, {HP}"); e(f"s_add_u32 s5, s5, {pq}")
    e(f"s_lshl_b32 {s(sT+3)}, {s(sRS)}, 11"); e(f"s_add_u32 s5, s5, {s(sT+3)}")
    e(f"s_and_b32 {s(sT+3)}, {s(sRO)}, 1"); e(f"s_lshl_b32 {s(sT+3)}, {s(sT+3)}, 9"); e(f"s_add_u32 s5, s5, {s(sT+3)}")
    e(f"s_mul_i32 s3, {s(sWAVE)}, 5120"); e(f"s_add_u32 s3, s3, {AT + 32768}")
    e("v_add_u32 v10, s3, v10"); e("v_lshlrev_b32 v19, 4, v1")
    e(f"s_lshl_b32 {s(sT)}, {s(sWAVE)}, 13"); e(f"s_add_u32 {s(sT)}, {s(sT)}, {OT}")
    e(f"v_lshl_add_u32 v12, v1, 4, {s(sT)}")
    e(f"v_lshlrev_b32 v13, 4, v1"); e(f"v_add_u32 v13, {OT}, v13")
    if layer == 1:
        e("v_and_b32 v14, 31, v1"); e(f"v_mul_u32_u24 v14, {TBP}, v14"); e("v_lshrrev_b32 v15, 5, v1"); e("v_lshl_add_u32 v14, v15, 5, v14")
        e(f"s_mul_i32 {s(sT+4)}, {s(sWAVE)}, {32*TBP}"); e(f"s_add_u32 {s(sT+4)}, {s(sT+4)}, {TB}"); e(f"v_add_u32 v14, {s(sT+4)}, v14")
        e("v_lshrrev_b32 v15, 4, v1"); e("v_lshlrev_b32 v15, 3, v15"); e("v_bfe_u32 v16, v1, 2, 2"); e("v_add_u32 v15, v15, v16")
        e(f"v_mul_u32_u24 v15, {TBP}, v15"); e("v_and_b32 v16, 3, v1"); e("v_lshl_add_u32 v15, v16, 3, v15"); e(f"v_add_u32 v15, {s(sT+4)}, v15")
        e("v_and_b32 v16, 15, v1"); e(f"v_lshlrev_b32 v16, 6, v16"); e("v_lshrrev_b32 v17, 4, v1"); e("v_lshl_add_u32 v16, v17, 4, v16")
        e(f"s_lshl_b32 s6, {s(sJO)}, 7"); e(f"s_lshl_b32 {s(sT+1)}, {s(sWAVE)}, 5"); e(f"s_add_u32 s6, s6, {s(sT+1)}")
        e(f"s_lshl_b32 s6, s6, 6"); e(f"s_mul_i32 {s(sT+1)}, {s(sRO)}, {ROP}"); e(f"s_add_u32 s6, s6, {s(sT+1)}")
        e(f"s_add_u32 s6, s6, {X2T}")
        e("v_bfe_u32 v17, v1, 1, 2"); e("v_lshlrev_b32 v17, 12, v17"); e("v_bfe_u32 v18, v1, 3, 2"); e("v_lshl_add_u32 v17, v18, 4, v17")
        e("v_and_b32 v18, 1, v1"); e("v_lshl_add_u32 v17, v18, 3, v17"); e("v_lshrrev_b32 v18, 5, v1"); e("v_lshl_add_u32 v17, v18, 2, v17")
        e(f"s_lshl_b32 s7, {s(sRO)}, 6"); e(f"s_add_u32 s7, s7, {S3}")
    else:
        e("v_and_b32 v14, 31, v1"); e("v_lshlrev_b32 v14, 10, v14"); e("v_lshrrev_b32 v15, 5, v1"); e("v_lshl_add_u32 v14, v15, 5, v14")
        e(f"s_lshl_b32 {s(sT)}, {s(sRO)}, 15"); e(f"s_lshl_b32 {s(sT+1)}, {s(sJO)}, 8"); e(f"s_add_u32 {s(sT)}, {s(sT)}, {s(sT+1)}")
        e(f"s_lshl_b32 {s(sT+1)}, {s(sWAVE)}, 6"); e(f"s_add_u32 {s(sT)}, {s(sT)}, {s(sT+1)}")
        e(f"v_add_u32 v14, {s(sT)}, v14")
    XF = 104
    def pq_loads():
        for h in range(8):
            e(f"s_add_u32 {s(sT+3)}, s5, {h*HP}")
            e(f"buffer_load_dwordx4 {v(PQF+4*h,4)}, v11, {s(sSRD,4)}, {s(sT+3)} offen sc1")
    e("s_barrier")
    stamp(f"o{layer}_gate")
    if STAMPS and f"o{layer}_cnt" in STSET: e("s_mov_b32 s101, 0")
    if STAMPS and f"o{layer}_st0" in STSET:
        e("s_waitcnt vmcnt(0)"); stamp(f"o{layer}_st0")
    pq_loads()
    if STAMPS and f"o{layer}_pq" in STSET:
        stamp(f"o{layer}_pqi"); e("s_waitcnt vmcnt(0)"); stamp(f"o{layer}_pq")
    if int(OPTS.get("osl", 0)): e(f"s_sleep {OPTS.get('osl')}")
    lr = lab("of"); lg = lab("ofk")
    A.label(lr)
    for i in range(5):
        e(f"s_add_u32 {s(sT+3)}, s4, {1024*i}"); e(f"s_add_u32 m0, s3, {1024*i}")
        e(f"buffer_load_dwordx4 v19, {s(sSRD,4)}, {s(sT+3)} offen sc1 lds")
    e("s_waitcnt vmcnt(0)")
    for h in range(8): e(f"ds_read_b128 {v(KF+4*h,4)}, v10 offset:{h*FP}")
    e("s_waitcnt lgkmcnt(0)")
    if STAMPS and f"o{layer}_cnt" in STSET: e("s_add_u32 s101, s101, 1")
    maxtree([KF+4*h+o for h in range(8) for o in (0, 2)], 18)
    e("v_cmp_eq_u32 vcc, -1, v18")
    spin_check(lr, lg, cid=1+layer)
    stamp(f"o{layer}_fok")
    if STAMPS and f"o{layer}_cnt" in STSET:
        i = len(stnames); stnames.append(f"o{layer}_cnt"); e(f"s_mov_b32 s{84+i}, s101")
    lr = lab("oq"); lg = lab("oqk")
    A.label(lr)
    maxtree([PQF+4*h+o for h in range(8) for o in (0, 2)], 18)
    e("v_cmp_eq_u32 vcc, -1, v18")
    e(f"s_cbranch_vccz {lg}")
    e(f"s_sub_u32 {s(sSPIN)}, {s(sSPIN)}, 1"); e(f"s_cbranch_scc1 {lg}_x")
    pq_loads()
    e("s_waitcnt vmcnt(0)")
    e(f"s_branch {lr}")
    A.label(lg + "_x"); e(f"s_mov_b32 {s(sSPIN)}, 0")
    A.label(lg)
    stamp(f"o{layer}_ld")
    DB = [88, 104, 120, 136, 152, 168, 24, 56]
    def m1(h): e(f"v_mfma_f32_32x32x16_bf16 {v(DB[h],16)}, {v(KF+4*h,4)}, {v(PQF+4*h,4)}, 0")
    def proc2(h0):
        hs = (h0, h0 + 1)
        for h in hs: e(f"v_add_f32 {v(DB[h]+8)}, {s(sEPS6)}, {v(DB[h]+8)}")
        for h in hs: e(f"v_rcp_f32 {v(DB[h]+8)}, {v(DB[h]+8)}")
        for k in range(4):
            for h in hs: e(f"v_pk_mul_f32 {v(DB[h]+2*k,2)}, {v(DB[h]+2*k,2)}, {v(DB[h]+8,2)} op_sel_hi:[1,0]")
        for h in hs:
            for k in range(4): e(f"v_cvt_pk_bf16_f32 {v(DB[h]+10+k)}, {v(DB[h]+2*k)}, {v(DB[h]+2*k+1)}")
            e(f"ds_write_b128 v12, {v(DB[h]+10,4)} offset:{1024*h}")
    for h in range(6): m1(h)
    proc2(0)
    m1(6); m1(7)
    proc2(2); proc2(4); proc2(6)
    stamp(f"o{layer}_m1")
    e("s_waitcnt lgkmcnt(0)"); e("s_barrier")
    ACC = 24; NB = 8; OF = [56 + 4*i for i in range(NB)]
    for h in range(NB): e(f"ds_read_b128 {v(OF[h],4)}, v13 offset:{1024*h}")
    for k in range(8):
        e(f"v_lshlrev_b32 {v(XF+2*k)}, 16, {v(XRES+k)}"); e(f"v_and_b32 {v(XF+2*k+1)}, {s(sHI)}, {v(XRES+k)}")
    for h in range(32):
        e(f"s_waitcnt lgkmcnt({min(NB-1, 31-h)})")
        w_ = a(192 + 4*h, 4) if h < 16 else v(192 + 4*(h-16), 4)
        c_ = "0" if h == 0 else v(ACC, 16)
        e(f"v_mfma_f32_32x32x16_bf16 {v(ACC,16)}, {w_}, {v(OF[h % NB],4)}, {c_}")
        if h + NB < 32: e(f"ds_read_b128 {v(OF[h % NB],4)}, v13 offset:{1024*(h+NB)}")
    stamp(f"o{layer}_g2")
    for k in range(8): e(f"v_pk_add_f32 {v(XF+2*k,2)}, {v(XF+2*k,2)}, {v(ACC+2*k,2)}")
    PKD = 120
    for k in range(8): e(f"v_cvt_pk_bf16_f32 {v(PKD+k)}, {v(XF+2*k)}, {v(XF+2*k+1)}")
    if layer == 2:
        fl = OPTS.get("outfl", "").replace("_", " ")
        e(f"global_store_dwordx4 v14, {v(PKD,4)}, {s(sOUT,2)} {fl}")
        e(f"global_store_dwordx4 v14, {v(PKD+4,4)}, {s(sOUT,2)} offset:16 {fl}")
        return
    e(f"ds_write_b128 v14, {v(PKD,4)}"); e(f"ds_write_b128 v14, {v(PKD+4,4)} offset:16")
    e(f"v_pk_add_f32 v[64:65], {v(XF,2)}, {v(XF+2,2)}"); e(f"v_pk_mul_f32 v[66:67], {v(XF,2)}, {v(XF,2)}")
    e(f"v_pk_add_f32 v[68:69], {v(XF+4,2)}, {v(XF+6,2)}"); e(f"v_pk_mul_f32 v[70:71], {v(XF+2,2)}, {v(XF+2,2)}")
    for k in range(2, 8):
        e(f"v_pk_fma_f32 {v(66+4*(k&1),2)}, {v(XF+2*k,2)}, {v(XF+2*k,2)}, {v(66+4*(k&1),2)}")
        if k >= 4: e(f"v_pk_add_f32 {v(64+4*(k&1),2)}, {v(64+4*(k&1),2)}, {v(XF+2*k,2)}")
    e("s_waitcnt lgkmcnt(0)")
    for k in range(2):
        e(f"ds_read_b64_tr_b16 {v(80+4*k,2)}, v15 offset:{32*k}")
        e(f"ds_read_b64_tr_b16 {v(82+4*k,2)}, v15 offset:{32*k + 4*TBP}")
    e("v_pk_add_f32 v[64:65], v[64:65], v[68:69]"); e("v_pk_add_f32 v[66:67], v[66:67], v[70:71]")
    e("v_add_f32 v64, v64, v65"); e("v_add_f32 v65, v66, v67")
    e("v_permlane32_swap_b32 v64, v65")
    e("v_add_f32 v64, v64, v65")
    e(f"s_lshl_b32 {s(sT)}, {s(sWAVE)}, 8"); e(f"s_add_u32 {s(sT)}, {s(sT)}, {ST}"); e(f"v_lshl_add_u32 v66, v1, 2, {s(sT)}")
    e("ds_write_b32 v66, v64")
    e("s_waitcnt lgkmcnt(1)")
    if OPTS.get("nox2") != "1":
        e(f"buffer_store_dwordx4 v[80:83], v16, {s(sSRD,4)}, s6 offen sc1")
        e(f"buffer_store_dwordx4 v[84:87], v16, {s(sSRD,4)}, s6 offen offset:1024 sc1")
    e("s_waitcnt lgkmcnt(0)"); e("s_barrier")
    l = lab("osp")
    e(f"s_cmp_lg_u32 {s(sWAVE)}, 0"); e(f"s_cbranch_scc1 {l}")
    e(f"v_lshlrev_b32 v66, 2, v1"); e(f"v_add_u32 v67, {ST}, v66")
    for k in range(4): e(f"ds_read_b32 {v(68+k)}, v67 offset:{256*k}")
    e(f"s_lshl_b32 {s(sT)}, {s(sRO)}, 10"); e(f"s_add_u32 {s(sT)}, {s(sT)}, {SP}")
    e(f"s_lshl_b32 {s(sT+1)}, {s(sJO)}, 8"); e(f"s_add_u32 {s(sT+1)}, {s(sT+1)}, {s(sT)}")
    e("s_waitcnt lgkmcnt(0)")
    e("v_add_f32 v68, v68, v69"); e("v_add_f32 v70, v70, v71"); e("v_add_f32 v68, v68, v70")
    e(f"buffer_store_dword v68, v66, {s(sSRD,4)}, {s(sT+1)} offen sc1")
    if int(OPTS.get("spre", 5)): e(f"s_sleep {OPTS.get('spre', 5)}")
    lr = lab("spp"); lg = lab("spk")
    A.label(lr)
    for k in range(4): e(f"buffer_load_dword {v(72+k)}, v66, {s(sSRD,4)}, {s(sT)} offen offset:{256*k} sc1")
    e("s_waitcnt vmcnt(0)")
    maxtree([72, 73, 74, 75], 76)
    e("v_cmp_eq_u32 vcc, -1, v76")
    spin_check(lr, lg, bk=1, cid=0)
    e("v_add_f32 v72, v72, v73"); e("v_add_f32 v74, v74, v75"); e("v_add_f32 v72, v72, v74")
    e("v_mov_b32 v73, v72")
    e("v_permlane32_swap_b32 v72, v73")
    stats_final(72, 73, 74, 75, 76)
    e("v_and_b32 v67, 31, v1"); e("v_lshlrev_b32 v67, 3, v67"); e(f"v_add_u32 v67, {ST + 1024}, v67")
    e("ds_write_b64 v67, v[74:75]")
    A.label(l)
    for k in range(8):
        e(f"v_lshlrev_b32 {v(XF+2*k)}, 16, {v(PKD+k)}"); e(f"v_and_b32 {v(XF+2*k+1)}, {s(sHI)}, {v(PKD+k)}")
    e("v_and_b32 v67, 31, v1"); e("v_lshlrev_b32 v67, 3, v67"); e(f"v_add_u32 v67, {ST + 1024}, v67")
    e("s_waitcnt lgkmcnt(0)"); e("s_barrier")
    stamp("o1_sp")
    e("ds_read_b64 v[74:75], v67")
    e("s_waitcnt lgkmcnt(0)")
    for k in range(8): e(f"v_pk_add_f32 {v(XF+2*k,2)}, {v(XF+2*k,2)}, v[74:75] op_sel_hi:[1,0] neg_lo:[0,1] neg_hi:[0,1]")
    for k in range(8): e(f"v_cvt_pk_bf16_f32 {v(PKD+k)}, {v(XF+2*k)}, {v(XF+2*k+1)}")
    for k in range(8):
        e(f"v_lshlrev_b32 {v(XF+2*k)}, 16, {v(PKD+k)}"); e(f"v_and_b32 {v(XF+2*k+1)}, {s(sHI)}, {v(PKD+k)}")
    for k in range(8): e(f"v_pk_mul_f32 {v(XF+2*k,2)}, {v(XF+2*k,2)}, v[74:75] op_sel:[0,1] op_sel_hi:[1,1]")
    for k in range(8): e(f"v_cvt_pk_bf16_f32 {v(PKD+k)}, {v(XF+2*k)}, {v(XF+2*k+1)}")
    TB2 = 4 * 32 * TBP
    e(f"ds_write_b128 v14, {v(PKD,4)} offset:{TB2}"); e(f"ds_write_b128 v14, {v(PKD+4,4)} offset:{TB2 + 16}")
    e(f"s_add_u32 s7, s6, {U2T - X2T}")
    e("s_waitcnt lgkmcnt(0)")
    for k in range(2):
        e(f"ds_read_b64_tr_b16 {v(88+4*k,2)}, v15 offset:{TB2 + 32*k}")
        e(f"ds_read_b64_tr_b16 {v(90+4*k,2)}, v15 offset:{TB2 + 32*k + 4*TBP}")
    e("s_waitcnt vmcnt(0) lgkmcnt(0)")
    e(f"buffer_store_dwordx4 v[88:91], v16, {s(sSRD,4)}, s7 offen sc1")
    e(f"buffer_store_dwordx4 v[92:95], v16, {s(sSRD,4)}, s7 offen offset:1024 sc1")

def build():
    prologue()
    stamp("start")
    idx_loads()
    p0_fills()
    stamp("p_iss")
    e("s_waitcnt vmcnt(6)")
    stamp("p_ld")
    p0_x0_write()
    p0_stats()
    e("s_waitcnt vmcnt(4) lgkmcnt(0)"); e("s_barrier")
    p0_x0_store()
    nonce_issue()
    p0_wfrag()
    kgen_setup()
    stamp("p_st")
    kgen_round(["X1", "X2", "Y1"], 0); kgen_round(["Y2"], 0)
    nonce_get(2)
    p0_stats_store()
    sent_regs(20)
    for g in xt_fill_groups(XT1, 3, 10): emit_group(g)
    stamp("p_s1")
    kgen_round(["X1", "X2", "Y1"], 1); kgen_round(["Y2"], 1)
    arrive(0, vm=0)
    stamp("arr1")
    fg = fill_groups(1, 58, 59)
    def upto_store():
        while fg:
            g = fg.pop(0); emit_group(g)
            if any("buffer_store" in l for l in g): return
    upto_store()
    kgen_round(["X1", "X2"], 2); upto_store(); kgen_round(["X1", "X2"], 3); upto_store()
    stamp("k_tab")
    kgen_mm([], upto_store)
    while fg: upto_store()
    e("s_waitcnt lgkmcnt(0)"); e("s_barrier")
    stamp("kgen")
    if stop_here("K"): return
    conv_setup(1)
    stamp("B1")
    rest = conv(1)
    stamp("C1")
    if stop_here("C1"): return
    for ins in rest:
        for l in ins: e(l)
    g_setup(1)
    e(f"s_waitcnt vmcnt({4 if not rest else 0})")
    colsums()
    stamp("B2")
    gphase(1)
    stamp("G1")
    if stop_here("G1"): return
    ophase(1)
    stamp("O1")
    if stop_here("O1"): return
    e("s_barrier")
    conv_setup(2)
    stamp("B4")
    conv(2)
    stamp("C2")
    if stop_here("C2"): return
    g_setup(2)
    stamp("B5")
    gphase(2)
    stamp("G2")
    if stop_here("G2"): return
    ophase(2)
    if STAMPS:
        e("s_waitcnt vmcnt(0)")
        stamp("O2")
        if OPTS.get("cntv"):
            vals = (("sp_cnt", 90), ("u2_cnt", 91), ("f1_cnt", 92), ("f2_cnt", 93), ("r1_cnt", 94), ("r2_cnt", 95), ("c0_cnt", 96), ("slow_cnt", 97))
            for nm, r in vals: e(f"v_mov_b32 v{100+r-90}, s{r}")
            for nm, r in vals:
                i = len(stnames); stnames.append(nm); e(f"v_readfirstlane_b32 s{84+i}, v{100+r-90}")
        stamps_out()

build()
A.label("L_end")
e("s_endpgm")

def rb_int(j):
    u = struct.unpack("<I", struct.pack("<f", float(j)))[0]
    u = (u + 0x7fff + ((u >> 16) & 1)) & 0xffff0000
    return int(struct.unpack("<f", struct.pack("<I", u))[0])
idx = []
for x in range(2064):
    j = 2047 - x
    if j < 0: ent = 1024
    else:
        t = rb_int(j); ent = t if t < 512 else 512 + (t - 512) // 4
    idx.append(2 * ent)

lines, nn = hazard_pass(A.lines)
probs = check_branches(lines)
for p in probs: print("BRANCH HAZARD:", p, file=sys.stderr)
hdr = open("interleave_layers__ssm_conv_s4d__linear_attn_block__prompt.s.ref").read().split("; Override launch")[0]
out = hdr + "; Override launch geometry by editing the next line.\n"
out += f"; @launch grid=(256,1,1) block=(256,1,1) lds={LDS_BYTES}\n"
out += '.amdgcn_target "amdgcn-amd-amdhsa--gfx950"\n.text\n'
out += f".globl {NAME}\n.p2align 8\n.type {NAME},@function\n{NAME}:\n"
out += "\n".join(lines) + "\n"
out += ".p2align 6\n.type L_idx,@object\nL_idx:\n"
for i in range(0, len(idx), 16): out += "  .short " + ", ".join(str(x) for x in idx[i:i+16]) + "\n"
out += "L_tab_end:\n"
out += f""".section .rodata,"a"
.p2align 6
.amdhsa_kernel {NAME}
  .amdhsa_next_free_vgpr 512
  .amdhsa_next_free_sgpr 102
  .amdhsa_accum_offset 256
  .amdhsa_group_segment_fixed_size 0
  .amdhsa_kernarg_size 104
  .amdhsa_user_sgpr_count 2
  .amdhsa_user_sgpr_kernarg_segment_ptr 1
  .amdhsa_system_sgpr_workgroup_id_x 1
  .amdhsa_float_denorm_mode_32 3
.end_amdhsa_kernel
"""
open(sys.argv[1], "w").write(out)
if STAMPS: open(sys.argv[1] + ".names", "w").write(",".join(stnames))
print(f"wrote {sys.argv[1]}: {len(lines)} lines, {nn} nops inserted; WS_USED={WS_USED:#x}", file=sys.stderr)
```

```python
import sys, struct
from asmlib import *

NAME = "interleave_layers__ssm_conv_s4d__linear_attn_block__prompt_kernel"
OPTS = {}
for x in sys.argv[2:]:
    if "=" in x:
        k_, v_ = x.split("="); OPTS[k_] = v_
STOP = OPTS.get("stop")
SPINMAX = int(OPTS.get("spin", 100000))
BK = int(OPTS.get("bk", 2))

PITCH = 4224
S1 = 0x000000
S3 = 0x004000
FP = 640; FRP = 32 * FP + 128; F1 = 0x1200000 - 0x100000; F2 = F1 + 0x40000
STAMP_OFF = 0x020000
X0P = 8192 + 128
CNT = 0x030000
KVP1 = 0x040000; KVH = 1152; KVW = 4 * KVH; KVP2 = KVP1 + 0x128000
WFG = 0x2A0000; WFO = WFG + 0x180000
XSZ = 0x220000
XT1 = 0x4A0000; XT3 = XT1 + XSZ; X2T = XT3 + XSZ
ROP = 32768 + 256
HP = 65536 + 256
PQ1 = X2T + XSZ; PQ2 = PQ1 + 0x210000
X0T = 0x1200000
U2T = 0x1410000
SP = 0x030000
WS_USED = 0x1620000
assert PQ2 + 0x210000 <= F1
KC = 0; KCC = 4160; KCH = 4 * KCC
AT = 66560
MISC = AT + 65536
ST = MISC
WST = MISC + 2048
CT = WST + 8192; CTP = 2080
TB = WST; TBP = 80
LDS_BYTES = 163840
X0S = 147456
TKP = 224; TABC = 256 * TKP
U0 = AT; UP = 4608; X0 = AT + 2 * UP; RED = X0 + 8192
OT = AT

sU, sLOGA, sAIM, sCR, sCI, sLDT, sDSK = 8, 10, 12, 14, 16, 18, 20
sWQKV, sWO, sOUT, sDBG, sWS = 24, 26, 28, 30, 32
sSRD = 36; sSRD2 = 40
sWAVE, sXCD, sIDX, sCP, sRS, sJ, sRO, sJO = 44, 45, 46, 47, 48, 49, 50, 51
sSPIN = 52; sDSKV = 53
sT = 54
sLOG2E = 64; sEPS6 = 66; sM = 68; sHI = 76; sPC = 78; sINV512 = 80
sW = 34
sNON = 35

def f2u(f): return struct.unpack("<I", struct.pack("<f", f))[0]
A = Asm(); e = A.e
uid = [0]
def lab(p):
    uid[0] += 1; return f"L_{p}_{uid[0]}"

STAMPS = OPTS.get("stamps") == "1"
DEFSET = "start,arr1,kgen,B1,c1_pro,C1,B2,g1_kv,G1,o1_ld,O1,B4,c2_pro,C2,B5,G2,o2_ld,O2"
STSET = OPTS.get("st", DEFSET).split(",")
stnames = []
def stamp(name):
    if not STAMPS or name not in STSET: return
    i = len(stnames); stnames.append(name); assert i < 18
    e(f"{'s_memtime' if OPTS.get('clk') == '1' else 's_memrealtime'} s[82:83]"); e("s_waitcnt lgkmcnt(0)"); e(f"s_mov_b32 s{84+i}, s82")
def stamps_out():
    if not STAMPS: return
    if OPTS.get("dbgout"):
        l = lab("so")
        e(f"s_cmp_lg_u32 {s(sWAVE)}, 0"); e(f"s_cbranch_scc1 {l}")
        e(f"s_cmp_lg_u32 s2, {OPTS.get('dbgout')}"); e(f"s_cbranch_scc1 {l}")
        e("s_mov_b64 exec, 1")
        words = [2, 3, 5, 6, 7, 9, 10, 11, 13, 14, 15]
        for i in range(1, min(len(stnames), 12)):
            e(f"s_sub_u32 {s(sT)}, s{84+i}, s84")
            e(f"v_mov_b32 v10, {s(sT)}"); e(f"v_mov_b32 v11, {4*words[i-1]}")
            e(f"global_store_dword v11, v10, {s(sDBG,2)}")
        e("s_mov_b64 exec, -1")
        A.label(l)
        return
    l = lab("so")
    e(f"s_cmp_lg_u32 {s(sWAVE)}, {OPTS.get('stw', '0')}"); e(f"s_cbranch_scc1 {l}")
    e(f"s_lshl_b32 {s(sT)}, s2, 7"); e(f"s_add_u32 {s(sT)}, {s(sT)}, {STAMP_OFF}")
    e("s_mov_b64 exec, 1")
    for i in range(len(stnames)):
        e(f"v_mov_b32 v10, s{84+i}"); e(f"v_mov_b32 v11, {4*i}")
        e(f"buffer_store_dword v10, v11, {s(sSRD,4)}, {s(sT)} offen")
    e("s_mov_b64 exec, -1")
    A.label(l)
def stop_here(name):
    if STOP == name:
        e("s_waitcnt vmcnt(0) lgkmcnt(0)"); e("s_branch L_end"); return True
    return False

def sent_regs(r):
    for i in range(4): e(f"v_mov_b32 {v(r+i)}, -1")
def spin_check(retry, giveup, bk=None, cid=None):
    e(f"s_cbranch_vccz {giveup}")
    if OPTS.get("cntv") and cid is not None: e(f"s_add_u32 s{90+cid}, s{90+cid}, 1")
    bk = BK if bk is None else bk
    if bk: e(f"s_sleep {bk}")
    e(f"s_sub_u32 {s(sSPIN)}, {s(sSPIN)}, 1")
    e(f"s_cbranch_scc0 {retry}")
    e(f"s_mov_b32 {s(sSPIN)}, 0")
    A.label(giveup)
def maxtree(regs, dst):
    regs = list(regs); cur = regs.pop(0)
    while regs:
        if len(regs) >= 2:
            e(f"v_max3_u32 {v(dst)}, {v(cur)}, {v(regs[0])}, {v(regs[1])}"); regs = regs[2:]
        else:
            e(f"v_max_u32 {v(dst)}, {v(cur)}, {v(regs[0])}"); regs = []
        cur = dst

def arrive(k, vm=0):
    e(f"s_waitcnt vmcnt({vm}) lgkmcnt(0)"); e("s_barrier")
    l = lab("arr")
    e(f"s_cmp_lg_u32 {s(sWAVE)}, 0"); e(f"s_cbranch_scc1 {l}")
    e(f"s_and_b32 {s(sT)}, s2, 15"); e(f"s_lshl_b32 {s(sT)}, {s(sT)}, {4 if k == 0 else 12}")
    if k: e(f"s_add_u32 {s(sT)}, {s(sT)}, {CNT}")
    e(f"v_mov_b32 v10, {s(sT)}"); e("v_mov_b32 v11, 1")
    e("s_mov_b64 exec, 1")
    e(f"global_atomic_add v10, v11, {s(sDBG if k == 0 else sWS,2)}")
    e("s_mov_b64 exec, -1")
    A.label(l)
def wait(k, pre=0):
    l = lab("wt"); lp = lab("poll")
    e(f"s_cmp_lg_u32 {s(sWAVE)}, 0"); e(f"s_cbranch_scc1 {l}")
    e("v_and_b32 v10, 15, v0"); e(f"v_lshlrev_b32 v10, {4 if k == 0 else 12}, v10")
    if k: e(f"v_add_u32 v10, {CNT}, v10")
    e(f"s_movk_i32 {s(sT+1)}, {16 * max(k, 1)}")
    if pre: e(f"s_sleep {pre}")
    A.label(lp)
    e(f"global_load_dword v11, v10, {s(sDBG if k == 0 else sWS,2)} sc1")
    e("s_waitcnt vmcnt(0)")
    e(f"v_cmp_gt_u32 vcc, {s(sT+1)}, v11")
    spin_check(lp, l, bk=int(OPTS.get("wbk", 0)))
    e("s_barrier")

def cmul(d, x, w, t):
    return [f"v_pk_mul_f32 {v(t,2)}, {v(x,2)}, {v(w,2)} op_sel_hi:[1,0]",
            f"v_pk_fma_f32 {v(d,2)}, {v(x,2)}, {v(w,2)}, {v(t,2)} op_sel:[1,1,0] op_sel_hi:[0,1,1] neg_lo:[0,1,0]"]
def bf16r(dst, src):
    e(f"v_cvt_pk_bf16_f32 {v(dst)}, {v(src)}, {v(src)}"); e(f"v_lshlrev_b32 {v(dst)}, 16, {v(dst)}")
def stats_final(vsum, vsq, vm, vr, t, rcp=True):
    e(f"v_mul_f32 {v(t)}, {s(sINV512)}, {v(vsum)}")
    e(f"v_mul_f32 {v(t+1)}, {s(sINV512)}, {v(vsq)}")
    e(f"v_fma_f32 {v(t+1)}, -{v(t)}, {v(t)}, {v(t+1)}")
    e(f"v_max_f32 {v(t+1)}, 0, {v(t+1)}")
    e(f"v_cvt_pk_bf16_f32 {v(t)}, {v(t)}, {v(t+1)}")
    e(f"v_and_b32 {v(t+1)}, {s(sHI)}, {v(t)}"); e(f"v_lshlrev_b32 {v(vm)}, 16, {v(t)}")
    e(f"v_add_f32 {v(t+1)}, 0x3727c5ac, {v(t+1)}")
    bf16r(t + 1, t + 1)
    e(f"v_sqrt_f32 {v(t+1)}, {v(t+1)}")
    if rcp:
        bf16r(t + 1, t + 1)
        e(f"v_rcp_f32 {v(vr)}, {v(t+1)}")
    else:
        bf16r(vr, t + 1)

def kvp_addr(kvp, dst):
    e(f"s_lshl_b32 {s(dst)}, {s(sJ)}, 5"); e(f"s_add_u32 {s(dst)}, {s(dst)}, {s(sRS)}"); e(f"s_lshl_b32 {s(dst)}, {s(dst)}, 2")
    e(f"s_add_u32 {s(dst)}, {s(dst)}, {s(sWAVE)}"); e(f"s_mul_i32 {s(dst)}, {s(dst)}, {KVH}"); e(f"s_add_u32 {s(dst)}, {s(dst)}, {kvp}")
def f_addr(f, dst):
    e(f"s_lshr_b32 {s(dst)}, {s(sRS)}, 3"); e(f"s_lshl_b32 {s(sT+9)}, {s(sJ)}, 2"); e(f"s_add_u32 {s(dst)}, {s(dst)}, {s(sT+9)}")
    e(f"s_mul_i32 {s(dst)}, {s(dst)}, {FP}"); e(f"s_add_u32 {s(dst)}, {s(dst)}, {f}")
def pq_addr(pq, dst):
    e(f"s_lshl_b32 {s(dst)}, {s(sJ)}, 2"); e(f"s_add_u32 {s(dst)}, {s(dst)}, {s(sWAVE)}")
    e(f"s_mul_i32 {s(dst)}, {s(dst)}, {HP}"); e(f"s_lshl_b32 {s(sT+9)}, {s(sRS)}, 11"); e(f"s_add_u32 {s(dst)}, {s(dst)}, {s(sT+9)}")
    e(f"s_add_u32 {s(dst)}, {s(dst)}, {pq}")
def capture(fn):
    n = len(A.lines); fn(); out = [l.strip() for l in A.lines[n:]]; del A.lines[n:]
    return out
def fill_groups(layer, va, vb):
    S = 20; P1, K1, FF = 40, 41, 42
    pq = PQ1 if layer == 1 else PQ2; kvp = KVP1 if layer == 1 else KVP2; ff = F1 if layer == 1 else F2
    G = []
    def grp(fn): G.append(capture(fn))
    def single(fn):
        for l in capture(fn): G.append([l])
    single(lambda: sent_regs(S))
    def addr():
        e(f"s_lshl_b32 s{P1}, {s(sJ)}, 2"); e(f"s_add_u32 s{P1}, s{P1}, {s(sWAVE)}"); e(f"s_mul_i32 s{P1}, s{P1}, {HP}")
        e(f"s_lshl_b32 s61, {s(sRS)}, 11"); e(f"s_add_u32 s{P1}, s{P1}, s61"); e(f"s_add_u32 s{P1}, s{P1}, {pq}")
        e(f"s_lshl_b32 s{K1}, {s(sJ)}, 5"); e(f"s_add_u32 s{K1}, s{K1}, {s(sRS)}"); e(f"s_lshl_b32 s{K1}, s{K1}, 2")
        e(f"s_add_u32 s{K1}, s{K1}, {s(sWAVE)}"); e(f"s_mul_i32 s{K1}, s{K1}, {KVH}"); e(f"s_add_u32 s{K1}, s{K1}, {kvp}")
        e(f"s_lshr_b32 s{FF}, {s(sRS)}, 3"); e(f"s_lshl_b32 s61, {s(sJ)}, 2"); e(f"s_add_u32 s{FF}, s{FF}, s61")
        e(f"s_mul_i32 s{FF}, s{FF}, {FP}"); e(f"s_add_u32 s{FF}, s{FF}, {ff}")
        e(f"v_lshlrev_b32 {v(va)}, 4, v1"); e(f"v_lshlrev_b32 {v(vb)}, 2, v1")
    single(addr)
    G.append([f"buffer_store_dwordx4 {v(S,4)}, {v(va)}, {s(sSRD,4)}, s{K1} offen sc1", "MARK"])
    def st2():
        e("s_mov_b32 s62, -1"); e("s_mov_b32 s63, 0"); e("s_mov_b64 exec, s[62:63]")
        e(f"buffer_store_dword {v(S)}, {v(vb)}, {s(sSRD,4)}, s{K1} offen offset:1024 sc1")
        e("s_mov_b64 exec, -1")
    grp(st2)
    G.append([f"buffer_store_dwordx4 {v(S,4)}, {v(va)}, {s(sSRD,4)}, s{P1} offen sc1", "MARK"])
    G.append([f"buffer_store_dwordx4 {v(S,4)}, {v(va)}, {s(sSRD,4)}, s{P1} offen offset:1024 sc1", "MARK"])
    def fslice():
        l = lab("ff")
        e(f"s_cmp_lg_u32 {s(sWAVE)}, 2"); e(f"s_cbranch_scc1 {l}")
        e(f"s_and_b32 s61, {s(sRS)}, 7"); e("s_lshl_b32 s62, s61, 6")
        e(f"v_lshrrev_b32 {v(va)}, 3, v1"); e(f"v_mul_u32_u24 {v(va)}, {FRP}, {v(va)}"); e(f"v_and_b32 {v(vb)}, 7, v1"); e(f"v_lshl_add_u32 {v(va)}, {v(vb)}, 3, {v(va)}")
        e(f"v_add_u32 {v(vb)}, s62, {v(va)}")
        e(f"buffer_store_dwordx2 {v(S,2)}, {v(vb)}, {s(sSRD,4)}, s{FF} offen sc1")
        e("s_cmp_lg_u32 s61, 0"); e(f"s_cbranch_scc1 {l}")
        e("s_mov_b32 s62, 0x0f0f0f0f"); e("s_mov_b32 s63, 0x0f0f0f0f"); e("s_mov_b64 exec, s[62:63]")
        e(f"buffer_store_dwordx2 {v(S,2)}, {v(va)}, {s(sSRD,4)}, s{FF} offen offset:512 sc1")
        e("s_mov_b64 exec, -1")
        A.label(l)
    grp(fslice)
    return G
def xt_fill_groups(buf, sreg, va):
    G = []
    G.append([f"s_lshr_b32 s{sreg}, {s(sWAVE)}, 1"]); G.append([f"s_lshl_b32 s61, {s(sCP)}, 1"]); G.append([f"s_add_u32 s{sreg}, s{sreg}, s61"])
    G.append([f"s_mul_i32 s{sreg}, s{sreg}, {PITCH}"]); G.append([f"s_and_b32 s61, {s(sWAVE)}, 1"]); G.append(["s_lshl_b32 s61, s61, 11"])
    G.append([f"s_add_u32 s{sreg}, s{sreg}, s61"]); G.append([f"s_add_u32 s{sreg}, s{sreg}, {buf}"]); G.append([f"v_lshlrev_b32 {v(va)}, 4, v1"])
    G.append([f"buffer_store_dwordx4 v[20:23], {v(va)}, {s(sSRD,4)}, s{sreg} offen sc1"])
    G.append([f"buffer_store_dwordx4 v[20:23], {v(va)}, {s(sSRD,4)}, s{sreg} offen offset:1024 sc1"])
    return G
def emit_group(g):
    for l in g:
        if l == "MARK": continue
        if l.endswith(":"): A.label(l[:-1])
        else: e(l)

XR = 24; PRM = 32; IDX = 40; XC = 176
def prologue():
    stamp("t0")
    if OPTS.get("cntv"):
        for r_ in range(90, 99): e(f"s_mov_b32 s{r_}, 0")
    e(f"s_getpc_b64 {s(sPC,2)}")
    A.label("L_pc")
    e("s_cmp_ge_u32 s2, 256")
    e("s_cbranch_scc1 L_end")
    e("s_load_dwordx16 s[8:23], s[0:1], 0")
    e("s_load_dwordx8 s[24:31], s[0:1], 64")
    e("s_load_dwordx2 s[32:33], s[0:1], 96")
    e("s_memrealtime s[82:83]")
    e("v_lshlrev_b32 v10, 7, v0")
    e("v_min_u32 v11, L_tab_end - L_pc - 4, v10")
    e(f"global_load_dword v38, v11, {s(sPC,2)}")
    e("v_add_u32 v10, 0x8000, v10")
    e("v_min_u32 v10, L_tab_end - L_pc - 4, v10")
    e(f"global_load_dword v39, v10, {s(sPC,2)}")
    e("v_lshrrev_b32 v1, 6, v0")
    e(f"s_and_b32 {s(sXCD)}, s2, 7")
    e(f"s_lshr_b32 {s(sIDX)}, s2, 3")
    e(f"v_readfirstlane_b32 {s(sWAVE)}, v1")
    e(f"s_lshl_b32 {s(sCP)}, {s(sXCD)}, 5"); e(f"s_add_u32 {s(sCP)}, {s(sCP)}, {s(sIDX)}")
    e("v_and_b32 v1, 63, v0")
    e(f"s_lshl_b32 {s(sT)}, {s(sCP)}, 9"); e(f"v_lshl_add_u32 v10, v0, 1, {s(sT)}")
    e(f"s_lshl_b32 {s(sT)}, {s(sCP)}, 2"); e("v_lshrrev_b32 v12, 7, v0"); e(f"v_lshl_add_u32 v11, v12, 1, {s(sT)}")
    e(f"s_lshl_b32 {s(sT)}, s2, 13"); e(f"v_lshl_add_u32 v13, v0, 5, {s(sT)}")
    e(f"s_mul_i32 s6, s2, 5462"); e(f"s_lshr_b32 s6, s6, 16"); e(f"s_mul_i32 s7, s6, 12"); e(f"s_sub_u32 s7, s2, s7")
    e(f"s_sub_u32 {s(sT+1)}, s2, 192"); e(f"s_lshr_b32 {s(sT)}, {s(sT+1)}, 1"); e(f"s_and_b32 {s(sT+1)}, {s(sT+1)}, 1")
    e("s_cmp_ge_u32 s2, 192")
    e(f"s_cselect_b32 s6, {s(sT)}, s6"); e(f"s_cselect_b32 s7, {s(sT+1)}, s7")
    e(f"s_cselect_b32 {s(sT+2)}, 4, 5")
    e(f"s_cselect_b32 {s(sT+3)}, 2, 3")
    e(f"s_cselect_b32 {s(sT+4)}, 10, 0")
    e(f"s_movk_i32 {s(sT+5)}, 3072"); e(f"s_cselect_b32 {s(sT+5)}, 1024, {s(sT+5)}")
    e(f"s_cselect_b32 {s(sT+6)}, 9, 8")
    e(f"s_cselect_b32 {s(sT+7)}, 5, 4")
    e(f"s_lshl_b32 {s(sT)}, s6, {s(sT+2)}"); e(f"s_lshl_b32 {s(sT+1)}, {s(sWAVE)}, {s(sT+3)}"); e(f"s_add_u32 {s(sT)}, {s(sT)}, {s(sT+1)}")
    e(f"s_mul_i32 {s(sT)}, {s(sT)}, {s(sT+5)}"); e(f"s_lshl_b32 {s(sT+1)}, s7, {s(sT+6)}"); e(f"s_add_u32 s4, {s(sT)}, {s(sT+1)}")
    e(f"v_lshrrev_b32 v14, {s(sT+7)}, v1"); e(f"v_mul_lo_u32 v14, {s(sT+5)}, v14")
    e(f"s_lshl_b32 {s(sT+1)}, 1, {s(sT+7)}"); e(f"s_sub_u32 {s(sT+1)}, {s(sT+1)}, 1"); e(f"v_and_b32 v15, {s(sT+1)}, v1"); e("v_lshl_add_u32 v14, v15, 4, v14")
    e(f"s_lshl_b32 {s(sT+1)}, 64, 0"); e(f"s_lshr_b32 {s(sT+1)}, 64, {s(sT+7)}"); e(f"s_mul_i32 s5, {s(sT+1)}, {s(sT+5)}")
    e(f"s_lshl_b32 {s(sT+3)}, {s(sWAVE)}, 11"); e(f"s_add_u32 {s(sT+3)}, {s(sT+3)}, {WST}")
    e("s_cmp_ge_u32 s2, 192")
    e("s_waitcnt lgkmcnt(0)")
    stamp("karg")
    if True:
        e(f"v_min_u32 v16, {(WS_USED - 1) // 0x200000}, v1"); e("v_lshlrev_b32 v16, 21, v16")
        e(f"global_load_dword v19, v16, {s(sWS,2)}")
    e("s_cmp_ge_u32 s2, 192")
    e(f"global_load_ushort {v(PRM)}, v10, {s(sLOGA,2)}")
    e(f"global_load_ushort {v(PRM+1)}, v10, {s(sAIM,2)}")
    e(f"global_load_ushort {v(PRM+4)}, v11, {s(sLDT,2)}")
    e(f"global_load_dwordx4 {v(XR,4)}, v13, {s(sU,2)}")
    e(f"global_load_dwordx4 {v(XR+4,4)}, v13, {s(sU,2)} offset:16")
    e(f"global_load_ushort {v(PRM+2)}, v10, {s(sCR,2)}")
    e(f"global_load_ushort {v(PRM+3)}, v10, {s(sCI,2)}")
    e(f"global_load_ushort {v(PRM+5)}, v11, {s(sDSK,2)}")
    e(f"s_cselect_b32 {s(sSRD2)}, {s(sWO)}, {s(sWQKV)}"); e(f"s_cselect_b32 {s(sSRD2+1)}, {s(sWO+1)}, {s(sWQKV+1)}")
    e(f"s_mov_b32 {s(sT)}, {512*1536*2}"); e(f"s_cselect_b32 {s(sSRD2+2)}, {512*512*2}, {s(sT)}")
    e(f"s_and_b32 {s(sSRD2+1)}, {s(sSRD2+1)}, 0xffff"); e(f"s_mov_b32 {s(sSRD2+3)}, 0x20000")
    ln = lab("nw")
    e("v_mov_b32 v23, 4")
    e(f"s_or_b32 {s(sT)}, s2, {s(sWAVE)}"); e(f"s_cmp_lg_u32 {s(sT)}, 0"); e(f"s_cbranch_scc1 {ln}")
    e(f"s_or_b32 {s(sT)}, s82, 1"); e(f"v_mov_b32 v58, {s(sT)}")
    e("s_mov_b64 exec, 1")
    e(f"global_store_dword v23, v58, {s(sDBG,2)} sc1")
    e("s_mov_b64 exec, -1")
    e("s_waitcnt vmcnt(63)")
    A.label(ln)
    e(f"s_mov_b32 m0, {s(sT+3)}")
    e(f"buffer_load_dwordx4 v14, {s(sSRD2,4)}, s4 offen lds")
    e(f"s_add_u32 s4, s4, s5"); e(f"s_add_u32 m0, {s(sT+3)}, 1024")
    e(f"buffer_load_dwordx4 v14, {s(sSRD2,4)}, s4 offen lds")
    e(f"s_and_b32 {s(sT)}, {s(sIDX)}, 3"); e(f"s_lshl_b32 {s(sRS)}, {s(sXCD)}, 2"); e(f"s_add_u32 {s(sRS)}, {s(sRS)}, {s(sT)}")
    e(f"s_lshr_b32 {s(sJ)}, {s(sIDX)}, 2")
    e(f"s_and_b32 {s(sT)}, {s(sJ)}, 1"); e(f"s_lshl_b32 {s(sRO)}, {s(sRS)}, 1"); e(f"s_add_u32 {s(sRO)}, {s(sRO)}, {s(sT)}")
    e(f"s_lshr_b32 {s(sJO)}, {s(sJ)}, 1")
    e(f"s_mov_b32 {s(sLOG2E)}, {f2u(1.4426950408889634):#x}"); e(f"s_mov_b32 {s(sLOG2E+1)}, {s(sLOG2E)}")
    e(f"s_mov_b32 {s(sEPS6)}, {f2u(1e-6):#x}"); e(f"s_mov_b32 {s(sEPS6+1)}, {s(sEPS6)}")
    e(f"s_mov_b32 {s(sINV512)}, {f2u(1.0/512):#x}"); e(f"s_mov_b32 {s(sINV512+1)}, {s(sINV512)}")
    e(f"s_mov_b32 {s(sHI)}, 0xffff0000")
    e(f"s_mov_b32 {s(sSPIN)}, {SPINMAX}")
    e(f"s_mov_b32 {s(sSRD)}, {s(sWS)}"); e(f"s_and_b32 {s(sSRD+1)}, {s(sWS+1)}, 0xffff")
    e(f"s_mov_b32 {s(sSRD+2)}, {WS_USED:#x}"); e(f"s_mov_b32 {s(sSRD+3)}, 0x20000")

def p0_fills():
    pass

def nonce_issue():
    e("v_mov_b32 v17, 4")
    e(f"global_load_dword v58, v17, {s(sDBG,2)} sc1")
def nonce_get(vm=0):
    lr = lab("nr"); lg = lab("ng"); l0 = lab("n0")
    e(f"s_waitcnt vmcnt({vm})")
    e(f"s_branch {l0}")
    A.label(lr)
    e(f"global_load_dword v58, v17, {s(sDBG,2)} sc1")
    e("s_waitcnt vmcnt(0)")
    A.label(l0)
    e("v_cmp_eq_u32 vcc, 0, v58")
    spin_check(lr, lg, bk=1)
    e(f"v_readfirstlane_b32 {s(sNON)}, v58")

def idx_loads():
    e(f"s_add_u32 {s(sT)}, {s(sPC)}, L_idx - L_pc"); e(f"s_addc_u32 {s(sT+1)}, {s(sPC+1)}, 0")
    e("v_and_b32 v10, 127, v0"); e("v_lshlrev_b32 v10, 4, v10")
    e(f"global_load_dwordx4 {v(IDX,4)}, v10, {s(sT,2)}")
    e(f"global_load_dwordx4 {v(IDX+4,4)}, v10, {s(sT,2)} offset:16")
    e(f"global_load_dwordx4 {v(IDX+8,4)}, v10, {s(sT,2)} offset:2048")
    e(f"global_load_dwordx4 {v(IDX+12,4)}, v10, {s(sT,2)} offset:2064")

def gather_loads():
    out = []
    for i in range(4): out.append(f"global_load_dword {v(XC+i)}, v19, {s(sU,2)} offset:{1024*i}")
    for i in range(4): out.append(f"global_load_dword {v(XC+4+i)}, v18, {s(sU,2)} offset:{1024*i}")
    return out

def p0_x0_write():
    e(f"v_lshlrev_b32 v10, 5, v0"); e(f"v_add_u32 v10, {X0S}, v10")
    e(f"ds_write_b128 v10, {v(XR,4)}"); e(f"ds_write_b128 v10, {v(XR+4,4)} offset:16")
def p0_x0_store():
    e("v_bfe_u32 v10, v1, 2, 2"); e("v_lshlrev_b32 v10, 10, v10")
    e("v_lshrrev_b32 v11, 4, v1"); e("v_lshl_add_u32 v10, v11, 5, v10")
    e("v_and_b32 v11, 3, v1"); e("v_lshl_add_u32 v10, v11, 3, v10")
    e(f"s_lshl_b32 {s(sT)}, {s(sWAVE)}, 8"); e(f"s_add_u32 {s(sT)}, {s(sT)}, {X0S}"); e(f"v_add_u32 v10, {s(sT)}, v10")
    for k in range(2):
        e(f"ds_read_b64_tr_b16 {v(100+4*k,2)}, v10 offset:{128*k}"); e(f"ds_read_b64_tr_b16 {v(102+4*k,2)}, v10 offset:{128*k + 4096}")
    e(f"s_mul_i32 {s(sT)}, s2, {X0P}"); e(f"s_lshl_b32 {s(sT+1)}, {s(sWAVE)}, 11"); e(f"s_add_u32 {s(sT)}, {s(sT)}, {s(sT+1)}")
    e(f"s_add_u32 {s(sT)}, {s(sT)}, {X0T}")
    e("v_lshlrev_b32 v11, 4, v1")
    e("s_waitcnt lgkmcnt(0)")
    e(f"buffer_store_dwordx4 v[100:103], v11, {s(sSRD,4)}, {s(sT)} offen sc1")
    e(f"buffer_store_dwordx4 v[104:107], v11, {s(sSRD,4)}, {s(sT)} offen offset:1024 sc1")

def p0_stats():
    F = 64
    for i in range(8):
        e(f"v_lshlrev_b32 {v(F+2*i)}, 16, {v(XR+i)}"); e(f"v_and_b32 {v(F+2*i+1)}, {s(sHI)}, {v(XR+i)}")
    for i in range(4): e(f"v_pk_add_f32 {v(80+2*i,2)}, {v(F+4*i,2)}, {v(F+4*i+2,2)}")
    e(f"v_pk_mul_f32 v[88:89], {v(F,2)}, {v(F,2)}"); e(f"v_pk_mul_f32 v[90:91], {v(F+2,2)}, {v(F+2,2)}")
    e(f"v_pk_add_f32 v[80:81], v[80:81], v[82:83]"); e(f"v_pk_add_f32 v[84:85], v[84:85], v[86:87]")
    for i in range(2, 8): e(f"v_pk_fma_f32 {v(88+2*(i&1),2)}, {v(F+2*i,2)}, {v(F+2*i,2)}, {v(88+2*(i&1),2)}")
    e(f"v_pk_add_f32 v[80:81], v[80:81], v[84:85]"); e("v_pk_add_f32 v[88:89], v[88:89], v[90:91]")
    e("v_add_f32 v80, v80, v81"); e("v_add_f32 v82, v88, v89")
    for r_ in (8, 4, 2, 1):
        e(f"v_add_f32_dpp v80, v80, v80 row_ror:{r_} row_mask:0xf bank_mask:0xf")
        e(f"v_add_f32_dpp v82, v82, v82 row_ror:{r_} row_mask:0xf bank_mask:0xf")
    e("v_add_f32_dpp v80, v80, v80 row_bcast:15 row_mask:0xa bank_mask:0xf")
    e("v_add_f32_dpp v82, v82, v82 row_bcast:15 row_mask:0xa bank_mask:0xf")
    stats_final(80, 82, 56, 57, 86, rcp=False)
    e("v_lshrrev_b32 v56, 16, v56"); e(f"v_and_or_b32 v56, v57, {s(sHI)}, v56")

def p0_stats_store():
    e(f"v_mov_b32 v57, {s(sNON)}")
    e(f"s_lshl_b32 {s(sT)}, s2, 4"); e(f"s_lshl_b32 {s(sT+1)}, {s(sWAVE)}, 12"); e(f"s_add_u32 {s(sT)}, {s(sT)}, {s(sT+1)}")
    e(f"s_add_u32 {s(sT)}, {s(sT)}, {S1}")
    e("v_lshrrev_b32 v10, 5, v1"); e(f"v_lshl_add_u32 v10, v10, 3, {s(sT)}")
    e(f"s_mov_b32 {s(sT+2)}, 0x00010000"); e(f"s_mov_b32 {s(sT+3)}, 0x00010000")
    e(f"s_mov_b64 exec, {s(sT+2,2)}")
    e(f"buffer_store_dwordx2 v[56:57], v10, {s(sSRD,4)}, 0 offen sc1")
    e("s_mov_b64 exec, -1")

def p0_wfrag():
    lo = lab("wo2"); lj = lab("wj2")
    e("s_cmp_ge_u32 s2, 192"); e(f"s_cbranch_scc1 {lo}")
    e("v_lshrrev_b32 v10, 2, v1"); e("v_lshlrev_b32 v10, 8, v10")
    e("v_and_b32 v11, 3, v1"); e("v_lshl_add_u32 v10, v11, 3, v10")
    e(f"s_lshl_b32 {s(sT)}, {s(sWAVE)}, 6"); e(f"s_add_u32 {s(sT)}, {s(sT)}, {WST}")
    e(f"v_add_u32 v10, {s(sT)}, v10")
    e("ds_read_b64_tr_b16 v[88:89], v10"); e("ds_read_b64_tr_b16 v[90:91], v10 offset:4096")
    e("ds_read_b64_tr_b16 v[92:93], v10 offset:32"); e("ds_read_b64_tr_b16 v[94:95], v10 offset:4128")
    e(f"s_lshr_b32 {s(sT)}, s7, 2")
    e(f"s_add_u32 {s(sT)}, {s(sT)}, 2"); e(f"s_cmp_ge_u32 {s(sT)}, 3")
    e(f"s_cselect_b32 {s(sT+1)}, 3, 0"); e(f"s_sub_u32 {s(sT)}, {s(sT)}, {s(sT+1)}")
    e(f"s_and_b32 {s(sT+1)}, s7, 3"); e(f"s_lshl_b32 {s(sT+1)}, {s(sT+1)}, 3")
    e(f"s_lshl_b32 {s(sT+2)}, {s(sWAVE)}, 1"); e(f"s_add_u32 {s(sT+1)}, {s(sT+1)}, {s(sT+2)}")
    e(f"s_mul_i32 {s(sT+1)}, {s(sT+1)}, 3"); e(f"s_add_u32 {s(sT+1)}, {s(sT+1)}, {s(sT)}")
    e(f"s_lshl_b32 {s(sT+1)}, {s(sT+1)}, 4"); e(f"s_add_u32 {s(sT+1)}, {s(sT+1)}, s6")
    e(f"s_lshl_b32 {s(sT+1)}, {s(sT+1)}, 10"); e(f"s_add_u32 {s(sT+1)}, {s(sT+1)}, {WFG}")
    e(f"s_add_u32 {s(sT+2)}, {s(sT+1)}, 49152")
    e(f"s_branch {lj}")
    A.label(lo)
    e("v_lshrrev_b32 v10, 5, v1"); e("v_lshlrev_b32 v10, 2, v10")
    e("v_bfe_u32 v11, v1, 2, 2"); e("v_add_u32 v10, v10, v11"); e("v_lshlrev_b32 v10, 9, v10")
    e("v_and_b32 v11, 1, v1"); e("v_lshl_add_u32 v10, v11, 5, v10")
    e("v_bfe_u32 v11, v1, 4, 1"); e("v_lshl_add_u32 v10, v11, 4, v10")
    e("v_bfe_u32 v11, v1, 1, 1"); e("v_lshl_add_u32 v10, v11, 3, v10")
    e(f"s_lshl_b32 {s(sT)}, {s(sWAVE)}, 7"); e(f"s_add_u32 {s(sT)}, {s(sT)}, {WST}")
    e(f"v_add_u32 v10, {s(sT)}, v10")
    e("ds_read_b64_tr_b16 v[88:89], v10"); e("ds_read_b64_tr_b16 v[90:91], v10 offset:4096")
    e("ds_read_b64_tr_b16 v[92:93], v10 offset:64"); e("ds_read_b64_tr_b16 v[94:95], v10 offset:4160")
    e(f"s_lshl_b32 {s(sT+1)}, s7, 3"); e(f"s_lshl_b32 {s(sT+2)}, {s(sWAVE)}, 1"); e(f"s_add_u32 {s(sT+1)}, {s(sT+1)}, {s(sT+2)}")
    e(f"s_lshl_b32 {s(sT+1)}, {s(sT+1)}, 5"); e(f"s_add_u32 {s(sT+1)}, {s(sT+1)}, s6")
    e(f"s_lshl_b32 {s(sT+1)}, {s(sT+1)}, 10"); e(f"s_add_u32 {s(sT+1)}, {s(sT+1)}, {WFO}")
    e(f"s_add_u32 {s(sT+2)}, {s(sT+1)}, 32768")
    A.label(lj)
    e("v_lshlrev_b32 v10, 4, v1")
    e("s_waitcnt lgkmcnt(0)")
    e(f"buffer_store_dwordx4 v[88:91], v10, {s(sSRD,4)}, {s(sT+1)} offen sc1")
    e(f"buffer_store_dwordx4 v[92:95], v10, {s(sSRD,4)}, {s(sT+2)} offen sc1")

def pw_multi(items, a2, b2):
    for (d, t, tm) in items:
        if t == 1:
            e(f"v_mov_b32 {v(tm)}, {v(a2)}"); e(f"v_fract_f32 {v(tm+1)}, {v(b2)}")
        else:
            c = f"{float(t)}" if t in (2, 4) else f"{f2u(float(t)):#x}"
            e(f"v_mul_f32 {v(tm)}, {c}, {v(a2)}"); e(f"v_mul_f32 {v(tm+1)}, {c}, {v(b2)}")
    for (d, t, tm) in items:
        e(f"v_exp_f32 {v(tm)}, {v(tm)}")
        if t != 1: e(f"v_fract_f32 {v(tm+1)}, {v(tm+1)}")
    for (d, t, tm) in items:
        e(f"v_cos_f32 {v(d)}, {v(tm+1)}"); e(f"v_sin_f32 {v(d+1)}, {v(tm+1)}")
    for (d, t, tm) in items:
        e(f"v_pk_mul_f32 {v(d,2)}, {v(d,2)}, {v(tm,2)} op_sel_hi:[1,0]")

W1, W4, W16, W64, W512 = 100, 102, 104, 106, 108
CH = {"X1": 112, "X2": 128, "Y1": 144, "Y2": 160}
def kgen_setup():
    for i in range(6): e(f"v_lshlrev_b32 {v(PRM+i)}, 16, {v(PRM+i)}")
    e(f"v_readfirstlane_b32 {s(sDSKV)}, {v(PRM+5)}")
    dt, are = 60, 61
    e(f"v_mul_f32 {v(dt)}, {s(sLOG2E)}, {v(PRM+4)}"); e(f"v_mul_f32 {v(are)}, {s(sLOG2E)}, {v(PRM)}")
    e(f"v_exp_f32 {v(dt)}, {v(dt)}"); e(f"v_exp_f32 {v(are)}, {v(are)}")
    e(f"v_cvt_pk_bf16_f32 {v(dt)}, {v(dt)}, {v(are)}")
    e(f"v_and_b32 {v(are)}, {s(sHI)}, {v(dt)}"); e(f"v_lshlrev_b32 {v(dt)}, 16, {v(dt)}")
    a2, b2 = 62, 63
    e(f"v_mul_f32 {v(a2)}, -{v(are)}, {v(dt)}"); e(f"v_mul_f32 {v(b2)}, {v(PRM+1)}, {v(dt)}")
    e(f"v_mul_f32 {v(a2)}, {s(sLOG2E)}, {v(a2)}"); e(f"v_mul_f32 {v(b2)}, 0.15915494, {v(b2)}")
    pw_multi([(W1, 1, 64), (W4, 4, 66), (W16, 16, 68), (W64, 64, 70), (W512, 512, 72)], a2, b2)
    e(f"v_add_f32 {v(dt)}, {v(dt)}, {v(dt)}")
    e(f"v_mul_f32 {v(CH['X1'])}, {v(PRM+2)}, {v(dt)}"); e(f"v_mul_f32 {v(CH['X1']+1)}, {v(PRM+3)}, {v(dt)}")
    for l in cmul(CH['X2'], CH['X1'], W512, 64): e(l)
    e(f"v_mov_b32 {v(CH['Y1'])}, 1.0"); e(f"v_mov_b32 {v(CH['Y1']+1)}, 0"); e(f"v_mov_b32 {v(CH['Y2'])}, 1.0"); e(f"v_mov_b32 {v(CH['Y2']+1)}, 0")
    e(f"v_lshrrev_b32 v96, 7, v0"); e(f"v_mul_u32_u24 v96, {TABC}, v96")
    e(f"v_and_b32 v97, 127, v0"); e(f"v_mul_u32_u24 v97, {TKP}, v97"); e("v_add_u32 v96, v96, v97")

def kgen_round(chains, rnd, side=None):
    Wof = {"X1": W16, "X2": W64, "Y1": W1, "Y2": W4}
    mbase = {"X1": 0, "X2": 32, "Y1": 64, "Y2": 80}
    tmp = {"X1": 64, "X2": 66, "Y1": 68, "Y2": 70}
    nval = {c: 8 for c in chains}
    if rnd == 3 and "X2" in chains: nval["X2"] = 1
    for i in range(1, 8):
        ls = [cmul(CH[c] + 2*i, CH[c] + 2*(i-1), Wof[c], tmp[c]) for c in chains if i < nval[c]]
        for k in range(2):
            for l in ls: e(l[k])
        if side and i in (1, 3, 5, 7) and len(side): e(side.pop(0))
    P = {c: 72 + 8*k for k, c in enumerate(chains)}
    for c in chains:
        neg = "-" if c[0] == "X" else ""
        for k in range(4):
            i0, i1 = (2*k, 2*k+1) if nval[c] == 8 else (0, 0)
            e(f"v_cvt_pk_bf16_f32 {v(P[c]+k)}, {v(CH[c]+2*i0)}, {v(CH[c]+2*i1)}")
            e(f"v_cvt_pk_bf16_f32 {v(P[c]+4+k)}, {neg}{v(CH[c]+2*i0+1)}, {neg}{v(CH[c]+2*i1+1)}")
        off = (mbase[c] + 8*rnd) * 2
        e(f"ds_write_b128 v96, {v(P[c],4)} offset:{off}")
        e(f"ds_write_b128 v96, {v(P[c]+4,4)} offset:{off + 128*TKP}")
    ls = [cmul(CH[c], CH[c] + 14, Wof[c], tmp[c]) for c in chains if nval[c] == 8 and not ((c[0] == "Y" and rnd == 1) or rnd == 3)]
    for k in range(2):
        for l in ls: e(l[k])

def kgen_mm(gl, fs):
    s1_issue()
    e("s_waitcnt lgkmcnt(0)"); e("s_barrier")
    e(f"s_lshr_b32 {s(sT)}, {s(sWAVE)}, 1"); e(f"s_and_b32 {s(sT+1)}, {s(sWAVE)}, 1")
    e(f"s_mul_i32 {s(sT+2)}, {s(sT)}, {TABC}")
    e(f"s_lshl_b32 {s(sT+3)}, {s(sT+1)}, 5"); e(f"s_add_u32 {s(sT+3)}, {s(sT+3)}, 128"); e(f"s_add_u32 {s(sT+3)}, {s(sT+3)}, {s(sT+2)}")
    e(f"s_lshl_b32 {s(sT+4)}, {s(sT+1)}, 6"); e(f"s_add_u32 {s(sT+4)}, {s(sT+4)}, {s(sT+2)}")
    e("v_lshrrev_b32 v10, 2, v1"); e(f"v_mul_u32_u24 v10, {TKP}, v10"); e("v_and_b32 v11, 3, v1"); e("v_lshl_add_u32 v10, v11, 3, v10")
    e(f"v_add_u32 v11, {s(sT+3)}, v10"); e(f"v_add_u32 v12, {s(sT+4)}, v10")
    YF, XF = 64, 96
    for ks in range(8):
        o = ks * 32 * TKP
        e(f"ds_read_b64_tr_b16 {v(YF+4*ks,2)}, v11 offset:{o}"); e(f"ds_read_b64_tr_b16 {v(YF+4*ks+2,2)}, v11 offset:{o + 16*TKP}")
        for tl in range(2):
            e(f"ds_read_b64_tr_b16 {v(XF+32*tl+4*ks,2)}, v12 offset:{o + 32*tl}"); e(f"ds_read_b64_tr_b16 {v(XF+32*tl+4*ks+2,2)}, v12 offset:{o + 16*TKP + 32*tl}")
    e("v_lshrrev_b32 v13, 7, v0")
    e(f"v_mul_u32_u24 v14, {CTP}, v13"); e(f"v_add_u32 v14, {CT}, v14")
    e(f"v_mul_u32_u24 v15, {KCH}, v13"); e("v_and_b32 v13, 127, v0"); e("v_lshl_add_u32 v15, v13, 4, v15")
    fs()
    for ks in range(8):
        e(f"s_waitcnt lgkmcnt({min(15, 6*(7-ks))})")
        for tl in range(2):
            c_ = "0" if ks == 0 else v(160 + 4*tl, 4)
            e(f"v_mfma_f32_16x16x32_bf16 {v(160+4*tl,4)}, {v(YF+4*ks,4)}, {v(XF+32*tl+4*ks,4)}, {c_}")
    e(f"s_mul_i32 {s(sT+2)}, {s(sT)}, {CTP}"); e(f"s_lshl_b32 {s(sT+3)}, {s(sT+1)}, 10"); e(f"s_add_u32 {s(sT+2)}, {s(sT+2)}, {s(sT+3)}")
    e(f"s_add_u32 {s(sT+2)}, {s(sT+2)}, {CT}")
    e("v_and_b32 v10, 15, v1"); e("v_lshlrev_b32 v10, 5, v10"); e("v_lshrrev_b32 v11, 4, v1"); e("v_lshl_add_u32 v10, v11, 3, v10")
    e(f"v_add_u32 v10, {s(sT+2)}, v10")
    e(f"s_mul_i32 {s(sT+2)}, {s(sT)}, {CTP}"); e(f"s_add_u32 {s(sT+2)}, {s(sT+2)}, {CT + 2048}")
    e(f"v_mov_b32 v11, {s(sT+2)}"); e("v_mov_b32 v12, 0")
    e("ds_write_b32 v11, v12")
    fs()
    G = [96, 112]
    for task in range(2):
        I = IDX + 8 * task
        for k in range(6):
            e(f"v_add_u32_sdwa {v(G[task]+2*k)}, v14, {v(I+k)} dst_sel:DWORD dst_unused:UNUSED_PAD src0_sel:DWORD src1_sel:WORD_0")
            e(f"v_add_u32_sdwa {v(G[task]+2*k+1)}, v14, {v(I+k)} dst_sel:DWORD dst_unused:UNUSED_PAD src0_sel:DWORD src1_sel:WORD_1")
    for tl in range(2):
        e(f"v_cvt_pk_bf16_f32 {v(168+2*tl)}, {v(160+4*tl)}, {v(161+4*tl)}")
        e(f"v_cvt_pk_bf16_f32 {v(169+2*tl)}, {v(162+4*tl)}, {v(163+4*tl)}")
        e(f"ds_write_b64 v10, {v(168+2*tl,2)} offset:{512*tl}")
    e("s_waitcnt lgkmcnt(0)"); e("s_barrier")
    stamp("k_mm")
    s1_validate(1)
    x0t_issue()
    for task in range(2):
        for k in range(12): e(f"ds_read_u16 {v(G[task]+k)}, {v(G[task]+k)}")
    for task in range(2):
        Dd, Dp, Sd, Sp = [(64, 72, 80, 88), (128, 136, 144, 152)][task]
        e(f"s_waitcnt lgkmcnt({12 if task == 0 else 4})")
        for k in range(6): e(f"v_lshl_or_b32 {v(Dd+k)}, {v(G[task]+2*k+1)}, 16, {v(G[task]+2*k)}")
        for k in range(4): e(f"v_mov_b32 {v(Dp+k)}, {v(Dd+k+1)}")
        for k in range(4): e(f"v_alignbit_b32 {v(Sd+k)}, {v(Dd+k+1)}, {v(Dd+k)}, 16")
        for k in range(4): e(f"v_alignbit_b32 {v(Sp+k)}, {v(Dd+k+2)}, {v(Dd+k+1)}, 16")
        for cp_, src in enumerate((Dd, Sd, Dp, Sp)):
            e(f"ds_write_b128 v15, {v(src,4)} offset:{cp_*KCC + task*2048}")
    l0 = lab("zk")
    e(f"s_cmp_lg_u32 {s(sWAVE)}, 0"); e(f"s_cbranch_scc1 {l0}")
    e("v_lshrrev_b32 v10, 2, v1"); e(f"v_mul_u32_u24 v10, {KCC}, v10")
    e("v_and_b32 v11, 3, v1"); e("v_lshl_add_u32 v10, v11, 4, v10"); e("v_add_u32 v10, 4096, v10")
    e("v_mov_b32 v160, 0"); e("v_mov_b32 v161, 0"); e("v_mov_b32 v162, 0"); e("v_mov_b32 v163, 0")
    e(f"s_mov_b32 {s(sT+2)}, -1"); e(f"s_mov_b32 {s(sT+3)}, 0"); e(f"s_mov_b64 exec, {s(sT+2,2)}")
    e("ds_write_b128 v10, v[160:163]")
    e("s_mov_b64 exec, -1")
    A.label(l0)

def s1_issue():
    e("v_lshlrev_b32 v63, 4, v0")
    for i in range(4):
        e(f"s_movk_i32 {s(sT)}, {S1 + 4096*i}")
        e(f"buffer_load_dwordx4 {v(24+4*i,4)}, v63, {s(sSRD,4)}, {s(sT)} offen sc1")
def s1_validate(vm=0):
    lr = lab("s1r"); lg = lab("s1k"); l0 = lab("s1c")
    e(f"s_waitcnt vmcnt({vm})")
    e(f"s_branch {l0}")
    A.label(lr)
    s1_issue()
    e("s_waitcnt vmcnt(0)")
    A.label(l0)
    for i in range(8): e(f"v_xor_b32 {v(160+i)}, {s(sNON)}, {v(24+2*i+1)}")
    e("v_or3_b32 v160, v160, v161, v162"); e("v_or3_b32 v163, v163, v164, v165"); e("v_or3_b32 v160, v160, v166, v167"); e("v_or_b32 v160, v160, v163")
    e("v_cmp_ne_u32 vcc, 0, v160")
    spin_check(lr, lg, bk=1)
def x0t_issue():
    e(f"v_mul_u32_u24 v10, {X0P}, v0"); e(f"s_lshl_b32 {s(sT)}, {s(sCP)}, 5"); e(f"s_add_u32 {s(sT)}, {s(sT)}, {X0T}")
    e(f"buffer_load_dwordx4 v[40:43], v10, {s(sSRD,4)}, {s(sT)} offen sc1")
    e(f"buffer_load_dwordx4 v[44:47], v10, {s(sSRD,4)}, {s(sT)} offen offset:16 sc1")
def b1_issue():
    e("v_and_b32 v20, 15, v0"); e("v_lshlrev_b32 v20, 4, v20")
    e(f"global_load_dword v21, v20, {s(sDBG,2)} sc1")
def b1_check():
    lr = lab("b1r"); lg = lab("b1k"); l0 = lab("b1c")
    e("s_waitcnt vmcnt(0)")
    e(f"s_branch {l0}")
    A.label(lr)
    e(f"global_load_dword v21, v20, {s(sDBG,2)} sc1")
    e("s_waitcnt vmcnt(0)")
    A.label(l0)
    e("v_cmp_gt_u32 vcc, 16, v21")
    spin_check(lr, lg, bk=1)

def gw_loads():
    out = []
    for f in range(48):
        out.append([f"buffer_load_dwordx4 {a(4*f,4)}, v18, {s(sSRD,4)}, {s(sW)} offen offset:{(f%4)*1024} sc1"] + ([f"s_add_u32 {s(sW)}, {s(sW)}, 4096"] if f % 4 == 3 else []))
    return out
def ow_loads():
    out = []
    for f in range(32):
        dst = a(192 + 4*f, 4) if f < 16 else v(192 + 4*(f-16), 4)
        out.append([f"buffer_load_dwordx4 {dst}, v18, {s(sSRD,4)}, {s(sW)} offen offset:{(f%4)*1024} sc1"] + ([f"s_add_u32 {s(sW)}, {s(sW)}, 4096"] if f % 4 == 3 else []))
    return out

vA, vB, vEP, vEU, vEX, vRW, vRR = 164, 165, 166, 167, 168, 169, 170
def conv_setup(layer):
    e(f"s_lshr_b32 s4, {s(sWAVE)}, 1"); e(f"s_and_b32 s5, {s(sWAVE)}, 1")
    e("v_and_b32 v10, 3, v1"); e("v_sub_u32 v10, 3, v10"); e(f"v_mul_u32_u24 v12, {KCC}, v10")
    e("v_bfe_u32 v10, v1, 5, 1"); e("v_lshlrev_b32 v13, 5, v10"); e("v_sub_u32 v12, v12, v13")
    e("v_bfe_u32 v11, v1, 4, 1"); e("v_lshl_add_u32 v12, v11, 4, v12")
    e("v_bfe_u32 v10, v1, 2, 2"); e("v_lshlrev_b32 v10, 3, v10"); e("v_sub_u32 v12, v12, v10")
    e(f"s_mul_i32 {s(sT+2)}, s4, {KCH}"); e(f"s_lshl_b32 {s(sT+3)}, s5, 8"); e(f"s_sub_u32 {s(sT+2)}, {s(sT+2)}, {s(sT+3)}")
    e(f"s_add_u32 {s(sT+2)}, {s(sT+2)}, {KC + 4088 - 3776}")
    e("v_and_b32 v10, 15, v1"); e("v_lshlrev_b32 v14, 5, v10"); e("v_sub_u32 v14, v14, v13"); e("v_lshl_add_u32 v14, v11, 4, v14")
    e(f"s_mul_i32 {s(sT+4)}, s4, {UP}"); e(f"s_sub_u32 {s(sT+4)}, {s(sT+4)}, {s(sT+3)}")
    e(f"s_add_u32 {s(sT+4)}, {s(sT+4)}, {U0 + 512 - 192}")
    e(f"v_add_u32 v16, {s(sT+2)}, v12"); e(f"v_add_u32 v17, {s(sT+4)}, v14")
    e("v_and_b32 v56, 15, v1"); e("v_lshlrev_b32 v56, 5, v56"); e("v_lshrrev_b32 v13, 4, v1"); e("v_lshl_add_u32 v56, v13, 3, v56")
    e(f"s_lshl_b32 {s(sT+2)}, s5, 11"); e(f"v_add_u32 v56, {s(sT+2)}, v56")
    e(f"s_mul_i32 {s(sT+3)}, s4, {UP}"); e(f"s_add_u32 {s(sT+3)}, {s(sT+3)}, {U0+512}"); e(f"v_add_u32 v57, {s(sT+3)}, v56")
    e(f"s_lshl_b32 {s(sT+3)}, s4, 12"); e(f"s_add_u32 {s(sT+3)}, {s(sT+3)}, {X0}"); e(f"v_add_u32 v58, {s(sT+3)}, v56")
    e(f"s_lshl_b32 {s(sT+2)}, {s(sWAVE)}, 12"); e(f"s_add_u32 {s(sT+2)}, {s(sT+2)}, {RED}"); e(f"v_lshl_add_u32 v59, v1, 4, {s(sT+2)}")
    e(f"s_xor_b32 {s(sT+2)}, {s(sWAVE)}, 1"); e(f"s_lshl_b32 {s(sT+2)}, {s(sT+2)}, 12"); e(f"s_add_u32 {s(sT+2)}, {s(sT+2)}, {RED}")
    e(f"v_lshl_add_u32 v60, v1, 4, {s(sT+2)}")
    xo = XT1 if layer == 1 else XT3
    e(f"s_lshl_b32 s6, {s(sCP)}, 1"); e("s_add_u32 s6, s6, s4"); e(f"s_mul_i32 s6, s6, {PITCH}"); e(f"s_add_u32 s6, s6, {xo}")
    e("v_lshlrev_b32 v10, 4, v0"); e(f"v_add_u32 v61, {U0 + 512}, v10"); e(f"v_add_u32 v62, {X0}, v10")
    e("v_lshlrev_b32 v63, 4, v0")
    l0 = lab("zp")
    e(f"s_cmp_lg_u32 {s(sWAVE)}, 1"); e(f"s_cbranch_scc1 {l0}")
    e("v_lshrrev_b32 v11, 5, v1"); e(f"v_mul_u32_u24 v11, {UP}, v11"); e("v_and_b32 v12, 31, v1"); e("v_lshl_add_u32 v11, v12, 4, v11")
    e(f"v_add_u32 v11, {U0}, v11")
    e("v_mov_b32 v12, 0"); e("v_mov_b32 v13, 0"); e("v_mov_b32 v14, 0"); e("v_mov_b32 v15, 0")
    e("ds_write_b128 v11, v[12:15]")
    A.label(l0)
    XX = 40; F = 64
    if layer == 1:
        e("v_lshlrev_b32 v18, 4, v1")
        e(f"s_lshl_b32 {s(sW)}, {s(sJ)}, 2"); e(f"s_add_u32 {s(sW)}, {s(sW)}, {s(sWAVE)}")
        e(f"s_mul_i32 {s(sW)}, {s(sW)}, 49152"); e(f"s_add_u32 {s(sW)}, {s(sW)}, {WFG}")
    else:
        e(f"s_lshl_b32 s7, {s(sCP)}, 7"); e(f"s_add_u32 s7, s7, {X2T}")
        e("v_lshrrev_b32 v19, 2, v0"); e(f"v_mul_u32_u24 v19, {ROP}, v19"); e("v_and_b32 v10, 3, v0"); e("v_lshl_add_u32 v19, v10, 4, v19")

def conv(layer):
    XX = 40; SB = 24; F = 64; UU = 48
    if layer == 2:
        if int(OPTS.get("cpre", 4)): e(f"s_sleep {OPTS.get('cpre', 4)}")
        e(f"s_add_u32 {s(sT)}, s7, {U2T - X2T}")
        lr = lab("cu"); lg = lab("cuk")
        A.label(lr)
        e(f"buffer_load_dwordx4 {v(UU,4)}, v19, {s(sSRD,4)}, {s(sT)} offen sc1")
        e(f"buffer_load_dwordx4 {v(UU+4,4)}, v19, {s(sSRD,4)}, {s(sT)} offen offset:64 sc1")
        e("s_waitcnt vmcnt(0)")
        e(f"v_max_u32 v10, {v(UU)}, {v(UU+4)}")
        e("v_cmp_eq_u32 vcc, -1, v10")
        spin_check(lr, lg, bk=2, cid=1)
        for c in range(2): e(f"ds_write_b128 v61, {v(UU+4*c,4)} offset:{UP*c}")
        for c in range(2):
            e(f"s_lshl_b32 {s(sT+2)}, {s(sWAVE)}, 10"); e(f"s_add_u32 m0, {s(sT+2)}, {X0 + 4096*c}")
            e(f"s_add_u32 {s(sT+3)}, s7, {64*c}")
            e(f"buffer_load_dwordx4 v19, {s(sSRD,4)}, {s(sT+3)} offen sc1 lds")
    else:
        b1_issue()
        for i in range(8):
            e(f"v_and_b32 {v(SB+2*i+1)}, {s(sHI)}, {v(SB+2*i)}"); e(f"v_lshlrev_b32 {v(SB+2*i)}, 16, {v(SB+2*i)}")
        for i in range(8): e(f"v_rcp_f32 {v(SB+2*i+1)}, {v(SB+2*i+1)}")
        e("s_waitcnt vmcnt(1)")
        for i in range(8):
            j, hi = i >> 1, i & 1
            for c in range(2):
                if hi: e(f"v_and_b32 {v(F+2*i+c)}, {s(sHI)}, {v(XX+4*c+j)}")
                else: e(f"v_lshlrev_b32 {v(F+2*i+c)}, 16, {v(XX+4*c+j)}")
        e(f"ds_write_b128 v62, {v(XX,4)}"); e(f"ds_write_b128 v62, {v(XX+4,4)} offset:4096")
    stamp(f"c{layer}_ld")
    if layer == 1:
        for i in range(8):
            e(f"v_pk_add_f32 {v(F+2*i,2)}, {v(F+2*i,2)}, {v(SB+2*i,2)} op_sel_hi:[1,0] neg_lo:[0,1] neg_hi:[0,1]")
        for i in range(8): e(f"v_cvt_pk_bf16_f32 {v(80+i)}, {v(F+2*i)}, {v(F+2*i+1)}")
        for i in range(8):
            e(f"v_lshlrev_b32 {v(F+2*i)}, 16, {v(80+i)}"); e(f"v_and_b32 {v(F+2*i+1)}, {s(sHI)}, {v(80+i)}")
        for i in range(8):
            e(f"v_pk_mul_f32 {v(F+2*i,2)}, {v(F+2*i,2)}, {v(SB+2*i,2)} op_sel:[0,1] op_sel_hi:[1,1]")
        for c in range(2):
            for j in range(4): e(f"v_cvt_pk_bf16_f32 {v(UU+4*c+j)}, {v(F+4*j+c)}, {v(F+4*j+2+c)}")
            e(f"ds_write_b128 v61, {v(UU+4*c,4)} offset:{UP*c}")
    trick = gw_loads() if layer == 1 else []
    e("s_waitcnt lgkmcnt(0)"); e("s_barrier")
    if layer == 1: b1_check()
    stamp(f"c{layer}_pro")
    vA, vB = 16, 17
    ACC = 24; SET = [64, 128]
    def loads(tp, st):
        out = []
        seq = []
        for k in range(8):
            seq.append(f"ds_read_b128 {v(SET[st]+32+4*k,4)}, {v(vB)} offset:{512*k + 64*(3 - tp)}")
            o = 64*(3 - tp) + 512*(7 - k)
            seq.append(f"ds_read_b64 {v(SET[st]+4*k,2)}, {v(vA)} offset:{o}")
            seq.append(f"ds_read_b64 {v(SET[st]+4*k+2,2)}, {v(vA)} offset:{o + 8}")
        return seq
    for l in loads(0, 0): e(l)
    ti = 0; nm = 0
    TRK = int(OPTS.get("trk", 3))
    e(f"s_mov_b32 {s(sT+4)}, {s(sDSKV)}"); e(f"s_mov_b32 {s(sT+5)}, {s(sDSKV)}")
    side = []
    for k in range(4):
        side.append(f"ds_read_b64 {v(64+2*k,2)}, v57 offset:{512*k}"); side.append(f"ds_read_b64 {v(72+2*k,2)}, v58 offset:{512*k}")
    side2 = ["s_waitcnt lgkmcnt(0)"]
    for k in range(4):
        for j in range(2):
            side2 += [f"v_lshlrev_b32 {v(96+4*k+2*j)}, 16, {v(64+2*k+j)}", f"v_and_b32 {v(97+4*k+2*j)}, {s(sHI)}, {v(64+2*k+j)}",
                      f"v_lshlrev_b32 {v(112+4*k+2*j)}, 16, {v(72+2*k+j)}", f"v_and_b32 {v(113+4*k+2*j)}, {s(sHI)}, {v(72+2*k+j)}"]
    for k in range(8): side2.append(f"v_pk_fma_f32 {v(96+2*k,2)}, {v(96+2*k,2)}, {s(sT+4,2)}, {v(112+2*k,2)}")
    fills = fill_groups(2, 61, 62) if layer == 2 else []
    hold = [0]; nfs = [0]
    for tp in range(4):
        st = tp & 1
        nxt = loads(tp + 1, st ^ 1) if tp < 3 else []
        n = 0; nb = 0
        for T in range(8):
            if tp == 0: e(f"s_waitcnt lgkmcnt({min(15, 24 - (3*T+3) + min(n, len(nxt)))})")
            elif T == 0:
                e("s_waitcnt lgkmcnt(0)")
                if layer == 2 and tp == 2:
                    e(f"s_waitcnt vmcnt({min(63, nfs[0])})"); e("s_barrier")
            for q in range(T + 1):
                c_ = "0" if (tp == 0 and q == 0) else v(ACC+4*T, 4)
                e(f"v_mfma_f32_16x16x32_bf16 {v(ACC+4*T,4)}, {v(SET[st]+4*q,4)}, {v(SET[st]+32+4*(T-q),4)}, {c_}")
                nm += 1; nb += 1
                if not (tp == 0 and T < 3) and n < len(nxt):
                    e(nxt[n]); n += 1
                if tp == 3:
                    if nb <= 8: e(side.pop(0))
                    elif nb > 12:
                        for _ in range(2):
                            if side2: e(side2.pop(0))
                if ti < len(trick) and nm % TRK == 0:
                    for l in trick[ti]: e(l)
                    ti += 1
                elif fills and tp < 3 and (nb > 2 or tp > 0):
                    if hold[0] > 0: hold[0] -= 1
                    else:
                        g = fills.pop(0); emit_group(g)
                        if any("buffer_store" in l for l in g): hold[0] = int(OPTS.get('fh', 5))
                        nfs[0] += 0
        while n < len(nxt): e(nxt[n]); n += 1
    assert not fills
    while side2: e(side2.pop(0))
    stamp(f"c{layer}_mm")
    lp1 = lab("p1"); lj = lab("pj")
    e("s_cmp_eq_u32 s5, 1"); e(f"s_cbranch_scc1 {lp1}")
    e("s_nop 3")
    for k in range(4): e(f"ds_write_b128 v59, {v(ACC+16+4*k,4)} offset:{1024*k}")
    e(f"s_branch {lj}")
    A.label(lp1)
    for k in range(4): e(f"ds_write_b128 v59, {v(ACC+4*k,4)} offset:{1024*k}")
    e("s_nop 3")
    for k in range(8): e(f"v_mov_b64 {v(ACC+2*k,2)}, {v(ACC+16+2*k,2)}")
    A.label(lj)
    for k in range(8):
        e(f"v_pk_add_f32 {v(96+2*k,2)}, {v(96+2*k,2)}, {v(ACC+2*k,2)}")
    e("s_waitcnt lgkmcnt(0)"); e("s_barrier")
    for k in range(4): e(f"ds_read_b128 {v(80+4*k,4)}, v60 offset:{1024*k}")
    e(f"s_waitcnt vmcnt({min(63, ti) if layer == 1 else 0})")
    for k in range(4):
        e(f"s_waitcnt lgkmcnt({3-k})")
        e(f"v_pk_add_f32 {v(96+4*k,2)}, {v(96+4*k,2)}, {v(80+4*k,2)}"); e(f"v_pk_add_f32 {v(98+4*k,2)}, {v(98+4*k,2)}, {v(82+4*k,2)}")
        e(f"v_cvt_pk_bf16_f32 {v(64+2*k)}, {v(96+4*k)}, {v(97+4*k)}"); e(f"v_cvt_pk_bf16_f32 {v(65+2*k)}, {v(98+4*k)}, {v(99+4*k)}")
        e(f"buffer_store_dwordx2 {v(64+2*k,2)}, v56, {s(sSRD,4)}, s6 offen offset:{512*k} sc1")
    return trick[ti:]

NCSK, NCSV, NCSQ = 2, 4, 6
XRES = 184
def ones_regs(r):
    for i in range(4): e(f"v_mov_b32 {v(r+i)}, 0x3f803f80")
def colsums():
    ON = 152
    for ks in range(16):
        c0 = lambda r: "0" if ks == 0 else v(r, 4)
        e(f"v_mfma_f32_16x16x32_bf16 v[28:31], {v(ON,4)}, {a((0*16+ks)*4,4)}, {c0(28)}")
        e(f"v_mfma_f32_16x16x32_bf16 v[32:35], {v(ON,4)}, {a((1*16+ks)*4,4)}, {c0(32)}")
        e(f"v_mfma_f32_16x16x32_bf16 v[36:39], {a((2*16+ks)*4,4)}, {v(ON,4)}, {c0(36)}")
    e(f"v_sub_f32 {v(NCSK)}, 0, v28"); e(f"v_sub_f32 {v(NCSK+1)}, 0, v28")
    e(f"v_sub_f32 {v(NCSV)}, 0, v32"); e(f"v_sub_f32 {v(NCSV+1)}, 0, v32")
    for i in range(4): e(f"v_sub_f32 {v(NCSQ+i)}, 0, {v(36+i)}")

TA = 12
gXE, gXO, gSW, gS4, gQA, gPQ, gKV = 156, 157, 158, 160, 164, 168, 169
def g_setup(layer):
    xt = XT1 if layer == 1 else XT3
    e("v_lshrrev_b32 v10, 3, v1"); e(f"v_mul_u32_u24 v10, {PITCH}, v10")
    e("v_bfe_u32 v11, v1, 4, 2"); e("v_lshlrev_b32 v11, 1, v11"); e("v_and_b32 v16, 7, v1"); e("v_xor_b32 v11, v11, v16")
    e("v_lshl_add_u32 v10, v11, 4, v10")
    e(f"s_lshl_b32 {s(sT)}, {s(sRS)}, 7"); e(f"v_add_u32 v19, {s(sT)}, v10")
    e(f"s_mul_i32 s4, {s(sWAVE)}, {32*PITCH}"); e(f"s_add_u32 s4, s4, {xt}")
    e(f"s_lshl_b32 s5, {s(sWAVE)}, 12"); e(f"s_add_u32 s5, s5, {AT}")
    e("v_lshrrev_b32 v10, 2, v1"); e("v_lshlrev_b32 v10, 7, v10"); e("v_and_b32 v11, 3, v1"); e("v_lshl_add_u32 v10, v11, 3, v10")
    e(f"v_add_u32 v10, {AT}, v10"); e("v_bfe_u32 v11, v1, 3, 2")
    for j in range(4):
        e(f"s_add_u32 {s(sT)}, {s(sWAVE)}, {j}"); e(f"s_and_b32 {s(sT)}, {s(sT)}, 3"); e(f"s_lshl_b32 {s(sM+j)}, {s(sT)}, 6")
        e(f"v_xor_b32 v16, {s(sT)}, v11"); e(f"v_lshl_add_u32 {v(TA+j)}, v16, 5, v10")
    ones_regs(152)
    e("v_lshrrev_b32 v11, 5, v1"); e("v_lshlrev_b32 v11, 4, v11"); e("v_bfe_u32 v16, v1, 2, 2"); e("v_add_u32 v11, v11, v16")
    e(f"s_lshl_b32 {s(sT)}, {s(sJO)}, 7"); e(f"s_lshl_b32 {s(sT+1)}, {s(sWAVE)}, 5"); e(f"s_add_u32 {s(sT)}, {s(sT)}, {s(sT+1)}")
    e(f"v_add_u32 v11, {s(sT)}, v11"); e("v_lshlrev_b32 v11, 7, v11")
    e("v_and_b32 v16, 3, v1"); e("v_lshl_add_u32 v11, v16, 3, v11"); e(f"v_add_u32 v11, {AT}, v11")
    e(f"s_and_b32 {s(sT)}, {s(sJ)}, 1"); e(f"s_lshl_b32 {s(sT)}, {s(sT)}, 1")
    e("v_bfe_u32 v16, v1, 4, 1"); e(f"v_add_u32 v16, {s(sT)}, v16"); e("v_bfe_u32 v17, v1, 3, 1"); e("v_xor_b32 v16, v16, v17")
    e(f"v_lshl_add_u32 {v(gXE)}, v16, 5, v11"); e("v_xor_b32 v16, 2, v16"); e(f"v_lshl_add_u32 {v(gXO)}, v16, 5, v11")
    e("v_and_b32 v10, 15, v1"); e("v_lshlrev_b32 v10, 2, v10"); e(f"v_add_u32 v11, {ST}, v10")
    e(f"s_lshl_b32 {s(sT)}, {s(sWAVE)}, 6"); e(f"v_add_u32 {v(gSW)}, {s(sT)}, v11")
    e("v_lshrrev_b32 v10, 4, v1"); e("v_lshlrev_b32 v10, 4, v10"); e(f"v_add_u32 v10, {ST}, v10")
    for j in range(4):
        e(f"v_add_u32 {v(gS4+j)}, {s(sM+j)}, v10"); e(f"v_add_u32 {v(gQA+j)}, {s(sM+j)}, v11")
    e("v_and_b32 v10, 15, v1"); e("v_lshlrev_b32 v10, 4, v10"); e("v_bfe_u32 v11, v1, 4, 1"); e("v_lshl_add_u32 v10, v11, 3, v10")
    e("v_lshrrev_b32 v11, 5, v1"); e(f"v_lshl_add_u32 {v(gPQ)}, v11, 10, v10")
    e("v_lshrrev_b32 v10, 4, v1"); e("v_lshlrev_b32 v10, 8, v10"); e("v_and_b32 v11, 15, v1"); e(f"v_lshl_add_u32 {v(gKV)}, v11, 2, v10")
    e(f"v_lshlrev_b32 v183, 2, v1")
    kvp_addr(KVP1 if layer == 1 else KVP2, 6)
    pq_addr(PQ1 if layer == 1 else PQ2, 7)
    e(f"s_lshl_b32 {s(sT)}, {s(sJ)}, 5"); e(f"s_mul_i32 {s(sT)}, {s(sT)}, {KVW}")
    e(f"s_lshr_b32 {s(sT+1)}, {s(sRS)}, 3"); e(f"s_mul_i32 {s(sT+1)}, {s(sT+1)}, {KVH}"); e(f"s_add_u32 {s(sT)}, {s(sT)}, {s(sT+1)}")
    e(f"s_add_u32 s3, {s(sT)}, {KVP1 if layer == 1 else KVP2}")
    e(f"s_and_b32 {s(sT+2)}, {s(sRS)}, 7")
    e(f"s_cmp_eq_u32 {s(sWAVE)}, 2")
    e(f"s_cselect_b32 {s(sT+3)}, 3, 7"); e(f"s_cselect_b32 {s(sT+4)}, 1, 0")
    e(f"s_mov_b32 s42, 0x0f0f0f0f"); e("s_cselect_b32 s42, s42, -1"); e("s_mov_b32 s43, s42")
    e(f"s_lshl_b32 {s(sT+5)}, {s(sT+2)}, 7"); e(f"s_cmp_eq_u32 {s(sWAVE)}, 2"); e(f"s_cselect_b32 {s(sT+5)}, 1024, {s(sT+5)}")
    e(f"s_lshl_b32 {s(sT+6)}, {s(sT+2)}, 6"); e(f"s_cselect_b32 {s(sT+6)}, 512, {s(sT+6)}") if False else None
    e("v_lshrrev_b32 v10, 3, v1"); e(f"v_mul_u32_u24 v10, {KVW}, v10"); e(f"v_and_b32 v11, {s(sT+3)}, v1"); e("v_lshl_add_u32 v11, v11, 4, v10")
    e(f"v_add_u32 v170, {s(sT+5)}, v11")
    e(f"s_lshl_b32 {s(sT+6)}, {s(sT+2)}, 6"); e(f"s_cmp_eq_u32 {s(sWAVE)}, 2"); e(f"s_cselect_b32 {s(sT+6)}, 512, {s(sT+6)}")
    e("v_lshrrev_b32 v10, 3, v1"); e(f"v_mul_u32_u24 v10, {FRP}, v10"); e("v_and_b32 v11, 7, v1"); e("v_lshl_add_u32 v10, v11, 3, v10")
    e(f"v_add_u32 v171, {s(sT+6)}, v10")
    f_addr(F1 if layer == 1 else F2, 40)
    e(f"s_cmp_eq_u32 {s(sT+2)}, 0"); e(f"s_cselect_b32 {s(sT+3)}, 2, 3"); e(f"s_cmp_ge_u32 {s(sWAVE)}, {s(sT+3)}"); e("s_cselect_b32 s41, 1, 0")
    e("v_and_b32 v10, 3, v1")
    e(f"v_cmp_eq_u32 {s(sM+4,2)}, 1, v10"); e(f"v_cmp_eq_u32 {s(sM+6,2)}, 2, v10"); e(f"v_cmp_eq_u32 s[2:3], 3, v10") if False else None
    if layer == 1:
        e("v_lshlrev_b32 v18, 4, v1")
        e(f"s_lshl_b32 {s(sW)}, {s(sJO)}, 2"); e(f"s_add_u32 {s(sW)}, {s(sW)}, {s(sWAVE)}")
        e(f"s_lshl_b32 {s(sW)}, {s(sW)}, 15"); e(f"s_add_u32 {s(sW)}, {s(sW)}, {WFO}")

def gphase(layer):
    kvp = KVP1 if layer == 1 else KVP2
    ff = F1 if layer == 1 else F2
    def dma(c, i):
        return [f"s_add_u32 {s(sT)}, s4, {(128*c + 8*i)*PITCH}", f"s_add_u32 m0, s5, {c*16384 + i*1024}",
                f"buffer_load_dwordx4 v19, {s(sSRD,4)}, {s(sT)} offen sc1 lds"]
    e(f"v_lshl_add_u32 v21, v1, 4, s5")
    def check_reads(c): return [f"ds_read_b32 {v(56+i)}, v21 offset:{c*16384 + i*1024}" for i in range(4)]
    def validate(c, first=False):
        lr = lab("gv"); lg = lab("gvk"); lx = lab("gvx")
        A.label(lr)
        for l in check_reads(c): e(l)
        e("s_waitcnt lgkmcnt(0)")
        maxtree([56, 57, 58, 59], 56)
        e("v_cmp_eq_u32 vcc, -1, v56")
        e(f"s_cbranch_vccz {lg}")
        e(f"s_sub_u32 {s(sSPIN)}, {s(sSPIN)}, 1"); e(f"s_cbranch_scc1 {lx}")
        if OPTS.get("cntv"): e(f"s_add_u32 s{96 if c == 0 else 98}, s{96 if c == 0 else 98}, 1")
        if int(OPTS.get("vbk", 4)): e(f"s_sleep {OPTS.get('vbk', 4)}")
        if first:
            for cc in range(3):
                for i in range(4):
                    for l in dma(cc, i): e(l)
            e("s_waitcnt vmcnt(8)")
        else:
            for i in range(4):
                for l in dma(c, i): e(l)
            e("s_waitcnt vmcnt(0)")
        e(f"s_branch {lr}")
        A.label(lx); e(f"s_mov_b32 {s(sSPIN)}, 0")
        A.label(lg)
    e("s_barrier")
    if int(OPTS.get("gpre", 0)): e(f"s_sleep {OPTS.get('gpre')}")
    for c in range(3):
        for i in range(4):
            for l in dma(c, i): e(l)
    late = [dma(3, i) for i in range(4)]
    XF = [64, 80]
    AK, AV, AQ, GR, RS_, ON = 96, 112, 128, 144, 148, 152
    trick = ow_loads() if layer == 1 else []
    if layer == 1:
        for i in range(4): e(f"v_mov_b32 {v(176+i)}, -1")
        e(f"s_lshr_b32 s62, {s(sWAVE)}, 1"); e(f"s_lshl_b32 s61, {s(sCP)}, 1"); e("s_add_u32 s62, s62, s61"); e(f"s_mul_i32 s62, s62, {PITCH}")
        e(f"s_and_b32 s61, {s(sWAVE)}, 1"); e("s_lshl_b32 s61, s61, 11"); e("s_add_u32 s62, s62, s61"); e(f"s_add_u32 s62, s62, {XT3}")
        e(f"s_lshl_b32 s63, {s(sJO)}, 7"); e(f"s_lshl_b32 s61, {s(sWAVE)}, 5"); e("s_add_u32 s63, s63, s61"); e("s_lshl_b32 s63, s63, 6")
        e(f"s_mul_i32 s61, {s(sRO)}, {ROP}"); e("s_add_u32 s63, s63, s61"); e(f"s_add_u32 s63, s63, {U2T}")
        e(f"s_lshl_b32 s60, {s(sRO)}, 2"); e(f"s_add_u32 s60, s60, {s(sJO)}"); e("s_lshl_b32 s60, s60, 8"); e(f"s_add_u32 s60, s60, {SP}")
        fl = [[f"buffer_store_dwordx4 v[176:179], v18, {s(sSRD,4)}, s62 offen sc1"], [f"buffer_store_dwordx4 v[176:179], v18, {s(sSRD,4)}, s62 offen offset:1024 sc1"],
              [f"buffer_store_dwordx4 v[176:179], v18, {s(sSRD,4)}, s63 offen sc1"], [f"buffer_store_dwordx4 v[176:179], v18, {s(sSRD,4)}, s63 offen offset:1024 sc1"],
              [f"buffer_store_dword v176, v183, {s(sSRD,4)}, s60 offen sc1"]]
        for i_, g_ in enumerate(fl): trick.insert(2 * i_ + 1, g_)
        LASTFILL = 2 * (len(fl) - 1) + 1
    def reads(ks, base=None):
        b = XF[ks & 1] if base is None else base
        out = []
        for j in range(4):
            out.append(f"ds_read_b64_tr_b16 {v(b+4*j,2)}, {v(TA+j)} offset:{ks*4096}")
            out.append(f"ds_read_b64_tr_b16 {v(b+4*j+2,2)}, {v(TA+j)} offset:{ks*4096+2048}")
        return out
    stamp(f"g{layer}_iss")
    e("s_waitcnt vmcnt(8)")
    validate(0, first=True)
    e("s_barrier")
    stamp(f"g{layer}_ld0")
    for l in reads(0): e(l)
    st_ = {"ti": 0, "nw": 0, "nm": 0}
    TRG = int(OPTS.get("trg", 5))
    def trickle(ok):
        st_["nm"] += 1
        if ok and st_["ti"] < len(trick) and st_["nm"] % TRG == 0:
            for l in trick[st_["ti"]]: e(l)
            st_["ti"] += 1; st_["nw"] += 1
    for ks in range(16):
        nxt = []
        if ks < 15:
            if (ks + 1) % 4 == 0: e("s_barrier")
            nxt = reads(ks + 1)
        x = XF[ks & 1]
        if ks in (2, 3, 4, 6, 7, 8, 10, 11, 12): stamp(f"g{layer}_k{ks}")
        e("s_waitcnt lgkmcnt(0)")
        eval_c = (ks + 2) // 4 if (ks < 14 and (ks + 2) % 4 == 0) else None
        if ks < 13 and (ks + 3) % 4 == 0:
            c = (ks + 3) // 4
            issued3 = 4 - len(late)
            y = {1: 4 + issued3, 2: issued3, 3: 0}[c] + st_["nw"]
            e(f"s_waitcnt vmcnt({min(63, y)})")
            nxt = nxt + check_reads(c)
        z = lambda r: "0" if ks == 0 else v(r, 4)
        mf = []
        for j in range(4):
            mf.append(f"v_mfma_f32_16x16x32_bf16 {v(AK+4*j,4)}, {v(x+4*j,4)}, {a((0*16+ks)*4,4)}, {z(AK+4*j)}")
            mf.append(f"v_mfma_f32_16x16x32_bf16 {v(AV+4*j,4)}, {v(x+4*j,4)}, {a((1*16+ks)*4,4)}, {z(AV+4*j)}")
        mf.insert(1, f"v_mfma_f32_16x16x32_bf16 {v(GR,4)}, {v(x,4)}, {v(x,4)}, {z(GR)}")
        mf.insert(3, f"v_mfma_f32_16x16x32_bf16 {v(RS_,4)}, {v(ON,4)}, {v(x,4)}, {z(RS_)}")
        pend = list(nxt)
        if ks == 15:
            gr = mf.pop(1); rs = mf.pop(2)
            mf = [gr, rs] + mf
            def stats_code():
                e("v_and_b32 v10, 3, v1")
                e(f"v_cmp_eq_u32 {s(sM+4,2)}, 1, v10"); e(f"v_cmp_eq_u32 {s(sM+6,2)}, 2, v10"); e("v_cmp_eq_u32 vcc, 3, v10")
                e(f"v_cndmask_b32 v11, {v(GR)}, {v(GR+1)}, {s(sM+4,2)}")
                e(f"v_cndmask_b32 v11, v11, {v(GR+2)}, {s(sM+6,2)}")
                e(f"v_cndmask_b32 v11, v11, {v(GR+3)}, vcc")
                stats_final(RS_, 11, 16, 17, 20)
                e("v_mul_f32 v16, v16, v17")
            sc = capture(stats_code)
            head, tail = sc[:4], sc[4:]
            pend = []
        for m_i, m_ in enumerate(mf):
            e(m_)
            if ks == 15:
                if m_i in (0, 1):
                    for _ in range(2): e(head.pop(0))
                elif m_i >= 4:
                    for _ in range(4):
                        if tail: e(tail.pop(0))
                if m_i == len(mf) - 1:
                    while tail: e(tail.pop(0))
            if pend: e(pend.pop(0))
            if eval_c is not None:
                if m_i == 2: e("v_max3_u32 v56, v56, v57, v58")
                if m_i == 4: e("v_max_u32 v56, v56, v59")
                if m_i == 6: e("v_cmp_eq_u32 vcc, -1, v56")
            if m_i == len(mf) - 1:
                while pend: e(pend.pop(0))
                if eval_c is not None:
                    lok = lab("gok")
                    e(f"s_cbranch_vccz {lok}")
                    if OPTS.get("cntv"): e(f"s_add_u32 s97, s97, {1 << (8*(eval_c-1))}")
                    for i in range(4):
                        for l in dma(eval_c, i): e(l)
                    e("s_waitcnt vmcnt(0)")
                    validate(eval_c)
                    A.label(lok)
            if late and m_i in (1, 4, 7):
                for l in late.pop(0): e(l)
            trickle(ks >= 4)
    stamp(f"g{layer}_mm")
    e(f"s_mov_b32 {s(sT+2)}, 0x00f0000f"); e(f"s_mov_b32 {s(sT+3)}, 0xf0000f00")
    e(f"s_mov_b64 exec, {s(sT+2,2)}")
    e(f"ds_write_b32 {v(gSW)}, v17"); e(f"ds_write_b32 {v(gSW)}, v16 offset:256")
    e("s_mov_b64 exec, -1")
    for jj in range(4):
        e(f"ds_read_b64_tr_b16 {v(XRES+2*jj,2)}, {v(gXE + (jj & 1))} offset:{512*jj}")
    R4, M4, RQ, MQ = 24, 40, 56, 176
    e("s_waitcnt lgkmcnt(0)"); e("s_barrier")
    for j in range(4):
        e(f"ds_read_b128 {v(R4+4*j,4)}, {v(gS4+j)}"); e(f"ds_read_b128 {v(M4+4*j,4)}, {v(gS4+j)} offset:256")
    for j in range(4):
        e(f"ds_read_b32 {v(RQ+2*j)}, {v(gQA+j)}"); e(f"ds_read_b32 {v(MQ+2*j)}, {v(gQA+j)} offset:256")
    stamp(f"g{layer}_st")
    PK, VV = 72, 80
    def phi2(items):
        for (rp, acc, mp, ncs, dst, T, bro) in items:
            e(f"v_pk_fma_f32 {v(T,2)}, {v(mp,2)}, {v(ncs,2)}, {s(sEPS6,2)}" + (" op_sel_hi:[0,1,1]" if bro else ""))
        for (rp, acc, mp, ncs, dst, T, bro) in items:
            e(f"v_pk_fma_f32 {v(T,2)}, {v(rp,2)}, {v(acc,2)}, {v(T,2)}" + (" op_sel_hi:[0,1,1]" if bro else ""))
        for (rp, acc, mp, ncs, dst, T, bro) in items: e(f"v_pk_mul_f32 {v(T+2,2)}, {v(T,2)}, {s(sLOG2E,2)}")
        for (rp, acc, mp, ncs, dst, T, bro) in items:
            e(f"v_exp_f32 {v(T+2)}, {v(T+2)} clamp"); e(f"v_exp_f32 {v(T+3)}, {v(T+3)} clamp")
        for (rp, acc, mp, ncs, dst, T, bro) in items:
            e(f"v_max_f32 {v(T)}, {s(sEPS6)}, {v(T)}"); e(f"v_max_f32 {v(T+1)}, {s(sEPS6)}, {v(T+1)}")
        for (rp, acc, mp, ncs, dst, T, bro) in items: e(f"v_pk_add_f32 {v(T,2)}, {v(T,2)}, {v(T+2,2)}")
        for (rp, acc, mp, ncs, dst, T, bro) in items: e(f"v_cvt_pk_bf16_f32 {v(dst)}, {v(T)}, {v(T+1)}")
    for j in range(4):
        e(f"s_waitcnt lgkmcnt({min(15, 8 + 2*(3-j))})")
        items = [(R4+4*j+2*hp, AK+4*j+2*hp, M4+4*j+2*hp, NCSK, PK+2*j+hp, 88 + 4*hp, False) for hp in range(2)]
        for hp in range(2):
            T = 104 + 2*hp if False else 172 + 2*hp
            e(f"v_pk_mul_f32 {v(T,2)}, {v(M4+4*j+2*hp,2)}, {v(NCSV,2)}")
        for hp in range(2):
            T = 172 + 2*hp
            e(f"v_pk_fma_f32 {v(T,2)}, {v(R4+4*j+2*hp,2)}, {v(AV+4*j+2*hp,2)}, {v(T,2)}")
        phi2(items)
        for hp in range(2):
            T = 172 + 2*hp
            e(f"v_cvt_pk_bf16_f32 {v(VV+2*j+hp)}, {v(T)}, {v(T+1)}")
        if j == 1:
            e(f"v_mfma_f32_16x16x32_bf16 {v(GR,4)}, {v(VV,4)}, {v(PK,4)}, 0")
            e(f"v_mfma_f32_16x16x32_bf16 {v(RS_,4)}, {v(ON,4)}, {v(PK,4)}, 0")
    e(f"v_mfma_f32_16x16x32_bf16 {v(GR,4)}, {v(VV+4,4)}, {v(PK+4,4)}, {v(GR,4)}")
    e(f"v_mfma_f32_16x16x32_bf16 {v(RS_,4)}, {v(ON,4)}, {v(PK+4,4)}, {v(RS_,4)}")
    PQR = 96
    if layer == 1:
        assert st_["ti"] > LASTFILL
        e(f"s_waitcnt vmcnt({min(63, st_['ti'] - 1 - LASTFILL)}) lgkmcnt(0)")
    e("s_waitcnt lgkmcnt(0)")
    for i in range(4):
        e(f"buffer_store_dword {v(GR+i)}, {v(gKV)}, {s(sSRD,4)}, s6 offen offset:{64*i} sc1")
    e("s_mov_b64 exec, 0xffff")
    e(f"buffer_store_dword {v(RS_)}, v183, {s(sSRD,4)}, s6 offen offset:1024 sc1")
    e("s_mov_b64 exec, -1")
    stamp(f"g{layer}_kv")
    def red_loads():
        for i in range(4):
            e(f"s_add_u32 {s(sT+4)}, s3, {8*i*KVW}")
            e(f"buffer_load_dwordx4 {v(24+4*i,4)}, v170, {s(sSRD,4)}, {s(sT+4)} offen sc1")
    RLK = int(OPTS.get("rlk", 11))
    QS = [64, 80, 112]
    for l in reads(0, QS[0]): e(l)
    for l in reads(1, QS[1]): e(l)
    for ks in range(16):
        nxt = reads(ks + 2, QS[(ks + 2) % 3]) if ks < 14 else []
        x = QS[ks % 3]
        e(f"s_waitcnt lgkmcnt({8 if ks < 15 else 0})")
        z = lambda r: "0" if ks == 0 else v(r, 4)
        if ks == RLK:
            lsk = lab("rl")
            e("s_cmp_eq_u32 s41, 0"); e(f"s_cbranch_scc1 {lsk}")
            red_loads()
            A.label(lsk)
        for j in range(4):
            e(f"v_mfma_f32_16x16x32_bf16 {v(AQ+4*j,4)}, {a((2*16+ks)*4,4)}, {v(x+4*j,4)}, {z(AQ+4*j)}")
            for l in nxt[2*j:2*j+2]: e(l)
            if j % 2 == 0 and st_["ti"] < len(trick):
                for l in trick[st_["ti"]]: e(l)
                st_["ti"] += 1
    stamp(f"g{layer}_q")
    for j in range(0, 4, 2):
        phi2([(RQ+2*(j+jj), AQ+4*(j+jj)+2*hp, MQ+2*(j+jj), NCSQ+2*hp, PQR+2*(j+jj)+hp, 64 + 8*jj + 4*hp, True) for jj in range(2) for hp in range(2)])
    for j in range(4):
        e(f"s_lshl_b32 {s(sT+2)}, {s(sM+j)}, 2"); e(f"s_add_u32 {s(sT+2)}, {s(sT+2)}, s7")
        e(f"buffer_store_dwordx2 {v(PQR+2*j,2)}, {v(gPQ)}, {s(sSRD,4)}, {s(sT+2)} offen sc1")
    for ins in trick[st_["ti"]:]:
        for l in ins: e(l)
    lred = lab("red")
    e("s_cmp_eq_u32 s41, 0"); e(f"s_cbranch_scc1 {lred}")
    lr = lab("rp"); lg = lab("rg"); l0 = lab("r0")
    e(f"s_waitcnt vmcnt({4 + len(trick[st_['ti']:])})")
    e(f"s_branch {l0}")
    A.label(lr)
    red_loads()
    e("s_waitcnt vmcnt(0)")
    A.label(l0)
    maxtree([24, 28, 32, 36], 56)
    e("v_cmp_eq_u32 vcc, -1, v56")
    spin_check(lr, lg, cid=3+layer)
    stamp(f"r{layer}_ok")
    e("v_pk_add_f32 v[24:25], v[24:25], v[28:29]"); e("v_pk_add_f32 v[26:27], v[26:27], v[30:31]")
    e("v_pk_add_f32 v[32:33], v[32:33], v[36:37]"); e("v_pk_add_f32 v[34:35], v[34:35], v[38:39]")
    e("v_pk_add_f32 v[24:25], v[24:25], v[32:33]"); e("v_pk_add_f32 v[26:27], v[26:27], v[34:35]")
    regs = [24, 25, 26, 27]
    for r in regs: e(f"v_add_f32_dpp {v(r)}, {v(r)}, {v(r)} row_ror:8 row_mask:0xf bank_mask:0xf")
    for r in regs: e(f"v_mov_b32 {v(r+4)}, {v(r)}")
    for r in regs: e(f"v_permlane16_swap_b32 {v(r)}, {v(r+4)}")
    for r in regs: e(f"v_add_f32 {v(r)}, {v(r)}, {v(r+4)}")
    for r in regs: e(f"v_mov_b32 {v(r+4)}, {v(r)}")
    for r in regs: e(f"v_permlane32_swap_b32 {v(r)}, {v(r+4)}")
    for r in regs: e(f"v_add_f32 {v(r)}, {v(r)}, {v(r+4)}")
    e("v_cvt_pk_bf16_f32 v28, v24, v25"); e("v_cvt_pk_bf16_f32 v29, v26, v27")
    e("s_mov_b64 exec, s[42:43]")
    e(f"buffer_store_dwordx2 v[28:29], v171, {s(sSRD,4)}, s40 offen sc1")
    e("s_mov_b64 exec, -1")
    A.label(lred)

def ophase(layer):
    pq = PQ1 if layer == 1 else PQ2
    ff = F1 if layer == 1 else F2
    KF, PQF = 24, 56
    e("v_and_b32 v10, 31, v1"); e("v_min_u32 v10, 16, v10")
    e("v_lshlrev_b32 v10, 5, v10"); e("v_lshrrev_b32 v11, 5, v1"); e("v_lshl_add_u32 v10, v11, 4, v10")
    e(f"s_lshl_b32 {s(sT)}, {s(sWAVE)}, 3"); e(f"s_mul_i32 s4, {s(sT)}, {FP}"); e(f"s_add_u32 s4, s4, {ff}")
    e(f"s_mul_i32 {s(sT+1)}, {s(sXCD)}, {FRP}"); e(f"s_add_u32 s4, s4, {s(sT+1)}")
    e("v_and_b32 v11, 31, v1"); e("v_lshlrev_b32 v11, 4, v11"); e("v_lshrrev_b32 v12, 5, v1"); e("v_lshl_add_u32 v11, v12, 10, v11")
    e(f"s_mul_i32 s5, {s(sT)}, {HP}"); e(f"s_add_u32 s5, s5, {pq}")
    e(f"s_lshl_b32 {s(sT+3)}, {s(sRS)}, 11"); e(f"s_add_u32 s5, s5, {s(sT+3)}")
    e(f"s_and_b32 {s(sT+3)}, {s(sRO)}, 1"); e(f"s_lshl_b32 {s(sT+3)}, {s(sT+3)}, 9"); e(f"s_add_u32 s5, s5, {s(sT+3)}")
    e(f"s_mul_i32 s3, {s(sWAVE)}, 5120"); e(f"s_add_u32 s3, s3, {AT + 32768}")
    e("v_add_u32 v10, s3, v10"); e("v_lshlrev_b32 v19, 4, v1")
    e(f"s_lshl_b32 {s(sT)}, {s(sWAVE)}, 13"); e(f"s_add_u32 {s(sT)}, {s(sT)}, {OT}")
    e(f"v_lshl_add_u32 v12, v1, 4, {s(sT)}")
    e(f"v_lshlrev_b32 v13, 4, v1"); e(f"v_add_u32 v13, {OT}, v13")
    if layer == 1:
        e("v_and_b32 v14, 31, v1"); e(f"v_mul_u32_u24 v14, {TBP}, v14"); e("v_lshrrev_b32 v15, 5, v1"); e("v_lshl_add_u32 v14, v15, 5, v14")
        e(f"s_mul_i32 {s(sT+4)}, {s(sWAVE)}, {32*TBP}"); e(f"s_add_u32 {s(sT+4)}, {s(sT+4)}, {TB}"); e(f"v_add_u32 v14, {s(sT+4)}, v14")
        e("v_lshrrev_b32 v15, 4, v1"); e("v_lshlrev_b32 v15, 3, v15"); e("v_bfe_u32 v16, v1, 2, 2"); e("v_add_u32 v15, v15, v16")
        e(f"v_mul_u32_u24 v15, {TBP}, v15"); e("v_and_b32 v16, 3, v1"); e("v_lshl_add_u32 v15, v16, 3, v15"); e(f"v_add_u32 v15, {s(sT+4)}, v15")
        e("v_and_b32 v16, 15, v1"); e(f"v_lshlrev_b32 v16, 6, v16"); e("v_lshrrev_b32 v17, 4, v1"); e("v_lshl_add_u32 v16, v17, 4, v16")
        e(f"s_lshl_b32 s6, {s(sJO)}, 7"); e(f"s_lshl_b32 {s(sT+1)}, {s(sWAVE)}, 5"); e(f"s_add_u32 s6, s6, {s(sT+1)}")
        e(f"s_lshl_b32 s6, s6, 6"); e(f"s_mul_i32 {s(sT+1)}, {s(sRO)}, {ROP}"); e(f"s_add_u32 s6, s6, {s(sT+1)}")
        e(f"s_add_u32 s6, s6, {X2T}")
        e("v_bfe_u32 v17, v1, 1, 2"); e("v_lshlrev_b32 v17, 12, v17"); e("v_bfe_u32 v18, v1, 3, 2"); e("v_lshl_add_u32 v17, v18, 4, v17")
        e("v_and_b32 v18, 1, v1"); e("v_lshl_add_u32 v17, v18, 3, v17"); e("v_lshrrev_b32 v18, 5, v1"); e("v_lshl_add_u32 v17, v18, 2, v17")
        e(f"s_lshl_b32 s7, {s(sRO)}, 6"); e(f"s_add_u32 s7, s7, {S3}")
    else:
        e("v_and_b32 v14, 31, v1"); e("v_lshlrev_b32 v14, 10, v14"); e("v_lshrrev_b32 v15, 5, v1"); e("v_lshl_add_u32 v14, v15, 5, v14")
        e(f"s_lshl_b32 {s(sT)}, {s(sRO)}, 15"); e(f"s_lshl_b32 {s(sT+1)}, {s(sJO)}, 8"); e(f"s_add_u32 {s(sT)}, {s(sT)}, {s(sT+1)}")
        e(f"s_lshl_b32 {s(sT+1)}, {s(sWAVE)}, 6"); e(f"s_add_u32 {s(sT)}, {s(sT)}, {s(sT+1)}")
        e(f"v_add_u32 v14, {s(sT)}, v14")
    XF = 104
    def pq_loads():
        for h in range(8):
            e(f"s_add_u32 {s(sT+3)}, s5, {h*HP}")
            e(f"buffer_load_dwordx4 {v(PQF+4*h,4)}, v11, {s(sSRD,4)}, {s(sT+3)} offen sc1")
    e("s_barrier")
    stamp(f"o{layer}_gate")
    if STAMPS and f"o{layer}_cnt" in STSET: e("s_mov_b32 s101, 0")
    if STAMPS and f"o{layer}_st0" in STSET:
        e("s_waitcnt vmcnt(0)"); stamp(f"o{layer}_st0")
    pq_loads()
    if STAMPS and f"o{layer}_pq" in STSET:
        stamp(f"o{layer}_pqi"); e("s_waitcnt vmcnt(0)"); stamp(f"o{layer}_pq")
    if int(OPTS.get("osl", 0)): e(f"s_sleep {OPTS.get('osl')}")
    lr = lab("of"); lg = lab("ofk")
    A.label(lr)
    for i in range(5):
        e(f"s_add_u32 {s(sT+3)}, s4, {1024*i}"); e(f"s_add_u32 m0, s3, {1024*i}")
        e(f"buffer_load_dwordx4 v19, {s(sSRD,4)}, {s(sT+3)} offen sc1 lds")
    e("s_waitcnt vmcnt(0)")
    for h in range(8): e(f"ds_read_b128 {v(KF+4*h,4)}, v10 offset:{h*FP}")
    e("s_waitcnt lgkmcnt(0)")
    if STAMPS and f"o{layer}_cnt" in STSET: e("s_add_u32 s101, s101, 1")
    maxtree([KF+4*h+o for h in range(8) for o in (0, 2)], 18)
    e("v_cmp_eq_u32 vcc, -1, v18")
    spin_check(lr, lg, cid=1+layer)
    stamp(f"o{layer}_fok")
    if STAMPS and f"o{layer}_cnt" in STSET:
        i = len(stnames); stnames.append(f"o{layer}_cnt"); e(f"s_mov_b32 s{84+i}, s101")
    lr = lab("oq"); lg = lab("oqk")
    A.label(lr)
    maxtree([PQF+4*h+o for h in range(8) for o in (0, 2)], 18)
    e("v_cmp_eq_u32 vcc, -1, v18")
    e(f"s_cbranch_vccz {lg}")
    e(f"s_sub_u32 {s(sSPIN)}, {s(sSPIN)}, 1"); e(f"s_cbranch_scc1 {lg}_x")
    pq_loads()
    e("s_waitcnt vmcnt(0)")
    e(f"s_branch {lr}")
    A.label(lg + "_x"); e(f"s_mov_b32 {s(sSPIN)}, 0")
    A.label(lg)
    stamp(f"o{layer}_ld")
    DB = [88, 104, 120, 136, 152, 168, 24, 56]
    def m1(h): e(f"v_mfma_f32_32x32x16_bf16 {v(DB[h],16)}, {v(KF+4*h,4)}, {v(PQF+4*h,4)}, 0")
    def proc2(h0):
        hs = (h0, h0 + 1)
        for h in hs: e(f"v_add_f32 {v(DB[h]+8)}, {s(sEPS6)}, {v(DB[h]+8)}")
        for h in hs: e(f"v_rcp_f32 {v(DB[h]+8)}, {v(DB[h]+8)}")
        for k in range(4):
            for h in hs: e(f"v_pk_mul_f32 {v(DB[h]+2*k,2)}, {v(DB[h]+2*k,2)}, {v(DB[h]+8,2)} op_sel_hi:[1,0]")
        for h in hs:
            for k in range(4): e(f"v_cvt_pk_bf16_f32 {v(DB[h]+10+k)}, {v(DB[h]+2*k)}, {v(DB[h]+2*k+1)}")
            e(f"ds_write_b128 v12, {v(DB[h]+10,4)} offset:{1024*h}")
    for h in range(6): m1(h)
    proc2(0)
    m1(6); m1(7)
    proc2(2); proc2(4); proc2(6)
    stamp(f"o{layer}_m1")
    e("s_waitcnt lgkmcnt(0)"); e("s_barrier")
    ACC = 24; NB = 8; OF = [56 + 4*i for i in range(NB)]
    for h in range(NB): e(f"ds_read_b128 {v(OF[h],4)}, v13 offset:{1024*h}")
    for k in range(8):
        e(f"v_lshlrev_b32 {v(XF+2*k)}, 16, {v(XRES+k)}"); e(f"v_and_b32 {v(XF+2*k+1)}, {s(sHI)}, {v(XRES+k)}")
    for h in range(32):
        e(f"s_waitcnt lgkmcnt({min(NB-1, 31-h)})")
        w_ = a(192 + 4*h, 4) if h < 16 else v(192 + 4*(h-16), 4)
        c_ = "0" if h == 0 else v(ACC, 16)
        e(f"v_mfma_f32_32x32x16_bf16 {v(ACC,16)}, {w_}, {v(OF[h % NB],4)}, {c_}")
        if h + NB < 32: e(f"ds_read_b128 {v(OF[h % NB],4)}, v13 offset:{1024*(h+NB)}")
    stamp(f"o{layer}_g2")
    for k in range(8): e(f"v_pk_add_f32 {v(XF+2*k,2)}, {v(XF+2*k,2)}, {v(ACC+2*k,2)}")
    PKD = 120
    for k in range(8): e(f"v_cvt_pk_bf16_f32 {v(PKD+k)}, {v(XF+2*k)}, {v(XF+2*k+1)}")
    if layer == 2:
        fl = OPTS.get("outfl", "").replace("_", " ")
        e(f"global_store_dwordx4 v14, {v(PKD,4)}, {s(sOUT,2)} {fl}")
        e(f"global_store_dwordx4 v14, {v(PKD+4,4)}, {s(sOUT,2)} offset:16 {fl}")
        return
    e(f"ds_write_b128 v14, {v(PKD,4)}"); e(f"ds_write_b128 v14, {v(PKD+4,4)} offset:16")
    e(f"v_pk_add_f32 v[64:65], {v(XF,2)}, {v(XF+2,2)}"); e(f"v_pk_mul_f32 v[66:67], {v(XF,2)}, {v(XF,2)}")
    e(f"v_pk_add_f32 v[68:69], {v(XF+4,2)}, {v(XF+6,2)}"); e(f"v_pk_mul_f32 v[70:71], {v(XF+2,2)}, {v(XF+2,2)}")
    for k in range(2, 8):
        e(f"v_pk_fma_f32 {v(66+4*(k&1),2)}, {v(XF+2*k,2)}, {v(XF+2*k,2)}, {v(66+4*(k&1),2)}")
        if k >= 4: e(f"v_pk_add_f32 {v(64+4*(k&1),2)}, {v(64+4*(k&1),2)}, {v(XF+2*k,2)}")
    e("s_waitcnt lgkmcnt(0)")
    for k in range(2):
        e(f"ds_read_b64_tr_b16 {v(80+4*k,2)}, v15 offset:{32*k}")
        e(f"ds_read_b64_tr_b16 {v(82+4*k,2)}, v15 offset:{32*k + 4*TBP}")
    e("v_pk_add_f32 v[64:65], v[64:65], v[68:69]"); e("v_pk_add_f32 v[66:67], v[66:67], v[70:71]")
    e("v_add_f32 v64, v64, v65"); e("v_add_f32 v65, v66, v67")
    e("v_permlane32_swap_b32 v64, v65")
    e("v_add_f32 v64, v64, v65")
    e(f"s_lshl_b32 {s(sT)}, {s(sWAVE)}, 8"); e(f"s_add_u32 {s(sT)}, {s(sT)}, {ST}"); e(f"v_lshl_add_u32 v66, v1, 2, {s(sT)}")
    e("ds_write_b32 v66, v64")
    e("s_waitcnt lgkmcnt(1)")
    if OPTS.get("nox2") != "1":
        e(f"buffer_store_dwordx4 v[80:83], v16, {s(sSRD,4)}, s6 offen sc1")
        e(f"buffer_store_dwordx4 v[84:87], v16, {s(sSRD,4)}, s6 offen offset:1024 sc1")
    e("s_waitcnt lgkmcnt(0)"); e("s_barrier")
    l = lab("osp")
    e(f"s_cmp_lg_u32 {s(sWAVE)}, 0"); e(f"s_cbranch_scc1 {l}")
    e(f"v_lshlrev_b32 v66, 2, v1"); e(f"v_add_u32 v67, {ST}, v66")
    for k in range(4): e(f"ds_read_b32 {v(68+k)}, v67 offset:{256*k}")
    e(f"s_lshl_b32 {s(sT)}, {s(sRO)}, 10"); e(f"s_add_u32 {s(sT)}, {s(sT)}, {SP}")
    e(f"s_lshl_b32 {s(sT+1)}, {s(sJO)}, 8"); e(f"s_add_u32 {s(sT+1)}, {s(sT+1)}, {s(sT)}")
    e("s_waitcnt lgkmcnt(0)")
    e("v_add_f32 v68, v68, v69"); e("v_add_f32 v70, v70, v71"); e("v_add_f32 v68, v68, v70")
    e(f"buffer_store_dword v68, v66, {s(sSRD,4)}, {s(sT+1)} offen sc1")
    if int(OPTS.get("spre", 5)): e(f"s_sleep {OPTS.get('spre', 5)}")
    lr = lab("spp"); lg = lab("spk")
    A.label(lr)
    for k in range(4): e(f"buffer_load_dword {v(72+k)}, v66, {s(sSRD,4)}, {s(sT)} offen offset:{256*k} sc1")
    e("s_waitcnt vmcnt(0)")
    maxtree([72, 73, 74, 75], 76)
    e("v_cmp_eq_u32 vcc, -1, v76")
    spin_check(lr, lg, bk=1, cid=0)
    e("v_add_f32 v72, v72, v73"); e("v_add_f32 v74, v74, v75"); e("v_add_f32 v72, v72, v74")
    e("v_mov_b32 v73, v72")
    e("v_permlane32_swap_b32 v72, v73")
    stats_final(72, 73, 74, 75, 76)
    e("v_and_b32 v67, 31, v1"); e("v_lshlrev_b32 v67, 3, v67"); e(f"v_add_u32 v67, {ST + 1024}, v67")
    e("ds_write_b64 v67, v[74:75]")
    A.label(l)
    for k in range(8):
        e(f"v_lshlrev_b32 {v(XF+2*k)}, 16, {v(PKD+k)}"); e(f"v_and_b32 {v(XF+2*k+1)}, {s(sHI)}, {v(PKD+k)}")
    e("v_and_b32 v67, 31, v1"); e("v_lshlrev_b32 v67, 3, v67"); e(f"v_add_u32 v67, {ST + 1024}, v67")
    e("s_waitcnt lgkmcnt(0)"); e("s_barrier")
    stamp("o1_sp")
    e("ds_read_b64 v[74:75], v67")
    e("s_waitcnt lgkmcnt(0)")
    for k in range(8): e(f"v_pk_add_f32 {v(XF+2*k,2)}, {v(XF+2*k,2)}, v[74:75] op_sel_hi:[1,0] neg_lo:[0,1] neg_hi:[0,1]")
    for k in range(8): e(f"v_cvt_pk_bf16_f32 {v(PKD+k)}, {v(XF+2*k)}, {v(XF+2*k+1)}")
    for k in range(8):
        e(f"v_lshlrev_b32 {v(XF+2*k)}, 16, {v(PKD+k)}"); e(f"v_and_b32 {v(XF+2*k+1)}, {s(sHI)}, {v(PKD+k)}")
    for k in range(8): e(f"v_pk_mul_f32 {v(XF+2*k,2)}, {v(XF+2*k,2)}, v[74:75] op_sel:[0,1] op_sel_hi:[1,1]")
    for k in range(8): e(f"v_cvt_pk_bf16_f32 {v(PKD+k)}, {v(XF+2*k)}, {v(XF+2*k+1)}")
    TB2 = 4 * 32 * TBP
    e(f"ds_write_b128 v14, {v(PKD,4)} offset:{TB2}"); e(f"ds_write_b128 v14, {v(PKD+4,4)} offset:{TB2 + 16}")
    e(f"s_add_u32 s7, s6, {U2T - X2T}")
    e("s_waitcnt lgkmcnt(0)")
    for k in range(2):
        e(f"ds_read_b64_tr_b16 {v(88+4*k,2)}, v15 offset:{TB2 + 32*k}")
        e(f"ds_read_b64_tr_b16 {v(90+4*k,2)}, v15 offset:{TB2 + 32*k + 4*TBP}")
    e("s_waitcnt vmcnt(0) lgkmcnt(0)")
    e(f"buffer_store_dwordx4 v[88:91], v16, {s(sSRD,4)}, s7 offen sc1")
    e(f"buffer_store_dwordx4 v[92:95], v16, {s(sSRD,4)}, s7 offen offset:1024 sc1")

def build():
    prologue()
    stamp("start")
    idx_loads()
    p0_fills()
    stamp("p_iss")
    e("s_waitcnt vmcnt(6)")
    stamp("p_ld")
    p0_x0_write()
    p0_stats()
    e("s_waitcnt vmcnt(4) lgkmcnt(0)"); e("s_barrier")
    p0_x0_store()
    nonce_issue()
    p0_wfrag()
    kgen_setup()
    stamp("p_st")
    kgen_round(["X1", "X2", "Y1"], 0); kgen_round(["Y2"], 0)
    nonce_get(2)
    p0_stats_store()
    sent_regs(20)
    for g in xt_fill_groups(XT1, 3, 10): emit_group(g)
    stamp("p_s1")
    kgen_round(["X1", "X2", "Y1"], 1); kgen_round(["Y2"], 1)
    arrive(0, vm=0)
    stamp("arr1")
    fg = fill_groups(1, 58, 59)
    def upto_store():
        while fg:
            g = fg.pop(0); emit_group(g)
            if any("buffer_store" in l for l in g): return
    upto_store()
    kgen_round(["X1", "X2"], 2); upto_store(); kgen_round(["X1", "X2"], 3); upto_store()
    stamp("k_tab")
    kgen_mm([], upto_store)
    while fg: upto_store()
    e("s_waitcnt lgkmcnt(0)"); e("s_barrier")
    stamp("kgen")
    if stop_here("K"): return
    conv_setup(1)
    stamp("B1")
    rest = conv(1)
    stamp("C1")
    if stop_here("C1"): return
    for ins in rest:
        for l in ins: e(l)
    g_setup(1)
    e(f"s_waitcnt vmcnt({4 if not rest else 0})")
    colsums()
    stamp("B2")
    gphase(1)
    stamp("G1")
    if stop_here("G1"): return
    ophase(1)
    stamp("O1")
    if stop_here("O1"): return
    e("s_barrier")
    conv_setup(2)
    stamp("B4")
    conv(2)
    stamp("C2")
    if stop_here("C2"): return
    g_setup(2)
    stamp("B5")
    gphase(2)
    stamp("G2")
    if stop_here("G2"): return
    ophase(2)
    if STAMPS:
        e("s_waitcnt vmcnt(0)")
        stamp("O2")
        if OPTS.get("cntv"):
            vals = (("sp_cnt", 90), ("u2_cnt", 91), ("f1_cnt", 92), ("f2_cnt", 93), ("r1_cnt", 94), ("r2_cnt", 95), ("c0_cnt", 96), ("slow_cnt", 97))
            for nm, r in vals: e(f"v_mov_b32 v{100+r-90}, s{r}")
            for nm, r in vals:
                i = len(stnames); stnames.append(nm); e(f"v_readfirstlane_b32 s{84+i}, v{100+r-90}")
        stamps_out()

build()
A.label("L_end")
e("s_endpgm")

def rb_int(j):
    u = struct.unpack("<I", struct.pack("<f", float(j)))[0]
    u = (u + 0x7fff + ((u >> 16) & 1)) & 0xffff0000
    return int(struct.unpack("<f", struct.pack("<I", u))[0])
idx = []
for x in range(2064):
    j = 2047 - x
    if j < 0: ent = 1024
    else:
        t = rb_int(j); ent = t if t < 512 else 512 + (t - 512) // 4
    idx.append(2 * ent)

lines, nn = hazard_pass(A.lines)
probs = check_branches(lines)
for p in probs: print("BRANCH HAZARD:", p, file=sys.stderr)
hdr = open("interleave_layers__ssm_conv_s4d__linear_attn_block__prompt.s.ref").read().split("; Override launch")[0]
out = hdr + "; Override launch geometry by editing the next line.\n"
out += f"; @launch grid=(256,1,1) block=(256,1,1) lds={LDS_BYTES}\n"
out += '.amdgcn_target "amdgcn-amd-amdhsa--gfx950"\n.text\n'
out += f".globl {NAME}\n.p2align 8\n.type {NAME},@function\n{NAME}:\n"
out += "\n".join(lines) + "\n"
out += ".p2align 6\n.type L_idx,@object\nL_idx:\n"
for i in range(0, len(idx), 16): out += "  .short " + ", ".join(str(x) for x in idx[i:i+16]) + "\n"
out += "L_tab_end:\n"
out += f""".section .rodata,"a"
.p2align 6
.amdhsa_kernel {NAME}
  .amdhsa_next_free_vgpr 512
  .amdhsa_next_free_sgpr 102
  .amdhsa_accum_offset 256
  .amdhsa_group_segment_fixed_size 0
  .amdhsa_kernarg_size 104
  .amdhsa_user_sgpr_count 2
  .amdhsa_user_sgpr_kernarg_segment_ptr 1
  .amdhsa_system_sgpr_workgroup_id_x 1
  .amdhsa_float_denorm_mode_32 3
.end_amdhsa_kernel
"""
open(sys.argv[1], "w").write(out)
if STAMPS: open(sys.argv[1] + ".names", "w").write(",".join(stnames))
print(f"wrote {sys.argv[1]}: {len(lines)} lines, {nn} nops inserted; WS_USED={WS_USED:#x}", file=sys.stderr)
```

```python
import sys, struct
from asmlib import *

NAME = "interleave_layers__ssm_conv_s4d__linear_attn_block__prompt_kernel"
OPTS = {}
for x in sys.argv[2:]:
    if "=" in x:
        k_, v_ = x.split("="); OPTS[k_] = v_
STOP = OPTS.get("stop")
SPINMAX = int(OPTS.get("spin", 100000))
BK = int(OPTS.get("bk", 2))

PITCH = 4224
S1 = 0x000000
S3 = 0x004000
FP = 640; FRP = 32 * FP + 128; F1 = 0x1200000 - 0x100000; F2 = F1 + 0x40000
STAMP_OFF = 0x020000
X0P = 8192 + 128
CNT = 0x030000
KVP1 = 0x040000; KVH = 1152; KVW = 4 * KVH; KVP2 = KVP1 + 0x128000
WFG = 0x2A0000; WFO = WFG + 0x180000
XSZ = 0x220000
XT1 = 0x4A0000; XT3 = XT1 + XSZ; X2T = XT3 + XSZ
ROP = 32768 + 256
HP = 65536 + 256
PQ1 = X2T + XSZ; PQ2 = PQ1 + 0x210000
X0T = 0x1200000
U2T = 0x1410000
SP = 0x030000
WS_USED = 0x1620000
assert PQ2 + 0x210000 <= F1
KC = 0; KCC = 4160; KCH = 4 * KCC
AT = 66560
MISC = AT + 65536
ST = MISC
WST = MISC + 2048
CT = WST + 8192; CTP = 2080
TB = WST; TBP = 80
LDS_BYTES = 163840
X0S = 147456
TKP = 224; TABC = 256 * TKP
U0 = AT; UP = 4608; X0 = AT + 2 * UP; RED = X0 + 8192
OT = AT

sU, sLOGA, sAIM, sCR, sCI, sLDT, sDSK = 8, 10, 12, 14, 16, 18, 20
sWQKV, sWO, sOUT, sDBG, sWS = 24, 26, 28, 30, 32
sSRD = 36; sSRD2 = 40
sWAVE, sXCD, sIDX, sCP, sRS, sJ, sRO, sJO = 44, 45, 46, 47, 48, 49, 50, 51
sSPIN = 52; sDSKV = 53
sT = 54
sLOG2E = 64; sEPS6 = 66; sM = 68; sHI = 76; sPC = 78; sINV512 = 80
sW = 34
sNON = 35

def f2u(f): return struct.unpack("<I", struct.pack("<f", f))[0]
A = Asm(); e = A.e
uid = [0]
def lab(p):
    uid[0] += 1; return f"L_{p}_{uid[0]}"

STAMPS = OPTS.get("stamps") == "1"
DEFSET = "start,arr1,kgen,B1,c1_pro,C1,B2,g1_kv,G1,o1_ld,O1,B4,c2_pro,C2,B5,G2,o2_ld,O2"
STSET = OPTS.get("st", DEFSET).split(",")
stnames = []
def stamp(name):
    if not STAMPS or name not in STSET: return
    i = len(stnames); stnames.append(name); assert i < 18
    e(f"{'s_memtime' if OPTS.get('clk') == '1' else 's_memrealtime'} s[82:83]"); e("s_waitcnt lgkmcnt(0)"); e(f"s_mov_b32 s{84+i}, s82")
def stamps_out():
    if not STAMPS: return
    if OPTS.get("dbgout"):
        l = lab("so")
        e(f"s_cmp_lg_u32 {s(sWAVE)}, 0"); e(f"s_cbranch_scc1 {l}")
        e(f"s_cmp_lg_u32 s2, {OPTS.get('dbgout')}"); e(f"s_cbranch_scc1 {l}")
        e("s_mov_b64 exec, 1")
        words = [2, 3, 5, 6, 7, 9, 10, 11, 13, 14, 15]
        for i in range(1, min(len(stnames), 12)):
            e(f"s_sub_u32 {s(sT)}, s{84+i}, s84")
            e(f"v_mov_b32 v10, {s(sT)}"); e(f"v_mov_b32 v11, {4*words[i-1]}")
            e(f"global_store_dword v11, v10, {s(sDBG,2)}")
        e("s_mov_b64 exec, -1")
        A.label(l)
        return
    l = lab("so")
    e(f"s_cmp_lg_u32 {s(sWAVE)}, {OPTS.get('stw', '0')}"); e(f"s_cbranch_scc1 {l}")
    e(f"s_lshl_b32 {s(sT)}, s2, 7"); e(f"s_add_u32 {s(sT)}, {s(sT)}, {STAMP_OFF}")
    e("s_mov_b64 exec, 1")
    for i in range(len(stnames)):
        e(f"v_mov_b32 v10, s{84+i}"); e(f"v_mov_b32 v11, {4*i}")
        e(f"buffer_store_dword v10, v11, {s(sSRD,4)}, {s(sT)} offen")
    e("s_mov_b64 exec, -1")
    A.label(l)
def stop_here(name):
    if STOP == name:
        e("s_waitcnt vmcnt(0) lgkmcnt(0)"); e("s_branch L_end"); return True
    return False

def sent_regs(r):
    for i in range(4): e(f"v_mov_b32 {v(r+i)}, -1")
def spin_check(retry, giveup, bk=None, cid=None):
    e(f"s_cbranch_vccz {giveup}")
    if OPTS.get("cntv") and cid is not None: e(f"s_add_u32 s{90+cid}, s{90+cid}, 1")
    bk = BK if bk is None else bk
    if bk: e(f"s_sleep {bk}")
    e(f"s_sub_u32 {s(sSPIN)}, {s(sSPIN)}, 1")
    e(f"s_cbranch_scc0 {retry}")
    e(f"s_mov_b32 {s(sSPIN)}, 0")
    A.label(giveup)
def maxtree(regs, dst):
    regs = list(regs); cur = regs.pop(0)
    while regs:
        if len(regs) >= 2:
            e(f"v_max3_u32 {v(dst)}, {v(cur)}, {v(regs[0])}, {v(regs[1])}"); regs = regs[2:]
        else:
            e(f"v_max_u32 {v(dst)}, {v(cur)}, {v(regs[0])}"); regs = []
        cur = dst

def arrive(k, vm=0):
    e(f"s_waitcnt vmcnt({vm}) lgkmcnt(0)"); e("s_barrier")
    l = lab("arr")
    e(f"s_cmp_lg_u32 {s(sWAVE)}, 0"); e(f"s_cbranch_scc1 {l}")
    e(f"s_and_b32 {s(sT)}, s2, 15"); e(f"s_lshl_b32 {s(sT)}, {s(sT)}, {4 if k == 0 else 12}")
    if k: e(f"s_add_u32 {s(sT)}, {s(sT)}, {CNT}")
    e(f"v_mov_b32 v10, {s(sT)}"); e("v_mov_b32 v11, 1")
    e("s_mov_b64 exec, 1")
    e(f"global_atomic_add v10, v11, {s(sDBG if k == 0 else sWS,2)}")
    e("s_mov_b64 exec, -1")
    A.label(l)
def wait(k, pre=0):
    l = lab("wt"); lp = lab("poll")
    e(f"s_cmp_lg_u32 {s(sWAVE)}, 0"); e(f"s_cbranch_scc1 {l}")
    e("v_and_b32 v10, 15, v0"); e(f"v_lshlrev_b32 v10, {4 if k == 0 else 12}, v10")
    if k: e(f"v_add_u32 v10, {CNT}, v10")
    e(f"s_movk_i32 {s(sT+1)}, {16 * max(k, 1)}")
    if pre: e(f"s_sleep {pre}")
    A.label(lp)
    e(f"global_load_dword v11, v10, {s(sDBG if k == 0 else sWS,2)} sc1")
    e("s_waitcnt vmcnt(0)")
    e(f"v_cmp_gt_u32 vcc, {s(sT+1)}, v11")
    spin_check(lp, l, bk=int(OPTS.get("wbk", 0)))
    e("s_barrier")

def cmul(d, x, w, t):
    return [f"v_pk_mul_f32 {v(t,2)}, {v(x,2)}, {v(w,2)} op_sel_hi:[1,0]",
            f"v_pk_fma_f32 {v(d,2)}, {v(x,2)}, {v(w,2)}, {v(t,2)} op_sel:[1,1,0] op_sel_hi:[0,1,1] neg_lo:[0,1,0]"]
def bf16r(dst, src):
    e(f"v_cvt_pk_bf16_f32 {v(dst)}, {v(src)}, {v(src)}"); e(f"v_lshlrev_b32 {v(dst)}, 16, {v(dst)}")
def stats_final(vsum, vsq, vm, vr, t, rcp=True):
    e(f"v_mul_f32 {v(t)}, {s(sINV512)}, {v(vsum)}")
    e(f"v_mul_f32 {v(t+1)}, {s(sINV512)}, {v(vsq)}")
    e(f"v_fma_f32 {v(t+1)}, -{v(t)}, {v(t)}, {v(t+1)}")
    e(f"v_max_f32 {v(t+1)}, 0, {v(t+1)}")
    e(f"v_cvt_pk_bf16_f32 {v(t)}, {v(t)}, {v(t+1)}")
    e(f"v_and_b32 {v(t+1)}, {s(sHI)}, {v(t)}"); e(f"v_lshlrev_b32 {v(vm)}, 16, {v(t)}")
    e(f"v_add_f32 {v(t+1)}, 0x3727c5ac, {v(t+1)}")
    bf16r(t + 1, t + 1)
    e(f"v_sqrt_f32 {v(t+1)}, {v(t+1)}")
    if rcp:
        bf16r(t + 1, t + 1)
        e(f"v_rcp_f32 {v(vr)}, {v(t+1)}")
    else:
        bf16r(vr, t + 1)

def kvp_addr(kvp, dst):
    e(f"s_lshl_b32 {s(dst)}, {s(sJ)}, 5"); e(f"s_add_u32 {s(dst)}, {s(dst)}, {s(sRS)}"); e(f"s_lshl_b32 {s(dst)}, {s(dst)}, 2")
    e(f"s_add_u32 {s(dst)}, {s(dst)}, {s(sWAVE)}"); e(f"s_mul_i32 {s(dst)}, {s(dst)}, {KVH}"); e(f"s_add_u32 {s(dst)}, {s(dst)}, {kvp}")
def f_addr(f, dst):
    e(f"s_lshr_b32 {s(dst)}, {s(sRS)}, 3"); e(f"s_lshl_b32 {s(sT+9)}, {s(sJ)}, 2"); e(f"s_add_u32 {s(dst)}, {s(dst)}, {s(sT+9)}")
    e(f"s_mul_i32 {s(dst)}, {s(dst)}, {FP}"); e(f"s_add_u32 {s(dst)}, {s(dst)}, {f}")
def pq_addr(pq, dst):
    e(f"s_lshl_b32 {s(dst)}, {s(sJ)}, 2"); e(f"s_add_u32 {s(dst)}, {s(dst)}, {s(sWAVE)}")
    e(f"s_mul_i32 {s(dst)}, {s(dst)}, {HP}"); e(f"s_lshl_b32 {s(sT+9)}, {s(sRS)}, 11"); e(f"s_add_u32 {s(dst)}, {s(dst)}, {s(sT+9)}")
    e(f"s_add_u32 {s(dst)}, {s(dst)}, {pq}")
def capture(fn):
    n = len(A.lines); fn(); out = [l.strip() for l in A.lines[n:]]; del A.lines[n:]
    return out
def fill_groups(layer, va, vb):
    S = 20; P1, K1, FF = 40, 41, 42
    pq = PQ1 if layer == 1 else PQ2; kvp = KVP1 if layer == 1 else KVP2; ff = F1 if layer == 1 else F2
    G = []
    def grp(fn): G.append(capture(fn))
    def single(fn):
        for l in capture(fn): G.append([l])
    single(lambda: sent_regs(S))
    def addr():
        e(f"s_lshl_b32 s{P1}, {s(sJ)}, 2"); e(f"s_add_u32 s{P1}, s{P1}, {s(sWAVE)}"); e(f"s_mul_i32 s{P1}, s{P1}, {HP}")
        e(f"s_lshl_b32 s61, {s(sRS)}, 11"); e(f"s_add_u32 s{P1}, s{P1}, s61"); e(f"s_add_u32 s{P1}, s{P1}, {pq}")
        e(f"s_lshl_b32 s{K1}, {s(sJ)}, 5"); e(f"s_add_u32 s{K1}, s{K1}, {s(sRS)}"); e(f"s_lshl_b32 s{K1}, s{K1}, 2")
        e(f"s_add_u32 s{K1}, s{K1}, {s(sWAVE)}"); e(f"s_mul_i32 s{K1}, s{K1}, {KVH}"); e(f"s_add_u32 s{K1}, s{K1}, {kvp}")
        e(f"s_lshr_b32 s{FF}, {s(sRS)}, 3"); e(f"s_lshl_b32 s61, {s(sJ)}, 2"); e(f"s_add_u32 s{FF}, s{FF}, s61")
        e(f"s_mul_i32 s{FF}, s{FF}, {FP}"); e(f"s_add_u32 s{FF}, s{FF}, {ff}")
        e(f"v_lshlrev_b32 {v(va)}, 4, v1"); e(f"v_lshlrev_b32 {v(vb)}, 2, v1")
    single(addr)
    G.append([f"buffer_store_dwordx4 {v(S,4)}, {v(va)}, {s(sSRD,4)}, s{K1} offen sc1", "MARK"])
    def st2():
        e("s_mov_b32 s62, -1"); e("s_mov_b32 s63, 0"); e("s_mov_b64 exec, s[62:63]")
        e(f"buffer_store_dword {v(S)}, {v(vb)}, {s(sSRD,4)}, s{K1} offen offset:1024 sc1")
        e("s_mov_b64 exec, -1")
    grp(st2)
    G.append([f"buffer_store_dwordx4 {v(S,4)}, {v(va)}, {s(sSRD,4)}, s{P1} offen sc1", "MARK"])
    G.append([f"buffer_store_dwordx4 {v(S,4)}, {v(va)}, {s(sSRD,4)}, s{P1} offen offset:1024 sc1", "MARK"])
    def fslice():
        l = lab("ff")
        e(f"s_cmp_lg_u32 {s(sWAVE)}, 2"); e(f"s_cbranch_scc1 {l}")
        e(f"s_and_b32 s61, {s(sRS)}, 7"); e("s_lshl_b32 s62, s61, 6")
        e(f"v_lshrrev_b32 {v(va)}, 3, v1"); e(f"v_mul_u32_u24 {v(va)}, {FRP}, {v(va)}"); e(f"v_and_b32 {v(vb)}, 7, v1"); e(f"v_lshl_add_u32 {v(va)}, {v(vb)}, 3, {v(va)}")
        e(f"v_add_u32 {v(vb)}, s62, {v(va)}")
        e(f"buffer_store_dwordx2 {v(S,2)}, {v(vb)}, {s(sSRD,4)}, s{FF} offen sc1")
        e("s_cmp_lg_u32 s61, 0"); e(f"s_cbranch_scc1 {l}")
        e("s_mov_b32 s62, 0x0f0f0f0f"); e("s_mov_b32 s63, 0x0f0f0f0f"); e("s_mov_b64 exec, s[62:63]")
        e(f"buffer_store_dwordx2 {v(S,2)}, {v(va)}, {s(sSRD,4)}, s{FF} offen offset:512 sc1")
        e("s_mov_b64 exec, -1")
        A.label(l)
    grp(fslice)
    return G
def xt_fill_groups(buf, sreg, va):
    G = []
    G.append([f"s_lshr_b32 s{sreg}, {s(sWAVE)}, 1"]); G.append([f"s_lshl_b32 s61, {s(sCP)}, 1"]); G.append([f"s_add_u32 s{sreg}, s{sreg}, s61"])
    G.append([f"s_mul_i32 s{sreg}, s{sreg}, {PITCH}"]); G.append([f"s_and_b32 s61, {s(sWAVE)}, 1"]); G.append(["s_lshl_b32 s61, s61, 11"])
    G.append([f"s_add_u32 s{sreg}, s{sreg}, s61"]); G.append([f"s_add_u32 s{sreg}, s{sreg}, {buf}"]); G.append([f"v_lshlrev_b32 {v(va)}, 4, v1"])
    G.append([f"buffer_store_dwordx4 v[20:23], {v(va)}, {s(sSRD,4)}, s{sreg} offen sc1"])
    G.append([f"buffer_store_dwordx4 v[20:23], {v(va)}, {s(sSRD,4)}, s{sreg} offen offset:1024 sc1"])
    return G
def emit_group(g):
    for l in g:
        if l == "MARK": continue
        if l.endswith(":"): A.label(l[:-1])
        else: e(l)

XR = 24; PRM = 32; IDX = 40; XC = 176
def prologue():
    stamp("t0")
    if OPTS.get("cntv"):
        for r_ in range(90, 99): e(f"s_mov_b32 s{r_}, 0")
    e(f"s_getpc_b64 {s(sPC,2)}")
    A.label("L_pc")
    e("s_cmp_ge_u32 s2, 256")
    e("s_cbranch_scc1 L_end")
    e("s_load_dwordx16 s[8:23], s[0:1], 0")
    e("s_load_dwordx8 s[24:31], s[0:1], 64")
    e("s_load_dwordx2 s[32:33], s[0:1], 96")
    e("s_memrealtime s[82:83]")
    e("v_lshlrev_b32 v10, 7, v0")
    e("v_min_u32 v11, L_tab_end - L_pc - 4, v10")
    e(f"global_load_dword v38, v11, {s(sPC,2)}")
    e("v_add_u32 v10, 0x8000, v10")
    e("v_min_u32 v10, L_tab_end - L_pc - 4, v10")
    e(f"global_load_dword v39, v10, {s(sPC,2)}")
    e("v_lshrrev_b32 v1, 6, v0")
    e(f"s_and_b32 {s(sXCD)}, s2, 7")
    e(f"s_lshr_b32 {s(sIDX)}, s2, 3")
    e(f"v_readfirstlane_b32 {s(sWAVE)}, v1")
    e(f"s_lshl_b32 {s(sCP)}, {s(sXCD)}, 5"); e(f"s_add_u32 {s(sCP)}, {s(sCP)}, {s(sIDX)}")
    e("v_and_b32 v1, 63, v0")
    e(f"s_lshl_b32 {s(sT)}, {s(sCP)}, 9"); e(f"v_lshl_add_u32 v10, v0, 1, {s(sT)}")
    e(f"s_lshl_b32 {s(sT)}, {s(sCP)}, 2"); e("v_lshrrev_b32 v12, 7, v0"); e(f"v_lshl_add_u32 v11, v12, 1, {s(sT)}")
    e(f"s_lshl_b32 {s(sT)}, s2, 13"); e(f"v_lshl_add_u32 v13, v0, 5, {s(sT)}")
    e(f"s_mul_i32 s6, s2, 5462"); e(f"s_lshr_b32 s6, s6, 16"); e(f"s_mul_i32 s7, s6, 12"); e(f"s_sub_u32 s7, s2, s7")
    e(f"s_sub_u32 {s(sT+1)}, s2, 192"); e(f"s_lshr_b32 {s(sT)}, {s(sT+1)}, 1"); e(f"s_and_b32 {s(sT+1)}, {s(sT+1)}, 1")
    e("s_cmp_ge_u32 s2, 192")
    e(f"s_cselect_b32 s6, {s(sT)}, s6"); e(f"s_cselect_b32 s7, {s(sT+1)}, s7")
    e(f"s_cselect_b32 {s(sT+2)}, 4, 5")
    e(f"s_cselect_b32 {s(sT+3)}, 2, 3")
    e(f"s_cselect_b32 {s(sT+4)}, 10, 0")
    e(f"s_movk_i32 {s(sT+5)}, 3072"); e(f"s_cselect_b32 {s(sT+5)}, 1024, {s(sT+5)}")
    e(f"s_cselect_b32 {s(sT+6)}, 9, 8")
    e(f"s_cselect_b32 {s(sT+7)}, 5, 4")
    e(f"s_lshl_b32 {s(sT)}, s6, {s(sT+2)}"); e(f"s_lshl_b32 {s(sT+1)}, {s(sWAVE)}, {s(sT+3)}"); e(f"s_add_u32 {s(sT)}, {s(sT)}, {s(sT+1)}")
    e(f"s_mul_i32 {s(sT)}, {s(sT)}, {s(sT+5)}"); e(f"s_lshl_b32 {s(sT+1)}, s7, {s(sT+6)}"); e(f"s_add_u32 s4, {s(sT)}, {s(sT+1)}")
    e(f"v_lshrrev_b32 v14, {s(sT+7)}, v1"); e(f"v_mul_lo_u32 v14, {s(sT+5)}, v14")
    e(f"s_lshl_b32 {s(sT+1)}, 1, {s(sT+7)}"); e(f"s_sub_u32 {s(sT+1)}, {s(sT+1)}, 1"); e(f"v_and_b32 v15, {s(sT+1)}, v1"); e("v_lshl_add_u32 v14, v15, 4, v14")
    e(f"s_lshl_b32 {s(sT+1)}, 64, 0"); e(f"s_lshr_b32 {s(sT+1)}, 64, {s(sT+7)}"); e(f"s_mul_i32 s5, {s(sT+1)}, {s(sT+5)}")
    e(f"s_lshl_b32 {s(sT+3)}, {s(sWAVE)}, 11"); e(f"s_add_u32 {s(sT+3)}, {s(sT+3)}, {WST}")
    e("s_cmp_ge_u32 s2, 192")
    e("s_waitcnt lgkmcnt(0)")
    stamp("karg")
    if True:
        e(f"v_min_u32 v16, {(WS_USED - 1) // 0x200000}, v1"); e("v_lshlrev_b32 v16, 21, v16")
        e(f"global_load_dword v19, v16, {s(sWS,2)}")
    e("s_cmp_ge_u32 s2, 192")
    e(f"global_load_ushort {v(PRM)}, v10, {s(sLOGA,2)}")
    e(f"global_load_ushort {v(PRM+1)}, v10, {s(sAIM,2)}")
    e(f"global_load_ushort {v(PRM+4)}, v11, {s(sLDT,2)}")
    e(f"global_load_dwordx4 {v(XR,4)}, v13, {s(sU,2)}")
    e(f"global_load_dwordx4 {v(XR+4,4)}, v13, {s(sU,2)} offset:16")
    e(f"global_load_ushort {v(PRM+2)}, v10, {s(sCR,2)}")
    e(f"global_load_ushort {v(PRM+3)}, v10, {s(sCI,2)}")
    e(f"global_load_ushort {v(PRM+5)}, v11, {s(sDSK,2)}")
    e(f"s_cselect_b32 {s(sSRD2)}, {s(sWO)}, {s(sWQKV)}"); e(f"s_cselect_b32 {s(sSRD2+1)}, {s(sWO+1)}, {s(sWQKV+1)}")
    e(f"s_mov_b32 {s(sT)}, {512*1536*2}"); e(f"s_cselect_b32 {s(sSRD2+2)}, {512*512*2}, {s(sT)}")
    e(f"s_and_b32 {s(sSRD2+1)}, {s(sSRD2+1)}, 0xffff"); e(f"s_mov_b32 {s(sSRD2+3)}, 0x20000")
    ln = lab("nw")
    e("v_mov_b32 v23, 4")
    e(f"s_or_b32 {s(sT)}, s2, {s(sWAVE)}"); e(f"s_cmp_lg_u32 {s(sT)}, 0"); e(f"s_cbranch_scc1 {ln}")
    e(f"s_or_b32 {s(sT)}, s82, 1"); e(f"v_mov_b32 v58, {s(sT)}")
    e("s_mov_b64 exec, 1")
    e(f"global_store_dword v23, v58, {s(sDBG,2)} sc1")
    e("s_mov_b64 exec, -1")
    e("s_waitcnt vmcnt(63)")
    A.label(ln)
    e(f"s_mov_b32 m0, {s(sT+3)}")
    e(f"buffer_load_dwordx4 v14, {s(sSRD2,4)}, s4 offen lds")
    e(f"s_add_u32 s4, s4, s5"); e(f"s_add_u32 m0, {s(sT+3)}, 1024")
    e(f"buffer_load_dwordx4 v14, {s(sSRD2,4)}, s4 offen lds")
    e(f"s_and_b32 {s(sT)}, {s(sIDX)}, 3"); e(f"s_lshl_b32 {s(sRS)}, {s(sXCD)}, 2"); e(f"s_add_u32 {s(sRS)}, {s(sRS)}, {s(sT)}")
    e(f"s_lshr_b32 {s(sJ)}, {s(sIDX)}, 2")
    e(f"s_and_b32 {s(sT)}, {s(sJ)}, 1"); e(f"s_lshl_b32 {s(sRO)}, {s(sRS)}, 1"); e(f"s_add_u32 {s(sRO)}, {s(sRO)}, {s(sT)}")
    e(f"s_lshr_b32 {s(sJO)}, {s(sJ)}, 1")
    e(f"s_mov_b32 {s(sLOG2E)}, {f2u(1.4426950408889634):#x}"); e(f"s_mov_b32 {s(sLOG2E+1)}, {s(sLOG2E)}")
    e(f"s_mov_b32 {s(sEPS6)}, {f2u(1e-6):#x}"); e(f"s_mov_b32 {s(sEPS6+1)}, {s(sEPS6)}")
    e(f"s_mov_b32 {s(sINV512)}, {f2u(1.0/512):#x}"); e(f"s_mov_b32 {s(sINV512+1)}, {s(sINV512)}")
    e(f"s_mov_b32 {s(sHI)}, 0xffff0000")
    e(f"s_mov_b32 {s(sSPIN)}, {SPINMAX}")
    e(f"s_mov_b32 {s(sSRD)}, {s(sWS)}"); e(f"s_and_b32 {s(sSRD+1)}, {s(sWS+1)}, 0xffff")
    e(f"s_mov_b32 {s(sSRD+2)}, {WS_USED:#x}"); e(f"s_mov_b32 {s(sSRD+3)}, 0x20000")

def p0_fills():
    pass

def nonce_issue():
    e("v_mov_b32 v17, 4")
    e(f"global_load_dword v58, v17, {s(sDBG,2)} sc1")
def nonce_get(vm=0):
    lr = lab("nr"); lg = lab("ng"); l0 = lab("n0")
    e(f"s_waitcnt vmcnt({vm})")
    e(f"s_branch {l0}")
    A.label(lr)
    e(f"global_load_dword v58, v17, {s(sDBG,2)} sc1")
    e("s_waitcnt vmcnt(0)")
    A.label(l0)
    e("v_cmp_eq_u32 vcc, 0, v58")
    spin_check(lr, lg, bk=1)
    e(f"v_readfirstlane_b32 {s(sNON)}, v58")

def idx_loads():
    e(f"s_add_u32 {s(sT)}, {s(sPC)}, L_idx - L_pc"); e(f"s_addc_u32 {s(sT+1)}, {s(sPC+1)}, 0")
    e("v_and_b32 v10, 127, v0"); e("v_lshlrev_b32 v10, 4, v10")
    e(f"global_load_dwordx4 {v(IDX,4)}, v10, {s(sT,2)}")
    e(f"global_load_dwordx4 {v(IDX+4,4)}, v10, {s(sT,2)} offset:16")
    e(f"global_load_dwordx4 {v(IDX+8,4)}, v10, {s(sT,2)} offset:2048")
    e(f"global_load_dwordx4 {v(IDX+12,4)}, v10, {s(sT,2)} offset:2064")

def gather_loads():
    out = []
    for i in range(4): out.append(f"global_load_dword {v(XC+i)}, v19, {s(sU,2)} offset:{1024*i}")
    for i in range(4): out.append(f"global_load_dword {v(XC+4+i)}, v18, {s(sU,2)} offset:{1024*i}")
    return out

def p0_x0_write():
    e(f"v_lshlrev_b32 v10, 5, v0"); e(f"v_add_u32 v10, {X0S}, v10")
    e(f"ds_write_b128 v10, {v(XR,4)}"); e(f"ds_write_b128 v10, {v(XR+4,4)} offset:16")
def p0_x0_store():
    e("v_bfe_u32 v10, v1, 2, 2"); e("v_lshlrev_b32 v10, 10, v10")
    e("v_lshrrev_b32 v11, 4, v1"); e("v_lshl_add_u32 v10, v11, 5, v10")
    e("v_and_b32 v11, 3, v1"); e("v_lshl_add_u32 v10, v11, 3, v10")
    e(f"s_lshl_b32 {s(sT)}, {s(sWAVE)}, 8"); e(f"s_add_u32 {s(sT)}, {s(sT)}, {X0S}"); e(f"v_add_u32 v10, {s(sT)}, v10")
    for k in range(2):
        e(f"ds_read_b64_tr_b16 {v(24+4*k,2)}, v10 offset:{128*k}"); e(f"ds_read_b64_tr_b16 {v(26+4*k,2)}, v10 offset:{128*k + 4096}")
    e(f"s_mul_i32 {s(sT)}, s2, {X0P}"); e(f"s_lshl_b32 {s(sT+1)}, {s(sWAVE)}, 11"); e(f"s_add_u32 {s(sT)}, {s(sT)}, {s(sT+1)}")
    e(f"s_add_u32 {s(sT)}, {s(sT)}, {X0T}")
    e("v_lshlrev_b32 v11, 4, v1")
    e("s_waitcnt lgkmcnt(0)")
    e(f"buffer_store_dwordx4 v[24:27], v11, {s(sSRD,4)}, {s(sT)} offen sc1")
    e(f"buffer_store_dwordx4 v[28:31], v11, {s(sSRD,4)}, {s(sT)} offen offset:1024 sc1")

def p0_stats():
    F = 64
    for i in range(8):
        e(f"v_lshlrev_b32 {v(F+2*i)}, 16, {v(XR+i)}"); e(f"v_and_b32 {v(F+2*i+1)}, {s(sHI)}, {v(XR+i)}")
    for i in range(4): e(f"v_pk_add_f32 {v(80+2*i,2)}, {v(F+4*i,2)}, {v(F+4*i+2,2)}")
    e(f"v_pk_mul_f32 v[88:89], {v(F,2)}, {v(F,2)}"); e(f"v_pk_mul_f32 v[90:91], {v(F+2,2)}, {v(F+2,2)}")
    e(f"v_pk_add_f32 v[80:81], v[80:81], v[82:83]"); e(f"v_pk_add_f32 v[84:85], v[84:85], v[86:87]")
    for i in range(2, 8): e(f"v_pk_fma_f32 {v(88+2*(i&1),2)}, {v(F+2*i,2)}, {v(F+2*i,2)}, {v(88+2*(i&1),2)}")
    e(f"v_pk_add_f32 v[80:81], v[80:81], v[84:85]"); e("v_pk_add_f32 v[88:89], v[88:89], v[90:91]")
    e("v_add_f32 v80, v80, v81"); e("v_add_f32 v82, v88, v89")
    for r_ in (8, 4, 2, 1):
        e(f"v_add_f32_dpp v80, v80, v80 row_ror:{r_} row_mask:0xf bank_mask:0xf")
        e(f"v_add_f32_dpp v82, v82, v82 row_ror:{r_} row_mask:0xf bank_mask:0xf")
    e("v_add_f32_dpp v80, v80, v80 row_bcast:15 row_mask:0xa bank_mask:0xf")
    e("v_add_f32_dpp v82, v82, v82 row_bcast:15 row_mask:0xa bank_mask:0xf")
    stats_final(80, 82, 56, 57, 86, rcp=False)
    e("v_lshrrev_b32 v56, 16, v56"); e(f"v_and_or_b32 v56, v57, {s(sHI)}, v56")

def p0_stats_store():
    e(f"v_mov_b32 v57, {s(sNON)}")
    e(f"s_lshl_b32 {s(sT)}, s2, 4"); e(f"s_lshl_b32 {s(sT+1)}, {s(sWAVE)}, 12"); e(f"s_add_u32 {s(sT)}, {s(sT)}, {s(sT+1)}")
    e(f"s_add_u32 {s(sT)}, {s(sT)}, {S1}")
    e("v_lshrrev_b32 v10, 5, v1"); e(f"v_lshl_add_u32 v10, v10, 3, {s(sT)}")
    e(f"s_mov_b32 {s(sT+2)}, 0x00010000"); e(f"s_mov_b32 {s(sT+3)}, 0x00010000")
    e(f"s_mov_b64 exec, {s(sT+2,2)}")
    e(f"buffer_store_dwordx2 v[56:57], v10, {s(sSRD,4)}, 0 offen sc1")
    e("s_mov_b64 exec, -1")

def p0_wfrag():
    lo = lab("wo2"); lj = lab("wj2")
    e("s_cmp_ge_u32 s2, 192"); e(f"s_cbranch_scc1 {lo}")
    e("v_lshrrev_b32 v10, 2, v1"); e("v_lshlrev_b32 v10, 8, v10")
    e("v_and_b32 v11, 3, v1"); e("v_lshl_add_u32 v10, v11, 3, v10")
    e(f"s_lshl_b32 {s(sT)}, {s(sWAVE)}, 6"); e(f"s_add_u32 {s(sT)}, {s(sT)}, {WST}")
    e(f"v_add_u32 v10, {s(sT)}, v10")
    e("ds_read_b64_tr_b16 v[88:89], v10"); e("ds_read_b64_tr_b16 v[90:91], v10 offset:4096")
    e("ds_read_b64_tr_b16 v[92:93], v10 offset:32"); e("ds_read_b64_tr_b16 v[94:95], v10 offset:4128")
    e(f"s_lshr_b32 {s(sT)}, s7, 2")
    e(f"s_add_u32 {s(sT)}, {s(sT)}, 2"); e(f"s_cmp_ge_u32 {s(sT)}, 3")
    e(f"s_cselect_b32 {s(sT+1)}, 3, 0"); e(f"s_sub_u32 {s(sT)}, {s(sT)}, {s(sT+1)}")
    e(f"s_and_b32 {s(sT+1)}, s7, 3"); e(f"s_lshl_b32 {s(sT+1)}, {s(sT+1)}, 3")
    e(f"s_lshl_b32 {s(sT+2)}, {s(sWAVE)}, 1"); e(f"s_add_u32 {s(sT+1)}, {s(sT+1)}, {s(sT+2)}")
    e(f"s_mul_i32 {s(sT+1)}, {s(sT+1)}, 3"); e(f"s_add_u32 {s(sT+1)}, {s(sT+1)}, {s(sT)}")
    e(f"s_lshl_b32 {s(sT+1)}, {s(sT+1)}, 4"); e(f"s_add_u32 {s(sT+1)}, {s(sT+1)}, s6")
    e(f"s_lshl_b32 {s(sT+1)}, {s(sT+1)}, 10"); e(f"s_add_u32 {s(sT+1)}, {s(sT+1)}, {WFG}")
    e(f"s_add_u32 {s(sT+2)}, {s(sT+1)}, 49152")
    e(f"s_branch {lj}")
    A.label(lo)
    e("v_lshrrev_b32 v10, 5, v1"); e("v_lshlrev_b32 v10, 2, v10")
    e("v_bfe_u32 v11, v1, 2, 2"); e("v_add_u32 v10, v10, v11"); e("v_lshlrev_b32 v10, 9, v10")
    e("v_and_b32 v11, 1, v1"); e("v_lshl_add_u32 v10, v11, 5, v10")
    e("v_bfe_u32 v11, v1, 4, 1"); e("v_lshl_add_u32 v10, v11, 4, v10")
    e("v_bfe_u32 v11, v1, 1, 1"); e("v_lshl_add_u32 v10, v11, 3, v10")
    e(f"s_lshl_b32 {s(sT)}, {s(sWAVE)}, 7"); e(f"s_add_u32 {s(sT)}, {s(sT)}, {WST}")
    e(f"v_add_u32 v10, {s(sT)}, v10")
    e("ds_read_b64_tr_b16 v[88:89], v10"); e("ds_read_b64_tr_b16 v[90:91], v10 offset:4096")
    e("ds_read_b64_tr_b16 v[92:93], v10 offset:64"); e("ds_read_b64_tr_b16 v[94:95], v10 offset:4160")
    e(f"s_lshl_b32 {s(sT+1)}, s7, 3"); e(f"s_lshl_b32 {s(sT+2)}, {s(sWAVE)}, 1"); e(f"s_add_u32 {s(sT+1)}, {s(sT+1)}, {s(sT+2)}")
    e(f"s_lshl_b32 {s(sT+1)}, {s(sT+1)}, 5"); e(f"s_add_u32 {s(sT+1)}, {s(sT+1)}, s6")
    e(f"s_lshl_b32 {s(sT+1)}, {s(sT+1)}, 10"); e(f"s_add_u32 {s(sT+1)}, {s(sT+1)}, {WFO}")
    e(f"s_add_u32 {s(sT+2)}, {s(sT+1)}, 32768")
    A.label(lj)
    e("v_lshlrev_b32 v10, 4, v1")
    e("s_waitcnt lgkmcnt(0)")
    e(f"buffer_store_dwordx4 v[88:91], v10, {s(sSRD,4)}, {s(sT+1)} offen sc1")
    e(f"buffer_store_dwordx4 v[92:95], v10, {s(sSRD,4)}, {s(sT+2)} offen sc1")

def pw_multi(items, a2, b2):
    for (d, t, tm) in items:
        if t == 1:
            e(f"v_mov_b32 {v(tm)}, {v(a2)}"); e(f"v_fract_f32 {v(tm+1)}, {v(b2)}")
        else:
            c = f"{float(t)}" if t in (2, 4) else f"{f2u(float(t)):#x}"
            e(f"v_mul_f32 {v(tm)}, {c}, {v(a2)}"); e(f"v_mul_f32 {v(tm+1)}, {c}, {v(b2)}")
    for (d, t, tm) in items:
        e(f"v_exp_f32 {v(tm)}, {v(tm)}")
        if t != 1: e(f"v_fract_f32 {v(tm+1)}, {v(tm+1)}")
    for (d, t, tm) in items:
        e(f"v_cos_f32 {v(d)}, {v(tm+1)}"); e(f"v_sin_f32 {v(d+1)}, {v(tm+1)}")
    for (d, t, tm) in items:
        e(f"v_pk_mul_f32 {v(d,2)}, {v(d,2)}, {v(tm,2)} op_sel_hi:[1,0]")

W1, W4, W16, W64, W512 = 100, 102, 104, 106, 108
CH = {"X1": 112, "X2": 128, "Y1": 144, "Y2": 160}
def kgen_setup():
    for i in range(6): e(f"v_lshlrev_b32 {v(PRM+i)}, 16, {v(PRM+i)}")
    e(f"v_readfirstlane_b32 {s(sDSKV)}, {v(PRM+5)}")
    dt, are = 60, 61
    e(f"v_mul_f32 {v(dt)}, {s(sLOG2E)}, {v(PRM+4)}"); e(f"v_mul_f32 {v(are)}, {s(sLOG2E)}, {v(PRM)}")
    e(f"v_exp_f32 {v(dt)}, {v(dt)}"); e(f"v_exp_f32 {v(are)}, {v(are)}")
    e(f"v_cvt_pk_bf16_f32 {v(dt)}, {v(dt)}, {v(are)}")
    e(f"v_and_b32 {v(are)}, {s(sHI)}, {v(dt)}"); e(f"v_lshlrev_b32 {v(dt)}, 16, {v(dt)}")
    a2, b2 = 62, 63
    e(f"v_mul_f32 {v(a2)}, -{v(are)}, {v(dt)}"); e(f"v_mul_f32 {v(b2)}, {v(PRM+1)}, {v(dt)}")
    e(f"v_mul_f32 {v(a2)}, {s(sLOG2E)}, {v(a2)}"); e(f"v_mul_f32 {v(b2)}, 0.15915494, {v(b2)}")
    pw_multi([(W1, 1, 64), (W4, 4, 66), (W16, 16, 68), (W64, 64, 70), (W512, 512, 72)], a2, b2)
    e(f"v_add_f32 {v(dt)}, {v(dt)}, {v(dt)}")
    e(f"v_mul_f32 {v(CH['X1'])}, {v(PRM+2)}, {v(dt)}"); e(f"v_mul_f32 {v(CH['X1']+1)}, {v(PRM+3)}, {v(dt)}")
    for l in cmul(CH['X2'], CH['X1'], W512, 64): e(l)
    e(f"v_mov_b32 {v(CH['Y1'])}, 1.0"); e(f"v_mov_b32 {v(CH['Y1']+1)}, 0"); e(f"v_mov_b32 {v(CH['Y2'])}, 1.0"); e(f"v_mov_b32 {v(CH['Y2']+1)}, 0")
    e(f"v_lshrrev_b32 v96, 7, v0"); e(f"v_mul_u32_u24 v96, {TABC}, v96")
    e(f"v_and_b32 v97, 127, v0"); e(f"v_mul_u32_u24 v97, {TKP}, v97"); e("v_add_u32 v96, v96, v97")

def kgen_round(chains, rnd, side=None):
    Wof = {"X1": W16, "X2": W64, "Y1": W1, "Y2": W4}
    mbase = {"X1": 0, "X2": 32, "Y1": 64, "Y2": 80}
    tmp = {"X1": 64, "X2": 66, "Y1": 68, "Y2": 70}
    nval = {c: 8 for c in chains}
    if rnd == 3 and "X2" in chains: nval["X2"] = 1
    for i in range(1, 8):
        ls = [cmul(CH[c] + 2*i, CH[c] + 2*(i-1), Wof[c], tmp[c]) for c in chains if i < nval[c]]
        for k in range(2):
            for l in ls: e(l[k])
        if side and i in (1, 3, 5, 7) and len(side): e(side.pop(0))
    P = {c: 72 + 8*k for k, c in enumerate(chains)}
    for c in chains:
        neg = "-" if c[0] == "X" else ""
        for k in range(4):
            i0, i1 = (2*k, 2*k+1) if nval[c] == 8 else (0, 0)
            e(f"v_cvt_pk_bf16_f32 {v(P[c]+k)}, {v(CH[c]+2*i0)}, {v(CH[c]+2*i1)}")
            e(f"v_cvt_pk_bf16_f32 {v(P[c]+4+k)}, {neg}{v(CH[c]+2*i0+1)}, {neg}{v(CH[c]+2*i1+1)}")
        off = (mbase[c] + 8*rnd) * 2
        e(f"ds_write_b128 v96, {v(P[c],4)} offset:{off}")
        e(f"ds_write_b128 v96, {v(P[c]+4,4)} offset:{off + 128*TKP}")
    ls = [cmul(CH[c], CH[c] + 14, Wof[c], tmp[c]) for c in chains if nval[c] == 8 and not ((c[0] == "Y" and rnd == 1) or rnd == 3)]
    for k in range(2):
        for l in ls: e(l[k])

def kgen_mm(gl, fs):
    s1_issue()
    e("s_waitcnt lgkmcnt(0)"); e("s_barrier")
    e(f"s_lshr_b32 {s(sT)}, {s(sWAVE)}, 1"); e(f"s_and_b32 {s(sT+1)}, {s(sWAVE)}, 1")
    e(f"s_mul_i32 {s(sT+2)}, {s(sT)}, {TABC}")
    e(f"s_lshl_b32 {s(sT+3)}, {s(sT+1)}, 5"); e(f"s_add_u32 {s(sT+3)}, {s(sT+3)}, 128"); e(f"s_add_u32 {s(sT+3)}, {s(sT+3)}, {s(sT+2)}")
    e(f"s_lshl_b32 {s(sT+4)}, {s(sT+1)}, 6"); e(f"s_add_u32 {s(sT+4)}, {s(sT+4)}, {s(sT+2)}")
    e("v_lshrrev_b32 v10, 2, v1"); e(f"v_mul_u32_u24 v10, {TKP}, v10"); e("v_and_b32 v11, 3, v1"); e("v_lshl_add_u32 v10, v11, 3, v10")
    e(f"v_add_u32 v11, {s(sT+3)}, v10"); e(f"v_add_u32 v12, {s(sT+4)}, v10")
    YF, XF = 64, 96
    for ks in range(8):
        o = ks * 32 * TKP
        e(f"ds_read_b64_tr_b16 {v(YF+4*ks,2)}, v11 offset:{o}"); e(f"ds_read_b64_tr_b16 {v(YF+4*ks+2,2)}, v11 offset:{o + 16*TKP}")
        for tl in range(2):
            e(f"ds_read_b64_tr_b16 {v(XF+32*tl+4*ks,2)}, v12 offset:{o + 32*tl}"); e(f"ds_read_b64_tr_b16 {v(XF+32*tl+4*ks+2,2)}, v12 offset:{o + 16*TKP + 32*tl}")
    e("v_lshrrev_b32 v13, 7, v0")
    e(f"v_mul_u32_u24 v14, {CTP}, v13"); e(f"v_add_u32 v14, {CT}, v14")
    e(f"v_mul_u32_u24 v15, {KCH}, v13"); e("v_and_b32 v13, 127, v0"); e("v_lshl_add_u32 v15, v13, 4, v15")
    fs()
    for ks in range(8):
        e(f"s_waitcnt lgkmcnt({min(15, 6*(7-ks))})")
        for tl in range(2):
            c_ = "0" if ks == 0 else v(160 + 4*tl, 4)
            e(f"v_mfma_f32_16x16x32_bf16 {v(160+4*tl,4)}, {v(YF+4*ks,4)}, {v(XF+32*tl+4*ks,4)}, {c_}")
    e(f"s_mul_i32 {s(sT+2)}, {s(sT)}, {CTP}"); e(f"s_lshl_b32 {s(sT+3)}, {s(sT+1)}, 10"); e(f"s_add_u32 {s(sT+2)}, {s(sT+2)}, {s(sT+3)}")
    e(f"s_add_u32 {s(sT+2)}, {s(sT+2)}, {CT}")
    e("v_and_b32 v10, 15, v1"); e("v_lshlrev_b32 v10, 5, v10"); e("v_lshrrev_b32 v11, 4, v1"); e("v_lshl_add_u32 v10, v11, 3, v10")
    e(f"v_add_u32 v10, {s(sT+2)}, v10")
    e(f"s_mul_i32 {s(sT+2)}, {s(sT)}, {CTP}"); e(f"s_add_u32 {s(sT+2)}, {s(sT+2)}, {CT + 2048}")
    e(f"v_mov_b32 v11, {s(sT+2)}"); e("v_mov_b32 v12, 0")
    e("ds_write_b32 v11, v12")
    fs()
    G = [96, 112]
    for task in range(2):
        I = IDX + 8 * task
        for k in range(6):
            e(f"v_add_u32_sdwa {v(G[task]+2*k)}, v14, {v(I+k)} dst_sel:DWORD dst_unused:UNUSED_PAD src0_sel:DWORD src1_sel:WORD_0")
            e(f"v_add_u32_sdwa {v(G[task]+2*k+1)}, v14, {v(I+k)} dst_sel:DWORD dst_unused:UNUSED_PAD src0_sel:DWORD src1_sel:WORD_1")
    for tl in range(2):
        e(f"v_cvt_pk_bf16_f32 {v(168+2*tl)}, {v(160+4*tl)}, {v(161+4*tl)}")
        e(f"v_cvt_pk_bf16_f32 {v(169+2*tl)}, {v(162+4*tl)}, {v(163+4*tl)}")
        e(f"ds_write_b64 v10, {v(168+2*tl,2)} offset:{512*tl}")
    e("s_waitcnt lgkmcnt(0)"); e("s_barrier")
    stamp("k_mm")
    s1_validate(1)
    x0t_issue()
    for task in range(2):
        for k in range(12): e(f"ds_read_u16 {v(G[task]+k)}, {v(G[task]+k)}")
    for task in range(2):
        Dd, Dp, Sd, Sp = [(64, 72, 80, 88), (128, 136, 144, 152)][task]
        e(f"s_waitcnt lgkmcnt({12 if task == 0 else 4})")
        for k in range(6): e(f"v_lshl_or_b32 {v(Dd+k)}, {v(G[task]+2*k+1)}, 16, {v(G[task]+2*k)}")
        for k in range(4): e(f"v_mov_b32 {v(Dp+k)}, {v(Dd+k+1)}")
        for k in range(4): e(f"v_alignbit_b32 {v(Sd+k)}, {v(Dd+k+1)}, {v(Dd+k)}, 16")
        for k in range(4): e(f"v_alignbit_b32 {v(Sp+k)}, {v(Dd+k+2)}, {v(Dd+k+1)}, 16")
        for cp_, src in enumerate((Dd, Sd, Dp, Sp)):
            e(f"ds_write_b128 v15, {v(src,4)} offset:{cp_*KCC + task*2048}")
    l0 = lab("zk")
    e(f"s_cmp_lg_u32 {s(sWAVE)}, 0"); e(f"s_cbranch_scc1 {l0}")
    e("v_lshrrev_b32 v10, 2, v1"); e(f"v_mul_u32_u24 v10, {KCC}, v10")
    e("v_and_b32 v11, 3, v1"); e("v_lshl_add_u32 v10, v11, 4, v10"); e("v_add_u32 v10, 4096, v10")
    e("v_mov_b32 v160, 0"); e("v_mov_b32 v161, 0"); e("v_mov_b32 v162, 0"); e("v_mov_b32 v163, 0")
    e(f"s_mov_b32 {s(sT+2)}, -1"); e(f"s_mov_b32 {s(sT+3)}, 0"); e(f"s_mov_b64 exec, {s(sT+2,2)}")
    e("ds_write_b128 v10, v[160:163]")
    e("s_mov_b64 exec, -1")
    A.label(l0)

def s1_issue():
    e("v_lshlrev_b32 v63, 4, v0")
    for i in range(4):
        e(f"s_movk_i32 {s(sT)}, {S1 + 4096*i}")
        e(f"buffer_load_dwordx4 {v(24+4*i,4)}, v63, {s(sSRD,4)}, {s(sT)} offen sc1")
def s1_validate(vm=0):
    lr = lab("s1r"); lg = lab("s1k"); l0 = lab("s1c")
    e(f"s_waitcnt vmcnt({vm})")
    e(f"s_branch {l0}")
    A.label(lr)
    s1_issue()
    e("s_waitcnt vmcnt(0)")
    A.label(l0)
    for i in range(8): e(f"v_xor_b32 {v(160+i)}, {s(sNON)}, {v(24+2*i+1)}")
    e("v_or3_b32 v160, v160, v161, v162"); e("v_or3_b32 v163, v163, v164, v165"); e("v_or3_b32 v160, v160, v166, v167"); e("v_or_b32 v160, v160, v163")
    e("v_cmp_ne_u32 vcc, 0, v160")
    spin_check(lr, lg, bk=1)
def x0t_issue():
    e(f"v_mul_u32_u24 v10, {X0P}, v0"); e(f"s_lshl_b32 {s(sT)}, {s(sCP)}, 5"); e(f"s_add_u32 {s(sT)}, {s(sT)}, {X0T}")
    e(f"buffer_load_dwordx4 v[40:43], v10, {s(sSRD,4)}, {s(sT)} offen sc1")
    e(f"buffer_load_dwordx4 v[44:47], v10, {s(sSRD,4)}, {s(sT)} offen offset:16 sc1")
def b1_issue():
    e("v_and_b32 v20, 15, v0"); e("v_lshlrev_b32 v20, 4, v20")
    e(f"global_load_dword v21, v20, {s(sDBG,2)} sc1")
def b1_check():
    lr = lab("b1r"); lg = lab("b1k"); l0 = lab("b1c")
    e("s_waitcnt vmcnt(0)")
    e(f"s_branch {l0}")
    A.label(lr)
    e(f"global_load_dword v21, v20, {s(sDBG,2)} sc1")
    e("s_waitcnt vmcnt(0)")
    A.label(l0)
    e("v_cmp_gt_u32 vcc, 16, v21")
    spin_check(lr, lg, bk=1)

def gw_loads():
    out = []
    for f in range(48):
        out.append([f"buffer_load_dwordx4 {a(4*f,4)}, v18, {s(sSRD,4)}, {s(sW)} offen offset:{(f%4)*1024} sc1"] + ([f"s_add_u32 {s(sW)}, {s(sW)}, 4096"] if f % 4 == 3 else []))
    return out
def ow_loads():
    out = []
    for f in range(32):
        dst = a(192 + 4*f, 4) if f < 16 else v(192 + 4*(f-16), 4)
        out.append([f"buffer_load_dwordx4 {dst}, v18, {s(sSRD,4)}, {s(sW)} offen offset:{(f%4)*1024} sc1"] + ([f"s_add_u32 {s(sW)}, {s(sW)}, 4096"] if f % 4 == 3 else []))
    return out

vA, vB, vEP, vEU, vEX, vRW, vRR = 164, 165, 166, 167, 168, 169, 170
def conv_setup(layer):
    e(f"s_lshr_b32 s4, {s(sWAVE)}, 1"); e(f"s_and_b32 s5, {s(sWAVE)}, 1")
    e("v_and_b32 v10, 3, v1"); e("v_sub_u32 v10, 3, v10"); e(f"v_mul_u32_u24 v12, {KCC}, v10")
    e("v_bfe_u32 v10, v1, 5, 1"); e("v_lshlrev_b32 v13, 5, v10"); e("v_sub_u32 v12, v12, v13")
    e("v_bfe_u32 v11, v1, 4, 1"); e("v_lshl_add_u32 v12, v11, 4, v12")
    e("v_bfe_u32 v10, v1, 2, 2"); e("v_lshlrev_b32 v10, 3, v10"); e("v_sub_u32 v12, v12, v10")
    e(f"s_mul_i32 {s(sT+2)}, s4, {KCH}"); e(f"s_lshl_b32 {s(sT+3)}, s5, 8"); e(f"s_sub_u32 {s(sT+2)}, {s(sT+2)}, {s(sT+3)}")
    e(f"s_add_u32 {s(sT+2)}, {s(sT+2)}, {KC + 4088 - 3776}")
    e("v_and_b32 v10, 15, v1"); e("v_lshlrev_b32 v14, 5, v10"); e("v_sub_u32 v14, v14, v13"); e("v_lshl_add_u32 v14, v11, 4, v14")
    e(f"s_mul_i32 {s(sT+4)}, s4, {UP}"); e(f"s_sub_u32 {s(sT+4)}, {s(sT+4)}, {s(sT+3)}")
    e(f"s_add_u32 {s(sT+4)}, {s(sT+4)}, {U0 + 512 - 192}")
    e(f"v_add_u32 v16, {s(sT+2)}, v12"); e(f"v_add_u32 v17, {s(sT+4)}, v14")
    e("v_and_b32 v56, 15, v1"); e("v_lshlrev_b32 v56, 5, v56"); e("v_lshrrev_b32 v13, 4, v1"); e("v_lshl_add_u32 v56, v13, 3, v56")
    e(f"s_lshl_b32 {s(sT+2)}, s5, 11"); e(f"v_add_u32 v56, {s(sT+2)}, v56")
    e(f"s_mul_i32 {s(sT+3)}, s4, {UP}"); e(f"s_add_u32 {s(sT+3)}, {s(sT+3)}, {U0+512}"); e(f"v_add_u32 v57, {s(sT+3)}, v56")
    e(f"s_lshl_b32 {s(sT+3)}, s4, 12"); e(f"s_add_u32 {s(sT+3)}, {s(sT+3)}, {X0}"); e(f"v_add_u32 v58, {s(sT+3)}, v56")
    e(f"s_lshl_b32 {s(sT+2)}, {s(sWAVE)}, 12"); e(f"s_add_u32 {s(sT+2)}, {s(sT+2)}, {RED}"); e(f"v_lshl_add_u32 v59, v1, 4, {s(sT+2)}")
    e(f"s_xor_b32 {s(sT+2)}, {s(sWAVE)}, 1"); e(f"s_lshl_b32 {s(sT+2)}, {s(sT+2)}, 12"); e(f"s_add_u32 {s(sT+2)}, {s(sT+2)}, {RED}")
    e(f"v_lshl_add_u32 v60, v1, 4, {s(sT+2)}")
    xo = XT1 if layer == 1 else XT3
    e(f"s_lshl_b32 s6, {s(sCP)}, 1"); e("s_add_u32 s6, s6, s4"); e(f"s_mul_i32 s6, s6, {PITCH}"); e(f"s_add_u32 s6, s6, {xo}")
    e("v_lshlrev_b32 v10, 4, v0"); e(f"v_add_u32 v61, {U0 + 512}, v10"); e(f"v_add_u32 v62, {X0}, v10")
    e("v_lshlrev_b32 v63, 4, v0")
    l0 = lab("zp")
    e(f"s_cmp_lg_u32 {s(sWAVE)}, 1"); e(f"s_cbranch_scc1 {l0}")
    e("v_lshrrev_b32 v11, 5, v1"); e(f"v_mul_u32_u24 v11, {UP}, v11"); e("v_and_b32 v12, 31, v1"); e("v_lshl_add_u32 v11, v12, 4, v11")
    e(f"v_add_u32 v11, {U0}, v11")
    e("v_mov_b32 v12, 0"); e("v_mov_b32 v13, 0"); e("v_mov_b32 v14, 0"); e("v_mov_b32 v15, 0")
    e("ds_write_b128 v11, v[12:15]")
    A.label(l0)
    XX = 40; F = 64
    if layer == 1:
        e("v_lshlrev_b32 v18, 4, v1")
        e(f"s_lshl_b32 {s(sW)}, {s(sJ)}, 2"); e(f"s_add_u32 {s(sW)}, {s(sW)}, {s(sWAVE)}")
        e(f"s_mul_i32 {s(sW)}, {s(sW)}, 49152"); e(f"s_add_u32 {s(sW)}, {s(sW)}, {WFG}")
    else:
        e(f"s_lshl_b32 s7, {s(sCP)}, 7"); e(f"s_add_u32 s7, s7, {X2T}")
        e("v_lshrrev_b32 v19, 2, v0"); e(f"v_mul_u32_u24 v19, {ROP}, v19"); e("v_and_b32 v10, 3, v0"); e("v_lshl_add_u32 v19, v10, 4, v19")

def conv(layer):
    XX = 40; SB = 24; F = 64; UU = 48
    if layer == 2:
        if int(OPTS.get("cpre", 4)): e(f"s_sleep {OPTS.get('cpre', 4)}")
        e(f"s_add_u32 {s(sT)}, s7, {U2T - X2T}")
        lr = lab("cu"); lg = lab("cuk")
        A.label(lr)
        e(f"buffer_load_dwordx4 {v(UU,4)}, v19, {s(sSRD,4)}, {s(sT)} offen sc1")
        e(f"buffer_load_dwordx4 {v(UU+4,4)}, v19, {s(sSRD,4)}, {s(sT)} offen offset:64 sc1")
        e("s_waitcnt vmcnt(0)")
        e(f"v_max_u32 v10, {v(UU)}, {v(UU+4)}")
        e("v_cmp_eq_u32 vcc, -1, v10")
        spin_check(lr, lg, bk=2, cid=1)
        for c in range(2): e(f"ds_write_b128 v61, {v(UU+4*c,4)} offset:{UP*c}")
        for c in range(2):
            e(f"s_lshl_b32 {s(sT+2)}, {s(sWAVE)}, 10"); e(f"s_add_u32 m0, {s(sT+2)}, {X0 + 4096*c}")
            e(f"s_add_u32 {s(sT+3)}, s7, {64*c}")
            e(f"buffer_load_dwordx4 v19, {s(sSRD,4)}, {s(sT+3)} offen sc1 lds")
    else:
        b1_issue()
        for i in range(8):
            e(f"v_and_b32 {v(SB+2*i+1)}, {s(sHI)}, {v(SB+2*i)}"); e(f"v_lshlrev_b32 {v(SB+2*i)}, 16, {v(SB+2*i)}")
        for i in range(8): e(f"v_rcp_f32 {v(SB+2*i+1)}, {v(SB+2*i+1)}")
        e("s_waitcnt vmcnt(1)")
        for i in range(8):
            j, hi = i >> 1, i & 1
            for c in range(2):
                if hi: e(f"v_and_b32 {v(F+2*i+c)}, {s(sHI)}, {v(XX+4*c+j)}")
                else: e(f"v_lshlrev_b32 {v(F+2*i+c)}, 16, {v(XX+4*c+j)}")
        e(f"ds_write_b128 v62, {v(XX,4)}"); e(f"ds_write_b128 v62, {v(XX+4,4)} offset:4096")
    stamp(f"c{layer}_ld")
    if layer == 1:
        for i in range(8):
            e(f"v_pk_add_f32 {v(F+2*i,2)}, {v(F+2*i,2)}, {v(SB+2*i,2)} op_sel_hi:[1,0] neg_lo:[0,1] neg_hi:[0,1]")
        for i in range(8): e(f"v_cvt_pk_bf16_f32 {v(80+i)}, {v(F+2*i)}, {v(F+2*i+1)}")
        for i in range(8):
            e(f"v_lshlrev_b32 {v(F+2*i)}, 16, {v(80+i)}"); e(f"v_and_b32 {v(F+2*i+1)}, {s(sHI)}, {v(80+i)}")
        for i in range(8):
            e(f"v_pk_mul_f32 {v(F+2*i,2)}, {v(F+2*i,2)}, {v(SB+2*i,2)} op_sel:[0,1] op_sel_hi:[1,1]")
        for c in range(2):
            for j in range(4): e(f"v_cvt_pk_bf16_f32 {v(UU+4*c+j)}, {v(F+4*j+c)}, {v(F+4*j+2+c)}")
            e(f"ds_write_b128 v61, {v(UU+4*c,4)} offset:{UP*c}")
    trick = gw_loads() if layer == 1 else []
    e("s_waitcnt lgkmcnt(0)"); e("s_barrier")
    if layer == 1: b1_check()
    stamp(f"c{layer}_pro")
    vA, vB = 16, 17
    ACC = 24; SET = [64, 128]
    def loads(tp, st):
        out = []
        seq = []
        for k in range(8):
            seq.append(f"ds_read_b128 {v(SET[st]+32+4*k,4)}, {v(vB)} offset:{512*k + 64*(3 - tp)}")
            o = 64*(3 - tp) + 512*(7 - k)
            seq.append(f"ds_read_b64 {v(SET[st]+4*k,2)}, {v(vA)} offset:{o}")
            seq.append(f"ds_read_b64 {v(SET[st]+4*k+2,2)}, {v(vA)} offset:{o + 8}")
        return seq
    for l in loads(0, 0): e(l)
    ti = 0; nm = 0
    TRK = int(OPTS.get("trk", 3))
    e(f"s_mov_b32 {s(sT+4)}, {s(sDSKV)}"); e(f"s_mov_b32 {s(sT+5)}, {s(sDSKV)}")
    side = []
    for k in range(4):
        side.append(f"ds_read_b64 {v(64+2*k,2)}, v57 offset:{512*k}"); side.append(f"ds_read_b64 {v(72+2*k,2)}, v58 offset:{512*k}")
    side2 = ["s_waitcnt lgkmcnt(0)"]
    for k in range(4):
        for j in range(2):
            side2 += [f"v_lshlrev_b32 {v(96+4*k+2*j)}, 16, {v(64+2*k+j)}", f"v_and_b32 {v(97+4*k+2*j)}, {s(sHI)}, {v(64+2*k+j)}",
                      f"v_lshlrev_b32 {v(112+4*k+2*j)}, 16, {v(72+2*k+j)}", f"v_and_b32 {v(113+4*k+2*j)}, {s(sHI)}, {v(72+2*k+j)}"]
    for k in range(8): side2.append(f"v_pk_fma_f32 {v(96+2*k,2)}, {v(96+2*k,2)}, {s(sT+4,2)}, {v(112+2*k,2)}")
    fills = fill_groups(2, 61, 62) if layer == 2 else []
    hold = [0]; nfs = [0]
    for tp in range(4):
        st = tp & 1
        nxt = loads(tp + 1, st ^ 1) if tp < 3 else []
        n = 0; nb = 0
        for T in range(8):
            if tp == 0: e(f"s_waitcnt lgkmcnt({min(15, 24 - (3*T+3) + min(n, len(nxt)))})")
            elif T == 0:
                e("s_waitcnt lgkmcnt(0)")
                if layer == 2 and tp == 2:
                    e(f"s_waitcnt vmcnt({min(63, nfs[0])})"); e("s_barrier")
            for q in range(T + 1):
                c_ = "0" if (tp == 0 and q == 0) else v(ACC+4*T, 4)
                e(f"v_mfma_f32_16x16x32_bf16 {v(ACC+4*T,4)}, {v(SET[st]+4*q,4)}, {v(SET[st]+32+4*(T-q),4)}, {c_}")
                nm += 1; nb += 1
                if not (tp == 0 and T < 3) and n < len(nxt):
                    e(nxt[n]); n += 1
                if tp == 3:
                    if nb <= 8: e(side.pop(0))
                    elif nb > 12:
                        for _ in range(2):
                            if side2: e(side2.pop(0))
                if ti < len(trick) and nm % TRK == 0:
                    for l in trick[ti]: e(l)
                    ti += 1
                elif fills and tp < 3 and (nb > 2 or tp > 0):
                    if hold[0] > 0: hold[0] -= 1
                    else:
                        g = fills.pop(0); emit_group(g)
                        if any("buffer_store" in l for l in g): hold[0] = int(OPTS.get('fh', 5))
                        nfs[0] += 0
        while n < len(nxt): e(nxt[n]); n += 1
    assert not fills
    while side2: e(side2.pop(0))
    stamp(f"c{layer}_mm")
    lp1 = lab("p1"); lj = lab("pj")
    e("s_cmp_eq_u32 s5, 1"); e(f"s_cbranch_scc1 {lp1}")
    e("s_nop 3")
    for k in range(4): e(f"ds_write_b128 v59, {v(ACC+16+4*k,4)} offset:{1024*k}")
    e(f"s_branch {lj}")
    A.label(lp1)
    for k in range(4): e(f"ds_write_b128 v59, {v(ACC+4*k,4)} offset:{1024*k}")
    e("s_nop 3")
    for k in range(8): e(f"v_mov_b64 {v(ACC+2*k,2)}, {v(ACC+16+2*k,2)}")
    A.label(lj)
    for k in range(8):
        e(f"v_pk_add_f32 {v(96+2*k,2)}, {v(96+2*k,2)}, {v(ACC+2*k,2)}")
    e("s_waitcnt lgkmcnt(0)"); e("s_barrier")
    for k in range(4): e(f"ds_read_b128 {v(80+4*k,4)}, v60 offset:{1024*k}")
    e(f"s_waitcnt vmcnt({min(63, ti) if layer == 1 else 0})")
    for k in range(4):
        e(f"s_waitcnt lgkmcnt({3-k})")
        e(f"v_pk_add_f32 {v(96+4*k,2)}, {v(96+4*k,2)}, {v(80+4*k,2)}"); e(f"v_pk_add_f32 {v(98+4*k,2)}, {v(98+4*k,2)}, {v(82+4*k,2)}")
        e(f"v_cvt_pk_bf16_f32 {v(64+2*k)}, {v(96+4*k)}, {v(97+4*k)}"); e(f"v_cvt_pk_bf16_f32 {v(65+2*k)}, {v(98+4*k)}, {v(99+4*k)}")
        e(f"buffer_store_dwordx2 {v(64+2*k,2)}, v56, {s(sSRD,4)}, s6 offen offset:{512*k} sc1")
    return trick[ti:]

NCSK, NCSV, NCSQ = 2, 4, 6
XRES = 184
def ones_regs(r):
    for i in range(4): e(f"v_mov_b32 {v(r+i)}, 0x3f803f80")
def colsums():
    ON = 152
    for ks in range(16):
        c0 = lambda r: "0" if ks == 0 else v(r, 4)
        e(f"v_mfma_f32_16x16x32_bf16 v[28:31], {v(ON,4)}, {a((0*16+ks)*4,4)}, {c0(28)}")
        e(f"v_mfma_f32_16x16x32_bf16 v[32:35], {v(ON,4)}, {a((1*16+ks)*4,4)}, {c0(32)}")
        e(f"v_mfma_f32_16x16x32_bf16 v[36:39], {a((2*16+ks)*4,4)}, {v(ON,4)}, {c0(36)}")
    e(f"v_sub_f32 {v(NCSK)}, 0, v28"); e(f"v_sub_f32 {v(NCSK+1)}, 0, v28")
    e(f"v_sub_f32 {v(NCSV)}, 0, v32"); e(f"v_sub_f32 {v(NCSV+1)}, 0, v32")
    for i in range(4): e(f"v_sub_f32 {v(NCSQ+i)}, 0, {v(36+i)}")

TA = 12
gXE, gXO, gSW, gS4, gQA, gPQ, gKV = 156, 157, 158, 160, 164, 168, 169
def g_setup(layer):
    xt = XT1 if layer == 1 else XT3
    e("v_lshrrev_b32 v10, 3, v1"); e(f"v_mul_u32_u24 v10, {PITCH}, v10")
    e("v_bfe_u32 v11, v1, 4, 2"); e("v_lshlrev_b32 v11, 1, v11"); e("v_and_b32 v16, 7, v1"); e("v_xor_b32 v11, v11, v16")
    e("v_lshl_add_u32 v10, v11, 4, v10")
    e(f"s_lshl_b32 {s(sT)}, {s(sRS)}, 7"); e(f"v_add_u32 v19, {s(sT)}, v10")
    e(f"s_mul_i32 s4, {s(sWAVE)}, {32*PITCH}"); e(f"s_add_u32 s4, s4, {xt}")
    e(f"s_lshl_b32 s5, {s(sWAVE)}, 12"); e(f"s_add_u32 s5, s5, {AT}")
    e("v_lshrrev_b32 v10, 2, v1"); e("v_lshlrev_b32 v10, 7, v10"); e("v_and_b32 v11, 3, v1"); e("v_lshl_add_u32 v10, v11, 3, v10")
    e(f"v_add_u32 v10, {AT}, v10"); e("v_bfe_u32 v11, v1, 3, 2")
    for j in range(4):
        e(f"s_add_u32 {s(sT)}, {s(sWAVE)}, {j}"); e(f"s_and_b32 {s(sT)}, {s(sT)}, 3"); e(f"s_lshl_b32 {s(sM+j)}, {s(sT)}, 6")
        e(f"v_xor_b32 v16, {s(sT)}, v11"); e(f"v_lshl_add_u32 {v(TA+j)}, v16, 5, v10")
    ones_regs(152)
    e("v_lshrrev_b32 v11, 5, v1"); e("v_lshlrev_b32 v11, 4, v11"); e("v_bfe_u32 v16, v1, 2, 2"); e("v_add_u32 v11, v11, v16")
    e(f"s_lshl_b32 {s(sT)}, {s(sJO)}, 7"); e(f"s_lshl_b32 {s(sT+1)}, {s(sWAVE)}, 5"); e(f"s_add_u32 {s(sT)}, {s(sT)}, {s(sT+1)}")
    e(f"v_add_u32 v11, {s(sT)}, v11"); e("v_lshlrev_b32 v11, 7, v11")
    e("v_and_b32 v16, 3, v1"); e("v_lshl_add_u32 v11, v16, 3, v11"); e(f"v_add_u32 v11, {AT}, v11")
    e(f"s_and_b32 {s(sT)}, {s(sJ)}, 1"); e(f"s_lshl_b32 {s(sT)}, {s(sT)}, 1")
    e("v_bfe_u32 v16, v1, 4, 1"); e(f"v_add_u32 v16, {s(sT)}, v16"); e("v_bfe_u32 v17, v1, 3, 1"); e("v_xor_b32 v16, v16, v17")
    e(f"v_lshl_add_u32 {v(gXE)}, v16, 5, v11"); e("v_xor_b32 v16, 2, v16"); e(f"v_lshl_add_u32 {v(gXO)}, v16, 5, v11")
    e("v_and_b32 v10, 15, v1"); e("v_lshlrev_b32 v10, 2, v10"); e(f"v_add_u32 v11, {ST}, v10")
    e(f"s_lshl_b32 {s(sT)}, {s(sWAVE)}, 6"); e(f"v_add_u32 {v(gSW)}, {s(sT)}, v11")
    e("v_lshrrev_b32 v10, 4, v1"); e("v_lshlrev_b32 v10, 4, v10"); e(f"v_add_u32 v10, {ST}, v10")
    for j in range(4):
        e(f"v_add_u32 {v(gS4+j)}, {s(sM+j)}, v10"); e(f"v_add_u32 {v(gQA+j)}, {s(sM+j)}, v11")
    e("v_and_b32 v10, 15, v1"); e("v_lshlrev_b32 v10, 4, v10"); e("v_bfe_u32 v11, v1, 4, 1"); e("v_lshl_add_u32 v10, v11, 3, v10")
    e("v_lshrrev_b32 v11, 5, v1"); e(f"v_lshl_add_u32 {v(gPQ)}, v11, 10, v10")
    e("v_lshrrev_b32 v10, 4, v1"); e("v_lshlrev_b32 v10, 8, v10"); e("v_and_b32 v11, 15, v1"); e(f"v_lshl_add_u32 {v(gKV)}, v11, 2, v10")
    e(f"v_lshlrev_b32 v183, 2, v1")
    kvp_addr(KVP1 if layer == 1 else KVP2, 6)
    pq_addr(PQ1 if layer == 1 else PQ2, 7)
    e(f"s_lshl_b32 {s(sT)}, {s(sJ)}, 5"); e(f"s_mul_i32 {s(sT)}, {s(sT)}, {KVW}")
    e(f"s_lshr_b32 {s(sT+1)}, {s(sRS)}, 3"); e(f"s_mul_i32 {s(sT+1)}, {s(sT+1)}, {KVH}"); e(f"s_add_u32 {s(sT)}, {s(sT)}, {s(sT+1)}")
    e(f"s_add_u32 s3, {s(sT)}, {KVP1 if layer == 1 else KVP2}")
    e(f"s_and_b32 {s(sT+2)}, {s(sRS)}, 7")
    e(f"s_cmp_eq_u32 {s(sWAVE)}, 2")
    e(f"s_cselect_b32 {s(sT+3)}, 3, 7"); e(f"s_cselect_b32 {s(sT+4)}, 1, 0")
    e(f"s_mov_b32 s42, 0x0f0f0f0f"); e("s_cselect_b32 s42, s42, -1"); e("s_mov_b32 s43, s42")
    e(f"s_lshl_b32 {s(sT+5)}, {s(sT+2)}, 7"); e(f"s_cmp_eq_u32 {s(sWAVE)}, 2"); e(f"s_cselect_b32 {s(sT+5)}, 1024, {s(sT+5)}")
    e(f"s_lshl_b32 {s(sT+6)}, {s(sT+2)}, 6"); e(f"s_cselect_b32 {s(sT+6)}, 512, {s(sT+6)}") if False else None
    e("v_lshrrev_b32 v10, 3, v1"); e(f"v_mul_u32_u24 v10, {KVW}, v10"); e(f"v_and_b32 v11, {s(sT+3)}, v1"); e("v_lshl_add_u32 v11, v11, 4, v10")
    e(f"v_add_u32 v170, {s(sT+5)}, v11")
    e(f"s_lshl_b32 {s(sT+6)}, {s(sT+2)}, 6"); e(f"s_cmp_eq_u32 {s(sWAVE)}, 2"); e(f"s_cselect_b32 {s(sT+6)}, 512, {s(sT+6)}")
    e("v_lshrrev_b32 v10, 3, v1"); e(f"v_mul_u32_u24 v10, {FRP}, v10"); e("v_and_b32 v11, 7, v1"); e("v_lshl_add_u32 v10, v11, 3, v10")
    e(f"v_add_u32 v171, {s(sT+6)}, v10")
    f_addr(F1 if layer == 1 else F2, 40)
    e(f"s_cmp_eq_u32 {s(sT+2)}, 0"); e(f"s_cselect_b32 {s(sT+3)}, 2, 3"); e(f"s_cmp_ge_u32 {s(sWAVE)}, {s(sT+3)}"); e("s_cselect_b32 s41, 1, 0")
    e("v_and_b32 v10, 3, v1")
    e(f"v_cmp_eq_u32 {s(sM+4,2)}, 1, v10"); e(f"v_cmp_eq_u32 {s(sM+6,2)}, 2, v10"); e(f"v_cmp_eq_u32 s[2:3], 3, v10") if False else None
    if layer == 1:
        e("v_lshlrev_b32 v18, 4, v1")
        e(f"s_lshl_b32 {s(sW)}, {s(sJO)}, 2"); e(f"s_add_u32 {s(sW)}, {s(sW)}, {s(sWAVE)}")
        e(f"s_lshl_b32 {s(sW)}, {s(sW)}, 15"); e(f"s_add_u32 {s(sW)}, {s(sW)}, {WFO}")

def gphase(layer):
    kvp = KVP1 if layer == 1 else KVP2
    ff = F1 if layer == 1 else F2
    def dma(c, i):
        return [f"s_add_u32 {s(sT)}, s4, {(128*c + 8*i)*PITCH}", f"s_add_u32 m0, s5, {c*16384 + i*1024}",
                f"buffer_load_dwordx4 v19, {s(sSRD,4)}, {s(sT)} offen sc1 lds"]
    e(f"v_lshl_add_u32 v21, v1, 4, s5")
    def check_reads(c): return [f"ds_read_b32 {v(56+i)}, v21 offset:{c*16384 + i*1024}" for i in range(4)]
    def validate(c, first=False):
        lr = lab("gv"); lg = lab("gvk"); lx = lab("gvx")
        A.label(lr)
        for l in check_reads(c): e(l)
        e("s_waitcnt lgkmcnt(0)")
        maxtree([56, 57, 58, 59], 56)
        e("v_cmp_eq_u32 vcc, -1, v56")
        e(f"s_cbranch_vccz {lg}")
        e(f"s_sub_u32 {s(sSPIN)}, {s(sSPIN)}, 1"); e(f"s_cbranch_scc1 {lx}")
        if OPTS.get("cntv"): e(f"s_add_u32 s{96 if c == 0 else 98}, s{96 if c == 0 else 98}, 1")
        if int(OPTS.get("vbk", 4)): e(f"s_sleep {OPTS.get('vbk', 4)}")
        if first:
            for cc in range(3):
                for i in range(4):
                    for l in dma(cc, i): e(l)
            e("s_waitcnt vmcnt(8)")
        else:
            for i in range(4):
                for l in dma(c, i): e(l)
            e("s_waitcnt vmcnt(0)")
        e(f"s_branch {lr}")
        A.label(lx); e(f"s_mov_b32 {s(sSPIN)}, 0")
        A.label(lg)
    e("s_barrier")
    if int(OPTS.get("gpre", 0)): e(f"s_sleep {OPTS.get('gpre')}")
    for c in range(3):
        for i in range(4):
            for l in dma(c, i): e(l)
    late = [dma(3, i) for i in range(4)]
    XF = [64, 80]
    AK, AV, AQ, GR, RS_, ON = 96, 112, 128, 144, 148, 152
    trick = ow_loads() if layer == 1 else []
    if layer == 1:
        for i in range(4): e(f"v_mov_b32 {v(176+i)}, -1")
        e(f"s_lshr_b32 s62, {s(sWAVE)}, 1"); e(f"s_lshl_b32 s61, {s(sCP)}, 1"); e("s_add_u32 s62, s62, s61"); e(f"s_mul_i32 s62, s62, {PITCH}")
        e(f"s_and_b32 s61, {s(sWAVE)}, 1"); e("s_lshl_b32 s61, s61, 11"); e("s_add_u32 s62, s62, s61"); e(f"s_add_u32 s62, s62, {XT3}")
        e(f"s_lshl_b32 s63, {s(sJO)}, 7"); e(f"s_lshl_b32 s61, {s(sWAVE)}, 5"); e("s_add_u32 s63, s63, s61"); e("s_lshl_b32 s63, s63, 6")
        e(f"s_mul_i32 s61, {s(sRO)}, {ROP}"); e("s_add_u32 s63, s63, s61"); e(f"s_add_u32 s63, s63, {U2T}")
        e(f"s_lshl_b32 s60, {s(sRO)}, 2"); e(f"s_add_u32 s60, s60, {s(sJO)}"); e("s_lshl_b32 s60, s60, 8"); e(f"s_add_u32 s60, s60, {SP}")
        fl = [[f"buffer_store_dwordx4 v[176:179], v18, {s(sSRD,4)}, s62 offen sc1"], [f"buffer_store_dwordx4 v[176:179], v18, {s(sSRD,4)}, s62 offen offset:1024 sc1"],
              [f"buffer_store_dwordx4 v[176:179], v18, {s(sSRD,4)}, s63 offen sc1"], [f"buffer_store_dwordx4 v[176:179], v18, {s(sSRD,4)}, s63 offen offset:1024 sc1"],
              [f"buffer_store_dword v176, v183, {s(sSRD,4)}, s60 offen sc1"]]
        for i_, g_ in enumerate(fl): trick.insert(2 * i_ + 1, g_)
        LASTFILL = 2 * (len(fl) - 1) + 1
    def reads(ks, base=None):
        b = XF[ks & 1] if base is None else base
        out = []
        for j in range(4):
            out.append(f"ds_read_b64_tr_b16 {v(b+4*j,2)}, {v(TA+j)} offset:{ks*4096}")
            out.append(f"ds_read_b64_tr_b16 {v(b+4*j+2,2)}, {v(TA+j)} offset:{ks*4096+2048}")
        return out
    stamp(f"g{layer}_iss")
    e("s_waitcnt vmcnt(8)")
    validate(0, first=True)
    e("s_barrier")
    stamp(f"g{layer}_ld0")
    for l in reads(0): e(l)
    st_ = {"ti": 0, "nw": 0, "nm": 0}
    TRG = int(OPTS.get("trg", 5))
    def trickle(ok):
        st_["nm"] += 1
        if ok and st_["ti"] < len(trick) and st_["nm"] % TRG == 0:
            for l in trick[st_["ti"]]: e(l)
            st_["ti"] += 1; st_["nw"] += 1
    for ks in range(16):
        nxt = []
        if ks < 15:
            if (ks + 1) % 4 == 0: e("s_barrier")
            nxt = reads(ks + 1)
        x = XF[ks & 1]
        if ks in (2, 3, 4, 6, 7, 8, 10, 11, 12): stamp(f"g{layer}_k{ks}")
        e("s_waitcnt lgkmcnt(0)")
        eval_c = (ks + 2) // 4 if (ks < 14 and (ks + 2) % 4 == 0) else None
        if ks < 13 and (ks + 3) % 4 == 0:
            c = (ks + 3) // 4
            issued3 = 4 - len(late)
            y = {1: 4 + issued3, 2: issued3, 3: 0}[c] + st_["nw"]
            e(f"s_waitcnt vmcnt({min(63, y)})")
            nxt = nxt + check_reads(c)
        z = lambda r: "0" if ks == 0 else v(r, 4)
        mf = []
        for j in range(4):
            mf.append(f"v_mfma_f32_16x16x32_bf16 {v(AK+4*j,4)}, {v(x+4*j,4)}, {a((0*16+ks)*4,4)}, {z(AK+4*j)}")
            mf.append(f"v_mfma_f32_16x16x32_bf16 {v(AV+4*j,4)}, {v(x+4*j,4)}, {a((1*16+ks)*4,4)}, {z(AV+4*j)}")
        mf.insert(1, f"v_mfma_f32_16x16x32_bf16 {v(GR,4)}, {v(x,4)}, {v(x,4)}, {z(GR)}")
        mf.insert(3, f"v_mfma_f32_16x16x32_bf16 {v(RS_,4)}, {v(ON,4)}, {v(x,4)}, {z(RS_)}")
        pend = list(nxt)
        if ks == 15:
            gr = mf.pop(1); rs = mf.pop(2)
            mf = [gr, rs] + mf
            def stats_code():
                e("v_and_b32 v10, 3, v1")
                e(f"v_cmp_eq_u32 {s(sM+4,2)}, 1, v10"); e(f"v_cmp_eq_u32 {s(sM+6,2)}, 2, v10"); e("v_cmp_eq_u32 vcc, 3, v10")
                e(f"v_cndmask_b32 v11, {v(GR)}, {v(GR+1)}, {s(sM+4,2)}")
                e(f"v_cndmask_b32 v11, v11, {v(GR+2)}, {s(sM+6,2)}")
                e(f"v_cndmask_b32 v11, v11, {v(GR+3)}, vcc")
                stats_final(RS_, 11, 16, 17, 20)
                e("v_mul_f32 v16, v16, v17")
            sc = capture(stats_code)
            head, tail = sc[:4], sc[4:]
            pend = []
        for m_i, m_ in enumerate(mf):
            e(m_)
            if ks == 15:
                if m_i in (0, 1):
                    for _ in range(2): e(head.pop(0))
                elif m_i >= 4:
                    for _ in range(4):
                        if tail: e(tail.pop(0))
                if m_i == len(mf) - 1:
                    while tail: e(tail.pop(0))
            if pend: e(pend.pop(0))
            if eval_c is not None:
                if m_i == 2: e("v_max3_u32 v56, v56, v57, v58")
                if m_i == 4: e("v_max_u32 v56, v56, v59")
                if m_i == 6: e("v_cmp_eq_u32 vcc, -1, v56")
            if m_i == len(mf) - 1:
                while pend: e(pend.pop(0))
                if eval_c is not None:
                    lok = lab("gok")
                    e(f"s_cbranch_vccz {lok}")
                    if OPTS.get("cntv"): e(f"s_add_u32 s97, s97, {1 << (8*(eval_c-1))}")
                    for i in range(4):
                        for l in dma(eval_c, i): e(l)
                    e("s_waitcnt vmcnt(0)")
                    validate(eval_c)
                    A.label(lok)
            if late and m_i in (1, 4, 7):
                for l in late.pop(0): e(l)
            trickle(ks >= 4)
    stamp(f"g{layer}_mm")
    e(f"s_mov_b32 {s(sT+2)}, 0x00f0000f"); e(f"s_mov_b32 {s(sT+3)}, 0xf0000f00")
    e(f"s_mov_b64 exec, {s(sT+2,2)}")
    e(f"ds_write_b32 {v(gSW)}, v17"); e(f"ds_write_b32 {v(gSW)}, v16 offset:256")
    e("s_mov_b64 exec, -1")
    for jj in range(4):
        e(f"ds_read_b64_tr_b16 {v(XRES+2*jj,2)}, {v(gXE + (jj & 1))} offset:{512*jj}")
    R4, M4, RQ, MQ = 24, 40, 56, 176
    e("s_waitcnt lgkmcnt(0)"); e("s_barrier")
    for j in range(4):
        e(f"ds_read_b128 {v(R4+4*j,4)}, {v(gS4+j)}"); e(f"ds_read_b128 {v(M4+4*j,4)}, {v(gS4+j)} offset:256")
    for j in range(4):
        e(f"ds_read_b32 {v(RQ+2*j)}, {v(gQA+j)}"); e(f"ds_read_b32 {v(MQ+2*j)}, {v(gQA+j)} offset:256")
    stamp(f"g{layer}_st")
    PK, VV = 72, 80
    def phi2(items):
        for (rp, acc, mp, ncs, dst, T, bro) in items:
            e(f"v_pk_fma_f32 {v(T,2)}, {v(mp,2)}, {v(ncs,2)}, {s(sEPS6,2)}" + (" op_sel_hi:[0,1,1]" if bro else ""))
        for (rp, acc, mp, ncs, dst, T, bro) in items:
            e(f"v_pk_fma_f32 {v(T,2)}, {v(rp,2)}, {v(acc,2)}, {v(T,2)}" + (" op_sel_hi:[0,1,1]" if bro else ""))
        for (rp, acc, mp, ncs, dst, T, bro) in items: e(f"v_pk_mul_f32 {v(T+2,2)}, {v(T,2)}, {s(sLOG2E,2)}")
        for (rp, acc, mp, ncs, dst, T, bro) in items:
            e(f"v_exp_f32 {v(T+2)}, {v(T+2)} clamp"); e(f"v_exp_f32 {v(T+3)}, {v(T+3)} clamp")
        for (rp, acc, mp, ncs, dst, T, bro) in items:
            e(f"v_max_f32 {v(T)}, {s(sEPS6)}, {v(T)}"); e(f"v_max_f32 {v(T+1)}, {s(sEPS6)}, {v(T+1)}")
        for (rp, acc, mp, ncs, dst, T, bro) in items: e(f"v_pk_add_f32 {v(T,2)}, {v(T,2)}, {v(T+2,2)}")
        for (rp, acc, mp, ncs, dst, T, bro) in items: e(f"v_cvt_pk_bf16_f32 {v(dst)}, {v(T)}, {v(T+1)}")
    for j in range(4):
        e(f"s_waitcnt lgkmcnt({min(15, 8 + 2*(3-j))})")
        items = [(R4+4*j+2*hp, AK+4*j+2*hp, M4+4*j+2*hp, NCSK, PK+2*j+hp, 88 + 4*hp, False) for hp in range(2)]
        for hp in range(2):
            T = 104 + 2*hp if False else 172 + 2*hp
            e(f"v_pk_mul_f32 {v(T,2)}, {v(M4+4*j+2*hp,2)}, {v(NCSV,2)}")
        for hp in range(2):
            T = 172 + 2*hp
            e(f"v_pk_fma_f32 {v(T,2)}, {v(R4+4*j+2*hp,2)}, {v(AV+4*j+2*hp,2)}, {v(T,2)}")
        phi2(items)
        for hp in range(2):
            T = 172 + 2*hp
            e(f"v_cvt_pk_bf16_f32 {v(VV+2*j+hp)}, {v(T)}, {v(T+1)}")
        if j == 1:
            e(f"v_mfma_f32_16x16x32_bf16 {v(GR,4)}, {v(VV,4)}, {v(PK,4)}, 0")
            e(f"v_mfma_f32_16x16x32_bf16 {v(RS_,4)}, {v(ON,4)}, {v(PK,4)}, 0")
    e(f"v_mfma_f32_16x16x32_bf16 {v(GR,4)}, {v(VV+4,4)}, {v(PK+4,4)}, {v(GR,4)}")
    e(f"v_mfma_f32_16x16x32_bf16 {v(RS_,4)}, {v(ON,4)}, {v(PK+4,4)}, {v(RS_,4)}")
    PQR = 96
    if layer == 1:
        assert st_["ti"] > LASTFILL
        e(f"s_waitcnt vmcnt({min(63, st_['ti'] - 1 - LASTFILL)}) lgkmcnt(0)")
    e("s_waitcnt lgkmcnt(0)")
    for i in range(4):
        e(f"buffer_store_dword {v(GR+i)}, {v(gKV)}, {s(sSRD,4)}, s6 offen offset:{64*i} sc1")
    e("s_mov_b64 exec, 0xffff")
    e(f"buffer_store_dword {v(RS_)}, v183, {s(sSRD,4)}, s6 offen offset:1024 sc1")
    e("s_mov_b64 exec, -1")
    stamp(f"g{layer}_kv")
    def red_loads():
        for i in range(4):
            e(f"s_add_u32 {s(sT+4)}, s3, {8*i*KVW}")
            e(f"buffer_load_dwordx4 {v(24+4*i,4)}, v170, {s(sSRD,4)}, {s(sT+4)} offen sc1")
    RLK = int(OPTS.get("rlk", 11))
    QS = [64, 80, 112]
    for l in reads(0, QS[0]): e(l)
    for l in reads(1, QS[1]): e(l)
    for ks in range(16):
        nxt = reads(ks + 2, QS[(ks + 2) % 3]) if ks < 14 else []
        x = QS[ks % 3]
        e(f"s_waitcnt lgkmcnt({8 if ks < 15 else 0})")
        z = lambda r: "0" if ks == 0 else v(r, 4)
        if ks == RLK:
            lsk = lab("rl")
            e("s_cmp_eq_u32 s41, 0"); e(f"s_cbranch_scc1 {lsk}")
            red_loads()
            A.label(lsk)
        for j in range(4):
            e(f"v_mfma_f32_16x16x32_bf16 {v(AQ+4*j,4)}, {a((2*16+ks)*4,4)}, {v(x+4*j,4)}, {z(AQ+4*j)}")
            for l in nxt[2*j:2*j+2]: e(l)
            if j % 2 == 0 and st_["ti"] < len(trick):
                for l in trick[st_["ti"]]: e(l)
                st_["ti"] += 1
    stamp(f"g{layer}_q")
    for j in range(0, 4, 2):
        phi2([(RQ+2*(j+jj), AQ+4*(j+jj)+2*hp, MQ+2*(j+jj), NCSQ+2*hp, PQR+2*(j+jj)+hp, 64 + 8*jj + 4*hp, True) for jj in range(2) for hp in range(2)])
    for j in range(4):
        e(f"s_lshl_b32 {s(sT+2)}, {s(sM+j)}, 2"); e(f"s_add_u32 {s(sT+2)}, {s(sT+2)}, s7")
        e(f"buffer_store_dwordx2 {v(PQR+2*j,2)}, {v(gPQ)}, {s(sSRD,4)}, {s(sT+2)} offen sc1")
    for ins in trick[st_["ti"]:]:
        for l in ins: e(l)
    lred = lab("red")
    e("s_cmp_eq_u32 s41, 0"); e(f"s_cbranch_scc1 {lred}")
    lr = lab("rp"); lg = lab("rg"); l0 = lab("r0")
    e(f"s_waitcnt vmcnt({4 + len(trick[st_['ti']:])})")
    e(f"s_branch {l0}")
    A.label(lr)
    red_loads()
    e("s_waitcnt vmcnt(0)")
    A.label(l0)
    maxtree([24, 28, 32, 36], 56)
    e("v_cmp_eq_u32 vcc, -1, v56")
    spin_check(lr, lg, cid=3+layer)
    stamp(f"r{layer}_ok")
    e("v_pk_add_f32 v[24:25], v[24:25], v[28:29]"); e("v_pk_add_f32 v[26:27], v[26:27], v[30:31]")
    e("v_pk_add_f32 v[32:33], v[32:33], v[36:37]"); e("v_pk_add_f32 v[34:35], v[34:35], v[38:39]")
    e("v_pk_add_f32 v[24:25], v[24:25], v[32:33]"); e("v_pk_add_f32 v[26:27], v[26:27], v[34:35]")
    regs = [24, 25, 26, 27]
    for r in regs: e(f"v_add_f32_dpp {v(r)}, {v(r)}, {v(r)} row_ror:8 row_mask:0xf bank_mask:0xf")
    for r in regs: e(f"v_mov_b32 {v(r+4)}, {v(r)}")
    for r in regs: e(f"v_permlane16_swap_b32 {v(r)}, {v(r+4)}")
    for r in regs: e(f"v_add_f32 {v(r)}, {v(r)}, {v(r+4)}")
    for r in regs: e(f"v_mov_b32 {v(r+4)}, {v(r)}")
    for r in regs: e(f"v_permlane32_swap_b32 {v(r)}, {v(r+4)}")
    for r in regs: e(f"v_add_f32 {v(r)}, {v(r)}, {v(r+4)}")
    e("v_cvt_pk_bf16_f32 v28, v24, v25"); e("v_cvt_pk_bf16_f32 v29, v26, v27")
    e("s_mov_b64 exec, s[42:43]")
    e(f"buffer_store_dwordx2 v[28:29], v171, {s(sSRD,4)}, s40 offen sc1")
    e("s_mov_b64 exec, -1")
    A.label(lred)

def ophase(layer):
    pq = PQ1 if layer == 1 else PQ2
    ff = F1 if layer == 1 else F2
    KF, PQF = 24, 56
    e("v_and_b32 v10, 31, v1"); e("v_min_u32 v10, 16, v10")
    e("v_lshlrev_b32 v10, 5, v10"); e("v_lshrrev_b32 v11, 5, v1"); e("v_lshl_add_u32 v10, v11, 4, v10")
    e(f"s_lshl_b32 {s(sT)}, {s(sWAVE)}, 3"); e(f"s_mul_i32 s4, {s(sT)}, {FP}"); e(f"s_add_u32 s4, s4, {ff}")
    e(f"s_mul_i32 {s(sT+1)}, {s(sXCD)}, {FRP}"); e(f"s_add_u32 s4, s4, {s(sT+1)}")
    e("v_and_b32 v11, 31, v1"); e("v_lshlrev_b32 v11, 4, v11"); e("v_lshrrev_b32 v12, 5, v1"); e("v_lshl_add_u32 v11, v12, 10, v11")
    e(f"s_mul_i32 s5, {s(sT)}, {HP}"); e(f"s_add_u32 s5, s5, {pq}")
    e(f"s_lshl_b32 {s(sT+3)}, {s(sRS)}, 11"); e(f"s_add_u32 s5, s5, {s(sT+3)}")
    e(f"s_and_b32 {s(sT+3)}, {s(sRO)}, 1"); e(f"s_lshl_b32 {s(sT+3)}, {s(sT+3)}, 9"); e(f"s_add_u32 s5, s5, {s(sT+3)}")
    e(f"s_mul_i32 s3, {s(sWAVE)}, 5120"); e(f"s_add_u32 s3, s3, {AT + 32768}")
    e("v_add_u32 v10, s3, v10"); e("v_lshlrev_b32 v19, 4, v1")
    e(f"s_lshl_b32 {s(sT)}, {s(sWAVE)}, 13"); e(f"s_add_u32 {s(sT)}, {s(sT)}, {OT}")
    e(f"v_lshl_add_u32 v12, v1, 4, {s(sT)}")
    e(f"v_lshlrev_b32 v13, 4, v1"); e(f"v_add_u32 v13, {OT}, v13")
    if layer == 1:
        e("v_and_b32 v14, 31, v1"); e(f"v_mul_u32_u24 v14, {TBP}, v14"); e("v_lshrrev_b32 v15, 5, v1"); e("v_lshl_add_u32 v14, v15, 5, v14")
        e(f"s_mul_i32 {s(sT+4)}, {s(sWAVE)}, {32*TBP}"); e(f"s_add_u32 {s(sT+4)}, {s(sT+4)}, {TB}"); e(f"v_add_u32 v14, {s(sT+4)}, v14")
        e("v_lshrrev_b32 v15, 4, v1"); e("v_lshlrev_b32 v15, 3, v15"); e("v_bfe_u32 v16, v1, 2, 2"); e("v_add_u32 v15, v15, v16")
        e(f"v_mul_u32_u24 v15, {TBP}, v15"); e("v_and_b32 v16, 3, v1"); e("v_lshl_add_u32 v15, v16, 3, v15"); e(f"v_add_u32 v15, {s(sT+4)}, v15")
        e("v_and_b32 v16, 15, v1"); e(f"v_lshlrev_b32 v16, 6, v16"); e("v_lshrrev_b32 v17, 4, v1"); e("v_lshl_add_u32 v16, v17, 4, v16")
        e(f"s_lshl_b32 s6, {s(sJO)}, 7"); e(f"s_lshl_b32 {s(sT+1)}, {s(sWAVE)}, 5"); e(f"s_add_u32 s6, s6, {s(sT+1)}")
        e(f"s_lshl_b32 s6, s6, 6"); e(f"s_mul_i32 {s(sT+1)}, {s(sRO)}, {ROP}"); e(f"s_add_u32 s6, s6, {s(sT+1)}")
        e(f"s_add_u32 s6, s6, {X2T}")
        e("v_bfe_u32 v17, v1, 1, 2"); e("v_lshlrev_b32 v17, 12, v17"); e("v_bfe_u32 v18, v1, 3, 2"); e("v_lshl_add_u32 v17, v18, 4, v17")
        e("v_and_b32 v18, 1, v1"); e("v_lshl_add_u32 v17, v18, 3, v17"); e("v_lshrrev_b32 v18, 5, v1"); e("v_lshl_add_u32 v17, v18, 2, v17")
        e(f"s_lshl_b32 s7, {s(sRO)}, 6"); e(f"s_add_u32 s7, s7, {S3}")
    else:
        e("v_and_b32 v14, 31, v1"); e("v_lshlrev_b32 v14, 10, v14"); e("v_lshrrev_b32 v15, 5, v1"); e("v_lshl_add_u32 v14, v15, 5, v14")
        e(f"s_lshl_b32 {s(sT)}, {s(sRO)}, 15"); e(f"s_lshl_b32 {s(sT+1)}, {s(sJO)}, 8"); e(f"s_add_u32 {s(sT)}, {s(sT)}, {s(sT+1)}")
        e(f"s_lshl_b32 {s(sT+1)}, {s(sWAVE)}, 6"); e(f"s_add_u32 {s(sT)}, {s(sT)}, {s(sT+1)}")
        e(f"v_add_u32 v14, {s(sT)}, v14")
    XF = 104
    def pq_loads():
        for h in range(8):
            e(f"s_add_u32 {s(sT+3)}, s5, {h*HP}")
            e(f"buffer_load_dwordx4 {v(PQF+4*h,4)}, v11, {s(sSRD,4)}, {s(sT+3)} offen sc1")
    e("s_barrier")
    stamp(f"o{layer}_gate")
    if STAMPS and f"o{layer}_cnt" in STSET: e("s_mov_b32 s101, 0")
    if STAMPS and f"o{layer}_st0" in STSET:
        e("s_waitcnt vmcnt(0)"); stamp(f"o{layer}_st0")
    pq_loads()
    if STAMPS and f"o{layer}_pq" in STSET:
        stamp(f"o{layer}_pqi"); e("s_waitcnt vmcnt(0)"); stamp(f"o{layer}_pq")
    if int(OPTS.get("osl", 0)): e(f"s_sleep {OPTS.get('osl')}")
    lr = lab("of"); lg = lab("ofk")
    A.label(lr)
    for i in range(5):
        e(f"s_add_u32 {s(sT+3)}, s4, {1024*i}"); e(f"s_add_u32 m0, s3, {1024*i}")
        e(f"buffer_load_dwordx4 v19, {s(sSRD,4)}, {s(sT+3)} offen sc1 lds")
    e("s_waitcnt vmcnt(0)")
    for h in range(8): e(f"ds_read_b128 {v(KF+4*h,4)}, v10 offset:{h*FP}")
    e("s_waitcnt lgkmcnt(0)")
    if STAMPS and f"o{layer}_cnt" in STSET: e("s_add_u32 s101, s101, 1")
    maxtree([KF+4*h+o for h in range(8) for o in (0, 2)], 18)
    e("v_cmp_eq_u32 vcc, -1, v18")
    spin_check(lr, lg, cid=1+layer)
    stamp(f"o{layer}_fok")
    if STAMPS and f"o{layer}_cnt" in STSET:
        i = len(stnames); stnames.append(f"o{layer}_cnt"); e(f"s_mov_b32 s{84+i}, s101")
    lr = lab("oq"); lg = lab("oqk")
    A.label(lr)
    maxtree([PQF+4*h+o for h in range(8) for o in (0, 2)], 18)
    e("v_cmp_eq_u32 vcc, -1, v18")
    e(f"s_cbranch_vccz {lg}")
    e(f"s_sub_u32 {s(sSPIN)}, {s(sSPIN)}, 1"); e(f"s_cbranch_scc1 {lg}_x")
    pq_loads()
    e("s_waitcnt vmcnt(0)")
    e(f"s_branch {lr}")
    A.label(lg + "_x"); e(f"s_mov_b32 {s(sSPIN)}, 0")
    A.label(lg)
    stamp(f"o{layer}_ld")
    DB = [88, 104, 120, 136, 152, 168, 24, 56]
    def m1(h): e(f"v_mfma_f32_32x32x16_bf16 {v(DB[h],16)}, {v(KF+4*h,4)}, {v(PQF+4*h,4)}, 0")
    def proc2(h0):
        hs = (h0, h0 + 1)
        for h in hs: e(f"v_add_f32 {v(DB[h]+8)}, {s(sEPS6)}, {v(DB[h]+8)}")
        for h in hs: e(f"v_rcp_f32 {v(DB[h]+8)}, {v(DB[h]+8)}")
        for k in range(4):
            for h in hs: e(f"v_pk_mul_f32 {v(DB[h]+2*k,2)}, {v(DB[h]+2*k,2)}, {v(DB[h]+8,2)} op_sel_hi:[1,0]")
        for h in hs:
            for k in range(4): e(f"v_cvt_pk_bf16_f32 {v(DB[h]+10+k)}, {v(DB[h]+2*k)}, {v(DB[h]+2*k+1)}")
            e(f"ds_write_b128 v12, {v(DB[h]+10,4)} offset:{1024*h}")
    for h in range(6): m1(h)
    proc2(0)
    m1(6); m1(7)
    proc2(2); proc2(4); proc2(6)
    stamp(f"o{layer}_m1")
    e("s_waitcnt lgkmcnt(0)"); e("s_barrier")
    ACC = 24; NB = 8; OF = [56 + 4*i for i in range(NB)]
    for h in range(NB): e(f"ds_read_b128 {v(OF[h],4)}, v13 offset:{1024*h}")
    for k in range(8):
        e(f"v_lshlrev_b32 {v(XF+2*k)}, 16, {v(XRES+k)}"); e(f"v_and_b32 {v(XF+2*k+1)}, {s(sHI)}, {v(XRES+k)}")
    for h in range(32):
        e(f"s_waitcnt lgkmcnt({min(NB-1, 31-h)})")
        w_ = a(192 + 4*h, 4) if h < 16 else v(192 + 4*(h-16), 4)
        c_ = "0" if h == 0 else v(ACC, 16)
        e(f"v_mfma_f32_32x32x16_bf16 {v(ACC,16)}, {w_}, {v(OF[h % NB],4)}, {c_}")
        if h + NB < 32: e(f"ds_read_b128 {v(OF[h % NB],4)}, v13 offset:{1024*(h+NB)}")
    stamp(f"o{layer}_g2")
    for k in range(8): e(f"v_pk_add_f32 {v(XF+2*k,2)}, {v(XF+2*k,2)}, {v(ACC+2*k,2)}")
    PKD = 120
    for k in range(8): e(f"v_cvt_pk_bf16_f32 {v(PKD+k)}, {v(XF+2*k)}, {v(XF+2*k+1)}")
    if layer == 2:
        fl = OPTS.get("outfl", "").replace("_", " ")
        e(f"global_store_dwordx4 v14, {v(PKD,4)}, {s(sOUT,2)} {fl}")
        e(f"global_store_dwordx4 v14, {v(PKD+4,4)}, {s(sOUT,2)} offset:16 {fl}")
        return
    e(f"ds_write_b128 v14, {v(PKD,4)}"); e(f"ds_write_b128 v14, {v(PKD+4,4)} offset:16")
    e(f"v_pk_add_f32 v[64:65], {v(XF,2)}, {v(XF+2,2)}"); e(f"v_pk_mul_f32 v[66:67], {v(XF,2)}, {v(XF,2)}")
    e(f"v_pk_add_f32 v[68:69], {v(XF+4,2)}, {v(XF+6,2)}"); e(f"v_pk_mul_f32 v[70:71], {v(XF+2,2)}, {v(XF+2,2)}")
    for k in range(2, 8):
        e(f"v_pk_fma_f32 {v(66+4*(k&1),2)}, {v(XF+2*k,2)}, {v(XF+2*k,2)}, {v(66+4*(k&1),2)}")
        if k >= 4: e(f"v_pk_add_f32 {v(64+4*(k&1),2)}, {v(64+4*(k&1),2)}, {v(XF+2*k,2)}")
    e("s_waitcnt lgkmcnt(0)")
    for k in range(2):
        e(f"ds_read_b64_tr_b16 {v(80+4*k,2)}, v15 offset:{32*k}")
        e(f"ds_read_b64_tr_b16 {v(82+4*k,2)}, v15 offset:{32*k + 4*TBP}")
    e("v_pk_add_f32 v[64:65], v[64:65], v[68:69]"); e("v_pk_add_f32 v[66:67], v[66:67], v[70:71]")
    e("v_add_f32 v64, v64, v65"); e("v_add_f32 v65, v66, v67")
    e("v_permlane32_swap_b32 v64, v65")
    e("v_add_f32 v64, v64, v65")
    e(f"s_lshl_b32 {s(sT)}, {s(sWAVE)}, 8"); e(f"s_add_u32 {s(sT)}, {s(sT)}, {ST}"); e(f"v_lshl_add_u32 v66, v1, 2, {s(sT)}")
    e("ds_write_b32 v66, v64")
    e("s_waitcnt lgkmcnt(1)")
    if OPTS.get("nox2") != "1":
        e(f"buffer_store_dwordx4 v[80:83], v16, {s(sSRD,4)}, s6 offen sc1")
        e(f"buffer_store_dwordx4 v[84:87], v16, {s(sSRD,4)}, s6 offen offset:1024 sc1")
    e("s_waitcnt lgkmcnt(0)"); e("s_barrier")
    l = lab("osp")
    e(f"s_cmp_lg_u32 {s(sWAVE)}, 0"); e(f"s_cbranch_scc1 {l}")
    e(f"v_lshlrev_b32 v66, 2, v1"); e(f"v_add_u32 v67, {ST}, v66")
    for k in range(4): e(f"ds_read_b32 {v(68+k)}, v67 offset:{256*k}")
    e(f"s_lshl_b32 {s(sT)}, {s(sRO)}, 10"); e(f"s_add_u32 {s(sT)}, {s(sT)}, {SP}")
    e(f"s_lshl_b32 {s(sT+1)}, {s(sJO)}, 8"); e(f"s_add_u32 {s(sT+1)}, {s(sT+1)}, {s(sT)}")
    e("s_waitcnt lgkmcnt(0)")
    e("v_add_f32 v68, v68, v69"); e("v_add_f32 v70, v70, v71"); e("v_add_f32 v68, v68, v70")
    e(f"buffer_store_dword v68, v66, {s(sSRD,4)}, {s(sT+1)} offen sc1")
    if int(OPTS.get("spre", 5)): e(f"s_sleep {OPTS.get('spre', 5)}")
    lr = lab("spp"); lg = lab("spk")
    A.label(lr)
    for k in range(4): e(f"buffer_load_dword {v(72+k)}, v66, {s(sSRD,4)}, {s(sT)} offen offset:{256*k} sc1")
    e("s_waitcnt vmcnt(0)")
    maxtree([72, 73, 74, 75], 76)
    e("v_cmp_eq_u32 vcc, -1, v76")
    spin_check(lr, lg, bk=1, cid=0)
    e("v_add_f32 v72, v72, v73"); e("v_add_f32 v74, v74, v75"); e("v_add_f32 v72, v72, v74")
    e("v_mov_b32 v73, v72")
    e("v_permlane32_swap_b32 v72, v73")
    stats_final(72, 73, 74, 75, 76)
    e("v_and_b32 v67, 31, v1"); e("v_lshlrev_b32 v67, 3, v67"); e(f"v_add_u32 v67, {ST + 1024}, v67")
    e("ds_write_b64 v67, v[74:75]")
    A.label(l)
    for k in range(8):
        e(f"v_lshlrev_b32 {v(XF+2*k)}, 16, {v(PKD+k)}"); e(f"v_and_b32 {v(XF+2*k+1)}, {s(sHI)}, {v(PKD+k)}")
    e("v_and_b32 v67, 31, v1"); e("v_lshlrev_b32 v67, 3, v67"); e(f"v_add_u32 v67, {ST + 1024}, v67")
    e("s_waitcnt lgkmcnt(0)"); e("s_barrier")
    stamp("o1_sp")
    e("ds_read_b64 v[74:75], v67")
    e("s_waitcnt lgkmcnt(0)")
    for k in range(8): e(f"v_pk_add_f32 {v(XF+2*k,2)}, {v(XF+2*k,2)}, v[74:75] op_sel_hi:[1,0] neg_lo:[0,1] neg_hi:[0,1]")
    for k in range(8): e(f"v_cvt_pk_bf16_f32 {v(PKD+k)}, {v(XF+2*k)}, {v(XF+2*k+1)}")
    for k in range(8):
        e(f"v_lshlrev_b32 {v(XF+2*k)}, 16, {v(PKD+k)}"); e(f"v_and_b32 {v(XF+2*k+1)}, {s(sHI)}, {v(PKD+k)}")
    for k in range(8): e(f"v_pk_mul_f32 {v(XF+2*k,2)}, {v(XF+2*k,2)}, v[74:75] op_sel:[0,1] op_sel_hi:[1,1]")
    for k in range(8): e(f"v_cvt_pk_bf16_f32 {v(PKD+k)}, {v(XF+2*k)}, {v(XF+2*k+1)}")
    TB2 = 4 * 32 * TBP
    e(f"ds_write_b128 v14, {v(PKD,4)} offset:{TB2}"); e(f"ds_write_b128 v14, {v(PKD+4,4)} offset:{TB2 + 16}")
    e(f"s_add_u32 s7, s6, {U2T - X2T}")
    e("s_waitcnt lgkmcnt(0)")
    for k in range(2):
        e(f"ds_read_b64_tr_b16 {v(88+4*k,2)}, v15 offset:{TB2 + 32*k}")
        e(f"ds_read_b64_tr_b16 {v(90+4*k,2)}, v15 offset:{TB2 + 32*k + 4*TBP}")
    e("s_waitcnt vmcnt(0) lgkmcnt(0)")
    e(f"buffer_store_dwordx4 v[88:91], v16, {s(sSRD,4)}, s7 offen sc1")
    e(f"buffer_store_dwordx4 v[92:95], v16, {s(sSRD,4)}, s7 offen offset:1024 sc1")

def build():
    prologue()
    stamp("start")
    idx_loads()
    p0_fills()
    stamp("p_iss")
    e("s_waitcnt vmcnt(6)")
    stamp("p_ld")
    p0_x0_write()
    p0_stats()
    kgen_setup()
    e("s_waitcnt vmcnt(4) lgkmcnt(0)"); e("s_barrier")
    p0_x0_store()
    nonce_issue()
    p0_wfrag()
    stamp("p_st")
    kgen_round(["X1", "X2", "Y1"], 0); kgen_round(["Y2"], 0)
    nonce_get(2)
    p0_stats_store()
    sent_regs(20)
    for g in xt_fill_groups(XT1, 3, 10): emit_group(g)
    stamp("p_s1")
    kgen_round(["X1", "X2", "Y1"], 1); kgen_round(["Y2"], 1)
    arrive(0, vm=0)
    stamp("arr1")
    fg = fill_groups(1, 58, 59)
    def upto_store():
        while fg:
            g = fg.pop(0); emit_group(g)
            if any("buffer_store" in l for l in g): return
    upto_store()
    kgen_round(["X1", "X2"], 2); upto_store(); kgen_round(["X1", "X2"], 3); upto_store()
    stamp("k_tab")
    kgen_mm([], upto_store)
    while fg: upto_store()
    e("s_waitcnt lgkmcnt(0)"); e("s_barrier")
    stamp("kgen")
    if stop_here("K"): return
    conv_setup(1)
    stamp("B1")
    rest = conv(1)
    stamp("C1")
    if stop_here("C1"): return
    for ins in rest:
        for l in ins: e(l)
    g_setup(1)
    e(f"s_waitcnt vmcnt({4 if not rest else 0})")
    colsums()
    stamp("B2")
    gphase(1)
    stamp("G1")
    if stop_here("G1"): return
    ophase(1)
    stamp("O1")
    if stop_here("O1"): return
    e("s_barrier")
    conv_setup(2)
    stamp("B4")
    conv(2)
    stamp("C2")
    if stop_here("C2"): return
    g_setup(2)
    stamp("B5")
    gphase(2)
    stamp("G2")
    if stop_here("G2"): return
    ophase(2)
    if STAMPS:
        e("s_waitcnt vmcnt(0)")
        stamp("O2")
        if OPTS.get("cntv"):
            vals = (("sp_cnt", 90), ("u2_cnt", 91), ("f1_cnt", 92), ("f2_cnt", 93), ("r1_cnt", 94), ("r2_cnt", 95), ("c0_cnt", 96), ("slow_cnt", 97))
            for nm, r in vals: e(f"v_mov_b32 v{100+r-90}, s{r}")
            for nm, r in vals:
                i = len(stnames); stnames.append(nm); e(f"v_readfirstlane_b32 s{84+i}, v{100+r-90}")
        stamps_out()

build()
A.label("L_end")
e("s_endpgm")

def rb_int(j):
    u = struct.unpack("<I", struct.pack("<f", float(j)))[0]
    u = (u + 0x7fff + ((u >> 16) & 1)) & 0xffff0000
    return int(struct.unpack("<f", struct.pack("<I", u))[0])
idx = []
for x in range(2064):
    j = 2047 - x
    if j < 0: ent = 1024
    else:
        t = rb_int(j); ent = t if t < 512 else 512 + (t - 512) // 4
    idx.append(2 * ent)

lines, nn = hazard_pass(A.lines)
probs = check_branches(lines)
for p in probs: print("BRANCH HAZARD:", p, file=sys.stderr)
hdr = open("interleave_layers__ssm_conv_s4d__linear_attn_block__prompt.s.ref").read().split("; Override launch")[0]
out = hdr + "; Override launch geometry by editing the next line.\n"
out += f"; @launch grid=(256,1,1) block=(256,1,1) lds={LDS_BYTES}\n"
out += '.amdgcn_target "amdgcn-amd-amdhsa--gfx950"\n.text\n'
out += f".globl {NAME}\n.p2align 8\n.type {NAME},@function\n{NAME}:\n"
out += "\n".join(lines) + "\n"
out += ".p2align 6\n.type L_idx,@object\nL_idx:\n"
for i in range(0, len(idx), 16): out += "  .short " + ", ".join(str(x) for x in idx[i:i+16]) + "\n"
out += "L_tab_end:\n"
out += f""".section .rodata,"a"
.p2align 6
.amdhsa_kernel {NAME}
  .amdhsa_next_free_vgpr 512
  .amdhsa_next_free_sgpr 102
  .amdhsa_accum_offset 256
  .amdhsa_group_segment_fixed_size 0
  .amdhsa_kernarg_size 104
  .amdhsa_user_sgpr_count 2
  .amdhsa_user_sgpr_kernarg_segment_ptr 1
  .amdhsa_system_sgpr_workgroup_id_x 1
  .amdhsa_float_denorm_mode_32 3
.end_amdhsa_kernel
"""
open(sys.argv[1], "w").write(out)
if STAMPS: open(sys.argv[1] + ".names", "w").write(",".join(stnames))
print(f"wrote {sys.argv[1]}: {len(lines)} lines, {nn} nops inserted; WS_USED={WS_USED:#x}", file=sys.stderr)
```
